```python
import torch

def _softmax(x, axis=-1):
    return torch.softmax(x, dim=axis)
def _gelu(x):
    return torch.nn.functional.gelu(x, approximate="tanh")
def _silu(x):
    return torch.nn.functional.silu(x)
def _sigmoid(x):
    return torch.sigmoid(x)
def _layernorm(x, axis=-1, eps=1e-5):
    m = x.mean(dim=axis, keepdim=True)
    v = x.var(dim=axis, keepdim=True, unbiased=False)
    return (x - m) / torch.sqrt(v + eps)
def _scatter_add(tgt, idx, src, axis=0):
    return tgt.clone().index_add_(axis, idx, src)
def _segment_sum(src, seg, n):
    out = torch.zeros((n,) + src.shape[1:], dtype=src.dtype)
    return out.index_add_(0, seg, src)
def _pad(x, pw):
    flat = tuple(v for pair in reversed(pw) for v in pair)
    return torch.nn.functional.pad(x, flat)

kernel_name = 'sequential_preLN__sliding_block_cached__mixer_token_mlp__decode'

def setup_inputs():

    _w = (lambda a: (lambda t: t.to(torch.bfloat16) if t.is_floating_point() else t)(torch.as_tensor(a)))
    def _A_setup():
        B, Sq, D = 8, 1, 448
        Hq, Hkv, Sk, Dh = 16, 8, 4096, 256
        assert Hq % Hkv == 0, (Hq, Hkv)
        return {
            "x": _w((lambda *s: torch.randn(*s, dtype=torch.bfloat16) * 0.05)(B, Sq, D)),
            "k_cache": _w((lambda *s: torch.randn(*s, dtype=torch.bfloat16) * 0.8)(B, Hkv, Sk, Dh)),
            "v_cache": _w((lambda *s: torch.randn(*s, dtype=torch.bfloat16) * 0.8)(B, Hkv, Sk, Dh)),
            "wq": _w((lambda *s: torch.randn(*s, dtype=torch.bfloat16) * 0.8)(D, Hq * Dh) * (D ** -0.5)),
            "wo": _w((lambda *s: torch.randn(*s, dtype=torch.bfloat16) * 0.8)(Hq * Dh, D) * ((Hq * Dh) ** -0.5)),
        }
    _A_in = _A_setup()

    def _B_setup():
        B, S, D, F = 8, 1, 448, 1792
        return {
            "x": _w((lambda *s: torch.randn(*s, dtype=torch.bfloat16) * 0.05)(B, S, D)),
            "w1": _w((lambda *s: torch.randn(*s, dtype=torch.bfloat16) * 0.2)(S, F) * (S ** -0.5)),
            "b1": _w((lambda *s: torch.randn(*s, dtype=torch.bfloat16) * 0.2)(F) * 0.02),
            "w2": _w((lambda *s: torch.randn(*s, dtype=torch.bfloat16) * 0.2)(F, S) * (F ** -0.5)),
            "b2": _w((lambda *s: torch.randn(*s, dtype=torch.bfloat16) * 0.2)(S) * 0.02),
        }
    _B_in = _B_setup()

    return {
        "A_x": _A_in["x"],
        "A_k_cache": _A_in["k_cache"],
        "A_v_cache": _A_in["v_cache"],
        "A_wq": _A_in["wq"],
        "A_wo": _A_in["wo"],
        "B_x": _B_in["x"],
        "B_w1": _B_in["w1"],
        "B_b1": _B_in["b1"],
        "B_w2": _B_in["w2"],
        "B_b2": _B_in["b2"],
    }

def reference(A_x, A_k_cache, A_v_cache, A_wq, A_wo, B_x, B_w1, B_b1, B_w2, B_b2):
    def _A_ref(x, k_cache, v_cache, wq, wo):
        B, Sq, D = x.shape
        Hq, Dh = 16, 256
        Hkv, Sk = k_cache.shape[1], k_cache.shape[2]
        W = min(4096, max(256, Sk // 4))
        rep = Hq // Hkv
        q = (lambda x, *d: x.permute(*d))((x @ wq).reshape(B, Sq, Hq, Dh), 0, 2, 1, 3)
        k = (lambda x, n, axis: torch.repeat_interleave(x, n, dim=axis))(k_cache[:, :, Sk - W:, :], rep, axis=1)
        v = (lambda x, n, axis: torch.repeat_interleave(x, n, dim=axis))(v_cache[:, :, Sk - W:, :], rep, axis=1)
        scores = torch.einsum("bhqd,bhkd->bhqk", q, k) * (Dh ** -0.5)
        p = _softmax(scores, axis=-1)
        o = torch.einsum("bhqk,bhkd->bhqd", p, v)
        return (lambda x, *d: x.permute(*d))(o, 0, 2, 1, 3).reshape(B, Sq, Hq * Dh) @ wo

    def _B_ref(x, w1, b1, w2, b2):
        B, S, D = x.shape
        h = _layernorm(x, axis=-1)
        u = torch.einsum("bsd,sf->bdf", h, w1) + b1
        u = _gelu(u)
        y = torch.einsum("bdf,fs->bds", u, w2) + b2
        return (lambda x, *d: x.permute(*d))(y, 0, 2, 1)

    x = A_x
    h = x + _A_ref(_layernorm(x, axis=-1), A_k_cache, A_v_cache, A_wq, A_wo)
    h2 = h + _B_ref(_layernorm(h, axis=-1), B_w1, B_b1, B_w2, B_b2)
    return h2
```

```python
import re

REG = re.compile(r'^(-?\|?|abs\(|-abs\()?([vsa])(\d+|\[(\d+):(\d+)\])\)?\|?$')

def regs_of(tok):
    tok = tok.strip()
    if tok in ('vcc',): return {('s', 'vcc')}
    if tok in ('vcc_lo', 'vcc_hi'): return {('s', 'vcc')}
    if tok in ('exec', 'exec_lo', 'exec_hi'): return {('s', 'exec')}
    if tok == 'm0': return {('s', 'm0')}
    m = REG.match(tok)
    if not m: return set()
    f = m.group(2)
    if m.group(4) is not None:
        return {(f, i) for i in range(int(m.group(4)), int(m.group(5)) + 1)}
    return {(f, int(m.group(3)))}

TRANS = ('v_exp_', 'v_log_', 'v_rcp_', 'v_rsq_', 'v_sqrt_', 'v_sin_', 'v_cos_')

class Ins:
    def __init__(self, text):
        self.text = text
        t = text.split(';')[0].strip()
        self.label = None; self.op = None; self.directive = False
        self.w = set(); self.r = set(); self.ws = 0
        if not t: return
        if t.endswith(':'):
            self.label = t[:-1]; return
        if t.startswith('.'):
            self.directive = True; return
        parts = t.split(None, 1)
        self.op = op = parts[0]
        rest = parts[1] if len(parts) > 1 else ''
        ops = []; cur = ''; depth = 0
        for ch in rest:
            if ch in '[(': depth += 1
            if ch in '])': depth -= 1
            if ch == ',' and depth == 0:
                ops.append(cur.strip()); cur = ''
            else: cur += ch
        if cur.strip(): ops.append(cur.strip())
        mods = ''
        if ops:
            last = ops[-1].split(None, 1)
            ops[-1] = last[0]
            mods = last[1] if len(last) > 1 else ''
        self.ops = ops; self.mods = mods
        self.ws = 1
        if op == 's_nop': self.ws = int(ops[0], 0) + 1
        R = [regs_of(o) for o in ops]
        U = lambda xs: set().union(*xs) if xs else set()
        self.valu = op.startswith('v_')
        self.mfma = op.startswith('v_mfma')
        self.trans = op.startswith(TRANS)
        self.dpp = self.valu and any(k in mods for k in ('row_', 'quad_perm', 'wave_'))
        self.vmem = op.startswith(('buffer_', 'global_'))
        self.ds = op.startswith('ds_')
        self.salu = op.startswith('s_')
        self.permlane = op.startswith('v_permlane')
        self.ldsdma = self.vmem and (' lds' in (' ' + mods) or 'load_lds' in op)
        self.widestore = False
        self.srcC = set(); self.srcAB = set()
        if self.mfma:
            self.w = R[0]; self.srcAB = R[1] | R[2]; self.srcC = R[3]; self.r = self.srcAB | self.srcC
            self.passes = 8 if '32x32x16' in op else 4
            assert ('32x32x16_bf16' in op) or ('16x16x32_bf16' in op), op
        elif self.permlane:
            self.w = R[0] | R[1]; self.r = R[0] | R[1]
        elif self.valu:
            if op.startswith(('v_add_co', 'v_sub_co', 'v_addc_co', 'v_subb_co')):
                self.w = R[0] | R[1]; self.r = U(R[2:])
            else:
                self.w = R[0]; self.r = U(R[1:])
            if op.startswith(('v_fmac', 'v_pk_fmac', 'v_dot2c', 'v_writelane')) or self.dpp:
                self.r |= R[0]
        elif self.ds:
            if op.startswith(('ds_read', 'ds_bpermute', 'ds_permute', 'ds_swizzle')) or '_rtn' in op:
                self.w = R[0]; self.r = U(R[1:])
            else:
                self.r = U(R)
        elif self.vmem:
            if 'load' in op and not self.ldsdma:
                self.w = R[0]; self.r = U(R[1:])
                if 'd16' in op: self.r |= R[0]
            elif 'atomic' in op and 'sc0' in mods:
                self.w = R[0]; self.r = U(R)
            else:
                self.r = U(R)
                if op.endswith(('x3', 'x4')) and 'store' in op:
                    self.widestore = True
                    self.stdata = R[0] if op.startswith('buffer_') else R[1]
            if self.ldsdma: self.r |= {('s', 'm0')}
        elif self.salu:
            if op.startswith(('s_cmp', 's_bitcmp', 's_cbranch', 's_branch', 's_waitcnt', 's_nop', 's_barrier', 's_sleep', 's_setprio', 's_endpgm')):
                self.r = U(R)
            else:
                self.w = R[0] if R else set(); self.r = U(R[1:])
                if 'saveexec' in op: self.w |= {('s', 'exec')}
        self.branch = op.startswith(('s_cbranch', 's_branch'))
        self.uncond = op in ('s_branch', 's_endpgm')
        self.target = ops[0] if self.branch else None

def isv(rs): return {x for x in rs if x[0] in 'va'}
def iss(rs): return {x for x in rs if x[0] == 's'}

def need(p, c):
    n = 0
    if p.mfma:
        d = p.w
        if c.mfma:
            if d & c.srcAB: n = max(n, 8 if p.passes == 4 else 12)
            if d & c.srcC:
                if not (d == c.srcC and p.passes == c.passes): n = max(n, 6 if p.passes == 4 else 10)
            if (d & c.w) and not (d & c.srcC):
                n = max(n, 8 if p.passes == 4 else 12)
        elif (c.valu or c.vmem or c.ds) and (d & (c.r | c.w)):
            n = max(n, 8 if p.passes == 4 else 12)
        if c.valu and not c.mfma and (p.srcC & c.w): n = max(n, 3 if p.passes == 4 else 7)
        return n
    if p.valu:
        vw = isv(p.w); sw = iss(p.w)
        if c.mfma and (vw & c.r): n = max(n, 2)
        if c.valu and not c.mfma:
            if c.dpp and (vw & c.r): n = max(n, 2)
            if c.permlane and (vw & c.r): n = max(n, 2)
            if c.op.startswith(('v_readlane', 'v_readfirstlane')) and (vw & c.r): n = max(n, 1)
            if p.trans and (vw & c.r): n = max(n, 1)
            if ('op_sel' in p.mods or 'dst_sel' in p.mods) and not p.op.startswith('v_pk') and (vw & (c.r | c.w)): n = max(n, 1)
            if sw & c.r:
                n = max(n, 4 if c.op.startswith(('v_readlane', 'v_writelane')) else 2)
            if ('s', 'vcc') in sw and c.op.startswith(('v_cndmask', 'v_addc', 'v_subb')): n = max(n, 2)
        if c.vmem and (sw & c.r): n = max(n, 5)
        if c.salu and (sw & c.r): n = max(n, 1)
        if c.op.startswith('s_cbranch_vcc') and ('s', 'vcc') in sw: n = max(n, 1)
    elif (p.vmem or p.ds):
        pass
    if p.salu and ('s', 'm0') in p.w and c.ldsdma: n = max(n, 1)
    if p.widestore and (p.stdata & c.w): n = max(n, 2 if c.valu else 1)
    return n

def fix_hazards(lines, maxd=13):
    ins = [Ins(l) for l in lines]
    changed = True; total = 0
    while changed:
        changed = False
        labels = {x.label: i for i, x in enumerate(ins) if x.label}
        srcs = {}
        for i, x in enumerate(ins):
            if x.op and x.branch: srcs.setdefault(labels[x.target], []).append(i)
        for i, c in enumerate(ins):
            if not c.op: continue
            short = 0
            stack = [(i - 1, 0, True)]; seen = set()
            while stack:
                j, dist, ft = stack.pop()
                if j < 0 or dist >= maxd or (j, dist, ft) in seen: continue
                seen.add((j, dist, ft))
                p = ins[j]
                if p.op:
                    if ft and p.uncond: continue
                    short = max(short, need(p, c) - dist)
                    stack.append((j - 1, dist + p.ws, True))
                else:
                    if p.label:
                        for b in srcs.get(j, []): stack.append((b, dist, False))
                    stack.append((j - 1, dist, True))
            if short > 0:
                ins.insert(i, Ins(f'    s_nop {short - 1}    ; hazard'))
                total += short
                changed = True
                break
    return [x.text for x in ins], total

class Asm:
    def __init__(self):
        self.L = []
    def __call__(self, s):
        for l in s.split('\n'):
            l = l.strip()
            if not l: continue
            self.L.append(l if l.endswith(':') or l.startswith(('.', ';')) else '    ' + l)
    def c(self, s):
        self.L.append('    ; ' + s)

def vr(a, n=1):
    return f'v{a}' if n == 1 else f'v[{a}:{a+n-1}]'
def sr(a, n=1):
    return f's{a}' if n == 1 else f's[{a}:{a+n-1}]'

class Alloc:
    def __init__(self, start, limit):
        self.p = start; self.limit = limit; self.hi = start
    def __call__(self, n=1, align=None):
        if align is None: align = 1 if n == 1 else (2 if n < 4 else 4)
        self.p = (self.p + align - 1) // align * align
        a = self.p; self.p += n
        assert self.p <= self.limit, (self.p, self.limit)
        self.hi = max(self.hi, self.p)
        return a
```

```python
import sys, struct, math
from asmlib import *

NAME = "sequential_preLN__sliding_block_cached__mixer_token_mlp__decode_kernel"
def f32(x): return "0x%08x" % struct.unpack("<I", struct.pack("<f", x))[0]

L_K = 0; L_WQ = 131072; L_Q = 145408; L_STAT = 146432; L_OP = 146688; L_PP = 154880; L_H = 156928; L_Y = 158976
L_END = 159232
W_Q = 0
W_O = 0x20000
W_B = 0x60000
W_STAMP = 0x100000
SPIN = 0x20000

STAMP_VIEW = [("S", slice(4, 8), list(range(7))), ("T0", 0, [0, 1, 2, 3, 4]), ("T3L", 3, [0, 1, 4], slice(224, 240)),
              ("T1", 1, [0, 4, 1, 2, 3, 5, 6, 7, 8, 9, 10, 11, 12, 13])]
ALPHA = -2.0 * math.sqrt(2.0 / math.pi) * math.log2(math.e)
BETA = ALPHA * 0.044715

def gen(W=8, NV1=20, rot=None, stamps=False, force_slow=False, pol="nt"):
    A = Asm()
    rot = rot or dict(t=(1, 0), k=(1, 2), v=(1, 1), d=(1, 0))
    stamp_n = [0]
    def stamp(i):
        if stamps: A(f"s_memrealtime s[{64+2*i}:{65+2*i}]")
    def dump_stamps(nst):
        if not stamps: return
        A("s_waitcnt lgkmcnt(0) vmcnt(0)")
        A("s_lshl_b32 s90, s2, 3"); A("s_add_u32 s90, s90, s30"); A("s_lshl_b32 s90, s90, 6"); A(f"s_add_u32 s90, s90, {W_STAMP}")
        A("s_mov_b64 exec, 1")
        A("v_mov_b32 v250, s90")
        for i in range(nst):
            A(f"v_mov_b32 v251, s{64+2*i}")
            A(f"global_store_dword v250, v251, s[28:29] offset:{4*i}")
        A("s_waitcnt vmcnt(0)")

    A(f"{NAME}:")
    A("s_cmp_ge_u32 s2, 0x100")
    A("s_cbranch_scc1 L_end")
    stamp(0)
    A("s_load_dwordx16 s[4:19], s[0:1], 0")
    A("s_load_dwordx8 s[20:27], s[0:1], 64")
    A("s_load_dwordx2 s[28:29], s[0:1], 96")
    A("v_lshrrev_b32 v1, 6, v0")
    A("v_and_b32 v0, 63, v0")
    A("v_readfirstlane_b32 s30, v1")
    A("s_and_b32 s31, s2, 7")
    A("s_lshr_b32 s32, s2, 3")
    A("v_and_b32 v1, 15, v0")
    A("v_lshrrev_b32 v2, 4, v0")
    A("s_cmp_lt_u32 s30, 4")
    A("s_cbranch_scc1 L_T")

    A.c("================ stream waves")
    V = Alloc(3, 256)
    vK = V(8); vVo = V(8); vKA = V(4); vQA = V(); vM = V(4); vT = V(8); vOPa = V(2); vSTw = V(); vSTr = V()
    vS = V(16); vAcc = vK; vQ = V(32); vKF = V(32); vVv = V(128)
    vA = vQ
    assert vKF == vQ + 32
    A("s_sub_u32 s33, s30, 4")
    A("s_lshr_b32 s34, s2, 5"); A("s_lshl_b32 s34, s34, 3"); A("s_add_u32 s34, s34, s31")
    A("s_lshl_b32 s34, s34, 21"); A("s_add_u32 s34, s34, 0x180000")
    A("s_and_b32 s35, s32, 3"); A("s_lshl_b32 s35, s35, 17"); A("s_add_u32 s34, s34, s35")
    def lin(dst, key):
        a, b = rot[key]
        A(f"s_mul_i32 {dst}, s32, {a}"); A(f"s_mul_i32 s35, s33, {b}"); A(f"s_add_u32 {dst}, {dst}, s35")
    lin("s36", "t"); A("s_add_u32 s36, s36, s33")
    for tl in range(4):
        A(f"s_add_u32 s35, s36, {4*tl}"); A("s_and_b32 s35, s35, 15"); A("s_lshl_b32 s35, s35, 13"); A(f"s_add_u32 s{40+tl}, s34, s35")
    lin("s36", "k")
    A(f"v_lshrrev_b32 {vr(vT)}, 5, v0")
    A(f"v_and_b32 {vr(vT+1)}, 31, v0")
    A(f"v_lshlrev_b32 {vr(vT+2)}, 2, {vr(vT)}")
    A(f"v_xor_b32 {vr(vT+1)}, {vr(vT+1)}, {vr(vT+2)}")
    A(f"v_lshlrev_b32 {vr(vT+1)}, 4, {vr(vT+1)}")
    A(f"v_lshl_add_u32 {vr(vT+1)}, {vr(vT)}, 9, {vr(vT+1)}")
    A("s_lshl_b32 s37, s33, 15")
    for i in range(8):
        A(f"s_add_u32 s35, s36, {i}"); A("s_and_b32 s35, s35, 7")
        A("s_and_b32 s38, s35, 1"); A("s_lshl_b32 s38, s38, 3"); A("s_lshr_b32 s39, s35, 1"); A("s_or_b32 s38, s38, s39")
        A("s_lshl_b32 s38, s38, 4"); A("s_lshl_b32 s35, s35, 10"); A("s_or_b32 s38, s38, s35")
        A(f"v_xor_b32 {vr(vK+i)}, s38, {vr(vT+1)}")
        A(f"s_add_u32 s{44+i}, s37, s35")
    A("s_mov_b32 s54, 0x8000000"); A("s_mov_b32 s55, 0x20000")
    A("s_mov_b32 s58, 0x8000000"); A("s_mov_b32 s59, 0x20000")
    A("s_waitcnt lgkmcnt(0)")
    A("s_mov_b32 s52, s6"); A("s_mov_b32 s53, s7")
    A("s_mov_b32 s56, s8"); A("s_mov_b32 s57, s9")
    issued = [0]
    def throttle():
        if issued[0] >= W: A(f"s_waitcnt vmcnt({W-1})")
        issued[0] += 1
    def kload(tl, i):
        A(f"s_add_u32 m0, s{44+i}, {tl*8192}")
        throttle()
        A(f"buffer_load_dwordx4 {vr(vK+i)}, s[52:55], s{40+tl} offen {pol} lds")
    def vload(idx):
        tl, e = idx >> 3, idx & 7
        throttle()
        A(f"buffer_load_dwordx4 {vr(vVv+4*idx,4)}, {vr(vVo+e)}, s[56:59], s{40+tl} offen {pol}")
    for i in range(8): kload(0, i)
    lin("s60", "v"); A("s_and_b32 s60, s60, 3")
    lin("s61", "d"); A("s_and_b32 s61, s61, 1")
    A(f"v_lshlrev_b32 {vr(vT)}, 4, v1"); A(f"v_lshl_add_u32 {vr(vT)}, v2, 9, {vr(vT)}")
    for r in range(4):
        for dh in range(2):
            A(f"s_add_u32 s35, s60, {r}"); A("s_and_b32 s35, s35, 3"); A("s_lshl_b32 s35, s35, 11")
            A(f"s_xor_b32 s38, s61, {dh}"); A("s_lshl_b32 s38, s38, 8"); A("s_add_u32 s35, s35, s38")
            A(f"v_add_u32 {vr(vVo+2*r+dh)}, s35, {vr(vT)}")
    A(f"v_add_u32 {vr(vT)}, s60, v1"); A(f"v_and_b32 {vr(vT)}, 3, {vr(vT)}")
    A(f"v_lshrrev_b32 {vr(vT+1)}, 2, v1")
    A(f"v_lshl_add_u32 {vr(vT+2)}, {vr(vT)}, 2, {vr(vT+1)}")
    A(f"v_lshl_add_u32 {vr(vT+3)}, {vr(vT+1)}, 2, {vr(vT)}")
    A(f"v_xor_b32 {vr(vT+3)}, {vr(vT+3)}, v2")
    A(f"v_lshlrev_b32 {vr(vT+2)}, 9, {vr(vT+2)}"); A(f"v_add_u32 {vr(vT+2)}, s37, {vr(vT+2)}")
    for t in range(4):
        A(f"v_xor_b32 {vr(vT+4)}, {4*t}, {vr(vT+3)}")
        A(f"v_lshl_add_u32 {vr(vKA+t)}, {vr(vT+4)}, 4, {vr(vT+2)}")
    A(f"v_lshrrev_b32 {vr(vT)}, 3, v1")
    A(f"v_lshlrev_b32 {vr(vQA)}, 9, {vr(vT)}"); A(f"v_lshl_add_u32 {vr(vQA)}, v2, 4, {vr(vQA)}")
    A(f"v_add_u32 {vr(vQA)}, {L_Q}, {vr(vQA)}")
    A(f"v_lshlrev_b32 {vr(vSTr)}, 5, {vr(vT)}"); A(f"v_add_u32 {vr(vSTr)}, {L_STAT}, {vr(vSTr)}")
    A("s_lshl_b32 s35, s33, 2"); A(f"v_add_u32 {vr(vSTw)}, s35, {vr(vSTr)}")
    A(f"v_and_b32 {vr(vT)}, 1, v1"); A(f"v_lshlrev_b32 {vr(vT)}, 4, {vr(vT)}")
    A(f"v_mov_b32 {vr(vT+1)}, 0xffff"); A(f"v_lshlrev_b32 {vr(vT+1)}, {vr(vT)}, {vr(vT+1)}")
    A(f"v_bfe_u32 {vr(vT)}, v1, 1, 2")
    for i in range(4):
        A(f"v_cmp_eq_u32 vcc, {i}, {vr(vT)}")
        A(f"v_cndmask_b32 {vr(vM+i)}, 0, {vr(vT+1)}, vcc")
    A(f"v_and_b32 {vr(vT)}, 1, v2"); A(f"v_lshlrev_b32 {vr(vT)}, 10, {vr(vT)}")
    A(f"v_lshrrev_b32 {vr(vT+1)}, 1, v2"); A(f"v_lshl_add_u32 {vr(vT)}, {vr(vT+1)}, 9, {vr(vT)}")
    A(f"v_lshl_add_u32 {vr(vT)}, v1, 4, {vr(vT)}")
    A("s_lshl_b32 s35, s33, 11"); A(f"s_add_u32 s35, s35, {L_OP}")
    for dh in range(2):
        A(f"s_xor_b32 s38, s61, {dh}"); A("s_lshl_b32 s38, s38, 8"); A("s_add_u32 s38, s38, s35")
        A(f"v_add_u32 {vr(vOPa+dh)}, s38, {vr(vT)}")
    for tl in range(1, 4):
        for i in range(8): kload(tl, i)
    for idx in range(NV1): vload(idx)
    nv = [NV1]
    def more(k):
        for _ in range(k):
            if nv[0] < 32:
                vload(nv[0]); nv[0] += 1
    A(f"s_waitcnt vmcnt({min(NV1, 63)})")
    stamp(1)
    A("s_barrier")
    stamp(2)
    for t in range(8):
        A(f"ds_read_b128 {vr(vQ+4*t,4)}, {vr(vQA)} offset:{64*t}")
    for tl in range(4):
        for t in range(8):
            A(f"ds_read_b128 {vr(vKF+4*t,4)}, {vr(vKA+(t&3))} offset:{tl*8192 + (t>>2)*256}")
        for t in range(8):
            A(f"s_waitcnt lgkmcnt({7-t})")
            c = "0" if t == 0 else vr(vS+4*tl, 4)
            A(f"v_mfma_f32_16x16x32_bf16 {vr(vS+4*tl,4)}, {vr(vKF+4*t,4)}, {vr(vQ+4*t,4)}, {c}")
        more(2 if tl < 3 else 1)
    SC = math.log2(math.e) / 16.0
    A(f"s_mov_b32 s35, {f32(SC)}")
    mx = vT; cp = vT + 1; ls = vT + 2
    A(f"v_max3_f32 {vr(mx)}, {vr(vS)}, {vr(vS+1)}, {vr(vS+2)}")
    for i in range(3, 15, 2):
        A(f"v_max3_f32 {vr(mx)}, {vr(mx)}, {vr(vS+i)}, {vr(vS+i+1)}")
    A(f"v_max_f32 {vr(mx)}, {vr(mx)}, {vr(vS+15)}")
    def xg(x, op):
        for sw in ("v_permlane32_swap_b32", "v_permlane16_swap_b32"):
            A(f"v_mov_b32 {vr(cp)}, {vr(x)}")
            A(f"{sw} {vr(x)}, {vr(cp)}")
            A(f"{op} {vr(x)}, {vr(x)}, {vr(cp)}")
    xg(mx, "v_max_f32")
    A(f"v_mul_f32 {vr(mx)}, s35, {vr(mx)}")
    for i in range(16):
        A(f"v_fma_f32 {vr(vS+i)}, {vr(vS+i)}, s35, -{vr(mx)}")
    for i in range(16):
        A(f"v_exp_f32 {vr(vS+i)}, {vr(vS+i)}")
    A(f"v_add_f32 {vr(ls)}, {vr(vS)}, {vr(vS+1)}")
    for i in range(2, 16):
        A(f"v_add_f32 {vr(ls)}, {vr(ls)}, {vr(vS+i)}")
    xg(ls, "v_add_f32")
    A(f"ds_write2_b32 {vr(vSTw)}, {vr(mx)}, {vr(ls)} offset0:0 offset1:4")
    more(1)
    A("s_waitcnt lgkmcnt(0)")
    A("s_barrier")
    stamp(3)
    def stats(m4, l4, M, Lr, tmp):
        A(f"v_max3_f32 {vr(M)}, {vr(m4)}, {vr(m4+1)}, {vr(m4+2)}"); A(f"v_max_f32 {vr(M)}, {vr(M)}, {vr(m4+3)}")
        for i in range(4): A(f"v_sub_f32 {vr(m4+i)}, {vr(m4+i)}, {vr(M)}")
        for i in range(4): A(f"v_exp_f32 {vr(m4+i)}, {vr(m4+i)}")
        A(f"v_mul_f32 {vr(Lr)}, {vr(m4)}, {vr(l4)}")
        for i in range(1, 4): A(f"v_fmac_f32 {vr(Lr)}, {vr(m4+i)}, {vr(l4+i)}")
    A(f"ds_read_b128 {vr(vAcc,4)}, {vr(vSTr)}")
    A(f"ds_read_b128 {vr(vAcc+4,4)}, {vr(vSTr)} offset:16")
    more(1)
    A("s_waitcnt lgkmcnt(0)")
    stats(vAcc, vAcc + 4, vT + 3, vT + 4, None)
    A(f"v_sub_f32 {vr(mx)}, {vr(mx)}, {vr(vT+3)}")
    A(f"v_exp_f32 {vr(mx)}, {vr(mx)}")
    A(f"v_rcp_f32 {vr(vT+4)}, {vr(vT+4)}")
    A(f"v_mul_f32 {vr(mx)}, {vr(mx)}, {vr(vT+4)}")
    for i in range(16):
        A(f"v_mul_f32 {vr(vS+i)}, {vr(vS+i)}, {vr(mx)}")
        A(f"v_cvt_pk_bf16_f32 {vr(vS+i)}, {vr(vS+i)}, {vr(vS+i)}")
        for k in range(4):
            A(f"v_and_b32 {vr(vA+4*i+k)}, {vr(vS+i)}, {vr(vM+k)}")
        if i % 4 == 3: more(1)
    more(32)
    stamp(4)
    for idx in range(32):
        i, dh = idx >> 1, idx & 1
        if 31 - idx < W: A(f"s_waitcnt vmcnt({31-idx})")
        c = "0" if i == 0 else vr(vAcc+4*dh, 4)
        A(f"v_mfma_f32_16x16x32_bf16 {vr(vAcc+4*dh,4)}, {vr(vA+4*i,4)}, {vr(vVv+4*idx,4)}, {c}")
    for dh in range(2):
        A(f"ds_write_b128 {vr(vOPa+dh)}, {vr(vAcc+4*dh,4)}")
    stamp(5)
    A("s_waitcnt lgkmcnt(0)")
    A("s_barrier")
    def bsetup():
        A("s_sub_u32 s35, s30, 1"); A("s_add_u32 s35, s35, s31"); A("s_and_b32 s35, s35, 7")
        A("s_lshl_b32 s38, s31, 3"); A("s_add_u32 s35, s35, s38"); A("s_mul_i32 s35, s35, 1792"); A(f"s_add_u32 s35, s35, {W_B}")
        A("v_lshlrev_b32 v3, 4, v0"); A("v_add_u32 v3, s35, v3")
        A("v_mul_u32_u24 v4, 12, v0"); A("v_add_u32 v4, s35, v4")
        A("v_lshlrev_b32 v5, 2, v0"); A(f"v_add_u32 v5, {L_H}, v5")
    def bpoll(tag):
        A("s_mov_b32 s35, 0")
        A(f"L_bpoll{tag}:")
        A("global_load_dwordx4 v[8:11], v3, s[28:29] sc1")
        A("global_load_dwordx3 v[12:14], v4, s[28:29] offset:1024 sc1")
        A("s_add_u32 s35, s35, 1")
        A(f"s_cmp_ge_u32 s35, {SPIN}")
        A("s_waitcnt vmcnt(0)")
        A("v_max3_u32 v6, v8, v9, v10"); A("v_max3_u32 v7, v11, v12, v13"); A("v_max3_u32 v6, v6, v7, v14")
        A("v_cmp_eq_u32 vcc, -1, v6")
        A(f"s_cbranch_scc1 L_bdone{tag}")
        A(f"s_cbranch_vccnz L_bpoll{tag}")
        A(f"L_bdone{tag}:")
        for i in range(7):
            A(f"ds_add_f32 v5, v{8+i} offset:{256*i}")
        A("s_waitcnt lgkmcnt(0)")
    bsetup()
    A("s_barrier")
    bpoll("S")
    stamp(6)
    A("s_barrier")
    dump_stamps(7)
    A("s_endpgm")

    A("L_T:")
    A.c("================ tail waves")
    V = Alloc(16, 250)
    vC = V(56); vWE = V(16); vWO = V(16); vRaw = V(32); vX = V(56); vT = V(24)
    vHa = V(); vHf = V(2); vYa = V(); vK1 = V(6); vLa = V(); vOa = V(); vPPa = V(); vBst = V(); vOst = V(); vLst = V(); vLse = V(); vDb = V()
    A("s_cmp_eq_u32 s30, 0"); A("s_cbranch_scc0 L_T123")
    A.c("T0: q projection")
    A("s_setprio 2")
    A(f"v_and_b32 {vr(vT)}, 7, v1"); A(f"v_mul_u32_u24 {vr(vT)}, 896, {vr(vT)}"); A(f"v_lshl_add_u32 {vr(vT)}, v2, 4, {vr(vT)}")
    A(f"v_lshrrev_b32 {vr(vT+1)}, 1, v0"); A(f"v_lshlrev_b32 {vr(vT+1)}, 13, {vr(vT+1)}")
    A(f"v_and_b32 {vr(vT+2)}, 1, v0"); A(f"v_lshl_add_u32 {vr(vT+1)}, {vr(vT+2)}, 4, {vr(vT+1)}")
    A("s_lshl_b32 s33, s31, 10"); A("s_lshl_b32 s34, s32, 5"); A("s_add_u32 s33, s33, s34")
    A("s_mov_b32 s54, 0x380000"); A("s_mov_b32 s55, 0x20000")
    A("s_mov_b32 s36, 0x00ff00ff"); A("s_mov_b32 s37, 0x00ff00ff")
    A("s_mov_b32 s34, 0x3f803f80")
    for i in range(56): A(f"v_mov_b32 {vr(vX+i)}, s34")
    A("s_waitcnt lgkmcnt(0)")
    A("s_mov_b32 s52, s10"); A("s_mov_b32 s53, s11")
    for t in range(14):
        A(f"s_mov_b32 m0, {L_WQ + 1024*t}")
        A(f"buffer_load_dwordx4 {vr(vT+1)}, s[52:55], s33 offen {pol} lds")
        if t < 13: A("s_add_u32 s33, s33, 0x40000")
    A("s_mov_b64 exec, s[36:37]")
    for t in range(14):
        A(f"global_load_dwordx4 {vr(vX+4*t,4)}, {vr(vT)}, s[4:5] offset:{64*t} {pol}")
    A("s_mov_b64 exec, -1")
    A("s_lshl_b32 s33, s31, 2"); A(f"v_mov_b32 {vr(vDb)}, s33")
    A(f"global_load_dword {vr(vT+20)}, {vr(vDb)}, s[26:27] sc1")
    A(f"v_lshlrev_b32 {vr(vT+2)}, 3, v1"); A(f"v_lshl_add_u32 {vr(vT+2)}, v2, 8, {vr(vT+2)}"); A(f"v_add_u32 {vr(vT+2)}, {L_WQ}, {vr(vT+2)}")
    A(f"v_bfe_u32 {vr(vT+3)}, v1, 2, 1"); A(f"v_lshl_add_u32 {vr(vT+3)}, {vr(vT+3)}, 4, v1"); A(f"v_lshlrev_b32 {vr(vT+3)}, 2, {vr(vT+3)}")
    A(f"v_lshlrev_b32 {vr(vT+4)}, 2, v1"); A(f"v_add_u32 {vr(vT+4)}, 128, {vr(vT+4)}")
    A(f"v_and_b32 {vr(vT+5)}, 3, v1")
    for i in range(1, 4): A(f"v_cmp_eq_u32 s[{38+2*i}:{39+2*i}], {i}, {vr(vT+5)}")
    A(f"v_lshlrev_b32 {vr(vT+5)}, 10, v1"); A(f"v_lshl_add_u32 {vr(vT+5)}, v2, 3, {vr(vT+5)}")
    A("s_lshl_b32 s33, s31, 14"); A("s_lshl_b32 s34, s32, 5"); A("s_add_u32 s33, s33, s34"); A(f"v_add_u32 {vr(vT+5)}, s33, {vr(vT+5)}")
    A("s_waitcnt vmcnt(1)")
    stamp(1)
    D1 = vT + 8; D2 = vT + 12
    wf = vC
    for t0 in (0, 7):
        for t in range(t0, t0 + 7):
            A(f"ds_read_b64_tr_b16 {vr(wf+4*t,2)}, {vr(vT+2)} offset:{1024*t}")
            A(f"ds_read_b64_tr_b16 {vr(wf+4*t+2,2)}, {vr(vT+2)} offset:{1024*t+128}")
        for t in range(t0, t0 + 7):
            c = "0" if t == 0 else vr(D2, 4)
            A(f"v_mfma_f32_16x16x32_bf16 {vr(D2,4)}, {vr(vX+4*t,4)}, {vr(vX+4*t,4)}, {c}")
        A("s_waitcnt lgkmcnt(0)")
        for t in range(t0, t0 + 7):
            c = "0" if t == 0 else vr(D1, 4)
            A(f"v_mfma_f32_16x16x32_bf16 {vr(D1,4)}, {vr(wf+4*t,4)}, {vr(vX+4*t,4)}, {c}")
    for i in range(1, 4): A(f"v_cndmask_b32 {vr(D2)}, {vr(D2)}, {vr(D2+i)}, s[{38+2*i}:{39+2*i}]")
    A(f"ds_bpermute_b32 {vr(vT+6)}, {vr(vT+3)}, {vr(D2)}")
    A(f"ds_bpermute_b32 {vr(vT+7)}, {vr(vT+4)}, {vr(D2)}")
    A(f"s_mov_b32 s33, {f32(1.0/448)}")
    A("s_waitcnt lgkmcnt(0)")
    A(f"v_mul_f32 {vr(vT+7)}, s33, {vr(vT+7)}")
    A(f"v_mul_f32 {vr(vT+6)}, s33, {vr(vT+6)}")
    A(f"v_fma_f32 {vr(vT+6)}, -{vr(vT+7)}, {vr(vT+7)}, {vr(vT+6)}")
    A(f"v_max_f32 {vr(vT+6)}, 0, {vr(vT+6)}")
    A(f"v_add_f32 {vr(vT+6)}, {f32(1e-5)}, {vr(vT+6)}")
    A(f"v_rsq_f32 {vr(vT+6)}, {vr(vT+6)}")
    for i in range(4):
        A(f"v_mul_f32_dpp {vr(D2+i)}, {vr(D1+i)}, {vr(vT+7)} row_newbcast:8 row_mask:0xf bank_mask:0xf")
    for i in range(4):
        A(f"v_sub_f32 {vr(D1+i)}, {vr(D1+i)}, {vr(D2+i)}")
        A(f"v_mul_f32 {vr(D1+i)}, {vr(D1+i)}, {vr(vT+6)}")
    A(f"v_cvt_pk_bf16_f32 {vr(D1)}, {vr(D1)}, {vr(D1+1)}")
    A(f"v_cvt_pk_bf16_f32 {vr(D1+1)}, {vr(D1+2)}, {vr(D1+3)}")
    A(f"v_min_u32 {vr(D1)}, -2, {vr(D1)}"); A(f"v_min_u32 {vr(D1+1)}, -2, {vr(D1+1)}")
    stamp(2)
    def flag1_wait(tag, reg):
        A("s_mov_b32 s35, 0")
        A(f"L_f1{tag}:")
        A("s_waitcnt vmcnt(0)")
        A(f"v_readfirstlane_b32 s33, {vr(reg)}")
        A("s_add_u32 s35, s35, 1")
        A("s_cmp_lg_u32 s33, 0")
        A(f"s_cbranch_scc1 L_f1d{tag}")
        A(f"global_load_dword {vr(reg)}, {vr(vDb)}, s[26:27] sc1")
        A(f"s_cmp_lt_u32 s35, {SPIN}")
        A(f"s_cbranch_scc1 L_f1{tag}")
        A(f"L_f1d{tag}:")
    flag1_wait("a", vT + 20)
    A("s_getreg_b32 s34, hwreg(HW_REG_XCC_ID, 0, 4)")
    A("s_or_b32 s34, s34, 0x100")
    A("s_cmp_eq_u32 s33, s34")
    A("s_cbranch_scc1 L_same")
    A(f"v_mov_b32 {vr(vT+6)}, 1")
    A(f"global_store_dword {vr(vDb)}, {vr(vT+6)}, s[26:27] offset:64 sc1")
    A("s_waitcnt vmcnt(0)")
    A("L_same:")
    A("s_mov_b64 exec, s[36:37]")
    A(f"global_store_dwordx2 {vr(vT+5)}, {vr(D1,2)}, s[28:29] sc1")
    A("s_mov_b64 exec, -1")
    stamp(3)
    A("s_setprio 0")
    A("s_branch L_prep")

    A("L_T123:")
    A("s_cmp_eq_u32 s30, 3"); A("s_cbranch_scc0 L_T12")
    A.c("T3: leader clears")
    A("s_and_b32 s33, s32, 30"); A("s_cmp_eq_u32 s33, 28"); A("s_cbranch_scc0 L_prepw")
    A("s_setprio 3")
    for i in range(4): A(f"v_mov_b32 {vr(vT+4+i)}, -1")
    A(f"v_lshlrev_b32 {vr(vT)}, 4, v0")
    A("s_cmp_eq_u32 s32, 28"); A("s_cbranch_scc0 L_leadB")
    A("s_lshl_b32 s33, s31, 14"); A("s_add_u32 s33, s33, 4096"); A(f"v_add_u32 {vr(vT)}, s33, {vr(vT)}")
    A(f"v_add_u32 {vr(vT+1)}, 4096, {vr(vT)}")
    A("s_lshl_b32 s33, s31, 2")
    A("s_waitcnt lgkmcnt(0)")
    for i in range(8): A(f"global_store_dwordx4 {vr(vT)}, {vr(vT+4,4)}, s[28:29] offset:{1024*i-4096} sc1")
    A("s_mov_b64 exec, 0xffff")
    A(f"global_store_dwordx4 {vr(vT+1)}, {vr(vT+4,4)}, s[28:29] sc1")
    A("s_branch L_leadD")
    A("L_leadB:")
    A("s_mul_i32 s33, s31, 14336"); A(f"s_add_u32 s33, s33, {W_B + 4096}"); A(f"v_add_u32 {vr(vT)}, s33, {vr(vT)}")
    A(f"v_add_u32 {vr(vT+1)}, 8192, {vr(vT)}")
    A("s_lshl_b32 s33, s31, 2"); A("s_add_u32 s33, s33, 32")
    A("s_waitcnt lgkmcnt(0)")
    for i in range(8): A(f"global_store_dwordx4 {vr(vT)}, {vr(vT+4,4)}, s[28:29] offset:{1024*i-4096} sc1")
    for i in range(6): A(f"global_store_dwordx4 {vr(vT+1)}, {vr(vT+4,4)}, s[28:29] offset:{1024*i-4096} sc1")
    A("L_leadD:")
    A("s_mov_b64 exec, 1")
    A("s_getreg_b32 s34, hwreg(HW_REG_XCC_ID, 0, 4)")
    A("s_or_b32 s34, s34, 0x100")
    A(f"v_mov_b32 {vr(vT+2)}, s33"); A(f"v_mov_b32 {vr(vT+3)}, s34")
    A("s_waitcnt vmcnt(0)")
    stamp(1)
    A(f"global_store_dword {vr(vT+2)}, {vr(vT+3)}, s[26:27] sc1")
    A("s_mov_b64 exec, -1")
    A("s_setprio 0")
    A("s_branch L_prep")

    A("L_T12:")
    A("s_cmp_eq_u32 s30, 2"); A("s_cbranch_scc0 L_prepw")
    A.c("T2: H and Y init")
    A("s_mul_i32 s33, s31, 896")
    A(f"v_lshlrev_b32 {vr(vT)}, 3, v0"); A(f"v_add_u32 {vr(vT)}, s33, {vr(vT)}")
    A(f"v_mul_u32_u24 {vr(vT+1)}, 6, v0"); A(f"v_add_u32 {vr(vT+1)}, s33, {vr(vT+1)}")
    A(f"v_mov_b32 {vr(vT+2)}, 0")
    A("s_waitcnt lgkmcnt(0)")
    A(f"global_load_dwordx2 {vr(vT+4,2)}, {vr(vT)}, s[4:5] {pol}")
    for i in range(3): A(f"global_load_ushort {vr(vT+6+i)}, {vr(vT+1)}, s[4:5] offset:{512+2*i} {pol}")
    A(f"global_load_ushort {vr(vT+9)}, {vr(vT+2)}, s[22:23] {pol}")
    A(f"v_lshlrev_b32 {vr(vT+3)}, 2, v0"); A(f"v_add_u32 {vr(vT+3)}, {L_H}, {vr(vT+3)}")
    A("s_waitcnt vmcnt(0)")
    A(f"v_lshlrev_b32 {vr(vT+10)}, 16, {vr(vT+4)}"); A(f"v_and_b32 {vr(vT+11)}, 0xffff0000, {vr(vT+4)}")
    A(f"v_lshlrev_b32 {vr(vT+12)}, 16, {vr(vT+5)}"); A(f"v_and_b32 {vr(vT+13)}, 0xffff0000, {vr(vT+5)}")
    for i in range(4): A(f"v_lshlrev_b32 {vr(vT+14+i)}, 16, {vr(vT+6+i)}")
    for i in range(7): A(f"ds_write_b32 {vr(vT+3)}, {vr(vT+10+i)} offset:{256*i}")
    A(f"ds_write_b32 {vr(vT+3)}, {vr(vT+2)} offset:{256*7}")
    A(f"ds_write_b32 {vr(vT+3)}, {vr(vT+17)} offset:{L_Y - L_H}")
    A("L_prepw:")
    A("s_waitcnt lgkmcnt(0)")
    A("L_prep:")
    A.c("prep: MLP coefficient + wo loads")
    raw = vX
    A(f"v_and_b32 {vr(vT)}, 31, v0")
    A("s_mul_i32 s33, s30, 896")
    A(f"v_lshlrev_b32 {vr(vT+1)}, 4, {vr(vT)}"); A(f"v_add_u32 {vr(vT+1)}, s33, {vr(vT+1)}")
    A(f"v_lshlrev_b32 {vr(vT+2)}, 3, {vr(vT)}"); A(f"v_add_u32 {vr(vT+2)}, s33, {vr(vT+2)}")
    A(f"v_lshlrev_b32 {vr(vT+3)}, 2, {vr(vT)}"); A(f"v_add_u32 {vr(vT+3)}, s33, {vr(vT+3)}")
    for k, sp in enumerate((16, 18, 20)):
        A(f"global_load_dwordx4 {vr(raw+8*k,4)}, {vr(vT+1)}, s[{sp}:{sp+1}] {pol}")
        A(f"global_load_dwordx2 {vr(raw+8*k+4,2)}, {vr(vT+2)}, s[{sp}:{sp+1}] offset:512 {pol}")
        A(f"global_load_dword {vr(raw+8*k+6)}, {vr(vT+3)}, s[{sp}:{sp+1}] offset:768 {pol}")
    A("s_lshl_b32 s33, s31, 2"); A(f"v_mov_b32 {vr(vDb)}, s33")
    A("s_cmp_ge_u32 s32, 28"); A("s_cbranch_scc1 L_nowo")
    A("s_lshl_b32 s33, s31, 9"); A("s_lshl_b32 s34, s30, 7"); A("s_add_u32 s33, s33, s34"); A("s_add_u32 s33, s33, 4")
    A("s_mul_i32 s33, s33, 896"); A("s_lshr_b32 s34, s32, 1"); A("s_lshl_b32 s34, s34, 6"); A("s_add_u32 s33, s33, s34")
    A(f"v_mul_u32_u24 {vr(vT+4)}, {8*896}, v2"); A(f"v_lshl_add_u32 {vr(vT+4)}, v1, 2, {vr(vT+4)}"); A(f"v_add_u32 {vr(vT+4)}, s33, {vr(vT+4)}")
    for tt in range(4):
        for jj in range(8):
            A(f"global_load_dword {vr(vRaw+8*tt+jj)}, {vr(vT+4)}, s[12:13] offset:{(jj-4)*896} {pol}")
        if tt < 3: A(f"v_add_u32 {vr(vT+4)}, {32*896}, {vr(vT+4)}")
    A("s_waitcnt vmcnt(32)")
    A("s_branch L_coef")
    A("L_nowo:")
    A("s_waitcnt vmcnt(0)")
    A("L_coef:")
    A(f"s_mov_b32 s33, {f32(BETA)}"); A(f"s_mov_b32 s34, {f32(3*BETA)}"); A("s_mov_b32 s38, 0xffff0000")
    A(f"v_mov_b32 {vr(vT)}, {f32(ALPHA)}")
    A("v_cmp_lt_u32 vcc, 31, v0")
    w, b, u, bb, c0, c1, c2, c3, ca, cc, hi = (vT + 1 + i for i in range(11))
    for tile in range(14):
        for k, d in enumerate((w, b, u)):
            src = raw + 8*k + (tile >> 1)
            if tile & 1: A(f"v_and_b32 {vr(d)}, s38, {vr(src)}")
            else: A(f"v_lshlrev_b32 {vr(d)}, 16, {vr(src)}")
        A(f"v_mul_f32 {vr(bb)}, {vr(b)}, {vr(b)}")
        A(f"v_fma_f32 {vr(c0)}, {vr(bb)}, s33, {vr(vT)}"); A(f"v_mul_f32 {vr(c0)}, {vr(c0)}, {vr(b)}")
        A(f"v_fma_f32 {vr(c1)}, {vr(bb)}, s34, {vr(vT)}"); A(f"v_mul_f32 {vr(c1)}, {vr(c1)}, {vr(w)}")
        A(f"v_mul_f32 {vr(bb)}, {vr(w)}, {vr(w)}")
        A(f"v_mul_f32 {vr(c2)}, s34, {vr(bb)}"); A(f"v_mul_f32 {vr(c2)}, {vr(c2)}, {vr(b)}")
        A(f"v_mul_f32 {vr(c3)}, s33, {vr(bb)}"); A(f"v_mul_f32 {vr(c3)}, {vr(c3)}, {vr(w)}")
        A(f"v_mul_f32 {vr(ca)}, {vr(w)}, {vr(u)}"); A(f"v_mul_f32 {vr(cc)}, {vr(b)}, {vr(u)}")
        for k, (lo_, hi_) in enumerate(((c1, c2), (c0, c2), (ca, c3), (cc, c3))):
            A(f"v_cndmask_b32 {vr(lo_)}, {vr(lo_)}, {vr(hi_)}, vcc")
            A(f"v_cvt_pk_bf16_f32 {vr(hi)}, {vr(lo_)}, {vr(lo_)}")
            A(f"v_and_b32 {vr(hi)}, s38, {vr(hi)}")
            A(f"v_sub_f32 {vr(lo_)}, {vr(lo_)}, {vr(hi)}")
            A(f"v_cvt_pk_bf16_f32 {vr(vC+4*tile+k)}, {vr(hi)}, {vr(lo_)}")
    A.c("tail constants")
    def hmap(dst, col, t1, t2):
        A(f"v_and_b32 {vr(t1)}, 3, {vr(col)}"); A(f"v_lshlrev_b32 {vr(t1)}, 8, {vr(t1)}")
        A(f"v_and_b32 {vr(t2)}, 0xfc, {vr(col)}"); A(f"v_add_u32 {vr(dst)}, {vr(t1)}, {vr(t2)}")
        A(f"v_subrev_u32 {vr(t1)}, 256, {vr(col)}"); A(f"v_and_b32 {vr(t1)}, 0xff, {vr(t1)}")
        A(f"v_mul_u32_u24 {vr(t2)}, 171, {vr(t1)}"); A(f"v_lshrrev_b32 {vr(t2)}, 9, {vr(t2)}")
        A(f"v_mad_i32_i24 {vr(t1)}, {vr(t2)}, -3, {vr(t1)}")
        A(f"v_lshlrev_b32 {vr(t1)}, 8, {vr(t1)}"); A(f"v_lshl_add_u32 {vr(t1)}, {vr(t2)}, 2, {vr(t1)}"); A(f"v_add_u32 {vr(t1)}, 1024, {vr(t1)}")
        A(f"v_cmp_lt_u32 vcc, 255, {vr(col)}")
        A(f"v_cndmask_b32 {vr(dst)}, {vr(dst)}, {vr(t1)}, vcc")
        A(f"v_add_u32 {vr(dst)}, {L_H}, {vr(dst)}")
    A("s_mul_i32 s33, s32, 14")
    ii = vT; hf = vT + 1; col = vT + 2
    A(f"v_bfe_u32 {vr(ii)}, v0, 3, 1"); A(f"v_and_b32 {vr(hf)}, 3, v0"); A(f"v_lshl_add_u32 {vr(ii)}, {vr(ii)}, 2, {vr(hf)}")
    A(f"v_bfe_u32 {vr(hf)}, v0, 2, 1")
    A(f"v_min_u32 {vr(col)}, 6, {vr(ii)}"); A(f"v_mad_u32_u24 {vr(col)}, {vr(hf)}, 7, {vr(col)}"); A(f"v_add_u32 {vr(col)}, s33, {vr(col)}")
    hmap(vHa, col, vT + 3, vT + 4)
    A(f"v_cmp_eq_u32 vcc, 7, {vr(ii)}"); A(f"v_cndmask_b32 {vr(vT+3)}, v2, 3, vcc")
    A(f"v_mov_b32 {vr(vT+4)}, 0x3f803f80")
    A(f"v_cmp_eq_u32 vcc, 2, {vr(vT+3)}"); A(f"v_cndmask_b32 {vr(vK1)}, 0, 1.0, vcc")
    A(f"v_cmp_eq_u32 vcc, 0, {vr(vT+3)}"); A(f"v_cndmask_b32 {vr(vK1+1)}, 0, 1.0, vcc")
    A(f"v_cndmask_b32 {vr(vK1+3)}, 0, {vr(vT+4)}, vcc")
    A(f"v_cmp_eq_u32 vcc, 1, {vr(vT+3)}"); A(f"v_cndmask_b32 {vr(vK1+2)}, 0, 1.0, vcc")
    A(f"v_cndmask_b32 {vr(vK1+4)}, 0, {vr(vT+4)}, vcc")
    for k in range(2):
        A(f"v_min_u32 {vr(col)}, 6, v0"); A(f"v_lshlrev_b32 {vr(col)}, 1, {vr(col)}"); A(f"v_add_u32 {vr(col)}, s33, {vr(col)}")
        if k: A(f"v_add_u32 {vr(col)}, 1, {vr(col)}")
        hmap(vHf + k, col, vT + 3, vT + 4)
    A(f"v_bfe_u32 {vr(vT)}, v0, 2, 1"); A(f"v_bfe_u32 {vr(vT+1)}, v0, 3, 1"); A(f"v_lshl_add_u32 {vr(vT)}, {vr(vT)}, 1, {vr(vT+1)}")
    A(f"v_bfe_u32 {vr(vT+1)}, v0, 4, 1"); A(f"v_lshl_add_u32 {vr(vT)}, {vr(vT+1)}, 2, {vr(vT)}")
    A(f"v_lshrrev_b32 {vr(vT+1)}, 5, v0"); A(f"v_mad_u32_u24 {vr(vT+1)}, {vr(vT+1)}, 7, {vr(vT)}")
    A(f"v_cmp_eq_u32 vcc, 7, {vr(vT)}"); A(f"v_cndmask_b32 {vr(vT+1)}, {vr(vT+1)}, 15, vcc")
    A(f"v_lshlrev_b32 {vr(vYa)}, 2, {vr(vT+1)}"); A(f"v_add_u32 {vr(vYa)}, {L_Y}, {vr(vYa)}")
    A("s_lshl_b32 s33, s31, 14"); A("s_add_u32 s33, s33, 8192"); A("s_lshr_b32 s34, s30, 1"); A("s_lshl_b32 s34, s34, 7"); A("s_add_u32 s34, s34, s33")
    A("s_and_b32 s35, s32, 1"); A("s_lshl_b32 s36, s35, 6"); A("s_add_u32 s34, s34, s36")
    A(f"v_lshlrev_b32 {vr(vLa)}, 4, v2"); A(f"v_add_u32 {vr(vLa)}, s34, {vr(vLa)}")
    A("s_lshl_b32 s34, s32, 2"); A("s_add_u32 s34, s34, s33")
    A(f"v_lshlrev_b32 {vr(vLst)}, 7, v0"); A(f"v_add_u32 {vr(vLst)}, s34, {vr(vLst)}")
    A("s_lshl_b32 s33, s31, 15"); A(f"s_add_u32 s33, s33, {W_O}")
    A("s_lshl_b32 s34, s35, 14"); A("s_add_u32 s34, s34, s33"); A("s_lshl_b32 s36, s30, 12"); A("s_add_u32 s34, s34, s36")
    A(f"v_lshlrev_b32 {vr(vOa)}, 4, v0"); A(f"v_add_u32 {vr(vOa)}, s34, {vr(vOa)}")
    A("s_lshr_b32 s34, s32, 4"); A("s_lshl_b32 s34, s34, 14"); A("s_add_u32 s34, s34, s33"); A("s_and_b32 s36, s32, 15"); A("s_lshl_b32 s36, s36, 4"); A("s_add_u32 s34, s34, s36")
    A(f"v_lshlrev_b32 {vr(vOst)}, 8, v0"); A(f"v_add_u32 {vr(vOst)}, s34, {vr(vOst)}")
    A("s_lshl_b32 s34, s30, 9"); A(f"s_add_u32 s34, s34, {L_PP}")
    A(f"v_lshlrev_b32 {vr(vPPa)}, 3, v0"); A(f"v_add_u32 {vr(vPPa)}, s34, {vr(vPPa)}")
    A("s_lshl_b32 s34, s35, 5"); A("s_add_u32 s34, s34, s31"); A("s_mul_i32 s34, s34, 1792"); A("s_lshr_b32 s36, s32, 1"); A("s_lshl_b32 s36, s36, 7")
    A("s_add_u32 s34, s34, s36"); A(f"s_add_u32 s34, s34, {W_B}")
    A(f"v_mul_u32_u24 {vr(vBst)}, {8*1792}, v2"); A(f"v_lshl_add_u32 {vr(vBst)}, v1, 3, {vr(vBst)}"); A(f"v_add_u32 {vr(vBst)}, s34, {vr(vBst)}")
    bsetup()
    A("s_mov_b32 s33, 0x05040100"); A("s_mov_b32 s34, 0x07060302")
    A("s_waitcnt vmcnt(0)")
    for tt in range(4):
        for i in range(4):
            lo_, hi_ = vRaw + 8*tt + 2*i, vRaw + 8*tt + 2*i + 1
            A(f"v_perm_b32 {vr(vWE+4*tt+i)}, {vr(hi_)}, {vr(lo_)}, s33")
            A(f"v_perm_b32 {vr(vWO+4*tt+i)}, {vr(hi_)}, {vr(lo_)}, s34")
    stamp(4)
    A("s_cmp_eq_u32 s30, 1"); A("s_cbranch_scc0 L_b1")
    A.c("T1: gather q")
    A(f"global_load_dword {vr(vT+20)}, {vr(vDb)}, s[26:27] sc1")
    A("s_lshl_b32 s34, s31, 14"); A("s_lshr_b32 s36, s32, 2"); A("s_lshl_b32 s36, s36, 10"); A("s_add_u32 s34, s34, s36")
    A(f"v_lshlrev_b32 {vr(vT)}, 4, v0"); A(f"v_add_u32 {vr(vT+1)}, s34, {vr(vT)}"); A(f"v_add_u32 {vr(vT)}, {L_Q}, {vr(vT)}")
    flag1_wait("b", vT + 20)
    stamp(1)
    A("s_mov_b32 s35, 0")
    A("L_qpoll:")
    A(f"global_load_dwordx4 {vr(vT+4,4)}, {vr(vT+1)}, s[28:29] sc1")
    A("s_add_u32 s35, s35, 1")
    A(f"s_cmp_ge_u32 s35, {SPIN}")
    A("s_waitcnt vmcnt(0)")
    A(f"v_max3_u32 {vr(vT+2)}, {vr(vT+4)}, {vr(vT+5)}, {vr(vT+6)}"); A(f"v_max_u32 {vr(vT+2)}, {vr(vT+2)}, {vr(vT+7)}")
    A(f"v_cmp_eq_u32 vcc, -1, {vr(vT+2)}")
    A("s_cbranch_scc1 L_qdone")
    A("s_cbranch_vccnz L_qpoll")
    A("L_qdone:")
    A(f"ds_write_b128 {vr(vT)}, {vr(vT+4,4)}")
    A(f"v_lshlrev_b32 {vr(vDb)}, 2, v0")
    A(f"global_load_dword {vr(vT+20)}, {vr(vDb)}, s[26:27] sc1")
    stamp(2)
    A("s_waitcnt lgkmcnt(0)")
    A("L_b1:")
    A("s_barrier")
    A("s_barrier")
    A("s_cmp_eq_u32 s30, 1"); A("s_cbranch_scc0 L_b3")
    A.c("T1: lse + flags")
    A(f"v_and_b32 {vr(vT)}, 1, v0"); A(f"v_lshlrev_b32 {vr(vT)}, 5, {vr(vT)}"); A(f"v_add_u32 {vr(vT)}, {L_STAT}, {vr(vT)}")
    A(f"ds_read_b128 {vr(vT+4,4)}, {vr(vT)}")
    A(f"ds_read_b128 {vr(vT+8,4)}, {vr(vT)} offset:16")
    A("s_waitcnt lgkmcnt(0)")
    stats(vT + 4, vT + 8, vT + 1, vT + 2, None)
    A(f"v_log_f32 {vr(vT+2)}, {vr(vT+2)}")
    A(f"v_add_f32 {vr(vLse)}, {vr(vT+1)}, {vr(vT+2)}")
    A(f"v_min_u32 {vr(vLse)}, -2, {vr(vLse)}")
    A("s_mov_b32 s35, 0")
    A("L_f2:")
    A("s_waitcnt vmcnt(0)")
    A(f"v_cmp_ne_u32 vcc, 0, {vr(vT+20)}")
    A("s_add_u32 s35, s35, 1")
    A("s_bfe_u32 s33, vcc_lo, 0x80008")
    A("s_cmp_eq_u32 s33, 0xff")
    A("s_cbranch_scc1 L_f2d")
    A(f"global_load_dword {vr(vT+20)}, {vr(vDb)}, s[26:27] sc1")
    A(f"s_cmp_lt_u32 s35, {SPIN}")
    A("s_cbranch_scc1 L_f2")
    A("L_f2d:")
    A("s_add_u32 s33, s31, 16")
    A("s_lshr_b32 s62, vcc_lo, s33"); A("s_and_b32 s62, s62, 1")
    if force_slow: A("s_mov_b32 s62, 1")
    A(f"v_lshlrev_b32 {vr(vT)}, 4, v0"); A(f"v_add_u32 {vr(vT)}, {L_OP}, {vr(vT)}")
    A("s_cmp_eq_u32 s62, 0")
    stamp(3)
    A("s_barrier")
    stamp(5)
    o = vX
    for w_ in range(4):
        for hh in range(2):
            A(f"ds_read_b128 {vr(o+8*w_+4*hh,4)}, {vr(vT)} offset:{2048*w_+1024*hh}")
    for w_ in range(1, 4):
        A(f"s_waitcnt lgkmcnt({6-2*w_})")
        for k in range(4):
            A(f"v_pk_add_f32 {vr(o+2*k,2)}, {vr(o+2*k,2)}, {vr(o+8*w_+2*k,2)}")
    for k in range(4):
        A(f"v_cvt_pk_bf16_f32 {vr(o+8+k)}, {vr(o+2*k)}, {vr(o+2*k+1)}")
    A("s_cbranch_scc0 L_slowpub")
    A(f"global_store_dwordx4 {vr(vOst)}, {vr(o+8,4)}, s[28:29]")
    A("s_mov_b64 exec, 3")
    A("s_waitcnt vmcnt(0)")
    A(f"global_store_dword {vr(vLst)}, {vr(vLse)}, s[28:29]")
    A("L_pubd:")
    A("s_mov_b64 exec, -1")
    stamp(6)
    A("L_op:")
    A.c("out projection")
    A("s_mov_b32 s35, 0")
    ls4 = vT + 4
    A("L_lpoll:")
    A(f"global_load_dwordx4 {vr(ls4,4)}, {vr(vLa)}, s[28:29] sc1")
    A("s_add_u32 s35, s35, 1")
    A(f"s_cmp_ge_u32 s35, {SPIN}")
    A("s_waitcnt vmcnt(0)")
    A(f"v_max3_u32 {vr(vT+2)}, {vr(ls4)}, {vr(ls4+1)}, {vr(ls4+2)}"); A(f"v_max_u32 {vr(vT+2)}, {vr(vT+2)}, {vr(ls4+3)}")
    A(f"v_cmp_eq_u32 vcc, -1, {vr(vT+2)}")
    A("s_cbranch_scc1 L_ldone")
    A("s_cbranch_vccnz L_lpoll")
    A("L_ldone:")
    oa = vRaw
    for tt in range(4):
        A(f"global_load_dwordx4 {vr(oa+4*tt,4)}, {vr(vOa)}, s[28:29] offset:{1024*tt} sc1")
    stamp(7)
    A(f"v_max3_f32 {vr(vT+2)}, {vr(ls4)}, {vr(ls4+1)}, {vr(ls4+2)}"); A(f"v_max_f32 {vr(vT+2)}, {vr(vT+2)}, {vr(ls4+3)}")
    for i in range(4): A(f"v_sub_f32 {vr(ls4+i)}, {vr(ls4+i)}, {vr(vT+2)}")
    for i in range(4): A(f"v_exp_f32 {vr(ls4+i)}, {vr(ls4+i)}")
    A(f"v_add_f32 {vr(vT+2)}, {vr(ls4)}, {vr(ls4+1)}"); A(f"v_add_f32 {vr(vT+3)}, {vr(ls4+2)}, {vr(ls4+3)}"); A(f"v_add_f32 {vr(vT+2)}, {vr(vT+2)}, {vr(vT+3)}")
    A(f"v_rcp_f32 {vr(vT+2)}, {vr(vT+2)}")
    for i in range(4): A(f"v_mul_f32 {vr(ls4+i)}, {vr(ls4+i)}, {vr(vT+2)}")
    DE = vT + 8; DO = vT + 12
    for tt in range(4):
        A(f"s_waitcnt vmcnt({3-tt})")
        for D, Wf in ((DE, vWE), (DO, vWO)):
            c = "0" if tt == 0 else vr(D, 4)
            A(f"v_mfma_f32_16x16x32_bf16 {vr(D,4)}, {vr(oa+4*tt,4)}, {vr(Wf+4*tt,4)}, {c}")
    for k, D in enumerate((DE, DO)):
        A(f"v_mul_f32 {vr(vT+16+k)}, {vr(D)}, {vr(ls4)}")
        for i in range(1, 4): A(f"v_fmac_f32 {vr(vT+16+k)}, {vr(D+i)}, {vr(ls4+i)}")
    A(f"ds_write_b64 {vr(vPPa)}, {vr(vT+16,2)}")
    A("s_cmp_eq_u32 s30, 1"); A("s_cselect_b32 s33, s32, 28"); A("s_cmp_lt_u32 s33, 28")
    A("s_waitcnt lgkmcnt(0)")
    stamp(8)
    A("s_barrier")
    A("s_cbranch_scc0 L_nobst")
    A(f"v_subrev_u32 {vr(vT)}, 512, {vr(vPPa)}")
    for k, w_ in enumerate((0, 2, 3)):
        A(f"ds_read_b64 {vr(vT+4+2*k,2)}, {vr(vT)} offset:{512*w_}")
    for k in range(3):
        A(f"s_waitcnt lgkmcnt({2-k})")
        A(f"v_pk_add_f32 {vr(vT+16,2)}, {vr(vT+16,2)}, {vr(vT+4+2*k,2)}")
    A(f"v_min_u32 {vr(vT+16)}, -2, {vr(vT+16)}"); A(f"v_min_u32 {vr(vT+17)}, -2, {vr(vT+17)}")
    A(f"global_store_dwordx2 {vr(vBst)}, {vr(vT+16,2)}, s[28:29] sc1")
    A("s_waitcnt vmcnt(0)")
    A("L_nobst:")
    stamp(9)
    bpoll("T")
    A(f"v_lshlrev_b32 {vr(vT)}, 4, v0"); A(f"v_add_u32 {vr(vT)}, {L_H}, {vr(vT)}")
    stamp(10)
    A("s_barrier")
    A.c("LayerNorm x2 + token MLP")
    h8 = vT + 4; hv = vT + 1
    A(f"ds_read_b128 {vr(h8,4)}, {vr(vT)}")
    A(f"ds_read_b128 {vr(h8+4,4)}, {vr(vT)} offset:1024")
    A(f"ds_read_b32 {vr(hv)}, {vr(vHa)}")
    A(f"ds_read_b32 {vr(vHf)}, {vr(vHf)}")
    A(f"ds_read_b32 {vr(vHf+1)}, {vr(vHf+1)}")
    s1 = vT + 12; s2 = vT + 14
    A("s_waitcnt lgkmcnt(4)")
    A(f"v_pk_add_f32 {vr(s1,2)}, {vr(h8,2)}, {vr(h8+2,2)}")
    A(f"v_pk_mul_f32 {vr(s2,2)}, {vr(h8,2)}, {vr(h8,2)}")
    A(f"v_pk_fma_f32 {vr(s2,2)}, {vr(h8+2,2)}, {vr(h8+2,2)}, {vr(s2,2)}")
    A("s_waitcnt lgkmcnt(3)")
    for k in (4, 6):
        A(f"v_pk_add_f32 {vr(s1,2)}, {vr(s1,2)}, {vr(h8+k,2)}")
        A(f"v_pk_fma_f32 {vr(s2,2)}, {vr(h8+k,2)}, {vr(h8+k,2)}, {vr(s2,2)}")
    A(f"v_add_f32 {vr(s1)}, {vr(s1)}, {vr(s1+1)}"); A(f"v_add_f32 {vr(s2)}, {vr(s2)}, {vr(s2+1)}")
    A(f"v_permlane32_swap_b32 {vr(s1)}, {vr(s2)}")
    A(f"v_add_f32 {vr(s1)}, {vr(s1)}, {vr(s2)}")
    for sh in (8, 4, 2, 1):
        A(f"v_add_f32_dpp {vr(s1)}, {vr(s1)}, {vr(s1)} row_ror:{sh} row_mask:0xf bank_mask:0xf")
    A(f"v_add_f32_dpp {vr(s1)}, {vr(s1)}, {vr(s1)} row_bcast:15 row_mask:0xa bank_mask:0xf")
    A(f"v_mov_b32 {vr(s2)}, {f32(1.0/448)}")
    A(f"v_readlane_b32 s33, {vr(s1)}, 31")
    A(f"v_readlane_b32 s34, {vr(s1)}, 63")
    mu = vT + 2; rs = vT + 3
    A(f"s_mov_b32 s36, {f32(1.0 + 1e-5)}"); A("s_mov_b32 s38, 0xffff0000")
    A(f"v_mul_f32 {vr(mu)}, s33, {vr(s2)}")
    A(f"v_mul_f32 {vr(rs)}, s34, {vr(s2)}")
    A(f"v_fma_f32 {vr(rs)}, -{vr(mu)}, {vr(mu)}, {vr(rs)}")
    A(f"v_max_f32 {vr(rs)}, 0, {vr(rs)}")
    A(f"v_fmaak_f32 {vr(rs)}, s36, {vr(rs)}, {f32(1e-10)}") if False else None
    A(f"v_mul_f32 {vr(rs)}, s36, {vr(rs)}"); A(f"v_add_f32 {vr(rs)}, {f32(1e-10)}, {vr(rs)}")
    A(f"v_rsq_f32 {vr(rs)}, {vr(rs)}")
    A("s_waitcnt lgkmcnt(0)")
    A(f"v_sub_f32 {vr(hv)}, {vr(hv)}, {vr(mu)}")
    A(f"v_mul_f32 {vr(hv)}, {vr(hv)}, {vr(rs)}")
    A(f"v_cvt_pk_bf16_f32 {vr(hv)}, {vr(hv)}, {vr(hv)}")
    A(f"v_and_b32 {vr(hv)}, s38, {vr(hv)}")
    X = vT + 4; Y = vT + 5; t1 = vT + 6; t2 = vT + 7; Am = vT + 8
    A(f"v_fma_f32 {vr(X)}, {vr(hv)}, {vr(vK1)}, {vr(vK1+1)}"); A(f"v_mul_f32 {vr(X)}, {vr(X)}, {vr(hv)}")
    A(f"v_fma_f32 {vr(Y)}, {vr(X)}, {vr(vK1)}, {vr(vK1+2)}")
    A(f"v_cvt_pk_bf16_f32 {vr(Am)}, {vr(X)}, {vr(X)}")
    A(f"v_mul_f32 {vr(Y)}, {vr(Y)}, {vr(hv)}")
    A(f"v_and_b32 {vr(t1)}, s38, {vr(Am)}")
    A(f"v_cvt_pk_bf16_f32 {vr(Am+2)}, {vr(Y)}, {vr(Y)}")
    A(f"v_sub_f32 {vr(X)}, {vr(X)}, {vr(t1)}")
    A(f"v_and_b32 {vr(t2)}, s38, {vr(Am+2)}")
    A(f"v_cvt_pk_bf16_f32 {vr(Am+1)}, {vr(X)}, {vr(X)}")
    A(f"v_sub_f32 {vr(Y)}, {vr(Y)}, {vr(t2)}")
    A(f"v_or_b32 {vr(Am+1)}, {vr(Am+1)}, {vr(vK1+3)}")
    A(f"v_cvt_pk_bf16_f32 {vr(Am+3)}, {vr(Y)}, {vr(Y)}")
    A(f"v_or_b32 {vr(Am+3)}, {vr(Am+3)}, {vr(vK1+4)}")
    stamp(11)
    Db = [vX, vX + 16, vX + 32]; acc = vT + 12
    def mm(tile):
        A(f"v_mfma_f32_32x32x16_bf16 {vr(Db[tile%3],16)}, {vr(Am,4)}, {vr(vC+4*tile,4)}, 0")
    mm(0); mm(1)
    for tile in range(14):
        D = Db[tile % 3]
        for i in range(7): A(f"v_exp_f32 {vr(D+i)}, {vr(D+i)}")
        if tile + 2 < 14: mm(tile + 2)
        for i in range(0, 8, 2): A(f"v_pk_add_f32 {vr(D+i,2)}, {vr(D+i,2)}, 1.0 op_sel_hi:[1,0]")
        for i in range(7): A(f"v_rcp_f32 {vr(D+i)}, {vr(D+i)}")
        for i in range(0, 8, 2):
            if tile == 0: A(f"v_pk_mul_f32 {vr(acc+i,2)}, {vr(D+i,2)}, {vr(D+8+i,2)}")
            else: A(f"v_pk_fma_f32 {vr(acc+i,2)}, {vr(D+i,2)}, {vr(D+8+i,2)}, {vr(acc+i,2)}")
    stamp(12)
    for k in range(4): A(f"v_add_f32_dpp {vr(acc+2*k)}, {vr(acc+2*k)}, {vr(acc+2*k)} row_ror:8 row_mask:0xf bank_mask:0x3")
    for k in range(4): A(f"v_add_f32_dpp {vr(acc+2*k)}, {vr(acc+2*k+1)}, {vr(acc+2*k+1)} row_ror:8 row_mask:0xf bank_mask:0xc")
    for k in range(2): A(f"v_add_f32_dpp {vr(acc+4*k)}, {vr(acc+4*k)}, {vr(acc+4*k)} row_shl:4 row_mask:0xf bank_mask:0x5")
    for k in range(2): A(f"v_add_f32_dpp {vr(acc+4*k)}, {vr(acc+4*k+2)}, {vr(acc+4*k+2)} row_shr:4 row_mask:0xf bank_mask:0xa")
    A(f"v_permlane16_swap_b32 {vr(acc)}, {vr(acc+4)}")
    A(f"v_add_f32 {vr(acc)}, {vr(acc)}, {vr(acc+4)}")
    A(f"ds_add_f32 {vr(vYa)}, {vr(acc)}")
    A(f"v_lshlrev_b32 {vr(vT)}, 3, v1"); A(f"v_add_u32 {vr(vT)}, {L_Y}, {vr(vT)}")
    A("s_mul_i32 s33, s31, 896"); A("s_mul_i32 s34, s32, 28"); A("s_add_u32 s33, s33, s34")
    A(f"v_lshlrev_b32 {vr(vT+1)}, 2, v0"); A(f"v_add_u32 {vr(vT+1)}, s33, {vr(vT+1)}")
    A("s_cmp_eq_u32 s30, 1")
    A("s_waitcnt lgkmcnt(0)")
    A("s_barrier")
    A("s_cbranch_scc0 L_fin")
    A(f"ds_read_b64 {vr(vT+2,2)}, {vr(vT)}")
    A("s_mov_b64 exec, 0x7f")
    A("s_waitcnt lgkmcnt(0)")
    A(f"v_pk_add_f32 {vr(vT+2,2)}, {vr(vT+2,2)}, {vr(vHf,2)}")
    A(f"v_cvt_pk_bf16_f32 {vr(vT+2)}, {vr(vT+2)}, {vr(vT+3)}")
    A(f"global_store_dword {vr(vT+1)}, {vr(vT+2)}, s[24:25]")
    A("L_fin:")
    if stamps:
        A("s_waitcnt vmcnt(0)")
        A("s_memrealtime s[90:91]"); A("s_waitcnt lgkmcnt(0)"); A("s_mov_b32 s92, s90")
        dump_stamps(13)
        A("v_mov_b32 v251, s92")
        A(f"global_store_dword v250, v251, s[28:29] offset:{4*13}")
    A("L_end:")
    A("s_endpgm")
    A("L_b3:")
    A("s_barrier")
    A("s_branch L_op")
    A("L_slowpub:")
    A(f"global_store_dwordx4 {vr(vOst)}, {vr(o+8,4)}, s[28:29] sc1")
    A("s_mov_b64 exec, 3")
    A("s_waitcnt vmcnt(0)")
    A(f"global_store_dword {vr(vLst)}, {vr(vLse)}, s[28:29] sc1")
    A("s_branch L_pubd")

    body, nn = fix_hazards(A.L)
    head = [l.rstrip("\n") for l in open("header.txt")]
    head.append(f"; @launch grid=(256,1,1) block=(512,1,1) lds={L_END}")
    head += ['.amdgcn_target "amdgcn-amd-amdhsa--gfx950"', ".text", f".globl {NAME}", ".p2align 8", f".type {NAME},@function"]
    tail = ['.section .rodata,"a"', ".p2align 6", f".amdhsa_kernel {NAME}",
            "  .amdhsa_next_free_vgpr 256", "  .amdhsa_next_free_sgpr 96", "  .amdhsa_accum_offset 256",
            "  .amdhsa_group_segment_fixed_size 0", "  .amdhsa_kernarg_size 104", "  .amdhsa_user_sgpr_count 2",
            "  .amdhsa_user_sgpr_kernarg_segment_ptr 1", "  .amdhsa_system_sgpr_workgroup_id_x 1",
            "  .amdhsa_float_denorm_mode_32 3", ".end_amdhsa_kernel"]
    return "\n".join(head + body + tail) + "\n"

if __name__ == "__main__":
    kw = eval("dict(" + (sys.argv[2] if len(sys.argv) > 2 else "") + ")")
    open(sys.argv[1], "w").write(gen(**kw))
```

```python
import sys, struct, math
from asmlib import *

NAME = "sequential_preLN__sliding_block_cached__mixer_token_mlp__decode_kernel"
def f32(x): return "0x%08x" % struct.unpack("<I", struct.pack("<f", x))[0]

L_K = 0; L_WQ = 131072; L_Q = 145408; L_STAT = 146432; L_OP = 146688; L_PP = 154880; L_H = 156928; L_Y = 158976
L_END = 159232
W_Q = 0
W_O = 0x20000
W_B = 0x60000
W_STAMP = 0x100000
SPIN = 0x20000

STAMP_VIEW = [("S", slice(4, 8), list(range(7))), ("T0", 0, [0, 1, 2, 3, 4]), ("T3L", 3, [0, 1, 4], slice(224, 240)),
              ("T1", 1, [0, 4, 1, 2, 3, 5, 6, 7, 8, 9, 10, 11, 12, 13])]
ALPHA = -2.0 * math.sqrt(2.0 / math.pi) * math.log2(math.e)
BETA = ALPHA * 0.044715

def gen(W=8, NV1=20, rot=None, stamps=False, force_slow=False, pol="nt", diag=None):
    A = Asm()
    rot = rot or dict(t=(1, 0), k=(1, 2), v=(1, 1), d=(1, 0))
    stamp_n = [0]
    def stamp(i):
        if stamps: A(f"s_memrealtime s[{64+2*i}:{65+2*i}]")
    def dump_stamps(nst):
        if not stamps: return
        A("s_waitcnt lgkmcnt(0) vmcnt(0)")
        A("s_lshl_b32 s90, s2, 3"); A("s_add_u32 s90, s90, s30"); A("s_lshl_b32 s90, s90, 6"); A(f"s_add_u32 s90, s90, {W_STAMP}")
        A("s_mov_b64 exec, 1")
        A("v_mov_b32 v250, s90")
        for i in range(nst):
            A(f"v_mov_b32 v251, s{64+2*i}")
            A(f"global_store_dword v250, v251, s[28:29] offset:{4*i}")
        A("s_waitcnt vmcnt(0)")

    A(f"{NAME}:")
    A("s_cmp_ge_u32 s2, 0x100")
    A("s_cbranch_scc1 L_end")
    stamp(0)
    if diag: A("s_memrealtime s[64:65]")
    A("s_load_dwordx16 s[4:19], s[0:1], 0")
    A("s_load_dwordx8 s[20:27], s[0:1], 64")
    A("s_load_dwordx2 s[28:29], s[0:1], 96")
    A("v_lshrrev_b32 v1, 6, v0")
    A("v_and_b32 v0, 63, v0")
    A("v_readfirstlane_b32 s30, v1")
    A("s_and_b32 s31, s2, 7")
    A("s_lshr_b32 s32, s2, 3")
    A("v_and_b32 v1, 15, v0")
    A("v_lshrrev_b32 v2, 4, v0")
    A("s_cmp_lt_u32 s30, 4")
    A("s_cbranch_scc1 L_T")

    A.c("================ stream waves")
    V = Alloc(3, 256)
    vK = V(8); vVo = V(8); vKA = V(4); vQA = V(); vM = V(4); vT = V(8); vOPa = V(2); vSTw = V(); vSTr = V()
    vS = V(16); vAcc = vK; vQ = V(32); vKF = V(32); vVv = V(128)
    vA = vQ
    assert vKF == vQ + 32
    A("s_sub_u32 s33, s30, 4")
    A("s_lshr_b32 s34, s2, 5"); A("s_lshl_b32 s34, s34, 3"); A("s_add_u32 s34, s34, s31")
    A("s_lshl_b32 s34, s34, 21"); A("s_add_u32 s34, s34, 0x180000")
    A("s_and_b32 s35, s32, 3"); A("s_lshl_b32 s35, s35, 17"); A("s_add_u32 s34, s34, s35")
    def lin(dst, key):
        a, b = rot[key]
        A(f"s_mul_i32 {dst}, s32, {a}"); A(f"s_mul_i32 s35, s33, {b}"); A(f"s_add_u32 {dst}, {dst}, s35")
    lin("s36", "t"); A("s_add_u32 s36, s36, s33")
    for tl in range(4):
        A(f"s_add_u32 s35, s36, {4*tl}"); A("s_and_b32 s35, s35, 15"); A("s_lshl_b32 s35, s35, 13"); A(f"s_add_u32 s{40+tl}, s34, s35")
    lin("s36", "k")
    A(f"v_lshrrev_b32 {vr(vT)}, 5, v0")
    A(f"v_and_b32 {vr(vT+1)}, 31, v0")
    A(f"v_lshlrev_b32 {vr(vT+2)}, 2, {vr(vT)}")
    A(f"v_xor_b32 {vr(vT+1)}, {vr(vT+1)}, {vr(vT+2)}")
    A(f"v_lshlrev_b32 {vr(vT+1)}, 4, {vr(vT+1)}")
    A(f"v_lshl_add_u32 {vr(vT+1)}, {vr(vT)}, 9, {vr(vT+1)}")
    A("s_lshl_b32 s37, s33, 15")
    for i in range(8):
        A(f"s_add_u32 s35, s36, {i}"); A("s_and_b32 s35, s35, 7")
        A("s_and_b32 s38, s35, 1"); A("s_lshl_b32 s38, s38, 3"); A("s_lshr_b32 s39, s35, 1"); A("s_or_b32 s38, s38, s39")
        A("s_lshl_b32 s38, s38, 4"); A("s_lshl_b32 s35, s35, 10"); A("s_or_b32 s38, s38, s35")
        A(f"v_xor_b32 {vr(vK+i)}, s38, {vr(vT+1)}")
        A(f"s_add_u32 s{44+i}, s37, s35")
    A("s_mov_b32 s54, 0x8000000"); A("s_mov_b32 s55, 0x20000")
    A("s_mov_b32 s58, 0x8000000"); A("s_mov_b32 s59, 0x20000")
    A("s_waitcnt lgkmcnt(0)")
    A("s_mov_b32 s52, s6"); A("s_mov_b32 s53, s7")
    A("s_mov_b32 s56, s8"); A("s_mov_b32 s57, s9")
    issued = [0]
    def throttle():
        if issued[0] >= W: A(f"s_waitcnt vmcnt({W-1})")
        issued[0] += 1
    def kload(tl, i):
        A(f"s_add_u32 m0, s{44+i}, {tl*8192}")
        throttle()
        A(f"buffer_load_dwordx4 {vr(vK+i)}, s[52:55], s{40+tl} offen {pol} lds")
    def vload(idx):
        tl, e = idx >> 3, idx & 7
        throttle()
        A(f"buffer_load_dwordx4 {vr(vVv+4*idx,4)}, {vr(vVo+e)}, s[56:59], s{40+tl} offen {pol}")
    for i in range(8): kload(0, i)
    lin("s60", "v"); A("s_and_b32 s60, s60, 3")
    lin("s61", "d"); A("s_and_b32 s61, s61, 1")
    A(f"v_lshlrev_b32 {vr(vT)}, 4, v1"); A(f"v_lshl_add_u32 {vr(vT)}, v2, 9, {vr(vT)}")
    for r in range(4):
        for dh in range(2):
            A(f"s_add_u32 s35, s60, {r}"); A("s_and_b32 s35, s35, 3"); A("s_lshl_b32 s35, s35, 11")
            A(f"s_xor_b32 s38, s61, {dh}"); A("s_lshl_b32 s38, s38, 8"); A("s_add_u32 s35, s35, s38")
            A(f"v_add_u32 {vr(vVo+2*r+dh)}, s35, {vr(vT)}")
    A(f"v_add_u32 {vr(vT)}, s60, v1"); A(f"v_and_b32 {vr(vT)}, 3, {vr(vT)}")
    A(f"v_lshrrev_b32 {vr(vT+1)}, 2, v1")
    A(f"v_lshl_add_u32 {vr(vT+2)}, {vr(vT)}, 2, {vr(vT+1)}")
    A(f"v_lshl_add_u32 {vr(vT+3)}, {vr(vT+1)}, 2, {vr(vT)}")
    A(f"v_xor_b32 {vr(vT+3)}, {vr(vT+3)}, v2")
    A(f"v_lshlrev_b32 {vr(vT+2)}, 9, {vr(vT+2)}"); A(f"v_add_u32 {vr(vT+2)}, s37, {vr(vT+2)}")
    for t in range(4):
        A(f"v_xor_b32 {vr(vT+4)}, {4*t}, {vr(vT+3)}")
        A(f"v_lshl_add_u32 {vr(vKA+t)}, {vr(vT+4)}, 4, {vr(vT+2)}")
    A(f"v_lshrrev_b32 {vr(vT)}, 3, v1")
    A(f"v_lshlrev_b32 {vr(vQA)}, 9, {vr(vT)}"); A(f"v_lshl_add_u32 {vr(vQA)}, v2, 4, {vr(vQA)}")
    A(f"v_add_u32 {vr(vQA)}, {L_Q}, {vr(vQA)}")
    A(f"v_lshlrev_b32 {vr(vSTr)}, 5, {vr(vT)}"); A(f"v_add_u32 {vr(vSTr)}, {L_STAT}, {vr(vSTr)}")
    A("s_lshl_b32 s35, s33, 2"); A(f"v_add_u32 {vr(vSTw)}, s35, {vr(vSTr)}")
    A(f"v_and_b32 {vr(vT)}, 1, v1"); A(f"v_lshlrev_b32 {vr(vT)}, 4, {vr(vT)}")
    A(f"v_mov_b32 {vr(vT+1)}, 0xffff"); A(f"v_lshlrev_b32 {vr(vT+1)}, {vr(vT)}, {vr(vT+1)}")
    A(f"v_bfe_u32 {vr(vT)}, v1, 1, 2")
    for i in range(4):
        A(f"v_cmp_eq_u32 vcc, {i}, {vr(vT)}")
        A(f"v_cndmask_b32 {vr(vM+i)}, 0, {vr(vT+1)}, vcc")
    A(f"v_and_b32 {vr(vT)}, 1, v2"); A(f"v_lshlrev_b32 {vr(vT)}, 10, {vr(vT)}")
    A(f"v_lshrrev_b32 {vr(vT+1)}, 1, v2"); A(f"v_lshl_add_u32 {vr(vT)}, {vr(vT+1)}, 9, {vr(vT)}")
    A(f"v_lshl_add_u32 {vr(vT)}, v1, 4, {vr(vT)}")
    A("s_lshl_b32 s35, s33, 11"); A(f"s_add_u32 s35, s35, {L_OP}")
    for dh in range(2):
        A(f"s_xor_b32 s38, s61, {dh}"); A("s_lshl_b32 s38, s38, 8"); A("s_add_u32 s38, s38, s35")
        A(f"v_add_u32 {vr(vOPa+dh)}, s38, {vr(vT)}")
    for tl in range(1, 4):
        for i in range(8): kload(tl, i)
    for idx in range(NV1): vload(idx)
    nv = [NV1]
    def more(k):
        for _ in range(k):
            if nv[0] < 32:
                vload(nv[0]); nv[0] += 1
    A(f"s_waitcnt vmcnt({min(NV1, 63)})")
    stamp(1)
    A("s_barrier")
    stamp(2)
    for t in range(8):
        A(f"ds_read_b128 {vr(vQ+4*t,4)}, {vr(vQA)} offset:{64*t}")
    for tl in range(4):
        for t in range(8):
            A(f"ds_read_b128 {vr(vKF+4*t,4)}, {vr(vKA+(t&3))} offset:{tl*8192 + (t>>2)*256}")
        for t in range(8):
            A(f"s_waitcnt lgkmcnt({7-t})")
            c = "0" if t == 0 else vr(vS+4*tl, 4)
            A(f"v_mfma_f32_16x16x32_bf16 {vr(vS+4*tl,4)}, {vr(vKF+4*t,4)}, {vr(vQ+4*t,4)}, {c}")
        more(2 if tl < 3 else 1)
    SC = math.log2(math.e) / 16.0
    A(f"s_mov_b32 s35, {f32(SC)}")
    mx = vT; cp = vT + 1; ls = vT + 2
    A(f"v_max3_f32 {vr(mx)}, {vr(vS)}, {vr(vS+1)}, {vr(vS+2)}")
    for i in range(3, 15, 2):
        A(f"v_max3_f32 {vr(mx)}, {vr(mx)}, {vr(vS+i)}, {vr(vS+i+1)}")
    A(f"v_max_f32 {vr(mx)}, {vr(mx)}, {vr(vS+15)}")
    def xg(x, op):
        for sw in ("v_permlane32_swap_b32", "v_permlane16_swap_b32"):
            A(f"v_mov_b32 {vr(cp)}, {vr(x)}")
            A(f"{sw} {vr(x)}, {vr(cp)}")
            A(f"{op} {vr(x)}, {vr(x)}, {vr(cp)}")
    xg(mx, "v_max_f32")
    A(f"v_mul_f32 {vr(mx)}, s35, {vr(mx)}")
    for i in range(16):
        A(f"v_fma_f32 {vr(vS+i)}, {vr(vS+i)}, s35, -{vr(mx)}")
    for i in range(16):
        A(f"v_exp_f32 {vr(vS+i)}, {vr(vS+i)}")
    A(f"v_add_f32 {vr(ls)}, {vr(vS)}, {vr(vS+1)}")
    for i in range(2, 16):
        A(f"v_add_f32 {vr(ls)}, {vr(ls)}, {vr(vS+i)}")
    xg(ls, "v_add_f32")
    A(f"ds_write2_b32 {vr(vSTw)}, {vr(mx)}, {vr(ls)} offset0:0 offset1:4")
    more(1)
    A("s_waitcnt lgkmcnt(0)")
    A("s_barrier")
    stamp(3)
    def stats(m4, l4, M, Lr, tmp):
        A(f"v_max3_f32 {vr(M)}, {vr(m4)}, {vr(m4+1)}, {vr(m4+2)}"); A(f"v_max_f32 {vr(M)}, {vr(M)}, {vr(m4+3)}")
        for i in range(4): A(f"v_sub_f32 {vr(m4+i)}, {vr(m4+i)}, {vr(M)}")
        for i in range(4): A(f"v_exp_f32 {vr(m4+i)}, {vr(m4+i)}")
        A(f"v_mul_f32 {vr(Lr)}, {vr(m4)}, {vr(l4)}")
        for i in range(1, 4): A(f"v_fmac_f32 {vr(Lr)}, {vr(m4+i)}, {vr(l4+i)}")
    A(f"ds_read_b128 {vr(vAcc,4)}, {vr(vSTr)}")
    A(f"ds_read_b128 {vr(vAcc+4,4)}, {vr(vSTr)} offset:16")
    more(1)
    A("s_waitcnt lgkmcnt(0)")
    stats(vAcc, vAcc + 4, vT + 3, vT + 4, None)
    A(f"v_sub_f32 {vr(mx)}, {vr(mx)}, {vr(vT+3)}")
    A(f"v_exp_f32 {vr(mx)}, {vr(mx)}")
    A(f"v_rcp_f32 {vr(vT+4)}, {vr(vT+4)}")
    A(f"v_mul_f32 {vr(mx)}, {vr(mx)}, {vr(vT+4)}")
    for i in range(16):
        A(f"v_mul_f32 {vr(vS+i)}, {vr(vS+i)}, {vr(mx)}")
        A(f"v_cvt_pk_bf16_f32 {vr(vS+i)}, {vr(vS+i)}, {vr(vS+i)}")
        for k in range(4):
            A(f"v_and_b32 {vr(vA+4*i+k)}, {vr(vS+i)}, {vr(vM+k)}")
        if i % 4 == 3: more(1)
    more(32)
    stamp(4)
    for idx in range(32):
        i, dh = idx >> 1, idx & 1
        if 31 - idx < W: A(f"s_waitcnt vmcnt({31-idx})")
        c = "0" if i == 0 else vr(vAcc+4*dh, 4)
        A(f"v_mfma_f32_16x16x32_bf16 {vr(vAcc+4*dh,4)}, {vr(vA+4*i,4)}, {vr(vVv+4*idx,4)}, {c}")
    for dh in range(2):
        A(f"ds_write_b128 {vr(vOPa+dh)}, {vr(vAcc+4*dh,4)}")
    stamp(5)
    A("s_waitcnt lgkmcnt(0)")
    A("s_barrier")
    def bsetup():
        A("s_sub_u32 s35, s30, 1"); A("s_add_u32 s35, s35, s31"); A("s_and_b32 s35, s35, 7")
        A("s_lshl_b32 s38, s31, 3"); A("s_add_u32 s35, s35, s38"); A("s_mul_i32 s35, s35, 1792"); A(f"s_add_u32 s35, s35, {W_B}")
        A("v_lshlrev_b32 v3, 4, v0"); A("v_add_u32 v3, s35, v3")
        A("v_mul_u32_u24 v4, 12, v0"); A("v_add_u32 v4, s35, v4")
        A("v_lshlrev_b32 v5, 2, v0"); A(f"v_add_u32 v5, {L_H}, v5")
    def bpoll(tag):
        A("s_mov_b32 s35, 0")
        A(f"L_bpoll{tag}:")
        A("global_load_dwordx4 v[8:11], v3, s[28:29] sc1")
        A("global_load_dwordx3 v[12:14], v4, s[28:29] offset:1024 sc1")
        A("s_add_u32 s35, s35, 1")
        A(f"s_cmp_ge_u32 s35, {SPIN}")
        A("s_waitcnt vmcnt(0)")
        A("v_max3_u32 v6, v8, v9, v10"); A("v_max3_u32 v7, v11, v12, v13"); A("v_max3_u32 v6, v6, v7, v14")
        A("v_cmp_eq_u32 vcc, -1, v6")
        A(f"s_cbranch_scc1 L_bdone{tag}")
        A(f"s_cbranch_vccnz L_bpoll{tag}")
        A(f"L_bdone{tag}:")
        for i in range(7):
            A(f"ds_add_f32 v5, v{8+i} offset:{256*i}")
        A("s_waitcnt lgkmcnt(0)")
    bsetup()
    A("s_barrier")
    bpoll("S")
    stamp(6)
    A("s_barrier")
    dump_stamps(7)
    A("s_endpgm")

    A("L_T:")
    A.c("================ tail waves")
    V = Alloc(16, 250)
    vC = V(56); vWE = V(16); vWO = V(16); vRaw = V(32); vX = V(56); vT = V(24)
    vHa = V(); vHf = V(2); vYa = V(); vK1 = V(6); vLa = V(); vOa = V(); vPPa = V(); vBst = V(); vOst = V(); vLst = V(); vLse = V(); vDb = V()
    A("s_cmp_eq_u32 s30, 0"); A("s_cbranch_scc0 L_T123")
    A.c("T0: q projection")
    A("s_setprio 2")
    A(f"v_and_b32 {vr(vT)}, 7, v1"); A(f"v_mul_u32_u24 {vr(vT)}, 896, {vr(vT)}"); A(f"v_lshl_add_u32 {vr(vT)}, v2, 4, {vr(vT)}")
    A(f"v_lshrrev_b32 {vr(vT+1)}, 1, v0"); A(f"v_lshlrev_b32 {vr(vT+1)}, 13, {vr(vT+1)}")
    A(f"v_and_b32 {vr(vT+2)}, 1, v0"); A(f"v_lshl_add_u32 {vr(vT+1)}, {vr(vT+2)}, 4, {vr(vT+1)}")
    A("s_lshl_b32 s33, s31, 10"); A("s_lshl_b32 s34, s32, 5"); A("s_add_u32 s33, s33, s34")
    A("s_mov_b32 s54, 0x380000"); A("s_mov_b32 s55, 0x20000")
    A("s_mov_b32 s36, 0x00ff00ff"); A("s_mov_b32 s37, 0x00ff00ff")
    A("s_mov_b32 s34, 0x3f803f80")
    for i in range(56): A(f"v_mov_b32 {vr(vX+i)}, s34")
    A("s_waitcnt lgkmcnt(0)")
    A("s_mov_b32 s52, s10"); A("s_mov_b32 s53, s11")
    for t in range(14):
        A(f"s_mov_b32 m0, {L_WQ + 1024*t}")
        A(f"buffer_load_dwordx4 {vr(vT+1)}, s[52:55], s33 offen {pol} lds")
        if t < 13: A("s_add_u32 s33, s33, 0x40000")
    A("s_mov_b64 exec, s[36:37]")
    for t in range(14):
        A(f"global_load_dwordx4 {vr(vX+4*t,4)}, {vr(vT)}, s[4:5] offset:{64*t} {pol}")
    A("s_mov_b64 exec, -1")
    A("s_lshl_b32 s33, s31, 2"); A(f"v_mov_b32 {vr(vDb)}, s33")
    A(f"global_load_dword {vr(vT+20)}, {vr(vDb)}, s[26:27] sc1")
    A(f"v_lshlrev_b32 {vr(vT+2)}, 3, v1"); A(f"v_lshl_add_u32 {vr(vT+2)}, v2, 8, {vr(vT+2)}"); A(f"v_add_u32 {vr(vT+2)}, {L_WQ}, {vr(vT+2)}")
    A(f"v_bfe_u32 {vr(vT+3)}, v1, 2, 1"); A(f"v_lshl_add_u32 {vr(vT+3)}, {vr(vT+3)}, 4, v1"); A(f"v_lshlrev_b32 {vr(vT+3)}, 2, {vr(vT+3)}")
    A(f"v_lshlrev_b32 {vr(vT+4)}, 2, v1"); A(f"v_add_u32 {vr(vT+4)}, 128, {vr(vT+4)}")
    A(f"v_and_b32 {vr(vT+5)}, 3, v1")
    for i in range(1, 4): A(f"v_cmp_eq_u32 s[{38+2*i}:{39+2*i}], {i}, {vr(vT+5)}")
    A(f"v_lshlrev_b32 {vr(vT+5)}, 10, v1"); A(f"v_lshl_add_u32 {vr(vT+5)}, v2, 3, {vr(vT+5)}")
    A("s_lshl_b32 s33, s31, 14"); A("s_lshl_b32 s34, s32, 5"); A("s_add_u32 s33, s33, s34"); A(f"v_add_u32 {vr(vT+5)}, s33, {vr(vT+5)}")
    A("s_waitcnt vmcnt(1)")
    stamp(1)
    D1 = vT + 8; D2 = vT + 12
    wf = vC
    for t0 in (0, 7):
        for t in range(t0, t0 + 7):
            A(f"ds_read_b64_tr_b16 {vr(wf+4*t,2)}, {vr(vT+2)} offset:{1024*t}")
            A(f"ds_read_b64_tr_b16 {vr(wf+4*t+2,2)}, {vr(vT+2)} offset:{1024*t+128}")
        for t in range(t0, t0 + 7):
            c = "0" if t == 0 else vr(D2, 4)
            A(f"v_mfma_f32_16x16x32_bf16 {vr(D2,4)}, {vr(vX+4*t,4)}, {vr(vX+4*t,4)}, {c}")
        A("s_waitcnt lgkmcnt(0)")
        for t in range(t0, t0 + 7):
            c = "0" if t == 0 else vr(D1, 4)
            A(f"v_mfma_f32_16x16x32_bf16 {vr(D1,4)}, {vr(wf+4*t,4)}, {vr(vX+4*t,4)}, {c}")
    for i in range(1, 4): A(f"v_cndmask_b32 {vr(D2)}, {vr(D2)}, {vr(D2+i)}, s[{38+2*i}:{39+2*i}]")
    A(f"ds_bpermute_b32 {vr(vT+6)}, {vr(vT+3)}, {vr(D2)}")
    A(f"ds_bpermute_b32 {vr(vT+7)}, {vr(vT+4)}, {vr(D2)}")
    A(f"s_mov_b32 s33, {f32(1.0/448)}")
    A("s_waitcnt lgkmcnt(0)")
    A(f"v_mul_f32 {vr(vT+7)}, s33, {vr(vT+7)}")
    A(f"v_mul_f32 {vr(vT+6)}, s33, {vr(vT+6)}")
    A(f"v_fma_f32 {vr(vT+6)}, -{vr(vT+7)}, {vr(vT+7)}, {vr(vT+6)}")
    A(f"v_max_f32 {vr(vT+6)}, 0, {vr(vT+6)}")
    A(f"v_add_f32 {vr(vT+6)}, {f32(1e-5)}, {vr(vT+6)}")
    A(f"v_rsq_f32 {vr(vT+6)}, {vr(vT+6)}")
    for i in range(4):
        A(f"v_mul_f32_dpp {vr(D2+i)}, {vr(D1+i)}, {vr(vT+7)} row_newbcast:8 row_mask:0xf bank_mask:0xf")
    for i in range(4):
        A(f"v_sub_f32 {vr(D1+i)}, {vr(D1+i)}, {vr(D2+i)}")
        A(f"v_mul_f32 {vr(D1+i)}, {vr(D1+i)}, {vr(vT+6)}")
    A(f"v_cvt_pk_bf16_f32 {vr(D1)}, {vr(D1)}, {vr(D1+1)}")
    A(f"v_cvt_pk_bf16_f32 {vr(D1+1)}, {vr(D1+2)}, {vr(D1+3)}")
    A(f"v_min_u32 {vr(D1)}, -2, {vr(D1)}"); A(f"v_min_u32 {vr(D1+1)}, -2, {vr(D1+1)}")
    stamp(2)
    def flag1_wait(tag, reg):
        A("s_mov_b32 s35, 0")
        A(f"L_f1{tag}:")
        A("s_waitcnt vmcnt(0)")
        A(f"v_readfirstlane_b32 s33, {vr(reg)}")
        A("s_add_u32 s35, s35, 1")
        A("s_cmp_lg_u32 s33, 0")
        A(f"s_cbranch_scc1 L_f1d{tag}")
        A(f"global_load_dword {vr(reg)}, {vr(vDb)}, s[26:27] sc1")
        A(f"s_cmp_lt_u32 s35, {SPIN}")
        A(f"s_cbranch_scc1 L_f1{tag}")
        A(f"L_f1d{tag}:")
    flag1_wait("a", vT + 20)
    A("s_getreg_b32 s34, hwreg(HW_REG_XCC_ID, 0, 4)")
    A("s_or_b32 s34, s34, 0x100")
    A("s_cmp_eq_u32 s33, s34")
    A("s_cbranch_scc1 L_same")
    A(f"v_mov_b32 {vr(vT+6)}, 1")
    A(f"global_store_dword {vr(vDb)}, {vr(vT+6)}, s[26:27] offset:64 sc1")
    A("s_waitcnt vmcnt(0)")
    A("L_same:")
    A("s_mov_b64 exec, s[36:37]")
    A(f"global_store_dwordx2 {vr(vT+5)}, {vr(D1,2)}, s[28:29] sc1")
    A("s_mov_b64 exec, -1")
    stamp(3)
    A("s_setprio 0")
    A("s_branch L_prep")

    A("L_T123:")
    A("s_cmp_eq_u32 s30, 3"); A("s_cbranch_scc0 L_T12")
    A.c("T3: leader clears")
    A("s_and_b32 s33, s32, 30"); A("s_cmp_eq_u32 s33, 28"); A("s_cbranch_scc0 L_prepw")
    A("s_setprio 3")
    for i in range(4): A(f"v_mov_b32 {vr(vT+4+i)}, -1")
    A(f"v_lshlrev_b32 {vr(vT)}, 4, v0")
    A("s_cmp_eq_u32 s32, 28"); A("s_cbranch_scc0 L_leadB")
    A("s_lshl_b32 s33, s31, 14"); A("s_add_u32 s33, s33, 4096"); A(f"v_add_u32 {vr(vT)}, s33, {vr(vT)}")
    A(f"v_add_u32 {vr(vT+1)}, 4096, {vr(vT)}")
    A("s_lshl_b32 s33, s31, 2")
    A("s_waitcnt lgkmcnt(0)")
    for i in range(8): A(f"global_store_dwordx4 {vr(vT)}, {vr(vT+4,4)}, s[28:29] offset:{1024*i-4096} sc1")
    A("s_mov_b64 exec, 0xffff")
    A(f"global_store_dwordx4 {vr(vT+1)}, {vr(vT+4,4)}, s[28:29] sc1")
    A("s_branch L_leadD")
    A("L_leadB:")
    A("s_mul_i32 s33, s31, 14336"); A(f"s_add_u32 s33, s33, {W_B + 4096}"); A(f"v_add_u32 {vr(vT)}, s33, {vr(vT)}")
    A(f"v_add_u32 {vr(vT+1)}, 8192, {vr(vT)}")
    A("s_lshl_b32 s33, s31, 2"); A("s_add_u32 s33, s33, 32")
    A("s_waitcnt lgkmcnt(0)")
    for i in range(8): A(f"global_store_dwordx4 {vr(vT)}, {vr(vT+4,4)}, s[28:29] offset:{1024*i-4096} sc1")
    for i in range(6): A(f"global_store_dwordx4 {vr(vT+1)}, {vr(vT+4,4)}, s[28:29] offset:{1024*i-4096} sc1")
    A("L_leadD:")
    A("s_mov_b64 exec, 1")
    A("s_getreg_b32 s34, hwreg(HW_REG_XCC_ID, 0, 4)")
    A("s_or_b32 s34, s34, 0x100")
    A(f"v_mov_b32 {vr(vT+2)}, s33"); A(f"v_mov_b32 {vr(vT+3)}, s34")
    A("s_waitcnt vmcnt(0)")
    stamp(1)
    A(f"global_store_dword {vr(vT+2)}, {vr(vT+3)}, s[26:27] sc1")
    A("s_mov_b64 exec, -1")
    A("s_setprio 0")
    A("s_branch L_prep")

    A("L_T12:")
    A("s_cmp_eq_u32 s30, 2"); A("s_cbranch_scc0 L_prepw")
    A.c("T2: H and Y init")
    A("s_mul_i32 s33, s31, 896")
    A(f"v_lshlrev_b32 {vr(vT)}, 3, v0"); A(f"v_add_u32 {vr(vT)}, s33, {vr(vT)}")
    A(f"v_mul_u32_u24 {vr(vT+1)}, 6, v0"); A(f"v_add_u32 {vr(vT+1)}, s33, {vr(vT+1)}")
    A(f"v_mov_b32 {vr(vT+2)}, 0")
    A("s_waitcnt lgkmcnt(0)")
    A(f"global_load_dwordx2 {vr(vT+4,2)}, {vr(vT)}, s[4:5] {pol}")
    for i in range(3): A(f"global_load_ushort {vr(vT+6+i)}, {vr(vT+1)}, s[4:5] offset:{512+2*i} {pol}")
    A(f"global_load_ushort {vr(vT+9)}, {vr(vT+2)}, s[22:23] {pol}")
    A(f"v_lshlrev_b32 {vr(vT+3)}, 2, v0"); A(f"v_add_u32 {vr(vT+3)}, {L_H}, {vr(vT+3)}")
    A("s_waitcnt vmcnt(0)")
    A(f"v_lshlrev_b32 {vr(vT+10)}, 16, {vr(vT+4)}"); A(f"v_and_b32 {vr(vT+11)}, 0xffff0000, {vr(vT+4)}")
    A(f"v_lshlrev_b32 {vr(vT+12)}, 16, {vr(vT+5)}"); A(f"v_and_b32 {vr(vT+13)}, 0xffff0000, {vr(vT+5)}")
    for i in range(4): A(f"v_lshlrev_b32 {vr(vT+14+i)}, 16, {vr(vT+6+i)}")
    for i in range(7): A(f"ds_write_b32 {vr(vT+3)}, {vr(vT+10+i)} offset:{256*i}")
    A(f"ds_write_b32 {vr(vT+3)}, {vr(vT+2)} offset:{256*7}")
    A(f"ds_write_b32 {vr(vT+3)}, {vr(vT+17)} offset:{L_Y - L_H}")
    A("L_prepw:")
    A("s_waitcnt lgkmcnt(0)")
    A("L_prep:")
    A.c("prep: MLP coefficient + wo loads")
    raw = vX
    A(f"v_and_b32 {vr(vT)}, 31, v0")
    A("s_mul_i32 s33, s30, 896")
    A(f"v_lshlrev_b32 {vr(vT+1)}, 4, {vr(vT)}"); A(f"v_add_u32 {vr(vT+1)}, s33, {vr(vT+1)}")
    A(f"v_lshlrev_b32 {vr(vT+2)}, 3, {vr(vT)}"); A(f"v_add_u32 {vr(vT+2)}, s33, {vr(vT+2)}")
    A(f"v_lshlrev_b32 {vr(vT+3)}, 2, {vr(vT)}"); A(f"v_add_u32 {vr(vT+3)}, s33, {vr(vT+3)}")
    for k, sp in enumerate((16, 18, 20)):
        A(f"global_load_dwordx4 {vr(raw+8*k,4)}, {vr(vT+1)}, s[{sp}:{sp+1}] {pol}")
        A(f"global_load_dwordx2 {vr(raw+8*k+4,2)}, {vr(vT+2)}, s[{sp}:{sp+1}] offset:512 {pol}")
        A(f"global_load_dword {vr(raw+8*k+6)}, {vr(vT+3)}, s[{sp}:{sp+1}] offset:768 {pol}")
    A("s_lshl_b32 s33, s31, 2"); A(f"v_mov_b32 {vr(vDb)}, s33")
    A("s_cmp_ge_u32 s32, 28"); A("s_cbranch_scc1 L_nowo")
    A("s_lshl_b32 s33, s31, 9"); A("s_lshl_b32 s34, s30, 7"); A("s_add_u32 s33, s33, s34"); A("s_add_u32 s33, s33, 4")
    A("s_mul_i32 s33, s33, 896"); A("s_lshr_b32 s34, s32, 1"); A("s_lshl_b32 s34, s34, 6"); A("s_add_u32 s33, s33, s34")
    A(f"v_mul_u32_u24 {vr(vT+4)}, {8*896}, v2"); A(f"v_lshl_add_u32 {vr(vT+4)}, v1, 2, {vr(vT+4)}"); A(f"v_add_u32 {vr(vT+4)}, s33, {vr(vT+4)}")
    for tt in range(4):
        for jj in range(8):
            A(f"global_load_dword {vr(vRaw+8*tt+jj)}, {vr(vT+4)}, s[12:13] offset:{(jj-4)*896} {pol}")
        if tt < 3: A(f"v_add_u32 {vr(vT+4)}, {32*896}, {vr(vT+4)}")
    A("s_waitcnt vmcnt(32)")
    A("s_branch L_coef")
    A("L_nowo:")
    A("s_waitcnt vmcnt(0)")
    A("L_coef:")
    A(f"s_mov_b32 s33, {f32(BETA)}"); A(f"s_mov_b32 s34, {f32(3*BETA)}"); A("s_mov_b32 s38, 0xffff0000")
    A(f"v_mov_b32 {vr(vT)}, {f32(ALPHA)}")
    A("v_cmp_lt_u32 vcc, 31, v0")
    w, b, u, bb, c0, c1, c2, c3, ca, cc, hi = (vT + 1 + i for i in range(11))
    for tile in range(14):
        for k, d in enumerate((w, b, u)):
            src = raw + 8*k + (tile >> 1)
            if tile & 1: A(f"v_and_b32 {vr(d)}, s38, {vr(src)}")
            else: A(f"v_lshlrev_b32 {vr(d)}, 16, {vr(src)}")
        A(f"v_mul_f32 {vr(bb)}, {vr(b)}, {vr(b)}")
        A(f"v_fma_f32 {vr(c0)}, {vr(bb)}, s33, {vr(vT)}"); A(f"v_mul_f32 {vr(c0)}, {vr(c0)}, {vr(b)}")
        A(f"v_fma_f32 {vr(c1)}, {vr(bb)}, s34, {vr(vT)}"); A(f"v_mul_f32 {vr(c1)}, {vr(c1)}, {vr(w)}")
        A(f"v_mul_f32 {vr(bb)}, {vr(w)}, {vr(w)}")
        A(f"v_mul_f32 {vr(c2)}, s34, {vr(bb)}"); A(f"v_mul_f32 {vr(c2)}, {vr(c2)}, {vr(b)}")
        A(f"v_mul_f32 {vr(c3)}, s33, {vr(bb)}"); A(f"v_mul_f32 {vr(c3)}, {vr(c3)}, {vr(w)}")
        A(f"v_mul_f32 {vr(ca)}, {vr(w)}, {vr(u)}"); A(f"v_mul_f32 {vr(cc)}, {vr(b)}, {vr(u)}")
        for k, (lo_, hi_) in enumerate(((c1, c2), (c0, c2), (ca, c3), (cc, c3))):
            A(f"v_cndmask_b32 {vr(lo_)}, {vr(lo_)}, {vr(hi_)}, vcc")
            A(f"v_cvt_pk_bf16_f32 {vr(hi)}, {vr(lo_)}, {vr(lo_)}")
            A(f"v_and_b32 {vr(hi)}, s38, {vr(hi)}")
            A(f"v_sub_f32 {vr(lo_)}, {vr(lo_)}, {vr(hi)}")
            A(f"v_cvt_pk_bf16_f32 {vr(vC+4*tile+k)}, {vr(hi)}, {vr(lo_)}")
    A.c("tail constants")
    def hmap(dst, col, t1, t2):
        A(f"v_and_b32 {vr(t1)}, 3, {vr(col)}"); A(f"v_lshlrev_b32 {vr(t1)}, 8, {vr(t1)}")
        A(f"v_and_b32 {vr(t2)}, 0xfc, {vr(col)}"); A(f"v_add_u32 {vr(dst)}, {vr(t1)}, {vr(t2)}")
        A(f"v_subrev_u32 {vr(t1)}, 256, {vr(col)}"); A(f"v_and_b32 {vr(t1)}, 0xff, {vr(t1)}")
        A(f"v_mul_u32_u24 {vr(t2)}, 171, {vr(t1)}"); A(f"v_lshrrev_b32 {vr(t2)}, 9, {vr(t2)}")
        A(f"v_mad_i32_i24 {vr(t1)}, {vr(t2)}, -3, {vr(t1)}")
        A(f"v_lshlrev_b32 {vr(t1)}, 8, {vr(t1)}"); A(f"v_lshl_add_u32 {vr(t1)}, {vr(t2)}, 2, {vr(t1)}"); A(f"v_add_u32 {vr(t1)}, 1024, {vr(t1)}")
        A(f"v_cmp_lt_u32 vcc, 255, {vr(col)}")
        A(f"v_cndmask_b32 {vr(dst)}, {vr(dst)}, {vr(t1)}, vcc")
        A(f"v_add_u32 {vr(dst)}, {L_H}, {vr(dst)}")
    A("s_mul_i32 s33, s32, 14")
    ii = vT; hf = vT + 1; col = vT + 2
    A(f"v_bfe_u32 {vr(ii)}, v0, 3, 1"); A(f"v_and_b32 {vr(hf)}, 3, v0"); A(f"v_lshl_add_u32 {vr(ii)}, {vr(ii)}, 2, {vr(hf)}")
    A(f"v_bfe_u32 {vr(hf)}, v0, 2, 1")
    A(f"v_min_u32 {vr(col)}, 6, {vr(ii)}"); A(f"v_mad_u32_u24 {vr(col)}, {vr(hf)}, 7, {vr(col)}"); A(f"v_add_u32 {vr(col)}, s33, {vr(col)}")
    hmap(vHa, col, vT + 3, vT + 4)
    A(f"v_cmp_eq_u32 vcc, 7, {vr(ii)}"); A(f"v_cndmask_b32 {vr(vT+3)}, v2, 3, vcc")
    A(f"v_mov_b32 {vr(vT+4)}, 0x3f803f80")
    A(f"v_cmp_eq_u32 vcc, 2, {vr(vT+3)}"); A(f"v_cndmask_b32 {vr(vK1)}, 0, 1.0, vcc")
    A(f"v_cmp_eq_u32 vcc, 0, {vr(vT+3)}"); A(f"v_cndmask_b32 {vr(vK1+1)}, 0, 1.0, vcc")
    A(f"v_cndmask_b32 {vr(vK1+3)}, 0, {vr(vT+4)}, vcc")
    A(f"v_cmp_eq_u32 vcc, 1, {vr(vT+3)}"); A(f"v_cndmask_b32 {vr(vK1+2)}, 0, 1.0, vcc")
    A(f"v_cndmask_b32 {vr(vK1+4)}, 0, {vr(vT+4)}, vcc")
    for k in range(2):
        A(f"v_min_u32 {vr(col)}, 6, v0"); A(f"v_lshlrev_b32 {vr(col)}, 1, {vr(col)}"); A(f"v_add_u32 {vr(col)}, s33, {vr(col)}")
        if k: A(f"v_add_u32 {vr(col)}, 1, {vr(col)}")
        hmap(vHf + k, col, vT + 3, vT + 4)
    A(f"v_bfe_u32 {vr(vT)}, v0, 2, 1"); A(f"v_bfe_u32 {vr(vT+1)}, v0, 3, 1"); A(f"v_lshl_add_u32 {vr(vT)}, {vr(vT)}, 1, {vr(vT+1)}")
    A(f"v_bfe_u32 {vr(vT+1)}, v0, 4, 1"); A(f"v_lshl_add_u32 {vr(vT)}, {vr(vT+1)}, 2, {vr(vT)}")
    A(f"v_lshrrev_b32 {vr(vT+1)}, 5, v0"); A(f"v_mad_u32_u24 {vr(vT+1)}, {vr(vT+1)}, 7, {vr(vT)}")
    A(f"v_cmp_eq_u32 vcc, 7, {vr(vT)}"); A(f"v_cndmask_b32 {vr(vT+1)}, {vr(vT+1)}, 15, vcc")
    A(f"v_lshlrev_b32 {vr(vYa)}, 2, {vr(vT+1)}"); A(f"v_add_u32 {vr(vYa)}, {L_Y}, {vr(vYa)}")
    A("s_lshl_b32 s33, s31, 14"); A("s_add_u32 s33, s33, 8192"); A("s_lshr_b32 s34, s30, 1"); A("s_lshl_b32 s34, s34, 7"); A("s_add_u32 s34, s34, s33")
    A("s_and_b32 s35, s32, 1"); A("s_lshl_b32 s36, s35, 6"); A("s_add_u32 s34, s34, s36")
    A(f"v_lshlrev_b32 {vr(vLa)}, 4, v2"); A(f"v_add_u32 {vr(vLa)}, s34, {vr(vLa)}")
    A("s_lshl_b32 s34, s32, 2"); A("s_add_u32 s34, s34, s33")
    A(f"v_lshlrev_b32 {vr(vLst)}, 7, v0"); A(f"v_add_u32 {vr(vLst)}, s34, {vr(vLst)}")
    A("s_lshl_b32 s33, s31, 15"); A(f"s_add_u32 s33, s33, {W_O}")
    A("s_lshl_b32 s34, s35, 14"); A("s_add_u32 s34, s34, s33"); A("s_lshl_b32 s36, s30, 12"); A("s_add_u32 s34, s34, s36")
    A(f"v_lshlrev_b32 {vr(vOa)}, 4, v0"); A(f"v_add_u32 {vr(vOa)}, s34, {vr(vOa)}")
    A("s_lshr_b32 s34, s32, 4"); A("s_lshl_b32 s34, s34, 14"); A("s_add_u32 s34, s34, s33"); A("s_and_b32 s36, s32, 15"); A("s_lshl_b32 s36, s36, 4"); A("s_add_u32 s34, s34, s36")
    A(f"v_lshlrev_b32 {vr(vOst)}, 8, v0"); A(f"v_add_u32 {vr(vOst)}, s34, {vr(vOst)}")
    A("s_lshl_b32 s34, s30, 9"); A(f"s_add_u32 s34, s34, {L_PP}")
    A(f"v_lshlrev_b32 {vr(vPPa)}, 3, v0"); A(f"v_add_u32 {vr(vPPa)}, s34, {vr(vPPa)}")
    A("s_lshl_b32 s34, s35, 5"); A("s_add_u32 s34, s34, s31"); A("s_mul_i32 s34, s34, 1792"); A("s_lshr_b32 s36, s32, 1"); A("s_lshl_b32 s36, s36, 7")
    A("s_add_u32 s34, s34, s36"); A(f"s_add_u32 s34, s34, {W_B}")
    A(f"v_mul_u32_u24 {vr(vBst)}, {8*1792}, v2"); A(f"v_lshl_add_u32 {vr(vBst)}, v1, 3, {vr(vBst)}"); A(f"v_add_u32 {vr(vBst)}, s34, {vr(vBst)}")
    bsetup()
    A("s_mov_b32 s33, 0x05040100"); A("s_mov_b32 s34, 0x07060302")
    A("s_waitcnt vmcnt(0)")
    for tt in range(4):
        for i in range(4):
            lo_, hi_ = vRaw + 8*tt + 2*i, vRaw + 8*tt + 2*i + 1
            A(f"v_perm_b32 {vr(vWE+4*tt+i)}, {vr(hi_)}, {vr(lo_)}, s33")
            A(f"v_perm_b32 {vr(vWO+4*tt+i)}, {vr(hi_)}, {vr(lo_)}, s34")
    stamp(4)
    A("s_cmp_eq_u32 s30, 1"); A("s_cbranch_scc0 L_b1")
    A.c("T1: gather q")
    A(f"global_load_dword {vr(vT+20)}, {vr(vDb)}, s[26:27] sc1")
    A("s_lshl_b32 s34, s31, 14"); A("s_lshr_b32 s36, s32, 2"); A("s_lshl_b32 s36, s36, 10"); A("s_add_u32 s34, s34, s36")
    A(f"v_lshlrev_b32 {vr(vT)}, 4, v0"); A(f"v_add_u32 {vr(vT+1)}, s34, {vr(vT)}"); A(f"v_add_u32 {vr(vT)}, {L_Q}, {vr(vT)}")
    flag1_wait("b", vT + 20)
    stamp(1)
    A("s_mov_b32 s35, 0")
    A("L_qpoll:")
    A(f"global_load_dwordx4 {vr(vT+4,4)}, {vr(vT+1)}, s[28:29] sc1")
    A("s_add_u32 s35, s35, 1")
    A(f"s_cmp_ge_u32 s35, {SPIN}")
    A("s_waitcnt vmcnt(0)")
    A(f"v_max3_u32 {vr(vT+2)}, {vr(vT+4)}, {vr(vT+5)}, {vr(vT+6)}"); A(f"v_max_u32 {vr(vT+2)}, {vr(vT+2)}, {vr(vT+7)}")
    A(f"v_cmp_eq_u32 vcc, -1, {vr(vT+2)}")
    A("s_cbranch_scc1 L_qdone")
    A("s_cbranch_vccnz L_qpoll")
    A("L_qdone:")
    A(f"ds_write_b128 {vr(vT)}, {vr(vT+4,4)}")
    A(f"v_lshlrev_b32 {vr(vDb)}, 2, v0")
    A(f"global_load_dword {vr(vT+20)}, {vr(vDb)}, s[26:27] sc1")
    stamp(2)
    A("s_waitcnt lgkmcnt(0)")
    A("L_b1:")
    A("s_barrier")
    A("s_barrier")
    A("s_cmp_eq_u32 s30, 1"); A("s_cbranch_scc0 L_b3")
    A.c("T1: lse + flags")
    A(f"v_and_b32 {vr(vT)}, 1, v0"); A(f"v_lshlrev_b32 {vr(vT)}, 5, {vr(vT)}"); A(f"v_add_u32 {vr(vT)}, {L_STAT}, {vr(vT)}")
    A(f"ds_read_b128 {vr(vT+4,4)}, {vr(vT)}")
    A(f"ds_read_b128 {vr(vT+8,4)}, {vr(vT)} offset:16")
    A("s_waitcnt lgkmcnt(0)")
    stats(vT + 4, vT + 8, vT + 1, vT + 2, None)
    A(f"v_log_f32 {vr(vT+2)}, {vr(vT+2)}")
    A(f"v_add_f32 {vr(vLse)}, {vr(vT+1)}, {vr(vT+2)}")
    A(f"v_min_u32 {vr(vLse)}, -2, {vr(vLse)}")
    A("s_mov_b32 s35, 0")
    A("L_f2:")
    A("s_waitcnt vmcnt(0)")
    A(f"v_cmp_ne_u32 vcc, 0, {vr(vT+20)}")
    A("s_add_u32 s35, s35, 1")
    A("s_bfe_u32 s33, vcc_lo, 0x80008")
    A("s_cmp_eq_u32 s33, 0xff")
    A("s_cbranch_scc1 L_f2d")
    A(f"global_load_dword {vr(vT+20)}, {vr(vDb)}, s[26:27] sc1")
    A(f"s_cmp_lt_u32 s35, {SPIN}")
    A("s_cbranch_scc1 L_f2")
    A("L_f2d:")
    A("s_add_u32 s33, s31, 16")
    A("s_lshr_b32 s62, vcc_lo, s33"); A("s_and_b32 s62, s62, 1")
    if force_slow: A("s_mov_b32 s62, 1")
    A(f"v_lshlrev_b32 {vr(vT)}, 4, v0"); A(f"v_add_u32 {vr(vT)}, {L_OP}, {vr(vT)}")
    A("s_cmp_eq_u32 s62, 0")
    stamp(3)
    A("s_barrier")
    stamp(5)
    o = vX
    for w_ in range(4):
        for hh in range(2):
            A(f"ds_read_b128 {vr(o+8*w_+4*hh,4)}, {vr(vT)} offset:{2048*w_+1024*hh}")
    for w_ in range(1, 4):
        A(f"s_waitcnt lgkmcnt({6-2*w_})")
        for k in range(4):
            A(f"v_pk_add_f32 {vr(o+2*k,2)}, {vr(o+2*k,2)}, {vr(o+8*w_+2*k,2)}")
    for k in range(4):
        A(f"v_cvt_pk_bf16_f32 {vr(o+8+k)}, {vr(o+2*k)}, {vr(o+2*k+1)}")
    A("s_cbranch_scc0 L_slowpub")
    A(f"global_store_dwordx4 {vr(vOst)}, {vr(o+8,4)}, s[28:29]")
    A("s_mov_b64 exec, 3")
    A("s_waitcnt vmcnt(0)")
    A(f"global_store_dword {vr(vLst)}, {vr(vLse)}, s[28:29]")
    A("L_pubd:")
    A("s_mov_b64 exec, -1")
    stamp(6)
    A("L_op:")
    A.c("out projection")
    A("s_mov_b32 s35, 0")
    ls4 = vT + 4
    A("L_lpoll:")
    A(f"global_load_dwordx4 {vr(ls4,4)}, {vr(vLa)}, s[28:29] sc1")
    A("s_add_u32 s35, s35, 1")
    A(f"s_cmp_ge_u32 s35, {SPIN}")
    A("s_waitcnt vmcnt(0)")
    A(f"v_max3_u32 {vr(vT+2)}, {vr(ls4)}, {vr(ls4+1)}, {vr(ls4+2)}"); A(f"v_max_u32 {vr(vT+2)}, {vr(vT+2)}, {vr(ls4+3)}")
    A(f"v_cmp_eq_u32 vcc, -1, {vr(vT+2)}")
    A("s_cbranch_scc1 L_ldone")
    A("s_cbranch_vccnz L_lpoll")
    A("L_ldone:")
    oa = vRaw
    for tt in range(4):
        A(f"global_load_dwordx4 {vr(oa+4*tt,4)}, {vr(vOa)}, s[28:29] offset:{1024*tt} sc1")
    stamp(7)
    A(f"v_max3_f32 {vr(vT+2)}, {vr(ls4)}, {vr(ls4+1)}, {vr(ls4+2)}"); A(f"v_max_f32 {vr(vT+2)}, {vr(vT+2)}, {vr(ls4+3)}")
    for i in range(4): A(f"v_sub_f32 {vr(ls4+i)}, {vr(ls4+i)}, {vr(vT+2)}")
    for i in range(4): A(f"v_exp_f32 {vr(ls4+i)}, {vr(ls4+i)}")
    A(f"v_add_f32 {vr(vT+2)}, {vr(ls4)}, {vr(ls4+1)}"); A(f"v_add_f32 {vr(vT+3)}, {vr(ls4+2)}, {vr(ls4+3)}"); A(f"v_add_f32 {vr(vT+2)}, {vr(vT+2)}, {vr(vT+3)}")
    A(f"v_rcp_f32 {vr(vT+2)}, {vr(vT+2)}")
    for i in range(4): A(f"v_mul_f32 {vr(ls4+i)}, {vr(ls4+i)}, {vr(vT+2)}")
    DE = vT + 8; DO = vT + 12
    for tt in range(4):
        A(f"s_waitcnt vmcnt({3-tt})")
        for D, Wf in ((DE, vWE), (DO, vWO)):
            c = "0" if tt == 0 else vr(D, 4)
            A(f"v_mfma_f32_16x16x32_bf16 {vr(D,4)}, {vr(oa+4*tt,4)}, {vr(Wf+4*tt,4)}, {c}")
    for k, D in enumerate((DE, DO)):
        A(f"v_mul_f32 {vr(vT+16+k)}, {vr(D)}, {vr(ls4)}")
        for i in range(1, 4): A(f"v_fmac_f32 {vr(vT+16+k)}, {vr(D+i)}, {vr(ls4+i)}")
    A(f"ds_write_b64 {vr(vPPa)}, {vr(vT+16,2)}")
    A("s_cmp_eq_u32 s30, 1"); A("s_cselect_b32 s33, s32, 28"); A("s_cmp_lt_u32 s33, 28")
    A("s_waitcnt lgkmcnt(0)")
    stamp(8)
    A("s_barrier")
    A("s_cbranch_scc0 L_nobst")
    A(f"v_subrev_u32 {vr(vT)}, 512, {vr(vPPa)}")
    for k, w_ in enumerate((0, 2, 3)):
        A(f"ds_read_b64 {vr(vT+4+2*k,2)}, {vr(vT)} offset:{512*w_}")
    for k in range(3):
        A(f"s_waitcnt lgkmcnt({2-k})")
        A(f"v_pk_add_f32 {vr(vT+16,2)}, {vr(vT+16,2)}, {vr(vT+4+2*k,2)}")
    A(f"v_min_u32 {vr(vT+16)}, -2, {vr(vT+16)}"); A(f"v_min_u32 {vr(vT+17)}, -2, {vr(vT+17)}")
    A(f"global_store_dwordx2 {vr(vBst)}, {vr(vT+16,2)}, s[28:29] sc1")
    A("s_waitcnt vmcnt(0)")
    A("L_nobst:")
    stamp(9)
    bpoll("T")
    A(f"v_lshlrev_b32 {vr(vT)}, 4, v0"); A(f"v_add_u32 {vr(vT)}, {L_H}, {vr(vT)}")
    stamp(10)
    A("s_barrier")
    A.c("LayerNorm x2 + token MLP")
    h8 = vT + 4; hv = vT + 1
    A(f"ds_read_b128 {vr(h8,4)}, {vr(vT)}")
    A(f"ds_read_b128 {vr(h8+4,4)}, {vr(vT)} offset:1024")
    A(f"ds_read_b32 {vr(hv)}, {vr(vHa)}")
    A(f"ds_read_b32 {vr(vHf)}, {vr(vHf)}")
    A(f"ds_read_b32 {vr(vHf+1)}, {vr(vHf+1)}")
    s1 = vT + 12; s2 = vT + 14
    A("s_waitcnt lgkmcnt(4)")
    A(f"v_pk_add_f32 {vr(s1,2)}, {vr(h8,2)}, {vr(h8+2,2)}")
    A(f"v_pk_mul_f32 {vr(s2,2)}, {vr(h8,2)}, {vr(h8,2)}")
    A(f"v_pk_fma_f32 {vr(s2,2)}, {vr(h8+2,2)}, {vr(h8+2,2)}, {vr(s2,2)}")
    A("s_waitcnt lgkmcnt(3)")
    for k in (4, 6):
        A(f"v_pk_add_f32 {vr(s1,2)}, {vr(s1,2)}, {vr(h8+k,2)}")
        A(f"v_pk_fma_f32 {vr(s2,2)}, {vr(h8+k,2)}, {vr(h8+k,2)}, {vr(s2,2)}")
    A(f"v_add_f32 {vr(s1)}, {vr(s1)}, {vr(s1+1)}"); A(f"v_add_f32 {vr(s2)}, {vr(s2)}, {vr(s2+1)}")
    A(f"v_permlane32_swap_b32 {vr(s1)}, {vr(s2)}")
    A(f"v_add_f32 {vr(s1)}, {vr(s1)}, {vr(s2)}")
    for sh in (8, 4, 2, 1):
        A(f"v_add_f32_dpp {vr(s1)}, {vr(s1)}, {vr(s1)} row_ror:{sh} row_mask:0xf bank_mask:0xf")
    A(f"v_add_f32_dpp {vr(s1)}, {vr(s1)}, {vr(s1)} row_bcast:15 row_mask:0xa bank_mask:0xf")
    A(f"v_mov_b32 {vr(s2)}, {f32(1.0/448)}")
    A(f"v_readlane_b32 s33, {vr(s1)}, 31")
    A(f"v_readlane_b32 s34, {vr(s1)}, 63")
    mu = vT + 2; rs = vT + 3
    A(f"s_mov_b32 s36, {f32(1.0 + 1e-5)}"); A("s_mov_b32 s38, 0xffff0000")
    A(f"v_mul_f32 {vr(mu)}, s33, {vr(s2)}")
    A(f"v_mul_f32 {vr(rs)}, s34, {vr(s2)}")
    A(f"v_fma_f32 {vr(rs)}, -{vr(mu)}, {vr(mu)}, {vr(rs)}")
    A(f"v_max_f32 {vr(rs)}, 0, {vr(rs)}")
    A(f"v_fmaak_f32 {vr(rs)}, s36, {vr(rs)}, {f32(1e-10)}") if False else None
    A(f"v_mul_f32 {vr(rs)}, s36, {vr(rs)}"); A(f"v_add_f32 {vr(rs)}, {f32(1e-10)}, {vr(rs)}")
    A(f"v_rsq_f32 {vr(rs)}, {vr(rs)}")
    A("s_waitcnt lgkmcnt(0)")
    A(f"v_sub_f32 {vr(hv)}, {vr(hv)}, {vr(mu)}")
    A(f"v_mul_f32 {vr(hv)}, {vr(hv)}, {vr(rs)}")
    A(f"v_cvt_pk_bf16_f32 {vr(hv)}, {vr(hv)}, {vr(hv)}")
    A(f"v_and_b32 {vr(hv)}, s38, {vr(hv)}")
    X = vT + 4; Y = vT + 5; t1 = vT + 6; t2 = vT + 7; Am = vT + 8
    A(f"v_fma_f32 {vr(X)}, {vr(hv)}, {vr(vK1)}, {vr(vK1+1)}"); A(f"v_mul_f32 {vr(X)}, {vr(X)}, {vr(hv)}")
    A(f"v_fma_f32 {vr(Y)}, {vr(X)}, {vr(vK1)}, {vr(vK1+2)}")
    A(f"v_cvt_pk_bf16_f32 {vr(Am)}, {vr(X)}, {vr(X)}")
    A(f"v_mul_f32 {vr(Y)}, {vr(Y)}, {vr(hv)}")
    A(f"v_and_b32 {vr(t1)}, s38, {vr(Am)}")
    A(f"v_cvt_pk_bf16_f32 {vr(Am+2)}, {vr(Y)}, {vr(Y)}")
    A(f"v_sub_f32 {vr(X)}, {vr(X)}, {vr(t1)}")
    A(f"v_and_b32 {vr(t2)}, s38, {vr(Am+2)}")
    A(f"v_cvt_pk_bf16_f32 {vr(Am+1)}, {vr(X)}, {vr(X)}")
    A(f"v_sub_f32 {vr(Y)}, {vr(Y)}, {vr(t2)}")
    A(f"v_or_b32 {vr(Am+1)}, {vr(Am+1)}, {vr(vK1+3)}")
    A(f"v_cvt_pk_bf16_f32 {vr(Am+3)}, {vr(Y)}, {vr(Y)}")
    A(f"v_or_b32 {vr(Am+3)}, {vr(Am+3)}, {vr(vK1+4)}")
    stamp(11)
    Db = [vX, vX + 16, vX + 32]; acc = vT + 12
    def mm(tile):
        A(f"v_mfma_f32_32x32x16_bf16 {vr(Db[tile%3],16)}, {vr(Am,4)}, {vr(vC+4*tile,4)}, 0")
    mm(0); mm(1)
    for tile in range(14):
        D = Db[tile % 3]
        for i in range(7): A(f"v_exp_f32 {vr(D+i)}, {vr(D+i)}")
        if tile + 2 < 14: mm(tile + 2)
        for i in range(0, 8, 2): A(f"v_pk_add_f32 {vr(D+i,2)}, {vr(D+i,2)}, 1.0 op_sel_hi:[1,0]")
        for i in range(7): A(f"v_rcp_f32 {vr(D+i)}, {vr(D+i)}")
        for i in range(0, 8, 2):
            if tile == 0: A(f"v_pk_mul_f32 {vr(acc+i,2)}, {vr(D+i,2)}, {vr(D+8+i,2)}")
            else: A(f"v_pk_fma_f32 {vr(acc+i,2)}, {vr(D+i,2)}, {vr(D+8+i,2)}, {vr(acc+i,2)}")
    stamp(12)
    for k in range(4): A(f"v_add_f32_dpp {vr(acc+2*k)}, {vr(acc+2*k)}, {vr(acc+2*k)} row_ror:8 row_mask:0xf bank_mask:0x3")
    for k in range(4): A(f"v_add_f32_dpp {vr(acc+2*k)}, {vr(acc+2*k+1)}, {vr(acc+2*k+1)} row_ror:8 row_mask:0xf bank_mask:0xc")
    for k in range(2): A(f"v_add_f32_dpp {vr(acc+4*k)}, {vr(acc+4*k)}, {vr(acc+4*k)} row_shl:4 row_mask:0xf bank_mask:0x5")
    for k in range(2): A(f"v_add_f32_dpp {vr(acc+4*k)}, {vr(acc+4*k+2)}, {vr(acc+4*k+2)} row_shr:4 row_mask:0xf bank_mask:0xa")
    A(f"v_permlane16_swap_b32 {vr(acc)}, {vr(acc+4)}")
    A(f"v_add_f32 {vr(acc)}, {vr(acc)}, {vr(acc+4)}")
    A(f"ds_add_f32 {vr(vYa)}, {vr(acc)}")
    A(f"v_lshlrev_b32 {vr(vT)}, 3, v1"); A(f"v_add_u32 {vr(vT)}, {L_Y}, {vr(vT)}")
    A("s_mul_i32 s33, s31, 896"); A("s_mul_i32 s34, s32, 28"); A("s_add_u32 s33, s33, s34")
    A(f"v_lshlrev_b32 {vr(vT+1)}, 2, v0"); A(f"v_add_u32 {vr(vT+1)}, s33, {vr(vT+1)}")
    A("s_cmp_eq_u32 s30, 1")
    A("s_waitcnt lgkmcnt(0)")
    A("s_barrier")
    A("s_cbranch_scc0 L_fin")
    if diag:
        if diag == "B":
            A("s_cmp_eq_u32 s62, 0"); A("s_cbranch_scc1 L_dg2")
        A("L_dg1:")
        A("s_memrealtime s[66:67]"); A("s_waitcnt lgkmcnt(0)"); A("s_sub_u32 s66, s66, s64")
        A(f"s_cmp_lt_u32 s66, {6000 if diag == 'A' else 10000}"); A("s_cbranch_scc1 L_dg1")
        A("L_dg2:")
    A(f"ds_read_b64 {vr(vT+2,2)}, {vr(vT)}")
    A("s_mov_b64 exec, 0x7f")
    A("s_waitcnt lgkmcnt(0)")
    A(f"v_pk_add_f32 {vr(vT+2,2)}, {vr(vT+2,2)}, {vr(vHf,2)}")
    A(f"v_cvt_pk_bf16_f32 {vr(vT+2)}, {vr(vT+2)}, {vr(vT+3)}")
    A(f"global_store_dword {vr(vT+1)}, {vr(vT+2)}, s[24:25]")
    A("L_fin:")
    if stamps:
        A("s_waitcnt vmcnt(0)")
        A("s_memrealtime s[90:91]"); A("s_waitcnt lgkmcnt(0)"); A("s_mov_b32 s92, s90")
        dump_stamps(13)
        A("v_mov_b32 v251, s92")
        A(f"global_store_dword v250, v251, s[28:29] offset:{4*13}")
    A("L_end:")
    A("s_endpgm")
    A("L_b3:")
    A("s_barrier")
    A("s_branch L_op")
    A("L_slowpub:")
    A(f"global_store_dwordx4 {vr(vOst)}, {vr(o+8,4)}, s[28:29] sc1")
    A("s_mov_b64 exec, 3")
    A("s_waitcnt vmcnt(0)")
    A(f"global_store_dword {vr(vLst)}, {vr(vLse)}, s[28:29] sc1")
    A("s_branch L_pubd")

    body, nn = fix_hazards(A.L)
    head = [l.rstrip("\n") for l in open("header.txt")]
    head.append(f"; @launch grid=(256,1,1) block=(512,1,1) lds={L_END}")
    head += ['.amdgcn_target "amdgcn-amd-amdhsa--gfx950"', ".text", f".globl {NAME}", ".p2align 8", f".type {NAME},@function"]
    tail = ['.section .rodata,"a"', ".p2align 6", f".amdhsa_kernel {NAME}",
            "  .amdhsa_next_free_vgpr 256", "  .amdhsa_next_free_sgpr 96", "  .amdhsa_accum_offset 256",
            "  .amdhsa_group_segment_fixed_size 0", "  .amdhsa_kernarg_size 104", "  .amdhsa_user_sgpr_count 2",
            "  .amdhsa_user_sgpr_kernarg_segment_ptr 1", "  .amdhsa_system_sgpr_workgroup_id_x 1",
            "  .amdhsa_float_denorm_mode_32 3", ".end_amdhsa_kernel"]
    return "\n".join(head + body + tail) + "\n"

if __name__ == "__main__":
    kw = eval("dict(" + (sys.argv[2] if len(sys.argv) > 2 else "") + ")")
    open(sys.argv[1], "w").write(gen(**kw))
```

```python
import sys, struct, math
from asmlib import *

NAME = "sequential_preLN__sliding_block_cached__mixer_token_mlp__decode_kernel"
def f32(x): return "0x%08x" % struct.unpack("<I", struct.pack("<f", x))[0]

L_K = 0; L_WQ = 131072; L_Q = 145408; L_STAT = 149504; L_OP = 149760; L_PP = 157952; L_H = 160000; L_HS = 161792; L_Y = 161856
L_END = 162112
W_Q = 0
W_O = 0x20000
W_B = 0x60000
W_STAMP = 0x100000
SPIN = 0x20000
STAMP_VIEW = [("S", slice(4, 8), [0, 6, 7, 1, 2, 3, 4, 5]), ("T0", 0, [0, 1, 2, 3, 4]), ("T3L", 3, [0, 1, 4], slice(224, 240)),
              ("T1", 1, [0, 4, 3, 5, 6, 7, 8, 9, 10, 11, 12, 13])]
ALPHA = -2.0 * math.sqrt(2.0 / math.pi) * math.log2(math.e)
BETA = ALPHA * 0.044715

def gen(W=8, QPOS=6, FT=6, rot=None, stamps=False, force_slow=False, pol="nt", qpol="", opol="", spol="", skip="",
        pref=True, diag=None, opos="late", qpat="cur", opat="cur"):
    A = Asm()
    rt = dict(t=(1, 0, 0), k=(1, 2, 0), v=(1, 1, 0), d=(1, 0, 2))
    rt.update(rot or {})
    def stamp(i):
        if stamps: A(f"s_memrealtime s[{64+2*i}:{65+2*i}]")
    def dump_stamps(nst):
        if not stamps: return
        A("s_waitcnt lgkmcnt(0) vmcnt(0)")
        A("s_lshl_b32 s94, s2, 3"); A("s_add_u32 s94, s94, s30"); A("s_lshl_b32 s94, s94, 6"); A(f"s_add_u32 s94, s94, {W_STAMP}")
        A("s_mov_b64 exec, 1")
        A("v_mov_b32 v250, s94")
        for i in range(nst):
            A(f"v_mov_b32 v251, s{64+2*i}")
            A(f"global_store_dword v250, v251, s[28:29] offset:{4*i}")
        A("s_waitcnt vmcnt(0)")
    def spoll(tag, sreg, soff, first=True):
        if first: A(f"s_load_dword {sreg}, s[26:27], {soff} glc")
        A("s_mov_b32 s35, 0")
        A(f"L_sp{tag}:")
        A("s_waitcnt lgkmcnt(0)")
        A(f"s_cmp_lg_u32 {sreg}, 0")
        A(f"s_cbranch_scc0 L_spr{tag}")
        A(f"L_spd{tag}:")
        def ool():
            A(f"L_spr{tag}:")
            A("s_add_u32 s35, s35, 1")
            A(f"s_cmp_ge_u32 s35, {SPIN}")
            A(f"s_cbranch_scc1 L_spd{tag}")
            A(f"s_load_dword {sreg}, s[26:27], {soff} glc")
            A(f"s_branch L_sp{tag}")
        OOL.append(ool)
    OOL = []

    A(f"{NAME}:")
    A("s_cmp_ge_u32 s2, 0x100")
    A("s_cbranch_scc1 L_end")
    stamp(0)
    if diag: A("s_memrealtime s[64:65]")
    A("s_load_dwordx16 s[4:19], s[0:1], 0")
    A("s_load_dwordx8 s[20:27], s[0:1], 64")
    A("s_load_dwordx2 s[28:29], s[0:1], 96")
    A("v_lshrrev_b32 v1, 6, v0")
    A("v_and_b32 v0, 63, v0")
    A("v_readfirstlane_b32 s30, v1")
    A("s_and_b32 s31, s2, 7")
    A("s_lshr_b32 s32, s2, 3")
    A("v_and_b32 v1, 15, v0")
    A("v_lshrrev_b32 v2, 4, v0")
    A("v_lshlrev_b32 v3, 4, v0")
    A("s_lshl_b32 s63, s31, 2")
    A("s_cmp_lt_u32 s30, 4")
    A("s_cbranch_scc1 L_T")

    A.c("================ stream waves")
    V = Alloc(4, 256)
    vK = V(8); vVo = V(8); vKA = V(4); vM = V(4); vT = V(8); vOPa = V(2); vQA = V(); vSTw = V(); vSTr = V(); vQg = V()
    vS = V(16); vAcc = vK; vQ = V(32); vKF = V(32); vVv = V(128)
    vA = vQ
    assert vKF == vQ + 32
    A("s_sub_u32 s33, s30, 4")
    def lin(dst, key, mask):
        a, b, sh = rt[key]
        A(f"s_mul_i32 {dst}, s32, {a}")
        if b: A(f"s_mul_i32 s35, s33, {b}"); A(f"s_add_u32 {dst}, {dst}, s35")
        A(f"s_bfe_u32 {dst}, {dst}, {hex((mask.bit_length() << 16) | sh)}")
    A("s_lshr_b32 s34, s2, 5"); A("s_lshl_b32 s34, s34, 3"); A("s_add_u32 s34, s34, s31"); A("s_lshl_b32 s34, s34, 4")
    A("s_and_b32 s35, s32, 3"); A("s_add_u32 s34, s34, s35"); A("s_add_u32 s34, s34, 12"); A("s_lshl_b32 s34, s34, 4")
    lin("s36", "t", 15)
    A("s_xor_b32 s36, s36, s33"); A("s_add_u32 s34, s34, s36"); A("s_lshl_b32 s40, s34, 13")
    lin("s36", "k", 7)
    def X(i): return ((8*(i & 1) + (i >> 1)) << 4) | (i << 10)
    A("s_and_b32 s38, s36, 1"); A("s_lshl_b32 s38, s38, 3"); A("s_lshr_b32 s39, s36, 1"); A("s_or_b32 s38, s38, s39")
    A("s_lshl_b32 s38, s38, 4"); A("s_lshl_b32 s36, s36, 10"); A("s_or_b32 s38, s38, s36")
    A("s_lshl_b32 s37, s33, 15"); A("s_or_b32 s44, s37, s36")
    A(f"v_lshrrev_b32 {vr(vT)}, 5, v0"); A(f"v_lshlrev_b32 {vr(vT)}, 6, {vr(vT)}")
    A(f"v_xor_b32 {vr(vT)}, {vr(vT)}, v3")
    A(f"v_xor_b32 {vr(vK)}, s38, {vr(vT)}")
    for i in range(1, 8): A(f"v_xor_b32 {vr(vK+i)}, {X(i)}, {vr(vK)}")
    A("s_mov_b32 s54, 0x8000000"); A("s_mov_b32 s55, 0x20000")
    A("s_mov_b32 m0, s44")
    A("s_waitcnt lgkmcnt(0)")
    A("s_mov_b32 s52, s6"); A("s_mov_b32 s53, s7")
    issued = [0]
    def throttle():
        if issued[0] >= W: A(f"s_waitcnt vmcnt({W-1})")
        issued[0] += 1
    def kload(tl, i):
        if tl or i: A(f"s_xor_b32 m0, s44, {(tl << 13) | (i << 10)}")
        throttle()
        A(f"buffer_load_dwordx4 {vr(vK+i)}, s[52:55], s{40+tl} offen {pol} lds")
    for i in range(8): kload(0, i)
    A("s_branch L_S2")

    A("L_T:")
    A.c("================ tail waves")
    V = Alloc(4, 250)
    vC = V(56); vWE = V(16); vWO = V(16); vRaw = V(32); vX = V(56); tT = V(24)
    vHa = V(); vYa = V(); vK1 = V(6); vLa = V(); vOa = V(); vPPa = V(); vBst = V(); vOst = V(); vLst = V(); vLse = V()
    vBa = V(2); vXr = V(4); vHw = V(); vHsw = V(); vOut = V(); vB2 = V(); vHf = V(2); vQs = V(3)
    raw = vRaw
    def prep_loads():
        vT = tT + 12
        A.c("prep: MLP coefficients")
        A(f"v_and_b32 {vr(vT+4)}, 31, v0")
        A("s_mul_i32 s33, s30, 896")
        A(f"v_lshlrev_b32 {vr(vT+5)}, 4, {vr(vT+4)}"); A(f"v_add_u32 {vr(vT+5)}, s33, {vr(vT+5)}")
        A(f"v_lshlrev_b32 {vr(vT+6)}, 3, {vr(vT+4)}"); A(f"v_add_u32 {vr(vT+6)}, s33, {vr(vT+6)}")
        A(f"v_lshlrev_b32 {vr(vT+7)}, 2, {vr(vT+4)}"); A(f"v_add_u32 {vr(vT+7)}, s33, {vr(vT+7)}")
        for k, sp in enumerate((16, 18, 20)):
            A(f"global_load_dwordx4 {vr(raw+8*k,4)}, {vr(vT+5)}, s[{sp}:{sp+1}] {spol}")
            A(f"global_load_dwordx2 {vr(raw+8*k+4,2)}, {vr(vT+6)}, s[{sp}:{sp+1}] offset:512 {spol}")
            A(f"global_load_dword {vr(raw+8*k+6)}, {vr(vT+7)}, s[{sp}:{sp+1}] offset:768 {spol}")
        A(f"v_min_u32 {vr(vT+4)}, 27, {vr(vT+4)}")
        A("s_mul_i32 s33, s31, 896"); A("s_mul_i32 s34, s30, 224"); A("s_add_u32 s33, s33, s34")
        A(f"v_lshlrev_b32 {vr(vT+5)}, 3, {vr(vT+4)}"); A(f"v_add_u32 {vr(vT+5)}, s33, {vr(vT+5)}")
        A(f"global_load_dwordx2 {vr(vXr+2,2)}, {vr(vT+5)}, s[4:5] {spol}")
        A(f"v_mov_b32 {vr(vT+6)}, 0")
        A(f"global_load_ushort {vr(vB2)}, {vr(vT+6)}, s[22:23] {spol}")
    if "T" in skip:
        A("s_waitcnt lgkmcnt(0)"); A("s_barrier"); A("s_barrier"); A("s_branch L_b3")
    A("s_cmp_eq_u32 s30, 0"); A("s_cbranch_scc1 L_T0")
    A("s_cmp_eq_u32 s30, 3"); A("s_cbranch_scc1 L_T3")
    if pref:
        A("s_cmp_eq_u32 s30, 2"); A("s_cbranch_scc0 L_prepw")
        A.c("T2: pull the code into this XCD's L2")
        A("s_getpc_b64 s[34:35]")
        A("L_pc:")
        A(f"s_sub_u32 s34, s34, L_pc-{NAME}"); A("s_subb_u32 s35, s35, 0")
        A("s_lshl_b32 s33, s32, 9")
        A(f"v_lshlrev_b32 {vr(tT)}, 3, v0"); A(f"v_add_u32 {vr(tT)}, s33, {vr(tT)}")
        A(f"global_load_dwordx2 {vr(tT+2,2)}, {vr(tT)}, s[34:35]")
    A("s_branch L_prepw")
    A("L_T3:")
    A.c("T3: leader clears")
    A("s_and_b32 s33, s32, 30"); A("s_cmp_eq_u32 s33, 28"); A("s_cbranch_scc0 L_prepw")
    for i in range(4): A(f"v_mov_b32 {vr(tT+4+i)}, -1")
    A("s_getreg_b32 s34, hwreg(HW_REG_XCC_ID, 0, 4)")
    A("s_or_b32 s34, s34, 0x100")
    A("s_cmp_eq_u32 s32, 28"); A("s_cbranch_scc0 L_leadB")
    A("s_lshl_b32 s33, s31, 14"); A("s_add_u32 s33, s33, 4096"); A(f"v_add_u32 {vr(tT)}, s33, v3")
    A(f"v_add_u32 {vr(tT+1)}, 4096, {vr(tT)}")
    A("s_waitcnt lgkmcnt(0)")
    for i in range(8): A(f"global_store_dwordx4 {vr(tT)}, {vr(tT+4,4)}, s[28:29] offset:{1024*i-4096} sc1")
    A("s_mov_b64 exec, 0xffff")
    A(f"global_store_dwordx4 {vr(tT+1)}, {vr(tT+4,4)}, s[28:29] sc1")
    A("s_mov_b64 exec, -1")
    A("s_waitcnt vmcnt(0)")
    A("s_atomic_add s34, s[26:27], s63")
    stamp(1)
    A("s_branch L_prepw")
    A("L_T0:")
    A.c("T0: q projection")
    A(f"v_and_b32 {vr(tT)}, 7, v1"); A(f"v_mul_u32_u24 {vr(tT)}, 896, {vr(tT)}"); A(f"v_lshl_add_u32 {vr(tT)}, v2, 4, {vr(tT)}")
    A(f"v_lshrrev_b32 {vr(tT+1)}, 1, v0"); A(f"v_lshlrev_b32 {vr(tT+1)}, 13, {vr(tT+1)}")
    A(f"v_and_or_b32 {vr(tT+1)}, v3, 16, {vr(tT+1)}")
    A("s_lshl_b32 s33, s31, 10"); A("s_lshl_b32 s34, s32, 5"); A("s_add_u32 s33, s33, s34")
    qstep = 0x40000
    if qpat == "contig":
        A(f"v_mov_b32 {vr(tT+1)}, v3"); A("s_mul_i32 s33, s2, 14336"); qstep = 1024
    if qpat == "rows":
        A(f"v_mov_b32 {vr(tT+1)}, v3"); A("s_mul_i32 s33, s32, 14*8192"); A("s_lshl_b32 s34, s31, 10"); A("s_add_u32 s33, s33, s34"); qstep = 8192
    if qpat == "r128":
        A(f"v_lshrrev_b32 {vr(tT+1)}, 3, v0"); A(f"v_lshlrev_b32 {vr(tT+1)}, 13, {vr(tT+1)}"); A(f"v_and_b32 {vr(tT+2)}, 7, v0"); A(f"v_lshl_add_u32 {vr(tT+1)}, {vr(tT+2)}, 4, {vr(tT+1)}")
        A("s_lshr_b32 s33, s32, 3"); A("s_mul_i32 s33, s33, 112*8192"); A("s_lshl_b32 s34, s31, 10"); A("s_add_u32 s33, s33, s34")
        A("s_and_b32 s34, s32, 7"); A("s_lshl_b32 s34, s34, 7"); A("s_add_u32 s33, s33, s34"); qstep = 8*8192
    A("s_mov_b32 s54, 0x380000"); A("s_mov_b32 s55, 0x20000")
    A("s_mov_b32 s36, 0x00ff00ff"); A("s_mov_b32 s37, s36")
    A(f"s_mov_b32 m0, {L_WQ}")
    A("s_waitcnt lgkmcnt(0)")
    A("s_mov_b32 s52, s10"); A("s_mov_b32 s53, s11")
    for t in range(14):
        if "q" not in skip: A(f"buffer_load_dwordx4 {vr(tT+1)}, s[52:55], s33 offen {qpol} lds")
        if t < 13: A("s_add_u32 m0, m0, 0x400"); A(f"s_add_u32 s33, s33, {qstep}")
    A("s_mov_b64 exec, s[36:37]")
    for t in range(14):
        A(f"global_load_dwordx4 {vr(vX+4*t,4)}, {vr(tT)}, s[4:5] offset:{64*t} {spol}")
    A("s_not_b64 exec, exec")
    A("s_mov_b32 s34, 0x3f803f80")
    for i in range(56): A(f"v_mov_b32 {vr(vX+i)}, s34")
    A("s_mov_b64 exec, -1")
    prep_loads()
    A(f"v_lshlrev_b32 {vr(tT+2)}, 3, v1"); A(f"v_lshl_add_u32 {vr(tT+2)}, v2, 8, {vr(tT+2)}"); A(f"v_add_u32 {vr(tT+2)}, {L_WQ}, {vr(tT+2)}")
    A(f"v_bfe_u32 {vr(tT+3)}, v1, 2, 1"); A(f"v_lshl_add_u32 {vr(tT+3)}, {vr(tT+3)}, 4, v1"); A(f"v_lshlrev_b32 {vr(tT+3)}, 2, {vr(tT+3)}")
    A(f"v_lshlrev_b32 {vr(tT+4)}, 2, v1"); A(f"v_add_u32 {vr(tT+4)}, 128, {vr(tT+4)}")
    A(f"v_and_b32 {vr(tT+5)}, 3, v1")
    for i in range(1, 4): A(f"v_cmp_eq_u32 s[{38+2*i}:{39+2*i}], {i}, {vr(tT+5)}")
    A("s_waitcnt vmcnt(11)")
    stamp(1)
    D1 = tT + 8; D2 = tT + 12
    wf = vC
    for t0 in (0, 7):
        for t in range(t0, t0 + 7):
            A(f"ds_read_b64_tr_b16 {vr(wf+4*t,2)}, {vr(tT+2)} offset:{1024*t}")
            A(f"ds_read_b64_tr_b16 {vr(wf+4*t+2,2)}, {vr(tT+2)} offset:{1024*t+128}")
        for t in range(t0, t0 + 7):
            c = "0" if t == 0 else vr(D2, 4)
            A(f"v_mfma_f32_16x16x32_bf16 {vr(D2,4)}, {vr(vX+4*t,4)}, {vr(vX+4*t,4)}, {c}")
        A("s_waitcnt lgkmcnt(0)")
        for t in range(t0, t0 + 7):
            c = "0" if t == 0 else vr(D1, 4)
            A(f"v_mfma_f32_16x16x32_bf16 {vr(D1,4)}, {vr(wf+4*t,4)}, {vr(vX+4*t,4)}, {c}")
    for i in range(1, 4): A(f"v_cndmask_b32 {vr(D2)}, {vr(D2)}, {vr(D2+i)}, s[{38+2*i}:{39+2*i}]")
    A(f"ds_bpermute_b32 {vr(tT+6)}, {vr(tT+3)}, {vr(D2)}")
    A(f"ds_bpermute_b32 {vr(tT+7)}, {vr(tT+4)}, {vr(D2)}")
    A(f"s_mov_b32 s33, {f32(1.0/448)}")
    A("s_waitcnt lgkmcnt(0)")
    A(f"v_mul_f32 {vr(tT+7)}, s33, {vr(tT+7)}")
    A(f"v_mul_f32 {vr(tT+6)}, s33, {vr(tT+6)}")
    A(f"v_fma_f32 {vr(tT+6)}, -{vr(tT+7)}, {vr(tT+7)}, {vr(tT+6)}")
    A(f"v_max_f32 {vr(tT+6)}, 0, {vr(tT+6)}")
    A(f"v_add_f32 {vr(tT+6)}, {f32(1e-5)}, {vr(tT+6)}")
    A(f"v_rsq_f32 {vr(tT+6)}, {vr(tT+6)}")
    for i in range(4):
        A(f"v_mul_f32_dpp {vr(D2+i)}, {vr(D1+i)}, {vr(tT+7)} row_newbcast:8 row_mask:0xf bank_mask:0xf")
    for i in range(4):
        A(f"v_sub_f32 {vr(D1+i)}, {vr(D1+i)}, {vr(D2+i)}")
        A(f"v_mul_f32 {vr(D1+i)}, {vr(D1+i)}, {vr(tT+6)}")
    A(f"v_cvt_pk_bf16_f32 {vr(D1)}, {vr(D1)}, {vr(D1+1)}")
    A(f"v_cvt_pk_bf16_f32 {vr(D1+1)}, {vr(D1+2)}, {vr(D1+3)}")
    A(f"v_min_u32 {vr(D1)}, -2, {vr(D1)}"); A(f"v_min_u32 {vr(D1+1)}, -2, {vr(D1+1)}")
    stamp(2)
    A(f"v_mov_b32 {vr(vQs)}, {vr(D1)}"); A(f"v_mov_b32 {vr(vQs+1)}, {vr(D1+1)}")
    A("s_branch L_prep2")
    def ool_leadB():
        A("L_leadB:")
        A("s_mul_i32 s33, s31, 14336"); A(f"s_add_u32 s33, s33, {W_B + 4096}"); A(f"v_add_u32 {vr(tT)}, s33, v3")
        A(f"v_add_u32 {vr(tT+1)}, 8192, {vr(tT)}")
        A("s_add_u32 s33, s63, 160")
        A("s_waitcnt lgkmcnt(0)")
        for i in range(8): A(f"global_store_dwordx4 {vr(tT)}, {vr(tT+4,4)}, s[28:29] offset:{1024*i-4096} sc1")
        for i in range(6): A(f"global_store_dwordx4 {vr(tT+1)}, {vr(tT+4,4)}, s[28:29] offset:{1024*i-4096} sc1")
        A("s_waitcnt vmcnt(0)")
        A("s_atomic_add s34, s[26:27], s33")
        stamp(1)
        A("s_branch L_prepw")
    OOL.append(ool_leadB)

    A("L_S2:")
    for tl in range(1, 4): A(f"s_xor_b32 s{40+tl}, s40, {tl << 15}")
    A("s_mov_b32 s56, s8"); A("s_mov_b32 s57, s9"); A("s_mov_b32 s58, 0x8000000"); A("s_mov_b32 s59, 0x20000")
    lin("s60", "v", 3)
    lin("s61", "d", 1)
    A(f"v_lshlrev_b32 {vr(vT)}, 4, v1"); A(f"v_lshl_add_u32 {vr(vT)}, v2, 9, {vr(vT)}")
    A("s_lshl_b32 s35, s60, 11"); A("s_lshl_b32 s61, s61, 8"); A("s_or_b32 s35, s35, s61")
    A(f"v_or_b32 {vr(vVo)}, s35, {vr(vT)}")
    for e in range(1, 8): A(f"v_xor_b32 {vr(vVo+e)}, {((e >> 1) << 11) | ((e & 1) << 8)}, {vr(vVo)}")
    A(f"v_xor_b32 {vr(vT+3)}, s60, v1")
    A(f"v_and_b32 {vr(vT)}, 3, {vr(vT+3)}"); A(f"v_lshrrev_b32 {vr(vT+1)}, 2, v1")
    A(f"v_lshl_add_u32 {vr(vT+2)}, {vr(vT)}, 2, {vr(vT+1)}")
    A(f"v_xor_b32 {vr(vT+3)}, {vr(vT+3)}, v2")
    A(f"v_lshlrev_b32 {vr(vT+2)}, 9, {vr(vT+2)}"); A(f"v_add_u32 {vr(vT+2)}, s37, {vr(vT+2)}")
    A(f"v_lshl_add_u32 {vr(vKA)}, {vr(vT+3)}, 4, {vr(vT+2)}")
    for t in range(1, 4): A(f"v_xor_b32 {vr(vKA+t)}, {64*t}, {vr(vKA)}")
    A("s_lshl_b32 s35, s31, 14"); A("s_lshr_b32 s36, s32, 2"); A("s_lshl_b32 s36, s36, 10"); A("s_add_u32 s35, s35, s36")
    A(f"v_add_u32 {vr(vQg)}, s35, v3")
    A("s_lshl_b32 s45, s33, 10"); A(f"s_add_u32 s45, s45, {L_Q}")
    A(f"v_lshrrev_b32 {vr(vT)}, 3, v1")
    A(f"v_lshlrev_b32 {vr(vQA)}, 9, {vr(vT)}"); A(f"v_lshl_add_u32 {vr(vQA)}, v2, 4, {vr(vQA)}")
    A(f"v_add_u32 {vr(vQA)}, s45, {vr(vQA)}")
    A(f"v_lshlrev_b32 {vr(vSTr)}, 5, {vr(vT)}"); A(f"v_add_u32 {vr(vSTr)}, {L_STAT}, {vr(vSTr)}")
    A("s_lshl_b32 s35, s33, 2"); A(f"v_add_u32 {vr(vSTw)}, s35, {vr(vSTr)}")
    A(f"v_and_b32 {vr(vT)}, 16, v3")
    A(f"v_mov_b32 {vr(vT+1)}, 0xffff"); A(f"v_lshlrev_b32 {vr(vT+1)}, {vr(vT)}, {vr(vT+1)}")
    A(f"v_bfe_u32 {vr(vT)}, v1, 1, 2")
    for i in range(4):
        A(f"v_cmp_eq_u32 vcc, {i}, {vr(vT)}")
        A(f"v_cndmask_b32 {vr(vM+i)}, 0, {vr(vT+1)}, vcc")
    A(f"v_and_b32 {vr(vT)}, 1, v2"); A(f"v_lshlrev_b32 {vr(vT)}, 10, {vr(vT)}")
    A(f"v_lshrrev_b32 {vr(vT+1)}, 1, v2"); A(f"v_lshl_add_u32 {vr(vT)}, {vr(vT+1)}, 9, {vr(vT)}")
    A(f"v_lshl_add_u32 {vr(vT)}, v1, 4, {vr(vT)}")
    A("s_lshl_b32 s35, s33, 11"); A(f"s_add_u32 s35, s35, {L_OP}")
    for dh in range(2):
        A(f"s_xor_b32 s38, s61, {dh << 8}"); A("s_add_u32 s38, s38, s35")
        A(f"v_add_u32 {vr(vOPa+dh)}, s38, {vr(vT)}")
    nv = [0]
    def more(k):
        for _ in range(k):
            if nv[0] < 32:
                idx = nv[0]; tl, e = idx >> 3, idx & 7
                throttle()
                A(f"buffer_load_dwordx4 {vr(vVv+4*idx,4)}, {vr(vVo+e)}, s[56:59], s{40+tl} offen {pol}")
                nv[0] += 1
    for tl in range(1, 4):
        for i in range(8):
            kload(tl, i)
    more(QPOS)
    stamp(6)
    A("s_barrier")
    stamp(7)
    throttle()
    A(f"global_load_dwordx4 {vr(vS,4)}, {vr(vQg)}, s[28:29] sc1")
    more(W - 1)
    A(f"s_waitcnt vmcnt({W-1})")
    stamp(1)
    A("s_mov_b32 s35, 0")
    A("L_qchk:")
    A(f"v_max3_u32 {vr(vT)}, {vr(vS)}, {vr(vS+1)}, {vr(vS+2)}"); A(f"v_max_u32 {vr(vT)}, {vr(vT)}, {vr(vS+3)}")
    A(f"v_cmp_eq_u32 vcc, -1, {vr(vT)}")
    A(f"v_add_u32 {vr(vT)}, s45, v3")
    if "T" not in skip: A("s_cbranch_vccnz L_qretry")
    A("L_qok:")
    def ool_q():
        A("L_qretry:")
        A("s_add_u32 s35, s35, 1")
        A(f"s_cmp_ge_u32 s35, {SPIN}")
        A("s_cbranch_scc1 L_qok")
        A(f"global_load_dwordx4 {vr(vS,4)}, {vr(vQg)}, s[28:29] sc1")
        A("s_waitcnt vmcnt(0)")
        A("s_branch L_qchk")
    OOL.append(ool_q)
    A(f"ds_write_b128 {vr(vT)}, {vr(vS,4)}")
    stamp(2)
    more(1)
    for t in range(8):
        A(f"ds_read_b128 {vr(vQ+4*t,4)}, {vr(vQA)} offset:{64*t}")
    for tl in range(4):
        for t in range(8):
            A(f"ds_read_b128 {vr(vKF+4*t,4)}, {vr(vKA+(t&3))} offset:{tl*8192 + (t>>2)*256}")
        for t in range(8):
            A(f"s_waitcnt lgkmcnt({7-t})")
            c = "0" if t == 0 else vr(vS+4*tl, 4)
            A(f"v_mfma_f32_16x16x32_bf16 {vr(vS+4*tl,4)}, {vr(vKF+4*t,4)}, {vr(vQ+4*t,4)}, {c}")
        more(1)
    SC = math.log2(math.e) / 16.0
    A(f"s_mov_b32 s35, {f32(SC)}")
    mx = vT; cp = vT + 1; ls = vT + 2
    A(f"v_max3_f32 {vr(mx)}, {vr(vS)}, {vr(vS+1)}, {vr(vS+2)}")
    for i in range(3, 15, 2):
        A(f"v_max3_f32 {vr(mx)}, {vr(mx)}, {vr(vS+i)}, {vr(vS+i+1)}")
    A(f"v_max_f32 {vr(mx)}, {vr(mx)}, {vr(vS+15)}")
    def xg(x, op):
        for sw in ("v_permlane32_swap_b32", "v_permlane16_swap_b32"):
            A(f"v_mov_b32 {vr(cp)}, {vr(x)}")
            A(f"{sw} {vr(x)}, {vr(cp)}")
            A(f"{op} {vr(x)}, {vr(x)}, {vr(cp)}")
    xg(mx, "v_max_f32")
    A(f"v_mul_f32 {vr(mx)}, s35, {vr(mx)}")
    for i in range(16):
        A(f"v_fma_f32 {vr(vS+i)}, {vr(vS+i)}, s35, -{vr(mx)}")
    for i in range(16):
        A(f"v_exp_f32 {vr(vS+i)}, {vr(vS+i)}")
    A(f"v_add_f32 {vr(ls)}, {vr(vS)}, {vr(vS+1)}")
    for i in range(2, 16):
        A(f"v_add_f32 {vr(ls)}, {vr(ls)}, {vr(vS+i)}")
    xg(ls, "v_add_f32")
    A(f"ds_write2_b32 {vr(vSTw)}, {vr(mx)}, {vr(ls)} offset0:0 offset1:4")
    more(1)
    A("s_waitcnt lgkmcnt(0)")
    A("s_barrier")
    stamp(3)
    def stats(m4, l4, M, Lr):
        A(f"v_max3_f32 {vr(M)}, {vr(m4)}, {vr(m4+1)}, {vr(m4+2)}"); A(f"v_max_f32 {vr(M)}, {vr(M)}, {vr(m4+3)}")
        for i in range(4): A(f"v_sub_f32 {vr(m4+i)}, {vr(m4+i)}, {vr(M)}")
        for i in range(4): A(f"v_exp_f32 {vr(m4+i)}, {vr(m4+i)}")
        A(f"v_mul_f32 {vr(Lr)}, {vr(m4)}, {vr(l4)}")
        for i in range(1, 4): A(f"v_fmac_f32 {vr(Lr)}, {vr(m4+i)}, {vr(l4+i)}")
    A(f"ds_read_b128 {vr(vAcc,4)}, {vr(vSTr)}")
    A(f"ds_read_b128 {vr(vAcc+4,4)}, {vr(vSTr)} offset:16")
    more(1)
    A("s_waitcnt lgkmcnt(0)")
    stats(vAcc, vAcc + 4, vT + 3, vT + 4)
    A(f"v_sub_f32 {vr(mx)}, {vr(mx)}, {vr(vT+3)}")
    A(f"v_exp_f32 {vr(mx)}, {vr(mx)}")
    A(f"v_rcp_f32 {vr(vT+4)}, {vr(vT+4)}")
    A(f"v_mul_f32 {vr(mx)}, {vr(mx)}, {vr(vT+4)}")
    for i in range(16):
        A(f"v_mul_f32 {vr(vS+i)}, {vr(vS+i)}, {vr(mx)}")
        A(f"v_cvt_pk_bf16_f32 {vr(vS+i)}, {vr(vS+i)}, {vr(vS+i)}")
        for k in range(4):
            A(f"v_and_b32 {vr(vA+4*i+k)}, {vr(vS+i)}, {vr(vM+k)}")
        if i % 8 == 7: more(1)
    stamp(4)
    done = 0
    def pv(idx):
        i, dh = idx >> 1, idx & 1
        c = "0" if i == 0 else vr(vAcc+4*dh, 4)
        A(f"v_mfma_f32_16x16x32_bf16 {vr(vAcc+4*dh,4)}, {vr(vA+4*i,4)}, {vr(vVv+4*idx,4)}, {c}")
    while nv[0] < 32:
        more(1)
        lim = min(nv[0] - W, done + 3)
        while done < lim: pv(done); done += 1
    while done < 32:
        if 31 - done < W: A(f"s_waitcnt vmcnt({31-done})")
        pv(done); done += 1
    for dh in range(2):
        A(f"ds_write_b128 {vr(vOPa+dh)}, {vr(vAcc+4*dh,4)}")
    stamp(5)
    A("s_waitcnt lgkmcnt(0)")
    A("s_barrier")
    dump_stamps(8)
    A("s_endpgm")

    vT = tT
    A("L_prepw:")
    A("s_waitcnt lgkmcnt(0)")
    A("L_prep:")
    prep_loads()
    A("L_prep2:")
    A(f"v_and_b32 {vr(vT+4)}, 31, v0"); A(f"v_min_u32 {vr(vT+4)}, 27, {vr(vT+4)}")
    def wo_loads():
        A("s_cmp_ge_u32 s32, 28" if "o" not in skip else "s_cmp_ge_u32 s32, 0"); A("s_cbranch_scc1 L_nowo")
        A("s_lshl_b32 s33, s31, 9"); A("s_lshl_b32 s34, s30, 7"); A("s_add_u32 s33, s33, s34"); A("s_add_u32 s33, s33, 4")
        A("s_mul_i32 s33, s33, 896"); A("s_lshr_b32 s34, s32, 1"); A("s_lshl_b32 s34, s34, 6"); A("s_add_u32 s33, s33, s34")
        A(f"v_mul_u32_u24 {vr(vT+23)}, {8*896}, v2"); A(f"v_lshl_add_u32 {vr(vT+23)}, v1, 2, {vr(vT+23)}"); A(f"v_add_u32 {vr(vT+23)}, s33, {vr(vT+23)}")
        if opat == "contig":
            A("s_mul_i32 s33, s31, 28"); A("s_add_u32 s33, s33, s32"); A("s_lshl_b32 s33, s33, 2"); A("s_add_u32 s33, s33, s30"); A("s_lshl_b32 s33, s33, 12")
            A(f"v_add_u32 {vr(vT+23)}, s33, v3")
            for tt in range(4): A(f"global_load_dwordx4 {vr(vRaw+4*tt,4)}, {vr(vT+23)}, s[12:13] offset:{tt*1024} {opol}")
        for tt in range(4 if opat == "cur" else 0):
            for jj in range(8):
                A(f"global_load_dword {vr(vRaw+8*tt+jj)}, {vr(vT+23)}, s[12:13] offset:{(jj-4)*896} {opol}")
            if tt < 3: A(f"v_add_u32 {vr(vT+23)}, {32*896}, {vr(vT+23)}")
        A("L_nowo:")
    A.c("tail constants")
    A("s_mul_i32 s33, s31, 14336"); A("s_mul_i32 s34, s30, 448"); A("s_add_u32 s33, s33, s34"); A(f"s_add_u32 s33, s33, {W_B}")
    A(f"v_lshrrev_b32 {vr(vT+6)}, 5, v0")
    A(f"v_mul_u32_u24 {vr(vBa)}, 1792, {vr(vT+6)}"); A(f"v_lshl_add_u32 {vr(vBa)}, {vr(vT+4)}, 4, {vr(vBa)}"); A(f"v_add_u32 {vr(vBa)}, s33, {vr(vBa)}")
    A(f"v_add_u32 {vr(vBa+1)}, {4*1792}, {vr(vBa)}")
    A(f"s_add_u32 s34, s34, {L_H}")
    A(f"v_lshlrev_b32 {vr(vHw)}, 4, {vr(vT+4)}"); A(f"v_lshl_add_u32 {vr(vHw)}, {vr(vT+6)}, 3, {vr(vHw)}"); A(f"v_add_u32 {vr(vHw)}, s34, {vr(vHw)}")
    A("s_lshl_b32 s34, s30, 2"); A(f"s_add_u32 s34, s34, {L_HS}")
    A(f"v_lshlrev_b32 {vr(vHsw)}, 4, {vr(vT+6)}"); A(f"v_add_u32 {vr(vHsw)}, s34, {vr(vHsw)}")
    A(f"v_and_b32 {vr(vT+7)}, 31, v0"); A(f"v_cmp_gt_u32 vcc, 28, {vr(vT+7)}"); A(f"v_cndmask_b32 {vr(vK1+5)}, 0, 1.0, vcc")
    A("s_mul_i32 s33, s32, 56"); A(f"s_add_u32 s33, s33, {L_H}")
    ii = vT + 8; hf = vT + 9; col = vT + 10
    A(f"v_bfe_u32 {vr(ii)}, v0, 3, 1"); A(f"v_and_b32 {vr(hf)}, 3, v0"); A(f"v_lshl_add_u32 {vr(ii)}, {vr(ii)}, 2, {vr(hf)}")
    A(f"v_bfe_u32 {vr(hf)}, v0, 2, 1")
    A(f"v_min_u32 {vr(col)}, 6, {vr(ii)}"); A(f"v_mad_u32_u24 {vr(col)}, {vr(hf)}, 7, {vr(col)}")
    A(f"v_lshlrev_b32 {vr(vHa)}, 2, {vr(col)}"); A(f"v_add_u32 {vr(vHa)}, s33, {vr(vHa)}")
    A(f"v_cmp_eq_u32 vcc, 7, {vr(ii)}"); A(f"v_cndmask_b32 {vr(vT+11)}, v2, 3, vcc")
    A(f"v_mov_b32 {vr(vT+12)}, 0x3f803f80")
    A(f"v_cmp_eq_u32 vcc, 2, {vr(vT+11)}"); A(f"v_cndmask_b32 {vr(vK1)}, 0, 1.0, vcc")
    A(f"v_cmp_eq_u32 vcc, 0, {vr(vT+11)}"); A(f"v_cndmask_b32 {vr(vK1+1)}, 0, 1.0, vcc")
    A(f"v_cndmask_b32 {vr(vK1+3)}, 0, {vr(vT+12)}, vcc")
    A(f"v_cmp_eq_u32 vcc, 1, {vr(vT+11)}"); A(f"v_cndmask_b32 {vr(vK1+2)}, 0, 1.0, vcc")
    A(f"v_cndmask_b32 {vr(vK1+4)}, 0, {vr(vT+12)}, vcc")
    A(f"v_min_u32 {vr(col)}, 6, v0"); A(f"v_lshlrev_b32 {vr(vHf)}, 3, {vr(col)}"); A(f"v_add_u32 {vr(vHf)}, s33, {vr(vHf)}")
    A("s_mul_i32 s33, s31, 896"); A("s_mul_i32 s34, s32, 28"); A("s_add_u32 s33, s33, s34")
    A(f"v_lshlrev_b32 {vr(vOut)}, 2, {vr(col)}"); A(f"v_add_u32 {vr(vOut)}, s33, {vr(vOut)}")
    A(f"v_bfe_u32 {vr(ii)}, v0, 2, 1"); A(f"v_bfe_u32 {vr(hf)}, v0, 3, 1"); A(f"v_lshl_add_u32 {vr(ii)}, {vr(ii)}, 1, {vr(hf)}")
    A(f"v_bfe_u32 {vr(hf)}, v0, 4, 1"); A(f"v_lshl_add_u32 {vr(ii)}, {vr(hf)}, 2, {vr(ii)}")
    A(f"v_mad_u32_u24 {vr(hf)}, {vr(vT+6)}, 7, {vr(ii)}")
    A(f"v_cmp_eq_u32 vcc, 7, {vr(ii)}"); A(f"v_cndmask_b32 {vr(hf)}, {vr(hf)}, 15, vcc")
    A("s_lshl_b32 s34, s30, 6"); A(f"s_add_u32 s34, s34, {L_Y}")
    A(f"v_lshlrev_b32 {vr(vYa)}, 2, {vr(hf)}"); A(f"v_add_u32 {vr(vYa)}, s34, {vr(vYa)}")
    A("s_lshl_b32 s33, s31, 14"); A("s_add_u32 s33, s33, 8192"); A("s_lshr_b32 s34, s30, 1"); A("s_lshl_b32 s34, s34, 7"); A("s_add_u32 s34, s34, s33")
    A("s_and_b32 s35, s32, 1"); A("s_lshl_b32 s36, s35, 6"); A("s_add_u32 s34, s34, s36")
    A(f"v_lshlrev_b32 {vr(vLa)}, 4, v2"); A(f"v_add_u32 {vr(vLa)}, s34, {vr(vLa)}")
    A("s_lshl_b32 s34, s32, 2"); A("s_add_u32 s34, s34, s33")
    A(f"v_lshlrev_b32 {vr(vLst)}, 7, v0"); A(f"v_add_u32 {vr(vLst)}, s34, {vr(vLst)}")
    A("s_lshl_b32 s33, s31, 15"); A(f"s_add_u32 s33, s33, {W_O}")
    A("s_lshl_b32 s34, s35, 14"); A("s_add_u32 s34, s34, s33"); A("s_lshl_b32 s36, s30, 12"); A("s_add_u32 s34, s34, s36")
    A(f"v_add_u32 {vr(vOa)}, s34, v3")
    A("s_lshr_b32 s34, s32, 4"); A("s_lshl_b32 s34, s34, 14"); A("s_add_u32 s34, s34, s33"); A("s_and_b32 s36, s32, 15"); A("s_lshl_b32 s36, s36, 4"); A("s_add_u32 s34, s34, s36")
    A(f"v_lshlrev_b32 {vr(vOst)}, 8, v0"); A(f"v_add_u32 {vr(vOst)}, s34, {vr(vOst)}")
    A(f"v_lshlrev_b32 {vr(vQs+2)}, 10, v1"); A(f"v_lshl_add_u32 {vr(vQs+2)}, v2, 3, {vr(vQs+2)}")
    A("s_lshl_b32 s33, s31, 14"); A("s_lshl_b32 s34, s32, 5"); A("s_add_u32 s33, s33, s34"); A(f"v_add_u32 {vr(vQs+2)}, s33, {vr(vQs+2)}")
    A("s_lshl_b32 s34, s30, 9"); A(f"s_add_u32 s34, s34, {L_PP}")
    A(f"v_lshlrev_b32 {vr(vPPa)}, 3, v0"); A(f"v_add_u32 {vr(vPPa)}, s34, {vr(vPPa)}")
    A("s_lshl_b32 s34, s35, 5"); A("s_add_u32 s34, s34, s31"); A("s_mul_i32 s34, s34, 1792"); A("s_lshr_b32 s36, s32, 1"); A("s_lshl_b32 s36, s36, 7")
    A("s_add_u32 s34, s34, s36"); A(f"s_add_u32 s34, s34, {W_B}")
    A(f"v_mul_u32_u24 {vr(vBst)}, {8*1792}, v2"); A(f"v_lshl_add_u32 {vr(vBst)}, v1, 3, {vr(vBst)}"); A(f"v_add_u32 {vr(vBst)}, s34, {vr(vBst)}")
    A(f"s_mov_b32 s33, {f32(BETA)}"); A(f"s_mov_b32 s34, {f32(3*BETA)}"); A("s_mov_b32 s38, 0xffff0000")
    A("v_cmp_lt_u32 vcc, 31, v0")
    A("s_waitcnt vmcnt(0)")
    A(f"v_mov_b32 {vr(vT)}, {f32(ALPHA)}")
    A(f"v_cndmask_b32 {vr(vXr+2)}, {vr(vXr+2)}, {vr(vXr+3)}, vcc")
    A(f"v_lshlrev_b32 {vr(vXr)}, 16, {vr(vXr+2)}"); A(f"v_and_b32 {vr(vXr+1)}, s38, {vr(vXr+2)}")
    A(f"v_lshlrev_b32 {vr(vB2)}, 16, {vr(vB2)}")
    w, b, u, bb, c0, c1, c2, c3, ca, cc, hi = (vT + 1 + i for i in range(11))
    def publish_q():
        A("s_cmp_eq_u32 s30, 0"); A("s_cbranch_scc0 L_nopub")
        A("s_getreg_b32 s47, hwreg(HW_REG_XCC_ID, 0, 4)")
        A("s_or_b32 s47, s47, 0x100")
        A("s_waitcnt lgkmcnt(0)")
        A("s_cmp_eq_u32 s46, s47")
        A("s_cbranch_scc0 L_f1slow")
        A("L_same:")
        A("s_mov_b32 exec_lo, 0x00ff00ff"); A("s_mov_b32 exec_hi, 0x00ff00ff")
        A(f"global_store_dwordx2 {vr(vQs+2)}, {vr(vQs,2)}, s[28:29] sc1")
        A("s_mov_b64 exec, -1")
        stamp(3)
        A("L_nopub:")
        def ool():
            A("L_f1slow:")
            A(f"v_mov_b32 {vr(vT+20)}, s63")
            A("s_mov_b32 s35, 0")
            A("L_f1l:")
            A("s_cmp_lg_u32 s46, 0")
            A("s_cbranch_scc1 L_f1d")
            A(f"global_load_dword {vr(vT+21)}, {vr(vT+20)}, s[26:27] sc1")
            A("s_add_u32 s35, s35, 1")
            A("s_waitcnt vmcnt(0)")
            A(f"v_readfirstlane_b32 s46, {vr(vT+21)}")
            A(f"s_cmp_lt_u32 s35, {SPIN}")
            A("s_cbranch_scc1 L_f1l")
            A("L_f1d:")
            A("s_cmp_eq_u32 s46, s47")
            A("s_cbranch_scc1 L_same")
            A("s_add_u32 s46, s63, 128"); A("s_mov_b32 s47, 1")
            A("s_atomic_add s47, s[26:27], s46 glc")
            A("s_waitcnt lgkmcnt(0)")
            A("s_branch L_same")
        OOL.append(ool)
    for tile in range(14):
        if tile == FT:
            A("s_cmp_eq_u32 s30, 0"); A("s_cbranch_scc0 L_nofl")
            A("s_load_dword s46, s[26:27], s63")
            A("L_nofl:")
        if tile == FT + 4: publish_q()
        for k, d in enumerate((w, b, u)):
            src = raw + 8*k + (tile >> 1)
            if tile & 1: A(f"v_and_b32 {vr(d)}, s38, {vr(src)}")
            else: A(f"v_lshlrev_b32 {vr(d)}, 16, {vr(src)}")
        A(f"v_mul_f32 {vr(bb)}, {vr(b)}, {vr(b)}")
        A(f"v_fma_f32 {vr(c0)}, {vr(bb)}, s33, {vr(vT)}"); A(f"v_mul_f32 {vr(c0)}, {vr(c0)}, {vr(b)}")
        A(f"v_fma_f32 {vr(c1)}, {vr(bb)}, s34, {vr(vT)}"); A(f"v_mul_f32 {vr(c1)}, {vr(c1)}, {vr(w)}")
        A(f"v_mul_f32 {vr(bb)}, {vr(w)}, {vr(w)}")
        A(f"v_mul_f32 {vr(c2)}, s34, {vr(bb)}"); A(f"v_mul_f32 {vr(c2)}, {vr(c2)}, {vr(b)}")
        A(f"v_mul_f32 {vr(c3)}, s33, {vr(bb)}"); A(f"v_mul_f32 {vr(c3)}, {vr(c3)}, {vr(w)}")
        A(f"v_mul_f32 {vr(ca)}, {vr(w)}, {vr(u)}"); A(f"v_mul_f32 {vr(cc)}, {vr(b)}, {vr(u)}")
        for k, (lo_, hi_) in enumerate(((c1, c2), (c0, c2), (ca, c3), (cc, c3))):
            A(f"v_cndmask_b32 {vr(lo_)}, {vr(lo_)}, {vr(hi_)}, vcc")
            A(f"v_cvt_pk_bf16_f32 {vr(hi)}, {vr(lo_)}, {vr(lo_)}")
            A(f"v_and_b32 {vr(hi)}, s38, {vr(hi)}")
            A(f"v_sub_f32 {vr(lo_)}, {vr(lo_)}, {vr(hi)}")
            A(f"v_cvt_pk_bf16_f32 {vr(vC+4*tile+k)}, {vr(hi)}, {vr(lo_)}")
    if FT + 4 >= 14: publish_q()
    stamp(4)
    if opos == "early": wo_loads()
    A("s_barrier")
    if opos == "mid": wo_loads()
    A(f"v_lshlrev_b32 {vr(vT+20)}, 2, v1")
    A("s_barrier")
    A("s_cmp_eq_u32 s30, 1"); A("s_cbranch_scc0 L_nof2")
    A(f"global_load_dword {vr(vT+21)}, {vr(vT+20)}, s[26:27] offset:128 sc1")
    A("L_nof2:")
    if opos == "late": wo_loads()
    A(f"v_and_b32 {vr(vT)}, 1, v0"); A(f"v_lshlrev_b32 {vr(vT)}, 5, {vr(vT)}"); A(f"v_add_u32 {vr(vT)}, {L_STAT}, {vr(vT)}")
    A(f"ds_read_b128 {vr(vT+4,4)}, {vr(vT)}")
    A(f"ds_read_b128 {vr(vT+8,4)}, {vr(vT)} offset:16")
    A("s_waitcnt lgkmcnt(0)")
    stats(vT + 4, vT + 8, vT + 1, vT + 2)
    A(f"v_log_f32 {vr(vT+2)}, {vr(vT+2)}")
    A(f"v_add_f32 {vr(vLse)}, {vr(vT+1)}, {vr(vT+2)}")
    A(f"v_min_u32 {vr(vLse)}, -2, {vr(vLse)}")
    A("s_mov_b32 s33, 0x05040100"); A("s_mov_b32 s34, 0x07060302")
    A("s_waitcnt vmcnt(0)")
    for tt in range(4):
        for i in range(4):
            lo_, hi_ = vRaw + 8*tt + 2*i, vRaw + 8*tt + 2*i + 1
            A(f"v_perm_b32 {vr(vWE+4*tt+i)}, {vr(hi_)}, {vr(lo_)}, s33")
            A(f"v_perm_b32 {vr(vWO+4*tt+i)}, {vr(hi_)}, {vr(lo_)}, s34")
    A(f"s_mov_b32 s36, {f32(1.0 + 1e-5)}"); A(f"s_mov_b32 s37, {f32(1.0/448)}"); A("s_mov_b32 s38, 0xffff0000")
    A("s_mov_b32 s40, 0x80000000"); A("s_mov_b32 s41, 0x80000000")
    A(f"v_add_u32 {vr(vT)}, {L_OP}, v3")
    A("s_cmp_eq_u32 s30, 1"); A("s_cbranch_scc0 L_b3")
    A("s_mov_b32 s35, 0")
    A("L_f2:")
    A(f"v_cmp_ne_u32 vcc, 0, {vr(vT+21)}")
    A("s_bfe_u32 s33, vcc_lo, 0x80008")
    A("s_cmp_eq_u32 s33, 0xff")
    A("s_cbranch_scc0 L_f2r")
    A("L_f2d:")
    def ool_f2():
        A("L_f2r:")
        A("s_add_u32 s35, s35, 1")
        A(f"s_cmp_ge_u32 s35, {SPIN}")
        A("s_cbranch_scc1 L_f2d")
        A(f"global_load_dword {vr(vT+21)}, {vr(vT+20)}, s[26:27] offset:128 sc1")
        A("s_waitcnt vmcnt(0)")
        A("s_branch L_f2")
    OOL.append(ool_f2)
    A("s_lshr_b32 s62, vcc_lo, s31"); A("s_and_b32 s62, s62, 1")
    if force_slow: A("s_mov_b32 s62, 1")
    A("s_cmp_eq_u32 s62, 0")
    stamp(3)
    A("s_barrier")
    stamp(5)
    if "E" in skip: A("s_branch L_fin")
    o = vX
    for w_ in range(4):
        for hh in range(2):
            A(f"ds_read_b128 {vr(o+8*w_+4*hh,4)}, {vr(vT)} offset:{2048*w_+1024*hh}")
    for w_ in range(1, 4):
        A(f"s_waitcnt lgkmcnt({6-2*w_})")
        for k in range(4):
            A(f"v_pk_add_f32 {vr(o+2*k,2)}, {vr(o+2*k,2)}, {vr(o+8*w_+2*k,2)}")
    for k in range(4):
        A(f"v_cvt_pk_bf16_f32 {vr(o+8+k)}, {vr(o+2*k)}, {vr(o+2*k+1)}")
    A("s_cbranch_scc0 L_slowpub")
    A(f"global_store_dwordx4 {vr(vOst)}, {vr(o+8,4)}, s[28:29]")
    A("s_mov_b64 exec, 3")
    A("s_waitcnt vmcnt(0)")
    A(f"global_store_dword {vr(vLst)}, {vr(vLse)}, s[28:29]")
    A("L_pubd:")
    A("s_mov_b64 exec, -1")
    stamp(6)
    A("L_op:")
    A.c("out projection")
    A("s_mov_b32 s35, 0")
    ls4 = vT + 4
    A("L_lpoll:")
    A(f"global_load_dwordx4 {vr(ls4,4)}, {vr(vLa)}, s[28:29] sc1")
    A("s_add_u32 s35, s35, 1")
    A(f"s_cmp_ge_u32 s35, {SPIN}")
    A("s_waitcnt vmcnt(0)")
    A(f"v_max3_u32 {vr(vT+2)}, {vr(ls4)}, {vr(ls4+1)}, {vr(ls4+2)}"); A(f"v_max_u32 {vr(vT+2)}, {vr(vT+2)}, {vr(ls4+3)}")
    A(f"v_cmp_eq_u32 vcc, -1, {vr(vT+2)}")
    A("s_cbranch_scc1 L_ldone")
    A("s_cbranch_vccnz L_lpoll")
    A("L_ldone:")
    oa = vRaw
    for tt in range(4):
        A(f"global_load_dwordx4 {vr(oa+4*tt,4)}, {vr(vOa)}, s[28:29] offset:{1024*tt} sc1")
    stamp(7)
    A(f"v_max3_f32 {vr(vT+2)}, {vr(ls4)}, {vr(ls4+1)}, {vr(ls4+2)}"); A(f"v_max_f32 {vr(vT+2)}, {vr(vT+2)}, {vr(ls4+3)}")
    for i in range(4): A(f"v_sub_f32 {vr(ls4+i)}, {vr(ls4+i)}, {vr(vT+2)}")
    for i in range(4): A(f"v_exp_f32 {vr(ls4+i)}, {vr(ls4+i)}")
    A(f"v_add_f32 {vr(vT+2)}, {vr(ls4)}, {vr(ls4+1)}"); A(f"v_add_f32 {vr(vT+3)}, {vr(ls4+2)}, {vr(ls4+3)}"); A(f"v_add_f32 {vr(vT+2)}, {vr(vT+2)}, {vr(vT+3)}")
    A(f"v_rcp_f32 {vr(vT+2)}, {vr(vT+2)}")
    A(f"v_subrev_u32 {vr(vT)}, 512, {vr(vPPa)}")
    for i in range(4): A(f"v_mul_f32 {vr(ls4+i)}, {vr(ls4+i)}, {vr(vT+2)}")
    A("s_cmp_eq_u32 s30, 1"); A("s_cselect_b32 s33, s32, 28"); A("s_cmp_lt_u32 s33, 28")
    DE = vT + 8; DO = vT + 12
    for tt in range(4):
        A(f"s_waitcnt vmcnt({3-tt})")
        for D, Wf in ((DE, vWE), (DO, vWO)):
            c = "0" if tt == 0 else vr(D, 4)
            A(f"v_mfma_f32_16x16x32_bf16 {vr(D,4)}, {vr(oa+4*tt,4)}, {vr(Wf+4*tt,4)}, {c}")
    for k, D in enumerate((DE, DO)):
        A(f"v_mul_f32 {vr(vT+16+k)}, {vr(D)}, {vr(ls4)}")
        for i in range(1, 4): A(f"v_fmac_f32 {vr(vT+16+k)}, {vr(D+i)}, {vr(ls4+i)}")
    A(f"ds_write_b64 {vr(vPPa)}, {vr(vT+16,2)}")
    A("s_waitcnt lgkmcnt(0)")
    stamp(8)
    A("s_barrier")
    A("s_cbranch_scc0 L_nobst")
    for k, w_ in enumerate((0, 2, 3)):
        A(f"ds_read_b64 {vr(vT+4+2*k,2)}, {vr(vT)} offset:{512*w_}")
    for k in range(3):
        A(f"s_waitcnt lgkmcnt({2-k})")
        A(f"v_pk_add_f32 {vr(vT+16,2)}, {vr(vT+16,2)}, {vr(vT+4+2*k,2)}")
    A(f"v_min_u32 {vr(vT+16)}, -2, {vr(vT+16)}"); A(f"v_min_u32 {vr(vT+17)}, -2, {vr(vT+17)}")
    A(f"global_store_dwordx2 {vr(vBst)}, {vr(vT+16,2)}, s[28:29] sc1")
    A("s_waitcnt vmcnt(0)")
    A("L_nobst:")
    A("s_mov_b32 s35, 0")
    A("s_barrier")
    stamp(9)
    bl = vRaw
    A("L_bpoll:")
    for i in range(4):
        A(f"global_load_dwordx4 {vr(bl+4*i,4)}, {vr(vBa+(i>>1))}, s[28:29] offset:{(i&1)*3584} sc1")
    A("s_add_u32 s35, s35, 1")
    A(f"s_cmp_ge_u32 s35, {SPIN}")
    A("s_waitcnt vmcnt(2)")
    A(f"v_max3_u32 {vr(vT+2)}, {vr(bl)}, {vr(bl+1)}, {vr(bl+2)}")
    A(f"v_max3_u32 {vr(vT+2)}, {vr(vT+2)}, {vr(bl+3)}, {vr(bl+4)}"); A(f"v_max3_u32 {vr(vT+2)}, {vr(vT+2)}, {vr(bl+5)}, {vr(bl+6)}")
    A(f"v_pk_add_f32 {vr(vT+4,2)}, {vr(bl,2)}, {vr(bl+4,2)}"); A(f"v_pk_add_f32 {vr(vT+6,2)}, {vr(bl+2,2)}, {vr(bl+6,2)}")
    A("s_waitcnt vmcnt(1)")
    A(f"v_max3_u32 {vr(vT+2)}, {vr(vT+2)}, {vr(bl+7)}, {vr(bl+8)}"); A(f"v_max3_u32 {vr(vT+2)}, {vr(vT+2)}, {vr(bl+9)}, {vr(bl+10)}")
    A(f"v_pk_add_f32 {vr(vT+4,2)}, {vr(vT+4,2)}, {vr(bl+8,2)}"); A(f"v_pk_add_f32 {vr(vT+6,2)}, {vr(vT+6,2)}, {vr(bl+10,2)}")
    A(f"v_max_u32 {vr(vT+2)}, {vr(vT+2)}, {vr(bl+11)}")
    A("s_waitcnt vmcnt(0)")
    A(f"v_max3_u32 {vr(vT+2)}, {vr(vT+2)}, {vr(bl+12)}, {vr(bl+13)}"); A(f"v_max3_u32 {vr(vT+2)}, {vr(vT+2)}, {vr(bl+14)}, {vr(bl+15)}")
    A(f"v_pk_add_f32 {vr(vT+4,2)}, {vr(vT+4,2)}, {vr(bl+12,2)}"); A(f"v_pk_add_f32 {vr(vT+6,2)}, {vr(vT+6,2)}, {vr(bl+14,2)}")
    A(f"v_cmp_eq_u32 vcc, -1, {vr(vT+2)}")
    A("s_cbranch_scc1 L_bdone")
    A("s_cbranch_vccnz L_bpoll")
    A("L_bdone:")
    stamp(10)
    A(f"v_permlane32_swap_b32 {vr(vT+4)}, {vr(vT+6)}")
    A(f"v_permlane32_swap_b32 {vr(vT+5)}, {vr(vT+7)}")
    A(f"v_pk_add_f32 {vr(vT+4,2)}, {vr(vT+4,2)}, {vr(vXr,2)}")
    A(f"v_pk_add_f32 {vr(vT+4,2)}, {vr(vT+4,2)}, {vr(vT+6,2)}")
    s1 = vT + 8; s2 = vT + 9
    A(f"v_add_f32 {vr(s1)}, {vr(vT+4)}, {vr(vT+5)}")
    A(f"v_mul_f32 {vr(s2)}, {vr(vT+4)}, {vr(vT+4)}"); A(f"v_fmac_f32 {vr(s2)}, {vr(vT+5)}, {vr(vT+5)}")
    A(f"ds_write_b64 {vr(vHw)}, {vr(vT+4,2)}")
    A(f"v_permlane32_swap_b32 {vr(s1)}, {vr(s2)}")
    A(f"v_add_f32 {vr(s1)}, {vr(s1)}, {vr(s2)}")
    A(f"v_mul_f32 {vr(s1)}, {vr(s1)}, {vr(vK1+5)}")
    for sh in (8, 4, 2, 1):
        A(f"v_add_f32_dpp {vr(s1)}, {vr(s1)}, {vr(s1)} row_ror:{sh} row_mask:0xf bank_mask:0xf")
    A(f"v_add_f32_dpp {vr(s1)}, {vr(s1)}, {vr(s1)} row_bcast:15 row_mask:0xa bank_mask:0xf")
    A(f"v_mov_b32 {vr(vT)}, {L_HS}")
    A("s_mov_b64 exec, s[40:41]")
    A(f"ds_write_b32 {vr(vHsw)}, {vr(s1)}")
    A("s_mov_b64 exec, -1")
    A("s_waitcnt lgkmcnt(0)")
    A("s_barrier")
    A.c("LayerNorm x2 + token MLP")
    h8 = vT + 4; hv = vT + 1
    A(f"ds_read_b128 {vr(h8,4)}, {vr(vT)}")
    A(f"ds_read_b128 {vr(h8+4,4)}, {vr(vT)} offset:16")
    A(f"ds_read_b32 {vr(hv)}, {vr(vHa)}")
    A(f"ds_read_b64 {vr(vHf,2)}, {vr(vHf)}")
    mu = vT + 2; rs = vT + 3
    A("s_waitcnt lgkmcnt(3)")
    A(f"v_pk_add_f32 {vr(h8,2)}, {vr(h8,2)}, {vr(h8+2,2)}")
    A(f"v_add_f32 {vr(mu)}, {vr(h8)}, {vr(h8+1)}")
    A("s_waitcnt lgkmcnt(2)")
    A(f"v_pk_add_f32 {vr(h8+4,2)}, {vr(h8+4,2)}, {vr(h8+6,2)}")
    A(f"v_mul_f32 {vr(mu)}, s37, {vr(mu)}")
    A(f"v_add_f32 {vr(rs)}, {vr(h8+4)}, {vr(h8+5)}")
    A(f"v_mul_f32 {vr(h8)}, {vr(mu)}, {vr(mu)}")
    A(f"v_fma_f32 {vr(rs)}, {vr(rs)}, s37, -{vr(h8)}")
    A(f"v_max_f32 {vr(rs)}, 0, {vr(rs)}")
    A(f"v_mov_b32 {vr(h8)}, {f32(1e-10)}")
    A(f"v_fmac_f32 {vr(h8)}, s36, {vr(rs)}")
    A(f"v_rsq_f32 {vr(rs)}, {vr(h8)}")
    A("s_waitcnt lgkmcnt(1)")
    A(f"v_sub_f32 {vr(hv)}, {vr(hv)}, {vr(mu)}")
    A(f"v_mul_f32 {vr(hv)}, {vr(hv)}, {vr(rs)}")
    A(f"v_cvt_pk_bf16_f32 {vr(hv)}, {vr(hv)}, {vr(hv)}")
    A(f"v_and_b32 {vr(hv)}, s38, {vr(hv)}")
    X = vT + 4; Y = vT + 5; t1 = vT + 6; t2 = vT + 7; Am = vT + 8
    A(f"v_fma_f32 {vr(X)}, {vr(hv)}, {vr(vK1)}, {vr(vK1+1)}"); A(f"v_mul_f32 {vr(X)}, {vr(X)}, {vr(hv)}")
    A(f"v_fma_f32 {vr(Y)}, {vr(X)}, {vr(vK1)}, {vr(vK1+2)}")
    A(f"v_cvt_pk_bf16_f32 {vr(Am)}, {vr(X)}, {vr(X)}")
    A(f"v_mul_f32 {vr(Y)}, {vr(Y)}, {vr(hv)}")
    A(f"v_and_b32 {vr(t1)}, s38, {vr(Am)}")
    A(f"v_cvt_pk_bf16_f32 {vr(Am+2)}, {vr(Y)}, {vr(Y)}")
    A(f"v_sub_f32 {vr(X)}, {vr(X)}, {vr(t1)}")
    A(f"v_and_b32 {vr(t2)}, s38, {vr(Am+2)}")
    A(f"v_cvt_pk_bf16_f32 {vr(Am+1)}, {vr(X)}, {vr(X)}")
    A(f"v_sub_f32 {vr(Y)}, {vr(Y)}, {vr(t2)}")
    A(f"v_or_b32 {vr(Am+1)}, {vr(Am+1)}, {vr(vK1+3)}")
    A(f"v_cvt_pk_bf16_f32 {vr(Am+3)}, {vr(Y)}, {vr(Y)}")
    A(f"v_or_b32 {vr(Am+3)}, {vr(Am+3)}, {vr(vK1+4)}")
    stamp(11)
    Db = [vX, vX + 16, vX + 32]; acc = vT + 12
    def mm(tile):
        A(f"v_mfma_f32_32x32x16_bf16 {vr(Db[tile%3],16)}, {vr(Am,4)}, {vr(vC+4*tile,4)}, 0")
    mm(0); mm(1)
    A("s_waitcnt lgkmcnt(0)")
    A(f"v_add_f32 {vr(vHf)}, {vr(vHf)}, {vr(vB2)}"); A(f"v_add_f32 {vr(vHf+1)}, {vr(vHf+1)}, {vr(vB2)}")
    A(f"v_lshlrev_b32 {vr(vT)}, 3, v1"); A(f"v_add_u32 {vr(vT)}, {L_Y}, {vr(vT)}")
    A("s_cmp_eq_u32 s30, 1")
    for tile in range(14):
        D = Db[tile % 3]
        for i in range(7): A(f"v_exp_f32 {vr(D+i)}, {vr(D+i)}")
        if tile + 2 < 14: mm(tile + 2)
        for i in range(0, 8, 2): A(f"v_pk_add_f32 {vr(D+i,2)}, {vr(D+i,2)}, 1.0 op_sel_hi:[1,0]")
        for i in range(7): A(f"v_rcp_f32 {vr(D+i)}, {vr(D+i)}")
        for i in range(0, 8, 2):
            if tile == 0: A(f"v_pk_mul_f32 {vr(acc+i,2)}, {vr(D+i,2)}, {vr(D+8+i,2)}")
            else: A(f"v_pk_fma_f32 {vr(acc+i,2)}, {vr(D+i,2)}, {vr(D+8+i,2)}, {vr(acc+i,2)}")
    stamp(12)
    for k in range(4): A(f"v_add_f32_dpp {vr(acc+2*k)}, {vr(acc+2*k)}, {vr(acc+2*k)} row_ror:8 row_mask:0xf bank_mask:0x3")
    for k in range(4): A(f"v_add_f32_dpp {vr(acc+2*k)}, {vr(acc+2*k+1)}, {vr(acc+2*k+1)} row_ror:8 row_mask:0xf bank_mask:0xc")
    for k in range(2): A(f"v_add_f32_dpp {vr(acc+4*k)}, {vr(acc+4*k)}, {vr(acc+4*k)} row_shl:4 row_mask:0xf bank_mask:0x5")
    for k in range(2): A(f"v_add_f32_dpp {vr(acc+4*k)}, {vr(acc+4*k+2)}, {vr(acc+4*k+2)} row_shr:4 row_mask:0xf bank_mask:0xa")
    A(f"v_permlane16_swap_b32 {vr(acc)}, {vr(acc+4)}")
    A(f"v_add_f32 {vr(acc)}, {vr(acc)}, {vr(acc+4)}")
    A(f"v_add_f32_dpp {vr(acc)}, {vr(acc)}, {vr(acc)} quad_perm:[1,0,3,2] row_mask:0xf bank_mask:0xf")
    A(f"v_add_f32_dpp {vr(acc)}, {vr(acc)}, {vr(acc)} quad_perm:[2,3,0,1] row_mask:0xf bank_mask:0xf")
    A(f"ds_write_b32 {vr(vYa)}, {vr(acc)}")
    A("s_waitcnt lgkmcnt(0)")
    A("s_barrier")
    A("s_cbranch_scc0 L_fin")
    if diag:
        A("L_dg1:")
        A("s_memrealtime s[66:67]"); A("s_waitcnt lgkmcnt(0)"); A("s_sub_u32 s66, s66, s64")
        A(f"s_cmp_lt_u32 s66, 6000"); A("s_cbranch_scc1 L_dg1")
    A("s_mov_b64 exec, 0x7f")
    A(f"ds_read2_b64 {vr(vT+4,4)}, {vr(vT)} offset0:0 offset1:8")
    A(f"ds_read2_b64 {vr(vT+8,4)}, {vr(vT)} offset0:16 offset1:24")
    A("s_waitcnt lgkmcnt(1)")
    A(f"v_pk_add_f32 {vr(vHf,2)}, {vr(vHf,2)}, {vr(vT+4,2)}"); A(f"v_pk_add_f32 {vr(vHf,2)}, {vr(vHf,2)}, {vr(vT+6,2)}")
    A("s_waitcnt lgkmcnt(0)")
    A(f"v_pk_add_f32 {vr(vHf,2)}, {vr(vHf,2)}, {vr(vT+8,2)}"); A(f"v_pk_add_f32 {vr(vHf,2)}, {vr(vHf,2)}, {vr(vT+10,2)}")
    A(f"v_cvt_pk_bf16_f32 {vr(vT+2)}, {vr(vHf)}, {vr(vHf+1)}")
    A(f"global_store_dword {vr(vOut)}, {vr(vT+2)}, s[24:25]")
    A("L_fin:")
    stamp(13)
    dump_stamps(14)
    A("L_end:")
    A("s_endpgm")
    A("L_b3:")
    A("s_barrier")
    A("s_branch L_op" if "E" not in skip else "s_branch L_fin")
    A("L_slowpub:")
    A(f"global_store_dwordx4 {vr(vOst)}, {vr(o+8,4)}, s[28:29] sc1")
    A("s_mov_b64 exec, 3")
    A("s_waitcnt vmcnt(0)")
    A(f"global_store_dword {vr(vLst)}, {vr(vLse)}, s[28:29] sc1")
    A("s_branch L_pubd")
    for f in OOL: f()
    A(f".fill (16384 - (. - {NAME})) / 4, 4, 0xbf810000")

    body, nn = fix_hazards(A.L)
    head = [l.rstrip("\n") for l in open("header.txt")]
    head.append(f"; @launch grid=(256,1,1) block=(512,1,1) lds={L_END}")
    head += ['.amdgcn_target "amdgcn-amd-amdhsa--gfx950"', ".text", f".globl {NAME}", ".p2align 8", f".type {NAME},@function"]
    tail = ['.section .rodata,"a"', ".p2align 6", f".amdhsa_kernel {NAME}",
            "  .amdhsa_next_free_vgpr 256", "  .amdhsa_next_free_sgpr 96", "  .amdhsa_accum_offset 256",
            "  .amdhsa_group_segment_fixed_size 0", "  .amdhsa_kernarg_size 104", "  .amdhsa_user_sgpr_count 2",
            "  .amdhsa_user_sgpr_kernarg_segment_ptr 1", "  .amdhsa_system_sgpr_workgroup_id_x 1",
            "  .amdhsa_float_denorm_mode_32 3", ".end_amdhsa_kernel"]
    return "\n".join(head + body + tail) + "\n"

if __name__ == "__main__":
    kw = eval("dict(" + (sys.argv[2] if len(sys.argv) > 2 else "") + ")")
    open(sys.argv[1], "w").write(gen(**kw))
```

```python
import sys, struct, math
from asmlib import *

NAME = "sequential_preLN__sliding_block_cached__mixer_token_mlp__decode_kernel"
def f32(x): return "0x%08x" % struct.unpack("<I", struct.pack("<f", x))[0]

L_K = 0; L_WQ = 131072; L_Q = 145408; L_STAT = 149504; L_OP = 149760; L_PP = 157952; L_H = 160000; L_HS = 161792; L_Y = 161856
L_END = 162112
W_Q = 0
W_O = 0x20000
W_B = 0x60000
W_STAMP = 0x100000
SPIN = 0x20000
STAMP_VIEW = [("S", slice(4, 8), [0, 6, 7, 1, 2, 3, 4, 5]), ("T0", 0, [0, 1, 2, 3, 4]), ("T3L", 3, [0, 1, 4], slice(224, 240)),
              ("T1", 1, [0, 4, 5, 6, 7, 8, 9, 10, 11, 12, 13])]
ALPHA = -2.0 * math.sqrt(2.0 / math.pi) * math.log2(math.e)
BETA = ALPHA * 0.044715

def gen(W=8, QPOS=6, FT=6, rot=None, stamps=False, force_slow=False, pol="nt", qpol="", opol="", spol="", skip="",
        pref=True, diag=None, opos="late", opace=0, qx=16, force_fb=False, touch=True):
    A = Asm()
    rt = dict(t=(1, 0, 0), k=(1, 2, 0), v=(1, 1, 0), d=(1, 0, 2))
    rt.update(rot or {})
    def stamp(i):
        if stamps: A(f"s_memrealtime s[{64+2*i}:{65+2*i}]")
    def dump_stamps(nst):
        if not stamps: return
        A("s_waitcnt lgkmcnt(0) vmcnt(0)")
        A("s_lshl_b32 s94, s2, 3"); A("s_add_u32 s94, s94, s30"); A("s_lshl_b32 s94, s94, 6"); A(f"s_add_u32 s94, s94, {W_STAMP}")
        A("s_mov_b64 exec, 1")
        A("v_mov_b32 v250, s94")
        for i in range(nst):
            A(f"v_mov_b32 v251, s{64+2*i}")
            A(f"global_store_dword v250, v251, s[28:29] offset:{4*i}")
        A("s_waitcnt vmcnt(0)")
    OOL = []

    A(f"{NAME}:")
    A("s_cmp_ge_u32 s2, 0x100")
    A("s_cbranch_scc1 L_end")
    stamp(0)
    if diag: A("s_memrealtime s[64:65]")
    A("s_load_dwordx16 s[4:19], s[0:1], 0")
    A("s_load_dwordx8 s[20:27], s[0:1], 64")
    A("s_load_dwordx2 s[28:29], s[0:1], 96")
    A("v_lshrrev_b32 v1, 6, v0")
    A("v_and_b32 v0, 63, v0")
    A("v_readfirstlane_b32 s30, v1")
    A("s_and_b32 s31, s2, 7")
    A("s_lshr_b32 s32, s2, 3")
    A("v_and_b32 v1, 15, v0")
    A("v_lshrrev_b32 v2, 4, v0")
    A("v_lshlrev_b32 v3, 4, v0")
    A("s_lshl_b32 s63, s31, 2")
    A("s_cmp_lt_u32 s30, 4")
    A("s_cbranch_scc1 L_T")

    A.c("================ stream waves")
    V = Alloc(4, 256)
    vK = V(8); vVo = V(8); vKA = V(4); vM = V(4); vT = V(8); vOPa = V(2); vQA = V(); vSTw = V(); vSTr = V(); vQg = V()
    vS = V(16); vAcc = vK; vQ = V(32); vKF = V(32); vVv = V(128)
    vA = vQ
    assert vKF == vQ + 32
    A("s_sub_u32 s33, s30, 4")
    def lin(dst, key, mask):
        a, b, sh = rt[key]
        A(f"s_mul_i32 {dst}, s32, {a}")
        if b: A(f"s_mul_i32 s35, s33, {b}"); A(f"s_add_u32 {dst}, {dst}, s35")
        A(f"s_bfe_u32 {dst}, {dst}, {hex((mask.bit_length() << 16) | sh)}")
    A("s_lshr_b32 s34, s2, 5"); A("s_lshl_b32 s34, s34, 3"); A("s_add_u32 s34, s34, s31"); A("s_lshl_b32 s34, s34, 4")
    A("s_and_b32 s35, s32, 3"); A("s_add_u32 s34, s34, s35"); A("s_add_u32 s34, s34, 12"); A("s_lshl_b32 s34, s34, 4")
    lin("s36", "t", 15)
    A("s_xor_b32 s36, s36, s33"); A("s_add_u32 s34, s34, s36"); A("s_lshl_b32 s40, s34, 13")
    lin("s36", "k", 7)
    def X(i): return ((8*(i & 1) + (i >> 1)) << 4) | (i << 10)
    A("s_and_b32 s38, s36, 1"); A("s_lshl_b32 s38, s38, 3"); A("s_lshr_b32 s39, s36, 1"); A("s_or_b32 s38, s38, s39")
    A("s_lshl_b32 s38, s38, 4"); A("s_lshl_b32 s36, s36, 10"); A("s_or_b32 s38, s38, s36")
    A("s_lshl_b32 s37, s33, 15"); A("s_or_b32 s44, s37, s36")
    A(f"v_lshrrev_b32 {vr(vT)}, 5, v0"); A(f"v_lshlrev_b32 {vr(vT)}, 6, {vr(vT)}")
    A(f"v_xor_b32 {vr(vT)}, {vr(vT)}, v3")
    A(f"v_xor_b32 {vr(vK)}, s38, {vr(vT)}")
    for i in range(1, 8): A(f"v_xor_b32 {vr(vK+i)}, {X(i)}, {vr(vK)}")
    A("s_mov_b32 s54, 0x8000000"); A("s_mov_b32 s55, 0x20000")
    A("s_mov_b32 m0, s44")
    A("s_waitcnt lgkmcnt(0)")
    A("s_mov_b32 s52, s6"); A("s_mov_b32 s53, s7")
    issued = [0]
    def throttle():
        if issued[0] >= W: A(f"s_waitcnt vmcnt({W-1})")
        issued[0] += 1
    def kload(tl, i):
        if tl or i: A(f"s_xor_b32 m0, s44, {(tl << 13) | (i << 10)}")
        throttle()
        A(f"buffer_load_dwordx4 {vr(vK+i)}, s[52:55], s{40+tl} offen {pol} lds")
    for i in range(8): kload(0, i)
    A("s_branch L_S2")

    A("L_T:")
    A.c("================ tail waves")
    V = Alloc(4, 250)
    vC = V(56); vWE = V(16); vWO = V(16); vRaw = V(32); vX = V(56); tT = V(24)
    vHa = V(); vYa = V(); vK1 = V(6); vLa = V(); vOa = V(); vPPa = V(); vBst = V(); vOst = V(); vLst = V(); vLse = V()
    vBa = V(2); vXr = V(4); vHw = V(); vHsw = V(); vOut = V(); vB2 = V(); vHf = V(2); vQs = V(3); vOPr = V(); vPPr = V(); vG = V(4)
    raw = vRaw
    def prep_loads():
        vT = tT + 12
        A.c("prep: MLP coefficients")
        A(f"v_and_b32 {vr(vT+4)}, 31, v0")
        A("s_mul_i32 s33, s30, 896")
        A(f"v_lshlrev_b32 {vr(vT+5)}, 4, {vr(vT+4)}"); A(f"v_add_u32 {vr(vT+5)}, s33, {vr(vT+5)}")
        A(f"v_lshlrev_b32 {vr(vT+6)}, 3, {vr(vT+4)}"); A(f"v_add_u32 {vr(vT+6)}, s33, {vr(vT+6)}")
        A(f"v_lshlrev_b32 {vr(vT+7)}, 2, {vr(vT+4)}"); A(f"v_add_u32 {vr(vT+7)}, s33, {vr(vT+7)}")
        for k, sp in enumerate((16, 18, 20)):
            A(f"global_load_dwordx4 {vr(raw+8*k,4)}, {vr(vT+5)}, s[{sp}:{sp+1}] {spol}")
            A(f"global_load_dwordx2 {vr(raw+8*k+4,2)}, {vr(vT+6)}, s[{sp}:{sp+1}] offset:512 {spol}")
            A(f"global_load_dword {vr(raw+8*k+6)}, {vr(vT+7)}, s[{sp}:{sp+1}] offset:768 {spol}")
        A(f"v_min_u32 {vr(vT+4)}, 27, {vr(vT+4)}")
        A("s_mul_i32 s33, s31, 896"); A("s_mul_i32 s34, s30, 224"); A("s_add_u32 s33, s33, s34")
        A(f"v_lshlrev_b32 {vr(vT+5)}, 3, {vr(vT+4)}"); A(f"v_add_u32 {vr(vT+5)}, s33, {vr(vT+5)}")
        A(f"global_load_dwordx2 {vr(vXr+2,2)}, {vr(vT+5)}, s[4:5] {spol}")
        A(f"v_mov_b32 {vr(vT+6)}, 0")
        A(f"global_load_ushort {vr(vB2)}, {vr(vT+6)}, s[22:23] {spol}")
    if "T" in skip:
        A("s_waitcnt lgkmcnt(0)"); A("s_barrier"); A("s_barrier"); A("s_branch L_b3")
    A("s_cmp_eq_u32 s30, 0"); A("s_cbranch_scc1 L_T0")
    A("s_cmp_eq_u32 s30, 3"); A("s_cbranch_scc1 L_T3")
    if pref:
        A("s_cmp_eq_u32 s30, 2"); A("s_cbranch_scc0 L_prepw")
        A.c("T2: pull the code into this XCD's L2")
        A("s_getpc_b64 s[34:35]")
        A("L_pc:")
        A(f"s_sub_u32 s34, s34, L_pc-{NAME}"); A("s_subb_u32 s35, s35, 0")
        A("s_lshl_b32 s33, s32, 9")
        A(f"v_lshlrev_b32 {vr(tT)}, 3, v0"); A(f"v_add_u32 {vr(tT)}, s33, {vr(tT)}")
        A(f"global_load_dwordx2 {vr(tT+2,2)}, {vr(tT)}, s[34:35]")
    A("s_branch L_prepw")
    A("L_T3:")
    A.c("T3: leader clears")
    A("s_and_b32 s33, s32, 30"); A("s_cmp_eq_u32 s33, 28"); A("s_cbranch_scc0 L_prepw")
    for i in range(4): A(f"v_mov_b32 {vr(tT+4+i)}, -1")
    A("s_getreg_b32 s34, hwreg(HW_REG_XCC_ID, 0, 4)")
    A("s_or_b32 s34, s34, 0x100")
    A("s_cmp_eq_u32 s32, 28"); A("s_cbranch_scc0 L_leadB")
    A("s_lshl_b32 s33, s31, 14"); A("s_add_u32 s33, s33, 4096"); A(f"v_add_u32 {vr(tT)}, s33, v3")
    A(f"v_add_u32 {vr(tT+1)}, 4096, {vr(tT)}")
    A("s_waitcnt lgkmcnt(0)")
    for i in range(8): A(f"global_store_dwordx4 {vr(tT)}, {vr(tT+4,4)}, s[28:29] offset:{1024*i-4096} sc1")
    A("s_mov_b64 exec, 0xffff")
    A(f"global_store_dwordx4 {vr(tT+1)}, {vr(tT+4,4)}, s[28:29] sc1")
    A("s_mov_b64 exec, -1")
    A("s_waitcnt vmcnt(0)")
    A("s_atomic_add s34, s[26:27], s63")
    stamp(1)
    A("s_branch L_prepw")
    A("L_T0:")
    A.c("T0: q projection")
    A(f"v_and_b32 {vr(tT)}, 7, v1"); A(f"v_mul_u32_u24 {vr(tT)}, 896, {vr(tT)}"); A(f"v_lshl_add_u32 {vr(tT)}, v2, 4, {vr(tT)}")
    A(f"v_lshrrev_b32 {vr(tT+1)}, 1, v0"); A(f"v_lshlrev_b32 {vr(tT+1)}, 13, {vr(tT+1)}")
    A(f"v_and_or_b32 {vr(tT+1)}, v3, 16, {vr(tT+1)}")
    A("s_lshl_b32 s33, s31, 10"); A(f"s_xor_b32 s34, s32, {qx}"); A("s_lshl_b32 s34, s34, 5"); A("s_add_u32 s33, s33, s34")
    A("s_mov_b32 s54, 0x380000"); A("s_mov_b32 s55, 0x20000")
    A("s_mov_b32 s36, 0x00ff00ff"); A("s_mov_b32 s37, s36")
    A(f"s_mov_b32 m0, {L_WQ}")
    A("s_waitcnt lgkmcnt(0)")
    A("s_mov_b32 s52, s10"); A("s_mov_b32 s53, s11")
    for t in range(14):
        if "q" not in skip: A(f"buffer_load_dwordx4 {vr(tT+1)}, s[52:55], s33 offen {qpol} lds")
        if t < 13: A("s_add_u32 m0, m0, 0x400"); A("s_add_u32 s33, s33, 0x40000")
    A("s_mov_b64 exec, s[36:37]")
    for t in range(14):
        A(f"global_load_dwordx4 {vr(vX+4*t,4)}, {vr(tT)}, s[4:5] offset:{64*t} {spol}")
    A("s_not_b64 exec, exec")
    A("s_mov_b32 s34, 0x3f803f80")
    for i in range(56): A(f"v_mov_b32 {vr(vX+i)}, s34")
    A("s_mov_b64 exec, -1")
    prep_loads()
    A.c("clear this workgroup's 1 KB share of the o hand-off buffer (acknowledged before q is published)")
    A("s_lshl_b32 s33, s31, 15"); A("s_lshl_b32 s34, s32, 10"); A("s_add_u32 s33, s33, s34"); A(f"s_add_u32 s33, s33, {W_O}")
    A(f"v_add_u32 {vr(tT+2)}, s33, v3")
    for i in range(4): A(f"v_mov_b32 {vr(vWE+i)}, -1")
    A(f"global_store_dwordx4 {vr(tT+2)}, {vr(vWE,4)}, s[28:29] sc1")
    A(f"v_lshlrev_b32 {vr(tT+2)}, 3, v1"); A(f"v_lshl_add_u32 {vr(tT+2)}, v2, 8, {vr(tT+2)}"); A(f"v_add_u32 {vr(tT+2)}, {L_WQ}, {vr(tT+2)}")
    A(f"v_bfe_u32 {vr(tT+3)}, v1, 2, 1"); A(f"v_lshl_add_u32 {vr(tT+3)}, {vr(tT+3)}, 4, v1"); A(f"v_lshlrev_b32 {vr(tT+3)}, 2, {vr(tT+3)}")
    A(f"v_lshlrev_b32 {vr(tT+4)}, 2, v1"); A(f"v_add_u32 {vr(tT+4)}, 128, {vr(tT+4)}")
    A(f"v_and_b32 {vr(tT+5)}, 3, v1")
    for i in range(1, 4): A(f"v_cmp_eq_u32 s[{38+2*i}:{39+2*i}], {i}, {vr(tT+5)}")
    A("s_waitcnt vmcnt(12)")
    stamp(1)
    D1 = tT + 8; D2 = tT + 12
    wf = vC
    for t0 in (0, 7):
        for t in range(t0, t0 + 7):
            A(f"ds_read_b64_tr_b16 {vr(wf+4*t,2)}, {vr(tT+2)} offset:{1024*t}")
            A(f"ds_read_b64_tr_b16 {vr(wf+4*t+2,2)}, {vr(tT+2)} offset:{1024*t+128}")
        for t in range(t0, t0 + 7):
            c = "0" if t == 0 else vr(D2, 4)
            A(f"v_mfma_f32_16x16x32_bf16 {vr(D2,4)}, {vr(vX+4*t,4)}, {vr(vX+4*t,4)}, {c}")
        A("s_waitcnt lgkmcnt(0)")
        for t in range(t0, t0 + 7):
            c = "0" if t == 0 else vr(D1, 4)
            A(f"v_mfma_f32_16x16x32_bf16 {vr(D1,4)}, {vr(wf+4*t,4)}, {vr(vX+4*t,4)}, {c}")
    for i in range(1, 4): A(f"v_cndmask_b32 {vr(D2)}, {vr(D2)}, {vr(D2+i)}, s[{38+2*i}:{39+2*i}]")
    A(f"ds_bpermute_b32 {vr(tT+6)}, {vr(tT+3)}, {vr(D2)}")
    A(f"ds_bpermute_b32 {vr(tT+7)}, {vr(tT+4)}, {vr(D2)}")
    A(f"s_mov_b32 s33, {f32(1.0/448)}")
    A("s_waitcnt lgkmcnt(0)")
    A(f"v_mul_f32 {vr(tT+7)}, s33, {vr(tT+7)}")
    A(f"v_mul_f32 {vr(tT+6)}, s33, {vr(tT+6)}")
    A(f"v_fma_f32 {vr(tT+6)}, -{vr(tT+7)}, {vr(tT+7)}, {vr(tT+6)}")
    A(f"v_max_f32 {vr(tT+6)}, 0, {vr(tT+6)}")
    A(f"v_add_f32 {vr(tT+6)}, {f32(1e-5)}, {vr(tT+6)}")
    A(f"v_rsq_f32 {vr(tT+6)}, {vr(tT+6)}")
    for i in range(4):
        A(f"v_mul_f32_dpp {vr(D2+i)}, {vr(D1+i)}, {vr(tT+7)} row_newbcast:8 row_mask:0xf bank_mask:0xf")
    for i in range(4):
        A(f"v_sub_f32 {vr(D1+i)}, {vr(D1+i)}, {vr(D2+i)}")
        A(f"v_mul_f32 {vr(D1+i)}, {vr(D1+i)}, {vr(tT+6)}")
    A(f"v_cvt_pk_bf16_f32 {vr(D1)}, {vr(D1)}, {vr(D1+1)}")
    A(f"v_cvt_pk_bf16_f32 {vr(D1+1)}, {vr(D1+2)}, {vr(D1+3)}")
    A(f"v_min_u32 {vr(D1)}, -2, {vr(D1)}"); A(f"v_min_u32 {vr(D1+1)}, -2, {vr(D1+1)}")
    stamp(2)
    A(f"v_mov_b32 {vr(vQs)}, {vr(D1)}"); A(f"v_mov_b32 {vr(vQs+1)}, {vr(D1+1)}")
    A("s_branch L_prep2")
    def ool_leadB():
        A("L_leadB:")
        A("s_mul_i32 s33, s31, 14336"); A(f"s_add_u32 s33, s33, {W_B + 4096}"); A(f"v_add_u32 {vr(tT)}, s33, v3")
        A(f"v_add_u32 {vr(tT+1)}, 8192, {vr(tT)}")
        A("s_add_u32 s33, s63, 160")
        A("s_waitcnt lgkmcnt(0)")
        for i in range(8): A(f"global_store_dwordx4 {vr(tT)}, {vr(tT+4,4)}, s[28:29] offset:{1024*i-4096} sc1")
        for i in range(6): A(f"global_store_dwordx4 {vr(tT+1)}, {vr(tT+4,4)}, s[28:29] offset:{1024*i-4096} sc1")
        A("s_waitcnt vmcnt(0)")
        A("s_atomic_add s34, s[26:27], s33")
        stamp(1)
        A("s_branch L_prepw")
    OOL.append(ool_leadB)

    A("L_S2:")
    for tl in range(1, 4): A(f"s_xor_b32 s{40+tl}, s40, {tl << 15}")
    A("s_mov_b32 s56, s8"); A("s_mov_b32 s57, s9"); A("s_mov_b32 s58, 0x8000000"); A("s_mov_b32 s59, 0x20000")
    lin("s60", "v", 3)
    lin("s61", "d", 1)
    A(f"v_lshlrev_b32 {vr(vT)}, 4, v1"); A(f"v_lshl_add_u32 {vr(vT)}, v2, 9, {vr(vT)}")
    A("s_lshl_b32 s35, s60, 11"); A("s_lshl_b32 s61, s61, 8"); A("s_or_b32 s35, s35, s61")
    A(f"v_or_b32 {vr(vVo)}, s35, {vr(vT)}")
    for e in range(1, 8): A(f"v_xor_b32 {vr(vVo+e)}, {((e >> 1) << 11) | ((e & 1) << 8)}, {vr(vVo)}")
    A(f"v_xor_b32 {vr(vT+3)}, s60, v1")
    A(f"v_and_b32 {vr(vT)}, 3, {vr(vT+3)}"); A(f"v_lshrrev_b32 {vr(vT+1)}, 2, v1")
    A(f"v_lshl_add_u32 {vr(vT+2)}, {vr(vT)}, 2, {vr(vT+1)}")
    A(f"v_xor_b32 {vr(vT+3)}, {vr(vT+3)}, v2")
    A(f"v_lshlrev_b32 {vr(vT+2)}, 9, {vr(vT+2)}"); A(f"v_add_u32 {vr(vT+2)}, s37, {vr(vT+2)}")
    A(f"v_lshl_add_u32 {vr(vKA)}, {vr(vT+3)}, 4, {vr(vT+2)}")
    for t in range(1, 4): A(f"v_xor_b32 {vr(vKA+t)}, {64*t}, {vr(vKA)}")
    A("s_lshl_b32 s35, s31, 14"); A("s_lshr_b32 s36, s32, 2"); A("s_lshl_b32 s36, s36, 10"); A("s_add_u32 s35, s35, s36")
    A(f"v_add_u32 {vr(vQg)}, s35, v3")
    A("s_lshl_b32 s45, s33, 10"); A(f"s_add_u32 s45, s45, {L_Q}")
    A(f"v_lshrrev_b32 {vr(vT)}, 3, v1")
    A(f"v_lshlrev_b32 {vr(vQA)}, 9, {vr(vT)}"); A(f"v_lshl_add_u32 {vr(vQA)}, v2, 4, {vr(vQA)}")
    A(f"v_add_u32 {vr(vQA)}, s45, {vr(vQA)}")
    A(f"v_lshlrev_b32 {vr(vSTr)}, 5, {vr(vT)}"); A(f"v_add_u32 {vr(vSTr)}, {L_STAT}, {vr(vSTr)}")
    A("s_lshl_b32 s35, s33, 2"); A(f"v_add_u32 {vr(vSTw)}, s35, {vr(vSTr)}")
    A(f"v_and_b32 {vr(vT)}, 16, v3")
    A(f"v_mov_b32 {vr(vT+1)}, 0xffff"); A(f"v_lshlrev_b32 {vr(vT+1)}, {vr(vT)}, {vr(vT+1)}")
    A(f"v_bfe_u32 {vr(vT)}, v1, 1, 2")
    for i in range(4):
        A(f"v_cmp_eq_u32 vcc, {i}, {vr(vT)}")
        A(f"v_cndmask_b32 {vr(vM+i)}, 0, {vr(vT+1)}, vcc")
    A(f"v_and_b32 {vr(vT)}, 1, v2"); A(f"v_lshlrev_b32 {vr(vT)}, 10, {vr(vT)}")
    A(f"v_lshrrev_b32 {vr(vT+1)}, 1, v2"); A(f"v_lshl_add_u32 {vr(vT)}, {vr(vT+1)}, 9, {vr(vT)}")
    A(f"v_lshl_add_u32 {vr(vT)}, v1, 4, {vr(vT)}")
    A("s_lshl_b32 s35, s33, 11"); A(f"s_add_u32 s35, s35, {L_OP}")
    for dh in range(2):
        A(f"s_xor_b32 s38, s61, {dh << 8}"); A("s_add_u32 s38, s38, s35")
        A(f"v_add_u32 {vr(vOPa+dh)}, s38, {vr(vT)}")
    nv = [0]
    def more(k):
        for _ in range(k):
            if nv[0] < 32:
                idx = nv[0]; tl, e = idx >> 3, idx & 7
                throttle()
                A(f"buffer_load_dwordx4 {vr(vVv+4*idx,4)}, {vr(vVo+e)}, s[56:59], s{40+tl} offen {pol}")
                nv[0] += 1
    for tl in range(1, 4):
        for i in range(8):
            kload(tl, i)
    more(QPOS)
    stamp(6)
    A("s_barrier")
    stamp(7)
    throttle()
    A(f"global_load_dwordx4 {vr(vS,4)}, {vr(vQg)}, s[28:29] sc1")
    more(W - 1)
    A(f"s_waitcnt vmcnt({W-1})")
    stamp(1)
    A("s_mov_b32 s35, 0")
    A("L_qchk:")
    A(f"v_max3_u32 {vr(vT)}, {vr(vS)}, {vr(vS+1)}, {vr(vS+2)}"); A(f"v_max_u32 {vr(vT)}, {vr(vT)}, {vr(vS+3)}")
    A(f"v_cmp_eq_u32 vcc, -1, {vr(vT)}")
    A(f"v_add_u32 {vr(vT)}, s45, v3")
    if "T" not in skip: A("s_cbranch_vccnz L_qretry")
    A("L_qok:")
    def ool_q():
        A("L_qretry:")
        A("s_add_u32 s35, s35, 1")
        A(f"s_cmp_ge_u32 s35, {SPIN}")
        A("s_cbranch_scc1 L_qok")
        A(f"global_load_dwordx4 {vr(vS,4)}, {vr(vQg)}, s[28:29] sc1")
        A("s_waitcnt vmcnt(0)")
        A("s_branch L_qchk")
    OOL.append(ool_q)
    A(f"ds_write_b128 {vr(vT)}, {vr(vS,4)}")
    stamp(2)
    more(1)
    for t in range(8):
        A(f"ds_read_b128 {vr(vQ+4*t,4)}, {vr(vQA)} offset:{64*t}")
    for tl in range(4):
        for t in range(8):
            A(f"ds_read_b128 {vr(vKF+4*t,4)}, {vr(vKA+(t&3))} offset:{tl*8192 + (t>>2)*256}")
        for t in range(8):
            A(f"s_waitcnt lgkmcnt({7-t})")
            c = "0" if t == 0 else vr(vS+4*tl, 4)
            A(f"v_mfma_f32_16x16x32_bf16 {vr(vS+4*tl,4)}, {vr(vKF+4*t,4)}, {vr(vQ+4*t,4)}, {c}")
        more(1)
    SC = math.log2(math.e) / 16.0
    A(f"s_mov_b32 s35, {f32(SC)}")
    mx = vT; cp = vT + 1; ls = vT + 2
    A(f"v_max3_f32 {vr(mx)}, {vr(vS)}, {vr(vS+1)}, {vr(vS+2)}")
    for i in range(3, 15, 2):
        A(f"v_max3_f32 {vr(mx)}, {vr(mx)}, {vr(vS+i)}, {vr(vS+i+1)}")
    A(f"v_max_f32 {vr(mx)}, {vr(mx)}, {vr(vS+15)}")
    def xg(x, op):
        for sw in ("v_permlane32_swap_b32", "v_permlane16_swap_b32"):
            A(f"v_mov_b32 {vr(cp)}, {vr(x)}")
            A(f"{sw} {vr(x)}, {vr(cp)}")
            A(f"{op} {vr(x)}, {vr(x)}, {vr(cp)}")
    xg(mx, "v_max_f32")
    A(f"v_mul_f32 {vr(mx)}, s35, {vr(mx)}")
    for i in range(16):
        A(f"v_fma_f32 {vr(vS+i)}, {vr(vS+i)}, s35, -{vr(mx)}")
    for i in range(16):
        A(f"v_exp_f32 {vr(vS+i)}, {vr(vS+i)}")
    A(f"v_add_f32 {vr(ls)}, {vr(vS)}, {vr(vS+1)}")
    for i in range(2, 16):
        A(f"v_add_f32 {vr(ls)}, {vr(ls)}, {vr(vS+i)}")
    xg(ls, "v_add_f32")
    A(f"ds_write2_b32 {vr(vSTw)}, {vr(mx)}, {vr(ls)} offset0:0 offset1:4")
    more(1)
    A("s_waitcnt lgkmcnt(0)")
    A("s_barrier")
    stamp(3)
    def stats(m4, l4, M, Lr):
        A(f"v_max3_f32 {vr(M)}, {vr(m4)}, {vr(m4+1)}, {vr(m4+2)}"); A(f"v_max_f32 {vr(M)}, {vr(M)}, {vr(m4+3)}")
        for i in range(4): A(f"v_sub_f32 {vr(m4+i)}, {vr(m4+i)}, {vr(M)}")
        for i in range(4): A(f"v_exp_f32 {vr(m4+i)}, {vr(m4+i)}")
        A(f"v_mul_f32 {vr(Lr)}, {vr(m4)}, {vr(l4)}")
        for i in range(1, 4): A(f"v_fmac_f32 {vr(Lr)}, {vr(m4+i)}, {vr(l4+i)}")
    A(f"ds_read_b128 {vr(vAcc,4)}, {vr(vSTr)}")
    A(f"ds_read_b128 {vr(vAcc+4,4)}, {vr(vSTr)} offset:16")
    more(1)
    A("s_waitcnt lgkmcnt(0)")
    stats(vAcc, vAcc + 4, vT + 3, vT + 4)
    A(f"v_sub_f32 {vr(mx)}, {vr(mx)}, {vr(vT+3)}")
    A(f"v_exp_f32 {vr(mx)}, {vr(mx)}")
    A(f"v_rcp_f32 {vr(vT+4)}, {vr(vT+4)}")
    A(f"v_mul_f32 {vr(mx)}, {vr(mx)}, {vr(vT+4)}")
    for i in range(16):
        A(f"v_mul_f32 {vr(vS+i)}, {vr(vS+i)}, {vr(mx)}")
        A(f"v_cvt_pk_bf16_f32 {vr(vS+i)}, {vr(vS+i)}, {vr(vS+i)}")
        for k in range(4):
            A(f"v_and_b32 {vr(vA+4*i+k)}, {vr(vS+i)}, {vr(vM+k)}")
        if i % 8 == 7: more(1)
    stamp(4)
    done = 0
    def pv(idx):
        i, dh = idx >> 1, idx & 1
        c = "0" if i == 0 else vr(vAcc+4*dh, 4)
        A(f"v_mfma_f32_16x16x32_bf16 {vr(vAcc+4*dh,4)}, {vr(vA+4*i,4)}, {vr(vVv+4*idx,4)}, {c}")
    while nv[0] < 32:
        more(1)
        lim = min(nv[0] - W, done + 3)
        while done < lim: pv(done); done += 1
    while done < 32:
        if 31 - done < W: A(f"s_waitcnt vmcnt({31-done})")
        pv(done); done += 1
    for dh in range(2):
        A(f"ds_write_b128 {vr(vOPa+dh)}, {vr(vAcc+4*dh,4)}")
    stamp(5)
    A("s_waitcnt lgkmcnt(0)")
    A("s_barrier")
    dump_stamps(8)
    A("s_endpgm")

    vT = tT
    A("L_prepw:")
    A("s_waitcnt lgkmcnt(0)")
    A("L_prep:")
    prep_loads()
    A("L_prep2:")
    A(f"v_and_b32 {vr(vT+4)}, 31, v0"); A(f"v_min_u32 {vr(vT+4)}, 27, {vr(vT+4)}")
    def wo_loads():
        A("s_cmp_ge_u32 s32, 28" if "o" not in skip else "s_cmp_ge_u32 s32, 0"); A("s_cbranch_scc1 L_nowo")
        A("s_lshl_b32 s33, s31, 9"); A("s_lshl_b32 s34, s30, 7"); A("s_add_u32 s33, s33, s34"); A("s_add_u32 s33, s33, 4")
        A("s_mul_i32 s33, s33, 896"); A("s_lshr_b32 s34, s32, 1"); A("s_lshl_b32 s34, s34, 6"); A("s_add_u32 s33, s33, s34")
        A(f"v_mul_u32_u24 {vr(vT+23)}, {8*896}, v2"); A(f"v_lshl_add_u32 {vr(vT+23)}, v1, 2, {vr(vT+23)}"); A(f"v_add_u32 {vr(vT+23)}, s33, {vr(vT+23)}")
        for tt in range(4):
            for jj in range(8):
                if opace and 8*tt+jj >= opace: A(f"s_waitcnt vmcnt({opace-1})")
                A(f"global_load_dword {vr(vRaw+8*tt+jj)}, {vr(vT+23)}, s[12:13] offset:{(jj-4)*896} {opol}")
            if tt < 3: A(f"v_add_u32 {vr(vT+23)}, {32*896}, {vr(vT+23)}")
        A("L_nowo:")
    A.c("tail constants")
    A("s_mul_i32 s33, s31, 14336"); A("s_mul_i32 s34, s30, 448"); A("s_add_u32 s33, s33, s34"); A(f"s_add_u32 s33, s33, {W_B}")
    A(f"v_lshrrev_b32 {vr(vT+6)}, 5, v0")
    A(f"v_mul_u32_u24 {vr(vBa)}, 1792, {vr(vT+6)}"); A(f"v_lshl_add_u32 {vr(vBa)}, {vr(vT+4)}, 4, {vr(vBa)}"); A(f"v_add_u32 {vr(vBa)}, s33, {vr(vBa)}")
    A(f"v_add_u32 {vr(vBa+1)}, {4*1792}, {vr(vBa)}")
    A(f"s_add_u32 s34, s34, {L_H}")
    A(f"v_lshlrev_b32 {vr(vHw)}, 4, {vr(vT+4)}"); A(f"v_lshl_add_u32 {vr(vHw)}, {vr(vT+6)}, 3, {vr(vHw)}"); A(f"v_add_u32 {vr(vHw)}, s34, {vr(vHw)}")
    A("s_lshl_b32 s34, s30, 2"); A(f"s_add_u32 s34, s34, {L_HS}")
    A(f"v_lshlrev_b32 {vr(vHsw)}, 4, {vr(vT+6)}"); A(f"v_add_u32 {vr(vHsw)}, s34, {vr(vHsw)}")
    A(f"v_and_b32 {vr(vT+7)}, 31, v0"); A(f"v_cmp_gt_u32 vcc, 28, {vr(vT+7)}"); A(f"v_cndmask_b32 {vr(vK1+5)}, 0, 1.0, vcc")
    A("s_mul_i32 s33, s32, 56"); A(f"s_add_u32 s33, s33, {L_H}")
    ii = vT + 8; hf = vT + 9; col = vT + 10
    A(f"v_bfe_u32 {vr(ii)}, v0, 3, 1"); A(f"v_and_b32 {vr(hf)}, 3, v0"); A(f"v_lshl_add_u32 {vr(ii)}, {vr(ii)}, 2, {vr(hf)}")
    A(f"v_bfe_u32 {vr(hf)}, v0, 2, 1")
    A(f"v_min_u32 {vr(col)}, 6, {vr(ii)}"); A(f"v_mad_u32_u24 {vr(col)}, {vr(hf)}, 7, {vr(col)}")
    A(f"v_lshlrev_b32 {vr(vHa)}, 2, {vr(col)}"); A(f"v_add_u32 {vr(vHa)}, s33, {vr(vHa)}")
    A(f"v_cmp_eq_u32 vcc, 7, {vr(ii)}"); A(f"v_cndmask_b32 {vr(vT+11)}, v2, 3, vcc")
    A(f"v_mov_b32 {vr(vT+12)}, 0x3f803f80")
    A(f"v_cmp_eq_u32 vcc, 2, {vr(vT+11)}"); A(f"v_cndmask_b32 {vr(vK1)}, 0, 1.0, vcc")
    A(f"v_cmp_eq_u32 vcc, 0, {vr(vT+11)}"); A(f"v_cndmask_b32 {vr(vK1+1)}, 0, 1.0, vcc")
    A(f"v_cndmask_b32 {vr(vK1+3)}, 0, {vr(vT+12)}, vcc")
    A(f"v_cmp_eq_u32 vcc, 1, {vr(vT+11)}"); A(f"v_cndmask_b32 {vr(vK1+2)}, 0, 1.0, vcc")
    A(f"v_cndmask_b32 {vr(vK1+4)}, 0, {vr(vT+12)}, vcc")
    A(f"v_min_u32 {vr(col)}, 6, v0"); A(f"v_lshlrev_b32 {vr(vHf)}, 3, {vr(col)}"); A(f"v_add_u32 {vr(vHf)}, s33, {vr(vHf)}")
    A("s_mul_i32 s33, s31, 896"); A("s_mul_i32 s34, s32, 28"); A("s_add_u32 s33, s33, s34")
    A(f"v_lshlrev_b32 {vr(vOut)}, 2, {vr(col)}"); A(f"v_add_u32 {vr(vOut)}, s33, {vr(vOut)}")
    A(f"v_bfe_u32 {vr(ii)}, v0, 2, 1"); A(f"v_bfe_u32 {vr(hf)}, v0, 3, 1"); A(f"v_lshl_add_u32 {vr(ii)}, {vr(ii)}, 1, {vr(hf)}")
    A(f"v_bfe_u32 {vr(hf)}, v0, 4, 1"); A(f"v_lshl_add_u32 {vr(ii)}, {vr(hf)}, 2, {vr(ii)}")
    A(f"v_mad_u32_u24 {vr(hf)}, {vr(vT+6)}, 7, {vr(ii)}")
    A(f"v_cmp_eq_u32 vcc, 7, {vr(ii)}"); A(f"v_cndmask_b32 {vr(hf)}, {vr(hf)}, 15, vcc")
    A("s_lshl_b32 s34, s30, 6"); A(f"s_add_u32 s34, s34, {L_Y}")
    A(f"v_lshlrev_b32 {vr(vYa)}, 2, {vr(hf)}"); A(f"v_add_u32 {vr(vYa)}, s34, {vr(vYa)}")
    A("s_lshl_b32 s33, s31, 14"); A("s_add_u32 s33, s33, 8192"); A("s_lshr_b32 s34, s30, 1"); A("s_lshl_b32 s34, s34, 7"); A("s_add_u32 s34, s34, s33")
    A("s_and_b32 s35, s32, 1"); A("s_lshl_b32 s36, s35, 6"); A("s_add_u32 s34, s34, s36")
    A(f"v_lshlrev_b32 {vr(vLa)}, 4, v2"); A(f"v_add_u32 {vr(vLa)}, s34, {vr(vLa)}")
    A("s_lshl_b32 s34, s32, 2"); A("s_add_u32 s34, s34, s33")
    A(f"v_lshlrev_b32 {vr(vLst)}, 7, v0"); A(f"v_add_u32 {vr(vLst)}, s34, {vr(vLst)}")
    A("s_lshl_b32 s33, s31, 15"); A(f"s_add_u32 s33, s33, {W_O}")
    A("s_lshl_b32 s34, s35, 14"); A("s_add_u32 s34, s34, s33"); A("s_lshl_b32 s36, s30, 12"); A("s_add_u32 s34, s34, s36")
    A(f"v_add_u32 {vr(vOa)}, s34, v3")
    A("s_lshr_b32 s34, s32, 4"); A("s_lshl_b32 s34, s34, 14"); A("s_add_u32 s34, s34, s33"); A("s_and_b32 s36, s32, 15"); A("s_lshl_b32 s36, s36, 4"); A("s_add_u32 s34, s34, s36")
    A("s_lshl_b32 s36, s30, 12"); A("s_add_u32 s34, s34, s36")
    A(f"v_lshlrev_b32 {vr(vOst)}, 8, v1"); A(f"v_lshl_add_u32 {vr(vOst)}, v2, 2, {vr(vOst)}"); A(f"v_add_u32 {vr(vOst)}, s34, {vr(vOst)}")
    A("s_lshl_b32 s34, s30, 8"); A(f"s_add_u32 s34, s34, {L_OP}")
    A(f"v_lshlrev_b32 {vr(vOPr)}, 11, v2"); A(f"v_lshl_add_u32 {vr(vOPr)}, v1, 4, {vr(vOPr)}"); A(f"v_add_u32 {vr(vOPr)}, s34, {vr(vOPr)}")
    A("s_lshl_b32 s34, s30, 7"); A(f"s_add_u32 s34, s34, {L_PP}")
    A(f"v_lshlrev_b32 {vr(vPPr)}, 3, v1"); A(f"v_add_u32 {vr(vPPr)}, s34, {vr(vPPr)}")
    A(f"v_lshlrev_b32 {vr(vQs+2)}, 10, v1"); A(f"v_lshl_add_u32 {vr(vQs+2)}, v2, 3, {vr(vQs+2)}")
    A("s_lshl_b32 s33, s31, 14"); A(f"s_xor_b32 s34, s32, {qx}"); A("s_lshl_b32 s34, s34, 5"); A("s_add_u32 s33, s33, s34"); A(f"v_add_u32 {vr(vQs+2)}, s33, {vr(vQs+2)}")
    A("s_lshl_b32 s34, s30, 9"); A(f"s_add_u32 s34, s34, {L_PP}")
    A(f"v_lshlrev_b32 {vr(vPPa)}, 3, v0"); A(f"v_add_u32 {vr(vPPa)}, s34, {vr(vPPa)}")
    A("s_lshl_b32 s34, s35, 2"); A("s_add_u32 s60, s34, s30")
    A("s_lshl_b32 s34, s60, 3"); A("s_add_u32 s34, s34, s31"); A("s_mul_i32 s34, s34, 1792")
    A("s_lshr_b32 s36, s32, 1"); A("s_min_u32 s36, s36, 13"); A("s_lshl_b32 s36, s36, 7")
    A("s_add_u32 s34, s34, s36"); A(f"s_add_u32 s34, s34, {W_B}")
    A(f"v_lshlrev_b32 {vr(vBst)}, 3, v1"); A(f"v_add_u32 {vr(vBst)}, s34, {vr(vBst)}")
    for i in range(4): A(f"v_mov_b32 {vr(vG+i)}, 0")
    A(f"s_mov_b32 s39, {f32(1.0/64)}")
    A(f"s_mov_b32 s33, {f32(BETA)}"); A(f"s_mov_b32 s34, {f32(3*BETA)}"); A("s_mov_b32 s38, 0xffff0000")
    A("v_cmp_lt_u32 vcc, 31, v0")
    A("s_waitcnt vmcnt(0)")
    A(f"v_mov_b32 {vr(vT)}, {f32(ALPHA)}")
    A(f"v_cndmask_b32 {vr(vXr+2)}, {vr(vXr+2)}, {vr(vXr+3)}, vcc")
    A(f"v_lshlrev_b32 {vr(vXr)}, 16, {vr(vXr+2)}"); A(f"v_and_b32 {vr(vXr+1)}, s38, {vr(vXr+2)}")
    A(f"v_lshlrev_b32 {vr(vB2)}, 16, {vr(vB2)}")
    w, b, u, bb, c0, c1, c2, c3, ca, cc, hi = (vT + 1 + i for i in range(11))
    def publish_q():
        A("s_cmp_eq_u32 s30, 0"); A("s_cbranch_scc0 L_nopub")
        A("s_getreg_b32 s47, hwreg(HW_REG_XCC_ID, 0, 4)")
        A("s_or_b32 s47, s47, 0x100")
        A("s_waitcnt lgkmcnt(0)")
        A("s_cmp_eq_u32 s46, s47")
        A("s_cbranch_scc0 L_f1slow")
        A("L_same:")
        A("s_mov_b32 exec_lo, 0x00ff00ff"); A("s_mov_b32 exec_hi, 0x00ff00ff")
        A(f"global_store_dwordx2 {vr(vQs+2)}, {vr(vQs,2)}, s[28:29] sc1")
        A("s_mov_b64 exec, -1")
        stamp(3)
        A("L_nopub:")
        def ool():
            A("L_f1slow:")
            A(f"v_mov_b32 {vr(vT+20)}, s63")
            A("s_mov_b32 s35, 0")
            A("L_f1l:")
            A("s_cmp_lg_u32 s46, 0")
            A("s_cbranch_scc1 L_f1d")
            A(f"global_load_dword {vr(vT+21)}, {vr(vT+20)}, s[26:27] sc1")
            A("s_add_u32 s35, s35, 1")
            A("s_waitcnt vmcnt(0)")
            A(f"v_readfirstlane_b32 s46, {vr(vT+21)}")
            A(f"s_cmp_lt_u32 s35, {SPIN}")
            A("s_cbranch_scc1 L_f1l")
            A("L_f1d:")
            A("s_cmp_eq_u32 s46, s47")
            A("s_cbranch_scc1 L_same")
            A("s_add_u32 s46, s63, 128"); A("s_mov_b32 s47, 1")
            A("s_atomic_add s47, s[26:27], s46 glc")
            A("s_waitcnt lgkmcnt(0)")
            A("s_branch L_same")
        OOL.append(ool)
    for tile in range(14):
        if tile == FT:
            A("s_cmp_eq_u32 s30, 0"); A("s_cbranch_scc0 L_nofl")
            A("s_load_dword s46, s[26:27], s63")
            A("L_nofl:")
        if tile == FT + 4: publish_q()
        for k, d in enumerate((w, b, u)):
            src = raw + 8*k + (tile >> 1)
            if tile & 1: A(f"v_and_b32 {vr(d)}, s38, {vr(src)}")
            else: A(f"v_lshlrev_b32 {vr(d)}, 16, {vr(src)}")
        A(f"v_mul_f32 {vr(bb)}, {vr(b)}, {vr(b)}")
        A(f"v_fma_f32 {vr(c0)}, {vr(bb)}, s33, {vr(vT)}"); A(f"v_mul_f32 {vr(c0)}, {vr(c0)}, {vr(b)}")
        A(f"v_fma_f32 {vr(c1)}, {vr(bb)}, s34, {vr(vT)}"); A(f"v_mul_f32 {vr(c1)}, {vr(c1)}, {vr(w)}")
        A(f"v_mul_f32 {vr(bb)}, {vr(w)}, {vr(w)}")
        A(f"v_mul_f32 {vr(c2)}, s34, {vr(bb)}"); A(f"v_mul_f32 {vr(c2)}, {vr(c2)}, {vr(b)}")
        A(f"v_mul_f32 {vr(c3)}, s33, {vr(bb)}"); A(f"v_mul_f32 {vr(c3)}, {vr(c3)}, {vr(w)}")
        A(f"v_mul_f32 {vr(ca)}, {vr(w)}, {vr(u)}"); A(f"v_mul_f32 {vr(cc)}, {vr(b)}, {vr(u)}")
        for k, cx in enumerate((c0, c1, c2, c3)): A(f"v_add_f32 {vr(vG+k)}, |{vr(cx)}|, {vr(vG+k)}")
        A(f"v_fma_f32 {vr(vG)}, |{vr(cc)}|, s39, {vr(vG)}"); A(f"v_fma_f32 {vr(vG+1)}, |{vr(ca)}|, s39, {vr(vG+1)}")
        for k, (lo_, hi_) in enumerate(((c1, c2), (c0, c2), (ca, c3), (cc, c3))):
            A(f"v_cndmask_b32 {vr(lo_)}, {vr(lo_)}, {vr(hi_)}, vcc")
            A(f"v_cvt_pk_bf16_f32 {vr(hi)}, {vr(lo_)}, {vr(lo_)}")
            A(f"v_and_b32 {vr(hi)}, s38, {vr(hi)}")
            A(f"v_sub_f32 {vr(lo_)}, {vr(lo_)}, {vr(hi)}")
            A(f"v_cvt_pk_bf16_f32 {vr(vC+4*tile+k)}, {vr(hi)}, {vr(lo_)}")
    if FT + 4 >= 14: publish_q()
    A.c("largest |hn| for which the fused gelu path can neither overflow nor lose precision")
    A("s_mov_b32 s59, -1.0"); A(f"s_mov_b32 s34, {f32(100.0)}")
    for H in (3.0, 4.0, 5.0, 6.0, 8.0, 12.0, 22.0):
        A(f"s_mov_b32 s33, {f32(H)}")
        A(f"v_fma_f32 {vr(vT+1)}, {vr(vG+3)}, s33, {vr(vG+2)}"); A(f"v_fma_f32 {vr(vT+1)}, {vr(vT+1)}, s33, {vr(vG+1)}")
        A(f"v_fma_f32 {vr(vT+1)}, {vr(vT+1)}, s33, {vr(vG)}")
        A(f"v_cmp_nge_f32 vcc, s34, {vr(vT+1)}")
        A("s_cmp_eq_u64 vcc, 0"); A("s_cselect_b32 s59, s33, s59")
    if force_fb: A("s_mov_b32 s59, -1.0")
    stamp(4)
    if opos == "early": wo_loads()
    A("s_barrier")
    if opos == "mid": wo_loads()
    A(f"v_lshlrev_b32 {vr(vT+20)}, 2, v1")
    A("s_barrier")
    A(f"global_load_dword {vr(vT+21)}, {vr(vT+20)}, s[26:27] offset:128 sc1")
    if touch: A(f"global_load_dword {vr(vT+22)}, {vr(vOut)}, s[24:25]")
    if opos == "late": wo_loads()
    A(f"v_and_b32 {vr(vT)}, 1, v0"); A(f"v_lshlrev_b32 {vr(vT)}, 5, {vr(vT)}"); A(f"v_add_u32 {vr(vT)}, {L_STAT}, {vr(vT)}")
    A(f"ds_read_b128 {vr(vT+4,4)}, {vr(vT)}")
    A(f"ds_read_b128 {vr(vT+8,4)}, {vr(vT)} offset:16")
    A("s_waitcnt lgkmcnt(0)")
    stats(vT + 4, vT + 8, vT + 1, vT + 2)
    A(f"v_log_f32 {vr(vT+2)}, {vr(vT+2)}")
    A(f"v_add_f32 {vr(vLse)}, {vr(vT+1)}, {vr(vT+2)}")
    A(f"v_min_u32 {vr(vLse)}, -2, {vr(vLse)}")
    A("s_mov_b32 s35, 0")
    A("L_f2:")
    A("s_waitcnt vmcnt(0)")
    A(f"v_cmp_ne_u32 vcc, 0, {vr(vT+21)}")
    A("s_bfe_u32 s33, vcc_lo, 0x80008")
    A("s_cmp_eq_u32 s33, 0xff")
    A("s_cbranch_scc0 L_f2r")
    A("L_f2d:")
    def ool_f2():
        A("L_f2r:")
        A("s_add_u32 s35, s35, 1")
        A(f"s_cmp_ge_u32 s35, {SPIN}")
        A("s_cbranch_scc1 L_f2d")
        A(f"global_load_dword {vr(vT+21)}, {vr(vT+20)}, s[26:27] offset:128 sc1")
        A("s_branch L_f2")
    OOL.append(ool_f2)
    A("s_lshr_b32 s62, vcc_lo, s31"); A("s_and_b32 s62, s62, 1")
    if force_slow: A("s_mov_b32 s62, 1")
    A("s_cmp_eq_u32 s30, 1"); A("s_cbranch_scc0 L_nolse")
    A("s_mov_b64 exec, 3")
    A("s_cmp_eq_u32 s62, 0"); A("s_cbranch_scc0 L_slowlse")
    A(f"global_store_dword {vr(vLst)}, {vr(vLse)}, s[28:29]")
    A("L_lsed:")
    A("s_mov_b64 exec, -1")
    A("L_nolse:")
    def ool_lse():
        A("L_slowlse:")
        A(f"global_store_dword {vr(vLst)}, {vr(vLse)}, s[28:29] sc1")
        A("s_branch L_lsed")
    OOL.append(ool_lse)
    A("s_cmp_eq_u32 s60, s31"); A("s_cselect_b32 s61, 1, 0"); A("s_andn2_b32 s61, s61, s62")
    A("s_cmp_ge_u32 s32, 28"); A("s_cselect_b32 s61, 2, s61")
    A("s_mov_b32 s33, 0x05040100"); A("s_mov_b32 s34, 0x07060302")
    for tt in range(4):
        for i in range(4):
            lo_, hi_ = vRaw + 8*tt + 2*i, vRaw + 8*tt + 2*i + 1
            A(f"v_perm_b32 {vr(vWE+4*tt+i)}, {vr(hi_)}, {vr(lo_)}, s33")
            A(f"v_perm_b32 {vr(vWO+4*tt+i)}, {vr(hi_)}, {vr(lo_)}, s34")
    A(f"s_mov_b32 s36, {f32(1.0 + 1e-5)}"); A(f"s_mov_b32 s37, {f32(1.0/448)}"); A("s_mov_b32 s38, 0xffff0000")
    A("s_mov_b32 s40, 0x80000000"); A("s_mov_b32 s41, 0x80000000")
    A("s_mov_b32 s35, 0")
    A("s_cmp_eq_u32 s62, 0")
    stamp(3) if False else None
    A("L_b3:")
    A("s_barrier")
    stamp(5)
    if "E" in skip: A("s_branch L_fin")
    A.c("reduce the four stream waves' o partials, publish as bf16")
    o = vX
    A(f"ds_read_b128 {vr(o,4)}, {vr(vOPr)}")
    A(f"ds_read_b128 {vr(o+4,4)}, {vr(vOPr)} offset:1024")
    A("s_waitcnt lgkmcnt(0)")
    for i in range(4): A(f"v_permlane32_swap_b32 {vr(o+i)}, {vr(o+4+i)}")
    A(f"v_pk_add_f32 {vr(o,2)}, {vr(o,2)}, {vr(o+4,2)}"); A(f"v_pk_add_f32 {vr(o+2,2)}, {vr(o+2,2)}, {vr(o+6,2)}")
    for i in range(2): A(f"v_permlane16_swap_b32 {vr(o+i)}, {vr(o+2+i)}")
    A(f"v_pk_add_f32 {vr(o,2)}, {vr(o,2)}, {vr(o+2,2)}")
    A(f"v_cvt_pk_bf16_f32 {vr(o)}, {vr(o)}, {vr(o+1)}")
    A(f"v_min_u32 {vr(o)}, -2, {vr(o)}")
    A("s_cbranch_scc0 L_slowpub")
    A(f"global_store_dword {vr(vOst)}, {vr(o)}, s[28:29]")
    A("L_pubd:")
    def ool_pub():
        A("L_slowpub:")
        A(f"global_store_dword {vr(vOst)}, {vr(o)}, s[28:29] sc1")
        A("s_branch L_pubd")
    OOL.append(ool_pub)
    stamp(6)
    A.c("out projection")
    ls4 = vT + 4; oa = vRaw; DE = vT + 8; DO = vT + 12; ck = vT + 1
    A("L_apoll:")
    A(f"global_load_dwordx4 {vr(ls4,4)}, {vr(vLa)}, s[28:29] sc1")
    for tt in range(4):
        A(f"global_load_dwordx4 {vr(oa+4*tt,4)}, {vr(vOa)}, s[28:29] offset:{1024*tt} sc1")
    A("s_add_u32 s35, s35, 1")
    A(f"s_cmp_ge_u32 s35, {SPIN}")
    A("s_waitcnt vmcnt(4)")
    A(f"v_max3_u32 {vr(ck)}, {vr(ls4)}, {vr(ls4+1)}, {vr(ls4+2)}"); A(f"v_max_u32 {vr(ck)}, {vr(ck)}, {vr(ls4+3)}")
    A(f"v_max3_f32 {vr(vT+2)}, {vr(ls4)}, {vr(ls4+1)}, {vr(ls4+2)}"); A(f"v_max_f32 {vr(vT+2)}, {vr(vT+2)}, {vr(ls4+3)}")
    for i in range(4): A(f"v_sub_f32 {vr(ls4+i)}, {vr(ls4+i)}, {vr(vT+2)}")
    for i in range(4): A(f"v_exp_f32 {vr(ls4+i)}, {vr(ls4+i)}")
    extra = [[f"v_add_f32 {vr(vT+2)}, {vr(ls4)}, {vr(ls4+1)}", f"v_add_f32 {vr(vT+3)}, {vr(ls4+2)}, {vr(ls4+3)}"],
             [f"v_add_f32 {vr(vT+2)}, {vr(vT+2)}, {vr(vT+3)}", f"v_rcp_f32 {vr(vT+2)}, {vr(vT+2)}"],
             [f"v_mul_f32 {vr(ls4+i)}, {vr(ls4+i)}, {vr(vT+2)}" for i in range(4)], []]
    for tt in range(4):
        A(f"s_waitcnt vmcnt({3-tt})")
        for D, Wf in ((DE, vWE), (DO, vWO)):
            c = "0" if tt == 0 else vr(D, 4)
            A(f"v_mfma_f32_16x16x32_bf16 {vr(D,4)}, {vr(oa+4*tt,4)}, {vr(Wf+4*tt,4)}, {c}")
        A(f"v_max3_u32 {vr(ck)}, {vr(ck)}, {vr(oa+4*tt)}, {vr(oa+4*tt+1)}"); A(f"v_max3_u32 {vr(ck)}, {vr(ck)}, {vr(oa+4*tt+2)}, {vr(oa+4*tt+3)}")
        for x in extra[tt]: A(x)
    A(f"v_cmp_eq_u32 vcc, -1, {vr(ck)}")
    A("s_cbranch_scc1 L_adone")
    A("s_cbranch_vccnz L_apoll")
    A("L_adone:")
    A("s_cmp_eq_u32 s61, 0")
    A("s_mov_b32 s35, 0")
    stamp(7)
    for k, D in enumerate((DE, DO)):
        A(f"v_mul_f32 {vr(vT+16+k)}, {vr(D)}, {vr(ls4)}")
        for i in range(1, 4): A(f"v_fmac_f32 {vr(vT+16+k)}, {vr(D+i)}, {vr(ls4+i)}")
    A(f"ds_write_b64 {vr(vPPa)}, {vr(vT+16,2)}")
    A("s_mov_b64 exec, 0xffff")
    A("s_waitcnt lgkmcnt(0)")
    stamp(8)
    A("s_barrier")
    A(f"ds_read2_b64 {vr(vT+4,4)}, {vr(vPPr)} offset0:0 offset1:64")
    A(f"ds_read2_b64 {vr(vT+8,4)}, {vr(vPPr)} offset0:128 offset1:192")
    A("s_waitcnt lgkmcnt(1)")
    A(f"v_pk_add_f32 {vr(vT+4,2)}, {vr(vT+4,2)}, {vr(vT+6,2)}")
    A("s_waitcnt lgkmcnt(0)")
    A(f"v_pk_add_f32 {vr(vT+8,2)}, {vr(vT+8,2)}, {vr(vT+10,2)}")
    A(f"v_pk_add_f32 {vr(vT+16,2)}, {vr(vT+4,2)}, {vr(vT+8,2)}")
    A(f"v_min_u32 {vr(vT+16)}, -2, {vr(vT+16)}"); A(f"v_min_u32 {vr(vT+17)}, -2, {vr(vT+17)}")
    A("s_cbranch_scc0 L_altb")
    A(f"global_store_dwordx2 {vr(vBst)}, {vr(vT+16,2)}, s[28:29] sc1")
    A("L_bstd:")
    def ool_b():
        A("L_altb:")
        A("s_cmp_eq_u32 s61, 1"); A("s_cbranch_scc0 L_bstd")
        A(f"global_store_dwordx2 {vr(vBst)}, {vr(vT+16,2)}, s[28:29]")
        A("s_branch L_bstd")
    OOL.append(ool_b)
    A("s_mov_b64 exec, -1")
    stamp(9)
    bl = vRaw
    A("L_bpoll:")
    for i in range(4):
        A(f"global_load_dwordx4 {vr(bl+4*i,4)}, {vr(vBa+(i>>1))}, s[28:29] offset:{(i&1)*3584} sc1")
    A("s_add_u32 s35, s35, 1")
    A(f"s_cmp_ge_u32 s35, {SPIN}")
    A("s_waitcnt vmcnt(2)")
    A(f"v_max3_u32 {vr(vT+2)}, {vr(bl)}, {vr(bl+1)}, {vr(bl+2)}")
    A(f"v_max3_u32 {vr(vT+2)}, {vr(vT+2)}, {vr(bl+3)}, {vr(bl+4)}"); A(f"v_max3_u32 {vr(vT+2)}, {vr(vT+2)}, {vr(bl+5)}, {vr(bl+6)}")
    A(f"v_pk_add_f32 {vr(vT+4,2)}, {vr(bl,2)}, {vr(bl+4,2)}"); A(f"v_pk_add_f32 {vr(vT+6,2)}, {vr(bl+2,2)}, {vr(bl+6,2)}")
    A("s_waitcnt vmcnt(1)")
    A(f"v_max3_u32 {vr(vT+2)}, {vr(vT+2)}, {vr(bl+7)}, {vr(bl+8)}"); A(f"v_max3_u32 {vr(vT+2)}, {vr(vT+2)}, {vr(bl+9)}, {vr(bl+10)}")
    A(f"v_pk_add_f32 {vr(vT+4,2)}, {vr(vT+4,2)}, {vr(bl+8,2)}"); A(f"v_pk_add_f32 {vr(vT+6,2)}, {vr(vT+6,2)}, {vr(bl+10,2)}")
    A(f"v_max_u32 {vr(vT+2)}, {vr(vT+2)}, {vr(bl+11)}")
    A("s_waitcnt vmcnt(0)")
    A(f"v_max3_u32 {vr(vT+2)}, {vr(vT+2)}, {vr(bl+12)}, {vr(bl+13)}"); A(f"v_max3_u32 {vr(vT+2)}, {vr(vT+2)}, {vr(bl+14)}, {vr(bl+15)}")
    A(f"v_pk_add_f32 {vr(vT+4,2)}, {vr(vT+4,2)}, {vr(bl+12,2)}"); A(f"v_pk_add_f32 {vr(vT+6,2)}, {vr(vT+6,2)}, {vr(bl+14,2)}")
    A(f"v_cmp_eq_u32 vcc, -1, {vr(vT+2)}")
    A("s_cbranch_scc1 L_bdone")
    A("s_cbranch_vccnz L_bpoll")
    A("L_bdone:")
    stamp(10)
    A(f"v_permlane32_swap_b32 {vr(vT+4)}, {vr(vT+6)}")
    A(f"v_permlane32_swap_b32 {vr(vT+5)}, {vr(vT+7)}")
    A(f"v_pk_add_f32 {vr(vT+4,2)}, {vr(vT+4,2)}, {vr(vXr,2)}")
    A(f"v_pk_add_f32 {vr(vT+4,2)}, {vr(vT+4,2)}, {vr(vT+6,2)}")
    s1 = vT + 8; s2 = vT + 9
    A(f"v_add_f32 {vr(s1)}, {vr(vT+4)}, {vr(vT+5)}")
    A(f"v_mul_f32 {vr(s2)}, {vr(vT+4)}, {vr(vT+4)}"); A(f"v_fmac_f32 {vr(s2)}, {vr(vT+5)}, {vr(vT+5)}")
    A(f"ds_write_b64 {vr(vHw)}, {vr(vT+4,2)}")
    A(f"v_permlane32_swap_b32 {vr(s1)}, {vr(s2)}")
    A(f"v_add_f32 {vr(s1)}, {vr(s1)}, {vr(s2)}")
    A(f"v_mul_f32 {vr(s1)}, {vr(s1)}, {vr(vK1+5)}")
    for sh in (8, 4, 2, 1):
        A(f"v_add_f32_dpp {vr(s1)}, {vr(s1)}, {vr(s1)} row_ror:{sh} row_mask:0xf bank_mask:0xf")
    A(f"v_add_f32_dpp {vr(s1)}, {vr(s1)}, {vr(s1)} row_bcast:15 row_mask:0xa bank_mask:0xf")
    A(f"v_mov_b32 {vr(vT)}, {L_HS}")
    A("s_mov_b64 exec, s[40:41]")
    A(f"ds_write_b32 {vr(vHsw)}, {vr(s1)}")
    A("s_mov_b64 exec, -1")
    A("s_waitcnt lgkmcnt(0)")
    A("s_barrier")
    A.c("LayerNorm x2 + token MLP")
    h8 = vT + 4; hv = vT + 1
    A(f"ds_read_b128 {vr(h8,4)}, {vr(vT)}")
    A(f"ds_read_b128 {vr(h8+4,4)}, {vr(vT)} offset:16")
    A(f"ds_read_b32 {vr(hv)}, {vr(vHa)}")
    A(f"ds_read_b64 {vr(vHf,2)}, {vr(vHf)}")
    mu = vT + 2; rs = vT + 3
    A("s_waitcnt lgkmcnt(3)")
    A(f"v_pk_add_f32 {vr(h8,2)}, {vr(h8,2)}, {vr(h8+2,2)}")
    A(f"v_add_f32 {vr(mu)}, {vr(h8)}, {vr(h8+1)}")
    A("s_waitcnt lgkmcnt(2)")
    A(f"v_pk_add_f32 {vr(h8+4,2)}, {vr(h8+4,2)}, {vr(h8+6,2)}")
    A(f"v_mul_f32 {vr(mu)}, s37, {vr(mu)}")
    A(f"v_add_f32 {vr(rs)}, {vr(h8+4)}, {vr(h8+5)}")
    A(f"v_mul_f32 {vr(h8)}, {vr(mu)}, {vr(mu)}")
    A(f"v_fma_f32 {vr(rs)}, {vr(rs)}, s37, -{vr(h8)}")
    A(f"v_max_f32 {vr(rs)}, 0, {vr(rs)}")
    A(f"v_mov_b32 {vr(h8)}, {f32(1e-10)}")
    A(f"v_fmac_f32 {vr(h8)}, s36, {vr(rs)}")
    A(f"v_rsq_f32 {vr(rs)}, {vr(h8)}")
    A("s_waitcnt lgkmcnt(1)")
    A(f"v_sub_f32 {vr(hv)}, {vr(hv)}, {vr(mu)}")
    A(f"v_mul_f32 {vr(hv)}, {vr(hv)}, {vr(rs)}")
    A(f"v_cvt_pk_bf16_f32 {vr(hv)}, {vr(hv)}, {vr(hv)}")
    A(f"v_and_b32 {vr(hv)}, s38, {vr(hv)}")
    X = vT + 4; Y = vT + 5; t1 = vT + 6; t2 = vT + 7; Am = vT + 8
    A(f"v_fma_f32 {vr(X)}, {vr(hv)}, {vr(vK1)}, {vr(vK1+1)}"); A(f"v_mul_f32 {vr(X)}, {vr(X)}, {vr(hv)}")
    A(f"v_fma_f32 {vr(Y)}, {vr(X)}, {vr(vK1)}, {vr(vK1+2)}")
    A(f"v_cvt_pk_bf16_f32 {vr(Am)}, {vr(X)}, {vr(X)}")
    A(f"v_mul_f32 {vr(Y)}, {vr(Y)}, {vr(hv)}")
    A(f"v_and_b32 {vr(t1)}, s38, {vr(Am)}")
    A(f"v_cvt_pk_bf16_f32 {vr(Am+2)}, {vr(Y)}, {vr(Y)}")
    A(f"v_sub_f32 {vr(X)}, {vr(X)}, {vr(t1)}")
    A(f"v_and_b32 {vr(t2)}, s38, {vr(Am+2)}")
    A(f"v_cvt_pk_bf16_f32 {vr(Am+1)}, {vr(X)}, {vr(X)}")
    A(f"v_sub_f32 {vr(Y)}, {vr(Y)}, {vr(t2)}")
    A(f"v_or_b32 {vr(Am+1)}, {vr(Am+1)}, {vr(vK1+3)}")
    A(f"v_cvt_pk_bf16_f32 {vr(Am+3)}, {vr(Y)}, {vr(Y)}")
    A(f"v_or_b32 {vr(Am+3)}, {vr(Am+3)}, {vr(vK1+4)}")
    stamp(11)
    Db = [vX, vX + 16, vX + 32]; acc = vT + 12; Dd = vRaw; Nn = vRaw + 8
    def mm(tile):
        A(f"v_mfma_f32_32x32x16_bf16 {vr(Db[tile%3],16)}, {vr(Am,4)}, {vr(vC+4*tile,4)}, 0")
    mm(0)
    A(f"v_cmp_nge_f32 vcc, s59, |{vr(hv)}|")
    A("s_waitcnt lgkmcnt(0)")
    A(f"v_add_f32 {vr(vHf)}, {vr(vHf)}, {vr(vB2)}"); A(f"v_add_f32 {vr(vHf+1)}, {vr(vHf+1)}, {vr(vB2)}")
    A(f"v_lshlrev_b32 {vr(vT)}, 3, v1"); A(f"v_add_u32 {vr(vT)}, {L_Y}, {vr(vT)}")
    A("s_cbranch_vccnz L_fb")
    A.c("sum_f n_f / (1 + e_f) kept as one fraction N / D")
    for tile in range(14):
        D = Db[tile % 3]
        if tile + 1 < 14: mm(tile + 1)
        for i in range(7): A(f"v_exp_f32 {vr(D+i)}, {vr(D+i)}")
        if tile == 0:
            for k in range(0, 8, 2): A(f"v_pk_add_f32 {vr(Dd+k,2)}, {vr(D+k,2)}, 1.0 op_sel_hi:[1,0]")
            continue
        Np = Db[0] + 8 if tile == 1 else Nn
        for k in range(0, 8, 2): A(f"v_pk_fma_f32 {vr(D+8+k,2)}, {vr(D+8+k,2)}, {vr(Dd+k,2)}, {vr(Np+k,2)}")
        for k in range(0, 8, 2): A(f"v_pk_fma_f32 {vr(Dd+k,2)}, {vr(Dd+k,2)}, {vr(D+k,2)}, {vr(Dd+k,2)}")
        for k in range(0, 8, 2): A(f"v_pk_fma_f32 {vr(Nn+k,2)}, {vr(Np+k,2)}, {vr(D+k,2)}, {vr(D+8+k,2)}")
    for i in range(7): A(f"v_rcp_f32 {vr(Dd+i)}, {vr(Dd+i)}")
    for k in range(0, 8, 2): A(f"v_pk_mul_f32 {vr(acc+k,2)}, {vr(Nn+k,2)}, {vr(Dd+k,2)}")
    A("L_fbd:")
    A("s_cmp_eq_u32 s30, 1")
    def ool_fb():
        A("L_fb:")
        A.c("direct evaluation (large activations or weights)")
        hh = vRaw; fa = vRaw + 8; w_ = vRaw + 9; b_ = vRaw + 10; u_ = vRaw + 11; x_ = vRaw + 12; p_ = vRaw + 13; al = vRaw + 14
        A(f"v_lshrrev_b32 {vr(fa)}, 5, v0"); A(f"v_mul_u32_u24 {vr(fa)}, 28, {vr(fa)}")
        A("s_mul_i32 s33, s32, 56"); A(f"s_add_u32 s33, s33, {L_H}"); A(f"v_add_u32 {vr(fa)}, s33, {vr(fa)}")
        for i in range(7): A(f"ds_read_b32 {vr(hh+i)}, {vr(fa)} offset:{4*i}")
        A(f"v_and_b32 {vr(fa)}, 31, v0"); A(f"v_lshlrev_b32 {vr(fa)}, 1, {vr(fa)}")
        A("s_mul_i32 s33, s30, 896"); A(f"v_add_u32 {vr(fa)}, s33, {vr(fa)}")
        A(f"s_mov_b32 s33, {f32(BETA)}"); A(f"v_mov_b32 {vr(al)}, {f32(ALPHA)}")
        for i in range(8): A(f"v_mov_b32 {vr(acc+i)}, 0")
        A("s_waitcnt lgkmcnt(0)")
        for i in range(7):
            A(f"v_sub_f32 {vr(hh+i)}, {vr(hh+i)}, {vr(mu)}"); A(f"v_mul_f32 {vr(hh+i)}, {vr(hh+i)}, {vr(rs)}")
            A(f"v_cvt_pk_bf16_f32 {vr(hh+i)}, {vr(hh+i)}, {vr(hh+i)}"); A(f"v_and_b32 {vr(hh+i)}, s38, {vr(hh+i)}")
        A("s_mov_b32 s34, 0")
        A("L_fbl:")
        A(f"global_load_ushort {vr(w_)}, {vr(fa)}, s[16:17]"); A(f"global_load_ushort {vr(b_)}, {vr(fa)}, s[18:19]"); A(f"global_load_ushort {vr(u_)}, {vr(fa)}, s[20:21]")
        A(f"v_add_u32 {vr(fa)}, 64, {vr(fa)}")
        A("s_waitcnt vmcnt(0)")
        for r_ in (w_, b_, u_): A(f"v_lshlrev_b32 {vr(r_)}, 16, {vr(r_)}")
        for i in range(7):
            A(f"v_fma_f32 {vr(x_)}, {vr(w_)}, {vr(hh+i)}, {vr(b_)}")
            A(f"v_mul_f32 {vr(p_)}, {vr(x_)}, {vr(x_)}"); A(f"v_fma_f32 {vr(p_)}, {vr(p_)}, s33, {vr(al)}"); A(f"v_mul_f32 {vr(p_)}, {vr(p_)}, {vr(x_)}")
            A(f"v_exp_f32 {vr(p_)}, {vr(p_)}"); A(f"v_add_f32 {vr(p_)}, 1.0, {vr(p_)}"); A(f"v_rcp_f32 {vr(p_)}, {vr(p_)}")
            A(f"v_mul_f32 {vr(x_)}, {vr(x_)}, {vr(p_)}"); A(f"v_fmac_f32 {vr(acc+i)}, {vr(x_)}, {vr(u_)}")
        A("s_add_u32 s34, s34, 1"); A("s_cmp_lt_u32 s34, 14"); A("s_cbranch_scc1 L_fbl")
        A("s_branch L_fbd")
    OOL.append(ool_fb)
    stamp(12)
    for k in range(4): A(f"v_add_f32_dpp {vr(acc+2*k)}, {vr(acc+2*k)}, {vr(acc+2*k)} row_ror:8 row_mask:0xf bank_mask:0x3")
    for k in range(4): A(f"v_add_f32_dpp {vr(acc+2*k)}, {vr(acc+2*k+1)}, {vr(acc+2*k+1)} row_ror:8 row_mask:0xf bank_mask:0xc")
    for k in range(2): A(f"v_add_f32_dpp {vr(acc+4*k)}, {vr(acc+4*k)}, {vr(acc+4*k)} row_shl:4 row_mask:0xf bank_mask:0x5")
    for k in range(2): A(f"v_add_f32_dpp {vr(acc+4*k)}, {vr(acc+4*k+2)}, {vr(acc+4*k+2)} row_shr:4 row_mask:0xf bank_mask:0xa")
    A(f"v_permlane16_swap_b32 {vr(acc)}, {vr(acc+4)}")
    A(f"v_add_f32 {vr(acc)}, {vr(acc)}, {vr(acc+4)}")
    A(f"v_add_f32_dpp {vr(acc)}, {vr(acc)}, {vr(acc)} quad_perm:[1,0,3,2] row_mask:0xf bank_mask:0xf")
    A(f"v_add_f32_dpp {vr(acc)}, {vr(acc)}, {vr(acc)} quad_perm:[2,3,0,1] row_mask:0xf bank_mask:0xf")
    A(f"ds_write_b32 {vr(vYa)}, {vr(acc)}")
    A("s_waitcnt lgkmcnt(0)")
    A("s_barrier")
    A("s_cbranch_scc0 L_fin")
    if diag:
        A("L_dg1:")
        A("s_memrealtime s[66:67]"); A("s_waitcnt lgkmcnt(0)"); A("s_sub_u32 s66, s66, s64")
        A(f"s_cmp_lt_u32 s66, 6000"); A("s_cbranch_scc1 L_dg1")
    A("s_mov_b64 exec, 0x7f")
    A(f"ds_read2_b64 {vr(vT+4,4)}, {vr(vT)} offset0:0 offset1:8")
    A(f"ds_read2_b64 {vr(vT+8,4)}, {vr(vT)} offset0:16 offset1:24")
    A("s_waitcnt lgkmcnt(1)")
    A(f"v_pk_add_f32 {vr(vHf,2)}, {vr(vHf,2)}, {vr(vT+4,2)}"); A(f"v_pk_add_f32 {vr(vHf,2)}, {vr(vHf,2)}, {vr(vT+6,2)}")
    A("s_waitcnt lgkmcnt(0)")
    A(f"v_pk_add_f32 {vr(vHf,2)}, {vr(vHf,2)}, {vr(vT+8,2)}"); A(f"v_pk_add_f32 {vr(vHf,2)}, {vr(vHf,2)}, {vr(vT+10,2)}")
    A(f"v_cvt_pk_bf16_f32 {vr(vT+2)}, {vr(vHf)}, {vr(vHf+1)}")
    A(f"global_store_dword {vr(vOut)}, {vr(vT+2)}, s[24:25]")
    A("L_fin:")
    stamp(13)
    dump_stamps(14)
    A("L_end:")
    A("s_endpgm")
    for f in OOL: f()
    A(f".fill (16384 - (. - {NAME})) / 4, 4, 0xbf810000")

    body, nn = fix_hazards(A.L)
    head = [l.rstrip("\n") for l in open("header.txt")]
    head.append(f"; @launch grid=(256,1,1) block=(512,1,1) lds={L_END}")
    head += ['.amdgcn_target "amdgcn-amd-amdhsa--gfx950"', ".text", f".globl {NAME}", ".p2align 8", f".type {NAME},@function"]
    tail = ['.section .rodata,"a"', ".p2align 6", f".amdhsa_kernel {NAME}",
            "  .amdhsa_next_free_vgpr 256", "  .amdhsa_next_free_sgpr 96", "  .amdhsa_accum_offset 256",
            "  .amdhsa_group_segment_fixed_size 0", "  .amdhsa_kernarg_size 104", "  .amdhsa_user_sgpr_count 2",
            "  .amdhsa_user_sgpr_kernarg_segment_ptr 1", "  .amdhsa_system_sgpr_workgroup_id_x 1",
            "  .amdhsa_float_denorm_mode_32 3", ".end_amdhsa_kernel"]
    return "\n".join(head + body + tail) + "\n"

if __name__ == "__main__":
    kw = eval("dict(" + (sys.argv[2] if len(sys.argv) > 2 else "") + ")")
    open(sys.argv[1], "w").write(gen(**kw))
```

```python
import sys, struct, math
from asmlib import *

NAME = "sequential_preLN__sliding_block_cached__mixer_token_mlp__decode_kernel"
def f32(x): return "0x%08x" % struct.unpack("<I", struct.pack("<f", x))[0]

L_K = 0; L_WQ = 131072; L_Q = 145408; L_STAT = 149504; L_OP = 149760; L_PP = 157952; L_H = 160000; L_HS = 161792; L_Y = 161856
L_END = 162112
W_Q = 0
W_O = 0x20000
W_B = 0x60000
W_STAMP = 0x100000
SPIN = 0x20000
STAMP_VIEW = [("S", slice(4, 8), [0, 6, 7, 1, 2, 3, 4, 5]), ("T0", 0, [0, 1, 2, 3, 4]), ("T3L", 3, [0, 1, 4], slice(224, 240)),
              ("T1", 1, [0, 4, 5, 6, 7, 8, 9, 10, 11, 12, 13])]
ALPHA = -2.0 * math.sqrt(2.0 / math.pi) * math.log2(math.e)
BETA = ALPHA * 0.044715

def gen(W=8, QPOS=6, FT=6, rot=None, stamps=False, force_slow=False, pol="nt", qpol="", opol="", spol="", skip="",
        pref=True, diag=None, opos="late", opace=0, qx=16, force_fb=False, touch=True, amp=None):
    A = Asm()
    rt = dict(t=(1, 0, 0), k=(1, 2, 0), v=(1, 1, 0), d=(1, 0, 2))
    rt.update(rot or {})
    def stamp(i):
        if stamps or (amp and i in (amp[1], amp[2], 0)): A(f"s_memrealtime s[{64+2*i}:{65+2*i}]")
    def dump_stamps(nst):
        if not stamps: return
        A("s_waitcnt lgkmcnt(0) vmcnt(0)")
        A("s_lshl_b32 s94, s2, 3"); A("s_add_u32 s94, s94, s30"); A("s_lshl_b32 s94, s94, 6"); A(f"s_add_u32 s94, s94, {W_STAMP}")
        A("s_mov_b64 exec, 1")
        A("v_mov_b32 v250, s94")
        for i in range(nst):
            A(f"v_mov_b32 v251, s{64+2*i}")
            A(f"global_store_dword v250, v251, s[28:29] offset:{4*i}")
        A("s_waitcnt vmcnt(0)")
    OOL = []

    A(f"{NAME}:")
    A("s_cmp_ge_u32 s2, 0x100")
    A("s_cbranch_scc1 L_end")
    stamp(0)
    if diag: A("s_memrealtime s[64:65]")
    A("s_load_dwordx16 s[4:19], s[0:1], 0")
    A("s_load_dwordx8 s[20:27], s[0:1], 64")
    A("s_load_dwordx2 s[28:29], s[0:1], 96")
    A("v_lshrrev_b32 v1, 6, v0")
    A("v_and_b32 v0, 63, v0")
    A("v_readfirstlane_b32 s30, v1")
    A("s_and_b32 s31, s2, 7")
    A("s_lshr_b32 s32, s2, 3")
    A("v_and_b32 v1, 15, v0")
    A("v_lshrrev_b32 v2, 4, v0")
    A("v_lshlrev_b32 v3, 4, v0")
    A("s_lshl_b32 s63, s31, 2")
    A("s_cmp_lt_u32 s30, 4")
    A("s_cbranch_scc1 L_T")

    A.c("================ stream waves")
    V = Alloc(4, 256)
    vK = V(8); vVo = V(8); vKA = V(4); vM = V(4); vT = V(8); vOPa = V(2); vQA = V(); vSTw = V(); vSTr = V(); vQg = V()
    vS = V(16); vAcc = vK; vQ = V(32); vKF = V(32); vVv = V(128)
    vA = vQ
    assert vKF == vQ + 32
    A("s_sub_u32 s33, s30, 4")
    def lin(dst, key, mask):
        a, b, sh = rt[key]
        A(f"s_mul_i32 {dst}, s32, {a}")
        if b: A(f"s_mul_i32 s35, s33, {b}"); A(f"s_add_u32 {dst}, {dst}, s35")
        A(f"s_bfe_u32 {dst}, {dst}, {hex((mask.bit_length() << 16) | sh)}")
    A("s_lshr_b32 s34, s2, 5"); A("s_lshl_b32 s34, s34, 3"); A("s_add_u32 s34, s34, s31"); A("s_lshl_b32 s34, s34, 4")
    A("s_and_b32 s35, s32, 3"); A("s_add_u32 s34, s34, s35"); A("s_add_u32 s34, s34, 12"); A("s_lshl_b32 s34, s34, 4")
    lin("s36", "t", 15)
    A("s_xor_b32 s36, s36, s33"); A("s_add_u32 s34, s34, s36"); A("s_lshl_b32 s40, s34, 13")
    lin("s36", "k", 7)
    def X(i): return ((8*(i & 1) + (i >> 1)) << 4) | (i << 10)
    A("s_and_b32 s38, s36, 1"); A("s_lshl_b32 s38, s38, 3"); A("s_lshr_b32 s39, s36, 1"); A("s_or_b32 s38, s38, s39")
    A("s_lshl_b32 s38, s38, 4"); A("s_lshl_b32 s36, s36, 10"); A("s_or_b32 s38, s38, s36")
    A("s_lshl_b32 s37, s33, 15"); A("s_or_b32 s44, s37, s36")
    A(f"v_lshrrev_b32 {vr(vT)}, 5, v0"); A(f"v_lshlrev_b32 {vr(vT)}, 6, {vr(vT)}")
    A(f"v_xor_b32 {vr(vT)}, {vr(vT)}, v3")
    A(f"v_xor_b32 {vr(vK)}, s38, {vr(vT)}")
    for i in range(1, 8): A(f"v_xor_b32 {vr(vK+i)}, {X(i)}, {vr(vK)}")
    A("s_mov_b32 s54, 0x8000000"); A("s_mov_b32 s55, 0x20000")
    A("s_mov_b32 m0, s44")
    A("s_waitcnt lgkmcnt(0)")
    A("s_mov_b32 s52, s6"); A("s_mov_b32 s53, s7")
    issued = [0]
    def throttle():
        if issued[0] >= W: A(f"s_waitcnt vmcnt({W-1})")
        issued[0] += 1
    def kload(tl, i):
        if tl or i: A(f"s_xor_b32 m0, s44, {(tl << 13) | (i << 10)}")
        throttle()
        A(f"buffer_load_dwordx4 {vr(vK+i)}, s[52:55], s{40+tl} offen {pol} lds")
    for i in range(8): kload(0, i)
    A("s_branch L_S2")

    A("L_T:")
    A.c("================ tail waves")
    V = Alloc(4, 250)
    vC = V(56); vWE = V(16); vWO = V(16); vRaw = V(32); vX = V(56); tT = V(24)
    vHa = V(); vYa = V(); vK1 = V(6); vLa = V(); vOa = V(); vPPa = V(); vBst = V(); vOst = V(); vLst = V(); vLse = V()
    vBa = V(2); vXr = V(4); vHw = V(); vHsw = V(); vOut = V(); vB2 = V(); vHf = V(2); vQs = V(3); vOPr = V(); vPPr = V(); vG = V(4)
    raw = vRaw
    def prep_loads():
        vT = tT + 12
        A.c("prep: MLP coefficients")
        A(f"v_and_b32 {vr(vT+4)}, 31, v0")
        A("s_mul_i32 s33, s30, 896")
        A(f"v_lshlrev_b32 {vr(vT+5)}, 4, {vr(vT+4)}"); A(f"v_add_u32 {vr(vT+5)}, s33, {vr(vT+5)}")
        A(f"v_lshlrev_b32 {vr(vT+6)}, 3, {vr(vT+4)}"); A(f"v_add_u32 {vr(vT+6)}, s33, {vr(vT+6)}")
        A(f"v_lshlrev_b32 {vr(vT+7)}, 2, {vr(vT+4)}"); A(f"v_add_u32 {vr(vT+7)}, s33, {vr(vT+7)}")
        for k, sp in enumerate((16, 18, 20)):
            A(f"global_load_dwordx4 {vr(raw+8*k,4)}, {vr(vT+5)}, s[{sp}:{sp+1}] {spol}")
            A(f"global_load_dwordx2 {vr(raw+8*k+4,2)}, {vr(vT+6)}, s[{sp}:{sp+1}] offset:512 {spol}")
            A(f"global_load_dword {vr(raw+8*k+6)}, {vr(vT+7)}, s[{sp}:{sp+1}] offset:768 {spol}")
        A(f"v_min_u32 {vr(vT+4)}, 27, {vr(vT+4)}")
        A("s_mul_i32 s33, s31, 896"); A("s_mul_i32 s34, s30, 224"); A("s_add_u32 s33, s33, s34")
        A(f"v_lshlrev_b32 {vr(vT+5)}, 3, {vr(vT+4)}"); A(f"v_add_u32 {vr(vT+5)}, s33, {vr(vT+5)}")
        A(f"global_load_dwordx2 {vr(vXr+2,2)}, {vr(vT+5)}, s[4:5] {spol}")
        A(f"v_mov_b32 {vr(vT+6)}, 0")
        A(f"global_load_ushort {vr(vB2)}, {vr(vT+6)}, s[22:23] {spol}")
    if "T" in skip:
        A("s_waitcnt lgkmcnt(0)"); A("s_barrier"); A("s_barrier"); A("s_branch L_b3")
    A("s_cmp_eq_u32 s30, 0"); A("s_cbranch_scc1 L_T0")
    A("s_cmp_eq_u32 s30, 3"); A("s_cbranch_scc1 L_T3")
    if pref:
        A("s_cmp_eq_u32 s30, 2"); A("s_cbranch_scc0 L_prepw")
        A.c("T2: pull the code into this XCD's L2")
        A("s_getpc_b64 s[34:35]")
        A("L_pc:")
        A(f"s_sub_u32 s34, s34, L_pc-{NAME}"); A("s_subb_u32 s35, s35, 0")
        A("s_lshl_b32 s33, s32, 9")
        A(f"v_lshlrev_b32 {vr(tT)}, 3, v0"); A(f"v_add_u32 {vr(tT)}, s33, {vr(tT)}")
        A(f"global_load_dwordx2 {vr(tT+2,2)}, {vr(tT)}, s[34:35]")
    A("s_branch L_prepw")
    A("L_T3:")
    A.c("T3: leader clears")
    A("s_and_b32 s33, s32, 30"); A("s_cmp_eq_u32 s33, 28"); A("s_cbranch_scc0 L_prepw")
    for i in range(4): A(f"v_mov_b32 {vr(tT+4+i)}, -1")
    A("s_getreg_b32 s34, hwreg(HW_REG_XCC_ID, 0, 4)")
    A("s_or_b32 s34, s34, 0x100")
    A("s_cmp_eq_u32 s32, 28"); A("s_cbranch_scc0 L_leadB")
    A("s_lshl_b32 s33, s31, 14"); A("s_add_u32 s33, s33, 4096"); A(f"v_add_u32 {vr(tT)}, s33, v3")
    A(f"v_add_u32 {vr(tT+1)}, 4096, {vr(tT)}")
    A("s_waitcnt lgkmcnt(0)")
    for i in range(8): A(f"global_store_dwordx4 {vr(tT)}, {vr(tT+4,4)}, s[28:29] offset:{1024*i-4096} sc1")
    A("s_mov_b64 exec, 0xffff")
    A(f"global_store_dwordx4 {vr(tT+1)}, {vr(tT+4,4)}, s[28:29] sc1")
    A("s_mov_b64 exec, -1")
    A("s_waitcnt vmcnt(0)")
    A("s_atomic_add s34, s[26:27], s63")
    stamp(1)
    A("s_branch L_prepw")
    A("L_T0:")
    A.c("T0: q projection")
    A(f"v_and_b32 {vr(tT)}, 7, v1"); A(f"v_mul_u32_u24 {vr(tT)}, 896, {vr(tT)}"); A(f"v_lshl_add_u32 {vr(tT)}, v2, 4, {vr(tT)}")
    A(f"v_lshrrev_b32 {vr(tT+1)}, 1, v0"); A(f"v_lshlrev_b32 {vr(tT+1)}, 13, {vr(tT+1)}")
    A(f"v_and_or_b32 {vr(tT+1)}, v3, 16, {vr(tT+1)}")
    A("s_lshl_b32 s33, s31, 10"); A(f"s_xor_b32 s34, s32, {qx}"); A("s_lshl_b32 s34, s34, 5"); A("s_add_u32 s33, s33, s34")
    A("s_mov_b32 s54, 0x380000"); A("s_mov_b32 s55, 0x20000")
    A("s_mov_b32 s36, 0x00ff00ff"); A("s_mov_b32 s37, s36")
    A(f"s_mov_b32 m0, {L_WQ}")
    A("s_waitcnt lgkmcnt(0)")
    A("s_mov_b32 s52, s10"); A("s_mov_b32 s53, s11")
    for t in range(14):
        if "q" not in skip: A(f"buffer_load_dwordx4 {vr(tT+1)}, s[52:55], s33 offen {qpol} lds")
        if t < 13: A("s_add_u32 m0, m0, 0x400"); A("s_add_u32 s33, s33, 0x40000")
    A("s_mov_b64 exec, s[36:37]")
    for t in range(14):
        A(f"global_load_dwordx4 {vr(vX+4*t,4)}, {vr(tT)}, s[4:5] offset:{64*t} {spol}")
    A("s_not_b64 exec, exec")
    A("s_mov_b32 s34, 0x3f803f80")
    for i in range(56): A(f"v_mov_b32 {vr(vX+i)}, s34")
    A("s_mov_b64 exec, -1")
    prep_loads()
    A.c("clear this workgroup's 1 KB share of the o hand-off buffer (acknowledged before q is published)")
    A("s_lshl_b32 s33, s31, 15"); A("s_lshl_b32 s34, s32, 10"); A("s_add_u32 s33, s33, s34"); A(f"s_add_u32 s33, s33, {W_O}")
    A(f"v_add_u32 {vr(tT+2)}, s33, v3")
    for i in range(4): A(f"v_mov_b32 {vr(vWE+i)}, -1")
    A(f"global_store_dwordx4 {vr(tT+2)}, {vr(vWE,4)}, s[28:29] sc1")
    A(f"v_lshlrev_b32 {vr(tT+2)}, 3, v1"); A(f"v_lshl_add_u32 {vr(tT+2)}, v2, 8, {vr(tT+2)}"); A(f"v_add_u32 {vr(tT+2)}, {L_WQ}, {vr(tT+2)}")
    A(f"v_bfe_u32 {vr(tT+3)}, v1, 2, 1"); A(f"v_lshl_add_u32 {vr(tT+3)}, {vr(tT+3)}, 4, v1"); A(f"v_lshlrev_b32 {vr(tT+3)}, 2, {vr(tT+3)}")
    A(f"v_lshlrev_b32 {vr(tT+4)}, 2, v1"); A(f"v_add_u32 {vr(tT+4)}, 128, {vr(tT+4)}")
    A(f"v_and_b32 {vr(tT+5)}, 3, v1")
    for i in range(1, 4): A(f"v_cmp_eq_u32 s[{38+2*i}:{39+2*i}], {i}, {vr(tT+5)}")
    A("s_waitcnt vmcnt(12)")
    stamp(1)
    D1 = tT + 8; D2 = tT + 12
    wf = vC
    for t0 in (0, 7):
        for t in range(t0, t0 + 7):
            A(f"ds_read_b64_tr_b16 {vr(wf+4*t,2)}, {vr(tT+2)} offset:{1024*t}")
            A(f"ds_read_b64_tr_b16 {vr(wf+4*t+2,2)}, {vr(tT+2)} offset:{1024*t+128}")
        for t in range(t0, t0 + 7):
            c = "0" if t == 0 else vr(D2, 4)
            A(f"v_mfma_f32_16x16x32_bf16 {vr(D2,4)}, {vr(vX+4*t,4)}, {vr(vX+4*t,4)}, {c}")
        A("s_waitcnt lgkmcnt(0)")
        for t in range(t0, t0 + 7):
            c = "0" if t == 0 else vr(D1, 4)
            A(f"v_mfma_f32_16x16x32_bf16 {vr(D1,4)}, {vr(wf+4*t,4)}, {vr(vX+4*t,4)}, {c}")
    for i in range(1, 4): A(f"v_cndmask_b32 {vr(D2)}, {vr(D2)}, {vr(D2+i)}, s[{38+2*i}:{39+2*i}]")
    A(f"ds_bpermute_b32 {vr(tT+6)}, {vr(tT+3)}, {vr(D2)}")
    A(f"ds_bpermute_b32 {vr(tT+7)}, {vr(tT+4)}, {vr(D2)}")
    A(f"s_mov_b32 s33, {f32(1.0/448)}")
    A("s_waitcnt lgkmcnt(0)")
    A(f"v_mul_f32 {vr(tT+7)}, s33, {vr(tT+7)}")
    A(f"v_mul_f32 {vr(tT+6)}, s33, {vr(tT+6)}")
    A(f"v_fma_f32 {vr(tT+6)}, -{vr(tT+7)}, {vr(tT+7)}, {vr(tT+6)}")
    A(f"v_max_f32 {vr(tT+6)}, 0, {vr(tT+6)}")
    A(f"v_add_f32 {vr(tT+6)}, {f32(1e-5)}, {vr(tT+6)}")
    A(f"v_rsq_f32 {vr(tT+6)}, {vr(tT+6)}")
    for i in range(4):
        A(f"v_mul_f32_dpp {vr(D2+i)}, {vr(D1+i)}, {vr(tT+7)} row_newbcast:8 row_mask:0xf bank_mask:0xf")
    for i in range(4):
        A(f"v_sub_f32 {vr(D1+i)}, {vr(D1+i)}, {vr(D2+i)}")
        A(f"v_mul_f32 {vr(D1+i)}, {vr(D1+i)}, {vr(tT+6)}")
    A(f"v_cvt_pk_bf16_f32 {vr(D1)}, {vr(D1)}, {vr(D1+1)}")
    A(f"v_cvt_pk_bf16_f32 {vr(D1+1)}, {vr(D1+2)}, {vr(D1+3)}")
    A(f"v_min_u32 {vr(D1)}, -2, {vr(D1)}"); A(f"v_min_u32 {vr(D1+1)}, -2, {vr(D1+1)}")
    stamp(2)
    A(f"v_mov_b32 {vr(vQs)}, {vr(D1)}"); A(f"v_mov_b32 {vr(vQs+1)}, {vr(D1+1)}")
    A("s_branch L_prep2")
    def ool_leadB():
        A("L_leadB:")
        A("s_mul_i32 s33, s31, 14336"); A(f"s_add_u32 s33, s33, {W_B + 4096}"); A(f"v_add_u32 {vr(tT)}, s33, v3")
        A(f"v_add_u32 {vr(tT+1)}, 8192, {vr(tT)}")
        A("s_add_u32 s33, s63, 160")
        A("s_waitcnt lgkmcnt(0)")
        for i in range(8): A(f"global_store_dwordx4 {vr(tT)}, {vr(tT+4,4)}, s[28:29] offset:{1024*i-4096} sc1")
        for i in range(6): A(f"global_store_dwordx4 {vr(tT+1)}, {vr(tT+4,4)}, s[28:29] offset:{1024*i-4096} sc1")
        A("s_waitcnt vmcnt(0)")
        A("s_atomic_add s34, s[26:27], s33")
        stamp(1)
        A("s_branch L_prepw")
    OOL.append(ool_leadB)

    A("L_S2:")
    for tl in range(1, 4): A(f"s_xor_b32 s{40+tl}, s40, {tl << 15}")
    A("s_mov_b32 s56, s8"); A("s_mov_b32 s57, s9"); A("s_mov_b32 s58, 0x8000000"); A("s_mov_b32 s59, 0x20000")
    lin("s60", "v", 3)
    lin("s61", "d", 1)
    A(f"v_lshlrev_b32 {vr(vT)}, 4, v1"); A(f"v_lshl_add_u32 {vr(vT)}, v2, 9, {vr(vT)}")
    A("s_lshl_b32 s35, s60, 11"); A("s_lshl_b32 s61, s61, 8"); A("s_or_b32 s35, s35, s61")
    A(f"v_or_b32 {vr(vVo)}, s35, {vr(vT)}")
    for e in range(1, 8): A(f"v_xor_b32 {vr(vVo+e)}, {((e >> 1) << 11) | ((e & 1) << 8)}, {vr(vVo)}")
    A(f"v_xor_b32 {vr(vT+3)}, s60, v1")
    A(f"v_and_b32 {vr(vT)}, 3, {vr(vT+3)}"); A(f"v_lshrrev_b32 {vr(vT+1)}, 2, v1")
    A(f"v_lshl_add_u32 {vr(vT+2)}, {vr(vT)}, 2, {vr(vT+1)}")
    A(f"v_xor_b32 {vr(vT+3)}, {vr(vT+3)}, v2")
    A(f"v_lshlrev_b32 {vr(vT+2)}, 9, {vr(vT+2)}"); A(f"v_add_u32 {vr(vT+2)}, s37, {vr(vT+2)}")
    A(f"v_lshl_add_u32 {vr(vKA)}, {vr(vT+3)}, 4, {vr(vT+2)}")
    for t in range(1, 4): A(f"v_xor_b32 {vr(vKA+t)}, {64*t}, {vr(vKA)}")
    A("s_lshl_b32 s35, s31, 14"); A("s_lshr_b32 s36, s32, 2"); A("s_lshl_b32 s36, s36, 10"); A("s_add_u32 s35, s35, s36")
    A(f"v_add_u32 {vr(vQg)}, s35, v3")
    A("s_lshl_b32 s45, s33, 10"); A(f"s_add_u32 s45, s45, {L_Q}")
    A(f"v_lshrrev_b32 {vr(vT)}, 3, v1")
    A(f"v_lshlrev_b32 {vr(vQA)}, 9, {vr(vT)}"); A(f"v_lshl_add_u32 {vr(vQA)}, v2, 4, {vr(vQA)}")
    A(f"v_add_u32 {vr(vQA)}, s45, {vr(vQA)}")
    A(f"v_lshlrev_b32 {vr(vSTr)}, 5, {vr(vT)}"); A(f"v_add_u32 {vr(vSTr)}, {L_STAT}, {vr(vSTr)}")
    A("s_lshl_b32 s35, s33, 2"); A(f"v_add_u32 {vr(vSTw)}, s35, {vr(vSTr)}")
    A(f"v_and_b32 {vr(vT)}, 16, v3")
    A(f"v_mov_b32 {vr(vT+1)}, 0xffff"); A(f"v_lshlrev_b32 {vr(vT+1)}, {vr(vT)}, {vr(vT+1)}")
    A(f"v_bfe_u32 {vr(vT)}, v1, 1, 2")
    for i in range(4):
        A(f"v_cmp_eq_u32 vcc, {i}, {vr(vT)}")
        A(f"v_cndmask_b32 {vr(vM+i)}, 0, {vr(vT+1)}, vcc")
    A(f"v_and_b32 {vr(vT)}, 1, v2"); A(f"v_lshlrev_b32 {vr(vT)}, 10, {vr(vT)}")
    A(f"v_lshrrev_b32 {vr(vT+1)}, 1, v2"); A(f"v_lshl_add_u32 {vr(vT)}, {vr(vT+1)}, 9, {vr(vT)}")
    A(f"v_lshl_add_u32 {vr(vT)}, v1, 4, {vr(vT)}")
    A("s_lshl_b32 s35, s33, 11"); A(f"s_add_u32 s35, s35, {L_OP}")
    for dh in range(2):
        A(f"s_xor_b32 s38, s61, {dh << 8}"); A("s_add_u32 s38, s38, s35")
        A(f"v_add_u32 {vr(vOPa+dh)}, s38, {vr(vT)}")
    nv = [0]
    def more(k):
        for _ in range(k):
            if nv[0] < 32:
                idx = nv[0]; tl, e = idx >> 3, idx & 7
                throttle()
                A(f"buffer_load_dwordx4 {vr(vVv+4*idx,4)}, {vr(vVo+e)}, s[56:59], s{40+tl} offen {pol}")
                nv[0] += 1
    for tl in range(1, 4):
        for i in range(8):
            kload(tl, i)
    more(QPOS)
    stamp(6)
    A("s_barrier")
    stamp(7)
    throttle()
    A(f"global_load_dwordx4 {vr(vS,4)}, {vr(vQg)}, s[28:29] sc1")
    more(W - 1)
    A(f"s_waitcnt vmcnt({W-1})")
    stamp(1)
    A("s_mov_b32 s35, 0")
    A("L_qchk:")
    A(f"v_max3_u32 {vr(vT)}, {vr(vS)}, {vr(vS+1)}, {vr(vS+2)}"); A(f"v_max_u32 {vr(vT)}, {vr(vT)}, {vr(vS+3)}")
    A(f"v_cmp_eq_u32 vcc, -1, {vr(vT)}")
    A(f"v_add_u32 {vr(vT)}, s45, v3")
    if "T" not in skip: A("s_cbranch_vccnz L_qretry")
    A("L_qok:")
    def ool_q():
        A("L_qretry:")
        A("s_add_u32 s35, s35, 1")
        A(f"s_cmp_ge_u32 s35, {SPIN}")
        A("s_cbranch_scc1 L_qok")
        A(f"global_load_dwordx4 {vr(vS,4)}, {vr(vQg)}, s[28:29] sc1")
        A("s_waitcnt vmcnt(0)")
        A("s_branch L_qchk")
    OOL.append(ool_q)
    A(f"ds_write_b128 {vr(vT)}, {vr(vS,4)}")
    stamp(2)
    more(1)
    for t in range(8):
        A(f"ds_read_b128 {vr(vQ+4*t,4)}, {vr(vQA)} offset:{64*t}")
    for tl in range(4):
        for t in range(8):
            A(f"ds_read_b128 {vr(vKF+4*t,4)}, {vr(vKA+(t&3))} offset:{tl*8192 + (t>>2)*256}")
        for t in range(8):
            A(f"s_waitcnt lgkmcnt({7-t})")
            c = "0" if t == 0 else vr(vS+4*tl, 4)
            A(f"v_mfma_f32_16x16x32_bf16 {vr(vS+4*tl,4)}, {vr(vKF+4*t,4)}, {vr(vQ+4*t,4)}, {c}")
        more(1)
    SC = math.log2(math.e) / 16.0
    A(f"s_mov_b32 s35, {f32(SC)}")
    mx = vT; cp = vT + 1; ls = vT + 2
    A(f"v_max3_f32 {vr(mx)}, {vr(vS)}, {vr(vS+1)}, {vr(vS+2)}")
    for i in range(3, 15, 2):
        A(f"v_max3_f32 {vr(mx)}, {vr(mx)}, {vr(vS+i)}, {vr(vS+i+1)}")
    A(f"v_max_f32 {vr(mx)}, {vr(mx)}, {vr(vS+15)}")
    def xg(x, op):
        for sw in ("v_permlane32_swap_b32", "v_permlane16_swap_b32"):
            A(f"v_mov_b32 {vr(cp)}, {vr(x)}")
            A(f"{sw} {vr(x)}, {vr(cp)}")
            A(f"{op} {vr(x)}, {vr(x)}, {vr(cp)}")
    xg(mx, "v_max_f32")
    A(f"v_mul_f32 {vr(mx)}, s35, {vr(mx)}")
    for i in range(16):
        A(f"v_fma_f32 {vr(vS+i)}, {vr(vS+i)}, s35, -{vr(mx)}")
    for i in range(16):
        A(f"v_exp_f32 {vr(vS+i)}, {vr(vS+i)}")
    A(f"v_add_f32 {vr(ls)}, {vr(vS)}, {vr(vS+1)}")
    for i in range(2, 16):
        A(f"v_add_f32 {vr(ls)}, {vr(ls)}, {vr(vS+i)}")
    xg(ls, "v_add_f32")
    A(f"ds_write2_b32 {vr(vSTw)}, {vr(mx)}, {vr(ls)} offset0:0 offset1:4")
    more(1)
    A("s_waitcnt lgkmcnt(0)")
    A("s_barrier")
    stamp(3)
    def stats(m4, l4, M, Lr):
        A(f"v_max3_f32 {vr(M)}, {vr(m4)}, {vr(m4+1)}, {vr(m4+2)}"); A(f"v_max_f32 {vr(M)}, {vr(M)}, {vr(m4+3)}")
        for i in range(4): A(f"v_sub_f32 {vr(m4+i)}, {vr(m4+i)}, {vr(M)}")
        for i in range(4): A(f"v_exp_f32 {vr(m4+i)}, {vr(m4+i)}")
        A(f"v_mul_f32 {vr(Lr)}, {vr(m4)}, {vr(l4)}")
        for i in range(1, 4): A(f"v_fmac_f32 {vr(Lr)}, {vr(m4+i)}, {vr(l4+i)}")
    A(f"ds_read_b128 {vr(vAcc,4)}, {vr(vSTr)}")
    A(f"ds_read_b128 {vr(vAcc+4,4)}, {vr(vSTr)} offset:16")
    more(1)
    A("s_waitcnt lgkmcnt(0)")
    stats(vAcc, vAcc + 4, vT + 3, vT + 4)
    A(f"v_sub_f32 {vr(mx)}, {vr(mx)}, {vr(vT+3)}")
    A(f"v_exp_f32 {vr(mx)}, {vr(mx)}")
    A(f"v_rcp_f32 {vr(vT+4)}, {vr(vT+4)}")
    A(f"v_mul_f32 {vr(mx)}, {vr(mx)}, {vr(vT+4)}")
    for i in range(16):
        A(f"v_mul_f32 {vr(vS+i)}, {vr(vS+i)}, {vr(mx)}")
        A(f"v_cvt_pk_bf16_f32 {vr(vS+i)}, {vr(vS+i)}, {vr(vS+i)}")
        for k in range(4):
            A(f"v_and_b32 {vr(vA+4*i+k)}, {vr(vS+i)}, {vr(vM+k)}")
        if i % 8 == 7: more(1)
    stamp(4)
    done = 0
    def pv(idx):
        i, dh = idx >> 1, idx & 1
        c = "0" if i == 0 else vr(vAcc+4*dh, 4)
        A(f"v_mfma_f32_16x16x32_bf16 {vr(vAcc+4*dh,4)}, {vr(vA+4*i,4)}, {vr(vVv+4*idx,4)}, {c}")
    while nv[0] < 32:
        more(1)
        lim = min(nv[0] - W, done + 3)
        while done < lim: pv(done); done += 1
    while done < 32:
        if 31 - done < W: A(f"s_waitcnt vmcnt({31-done})")
        pv(done); done += 1
    for dh in range(2):
        A(f"ds_write_b128 {vr(vOPa+dh)}, {vr(vAcc+4*dh,4)}")
    stamp(5)
    A("s_waitcnt lgkmcnt(0)")
    A("s_barrier")
    dump_stamps(8)
    A("s_endpgm")

    vT = tT
    A("L_prepw:")
    A("s_waitcnt lgkmcnt(0)")
    A("L_prep:")
    prep_loads()
    A("L_prep2:")
    A(f"v_and_b32 {vr(vT+4)}, 31, v0"); A(f"v_min_u32 {vr(vT+4)}, 27, {vr(vT+4)}")
    def wo_loads():
        A("s_cmp_ge_u32 s32, 28" if "o" not in skip else "s_cmp_ge_u32 s32, 0"); A("s_cbranch_scc1 L_nowo")
        A("s_lshl_b32 s33, s31, 9"); A("s_lshl_b32 s34, s30, 7"); A("s_add_u32 s33, s33, s34"); A("s_add_u32 s33, s33, 4")
        A("s_mul_i32 s33, s33, 896"); A("s_lshr_b32 s34, s32, 1"); A("s_lshl_b32 s34, s34, 6"); A("s_add_u32 s33, s33, s34")
        A(f"v_mul_u32_u24 {vr(vT+23)}, {8*896}, v2"); A(f"v_lshl_add_u32 {vr(vT+23)}, v1, 2, {vr(vT+23)}"); A(f"v_add_u32 {vr(vT+23)}, s33, {vr(vT+23)}")
        for tt in range(4):
            for jj in range(8):
                if opace and 8*tt+jj >= opace: A(f"s_waitcnt vmcnt({opace-1})")
                A(f"global_load_dword {vr(vRaw+8*tt+jj)}, {vr(vT+23)}, s[12:13] offset:{(jj-4)*896} {opol}")
            if tt < 3: A(f"v_add_u32 {vr(vT+23)}, {32*896}, {vr(vT+23)}")
        A("L_nowo:")
    A.c("tail constants")
    A("s_mul_i32 s33, s31, 14336"); A("s_mul_i32 s34, s30, 448"); A("s_add_u32 s33, s33, s34"); A(f"s_add_u32 s33, s33, {W_B}")
    A(f"v_lshrrev_b32 {vr(vT+6)}, 5, v0")
    A(f"v_mul_u32_u24 {vr(vBa)}, 1792, {vr(vT+6)}"); A(f"v_lshl_add_u32 {vr(vBa)}, {vr(vT+4)}, 4, {vr(vBa)}"); A(f"v_add_u32 {vr(vBa)}, s33, {vr(vBa)}")
    A(f"v_add_u32 {vr(vBa+1)}, {4*1792}, {vr(vBa)}")
    A(f"s_add_u32 s34, s34, {L_H}")
    A(f"v_lshlrev_b32 {vr(vHw)}, 4, {vr(vT+4)}"); A(f"v_lshl_add_u32 {vr(vHw)}, {vr(vT+6)}, 3, {vr(vHw)}"); A(f"v_add_u32 {vr(vHw)}, s34, {vr(vHw)}")
    A("s_lshl_b32 s34, s30, 2"); A(f"s_add_u32 s34, s34, {L_HS}")
    A(f"v_lshlrev_b32 {vr(vHsw)}, 4, {vr(vT+6)}"); A(f"v_add_u32 {vr(vHsw)}, s34, {vr(vHsw)}")
    A(f"v_and_b32 {vr(vT+7)}, 31, v0"); A(f"v_cmp_gt_u32 vcc, 28, {vr(vT+7)}"); A(f"v_cndmask_b32 {vr(vK1+5)}, 0, 1.0, vcc")
    A("s_mul_i32 s33, s32, 56"); A(f"s_add_u32 s33, s33, {L_H}")
    ii = vT + 8; hf = vT + 9; col = vT + 10
    A(f"v_bfe_u32 {vr(ii)}, v0, 3, 1"); A(f"v_and_b32 {vr(hf)}, 3, v0"); A(f"v_lshl_add_u32 {vr(ii)}, {vr(ii)}, 2, {vr(hf)}")
    A(f"v_bfe_u32 {vr(hf)}, v0, 2, 1")
    A(f"v_min_u32 {vr(col)}, 6, {vr(ii)}"); A(f"v_mad_u32_u24 {vr(col)}, {vr(hf)}, 7, {vr(col)}")
    A(f"v_lshlrev_b32 {vr(vHa)}, 2, {vr(col)}"); A(f"v_add_u32 {vr(vHa)}, s33, {vr(vHa)}")
    A(f"v_cmp_eq_u32 vcc, 7, {vr(ii)}"); A(f"v_cndmask_b32 {vr(vT+11)}, v2, 3, vcc")
    A(f"v_mov_b32 {vr(vT+12)}, 0x3f803f80")
    A(f"v_cmp_eq_u32 vcc, 2, {vr(vT+11)}"); A(f"v_cndmask_b32 {vr(vK1)}, 0, 1.0, vcc")
    A(f"v_cmp_eq_u32 vcc, 0, {vr(vT+11)}"); A(f"v_cndmask_b32 {vr(vK1+1)}, 0, 1.0, vcc")
    A(f"v_cndmask_b32 {vr(vK1+3)}, 0, {vr(vT+12)}, vcc")
    A(f"v_cmp_eq_u32 vcc, 1, {vr(vT+11)}"); A(f"v_cndmask_b32 {vr(vK1+2)}, 0, 1.0, vcc")
    A(f"v_cndmask_b32 {vr(vK1+4)}, 0, {vr(vT+12)}, vcc")
    A(f"v_min_u32 {vr(col)}, 6, v0"); A(f"v_lshlrev_b32 {vr(vHf)}, 3, {vr(col)}"); A(f"v_add_u32 {vr(vHf)}, s33, {vr(vHf)}")
    A("s_mul_i32 s33, s31, 896"); A("s_mul_i32 s34, s32, 28"); A("s_add_u32 s33, s33, s34")
    A(f"v_lshlrev_b32 {vr(vOut)}, 2, {vr(col)}"); A(f"v_add_u32 {vr(vOut)}, s33, {vr(vOut)}")
    A(f"v_bfe_u32 {vr(ii)}, v0, 2, 1"); A(f"v_bfe_u32 {vr(hf)}, v0, 3, 1"); A(f"v_lshl_add_u32 {vr(ii)}, {vr(ii)}, 1, {vr(hf)}")
    A(f"v_bfe_u32 {vr(hf)}, v0, 4, 1"); A(f"v_lshl_add_u32 {vr(ii)}, {vr(hf)}, 2, {vr(ii)}")
    A(f"v_mad_u32_u24 {vr(hf)}, {vr(vT+6)}, 7, {vr(ii)}")
    A(f"v_cmp_eq_u32 vcc, 7, {vr(ii)}"); A(f"v_cndmask_b32 {vr(hf)}, {vr(hf)}, 15, vcc")
    A("s_lshl_b32 s34, s30, 6"); A(f"s_add_u32 s34, s34, {L_Y}")
    A(f"v_lshlrev_b32 {vr(vYa)}, 2, {vr(hf)}"); A(f"v_add_u32 {vr(vYa)}, s34, {vr(vYa)}")
    A("s_lshl_b32 s33, s31, 14"); A("s_add_u32 s33, s33, 8192"); A("s_lshr_b32 s34, s30, 1"); A("s_lshl_b32 s34, s34, 7"); A("s_add_u32 s34, s34, s33")
    A("s_and_b32 s35, s32, 1"); A("s_lshl_b32 s36, s35, 6"); A("s_add_u32 s34, s34, s36")
    A(f"v_lshlrev_b32 {vr(vLa)}, 4, v2"); A(f"v_add_u32 {vr(vLa)}, s34, {vr(vLa)}")
    A("s_lshl_b32 s34, s32, 2"); A("s_add_u32 s34, s34, s33")
    A(f"v_lshlrev_b32 {vr(vLst)}, 7, v0"); A(f"v_add_u32 {vr(vLst)}, s34, {vr(vLst)}")
    A("s_lshl_b32 s33, s31, 15"); A(f"s_add_u32 s33, s33, {W_O}")
    A("s_lshl_b32 s34, s35, 14"); A("s_add_u32 s34, s34, s33"); A("s_lshl_b32 s36, s30, 12"); A("s_add_u32 s34, s34, s36")
    A(f"v_add_u32 {vr(vOa)}, s34, v3")
    A("s_lshr_b32 s34, s32, 4"); A("s_lshl_b32 s34, s34, 14"); A("s_add_u32 s34, s34, s33"); A("s_and_b32 s36, s32, 15"); A("s_lshl_b32 s36, s36, 4"); A("s_add_u32 s34, s34, s36")
    A("s_lshl_b32 s36, s30, 12"); A("s_add_u32 s34, s34, s36")
    A(f"v_lshlrev_b32 {vr(vOst)}, 8, v1"); A(f"v_lshl_add_u32 {vr(vOst)}, v2, 2, {vr(vOst)}"); A(f"v_add_u32 {vr(vOst)}, s34, {vr(vOst)}")
    A("s_lshl_b32 s34, s30, 8"); A(f"s_add_u32 s34, s34, {L_OP}")
    A(f"v_lshlrev_b32 {vr(vOPr)}, 11, v2"); A(f"v_lshl_add_u32 {vr(vOPr)}, v1, 4, {vr(vOPr)}"); A(f"v_add_u32 {vr(vOPr)}, s34, {vr(vOPr)}")
    A("s_lshl_b32 s34, s30, 7"); A(f"s_add_u32 s34, s34, {L_PP}")
    A(f"v_lshlrev_b32 {vr(vPPr)}, 3, v1"); A(f"v_add_u32 {vr(vPPr)}, s34, {vr(vPPr)}")
    A(f"v_lshlrev_b32 {vr(vQs+2)}, 10, v1"); A(f"v_lshl_add_u32 {vr(vQs+2)}, v2, 3, {vr(vQs+2)}")
    A("s_lshl_b32 s33, s31, 14"); A(f"s_xor_b32 s34, s32, {qx}"); A("s_lshl_b32 s34, s34, 5"); A("s_add_u32 s33, s33, s34"); A(f"v_add_u32 {vr(vQs+2)}, s33, {vr(vQs+2)}")
    A("s_lshl_b32 s34, s30, 9"); A(f"s_add_u32 s34, s34, {L_PP}")
    A(f"v_lshlrev_b32 {vr(vPPa)}, 3, v0"); A(f"v_add_u32 {vr(vPPa)}, s34, {vr(vPPa)}")
    A("s_lshl_b32 s34, s35, 2"); A("s_add_u32 s60, s34, s30")
    A("s_lshl_b32 s34, s60, 3"); A("s_add_u32 s34, s34, s31"); A("s_mul_i32 s34, s34, 1792")
    A("s_lshr_b32 s36, s32, 1"); A("s_min_u32 s36, s36, 13"); A("s_lshl_b32 s36, s36, 7")
    A("s_add_u32 s34, s34, s36"); A(f"s_add_u32 s34, s34, {W_B}")
    A(f"v_lshlrev_b32 {vr(vBst)}, 3, v1"); A(f"v_add_u32 {vr(vBst)}, s34, {vr(vBst)}")
    for i in range(4): A(f"v_mov_b32 {vr(vG+i)}, 0")
    A(f"s_mov_b32 s39, {f32(1.0/64)}")
    A(f"s_mov_b32 s33, {f32(BETA)}"); A(f"s_mov_b32 s34, {f32(3*BETA)}"); A("s_mov_b32 s38, 0xffff0000")
    A("v_cmp_lt_u32 vcc, 31, v0")
    A("s_waitcnt vmcnt(0)")
    A(f"v_mov_b32 {vr(vT)}, {f32(ALPHA)}")
    A(f"v_cndmask_b32 {vr(vXr+2)}, {vr(vXr+2)}, {vr(vXr+3)}, vcc")
    A(f"v_lshlrev_b32 {vr(vXr)}, 16, {vr(vXr+2)}"); A(f"v_and_b32 {vr(vXr+1)}, s38, {vr(vXr+2)}")
    A(f"v_lshlrev_b32 {vr(vB2)}, 16, {vr(vB2)}")
    w, b, u, bb, c0, c1, c2, c3, ca, cc, hi = (vT + 1 + i for i in range(11))
    def publish_q():
        A("s_cmp_eq_u32 s30, 0"); A("s_cbranch_scc0 L_nopub")
        A("s_getreg_b32 s47, hwreg(HW_REG_XCC_ID, 0, 4)")
        A("s_or_b32 s47, s47, 0x100")
        A("s_waitcnt lgkmcnt(0)")
        A("s_cmp_eq_u32 s46, s47")
        A("s_cbranch_scc0 L_f1slow")
        A("L_same:")
        A("s_mov_b32 exec_lo, 0x00ff00ff"); A("s_mov_b32 exec_hi, 0x00ff00ff")
        A(f"global_store_dwordx2 {vr(vQs+2)}, {vr(vQs,2)}, s[28:29] sc1")
        A("s_mov_b64 exec, -1")
        stamp(3)
        A("L_nopub:")
        def ool():
            A("L_f1slow:")
            A(f"v_mov_b32 {vr(vT+20)}, s63")
            A("s_mov_b32 s35, 0")
            A("L_f1l:")
            A("s_cmp_lg_u32 s46, 0")
            A("s_cbranch_scc1 L_f1d")
            A(f"global_load_dword {vr(vT+21)}, {vr(vT+20)}, s[26:27] sc1")
            A("s_add_u32 s35, s35, 1")
            A("s_waitcnt vmcnt(0)")
            A(f"v_readfirstlane_b32 s46, {vr(vT+21)}")
            A(f"s_cmp_lt_u32 s35, {SPIN}")
            A("s_cbranch_scc1 L_f1l")
            A("L_f1d:")
            A("s_cmp_eq_u32 s46, s47")
            A("s_cbranch_scc1 L_same")
            A("s_add_u32 s46, s63, 128"); A("s_mov_b32 s47, 1")
            A("s_atomic_add s47, s[26:27], s46 glc")
            A("s_waitcnt lgkmcnt(0)")
            A("s_branch L_same")
        OOL.append(ool)
    for tile in range(14):
        if tile == FT:
            A("s_cmp_eq_u32 s30, 0"); A("s_cbranch_scc0 L_nofl")
            A("s_load_dword s46, s[26:27], s63")
            A("L_nofl:")
        if tile == FT + 4: publish_q()
        for k, d in enumerate((w, b, u)):
            src = raw + 8*k + (tile >> 1)
            if tile & 1: A(f"v_and_b32 {vr(d)}, s38, {vr(src)}")
            else: A(f"v_lshlrev_b32 {vr(d)}, 16, {vr(src)}")
        A(f"v_mul_f32 {vr(bb)}, {vr(b)}, {vr(b)}")
        A(f"v_fma_f32 {vr(c0)}, {vr(bb)}, s33, {vr(vT)}"); A(f"v_mul_f32 {vr(c0)}, {vr(c0)}, {vr(b)}")
        A(f"v_fma_f32 {vr(c1)}, {vr(bb)}, s34, {vr(vT)}"); A(f"v_mul_f32 {vr(c1)}, {vr(c1)}, {vr(w)}")
        A(f"v_mul_f32 {vr(bb)}, {vr(w)}, {vr(w)}")
        A(f"v_mul_f32 {vr(c2)}, s34, {vr(bb)}"); A(f"v_mul_f32 {vr(c2)}, {vr(c2)}, {vr(b)}")
        A(f"v_mul_f32 {vr(c3)}, s33, {vr(bb)}"); A(f"v_mul_f32 {vr(c3)}, {vr(c3)}, {vr(w)}")
        A(f"v_mul_f32 {vr(ca)}, {vr(w)}, {vr(u)}"); A(f"v_mul_f32 {vr(cc)}, {vr(b)}, {vr(u)}")
        for k, cx in enumerate((c0, c1, c2, c3)): A(f"v_add_f32 {vr(vG+k)}, |{vr(cx)}|, {vr(vG+k)}")
        A(f"v_fma_f32 {vr(vG)}, |{vr(cc)}|, s39, {vr(vG)}"); A(f"v_fma_f32 {vr(vG+1)}, |{vr(ca)}|, s39, {vr(vG+1)}")
        for k, (lo_, hi_) in enumerate(((c1, c2), (c0, c2), (ca, c3), (cc, c3))):
            A(f"v_cndmask_b32 {vr(lo_)}, {vr(lo_)}, {vr(hi_)}, vcc")
            A(f"v_cvt_pk_bf16_f32 {vr(hi)}, {vr(lo_)}, {vr(lo_)}")
            A(f"v_and_b32 {vr(hi)}, s38, {vr(hi)}")
            A(f"v_sub_f32 {vr(lo_)}, {vr(lo_)}, {vr(hi)}")
            A(f"v_cvt_pk_bf16_f32 {vr(vC+4*tile+k)}, {vr(hi)}, {vr(lo_)}")
    if FT + 4 >= 14: publish_q()
    A.c("largest |hn| for which the fused gelu path can neither overflow nor lose precision")
    A("s_mov_b32 s59, -1.0"); A(f"s_mov_b32 s34, {f32(100.0)}")
    for H in (3.0, 4.0, 5.0, 6.0, 8.0, 12.0, 22.0):
        A(f"s_mov_b32 s33, {f32(H)}")
        A(f"v_fma_f32 {vr(vT+1)}, {vr(vG+3)}, s33, {vr(vG+2)}"); A(f"v_fma_f32 {vr(vT+1)}, {vr(vT+1)}, s33, {vr(vG+1)}")
        A(f"v_fma_f32 {vr(vT+1)}, {vr(vT+1)}, s33, {vr(vG)}")
        A(f"v_cmp_nge_f32 vcc, s34, {vr(vT+1)}")
        A("s_cmp_eq_u64 vcc, 0"); A("s_cselect_b32 s59, s33, s59")
    if force_fb: A("s_mov_b32 s59, -1.0")
    stamp(4)
    if opos == "early": wo_loads()
    A("s_barrier")
    if opos == "mid": wo_loads()
    A(f"v_lshlrev_b32 {vr(vT+20)}, 2, v1")
    A("s_barrier")
    A(f"global_load_dword {vr(vT+21)}, {vr(vT+20)}, s[26:27] offset:128 sc1")
    if touch: A(f"global_load_dword {vr(vT+22)}, {vr(vOut)}, s[24:25]")
    if opos == "late": wo_loads()
    A(f"v_and_b32 {vr(vT)}, 1, v0"); A(f"v_lshlrev_b32 {vr(vT)}, 5, {vr(vT)}"); A(f"v_add_u32 {vr(vT)}, {L_STAT}, {vr(vT)}")
    A(f"ds_read_b128 {vr(vT+4,4)}, {vr(vT)}")
    A(f"ds_read_b128 {vr(vT+8,4)}, {vr(vT)} offset:16")
    A("s_waitcnt lgkmcnt(0)")
    stats(vT + 4, vT + 8, vT + 1, vT + 2)
    A(f"v_log_f32 {vr(vT+2)}, {vr(vT+2)}")
    A(f"v_add_f32 {vr(vLse)}, {vr(vT+1)}, {vr(vT+2)}")
    A(f"v_min_u32 {vr(vLse)}, -2, {vr(vLse)}")
    A("s_mov_b32 s35, 0")
    A("L_f2:")
    A("s_waitcnt vmcnt(0)")
    A(f"v_cmp_ne_u32 vcc, 0, {vr(vT+21)}")
    A("s_bfe_u32 s33, vcc_lo, 0x80008")
    A("s_cmp_eq_u32 s33, 0xff")
    A("s_cbranch_scc0 L_f2r")
    A("L_f2d:")
    def ool_f2():
        A("L_f2r:")
        A("s_add_u32 s35, s35, 1")
        A(f"s_cmp_ge_u32 s35, {SPIN}")
        A("s_cbranch_scc1 L_f2d")
        A(f"global_load_dword {vr(vT+21)}, {vr(vT+20)}, s[26:27] offset:128 sc1")
        A("s_branch L_f2")
    OOL.append(ool_f2)
    A("s_lshr_b32 s62, vcc_lo, s31"); A("s_and_b32 s62, s62, 1")
    if force_slow: A("s_mov_b32 s62, 1")
    A("s_cmp_eq_u32 s30, 1"); A("s_cbranch_scc0 L_nolse")
    A("s_mov_b64 exec, 3")
    A("s_cmp_eq_u32 s62, 0"); A("s_cbranch_scc0 L_slowlse")
    A(f"global_store_dword {vr(vLst)}, {vr(vLse)}, s[28:29]")
    A("L_lsed:")
    A("s_mov_b64 exec, -1")
    A("L_nolse:")
    def ool_lse():
        A("L_slowlse:")
        A(f"global_store_dword {vr(vLst)}, {vr(vLse)}, s[28:29] sc1")
        A("s_branch L_lsed")
    OOL.append(ool_lse)
    A("s_cmp_eq_u32 s60, s31"); A("s_cselect_b32 s61, 1, 0"); A("s_andn2_b32 s61, s61, s62")
    A("s_cmp_ge_u32 s32, 28"); A("s_cselect_b32 s61, 2, s61")
    A("s_mov_b32 s33, 0x05040100"); A("s_mov_b32 s34, 0x07060302")
    for tt in range(4):
        for i in range(4):
            lo_, hi_ = vRaw + 8*tt + 2*i, vRaw + 8*tt + 2*i + 1
            A(f"v_perm_b32 {vr(vWE+4*tt+i)}, {vr(hi_)}, {vr(lo_)}, s33")
            A(f"v_perm_b32 {vr(vWO+4*tt+i)}, {vr(hi_)}, {vr(lo_)}, s34")
    A(f"s_mov_b32 s36, {f32(1.0 + 1e-5)}"); A(f"s_mov_b32 s37, {f32(1.0/448)}"); A("s_mov_b32 s38, 0xffff0000")
    A("s_mov_b32 s40, 0x80000000"); A("s_mov_b32 s41, 0x80000000")
    A("s_mov_b32 s35, 0")
    A("s_cmp_eq_u32 s62, 0")
    stamp(3) if False else None
    A("L_b3:")
    A("s_barrier")
    stamp(5)
    if "E" in skip: A("s_branch L_fin")
    A.c("reduce the four stream waves' o partials, publish as bf16")
    o = vX
    A(f"ds_read_b128 {vr(o,4)}, {vr(vOPr)}")
    A(f"ds_read_b128 {vr(o+4,4)}, {vr(vOPr)} offset:1024")
    A("s_waitcnt lgkmcnt(0)")
    for i in range(4): A(f"v_permlane32_swap_b32 {vr(o+i)}, {vr(o+4+i)}")
    A(f"v_pk_add_f32 {vr(o,2)}, {vr(o,2)}, {vr(o+4,2)}"); A(f"v_pk_add_f32 {vr(o+2,2)}, {vr(o+2,2)}, {vr(o+6,2)}")
    for i in range(2): A(f"v_permlane16_swap_b32 {vr(o+i)}, {vr(o+2+i)}")
    A(f"v_pk_add_f32 {vr(o,2)}, {vr(o,2)}, {vr(o+2,2)}")
    A(f"v_cvt_pk_bf16_f32 {vr(o)}, {vr(o)}, {vr(o+1)}")
    A(f"v_min_u32 {vr(o)}, -2, {vr(o)}")
    A("s_cbranch_scc0 L_slowpub")
    A(f"global_store_dword {vr(vOst)}, {vr(o)}, s[28:29]")
    A("L_pubd:")
    def ool_pub():
        A("L_slowpub:")
        A(f"global_store_dword {vr(vOst)}, {vr(o)}, s[28:29] sc1")
        A("s_branch L_pubd")
    OOL.append(ool_pub)
    stamp(6)
    A.c("out projection")
    ls4 = vT + 4; oa = vRaw; DE = vT + 8; DO = vT + 12; ck = vT + 1
    A("L_apoll:")
    A(f"global_load_dwordx4 {vr(ls4,4)}, {vr(vLa)}, s[28:29] sc1")
    for tt in range(4):
        A(f"global_load_dwordx4 {vr(oa+4*tt,4)}, {vr(vOa)}, s[28:29] offset:{1024*tt} sc1")
    A("s_add_u32 s35, s35, 1")
    A(f"s_cmp_ge_u32 s35, {SPIN}")
    A("s_waitcnt vmcnt(4)")
    A(f"v_max3_u32 {vr(ck)}, {vr(ls4)}, {vr(ls4+1)}, {vr(ls4+2)}"); A(f"v_max_u32 {vr(ck)}, {vr(ck)}, {vr(ls4+3)}")
    A(f"v_max3_f32 {vr(vT+2)}, {vr(ls4)}, {vr(ls4+1)}, {vr(ls4+2)}"); A(f"v_max_f32 {vr(vT+2)}, {vr(vT+2)}, {vr(ls4+3)}")
    for i in range(4): A(f"v_sub_f32 {vr(ls4+i)}, {vr(ls4+i)}, {vr(vT+2)}")
    for i in range(4): A(f"v_exp_f32 {vr(ls4+i)}, {vr(ls4+i)}")
    extra = [[f"v_add_f32 {vr(vT+2)}, {vr(ls4)}, {vr(ls4+1)}", f"v_add_f32 {vr(vT+3)}, {vr(ls4+2)}, {vr(ls4+3)}"],
             [f"v_add_f32 {vr(vT+2)}, {vr(vT+2)}, {vr(vT+3)}", f"v_rcp_f32 {vr(vT+2)}, {vr(vT+2)}"],
             [f"v_mul_f32 {vr(ls4+i)}, {vr(ls4+i)}, {vr(vT+2)}" for i in range(4)], []]
    for tt in range(4):
        A(f"s_waitcnt vmcnt({3-tt})")
        for D, Wf in ((DE, vWE), (DO, vWO)):
            c = "0" if tt == 0 else vr(D, 4)
            A(f"v_mfma_f32_16x16x32_bf16 {vr(D,4)}, {vr(oa+4*tt,4)}, {vr(Wf+4*tt,4)}, {c}")
        A(f"v_max3_u32 {vr(ck)}, {vr(ck)}, {vr(oa+4*tt)}, {vr(oa+4*tt+1)}"); A(f"v_max3_u32 {vr(ck)}, {vr(ck)}, {vr(oa+4*tt+2)}, {vr(oa+4*tt+3)}")
        for x in extra[tt]: A(x)
    A(f"v_cmp_eq_u32 vcc, -1, {vr(ck)}")
    A("s_cbranch_scc1 L_adone")
    A("s_cbranch_vccnz L_apoll")
    A("L_adone:")
    A("s_cmp_eq_u32 s61, 0")
    A("s_mov_b32 s35, 0")
    stamp(7)
    for k, D in enumerate((DE, DO)):
        A(f"v_mul_f32 {vr(vT+16+k)}, {vr(D)}, {vr(ls4)}")
        for i in range(1, 4): A(f"v_fmac_f32 {vr(vT+16+k)}, {vr(D+i)}, {vr(ls4+i)}")
    A(f"ds_write_b64 {vr(vPPa)}, {vr(vT+16,2)}")
    A("s_mov_b64 exec, 0xffff")
    A("s_waitcnt lgkmcnt(0)")
    stamp(8)
    A("s_barrier")
    A(f"ds_read2_b64 {vr(vT+4,4)}, {vr(vPPr)} offset0:0 offset1:64")
    A(f"ds_read2_b64 {vr(vT+8,4)}, {vr(vPPr)} offset0:128 offset1:192")
    A("s_waitcnt lgkmcnt(1)")
    A(f"v_pk_add_f32 {vr(vT+4,2)}, {vr(vT+4,2)}, {vr(vT+6,2)}")
    A("s_waitcnt lgkmcnt(0)")
    A(f"v_pk_add_f32 {vr(vT+8,2)}, {vr(vT+8,2)}, {vr(vT+10,2)}")
    A(f"v_pk_add_f32 {vr(vT+16,2)}, {vr(vT+4,2)}, {vr(vT+8,2)}")
    A(f"v_min_u32 {vr(vT+16)}, -2, {vr(vT+16)}"); A(f"v_min_u32 {vr(vT+17)}, -2, {vr(vT+17)}")
    A("s_cbranch_scc0 L_altb")
    A(f"global_store_dwordx2 {vr(vBst)}, {vr(vT+16,2)}, s[28:29] sc1")
    A("L_bstd:")
    def ool_b():
        A("L_altb:")
        A("s_cmp_eq_u32 s61, 1"); A("s_cbranch_scc0 L_bstd")
        A(f"global_store_dwordx2 {vr(vBst)}, {vr(vT+16,2)}, s[28:29]")
        A("s_branch L_bstd")
    OOL.append(ool_b)
    A("s_mov_b64 exec, -1")
    stamp(9)
    bl = vRaw
    A("L_bpoll:")
    for i in range(4):
        A(f"global_load_dwordx4 {vr(bl+4*i,4)}, {vr(vBa+(i>>1))}, s[28:29] offset:{(i&1)*3584} sc1")
    A("s_add_u32 s35, s35, 1")
    A(f"s_cmp_ge_u32 s35, {SPIN}")
    A("s_waitcnt vmcnt(2)")
    A(f"v_max3_u32 {vr(vT+2)}, {vr(bl)}, {vr(bl+1)}, {vr(bl+2)}")
    A(f"v_max3_u32 {vr(vT+2)}, {vr(vT+2)}, {vr(bl+3)}, {vr(bl+4)}"); A(f"v_max3_u32 {vr(vT+2)}, {vr(vT+2)}, {vr(bl+5)}, {vr(bl+6)}")
    A(f"v_pk_add_f32 {vr(vT+4,2)}, {vr(bl,2)}, {vr(bl+4,2)}"); A(f"v_pk_add_f32 {vr(vT+6,2)}, {vr(bl+2,2)}, {vr(bl+6,2)}")
    A("s_waitcnt vmcnt(1)")
    A(f"v_max3_u32 {vr(vT+2)}, {vr(vT+2)}, {vr(bl+7)}, {vr(bl+8)}"); A(f"v_max3_u32 {vr(vT+2)}, {vr(vT+2)}, {vr(bl+9)}, {vr(bl+10)}")
    A(f"v_pk_add_f32 {vr(vT+4,2)}, {vr(vT+4,2)}, {vr(bl+8,2)}"); A(f"v_pk_add_f32 {vr(vT+6,2)}, {vr(vT+6,2)}, {vr(bl+10,2)}")
    A(f"v_max_u32 {vr(vT+2)}, {vr(vT+2)}, {vr(bl+11)}")
    A("s_waitcnt vmcnt(0)")
    A(f"v_max3_u32 {vr(vT+2)}, {vr(vT+2)}, {vr(bl+12)}, {vr(bl+13)}"); A(f"v_max3_u32 {vr(vT+2)}, {vr(vT+2)}, {vr(bl+14)}, {vr(bl+15)}")
    A(f"v_pk_add_f32 {vr(vT+4,2)}, {vr(vT+4,2)}, {vr(bl+12,2)}"); A(f"v_pk_add_f32 {vr(vT+6,2)}, {vr(vT+6,2)}, {vr(bl+14,2)}")
    A(f"v_cmp_eq_u32 vcc, -1, {vr(vT+2)}")
    A("s_cbranch_scc1 L_bdone")
    A("s_cbranch_vccnz L_bpoll")
    A("L_bdone:")
    stamp(10)
    A(f"v_permlane32_swap_b32 {vr(vT+4)}, {vr(vT+6)}")
    A(f"v_permlane32_swap_b32 {vr(vT+5)}, {vr(vT+7)}")
    A(f"v_pk_add_f32 {vr(vT+4,2)}, {vr(vT+4,2)}, {vr(vXr,2)}")
    A(f"v_pk_add_f32 {vr(vT+4,2)}, {vr(vT+4,2)}, {vr(vT+6,2)}")
    s1 = vT + 8; s2 = vT + 9
    A(f"v_add_f32 {vr(s1)}, {vr(vT+4)}, {vr(vT+5)}")
    A(f"v_mul_f32 {vr(s2)}, {vr(vT+4)}, {vr(vT+4)}"); A(f"v_fmac_f32 {vr(s2)}, {vr(vT+5)}, {vr(vT+5)}")
    A(f"ds_write_b64 {vr(vHw)}, {vr(vT+4,2)}")
    A(f"v_permlane32_swap_b32 {vr(s1)}, {vr(s2)}")
    A(f"v_add_f32 {vr(s1)}, {vr(s1)}, {vr(s2)}")
    A(f"v_mul_f32 {vr(s1)}, {vr(s1)}, {vr(vK1+5)}")
    for sh in (8, 4, 2, 1):
        A(f"v_add_f32_dpp {vr(s1)}, {vr(s1)}, {vr(s1)} row_ror:{sh} row_mask:0xf bank_mask:0xf")
    A(f"v_add_f32_dpp {vr(s1)}, {vr(s1)}, {vr(s1)} row_bcast:15 row_mask:0xa bank_mask:0xf")
    A(f"v_mov_b32 {vr(vT)}, {L_HS}")
    A("s_mov_b64 exec, s[40:41]")
    A(f"ds_write_b32 {vr(vHsw)}, {vr(s1)}")
    A("s_mov_b64 exec, -1")
    A("s_waitcnt lgkmcnt(0)")
    A("s_barrier")
    A.c("LayerNorm x2 + token MLP")
    h8 = vT + 4; hv = vT + 1
    A(f"ds_read_b128 {vr(h8,4)}, {vr(vT)}")
    A(f"ds_read_b128 {vr(h8+4,4)}, {vr(vT)} offset:16")
    A(f"ds_read_b32 {vr(hv)}, {vr(vHa)}")
    A(f"ds_read_b64 {vr(vHf,2)}, {vr(vHf)}")
    mu = vT + 2; rs = vT + 3
    A("s_waitcnt lgkmcnt(3)")
    A(f"v_pk_add_f32 {vr(h8,2)}, {vr(h8,2)}, {vr(h8+2,2)}")
    A(f"v_add_f32 {vr(mu)}, {vr(h8)}, {vr(h8+1)}")
    A("s_waitcnt lgkmcnt(2)")
    A(f"v_pk_add_f32 {vr(h8+4,2)}, {vr(h8+4,2)}, {vr(h8+6,2)}")
    A(f"v_mul_f32 {vr(mu)}, s37, {vr(mu)}")
    A(f"v_add_f32 {vr(rs)}, {vr(h8+4)}, {vr(h8+5)}")
    A(f"v_mul_f32 {vr(h8)}, {vr(mu)}, {vr(mu)}")
    A(f"v_fma_f32 {vr(rs)}, {vr(rs)}, s37, -{vr(h8)}")
    A(f"v_max_f32 {vr(rs)}, 0, {vr(rs)}")
    A(f"v_mov_b32 {vr(h8)}, {f32(1e-10)}")
    A(f"v_fmac_f32 {vr(h8)}, s36, {vr(rs)}")
    A(f"v_rsq_f32 {vr(rs)}, {vr(h8)}")
    A("s_waitcnt lgkmcnt(1)")
    A(f"v_sub_f32 {vr(hv)}, {vr(hv)}, {vr(mu)}")
    A(f"v_mul_f32 {vr(hv)}, {vr(hv)}, {vr(rs)}")
    A(f"v_cvt_pk_bf16_f32 {vr(hv)}, {vr(hv)}, {vr(hv)}")
    A(f"v_and_b32 {vr(hv)}, s38, {vr(hv)}")
    X = vT + 4; Y = vT + 5; t1 = vT + 6; t2 = vT + 7; Am = vT + 8
    A(f"v_fma_f32 {vr(X)}, {vr(hv)}, {vr(vK1)}, {vr(vK1+1)}"); A(f"v_mul_f32 {vr(X)}, {vr(X)}, {vr(hv)}")
    A(f"v_fma_f32 {vr(Y)}, {vr(X)}, {vr(vK1)}, {vr(vK1+2)}")
    A(f"v_cvt_pk_bf16_f32 {vr(Am)}, {vr(X)}, {vr(X)}")
    A(f"v_mul_f32 {vr(Y)}, {vr(Y)}, {vr(hv)}")
    A(f"v_and_b32 {vr(t1)}, s38, {vr(Am)}")
    A(f"v_cvt_pk_bf16_f32 {vr(Am+2)}, {vr(Y)}, {vr(Y)}")
    A(f"v_sub_f32 {vr(X)}, {vr(X)}, {vr(t1)}")
    A(f"v_and_b32 {vr(t2)}, s38, {vr(Am+2)}")
    A(f"v_cvt_pk_bf16_f32 {vr(Am+1)}, {vr(X)}, {vr(X)}")
    A(f"v_sub_f32 {vr(Y)}, {vr(Y)}, {vr(t2)}")
    A(f"v_or_b32 {vr(Am+1)}, {vr(Am+1)}, {vr(vK1+3)}")
    A(f"v_cvt_pk_bf16_f32 {vr(Am+3)}, {vr(Y)}, {vr(Y)}")
    A(f"v_or_b32 {vr(Am+3)}, {vr(Am+3)}, {vr(vK1+4)}")
    stamp(11)
    Db = [vX, vX + 16, vX + 32]; acc = vT + 12; Dd = vRaw; Nn = vRaw + 8
    def mm(tile):
        A(f"v_mfma_f32_32x32x16_bf16 {vr(Db[tile%3],16)}, {vr(Am,4)}, {vr(vC+4*tile,4)}, 0")
    mm(0)
    A(f"v_cmp_nge_f32 vcc, s59, |{vr(hv)}|")
    A("s_waitcnt lgkmcnt(0)")
    A(f"v_add_f32 {vr(vHf)}, {vr(vHf)}, {vr(vB2)}"); A(f"v_add_f32 {vr(vHf+1)}, {vr(vHf+1)}, {vr(vB2)}")
    A(f"v_lshlrev_b32 {vr(vT)}, 3, v1"); A(f"v_add_u32 {vr(vT)}, {L_Y}, {vr(vT)}")
    A("s_cbranch_vccnz L_fb")
    A.c("sum_f n_f / (1 + e_f) kept as one fraction N / D")
    for tile in range(14):
        D = Db[tile % 3]
        if tile + 1 < 14: mm(tile + 1)
        for i in range(7): A(f"v_exp_f32 {vr(D+i)}, {vr(D+i)}")
        if tile == 0:
            for k in range(0, 8, 2): A(f"v_pk_add_f32 {vr(Dd+k,2)}, {vr(D+k,2)}, 1.0 op_sel_hi:[1,0]")
            continue
        Np = Db[0] + 8 if tile == 1 else Nn
        for k in range(0, 8, 2): A(f"v_pk_fma_f32 {vr(D+8+k,2)}, {vr(D+8+k,2)}, {vr(Dd+k,2)}, {vr(Np+k,2)}")
        for k in range(0, 8, 2): A(f"v_pk_fma_f32 {vr(Dd+k,2)}, {vr(Dd+k,2)}, {vr(D+k,2)}, {vr(Dd+k,2)}")
        for k in range(0, 8, 2): A(f"v_pk_fma_f32 {vr(Nn+k,2)}, {vr(Np+k,2)}, {vr(D+k,2)}, {vr(D+8+k,2)}")
    for i in range(7): A(f"v_rcp_f32 {vr(Dd+i)}, {vr(Dd+i)}")
    for k in range(0, 8, 2): A(f"v_pk_mul_f32 {vr(acc+k,2)}, {vr(Nn+k,2)}, {vr(Dd+k,2)}")
    A("L_fbd:")
    A("s_cmp_eq_u32 s30, 1")
    def ool_fb():
        A("L_fb:")
        A.c("direct evaluation (large activations or weights)")
        hh = vRaw; fa = vRaw + 8; w_ = vRaw + 9; b_ = vRaw + 10; u_ = vRaw + 11; x_ = vRaw + 12; p_ = vRaw + 13; al = vRaw + 14
        A(f"v_lshrrev_b32 {vr(fa)}, 5, v0"); A(f"v_mul_u32_u24 {vr(fa)}, 28, {vr(fa)}")
        A("s_mul_i32 s33, s32, 56"); A(f"s_add_u32 s33, s33, {L_H}"); A(f"v_add_u32 {vr(fa)}, s33, {vr(fa)}")
        for i in range(7): A(f"ds_read_b32 {vr(hh+i)}, {vr(fa)} offset:{4*i}")
        A(f"v_and_b32 {vr(fa)}, 31, v0"); A(f"v_lshlrev_b32 {vr(fa)}, 1, {vr(fa)}")
        A("s_mul_i32 s33, s30, 896"); A(f"v_add_u32 {vr(fa)}, s33, {vr(fa)}")
        A(f"s_mov_b32 s33, {f32(BETA)}"); A(f"v_mov_b32 {vr(al)}, {f32(ALPHA)}")
        for i in range(8): A(f"v_mov_b32 {vr(acc+i)}, 0")
        A("s_waitcnt lgkmcnt(0)")
        for i in range(7):
            A(f"v_sub_f32 {vr(hh+i)}, {vr(hh+i)}, {vr(mu)}"); A(f"v_mul_f32 {vr(hh+i)}, {vr(hh+i)}, {vr(rs)}")
            A(f"v_cvt_pk_bf16_f32 {vr(hh+i)}, {vr(hh+i)}, {vr(hh+i)}"); A(f"v_and_b32 {vr(hh+i)}, s38, {vr(hh+i)}")
        A("s_mov_b32 s34, 0")
        A("L_fbl:")
        A(f"global_load_ushort {vr(w_)}, {vr(fa)}, s[16:17]"); A(f"global_load_ushort {vr(b_)}, {vr(fa)}, s[18:19]"); A(f"global_load_ushort {vr(u_)}, {vr(fa)}, s[20:21]")
        A(f"v_add_u32 {vr(fa)}, 64, {vr(fa)}")
        A("s_waitcnt vmcnt(0)")
        for r_ in (w_, b_, u_): A(f"v_lshlrev_b32 {vr(r_)}, 16, {vr(r_)}")
        for i in range(7):
            A(f"v_fma_f32 {vr(x_)}, {vr(w_)}, {vr(hh+i)}, {vr(b_)}")
            A(f"v_mul_f32 {vr(p_)}, {vr(x_)}, {vr(x_)}"); A(f"v_fma_f32 {vr(p_)}, {vr(p_)}, s33, {vr(al)}"); A(f"v_mul_f32 {vr(p_)}, {vr(p_)}, {vr(x_)}")
            A(f"v_exp_f32 {vr(p_)}, {vr(p_)}"); A(f"v_add_f32 {vr(p_)}, 1.0, {vr(p_)}"); A(f"v_rcp_f32 {vr(p_)}, {vr(p_)}")
            A(f"v_mul_f32 {vr(x_)}, {vr(x_)}, {vr(p_)}"); A(f"v_fmac_f32 {vr(acc+i)}, {vr(x_)}, {vr(u_)}")
        A("s_add_u32 s34, s34, 1"); A("s_cmp_lt_u32 s34, 14"); A("s_cbranch_scc1 L_fbl")
        A("s_branch L_fbd")
    OOL.append(ool_fb)
    stamp(12)
    for k in range(4): A(f"v_add_f32_dpp {vr(acc+2*k)}, {vr(acc+2*k)}, {vr(acc+2*k)} row_ror:8 row_mask:0xf bank_mask:0x3")
    for k in range(4): A(f"v_add_f32_dpp {vr(acc+2*k)}, {vr(acc+2*k+1)}, {vr(acc+2*k+1)} row_ror:8 row_mask:0xf bank_mask:0xc")
    for k in range(2): A(f"v_add_f32_dpp {vr(acc+4*k)}, {vr(acc+4*k)}, {vr(acc+4*k)} row_shl:4 row_mask:0xf bank_mask:0x5")
    for k in range(2): A(f"v_add_f32_dpp {vr(acc+4*k)}, {vr(acc+4*k+2)}, {vr(acc+4*k+2)} row_shr:4 row_mask:0xf bank_mask:0xa")
    A(f"v_permlane16_swap_b32 {vr(acc)}, {vr(acc+4)}")
    A(f"v_add_f32 {vr(acc)}, {vr(acc)}, {vr(acc+4)}")
    A(f"v_add_f32_dpp {vr(acc)}, {vr(acc)}, {vr(acc)} quad_perm:[1,0,3,2] row_mask:0xf bank_mask:0xf")
    A(f"v_add_f32_dpp {vr(acc)}, {vr(acc)}, {vr(acc)} quad_perm:[2,3,0,1] row_mask:0xf bank_mask:0xf")
    A(f"ds_write_b32 {vr(vYa)}, {vr(acc)}")
    A("s_waitcnt lgkmcnt(0)")
    A("s_barrier")
    A("s_cbranch_scc0 L_fin")
    if diag:
        A("L_dg1:")
        A("s_memrealtime s[66:67]"); A("s_waitcnt lgkmcnt(0)"); A("s_sub_u32 s66, s66, s64")
        A(f"s_cmp_lt_u32 s66, 6000"); A("s_cbranch_scc1 L_dg1")
    A("s_mov_b64 exec, 0x7f")
    A(f"ds_read2_b64 {vr(vT+4,4)}, {vr(vT)} offset0:0 offset1:8")
    A(f"ds_read2_b64 {vr(vT+8,4)}, {vr(vT)} offset0:16 offset1:24")
    A("s_waitcnt lgkmcnt(1)")
    A(f"v_pk_add_f32 {vr(vHf,2)}, {vr(vHf,2)}, {vr(vT+4,2)}"); A(f"v_pk_add_f32 {vr(vHf,2)}, {vr(vHf,2)}, {vr(vT+6,2)}")
    A("s_waitcnt lgkmcnt(0)")
    A(f"v_pk_add_f32 {vr(vHf,2)}, {vr(vHf,2)}, {vr(vT+8,2)}"); A(f"v_pk_add_f32 {vr(vHf,2)}, {vr(vHf,2)}, {vr(vT+10,2)}")
    A(f"v_cvt_pk_bf16_f32 {vr(vT+2)}, {vr(vHf)}, {vr(vHf+1)}")
    A(f"global_store_dword {vr(vOut)}, {vr(vT+2)}, s[24:25]")
    A("L_fin:")
    stamp(13)
    if amp:
        A(f"s_cmp_eq_u32 s30, {amp[0]}"); A("s_cbranch_scc0 L_end")
        A("s_waitcnt lgkmcnt(0)")
        A(f"s_sub_u32 s33, s{64+2*amp[1]}, s{64+2*amp[2]}")
        if amp[3] < 0: A("s_sub_u32 s33, 3000, s33")
        A("s_min_u32 s33, s33, 5000"); A("s_lshl_b32 s33, s33, 3"); A("s_add_u32 s33, s33, 4000")
        A("L_amp:")
        A("s_memrealtime s[34:35]"); A("s_waitcnt lgkmcnt(0)"); A("s_sub_u32 s34, s34, s64")
        A("s_cmp_lt_u32 s34, s33"); A("s_cbranch_scc1 L_amp")
    dump_stamps(14)
    A("L_end:")
    A("s_endpgm")
    for f in OOL: f()
    A(f".fill (16384 - (. - {NAME})) / 4, 4, 0xbf810000")

    body, nn = fix_hazards(A.L)
    head = [l.rstrip("\n") for l in open("header.txt")]
    head.append(f"; @launch grid=(256,1,1) block=(512,1,1) lds={L_END}")
    head += ['.amdgcn_target "amdgcn-amd-amdhsa--gfx950"', ".text", f".globl {NAME}", ".p2align 8", f".type {NAME},@function"]
    tail = ['.section .rodata,"a"', ".p2align 6", f".amdhsa_kernel {NAME}",
            "  .amdhsa_next_free_vgpr 256", "  .amdhsa_next_free_sgpr 96", "  .amdhsa_accum_offset 256",
            "  .amdhsa_group_segment_fixed_size 0", "  .amdhsa_kernarg_size 104", "  .amdhsa_user_sgpr_count 2",
            "  .amdhsa_user_sgpr_kernarg_segment_ptr 1", "  .amdhsa_system_sgpr_workgroup_id_x 1",
            "  .amdhsa_float_denorm_mode_32 3", ".end_amdhsa_kernel"]
    return "\n".join(head + body + tail) + "\n"

if __name__ == "__main__":
    kw = eval("dict(" + (sys.argv[2] if len(sys.argv) > 2 else "") + ")")
    open(sys.argv[1], "w").write(gen(**kw))
```

```python
import re

REG = re.compile(r'^(-?\|?|abs\(|-abs\()?([vsa])(\d+|\[(\d+):(\d+)\])\)?\|?$')

def regs_of(tok):
    tok = tok.strip()
    if tok in ('vcc',): return {('s', 'vcc')}
    if tok in ('vcc_lo', 'vcc_hi'): return {('s', 'vcc')}
    if tok in ('exec', 'exec_lo', 'exec_hi'): return {('s', 'exec')}
    if tok == 'm0': return {('s', 'm0')}
    m = REG.match(tok)
    if not m: return set()
    f = m.group(2)
    if m.group(4) is not None:
        return {(f, i) for i in range(int(m.group(4)), int(m.group(5)) + 1)}
    return {(f, int(m.group(3)))}

TRANS = ('v_exp_', 'v_log_', 'v_rcp_', 'v_rsq_', 'v_sqrt_', 'v_sin_', 'v_cos_')

class Ins:
    def __init__(self, text):
        self.text = text
        t = text.split(';')[0].strip()
        self.label = None; self.op = None; self.directive = False
        self.w = set(); self.r = set(); self.ws = 0
        if not t: return
        if t.endswith(':'):
            self.label = t[:-1]; return
        if t.startswith('.'):
            self.directive = True; return
        parts = t.split(None, 1)
        self.op = op = parts[0]
        rest = parts[1] if len(parts) > 1 else ''
        ops = []; cur = ''; depth = 0
        for ch in rest:
            if ch in '[(': depth += 1
            if ch in '])': depth -= 1
            if ch == ',' and depth == 0:
                ops.append(cur.strip()); cur = ''
            else: cur += ch
        if cur.strip(): ops.append(cur.strip())
        mods = ''
        if ops:
            last = ops[-1].split(None, 1)
            ops[-1] = last[0]
            mods = last[1] if len(last) > 1 else ''
        self.ops = ops; self.mods = mods
        self.ws = 1
        if op == 's_nop': self.ws = int(ops[0], 0) + 1
        R = [regs_of(o) for o in ops]
        U = lambda xs: set().union(*xs) if xs else set()
        self.valu = op.startswith('v_')
        self.mfma = op.startswith('v_mfma')
        self.trans = op.startswith(TRANS)
        self.dpp = self.valu and any(k in mods for k in ('row_', 'quad_perm', 'wave_'))
        self.vmem = op.startswith(('buffer_', 'global_'))
        self.ds = op.startswith('ds_')
        self.salu = op.startswith('s_')
        self.permlane = op.startswith('v_permlane')
        self.ldsdma = self.vmem and (' lds' in (' ' + mods) or 'load_lds' in op)
        self.widestore = False
        self.srcC = set(); self.srcAB = set()
        if self.mfma:
            self.w = R[0]; self.srcAB = R[1] | R[2]; self.srcC = R[3]; self.r = self.srcAB | self.srcC
            self.passes = 8 if '32x32x16' in op else 4
            assert ('32x32x16_bf16' in op) or ('16x16x32_bf16' in op) or ('16x16x16_bf16' in op), op
        elif self.permlane:
            self.w = R[0] | R[1]; self.r = R[0] | R[1]
        elif self.valu:
            if op.startswith(('v_add_co', 'v_sub_co', 'v_addc_co', 'v_subb_co')):
                self.w = R[0] | R[1]; self.r = U(R[2:])
            else:
                self.w = R[0]; self.r = U(R[1:])
            if op.startswith('v_cmpx'): self.w |= {('s', 'exec')}
            if op.startswith(('v_fmac', 'v_pk_fmac', 'v_dot2c', 'v_writelane')) or self.dpp:
                self.r |= R[0]
        elif self.ds:
            if op.startswith(('ds_read', 'ds_bpermute', 'ds_permute', 'ds_swizzle')) or '_rtn' in op:
                self.w = R[0]; self.r = U(R[1:])
            else:
                self.r = U(R)
        elif self.vmem:
            if 'load' in op and not self.ldsdma:
                self.w = R[0]; self.r = U(R[1:])
                if 'd16' in op: self.r |= R[0]
            elif 'atomic' in op and 'sc0' in mods:
                self.w = R[0]; self.r = U(R)
            else:
                self.r = U(R)
                if op.endswith(('x3', 'x4')) and 'store' in op:
                    self.widestore = True
                    self.stdata = R[0] if op.startswith('buffer_') else R[1]
            if self.ldsdma: self.r |= {('s', 'm0')}
        elif self.salu:
            if op.startswith(('s_cmp', 's_bitcmp', 's_cbranch', 's_branch', 's_waitcnt', 's_nop', 's_barrier', 's_sleep', 's_setprio', 's_endpgm')):
                self.r = U(R)
            else:
                self.w = R[0] if R else set(); self.r = U(R[1:])
                if 'saveexec' in op: self.w |= {('s', 'exec')}
        self.branch = op.startswith(('s_cbranch', 's_branch'))
        self.uncond = op in ('s_branch', 's_endpgm')
        self.target = ops[0] if self.branch else None

def isv(rs): return {x for x in rs if x[0] in 'va'}
def iss(rs): return {x for x in rs if x[0] == 's'}

def need(p, c):
    n = 0
    if p.mfma:
        d = p.w
        if c.mfma:
            if d & c.srcAB: n = max(n, 8 if p.passes == 4 else 12)
            if d & c.srcC:
                if not (d == c.srcC and p.passes == c.passes): n = max(n, 6 if p.passes == 4 else 10)
            if (d & c.w) and not (d & c.srcC):
                n = max(n, 8 if p.passes == 4 else 12)
        elif (c.valu or c.vmem or c.ds) and (d & (c.r | c.w)):
            n = max(n, 8 if p.passes == 4 else 12)
        if c.valu and not c.mfma and (p.srcC & c.w): n = max(n, 3 if p.passes == 4 else 7)
        return n
    if p.valu:
        vw = isv(p.w); sw = iss(p.w)
        if c.mfma and (vw & c.r): n = max(n, 2)
        if c.valu and not c.mfma:
            if c.dpp and (vw & c.r): n = max(n, 2)
            if c.permlane and (vw & c.r): n = max(n, 2)
            if c.op.startswith(('v_readlane', 'v_readfirstlane')) and (vw & c.r): n = max(n, 1)
            if p.trans and (vw & c.r): n = max(n, 1)
            if ('op_sel' in p.mods or 'dst_sel' in p.mods) and not p.op.startswith('v_pk') and (vw & (c.r | c.w)): n = max(n, 1)
            if sw & c.r:
                n = max(n, 4 if c.op.startswith(('v_readlane', 'v_writelane')) else 2)
            if ('s', 'vcc') in sw and c.op.startswith(('v_cndmask', 'v_addc', 'v_subb')): n = max(n, 2)
        if ('s', 'exec') in sw:
            if c.mfma or c.permlane or c.op.startswith(('v_readlane', 'v_readfirstlane', 'v_writelane')): n = max(n, 4)
            if c.dpp: n = max(n, 5)
        if c.vmem and (sw & c.r): n = max(n, 5)
        if c.salu and (sw & c.r): n = max(n, 1)
        if c.op.startswith('s_cbranch_vcc') and ('s', 'vcc') in sw: n = max(n, 1)
    elif (p.vmem or p.ds):
        pass
    if p.salu and ('s', 'm0') in p.w and c.ldsdma: n = max(n, 1)
    if p.widestore and (p.stdata & c.w): n = max(n, 2 if c.valu else 1)
    return n

def fix_hazards(lines, maxd=13):
    ins = [Ins(l) for l in lines]
    changed = True; total = 0
    while changed:
        changed = False
        labels = {x.label: i for i, x in enumerate(ins) if x.label}
        srcs = {}
        for i, x in enumerate(ins):
            if x.op and x.branch: srcs.setdefault(labels[x.target], []).append(i)
        for i, c in enumerate(ins):
            if not c.op: continue
            short = 0
            stack = [(i - 1, 0, True)]; seen = set()
            while stack:
                j, dist, ft = stack.pop()
                if j < 0 or dist >= maxd or (j, dist, ft) in seen: continue
                seen.add((j, dist, ft))
                p = ins[j]
                if p.op:
                    if ft and p.uncond: continue
                    short = max(short, need(p, c) - dist)
                    stack.append((j - 1, dist + p.ws, True))
                else:
                    if p.label:
                        for b in srcs.get(j, []): stack.append((b, dist, False))
                    stack.append((j - 1, dist, True))
            if short > 0:
                ins.insert(i, Ins(f'    s_nop {short - 1}    ; hazard'))
                total += short
                changed = True
                break
    return [x.text for x in ins], total

class Asm:
    def __init__(self):
        self.L = []
    def __call__(self, s):
        for l in s.split('\n'):
            l = l.strip()
            if not l: continue
            self.L.append(l if l.endswith(':') or l.startswith(('.', ';')) else '    ' + l)
    def c(self, s):
        self.L.append('    ; ' + s)

def vr(a, n=1):
    return f'v{a}' if n == 1 else f'v[{a}:{a+n-1}]'
def sr(a, n=1):
    return f's{a}' if n == 1 else f's[{a}:{a+n-1}]'

class Alloc:
    def __init__(self, start, limit):
        self.p = start; self.limit = limit; self.hi = start
    def __call__(self, n=1, align=None):
        if align is None: align = 1 if n == 1 else (2 if n < 4 else 4)
        self.p = (self.p + align - 1) // align * align
        a = self.p; self.p += n
        assert self.p <= self.limit, (self.p, self.limit)
        self.hi = max(self.hi, self.p)
        return a
```

```python
import sys, struct, math
from asmlib import *

NAME = "sequential_preLN__sliding_block_cached__mixer_token_mlp__decode_kernel"
def f32(x): return "0x%08x" % struct.unpack("<I", struct.pack("<f", x))[0]

L_K = 0; L_WQ = 131072; L_Q = 145408; L_STAT = 146432; L_OP = 146688; L_PP = 154880; L_H = 158976; L_HS = 161024; L_Y = 161088
L_END = 161344
L_X = L_OP
W_Q = 0
W_O = 0x40000
W_B = 0x80000
W_STAMP = 0x100000
SPIN = 0x20000
STAMP_VIEW = [("S", slice(4, 8), [0, 8, 6, 7, 1, 2, 3, 4, 5]), ("T0", 0, [0, 1, 3, 4]), ("T3L", 3, [0, 1, 4], slice(224, 256)),
              ("T1", 1, [0, 4, 1, 2, 5, 6, 7, 8, 9, 10, 11, 12, 13]), ("Tall", slice(0, 4), [5, 6, 7, 8, 9, 10, 11, 12, 13])]
ALPHA = -2.0 * math.sqrt(2.0 / math.pi) * math.log2(math.e)
BETA = ALPHA * 0.044715

def gen(W=8, QPOS=2, QD=1, FT=-1, stamps=False, force_slow=False, pol="nt", qpol="", opol="", spol="", skip="",
        pref=True, opos="mid", qx=16, force_fb=False, touch=True, amp=None, DA=1, DB=1, rotm=7, PB=0, NL=0, EP=0, inst=0, spf=0, bx="", PB0=0):
    A = Asm()
    OOL = []
    def stamp(i):
        if stamps or (amp and i in (amp[1], amp[2], 0)): A(f"s_memrealtime s[{64+2*i}:{65+2*i}]")
    def dump_stamps(nst):
        if not stamps: return
        A("s_waitcnt lgkmcnt(0) vmcnt(0)")
        A("s_lshl_b32 s94, s2, 3"); A("s_add_u32 s94, s94, s30"); A("s_lshl_b32 s94, s94, 6"); A(f"s_add_u32 s94, s94, {W_STAMP}")
        A("s_mov_b64 exec, 1")
        A("v_mov_b32 v250, s94")
        for i in range(nst):
            A(f"v_mov_b32 v251, s{64+2*i}")
            A(f"global_store_dword v250, v251, s[28:29] offset:{4*i}")
        A("s_waitcnt vmcnt(0)")

    A(f"{NAME}:")
    stamp(0)
    A("s_load_dwordx16 s[4:19], s[0:1], 0")
    A("s_load_dwordx8 s[20:27], s[0:1], 64")
    A("s_load_dwordx2 s[28:29], s[0:1], 96")
    A("v_lshrrev_b32 v1, 6, v0")
    A("s_lshr_b32 s32, s2, 3")
    A("v_readfirstlane_b32 s30, v1")
    A("s_cmp_ge_u32 s32, 32")
    A("s_cbranch_scc1 L_end")
    A("v_and_b32 v0, 63, v0")
    A("s_and_b32 s31, s2, 7")
    A("v_lshlrev_b32 v3, 4, v0")
    A("s_cmp_lt_u32 s30, 4")
    A("s_cbranch_scc1 L_T")

    A.c("================ stream waves")
    V = Alloc(4, 256)
    vK = V(8); vVo = V(8); vKA = V(4); vM = V(4); vT = V(8); vOPa = V(2); vQA = V(); vSTw = V(); vSTr = V()
    vS = V(16); vAcc = vK; vQ = V(32); vKF = V(32); vVv = V(128)
    vA = vQ
    assert vKF == vQ + 32
    def X(i): return ((8*(i & 1) + (i >> 1)) << 4) | (i << 10)
    A("s_lshr_b32 s34, s2, 5"); A("s_lshl3_add_u32 s34, s34, s31"); A("s_and_b32 s35, s32, 3"); A("s_lshl4_add_u32 s34, s34, s35")
    A("s_lshl4_add_u32 s34, s34, s30"); A("s_addk_i32 s34, 188"); A("s_lshl_b32 s40, s34, 13")
    A("s_sub_u32 s33, s30, 4")
    A("s_lshl_b32 s37, s33, 15")
    if rotm == 7:
        A("s_and_b32 s38, s32, 1"); A("s_bfe_u32 s60, s32, 0x20001"); A("s_lshl3_add_u32 s38, s38, s60")
        A("s_and_b32 s36, s32, 7"); A("s_lshl_b32 s36, s36, 10"); A("s_lshl4_add_u32 s38, s38, s36")
    else:
        A("s_and_b32 s60, s32, 1"); A("s_lshl_b32 s36, s60, 12"); A("s_lshl_b32 s60, s60, 1"); A("s_lshl4_add_u32 s38, s60, s36")
    A("s_or_b32 s44, s37, s36")
    A(f"v_and_b32 {vr(vT)}, 32, v0"); A(f"v_lshlrev_b32 {vr(vT)}, 1, {vr(vT)}")
    A(f"v_xor_b32 {vr(vT)}, {vr(vT)}, v3")
    A(f"v_xor_b32 {vr(vK)}, s38, {vr(vT)}")
    A("s_brev_b32 s54, 16"); A("s_mov_b32 s55, 0x20000")
    A("s_mov_b32 m0, s44")
    A("s_waitcnt lgkmcnt(0)")
    A("s_mov_b64 s[52:53], s[6:7]")
    stamp(8)
    issued = [0]
    def throttle():
        if issued[0] >= W: A(f"s_waitcnt vmcnt({W-1})")
        issued[0] += 1
    def kload(tl, i):
        if tl or i: A(f"s_xor_b32 m0, s44, {(tl << 13) | (i << 10)}")
        if tl == 0 and i: A(f"v_xor_b32 {vr(vK+i)}, {X(i)}, {vr(vK)}")
        throttle()
        A(f"buffer_load_dwordx4 {vr(vK+i)}, s[52:55], s{40+tl} offen {pol} lds")
    for i in range(8): kload(0, i)
    A("s_branch L_S2")

    A("L_T:")
    A.c("================ tail waves")
    V = Alloc(4, 250)
    vC = V(56); vW = V(32); vRaw = V(32); vX = V(56); tT = V(24)
    vXr = V(4); vDl = V(4); vQs = V(4); vG = V(4); vK1 = V(5); vHa = V(); vKs = V(2); vHf = V(2)
    vYa = V(); vLa = V(); vOa = V(); vPPa = V(); vBst = V(); vOst = V(); vLst = V(); vLse = V()
    vBa = V(); vHw = V(); vHsw = V(); vOut = V(); vB2 = V(); vQa = V(); vOPr = V(); vPPr = V(); vWa = V(2)
    raw = vRaw
    def prep_loads():
        t = tT + 16
        A.c("MLP weights, residual row piece, b2")
        A(f"v_and_b32 {vr(t)}, 31, v0")
        A("s_mul_i32 s33, s30, 896")
        A(f"v_lshlrev_b32 {vr(t+1)}, 4, {vr(t)}"); A(f"v_add_u32 {vr(t+1)}, s33, {vr(t+1)}")
        A(f"v_lshlrev_b32 {vr(t+2)}, 3, {vr(t)}"); A(f"v_add_u32 {vr(t+2)}, s33, {vr(t+2)}")
        A(f"v_lshlrev_b32 {vr(t+3)}, 2, {vr(t)}"); A(f"v_add_u32 {vr(t+3)}, s33, {vr(t+3)}")
        for k, sp in enumerate((16, 18, 20)):
            A(f"global_load_dwordx4 {vr(raw+8*k,4)}, {vr(t+1)}, s[{sp}:{sp+1}] {spol}")
            A(f"global_load_dwordx2 {vr(raw+8*k+4,2)}, {vr(t+2)}, s[{sp}:{sp+1}] offset:512 {spol}")
            A(f"global_load_dword {vr(raw+8*k+6)}, {vr(t+3)}, s[{sp}:{sp+1}] offset:768 {spol}")
        A(f"v_min_u32 {vr(t)}, 13, v1"); A(f"v_and_b32 {vr(t+1)}, 1, v2")
        A("s_mul_i32 s33, s31, 896"); A("s_mul_i32 s34, s30, 224"); A("s_add_u32 s33, s33, s34")
        A(f"v_lshlrev_b32 {vr(t)}, 4, {vr(t)}"); A(f"v_lshl_add_u32 {vr(t)}, {vr(t+1)}, 3, {vr(t)}"); A(f"v_add_u32 {vr(t)}, s33, {vr(t)}")
        A(f"global_load_dwordx2 {vr(vXr+2,2)}, {vr(t)}, s[4:5] {spol}")
        A(f"v_mov_b32 {vr(t+2)}, 0")
        A(f"global_load_ushort {vr(vB2)}, {vr(t+2)}, s[22:23] {spol}")
    A("v_and_b32 v1, 15, v0")
    A("v_lshrrev_b32 v2, 4, v0")
    A("s_lshl_b32 s63, s31, 2")
    if "T" in skip:
        A("s_waitcnt lgkmcnt(0)"); A("s_barrier"); A("s_barrier"); A("s_barrier")
        if NL: A("s_barrier")
        A("s_branch L_b3")
    A("s_cmp_eq_u32 s30, 0"); A("s_cbranch_scc1 L_T0")
    A("s_cmp_eq_u32 s30, 3"); A("s_cbranch_scc1 L_T3")
    if spf:
        A("s_cmp_eq_u32 s30, 1"); A("s_cbranch_scc1 L_T1")
    if pref:
        if not spf: A("s_cmp_eq_u32 s30, 2"); A("s_cbranch_scc0 L_prepw")
        A.c("T2: pull the code into this XCD's L2")
        A("s_getpc_b64 s[34:35]")
        A("L_pc:")
        A(f"s_sub_u32 s34, s34, L_pc-{NAME}"); A("s_subb_u32 s35, s35, 0")
        A("s_lshl_b32 s33, s32, 9")
        A(f"v_lshlrev_b32 {vr(tT)}, 3, v0"); A(f"v_add_u32 {vr(tT)}, s33, {vr(tT)}")
        A(f"global_load_dwordx2 {vr(tT+2,2)}, {vr(tT)}, s[34:35]")
    A("s_branch L_prepw")
    if spf:
        A("L_T1:")
        A.c("T1: pull 14 rows of the wq column block that r=28..31 read (and of the last block) into L2")
        A("s_mul_i32 s33, s32, 14*8192"); A("s_lshl_b32 s34, s31, 10"); A("s_add_u32 s33, s33, s34"); A("s_addk_i32 s33, 384")
        A(f"v_min_u32 {vr(tT)}, 13, v1"); A(f"v_lshlrev_b32 {vr(tT)}, 13, {vr(tT)}")
        A(f"v_and_b32 {vr(tT+1)}, 1, v2"); A(f"v_lshl_add_u32 {vr(tT)}, {vr(tT+1)}, 6, {vr(tT)}")
        A(f"v_lshrrev_b32 {vr(tT+1)}, 1, v2"); A(f"v_lshl_add_u32 {vr(tT)}, {vr(tT+1)}, 9, {vr(tT)}")
        A(f"v_add_u32 {vr(tT)}, s33, {vr(tT)}")
        A("s_cmp_eq_u32 s31, 7"); A("s_cselect_b32 exec_hi, -1, 0")
        if spf == 2: A("s_and_b32 exec_hi, exec_hi, 0xffff"); A("s_mov_b32 exec_lo, 0xffff")
        A("s_waitcnt lgkmcnt(0)")
        A(f"global_load_dword {vr(tT+2)}, {vr(tT)}, s[10:11]")
        A("s_mov_b64 exec, -1")
        A("s_branch L_prepw")
    A("L_T3:")
    A.c("T3 of workgroups r=28..31: clear a quarter of the group's q slots, lse slots and out-projection slots, then count in")
    A("s_cmp_ge_u32 s32, 28"); A("s_cbranch_scc0 L_prepw")
    for i in range(4): A(f"v_mov_b32 {vr(tT+4+i)}, -1")
    A("s_getreg_b32 s34, hwreg(HW_REG_XCC_ID, 0, 4)")
    A("s_and_b32 s36, s32, 3"); A("s_cselect_b32 s34, 0, s34"); A("s_bitset1_b32 s34, 8")
    A("s_lshl3_add_u32 s33, s31, s36"); A("s_lshl_b32 s33, s33, 12"); A(f"v_add_u32 {vr(tT)}, s33, v3")
    A("s_lshl2_add_u32 s33, s31, s36"); A("s_mul_i32 s33, s33, 3584"); A(f"s_add_u32 s33, s33, {W_B}"); A(f"v_add_u32 {vr(tT+1)}, s33, v3")
    A.c("lanes 32..35 of the last store take this quarter of the lse slots")
    A("s_lshl_b32 s33, s31, 15"); A("s_lshl_b32 s36, s36, 6"); A("s_add_u32 s33, s33, s36"); A(f"s_add_u32 s33, s33, {16384 - 512 - 3072}")
    A(f"v_add_u32 {vr(tT+2)}, s33, v3"); A("v_cmp_gt_u32 vcc, 32, v0"); A(f"v_cndmask_b32 {vr(tT+2)}, {vr(tT+2)}, {vr(tT+1)}, vcc")
    A("s_waitcnt lgkmcnt(0)")
    for i in range(4): A(f"global_store_dwordx4 {vr(tT)}, {vr(tT+4,4)}, s[28:29] offset:{1024*i} sc1")
    for i in range(3): A(f"global_store_dwordx4 {vr(tT+1)}, {vr(tT+4,4)}, s[28:29] offset:{1024*i} sc1")
    A("s_mov_b32 exec_hi, 15")
    A(f"global_store_dwordx4 {vr(tT+2)}, {vr(tT+4,4)}, s[28:29] offset:3072 sc1")
    A("s_mov_b32 exec_hi, -1")
    A("s_waitcnt vmcnt(0)")
    A("s_atomic_add s34, s[26:27], s63")
    stamp(1)
    A("s_branch L_prepw")
    A("L_T0:")
    A.c("T0: q projection, 32 columns x half of the rows, all 8 batches")
    A(f"v_lshrrev_b32 {vr(tT+1)}, 2, v0"); A(f"v_lshlrev_b32 {vr(tT+1)}, 13, {vr(tT+1)}"); A(f"v_and_or_b32 {vr(tT+1)}, v3, 48, {vr(tT+1)}")
    A(f"s_xor_b32 s34, s32, {qx}"); A("s_lshr_b32 s35, s34, 1"); A("s_lshl4_add_u32 s33, s31, s35"); A("s_lshl_b32 s33, s33, 6")
    A("s_and_b32 s48, s34, 1"); A("s_mul_i32 s34, s48, 224*8192"); A("s_add_u32 s33, s33, s34")
    A("s_mov_b32 s54, 0x380000"); A("s_mov_b32 s55, 0x20000")
    A("s_movk_i32 s58, 7168"); A("s_mov_b32 s59, 0x20000"); A("s_movk_i32 s35, 4096")
    A(f"s_mov_b32 m0, {L_X}")
    A("s_waitcnt lgkmcnt(0)")
    A("s_mov_b64 s[52:53], s[10:11]"); A("s_mov_b64 s[56:57], s[4:5]")
    for t in range(4): A(f"buffer_load_dwordx4 v3, s[56:59], 0 offen offset:{1024*t} {spol} lds")
    A(f"s_mov_b32 m0, {L_X + 4096}")
    for t in range(3): A(f"buffer_load_dwordx4 v3, s[56:59], s35 offen offset:{1024*t} {spol} lds")
    A(f"s_mov_b32 m0, {L_WQ}")
    for t in range(14):
        if "q" not in skip: A(f"buffer_load_dwordx4 {vr(tT+1)}, s[52:55], s33 offen {qpol} lds")
        if t < 13: A("s_add_u32 m0, m0, 0x400"); A("s_add_u32 s33, s33, 0x20000")
    prep_loads()
    A.c("clear this workgroup's 1 KB share of the o hand-off buffer (acknowledged before q is published)")
    A("s_lshl_b32 s33, s31, 15"); A("s_lshl_b32 s34, s32, 10"); A("s_add_u32 s33, s33, s34"); A(f"s_add_u32 s33, s33, {W_O}")
    A(f"v_add_u32 {vr(tT+2)}, s33, v3")
    for i in range(4): A(f"v_mov_b32 {vr(vW+i)}, -1")
    A(f"global_store_dwordx4 {vr(tT+2)}, {vr(vW,4)}, s[28:29] sc1")
    A("s_mov_b32 s34, 0x3f803f80")
    for i in range(56): A(f"v_mov_b32 {vr(vX+i)}, s34")
    A(f"v_and_b32 {vr(tT)}, 7, v1"); A(f"v_mul_u32_u24 {vr(tT)}, 896, {vr(tT)}"); A(f"v_lshl_add_u32 {vr(tT)}, v2, 4, {vr(tT)}")
    A("s_mul_i32 s33, s48, 448"); A(f"s_sub_u32 s34, {L_X + 448}, s33"); A(f"s_add_u32 s33, s33, {L_X}")
    A(f"v_add_u32 {vr(tT+1)}, s34, {vr(tT)}"); A(f"v_add_u32 {vr(tT)}, s33, {vr(tT)}")
    A(f"v_lshlrev_b32 {vr(tT+2)}, 4, v1"); A(f"v_lshl_add_u32 {vr(tT+2)}, v2, 9, {vr(tT+2)}"); A(f"v_add_u32 {vr(tT+2)}, {L_WQ}, {vr(tT+2)}")
    A(f"v_bfe_u32 {vr(tT+3)}, v1, 2, 1"); A(f"v_lshl_add_u32 {vr(tT+3)}, {vr(tT+3)}, 4, v1"); A(f"v_lshlrev_b32 {vr(tT+3)}, 2, {vr(tT+3)}")
    A(f"v_lshlrev_b32 {vr(tT+4)}, 2, v1"); A(f"v_add_u32 {vr(tT+4)}, 128, {vr(tT+4)}")
    A(f"v_and_b32 {vr(tT+5)}, 3, v1")
    for i in range(1, 4): A(f"v_cmp_eq_u32 s[{38+2*i}:{39+2*i}], {i}, {vr(tT+5)}")
    D1 = tT + 8; D2 = tT + 16; wf = vC
    A("s_mov_b32 exec_lo, 0x00ff00ff"); A("s_mov_b32 exec_hi, 0x00ff00ff")
    A("s_waitcnt vmcnt(26)" if "q" not in skip else "s_waitcnt vmcnt(12)")
    for t in range(14): A(f"ds_read_b128 {vr(vX+4*t,4)}, {vr(tT + (t >= 7))} offset:{64*(t % 7)}")
    A("s_mov_b64 exec, -1")
    for t in range(14):
        A(f"s_waitcnt lgkmcnt({13-t})")
        c = "0" if t == 0 else vr(D2, 4)
        A(f"v_mfma_f32_16x16x32_bf16 {vr(D2,4)}, {vr(vX+4*t,4)}, {vr(vX+4*t,4)}, {c}")
    for i in range(1, 4): A(f"v_cndmask_b32 {vr(D2)}, {vr(D2)}, {vr(D2+i)}, s[{38+2*i}:{39+2*i}]")
    A(f"ds_bpermute_b32 {vr(tT+6)}, {vr(tT+3)}, {vr(D2)}")
    A(f"ds_bpermute_b32 {vr(tT+7)}, {vr(tT+4)}, {vr(D2)}")
    A(f"s_mov_b32 s33, {f32(1.0/448)}")
    A("s_waitcnt lgkmcnt(0)")
    A(f"v_mul_f32 {vr(tT+7)}, s33, {vr(tT+7)}")
    A(f"v_mul_f32 {vr(tT+6)}, s33, {vr(tT+6)}")
    A(f"v_fma_f32 {vr(tT+6)}, -{vr(tT+7)}, {vr(tT+7)}, {vr(tT+6)}")
    A(f"v_max_f32 {vr(tT+6)}, 0, {vr(tT+6)}")
    A(f"v_add_f32 {vr(tT+6)}, {f32(1e-5)}, {vr(tT+6)}")
    A(f"v_rsq_f32 {vr(tT+6)}, {vr(tT+6)}")
    A("s_waitcnt vmcnt(12)")
    stamp(1)
    for nt in range(2):
        for t in range(7):
            for hh in range(2):
                A(f"ds_read_b64_tr_b16 {vr(wf+28*nt+4*t+2*hh,2)}, {vr(tT+2)} offset:{2048*t + 256*hh + 8*nt}")
        for t in range(7):
            A(f"s_waitcnt lgkmcnt({12-2*t})")
            c = "0" if t == 0 else vr(D1+4*nt, 4)
            A(f"v_mfma_f32_16x16x32_bf16 {vr(D1+4*nt,4)}, {vr(wf+28*nt+4*t,4)}, {vr(vX+4*t,4)}, {c}")
    for i in range(8):
        A(f"v_mul_f32_dpp {vr(D2+i)}, {vr(D1+i)}, {vr(tT+7)} row_newbcast:8 row_mask:0xf bank_mask:0xf")
    for i in range(8):
        A(f"v_sub_f32 {vr(D1+i)}, {vr(D1+i)}, {vr(D2+i)}")
        A(f"v_mul_f32 {vr(D1+i)}, {vr(D1+i)}, {vr(tT+6)}")
    for i in range(4):
        A(f"v_cvt_pk_bf16_f32 {vr(vQs+i)}, {vr(D1+2*i)}, {vr(D1+2*i+1)}")
        A(f"v_min_u32 {vr(vQs+i)}, -2, {vr(vQs+i)}")
    stamp(2)
    A("s_branch L_prep2")

    A("L_S2:")
    A("v_and_b32 v1, 15, v0")
    A("v_lshrrev_b32 v2, 4, v0")
    for tl in range(1, 4): A(f"s_xor_b32 s{40+tl}, s40, {tl << 15}")
    A("s_mov_b64 s[56:57], s[8:9]"); A("s_mov_b32 s58, s54"); A("s_mov_b32 s59, 0x20000")
    if rotm == 7: A("s_and_b32 s61, s32, 1"); A("s_lshl_b32 s61, s61, 8")
    else: A("s_mov_b32 s61, 0")
    A(f"v_lshlrev_b32 {vr(vT)}, 4, v1"); A(f"v_lshl_add_u32 {vr(vT)}, v2, 9, {vr(vT)}")
    A("s_lshl_b32 s35, s60, 11"); A("s_or_b32 s35, s35, s61")
    A(f"v_or_b32 {vr(vVo)}, s35, {vr(vT)}")
    for e in range(1, 8): A(f"v_xor_b32 {vr(vVo+e)}, {((e >> 1) << 11) | ((e & 1) << 8)}, {vr(vVo)}")
    A(f"v_xor_b32 {vr(vT+3)}, s60, v1")
    A(f"v_and_b32 {vr(vT)}, 3, {vr(vT+3)}"); A(f"v_lshrrev_b32 {vr(vT+1)}, 2, v1")
    A(f"v_lshl_add_u32 {vr(vT+2)}, {vr(vT)}, 2, {vr(vT+1)}")
    A(f"v_xor_b32 {vr(vT+3)}, {vr(vT+3)}, v2")
    A(f"v_lshlrev_b32 {vr(vT+2)}, 9, {vr(vT+2)}"); A(f"v_add_u32 {vr(vT+2)}, s37, {vr(vT+2)}")
    A(f"v_lshl_add_u32 {vr(vKA)}, {vr(vT+3)}, 4, {vr(vT+2)}")
    for t in range(1, 4): A(f"v_xor_b32 {vr(vKA+t)}, {64*t}, {vr(vKA)}")
    A(f"v_lshrrev_b32 {vr(vT)}, 3, v1")
    A(f"v_lshlrev_b32 {vr(vQA)}, 9, {vr(vT)}"); A(f"v_lshl_add_u32 {vr(vQA)}, v2, 4, {vr(vQA)}")
    A(f"v_add_u32 {vr(vQA)}, {L_Q}, {vr(vQA)}")
    A(f"v_lshlrev_b32 {vr(vSTr)}, 5, {vr(vT)}"); A(f"v_add_u32 {vr(vSTr)}, {L_STAT}, {vr(vSTr)}")
    A("s_lshl_b32 s35, s33, 2"); A(f"v_add_u32 {vr(vSTw)}, s35, {vr(vSTr)}")
    def delta(dst, val, t0):
        A(f"v_and_b32 {vr(t0)}, 16, v3")
        A(f"v_mov_b32 {vr(t0+1)}, {val}"); A(f"v_lshlrev_b32 {vr(t0+1)}, {vr(t0)}, {vr(t0+1)}")
        A(f"v_bfe_u32 {vr(t0)}, v1, 1, 2")
        for i in range(4):
            A(f"v_cmp_eq_u32 vcc, {i}, {vr(t0)}")
            A(f"v_cndmask_b32 {vr(dst+i)}, 0, {vr(t0+1)}, vcc")
    delta(vM, "0xffff", vT)
    A(f"v_and_b32 {vr(vT)}, 1, v2"); A(f"v_lshlrev_b32 {vr(vT)}, 4, {vr(vT)}")
    A(f"v_lshrrev_b32 {vr(vT+1)}, 1, v2"); A(f"v_lshl_add_u32 {vr(vT)}, {vr(vT+1)}, 10, {vr(vT)}")
    A(f"v_lshl_add_u32 {vr(vT)}, v1, 5, {vr(vT)}")
    A("s_lshl_b32 s35, s33, 11"); A(f"s_add_u32 s35, s35, {L_OP}")
    for dh in range(2):
        A(f"s_xor_b32 s38, s61, {dh << 8}"); A("s_lshl1_add_u32 s38, s38, s35")
        A(f"v_add_u32 {vr(vOPa+dh)}, s38, {vr(vT)}")
    nv = [0]
    def more(k):
        for _ in range(k):
            if nv[0] < 32:
                idx = nv[0]; tl, e = idx >> 3, idx & 7
                throttle()
                A(f"buffer_load_dwordx4 {vr(vVv+4*idx,4)}, {vr(vVo+e)}, s[56:59], s{40+tl} offen {pol}")
                nv[0] += 1
    seq = [("k", tl, i) for tl in range(1, 4) for i in range(8)] + [("v",)] * 32
    pos = 0
    def adv(n):
        nonlocal pos
        for _ in range(n):
            it = seq[pos]; pos += 1
            if it[0] == "k": kload(it[1], it[2])
            else: more(1)
    adv(24 + QPOS)
    stamp(6)
    A("s_barrier")
    stamp(7)
    adv(W + QD)
    assert nv[0] >= W
    stamp(1)
    A("s_barrier")
    stamp(2)
    for t in range(8):
        A(f"ds_read_b128 {vr(vQ+4*t,4)}, {vr(vQA)} offset:{64*t}")
    for tl in range(4):
        for t in range(8):
            A(f"ds_read_b128 {vr(vKF+4*t,4)}, {vr(vKA+(t&3))} offset:{tl*8192 + (t>>2)*256}")
        for t in range(8):
            A(f"s_waitcnt lgkmcnt({7-t})")
            c = "0" if t == 0 else vr(vS+4*tl, 4)
            A(f"v_mfma_f32_16x16x32_bf16 {vr(vS+4*tl,4)}, {vr(vKF+4*t,4)}, {vr(vQ+4*t,4)}, {c}")
        more(1)
    SC = math.log2(math.e) / 16.0
    A(f"s_mov_b32 s35, {f32(SC)}")
    mx = vT; cp = vT + 1; ls = vT + 2
    A(f"v_max3_f32 {vr(mx)}, {vr(vS)}, {vr(vS+1)}, {vr(vS+2)}")
    for i in range(3, 15, 2):
        A(f"v_max3_f32 {vr(mx)}, {vr(mx)}, {vr(vS+i)}, {vr(vS+i+1)}")
    A(f"v_max_f32 {vr(mx)}, {vr(mx)}, {vr(vS+15)}")
    def xg(x, op):
        for sw in ("v_permlane32_swap_b32", "v_permlane16_swap_b32"):
            A(f"v_mov_b32 {vr(cp)}, {vr(x)}")
            A(f"{sw} {vr(x)}, {vr(cp)}")
            A(f"{op} {vr(x)}, {vr(x)}, {vr(cp)}")
    xg(mx, "v_max_f32")
    A(f"v_mul_f32 {vr(mx)}, s35, {vr(mx)}")
    for i in range(16):
        A(f"v_fma_f32 {vr(vS+i)}, {vr(vS+i)}, s35, -{vr(mx)}")
    for i in range(16):
        A(f"v_exp_f32 {vr(vS+i)}, {vr(vS+i)}")
    A(f"v_add_f32 {vr(ls)}, {vr(vS)}, {vr(vS+1)}")
    for i in range(2, 16):
        A(f"v_add_f32 {vr(ls)}, {vr(ls)}, {vr(vS+i)}")
    xg(ls, "v_add_f32")
    A(f"ds_write2_b32 {vr(vSTw)}, {vr(mx)}, {vr(ls)} offset0:0 offset1:4")
    more(1)
    A("s_waitcnt lgkmcnt(0)")
    A("s_barrier")
    stamp(3)
    def stats(m4, l4, M, Lr):
        A(f"v_max3_f32 {vr(M)}, {vr(m4)}, {vr(m4+1)}, {vr(m4+2)}"); A(f"v_max_f32 {vr(M)}, {vr(M)}, {vr(m4+3)}")
        for i in range(4): A(f"v_sub_f32 {vr(m4+i)}, {vr(m4+i)}, {vr(M)}")
        for i in range(4): A(f"v_exp_f32 {vr(m4+i)}, {vr(m4+i)}")
        A(f"v_mul_f32 {vr(Lr)}, {vr(m4)}, {vr(l4)}")
        for i in range(1, 4): A(f"v_fmac_f32 {vr(Lr)}, {vr(m4+i)}, {vr(l4+i)}")
    A(f"ds_read_b128 {vr(vAcc,4)}, {vr(vSTr)}")
    A(f"ds_read_b128 {vr(vAcc+4,4)}, {vr(vSTr)} offset:16")
    more(1)
    A("s_waitcnt lgkmcnt(0)")
    stats(vAcc, vAcc + 4, vT + 3, vT + 4)
    A(f"v_sub_f32 {vr(mx)}, {vr(mx)}, {vr(vT+3)}")
    A(f"v_exp_f32 {vr(mx)}, {vr(mx)}")
    A(f"v_rcp_f32 {vr(vT+4)}, {vr(vT+4)}")
    A(f"v_mul_f32 {vr(mx)}, {vr(mx)}, {vr(vT+4)}")
    for i in range(16):
        A(f"v_mul_f32 {vr(vS+i)}, {vr(vS+i)}, {vr(mx)}")
        A(f"v_cvt_pk_bf16_f32 {vr(vS+i)}, {vr(vS+i)}, {vr(vS+i)}")
        for k in range(4):
            A(f"v_and_b32 {vr(vA+4*i+k)}, {vr(vS+i)}, {vr(vM+k)}")
        if i % 8 == 7: more(1)
    stamp(4)
    done = 0
    def pv(idx):
        i, dh = idx >> 1, idx & 1
        c = "0" if i == 0 else vr(vAcc+4*dh, 4)
        A(f"v_mfma_f32_16x16x32_bf16 {vr(vAcc+4*dh,4)}, {vr(vA+4*i,4)}, {vr(vVv+4*idx,4)}, {c}")
    while nv[0] < 32:
        more(1)
        if NL and nv[0] == 32 - EP: A("s_barrier")
        lim = min(nv[0] - W, done + 4)
        while done < lim: pv(done); done += 1
    while done < 32:
        if 31 - done < W: A(f"s_waitcnt vmcnt({31-done})")
        pv(done); done += 1
    for dh in range(2):
        A(f"ds_write_b128 {vr(vOPa+dh)}, {vr(vAcc+4*dh,4)}")
    stamp(5)
    A("s_waitcnt lgkmcnt(0)")
    A("s_barrier")
    dump_stamps(9)
    A("s_endpgm")

    vT = tT
    A("L_prepw:")
    A("s_waitcnt lgkmcnt(0)")
    prep_loads()
    A("L_prep2:")
    def wo_addr():
        A("s_bfe_u32 s34, s32, 0x10001"); A("s_lshl1_add_u32 s33, s31, s34"); A("s_lshl2_add_u32 s33, s33, s30"); A("s_lshl_b32 s33, s33, 6"); A("s_add_u32 s33, s33, 4")
        A("s_mul_i32 s33, s33, 896"); A("s_lshr_b32 s34, s32, 2"); A("s_min_u32 s34, s34, 6"); A("s_lshl_b32 s34, s34, 7"); A("s_add_u32 s33, s33, s34")
        A(f"v_mul_u32_u24 {vr(vWa)}, {8*896}, v2"); A(f"v_lshl_add_u32 {vr(vWa)}, v1, 3, {vr(vWa)}"); A(f"v_add_u32 {vr(vWa)}, s33, {vr(vWa)}")
        A(f"v_add_u32 {vr(vWa+1)}, {32*896}, {vr(vWa)}")
    def wo_loads(tts=None, tag="a"):
        tts = list(range(2 - NL)) if tts is None else tts
        if not tts: return
        A("s_cmp_ge_u32 s32, 28" if "o" not in skip else "s_cmp_ge_u32 s32, 0"); A(f"s_cbranch_scc1 L_nowo{tag}")
        for tt in tts:
            for jj in range(8):
                A(f"global_load_dwordx2 {vr(vRaw+16*tt+2*jj,2)}, {vr(vWa+tt)}, s[12:13] offset:{(jj-4)*896} {opol}")
        A(f"L_nowo{tag}:")
    def wo_perm(tts):
        for tt in tts:
            for c in range(4):
                for i in range(4):
                    lo_ = vRaw + 16*tt + 4*i + (c >> 1); hi_ = lo_ + 2
                    A(f"v_perm_b32 {vr(vW+16*tt+4*c+i)}, {vr(hi_)}, {vr(lo_)}, {'s34' if c & 1 else 's33'}")
    A.c("tail constants")
    wo_addr()
    A(f"s_xor_b32 s34, s32, {qx}"); A("s_and_b32 s35, s34, 1"); A("s_lshr_b32 s34, s34, 1"); A("s_lshl4_add_u32 s34, s35, s34"); A("s_lshl_b32 s34, s34, 6")
    A("s_lshl_b32 s39, s31, 15"); A("s_add_u32 s34, s34, s39")
    A(f"v_and_b32 {vr(vQa)}, 7, v1"); A(f"v_lshlrev_b32 {vr(vQa)}, 11, {vr(vQa)}"); A(f"v_lshl_add_u32 {vr(vQa)}, v2, 4, {vr(vQa)}"); A(f"v_add_u32 {vr(vQa)}, s34, {vr(vQa)}")
    def publish_q():
        A("s_cmp_eq_u32 s30, 0"); A("s_cbranch_scc0 L_nopub")
        A("s_getreg_b32 s47, hwreg(HW_REG_XCC_ID, 0, 4)")
        A("s_bitset1_b32 s47, 10")
        A("s_waitcnt lgkmcnt(0)")
        A("s_cmp_eq_u32 s46, s47")
        A("s_cbranch_scc0 L_f1slow")
        A("L_same:")
        A("s_mov_b32 exec_lo, 0x00ff00ff"); A("s_mov_b32 exec_hi, 0x00ff00ff")
        A(f"global_store_dwordx4 {vr(vQa)}, {vr(vQs,4)}, s[28:29] sc1")
        A("s_mov_b64 exec, -1")
        stamp(3)
        A("L_nopub:")
        def ool():
            A("L_f1slow:")
            A(f"v_mov_b32 {vr(vT+20)}, s63")
            A("s_mov_b32 s35, 0")
            A("L_f1l:")
            A("s_cmp_ge_u32 s46, 0x400")
            A("s_cbranch_scc1 L_f1d")
            A(f"global_load_dword {vr(vT+21)}, {vr(vT+20)}, s[26:27] sc1")
            A("s_add_u32 s35, s35, 1")
            A("s_waitcnt vmcnt(0)")
            A(f"v_readfirstlane_b32 s46, {vr(vT+21)}")
            A(f"s_cmp_lt_u32 s35, {SPIN}")
            A("s_cbranch_scc1 L_f1l")
            A("L_f1d:")
            A("s_cmp_eq_u32 s46, s47")
            A("s_cbranch_scc1 L_same")
            A("s_add_u32 s46, s63, 32"); A("s_mov_b32 s47, 1")
            A("s_atomic_add s47, s[26:27], s46 glc")
            A("s_waitcnt lgkmcnt(0)")
            A("s_branch L_same")
        OOL.append(ool)
    def flag_look():
        A("s_cmp_eq_u32 s30, 0"); A("s_cbranch_scc0 L_nofl")
        A("s_load_dword s46, s[26:27], s63")
        A("L_nofl:")
    if FT < 0: flag_look()
    A("s_mul_i32 s33, s31, 14336"); A("s_mul_i32 s34, s30, 224"); A("s_add_u32 s33, s33, s34"); A(f"s_add_u32 s33, s33, {W_B}")
    A(f"v_min_u32 {vr(vT+4)}, 13, v1")
    A(f"v_mul_u32_u24 {vr(vBa)}, 3584, v2"); A(f"v_lshl_add_u32 {vr(vBa)}, {vr(vT+4)}, 4, {vr(vBa)}"); A(f"v_add_u32 {vr(vBa)}, s33, {vr(vBa)}")
    A("s_mul_i32 s34, s30, 448"); A(f"s_add_u32 s34, s34, {L_H}")
    A(f"v_and_b32 {vr(vT+5)}, 1, v2"); A(f"v_lshlrev_b32 {vr(vHw)}, 5, v1"); A(f"v_lshl_add_u32 {vr(vHw)}, {vr(vT+5)}, 4, {vr(vHw)}"); A(f"v_add_u32 {vr(vHw)}, s34, {vr(vHw)}")
    A(f"v_mov_b32 {vr(vT+5)}, {L_H + 1792}"); A("v_cmp_gt_u32 s[42:43], 14, v1")
    A(f"v_cndmask_b32 {vr(vHw)}, {vr(vT+5)}, {vr(vHw)}, s[42:43]")
    A(f"v_lshrrev_b32 {vr(vT+6)}, 5, v0")
    A("s_lshl_b32 s34, s30, 2"); A(f"s_add_u32 s34, s34, {L_HS}")
    A(f"v_lshlrev_b32 {vr(vHsw)}, 4, {vr(vT+6)}"); A(f"v_add_u32 {vr(vHsw)}, s34, {vr(vHsw)}")
    A(f"v_cvt_f32_u32 {vr(vKs)}, {vr(vT+6)}"); A(f"v_sub_f32 {vr(vKs+1)}, 1.0, {vr(vKs)}")
    delta(vDl, "0x3f80", vT + 8)
    A("s_mul_i32 s33, s32, 56"); A(f"s_add_u32 s33, s33, {L_H}")
    ii = vT + 8; hf = vT + 9; col = vT + 10
    A(f"v_bfe_u32 {vr(ii)}, v0, 3, 1"); A(f"v_and_b32 {vr(hf)}, 3, v0"); A(f"v_lshl_add_u32 {vr(ii)}, {vr(ii)}, 2, {vr(hf)}")
    A(f"v_bfe_u32 {vr(hf)}, v0, 2, 1")
    A(f"v_min_u32 {vr(col)}, 6, {vr(ii)}"); A(f"v_mad_u32_u24 {vr(col)}, {vr(hf)}, 7, {vr(col)}")
    A(f"v_lshlrev_b32 {vr(vHa)}, 2, {vr(col)}"); A(f"v_add_u32 {vr(vHa)}, s33, {vr(vHa)}")
    A(f"v_cmp_eq_u32 vcc, 7, {vr(ii)}"); A(f"v_cndmask_b32 {vr(vT+11)}, v2, 3, vcc")
    A(f"v_mov_b32 {vr(vT+12)}, 0x3f803f80")
    A(f"v_cmp_eq_u32 vcc, 2, {vr(vT+11)}"); A(f"v_cndmask_b32 {vr(vK1)}, 0, 1.0, vcc")
    A(f"v_cmp_eq_u32 vcc, 0, {vr(vT+11)}"); A(f"v_cndmask_b32 {vr(vK1+1)}, 0, 1.0, vcc")
    A(f"v_cndmask_b32 {vr(vK1+3)}, 0, {vr(vT+12)}, vcc")
    A(f"v_cmp_eq_u32 vcc, 1, {vr(vT+11)}"); A(f"v_cndmask_b32 {vr(vK1+2)}, 0, 1.0, vcc")
    A(f"v_cndmask_b32 {vr(vK1+4)}, 0, {vr(vT+12)}, vcc")
    A(f"v_min_u32 {vr(col)}, 6, v0"); A(f"v_lshlrev_b32 {vr(vHf)}, 3, {vr(col)}"); A(f"v_add_u32 {vr(vHf)}, s33, {vr(vHf)}")
    A("s_mul_i32 s33, s31, 896"); A("s_mul_i32 s34, s32, 28"); A("s_add_u32 s33, s33, s34")
    A(f"v_lshlrev_b32 {vr(vOut)}, 2, {vr(col)}"); A(f"v_add_u32 {vr(vOut)}, s33, {vr(vOut)}")
    A(f"v_bfe_u32 {vr(ii)}, v0, 2, 1"); A(f"v_bfe_u32 {vr(hf)}, v0, 3, 1"); A(f"v_lshl_add_u32 {vr(ii)}, {vr(ii)}, 1, {vr(hf)}")
    A(f"v_bfe_u32 {vr(hf)}, v0, 4, 1"); A(f"v_lshl_add_u32 {vr(ii)}, {vr(hf)}, 2, {vr(ii)}")
    A(f"v_mad_u32_u24 {vr(hf)}, {vr(vT+6)}, 7, {vr(ii)}")
    A(f"v_cmp_eq_u32 vcc, 7, {vr(ii)}"); A(f"v_cndmask_b32 {vr(hf)}, {vr(hf)}, 15, vcc")
    A("s_lshl_b32 s34, s30, 6"); A(f"s_add_u32 s34, s34, {L_Y}")
    A(f"v_lshlrev_b32 {vr(vYa)}, 2, {vr(hf)}"); A(f"v_add_u32 {vr(vYa)}, s34, {vr(vYa)}")
    A("s_add_u32 s33, s39, 16384"); A("s_and_b32 s34, s32, 3"); A("s_lshl_b32 s34, s34, 6"); A("s_add_u32 s34, s34, s33")
    A(f"v_lshlrev_b32 {vr(vLa)}, 4, v2"); A(f"v_add_u32 {vr(vLa)}, s34, {vr(vLa)}")
    A("s_lshl2_add_u32 s34, s32, s33")
    A(f"v_lshlrev_b32 {vr(vLst)}, 7, v0"); A(f"v_add_u32 {vr(vLst)}, s34, {vr(vLst)}")
    A(f"s_add_u32 s33, s39, {W_O}")
    A("s_and_b32 s35, s32, 1"); A("s_bfe_u32 s36, s32, 0x10001")
    A("s_lshl1_add_u32 s34, s35, s36"); A("s_lshl2_add_u32 s34, s34, s30"); A("s_lshl_b32 s34, s34, 11"); A("s_add_u32 s34, s34, s33")
    A(f"v_add_u32 {vr(vOa)}, s34, v3")
    A("s_lshl2_add_u32 s60, s35, s30")
    A("s_lshl3_add_u32 s34, s60, s31"); A("s_lshl1_add_u32 s34, s34, s36"); A("s_mul_i32 s34, s34, 896")
    A("s_lshr_b32 s36, s32, 2"); A("s_min_u32 s36, s36, 6"); A("s_lshl_b32 s36, s36, 7")
    A("s_add_u32 s34, s34, s36"); A(f"s_add_u32 s34, s34, {W_B}")
    A(f"v_lshlrev_b32 {vr(vBst)}, 3, v1"); A(f"v_add_u32 {vr(vBst)}, s34, {vr(vBst)}")
    A("s_lshr_b32 s34, s32, 4"); A("s_lshl2_add_u32 s34, s34, s30"); A("s_lshl_b32 s34, s34, 12"); A("s_add_u32 s34, s34, s33")
    A("s_and_b32 s36, s32, 15"); A("s_lshl4_add_u32 s34, s36, s34")
    A(f"v_lshrrev_b32 {vr(vOst)}, 2, v0"); A(f"v_lshlrev_b32 {vr(vOst)}, 8, {vr(vOst)}"); A(f"v_and_b32 {vr(vT+4)}, 3, v0")
    A(f"v_lshl_add_u32 {vr(vOst)}, {vr(vT+4)}, 2, {vr(vOst)}"); A(f"v_add_u32 {vr(vOst)}, s34, {vr(vOst)}")
    A("s_lshl_b32 s34, s30, 8"); A(f"s_add_u32 s34, s34, {L_PP}")
    A(f"v_lshlrev_b32 {vr(vPPr)}, 4, v1"); A(f"v_add_u32 {vr(vPPr)}, s34, {vr(vPPr)}")
    A("s_lshl_b32 s34, s30, 9"); A(f"s_add_u32 s34, s34, {L_OP}")
    A(f"v_lshlrev_b32 {vr(vOPr)}, 3, v0"); A(f"v_add_u32 {vr(vOPr)}, s34, {vr(vOPr)}")
    A("s_lshl_b32 s34, s30, 10"); A(f"s_add_u32 s34, s34, {L_PP}"); A(f"v_add_u32 {vr(vPPa)}, s34, v3")
    for i in range(4): A(f"v_mov_b32 {vr(vG+i)}, 0")
    A(f"s_mov_b32 s37, {f32(1.0/64)}")
    A(f"s_mov_b32 s33, {f32(BETA)}"); A(f"s_mov_b32 s34, {f32(3*BETA)}"); A("s_mov_b32 s38, 0xffff0000")
    A("v_cmp_lt_u32 vcc, 31, v0")
    A("s_waitcnt vmcnt(0)")
    if FT < 0: publish_q()
    A(f"v_mov_b32 {vr(vT)}, {f32(ALPHA)}")
    for i in (2, 3): A(f"v_cndmask_b32 {vr(vXr+i)}, 0, {vr(vXr+i)}, s[42:43]")
    A(f"v_lshlrev_b32 {vr(vXr)}, 16, {vr(vXr+2)}"); A(f"v_and_b32 {vr(vXr+1)}, s38, {vr(vXr+2)}")
    A(f"v_lshlrev_b32 {vr(vXr+2)}, 16, {vr(vXr+3)}"); A(f"v_and_b32 {vr(vXr+3)}, s38, {vr(vXr+3)}")
    A(f"v_lshlrev_b32 {vr(vB2)}, 16, {vr(vB2)}")
    A.c("gelu argument as a cubic in hn, and n = (w1*hn + b1)*w2, as split-bf16 MFMA operands")
    w, b, u, bb, c0, c1, c2, c3, ca, cc, hi = (vT + 1 + i for i in range(11))
    for tile in range(14):
        if tile == FT: flag_look()
        if FT >= 0 and tile == FT + 4: publish_q()
        for k, d in enumerate((w, b, u)):
            src = raw + 8*k + (tile >> 1)
            if tile & 1: A(f"v_and_b32 {vr(d)}, s38, {vr(src)}")
            else: A(f"v_lshlrev_b32 {vr(d)}, 16, {vr(src)}")
        A(f"v_mul_f32 {vr(bb)}, {vr(b)}, {vr(b)}")
        A(f"v_fma_f32 {vr(c0)}, {vr(bb)}, s33, {vr(vT)}"); A(f"v_mul_f32 {vr(c0)}, {vr(c0)}, {vr(b)}")
        A(f"v_fma_f32 {vr(c1)}, {vr(bb)}, s34, {vr(vT)}"); A(f"v_mul_f32 {vr(c1)}, {vr(c1)}, {vr(w)}")
        A(f"v_mul_f32 {vr(bb)}, {vr(w)}, {vr(w)}")
        A(f"v_mul_f32 {vr(c2)}, s34, {vr(bb)}"); A(f"v_mul_f32 {vr(c2)}, {vr(c2)}, {vr(b)}")
        A(f"v_mul_f32 {vr(c3)}, s33, {vr(bb)}"); A(f"v_mul_f32 {vr(c3)}, {vr(c3)}, {vr(w)}")
        A(f"v_mul_f32 {vr(ca)}, {vr(w)}, {vr(u)}"); A(f"v_mul_f32 {vr(cc)}, {vr(b)}, {vr(u)}")
        for k, cx in enumerate((c0, c1, c2, c3)): A(f"v_add_f32 {vr(vG+k)}, |{vr(cx)}|, {vr(vG+k)}")
        A(f"v_fma_f32 {vr(vG)}, |{vr(cc)}|, s37, {vr(vG)}"); A(f"v_fma_f32 {vr(vG+1)}, |{vr(ca)}|, s37, {vr(vG+1)}")
        for k, (lo_, hi_) in enumerate(((c1, c2), (c0, c2), (ca, c3), (cc, c3))):
            A(f"v_cndmask_b32 {vr(lo_)}, {vr(lo_)}, {vr(hi_)}, vcc")
            A(f"v_cvt_pk_bf16_f32 {vr(hi)}, {vr(lo_)}, {vr(lo_)}")
            A(f"v_and_b32 {vr(hi)}, s38, {vr(hi)}")
            A(f"v_sub_f32 {vr(lo_)}, {vr(lo_)}, {vr(hi)}")
            A(f"v_cvt_pk_bf16_f32 {vr(vC+4*tile+k)}, {vr(hi)}, {vr(lo_)}")
    if FT + 4 >= 14: publish_q()
    A.c("largest |hn| for which the fused gelu path can neither overflow nor lose precision")
    A("s_mov_b32 s59, -1.0"); A(f"s_mov_b32 s34, {f32(100.0)}")
    for H in (3.0, 4.5, 6.0, 8.0, 12.0, 22.0):
        A(f"s_mov_b32 s33, {f32(H)}")
        A(f"v_fma_f32 {vr(vT+1)}, {vr(vG+3)}, s33, {vr(vG+2)}"); A(f"v_fma_f32 {vr(vT+1)}, {vr(vT+1)}, s33, {vr(vG+1)}")
        A(f"v_fma_f32 {vr(vT+1)}, {vr(vT+1)}, s33, {vr(vG)}")
        A(f"v_cmp_nge_f32 vcc, s34, {vr(vT+1)}")
        A("s_cmp_eq_u64 vcc, 0"); A("s_cselect_b32 s59, s33, s59")
    if force_fb: A("s_mov_b32 s59, -1.0")
    A("s_lshr_b32 s33, s32, 2"); A("s_lshl_b32 s33, s33, 11"); A("s_add_u32 s33, s33, s39")
    A(f"v_add_u32 {vr(vT)}, s33, v3"); A(f"v_add_u32 {vr(vT+1)}, {L_Q}, v3")
    A(f"v_lshlrev_b32 {vr(vT+20)}, 2, v1")
    stamp(4)
    if opos == "early": wo_loads()
    A("s_mov_b32 s35, 0")
    A("s_cmp_eq_u32 s30, 1")
    A("s_barrier")
    A("s_cbranch_scc0 L_b1b")
    A.c("T1: gather the two q partials, add, hand to the stream waves")
    qa = vT + 4; qb = vT + 8
    A("L_qpoll:")
    A(f"global_load_dwordx4 {vr(qa,4)}, {vr(vT)}, s[28:29] sc1")
    A(f"global_load_dwordx4 {vr(qb,4)}, {vr(vT)}, s[28:29] offset:1024 sc1")
    A("s_add_u32 s35, s35, 1")
    A(f"s_cmp_ge_u32 s35, {SPIN}")
    A("s_waitcnt vmcnt(0)")
    A(f"v_max3_u32 {vr(vT+2)}, {vr(qa)}, {vr(qa+1)}, {vr(qa+2)}"); A(f"v_max3_u32 {vr(vT+2)}, {vr(vT+2)}, {vr(qa+3)}, {vr(qb)}")
    A(f"v_max3_u32 {vr(vT+2)}, {vr(vT+2)}, {vr(qb+1)}, {vr(qb+2)}"); A(f"v_max_u32 {vr(vT+2)}, {vr(vT+2)}, {vr(qb+3)}")
    A(f"v_cmp_eq_u32 vcc, -1, {vr(vT+2)}")
    A("s_cbranch_scc1 L_qdone")
    A("s_cbranch_vccnz L_qpoll")
    A("L_qdone:")
    stamp(1)
    for k in range(4):
        A(f"v_lshlrev_b32 {vr(vT+2)}, 16, {vr(qa+k)}"); A(f"v_lshlrev_b32 {vr(vT+3)}, 16, {vr(qb+k)}"); A(f"v_add_f32 {vr(vT+2)}, {vr(vT+2)}, {vr(vT+3)}")
        A(f"v_and_b32 {vr(qa+k)}, s38, {vr(qa+k)}"); A(f"v_and_b32 {vr(qb+k)}, s38, {vr(qb+k)}"); A(f"v_add_f32 {vr(qa+k)}, {vr(qa+k)}, {vr(qb+k)}")
        A(f"v_cvt_pk_bf16_f32 {vr(qa+k)}, {vr(vT+2)}, {vr(qa+k)}")
    A(f"ds_write_b128 {vr(vT+1)}, {vr(qa,4)}")
    A("s_waitcnt lgkmcnt(0)")
    A("L_b1b:")
    A("s_barrier")
    A(f"global_load_dword {vr(vT+21)}, {vr(vT+20)}, s[26:27] sc1")
    if touch: A(f"global_load_dword {vr(vT+22)}, {vr(vOut)}, s[24:25]")
    if opos == "mid": wo_loads()
    A(f"v_and_b32 {vr(vT)}, 1, v0"); A(f"v_lshlrev_b32 {vr(vT)}, 5, {vr(vT)}"); A(f"v_add_u32 {vr(vT)}, {L_STAT}, {vr(vT)}")
    A("s_barrier")
    A(f"ds_read_b128 {vr(vT+4,4)}, {vr(vT)}")
    A(f"ds_read_b128 {vr(vT+8,4)}, {vr(vT)} offset:16")
    A("s_waitcnt lgkmcnt(0)")
    stats(vT + 4, vT + 8, vT + 1, vT + 2)
    A(f"v_log_f32 {vr(vT+2)}, {vr(vT+2)}")
    A(f"v_add_f32 {vr(vLse)}, {vr(vT+1)}, {vr(vT+2)}")
    A(f"v_min_u32 {vr(vLse)}, -2, {vr(vLse)}")
    A("s_mov_b32 s35, 0")
    A("L_f2:")
    A("s_waitcnt vmcnt(0)")
    A(f"v_cmp_le_u32 vcc, 0x400, {vr(vT+21)}")
    A("s_and_b32 s33, vcc_lo, 0xff")
    A("s_cmp_eq_u32 s33, 0xff")
    A("s_cbranch_scc0 L_f2r")
    A("L_f2d:")
    def ool_f2():
        A("L_f2r:")
        A("s_add_u32 s35, s35, 1")
        A(f"s_cmp_ge_u32 s35, {SPIN}")
        A("s_cbranch_scc1 L_f2d")
        A(f"global_load_dword {vr(vT+21)}, {vr(vT+20)}, s[26:27] sc1")
        A("s_branch L_f2")
    OOL.append(ool_f2)
    A(f"v_cmp_ne_u32 vcc, 0, {vr(vT+21)}")
    A("s_lshr_b32 s62, vcc_lo, s31"); A("s_bfe_u32 s62, s62, 0x10008")
    if force_slow: A("s_mov_b32 s62, 1")
    A("s_cmp_eq_u32 s30, 1"); A("s_cbranch_scc0 L_nolse")
    A("s_mov_b64 exec, 3")
    A("s_cmp_eq_u32 s62, 0"); A("s_cbranch_scc0 L_slowlse")
    A(f"global_store_dword {vr(vLst)}, {vr(vLse)}, s[28:29]")
    A("L_lsed:")
    A("s_mov_b64 exec, -1")
    A("L_nolse:")
    def ool_lse():
        A("L_slowlse:")
        A(f"global_store_dword {vr(vLst)}, {vr(vLse)}, s[28:29] sc1")
        A("s_branch L_lsed")
    OOL.append(ool_lse)
    if inst:
        A.c("bring this workgroup's share of the cleared hand-off lines into L2 ahead of the polls (values unused)")
        A("s_cmp_lt_u32 s30, 2"); A("s_cbranch_scc1 L_noinst")
        A("s_lshl_b32 s33, s32, 10"); A("s_add_u32 s33, s33, s39"); A(f"s_add_u32 s33, s33, {W_O}")
        A("s_mul_i32 s34, s31, 14336"); A("s_min_u32 s35, s32, 27"); A("s_lshl_b32 s35, s35, 9"); A("s_add_u32 s34, s34, s35"); A(f"s_add_u32 s34, s34, {W_B}")
        A("s_cmp_eq_u32 s30, 2")
        if inst == 1: A("s_cbranch_scc0 L_noinst")
        if inst == 2: A("s_cbranch_scc1 L_noinst")
        A("s_cselect_b32 s33, s34, s33")
        A(f"v_add_u32 {vr(vT+12)}, s33, v3")
        A("s_cselect_b32 exec_hi, 0, -1")
        A(f"global_load_dwordx4 {vr(vT+16,4)}, {vr(vT+12)}, s[28:29] sc1")
        A("s_mov_b64 exec, -1")
        A("L_noinst:")
    if opos == "late": wo_loads()
    A("s_cmp_lt_u32 s32, 28"); A("s_cselect_b32 s44, 0xffff, 0")
    A("s_cmp_eq_u32 s60, s31"); A("s_cselect_b32 s45, s44, 0"); A("s_cmp_eq_u32 s62, 0"); A("s_cselect_b32 s45, s45, 0")
    if "s" in bx: A("s_mov_b32 s45, 0")
    A("s_andn2_b32 s44, s44, s45")
    bl = vX + 16
    for i in range(16): A(f"v_mov_b32 {vr(bl+i)}, 0")
    A("s_mov_b32 s33, 0x05040100"); A("s_mov_b32 s34, 0x07060302")
    if opos == "late" or not NL: A("s_waitcnt vmcnt(0)")
    ls4 = vT + 4; ck = vT + 1
    if not NL: A(f"global_load_dwordx4 {vr(ls4,4)}, {vr(vLa)}, s[28:29] sc1")
    wo_perm(range(2 - NL))
    A(f"s_mov_b32 s36, {f32(1.0 + 1e-5)}"); A(f"s_mov_b32 s37, {f32(1.0/448)}")
    A("s_brev_b32 s40, 1"); A("s_brev_b32 s41, 1")
    def weights():
        A(f"v_max3_u32 {vr(ck)}, {vr(ls4)}, {vr(ls4+1)}, {vr(ls4+2)}"); A(f"v_max_u32 {vr(ck)}, {vr(ck)}, {vr(ls4+3)}")
        A(f"v_cmp_eq_u32 vcc, -1, {vr(ck)}")
        A(f"v_max3_f32 {vr(vT+2)}, {vr(ls4)}, {vr(ls4+1)}, {vr(ls4+2)}"); A(f"v_max_f32 {vr(vT+2)}, {vr(vT+2)}, {vr(ls4+3)}")
        for i in range(4): A(f"v_sub_f32 {vr(ls4+i)}, {vr(ls4+i)}, {vr(vT+2)}")
        for i in range(4): A(f"v_exp_f32 {vr(ls4+i)}, {vr(ls4+i)}")
        A(f"v_add_f32 {vr(vT+2)}, {vr(ls4)}, {vr(ls4+1)}"); A(f"v_add_f32 {vr(vT+3)}, {vr(ls4+2)}, {vr(ls4+3)}")
        A(f"v_add_f32 {vr(vT+2)}, {vr(vT+2)}, {vr(vT+3)}"); A(f"v_rcp_f32 {vr(vT+2)}, {vr(vT+2)}")
        for i in range(4): A(f"v_mul_f32 {vr(ls4+i)}, {vr(ls4+i)}, {vr(vT+2)}")
    A.c("split-combine weights; vcc != 0: some lse had not arrived yet, redo after publishing")
    stamp(2)
    if NL:
        A("s_barrier")
        A(f"global_load_dwordx4 {vr(ls4,4)}, {vr(vLa)}, s[28:29] sc1")
        A("s_cmp_ge_u32 s32, 28"); A("s_cbranch_scc0 L_wob"); A("s_waitcnt vmcnt(0)"); A("L_wob:")
        wo_loads(list(range(2 - NL, 2)), "b")
        A(f"s_waitcnt vmcnt({8*NL})")
    else:
        A("s_waitcnt vmcnt(0)")
    weights()
    A(f"s_mov_b32 s35, {-SPIN & 0xffffffff}")
    A("s_cmp_eq_u32 s62, 0")
    A("L_b3:")
    A("s_barrier")
    stamp(5)
    if "E" in skip: A("s_branch L_fin")
    A.c("reduce the four stream waves' o partials, publish as bf16")
    o = vX; ls4 = vT + 4; oa = vX + 32; Dc = vX + 40; ck = vT + 1
    for w_ in range(4): A(f"ds_read_b64 {vr(o+2*w_,2)}, {vr(vOPr)} offset:{2048*w_}")
    for w_ in range(1, 4):
        A(f"s_waitcnt lgkmcnt({3-w_})")
        A(f"v_pk_add_f32 {vr(o,2)}, {vr(o,2)}, {vr(o+2*w_,2)}")
    A(f"v_cvt_pk_bf16_f32 {vr(o)}, {vr(o)}, {vr(o+1)}")
    A(f"v_min_u32 {vr(o)}, -2, {vr(o)}")
    A("s_cbranch_scc0 L_slowpub")
    A(f"global_store_dword {vr(vOst)}, {vr(o)}, s[28:29]")
    A("L_pubd:")
    def ool_pub():
        A("L_slowpub:")
        A(f"global_store_dword {vr(vOst)}, {vr(o)}, s[28:29] sc1")
        A("s_branch L_pubd")
    OOL.append(ool_pub)
    stamp(6)
    A.c("out projection")
    def aset():
        for tt in range(2):
            A(f"global_load_dwordx4 {vr(oa+4*tt,4)}, {vr(vOa)}, s[28:29] offset:{1024*tt} sc1")
    A("s_cbranch_vccnz L_lretry")
    def ool_l():
        A("L_lretry:")
        A(f"global_load_dwordx4 {vr(ls4,4)}, {vr(vLa)}, s[28:29] sc1")
        A("s_add_u32 s35, s35, 1")
        A("s_waitcnt vmcnt(0)")
        weights()
        A("s_cbranch_scc1 L_lok")
        A("s_cbranch_vccnz L_lretry")
        A("L_lok:")
        A(f"s_mov_b32 s35, {-SPIN & 0xffffffff}")
        A("s_branch L_apoll0")
    OOL.insert(0, ool_l)
    A("L_apoll0:")
    def achk():
        A(f"v_max3_u32 {vr(ck)}, {vr(oa)}, {vr(oa+1)}, {vr(oa+2)}"); A(f"v_max3_u32 {vr(ck)}, {vr(ck)}, {vr(oa+3)}, {vr(oa+4)}")
        A(f"v_max3_u32 {vr(ck)}, {vr(ck)}, {vr(oa+5)}, {vr(oa+6)}"); A(f"v_max_u32 {vr(ck)}, {vr(ck)}, {vr(oa+7)}")
    if NL:
        aset()
        A("s_waitcnt vmcnt(2)")
        wo_perm(range(2 - NL, 2))
        A("s_waitcnt vmcnt(0)")
        achk()
        A(f"v_cmpx_eq_u32 vcc, -1, {vr(ck)}")
        A("s_cbranch_execz L_adone")
    A("L_apoll:")
    aset()
    A("s_add_u32 s35, s35, 1")
    A("s_waitcnt vmcnt(0)")
    achk()
    A("s_cbranch_scc1 L_adone")
    A(f"v_cmpx_eq_u32 vcc, -1, {vr(ck)}")
    A("s_cbranch_execnz L_apoll")
    A("L_adone:")
    A("s_mov_b64 exec, -1")
    A(f"s_mov_b32 s35, {-SPIN & 0xffffffff}")
    stamp(7)
    pp = vT + 16
    def wsum(c):
        return [f"v_mul_f32 {vr(pp+c)}, {vr(Dc+4*c)}, {vr(ls4)}"] + [f"v_fmac_f32 {vr(pp+c)}, {vr(Dc+4*c+i)}, {vr(ls4+i)}" for i in range(1, 4)]
    ws = sum((wsum(c) for c in range(4)), [])
    for k in range(8):
        c, tt = k >> 1, k & 1
        cc_ = "0" if tt == 0 else vr(Dc+4*c, 4)
        A(f"v_mfma_f32_16x16x32_bf16 {vr(Dc+4*c,4)}, {vr(oa+4*tt,4)}, {vr(vW+16*tt+4*c,4)}, {cc_}")
        if 1 <= k <= 3: A("s_nop 1")
        if k >= 4: A(ws.pop(0)); A(ws.pop(0))
    for x in ws: A(x)
    A(f"ds_write_b128 {vr(vPPa)}, {vr(pp,4)}")
    A("s_mov_b64 exec, 0xffff")
    A("s_waitcnt lgkmcnt(0)")
    stamp(8)
    A("s_barrier")
    pr = vX
    for w_ in range(4): A(f"ds_read_b128 {vr(pr+4*w_,4)}, {vr(vPPr)} offset:{1024*w_}")
    for w_ in range(1, 4):
        A(f"s_waitcnt lgkmcnt({3-w_})")
        for k in (0, 2): A(f"v_pk_add_f32 {vr(pr+k,2)}, {vr(pr+k,2)}, {vr(pr+4*w_+k,2)}")
    A(f"v_cvt_pk_bf16_f32 {vr(pr)}, {vr(pr)}, {vr(pr+1)}"); A(f"v_cvt_pk_bf16_f32 {vr(pr+1)}, {vr(pr+2)}, {vr(pr+3)}")
    A(f"v_min_u32 {vr(pr)}, -2, {vr(pr)}"); A(f"v_min_u32 {vr(pr+1)}, -2, {vr(pr+1)}")
    A("s_mov_b32 exec_lo, s44")
    A(f"global_store_dwordx2 {vr(vBst)}, {vr(pr,2)}, s[28:29] sc1")
    A("s_mov_b32 exec_lo, s45")
    A(f"global_store_dwordx2 {vr(vBst)}, {vr(pr,2)}, s[28:29]")
    A("s_mov_b64 exec, s[42:43]")
    stamp(9)
    if "a" in bx: A("s_waitcnt vmcnt(0)")
    if "b" in bx: A("s_barrier")
    if PB0: A(f"s_sleep {PB0}")
    def bset():
        for i in range(4):
            A(f"global_load_dwordx4 {vr(bl+4*i,4)}, {vr(vBa)}, s[28:29] offset:{896*i} sc1")
    for _ in range(DB - 1): bset()
    A("L_bpoll:")
    if PB: A(f"s_sleep {PB}")
    bset()
    A("s_add_u32 s35, s35, 1")
    A(f"s_waitcnt vmcnt({4*(DB-1)})")
    A(f"v_max3_u32 {vr(ck)}, {vr(bl)}, {vr(bl+1)}, {vr(bl+2)}")
    for i in range(3, 15, 2): A(f"v_max3_u32 {vr(ck)}, {vr(ck)}, {vr(bl+i)}, {vr(bl+i+1)}")
    A(f"v_max_u32 {vr(ck)}, {vr(ck)}, {vr(bl+15)}")
    A("s_cbranch_scc1 L_bdone")
    A(f"v_cmpx_eq_u32 vcc, -1, {vr(ck)}")
    A("s_cbranch_execnz L_bpoll")
    A("L_bdone:")
    A("s_mov_b64 exec, -1")
    stamp(10)
    A.c("h = x + sum of the 16 partials (matrix core does the unpack and the adds)")
    hh_ = vXr; s1 = vT + 8
    A(f"v_mov_b32 {vr(vT)}, {L_HS}")
    for i in range(4): A(f"v_mfma_f32_16x16x32_bf16 {vr(hh_,4)}, {vr(vDl,4)}, {vr(bl+4*i,4)}, {vr(hh_,4)}")
    for k in (0, 2): A(f"v_pk_fma_f32 {vr(vT+4+k,2)}, {vr(hh_+k,2)}, {vr(vKs,2)}, {vr(vKs,2)} op_sel:[0,0,1] op_sel_hi:[1,0,1]")
    A(f"ds_write_b128 {vr(vHw)}, {vr(hh_,4)}")
    A(f"v_pk_mul_f32 {vr(s1,2)}, {vr(hh_,2)}, {vr(vT+4,2)}")
    A(f"v_pk_fma_f32 {vr(s1,2)}, {vr(hh_+2,2)}, {vr(vT+6,2)}, {vr(s1,2)}")
    A(f"v_add_f32 {vr(s1)}, {vr(s1)}, {vr(s1+1)}")
    for sh in (8, 4, 2, 1):
        A(f"v_add_f32_dpp {vr(s1)}, {vr(s1)}, {vr(s1)} row_ror:{sh} row_mask:0xf bank_mask:0xf")
    A(f"v_add_f32_dpp {vr(s1)}, {vr(s1)}, {vr(s1)} row_bcast:15 row_mask:0xa bank_mask:0xf")
    A("s_mov_b64 exec, s[40:41]")
    A(f"ds_write_b32 {vr(vHsw)}, {vr(s1)}")
    A("s_mov_b64 exec, -1")
    A("s_waitcnt lgkmcnt(0)")
    A("s_barrier")
    A.c("LayerNorm(LayerNorm(h)) = (h - mu) * rsqrt(var*(1+eps) + eps^2), then the token MLP")
    h8 = vT + 4; hv = vT + 1
    A(f"ds_read_b128 {vr(h8,4)}, {vr(vT)}")
    A(f"ds_read_b128 {vr(h8+4,4)}, {vr(vT)} offset:16")
    A(f"ds_read_b32 {vr(hv)}, {vr(vHa)}")
    A(f"ds_read_b64 {vr(vHf,2)}, {vr(vHf)}")
    mu = vT + 2; rs = vT + 3
    A(f"v_mov_b32 {vr(vT+12)}, {f32(1e-10)}")
    A("s_waitcnt lgkmcnt(3)")
    A(f"v_pk_add_f32 {vr(h8,2)}, {vr(h8,2)}, {vr(h8+2,2)}")
    A(f"v_add_f32 {vr(mu)}, {vr(h8)}, {vr(h8+1)}")
    A("s_waitcnt lgkmcnt(2)")
    A(f"v_pk_add_f32 {vr(h8+4,2)}, {vr(h8+4,2)}, {vr(h8+6,2)}")
    A(f"v_mul_f32 {vr(mu)}, s37, {vr(mu)}")
    A(f"v_add_f32 {vr(rs)}, {vr(h8+4)}, {vr(h8+5)}")
    A(f"v_mul_f32 {vr(h8)}, {vr(mu)}, {vr(mu)}")
    A(f"v_fma_f32 {vr(rs)}, {vr(rs)}, s37, -{vr(h8)}")
    A(f"v_max_f32 {vr(rs)}, 0, {vr(rs)}")
    A(f"v_fmac_f32 {vr(vT+12)}, s36, {vr(rs)}")
    A(f"v_rsq_f32 {vr(rs)}, {vr(vT+12)}")
    A("s_waitcnt lgkmcnt(1) vmcnt(0)")
    A(f"v_sub_f32 {vr(hv)}, {vr(hv)}, {vr(mu)}")
    A(f"v_mul_f32 {vr(hv)}, {vr(hv)}, {vr(rs)}")
    A(f"v_cvt_pk_bf16_f32 {vr(hv)}, {vr(hv)}, {vr(hv)}")
    A(f"v_and_b32 {vr(hv)}, s38, {vr(hv)}")
    X_ = vT + 4; Y = vT + 5; t1 = vT + 6; t2 = vT + 7; Am = vT + 8
    A(f"v_fma_f32 {vr(X_)}, {vr(hv)}, {vr(vK1)}, {vr(vK1+1)}"); A(f"v_mul_f32 {vr(X_)}, {vr(X_)}, {vr(hv)}")
    A(f"v_fma_f32 {vr(Y)}, {vr(X_)}, {vr(vK1)}, {vr(vK1+2)}")
    A(f"v_cvt_pk_bf16_f32 {vr(Am)}, {vr(X_)}, {vr(X_)}")
    A(f"v_mul_f32 {vr(Y)}, {vr(Y)}, {vr(hv)}")
    A(f"v_and_b32 {vr(t1)}, s38, {vr(Am)}")
    A(f"v_cvt_pk_bf16_f32 {vr(Am+2)}, {vr(Y)}, {vr(Y)}")
    A(f"v_sub_f32 {vr(X_)}, {vr(X_)}, {vr(t1)}")
    A(f"v_and_b32 {vr(t2)}, s38, {vr(Am+2)}")
    A(f"v_cvt_pk_bf16_f32 {vr(Am+1)}, {vr(X_)}, {vr(X_)}")
    A(f"v_sub_f32 {vr(Y)}, {vr(Y)}, {vr(t2)}")
    A(f"v_or_b32 {vr(Am+1)}, {vr(Am+1)}, {vr(vK1+3)}")
    A(f"v_cvt_pk_bf16_f32 {vr(Am+3)}, {vr(Y)}, {vr(Y)}")
    A(f"v_or_b32 {vr(Am+3)}, {vr(Am+3)}, {vr(vK1+4)}")
    A(f"v_cmp_nge_f32 vcc, s59, |{vr(hv)}|")
    stamp(11)
    Db = [vX, vX + 16, vX + 32]; acc = vT + 12; Dd = vRaw; Nn = vRaw + 8
    def mm(tile):
        A(f"v_mfma_f32_32x32x16_bf16 {vr(Db[tile%3],16)}, {vr(Am,4)}, {vr(vC+4*tile,4)}, 0")
    mm(0)
    A("s_waitcnt lgkmcnt(0)")
    A(f"v_add_f32 {vr(vHf)}, {vr(vHf)}, {vr(vB2)}"); A(f"v_add_f32 {vr(vHf+1)}, {vr(vHf+1)}, {vr(vB2)}")
    A(f"v_lshlrev_b32 {vr(vT)}, 3, v1"); A(f"v_add_u32 {vr(vT)}, {L_Y}, {vr(vT)}")
    A("s_cbranch_vccnz L_fb")
    A.c("sum_f n_f / (1 + e_f) kept as one fraction N / D")
    for tile in range(14):
        D = Db[tile % 3]
        if tile + 1 < 14: mm(tile + 1)
        for i in range(7): A(f"v_exp_f32 {vr(D+i)}, {vr(D+i)}")
        if tile == 0:
            for k in range(0, 8, 2): A(f"v_pk_add_f32 {vr(Dd+k,2)}, {vr(D+k,2)}, 1.0 op_sel_hi:[1,0]")
            continue
        Np = Db[0] + 8 if tile == 1 else Nn
        for k in range(0, 8, 2): A(f"v_pk_fma_f32 {vr(D+8+k,2)}, {vr(D+8+k,2)}, {vr(Dd+k,2)}, {vr(Np+k,2)}")
        for k in range(0, 8, 2): A(f"v_pk_fma_f32 {vr(Dd+k,2)}, {vr(Dd+k,2)}, {vr(D+k,2)}, {vr(Dd+k,2)}")
        for k in range(0, 8, 2): A(f"v_pk_fma_f32 {vr(Nn+k,2)}, {vr(Np+k,2)}, {vr(D+k,2)}, {vr(D+8+k,2)}")
    for i in range(7): A(f"v_rcp_f32 {vr(Dd+i)}, {vr(Dd+i)}")
    for k in range(0, 8, 2): A(f"v_pk_mul_f32 {vr(acc+k,2)}, {vr(Nn+k,2)}, {vr(Dd+k,2)}")
    A("L_fbd:")
    A("s_cmp_eq_u32 s30, 1")
    def ool_fb():
        A("L_fb:")
        A.c("direct evaluation (large activations or weights)")
        hh = vRaw; fa = vRaw + 8; w_ = vRaw + 9; b_ = vRaw + 10; u_ = vRaw + 11; x_ = vRaw + 12; p_ = vRaw + 13; al = vRaw + 14
        A(f"v_lshrrev_b32 {vr(fa)}, 5, v0"); A(f"v_mul_u32_u24 {vr(fa)}, 28, {vr(fa)}")
        A("s_mul_i32 s33, s32, 56"); A(f"s_add_u32 s33, s33, {L_H}"); A(f"v_add_u32 {vr(fa)}, s33, {vr(fa)}")
        for i in range(7): A(f"ds_read_b32 {vr(hh+i)}, {vr(fa)} offset:{4*i}")
        A(f"v_and_b32 {vr(fa)}, 31, v0"); A(f"v_lshlrev_b32 {vr(fa)}, 1, {vr(fa)}")
        A("s_mul_i32 s33, s30, 896"); A(f"v_add_u32 {vr(fa)}, s33, {vr(fa)}")
        A(f"s_mov_b32 s33, {f32(BETA)}"); A(f"v_mov_b32 {vr(al)}, {f32(ALPHA)}")
        for i in range(8): A(f"v_mov_b32 {vr(acc+i)}, 0")
        A("s_waitcnt lgkmcnt(0)")
        for i in range(7):
            A(f"v_sub_f32 {vr(hh+i)}, {vr(hh+i)}, {vr(mu)}"); A(f"v_mul_f32 {vr(hh+i)}, {vr(hh+i)}, {vr(rs)}")
            A(f"v_cvt_pk_bf16_f32 {vr(hh+i)}, {vr(hh+i)}, {vr(hh+i)}"); A(f"v_and_b32 {vr(hh+i)}, s38, {vr(hh+i)}")
        A("s_mov_b32 s34, 0")
        A("L_fbl:")
        A(f"global_load_ushort {vr(w_)}, {vr(fa)}, s[16:17]"); A(f"global_load_ushort {vr(b_)}, {vr(fa)}, s[18:19]"); A(f"global_load_ushort {vr(u_)}, {vr(fa)}, s[20:21]")
        A(f"v_add_u32 {vr(fa)}, 64, {vr(fa)}")
        A("s_waitcnt vmcnt(0)")
        for r_ in (w_, b_, u_): A(f"v_lshlrev_b32 {vr(r_)}, 16, {vr(r_)}")
        for i in range(7):
            A(f"v_fma_f32 {vr(x_)}, {vr(w_)}, {vr(hh+i)}, {vr(b_)}")
            A(f"v_mul_f32 {vr(p_)}, {vr(x_)}, {vr(x_)}"); A(f"v_fma_f32 {vr(p_)}, {vr(p_)}, s33, {vr(al)}"); A(f"v_mul_f32 {vr(p_)}, {vr(p_)}, {vr(x_)}")
            A(f"v_exp_f32 {vr(p_)}, {vr(p_)}"); A(f"v_add_f32 {vr(p_)}, 1.0, {vr(p_)}"); A(f"v_rcp_f32 {vr(p_)}, {vr(p_)}")
            A(f"v_mul_f32 {vr(x_)}, {vr(x_)}, {vr(p_)}"); A(f"v_fmac_f32 {vr(acc+i)}, {vr(x_)}, {vr(u_)}")
        A("s_add_u32 s34, s34, 1"); A("s_cmp_lt_u32 s34, 14"); A("s_cbranch_scc1 L_fbl")
        A("s_branch L_fbd")
    OOL.append(ool_fb)
    stamp(12)
    for k in range(4): A(f"v_add_f32_dpp {vr(acc+2*k)}, {vr(acc+2*k)}, {vr(acc+2*k)} row_ror:8 row_mask:0xf bank_mask:0x3")
    for k in range(4): A(f"v_add_f32_dpp {vr(acc+2*k)}, {vr(acc+2*k+1)}, {vr(acc+2*k+1)} row_ror:8 row_mask:0xf bank_mask:0xc")
    for k in range(2): A(f"v_add_f32_dpp {vr(acc+4*k)}, {vr(acc+4*k)}, {vr(acc+4*k)} row_shl:4 row_mask:0xf bank_mask:0x5")
    for k in range(2): A(f"v_add_f32_dpp {vr(acc+4*k)}, {vr(acc+4*k+2)}, {vr(acc+4*k+2)} row_shr:4 row_mask:0xf bank_mask:0xa")
    A(f"v_permlane16_swap_b32 {vr(acc)}, {vr(acc+4)}")
    A(f"v_add_f32 {vr(acc)}, {vr(acc)}, {vr(acc+4)}")
    A(f"v_add_f32_dpp {vr(acc)}, {vr(acc)}, {vr(acc)} quad_perm:[1,0,3,2] row_mask:0xf bank_mask:0xf")
    A(f"v_add_f32_dpp {vr(acc)}, {vr(acc)}, {vr(acc)} quad_perm:[2,3,0,1] row_mask:0xf bank_mask:0xf")
    A(f"ds_write_b32 {vr(vYa)}, {vr(acc)}")
    A("s_mov_b64 exec, 0x7f")
    A("s_waitcnt lgkmcnt(0)")
    A("s_barrier")
    A("s_cbranch_scc0 L_fin")
    A(f"ds_read2_b64 {vr(vT+4,4)}, {vr(vT)} offset0:0 offset1:8")
    A(f"ds_read2_b64 {vr(vT+8,4)}, {vr(vT)} offset0:16 offset1:24")
    A("s_waitcnt lgkmcnt(1)")
    A(f"v_pk_add_f32 {vr(vHf,2)}, {vr(vHf,2)}, {vr(vT+4,2)}"); A(f"v_pk_add_f32 {vr(vHf,2)}, {vr(vHf,2)}, {vr(vT+6,2)}")
    A("s_waitcnt lgkmcnt(0)")
    A(f"v_pk_add_f32 {vr(vHf,2)}, {vr(vHf,2)}, {vr(vT+8,2)}"); A(f"v_pk_add_f32 {vr(vHf,2)}, {vr(vHf,2)}, {vr(vT+10,2)}")
    A(f"v_cvt_pk_bf16_f32 {vr(vT+2)}, {vr(vHf)}, {vr(vHf+1)}")
    A(f"global_store_dword {vr(vOut)}, {vr(vT+2)}, s[24:25]")
    A("L_fin:")
    stamp(13)
    if amp:
        A(f"s_cmp_eq_u32 s30, {amp[0]}"); A("s_cbranch_scc0 L_end")
        A("s_waitcnt lgkmcnt(0)")
        A(f"s_sub_u32 s33, s{64+2*amp[1]}, s{64+2*amp[2]}")
        if amp[3] < 0: A("s_sub_u32 s33, 3000, s33")
        A("s_min_u32 s33, s33, 5000"); A("s_lshl_b32 s33, s33, 3"); A("s_add_u32 s33, s33, 4000")
        A("L_amp:")
        A("s_memrealtime s[34:35]"); A("s_waitcnt lgkmcnt(0)"); A("s_sub_u32 s34, s34, s64")
        A("s_cmp_lt_u32 s34, s33"); A("s_cbranch_scc1 L_amp")
    dump_stamps(14)
    A("L_end:")
    A("s_endpgm")
    for f in OOL: f()
    A(f".if (. - {NAME}) < 16384")
    A(f".fill (16384 - (. - {NAME})) / 4, 4, 0xbf810000")
    A(".endif")

    body, nn = fix_hazards(A.L)
    head = [l.rstrip("\n") for l in open("header.txt")]
    head.append(f"; @launch grid=(256,1,1) block=(512,1,1) lds={L_END}")
    head += ['.amdgcn_target "amdgcn-amd-amdhsa--gfx950"', ".text", f".globl {NAME}", ".p2align 8", f".type {NAME},@function"]
    tail = ['.section .rodata,"a"', ".p2align 6", f".amdhsa_kernel {NAME}",
            "  .amdhsa_next_free_vgpr 256", "  .amdhsa_next_free_sgpr 96", "  .amdhsa_accum_offset 256",
            "  .amdhsa_group_segment_fixed_size 0", "  .amdhsa_kernarg_size 104", "  .amdhsa_user_sgpr_count 2",
            "  .amdhsa_user_sgpr_kernarg_segment_ptr 1", "  .amdhsa_system_sgpr_workgroup_id_x 1",
            "  .amdhsa_float_denorm_mode_32 3", ".end_amdhsa_kernel"]
    return "\n".join(head + body + tail) + "\n"

if __name__ == "__main__":
    kw = eval("dict(" + (sys.argv[2] if len(sys.argv) > 2 else "") + ")")
    open(sys.argv[1], "w").write(gen(**kw))
```

```python
import sys, struct, math
from asmlib import *

NAME = "sequential_preLN__sliding_block_cached__mixer_token_mlp__decode_kernel"
def f32(x): return "0x%08x" % struct.unpack("<I", struct.pack("<f", x))[0]

L_K = 0; L_WQ = 131072; L_Q = 145408; L_STAT = 146432; L_OP = 146688; L_PP = 154880; L_H = 158976; L_HS = 161024; L_Y = 161088
L_END = 161344
L_X = L_OP
W_Q = 0
W_O = 0x40000
W_B = 0x80000
W_ALT = 0x100000
W_STAMP = 0x200000
SPIN = 0x20000
STAMP_VIEW = [("S", slice(4, 8), [0, 8, 6, 7, 1, 2, 3, 4, 5]), ("T0", 0, [0, 1, 3, 4, 14]), ("T3L", 3, [0, 1, 4], slice(224, 256)),
              ("T1", 1, [0, 4, 2, 5, 6, 7, 8, 9, 10, 11, 12, 13]), ("Tall", slice(0, 4), [5, 6, 7, 8, 9, 10, 11, 12, 13])]
ALPHA = -2.0 * math.sqrt(2.0 / math.pi) * math.log2(math.e)
BETA = ALPHA * 0.044715

def gen(W=8, QPOS=5, QD=1, FT=-1, stamps=False, force_slow=False, pol="nt", qpol="nt", opol="nt", spol="", skip="",
        pref=True, opos="mid", qx=16, force_fb=False, touch=True, amp=None, DA=1, DB=1, rotm=7, PB=0, NL=1, EP=0, inst=0, spf=2, WE=0, WEN=64, WE0=8, WEM=0x55, NLD=2, LD0=0, qpace=0, prio=0, sched=(14,)+(0,)*13, pre=0, bx="ab", PB0=0):
    A = Asm()
    OOL = []
    def stamp(i):
        if stamps or (amp and i in (amp[1], amp[2], 0)): A(f"s_memrealtime s[{64+2*i}:{65+2*i}]")
    def dump_stamps(nst):
        if not stamps: return
        A("s_waitcnt lgkmcnt(0) vmcnt(0)")
        A("s_lshl_b32 s94, s2, 3"); A("s_add_u32 s94, s94, s30"); A("s_lshl_b32 s94, s94, 6"); A(f"s_add_u32 s94, s94, {W_STAMP}")
        A("s_mov_b64 exec, 1")
        A("v_mov_b32 v250, s94")
        for i in range(nst):
            A(f"v_mov_b32 v251, s{64+2*i}")
            A(f"global_store_dword v250, v251, s[28:29] offset:{4*i}")
        A("s_getreg_b32 s94, hwreg(HW_REG_XCC_ID, 0, 4)"); A("v_mov_b32 v251, s94")
        A("global_store_dword v250, v251, s[28:29] offset:60")
        A("s_waitcnt vmcnt(0)")

    A(f"{NAME}:")
    stamp(0)
    A("s_load_dwordx16 s[4:19], s[0:1], 0")
    A("s_load_dwordx8 s[20:27], s[0:1], 64")
    A("s_load_dwordx2 s[28:29], s[0:1], 96")
    A("v_lshrrev_b32 v1, 6, v0")
    A("s_lshr_b32 s32, s2, 3")
    A("v_readfirstlane_b32 s30, v1")
    A("s_cmp_ge_u32 s32, 32")
    A("s_cbranch_scc1 L_end")
    A("v_and_b32 v0, 63, v0")
    A("s_and_b32 s31, s2, 7")
    A("v_lshlrev_b32 v3, 4, v0")
    A("s_cmp_lt_u32 s30, 4")
    A("s_cbranch_scc1 L_T")

    A.c("================ stream waves")
    V = Alloc(4, 256)
    vK = V(8); vVo = V(8); vKA = V(4); vM = V(4); vT = V(8); vOPa = V(2); vQA = V(); vSTw = V(); vSTr = V()
    vS = V(16); vAcc = vK; vQ = V(32); vKF = V(32); vVv = V(128)
    vA = vQ
    assert vKF == vQ + 32
    def X(i): return ((8*(i & 1) + (i >> 1)) << 4) | (i << 10)
    A("s_lshr_b32 s34, s2, 5"); A("s_lshl3_add_u32 s34, s34, s31"); A("s_and_b32 s35, s32, 3"); A("s_lshl4_add_u32 s34, s34, s35")
    A("s_lshl4_add_u32 s34, s34, s30"); A("s_addk_i32 s34, 188"); A("s_lshl_b32 s40, s34, 13")
    A("s_sub_u32 s33, s30, 4")
    A("s_lshl_b32 s37, s33, 15")
    if rotm == 7:
        A("s_and_b32 s38, s32, 1"); A("s_bfe_u32 s60, s32, 0x20001"); A("s_lshl3_add_u32 s38, s38, s60")
        A("s_and_b32 s36, s32, 7"); A("s_lshl_b32 s36, s36, 10"); A("s_lshl4_add_u32 s38, s38, s36")
    else:
        A("s_and_b32 s60, s32, 1"); A("s_lshl_b32 s36, s60, 12"); A("s_lshl_b32 s60, s60, 1"); A("s_lshl4_add_u32 s38, s60, s36")
    A("s_or_b32 s44, s37, s36")
    A(f"v_and_b32 {vr(vT)}, 32, v0"); A(f"v_lshlrev_b32 {vr(vT)}, 1, {vr(vT)}")
    A(f"v_xor_b32 {vr(vT)}, {vr(vT)}, v3")
    A(f"v_xor_b32 {vr(vK)}, s38, {vr(vT)}")
    if prio == 2: A("s_setprio 3")
    A("s_brev_b32 s54, 16"); A("s_mov_b32 s55, 0x20000")
    A("s_mov_b32 m0, s44")
    A("s_waitcnt lgkmcnt(0)")
    A("s_mov_b64 s[52:53], s[6:7]")
    stamp(8)
    issued = [0]
    def throttle():
        if WE and WE0 <= issued[0] < WE0 + WEN:
            A(f"s_cbranch_vccz L_th{issued[0]}"); A(f"s_waitcnt vmcnt({abs(WE)-1})"); A(f"L_th{issued[0]}:")
        if issued[0] >= W: A(f"s_waitcnt vmcnt({W-1})")
        issued[0] += 1
    def kload(tl, i):
        if tl or i: A(f"s_xor_b32 m0, s44, {(tl << 13) | (i << 10)}")
        if tl == 0 and i: A(f"v_xor_b32 {vr(vK+i)}, {X(i)}, {vr(vK)}")
        throttle()
        A(f"buffer_load_dwordx4 {vr(vK+i)}, s[52:55], s{40+tl} offen {pol} lds")
    for i in range(8): kload(0, i)
    A("s_branch L_S2")

    A("L_T:")
    A.c("================ tail waves")
    V = Alloc(4, 250)
    vC = V(56); vW = V(32); vRaw = V(32); vX = V(56); tT = V(24)
    vXr = V(4); vDl = V(4); vQs = V(4); vG = V(4); vK1 = V(5); vHa = V(); vKs = V(2); vHf = V(2)
    vYa = V(); vLa = V(); vOa = V(); vPPa = V(); vBst = V(); vOst = V(); vLst = V(); vLse = V()
    vBa = V(); vHw = V(); vHsw = V(); vOut = V(); vB2 = V(); vQa = V(); vOPr = V(); vPPr = V(); vWa = V(2); vQw = V()
    assert vRaw == vW + 32
    raw = vRaw
    def prep_loads():
        t = tT + 16
        A.c("MLP weights, residual row piece, b2")
        A(f"v_and_b32 {vr(t)}, 31, v0")
        A("s_mul_i32 s33, s30, 896")
        A(f"v_lshlrev_b32 {vr(t+1)}, 4, {vr(t)}"); A(f"v_add_u32 {vr(t+1)}, s33, {vr(t+1)}")
        A(f"v_lshlrev_b32 {vr(t+2)}, 3, {vr(t)}"); A(f"v_add_u32 {vr(t+2)}, s33, {vr(t+2)}")
        A(f"v_lshlrev_b32 {vr(t+3)}, 2, {vr(t)}"); A(f"v_add_u32 {vr(t+3)}, s33, {vr(t+3)}")
        for k, sp in enumerate((16, 18, 20)):
            A(f"global_load_dwordx4 {vr(raw+8*k,4)}, {vr(t+1)}, s[{sp}:{sp+1}] {spol}")
            A(f"global_load_dwordx2 {vr(raw+8*k+4,2)}, {vr(t+2)}, s[{sp}:{sp+1}] offset:512 {spol}")
            A(f"global_load_dword {vr(raw+8*k+6)}, {vr(t+3)}, s[{sp}:{sp+1}] offset:768 {spol}")
        A(f"v_min_u32 {vr(t)}, 13, v1"); A(f"v_and_b32 {vr(t+1)}, 1, v2")
        A("s_mul_i32 s33, s31, 896"); A("s_mul_i32 s34, s30, 224"); A("s_add_u32 s33, s33, s34")
        A(f"v_lshlrev_b32 {vr(t)}, 4, {vr(t)}"); A(f"v_lshl_add_u32 {vr(t)}, {vr(t+1)}, 3, {vr(t)}"); A(f"v_add_u32 {vr(t)}, s33, {vr(t)}")
        A(f"global_load_dwordx2 {vr(vXr+2,2)}, {vr(t)}, s[4:5] {spol}")
        A(f"v_mov_b32 {vr(t+2)}, 0")
        A(f"global_load_ushort {vr(vB2)}, {vr(t+2)}, s[22:23] {spol}")
    A("v_and_b32 v1, 15, v0")
    A("v_lshrrev_b32 v2, 4, v0")
    A("s_lshl_b32 s63, s31, 2")
    A(f"v_mov_b32 {vr(vQw)}, 0")
    if "T" in skip:
        A("s_waitcnt lgkmcnt(0)"); A("s_barrier"); A("s_barrier"); A("s_barrier")
        if NL: A("s_barrier")
        A("s_branch L_b3")
    A("s_cmp_eq_u32 s30, 0"); A("s_cbranch_scc1 L_T0")
    A("s_cmp_eq_u32 s30, 3"); A("s_cbranch_scc1 L_T3")
    if spf:
        A("s_cmp_eq_u32 s30, 1"); A("s_cbranch_scc1 L_T1")
    if pref:
        if not spf: A("s_cmp_eq_u32 s30, 2"); A("s_cbranch_scc0 L_prepw")
        A.c("T2: pull the code into this XCD's L2")
        A("s_getpc_b64 s[34:35]")
        A("L_pc:")
        A(f"s_sub_u32 s34, s34, L_pc-{NAME}"); A("s_subb_u32 s35, s35, 0")
        A("s_lshl_b32 s33, s32, 9")
        A(f"v_lshlrev_b32 {vr(tT)}, 3, v0"); A(f"v_add_u32 {vr(tT)}, s33, {vr(tT)}")
        A(f"global_load_dwordx2 {vr(tT+2,2)}, {vr(tT)}, s[34:35]")
    A("s_branch L_prepw")
    if spf:
        A("L_T1:")
        A.c("T1: pull 14 rows of the wq column block that r=28..31 read (and of the last block) into L2")
        A("s_mul_i32 s33, s32, 14*8192"); A("s_lshl_b32 s34, s31, 10"); A("s_add_u32 s33, s33, s34"); A("s_addk_i32 s33, 384")
        A(f"v_min_u32 {vr(tT)}, 13, v1"); A(f"v_lshlrev_b32 {vr(tT)}, 13, {vr(tT)}")
        A(f"v_and_b32 {vr(tT+1)}, 1, v2"); A(f"v_lshl_add_u32 {vr(tT)}, {vr(tT+1)}, 6, {vr(tT)}")
        A(f"v_lshrrev_b32 {vr(tT+1)}, 1, v2"); A(f"v_lshl_add_u32 {vr(tT)}, {vr(tT+1)}, 9, {vr(tT)}")
        A(f"v_add_u32 {vr(tT)}, s33, {vr(tT)}")
        A("s_cmp_eq_u32 s31, 7"); A("s_cselect_b32 exec_hi, -1, 0")
        if spf == 2: A("s_and_b32 exec_hi, exec_hi, 0xffff"); A("s_mov_b32 exec_lo, 0xffff")
        A("s_waitcnt lgkmcnt(0)")
        A(f"global_load_dword {vr(tT+2)}, {vr(tT)}, s[10:11]")
        A("s_mov_b64 exec, -1")
        A("s_branch L_prepw")
    A("L_T3:")
    A.c(f"T3 of {NLD} workgroup(s) per group: clear a share of the group's q and lse slots, then count in")
    per = 4 // NLD
    A(f"s_sub_u32 s36, s32, {LD0}"); A(f"s_cmp_lt_u32 s36, {NLD}"); A("s_cbranch_scc0 L_prepw")
    for i in range(4): A(f"v_mov_b32 {vr(tT+4+i)}, -1")
    A("s_getreg_b32 s34, hwreg(HW_REG_XCC_ID, 0, 4)")
    if per > 1: A(f"s_mul_i32 s34, s34, {0x1111 & ((1 << (4*per)) - 1)}"); A(f"s_mul_i32 s36, s36, {per}")
    A("s_lshl_b32 s33, s36, 2"); A("s_lshl_b32 s34, s34, s33"); A(f"s_bitset1_b32 s34, {16 + per.bit_length() - 1}")
    A("s_lshl3_add_u32 s33, s31, s36"); A("s_lshl_b32 s33, s33, 12"); A(f"v_add_u32 {vr(tT)}, s33, v3")
    A("s_lshl_b32 s33, s31, 15"); A("s_lshl_b32 s36, s36, 6"); A("s_add_u32 s33, s33, s36"); A("s_addk_i32 s33, 16384")
    A(f"v_add_u32 {vr(tT+2)}, s33, v3")
    A("s_waitcnt lgkmcnt(0)")
    for k in range(per):
        for i in range(4): A(f"global_store_dwordx4 {vr(tT)}, {vr(tT+4,4)}, s[28:29] offset:{1024*i}")
        if k < per - 1: A(f"v_add_u32 {vr(tT)}, 4096, {vr(tT)}")
    A(f"s_mov_b64 exec, {(1 << (4*per)) - 1}")
    A(f"global_store_dwordx4 {vr(tT+2)}, {vr(tT+4,4)}, s[28:29]")
    A("s_mov_b64 exec, -1")
    A("s_waitcnt vmcnt(0)")
    A("s_atomic_add s34, s[26:27], s63")
    stamp(1)
    A("s_branch L_prepw")
    A("L_T0:")
    A.c("T0: x into LDS, clear this workgroup's share of the hand-off slots (acknowledged before q is published)")
    A(f"v_lshrrev_b32 {vr(vQw)}, 2, v0"); A(f"v_lshlrev_b32 {vr(vQw)}, 13, {vr(vQw)}"); A(f"v_and_or_b32 {vr(vQw)}, v3, 48, {vr(vQw)}")
    A(f"s_xor_b32 s34, s32, {qx}"); A("s_lshr_b32 s35, s34, 1"); A("s_lshl4_add_u32 s50, s31, s35"); A("s_lshl_b32 s50, s50, 6")
    A("s_and_b32 s48, s34, 1"); A("s_mul_i32 s34, s48, 224*8192"); A("s_add_u32 s50, s50, s34")
    A("s_movk_i32 s58, 7168"); A("s_mov_b32 s59, 0x20000"); A("s_movk_i32 s35, 4096")
    A(f"s_mov_b32 m0, {L_X}")
    A("s_lshl_b32 s33, s31, 15"); A("s_lshl_b32 s34, s32, 10"); A("s_add_u32 s33, s33, s34"); A(f"s_add_u32 s33, s33, {W_O}")
    A(f"v_add_u32 {vr(tT)}, s33, v3")
    A("s_mul_i32 s33, s31, 14336"); A("s_min_u32 s34, s32, 27"); A("s_lshl_b32 s34, s34, 9"); A("s_add_u32 s33, s33, s34"); A(f"s_add_u32 s33, s33, {W_B}")
    A(f"v_add_u32 {vr(tT+1)}, s33, v3")
    for i in range(4): A(f"v_mov_b32 {vr(vW+i)}, -1")
    A("s_waitcnt lgkmcnt(0)")
    A("s_mov_b64 s[56:57], s[4:5]")
    for t in range(4): A(f"buffer_load_dwordx4 v3, s[56:59], 0 offen offset:{1024*t} {spol} lds")
    A(f"s_mov_b32 m0, {L_X + 4096}")
    for t in range(3): A(f"buffer_load_dwordx4 v3, s[56:59], s35 offen offset:{1024*t} {spol} lds")
    A(f"global_store_dwordx4 {vr(tT)}, {vr(vW,4)}, s[28:29]")
    A.c("r = 28..31 repeat the share of r = 27 with one lane")
    A("s_cmp_lt_u32 s32, 28"); A("s_cselect_b32 exec_lo, -1, 1"); A("s_mov_b32 exec_hi, 0")
    A(f"global_store_dwordx4 {vr(tT+1)}, {vr(vW,4)}, s[28:29] sc1")
    A("s_mov_b64 exec, -1")
    A("s_branch L_prepw")

    A("L_S2:")
    A("v_and_b32 v1, 15, v0")
    A("v_lshrrev_b32 v2, 4, v0")
    for tl in range(1, 4): A(f"s_xor_b32 s{40+tl}, s40, {tl << 15}")
    A("s_mov_b64 s[56:57], s[8:9]"); A("s_mov_b32 s58, s54"); A("s_mov_b32 s59, 0x20000")
    if rotm == 7: A("s_and_b32 s61, s32, 1"); A("s_lshl_b32 s61, s61, 8")
    else: A("s_mov_b32 s61, 0")
    A(f"v_lshlrev_b32 {vr(vT)}, 4, v1"); A(f"v_lshl_add_u32 {vr(vT)}, v2, 9, {vr(vT)}")
    A("s_lshl_b32 s35, s60, 11"); A("s_or_b32 s35, s35, s61")
    A(f"v_or_b32 {vr(vVo)}, s35, {vr(vT)}")
    for e in range(1, 8): A(f"v_xor_b32 {vr(vVo+e)}, {((e >> 1) << 11) | ((e & 1) << 8)}, {vr(vVo)}")
    A(f"v_xor_b32 {vr(vT+3)}, s60, v1")
    A(f"v_and_b32 {vr(vT)}, 3, {vr(vT+3)}"); A(f"v_lshrrev_b32 {vr(vT+1)}, 2, v1")
    A(f"v_lshl_add_u32 {vr(vT+2)}, {vr(vT)}, 2, {vr(vT+1)}")
    A(f"v_xor_b32 {vr(vT+3)}, {vr(vT+3)}, v2")
    A(f"v_lshlrev_b32 {vr(vT+2)}, 9, {vr(vT+2)}"); A(f"v_add_u32 {vr(vT+2)}, s37, {vr(vT+2)}")
    A(f"v_lshl_add_u32 {vr(vKA)}, {vr(vT+3)}, 4, {vr(vT+2)}")
    for t in range(1, 4): A(f"v_xor_b32 {vr(vKA+t)}, {64*t}, {vr(vKA)}")
    A(f"v_lshrrev_b32 {vr(vT)}, 3, v1")
    A(f"v_lshlrev_b32 {vr(vQA)}, 9, {vr(vT)}"); A(f"v_lshl_add_u32 {vr(vQA)}, v2, 4, {vr(vQA)}")
    A(f"v_add_u32 {vr(vQA)}, {L_Q}, {vr(vQA)}")
    A(f"v_lshlrev_b32 {vr(vSTr)}, 5, {vr(vT)}"); A(f"v_add_u32 {vr(vSTr)}, {L_STAT}, {vr(vSTr)}")
    A("s_lshl_b32 s35, s33, 2"); A(f"v_add_u32 {vr(vSTw)}, s35, {vr(vSTr)}")
    def delta(dst, val, t0):
        A(f"v_and_b32 {vr(t0)}, 16, v3")
        A(f"v_mov_b32 {vr(t0+1)}, {val}"); A(f"v_lshlrev_b32 {vr(t0+1)}, {vr(t0)}, {vr(t0+1)}")
        A(f"v_bfe_u32 {vr(t0)}, v1, 1, 2")
        for i in range(4):
            A(f"v_cmp_eq_u32 vcc, {i}, {vr(t0)}")
            A(f"v_cndmask_b32 {vr(dst+i)}, 0, {vr(t0+1)}, vcc")
    delta(vM, "0xffff", vT)
    A(f"v_and_b32 {vr(vT)}, 1, v2"); A(f"v_lshlrev_b32 {vr(vT)}, 4, {vr(vT)}")
    A(f"v_lshrrev_b32 {vr(vT+1)}, 1, v2"); A(f"v_lshl_add_u32 {vr(vT)}, {vr(vT+1)}, 10, {vr(vT)}")
    A(f"v_lshl_add_u32 {vr(vT)}, v1, 5, {vr(vT)}")
    A("s_lshl_b32 s35, s33, 11"); A(f"s_add_u32 s35, s35, {L_OP}")
    for dh in range(2):
        A(f"s_xor_b32 s38, s61, {dh << 8}"); A("s_lshl1_add_u32 s38, s38, s35")
        A(f"v_add_u32 {vr(vOPa+dh)}, s38, {vr(vT)}")
    if WE:
        A("s_getreg_b32 s35, hwreg(HW_REG_XCC_ID, 0, 3)"); A(f"s_bitcmp1_b32 {WEM}, s35"); A("s_cselect_b64 vcc, -1, 0")
    nv = [0]
    vord = list(range(28)) + [28, 30, 29, 31]
    def more(k):
        for _ in range(k):
            if nv[0] < 32:
                idx = vord[nv[0]]; tl, e = idx >> 3, idx & 7
                throttle()
                A(f"buffer_load_dwordx4 {vr(vVv+4*idx,4)}, {vr(vVo+e)}, s[56:59], s{40+tl} offen {pol}")
                nv[0] += 1
    seq = [("k", tl, i) for tl in range(1, 4) for i in range(8)] + [("v",)] * 32
    pos = 0
    def adv(n):
        nonlocal pos
        for _ in range(n):
            it = seq[pos]; pos += 1
            if it[0] == "k": kload(it[1], it[2])
            else: more(1)
    adv(24 + QPOS)
    stamp(6)
    A("s_barrier")
    stamp(7)
    adv(W + QD)
    assert nv[0] >= W
    stamp(1)
    A("s_barrier")
    stamp(2)
    for t in range(8):
        A(f"ds_read_b128 {vr(vQ+4*t,4)}, {vr(vQA)} offset:{64*t}")
    for tl in range(4):
        for t in range(8):
            A(f"ds_read_b128 {vr(vKF+4*t,4)}, {vr(vKA+(t&3))} offset:{tl*8192 + (t>>2)*256}")
        for t in range(8):
            A(f"s_waitcnt lgkmcnt({7-t})")
            c = "0" if t == 0 else vr(vS+4*tl, 4)
            A(f"v_mfma_f32_16x16x32_bf16 {vr(vS+4*tl,4)}, {vr(vKF+4*t,4)}, {vr(vQ+4*t,4)}, {c}")
        more(1)
    SC = math.log2(math.e) / 16.0
    A(f"s_mov_b32 s35, {f32(SC)}")
    mx = vT; cp = vT + 1; ls = vT + 2
    A(f"v_max3_f32 {vr(mx)}, {vr(vS)}, {vr(vS+1)}, {vr(vS+2)}")
    for i in range(3, 15, 2):
        A(f"v_max3_f32 {vr(mx)}, {vr(mx)}, {vr(vS+i)}, {vr(vS+i+1)}")
    A(f"v_max_f32 {vr(mx)}, {vr(mx)}, {vr(vS+15)}")
    def xg(x, op):
        for sw in ("v_permlane32_swap_b32", "v_permlane16_swap_b32"):
            A(f"v_mov_b32 {vr(cp)}, {vr(x)}")
            A(f"{sw} {vr(x)}, {vr(cp)}")
            A(f"{op} {vr(x)}, {vr(x)}, {vr(cp)}")
    xg(mx, "v_max_f32")
    A(f"v_mul_f32 {vr(mx)}, s35, {vr(mx)}")
    for i in range(16):
        A(f"v_fma_f32 {vr(vS+i)}, {vr(vS+i)}, s35, -{vr(mx)}")
    for i in range(16):
        A(f"v_exp_f32 {vr(vS+i)}, {vr(vS+i)}")
    A(f"v_add_f32 {vr(ls)}, {vr(vS)}, {vr(vS+1)}")
    for i in range(2, 16):
        A(f"v_add_f32 {vr(ls)}, {vr(ls)}, {vr(vS+i)}")
    xg(ls, "v_add_f32")
    A(f"ds_write2_b32 {vr(vSTw)}, {vr(mx)}, {vr(ls)} offset0:0 offset1:4")
    more(1)
    A("s_waitcnt lgkmcnt(0)")
    A("s_barrier")
    stamp(3)
    def stats(m4, l4, M, Lr):
        A(f"v_max3_f32 {vr(M)}, {vr(m4)}, {vr(m4+1)}, {vr(m4+2)}"); A(f"v_max_f32 {vr(M)}, {vr(M)}, {vr(m4+3)}")
        for i in range(4): A(f"v_sub_f32 {vr(m4+i)}, {vr(m4+i)}, {vr(M)}")
        for i in range(4): A(f"v_exp_f32 {vr(m4+i)}, {vr(m4+i)}")
        A(f"v_mul_f32 {vr(Lr)}, {vr(m4)}, {vr(l4)}")
        for i in range(1, 4): A(f"v_fmac_f32 {vr(Lr)}, {vr(m4+i)}, {vr(l4+i)}")
    A(f"ds_read_b128 {vr(vAcc,4)}, {vr(vSTr)}")
    A(f"ds_read_b128 {vr(vAcc+4,4)}, {vr(vSTr)} offset:16")
    more(1)
    A("s_waitcnt lgkmcnt(0)")
    stats(vAcc, vAcc + 4, vT + 3, vT + 4)
    A(f"v_sub_f32 {vr(mx)}, {vr(mx)}, {vr(vT+3)}")
    A(f"v_exp_f32 {vr(mx)}, {vr(mx)}")
    A(f"v_rcp_f32 {vr(vT+4)}, {vr(vT+4)}")
    A(f"v_mul_f32 {vr(mx)}, {vr(mx)}, {vr(vT+4)}")
    for i in range(16):
        A(f"v_mul_f32 {vr(vS+i)}, {vr(vS+i)}, {vr(mx)}")
        A(f"v_cvt_pk_bf16_f32 {vr(vS+i)}, {vr(vS+i)}, {vr(vS+i)}")
        for k in range(4):
            A(f"v_and_b32 {vr(vA+4*i+k)}, {vr(vS+i)}, {vr(vM+k)}")
        if i % 8 == 7: more(1)
    stamp(4)
    done = 0
    def pv(k):
        idx = vord[k]
        i, dh = idx >> 1, idx & 1
        c = "0" if i == 0 else vr(vAcc+4*dh, 4)
        A(f"v_mfma_f32_16x16x32_bf16 {vr(vAcc+4*dh,4)}, {vr(vA+4*i,4)}, {vr(vVv+4*idx,4)}, {c}")
    while nv[0] < 32:
        more(1)
        if NL and nv[0] == 32 - EP: A("s_barrier")
        lim = min(nv[0] - W, done + 4)
        while done < lim: pv(done); done += 1
    while done < 32:
        if 31 - done < W: A(f"s_waitcnt vmcnt({31-done})")
        pv(done); done += 1
        if done == 31: A(f"ds_write_b128 {vr(vOPa)}, {vr(vAcc,4)}")
    A(f"ds_write_b128 {vr(vOPa+1)}, {vr(vAcc+4,4)}")
    stamp(5)
    A("s_waitcnt lgkmcnt(0)")
    A("s_barrier")
    dump_stamps(9)
    A("s_endpgm")

    vT = tT
    A("L_prepw:")
    A("s_waitcnt lgkmcnt(0)")
    prep_loads()
    A("s_mov_b64 s[52:53], s[10:11]"); A("s_mov_b32 s54, 0x380000"); A("s_mov_b32 s55, 0x20000")
    nq = [0]
    def wq_loads(n):
        if not n or "q" in skip: return
        A("s_cmp_eq_u32 s30, 0"); A(f"s_cbranch_scc0 L_nq{nq[0]}")
        lab = f"L_nq{nq[0]}:"
        for _ in range(n):
            A(f"s_mov_b32 m0, {L_WQ + 1024*nq[0]}")
            if qpace and nq[0] >= qpace: A(f"s_waitcnt vmcnt({qpace-1})")
            A(f"buffer_load_dwordx4 {vr(vQw)}, s[52:55], s50 offen {qpol} lds")
            A("s_add_u32 s50, s50, 0x20000")
            nq[0] += 1
        A(lab)
    assert sum(sched) + pre == 14
    wq_loads(pre)
    def wo_addr():
        A("s_bfe_u32 s34, s32, 0x10001"); A("s_lshl1_add_u32 s33, s31, s34"); A("s_lshl2_add_u32 s33, s33, s30"); A("s_lshl_b32 s33, s33, 6"); A("s_add_u32 s33, s33, 4")
        A("s_mul_i32 s33, s33, 896"); A("s_lshr_b32 s34, s32, 2"); A("s_min_u32 s34, s34, 6"); A("s_lshl_b32 s34, s34, 7"); A("s_add_u32 s33, s33, s34")
        A(f"v_mul_u32_u24 {vr(vWa)}, {8*896}, v2"); A(f"v_lshl_add_u32 {vr(vWa)}, v1, 3, {vr(vWa)}"); A(f"v_add_u32 {vr(vWa)}, s33, {vr(vWa)}")
        A(f"v_add_u32 {vr(vWa+1)}, {32*896}, {vr(vWa)}")
    def wo_loads(tts=None, tag="a"):
        tts = list(range(2 - NL)) if tts is None else tts
        if not tts: return
        A("s_cmp_ge_u32 s32, 28" if "o" not in skip else "s_cmp_ge_u32 s32, 0"); A(f"s_cbranch_scc1 L_nowo{tag}")
        for tt in tts:
            for jj in range(8):
                A(f"global_load_dwordx2 {vr(vRaw+16*tt+2*jj,2)}, {vr(vWa+tt)}, s[12:13] offset:{(jj-4)*896} {opol}")
        A(f"L_nowo{tag}:")
    def wo_perm(tts):
        for tt in tts:
            for c in range(4):
                for i in range(4):
                    lo_ = vRaw + 16*tt + 4*i + (c >> 1); hi_ = lo_ + 2
                    A(f"v_perm_b32 {vr(vW+16*tt+4*c+i)}, {vr(hi_)}, {vr(lo_)}, {'s34' if c & 1 else 's33'}")
    A.c("tail constants")
    A("s_mov_b32 s49, 0")
    wo_addr()
    A(f"s_xor_b32 s34, s32, {qx}"); A("s_and_b32 s35, s34, 1"); A("s_lshr_b32 s34, s34, 1"); A("s_lshl4_add_u32 s34, s35, s34"); A("s_lshl_b32 s34, s34, 6")
    A("s_lshl_b32 s39, s31, 15"); A("s_add_u32 s34, s34, s39")
    A(f"v_and_b32 {vr(vQa)}, 7, v1"); A(f"v_lshlrev_b32 {vr(vQa)}, 11, {vr(vQa)}"); A(f"v_lshl_add_u32 {vr(vQa)}, v2, 4, {vr(vQa)}"); A(f"v_add_u32 {vr(vQa)}, s34, {vr(vQa)}")
    def publish_q():
        A("s_getreg_b32 s47, hwreg(HW_REG_XCC_ID, 0, 4)")
        A("s_mul_i32 s47, s47, 0x1111"); A("s_bitset1_b32 s47, 18")
        if force_slow: A("s_cmp_eq_u32 s32, 5"); A("s_cselect_b32 s47, 0, s47")
        A("s_waitcnt lgkmcnt(0)")
        A("s_cmp_eq_u32 s46, s47")
        A("s_cbranch_scc0 L_f1slow")
        A("L_same:")
        A.c("the slots were cleared in this XCD's L2: publish there")
        A("s_mov_b32 exec_lo, 0x00ff00ff"); A("s_mov_b32 exec_hi, 0x00ff00ff")
        A(f"global_store_dwordx4 {vr(vQa)}, {vr(vQs,4)}, s[28:29]")
        A("s_mov_b64 exec, -1")
        stamp(3)
        A("L_nopub:")
        def ool():
            A("L_f1slow:")
            A(f"v_mov_b32 {vr(vT+20)}, s63")
            A("s_mov_b32 s35, 0")
            A("L_f1l:")
            A("s_cmp_ge_u32 s46, 0x40000")
            A("s_cbranch_scc1 L_f1d")
            A(f"global_load_dword {vr(vT+21)}, {vr(vT+20)}, s[26:27] sc1")
            A("s_add_u32 s35, s35, 1")
            A("s_waitcnt vmcnt(0)")
            A(f"v_readfirstlane_b32 s46, {vr(vT+21)}")
            A(f"s_cmp_lt_u32 s35, {SPIN}")
            A("s_cbranch_scc1 L_f1l")
            A("L_f1d:")
            A("s_cmp_eq_u32 s46, s47")
            A("s_cbranch_scc1 L_same")
            A.c("cleared on another XCD: tell the group, publish nothing here")
            A("s_add_u32 s46, s63, 32"); A("s_mov_b32 s47, 1")
            A("s_atomic_add s47, s[26:27], s46 glc")
            A("s_waitcnt lgkmcnt(0)")
            A("s_mov_b32 s49, 1")
            A("s_branch L_nopub")
        OOL.append(ool)
    A("s_mul_i32 s33, s31, 14336"); A("s_mul_i32 s34, s30, 224"); A("s_add_u32 s33, s33, s34"); A(f"s_add_u32 s33, s33, {W_B}")
    A(f"v_min_u32 {vr(vT+4)}, 13, v1")
    A(f"v_mul_u32_u24 {vr(vBa)}, 3584, v2"); A(f"v_lshl_add_u32 {vr(vBa)}, {vr(vT+4)}, 4, {vr(vBa)}"); A(f"v_add_u32 {vr(vBa)}, s33, {vr(vBa)}")
    A("s_mul_i32 s34, s30, 448"); A(f"s_add_u32 s34, s34, {L_H}")
    A(f"v_and_b32 {vr(vT+5)}, 1, v2"); A(f"v_lshlrev_b32 {vr(vHw)}, 5, v1"); A(f"v_lshl_add_u32 {vr(vHw)}, {vr(vT+5)}, 4, {vr(vHw)}"); A(f"v_add_u32 {vr(vHw)}, s34, {vr(vHw)}")
    A(f"v_mov_b32 {vr(vT+5)}, {L_H + 1792}"); A("v_cmp_gt_u32 s[42:43], 14, v1")
    A(f"v_cndmask_b32 {vr(vHw)}, {vr(vT+5)}, {vr(vHw)}, s[42:43]")
    A(f"v_lshrrev_b32 {vr(vT+6)}, 5, v0")
    A("s_lshl_b32 s34, s30, 3"); A(f"s_add_u32 s34, s34, {L_HS}")
    A(f"v_lshlrev_b32 {vr(vHsw)}, 2, {vr(vT+6)}"); A(f"v_add_u32 {vr(vHsw)}, s34, {vr(vHsw)}")
    A(f"v_cvt_f32_u32 {vr(vKs)}, {vr(vT+6)}"); A(f"v_sub_f32 {vr(vKs+1)}, 1.0, {vr(vKs)}")
    for i in range(2): A(f"v_mul_f32 {vr(vKs+i)}, {f32(1.0/448)}, {vr(vKs+i)}")
    delta(vDl, "0x3f80", vT + 8)
    A("s_mul_i32 s33, s32, 56"); A(f"s_add_u32 s33, s33, {L_H}")
    ii = vT + 8; hf = vT + 9; col = vT + 10
    A(f"v_bfe_u32 {vr(ii)}, v0, 3, 1"); A(f"v_and_b32 {vr(hf)}, 3, v0"); A(f"v_lshl_add_u32 {vr(ii)}, {vr(ii)}, 2, {vr(hf)}")
    A(f"v_bfe_u32 {vr(hf)}, v0, 2, 1")
    A(f"v_min_u32 {vr(col)}, 6, {vr(ii)}"); A(f"v_mad_u32_u24 {vr(col)}, {vr(hf)}, 7, {vr(col)}")
    A(f"v_lshlrev_b32 {vr(vHa)}, 2, {vr(col)}"); A(f"v_add_u32 {vr(vHa)}, s33, {vr(vHa)}")
    A(f"v_cmp_eq_u32 vcc, 7, {vr(ii)}"); A(f"v_cndmask_b32 {vr(vT+11)}, v2, 3, vcc")
    A(f"v_mov_b32 {vr(vT+12)}, 0x3f803f80")
    A(f"v_cmp_eq_u32 vcc, 2, {vr(vT+11)}"); A(f"v_cndmask_b32 {vr(vK1)}, 0, 1.0, vcc")
    A(f"v_cmp_eq_u32 vcc, 0, {vr(vT+11)}"); A(f"v_cndmask_b32 {vr(vK1+1)}, 0, 1.0, vcc")
    A(f"v_cndmask_b32 {vr(vK1+3)}, 0, {vr(vT+12)}, vcc")
    A(f"v_cmp_eq_u32 vcc, 1, {vr(vT+11)}"); A(f"v_cndmask_b32 {vr(vK1+2)}, 0, 1.0, vcc")
    A(f"v_cndmask_b32 {vr(vK1+4)}, 0, {vr(vT+12)}, vcc")
    A(f"v_min_u32 {vr(col)}, 6, v0"); A(f"v_lshlrev_b32 {vr(vHf)}, 3, {vr(col)}"); A(f"v_add_u32 {vr(vHf)}, s33, {vr(vHf)}")
    A("s_mul_i32 s33, s31, 896"); A("s_mul_i32 s34, s32, 28"); A("s_add_u32 s33, s33, s34")
    A(f"v_lshlrev_b32 {vr(vOut)}, 2, {vr(col)}"); A(f"v_add_u32 {vr(vOut)}, s33, {vr(vOut)}")
    A(f"v_bfe_u32 {vr(ii)}, v0, 2, 1"); A(f"v_bfe_u32 {vr(hf)}, v0, 3, 1"); A(f"v_lshl_add_u32 {vr(ii)}, {vr(ii)}, 1, {vr(hf)}")
    A(f"v_bfe_u32 {vr(hf)}, v0, 4, 1"); A(f"v_lshl_add_u32 {vr(ii)}, {vr(hf)}, 2, {vr(ii)}")
    A(f"v_mad_u32_u24 {vr(hf)}, {vr(vT+6)}, 7, {vr(ii)}")
    A(f"v_cmp_eq_u32 vcc, 7, {vr(ii)}"); A(f"v_cndmask_b32 {vr(hf)}, {vr(hf)}, 15, vcc")
    A("s_lshl_b32 s34, s30, 6"); A(f"s_add_u32 s34, s34, {L_Y}")
    A(f"v_lshlrev_b32 {vr(vYa)}, 2, {vr(hf)}"); A(f"v_add_u32 {vr(vYa)}, s34, {vr(vYa)}")
    A("s_add_u32 s33, s39, 16384"); A("s_and_b32 s34, s32, 3"); A("s_lshl_b32 s34, s34, 6"); A("s_add_u32 s34, s34, s33")
    A(f"v_lshlrev_b32 {vr(vLa)}, 4, v2"); A(f"v_add_u32 {vr(vLa)}, s34, {vr(vLa)}")
    A("s_lshl2_add_u32 s34, s32, s33")
    A(f"v_lshlrev_b32 {vr(vLst)}, 7, v0"); A(f"v_add_u32 {vr(vLst)}, s34, {vr(vLst)}")
    A(f"s_add_u32 s33, s39, {W_O}")
    A("s_and_b32 s35, s32, 1"); A("s_bfe_u32 s36, s32, 0x10001")
    A("s_lshl1_add_u32 s34, s35, s36"); A("s_lshl2_add_u32 s34, s34, s30"); A("s_lshl_b32 s34, s34, 11"); A("s_add_u32 s34, s34, s33")
    A(f"v_add_u32 {vr(vOa)}, s34, v3")
    A("s_lshl2_add_u32 s60, s35, s30")
    A("s_lshl3_add_u32 s34, s60, s31"); A("s_lshl1_add_u32 s34, s34, s36"); A("s_mul_i32 s34, s34, 896")
    A("s_lshr_b32 s36, s32, 2"); A("s_min_u32 s36, s36, 6"); A("s_lshl_b32 s36, s36, 7")
    A("s_add_u32 s34, s34, s36"); A(f"s_add_u32 s34, s34, {W_B}")
    A(f"v_lshlrev_b32 {vr(vBst)}, 3, v1"); A(f"v_add_u32 {vr(vBst)}, s34, {vr(vBst)}")
    A("s_lshr_b32 s34, s32, 4"); A("s_lshl2_add_u32 s34, s34, s30"); A("s_lshl_b32 s34, s34, 12"); A("s_add_u32 s34, s34, s33")
    A("s_and_b32 s36, s32, 15"); A("s_lshl4_add_u32 s34, s36, s34")
    A(f"v_lshrrev_b32 {vr(vOst)}, 2, v0"); A(f"v_lshlrev_b32 {vr(vOst)}, 8, {vr(vOst)}"); A(f"v_and_b32 {vr(vT+4)}, 3, v0")
    A(f"v_lshl_add_u32 {vr(vOst)}, {vr(vT+4)}, 2, {vr(vOst)}"); A(f"v_add_u32 {vr(vOst)}, s34, {vr(vOst)}")
    A("s_lshl_b32 s34, s30, 8"); A(f"s_add_u32 s34, s34, {L_PP}")
    A(f"v_lshlrev_b32 {vr(vPPr)}, 4, v1"); A(f"v_add_u32 {vr(vPPr)}, s34, {vr(vPPr)}")
    A("s_lshl_b32 s34, s30, 9"); A(f"s_add_u32 s34, s34, {L_OP}")
    A(f"v_lshlrev_b32 {vr(vOPr)}, 3, v0"); A(f"v_add_u32 {vr(vOPr)}, s34, {vr(vOPr)}")
    A("s_lshl_b32 s34, s30, 10"); A(f"s_add_u32 s34, s34, {L_PP}"); A(f"v_add_u32 {vr(vPPa)}, s34, v3")
    for i in range(4): A(f"v_mov_b32 {vr(vG+i)}, 0")
    A(f"s_mov_b32 s37, {f32(1.0/64)}")
    A(f"s_mov_b32 s33, {f32(BETA)}"); A(f"s_mov_b32 s34, {f32(3*BETA)}"); A("s_mov_b32 s38, 0xffff0000")
    A("v_cmp_lt_u32 vcc, 31, v0")
    if pre:
        A("s_cmp_eq_u32 s30, 0"); A("s_cbranch_scc1 L_pw"); A("s_waitcnt vmcnt(0)"); A("L_pw:")
    A(f"s_waitcnt vmcnt({pre})")
    A(f"v_mov_b32 {vr(vT)}, {f32(ALPHA)}")
    for i in (2, 3): A(f"v_cndmask_b32 {vr(vXr+i)}, 0, {vr(vXr+i)}, s[42:43]")
    A(f"v_lshlrev_b32 {vr(vXr)}, 16, {vr(vXr+2)}"); A(f"v_and_b32 {vr(vXr+1)}, s38, {vr(vXr+2)}")
    A(f"v_lshlrev_b32 {vr(vXr+2)}, 16, {vr(vXr+3)}"); A(f"v_and_b32 {vr(vXr+3)}, s38, {vr(vXr+3)}")
    A(f"v_lshlrev_b32 {vr(vB2)}, 16, {vr(vB2)}")
    A.c("gelu argument as a cubic in hn, and n = (w1*hn + b1)*w2, as split-bf16 MFMA operands")
    w, b, u, bb, c0, c1, c2, c3, ca, cc, hi = (vT + 1 + i for i in range(11))
    for tile in range(14):
        wq_loads(sched[tile])
        for k, d in enumerate((w, b, u)):
            src = raw + 8*k + (tile >> 1)
            if tile & 1: A(f"v_and_b32 {vr(d)}, s38, {vr(src)}")
            else: A(f"v_lshlrev_b32 {vr(d)}, 16, {vr(src)}")
        A(f"v_mul_f32 {vr(bb)}, {vr(b)}, {vr(b)}")
        A(f"v_fma_f32 {vr(c0)}, {vr(bb)}, s33, {vr(vT)}"); A(f"v_mul_f32 {vr(c0)}, {vr(c0)}, {vr(b)}")
        A(f"v_fma_f32 {vr(c1)}, {vr(bb)}, s34, {vr(vT)}"); A(f"v_mul_f32 {vr(c1)}, {vr(c1)}, {vr(w)}")
        A(f"v_mul_f32 {vr(bb)}, {vr(w)}, {vr(w)}")
        A(f"v_mul_f32 {vr(c2)}, s34, {vr(bb)}"); A(f"v_mul_f32 {vr(c2)}, {vr(c2)}, {vr(b)}")
        A(f"v_mul_f32 {vr(c3)}, s33, {vr(bb)}"); A(f"v_mul_f32 {vr(c3)}, {vr(c3)}, {vr(w)}")
        A(f"v_mul_f32 {vr(ca)}, {vr(w)}, {vr(u)}"); A(f"v_mul_f32 {vr(cc)}, {vr(b)}, {vr(u)}")
        for k, cx in enumerate((c0, c1, c2, c3)): A(f"v_add_f32 {vr(vG+k)}, |{vr(cx)}|, {vr(vG+k)}")
        A(f"v_fma_f32 {vr(vG)}, |{vr(cc)}|, s37, {vr(vG)}"); A(f"v_fma_f32 {vr(vG+1)}, |{vr(ca)}|, s37, {vr(vG+1)}")
        for k, (lo_, hi_) in enumerate(((c1, c2), (c0, c2), (ca, c3), (cc, c3))):
            A(f"v_cndmask_b32 {vr(lo_)}, {vr(lo_)}, {vr(hi_)}, vcc")
            A(f"v_cvt_pk_bf16_f32 {vr(hi)}, {vr(lo_)}, {vr(lo_)}")
            A(f"v_and_b32 {vr(hi)}, s38, {vr(hi)}")
            A(f"v_sub_f32 {vr(lo_)}, {vr(lo_)}, {vr(hi)}")
            A(f"v_cvt_pk_bf16_f32 {vr(vC+4*tile+k)}, {vr(hi)}, {vr(lo_)}")
    A.c("largest |hn| for which the fused gelu path can neither overflow nor lose precision")
    A("s_mov_b32 s59, -1.0"); A(f"s_mov_b32 s34, {f32(100.0)}")
    for H in (3.0, 4.5, 6.0, 8.0, 12.0, 22.0):
        A(f"s_mov_b32 s33, {f32(H)}")
        A(f"v_fma_f32 {vr(vT+1)}, {vr(vG+3)}, s33, {vr(vG+2)}"); A(f"v_fma_f32 {vr(vT+1)}, {vr(vT+1)}, s33, {vr(vG+1)}")
        A(f"v_fma_f32 {vr(vT+1)}, {vr(vT+1)}, s33, {vr(vG)}")
        A(f"v_cmp_nge_f32 vcc, s34, {vr(vT+1)}")
        A("s_cmp_eq_u64 vcc, 0"); A("s_cselect_b32 s59, s33, s59")
    if force_fb: A("s_mov_b32 s59, -1.0")
    A("s_cmp_eq_u32 s30, 0"); A("s_cbranch_scc0 L_nopub")
    A.c("T0: q projection, 32 columns x half of the rows, all 8 batches; LayerNorm applied after the product")
    A("s_mov_b32 s34, 0x3f803f80")
    for i in range(56): A(f"v_mov_b32 {vr(vX+i)}, s34")
    A(f"v_and_b32 {vr(tT)}, 7, v1"); A(f"v_mul_u32_u24 {vr(tT)}, 896, {vr(tT)}"); A(f"v_lshl_add_u32 {vr(tT)}, v2, 4, {vr(tT)}")
    A("s_mul_i32 s33, s48, 448"); A(f"s_sub_u32 s34, {L_X + 448}, s33"); A(f"s_add_u32 s33, s33, {L_X}")
    A(f"v_add_u32 {vr(tT+1)}, s34, {vr(tT)}"); A(f"v_add_u32 {vr(tT)}, s33, {vr(tT)}")
    A(f"v_lshlrev_b32 {vr(tT+2)}, 4, v1"); A(f"v_lshl_add_u32 {vr(tT+2)}, v2, 9, {vr(tT+2)}"); A(f"v_add_u32 {vr(tT+2)}, {L_WQ}, {vr(tT+2)}")
    A(f"v_bfe_u32 {vr(tT+3)}, v1, 2, 1"); A(f"v_lshl_add_u32 {vr(tT+3)}, {vr(tT+3)}, 4, v1"); A(f"v_lshlrev_b32 {vr(tT+3)}, 2, {vr(tT+3)}")
    A(f"v_lshlrev_b32 {vr(tT+4)}, 2, v1"); A(f"v_add_u32 {vr(tT+4)}, 128, {vr(tT+4)}")
    A(f"v_and_b32 {vr(tT+5)}, 3, v1")
    for i in range(1, 4): A(f"v_cmp_eq_u32 {('', 's[6:7]', 's[8:9]', 's[14:15]')[i]}, {i}, {vr(tT+5)}")
    D1 = tT + 8; D2 = tT + 16; wf = vW
    A("s_mov_b32 exec_lo, 0x00ff00ff"); A("s_mov_b32 exec_hi, 0x00ff00ff")
    for t in range(14): A(f"ds_read_b128 {vr(vX+4*t,4)}, {vr(tT + (t >= 7))} offset:{64*(t % 7)}")
    A("s_mov_b64 exec, -1")
    for t in range(14):
        A(f"s_waitcnt lgkmcnt({13-t})")
        c = "0" if t == 0 else vr(D2, 4)
        A(f"v_mfma_f32_16x16x32_bf16 {vr(D2,4)}, {vr(vX+4*t,4)}, {vr(vX+4*t,4)}, {c}")
    for i in range(1, 4): A(f"v_cndmask_b32 {vr(D2)}, {vr(D2)}, {vr(D2+i)}, {('', 's[6:7]', 's[8:9]', 's[14:15]')[i]}")
    A(f"ds_bpermute_b32 {vr(tT+6)}, {vr(tT+3)}, {vr(D2)}")
    A(f"ds_bpermute_b32 {vr(tT+7)}, {vr(tT+4)}, {vr(D2)}")
    A(f"s_mov_b32 s33, {f32(1.0/448)}")
    A("s_waitcnt lgkmcnt(0)")
    A(f"v_mul_f32 {vr(tT+7)}, s33, {vr(tT+7)}")
    A(f"v_mul_f32 {vr(tT+6)}, s33, {vr(tT+6)}")
    A(f"v_fma_f32 {vr(tT+6)}, -{vr(tT+7)}, {vr(tT+7)}, {vr(tT+6)}")
    A(f"v_max_f32 {vr(tT+6)}, 0, {vr(tT+6)}")
    A(f"v_add_f32 {vr(tT+6)}, {f32(1e-5)}, {vr(tT+6)}")
    A(f"v_rsq_f32 {vr(tT+6)}, {vr(tT+6)}")
    A("s_load_dword s46, s[26:27], s63")
    A("s_waitcnt vmcnt(0)")
    stamp(1)
    for nt in range(2):
        for t in range(7):
            for hh in range(2):
                A(f"ds_read_b64_tr_b16 {vr(wf+28*nt+4*t+2*hh,2)}, {vr(tT+2)} offset:{2048*t + 256*hh + 8*nt}")
        for t in range(7):
            A(f"s_waitcnt lgkmcnt({12-2*t})")
            c = "0" if t == 0 else vr(D1+4*nt, 4)
            A(f"v_mfma_f32_16x16x32_bf16 {vr(D1+4*nt,4)}, {vr(wf+28*nt+4*t,4)}, {vr(vX+4*t,4)}, {c}")
    for i in range(8):
        A(f"v_mul_f32_dpp {vr(D2+i)}, {vr(D1+i)}, {vr(tT+7)} row_newbcast:8 row_mask:0xf bank_mask:0xf")
    for i in range(8):
        A(f"v_sub_f32 {vr(D1+i)}, {vr(D1+i)}, {vr(D2+i)}")
        A(f"v_mul_f32 {vr(D1+i)}, {vr(D1+i)}, {vr(tT+6)}")
    for i in range(4):
        A(f"v_cvt_pk_bf16_f32 {vr(vQs+i)}, {vr(D1+2*i)}, {vr(D1+2*i+1)}")
        A(f"v_min_u32 {vr(vQs+i)}, -2, {vr(vQs+i)}")
    publish_q()
    A("s_lshr_b32 s33, s32, 2"); A("s_lshl_b32 s33, s33, 11"); A("s_add_u32 s33, s33, s39")
    A(f"v_add_u32 {vr(vT)}, s33, v3"); A(f"v_add_u32 {vr(vT+1)}, {L_Q}, v3")
    A(f"v_and_b32 {vr(vT+20)}, 7, v0"); A(f"v_lshlrev_b32 {vr(vT+20)}, 2, {vr(vT+20)}"); A(f"v_mov_b32 {vr(vT+19)}, {L_STAT + 64}")
    stamp(4)
    if opos == "early": wo_loads()
    A("s_mov_b32 s35, 0")
    A("s_cmp_eq_u32 s30, 0")
    A("s_barrier")
    A("s_cbranch_scc0 L_b1b")
    A.c("T0: gather the two q partials, add, hand to the stream waves")
    qa = vT + 4; qb = vT + 8
    A("s_cmp_eq_u32 s49, 0"); A("s_cbranch_scc0 L_glob")
    A("L_qpoll:")
    A(f"global_load_dwordx4 {vr(qa,4)}, {vr(vT)}, s[28:29] sc1")
    A(f"global_load_dwordx4 {vr(qb,4)}, {vr(vT)}, s[28:29] offset:1024 sc1")
    A("s_waitcnt vmcnt(0)")
    A(f"v_max3_u32 {vr(vT+2)}, {vr(qa)}, {vr(qa+1)}, {vr(qa+2)}"); A(f"v_max3_u32 {vr(vT+2)}, {vr(vT+2)}, {vr(qa+3)}, {vr(qb)}")
    A(f"v_max3_u32 {vr(vT+2)}, {vr(vT+2)}, {vr(qb+1)}, {vr(qb+2)}"); A(f"v_max_u32 {vr(vT+2)}, {vr(vT+2)}, {vr(qb+3)}")
    A(f"v_cmp_eq_u32 vcc, -1, {vr(vT+2)}")
    A("s_cbranch_vccnz L_qretry")
    def ool_q():
        A("L_qretry:")
        A("s_add_u32 s35, s35, 1")
        A(f"s_cmp_ge_u32 s35, {SPIN}")
        A("s_cbranch_scc1 L_qdone")
        A("s_bitcmp1_b32 s35, 0"); A("s_cbranch_scc1 L_qpoll")
        A(f"v_mov_b32 {vr(vT+12)}, s63")
        A(f"global_load_dword {vr(vT+13)}, {vr(vT+12)}, s[26:27] offset:32 sc1")
        A("s_waitcnt vmcnt(0)")
        A(f"v_readfirstlane_b32 s46, {vr(vT+13)}")
        A("s_cmp_eq_u32 s46, 0")
        A("s_cbranch_scc1 L_qpoll")
        A("L_glob:")
        A.c("group spread over several XCDs: write-through hand-off in the second copy, ordered by a counter")
        A("s_mov_b32 s49, 1")
        for i in range(4): A(f"v_mov_b32 {vr(qa+i)}, -1")
        A("s_lshl_b32 s33, s32, 10"); A("s_add_u32 s33, s33, s39"); A(f"s_add_u32 s33, s33, {W_O + W_ALT}")
        A(f"v_add_u32 {vr(vT+12)}, s33, v3"); A(f"v_add_u32 {vr(vT+13)}, {W_ALT}, {vr(vLst)}"); A(f"v_add_u32 {vr(vT+14)}, {W_ALT}, {vr(vQa)}")
        A(f"v_add_u32 {vr(vT)}, {W_ALT}, {vr(vT)}"); A(f"v_mov_b32 {vr(vT+15)}, s63")
        A(f"global_store_dwordx4 {vr(vT+12)}, {vr(qa,4)}, s[28:29] sc1")
        A("s_mov_b64 exec, 3")
        A(f"global_store_dword {vr(vT+13)}, {vr(qa)}, s[28:29] sc1")
        A("s_mov_b32 exec_lo, 0x00ff00ff"); A("s_mov_b32 exec_hi, 0x00ff00ff")
        A(f"global_store_dwordx4 {vr(vT+14)}, {vr(vQs,4)}, s[28:29] sc1")
        A("s_mov_b64 exec, -1")
        A("s_add_u32 s46, s63, 64"); A("s_mov_b32 s47, 1"); A("s_mov_b32 s35, 0")
        A("s_waitcnt vmcnt(0)")
        A("s_atomic_add s47, s[26:27], s46")
        A("L_gl:")
        A(f"global_load_dword {vr(vT+13)}, {vr(vT+15)}, s[26:27] offset:64 sc1")
        A("s_add_u32 s35, s35, 1")
        A("s_waitcnt vmcnt(0) lgkmcnt(0)")
        A(f"v_readfirstlane_b32 s46, {vr(vT+13)}")
        A(f"s_cmp_ge_u32 s35, {SPIN}"); A("s_cselect_b32 s46, 32, s46")
        A("s_cmp_lt_u32 s46, 32")
        A("s_cbranch_scc1 L_gl")
        A(f"global_load_dwordx4 {vr(qa,4)}, {vr(vT)}, s[28:29] sc1")
        A(f"global_load_dwordx4 {vr(qb,4)}, {vr(vT)}, s[28:29] offset:1024 sc1")
        A("s_waitcnt vmcnt(0)")
        A("s_branch L_qdone")
    OOL.append(ool_q)
    A("L_qdone:")
    stamp(14)
    for k in range(4):
        A(f"v_lshlrev_b32 {vr(vT+2)}, 16, {vr(qa+k)}"); A(f"v_lshlrev_b32 {vr(vT+3)}, 16, {vr(qb+k)}"); A(f"v_add_f32 {vr(vT+2)}, {vr(vT+2)}, {vr(vT+3)}")
        A(f"v_and_b32 {vr(qa+k)}, s38, {vr(qa+k)}"); A(f"v_and_b32 {vr(qb+k)}, s38, {vr(qb+k)}"); A(f"v_add_f32 {vr(qa+k)}, {vr(qa+k)}, {vr(qb+k)}")
        A(f"v_cvt_pk_bf16_f32 {vr(qa+k)}, {vr(vT+2)}, {vr(qa+k)}")
    A(f"ds_write_b128 {vr(vT+1)}, {vr(qa,4)}")
    A(f"v_mov_b32 {vr(vT+2)}, s49")
    A(f"ds_write_b32 {vr(vT+19)}, {vr(vT+2)}")
    A("s_cmp_eq_u32 s32, 0"); A("s_cbranch_scc0 L_nof2")
    A.c("every member of this group has cleared its share of the out-projection slots")
    A("s_mov_b32 s33, 0x100000")
    A("s_waitcnt lgkmcnt(0)")
    A("s_barrier")
    A("s_atomic_add s33, s[26:27], s63")
    A("s_branch L_b1c")
    A("L_nof2:")
    A("s_waitcnt lgkmcnt(0)")
    A("L_b1b:")
    A("s_barrier")
    A("L_b1c:")
    A(f"ds_read_b32 {vr(vT+21)}, {vr(vT+19)}")
    if touch: A(f"global_load_dword {vr(vT+22)}, {vr(vOut)}, s[24:25]")
    if opos == "mid": wo_loads()
    A(f"v_and_b32 {vr(vT)}, 1, v0"); A(f"v_lshlrev_b32 {vr(vT)}, 5, {vr(vT)}"); A(f"v_add_u32 {vr(vT)}, {L_STAT}, {vr(vT)}")
    A("s_barrier")
    A(f"ds_read_b128 {vr(vT+4,4)}, {vr(vT)}")
    A(f"ds_read_b128 {vr(vT+8,4)}, {vr(vT)} offset:16")
    A("s_waitcnt lgkmcnt(0)")
    stats(vT + 4, vT + 8, vT + 1, vT + 2)
    A(f"v_log_f32 {vr(vT+2)}, {vr(vT+2)}")
    A(f"v_add_f32 {vr(vLse)}, {vr(vT+1)}, {vr(vT+2)}")
    A(f"v_min_u32 {vr(vLse)}, -2, {vr(vLse)}")
    A(f"v_readfirstlane_b32 s62, {vr(vT+21)}")
    A("s_lshl_b32 s33, s62, 20")
    for r_ in (vLa, vLst, vOa, vOst): A(f"v_add_u32 {vr(r_)}, s33, {vr(r_)}")
    A("s_cmp_eq_u32 s30, 1"); A("s_cbranch_scc0 L_nolse")
    A("s_mov_b64 exec, 3")
    A("s_cmp_eq_u32 s62, 0"); A("s_cbranch_scc0 L_slowlse")
    A(f"global_store_dword {vr(vLst)}, {vr(vLse)}, s[28:29]")
    A("L_lsed:")
    A("s_mov_b64 exec, -1")
    A("L_nolse:")
    def ool_lse():
        A("L_slowlse:")
        A(f"global_store_dword {vr(vLst)}, {vr(vLse)}, s[28:29] sc1")
        A("s_branch L_lsed")
    OOL.append(ool_lse)
    if inst:
        A.c("bring this workgroup's share of the cleared hand-off lines into L2 ahead of the polls (values unused)")
        A("s_cmp_lt_u32 s30, 2"); A("s_cbranch_scc1 L_noinst")
        A("s_lshl_b32 s33, s32, 10"); A("s_add_u32 s33, s33, s39"); A(f"s_add_u32 s33, s33, {W_O}")
        A("s_mul_i32 s34, s31, 14336"); A("s_min_u32 s35, s32, 27"); A("s_lshl_b32 s35, s35, 9"); A("s_add_u32 s34, s34, s35"); A(f"s_add_u32 s34, s34, {W_B}")
        A("s_cmp_eq_u32 s30, 2")
        if inst == 1: A("s_cbranch_scc0 L_noinst")
        if inst == 2: A("s_cbranch_scc1 L_noinst")
        A("s_cselect_b32 s33, s34, s33")
        A(f"v_add_u32 {vr(vT+12)}, s33, v3")
        A("s_cselect_b32 exec_hi, 0, -1")
        A(f"global_load_dwordx4 {vr(vT+16,4)}, {vr(vT+12)}, s[28:29] sc1")
        A("s_mov_b64 exec, -1")
        A("L_noinst:")
    if opos == "late": wo_loads()
    A("s_cmp_lt_u32 s32, 28"); A("s_cselect_b32 s44, 0xffff, 0")
    A("s_cmp_eq_u32 s60, s31"); A("s_cselect_b32 s45, s44, 0"); A("s_cmp_eq_u32 s62, 0"); A("s_cselect_b32 s45, s45, 0")
    if "s" in bx: A("s_mov_b32 s45, 0")
    A("s_andn2_b32 s44, s44, s45")
    bl = vX + 16
    for i in range(16): A(f"v_mov_b32 {vr(bl+i)}, 0")
    A("s_mov_b32 s33, 0x05040100"); A("s_mov_b32 s34, 0x07060302")
    ls4 = vT + 4; ck = vT + 1
    def lse_load():
        A(f"global_load_dwordx4 {vr(ls4,4)}, {vr(vLa)}, s[28:29] sc1")
        A(f"global_load_dword {vr(vT+21)}, {vr(vT+20)}, s[26:27] sc1")
    A("s_waitcnt vmcnt(0)")
    if not NL: lse_load()
    wo_perm(range(2 - NL))
    A(f"s_mov_b32 s36, {f32(1.0 + 1e-5)}")
    A("s_brev_b32 s40, 1"); A("s_brev_b32 s41, 1")
    def weights():
        A(f"v_lshrrev_b32 {vr(ck)}, 20, {vr(vT+21)}"); A(f"v_add_u32 {vr(ck)}, -1, {vr(ck)}")
        A(f"v_max3_u32 {vr(ck)}, {vr(ck)}, {vr(ls4)}, {vr(ls4+1)}"); A(f"v_max3_u32 {vr(ck)}, {vr(ck)}, {vr(ls4+2)}, {vr(ls4+3)}")
        A(f"v_cmp_eq_u32 vcc, -1, {vr(ck)}")
        A(f"v_max3_f32 {vr(vT+2)}, {vr(ls4)}, {vr(ls4+1)}, {vr(ls4+2)}"); A(f"v_max_f32 {vr(vT+2)}, {vr(vT+2)}, {vr(ls4+3)}")
        for i in range(4): A(f"v_sub_f32 {vr(ls4+i)}, {vr(ls4+i)}, {vr(vT+2)}")
        for i in range(4): A(f"v_exp_f32 {vr(ls4+i)}, {vr(ls4+i)}")
        A(f"v_add_f32 {vr(vT+2)}, {vr(ls4)}, {vr(ls4+1)}"); A(f"v_add_f32 {vr(vT+3)}, {vr(ls4+2)}, {vr(ls4+3)}")
        A(f"v_add_f32 {vr(vT+2)}, {vr(vT+2)}, {vr(vT+3)}"); A(f"v_rcp_f32 {vr(vT+2)}, {vr(vT+2)}")
        for i in range(4): A(f"v_mul_f32 {vr(ls4+i)}, {vr(ls4+i)}, {vr(vT+2)}")
    A.c("split-combine weights; vcc != 0: some lse had not arrived yet, redo after publishing")
    stamp(2)
    if NL:
        A("s_barrier")
        lse_load()
        wo_loads(list(range(2 - NL, 2)), "b")
    else:
        A("s_waitcnt vmcnt(0)")
        weights()
    A(f"s_mov_b32 s35, {-SPIN & 0xffffffff}")
    A("s_cmp_eq_u32 s62, 0")
    A("L_b3:")
    A("s_barrier")
    stamp(5)
    if "E" in skip: A("s_branch L_fin")
    A.c("reduce the four stream waves' o partials, publish as bf16")
    o = vX; ls4 = vT + 4; oa = vX + 32; Dc = vX + 40; ck = vT + 1
    for w_ in range(4): A(f"ds_read_b64 {vr(o+2*w_,2)}, {vr(vOPr)} offset:{2048*w_}")
    for w_ in range(1, 4):
        A(f"s_waitcnt lgkmcnt({3-w_})")
        A(f"v_pk_add_f32 {vr(o,2)}, {vr(o,2)}, {vr(o+2*w_,2)}")
    A(f"v_cvt_pk_bf16_f32 {vr(o)}, {vr(o)}, {vr(o+1)}")
    A(f"v_min_u32 {vr(o)}, -2, {vr(o)}")
    A("s_cbranch_scc0 L_slowpub")
    A(f"global_store_dword {vr(vOst)}, {vr(o)}, s[28:29]")
    A("L_pubd:")
    def ool_pub():
        A("L_slowpub:")
        A(f"global_store_dword {vr(vOst)}, {vr(o)}, s[28:29] sc1")
        A("s_branch L_pubd")
    OOL.append(ool_pub)
    stamp(6)
    A.c("out projection")
    def aset():
        for tt in range(2):
            A(f"global_load_dwordx4 {vr(oa+4*tt,4)}, {vr(vOa)}, s[28:29] offset:{1024*tt} sc1")
    if NL:
        aset()
        A("s_waitcnt vmcnt(3)")
        weights()
    A("s_cbranch_vccnz L_lretry")
    def ool_l():
        A("L_lretry:")
        lse_load()
        A("s_add_u32 s35, s35, 1")
        A("s_waitcnt vmcnt(0)")
        weights()
        A("s_cbranch_scc1 L_lok")
        A("s_cbranch_vccnz L_lretry")
        A("L_lok:")
        A(f"s_mov_b32 s35, {-SPIN & 0xffffffff}")
        A("s_branch L_apoll0")
    OOL.insert(0, ool_l)
    A("L_apoll0:")
    def achk():
        A(f"v_max3_u32 {vr(ck)}, {vr(oa)}, {vr(oa+1)}, {vr(oa+2)}"); A(f"v_max3_u32 {vr(ck)}, {vr(ck)}, {vr(oa+3)}, {vr(oa+4)}")
        A(f"v_max3_u32 {vr(ck)}, {vr(ck)}, {vr(oa+5)}, {vr(oa+6)}"); A(f"v_max_u32 {vr(ck)}, {vr(ck)}, {vr(oa+7)}")
    if NL:
        wo_perm(range(2 - NL, 2))
        A("s_waitcnt vmcnt(0)")
        achk()
        A(f"v_cmpx_eq_u32 vcc, -1, {vr(ck)}")
        A("s_cbranch_execz L_adone")
    A("L_apoll:")
    aset()
    A("s_add_u32 s35, s35, 1")
    A("s_waitcnt vmcnt(0)")
    achk()
    A("s_cbranch_scc1 L_adone")
    A(f"v_cmpx_eq_u32 vcc, -1, {vr(ck)}")
    A("s_cbranch_execnz L_apoll")
    A("L_adone:")
    A("s_mov_b64 exec, -1")
    A(f"s_mov_b32 s35, {-SPIN & 0xffffffff}")
    stamp(7)
    pp = vT + 16
    def wsum(c):
        return [f"v_mul_f32 {vr(pp+c)}, {vr(Dc+4*c)}, {vr(ls4)}"] + [f"v_fmac_f32 {vr(pp+c)}, {vr(Dc+4*c+i)}, {vr(ls4+i)}" for i in range(1, 4)]
    ws = sum((wsum(c) for c in range(4)), [])
    for k in range(8):
        c, tt = k >> 1, k & 1
        cc_ = "0" if tt == 0 else vr(Dc+4*c, 4)
        A(f"v_mfma_f32_16x16x32_bf16 {vr(Dc+4*c,4)}, {vr(oa+4*tt,4)}, {vr(vW+16*tt+4*c,4)}, {cc_}")
        if 1 <= k <= 3: A("s_nop 1")
        if k >= 4: A(ws.pop(0)); A(ws.pop(0))
    for x in ws: A(x)
    A(f"ds_write_b128 {vr(vPPa)}, {vr(pp,4)}")
    A("s_mov_b64 exec, 0xffff")
    A("s_waitcnt lgkmcnt(0)")
    stamp(8)
    A("s_barrier")
    pr = vX
    for w_ in range(4): A(f"ds_read_b128 {vr(pr+4*w_,4)}, {vr(vPPr)} offset:{1024*w_}")
    for w_ in range(1, 4):
        A(f"s_waitcnt lgkmcnt({3-w_})")
        for k in (0, 2): A(f"v_pk_add_f32 {vr(pr+k,2)}, {vr(pr+k,2)}, {vr(pr+4*w_+k,2)}")
    A(f"v_cvt_pk_bf16_f32 {vr(pr)}, {vr(pr)}, {vr(pr+1)}"); A(f"v_cvt_pk_bf16_f32 {vr(pr+1)}, {vr(pr+2)}, {vr(pr+3)}")
    A(f"v_min_u32 {vr(pr)}, -2, {vr(pr)}"); A(f"v_min_u32 {vr(pr+1)}, -2, {vr(pr+1)}")
    A("s_mov_b32 exec_lo, s44")
    A(f"global_store_dwordx2 {vr(vBst)}, {vr(pr,2)}, s[28:29] sc1")
    A("s_mov_b32 exec_lo, s45")
    A(f"global_store_dwordx2 {vr(vBst)}, {vr(pr,2)}, s[28:29]")
    A("s_mov_b64 exec, s[42:43]")
    stamp(9)
    if "a" in bx: A("s_waitcnt vmcnt(0)")
    if "b" in bx: A("s_barrier")
    if PB0: A(f"s_sleep {PB0}")
    def bset():
        for i in range(4):
            A(f"global_load_dwordx4 {vr(bl+4*i,4)}, {vr(vBa)}, s[28:29] offset:{896*i} sc1")
    for _ in range(DB - 1): bset()
    A("L_bpoll:")
    if PB: A(f"s_sleep {PB}")
    bset()
    A("s_add_u32 s35, s35, 1")
    A(f"s_waitcnt vmcnt({4*(DB-1)})")
    A(f"v_max3_u32 {vr(ck)}, {vr(bl)}, {vr(bl+1)}, {vr(bl+2)}")
    for i in range(3, 15, 2): A(f"v_max3_u32 {vr(ck)}, {vr(ck)}, {vr(bl+i)}, {vr(bl+i+1)}")
    A(f"v_max_u32 {vr(ck)}, {vr(ck)}, {vr(bl+15)}")
    A("s_cbranch_scc1 L_bdone")
    A(f"v_cmpx_eq_u32 vcc, -1, {vr(ck)}")
    A("s_cbranch_execnz L_bpoll")
    A("L_bdone:")
    A("s_mov_b64 exec, -1")
    stamp(10)
    A.c("h = x + sum of the 16 partials (matrix core does the unpack and the adds)")
    hh_ = vXr; s1 = vT + 8
    A(f"v_mov_b32 {vr(vT)}, {L_HS}")
    for i in range(4): A(f"v_mfma_f32_16x16x32_bf16 {vr(hh_,4)}, {vr(vDl,4)}, {vr(bl+4*i,4)}, {vr(hh_,4)}")
    for k in (0, 2): A(f"v_pk_fma_f32 {vr(vT+4+k,2)}, {vr(hh_+k,2)}, {vr(vKs,2)}, {vr(vKs,2)} op_sel:[0,0,1] op_sel_hi:[1,0,1]")
    A(f"ds_write_b128 {vr(vHw)}, {vr(hh_,4)}")
    A(f"v_pk_mul_f32 {vr(s1,2)}, {vr(hh_,2)}, {vr(vT+4,2)}")
    A(f"v_pk_fma_f32 {vr(s1,2)}, {vr(hh_+2,2)}, {vr(vT+6,2)}, {vr(s1,2)}")
    A(f"v_add_f32 {vr(s1)}, {vr(s1)}, {vr(s1+1)}")
    for sh in (8, 4, 2, 1):
        A(f"v_add_f32_dpp {vr(s1)}, {vr(s1)}, {vr(s1)} row_ror:{sh} row_mask:0xf bank_mask:0xf")
    A(f"v_add_f32_dpp {vr(s1)}, {vr(s1)}, {vr(s1)} row_bcast:15 row_mask:0xa bank_mask:0xf")
    A("s_mov_b64 exec, s[40:41]")
    A(f"ds_write_b32 {vr(vHsw)}, {vr(s1)}")
    A("s_mov_b64 exec, -1")
    A("s_waitcnt lgkmcnt(0)")
    A("s_barrier")
    A.c("LayerNorm(LayerNorm(h)) = (h - mu) * rsqrt(var*(1+eps) + eps^2), then the token MLP")
    h8 = vT + 4; hv = vT + 1
    A(f"ds_read_b128 {vr(h8,4)}, {vr(vT)}")
    A(f"ds_read_b128 {vr(h8+4,4)}, {vr(vT)} offset:16")
    A(f"ds_read_b32 {vr(hv)}, {vr(vHa)}")
    A(f"ds_read_b64 {vr(vHf,2)}, {vr(vHf)}")
    mu = vT + 2; rs = vT + 3
    A(f"v_mov_b32 {vr(vT+12)}, {f32(1e-10)}")
    A("s_waitcnt lgkmcnt(2)")
    A(f"v_pk_add_f32 {vr(h8,2)}, {vr(h8,2)}, {vr(h8+2,2)}")
    A(f"v_pk_add_f32 {vr(h8+4,2)}, {vr(h8+4,2)}, {vr(h8+6,2)}")
    A(f"v_pk_add_f32 {vr(mu,2)}, {vr(h8,2)}, {vr(h8+4,2)}")
    A(f"v_fma_f32 {vr(rs)}, -{vr(mu)}, {vr(mu)}, {vr(rs)}")
    A(f"v_fma_f32 {vr(rs)}, |{vr(rs)}|, s36, {vr(vT+12)}")
    A(f"v_rsq_f32 {vr(rs)}, {vr(rs)}")
    A("s_waitcnt lgkmcnt(1) vmcnt(0)")
    A(f"v_sub_f32 {vr(hv)}, {vr(hv)}, {vr(mu)}")
    A(f"v_mul_f32 {vr(hv)}, {vr(hv)}, {vr(rs)}")
    A(f"v_cvt_pk_bf16_f32 {vr(hv)}, {vr(hv)}, {vr(hv)}")
    A(f"v_and_b32 {vr(hv)}, s38, {vr(hv)}")
    X_ = vT + 4; Y = vT + 5; t1 = vT + 6; t2 = vT + 7; Am = vT + 8
    A(f"v_fma_f32 {vr(X_)}, {vr(hv)}, {vr(vK1)}, {vr(vK1+1)}"); A(f"v_mul_f32 {vr(X_)}, {vr(X_)}, {vr(hv)}")
    A(f"v_fma_f32 {vr(Y)}, {vr(X_)}, {vr(vK1)}, {vr(vK1+2)}")
    A(f"v_cvt_pk_bf16_f32 {vr(Am)}, {vr(X_)}, {vr(X_)}")
    A(f"v_mul_f32 {vr(Y)}, {vr(Y)}, {vr(hv)}")
    A(f"v_and_b32 {vr(t1)}, s38, {vr(Am)}")
    A(f"v_cvt_pk_bf16_f32 {vr(Am+2)}, {vr(Y)}, {vr(Y)}")
    A(f"v_sub_f32 {vr(X_)}, {vr(X_)}, {vr(t1)}")
    A(f"v_and_b32 {vr(t2)}, s38, {vr(Am+2)}")
    A(f"v_cvt_pk_bf16_f32 {vr(Am+1)}, {vr(X_)}, {vr(X_)}")
    A(f"v_sub_f32 {vr(Y)}, {vr(Y)}, {vr(t2)}")
    A(f"v_or_b32 {vr(Am+1)}, {vr(Am+1)}, {vr(vK1+3)}")
    A(f"v_cvt_pk_bf16_f32 {vr(Am+3)}, {vr(Y)}, {vr(Y)}")
    A(f"v_or_b32 {vr(Am+3)}, {vr(Am+3)}, {vr(vK1+4)}")
    A(f"v_cmp_nge_f32 vcc, s59, |{vr(hv)}|")
    stamp(11)
    Db = [vX, vX + 16, vX + 32]; acc = vT + 12; Dd = vRaw; Nn = vRaw + 8
    def mm(tile):
        A(f"v_mfma_f32_32x32x16_bf16 {vr(Db[tile%3],16)}, {vr(Am,4)}, {vr(vC+4*tile,4)}, 0")
    mm(0)
    A("s_waitcnt lgkmcnt(0)")
    A(f"v_add_f32 {vr(vHf)}, {vr(vHf)}, {vr(vB2)}"); A(f"v_add_f32 {vr(vHf+1)}, {vr(vHf+1)}, {vr(vB2)}")
    A(f"v_lshlrev_b32 {vr(vT)}, 3, v1"); A(f"v_add_u32 {vr(vT)}, {L_Y}, {vr(vT)}")
    A("s_cbranch_vccnz L_fb")
    A.c("sum_f n_f / (1 + e_f) kept as one fraction N / D")
    for tile in range(14):
        D = Db[tile % 3]
        if tile + 1 < 14: mm(tile + 1)
        for i in range(7): A(f"v_exp_f32 {vr(D+i)}, {vr(D+i)}")
        if tile == 0:
            for k in range(0, 8, 2): A(f"v_pk_add_f32 {vr(Dd+k,2)}, {vr(D+k,2)}, 1.0 op_sel_hi:[1,0]")
            continue
        Np = Db[0] + 8 if tile == 1 else Nn
        for k in range(0, 8, 2): A(f"v_pk_fma_f32 {vr(D+8+k,2)}, {vr(D+8+k,2)}, {vr(Dd+k,2)}, {vr(Np+k,2)}")
        for k in range(0, 8, 2): A(f"v_pk_fma_f32 {vr(Dd+k,2)}, {vr(Dd+k,2)}, {vr(D+k,2)}, {vr(Dd+k,2)}")
        for k in range(0, 8, 2): A(f"v_pk_fma_f32 {vr(Nn+k,2)}, {vr(Np+k,2)}, {vr(D+k,2)}, {vr(D+8+k,2)}")
    for i in range(7): A(f"v_rcp_f32 {vr(Dd+i)}, {vr(Dd+i)}")
    for k in range(0, 8, 2): A(f"v_pk_mul_f32 {vr(acc+k,2)}, {vr(Nn+k,2)}, {vr(Dd+k,2)}")
    A("L_fbd:")
    A("s_cmp_eq_u32 s30, 1")
    def ool_fb():
        A("L_fb:")
        A.c("direct evaluation (large activations or weights)")
        hh = vRaw; fa = vRaw + 8; w_ = vRaw + 9; b_ = vRaw + 10; u_ = vRaw + 11; x_ = vRaw + 12; p_ = vRaw + 13; al = vRaw + 14
        A(f"v_lshrrev_b32 {vr(fa)}, 5, v0"); A(f"v_mul_u32_u24 {vr(fa)}, 28, {vr(fa)}")
        A("s_mul_i32 s33, s32, 56"); A(f"s_add_u32 s33, s33, {L_H}"); A(f"v_add_u32 {vr(fa)}, s33, {vr(fa)}")
        for i in range(7): A(f"ds_read_b32 {vr(hh+i)}, {vr(fa)} offset:{4*i}")
        A(f"v_and_b32 {vr(fa)}, 31, v0"); A(f"v_lshlrev_b32 {vr(fa)}, 1, {vr(fa)}")
        A("s_mul_i32 s33, s30, 896"); A(f"v_add_u32 {vr(fa)}, s33, {vr(fa)}")
        A(f"s_mov_b32 s33, {f32(BETA)}"); A(f"v_mov_b32 {vr(al)}, {f32(ALPHA)}")
        for i in range(8): A(f"v_mov_b32 {vr(acc+i)}, 0")
        A("s_waitcnt lgkmcnt(0)")
        for i in range(7):
            A(f"v_sub_f32 {vr(hh+i)}, {vr(hh+i)}, {vr(mu)}"); A(f"v_mul_f32 {vr(hh+i)}, {vr(hh+i)}, {vr(rs)}")
            A(f"v_cvt_pk_bf16_f32 {vr(hh+i)}, {vr(hh+i)}, {vr(hh+i)}"); A(f"v_and_b32 {vr(hh+i)}, s38, {vr(hh+i)}")
        A("s_mov_b32 s34, 0")
        A("L_fbl:")
        A(f"global_load_ushort {vr(w_)}, {vr(fa)}, s[16:17]"); A(f"global_load_ushort {vr(b_)}, {vr(fa)}, s[18:19]"); A(f"global_load_ushort {vr(u_)}, {vr(fa)}, s[20:21]")
        A(f"v_add_u32 {vr(fa)}, 64, {vr(fa)}")
        A("s_waitcnt vmcnt(0)")
        for r_ in (w_, b_, u_): A(f"v_lshlrev_b32 {vr(r_)}, 16, {vr(r_)}")
        for i in range(7):
            A(f"v_fma_f32 {vr(x_)}, {vr(w_)}, {vr(hh+i)}, {vr(b_)}")
            A(f"v_mul_f32 {vr(p_)}, {vr(x_)}, {vr(x_)}"); A(f"v_fma_f32 {vr(p_)}, {vr(p_)}, s33, {vr(al)}"); A(f"v_mul_f32 {vr(p_)}, {vr(p_)}, {vr(x_)}")
            A(f"v_exp_f32 {vr(p_)}, {vr(p_)}"); A(f"v_add_f32 {vr(p_)}, 1.0, {vr(p_)}"); A(f"v_rcp_f32 {vr(p_)}, {vr(p_)}")
            A(f"v_mul_f32 {vr(x_)}, {vr(x_)}, {vr(p_)}"); A(f"v_fmac_f32 {vr(acc+i)}, {vr(x_)}, {vr(u_)}")
        A("s_add_u32 s34, s34, 1"); A("s_cmp_lt_u32 s34, 14"); A("s_cbranch_scc1 L_fbl")
        A("s_branch L_fbd")
    OOL.append(ool_fb)
    stamp(12)
    for k in range(4): A(f"v_add_f32_dpp {vr(acc+2*k)}, {vr(acc+2*k)}, {vr(acc+2*k)} row_ror:8 row_mask:0xf bank_mask:0x3")
    for k in range(4): A(f"v_add_f32_dpp {vr(acc+2*k)}, {vr(acc+2*k+1)}, {vr(acc+2*k+1)} row_ror:8 row_mask:0xf bank_mask:0xc")
    for k in range(2): A(f"v_add_f32_dpp {vr(acc+4*k)}, {vr(acc+4*k)}, {vr(acc+4*k)} row_shl:4 row_mask:0xf bank_mask:0x5")
    for k in range(2): A(f"v_add_f32_dpp {vr(acc+4*k)}, {vr(acc+4*k+2)}, {vr(acc+4*k+2)} row_shr:4 row_mask:0xf bank_mask:0xa")
    A(f"v_permlane16_swap_b32 {vr(acc)}, {vr(acc+4)}")
    A(f"v_add_f32 {vr(acc)}, {vr(acc)}, {vr(acc+4)}")
    A(f"v_add_f32_dpp {vr(acc)}, {vr(acc)}, {vr(acc)} quad_perm:[1,0,3,2] row_mask:0xf bank_mask:0xf")
    A(f"v_add_f32_dpp {vr(acc)}, {vr(acc)}, {vr(acc)} quad_perm:[2,3,0,1] row_mask:0xf bank_mask:0xf")
    A(f"ds_write_b32 {vr(vYa)}, {vr(acc)}")
    A("s_mov_b64 exec, 0x7f")
    A("s_waitcnt lgkmcnt(0)")
    A("s_barrier")
    A("s_cbranch_scc0 L_fin")
    A(f"ds_read2_b64 {vr(vT+4,4)}, {vr(vT)} offset0:0 offset1:8")
    A(f"ds_read2_b64 {vr(vT+8,4)}, {vr(vT)} offset0:16 offset1:24")
    A("s_waitcnt lgkmcnt(1)")
    A(f"v_pk_add_f32 {vr(vHf,2)}, {vr(vHf,2)}, {vr(vT+4,2)}"); A(f"v_pk_add_f32 {vr(vHf,2)}, {vr(vHf,2)}, {vr(vT+6,2)}")
    A("s_waitcnt lgkmcnt(0)")
    A(f"v_pk_add_f32 {vr(vHf,2)}, {vr(vHf,2)}, {vr(vT+8,2)}"); A(f"v_pk_add_f32 {vr(vHf,2)}, {vr(vHf,2)}, {vr(vT+10,2)}")
    A(f"v_cvt_pk_bf16_f32 {vr(vT+2)}, {vr(vHf)}, {vr(vHf+1)}")
    A(f"global_store_dword {vr(vOut)}, {vr(vT+2)}, s[24:25]")
    A("L_fin:")
    stamp(13)
    if amp:
        A(f"s_cmp_eq_u32 s30, {amp[0]}"); A("s_cbranch_scc0 L_end")
        A("s_waitcnt lgkmcnt(0)")
        A(f"s_sub_u32 s33, s{64+2*amp[1]}, s{64+2*amp[2]}")
        if amp[3] < 0: A("s_sub_u32 s33, 3000, s33")
        A("s_min_u32 s33, s33, 5000"); A("s_lshl_b32 s33, s33, 3"); A("s_add_u32 s33, s33, 4000")
        A("L_amp:")
        A("s_memrealtime s[34:35]"); A("s_waitcnt lgkmcnt(0)"); A("s_sub_u32 s34, s34, s64")
        A("s_cmp_lt_u32 s34, s33"); A("s_cbranch_scc1 L_amp")
    dump_stamps(15)
    A("L_end:")
    A("s_endpgm")
    for f in OOL: f()
    A(f".if (. - {NAME}) < 16384")
    A(f".fill (16384 - (. - {NAME})) / 4, 4, 0xbf810000")
    A(".endif")

    body, nn = fix_hazards(A.L)
    head = [l.rstrip("\n") for l in open("header.txt")]
    head.append(f"; @launch grid=(256,1,1) block=(512,1,1) lds={L_END}")
    head += ['.amdgcn_target "amdgcn-amd-amdhsa--gfx950"', ".text", f".globl {NAME}", ".p2align 8", f".type {NAME},@function"]
    tail = ['.section .rodata,"a"', ".p2align 6", f".amdhsa_kernel {NAME}",
            "  .amdhsa_next_free_vgpr 256", "  .amdhsa_next_free_sgpr 96", "  .amdhsa_accum_offset 256",
            "  .amdhsa_group_segment_fixed_size 0", "  .amdhsa_kernarg_size 104", "  .amdhsa_user_sgpr_count 2",
            "  .amdhsa_user_sgpr_kernarg_segment_ptr 1", "  .amdhsa_system_sgpr_workgroup_id_x 1",
            "  .amdhsa_float_denorm_mode_32 3", ".end_amdhsa_kernel"]
    return "\n".join(head + body + tail) + "\n"

if __name__ == "__main__":
    kw = eval("dict(" + (sys.argv[2] if len(sys.argv) > 2 else "") + ")")
    open(sys.argv[1], "w").write(gen(**kw))
```

```python
import sys, struct, math
from asmlib import *

NAME = "sequential_preLN__sliding_block_cached__mixer_token_mlp__decode_kernel"
def f32(x): return "0x%08x" % struct.unpack("<I", struct.pack("<f", x))[0]

L_K = 0; L_WQ = 131072; L_Q = 145408; L_STAT = 146432; L_OP = 146688; L_PP = 154880; L_H = 158976; L_HS = 161024; L_Y = 161088
L_END = 161344
L_X = L_OP
W_Q = 0
W_L = 0xA0000
W_O = 0x40000
W_B = 0x80000
W_ALT = 0x100000
W_STAMP = 0x200000
SPIN = 0x20000
STAMP_VIEW = [("S", slice(4, 8), [0, 8, 6, 7, 1, 2, 3, 4, 5]), ("T0", 0, [0, 1, 3, 4, 14]), ("T3L", 3, [0, 1, 4], slice(224, 256)),
              ("T1", 1, [0, 4, 2, 5, 6, 7, 8, 9, 10, 11, 12, 13]), ("Tall", slice(0, 4), [5, 6, 7, 8, 9, 10, 11, 12, 13])]
ALPHA = -2.0 * math.sqrt(2.0 / math.pi) * math.log2(math.e)
BETA = ALPHA * 0.044715

def gen(W=8, QPOS=4, QD=2, FT=-1, stamps=False, force_slow=False, pol="nt", qpol="nt", opol="nt", opol2="nt", spol="", skip="",
        pref=True, opos="mid", qx=16, force_fb=False, touch=True, amp=None, DA=1, DB=1, rotm=1, PB=0, NL=1, EP=0, inst=0, spf=2, WE=0, WEN=64, WE0=8, WEM=0x55, NLD=4, LD0=0, qpace=0, prio=0, QT=0, GA=0, GB=0, cpos="early", N1=8, c1=True, NE=0, o1=True, o2=True, o3=True, ap=2, NB=0, hack="", bx="ab", PB0=0):
    A = Asm()
    c1_ = c1
    OOL = []
    def stamp(i):
        if stamps or (amp and i in (amp[1], amp[2], 0)): A(f"s_memrealtime s[{64+2*i}:{65+2*i}]")
    def dump_stamps(nst):
        if not stamps: return
        A("s_waitcnt lgkmcnt(0) vmcnt(0)")
        A("s_lshl_b32 s94, s2, 3"); A("s_add_u32 s94, s94, s30"); A("s_lshl_b32 s94, s94, 6"); A(f"s_add_u32 s94, s94, {W_STAMP}")
        A("s_mov_b64 exec, 1")
        A("v_mov_b32 v4, s94")
        for i in range(nst):
            A(f"v_mov_b32 v5, s{64+2*i}")
            A(f"global_store_dword v4, v5, s[28:29] offset:{4*i}")
        A("s_getreg_b32 s94, hwreg(HW_REG_XCC_ID, 0, 4)"); A("v_mov_b32 v5, s94")
        A("global_store_dword v4, v5, s[28:29] offset:60")
        A("s_waitcnt vmcnt(0)")

    A(f"{NAME}:")
    stamp(0)
    A("s_load_dwordx16 s[4:19], s[0:1], 0")
    A("s_load_dwordx8 s[20:27], s[0:1], 64")
    A("s_load_dwordx2 s[28:29], s[0:1], 96")
    A("v_lshrrev_b32 v1, 6, v0")
    A("s_lshr_b32 s32, s2, 3")
    A("v_readfirstlane_b32 s30, v1")
    A("s_cmp_ge_u32 s32, 32")
    A("s_cbranch_scc1 L_end")
    A("v_and_b32 v0, 63, v0")
    A("s_and_b32 s31, s2, 7")
    A("v_lshlrev_b32 v3, 4, v0")
    A("s_cmp_lt_u32 s30, 4")
    A("s_cbranch_scc1 L_T")

    A.c("================ stream waves")
    V = Alloc(4, 256)
    vK = V(8); vVo = V(8); vKA = V(4); vM = V(4); vT = V(8); vOPa = V(2); vQA = V(); vSTw = V(); vSTr = V()
    vS = V(16); vAcc = vK; vQ = V(32); vKF = V(32); vVv = V(128)
    vA = vQ
    assert vKF == vQ + 32
    def X(i): return ((8*(i & 1) + (i >> 1)) << 4) | (i << 10)
    A("s_lshr_b32 s34, s2, 5"); A("s_lshl3_add_u32 s34, s34, s31"); A("s_and_b32 s35, s32, 3"); A("s_lshl4_add_u32 s34, s34, s35")
    A("s_lshl4_add_u32 s34, s34, s30"); A("s_addk_i32 s34, 188"); A("s_lshl_b32 s40, s34, 13")
    A("s_sub_u32 s33, s30, 4")
    A("s_lshl_b32 s37, s33, 15")
    if rotm == 7:
        A("s_and_b32 s38, s32, 1"); A("s_bfe_u32 s60, s32, 0x20001"); A("s_lshl3_add_u32 s38, s38, s60")
        A("s_and_b32 s36, s32, 7"); A("s_lshl_b32 s36, s36, 10"); A("s_lshl4_add_u32 s38, s38, s36")
    else:
        A("s_and_b32 s60, s32, 1"); A("s_lshl_b32 s36, s60, 12"); A("s_lshl_b32 s60, s60, 1"); A("s_lshl4_add_u32 s38, s60, s36")
    A("s_or_b32 s44, s37, s36")
    A(f"v_and_b32 {vr(vT)}, 32, v0"); A(f"v_lshlrev_b32 {vr(vT)}, 1, {vr(vT)}")
    A(f"v_xor_b32 {vr(vT)}, {vr(vT)}, v3")
    A(f"v_xor_b32 {vr(vK)}, s38, {vr(vT)}")
    if prio == 2: A("s_setprio 3")
    A("s_brev_b32 s54, 16"); A("s_mov_b32 s55, 0x20000")
    A("s_mov_b32 m0, s44")
    A("s_waitcnt lgkmcnt(0)")
    A("s_mov_b64 s[52:53], s[6:7]")
    stamp(8)
    issued = [0]
    def throttle():
        if WE and WE0 <= issued[0] < WE0 + WEN:
            A(f"s_cbranch_vccz L_th{issued[0]}"); A(f"s_waitcnt vmcnt({abs(WE)-1})"); A(f"L_th{issued[0]}:")
        if issued[0] >= W: A(f"s_waitcnt vmcnt({W-1})")
        issued[0] += 1
    def kload(tl, i):
        if tl or i: A(f"s_xor_b32 m0, s44, {(tl << 13) | (i << 10)}")
        if tl == 0 and i: A(f"v_xor_b32 {vr(vK+i)}, {X(i)}, {vr(vK)}")
        throttle()
        A(f"buffer_load_dwordx4 {vr(vK+i)}, s[52:55], s{40+tl} offen {pol} lds")
    for i in range(8): kload(0, i)
    A("s_branch L_S2")

    A("L_T:")
    A.c("================ tail waves")
    V = Alloc(4, 256)
    vC = V(56); vW = V(32); vRaw = V(32); vX = V(56); tT = V(24)
    vXr = V(4); vDl = V(4); vQs = V(8); vG = V(4); vK1 = V(5); vHa = V(); vKs = V(2); vHf = V(2)
    vYa = V(); vLa = V(); vOa = V(); vPPa = V(); vBst = V(); vOst = V(); vLst = V(); vLse = V()
    vBa = V(); vHw = V(); vHsw = V(); vOut = V(); vB2 = V(); vQa = V(); vOPr = V(); vPPr = V(); vWa = V(2); vQw = V(); vWr = V()
    assert vRaw == vW + 32
    raw = vRaw if cpos == "early" else vX + 32
    def prep_loads():
        t = tT + 14
        A.c("MLP weights, residual row piece, b2")
        if c1_:
            A("s_mul_i32 s33, s30, 896")
            A(f"v_mul_u32_u24 {vr(t)}, 12, v0"); A(f"v_add_u32 {vr(t)}, {508 - 384}, {vr(t)}")
            A("v_cmp_lt_u32 vcc, 31, v0"); A(f"v_cndmask_b32 {vr(t)}, v3, {vr(t)}, vcc"); A(f"v_add_u32 {vr(t)}, s33, {vr(t)}")
            for k, sp in enumerate((16, 18, 20)):
                A(f"global_load_dwordx4 {vr(raw+8*k,4)}, {vr(t)}, s[{sp}:{sp+1}] {spol}")
        else:
            A(f"v_and_b32 {vr(t)}, 31, v0")
            A("s_mul_i32 s33, s30, 896")
            A(f"v_lshlrev_b32 {vr(t+1)}, 4, {vr(t)}"); A(f"v_add_u32 {vr(t+1)}, s33, {vr(t+1)}")
            A(f"v_lshlrev_b32 {vr(t+2)}, 3, {vr(t)}"); A(f"v_add_u32 {vr(t+2)}, s33, {vr(t+2)}")
            A(f"v_lshlrev_b32 {vr(t+3)}, 2, {vr(t)}"); A(f"v_add_u32 {vr(t+3)}, s33, {vr(t+3)}")
            for k, sp in enumerate((16, 18, 20)):
                A(f"global_load_dwordx4 {vr(raw+8*k,4)}, {vr(t+1)}, s[{sp}:{sp+1}] {spol}")
                A(f"global_load_dwordx2 {vr(raw+8*k+4,2)}, {vr(t+2)}, s[{sp}:{sp+1}] offset:512 {spol}")
                A(f"global_load_dword {vr(raw+8*k+6)}, {vr(t+3)}, s[{sp}:{sp+1}] offset:768 {spol}")
        A(f"v_min_u32 {vr(t)}, 13, v1"); A(f"v_and_b32 {vr(t+1)}, 1, v2")
        A("s_mul_i32 s33, s31, 896"); A("s_mul_i32 s34, s30, 224"); A("s_add_u32 s33, s33, s34")
        A(f"v_lshlrev_b32 {vr(t)}, 4, {vr(t)}"); A(f"v_lshl_add_u32 {vr(t)}, {vr(t+1)}, 3, {vr(t)}"); A(f"v_add_u32 {vr(t)}, s33, {vr(t)}")
        A(f"global_load_dwordx2 {vr(vXr+2,2)}, {vr(t)}, s[4:5] {spol}")
        A(f"v_mov_b32 {vr(t+2)}, 0")
        A(f"global_load_ushort {vr(vB2)}, {vr(t+2)}, s[22:23] {spol}")
    A("v_and_b32 v1, 15, v0")
    A("v_lshrrev_b32 v2, 4, v0")
    A("s_lshl_b32 s63, s31, 2")
    A(f"v_mov_b32 {vr(vQw)}, 0")
    if "T" in skip:
        A("s_waitcnt lgkmcnt(0)"); A("s_barrier"); A("s_barrier"); A("s_barrier")
        if NL: A("s_barrier")
        A("s_branch L_b3")
    A("s_cmp_eq_u32 s30, 0"); A("s_cbranch_scc1 L_T0")
    A("s_cmp_eq_u32 s30, 3"); A("s_cbranch_scc1 L_T3")
    if spf:
        A("s_cmp_eq_u32 s30, 1"); A("s_cbranch_scc1 L_T1")
    if pref:
        if not spf: A("s_cmp_eq_u32 s30, 2"); A("s_cbranch_scc0 L_prepw")
        A.c("T2: pull the code into this XCD's L2")
        A("s_getpc_b64 s[34:35]")
        A("L_pc:")
        A(f"s_sub_u32 s34, s34, L_pc-{NAME}"); A("s_subb_u32 s35, s35, 0")
        A("s_lshl_b32 s33, s32, 9")
        A(f"v_lshlrev_b32 {vr(tT)}, 3, v0"); A(f"v_add_u32 {vr(tT)}, s33, {vr(tT)}")
        A(f"global_load_dwordx2 {vr(tT+2,2)}, {vr(tT)}, s[34:35]")
    A("s_branch L_prepw")
    if spf:
        A("L_T1:")
        A.c("T1: pull 14 rows of the wq column block that r=28..31 read (and of the last block) into L2")
        A("s_mul_i32 s33, s32, 14*8192"); A("s_lshl_b32 s34, s31, 10"); A("s_add_u32 s33, s33, s34"); A("s_addk_i32 s33, 384")
        A(f"v_min_u32 {vr(tT)}, 13, v1"); A(f"v_lshlrev_b32 {vr(tT)}, 13, {vr(tT)}")
        A(f"v_and_b32 {vr(tT+1)}, 1, v2"); A(f"v_lshl_add_u32 {vr(tT)}, {vr(tT+1)}, 6, {vr(tT)}")
        A(f"v_lshrrev_b32 {vr(tT+1)}, 1, v2"); A(f"v_lshl_add_u32 {vr(tT)}, {vr(tT+1)}, 9, {vr(tT)}")
        A(f"v_add_u32 {vr(tT)}, s33, {vr(tT)}")
        A("s_cmp_eq_u32 s31, 7"); A("s_cselect_b32 exec_hi, -1, 0")
        if spf == 2: A("s_and_b32 exec_hi, exec_hi, 0xffff"); A("s_mov_b32 exec_lo, 0xffff")
        A("s_waitcnt lgkmcnt(0)")
        A(f"global_load_dword {vr(tT+2)}, {vr(tT)}, s[10:11]")
        A("s_mov_b64 exec, -1")
        A("s_branch L_prepw")
    A("L_T3:")
    A.c(f"T3 of {NLD} workgroup(s) per group: clear a share of the group's q and lse slots, then count in")
    per = 4 // NLD
    A(f"s_sub_u32 s36, s32, {LD0}"); A(f"s_cmp_lt_u32 s36, {NLD}"); A("s_cbranch_scc0 L_prepw")
    for i in range(4): A(f"v_mov_b32 {vr(tT+4+i)}, -1")
    A("s_getreg_b32 s34, hwreg(HW_REG_XCC_ID, 0, 4)")
    if per > 1: A(f"s_mul_i32 s34, s34, {0x1111 & ((1 << (4*per)) - 1)}"); A(f"s_mul_i32 s36, s36, {per}")
    A("s_lshl_b32 s33, s36, 2"); A("s_lshl_b32 s34, s34, s33"); A(f"s_bitset1_b32 s34, {16 + per.bit_length() - 1}")
    A("s_lshl2_add_u32 s33, s31, s36"); A("s_lshl_b32 s35, s33, 13"); A(f"v_add_u32 {vr(tT)}, s35, v3")
    A("s_lshl_b32 s33, s33, 6"); A(f"s_add_u32 s33, s33, {W_L}")
    A(f"v_add_u32 {vr(tT+2)}, s33, v3")
    A("s_waitcnt lgkmcnt(0)")
    for k in range(2*per):
        for i in range(4): A(f"global_store_dwordx4 {vr(tT)}, {vr(tT+4,4)}, s[28:29] offset:{1024*i}")
        if k < 2*per - 1: A(f"v_add_u32 {vr(tT)}, 4096, {vr(tT)}")
    A(f"s_mov_b64 exec, {(1 << (4*per)) - 1}")
    A(f"global_store_dwordx4 {vr(tT+2)}, {vr(tT+4,4)}, s[28:29]")
    A("s_mov_b64 exec, -1")
    A("s_waitcnt vmcnt(0)")
    A("s_atomic_add s34, s[26:27], s63")
    stamp(1)
    A("s_branch L_prepw")
    A("L_T0:")
    A.c("T0: x into LDS, clear this workgroup's share of the hand-off slots (acknowledged before q is published)")
    A(f"v_lshrrev_b32 {vr(vQw)}, 3, v0"); A(f"v_lshlrev_b32 {vr(vQw)}, 13, {vr(vQw)}"); A(f"v_and_b32 {vr(tT)}, 0x70, v3"); A(f"v_or_b32 {vr(vQw)}, {vr(vQw)}, {vr(tT)}")
    A(f"s_xor_b32 s34, s32, {qx}"); A("s_lshr_b32 s35, s34, 2"); A("s_lshl3_add_u32 s50, s31, s35"); A("s_lshl_b32 s50, s50, 7")
    A("s_and_b32 s48, s34, 3"); A("s_mul_i32 s34, s48, 112*8192"); A("s_add_u32 s50, s50, s34")
    A("s_movk_i32 s58, 7168"); A("s_mov_b32 s59, 0x20000"); A("s_movk_i32 s35, 4096")
    A(f"s_mov_b32 m0, {L_X}")
    A("s_lshl_b32 s33, s31, 15"); A("s_lshl_b32 s34, s32, 10"); A("s_add_u32 s33, s33, s34"); A(f"s_add_u32 s33, s33, {W_O}")
    A(f"v_add_u32 {vr(tT)}, s33, v3")
    A("s_mul_i32 s33, s31, 14336"); A("s_min_u32 s34, s32, 27"); A("s_lshl_b32 s34, s34, 9"); A("s_add_u32 s33, s33, s34"); A(f"s_add_u32 s33, s33, {W_B}")
    A(f"v_add_u32 {vr(tT+1)}, s33, v3")
    for i in range(4): A(f"v_mov_b32 {vr(vW+i)}, -1")
    A("s_waitcnt lgkmcnt(0)")
    A("s_mov_b64 s[56:57], s[4:5]")
    for t in range(4): A(f"buffer_load_dwordx4 v3, s[56:59], 0 offen offset:{1024*t} {spol} lds")
    A(f"s_mov_b32 m0, {L_X + 4096}")
    for t in range(3): A(f"buffer_load_dwordx4 v3, s[56:59], s35 offen offset:{1024*t} {spol} lds")
    A(f"global_store_dwordx4 {vr(tT)}, {vr(vW,4)}, s[28:29]")
    A.c("r = 28..31 repeat the share of r = 27 with one lane")
    A("s_cmp_lt_u32 s32, 28"); A("s_cselect_b32 exec_lo, -1, 1"); A("s_mov_b32 exec_hi, 0")
    A(f"global_store_dwordx4 {vr(tT+1)}, {vr(vW,4)}, s[28:29] sc1")
    A("s_mov_b64 exec, -1")
    A("s_branch L_prepw")

    A("L_S2:")
    A("v_and_b32 v1, 15, v0")
    A("v_lshrrev_b32 v2, 4, v0")
    for tl in range(1, 4): A(f"s_xor_b32 s{40+tl}, s40, {tl << 15}")
    A("s_mov_b64 s[56:57], s[8:9]"); A("s_mov_b32 s58, s54"); A("s_mov_b32 s59, 0x20000")
    if rotm == 7: A("s_and_b32 s61, s32, 1"); A("s_lshl_b32 s61, s61, 8")
    else: A("s_mov_b32 s61, 0")
    A(f"v_lshlrev_b32 {vr(vT)}, 4, v1"); A(f"v_lshl_add_u32 {vr(vT)}, v2, 9, {vr(vT)}")
    A("s_lshl_b32 s35, s60, 11"); A("s_or_b32 s35, s35, s61")
    A(f"v_or_b32 {vr(vVo)}, s35, {vr(vT)}")
    for e in range(1, 8): A(f"v_xor_b32 {vr(vVo+e)}, {((e >> 1) << 11) | ((e & 1) << 8)}, {vr(vVo)}")
    A(f"v_xor_b32 {vr(vT+3)}, s60, v1")
    A(f"v_and_b32 {vr(vT)}, 3, {vr(vT+3)}"); A(f"v_lshrrev_b32 {vr(vT+1)}, 2, v1")
    A(f"v_lshl_add_u32 {vr(vT+2)}, {vr(vT)}, 2, {vr(vT+1)}")
    A(f"v_xor_b32 {vr(vT+3)}, {vr(vT+3)}, v2")
    A(f"v_lshlrev_b32 {vr(vT+2)}, 9, {vr(vT+2)}"); A(f"v_add_u32 {vr(vT+2)}, s37, {vr(vT+2)}")
    A(f"v_lshl_add_u32 {vr(vKA)}, {vr(vT+3)}, 4, {vr(vT+2)}")
    for t in range(1, 4): A(f"v_xor_b32 {vr(vKA+t)}, {64*t}, {vr(vKA)}")
    A(f"v_lshrrev_b32 {vr(vT)}, 3, v1")
    A(f"v_lshlrev_b32 {vr(vQA)}, 9, {vr(vT)}"); A(f"v_lshl_add_u32 {vr(vQA)}, v2, 4, {vr(vQA)}")
    A(f"v_add_u32 {vr(vQA)}, {L_Q}, {vr(vQA)}")
    A(f"v_lshlrev_b32 {vr(vSTr)}, 5, {vr(vT)}"); A(f"v_add_u32 {vr(vSTr)}, {L_STAT}, {vr(vSTr)}")
    A("s_lshl_b32 s35, s33, 2"); A(f"v_add_u32 {vr(vSTw)}, s35, {vr(vSTr)}")
    def delta(dst, val, t0):
        A(f"v_and_b32 {vr(t0)}, 16, v3")
        A(f"v_mov_b32 {vr(t0+1)}, {val}"); A(f"v_lshlrev_b32 {vr(t0+1)}, {vr(t0)}, {vr(t0+1)}")
        A(f"v_bfe_u32 {vr(t0)}, v1, 1, 2")
        for i in range(4):
            A(f"v_cmp_eq_u32 vcc, {i}, {vr(t0)}")
            A(f"v_cndmask_b32 {vr(dst+i)}, 0, {vr(t0+1)}, vcc")
    delta(vM, "0xffff", vT)
    A(f"v_and_b32 {vr(vT)}, 1, v2"); A(f"v_lshlrev_b32 {vr(vT)}, 4, {vr(vT)}")
    A(f"v_lshrrev_b32 {vr(vT+1)}, 1, v2"); A(f"v_lshl_add_u32 {vr(vT)}, {vr(vT+1)}, 10, {vr(vT)}")
    A(f"v_lshl_add_u32 {vr(vT)}, v1, 5, {vr(vT)}")
    A("s_lshl_b32 s35, s33, 11"); A(f"s_add_u32 s35, s35, {L_OP}")
    for dh in range(2):
        A(f"s_xor_b32 s38, s61, {dh << 8}"); A("s_lshl1_add_u32 s38, s38, s35")
        A(f"v_add_u32 {vr(vOPa+dh)}, s38, {vr(vT)}")
    if WE:
        A("s_getreg_b32 s35, hwreg(HW_REG_XCC_ID, 0, 3)"); A(f"s_bitcmp1_b32 {WEM}, s35"); A("s_cselect_b64 vcc, -1, 0")
    nv = [0]
    vord = list(range(28)) + [28, 30, 29, 31]
    def more(k):
        for _ in range(k):
            if nv[0] < 32:
                idx = vord[nv[0]]; tl, e = idx >> 3, idx & 7
                throttle()
                A(f"buffer_load_dwordx4 {vr(vVv+4*idx,4)}, {vr(vVo+e)}, s[56:59], s{40+tl} offen {pol}")
                nv[0] += 1
    seq = [("k", tl, i) for tl in range(1, 4) for i in range(8)] + [("v",)] * 32
    pos = 0
    def adv(n):
        nonlocal pos
        for _ in range(n):
            it = seq[pos]; pos += 1
            if it[0] == "k": kload(it[1], it[2])
            else: more(1)
    adv(24 + QPOS)
    stamp(6)
    A("s_barrier")
    stamp(7)
    adv(W + QD)
    assert nv[0] >= W
    stamp(1)
    if prio == 3: A("s_setprio 2")
    A("s_barrier")
    stamp(2)
    for t in range(8):
        A(f"ds_read_b128 {vr(vQ+4*t,4)}, {vr(vQA)} offset:{64*t}")
    for tl in range(4):
        for t in range(8):
            A(f"ds_read_b128 {vr(vKF+4*t,4)}, {vr(vKA+(t&3))} offset:{tl*8192 + (t>>2)*256}")
        for t in range(8):
            A(f"s_waitcnt lgkmcnt({7-t})")
            c = "0" if t == 0 else vr(vS+4*tl, 4)
            A(f"v_mfma_f32_16x16x32_bf16 {vr(vS+4*tl,4)}, {vr(vKF+4*t,4)}, {vr(vQ+4*t,4)}, {c}")
        more(1)
    SC = math.log2(math.e) / 16.0
    A(f"s_mov_b32 s35, {f32(SC)}")
    mx = vT; cp = vT + 1; ls = vT + 2
    A(f"v_max3_f32 {vr(mx)}, {vr(vS)}, {vr(vS+1)}, {vr(vS+2)}")
    for i in range(3, 15, 2):
        A(f"v_max3_f32 {vr(mx)}, {vr(mx)}, {vr(vS+i)}, {vr(vS+i+1)}")
    A(f"v_max_f32 {vr(mx)}, {vr(mx)}, {vr(vS+15)}")
    def xg(x, op):
        for sw in ("v_permlane32_swap_b32", "v_permlane16_swap_b32"):
            A(f"v_mov_b32 {vr(cp)}, {vr(x)}")
            A(f"{sw} {vr(x)}, {vr(cp)}")
            A(f"{op} {vr(x)}, {vr(x)}, {vr(cp)}")
    xg(mx, "v_max_f32")
    A(f"v_mul_f32 {vr(mx)}, s35, {vr(mx)}")
    for i in range(16):
        A(f"v_fma_f32 {vr(vS+i)}, {vr(vS+i)}, s35, -{vr(mx)}")
    for i in range(16):
        A(f"v_exp_f32 {vr(vS+i)}, {vr(vS+i)}")
    A(f"v_add_f32 {vr(ls)}, {vr(vS)}, {vr(vS+1)}")
    for i in range(2, 16):
        A(f"v_add_f32 {vr(ls)}, {vr(ls)}, {vr(vS+i)}")
    xg(ls, "v_add_f32")
    A(f"ds_write2_b32 {vr(vSTw)}, {vr(mx)}, {vr(ls)} offset0:0 offset1:4")
    more(1)
    A("s_waitcnt lgkmcnt(0)")
    A("s_barrier")
    stamp(3)
    def stats(m4, l4, M, Lr):
        A(f"v_max3_f32 {vr(M)}, {vr(m4)}, {vr(m4+1)}, {vr(m4+2)}"); A(f"v_max_f32 {vr(M)}, {vr(M)}, {vr(m4+3)}")
        for i in range(4): A(f"v_sub_f32 {vr(m4+i)}, {vr(m4+i)}, {vr(M)}")
        for i in range(4): A(f"v_exp_f32 {vr(m4+i)}, {vr(m4+i)}")
        A(f"v_mul_f32 {vr(Lr)}, {vr(m4)}, {vr(l4)}")
        for i in range(1, 4): A(f"v_fmac_f32 {vr(Lr)}, {vr(m4+i)}, {vr(l4+i)}")
    A(f"ds_read_b128 {vr(vAcc,4)}, {vr(vSTr)}")
    A(f"ds_read_b128 {vr(vAcc+4,4)}, {vr(vSTr)} offset:16")
    more(1)
    A("s_waitcnt lgkmcnt(0)")
    stats(vAcc, vAcc + 4, vT + 3, vT + 4)
    A(f"v_sub_f32 {vr(mx)}, {vr(mx)}, {vr(vT+3)}")
    A(f"v_exp_f32 {vr(mx)}, {vr(mx)}")
    A(f"v_rcp_f32 {vr(vT+4)}, {vr(vT+4)}")
    A(f"v_mul_f32 {vr(mx)}, {vr(mx)}, {vr(vT+4)}")
    for i in range(16):
        A(f"v_mul_f32 {vr(vS+i)}, {vr(vS+i)}, {vr(mx)}")
        A(f"v_cvt_pk_bf16_f32 {vr(vS+i)}, {vr(vS+i)}, {vr(vS+i)}")
        for k in range(4):
            A(f"v_and_b32 {vr(vA+4*i+k)}, {vr(vS+i)}, {vr(vM+k)}")
        if i % 8 == 7: more(1)
    stamp(4)
    done = 0
    def pv(k):
        idx = vord[k]
        i, dh = idx >> 1, idx & 1
        c = "0" if i == 0 else vr(vAcc+4*dh, 4)
        A(f"v_mfma_f32_16x16x32_bf16 {vr(vAcc+4*dh,4)}, {vr(vA+4*i,4)}, {vr(vVv+4*idx,4)}, {c}")
    while nv[0] < 32:
        more(1)
        if NL and nv[0] == 32 - EP: A("s_barrier")
        lim = min(nv[0] - W, done + 4)
        while done < lim: pv(done); done += 1
    while done < 32:
        if 31 - done < W: A(f"s_waitcnt vmcnt({31-done})")
        pv(done); done += 1
        if done == 31: A(f"ds_write_b128 {vr(vOPa)}, {vr(vAcc,4)}")
    A(f"ds_write_b128 {vr(vOPa+1)}, {vr(vAcc+4,4)}")
    stamp(5)
    A("s_waitcnt lgkmcnt(0)")
    A("s_barrier")
    dump_stamps(9)
    A("s_endpgm")

    vT = tT
    A("L_prepw:")
    A("s_waitcnt lgkmcnt(0)")
    if cpos == "early": prep_loads()
    A("s_mov_b64 s[52:53], s[10:11]"); A("s_mov_b32 s54, 0x380000"); A("s_mov_b32 s55, 0x20000")
    nq = [0]
    def wq_loads(n):
        if not n or "q" in skip: return
        A("s_cmp_eq_u32 s30, 0"); A(f"s_cbranch_scc0 L_nq{nq[0]}")
        lab = f"L_nq{nq[0]}:"
        for _ in range(n):
            A(f"s_mov_b32 m0, {L_WQ + 1024*nq[0]}")
            if qpace and nq[0] >= qpace: A(f"s_waitcnt vmcnt({qpace-1})")
            A(f"buffer_load_dwordx4 {vr(vQw)}, s[52:55], s50 offen {qpol} lds")
            A("s_add_u32 s50, s50, 0x10000")
            nq[0] += 1
        A(lab)
    wq_loads(14)
    def wo_addr():
        A("s_bfe_u32 s34, s32, 0x10001"); A("s_lshl1_add_u32 s33, s31, s34"); A("s_lshl2_add_u32 s33, s33, s30"); A("s_lshl_b32 s33, s33, 6")
        A("s_mul_i32 s33, s33, 896"); A("s_lshr_b32 s34, s32, 2"); A("s_min_u32 s34, s34, 6"); A("s_lshl_b32 s34, s34, 7"); A("s_add_u32 s51, s33, s34")
        A(f"v_lshrrev_b32 {vr(vWa)}, 3, v0"); A(f"v_mul_u32_u24 {vr(vWa)}, 896, {vr(vWa)}")
        A(f"v_and_b32 {vr(vT+4)}, 16, v0"); A(f"v_lshlrev_b32 {vr(vT+4)}, 1, {vr(vT+4)}"); A(f"v_and_b32 {vr(vT+5)}, 0x70, v3"); A(f"v_xor_b32 {vr(vT+4)}, {vr(vT+4)}, {vr(vT+5)}")
        A(f"v_xor_b32 {vr(vT+5)}, 64, {vr(vT+4)}"); A(f"v_add_u32 {vr(vWa+1)}, {vr(vWa)}, {vr(vT+5)}"); A(f"v_add_u32 {vr(vWa)}, {vr(vWa)}, {vr(vT+4)}")
        A(f"v_lshrrev_b32 {vr(vT+4)}, 2, v1"); A(f"v_lshl_add_u32 {vr(vT+4)}, v2, 3, {vr(vT+4)}"); A(f"v_lshlrev_b32 {vr(vT+4)}, 7, {vr(vT+4)}")
        A(f"v_bfe_u32 {vr(vT+5)}, v0, 3, 2"); A(f"v_lshl_add_u32 {vr(vT+4)}, {vr(vT+5)}, 5, {vr(vT+4)}")
        A(f"v_and_b32 {vr(vT+5)}, 3, v0"); A(f"v_lshl_add_u32 {vr(vT+4)}, {vr(vT+5)}, 3, {vr(vT+4)}")
        A("s_lshl_b32 s61, s30, 13"); A(f"v_add_u32 {vr(vWr)}, s61, {vr(vT+4)}")
    def wo_loads(i0, i1, tag):
        if i0 >= i1: return
        A("s_cmp_ge_u32 s32, 28" if "o" not in skip else "s_cmp_ge_u32 s32, 0"); A(f"s_cbranch_scc1 L_nowo{tag}")
        for i in range(i0, i1):
            A(f"s_add_u32 m0, s61, {1024*i}"); A(f"s_add_u32 s33, s51, {8*896*i}")
            A(f"buffer_load_dwordx4 {vr(vWa+(i&1))}, s[56:59], s33 offen {opol} lds")
        A(f"L_nowo{tag}:")
    def wo_frags(tts=(0, 1)):
        for nt in range(4):
            for tt in tts:
                for hh in range(2):
                    A(f"ds_read_b64_tr_b16 {vr(vW+16*tt+4*nt+2*hh,2)}, {vr(vWr if nt == 0 else vRaw+nt)} offset:{4096*tt + 512*hh}")
    A.c("tail constants")
    A("s_mov_b32 s49, 0")
    wo_addr()
    A(f"s_xor_b32 s34, s32, {qx}"); A("s_and_b32 s35, s34, 3"); A("s_lshr_b32 s34, s34, 2"); A("s_lshl3_add_u32 s34, s35, s34"); A("s_lshl_b32 s34, s34, 7")
    A("s_lshl_b32 s39, s31, 15"); A("s_add_u32 s34, s34, s39")
    A(f"v_and_b32 {vr(vQa)}, 7, v1"); A(f"v_lshlrev_b32 {vr(vQa)}, 12, {vr(vQa)}"); A(f"v_lshl_add_u32 {vr(vQa)}, v2, 4, {vr(vQa)}"); A(f"v_add_u32 {vr(vQa)}, s34, {vr(vQa)}")
    def publish_q():
        A("s_getreg_b32 s47, hwreg(HW_REG_XCC_ID, 0, 4)")
        A("s_mul_i32 s47, s47, 0x1111"); A("s_bitset1_b32 s47, 18")
        if force_slow: A("s_cmp_eq_u32 s32, 5"); A("s_cselect_b32 s47, 0, s47")
        A("s_waitcnt lgkmcnt(0)")
        A("s_cmp_eq_u32 s46, s47")
        A("s_cbranch_scc0 L_f1slow")
        A("L_same:")
        A.c("the slots were cleared in this XCD's L2: publish there")
        A("s_mov_b32 exec_lo, 0x00ff00ff"); A("s_mov_b32 exec_hi, 0x00ff00ff")
        for k in range(2): A(f"global_store_dwordx4 {vr(vQa)}, {vr(vQs+4*k,4)}, s[28:29] offset:{64*k}")
        A("s_mov_b64 exec, -1")
        stamp(3)
        A("L_nopub:")
        def ool():
            A("L_f1slow:")
            A(f"v_mov_b32 {vr(vT+20)}, s63")
            A("s_mov_b32 s35, 0")
            A("L_f1l:")
            A("s_cmp_ge_u32 s46, 0x40000")
            A("s_cbranch_scc1 L_f1d")
            A(f"global_load_dword {vr(vT+21)}, {vr(vT+20)}, s[26:27] sc1")
            A("s_add_u32 s35, s35, 1")
            A("s_waitcnt vmcnt(0)")
            A(f"v_readfirstlane_b32 s46, {vr(vT+21)}")
            A(f"s_cmp_lt_u32 s35, {SPIN}")
            A("s_cbranch_scc1 L_f1l")
            A("L_f1d:")
            A("s_cmp_eq_u32 s46, s47")
            A("s_cbranch_scc1 L_same")
            A.c("cleared on another XCD: tell the group, publish nothing here")
            A("s_add_u32 s46, s63, 32"); A("s_mov_b32 s47, 1")
            A("s_atomic_add s47, s[26:27], s46 glc")
            A("s_waitcnt lgkmcnt(0)")
            A("s_mov_b32 s49, 1")
            A("s_branch L_nopub")
        OOL.append(ool)
    A("s_mul_i32 s33, s31, 14336"); A("s_mul_i32 s34, s30, 224"); A("s_add_u32 s33, s33, s34"); A(f"s_add_u32 s33, s33, {W_B}")
    A(f"v_min_u32 {vr(vT+4)}, 13, v1")
    A(f"v_mul_u32_u24 {vr(vBa)}, 3584, v2"); A(f"v_lshl_add_u32 {vr(vBa)}, {vr(vT+4)}, 4, {vr(vBa)}"); A(f"v_add_u32 {vr(vBa)}, s33, {vr(vBa)}")
    A("s_mul_i32 s34, s30, 448"); A(f"s_add_u32 s34, s34, {L_H}")
    A(f"v_and_b32 {vr(vT+5)}, 1, v2"); A(f"v_lshlrev_b32 {vr(vHw)}, 5, v1"); A(f"v_lshl_add_u32 {vr(vHw)}, {vr(vT+5)}, 4, {vr(vHw)}"); A(f"v_add_u32 {vr(vHw)}, s34, {vr(vHw)}")
    A(f"v_mov_b32 {vr(vT+5)}, {L_H + 1792}"); A("v_cmp_gt_u32 s[42:43], 14, v1")
    A(f"v_cndmask_b32 {vr(vHw)}, {vr(vT+5)}, {vr(vHw)}, s[42:43]")
    A(f"v_lshrrev_b32 {vr(vT+6)}, 5, v0")
    A("s_lshl_b32 s34, s30, 3"); A(f"s_add_u32 s34, s34, {L_HS}")
    A(f"v_lshlrev_b32 {vr(vHsw)}, 2, {vr(vT+6)}"); A(f"v_add_u32 {vr(vHsw)}, s34, {vr(vHsw)}")
    A(f"v_cvt_f32_u32 {vr(vKs)}, {vr(vT+6)}"); A(f"v_sub_f32 {vr(vKs+1)}, 1.0, {vr(vKs)}")
    for i in range(2): A(f"v_mul_f32 {vr(vKs+i)}, {f32(1.0/448)}, {vr(vKs+i)}")
    delta(vDl, "0x3f80", vT + 8)
    A("s_mul_i32 s33, s32, 56"); A(f"s_add_u32 s33, s33, {L_H}")
    ii = vT + 8; hf = vT + 9; col = vT + 10
    A(f"v_bfe_u32 {vr(ii)}, v0, 3, 1"); A(f"v_and_b32 {vr(hf)}, 3, v0"); A(f"v_lshl_add_u32 {vr(ii)}, {vr(ii)}, 2, {vr(hf)}")
    A(f"v_bfe_u32 {vr(hf)}, v0, 2, 1")
    A(f"v_min_u32 {vr(col)}, 6, {vr(ii)}"); A(f"v_mad_u32_u24 {vr(col)}, {vr(hf)}, 7, {vr(col)}")
    A(f"v_lshlrev_b32 {vr(vHa)}, 2, {vr(col)}"); A(f"v_add_u32 {vr(vHa)}, s33, {vr(vHa)}")
    A(f"v_cmp_eq_u32 vcc, 7, {vr(ii)}"); A(f"v_cndmask_b32 {vr(vT+11)}, v2, 3, vcc")
    A(f"v_mov_b32 {vr(vT+12)}, 0x3f803f80")
    A(f"v_cmp_eq_u32 vcc, 2, {vr(vT+11)}"); A(f"v_cndmask_b32 {vr(vK1)}, 0, 1.0, vcc")
    A(f"v_cmp_eq_u32 vcc, 0, {vr(vT+11)}"); A(f"v_cndmask_b32 {vr(vK1+1)}, 0, 1.0, vcc")
    A(f"v_cndmask_b32 {vr(vK1+3)}, 0, {vr(vT+12)}, vcc")
    A(f"v_cmp_eq_u32 vcc, 1, {vr(vT+11)}"); A(f"v_cndmask_b32 {vr(vK1+2)}, 0, 1.0, vcc")
    A(f"v_cndmask_b32 {vr(vK1+4)}, 0, {vr(vT+12)}, vcc")
    A(f"v_min_u32 {vr(col)}, 6, v0"); A(f"v_lshlrev_b32 {vr(vHf)}, 3, {vr(col)}"); A(f"v_add_u32 {vr(vHf)}, s33, {vr(vHf)}")
    A("s_mul_i32 s33, s31, 896"); A("s_mul_i32 s34, s32, 28"); A("s_add_u32 s33, s33, s34")
    A(f"v_lshlrev_b32 {vr(vOut)}, 2, {vr(col)}"); A(f"v_add_u32 {vr(vOut)}, s33, {vr(vOut)}")
    A(f"v_bfe_u32 {vr(ii)}, v0, 2, 1"); A(f"v_bfe_u32 {vr(hf)}, v0, 3, 1"); A(f"v_lshl_add_u32 {vr(ii)}, {vr(ii)}, 1, {vr(hf)}")
    A(f"v_bfe_u32 {vr(hf)}, v0, 4, 1"); A(f"v_lshl_add_u32 {vr(ii)}, {vr(hf)}, 2, {vr(ii)}")
    A(f"v_mad_u32_u24 {vr(hf)}, {vr(vT+6)}, 7, {vr(ii)}")
    A(f"v_cmp_eq_u32 vcc, 7, {vr(ii)}"); A(f"v_cndmask_b32 {vr(hf)}, {vr(hf)}, 15, vcc")
    A("s_lshl_b32 s34, s30, 6"); A(f"s_add_u32 s34, s34, {L_Y}")
    A(f"v_lshlrev_b32 {vr(vYa)}, 2, {vr(hf)}"); A(f"v_add_u32 {vr(vYa)}, s34, {vr(vYa)}")
    A("s_lshl_b32 s33, s31, 8"); A(f"s_add_u32 s33, s33, {W_L}"); A("s_and_b32 s34, s32, 3"); A("s_lshl_b32 s34, s34, 6"); A("s_add_u32 s34, s34, s33")
    A(f"v_lshlrev_b32 {vr(vLa)}, 4, v2"); A(f"v_add_u32 {vr(vLa)}, s34, {vr(vLa)}")
    A("s_lshl2_add_u32 s34, s32, s33")
    A(f"v_lshlrev_b32 {vr(vLst)}, 7, v0"); A(f"v_add_u32 {vr(vLst)}, s34, {vr(vLst)}")
    A(f"s_add_u32 s33, s39, {W_O}")
    A("s_and_b32 s35, s32, 1"); A("s_bfe_u32 s36, s32, 0x10001")
    A("s_lshl1_add_u32 s34, s35, s36"); A("s_lshl2_add_u32 s34, s34, s30"); A("s_lshl_b32 s34, s34, 11"); A("s_add_u32 s34, s34, s33")
    A(f"v_add_u32 {vr(vOa)}, s34, v3")
    A("s_lshl2_add_u32 s60, s35, s30")
    A("s_lshl3_add_u32 s34, s60, s31"); A("s_lshl1_add_u32 s34, s34, s36"); A("s_mul_i32 s34, s34, 896")
    A("s_lshr_b32 s36, s32, 2"); A("s_min_u32 s36, s36, 6"); A("s_lshl_b32 s36, s36, 7")
    A("s_add_u32 s34, s34, s36"); A(f"s_add_u32 s34, s34, {W_B}")
    A(f"v_lshlrev_b32 {vr(vBst)}, 3, v1"); A(f"v_add_u32 {vr(vBst)}, s34, {vr(vBst)}")
    A("s_lshr_b32 s34, s32, 4"); A("s_lshl2_add_u32 s34, s34, s30"); A("s_lshl_b32 s34, s34, 12"); A("s_add_u32 s34, s34, s33")
    A("s_and_b32 s36, s32, 15"); A("s_lshl4_add_u32 s34, s36, s34")
    A(f"v_lshrrev_b32 {vr(vOst)}, 2, v0"); A(f"v_lshlrev_b32 {vr(vOst)}, 8, {vr(vOst)}"); A(f"v_and_b32 {vr(vT+4)}, 3, v0")
    A(f"v_lshl_add_u32 {vr(vOst)}, {vr(vT+4)}, 2, {vr(vOst)}"); A(f"v_add_u32 {vr(vOst)}, s34, {vr(vOst)}")
    A("s_lshl_b32 s34, s30, 8"); A(f"s_add_u32 s34, s34, {L_PP}")
    A(f"v_lshlrev_b32 {vr(vPPr)}, 4, v1"); A(f"v_add_u32 {vr(vPPr)}, s34, {vr(vPPr)}")
    A("s_lshl_b32 s34, s30, 9"); A(f"s_add_u32 s34, s34, {L_OP}")
    A(f"v_lshlrev_b32 {vr(vOPr)}, 3, v0"); A(f"v_add_u32 {vr(vOPr)}, s34, {vr(vOPr)}")
    A("s_lshl_b32 s34, s30, 10"); A(f"s_add_u32 s34, s34, {L_PP}")
    A(f"v_lshlrev_b32 {vr(vPPa)}, 2, v1"); A(f"v_lshl_add_u32 {vr(vPPa)}, v2, 8, {vr(vPPa)}"); A(f"v_add_u32 {vr(vPPa)}, s34, {vr(vPPa)}")
    for i in range(4): A(f"v_mov_b32 {vr(vG+i)}, 0")
    A(f"s_mov_b32 s37, {f32(1.0/64)}")
    A("s_mov_b32 s38, 0xffff0000")
    def qproj():
        A("s_cmp_eq_u32 s30, 0"); A("s_cbranch_scc0 L_nopub")
        A.c("T0: q projection, 64 columns x a quarter of the rows, all 8 batches; LayerNorm applied after the product")
        A("s_mov_b32 s34, 0x3f803f80")
        for i in range(56): A(f"v_mov_b32 {vr(vX+i)}, s34")
        A(f"v_and_b32 {vr(tT+1)}, 7, v1"); A(f"v_mul_u32_u24 {vr(tT+1)}, 896, {vr(tT+1)}"); A(f"v_add_u32 {vr(tT+1)}, {L_X}, {vr(tT+1)}")
        A(f"v_lshl_add_u32 {vr(tT)}, v2, 4, {vr(tT+1)}")
        A("s_mul_i32 s33, s48, 224"); A(f"v_lshl_add_u32 {vr(tT+1)}, v2, 3, {vr(tT+1)}"); A(f"v_add_u32 {vr(tT+1)}, s33, {vr(tT+1)}")
        A(f"v_lshrrev_b32 {vr(tT+2)}, 2, v0"); A(f"v_lshlrev_b32 {vr(tT+2)}, 7, {vr(tT+2)}"); A(f"v_and_or_b32 {vr(tT+2)}, v3, 48, {vr(tT+2)}")
        A(f"v_add_u32 {vr(tT+2)}, {L_WQ}, {vr(tT+2)}")
        A(f"v_bfe_u32 {vr(tT+3)}, v1, 2, 1"); A(f"v_lshl_add_u32 {vr(tT+3)}, {vr(tT+3)}, 4, v1"); A(f"v_lshlrev_b32 {vr(tT+3)}, 2, {vr(tT+3)}")
        A(f"v_lshlrev_b32 {vr(tT+4)}, 2, v1"); A(f"v_add_u32 {vr(tT+4)}, 128, {vr(tT+4)}")
        A(f"v_and_b32 {vr(tT+5)}, 3, v1")
        sm = ('', 's[6:7]', 's[8:9]', 's[14:15]')
        for i in range(1, 4): A(f"v_cmp_eq_u32 {sm[i]}, {i}, {vr(tT+5)}")
        D1 = vX + 16; D2 = tT + 8; wf = vW
        A("s_mov_b32 exec_lo, 0x00ff00ff"); A("s_mov_b32 exec_hi, 0x00ff00ff")
        A("s_waitcnt vmcnt(14)")
        for t in range(14): A(f"ds_read_b128 {vr(vX+4*t,4)}, {vr(tT)} offset:{64*t}")
        A("s_mov_b64 exec, -1")
        for t in range(14):
            A(f"s_waitcnt lgkmcnt({13-t})")
            c = "0" if t == 0 else vr(D2, 4)
            A(f"v_mfma_f32_16x16x32_bf16 {vr(D2,4)}, {vr(vX+4*t,4)}, {vr(vX+4*t,4)}, {c}")
        for i in range(1, 4): A(f"v_cndmask_b32 {vr(D2)}, {vr(D2)}, {vr(D2+i)}, {sm[i]}")
        A(f"ds_bpermute_b32 {vr(tT+6)}, {vr(tT+3)}, {vr(D2)}")
        A(f"ds_bpermute_b32 {vr(tT+7)}, {vr(tT+4)}, {vr(D2)}")
        A("s_mov_b32 exec_lo, 0x00ff00ff"); A("s_mov_b32 exec_hi, 0x00ff00ff")
        for t in range(7): A(f"ds_read_b64 {vr(vX+2*t,2)}, {vr(tT+1)} offset:{32*t}")
        A("s_mov_b64 exec, -1")
        A(f"s_mov_b32 s33, {f32(1.0/448)}")
        A("s_waitcnt lgkmcnt(0)")
        A(f"v_mul_f32 {vr(tT+7)}, s33, {vr(tT+7)}")
        A(f"v_mul_f32 {vr(tT+6)}, s33, {vr(tT+6)}")
        A(f"v_fma_f32 {vr(tT+6)}, -{vr(tT+7)}, {vr(tT+7)}, {vr(tT+6)}")
        A(f"v_max_f32 {vr(tT+6)}, 0, {vr(tT+6)}")
        A(f"v_add_f32 {vr(tT+6)}, {f32(1e-5)}, {vr(tT+6)}")
        A(f"v_rsq_f32 {vr(tT+6)}, {vr(tT+6)}")
        A("s_waitcnt vmcnt(0)")
        A("s_load_dword s46, s[26:27], s63")
        stamp(1)
        for np_ in range(2):
            for t in range(7):
                for e in range(2):
                    A(f"ds_read_b64_tr_b16 {vr(wf+4*t+2*e,2)}, {vr(tT+2)} offset:{2048*t + 64*np_ + 8*e}")
            for t in range(7):
                A(f"s_waitcnt lgkmcnt({12-2*t})")
                for e in range(2):
                    D = D1 + 8*np_ + 4*e
                    c = "0" if t == 0 else vr(D, 4)
                    A(f"v_mfma_f32_16x16x16_bf16 {vr(D,4)}, {vr(wf+4*t+2*e,2)}, {vr(vX+2*t,2)}, {c}")
        for i0 in (0, 8):
            for i in range(8):
                A(f"v_mul_f32_dpp {vr(D2+i)}, {vr(D1+i0+i)}, {vr(tT+7)} row_newbcast:8 row_mask:0xf bank_mask:0xf")
            for i in range(8):
                A(f"v_sub_f32 {vr(D2+i)}, {vr(D1+i0+i)}, {vr(D2+i)}")
                A(f"v_mul_f32 {vr(D2+i)}, {vr(D2+i)}, {vr(tT+6)}")
            for i in range(4):
                A(f"v_cvt_pk_bf16_f32 {vr(vQs+i0//2+i)}, {vr(D2+2*i)}, {vr(D2+2*i+1)}")
                A(f"v_min_u32 {vr(vQs+i0//2+i)}, -2, {vr(vQs+i0//2+i)}")
        publish_q()
    def conv():
        if c1_:
            for k in range(3):
                for i in range(4): A(f"v_mov_b32 {vr(raw+8*k+4+((i+3)&3))}, {vr(raw+8*k+i)}")
                for i in range(4): A(f"v_permlane32_swap_b32 {vr(raw+8*k+i)}, {vr(raw+8*k+4+((i+3)&3))}")
        for i in (2, 3): A(f"v_cndmask_b32 {vr(vXr+i)}, 0, {vr(vXr+i)}, s[42:43]")
        A(f"v_lshlrev_b32 {vr(vXr)}, 16, {vr(vXr+2)}"); A(f"v_and_b32 {vr(vXr+1)}, s38, {vr(vXr+2)}")
        A(f"v_lshlrev_b32 {vr(vXr+2)}, 16, {vr(vXr+3)}"); A(f"v_and_b32 {vr(vXr+3)}, s38, {vr(vXr+3)}")
        A(f"v_lshlrev_b32 {vr(vB2)}, 16, {vr(vB2)}")
    w, b, u, bb, c0, c1, c2, c3, ca, cc, hi = (vT + 1 + i for i in range(11))
    def tiles(t0, t1):
        if t0 >= t1: return
        A.c("gelu argument as a cubic in hn, and n = (w1*hn + b1)*w2, as split-bf16 MFMA operands")
        A(f"s_mov_b32 s33, {f32(BETA)}"); A(f"s_mov_b32 s34, {f32(3*BETA)}"); A(f"v_mov_b32 {vr(vT)}, {f32(ALPHA)}")
        A("v_cmp_lt_u32 vcc, 31, v0")
        for tile in range(t0, t1):
            for k, d in enumerate((w, b, u)):
                src = raw + 8*k + (tile >> 1)
                if tile & 1: A(f"v_and_b32 {vr(d)}, s38, {vr(src)}")
                else: A(f"v_lshlrev_b32 {vr(d)}, 16, {vr(src)}")
            A(f"v_mul_f32 {vr(bb)}, {vr(b)}, {vr(b)}")
            A(f"v_fma_f32 {vr(c0)}, {vr(bb)}, s33, {vr(vT)}"); A(f"v_mul_f32 {vr(c0)}, {vr(c0)}, {vr(b)}")
            A(f"v_fma_f32 {vr(c1)}, {vr(bb)}, s34, {vr(vT)}"); A(f"v_mul_f32 {vr(c1)}, {vr(c1)}, {vr(w)}")
            A(f"v_mul_f32 {vr(bb)}, {vr(w)}, {vr(w)}")
            A(f"v_mul_f32 {vr(c2)}, s34, {vr(bb)}"); A(f"v_mul_f32 {vr(c2)}, {vr(c2)}, {vr(b)}")
            A(f"v_mul_f32 {vr(c3)}, s33, {vr(bb)}"); A(f"v_mul_f32 {vr(c3)}, {vr(c3)}, {vr(w)}")
            A(f"v_mul_f32 {vr(ca)}, {vr(w)}, {vr(u)}"); A(f"v_mul_f32 {vr(cc)}, {vr(b)}, {vr(u)}")
            for k, cx in enumerate((c0, c1, c2, c3)): A(f"v_add_f32 {vr(vG+k)}, |{vr(cx)}|, {vr(vG+k)}")
            A(f"v_fma_f32 {vr(vG)}, |{vr(cc)}|, s37, {vr(vG)}"); A(f"v_fma_f32 {vr(vG+1)}, |{vr(ca)}|, s37, {vr(vG+1)}")
            for k, (lo_, hi_) in enumerate(((c1, c2), (c0, c2), (ca, c3), (cc, c3))):
                A(f"v_cndmask_b32 {vr(lo_)}, {vr(lo_)}, {vr(hi_)}, vcc")
                A(f"v_cvt_pk_bf16_f32 {vr(hi)}, {vr(lo_)}, {vr(lo_)}")
                A(f"v_and_b32 {vr(hi)}, s38, {vr(hi)}")
                A(f"v_sub_f32 {vr(lo_)}, {vr(lo_)}, {vr(hi)}")
                A(f"v_cvt_pk_bf16_f32 {vr(vC+4*tile+k)}, {vr(hi)}, {vr(lo_)}")
    def guard():
        A.c("largest |hn| for which the fused gelu path can neither overflow nor lose precision")
        A("s_mov_b32 s3, -1.0"); A(f"s_mov_b32 s34, {f32(100.0)}")
        for H in (3.0, 4.5, 6.0, 8.0, 12.0, 22.0):
            A(f"s_mov_b32 s33, {f32(H)}")
            A(f"v_fma_f32 {vr(vT+1)}, {vr(vG+3)}, s33, {vr(vG+2)}"); A(f"v_fma_f32 {vr(vT+1)}, {vr(vT+1)}, s33, {vr(vG+1)}")
            A(f"v_fma_f32 {vr(vT+1)}, {vr(vT+1)}, s33, {vr(vG)}")
            A(f"v_cmp_nge_f32 vcc, s34, {vr(vT+1)}")
            A("s_cmp_eq_u64 vcc, 0"); A("s_cselect_b32 s3, s33, s3")
        if force_fb: A("s_mov_b32 s3, -1.0")
    if cpos == "early":
        A("s_cmp_eq_u32 s30, 0"); A("s_cbranch_scc1 L_pw"); A("s_waitcnt vmcnt(0)"); A("L_pw:")
        A("s_waitcnt vmcnt(14)")
        conv(); tiles(0, QT); qproj(); tiles(QT, 14); guard()
    else:
        qproj()
    A("s_lshr_b32 s33, s32, 2"); A("s_lshl_b32 s33, s33, 12"); A("s_add_u32 s33, s33, s39")
    A(f"v_add_u32 {vr(vT)}, s33, v3"); A(f"v_add_u32 {vr(vT+1)}, {L_Q}, v3")
    A(f"v_and_b32 {vr(vT+20)}, 7, v0"); A(f"v_lshlrev_b32 {vr(vT+20)}, 2, {vr(vT+20)}"); A(f"v_mov_b32 {vr(vT+19)}, {L_STAT + 64}")
    stamp(4)
    if cpos == "pre1": prep_loads()
    A("s_barrier")
    if cpos == "mid": prep_loads()
    A("s_mov_b32 s35, 0")
    A("s_cmp_eq_u32 s30, 0")
    A("s_cbranch_scc0 L_b1b")
    A.c("T0: gather the four q partials, add, hand to the stream waves")
    qa = vX
    def qload():
        for k in range(4): A(f"global_load_dwordx4 {vr(qa+4*k,4)}, {vr(vT)}, s[28:29] offset:{1024*k} sc1")
        A("s_waitcnt vmcnt(0)")
    A("s_cmp_eq_u32 s49, 0"); A("s_cbranch_scc0 L_glob")
    A("L_qpoll:")
    qload()
    A(f"v_max3_u32 {vr(vT+2)}, {vr(qa)}, {vr(qa+1)}, {vr(qa+2)}")
    for i in range(3, 15, 2): A(f"v_max3_u32 {vr(vT+2)}, {vr(vT+2)}, {vr(qa+i)}, {vr(qa+i+1)}")
    A(f"v_max_u32 {vr(vT+2)}, {vr(vT+2)}, {vr(qa+15)}")
    A(f"v_cmp_eq_u32 vcc, -1, {vr(vT+2)}")
    A("s_cbranch_vccnz L_qretry")
    def ool_q():
        A("L_qretry:")
        A("s_add_u32 s35, s35, 1")
        A(f"s_cmp_ge_u32 s35, {SPIN}")
        A("s_cbranch_scc1 L_qdone")
        A("s_bitcmp1_b32 s35, 0"); A("s_cbranch_scc1 L_qpoll")
        A(f"v_mov_b32 {vr(vT+12)}, s63")
        A(f"global_load_dword {vr(vT+13)}, {vr(vT+12)}, s[26:27] offset:32 sc1")
        A("s_waitcnt vmcnt(0)")
        A(f"v_readfirstlane_b32 s46, {vr(vT+13)}")
        A("s_cmp_eq_u32 s46, 0")
        A("s_cbranch_scc1 L_qpoll")
        A("L_glob:")
        A.c("group spread over several XCDs: write-through hand-off in the second copy, ordered by a counter")
        A("s_mov_b32 s49, 1")
        for i in range(4): A(f"v_mov_b32 {vr(qa+i)}, -1")
        A("s_lshl_b32 s33, s32, 10"); A("s_add_u32 s33, s33, s39"); A(f"s_add_u32 s33, s33, {W_O + W_ALT}")
        A(f"v_add_u32 {vr(vT+12)}, s33, v3"); A(f"v_add_u32 {vr(vT+13)}, {W_ALT}, {vr(vLst)}"); A(f"v_add_u32 {vr(vT+14)}, {W_ALT}, {vr(vQa)}")
        A(f"v_add_u32 {vr(vT)}, {W_ALT}, {vr(vT)}"); A(f"v_mov_b32 {vr(vT+15)}, s63")
        A(f"global_store_dwordx4 {vr(vT+12)}, {vr(qa,4)}, s[28:29] sc1")
        A("s_mov_b64 exec, 3")
        A(f"global_store_dword {vr(vT+13)}, {vr(qa)}, s[28:29] sc1")
        A("s_mov_b32 exec_lo, 0x00ff00ff"); A("s_mov_b32 exec_hi, 0x00ff00ff")
        for k in range(2): A(f"global_store_dwordx4 {vr(vT+14)}, {vr(vQs+4*k,4)}, s[28:29] offset:{64*k} sc1")
        A("s_mov_b64 exec, -1")
        A("s_add_u32 s46, s63, 64"); A("s_mov_b32 s47, 1"); A("s_mov_b32 s35, 0")
        A("s_waitcnt vmcnt(0)")
        A("s_atomic_add s47, s[26:27], s46")
        A("L_gl:")
        A(f"global_load_dword {vr(vT+13)}, {vr(vT+15)}, s[26:27] offset:64 sc1")
        A("s_add_u32 s35, s35, 1")
        A("s_waitcnt vmcnt(0) lgkmcnt(0)")
        A(f"v_readfirstlane_b32 s46, {vr(vT+13)}")
        A(f"s_cmp_ge_u32 s35, {SPIN}"); A("s_cselect_b32 s46, 32, s46")
        A("s_cmp_lt_u32 s46, 32")
        A("s_cbranch_scc1 L_gl")
        qload()
        A("s_branch L_qdone")
    OOL.append(ool_q)
    A("L_qdone:")
    stamp(14)
    for k in range(4):
        for p in range(4):
            A(f"v_lshlrev_b32 {vr(vT+4+2*p)}, 16, {vr(qa+4*p+k)}"); A(f"v_and_b32 {vr(vT+5+2*p)}, s38, {vr(qa+4*p+k)}")
        A(f"v_pk_add_f32 {vr(vT+4,2)}, {vr(vT+4,2)}, {vr(vT+6,2)}"); A(f"v_pk_add_f32 {vr(vT+8,2)}, {vr(vT+8,2)}, {vr(vT+10,2)}")
        A(f"v_pk_add_f32 {vr(vT+4,2)}, {vr(vT+4,2)}, {vr(vT+8,2)}")
        A(f"v_cvt_pk_bf16_f32 {vr(qa+k)}, {vr(vT+4)}, {vr(vT+5)}")
    A(f"ds_write_b128 {vr(vT+1)}, {vr(qa,4)}")
    A(f"v_mov_b32 {vr(vT+2)}, s49")
    A(f"ds_write_b32 {vr(vT+19)}, {vr(vT+2)}")
    A("s_cmp_eq_u32 s32, 0"); A("s_cbranch_scc0 L_nof2")
    A.c("every member of this group has cleared its share of the out-projection slots")
    A("s_mov_b32 s33, 0x100000")
    A("s_waitcnt lgkmcnt(0)")
    A("s_barrier")
    A("s_atomic_add s33, s[26:27], s63")
    A("s_branch L_b1c")
    A("L_nof2:")
    A("s_waitcnt lgkmcnt(0)")
    A("L_b1b:")
    A("s_barrier")
    A("L_b1c:")
    A(f"ds_read_b32 {vr(vT+21)}, {vr(vT+19)}")
    if cpos != "early": A("s_waitcnt vmcnt(0) lgkmcnt(0)")
    if touch: A(f"global_load_dword {vr(vT+22)}, {vr(vOut)}, s[24:25]")
    if cpos != "early": conv(); tiles(0, N1)
    A(f"v_and_b32 {vr(vT)}, 1, v0"); A(f"v_lshlrev_b32 {vr(vT)}, 5, {vr(vT)}"); A(f"v_add_u32 {vr(vT)}, {L_STAT}, {vr(vT)}")
    A("s_barrier")
    A(f"ds_read_b128 {vr(vT+4,4)}, {vr(vT)}")
    A(f"ds_read_b128 {vr(vT+8,4)}, {vr(vT)} offset:16")
    A("s_waitcnt lgkmcnt(0)")
    stats(vT + 4, vT + 8, vT + 1, vT + 2)
    A(f"v_log_f32 {vr(vT+2)}, {vr(vT+2)}")
    A(f"v_add_f32 {vr(vLse)}, {vr(vT+1)}, {vr(vT+2)}")
    A(f"v_min_u32 {vr(vLse)}, -2, {vr(vLse)}")
    A(f"v_readfirstlane_b32 s62, {vr(vT+21)}")
    A("s_lshl_b32 s33, s62, 20")
    for r_ in (vLa, vLst, vOa, vOst): A(f"v_add_u32 {vr(r_)}, s33, {vr(r_)}")
    A("s_cmp_eq_u32 s30, 1"); A("s_cbranch_scc0 L_nolse")
    A("s_mov_b64 exec, 3")
    A("s_cmp_eq_u32 s62, 0"); A("s_cbranch_scc0 L_slowlse")
    A(f"global_store_dword {vr(vLst)}, {vr(vLse)}, s[28:29]")
    A("L_lsed:")
    A("s_mov_b64 exec, -1")
    A("L_nolse:")
    def ool_lse():
        A("L_slowlse:")
        A(f"global_store_dword {vr(vLst)}, {vr(vLse)}, s[28:29] sc1")
        A("s_branch L_lsed")
    OOL.append(ool_lse)
    if inst:
        A.c("bring this workgroup's share of the cleared hand-off lines into L2 ahead of the polls (values unused)")
        A("s_cmp_lt_u32 s30, 2"); A("s_cbranch_scc1 L_noinst")
        A("s_lshl_b32 s33, s32, 10"); A("s_add_u32 s33, s33, s39"); A(f"s_add_u32 s33, s33, {W_O}")
        A("s_mul_i32 s34, s31, 14336"); A("s_min_u32 s35, s32, 27"); A("s_lshl_b32 s35, s35, 9"); A("s_add_u32 s34, s34, s35"); A(f"s_add_u32 s34, s34, {W_B}")
        A("s_cmp_eq_u32 s30, 2")
        if inst == 1: A("s_cbranch_scc0 L_noinst")
        if inst == 2: A("s_cbranch_scc1 L_noinst")
        A("s_cselect_b32 s33, s34, s33")
        A(f"v_add_u32 {vr(vT+12)}, s33, v3")
        A("s_cselect_b32 exec_hi, 0, -1")
        A(f"global_load_dwordx4 {vr(vT+16,4)}, {vr(vT+12)}, s[28:29] sc1")
        A("s_mov_b64 exec, -1")
        A("L_noinst:")
    A("s_mov_b64 s[56:57], s[12:13]"); A("s_mov_b32 s58, 0x380000"); A("s_mov_b32 s59, 0x20000")
    wo_loads(0, NE, "a")
    if cpos != "early": tiles(N1, 14); guard()
    A("s_cmp_lt_u32 s32, 28"); A("s_cselect_b32 s44, 0xffff, 0")
    A("s_cmp_eq_u32 s60, s31"); A("s_cselect_b32 s45, s44, 0"); A("s_cmp_eq_u32 s62, 0"); A("s_cselect_b32 s45, s45, 0")
    if "s" in bx: A("s_mov_b32 s45, 0")
    A("s_andn2_b32 s44, s44, s45")
    bl = vX + 16
    for i in range(16): A(f"v_mov_b32 {vr(bl+i)}, 0")
    for nt in range(1, 4): A(f"v_xor_b32 {vr(vRaw+nt)}, {32*nt}, {vr(vWr)}")
    ls4 = vT + 4; ck = vT + 1
    def lse_load():
        A(f"global_load_dwordx4 {vr(ls4,4)}, {vr(vLa)}, s[28:29] sc1")
        A(f"global_load_dword {vr(vT+21)}, {vr(vT+20)}, s[26:27] sc1")
    A(f"s_mov_b32 s36, {f32(1.0 + 1e-5)}")
    A("s_brev_b32 s40, 1"); A("s_brev_b32 s41, 1")
    def weights():
        A(f"v_lshrrev_b32 {vr(ck)}, 20, {vr(vT+21)}"); A(f"v_add_u32 {vr(ck)}, -1, {vr(ck)}")
        A(f"v_max3_u32 {vr(ck)}, {vr(ck)}, {vr(ls4)}, {vr(ls4+1)}"); A(f"v_max3_u32 {vr(ck)}, {vr(ck)}, {vr(ls4+2)}, {vr(ls4+3)}")
        A(f"v_cmp_eq_u32 vcc, -1, {vr(ck)}")
        A(f"v_max3_f32 {vr(vT+2)}, {vr(ls4)}, {vr(ls4+1)}, {vr(ls4+2)}"); A(f"v_max_f32 {vr(vT+2)}, {vr(vT+2)}, {vr(ls4+3)}")
        for i in range(4): A(f"v_sub_f32 {vr(ls4+i)}, {vr(ls4+i)}, {vr(vT+2)}")
        for i in range(4): A(f"v_exp_f32 {vr(ls4+i)}, {vr(ls4+i)}")
        A(f"v_add_f32 {vr(vT+2)}, {vr(ls4)}, {vr(ls4+1)}"); A(f"v_add_f32 {vr(vT+3)}, {vr(ls4+2)}, {vr(ls4+3)}")
        A(f"v_add_f32 {vr(vT+2)}, {vr(vT+2)}, {vr(vT+3)}"); A(f"v_rcp_f32 {vr(vT+2)}, {vr(vT+2)}")
        for i in range(4): A(f"v_mul_f32 {vr(ls4+i)}, {vr(ls4+i)}, {vr(vT+2)}")
    A.c("split-combine weights; vcc != 0: some lse had not arrived yet, redo after publishing")
    stamp(2)
    A("s_barrier")
    lse_load()
    A("s_cmp_ge_u32 s32, 28"); A("s_cbranch_scc0 L_wob"); A("s_waitcnt vmcnt(0)"); A("L_wob:")
    wo_loads(NE, 8 - NB, "b")
    A(f"s_mov_b32 s35, {-SPIN & 0xffffffff}")
    A("s_cmp_eq_u32 s62, 0")
    A("L_b3:")
    A("s_barrier")
    stamp(5)
    if "E" in skip: A("s_branch L_fin")
    A.c("reduce the four stream waves' o partials, publish as bf16")
    o = vX; ls4 = vT + 4; oa = vX + 32; Dc = vX + 40; ck = vT + 1
    for w_ in range(4): A(f"ds_read_b64 {vr(o+2*w_,2)}, {vr(vOPr)} offset:{2048*w_}")
    for w_ in range(1, 4):
        A(f"s_waitcnt lgkmcnt({3-w_})")
        A(f"v_pk_add_f32 {vr(o,2)}, {vr(o,2)}, {vr(o+2*w_,2)}")
    A(f"v_cvt_pk_bf16_f32 {vr(o)}, {vr(o)}, {vr(o+1)}")
    A(f"v_min_u32 {vr(o)}, -2, {vr(o)}")
    A("s_cbranch_scc0 L_slowpub")
    A(f"global_store_dword {vr(vOst)}, {vr(o)}, s[28:29]")
    A("L_pubd:")
    def ool_pub():
        A("L_slowpub:")
        A(f"global_store_dword {vr(vOst)}, {vr(o)}, s[28:29] sc1")
        A("s_branch L_pubd")
    OOL.append(ool_pub)
    stamp(6)
    A.c("out projection")
    def aset():
        for tt in range(2):
            A(f"global_load_dwordx4 {vr(oa+4*tt,4)}, {vr(vOa)}, s[28:29] offset:{1024*tt} sc1")
    if ap:
        wo_loads(8 - NB, 8, "c")
        seqv = [f"w{i}" for i in range(NE, 8 - NB)] + ["st"] + [f"w{i}" for i in range(8 - NB, 8)]
        def upto(i):
            live = [k for k, x in enumerate(seqv) if x[0] == "w" and int(x[1:]) <= i]
            if live: A(f"s_waitcnt vmcnt({len(seqv) - 1 - max(live)})")
        A(f"s_waitcnt vmcnt({len(seqv)})")
        weights()
        upto(3)
        if ap == 1: aset(); seqv += ["a", "a"]
        wo_frags((0,))
        if ap >= 2: upto(3 + ap); aset(); seqv += ["a", "a"]
        upto(7); wo_frags((1,))
    else:
        aset()
        A(f"s_waitcnt vmcnt({3 + 8 - NE})")
        weights()
        if o1:
            A("s_waitcnt vmcnt(7)"); wo_frags((0,)); A("s_waitcnt vmcnt(3)"); wo_frags((1,))
        else:
            A("s_waitcnt vmcnt(3)"); wo_frags()
    A("s_cbranch_vccnz L_lretry")
    def ool_l():
        A("L_lretry:")
        lse_load()
        A("s_add_u32 s35, s35, 1")
        A("s_waitcnt vmcnt(0)")
        weights()
        A("s_cbranch_scc1 L_lok")
        A("s_cbranch_vccnz L_lretry")
        A("L_lok:")
        A(f"s_mov_b32 s35, {-SPIN & 0xffffffff}")
        A("s_branch L_apoll0")
    OOL.insert(0, ool_l)
    A("L_apoll0:")
    def achk():
        A(f"v_max3_u32 {vr(ck)}, {vr(oa)}, {vr(oa+1)}, {vr(oa+2)}"); A(f"v_max3_u32 {vr(ck)}, {vr(ck)}, {vr(oa+3)}, {vr(oa+4)}")
        A(f"v_max3_u32 {vr(ck)}, {vr(ck)}, {vr(oa+5)}, {vr(oa+6)}"); A(f"v_max_u32 {vr(ck)}, {vr(ck)}, {vr(oa+7)}")
    if True:
        A("s_waitcnt vmcnt(0)")
        achk()
        A(f"v_cmpx_eq_u32 vcc, -1, {vr(ck)}")
        A("s_cbranch_execz L_adone")
        for _ in range(DA - 1):
            aset()
            for _ in range(GA): A("s_nop 7")
    A("L_apoll:")
    aset()
    A("s_add_u32 s35, s35, 1"); A("s_cselect_b32 s47, -1, -2")
    A(f"s_waitcnt vmcnt({2*(DA-1)})")
    achk()
    A(f"v_cmpx_lt_u32 vcc, s47, {vr(ck)}")
    A("s_cbranch_execnz L_apoll")
    A("L_adone:")
    A("s_mov_b64 exec, -1")
    A("s_waitcnt lgkmcnt(6)" if o1 else "s_waitcnt lgkmcnt(0)")
    A(f"s_mov_b32 s35, {-SPIN & 0xffffffff}")
    stamp(7)
    pp = vT + 16
    def wsum(c):
        return [f"v_mul_f32 {vr(pp+c)}, {vr(Dc+4*c)}, {vr(ls4)}"] + [f"v_fmac_f32 {vr(pp+c)}, {vr(Dc+4*c+i)}, {vr(ls4+i)}" for i in range(1, 4)]
    ws = sum((wsum(c) for c in range(4)), [])
    for k in range(8):
        c, tt = k >> 1, k & 1
        cc_ = "0" if tt == 0 else vr(Dc+4*c, 4)
        A(f"v_mfma_f32_16x16x32_bf16 {vr(Dc+4*c,4)}, {vr(oa+4*tt,4)}, {vr(vW+16*tt+4*c,4)}, {cc_}")
        if o1 and k in (2, 4, 6): A(f"s_waitcnt lgkmcnt({6 - k})")
        if 1 <= k <= 3: A(f"s_nop {0 if (o1 and k == 2) else 1}")
        if k >= 4: A(ws.pop(0)); A(ws.pop(0))
    A(f"ds_write2_b32 {vr(vPPa)}, {vr(pp)}, {vr(pp+1)} offset0:0 offset1:16")
    for x in ws: A(x)
    A(f"ds_write2_b32 {vr(vPPa)}, {vr(pp+2)}, {vr(pp+3)} offset0:32 offset1:48")
    A("s_mov_b64 exec, 0xffff")
    A("s_waitcnt lgkmcnt(0)")
    stamp(8)
    A("s_barrier")
    pr = vX
    for w_ in range(4): A(f"ds_read_b128 {vr(pr+4*w_,4)}, {vr(vPPr)} offset:{1024*w_}")
    for w_ in range(1, 4):
        A(f"s_waitcnt lgkmcnt({3-w_})")
        for k in (0, 2): A(f"v_pk_add_f32 {vr(pr+k,2)}, {vr(pr+k,2)}, {vr(pr+4*w_+k,2)}")
    A(f"v_cvt_pk_bf16_f32 {vr(pr)}, {vr(pr)}, {vr(pr+1)}"); A(f"v_cvt_pk_bf16_f32 {vr(pr+1)}, {vr(pr+2)}, {vr(pr+3)}")
    A(f"v_min_u32 {vr(pr)}, -2, {vr(pr)}"); A(f"v_min_u32 {vr(pr+1)}, -2, {vr(pr+1)}")
    A("s_mov_b32 exec_lo, s44")
    A(f"global_store_dwordx2 {vr(vBst)}, {vr(pr,2)}, s[28:29] sc1")
    A("s_mov_b32 exec_lo, s45")
    A(f"global_store_dwordx2 {vr(vBst)}, {vr(pr,2)}, s[28:29]")
    A("s_mov_b64 exec, s[42:43]")
    stamp(9)
    if "a" in bx: A("s_waitcnt vmcnt(0)")
    if "b" in bx: A("s_barrier")
    if PB0: A(f"s_sleep {PB0}")
    def bset():
        for i in range(4):
            A(f"global_load_dwordx4 {vr(bl+4*i,4)}, {vr(vBa)}, s[28:29] offset:{896*i} sc1")
    def bchk():
        A(f"v_max3_u32 {vr(ck)}, {vr(bl)}, {vr(bl+1)}, {vr(bl+2)}")
        for i in range(3, 15, 2): A(f"v_max3_u32 {vr(ck)}, {vr(ck)}, {vr(bl+i)}, {vr(bl+i+1)}")
        A(f"v_max_u32 {vr(ck)}, {vr(ck)}, {vr(bl+15)}")
    if DB > 1:
        bset()
        A("s_waitcnt vmcnt(0)")
        bchk()
        A(f"v_cmpx_eq_u32 vcc, -1, {vr(ck)}")
        A("s_cbranch_execz L_bdone")
        for _ in range(DB - 1):
            bset()
            for _ in range(GB): A("s_nop 7")
    if o2:
        hh_ = vT + 12; s1 = vT + 8
        A("L_bpoll:")
        bset()
        A("s_add_u32 s35, s35, 1"); A("s_cselect_b32 s47, -1, -2")
        A("s_mov_b64 exec, -1")
        A.c("h = x + sum of the 16 partials (matrix core does the unpack and the adds); discarded while a partial is missing")
        for i in range(4):
            A(f"s_waitcnt vmcnt({3-i})")
            A(f"v_mfma_f32_16x16x32_bf16 {vr(hh_,4)}, {vr(vDl,4)}, {vr(bl+4*i,4)}, {vr(vXr if i == 0 else hh_,4)}")
            if i == 0:
                A(f"v_max3_u32 {vr(ck)}, {vr(bl)}, {vr(bl+1)}, {vr(bl+2)}"); A(f"v_max_u32 {vr(ck)}, {vr(ck)}, {vr(bl+3)}")
            else:
                A(f"v_max3_u32 {vr(ck)}, {vr(ck)}, {vr(bl+4*i)}, {vr(bl+4*i+1)}"); A(f"v_max3_u32 {vr(ck)}, {vr(ck)}, {vr(bl+4*i+2)}, {vr(bl+4*i+3)}")
        A(f"v_cmpx_lt_u32 vcc, s47, {vr(ck)}")
        A("s_cbranch_execnz L_bpoll")
        A("s_mov_b64 exec, -1")
        stamp(10)
        A(f"v_mov_b32 {vr(vT)}, {L_HS}")
    else:
        A("L_bpoll:")
        if PB: A(f"s_sleep {PB}")
        bset()
        A("s_add_u32 s35, s35, 1")
        A(f"s_waitcnt vmcnt({4*(DB-1)})")
        bchk()
        A("s_cbranch_scc1 L_bdone")
        A(f"v_cmpx_eq_u32 vcc, -1, {vr(ck)}")
        A("s_cbranch_execnz L_bpoll")
        A("L_bdone:")
        A("s_mov_b64 exec, -1")
        stamp(10)
        A.c("h = x + sum of the 16 partials (matrix core does the unpack and the adds)")
        hh_ = vXr; s1 = vT + 8
        A(f"v_mov_b32 {vr(vT)}, {L_HS}")
        for i in range(4): A(f"v_mfma_f32_16x16x32_bf16 {vr(hh_,4)}, {vr(vDl,4)}, {vr(bl+4*i,4)}, {vr(hh_,4)}")
    for k in (0, 2): A(f"v_pk_fma_f32 {vr(vT+4+k,2)}, {vr(hh_+k,2)}, {vr(vKs,2)}, {vr(vKs,2)} op_sel:[0,0,1] op_sel_hi:[1,0,1]")
    A(f"ds_write_b128 {vr(vHw)}, {vr(hh_,4)}")
    A(f"v_pk_mul_f32 {vr(s1,2)}, {vr(hh_,2)}, {vr(vT+4,2)}")
    A(f"v_pk_fma_f32 {vr(s1,2)}, {vr(hh_+2,2)}, {vr(vT+6,2)}, {vr(s1,2)}")
    A(f"v_add_f32 {vr(s1)}, {vr(s1)}, {vr(s1+1)}")
    for sh in (8, 4, 2, 1):
        A(f"v_add_f32_dpp {vr(s1)}, {vr(s1)}, {vr(s1)} row_ror:{sh} row_mask:0xf bank_mask:0xf")
    A(f"v_add_f32_dpp {vr(s1)}, {vr(s1)}, {vr(s1)} row_bcast:15 row_mask:0xa bank_mask:0xf")
    A("s_mov_b64 exec, s[40:41]")
    A(f"ds_write_b32 {vr(vHsw)}, {vr(s1)}")
    A("s_mov_b64 exec, -1")
    A("s_waitcnt lgkmcnt(0)")
    A("s_barrier")
    A.c("LayerNorm(LayerNorm(h)) = (h - mu) * rsqrt(var*(1+eps) + eps^2), then the token MLP")
    h8 = vT + 4; hv = vT + 1
    A(f"ds_read_b128 {vr(h8,4)}, {vr(vT)}")
    A(f"ds_read_b128 {vr(h8+4,4)}, {vr(vT)} offset:16")
    A(f"ds_read_b32 {vr(hv)}, {vr(vHa)}")
    A(f"ds_read_b64 {vr(vHf,2)}, {vr(vHf)}")
    mu = vT + 2; rs = vT + 3
    A(f"v_mov_b32 {vr(vT+12)}, {f32(1e-10)}")
    A("s_waitcnt lgkmcnt(2)")
    A(f"v_pk_add_f32 {vr(h8,2)}, {vr(h8,2)}, {vr(h8+2,2)}")
    A(f"v_pk_add_f32 {vr(h8+4,2)}, {vr(h8+4,2)}, {vr(h8+6,2)}")
    A(f"v_pk_add_f32 {vr(mu,2)}, {vr(h8,2)}, {vr(h8+4,2)}")
    A(f"v_fma_f32 {vr(rs)}, -{vr(mu)}, {vr(mu)}, {vr(rs)}")
    A(f"v_fma_f32 {vr(rs)}, |{vr(rs)}|, s36, {vr(vT+12)}")
    A(f"v_rsq_f32 {vr(rs)}, {vr(rs)}")
    A("s_waitcnt lgkmcnt(1) vmcnt(0)")
    A(f"v_sub_f32 {vr(hv)}, {vr(hv)}, {vr(mu)}")
    A(f"v_mul_f32 {vr(hv)}, {vr(hv)}, {vr(rs)}")
    A(f"v_cvt_pk_bf16_f32 {vr(hv)}, {vr(hv)}, {vr(hv)}")
    A(f"v_and_b32 {vr(hv)}, s38, {vr(hv)}")
    X_ = vT + 4; Y = vT + 5; t1 = vT + 6; t2 = vT + 7; Am = vT + 8
    A(f"v_fma_f32 {vr(X_)}, {vr(hv)}, {vr(vK1)}, {vr(vK1+1)}"); A(f"v_mul_f32 {vr(X_)}, {vr(X_)}, {vr(hv)}")
    A(f"v_fma_f32 {vr(Y)}, {vr(X_)}, {vr(vK1)}, {vr(vK1+2)}")
    A(f"v_cvt_pk_bf16_f32 {vr(Am)}, {vr(X_)}, {vr(X_)}")
    A(f"v_mul_f32 {vr(Y)}, {vr(Y)}, {vr(hv)}")
    A(f"v_and_b32 {vr(t1)}, s38, {vr(Am)}")
    A(f"v_cvt_pk_bf16_f32 {vr(Am+2)}, {vr(Y)}, {vr(Y)}")
    A(f"v_sub_f32 {vr(X_)}, {vr(X_)}, {vr(t1)}")
    A(f"v_and_b32 {vr(t2)}, s38, {vr(Am+2)}")
    A(f"v_cvt_pk_bf16_f32 {vr(Am+1)}, {vr(X_)}, {vr(X_)}")
    A(f"v_sub_f32 {vr(Y)}, {vr(Y)}, {vr(t2)}")
    A(f"v_or_b32 {vr(Am+1)}, {vr(Am+1)}, {vr(vK1+3)}")
    A(f"v_cvt_pk_bf16_f32 {vr(Am+3)}, {vr(Y)}, {vr(Y)}")
    A(f"v_or_b32 {vr(Am+3)}, {vr(Am+3)}, {vr(vK1+4)}")
    A(f"v_cmp_nge_f32 vcc, s3, |{vr(hv)}|")
    stamp(11)
    Db = [vX, vX + 16, vX + 32]; acc = vT + 12; Dd = vRaw; Nn = vRaw + 8
    def mm(tile):
        A(f"v_mfma_f32_32x32x16_bf16 {vr(Db[tile%3],16)}, {vr(Am,4)}, {vr(vC+4*tile,4)}, 0")
    mm(0)
    A("s_waitcnt lgkmcnt(0)")
    A(f"v_add_f32 {vr(vHf)}, {vr(vHf)}, {vr(vB2)}"); A(f"v_add_f32 {vr(vHf+1)}, {vr(vHf+1)}, {vr(vB2)}")
    A(f"v_lshlrev_b32 {vr(vT)}, 3, v1"); A(f"v_add_u32 {vr(vT)}, {L_Y}, {vr(vT)}")
    A("s_cbranch_vccnz L_fb")
    A.c("sum_f n_f / (1 + e_f) kept as one fraction N / D")
    if o3:
        def chain(k, D, Np, first):
            if first: return [f"v_pk_add_f32 {vr(Dd+k,2)}, {vr(D+k,2)}, 1.0 op_sel_hi:[1,0]"]
            return [f"v_pk_fma_f32 {vr(D+8+k,2)}, {vr(D+8+k,2)}, {vr(Dd+k,2)}, {vr(Np+k,2)}",
                    f"v_pk_fma_f32 {vr(Dd+k,2)}, {vr(Dd+k,2)}, {vr(D+k,2)}, {vr(Dd+k,2)}",
                    f"v_pk_fma_f32 {vr(Nn+k,2)}, {vr(Np+k,2)}, {vr(D+k,2)}, {vr(D+8+k,2)}"]
        for tile in range(14):
            D = Db[tile % 3]; P = Db[(tile - 1) % 3]
            if tile + 1 < 14: mm(tile + 1)
            odd = tile & 1
            if odd:
                if tile == 1: A(f"v_mov_b32 {vr(Nn+6)}, {vr(P+14)}"); A(f"v_mov_b32 {vr(Nn+7)}, {vr(D+14)}")
                else: A(f"v_mov_b32 {vr(P+15)}, {vr(D+14)}")
            for i in range(6): A(f"v_exp_f32 {vr(D+i)}, {vr(D+i)}")
            A(f"v_exp_f32 {vr(P+7 if odd else D+6)}, {vr(D+6)}")
            ch = [chain(k, D, Db[0] + 8 if tile == 1 else Nn, tile == 0) for k in (0, 2, 4)]
            if odd: ch.append(chain(6, P, Nn, tile == 1))
            for st in range(3):
                for c_ in ch:
                    if len(c_) == 3: A(c_[st])
                    elif st == (0 if tile == 0 else 1): A(c_[0])
        for i in (6, 7, 0, 1, 2, 3, 4, 5): A(f"v_rcp_f32 {vr(Dd+i)}, {vr(Dd+i)}")
        A(f"v_mul_f32 {vr(acc+6)}, {vr(Nn+6)}, {vr(Dd+6)}"); A(f"v_fmac_f32 {vr(acc+6)}, {vr(Nn+7)}, {vr(Dd+7)}")
        for k in (0, 2, 4): A(f"v_pk_mul_f32 {vr(acc+k,2)}, {vr(Nn+k,2)}, {vr(Dd+k,2)}")
    else:
        for tile in range(14):
            D = Db[tile % 3]
            if tile + 1 < 14: mm(tile + 1)
            for i in range(7): A(f"v_exp_f32 {vr(D+i)}, {vr(D+i)}")
            if tile == 0:
                for k in range(0, 8, 2): A(f"v_pk_add_f32 {vr(Dd+k,2)}, {vr(D+k,2)}, 1.0 op_sel_hi:[1,0]")
                continue
            Np = Db[0] + 8 if tile == 1 else Nn
            for k in range(0, 8, 2): A(f"v_pk_fma_f32 {vr(D+8+k,2)}, {vr(D+8+k,2)}, {vr(Dd+k,2)}, {vr(Np+k,2)}")
            for k in range(0, 8, 2): A(f"v_pk_fma_f32 {vr(Dd+k,2)}, {vr(Dd+k,2)}, {vr(D+k,2)}, {vr(Dd+k,2)}")
            for k in range(0, 8, 2): A(f"v_pk_fma_f32 {vr(Nn+k,2)}, {vr(Np+k,2)}, {vr(D+k,2)}, {vr(D+8+k,2)}")
        for i in range(7): A(f"v_rcp_f32 {vr(Dd+i)}, {vr(Dd+i)}")
        for k in range(0, 8, 2): A(f"v_pk_mul_f32 {vr(acc+k,2)}, {vr(Nn+k,2)}, {vr(Dd+k,2)}")
    A("L_fbd:")
    A("s_cmp_eq_u32 s30, 1")
    def ool_fb():
        A("L_fb:")
        A.c("direct evaluation (large activations or weights)")
        hh = vRaw; fa = vRaw + 8; w_ = vRaw + 9; b_ = vRaw + 10; u_ = vRaw + 11; x_ = vRaw + 12; p_ = vRaw + 13; al = vRaw + 14
        A(f"v_lshrrev_b32 {vr(fa)}, 5, v0"); A(f"v_mul_u32_u24 {vr(fa)}, 28, {vr(fa)}")
        A("s_mul_i32 s33, s32, 56"); A(f"s_add_u32 s33, s33, {L_H}"); A(f"v_add_u32 {vr(fa)}, s33, {vr(fa)}")
        for i in range(7): A(f"ds_read_b32 {vr(hh+i)}, {vr(fa)} offset:{4*i}")
        A(f"v_and_b32 {vr(fa)}, 31, v0"); A(f"v_lshlrev_b32 {vr(fa)}, 1, {vr(fa)}")
        A("s_mul_i32 s33, s30, 896"); A(f"v_add_u32 {vr(fa)}, s33, {vr(fa)}")
        A(f"s_mov_b32 s33, {f32(BETA)}"); A(f"v_mov_b32 {vr(al)}, {f32(ALPHA)}")
        for i in range(8): A(f"v_mov_b32 {vr(acc+i)}, 0")
        A("s_waitcnt lgkmcnt(0)")
        for i in range(7):
            A(f"v_sub_f32 {vr(hh+i)}, {vr(hh+i)}, {vr(mu)}"); A(f"v_mul_f32 {vr(hh+i)}, {vr(hh+i)}, {vr(rs)}")
            A(f"v_cvt_pk_bf16_f32 {vr(hh+i)}, {vr(hh+i)}, {vr(hh+i)}"); A(f"v_and_b32 {vr(hh+i)}, s38, {vr(hh+i)}")
        A("s_mov_b32 s34, 0")
        A("L_fbl:")
        A(f"global_load_ushort {vr(w_)}, {vr(fa)}, s[16:17]"); A(f"global_load_ushort {vr(b_)}, {vr(fa)}, s[18:19]"); A(f"global_load_ushort {vr(u_)}, {vr(fa)}, s[20:21]")
        A(f"v_add_u32 {vr(fa)}, 64, {vr(fa)}")
        A("s_waitcnt vmcnt(0)")
        for r_ in (w_, b_, u_): A(f"v_lshlrev_b32 {vr(r_)}, 16, {vr(r_)}")
        for i in range(7):
            A(f"v_fma_f32 {vr(x_)}, {vr(w_)}, {vr(hh+i)}, {vr(b_)}")
            A(f"v_mul_f32 {vr(p_)}, {vr(x_)}, {vr(x_)}"); A(f"v_fma_f32 {vr(p_)}, {vr(p_)}, s33, {vr(al)}"); A(f"v_mul_f32 {vr(p_)}, {vr(p_)}, {vr(x_)}")
            A(f"v_exp_f32 {vr(p_)}, {vr(p_)}"); A(f"v_add_f32 {vr(p_)}, 1.0, {vr(p_)}"); A(f"v_rcp_f32 {vr(p_)}, {vr(p_)}")
            A(f"v_mul_f32 {vr(x_)}, {vr(x_)}, {vr(p_)}"); A(f"v_fmac_f32 {vr(acc+i)}, {vr(x_)}, {vr(u_)}")
        A("s_add_u32 s34, s34, 1"); A("s_cmp_lt_u32 s34, 14"); A("s_cbranch_scc1 L_fbl")
        A("s_branch L_fbd")
    OOL.append(ool_fb)
    stamp(12)
    for k in range(4): A(f"v_add_f32_dpp {vr(acc+2*k)}, {vr(acc+2*k)}, {vr(acc+2*k)} row_ror:8 row_mask:0xf bank_mask:0x3")
    for k in range(3): A(f"v_add_f32_dpp {vr(acc+2*k)}, {vr(acc+2*k+1)}, {vr(acc+2*k+1)} row_ror:8 row_mask:0xf bank_mask:0xc")
    for k in range(2): A(f"v_add_f32_dpp {vr(acc+4*k)}, {vr(acc+4*k)}, {vr(acc+4*k)} row_shl:4 row_mask:0xf bank_mask:0x5")
    for k in range(2): A(f"v_add_f32_dpp {vr(acc+4*k)}, {vr(acc+4*k+2)}, {vr(acc+4*k+2)} row_shr:4 row_mask:0xf bank_mask:0xa")
    A(f"v_permlane16_swap_b32 {vr(acc)}, {vr(acc+4)}")
    A(f"v_add_f32 {vr(acc)}, {vr(acc)}, {vr(acc+4)}")
    A(f"v_add_f32_dpp {vr(acc)}, {vr(acc)}, {vr(acc)} quad_perm:[1,0,3,2] row_mask:0xf bank_mask:0xf")
    A(f"v_add_f32_dpp {vr(acc)}, {vr(acc)}, {vr(acc)} quad_perm:[2,3,0,1] row_mask:0xf bank_mask:0xf")
    A(f"ds_write_b32 {vr(vYa)}, {vr(acc)}")
    A("s_mov_b64 exec, 0x7f")
    A("s_waitcnt lgkmcnt(0)")
    A("s_barrier")
    A("s_cbranch_scc0 L_fin")
    A(f"ds_read2_b64 {vr(vT+4,4)}, {vr(vT)} offset0:0 offset1:8")
    A(f"ds_read2_b64 {vr(vT+8,4)}, {vr(vT)} offset0:16 offset1:24")
    A("s_waitcnt lgkmcnt(1)")
    A(f"v_pk_add_f32 {vr(vHf,2)}, {vr(vHf,2)}, {vr(vT+4,2)}"); A(f"v_pk_add_f32 {vr(vHf,2)}, {vr(vHf,2)}, {vr(vT+6,2)}")
    A("s_waitcnt lgkmcnt(0)")
    A(f"v_pk_add_f32 {vr(vHf,2)}, {vr(vHf,2)}, {vr(vT+8,2)}"); A(f"v_pk_add_f32 {vr(vHf,2)}, {vr(vHf,2)}, {vr(vT+10,2)}")
    A(f"v_cvt_pk_bf16_f32 {vr(vT+2)}, {vr(vHf)}, {vr(vHf+1)}")
    A(f"global_store_dword {vr(vOut)}, {vr(vT+2)}, s[24:25]")
    A("L_fin:")
    stamp(13)
    if amp:
        A(f"s_cmp_eq_u32 s30, {amp[0]}"); A("s_cbranch_scc0 L_end")
        A("s_waitcnt lgkmcnt(0)")
        A(f"s_sub_u32 s33, s{64+2*amp[1]}, s{64+2*amp[2]}")
        if amp[3] < 0: A("s_sub_u32 s33, 3000, s33")
        A("s_min_u32 s33, s33, 5000"); A("s_lshl_b32 s33, s33, 3"); A("s_add_u32 s33, s33, 4000")
        A("L_amp:")
        A("s_memrealtime s[34:35]"); A("s_waitcnt lgkmcnt(0)"); A("s_sub_u32 s34, s34, s64")
        A("s_cmp_lt_u32 s34, s33"); A("s_cbranch_scc1 L_amp")
    dump_stamps(15)
    A("L_end:")
    A("s_endpgm")
    for f in OOL: f()
    A(f".if (. - {NAME}) < 16384")
    A(f".fill (16384 - (. - {NAME})) / 4, 4, 0xbf810000")
    A(".endif")

    body, nn = fix_hazards(A.L)
    head = [l.rstrip("\n") for l in open("header.txt")]
    head.append(f"; @launch grid=(256,1,1) block=(512,1,1) lds={L_END}")
    head += ['.amdgcn_target "amdgcn-amd-amdhsa--gfx950"', ".text", f".globl {NAME}", ".p2align 8", f".type {NAME},@function"]
    tail = ['.section .rodata,"a"', ".p2align 6", f".amdhsa_kernel {NAME}",
            "  .amdhsa_next_free_vgpr 256", "  .amdhsa_next_free_sgpr 96", "  .amdhsa_accum_offset 256",
            "  .amdhsa_group_segment_fixed_size 0", "  .amdhsa_kernarg_size 104", "  .amdhsa_user_sgpr_count 2",
            "  .amdhsa_user_sgpr_kernarg_segment_ptr 1", "  .amdhsa_system_sgpr_workgroup_id_x 1",
            "  .amdhsa_float_denorm_mode_32 3", ".end_amdhsa_kernel"]
    return "\n".join(head + body + tail) + "\n"

if __name__ == "__main__":
    kw = eval("dict(" + (sys.argv[2] if len(sys.argv) > 2 else "") + ")")
    open(sys.argv[1], "w").write(gen(**kw))
```

```python
import re

REG = re.compile(r'^(-?\|?|abs\(|-abs\()?([vsa])(\d+|\[(\d+):(\d+)\])\)?\|?$')

def regs_of(tok):
    tok = tok.strip()
    if tok in ('vcc',): return {('s', 'vcc')}
    if tok in ('vcc_lo', 'vcc_hi'): return {('s', 'vcc')}
    if tok in ('exec', 'exec_lo', 'exec_hi'): return {('s', 'exec')}
    if tok == 'm0': return {('s', 'm0')}
    m = REG.match(tok)
    if not m: return set()
    f = m.group(2)
    if m.group(4) is not None:
        return {(f, i) for i in range(int(m.group(4)), int(m.group(5)) + 1)}
    return {(f, int(m.group(3)))}

TRANS = ('v_exp_', 'v_log_', 'v_rcp_', 'v_rsq_', 'v_sqrt_', 'v_sin_', 'v_cos_')

class Ins:
    def __init__(self, text):
        self.text = text
        t = text.split(';')[0].strip()
        self.label = None; self.op = None; self.directive = False
        self.w = set(); self.r = set(); self.ws = 0
        if not t: return
        if t.endswith(':'):
            self.label = t[:-1]; return
        if t.startswith('.'):
            self.directive = True; return
        parts = t.split(None, 1)
        self.op = op = parts[0]
        rest = parts[1] if len(parts) > 1 else ''
        ops = []; cur = ''; depth = 0
        for ch in rest:
            if ch in '[(': depth += 1
            if ch in '])': depth -= 1
            if ch == ',' and depth == 0:
                ops.append(cur.strip()); cur = ''
            else: cur += ch
        if cur.strip(): ops.append(cur.strip())
        mods = ''
        if ops:
            last = ops[-1].split(None, 1)
            ops[-1] = last[0]
            mods = last[1] if len(last) > 1 else ''
        self.ops = ops; self.mods = mods
        self.ws = 1
        if op == 's_nop': self.ws = int(ops[0], 0) + 1
        R = [regs_of(o) for o in ops]
        U = lambda xs: set().union(*xs) if xs else set()
        self.valu = op.startswith('v_')
        self.mfma = op.startswith('v_mfma')
        self.trans = op.startswith(TRANS)
        self.dpp = self.valu and any(k in mods for k in ('row_', 'quad_perm', 'wave_'))
        self.vmem = op.startswith(('buffer_', 'global_'))
        self.ds = op.startswith('ds_')
        self.salu = op.startswith('s_')
        self.permlane = op.startswith('v_permlane')
        self.ldsdma = self.vmem and (' lds' in (' ' + mods) or 'load_lds' in op)
        self.widestore = False
        self.srcC = set(); self.srcAB = set()
        if self.mfma:
            self.w = R[0]; self.srcAB = R[1] | R[2]; self.srcC = R[3]; self.r = self.srcAB | self.srcC
            self.passes = 8 if '32x32x16' in op else 4
            assert ('32x32x16_bf16' in op) or ('16x16x32_bf16' in op) or ('16x16x16_bf16' in op), op
        elif self.permlane:
            self.w = R[0] | R[1]; self.r = R[0] | R[1]
        elif self.valu:
            if op.startswith(('v_add_co', 'v_sub_co', 'v_addc_co', 'v_subb_co')):
                self.w = R[0] | R[1]; self.r = U(R[2:])
            else:
                self.w = R[0]; self.r = U(R[1:])
            if op.startswith('v_cmpx'): self.w |= {('s', 'exec')}
            if op.startswith(('v_fmac', 'v_pk_fmac', 'v_dot2c', 'v_writelane')) or self.dpp:
                self.r |= R[0]
        elif self.ds:
            if op.startswith(('ds_read', 'ds_bpermute', 'ds_permute', 'ds_swizzle')) or '_rtn' in op:
                self.w = R[0]; self.r = U(R[1:])
            else:
                self.r = U(R)
        elif self.vmem:
            if 'load' in op and not self.ldsdma:
                self.w = R[0]; self.r = U(R[1:])
                if 'd16' in op: self.r |= R[0]
            elif 'atomic' in op and 'sc0' in mods:
                self.w = R[0]; self.r = U(R)
            else:
                self.r = U(R)
                if op.endswith(('x3', 'x4')) and 'store' in op:
                    self.widestore = True
                    self.stdata = R[0] if op.startswith('buffer_') else R[1]
            if self.ldsdma: self.r |= {('s', 'm0')}
        elif self.salu:
            if op.startswith(('s_cmp', 's_bitcmp', 's_cbranch', 's_branch', 's_waitcnt', 's_nop', 's_barrier', 's_sleep', 's_setprio', 's_endpgm')):
                self.r = U(R)
            else:
                self.w = R[0] if R else set(); self.r = U(R[1:])
                if 'saveexec' in op: self.w |= {('s', 'exec')}
        self.branch = op.startswith(('s_cbranch', 's_branch'))
        self.uncond = op in ('s_branch', 's_endpgm')
        self.target = ops[0] if self.branch else None

def isv(rs): return {x for x in rs if x[0] in 'va'}
def iss(rs): return {x for x in rs if x[0] == 's'}

def need(p, c):
    n = 0
    if p.mfma:
        d = p.w
        if c.mfma:
            if d & c.srcAB: n = max(n, 8 if p.passes == 4 else 12)
            if d & c.srcC:
                if not (d == c.srcC and p.passes == c.passes): n = max(n, 6 if p.passes == 4 else 10)
            if (d & c.w) and not (d & c.srcC):
                n = max(n, 8 if p.passes == 4 else 12)
        elif (c.valu or c.vmem or c.ds) and (d & (c.r | c.w)):
            n = max(n, 8 if p.passes == 4 else 12)
        if c.valu and not c.mfma and (p.srcC & c.w): n = max(n, 3 if p.passes == 4 else 7)
        return n
    if p.valu:
        vw = isv(p.w); sw = iss(p.w)
        if c.mfma and (vw & c.r): n = max(n, 2)
        if c.valu and not c.mfma:
            if c.dpp and (vw & c.r): n = max(n, 2)
            if c.permlane and (vw & c.r): n = max(n, 2)
            if c.op.startswith(('v_readlane', 'v_readfirstlane')) and (vw & c.r): n = max(n, 1)
            if p.trans and (vw & c.r): n = max(n, 1)
            if ('op_sel' in p.mods or 'dst_sel' in p.mods) and not p.op.startswith('v_pk') and (vw & (c.r | c.w)): n = max(n, 1)
            if sw & c.r:
                n = max(n, 4 if c.op.startswith(('v_readlane', 'v_writelane')) else 2)
            if ('s', 'vcc') in sw and c.op.startswith(('v_cndmask', 'v_addc', 'v_subb')): n = max(n, 2)
        if ('s', 'exec') in sw:
            if c.mfma or c.permlane or c.op.startswith(('v_readlane', 'v_readfirstlane', 'v_writelane')): n = max(n, 4)
            if c.dpp: n = max(n, 5)
        if c.vmem and (sw & c.r): n = max(n, 5)
        if c.salu and (sw & c.r): n = max(n, 1)
        if c.op.startswith('s_cbranch_vcc') and ('s', 'vcc') in sw: n = max(n, 1)
    elif (p.vmem or p.ds):
        pass
    if p.salu and ('s', 'm0') in p.w and c.ldsdma: n = max(n, 1)
    if p.widestore and (p.stdata & c.w): n = max(n, 2 if c.valu else 1)
    return n

def fix_hazards(lines, maxd=13):
    ins = [Ins(l) for l in lines]
    total = 0
    def index():
        labels = {x.label: i for i, x in enumerate(ins) if x.label}
        srcs = {}
        for i, x in enumerate(ins):
            if x.op and x.branch: srcs.setdefault(labels[x.target], []).append(i)
        return srcs
    changed = True
    while changed:
        changed = False
        srcs = index()
        i = 0
        while i < len(ins):
            c = ins[i]
            if c.op:
                short = 0
                stack = [(i - 1, 0, True)]; seen = set()
                while stack:
                    j, dist, ft = stack.pop()
                    if j < 0 or dist >= maxd or (j, dist, ft) in seen: continue
                    seen.add((j, dist, ft))
                    p = ins[j]
                    if p.op:
                        if ft and p.uncond: continue
                        short = max(short, need(p, c) - dist)
                        stack.append((j - 1, dist + p.ws, True))
                    else:
                        if p.label:
                            for b in srcs.get(j, []): stack.append((b, dist, False))
                        stack.append((j - 1, dist, True))
                if short > 0:
                    ins.insert(i, Ins(f'    s_nop {short - 1}    ; hazard'))
                    total += short
                    changed = True
                    srcs = index()
                    i += 1
            i += 1
    return [x.text for x in ins], total

class Asm:
    def __init__(self):
        self.L = []
    def __call__(self, s):
        for l in s.split('\n'):
            l = l.strip()
            if not l: continue
            self.L.append(l if l.endswith(':') or l.startswith(('.', ';')) else '    ' + l)
    def c(self, s):
        self.L.append('    ; ' + s)

def vr(a, n=1):
    return f'v{a}' if n == 1 else f'v[{a}:{a+n-1}]'
def sr(a, n=1):
    return f's{a}' if n == 1 else f's[{a}:{a+n-1}]'

class Alloc:
    def __init__(self, start, limit):
        self.p = start; self.limit = limit; self.hi = start
    def __call__(self, n=1, align=None):
        if align is None: align = 1 if n == 1 else (2 if n < 4 else 4)
        self.p = (self.p + align - 1) // align * align
        a = self.p; self.p += n
        assert self.p <= self.limit, (self.p, self.limit)
        self.hi = max(self.hi, self.p)
        return a
```

```python
import sys, struct, math
from asmlib import *

NAME = "sequential_preLN__sliding_block_cached__mixer_token_mlp__decode_kernel"
def f32(x): return "0x%08x" % struct.unpack("<I", struct.pack("<f", x))[0]

L_K = 0; L_WQ = 131072; L_Q = 145408; L_STAT = 146432; L_OP = 146688; L_PP = 154880; L_H = 158976; L_HS = 161024; L_Y = 161088
L_END = 161344
L_X = L_OP
W_Q = 0
W_L = 0xA0000
W_O = 0x40000
W_B = 0x80000
W_ALT = 0x100000
W_STAMP = 0x200000
SPIN = 0x20000
STAMP_VIEW = [("S", slice(4, 8), [0, 8, 6, 7, 1, 2, 3, 4, 5]), ("T0", 0, [0, 1, 3, 4, 14]), ("T3L", 3, [0, 1, 4], slice(224, 256)),
              ("T1", 1, [0, 4, 2, 5, 6, 7, 8, 9, 10, 11, 12, 13]), ("Tall", slice(0, 4), [5, 6, 7, 8, 9, 10, 11, 12, 13])]
ALPHA = -2.0 * math.sqrt(2.0 / math.pi) * math.log2(math.e)
BETA = ALPHA * 0.044715

def gen(W=8, QPOS=4, QD=2, FT=-1, stamps=False, force_slow=False, pol="nt", qpol="nt", opol="nt", opol2="nt", spol="", skip="",
        pref=True, opos="mid", qx=16, force_fb=False, touch=False, amp=None, DA=1, DB=1, rotm=1, PB=0, NL=1, EP=0, inst=0, spf=2, WE=0, WEN=64, WE0=8, WEM=0x55, NLD=4, LD0=8, qpace=0, prio=0, QT=0, GA=0, GB=0, cpos="early", N1=8, c1=True, NE=0, o1=True, o2=True, o3=True, ap=2, NB=0, pos='r1 j1 r3 j0 s0 r2 s1 t0 t1', rot='r3=c', wb=1, wbs=0, ks=0, b0=0, b0n=0, wq1=0, wbr=31, lw=True, pad=0, al=1, tal=0, warm=0, outpol='', hack="", bx="ab", PB0=0):
    A = Asm()
    c1_ = c1
    OOL = []
    def stamp(i):
        if stamps or (amp and i in (amp[1], amp[2], 0)): A(f"s_memrealtime s[{64+2*i}:{65+2*i}]")
    def dump_stamps(nst):
        if not stamps: return
        A("s_waitcnt lgkmcnt(0) vmcnt(0)")
        A("s_lshl_b32 s94, s2, 3"); A("s_add_u32 s94, s94, s30"); A("s_lshl_b32 s94, s94, 6"); A(f"s_add_u32 s94, s94, {W_STAMP}")
        A("s_mov_b64 exec, 1")
        A("v_mov_b32 v4, s94")
        for i in range(nst):
            A(f"v_mov_b32 v5, s{64+2*i}")
            A(f"global_store_dword v4, v5, s[28:29] offset:{4*i}")
        A("s_getreg_b32 s94, hwreg(HW_REG_XCC_ID, 0, 4)"); A("v_mov_b32 v5, s94")
        A("global_store_dword v4, v5, s[28:29] offset:60")
        A("s_waitcnt vmcnt(0)")

    A(f"{NAME}:")
    stamp(0)
    A("s_load_dwordx16 s[4:19], s[0:1], 0" if ks != 2 else "s_load_dwordx8 s[4:11], s[0:1], 0")
    if not ks or stamps:
        A("s_load_dwordx8 s[20:27], s[0:1], 64")
        A("s_load_dwordx2 s[28:29], s[0:1], 96")
    A("v_lshrrev_b32 v1, 6, v0")
    A("s_lshr_b32 s32, s2, 3")
    A("v_readfirstlane_b32 s30, v1")
    A("s_cmp_ge_u32 s32, 32")
    A("s_cbranch_scc1 L_end")
    A("v_and_b32 v0, 63, v0")
    A("s_and_b32 s31, s2, 7")
    A("v_lshlrev_b32 v3, 4, v0")
    A("s_cmp_lt_u32 s30, 4")
    A("s_cbranch_scc1 L_T")

    A.c("================ stream waves")
    V = Alloc(4, 256)
    vK = V(8); vVo = V(8); vKA = V(4); vM = V(4); vT = V(8); vOPa = V(2); vQA = V(); vSTw = V(); vSTr = V()
    vS = V(16); vAcc = vK; vQ = V(32); vKF = V(32); vVv = V(128)
    vA = vQ
    assert vKF == vQ + 32
    P = {nm: 10 + k for k, nm in enumerate(pos.split())}
    SRC = dict(a=("s2", 3), b=("s2", 4), c=("s2", 5), d=("s2", 6), e=("s2", 7), x=("s2", 0), y=("s2", 1), z=("s2", 2), p=("s30", 0), q=("s30", 1))
    R = {k: v for k, v in (x.split("=") for x in rot.split())}
    def gaddr(i): return sum(((i >> k) & 1) << P[f"r{k+1}"] for k in range(3))
    def X(i): return ((8*(i & 1) + (i >> 1)) << 4) | gaddr(i)
    def parity(dst, key):
        for n_, ch in enumerate(R[key]):
            reg, bit = SRC[ch]
            if n_ == 0: A(f"s_bfe_u32 {dst}, {reg}, {hex(0x10000 | bit)}")
            else: A(f"s_bfe_u32 s39, {reg}, {hex(0x10000 | bit)}"); A(f"s_xor_b32 {dst}, {dst}, s39")
    A("s_lshr_b32 s34, s2, 5"); A("s_lshl3_add_u32 s34, s34, s31"); A("s_lshl2_add_u32 s34, s34, 3"); A("s_lshl_b32 s40, s34, 19")
    def field(reg, bit, n0, n1):
        if P[n1] == P[n0] + 1:
            A(f"s_bfe_u32 s35, {reg}, {hex(0x20000 | bit)}"); A(f"s_lshl_b32 s35, s35, {P[n0]}"); A("s_or_b32 s40, s40, s35")
        else:
            for k, nm in enumerate((n0, n1)):
                A(f"s_bitcmp1_b32 {reg}, {bit + k}"); A(f"s_cselect_b32 s35, {1 << P[nm]}, 0"); A("s_or_b32 s40, s40, s35")
    field("s2", 3, "s0", "s1"); field("s30", 0, "j0", "j1")
    for nm in ("t0", "t1"):
        if nm in R: parity("s35", nm); A(f"s_lshl_b32 s35, s35, {P[nm]}"); A("s_or_b32 s40, s40, s35")
    tlx = [((tl & 1) << P["t0"]) | ((tl >> 1) << P["t1"]) for tl in range(4)]
    A("s_sub_u32 s33, s30, 4")
    A("s_lshl_b32 s37, s33, 15")
    A("s_mov_b32 s44, s37"); A("s_mov_b32 s38, 0"); A("s_mov_b32 s60, 0")
    for k in range(3):
        if f"r{k+1}" in R:
            parity("s35", f"r{k+1}")
            A(f"s_mul_i32 s36, s35, {X(1 << k)}"); A("s_or_b32 s38, s38, s36")
            A(f"s_lshl_b32 s36, s35, {10 + k}"); A("s_or_b32 s44, s44, s36")
            if k: A(f"s_lshl{k-1}_add_u32 s60, s35, s60" if k > 1 else "s_add_u32 s60, s35, s60")
    A(f"v_and_b32 {vr(vT)}, 32, v0"); A(f"v_lshlrev_b32 {vr(vT)}, 1, {vr(vT)}")
    A(f"v_xor_b32 {vr(vT)}, {vr(vT)}, v3")
    A(f"v_xor_b32 {vr(vK)}, s38, {vr(vT)}")
    if prio == 2: A("s_setprio 3")
    A("s_brev_b32 s54, 16"); A("s_mov_b32 s55, 0x20000")
    A("s_mov_b32 m0, s44")
    A("s_waitcnt lgkmcnt(0)")
    A("s_mov_b64 s[52:53], s[6:7]")
    stamp(8)
    issued = [0]
    def throttle():
        if WE and WE0 <= issued[0] < WE0 + WEN:
            A(f"s_cbranch_vccz L_th{issued[0]}"); A(f"s_waitcnt vmcnt({abs(WE)-1})"); A(f"L_th{issued[0]}:")
        if issued[0] >= W: A(f"s_waitcnt vmcnt({W-1})")
        issued[0] += 1
    def kload(tl, i):
        if tl or i: A(f"s_xor_b32 m0, s44, {(tl << 13) | (i << 10)}")
        if tl == 0 and i: A(f"v_xor_b32 {vr(vK+i)}, {X(i)}, {vr(vK)}")
        throttle()
        A(f"buffer_load_dwordx4 {vr(vK+i)}, s[52:55], s{40+tl} offen {pol} lds")
    for i in range(8):
        if b0 and i == b0n: A("s_barrier")
        kload(0, i)
    A("s_branch L_S2")

    A("L_T:")
    A.c("================ tail waves")
    if ks == 2: A("s_load_dwordx8 s[12:19], s[0:1], 32")
    if ks and not stamps:
        A("s_load_dwordx8 s[20:27], s[0:1], 64")
        A("s_load_dwordx2 s[28:29], s[0:1], 96")
    V = Alloc(4, 256)
    vC = V(56); vW = V(32); vRaw = V(32); vX = V(56); tT = V(24)
    vXr = V(4); vDl = V(4); vQs = V(8); vG = V(4); vK1 = V(5); vHa = V(); vKs = V(2); vHf = V(2)
    vYa = V(); vLa = V(); vOa = V(); vPPa = V(); vBst = V(); vOst = V(); vLst = V(); vLse = V()
    vBa = V(); vHw = V(); vHsw = V(); vOut = V(); vB2 = V(); vQa = V(); vOPr = V(); vPPr = V(); vWa = V(2); vQw = V(); vWr = V()
    assert vRaw == vW + 32
    raw = vRaw if cpos == "early" else vX + 32
    def prep_loads():
        t = tT + 14
        A.c("MLP weights, residual row piece, b2")
        if c1_:
            A("s_mul_i32 s33, s30, 896")
            A(f"v_mul_u32_u24 {vr(t)}, 12, v0"); A(f"v_add_u32 {vr(t)}, {508 - 384}, {vr(t)}")
            A("v_cmp_lt_u32 vcc, 31, v0"); A(f"v_cndmask_b32 {vr(t)}, v3, {vr(t)}, vcc"); A(f"v_add_u32 {vr(t)}, s33, {vr(t)}")
            for k, sp in enumerate((16, 18, 20)):
                A(f"global_load_dwordx4 {vr(raw+8*k,4)}, {vr(t)}, s[{sp}:{sp+1}] {spol}")
        else:
            A(f"v_and_b32 {vr(t)}, 31, v0")
            A("s_mul_i32 s33, s30, 896")
            A(f"v_lshlrev_b32 {vr(t+1)}, 4, {vr(t)}"); A(f"v_add_u32 {vr(t+1)}, s33, {vr(t+1)}")
            A(f"v_lshlrev_b32 {vr(t+2)}, 3, {vr(t)}"); A(f"v_add_u32 {vr(t+2)}, s33, {vr(t+2)}")
            A(f"v_lshlrev_b32 {vr(t+3)}, 2, {vr(t)}"); A(f"v_add_u32 {vr(t+3)}, s33, {vr(t+3)}")
            for k, sp in enumerate((16, 18, 20)):
                A(f"global_load_dwordx4 {vr(raw+8*k,4)}, {vr(t+1)}, s[{sp}:{sp+1}] {spol}")
                A(f"global_load_dwordx2 {vr(raw+8*k+4,2)}, {vr(t+2)}, s[{sp}:{sp+1}] offset:512 {spol}")
                A(f"global_load_dword {vr(raw+8*k+6)}, {vr(t+3)}, s[{sp}:{sp+1}] offset:768 {spol}")
        A(f"v_min_u32 {vr(t)}, 13, v1"); A(f"v_and_b32 {vr(t+1)}, 1, v2")
        A("s_mul_i32 s33, s31, 896"); A("s_mul_i32 s34, s30, 224"); A("s_add_u32 s33, s33, s34")
        A(f"v_lshlrev_b32 {vr(t)}, 4, {vr(t)}"); A(f"v_lshl_add_u32 {vr(t)}, {vr(t+1)}, 3, {vr(t)}"); A(f"v_add_u32 {vr(t)}, s33, {vr(t)}")
        A(f"global_load_dwordx2 {vr(vXr+2,2)}, {vr(t)}, s[4:5] {spol}")
        A(f"v_mov_b32 {vr(t+2)}, 0")
        A(f"global_load_ushort {vr(vB2)}, {vr(t+2)}, s[22:23] {spol}")
    A("v_and_b32 v1, 15, v0")
    A("v_lshrrev_b32 v2, 4, v0")
    A("s_lshl_b32 s63, s31, 2")
    A(f"v_mov_b32 {vr(vQw)}, 0")
    if b0: A("s_mov_b32 s46, 0")
    if "T" in skip:
        A("s_waitcnt lgkmcnt(0)"); A("s_barrier"); A("s_barrier"); A("s_barrier")
        if NL: A("s_barrier")
        A("s_branch L_b3")
    A("s_cmp_eq_u32 s30, 0"); A("s_cbranch_scc1 L_T0")
    A("s_cmp_eq_u32 s30, 3"); A("s_cbranch_scc1 L_T3")
    if spf:
        A("s_cmp_eq_u32 s30, 1"); A("s_cbranch_scc1 L_T1")
    if pref:
        if not spf: A("s_cmp_eq_u32 s30, 2"); A("s_cbranch_scc0 L_prepw")
        A.c("T2: pull the code into this XCD's L2")
        A("s_getpc_b64 s[34:35]")
        A("L_pc:")
        A(f"s_sub_u32 s34, s34, L_pc-{NAME}"); A("s_subb_u32 s35, s35, 0")
        A("s_mul_i32 s33, s32, 640")
        A(f"v_min_u32 {vr(tT)}, 9, v0"); A(f"v_lshlrev_b32 {vr(tT)}, 6, {vr(tT)}"); A(f"v_add_u32 {vr(tT)}, s33, {vr(tT)}")
        A(f"global_load_dword {vr(tT+2)}, {vr(tT)}, s[34:35]")
    A("s_branch L_prepw")
    if spf:
        A("L_T1:")
        A.c("T1: pull 14 rows of the wq column block that r=28..31 read (and of the last block) into L2")
        A("s_mul_i32 s33, s32, 14*8192"); A("s_lshl_b32 s34, s31, 10"); A("s_add_u32 s33, s33, s34"); A("s_addk_i32 s33, 384")
        A(f"v_min_u32 {vr(tT)}, 13, v1"); A(f"v_lshlrev_b32 {vr(tT)}, 13, {vr(tT)}")
        A(f"v_and_b32 {vr(tT+1)}, 1, v2"); A(f"v_lshl_add_u32 {vr(tT)}, {vr(tT+1)}, 6, {vr(tT)}")
        A(f"v_lshrrev_b32 {vr(tT+1)}, 1, v2"); A(f"v_lshl_add_u32 {vr(tT)}, {vr(tT+1)}, 9, {vr(tT)}")
        A(f"v_add_u32 {vr(tT)}, s33, {vr(tT)}")
        A("s_cmp_eq_u32 s31, 7"); A("s_cselect_b32 exec_hi, -1, 0")
        if spf == 2: A("s_and_b32 exec_hi, exec_hi, 0xffff"); A("s_mov_b32 exec_lo, 0xffff")
        A("s_waitcnt lgkmcnt(0)")
        A(f"global_load_dword {vr(tT+2)}, {vr(tT)}, s[10:11]")
        A("s_mov_b64 exec, -1")
        A("s_branch L_prepw")
    A("L_T3:")
    A.c(f"T3 of {NLD} workgroup(s) per group: clear a share of the group's q and lse slots, then count in")
    per = 4 // NLD
    A(f"s_sub_u32 s36, s32, {LD0}"); A(f"s_cmp_lt_u32 s36, {NLD}"); A("s_cbranch_scc0 L_prepw")
    for i in range(4): A(f"v_mov_b32 {vr(tT+4+i)}, -1")
    A("s_getreg_b32 s34, hwreg(HW_REG_XCC_ID, 0, 4)")
    if per > 1: A(f"s_mul_i32 s34, s34, {0x1111 & ((1 << (4*per)) - 1)}"); A(f"s_mul_i32 s36, s36, {per}")
    A("s_lshl_b32 s33, s36, 2"); A("s_lshl_b32 s34, s34, s33"); A(f"s_bitset1_b32 s34, {16 + per.bit_length() - 1}")
    A("s_lshl2_add_u32 s33, s31, s36"); A("s_lshl_b32 s35, s33, 13"); A(f"v_add_u32 {vr(tT)}, s35, v3")
    A("s_lshl_b32 s33, s33, 6"); A(f"s_add_u32 s33, s33, {W_L}")
    A(f"v_add_u32 {vr(tT+2)}, s33, v3")
    A("s_waitcnt lgkmcnt(0)")
    for k in range(2*per):
        for i in range(4): A(f"global_store_dwordx4 {vr(tT)}, {vr(tT+4,4)}, s[28:29] offset:{1024*i}")
        if k < 2*per - 1: A(f"v_add_u32 {vr(tT)}, 4096, {vr(tT)}")
    A(f"s_mov_b64 exec, {(1 << (4*per)) - 1}")
    A(f"global_store_dwordx4 {vr(tT+2)}, {vr(tT+4,4)}, s[28:29]")
    A("s_mov_b64 exec, -1")
    if b0:
        A("s_mov_b32 s46, s34")
    else:
        A("s_waitcnt vmcnt(0)")
        A("s_atomic_add s34, s[26:27], s63")
        stamp(1)
    A("s_branch L_prepw")
    A("L_T0:")
    A.c("T0: x into LDS, clear this workgroup's share of the hand-off slots (acknowledged before q is published)")
    A(f"v_lshrrev_b32 {vr(vQw)}, 3, v0"); A(f"v_lshlrev_b32 {vr(vQw)}, 13, {vr(vQw)}"); A(f"v_and_b32 {vr(tT)}, 0x70, v3"); A(f"v_or_b32 {vr(vQw)}, {vr(vQw)}, {vr(tT)}")
    A(f"s_xor_b32 s34, s32, {qx}"); A("s_lshr_b32 s35, s34, 2"); A("s_lshl3_add_u32 s50, s31, s35"); A("s_lshl_b32 s50, s50, 7")
    A("s_and_b32 s48, s34, 3"); A("s_mul_i32 s34, s48, 112*8192"); A("s_add_u32 s50, s50, s34")
    qstep = 0x10000
    if "8" in hack:
        A(f"v_lshlrev_b32 {vr(vQw)}, 13, v2"); A(f"v_lshl_add_u32 {vr(vQw)}, v1, 4, {vr(vQw)}")
        A("s_lshr_b32 s35, s32, 3"); A("s_lshl2_add_u32 s50, s31, s35"); A("s_lshl_b32 s50, s50, 8")
        A("s_and_b32 s34, s32, 7"); A("s_mul_i32 s34, s34, 56*8192"); A("s_add_u32 s50, s50, s34"); qstep = 0x8000
    if "C" in hack:
        A(f"v_mov_b32 {vr(vQw)}, v3"); A("s_mul_i32 s50, s2, 14336"); qstep = 1024
    A("s_movk_i32 s58, 7168"); A("s_mov_b32 s59, 0x20000"); A("s_movk_i32 s35, 4096")
    A(f"s_mov_b32 m0, {L_X}")
    A("s_lshl_b32 s33, s31, 15"); A("s_lshl_b32 s34, s32, 10"); A("s_add_u32 s33, s33, s34"); A(f"s_add_u32 s33, s33, {W_O}")
    A(f"v_add_u32 {vr(tT)}, s33, v3")
    A("s_mul_i32 s33, s31, 14336"); A("s_min_u32 s34, s32, 27"); A("s_lshl_b32 s34, s34, 9"); A("s_add_u32 s33, s33, s34"); A(f"s_add_u32 s33, s33, {W_B}")
    A(f"v_add_u32 {vr(tT+1)}, s33, v3")
    for i in range(4): A(f"v_mov_b32 {vr(vW+i)}, -1")
    A("s_waitcnt lgkmcnt(0)")
    A("s_mov_b64 s[56:57], s[4:5]")
    for t in range(4 if "x" not in hack else 0): A(f"buffer_load_dwordx4 v3, s[56:59], 0 offen offset:{1024*t} {spol} lds")
    A(f"s_mov_b32 m0, {L_X + 4096}")
    for t in range(3 if "x" not in hack else 0): A(f"buffer_load_dwordx4 v3, s[56:59], s35 offen offset:{1024*t} {spol} lds")
    A(f"global_store_dwordx4 {vr(tT)}, {vr(vW,4)}, s[28:29]")
    A.c("r = 28..31 repeat the share of r = 27 with one lane")
    A("s_cmp_lt_u32 s32, 28"); A("s_cselect_b32 exec_lo, -1, 1"); A("s_mov_b32 exec_hi, 0")
    A(f"global_store_dwordx4 {vr(tT+1)}, {vr(vW,4)}, s[28:29] sc1")
    A("s_mov_b64 exec, -1")
    A("s_branch L_prepw")

    A("L_S2:")
    A("v_and_b32 v1, 15, v0")
    A("v_lshrrev_b32 v2, 4, v0")
    for tl in range(1, 4): A(f"s_xor_b32 s{40+tl}, s40, {tlx[tl]}")
    A("s_mov_b64 s[56:57], s[8:9]"); A("s_mov_b32 s58, s54"); A("s_mov_b32 s59, 0x20000")
    if "d" in R: parity("s61", "d"); A("s_lshl_b32 s61, s61, 8")
    else: A("s_mov_b32 s61, 0")
    A(f"v_and_b32 {vr(vT)}, 1, v2"); A(f"v_lshlrev_b32 {vr(vT)}, 9, {vr(vT)}"); A(f"v_lshl_add_u32 {vr(vT)}, v1, 4, {vr(vT)}")
    A(f"v_lshrrev_b32 {vr(vT+1)}, 1, v2"); A(f"v_lshl_add_u32 {vr(vT)}, {vr(vT+1)}, {P['r1']}, {vr(vT)}")
    A(f"s_and_b32 s35, s38, {gaddr(6)}"); A("s_or_b32 s35, s35, s61")
    A(f"v_or_b32 {vr(vVo)}, s35, {vr(vT)}")
    for e in range(1, 8): A(f"v_xor_b32 {vr(vVo+e)}, {gaddr(e & 6) | ((e & 1) << 8)}, {vr(vVo)}")
    A(f"v_xor_b32 {vr(vT+3)}, s60, v1")
    A(f"v_and_b32 {vr(vT)}, 3, {vr(vT+3)}"); A(f"v_lshrrev_b32 {vr(vT+1)}, 2, v1")
    A(f"v_lshl_add_u32 {vr(vT+2)}, {vr(vT)}, 2, {vr(vT+1)}")
    A(f"v_xor_b32 {vr(vT+3)}, {vr(vT+3)}, v2")
    A(f"v_lshlrev_b32 {vr(vT+2)}, 9, {vr(vT+2)}"); A(f"v_add_u32 {vr(vT+2)}, s37, {vr(vT+2)}")
    A(f"v_lshl_add_u32 {vr(vKA)}, {vr(vT+3)}, 4, {vr(vT+2)}")
    for t in range(1, 4): A(f"v_xor_b32 {vr(vKA+t)}, {64*t}, {vr(vKA)}")
    A(f"v_lshrrev_b32 {vr(vT)}, 3, v1")
    A(f"v_lshlrev_b32 {vr(vQA)}, 9, {vr(vT)}"); A(f"v_lshl_add_u32 {vr(vQA)}, v2, 4, {vr(vQA)}")
    A(f"v_add_u32 {vr(vQA)}, {L_Q}, {vr(vQA)}")
    A(f"v_lshlrev_b32 {vr(vSTr)}, 5, {vr(vT)}"); A(f"v_add_u32 {vr(vSTr)}, {L_STAT}, {vr(vSTr)}")
    A("s_lshl_b32 s35, s33, 2"); A(f"v_add_u32 {vr(vSTw)}, s35, {vr(vSTr)}")
    def delta(dst, val, t0):
        A(f"v_and_b32 {vr(t0)}, 16, v3")
        A(f"v_mov_b32 {vr(t0+1)}, {val}"); A(f"v_lshlrev_b32 {vr(t0+1)}, {vr(t0)}, {vr(t0+1)}")
        A(f"v_bfe_u32 {vr(t0)}, v1, 1, 2")
        for i in range(4):
            A(f"v_cmp_eq_u32 vcc, {i}, {vr(t0)}")
            A(f"v_cndmask_b32 {vr(dst+i)}, 0, {vr(t0+1)}, vcc")
    delta(vM, "0xffff", vT)
    A(f"v_and_b32 {vr(vT)}, 1, v2"); A(f"v_lshlrev_b32 {vr(vT)}, 4, {vr(vT)}")
    A(f"v_lshrrev_b32 {vr(vT+1)}, 1, v2"); A(f"v_lshl_add_u32 {vr(vT)}, {vr(vT+1)}, 10, {vr(vT)}")
    A(f"v_lshl_add_u32 {vr(vT)}, v1, 5, {vr(vT)}")
    A("s_lshl_b32 s35, s33, 11"); A(f"s_add_u32 s35, s35, {L_OP}")
    for dh in range(2):
        A(f"s_xor_b32 s38, s61, {dh << 8}"); A("s_lshl1_add_u32 s38, s38, s35")
        A(f"v_add_u32 {vr(vOPa+dh)}, s38, {vr(vT)}")
    if WE:
        A("s_getreg_b32 s35, hwreg(HW_REG_XCC_ID, 0, 3)"); A(f"s_bitcmp1_b32 {WEM}, s35"); A("s_cselect_b64 vcc, -1, 0")
    nv = [0]
    vord = list(range(28)) + [28, 30, 29, 31]
    def more(k):
        for _ in range(k):
            if nv[0] < 32:
                idx = vord[nv[0]]; tl, e = idx >> 3, idx & 7
                throttle()
                A(f"buffer_load_dwordx4 {vr(vVv+4*idx,4)}, {vr(vVo+e)}, s[56:59], s{40+tl} offen {pol}")
                nv[0] += 1
    seq = [("k", tl, i) for tl in range(1, 4) for i in range(8)] + [("v",)] * 32
    pos = 0
    def adv(n):
        nonlocal pos
        for _ in range(n):
            it = seq[pos]; pos += 1
            if it[0] == "k": kload(it[1], it[2])
            else: more(1)
    adv(24 + QPOS)
    stamp(6)
    A("s_barrier")
    stamp(7)
    adv(W + QD)
    assert nv[0] >= W
    stamp(1)
    if prio == 3: A("s_setprio 2")
    A("s_barrier")
    stamp(2)
    for t in range(8):
        A(f"ds_read_b128 {vr(vQ+4*t,4)}, {vr(vQA)} offset:{64*t}")
    for tl in range(4):
        for t in range(8):
            A(f"ds_read_b128 {vr(vKF+4*t,4)}, {vr(vKA+(t&3))} offset:{tl*8192 + (t>>2)*256}")
        for t in range(8):
            A(f"s_waitcnt lgkmcnt({7-t})")
            c = "0" if t == 0 else vr(vS+4*tl, 4)
            A(f"v_mfma_f32_16x16x32_bf16 {vr(vS+4*tl,4)}, {vr(vKF+4*t,4)}, {vr(vQ+4*t,4)}, {c}")
        more(1)
    SC = math.log2(math.e) / 16.0
    A(f"s_mov_b32 s35, {f32(SC)}")
    mx = vT; cp = vT + 1; ls = vT + 2
    A(f"v_max3_f32 {vr(mx)}, {vr(vS)}, {vr(vS+1)}, {vr(vS+2)}")
    for i in range(3, 15, 2):
        A(f"v_max3_f32 {vr(mx)}, {vr(mx)}, {vr(vS+i)}, {vr(vS+i+1)}")
    A(f"v_max_f32 {vr(mx)}, {vr(mx)}, {vr(vS+15)}")
    def xg(x, op):
        for sw in ("v_permlane32_swap_b32", "v_permlane16_swap_b32"):
            A(f"v_mov_b32 {vr(cp)}, {vr(x)}")
            A(f"{sw} {vr(x)}, {vr(cp)}")
            A(f"{op} {vr(x)}, {vr(x)}, {vr(cp)}")
    xg(mx, "v_max_f32")
    A(f"v_mul_f32 {vr(mx)}, s35, {vr(mx)}")
    for i in range(16):
        A(f"v_fma_f32 {vr(vS+i)}, {vr(vS+i)}, s35, -{vr(mx)}")
    for i in range(16):
        A(f"v_exp_f32 {vr(vS+i)}, {vr(vS+i)}")
    A(f"v_add_f32 {vr(ls)}, {vr(vS)}, {vr(vS+1)}")
    for i in range(2, 16):
        A(f"v_add_f32 {vr(ls)}, {vr(ls)}, {vr(vS+i)}")
    xg(ls, "v_add_f32")
    A(f"ds_write2_b32 {vr(vSTw)}, {vr(mx)}, {vr(ls)} offset0:0 offset1:4")
    more(1)
    A("s_waitcnt lgkmcnt(0)")
    A("s_barrier")
    stamp(3)
    def stats(m4, l4, M, Lr):
        A(f"v_max3_f32 {vr(M)}, {vr(m4)}, {vr(m4+1)}, {vr(m4+2)}"); A(f"v_max_f32 {vr(M)}, {vr(M)}, {vr(m4+3)}")
        for i in range(4): A(f"v_sub_f32 {vr(m4+i)}, {vr(m4+i)}, {vr(M)}")
        for i in range(4): A(f"v_exp_f32 {vr(m4+i)}, {vr(m4+i)}")
        A(f"v_mul_f32 {vr(Lr)}, {vr(m4)}, {vr(l4)}")
        for i in range(1, 4): A(f"v_fmac_f32 {vr(Lr)}, {vr(m4+i)}, {vr(l4+i)}")
    A(f"ds_read_b128 {vr(vAcc,4)}, {vr(vSTr)}")
    A(f"ds_read_b128 {vr(vAcc+4,4)}, {vr(vSTr)} offset:16")
    more(1)
    A("s_waitcnt lgkmcnt(0)")
    stats(vAcc, vAcc + 4, vT + 3, vT + 4)
    A(f"v_sub_f32 {vr(mx)}, {vr(mx)}, {vr(vT+3)}")
    A(f"v_exp_f32 {vr(mx)}, {vr(mx)}")
    A(f"v_rcp_f32 {vr(vT+4)}, {vr(vT+4)}")
    A(f"v_mul_f32 {vr(mx)}, {vr(mx)}, {vr(vT+4)}")
    for i in range(16):
        A(f"v_mul_f32 {vr(vS+i)}, {vr(vS+i)}, {vr(mx)}")
        A(f"v_cvt_pk_bf16_f32 {vr(vS+i)}, {vr(vS+i)}, {vr(vS+i)}")
        for k in range(4):
            A(f"v_and_b32 {vr(vA+4*i+k)}, {vr(vS+i)}, {vr(vM+k)}")
        if i % 8 == 7: more(1)
    stamp(4)
    done = 0
    def pv(k):
        idx = vord[k]
        i, dh = idx >> 1, idx & 1
        c = "0" if i == 0 else vr(vAcc+4*dh, 4)
        A(f"v_mfma_f32_16x16x32_bf16 {vr(vAcc+4*dh,4)}, {vr(vA+4*i,4)}, {vr(vVv+4*idx,4)}, {c}")
    while nv[0] < 32:
        more(1)
        if NL and nv[0] == 32 - EP: A("s_barrier")
        lim = min(nv[0] - W, done + 4)
        while done < lim: pv(done); done += 1
    while done < 32:
        if 31 - done < W: A(f"s_waitcnt vmcnt({31-done})")
        pv(done); done += 1
        if done == 31: A(f"ds_write_b128 {vr(vOPa)}, {vr(vAcc,4)}")
    A(f"ds_write_b128 {vr(vOPa+1)}, {vr(vAcc+4,4)}")
    stamp(5)
    A("s_waitcnt lgkmcnt(0)")
    A("s_barrier")
    if wbs and "E" not in skip:
        A.c("one wave per group stays to write the spent hand-off lines back ahead of the end of the kernel")
        A("s_cmp_eq_u32 s30, 4"); A("s_cselect_b32 s33, s32, -1"); A(f"s_cmp_eq_u32 s33, {wbr}"); A("s_cbranch_scc0 L_send")
        nb = 4 if "b" in bx else 3
        for k in range(nb):
            if k == wbs - 1: A("buffer_wbl2 sc1")
            A("s_barrier")
        A("L_send:")
    dump_stamps(9)
    A("s_endpgm")

    vT = tT
    A("L_prepw:")
    A("s_waitcnt lgkmcnt(0)")
    if b0 == 1: A("s_barrier")
    if cpos == "early": prep_loads()
    if b0 == 2: A("s_barrier")
    A("s_mov_b64 s[52:53], s[10:11]"); A("s_mov_b32 s54, 0x380000"); A("s_mov_b32 s55, 0x20000")
    nq = [0]
    def wq_loads(n):
        if not n or "q" in skip: return
        A("s_cmp_eq_u32 s30, 0"); A(f"s_cbranch_scc0 L_nq{nq[0]}")
        lab = f"L_nq{nq[0]}:"
        for _ in range(n):
            A(f"s_mov_b32 m0, {L_WQ + 1024*nq[0]}")
            if qpace and nq[0] >= qpace: A(f"s_waitcnt vmcnt({qpace-1})")
            A(f"buffer_load_dwordx4 {vr(vQw)}, s[52:55], s50 offen {qpol} lds")
            A(f"s_add_u32 s50, s50, {qstep}")
            nq[0] += 1
        A(lab)
    wq_loads(wq1)
    if b0 == 3: A("s_barrier")
    wq_loads(14 - wq1)
    if b0:
        A("s_cmp_eq_u32 s46, 0"); A("s_cbranch_scc1 L_nolead")
        A("s_waitcnt vmcnt(5)")
        A("s_atomic_add s46, s[26:27], s63")
        A("L_nolead:")
    def wo_addr():
        A("s_bfe_u32 s34, s32, 0x10001"); A("s_lshl1_add_u32 s33, s31, s34"); A("s_lshl2_add_u32 s33, s33, s30"); A("s_lshl_b32 s33, s33, 6")
        A("s_mul_i32 s33, s33, 896"); A("s_lshr_b32 s34, s32, 2"); A("s_min_u32 s34, s34, 6"); A("s_lshl_b32 s34, s34, 7"); A("s_add_u32 s51, s33, s34")
        if "O" in hack: A("s_mul_i32 s33, s31, 14"); A("s_lshr_b32 s34, s32, 1"); A("s_add_u32 s33, s33, s34"); A("s_lshl2_add_u32 s33, s33, s30"); A("s_lshl_b32 s51, s33, 13")
        A(f"v_lshrrev_b32 {vr(vWa)}, 3, v0"); A(f"v_mul_u32_u24 {vr(vWa)}, 896, {vr(vWa)}")
        A(f"v_and_b32 {vr(vT+4)}, 16, v0"); A(f"v_lshlrev_b32 {vr(vT+4)}, 1, {vr(vT+4)}"); A(f"v_and_b32 {vr(vT+5)}, 0x70, v3"); A(f"v_xor_b32 {vr(vT+4)}, {vr(vT+4)}, {vr(vT+5)}")
        A(f"v_xor_b32 {vr(vT+5)}, 64, {vr(vT+4)}"); A(f"v_add_u32 {vr(vWa+1)}, {vr(vWa)}, {vr(vT+5)}"); A(f"v_add_u32 {vr(vWa)}, {vr(vWa)}, {vr(vT+4)}")
        A(f"v_lshrrev_b32 {vr(vT+4)}, 2, v1"); A(f"v_lshl_add_u32 {vr(vT+4)}, v2, 3, {vr(vT+4)}"); A(f"v_lshlrev_b32 {vr(vT+4)}, 7, {vr(vT+4)}")
        A(f"v_bfe_u32 {vr(vT+5)}, v0, 3, 2"); A(f"v_lshl_add_u32 {vr(vT+4)}, {vr(vT+5)}, 5, {vr(vT+4)}")
        A(f"v_and_b32 {vr(vT+5)}, 3, v0"); A(f"v_lshl_add_u32 {vr(vT+4)}, {vr(vT+5)}, 3, {vr(vT+4)}")
        A("s_lshl_b32 s61, s30, 13"); A(f"v_add_u32 {vr(vWr)}, s61, {vr(vT+4)}")
    def wo_loads(i0, i1, tag):
        if i0 >= i1: return
        A("s_cmp_ge_u32 s32, 28" if "o" not in skip else "s_cmp_ge_u32 s32, 0"); A(f"s_cbranch_scc1 L_nowo{tag}")
        for i in range(i0, i1):
            A(f"s_add_u32 m0, s61, {1024*i}"); A(f"s_add_u32 s33, s51, {8*896*i if 'O' not in hack else 1024*i}")
            A(f"buffer_load_dwordx4 {vr(vWa+(i&1)) if 'O' not in hack else 'v3'}, s[56:59], s33 offen {opol} lds")
        A(f"L_nowo{tag}:")
    def wo_frags(tts=(0, 1)):
        for nt in range(4):
            for tt in tts:
                for hh in range(2):
                    A(f"ds_read_b64_tr_b16 {vr(vW+16*tt+4*nt+2*hh,2)}, {vr(vWr if nt == 0 else vRaw+nt)} offset:{4096*tt + 512*hh}")
    A.c("tail constants")
    A("s_mov_b32 s49, 0")
    wo_addr()
    A(f"s_xor_b32 s34, s32, {qx}"); A("s_and_b32 s35, s34, 3"); A("s_lshr_b32 s34, s34, 2"); A("s_lshl3_add_u32 s34, s35, s34"); A("s_lshl_b32 s34, s34, 7")
    A("s_lshl_b32 s39, s31, 15"); A("s_add_u32 s34, s34, s39")
    A(f"v_and_b32 {vr(vQa)}, 7, v1"); A(f"v_lshlrev_b32 {vr(vQa)}, 12, {vr(vQa)}"); A(f"v_lshl_add_u32 {vr(vQa)}, v2, 4, {vr(vQa)}"); A(f"v_add_u32 {vr(vQa)}, s34, {vr(vQa)}")
    def publish_q():
        A("s_getreg_b32 s47, hwreg(HW_REG_XCC_ID, 0, 4)")
        A("s_mul_i32 s47, s47, 0x1111"); A("s_bitset1_b32 s47, 18")
        if force_slow: A("s_cmp_eq_u32 s32, 5"); A("s_cselect_b32 s47, 0, s47")
        A("s_waitcnt lgkmcnt(0)")
        A("s_cmp_eq_u32 s46, s47")
        A("s_cbranch_scc0 L_f1slow")
        A("L_same:")
        A.c("the slots were cleared in this XCD's L2: publish there")
        A("s_mov_b32 exec_lo, 0x00ff00ff"); A("s_mov_b32 exec_hi, 0x00ff00ff")
        for k in range(2): A(f"global_store_dwordx4 {vr(vQa)}, {vr(vQs+4*k,4)}, s[28:29] offset:{64*k}")
        A("s_mov_b64 exec, -1")
        stamp(3)
        A("L_nopub:")
        def ool():
            A("L_f1slow:")
            A(f"v_mov_b32 {vr(vT+20)}, s63")
            A("s_mov_b32 s35, 0")
            A("L_f1l:")
            A("s_cmp_ge_u32 s46, 0x40000")
            A("s_cbranch_scc1 L_f1d")
            A(f"global_load_dword {vr(vT+21)}, {vr(vT+20)}, s[26:27] sc1")
            A("s_add_u32 s35, s35, 1")
            A("s_waitcnt vmcnt(0)")
            A(f"v_readfirstlane_b32 s46, {vr(vT+21)}")
            A(f"s_cmp_lt_u32 s35, {SPIN}")
            A("s_cbranch_scc1 L_f1l")
            A("L_f1d:")
            A("s_cmp_eq_u32 s46, s47")
            A("s_cbranch_scc1 L_same")
            A.c("cleared on another XCD: tell the group, publish nothing here")
            A("s_add_u32 s46, s63, 32"); A("s_mov_b32 s47, 1")
            A("s_atomic_add s47, s[26:27], s46 glc")
            A("s_waitcnt lgkmcnt(0)")
            A("s_mov_b32 s49, 1")
            A("s_branch L_nopub")
        OOL.append(ool)
    A("s_mul_i32 s33, s31, 14336"); A("s_mul_i32 s34, s30, 224"); A("s_add_u32 s33, s33, s34"); A(f"s_add_u32 s33, s33, {W_B}")
    A(f"v_min_u32 {vr(vT+4)}, 13, v1")
    A(f"v_mul_u32_u24 {vr(vBa)}, 3584, v2"); A(f"v_lshl_add_u32 {vr(vBa)}, {vr(vT+4)}, 4, {vr(vBa)}"); A(f"v_add_u32 {vr(vBa)}, s33, {vr(vBa)}")
    A("s_mul_i32 s34, s30, 448"); A(f"s_add_u32 s34, s34, {L_H}")
    A(f"v_and_b32 {vr(vT+5)}, 1, v2"); A(f"v_lshlrev_b32 {vr(vHw)}, 5, v1"); A(f"v_lshl_add_u32 {vr(vHw)}, {vr(vT+5)}, 4, {vr(vHw)}"); A(f"v_add_u32 {vr(vHw)}, s34, {vr(vHw)}")
    A(f"v_mov_b32 {vr(vT+5)}, {L_H + 1792}"); A("v_cmp_gt_u32 s[42:43], 14, v1")
    A(f"v_cndmask_b32 {vr(vHw)}, {vr(vT+5)}, {vr(vHw)}, s[42:43]")
    A(f"v_lshrrev_b32 {vr(vT+6)}, 5, v0")
    A("s_lshl_b32 s34, s30, 3"); A(f"s_add_u32 s34, s34, {L_HS}")
    A(f"v_lshlrev_b32 {vr(vHsw)}, 2, {vr(vT+6)}"); A(f"v_add_u32 {vr(vHsw)}, s34, {vr(vHsw)}")
    A(f"v_cvt_f32_u32 {vr(vKs)}, {vr(vT+6)}"); A(f"v_sub_f32 {vr(vKs+1)}, 1.0, {vr(vKs)}")
    for i in range(2): A(f"v_mul_f32 {vr(vKs+i)}, {f32(1.0/448)}, {vr(vKs+i)}")
    delta(vDl, "0x3f80", vT + 8)
    A("s_mul_i32 s33, s32, 56"); A(f"s_add_u32 s33, s33, {L_H}")
    ii = vT + 8; hf = vT + 9; col = vT + 10
    A(f"v_bfe_u32 {vr(ii)}, v0, 3, 1"); A(f"v_and_b32 {vr(hf)}, 3, v0"); A(f"v_lshl_add_u32 {vr(ii)}, {vr(ii)}, 2, {vr(hf)}")
    A(f"v_bfe_u32 {vr(hf)}, v0, 2, 1")
    A(f"v_min_u32 {vr(col)}, 6, {vr(ii)}"); A(f"v_mad_u32_u24 {vr(col)}, {vr(hf)}, 7, {vr(col)}")
    A(f"v_lshlrev_b32 {vr(vHa)}, 2, {vr(col)}"); A(f"v_add_u32 {vr(vHa)}, s33, {vr(vHa)}")
    A(f"v_cmp_eq_u32 vcc, 7, {vr(ii)}"); A(f"v_cndmask_b32 {vr(vT+11)}, v2, 3, vcc")
    A(f"v_mov_b32 {vr(vT+12)}, 0x3f803f80")
    A(f"v_cmp_eq_u32 vcc, 2, {vr(vT+11)}"); A(f"v_cndmask_b32 {vr(vK1)}, 0, 1.0, vcc")
    A(f"v_cmp_eq_u32 vcc, 0, {vr(vT+11)}"); A(f"v_cndmask_b32 {vr(vK1+1)}, 0, 1.0, vcc")
    A(f"v_cndmask_b32 {vr(vK1+3)}, 0, {vr(vT+12)}, vcc")
    A(f"v_cmp_eq_u32 vcc, 1, {vr(vT+11)}"); A(f"v_cndmask_b32 {vr(vK1+2)}, 0, 1.0, vcc")
    A(f"v_cndmask_b32 {vr(vK1+4)}, 0, {vr(vT+12)}, vcc")
    A(f"v_min_u32 {vr(col)}, 6, v0"); A(f"v_lshlrev_b32 {vr(vHf)}, 3, {vr(col)}"); A(f"v_add_u32 {vr(vHf)}, s33, {vr(vHf)}")
    A("s_mul_i32 s33, s31, 896"); A("s_mul_i32 s34, s32, 28"); A("s_add_u32 s33, s33, s34")
    A(f"v_lshlrev_b32 {vr(vOut)}, 2, {vr(col)}"); A(f"v_add_u32 {vr(vOut)}, s33, {vr(vOut)}")
    A(f"v_bfe_u32 {vr(ii)}, v0, 2, 1"); A(f"v_bfe_u32 {vr(hf)}, v0, 3, 1"); A(f"v_lshl_add_u32 {vr(ii)}, {vr(ii)}, 1, {vr(hf)}")
    A(f"v_bfe_u32 {vr(hf)}, v0, 4, 1"); A(f"v_lshl_add_u32 {vr(ii)}, {vr(hf)}, 2, {vr(ii)}")
    A(f"v_mad_u32_u24 {vr(hf)}, {vr(vT+6)}, 7, {vr(ii)}")
    A(f"v_cmp_eq_u32 vcc, 7, {vr(ii)}"); A(f"v_cndmask_b32 {vr(hf)}, {vr(hf)}, 15, vcc")
    A("s_lshl_b32 s34, s30, 6"); A(f"s_add_u32 s34, s34, {L_Y}")
    A(f"v_lshlrev_b32 {vr(vYa)}, 2, {vr(hf)}"); A(f"v_add_u32 {vr(vYa)}, s34, {vr(vYa)}")
    A("s_lshl_b32 s33, s31, 8"); A(f"s_add_u32 s33, s33, {W_L}"); A("s_and_b32 s34, s32, 3"); A("s_lshl_b32 s34, s34, 6"); A("s_add_u32 s34, s34, s33")
    A(f"v_lshlrev_b32 {vr(vLa)}, 4, v2"); A(f"v_add_u32 {vr(vLa)}, s34, {vr(vLa)}")
    A("s_lshl2_add_u32 s34, s32, s33")
    A(f"v_lshlrev_b32 {vr(vLst)}, 7, v0"); A(f"v_add_u32 {vr(vLst)}, s34, {vr(vLst)}")
    A(f"s_add_u32 s33, s39, {W_O}")
    A("s_and_b32 s35, s32, 1"); A("s_bfe_u32 s36, s32, 0x10001")
    A("s_lshl1_add_u32 s34, s35, s36"); A("s_lshl2_add_u32 s34, s34, s30"); A("s_lshl_b32 s34, s34, 11"); A("s_add_u32 s34, s34, s33")
    A(f"v_add_u32 {vr(vOa)}, s34, v3")
    A("s_lshl2_add_u32 s60, s35, s30")
    A("s_lshl3_add_u32 s34, s60, s31"); A("s_lshl1_add_u32 s34, s34, s36"); A("s_mul_i32 s34, s34, 896")
    A("s_lshr_b32 s36, s32, 2"); A("s_min_u32 s36, s36, 6"); A("s_lshl_b32 s36, s36, 7")
    A("s_add_u32 s34, s34, s36"); A(f"s_add_u32 s34, s34, {W_B}")
    A(f"v_lshlrev_b32 {vr(vBst)}, 3, v1"); A(f"v_add_u32 {vr(vBst)}, s34, {vr(vBst)}")
    A("s_lshr_b32 s34, s32, 4"); A("s_lshl2_add_u32 s34, s34, s30"); A("s_lshl_b32 s34, s34, 12"); A("s_add_u32 s34, s34, s33")
    A("s_and_b32 s36, s32, 15"); A("s_lshl4_add_u32 s34, s36, s34")
    A(f"v_lshrrev_b32 {vr(vOst)}, 2, v0"); A(f"v_lshlrev_b32 {vr(vOst)}, 8, {vr(vOst)}"); A(f"v_and_b32 {vr(vT+4)}, 3, v0")
    A(f"v_lshl_add_u32 {vr(vOst)}, {vr(vT+4)}, 2, {vr(vOst)}"); A(f"v_add_u32 {vr(vOst)}, s34, {vr(vOst)}")
    A("s_lshl_b32 s34, s30, 8"); A(f"s_add_u32 s34, s34, {L_PP}")
    A(f"v_lshlrev_b32 {vr(vPPr)}, 4, v1"); A(f"v_add_u32 {vr(vPPr)}, s34, {vr(vPPr)}")
    A("s_lshl_b32 s34, s30, 9"); A(f"s_add_u32 s34, s34, {L_OP}")
    A(f"v_lshlrev_b32 {vr(vOPr)}, 3, v0"); A(f"v_add_u32 {vr(vOPr)}, s34, {vr(vOPr)}")
    A("s_lshl_b32 s34, s30, 10"); A(f"s_add_u32 s34, s34, {L_PP}")
    A(f"v_lshlrev_b32 {vr(vPPa)}, 2, v1"); A(f"v_lshl_add_u32 {vr(vPPa)}, v2, 8, {vr(vPPa)}"); A(f"v_add_u32 {vr(vPPa)}, s34, {vr(vPPa)}")
    for i in range(4): A(f"v_mov_b32 {vr(vG+i)}, 0")
    A(f"s_mov_b32 s37, {f32(1.0/64)}")
    A("s_mov_b32 s38, 0xffff0000")
    def qproj():
        A("s_cmp_eq_u32 s30, 0"); A("s_cbranch_scc0 L_nopub")
        A.c("T0: q projection, 64 columns x a quarter of the rows, all 8 batches; LayerNorm applied after the product")
        A("s_mov_b32 s34, 0x3f803f80")
        for i in range(56): A(f"v_mov_b32 {vr(vX+i)}, s34")
        A(f"v_and_b32 {vr(tT+1)}, 7, v1"); A(f"v_mul_u32_u24 {vr(tT+1)}, 896, {vr(tT+1)}"); A(f"v_add_u32 {vr(tT+1)}, {L_X}, {vr(tT+1)}")
        A(f"v_lshl_add_u32 {vr(tT)}, v2, 4, {vr(tT+1)}")
        A("s_mul_i32 s33, s48, 224"); A(f"v_lshl_add_u32 {vr(tT+1)}, v2, 3, {vr(tT+1)}"); A(f"v_add_u32 {vr(tT+1)}, s33, {vr(tT+1)}")
        A(f"v_lshrrev_b32 {vr(tT+2)}, 2, v0"); A(f"v_lshlrev_b32 {vr(tT+2)}, 7, {vr(tT+2)}"); A(f"v_and_or_b32 {vr(tT+2)}, v3, 48, {vr(tT+2)}")
        A(f"v_add_u32 {vr(tT+2)}, {L_WQ}, {vr(tT+2)}")
        A(f"v_bfe_u32 {vr(tT+3)}, v1, 2, 1"); A(f"v_lshl_add_u32 {vr(tT+3)}, {vr(tT+3)}, 4, v1"); A(f"v_lshlrev_b32 {vr(tT+3)}, 2, {vr(tT+3)}")
        A(f"v_lshlrev_b32 {vr(tT+4)}, 2, v1"); A(f"v_add_u32 {vr(tT+4)}, 128, {vr(tT+4)}")
        A(f"v_and_b32 {vr(tT+5)}, 3, v1")
        sm = ('', 's[6:7]', 's[8:9]', 's[14:15]')
        for i in range(1, 4): A(f"v_cmp_eq_u32 {sm[i]}, {i}, {vr(tT+5)}")
        D1 = vX + 16; D2 = tT + 8; wf = vW
        A("s_mov_b32 exec_lo, 0x00ff00ff"); A("s_mov_b32 exec_hi, 0x00ff00ff")
        A("s_waitcnt vmcnt(14)")
        for t in range(14): A(f"ds_read_b128 {vr(vX+4*t,4)}, {vr(tT)} offset:{64*t}")
        A("s_mov_b64 exec, -1")
        for t in range(14):
            A(f"s_waitcnt lgkmcnt({13-t})")
            c = "0" if t == 0 else vr(D2, 4)
            A(f"v_mfma_f32_16x16x32_bf16 {vr(D2,4)}, {vr(vX+4*t,4)}, {vr(vX+4*t,4)}, {c}")
        for i in range(1, 4): A(f"v_cndmask_b32 {vr(D2)}, {vr(D2)}, {vr(D2+i)}, {sm[i]}")
        A(f"ds_bpermute_b32 {vr(tT+6)}, {vr(tT+3)}, {vr(D2)}")
        A(f"ds_bpermute_b32 {vr(tT+7)}, {vr(tT+4)}, {vr(D2)}")
        A("s_mov_b32 exec_lo, 0x00ff00ff"); A("s_mov_b32 exec_hi, 0x00ff00ff")
        for t in range(7): A(f"ds_read_b64 {vr(vX+2*t,2)}, {vr(tT+1)} offset:{32*t}")
        A("s_mov_b64 exec, -1")
        A(f"s_mov_b32 s33, {f32(1.0/448)}")
        A("s_waitcnt lgkmcnt(0)")
        A(f"v_mul_f32 {vr(tT+7)}, s33, {vr(tT+7)}")
        A(f"v_mul_f32 {vr(tT+6)}, s33, {vr(tT+6)}")
        A(f"v_fma_f32 {vr(tT+6)}, -{vr(tT+7)}, {vr(tT+7)}, {vr(tT+6)}")
        A(f"v_max_f32 {vr(tT+6)}, 0, {vr(tT+6)}")
        A(f"v_add_f32 {vr(tT+6)}, {f32(1e-5)}, {vr(tT+6)}")
        A(f"v_rsq_f32 {vr(tT+6)}, {vr(tT+6)}")
        A("s_waitcnt vmcnt(0)")
        A("s_load_dword s46, s[26:27], s63")
        stamp(1)
        for np_ in range(2):
            for t in range(7):
                for e in range(2):
                    A(f"ds_read_b64_tr_b16 {vr(wf+4*t+2*e,2)}, {vr(tT+2)} offset:{2048*t + 64*np_ + 8*e}")
            for t in range(7):
                A(f"s_waitcnt lgkmcnt({12-2*t})")
                for e in range(2):
                    D = D1 + 8*np_ + 4*e
                    c = "0" if t == 0 else vr(D, 4)
                    A(f"v_mfma_f32_16x16x16_bf16 {vr(D,4)}, {vr(wf+4*t+2*e,2)}, {vr(vX+2*t,2)}, {c}")
        for i0 in (0, 8):
            for i in range(8):
                A(f"v_mul_f32_dpp {vr(D2+i)}, {vr(D1+i0+i)}, {vr(tT+7)} row_newbcast:8 row_mask:0xf bank_mask:0xf")
            for i in range(8):
                A(f"v_sub_f32 {vr(D2+i)}, {vr(D1+i0+i)}, {vr(D2+i)}")
                A(f"v_mul_f32 {vr(D2+i)}, {vr(D2+i)}, {vr(tT+6)}")
            for i in range(4):
                A(f"v_cvt_pk_bf16_f32 {vr(vQs+i0//2+i)}, {vr(D2+2*i)}, {vr(D2+2*i+1)}")
                A(f"v_min_u32 {vr(vQs+i0//2+i)}, -2, {vr(vQs+i0//2+i)}")
        publish_q()
    def conv():
        if c1_:
            for k in range(3):
                for i in range(4): A(f"v_mov_b32 {vr(raw+8*k+4+((i+3)&3))}, {vr(raw+8*k+i)}")
                for i in range(4): A(f"v_permlane32_swap_b32 {vr(raw+8*k+i)}, {vr(raw+8*k+4+((i+3)&3))}")
        for i in (2, 3): A(f"v_cndmask_b32 {vr(vXr+i)}, 0, {vr(vXr+i)}, s[42:43]")
        A(f"v_lshlrev_b32 {vr(vXr)}, 16, {vr(vXr+2)}"); A(f"v_and_b32 {vr(vXr+1)}, s38, {vr(vXr+2)}")
        A(f"v_lshlrev_b32 {vr(vXr+2)}, 16, {vr(vXr+3)}"); A(f"v_and_b32 {vr(vXr+3)}, s38, {vr(vXr+3)}")
        A(f"v_lshlrev_b32 {vr(vB2)}, 16, {vr(vB2)}")
    w, b, u, bb, c0, c1, c2, c3, ca, cc, hi = (vT + 1 + i for i in range(11))
    def tiles(t0, t1):
        if t0 >= t1: return
        A.c("gelu argument as a cubic in hn, and n = (w1*hn + b1)*w2, as split-bf16 MFMA operands")
        A(f"s_mov_b32 s33, {f32(BETA)}"); A(f"s_mov_b32 s34, {f32(3*BETA)}"); A(f"v_mov_b32 {vr(vT)}, {f32(ALPHA)}")
        A("v_cmp_lt_u32 vcc, 31, v0")
        for tile in range(t0, t1):
            for k, d in enumerate((w, b, u)):
                src = raw + 8*k + (tile >> 1)
                if tile & 1: A(f"v_and_b32 {vr(d)}, s38, {vr(src)}")
                else: A(f"v_lshlrev_b32 {vr(d)}, 16, {vr(src)}")
            A(f"v_mul_f32 {vr(bb)}, {vr(b)}, {vr(b)}")
            A(f"v_fma_f32 {vr(c0)}, {vr(bb)}, s33, {vr(vT)}"); A(f"v_mul_f32 {vr(c0)}, {vr(c0)}, {vr(b)}")
            A(f"v_fma_f32 {vr(c1)}, {vr(bb)}, s34, {vr(vT)}"); A(f"v_mul_f32 {vr(c1)}, {vr(c1)}, {vr(w)}")
            A(f"v_mul_f32 {vr(bb)}, {vr(w)}, {vr(w)}")
            A(f"v_mul_f32 {vr(c2)}, s34, {vr(bb)}"); A(f"v_mul_f32 {vr(c2)}, {vr(c2)}, {vr(b)}")
            A(f"v_mul_f32 {vr(c3)}, s33, {vr(bb)}"); A(f"v_mul_f32 {vr(c3)}, {vr(c3)}, {vr(w)}")
            A(f"v_mul_f32 {vr(ca)}, {vr(w)}, {vr(u)}"); A(f"v_mul_f32 {vr(cc)}, {vr(b)}, {vr(u)}")
            for k, cx in enumerate((c0, c1, c2, c3)): A(f"v_add_f32 {vr(vG+k)}, |{vr(cx)}|, {vr(vG+k)}")
            A(f"v_fma_f32 {vr(vG)}, |{vr(cc)}|, s37, {vr(vG)}"); A(f"v_fma_f32 {vr(vG+1)}, |{vr(ca)}|, s37, {vr(vG+1)}")
            for k, (lo_, hi_) in enumerate(((c1, c2), (c0, c2), (ca, c3), (cc, c3))):
                A(f"v_cndmask_b32 {vr(lo_)}, {vr(lo_)}, {vr(hi_)}, vcc")
                A(f"v_cvt_pk_bf16_f32 {vr(hi)}, {vr(lo_)}, {vr(lo_)}")
                A(f"v_and_b32 {vr(hi)}, s38, {vr(hi)}")
                A(f"v_sub_f32 {vr(lo_)}, {vr(lo_)}, {vr(hi)}")
                A(f"v_cvt_pk_bf16_f32 {vr(vC+4*tile+k)}, {vr(hi)}, {vr(lo_)}")
    def guard():
        A.c("largest |hn| for which the fused gelu path can neither overflow nor lose precision")
        A("s_mov_b32 s3, -1.0"); A(f"s_mov_b32 s34, {f32(100.0)}")
        for H in (3.0, 4.5, 6.0, 8.0, 12.0, 22.0):
            A(f"s_mov_b32 s33, {f32(H)}")
            A(f"v_fma_f32 {vr(vT+1)}, {vr(vG+3)}, s33, {vr(vG+2)}"); A(f"v_fma_f32 {vr(vT+1)}, {vr(vT+1)}, s33, {vr(vG+1)}")
            A(f"v_fma_f32 {vr(vT+1)}, {vr(vT+1)}, s33, {vr(vG)}")
            A(f"v_cmp_nge_f32 vcc, s34, {vr(vT+1)}")
            A("s_cmp_eq_u64 vcc, 0"); A("s_cselect_b32 s3, s33, s3")
        if force_fb: A("s_mov_b32 s3, -1.0")
    if cpos == "early":
        A("s_cmp_eq_u32 s30, 0"); A("s_cbranch_scc1 L_pw"); A("s_waitcnt vmcnt(0)"); A("L_pw:")
        A("s_waitcnt vmcnt(14)")
        conv(); tiles(0, QT); qproj(); tiles(QT, 14); guard()
    else:
        qproj()
    A("s_lshr_b32 s33, s32, 2"); A("s_lshl_b32 s33, s33, 12"); A("s_add_u32 s33, s33, s39")
    A(f"v_add_u32 {vr(vT)}, s33, v3"); A(f"v_add_u32 {vr(vT+1)}, {L_Q}, v3")
    A(f"v_and_b32 {vr(vT+20)}, 7, v0"); A(f"v_lshlrev_b32 {vr(vT+20)}, 2, {vr(vT+20)}"); A(f"v_mov_b32 {vr(vT+19)}, {L_STAT + 64}")
    stamp(4)
    if cpos == "pre1": prep_loads()
    A("s_barrier")
    if cpos == "mid": prep_loads()
    A("s_mov_b32 s35, 0")
    A("s_cmp_eq_u32 s30, 0")
    A("s_cbranch_scc0 L_b1b")
    A.c("T0: gather the four q partials, add, hand to the stream waves")
    qa = vX
    def qload():
        for k in range(4): A(f"global_load_dwordx4 {vr(qa+4*k,4)}, {vr(vT)}, s[28:29] offset:{1024*k} sc1")
        A("s_waitcnt vmcnt(0)")
    A("s_cmp_eq_u32 s49, 0"); A("s_cbranch_scc0 L_glob")
    A("L_qpoll:")
    qload()
    A(f"v_max3_u32 {vr(vT+2)}, {vr(qa)}, {vr(qa+1)}, {vr(qa+2)}")
    for i in range(3, 15, 2): A(f"v_max3_u32 {vr(vT+2)}, {vr(vT+2)}, {vr(qa+i)}, {vr(qa+i+1)}")
    A(f"v_max_u32 {vr(vT+2)}, {vr(vT+2)}, {vr(qa+15)}")
    A(f"v_cmp_eq_u32 vcc, -1, {vr(vT+2)}")
    A("s_cbranch_vccnz L_qretry")
    def ool_q():
        A("L_qretry:")
        A("s_add_u32 s35, s35, 1")
        A(f"s_cmp_ge_u32 s35, {SPIN}")
        A("s_cbranch_scc1 L_qdone")
        A("s_bitcmp1_b32 s35, 0"); A("s_cbranch_scc1 L_qpoll")
        A(f"v_mov_b32 {vr(vT+12)}, s63")
        A(f"global_load_dword {vr(vT+13)}, {vr(vT+12)}, s[26:27] offset:32 sc1")
        A("s_waitcnt vmcnt(0)")
        A(f"v_readfirstlane_b32 s46, {vr(vT+13)}")
        A("s_cmp_eq_u32 s46, 0")
        A("s_cbranch_scc1 L_qpoll")
        A("L_glob:")
        A.c("group spread over several XCDs: write-through hand-off in the second copy, ordered by a counter")
        A("s_mov_b32 s49, 1")
        for i in range(4): A(f"v_mov_b32 {vr(qa+i)}, -1")
        A("s_lshl_b32 s33, s32, 10"); A("s_add_u32 s33, s33, s39"); A(f"s_add_u32 s33, s33, {W_O + W_ALT}")
        A(f"v_add_u32 {vr(vT+12)}, s33, v3"); A(f"v_add_u32 {vr(vT+13)}, {W_ALT}, {vr(vLst)}"); A(f"v_add_u32 {vr(vT+14)}, {W_ALT}, {vr(vQa)}")
        A(f"v_add_u32 {vr(vT)}, {W_ALT}, {vr(vT)}"); A(f"v_mov_b32 {vr(vT+15)}, s63")
        A(f"global_store_dwordx4 {vr(vT+12)}, {vr(qa,4)}, s[28:29] sc1")
        A("s_mov_b64 exec, 3")
        A(f"global_store_dword {vr(vT+13)}, {vr(qa)}, s[28:29] sc1")
        A("s_mov_b32 exec_lo, 0x00ff00ff"); A("s_mov_b32 exec_hi, 0x00ff00ff")
        for k in range(2): A(f"global_store_dwordx4 {vr(vT+14)}, {vr(vQs+4*k,4)}, s[28:29] offset:{64*k} sc1")
        A("s_mov_b64 exec, -1")
        A("s_add_u32 s46, s63, 64"); A("s_mov_b32 s47, 1"); A("s_mov_b32 s35, 0")
        A("s_waitcnt vmcnt(0)")
        A("s_atomic_add s47, s[26:27], s46")
        A("L_gl:")
        A(f"global_load_dword {vr(vT+13)}, {vr(vT+15)}, s[26:27] offset:64 sc1")
        A("s_add_u32 s35, s35, 1")
        A("s_waitcnt vmcnt(0) lgkmcnt(0)")
        A(f"v_readfirstlane_b32 s46, {vr(vT+13)}")
        A(f"s_cmp_ge_u32 s35, {SPIN}"); A("s_cselect_b32 s46, 32, s46")
        A("s_cmp_lt_u32 s46, 32")
        A("s_cbranch_scc1 L_gl")
        qload()
        A("s_branch L_qdone")
    OOL.append(ool_q)
    A("L_qdone:")
    stamp(14)
    for k in range(4):
        for p in range(4):
            A(f"v_lshlrev_b32 {vr(vT+4+2*p)}, 16, {vr(qa+4*p+k)}"); A(f"v_and_b32 {vr(vT+5+2*p)}, s38, {vr(qa+4*p+k)}")
        A(f"v_pk_add_f32 {vr(vT+4,2)}, {vr(vT+4,2)}, {vr(vT+6,2)}"); A(f"v_pk_add_f32 {vr(vT+8,2)}, {vr(vT+8,2)}, {vr(vT+10,2)}")
        A(f"v_pk_add_f32 {vr(vT+4,2)}, {vr(vT+4,2)}, {vr(vT+8,2)}")
        A(f"v_cvt_pk_bf16_f32 {vr(qa+k)}, {vr(vT+4)}, {vr(vT+5)}")
    A(f"ds_write_b128 {vr(vT+1)}, {vr(qa,4)}")
    A(f"v_mov_b32 {vr(vT+2)}, s49")
    A(f"ds_write_b32 {vr(vT+19)}, {vr(vT+2)}")
    A("s_cmp_eq_u32 s32, 0"); A("s_cbranch_scc0 L_nof2")
    A.c("every member of this group has cleared its share of the out-projection slots")
    A("s_mov_b32 s33, 0x100000")
    A("s_waitcnt lgkmcnt(0)")
    A("s_barrier")
    A("s_atomic_add s33, s[26:27], s63")
    A("s_branch L_b1c")
    A("L_nof2:")
    A("s_waitcnt lgkmcnt(0)")
    A("L_b1b:")
    A("s_barrier")
    A("L_b1c:")
    A(f"ds_read_b32 {vr(vT+21)}, {vr(vT+19)}")
    if cpos != "early": A("s_waitcnt vmcnt(0) lgkmcnt(0)")
    if touch: A(f"global_load_dword {vr(vT+22)}, {vr(vOut)}, s[24:25]")
    if cpos != "early": conv(); tiles(0, N1)
    A(f"v_and_b32 {vr(vT)}, 1, v0"); A(f"v_lshlrev_b32 {vr(vT)}, 5, {vr(vT)}"); A(f"v_add_u32 {vr(vT)}, {L_STAT}, {vr(vT)}")
    A("s_barrier")
    A(f"ds_read_b128 {vr(vT+4,4)}, {vr(vT)}")
    A(f"ds_read_b128 {vr(vT+8,4)}, {vr(vT)} offset:16")
    A("s_waitcnt lgkmcnt(0)")
    stats(vT + 4, vT + 8, vT + 1, vT + 2)
    A(f"v_log_f32 {vr(vT+2)}, {vr(vT+2)}")
    A(f"v_add_f32 {vr(vLse)}, {vr(vT+1)}, {vr(vT+2)}")
    A(f"v_min_u32 {vr(vLse)}, -2, {vr(vLse)}")
    A(f"v_readfirstlane_b32 s62, {vr(vT+21)}")
    A("s_lshl_b32 s33, s62, 20")
    for r_ in (vLa, vLst, vOa, vOst): A(f"v_add_u32 {vr(r_)}, s33, {vr(r_)}")
    A("s_cmp_eq_u32 s30, 1"); A("s_cbranch_scc0 L_nolse")
    A("s_mov_b64 exec, 3")
    A("s_cmp_eq_u32 s62, 0"); A("s_cbranch_scc0 L_slowlse")
    A(f"global_store_dword {vr(vLst)}, {vr(vLse)}, s[28:29]")
    A("L_lsed:")
    A("s_mov_b64 exec, -1")
    A("L_nolse:")
    def ool_lse():
        A("L_slowlse:")
        A(f"global_store_dword {vr(vLst)}, {vr(vLse)}, s[28:29] sc1")
        A("s_branch L_lsed")
    OOL.append(ool_lse)
    if inst:
        A.c("bring this workgroup's share of the cleared hand-off lines into L2 ahead of the polls (values unused)")
        A("s_cmp_lt_u32 s30, 2"); A("s_cbranch_scc1 L_noinst")
        A("s_lshl_b32 s33, s32, 10"); A("s_add_u32 s33, s33, s39"); A(f"s_add_u32 s33, s33, {W_O}")
        A("s_mul_i32 s34, s31, 14336"); A("s_min_u32 s35, s32, 27"); A("s_lshl_b32 s35, s35, 9"); A("s_add_u32 s34, s34, s35"); A(f"s_add_u32 s34, s34, {W_B}")
        A("s_cmp_eq_u32 s30, 2")
        if inst == 1: A("s_cbranch_scc0 L_noinst")
        if inst == 2: A("s_cbranch_scc1 L_noinst")
        A("s_cselect_b32 s33, s34, s33")
        A(f"v_add_u32 {vr(vT+12)}, s33, v3")
        A("s_cselect_b32 exec_hi, 0, -1")
        A(f"global_load_dwordx4 {vr(vT+16,4)}, {vr(vT+12)}, s[28:29] sc1")
        A("s_mov_b64 exec, -1")
        A("L_noinst:")
    A("s_mov_b64 s[56:57], s[12:13]"); A("s_mov_b32 s58, 0x380000"); A("s_mov_b32 s59, 0x20000")
    wo_loads(0, NE, "a")
    if cpos != "early": tiles(N1, 14); guard()
    A("s_cmp_lt_u32 s32, 28"); A("s_cselect_b32 s44, 0xffff, 0")
    A("s_cmp_eq_u32 s60, s31"); A("s_cselect_b32 s45, s44, 0"); A("s_cmp_eq_u32 s62, 0"); A("s_cselect_b32 s45, s45, 0")
    if "s" in bx: A("s_mov_b32 s45, 0")
    A("s_andn2_b32 s44, s44, s45")
    bl = vX + 16
    for i in range(16): A(f"v_mov_b32 {vr(bl+i)}, 0")
    for nt in range(1, 4): A(f"v_xor_b32 {vr(vRaw+nt)}, {32*nt}, {vr(vWr)}")
    ls4 = vT + 4; ck = vT + 1
    def lse_load():
        A(f"global_load_dwordx4 {vr(ls4,4)}, {vr(vLa)}, s[28:29] sc1")
        A(f"global_load_dword {vr(vT+21)}, {vr(vT+20)}, s[26:27] sc1")
    A(f"s_mov_b32 s36, {f32(1.0 + 1e-5)}")
    A("s_brev_b32 s40, 1"); A("s_brev_b32 s41, 1")
    def weights():
        A(f"v_lshrrev_b32 {vr(ck)}, 20, {vr(vT+21)}"); A(f"v_add_u32 {vr(ck)}, -1, {vr(ck)}")
        A(f"v_max3_u32 {vr(ck)}, {vr(ck)}, {vr(ls4)}, {vr(ls4+1)}"); A(f"v_max3_u32 {vr(ck)}, {vr(ck)}, {vr(ls4+2)}, {vr(ls4+3)}")
        A(f"v_cmp_eq_u32 vcc, -1, {vr(ck)}")
        A(f"v_max3_f32 {vr(vT+2)}, {vr(ls4)}, {vr(ls4+1)}, {vr(ls4+2)}"); A(f"v_max_f32 {vr(vT+2)}, {vr(vT+2)}, {vr(ls4+3)}")
        for i in range(4): A(f"v_sub_f32 {vr(ls4+i)}, {vr(ls4+i)}, {vr(vT+2)}")
        for i in range(4): A(f"v_exp_f32 {vr(ls4+i)}, {vr(ls4+i)}")
        A(f"v_add_f32 {vr(vT+2)}, {vr(ls4)}, {vr(ls4+1)}"); A(f"v_add_f32 {vr(vT+3)}, {vr(ls4+2)}, {vr(ls4+3)}")
        A(f"v_add_f32 {vr(vT+2)}, {vr(vT+2)}, {vr(vT+3)}"); A(f"v_rcp_f32 {vr(vT+2)}, {vr(vT+2)}")
        for i in range(4): A(f"v_mul_f32 {vr(ls4+i)}, {vr(ls4+i)}, {vr(vT+2)}")
    A.c("split-combine weights; vcc != 0: some lse had not arrived yet, redo after publishing")
    if tal >= 0:
        A("s_branch L_tail"); A(".p2align 12")
        if tal: A(f".fill {tal // 4}, 4, 0xbf810000")
        A("L_tail:")
    stamp(2)
    A("s_barrier")
    lse_load()
    if not lw: A("s_cmp_ge_u32 s32, 28"); A("s_cbranch_scc0 L_wob"); A("s_waitcnt vmcnt(0)"); A("L_wob:")
    wo_loads(NE, 8 - NB, "b")
    A(f"s_mov_b32 s35, {-SPIN & 0xffffffff}")
    A("s_cmp_eq_u32 s62, 0")
    A("L_b3:")
    A("s_barrier")
    stamp(5)
    if "E" in skip: A("s_branch L_fin")
    A.c("reduce the four stream waves' o partials, publish as bf16")
    o = vX; ls4 = vT + 4; oa = vX + 32; Dc = vX + 40; ck = vT + 1
    for w_ in range(4): A(f"ds_read_b64 {vr(o+2*w_,2)}, {vr(vOPr)} offset:{2048*w_}")
    for w_ in range(1, 4):
        A(f"s_waitcnt lgkmcnt({3-w_})")
        A(f"v_pk_add_f32 {vr(o,2)}, {vr(o,2)}, {vr(o+2*w_,2)}")
    A(f"v_cvt_pk_bf16_f32 {vr(o)}, {vr(o)}, {vr(o+1)}")
    A(f"v_min_u32 {vr(o)}, -2, {vr(o)}")
    A("s_cbranch_scc0 L_slowpub")
    A(f"global_store_dword {vr(vOst)}, {vr(o)}, s[28:29]")
    A("L_pubd:")
    def ool_pub():
        A("L_slowpub:")
        A(f"global_store_dword {vr(vOst)}, {vr(o)}, s[28:29] sc1")
        A("s_branch L_pubd")
    OOL.append(ool_pub)
    stamp(6)
    A.c("out projection")
    def aset():
        for tt in range(2):
            A(f"global_load_dwordx4 {vr(oa+4*tt,4)}, {vr(vOa)}, s[28:29] offset:{1024*tt} sc1")
    if ap:
        wo_loads(8 - NB, 8, "c")
        seqv = [f"w{i}" for i in range(NE, 8 - NB)] + ["st"] + [f"w{i}" for i in range(8 - NB, 8)]
        def upto(i):
            live = [k for k, x in enumerate(seqv) if x[0] == "w" and int(x[1:]) <= i]
            if live: A(f"s_waitcnt vmcnt({len(seqv) - 1 - max(live)})")
        if lw: A("s_cmp_ge_u32 s32, 28"); A("s_cbranch_scc0 L_wob"); A("s_waitcnt vmcnt(0)"); A("L_wob:")
        A(f"s_waitcnt vmcnt({len(seqv)})")
        weights()
        upto(3)
        if ap == 1: aset(); seqv += ["a", "a"]
        wo_frags((0,))
        if ap >= 2: upto(3 + ap); aset(); seqv += ["a", "a"]
        upto(7); wo_frags((1,))
    else:
        aset()
        A(f"s_waitcnt vmcnt({3 + 8 - NE})")
        weights()
        if o1:
            A("s_waitcnt vmcnt(7)"); wo_frags((0,)); A("s_waitcnt vmcnt(3)"); wo_frags((1,))
        else:
            A("s_waitcnt vmcnt(3)"); wo_frags()
    A("s_cbranch_vccnz L_lretry")
    def ool_l():
        A("L_lretry:")
        lse_load()
        A("s_add_u32 s35, s35, 1")
        A("s_waitcnt vmcnt(0)")
        weights()
        A("s_cbranch_scc1 L_lok")
        A("s_cbranch_vccnz L_lretry")
        A("L_lok:")
        A(f"s_mov_b32 s35, {-SPIN & 0xffffffff}")
        A("s_branch L_apoll0")
    OOL.insert(0, ool_l)
    A("L_apoll0:")
    def achk():
        A(f"v_max3_u32 {vr(ck)}, {vr(oa)}, {vr(oa+1)}, {vr(oa+2)}"); A(f"v_max3_u32 {vr(ck)}, {vr(ck)}, {vr(oa+3)}, {vr(oa+4)}")
        A(f"v_max3_u32 {vr(ck)}, {vr(ck)}, {vr(oa+5)}, {vr(oa+6)}"); A(f"v_max_u32 {vr(ck)}, {vr(ck)}, {vr(oa+7)}")
    if True:
        A("s_waitcnt vmcnt(0)")
        achk()
        A(f"v_cmpx_eq_u32 vcc, -1, {vr(ck)}")
        A("s_cbranch_execz L_adone")
        for _ in range(DA - 1):
            aset()
            for _ in range(GA): A("s_nop 7")
    A("L_apoll:")
    aset()
    A("s_add_u32 s35, s35, 1"); A("s_cselect_b32 s47, -1, -2")
    A(f"s_waitcnt vmcnt({2*(DA-1)})")
    achk()
    A(f"v_cmpx_lt_u32 vcc, s47, {vr(ck)}")
    A("s_cbranch_execnz L_apoll")
    A("L_adone:")
    A("s_mov_b64 exec, -1")
    A("s_waitcnt lgkmcnt(6)" if o1 else "s_waitcnt lgkmcnt(0)")
    A(f"s_mov_b32 s35, {-SPIN & 0xffffffff}")
    stamp(7)
    pp = vT + 16
    def wsum(c):
        return [f"v_mul_f32 {vr(pp+c)}, {vr(Dc+4*c)}, {vr(ls4)}"] + [f"v_fmac_f32 {vr(pp+c)}, {vr(Dc+4*c+i)}, {vr(ls4+i)}" for i in range(1, 4)]
    ws = sum((wsum(c) for c in range(4)), [])
    for k in range(8):
        c, tt = k >> 1, k & 1
        cc_ = "0" if tt == 0 else vr(Dc+4*c, 4)
        A(f"v_mfma_f32_16x16x32_bf16 {vr(Dc+4*c,4)}, {vr(oa+4*tt,4)}, {vr(vW+16*tt+4*c,4)}, {cc_}")
        if o1 and k in (2, 4, 6): A(f"s_waitcnt lgkmcnt({6 - k})")
        if 1 <= k <= 3: A(f"s_nop {0 if (o1 and k == 2) else 1}")
        if k >= 4: A(ws.pop(0)); A(ws.pop(0))
    A(f"ds_write2_b32 {vr(vPPa)}, {vr(pp)}, {vr(pp+1)} offset0:0 offset1:16")
    for x in ws: A(x)
    A(f"ds_write2_b32 {vr(vPPa)}, {vr(pp+2)}, {vr(pp+3)} offset0:32 offset1:48")
    A("s_mov_b64 exec, 0xffff")
    A("s_waitcnt lgkmcnt(0)")
    stamp(8)
    A("s_barrier")
    pr = vX
    for w_ in range(4): A(f"ds_read_b128 {vr(pr+4*w_,4)}, {vr(vPPr)} offset:{1024*w_}")
    for w_ in range(1, 4):
        A(f"s_waitcnt lgkmcnt({3-w_})")
        for k in (0, 2): A(f"v_pk_add_f32 {vr(pr+k,2)}, {vr(pr+k,2)}, {vr(pr+4*w_+k,2)}")
    A(f"v_cvt_pk_bf16_f32 {vr(pr)}, {vr(pr)}, {vr(pr+1)}"); A(f"v_cvt_pk_bf16_f32 {vr(pr+1)}, {vr(pr+2)}, {vr(pr+3)}")
    A(f"v_min_u32 {vr(pr)}, -2, {vr(pr)}"); A(f"v_min_u32 {vr(pr+1)}, -2, {vr(pr+1)}")
    A("s_mov_b32 exec_lo, s44")
    A(f"global_store_dwordx2 {vr(vBst)}, {vr(pr,2)}, s[28:29] sc1")
    A("s_mov_b32 exec_lo, s45")
    A(f"global_store_dwordx2 {vr(vBst)}, {vr(pr,2)}, s[28:29]")
    A("s_mov_b64 exec, s[42:43]")
    stamp(9)
    if "a" in bx: A("s_waitcnt vmcnt(0)")
    if "b" in bx: A("s_barrier")
    if PB0: A(f"s_sleep {PB0}")
    def bset():
        for i in range(4):
            A(f"global_load_dwordx4 {vr(bl+4*i,4)}, {vr(vBa)}, s[28:29] offset:{896*i} sc1")
    def bchk():
        A(f"v_max3_u32 {vr(ck)}, {vr(bl)}, {vr(bl+1)}, {vr(bl+2)}")
        for i in range(3, 15, 2): A(f"v_max3_u32 {vr(ck)}, {vr(ck)}, {vr(bl+i)}, {vr(bl+i+1)}")
        A(f"v_max_u32 {vr(ck)}, {vr(ck)}, {vr(bl+15)}")
    if DB > 1:
        bset()
        A("s_waitcnt vmcnt(0)")
        bchk()
        A(f"v_cmpx_eq_u32 vcc, -1, {vr(ck)}")
        A("s_cbranch_execz L_bdone")
        for _ in range(DB - 1):
            bset()
            for _ in range(GB): A("s_nop 7")
    if o2:
        hh_ = vT + 12; s1 = vT + 8
        A("L_bpoll:")
        bset()
        A("s_add_u32 s35, s35, 1"); A("s_cselect_b32 s47, -1, -2")
        A("s_mov_b64 exec, -1")
        A.c("h = x + sum of the 16 partials (matrix core does the unpack and the adds); discarded while a partial is missing")
        for i in range(4):
            A(f"s_waitcnt vmcnt({3-i})")
            A(f"v_mfma_f32_16x16x32_bf16 {vr(hh_,4)}, {vr(vDl,4)}, {vr(bl+4*i,4)}, {vr(vXr if i == 0 else hh_,4)}")
            if i == 0:
                A(f"v_max3_u32 {vr(ck)}, {vr(bl)}, {vr(bl+1)}, {vr(bl+2)}"); A(f"v_max_u32 {vr(ck)}, {vr(ck)}, {vr(bl+3)}")
            else:
                A(f"v_max3_u32 {vr(ck)}, {vr(ck)}, {vr(bl+4*i)}, {vr(bl+4*i+1)}"); A(f"v_max3_u32 {vr(ck)}, {vr(ck)}, {vr(bl+4*i+2)}, {vr(bl+4*i+3)}")
        A(f"v_cmpx_lt_u32 vcc, s47, {vr(ck)}")
        A("s_cbranch_execnz L_bpoll")
        A("s_mov_b64 exec, -1")
        stamp(10)
        A(f"v_mov_b32 {vr(vT)}, {L_HS}")
    else:
        A("L_bpoll:")
        if PB: A(f"s_sleep {PB}")
        bset()
        A("s_add_u32 s35, s35, 1")
        A(f"s_waitcnt vmcnt({4*(DB-1)})")
        bchk()
        A("s_cbranch_scc1 L_bdone")
        A(f"v_cmpx_eq_u32 vcc, -1, {vr(ck)}")
        A("s_cbranch_execnz L_bpoll")
        A("L_bdone:")
        A("s_mov_b64 exec, -1")
        stamp(10)
        A.c("h = x + sum of the 16 partials (matrix core does the unpack and the adds)")
        hh_ = vXr; s1 = vT + 8
        A(f"v_mov_b32 {vr(vT)}, {L_HS}")
        for i in range(4): A(f"v_mfma_f32_16x16x32_bf16 {vr(hh_,4)}, {vr(vDl,4)}, {vr(bl+4*i,4)}, {vr(hh_,4)}")
    for k in (0, 2): A(f"v_pk_fma_f32 {vr(vT+4+k,2)}, {vr(hh_+k,2)}, {vr(vKs,2)}, {vr(vKs,2)} op_sel:[0,0,1] op_sel_hi:[1,0,1]")
    A(f"ds_write_b128 {vr(vHw)}, {vr(hh_,4)}")
    A(f"v_pk_mul_f32 {vr(s1,2)}, {vr(hh_,2)}, {vr(vT+4,2)}")
    A(f"v_pk_fma_f32 {vr(s1,2)}, {vr(hh_+2,2)}, {vr(vT+6,2)}, {vr(s1,2)}")
    A(f"v_add_f32 {vr(s1)}, {vr(s1)}, {vr(s1+1)}")
    for sh in (8, 4, 2, 1):
        A(f"v_add_f32_dpp {vr(s1)}, {vr(s1)}, {vr(s1)} row_ror:{sh} row_mask:0xf bank_mask:0xf")
    A(f"v_add_f32_dpp {vr(s1)}, {vr(s1)}, {vr(s1)} row_bcast:15 row_mask:0xa bank_mask:0xf")
    A("s_mov_b64 exec, s[40:41]")
    A(f"ds_write_b32 {vr(vHsw)}, {vr(s1)}")
    A("s_mov_b64 exec, -1")
    A("s_waitcnt lgkmcnt(0)")
    A("s_barrier")
    A.c("LayerNorm(LayerNorm(h)) = (h - mu) * rsqrt(var*(1+eps) + eps^2), then the token MLP")
    h8 = vT + 4; hv = vT + 1
    A(f"ds_read_b128 {vr(h8,4)}, {vr(vT)}")
    A(f"ds_read_b128 {vr(h8+4,4)}, {vr(vT)} offset:16")
    A(f"ds_read_b32 {vr(hv)}, {vr(vHa)}")
    A(f"ds_read_b64 {vr(vHf,2)}, {vr(vHf)}")
    mu = vT + 2; rs = vT + 3
    A(f"v_mov_b32 {vr(vT+12)}, {f32(1e-10)}")
    A("s_waitcnt lgkmcnt(2)")
    A(f"v_pk_add_f32 {vr(h8,2)}, {vr(h8,2)}, {vr(h8+2,2)}")
    A(f"v_pk_add_f32 {vr(h8+4,2)}, {vr(h8+4,2)}, {vr(h8+6,2)}")
    A(f"v_pk_add_f32 {vr(mu,2)}, {vr(h8,2)}, {vr(h8+4,2)}")
    A(f"v_fma_f32 {vr(rs)}, -{vr(mu)}, {vr(mu)}, {vr(rs)}")
    A(f"v_fma_f32 {vr(rs)}, |{vr(rs)}|, s36, {vr(vT+12)}")
    A(f"v_rsq_f32 {vr(rs)}, {vr(rs)}")
    A("s_waitcnt lgkmcnt(1) vmcnt(0)")
    A(f"v_sub_f32 {vr(hv)}, {vr(hv)}, {vr(mu)}")
    A(f"v_mul_f32 {vr(hv)}, {vr(hv)}, {vr(rs)}")
    A(f"v_cvt_pk_bf16_f32 {vr(hv)}, {vr(hv)}, {vr(hv)}")
    A(f"v_and_b32 {vr(hv)}, s38, {vr(hv)}")
    X_ = vT + 4; Y = vT + 5; t1 = vT + 6; t2 = vT + 7; Am = vT + 8
    A(f"v_fma_f32 {vr(X_)}, {vr(hv)}, {vr(vK1)}, {vr(vK1+1)}"); A(f"v_mul_f32 {vr(X_)}, {vr(X_)}, {vr(hv)}")
    A(f"v_fma_f32 {vr(Y)}, {vr(X_)}, {vr(vK1)}, {vr(vK1+2)}")
    A(f"v_cvt_pk_bf16_f32 {vr(Am)}, {vr(X_)}, {vr(X_)}")
    A(f"v_mul_f32 {vr(Y)}, {vr(Y)}, {vr(hv)}")
    A(f"v_and_b32 {vr(t1)}, s38, {vr(Am)}")
    A(f"v_cvt_pk_bf16_f32 {vr(Am+2)}, {vr(Y)}, {vr(Y)}")
    A(f"v_sub_f32 {vr(X_)}, {vr(X_)}, {vr(t1)}")
    A(f"v_and_b32 {vr(t2)}, s38, {vr(Am+2)}")
    A(f"v_cvt_pk_bf16_f32 {vr(Am+1)}, {vr(X_)}, {vr(X_)}")
    A(f"v_sub_f32 {vr(Y)}, {vr(Y)}, {vr(t2)}")
    A(f"v_or_b32 {vr(Am+1)}, {vr(Am+1)}, {vr(vK1+3)}")
    A(f"v_cvt_pk_bf16_f32 {vr(Am+3)}, {vr(Y)}, {vr(Y)}")
    A(f"v_or_b32 {vr(Am+3)}, {vr(Am+3)}, {vr(vK1+4)}")
    A(f"v_cmp_nge_f32 vcc, s3, |{vr(hv)}|")
    stamp(11)
    Db = [vX, vX + 16, vX + 32]; acc = vT + 12; Dd = vRaw; Nn = vRaw + 8
    def mm(tile):
        A(f"v_mfma_f32_32x32x16_bf16 {vr(Db[tile%3],16)}, {vr(Am,4)}, {vr(vC+4*tile,4)}, 0")
    mm(0)
    A("s_waitcnt lgkmcnt(0)")
    A(f"v_add_f32 {vr(vHf)}, {vr(vHf)}, {vr(vB2)}"); A(f"v_add_f32 {vr(vHf+1)}, {vr(vHf+1)}, {vr(vB2)}")
    A(f"v_lshlrev_b32 {vr(vT)}, 3, v1"); A(f"v_add_u32 {vr(vT)}, {L_Y}, {vr(vT)}")
    if wb:
        A("s_cmp_eq_u32 s30, 0"); A("s_cselect_b32 s33, s32, 0"); A(f"s_cmp_ge_u32 s33, {32 - wb}"); A("s_cbranch_scc0 L_nowb"); A("buffer_wbl2 sc1"); A("L_nowb:")
    A("s_cbranch_vccnz L_fb")
    A.c("sum_f n_f / (1 + e_f) kept as one fraction N / D")
    if o3:
        def chain(k, D, Np, first):
            if first: return [f"v_pk_add_f32 {vr(Dd+k,2)}, {vr(D+k,2)}, 1.0 op_sel_hi:[1,0]"]
            return [f"v_pk_fma_f32 {vr(D+8+k,2)}, {vr(D+8+k,2)}, {vr(Dd+k,2)}, {vr(Np+k,2)}",
                    f"v_pk_fma_f32 {vr(Dd+k,2)}, {vr(Dd+k,2)}, {vr(D+k,2)}, {vr(Dd+k,2)}",
                    f"v_pk_fma_f32 {vr(Nn+k,2)}, {vr(Np+k,2)}, {vr(D+k,2)}, {vr(D+8+k,2)}"]
        for tile in range(14):
            D = Db[tile % 3]; P = Db[(tile - 1) % 3]
            if tile + 1 < 14: mm(tile + 1)
            odd = tile & 1
            if odd:
                if tile == 1: A(f"v_mov_b32 {vr(Nn+6)}, {vr(P+14)}"); A(f"v_mov_b32 {vr(Nn+7)}, {vr(D+14)}")
                else: A(f"v_mov_b32 {vr(P+15)}, {vr(D+14)}")
            for i in range(6): A(f"v_exp_f32 {vr(D+i)}, {vr(D+i)}")
            A(f"v_exp_f32 {vr(P+7 if odd else D+6)}, {vr(D+6)}")
            ch = [chain(k, D, Db[0] + 8 if tile == 1 else Nn, tile == 0) for k in (0, 2, 4)]
            if odd: ch.append(chain(6, P, Nn, tile == 1))
            for st in range(3):
                for c_ in ch:
                    if len(c_) == 3: A(c_[st])
                    elif st == (0 if tile == 0 else 1): A(c_[0])
        for i in (6, 7, 0, 1, 2, 3, 4, 5): A(f"v_rcp_f32 {vr(Dd+i)}, {vr(Dd+i)}")
        A(f"v_mul_f32 {vr(acc+6)}, {vr(Nn+6)}, {vr(Dd+6)}"); A(f"v_fmac_f32 {vr(acc+6)}, {vr(Nn+7)}, {vr(Dd+7)}")
        for k in (0, 2, 4): A(f"v_pk_mul_f32 {vr(acc+k,2)}, {vr(Nn+k,2)}, {vr(Dd+k,2)}")
    else:
        for tile in range(14):
            D = Db[tile % 3]
            if tile + 1 < 14: mm(tile + 1)
            for i in range(7): A(f"v_exp_f32 {vr(D+i)}, {vr(D+i)}")
            if tile == 0:
                for k in range(0, 8, 2): A(f"v_pk_add_f32 {vr(Dd+k,2)}, {vr(D+k,2)}, 1.0 op_sel_hi:[1,0]")
                continue
            Np = Db[0] + 8 if tile == 1 else Nn
            for k in range(0, 8, 2): A(f"v_pk_fma_f32 {vr(D+8+k,2)}, {vr(D+8+k,2)}, {vr(Dd+k,2)}, {vr(Np+k,2)}")
            for k in range(0, 8, 2): A(f"v_pk_fma_f32 {vr(Dd+k,2)}, {vr(Dd+k,2)}, {vr(D+k,2)}, {vr(Dd+k,2)}")
            for k in range(0, 8, 2): A(f"v_pk_fma_f32 {vr(Nn+k,2)}, {vr(Np+k,2)}, {vr(D+k,2)}, {vr(D+8+k,2)}")
        for i in range(7): A(f"v_rcp_f32 {vr(Dd+i)}, {vr(Dd+i)}")
        for k in range(0, 8, 2): A(f"v_pk_mul_f32 {vr(acc+k,2)}, {vr(Nn+k,2)}, {vr(Dd+k,2)}")
    A("L_fbd:")
    A("s_cmp_eq_u32 s30, 1")
    def ool_fb():
        A("L_fb:")
        A.c("direct evaluation (large activations or weights)")
        hh = vRaw; fa = vRaw + 8; w_ = vRaw + 9; b_ = vRaw + 10; u_ = vRaw + 11; x_ = vRaw + 12; p_ = vRaw + 13; al = vRaw + 14
        A(f"v_lshrrev_b32 {vr(fa)}, 5, v0"); A(f"v_mul_u32_u24 {vr(fa)}, 28, {vr(fa)}")
        A("s_mul_i32 s33, s32, 56"); A(f"s_add_u32 s33, s33, {L_H}"); A(f"v_add_u32 {vr(fa)}, s33, {vr(fa)}")
        for i in range(7): A(f"ds_read_b32 {vr(hh+i)}, {vr(fa)} offset:{4*i}")
        A(f"v_and_b32 {vr(fa)}, 31, v0"); A(f"v_lshlrev_b32 {vr(fa)}, 1, {vr(fa)}")
        A("s_mul_i32 s33, s30, 896"); A(f"v_add_u32 {vr(fa)}, s33, {vr(fa)}")
        A(f"s_mov_b32 s33, {f32(BETA)}"); A(f"v_mov_b32 {vr(al)}, {f32(ALPHA)}")
        for i in range(8): A(f"v_mov_b32 {vr(acc+i)}, 0")
        A("s_waitcnt lgkmcnt(0)")
        for i in range(7):
            A(f"v_sub_f32 {vr(hh+i)}, {vr(hh+i)}, {vr(mu)}"); A(f"v_mul_f32 {vr(hh+i)}, {vr(hh+i)}, {vr(rs)}")
            A(f"v_cvt_pk_bf16_f32 {vr(hh+i)}, {vr(hh+i)}, {vr(hh+i)}"); A(f"v_and_b32 {vr(hh+i)}, s38, {vr(hh+i)}")
        A("s_mov_b32 s34, 0")
        A("L_fbl:")
        A(f"global_load_ushort {vr(w_)}, {vr(fa)}, s[16:17]"); A(f"global_load_ushort {vr(b_)}, {vr(fa)}, s[18:19]"); A(f"global_load_ushort {vr(u_)}, {vr(fa)}, s[20:21]")
        A(f"v_add_u32 {vr(fa)}, 64, {vr(fa)}")
        A("s_waitcnt vmcnt(0)")
        for r_ in (w_, b_, u_): A(f"v_lshlrev_b32 {vr(r_)}, 16, {vr(r_)}")
        for i in range(7):
            A(f"v_fma_f32 {vr(x_)}, {vr(w_)}, {vr(hh+i)}, {vr(b_)}")
            A(f"v_mul_f32 {vr(p_)}, {vr(x_)}, {vr(x_)}"); A(f"v_fma_f32 {vr(p_)}, {vr(p_)}, s33, {vr(al)}"); A(f"v_mul_f32 {vr(p_)}, {vr(p_)}, {vr(x_)}")
            A(f"v_exp_f32 {vr(p_)}, {vr(p_)}"); A(f"v_add_f32 {vr(p_)}, 1.0, {vr(p_)}"); A(f"v_rcp_f32 {vr(p_)}, {vr(p_)}")
            A(f"v_mul_f32 {vr(x_)}, {vr(x_)}, {vr(p_)}"); A(f"v_fmac_f32 {vr(acc+i)}, {vr(x_)}, {vr(u_)}")
        A("s_add_u32 s34, s34, 1"); A("s_cmp_lt_u32 s34, 14"); A("s_cbranch_scc1 L_fbl")
        A("s_branch L_fbd")
    OOL.append(ool_fb)
    stamp(12)
    for k in range(4): A(f"v_add_f32_dpp {vr(acc+2*k)}, {vr(acc+2*k)}, {vr(acc+2*k)} row_ror:8 row_mask:0xf bank_mask:0x3")
    for k in range(3): A(f"v_add_f32_dpp {vr(acc+2*k)}, {vr(acc+2*k+1)}, {vr(acc+2*k+1)} row_ror:8 row_mask:0xf bank_mask:0xc")
    for k in range(2): A(f"v_add_f32_dpp {vr(acc+4*k)}, {vr(acc+4*k)}, {vr(acc+4*k)} row_shl:4 row_mask:0xf bank_mask:0x5")
    for k in range(2): A(f"v_add_f32_dpp {vr(acc+4*k)}, {vr(acc+4*k+2)}, {vr(acc+4*k+2)} row_shr:4 row_mask:0xf bank_mask:0xa")
    A(f"v_permlane16_swap_b32 {vr(acc)}, {vr(acc+4)}")
    A(f"v_add_f32 {vr(acc)}, {vr(acc)}, {vr(acc+4)}")
    A(f"v_add_f32_dpp {vr(acc)}, {vr(acc)}, {vr(acc)} quad_perm:[1,0,3,2] row_mask:0xf bank_mask:0xf")
    A(f"v_add_f32_dpp {vr(acc)}, {vr(acc)}, {vr(acc)} quad_perm:[2,3,0,1] row_mask:0xf bank_mask:0xf")
    A(f"ds_write_b32 {vr(vYa)}, {vr(acc)}")
    A("s_mov_b64 exec, 0x7f")
    A("s_waitcnt lgkmcnt(0)")
    A("s_barrier")
    A("s_cbranch_scc0 L_fin")
    A(f"ds_read2_b64 {vr(vT+4,4)}, {vr(vT)} offset0:0 offset1:8")
    A(f"ds_read2_b64 {vr(vT+8,4)}, {vr(vT)} offset0:16 offset1:24")
    A("s_waitcnt lgkmcnt(1)")
    A(f"v_pk_add_f32 {vr(vHf,2)}, {vr(vHf,2)}, {vr(vT+4,2)}"); A(f"v_pk_add_f32 {vr(vHf,2)}, {vr(vHf,2)}, {vr(vT+6,2)}")
    A("s_waitcnt lgkmcnt(0)")
    A(f"v_pk_add_f32 {vr(vHf,2)}, {vr(vHf,2)}, {vr(vT+8,2)}"); A(f"v_pk_add_f32 {vr(vHf,2)}, {vr(vHf,2)}, {vr(vT+10,2)}")
    A(f"v_cvt_pk_bf16_f32 {vr(vT+2)}, {vr(vHf)}, {vr(vHf+1)}")
    A(f"global_store_dword {vr(vOut)}, {vr(vT+2)}, s[24:25] {outpol}")
    A("L_fin:")
    stamp(13)
    if amp:
        A(f"s_cmp_eq_u32 s30, {amp[0]}"); A("s_cbranch_scc0 L_end")
        A("s_waitcnt lgkmcnt(0)")
        A(f"s_sub_u32 s33, s{64+2*amp[1]}, s{64+2*amp[2]}")
        if amp[3] < 0: A("s_sub_u32 s33, 3000, s33")
        A("s_min_u32 s33, s33, 5000"); A("s_lshl_b32 s33, s33, 3"); A("s_add_u32 s33, s33, 4000")
        A("L_amp:")
        A("s_memrealtime s[34:35]"); A("s_waitcnt lgkmcnt(0)"); A("s_sub_u32 s34, s34, s64")
        A("s_cmp_lt_u32 s34, s33"); A("s_cbranch_scc1 L_amp")
    dump_stamps(15)
    A("L_end:")
    A("s_endpgm")
    for f in OOL: f()
    A(".fill 1024, 4, 0xbf810000")

    body, nn = fix_hazards(A.L)
    head = [l.rstrip("\n") for l in open("header.txt")]
    head.append(f"; @launch grid=(256,1,1) block=(512,1,1) lds={L_END}")
    head += ['.amdgcn_target "amdgcn-amd-amdhsa--gfx950"', ".text"] + ([".p2align 12"] if al else []) + ([f".fill {pad // 4}, 4, 0xbf810000"] if pad else []) + [f".globl {NAME}", ".p2align 8", f".type {NAME},@function"]
    tail = ['.section .rodata,"a"', ".p2align 6", f".amdhsa_kernel {NAME}",
            "  .amdhsa_next_free_vgpr 256", "  .amdhsa_next_free_sgpr 96", "  .amdhsa_accum_offset 256",
            "  .amdhsa_group_segment_fixed_size 0", "  .amdhsa_kernarg_size 104", "  .amdhsa_user_sgpr_count 2",
            "  .amdhsa_user_sgpr_kernarg_segment_ptr 1", "  .amdhsa_system_sgpr_workgroup_id_x 1",
            "  .amdhsa_float_denorm_mode_32 3", ".end_amdhsa_kernel"]
    return "\n".join(head + body + tail) + "\n"

if __name__ == "__main__":
    kw = eval("dict(" + (sys.argv[2] if len(sys.argv) > 2 else "") + ")")
    open(sys.argv[1], "w").write(gen(**kw))
```

```python
import sys, struct, math
from asmlib import *

NAME = "sequential_preLN__sliding_block_cached__mixer_token_mlp__decode_kernel"
def f32(x): return "0x%08x" % struct.unpack("<I", struct.pack("<f", x))[0]

L_K = 0; L_WQ = 131072; L_Q = 145408; L_STAT = 146432; L_OP = 146688; L_PP = 154880; L_H = 158976; L_HS = 161024; L_Y = 161088
L_END = 161344
L_X = L_OP
W_Q = 0
W_L = 0xA0000
W_O = 0x40000
W_B = 0x80000
W_ALT = 0x100000
W_STAMP = 0x200000
SPIN = 0x20000
STAMP_VIEW = [("S", slice(4, 8), [0, 8, 6, 7, 1, 2, 3, 4, 5]), ("T0", 0, [0, 1, 3, 4, 14]), ("T3L", 3, [0, 1, 4], slice(224, 256)),
              ("T1", 1, [0, 4, 2, 5, 6, 7, 8, 9, 10, 11, 12, 13]), ("Tall", slice(0, 4), [5, 6, 7, 8, 9, 10, 11, 12, 13])]
ALPHA = -2.0 * math.sqrt(2.0 / math.pi) * math.log2(math.e)
BETA = ALPHA * 0.044715

def gen(W=8, QPOS=4, QD=2, FT=-1, stamps=False, force_slow=False, pol="nt", qpol="nt", opol="nt", opol2="nt", spol="", skip="",
        pref=True, opos="mid", qx=16, force_fb=False, touch=False, amp=None, DA=1, DB=1, rotm=1, PB=0, NL=1, EP=0, inst=0, spf=2, WE=0, WEN=64, WE0=8, WEM=0x55, NLD=4, LD0=8, qpace=0, prio=0, QT=0, GA=0, GB=0, cpos="early", N1=8, c1=True, NE=0, o1=True, o2=True, o3=True, ap=2, NB=0, pos='r1 j1 r3 j0 s0 r2 s1 t0 t1', rot='r3=c', wb=1, wbs=0, ks=0, b0=0, b0n=0, rnd=0, wq1=0, wbr=31, lw=True, pad=0, al=1, tal=0, warm=0, outpol='', hack="", bx="ab", PB0=0):
    A = Asm()
    c1_ = c1
    OOL = []
    def stamp(i):
        if stamps or (amp and i in (amp[1], amp[2], 0)): A(f"s_memrealtime s[{64+2*i}:{65+2*i}]")
    def dump_stamps(nst):
        if not stamps: return
        A("s_waitcnt lgkmcnt(0) vmcnt(0)")
        A("s_lshl_b32 s94, s2, 3"); A("s_add_u32 s94, s94, s30"); A("s_lshl_b32 s94, s94, 6"); A(f"s_add_u32 s94, s94, {W_STAMP}")
        A("s_mov_b64 exec, 1")
        A("v_mov_b32 v4, s94")
        for i in range(nst):
            A(f"v_mov_b32 v5, s{64+2*i}")
            A(f"global_store_dword v4, v5, s[28:29] offset:{4*i}")
        A("s_getreg_b32 s94, hwreg(HW_REG_XCC_ID, 0, 4)"); A("v_mov_b32 v5, s94")
        A("global_store_dword v4, v5, s[28:29] offset:60")
        A("s_waitcnt vmcnt(0)")

    A(f"{NAME}:")
    stamp(0)
    A("s_load_dwordx16 s[4:19], s[0:1], 0" if ks != 2 else "s_load_dwordx8 s[4:11], s[0:1], 0")
    if not ks or stamps:
        A("s_load_dwordx8 s[20:27], s[0:1], 64")
        A("s_load_dwordx2 s[28:29], s[0:1], 96")
    A("v_lshrrev_b32 v1, 6, v0")
    A("s_lshr_b32 s32, s2, 3")
    A("v_readfirstlane_b32 s30, v1")
    A("s_cmp_ge_u32 s32, 32")
    A("s_cbranch_scc1 L_end")
    A("v_and_b32 v0, 63, v0")
    A("s_and_b32 s31, s2, 7")
    A("v_lshlrev_b32 v3, 4, v0")
    A("s_cmp_lt_u32 s30, 4")
    A("s_cbranch_scc1 L_T")

    A.c("================ stream waves")
    V = Alloc(4, 256)
    vK = V(8); vVo = V(8); vKA = V(4); vM = V(4); vT = V(8); vOPa = V(2); vQA = V(); vSTw = V(); vSTr = V()
    vS = V(16); vAcc = vK; vQ = V(32); vKF = V(32); vVv = V(128)
    vA = vQ
    assert vKF == vQ + 32
    P = {nm: 10 + k for k, nm in enumerate(pos.split())}
    SRC = dict(a=("s2", 3), b=("s2", 4), c=("s2", 5), d=("s2", 6), e=("s2", 7), x=("s2", 0), y=("s2", 1), z=("s2", 2), p=("s30", 0), q=("s30", 1))
    R = {k: v for k, v in (x.split("=") for x in rot.split())}
    def gaddr(i): return sum(((i >> k) & 1) << P[f"r{k+1}"] for k in range(3))
    def X(i): return ((8*(i & 1) + (i >> 1)) << 4) | gaddr(i)
    def parity(dst, key):
        for n_, ch in enumerate(R[key]):
            reg, bit = SRC[ch]
            if n_ == 0: A(f"s_bfe_u32 {dst}, {reg}, {hex(0x10000 | bit)}")
            else: A(f"s_bfe_u32 s39, {reg}, {hex(0x10000 | bit)}"); A(f"s_xor_b32 {dst}, {dst}, s39")
    A("s_lshr_b32 s34, s2, 5"); A("s_lshl3_add_u32 s34, s34, s31"); A("s_lshl2_add_u32 s34, s34, 3"); A("s_lshl_b32 s40, s34, 19")
    def field(reg, bit, n0, n1):
        if P[n1] == P[n0] + 1:
            A(f"s_bfe_u32 s35, {reg}, {hex(0x20000 | bit)}"); A(f"s_lshl_b32 s35, s35, {P[n0]}"); A("s_or_b32 s40, s40, s35")
        else:
            for k, nm in enumerate((n0, n1)):
                A(f"s_bitcmp1_b32 {reg}, {bit + k}"); A(f"s_cselect_b32 s35, {1 << P[nm]}, 0"); A("s_or_b32 s40, s40, s35")
    field("s2", 3, "s0", "s1"); field("s30", 0, "j0", "j1")
    for nm in ("t0", "t1"):
        if nm in R: parity("s35", nm); A(f"s_lshl_b32 s35, s35, {P[nm]}"); A("s_or_b32 s40, s40, s35")
    tlx = [((tl & 1) << P["t0"]) | ((tl >> 1) << P["t1"]) for tl in range(4)]
    A("s_sub_u32 s33, s30, 4")
    A("s_lshl_b32 s37, s33, 15")
    A("s_mov_b32 s44, s37"); A("s_mov_b32 s38, 0"); A("s_mov_b32 s60, 0")
    for k in range(3):
        if f"r{k+1}" in R:
            parity("s35", f"r{k+1}")
            A(f"s_mul_i32 s36, s35, {X(1 << k)}"); A("s_or_b32 s38, s38, s36")
            A(f"s_lshl_b32 s36, s35, {10 + k}"); A("s_or_b32 s44, s44, s36")
            if k: A(f"s_lshl{k-1}_add_u32 s60, s35, s60" if k > 1 else "s_add_u32 s60, s35, s60")
    A(f"v_and_b32 {vr(vT)}, 32, v0"); A(f"v_lshlrev_b32 {vr(vT)}, 1, {vr(vT)}")
    A(f"v_xor_b32 {vr(vT)}, {vr(vT)}, v3")
    A(f"v_xor_b32 {vr(vK)}, s38, {vr(vT)}")
    if prio == 2: A("s_setprio 3")
    A("s_brev_b32 s54, 16"); A("s_mov_b32 s55, 0x20000")
    A("s_mov_b32 m0, s44")
    A("s_waitcnt lgkmcnt(0)")
    A("s_mov_b64 s[52:53], s[6:7]")
    stamp(8)
    issued = [0]
    def throttle():
        if WE and WE0 <= issued[0] < WE0 + WEN:
            A(f"s_cbranch_vccz L_th{issued[0]}"); A(f"s_waitcnt vmcnt({abs(WE)-1})"); A(f"L_th{issued[0]}:")
        if issued[0] >= W: A(f"s_waitcnt vmcnt({W-1})")
        issued[0] += 1
    def kload(tl, i):
        if tl or i: A(f"s_xor_b32 m0, s44, {(tl << 13) | (i << 10)}")
        if tl == 0 and i: A(f"v_xor_b32 {vr(vK+i)}, {X(i)}, {vr(vK)}")
        throttle()
        A(f"buffer_load_dwordx4 {vr(vK+i)}, s[52:55], s{40+tl} offen {pol} lds")
    for i in range(8):
        if b0 and i == b0n: A("s_barrier")
        kload(0, i)
    A("s_branch L_S2")

    A("L_T:")
    A.c("================ tail waves")
    if ks == 2: A("s_load_dwordx8 s[12:19], s[0:1], 32")
    if ks and not stamps:
        A("s_load_dwordx8 s[20:27], s[0:1], 64")
        A("s_load_dwordx2 s[28:29], s[0:1], 96")
    V = Alloc(4, 256)
    vC = V(56); vW = V(32); vRaw = V(32); vX = V(56); tT = V(24)
    vXr = V(4); vDl = V(4); vQs = V(8); vG = V(4); vK1 = V(5); vHa = V(); vKs = V(2); vHf = V(2)
    vYa = V(); vLa = V(); vOa = V(); vPPa = V(); vBst = V(); vOst = V(); vLst = V(); vLse = V()
    vBa = V(); vHw = V(); vHsw = V(); vOut = V(); vB2 = V(); vQa = V(); vOPr = V(); vPPr = V(); vWa = V(2); vQw = V(); vWr = V()
    assert vRaw == vW + 32
    raw = vRaw if cpos == "early" else vX + 32
    def prep_loads():
        t = tT + 14
        A.c("MLP weights, residual row piece, b2")
        if c1_:
            A("s_mul_i32 s33, s30, 896")
            A(f"v_mul_u32_u24 {vr(t)}, 12, v0"); A(f"v_add_u32 {vr(t)}, {508 - 384}, {vr(t)}")
            A("v_cmp_lt_u32 vcc, 31, v0"); A(f"v_cndmask_b32 {vr(t)}, v3, {vr(t)}, vcc"); A(f"v_add_u32 {vr(t)}, s33, {vr(t)}")
            for k, sp in enumerate((16, 18, 20)):
                A(f"global_load_dwordx4 {vr(raw+8*k,4)}, {vr(t)}, s[{sp}:{sp+1}] {spol}")
        else:
            A(f"v_and_b32 {vr(t)}, 31, v0")
            A("s_mul_i32 s33, s30, 896")
            A(f"v_lshlrev_b32 {vr(t+1)}, 4, {vr(t)}"); A(f"v_add_u32 {vr(t+1)}, s33, {vr(t+1)}")
            A(f"v_lshlrev_b32 {vr(t+2)}, 3, {vr(t)}"); A(f"v_add_u32 {vr(t+2)}, s33, {vr(t+2)}")
            A(f"v_lshlrev_b32 {vr(t+3)}, 2, {vr(t)}"); A(f"v_add_u32 {vr(t+3)}, s33, {vr(t+3)}")
            for k, sp in enumerate((16, 18, 20)):
                A(f"global_load_dwordx4 {vr(raw+8*k,4)}, {vr(t+1)}, s[{sp}:{sp+1}] {spol}")
                A(f"global_load_dwordx2 {vr(raw+8*k+4,2)}, {vr(t+2)}, s[{sp}:{sp+1}] offset:512 {spol}")
                A(f"global_load_dword {vr(raw+8*k+6)}, {vr(t+3)}, s[{sp}:{sp+1}] offset:768 {spol}")
        A(f"v_min_u32 {vr(t)}, 13, v1"); A(f"v_and_b32 {vr(t+1)}, 1, v2")
        A("s_mul_i32 s33, s31, 896"); A("s_mul_i32 s34, s30, 224"); A("s_add_u32 s33, s33, s34")
        A(f"v_lshlrev_b32 {vr(t)}, 4, {vr(t)}"); A(f"v_lshl_add_u32 {vr(t)}, {vr(t+1)}, 3, {vr(t)}"); A(f"v_add_u32 {vr(t)}, s33, {vr(t)}")
        A(f"global_load_dwordx2 {vr(vXr+2,2)}, {vr(t)}, s[4:5] {spol}")
        A(f"v_mov_b32 {vr(t+2)}, 0")
        A(f"global_load_ushort {vr(vB2)}, {vr(t+2)}, s[22:23] {spol}")
    A("v_and_b32 v1, 15, v0")
    A("v_lshrrev_b32 v2, 4, v0")
    A("s_lshl_b32 s63, s31, 2")
    A(f"v_mov_b32 {vr(vQw)}, 0")
    if b0: A("s_mov_b32 s46, 0")
    if "T" in skip:
        A("s_waitcnt lgkmcnt(0)"); A("s_barrier"); A("s_barrier"); A("s_barrier")
        if NL: A("s_barrier")
        A("s_branch L_b3")
    A("s_cmp_eq_u32 s30, 0"); A("s_cbranch_scc1 L_T0")
    A("s_cmp_eq_u32 s30, 3"); A("s_cbranch_scc1 L_T3")
    if spf:
        A("s_cmp_eq_u32 s30, 1"); A("s_cbranch_scc1 L_T1")
    if pref:
        if not spf: A("s_cmp_eq_u32 s30, 2"); A("s_cbranch_scc0 L_prepw")
        A.c("T2: pull the code into this XCD's L2")
        A("s_getpc_b64 s[34:35]")
        A("L_pc:")
        A(f"s_sub_u32 s34, s34, L_pc-{NAME}"); A("s_subb_u32 s35, s35, 0")
        A("s_mul_i32 s33, s32, 640")
        A(f"v_min_u32 {vr(tT)}, 9, v0"); A(f"v_lshlrev_b32 {vr(tT)}, 6, {vr(tT)}"); A(f"v_add_u32 {vr(tT)}, s33, {vr(tT)}")
        A(f"global_load_dword {vr(tT+2)}, {vr(tT)}, s[34:35]")
    A("s_branch L_prepw")
    if spf:
        A("L_T1:")
        A.c("T1: pull 14 rows of the wq column block that r=28..31 read (and of the last block) into L2")
        A("s_mul_i32 s33, s32, 14*8192"); A("s_lshl_b32 s34, s31, 10"); A("s_add_u32 s33, s33, s34"); A("s_addk_i32 s33, 384")
        A(f"v_min_u32 {vr(tT)}, 13, v1"); A(f"v_lshlrev_b32 {vr(tT)}, 13, {vr(tT)}")
        A(f"v_and_b32 {vr(tT+1)}, 1, v2"); A(f"v_lshl_add_u32 {vr(tT)}, {vr(tT+1)}, 6, {vr(tT)}")
        A(f"v_lshrrev_b32 {vr(tT+1)}, 1, v2"); A(f"v_lshl_add_u32 {vr(tT)}, {vr(tT+1)}, 9, {vr(tT)}")
        A(f"v_add_u32 {vr(tT)}, s33, {vr(tT)}")
        A("s_cmp_eq_u32 s31, 7"); A("s_cselect_b32 exec_hi, -1, 0")
        if spf == 2: A("s_and_b32 exec_hi, exec_hi, 0xffff"); A("s_mov_b32 exec_lo, 0xffff")
        A("s_waitcnt lgkmcnt(0)")
        A(f"global_load_dword {vr(tT+2)}, {vr(tT)}, s[10:11]")
        A("s_mov_b64 exec, -1")
        A("s_branch L_prepw")
    A("L_T3:")
    A.c(f"T3 of {NLD} workgroup(s) per group: clear a share of the group's q and lse slots, then count in")
    per = 4 // NLD
    A(f"s_sub_u32 s36, s32, {LD0}"); A(f"s_cmp_lt_u32 s36, {NLD}"); A("s_cbranch_scc0 L_prepw")
    for i in range(4): A(f"v_mov_b32 {vr(tT+4+i)}, -1")
    A("s_getreg_b32 s34, hwreg(HW_REG_XCC_ID, 0, 4)")
    if per > 1: A(f"s_mul_i32 s34, s34, {0x1111 & ((1 << (4*per)) - 1)}"); A(f"s_mul_i32 s36, s36, {per}")
    A("s_lshl_b32 s33, s36, 2"); A("s_lshl_b32 s34, s34, s33"); A(f"s_bitset1_b32 s34, {16 + per.bit_length() - 1}")
    A("s_lshl2_add_u32 s33, s31, s36"); A("s_lshl_b32 s35, s33, 13"); A(f"v_add_u32 {vr(tT)}, s35, v3")
    A("s_lshl_b32 s33, s33, 6"); A(f"s_add_u32 s33, s33, {W_L}")
    A(f"v_add_u32 {vr(tT+2)}, s33, v3")
    A("s_waitcnt lgkmcnt(0)")
    for k in range(2*per):
        for i in range(4): A(f"global_store_dwordx4 {vr(tT)}, {vr(tT+4,4)}, s[28:29] offset:{1024*i}")
        if k < 2*per - 1: A(f"v_add_u32 {vr(tT)}, 4096, {vr(tT)}")
    A(f"s_mov_b64 exec, {(1 << (4*per)) - 1}")
    A(f"global_store_dwordx4 {vr(tT+2)}, {vr(tT+4,4)}, s[28:29]")
    A("s_mov_b64 exec, -1")
    if b0:
        A("s_mov_b32 s46, s34")
    else:
        A("s_waitcnt vmcnt(0)")
        A("s_atomic_add s34, s[26:27], s63")
        stamp(1)
    A("s_branch L_prepw")
    A("L_T0:")
    A.c("T0: x into LDS, clear this workgroup's share of the hand-off slots (acknowledged before q is published)")
    A(f"v_lshrrev_b32 {vr(vQw)}, 3, v0"); A(f"v_lshlrev_b32 {vr(vQw)}, 13, {vr(vQw)}"); A(f"v_and_b32 {vr(tT)}, 0x70, v3"); A(f"v_or_b32 {vr(vQw)}, {vr(vQw)}, {vr(tT)}")
    A(f"s_xor_b32 s34, s32, {qx}"); A("s_lshr_b32 s35, s34, 2"); A("s_lshl3_add_u32 s50, s31, s35"); A("s_lshl_b32 s50, s50, 7")
    A("s_and_b32 s48, s34, 3"); A("s_mul_i32 s34, s48, 112*8192"); A("s_add_u32 s50, s50, s34")
    qstep = 0x10000
    if "8" in hack:
        A(f"v_lshlrev_b32 {vr(vQw)}, 13, v2"); A(f"v_lshl_add_u32 {vr(vQw)}, v1, 4, {vr(vQw)}")
        A("s_lshr_b32 s35, s32, 3"); A("s_lshl2_add_u32 s50, s31, s35"); A("s_lshl_b32 s50, s50, 8")
        A("s_and_b32 s34, s32, 7"); A("s_mul_i32 s34, s34, 56*8192"); A("s_add_u32 s50, s50, s34"); qstep = 0x8000
    if "C" in hack:
        A(f"v_mov_b32 {vr(vQw)}, v3"); A("s_mul_i32 s50, s2, 14336"); qstep = 1024
    A("s_movk_i32 s58, 7168"); A("s_mov_b32 s59, 0x20000"); A("s_movk_i32 s35, 4096")
    A(f"s_mov_b32 m0, {L_X}")
    A("s_lshl_b32 s33, s31, 15"); A("s_lshl_b32 s34, s32, 10"); A("s_add_u32 s33, s33, s34"); A(f"s_add_u32 s33, s33, {W_O}")
    A(f"v_add_u32 {vr(tT)}, s33, v3")
    A("s_mul_i32 s33, s31, 14336"); A("s_min_u32 s34, s32, 27"); A("s_lshl_b32 s34, s34, 9"); A("s_add_u32 s33, s33, s34"); A(f"s_add_u32 s33, s33, {W_B}")
    A(f"v_add_u32 {vr(tT+1)}, s33, v3")
    for i in range(4): A(f"v_mov_b32 {vr(vW+i)}, -1")
    A("s_waitcnt lgkmcnt(0)")
    A("s_mov_b64 s[56:57], s[4:5]")
    for t in range(4 if "x" not in hack else 0): A(f"buffer_load_dwordx4 v3, s[56:59], 0 offen offset:{1024*t} {spol} lds")
    A(f"s_mov_b32 m0, {L_X + 4096}")
    for t in range(3 if "x" not in hack else 0): A(f"buffer_load_dwordx4 v3, s[56:59], s35 offen offset:{1024*t} {spol} lds")
    A(f"global_store_dwordx4 {vr(tT)}, {vr(vW,4)}, s[28:29]")
    A.c("r = 28..31 repeat the share of r = 27 with one lane")
    A("s_cmp_lt_u32 s32, 28"); A("s_cselect_b32 exec_lo, -1, 1"); A("s_mov_b32 exec_hi, 0")
    A(f"global_store_dwordx4 {vr(tT+1)}, {vr(vW,4)}, s[28:29] sc1")
    A("s_mov_b64 exec, -1")
    A("s_branch L_prepw")

    A("L_S2:")
    A("v_and_b32 v1, 15, v0")
    A("v_lshrrev_b32 v2, 4, v0")
    for tl in range(1, 4): A(f"s_xor_b32 s{40+tl}, s40, {tlx[tl]}")
    A("s_mov_b64 s[56:57], s[8:9]"); A("s_mov_b32 s58, s54"); A("s_mov_b32 s59, 0x20000")
    if "d" in R: parity("s61", "d"); A("s_lshl_b32 s61, s61, 8")
    else: A("s_mov_b32 s61, 0")
    A(f"v_and_b32 {vr(vT)}, 1, v2"); A(f"v_lshlrev_b32 {vr(vT)}, 9, {vr(vT)}"); A(f"v_lshl_add_u32 {vr(vT)}, v1, 4, {vr(vT)}")
    A(f"v_lshrrev_b32 {vr(vT+1)}, 1, v2"); A(f"v_lshl_add_u32 {vr(vT)}, {vr(vT+1)}, {P['r1']}, {vr(vT)}")
    A(f"s_and_b32 s35, s38, {gaddr(6)}"); A("s_or_b32 s35, s35, s61")
    A(f"v_or_b32 {vr(vVo)}, s35, {vr(vT)}")
    for e in range(1, 8): A(f"v_xor_b32 {vr(vVo+e)}, {gaddr(e & 6) | ((e & 1) << 8)}, {vr(vVo)}")
    A(f"v_xor_b32 {vr(vT+3)}, s60, v1")
    A(f"v_and_b32 {vr(vT)}, 3, {vr(vT+3)}"); A(f"v_lshrrev_b32 {vr(vT+1)}, 2, v1")
    A(f"v_lshl_add_u32 {vr(vT+2)}, {vr(vT)}, 2, {vr(vT+1)}")
    A(f"v_xor_b32 {vr(vT+3)}, {vr(vT+3)}, v2")
    A(f"v_lshlrev_b32 {vr(vT+2)}, 9, {vr(vT+2)}"); A(f"v_add_u32 {vr(vT+2)}, s37, {vr(vT+2)}")
    A(f"v_lshl_add_u32 {vr(vKA)}, {vr(vT+3)}, 4, {vr(vT+2)}")
    for t in range(1, 4): A(f"v_xor_b32 {vr(vKA+t)}, {64*t}, {vr(vKA)}")
    A(f"v_lshrrev_b32 {vr(vT)}, 3, v1")
    A(f"v_lshlrev_b32 {vr(vQA)}, 9, {vr(vT)}"); A(f"v_lshl_add_u32 {vr(vQA)}, v2, 4, {vr(vQA)}")
    A(f"v_add_u32 {vr(vQA)}, {L_Q}, {vr(vQA)}")
    A(f"v_lshlrev_b32 {vr(vSTr)}, 5, {vr(vT)}"); A(f"v_add_u32 {vr(vSTr)}, {L_STAT}, {vr(vSTr)}")
    A("s_lshl_b32 s35, s33, 2"); A(f"v_add_u32 {vr(vSTw)}, s35, {vr(vSTr)}")
    def delta(dst, val, t0):
        A(f"v_and_b32 {vr(t0)}, 16, v3")
        A(f"v_mov_b32 {vr(t0+1)}, {val}"); A(f"v_lshlrev_b32 {vr(t0+1)}, {vr(t0)}, {vr(t0+1)}")
        A(f"v_bfe_u32 {vr(t0)}, v1, 1, 2")
        for i in range(4):
            A(f"v_cmp_eq_u32 vcc, {i}, {vr(t0)}")
            A(f"v_cndmask_b32 {vr(dst+i)}, 0, {vr(t0+1)}, vcc")
    delta(vM, "0xffff", vT)
    A(f"v_and_b32 {vr(vT)}, 1, v2"); A(f"v_lshlrev_b32 {vr(vT)}, 4, {vr(vT)}")
    A(f"v_lshrrev_b32 {vr(vT+1)}, 1, v2"); A(f"v_lshl_add_u32 {vr(vT)}, {vr(vT+1)}, 10, {vr(vT)}")
    A(f"v_lshl_add_u32 {vr(vT)}, v1, 5, {vr(vT)}")
    A("s_lshl_b32 s35, s33, 11"); A(f"s_add_u32 s35, s35, {L_OP}")
    for dh in range(2):
        A(f"s_xor_b32 s38, s61, {dh << 8}"); A("s_lshl1_add_u32 s38, s38, s35")
        A(f"v_add_u32 {vr(vOPa+dh)}, s38, {vr(vT)}")
    if WE:
        A("s_getreg_b32 s35, hwreg(HW_REG_XCC_ID, 0, 3)"); A(f"s_bitcmp1_b32 {WEM}, s35"); A("s_cselect_b64 vcc, -1, 0")
    nv = [0]
    vord = list(range(28)) + [28, 30, 29, 31]
    def more(k):
        for _ in range(k):
            if nv[0] < 32:
                idx = vord[nv[0]]; tl, e = idx >> 3, idx & 7
                throttle()
                A(f"buffer_load_dwordx4 {vr(vVv+4*idx,4)}, {vr(vVo+e)}, s[56:59], s{40+tl} offen {pol}")
                nv[0] += 1
    seq = [("k", tl, i) for tl in range(1, 4) for i in range(8)] + [("v",)] * 32
    pos = 0
    def adv(n):
        nonlocal pos
        for _ in range(n):
            it = seq[pos]; pos += 1
            if it[0] == "k": kload(it[1], it[2])
            else: more(1)
    adv(24 + QPOS)
    stamp(6)
    A("s_barrier")
    stamp(7)
    adv(W + QD)
    assert nv[0] >= W
    stamp(1)
    if prio == 3: A("s_setprio 2")
    A("s_barrier")
    stamp(2)
    for t in range(8):
        A(f"ds_read_b128 {vr(vQ+4*t,4)}, {vr(vQA)} offset:{64*t}")
    for tl in range(4):
        for t in range(8):
            A(f"ds_read_b128 {vr(vKF+4*t,4)}, {vr(vKA+(t&3))} offset:{tl*8192 + (t>>2)*256}")
        for t in range(8):
            A(f"s_waitcnt lgkmcnt({7-t})")
            c = "0" if t == 0 else vr(vS+4*tl, 4)
            A(f"v_mfma_f32_16x16x32_bf16 {vr(vS+4*tl,4)}, {vr(vKF+4*t,4)}, {vr(vQ+4*t,4)}, {c}")
        more(1)
    SC = math.log2(math.e) / 16.0
    A(f"s_mov_b32 s35, {f32(SC)}")
    mx = vT; cp = vT + 1; ls = vT + 2
    A(f"v_max3_f32 {vr(mx)}, {vr(vS)}, {vr(vS+1)}, {vr(vS+2)}")
    for i in range(3, 15, 2):
        A(f"v_max3_f32 {vr(mx)}, {vr(mx)}, {vr(vS+i)}, {vr(vS+i+1)}")
    A(f"v_max_f32 {vr(mx)}, {vr(mx)}, {vr(vS+15)}")
    def xg(x, op):
        for sw in ("v_permlane32_swap_b32", "v_permlane16_swap_b32"):
            A(f"v_mov_b32 {vr(cp)}, {vr(x)}")
            A(f"{sw} {vr(x)}, {vr(cp)}")
            A(f"{op} {vr(x)}, {vr(x)}, {vr(cp)}")
    xg(mx, "v_max_f32")
    A(f"v_mul_f32 {vr(mx)}, s35, {vr(mx)}")
    for i in range(16):
        A(f"v_fma_f32 {vr(vS+i)}, {vr(vS+i)}, s35, -{vr(mx)}")
    for i in range(16):
        A(f"v_exp_f32 {vr(vS+i)}, {vr(vS+i)}")
    A(f"v_add_f32 {vr(ls)}, {vr(vS)}, {vr(vS+1)}")
    for i in range(2, 16):
        A(f"v_add_f32 {vr(ls)}, {vr(ls)}, {vr(vS+i)}")
    xg(ls, "v_add_f32")
    A(f"ds_write2_b32 {vr(vSTw)}, {vr(mx)}, {vr(ls)} offset0:0 offset1:4")
    more(1)
    A("s_waitcnt lgkmcnt(0)")
    A("s_barrier")
    stamp(3)
    def stats(m4, l4, M, Lr):
        A(f"v_max3_f32 {vr(M)}, {vr(m4)}, {vr(m4+1)}, {vr(m4+2)}"); A(f"v_max_f32 {vr(M)}, {vr(M)}, {vr(m4+3)}")
        for i in range(4): A(f"v_sub_f32 {vr(m4+i)}, {vr(m4+i)}, {vr(M)}")
        for i in range(4): A(f"v_exp_f32 {vr(m4+i)}, {vr(m4+i)}")
        A(f"v_mul_f32 {vr(Lr)}, {vr(m4)}, {vr(l4)}")
        for i in range(1, 4): A(f"v_fmac_f32 {vr(Lr)}, {vr(m4+i)}, {vr(l4+i)}")
    A(f"ds_read_b128 {vr(vAcc,4)}, {vr(vSTr)}")
    A(f"ds_read_b128 {vr(vAcc+4,4)}, {vr(vSTr)} offset:16")
    more(1)
    A("s_waitcnt lgkmcnt(0)")
    stats(vAcc, vAcc + 4, vT + 3, vT + 4)
    A(f"v_sub_f32 {vr(mx)}, {vr(mx)}, {vr(vT+3)}")
    A(f"v_exp_f32 {vr(mx)}, {vr(mx)}")
    A(f"v_rcp_f32 {vr(vT+4)}, {vr(vT+4)}")
    A(f"v_mul_f32 {vr(mx)}, {vr(mx)}, {vr(vT+4)}")
    for i in range(16):
        A(f"v_mul_f32 {vr(vS+i)}, {vr(vS+i)}, {vr(mx)}")
        A(f"v_cvt_pk_bf16_f32 {vr(vS+i)}, {vr(vS+i)}, {vr(vS+i)}")
        for k in range(4):
            A(f"v_and_b32 {vr(vA+4*i+k)}, {vr(vS+i)}, {vr(vM+k)}")
        if i % 8 == 7: more(1)
    stamp(4)
    done = 0
    def pv(k):
        idx = vord[k]
        i, dh = idx >> 1, idx & 1
        c = "0" if i == 0 else vr(vAcc+4*dh, 4)
        A(f"v_mfma_f32_16x16x32_bf16 {vr(vAcc+4*dh,4)}, {vr(vA+4*i,4)}, {vr(vVv+4*idx,4)}, {c}")
    while nv[0] < 32:
        more(1)
        if NL and nv[0] == 32 - EP: A("s_barrier")
        lim = min(nv[0] - W, done + 4)
        while done < lim: pv(done); done += 1
    while done < 32:
        if 31 - done < W: A(f"s_waitcnt vmcnt({31-done})")
        pv(done); done += 1
        if done == 31: A(f"ds_write_b128 {vr(vOPa)}, {vr(vAcc,4)}")
    A(f"ds_write_b128 {vr(vOPa+1)}, {vr(vAcc+4,4)}")
    stamp(5)
    A("s_waitcnt lgkmcnt(0)")
    A("s_barrier")
    if wbs and "E" not in skip:
        A.c("one wave per group stays to write the spent hand-off lines back ahead of the end of the kernel")
        A("s_cmp_eq_u32 s30, 4"); A("s_cselect_b32 s33, s32, -1"); A(f"s_cmp_eq_u32 s33, {wbr}"); A("s_cbranch_scc0 L_send")
        nb = 4 if "b" in bx else 3
        for k in range(nb):
            if k == wbs - 1: A("buffer_wbl2 sc1")
            A("s_barrier")
        A("L_send:")
    dump_stamps(9)
    A("s_endpgm")

    vT = tT
    A("L_prepw:")
    A("s_waitcnt lgkmcnt(0)")
    if b0 == 1: A("s_barrier")
    if cpos == "early": prep_loads()
    if b0 == 2: A("s_barrier")
    A("s_mov_b64 s[52:53], s[10:11]"); A("s_mov_b32 s54, 0x380000"); A("s_mov_b32 s55, 0x20000")
    nq = [0]
    def wq_loads(n):
        if not n or "q" in skip: return
        A("s_cmp_eq_u32 s30, 0"); A(f"s_cbranch_scc0 L_nq{nq[0]}")
        lab = f"L_nq{nq[0]}:"
        for _ in range(n):
            A(f"s_mov_b32 m0, {L_WQ + 1024*nq[0]}")
            if qpace and nq[0] >= qpace: A(f"s_waitcnt vmcnt({qpace-1})")
            A(f"buffer_load_dwordx4 {vr(vQw)}, s[52:55], s50 offen {qpol} lds")
            A(f"s_add_u32 s50, s50, {qstep}")
            nq[0] += 1
        A(lab)
    wq_loads(wq1)
    if b0 == 3: A("s_barrier")
    wq_loads(14 - wq1)
    if b0:
        A("s_cmp_eq_u32 s46, 0"); A("s_cbranch_scc1 L_nolead")
        A("s_waitcnt vmcnt(5)")
        A("s_atomic_add s46, s[26:27], s63")
        A("L_nolead:")
    def wo_addr():
        A("s_bfe_u32 s34, s32, 0x10001"); A("s_lshl1_add_u32 s33, s31, s34"); A("s_lshl2_add_u32 s33, s33, s30"); A("s_lshl_b32 s33, s33, 6")
        A("s_mul_i32 s33, s33, 896"); A("s_lshr_b32 s34, s32, 2"); A("s_min_u32 s34, s34, 6"); A("s_lshl_b32 s34, s34, 7"); A("s_add_u32 s51, s33, s34")
        if "O" in hack: A("s_mul_i32 s33, s31, 14"); A("s_lshr_b32 s34, s32, 1"); A("s_add_u32 s33, s33, s34"); A("s_lshl2_add_u32 s33, s33, s30"); A("s_lshl_b32 s51, s33, 13")
        A(f"v_lshrrev_b32 {vr(vWa)}, 3, v0"); A(f"v_mul_u32_u24 {vr(vWa)}, 896, {vr(vWa)}")
        A(f"v_and_b32 {vr(vT+4)}, 16, v0"); A(f"v_lshlrev_b32 {vr(vT+4)}, 1, {vr(vT+4)}"); A(f"v_and_b32 {vr(vT+5)}, 0x70, v3"); A(f"v_xor_b32 {vr(vT+4)}, {vr(vT+4)}, {vr(vT+5)}")
        A(f"v_xor_b32 {vr(vT+5)}, 64, {vr(vT+4)}"); A(f"v_add_u32 {vr(vWa+1)}, {vr(vWa)}, {vr(vT+5)}"); A(f"v_add_u32 {vr(vWa)}, {vr(vWa)}, {vr(vT+4)}")
        A(f"v_lshrrev_b32 {vr(vT+4)}, 2, v1"); A(f"v_lshl_add_u32 {vr(vT+4)}, v2, 3, {vr(vT+4)}"); A(f"v_lshlrev_b32 {vr(vT+4)}, 7, {vr(vT+4)}")
        A(f"v_bfe_u32 {vr(vT+5)}, v0, 3, 2"); A(f"v_lshl_add_u32 {vr(vT+4)}, {vr(vT+5)}, 5, {vr(vT+4)}")
        A(f"v_and_b32 {vr(vT+5)}, 3, v0"); A(f"v_lshl_add_u32 {vr(vT+4)}, {vr(vT+5)}, 3, {vr(vT+4)}")
        A("s_lshl_b32 s61, s30, 13"); A(f"v_add_u32 {vr(vWr)}, s61, {vr(vT+4)}")
    def wo_loads(i0, i1, tag):
        if i0 >= i1: return
        A("s_cmp_ge_u32 s32, 28" if "o" not in skip else "s_cmp_ge_u32 s32, 0"); A(f"s_cbranch_scc1 L_nowo{tag}")
        for i in range(i0, i1):
            A(f"s_add_u32 m0, s61, {1024*i}"); A(f"s_add_u32 s33, s51, {8*896*i if 'O' not in hack else 1024*i}")
            A(f"buffer_load_dwordx4 {vr(vWa+(i&1)) if 'O' not in hack else 'v3'}, s[56:59], s33 offen {opol} lds")
        A(f"L_nowo{tag}:")
    def wo_frags(tts=(0, 1)):
        for nt in range(4):
            for tt in tts:
                for hh in range(2):
                    A(f"ds_read_b64_tr_b16 {vr(vW+16*tt+4*nt+2*hh,2)}, {vr(vWr if nt == 0 else vRaw+nt)} offset:{4096*tt + 512*hh}")
    A.c("tail constants")
    A("s_mov_b32 s49, 0")
    wo_addr()
    A(f"s_xor_b32 s34, s32, {qx}"); A("s_and_b32 s35, s34, 3"); A("s_lshr_b32 s34, s34, 2"); A("s_lshl3_add_u32 s34, s35, s34"); A("s_lshl_b32 s34, s34, 7")
    A("s_lshl_b32 s39, s31, 15"); A("s_add_u32 s34, s34, s39")
    A(f"v_and_b32 {vr(vQa)}, 7, v1"); A(f"v_lshlrev_b32 {vr(vQa)}, 12, {vr(vQa)}"); A(f"v_lshl_add_u32 {vr(vQa)}, v2, 4, {vr(vQa)}"); A(f"v_add_u32 {vr(vQa)}, s34, {vr(vQa)}")
    def publish_q():
        A("s_getreg_b32 s47, hwreg(HW_REG_XCC_ID, 0, 4)")
        A("s_mul_i32 s47, s47, 0x1111"); A("s_bitset1_b32 s47, 18")
        if force_slow: A("s_cmp_eq_u32 s32, 5"); A("s_cselect_b32 s47, 0, s47")
        A("s_waitcnt lgkmcnt(0)")
        A("s_cmp_eq_u32 s46, s47")
        A("s_cbranch_scc0 L_f1slow")
        A("L_same:")
        A.c("the slots were cleared in this XCD's L2: publish there")
        A("s_mov_b32 exec_lo, 0x00ff00ff"); A("s_mov_b32 exec_hi, 0x00ff00ff")
        for k in range(2): A(f"global_store_dwordx4 {vr(vQa)}, {vr(vQs+4*k,4)}, s[28:29] offset:{64*k}")
        A("s_mov_b64 exec, -1")
        stamp(3)
        A("L_nopub:")
        def ool():
            A("L_f1slow:")
            A(f"v_mov_b32 {vr(vT+20)}, s63")
            A("s_mov_b32 s35, 0")
            A("L_f1l:")
            A("s_cmp_ge_u32 s46, 0x40000")
            A("s_cbranch_scc1 L_f1d")
            A(f"global_load_dword {vr(vT+21)}, {vr(vT+20)}, s[26:27] sc1")
            A("s_add_u32 s35, s35, 1")
            A("s_waitcnt vmcnt(0)")
            A(f"v_readfirstlane_b32 s46, {vr(vT+21)}")
            A(f"s_cmp_lt_u32 s35, {SPIN}")
            A("s_cbranch_scc1 L_f1l")
            A("L_f1d:")
            A("s_cmp_eq_u32 s46, s47")
            A("s_cbranch_scc1 L_same")
            A.c("cleared on another XCD: tell the group, publish nothing here")
            A("s_add_u32 s46, s63, 32"); A("s_mov_b32 s47, 1")
            A("s_atomic_add s47, s[26:27], s46 glc")
            A("s_waitcnt lgkmcnt(0)")
            A("s_mov_b32 s49, 1")
            A("s_branch L_nopub")
        OOL.append(ool)
    A("s_mul_i32 s33, s31, 14336"); A("s_mul_i32 s34, s30, 224"); A("s_add_u32 s33, s33, s34"); A(f"s_add_u32 s33, s33, {W_B}")
    A(f"v_min_u32 {vr(vT+4)}, 13, v1")
    A(f"v_mul_u32_u24 {vr(vBa)}, 3584, v2"); A(f"v_lshl_add_u32 {vr(vBa)}, {vr(vT+4)}, 4, {vr(vBa)}"); A(f"v_add_u32 {vr(vBa)}, s33, {vr(vBa)}")
    A("s_mul_i32 s34, s30, 448"); A(f"s_add_u32 s34, s34, {L_H}")
    A(f"v_and_b32 {vr(vT+5)}, 1, v2"); A(f"v_lshlrev_b32 {vr(vHw)}, 5, v1"); A(f"v_lshl_add_u32 {vr(vHw)}, {vr(vT+5)}, 4, {vr(vHw)}"); A(f"v_add_u32 {vr(vHw)}, s34, {vr(vHw)}")
    A(f"v_mov_b32 {vr(vT+5)}, {L_H + 1792}"); A("v_cmp_gt_u32 s[42:43], 14, v1")
    A(f"v_cndmask_b32 {vr(vHw)}, {vr(vT+5)}, {vr(vHw)}, s[42:43]")
    A(f"v_lshrrev_b32 {vr(vT+6)}, 5, v0")
    A("s_lshl_b32 s34, s30, 3"); A(f"s_add_u32 s34, s34, {L_HS}")
    A(f"v_lshlrev_b32 {vr(vHsw)}, 2, {vr(vT+6)}"); A(f"v_add_u32 {vr(vHsw)}, s34, {vr(vHsw)}")
    A(f"v_cvt_f32_u32 {vr(vKs)}, {vr(vT+6)}"); A(f"v_sub_f32 {vr(vKs+1)}, 1.0, {vr(vKs)}")
    for i in range(2): A(f"v_mul_f32 {vr(vKs+i)}, {f32(1.0/448)}, {vr(vKs+i)}")
    delta(vDl, "0x3f80", vT + 8)
    A("s_mul_i32 s33, s32, 56"); A(f"s_add_u32 s33, s33, {L_H}")
    ii = vT + 8; hf = vT + 9; col = vT + 10
    A(f"v_bfe_u32 {vr(ii)}, v0, 3, 1"); A(f"v_and_b32 {vr(hf)}, 3, v0"); A(f"v_lshl_add_u32 {vr(ii)}, {vr(ii)}, 2, {vr(hf)}")
    A(f"v_bfe_u32 {vr(hf)}, v0, 2, 1")
    A(f"v_min_u32 {vr(col)}, 6, {vr(ii)}"); A(f"v_mad_u32_u24 {vr(col)}, {vr(hf)}, 7, {vr(col)}")
    A(f"v_lshlrev_b32 {vr(vHa)}, 2, {vr(col)}"); A(f"v_add_u32 {vr(vHa)}, s33, {vr(vHa)}")
    A(f"v_cmp_eq_u32 vcc, 7, {vr(ii)}"); A(f"v_cndmask_b32 {vr(vT+11)}, v2, 3, vcc")
    A(f"v_mov_b32 {vr(vT+12)}, 0x3f803f80")
    A(f"v_cmp_eq_u32 vcc, 2, {vr(vT+11)}"); A(f"v_cndmask_b32 {vr(vK1)}, 0, 1.0, vcc")
    A(f"v_cmp_eq_u32 vcc, 0, {vr(vT+11)}"); A(f"v_cndmask_b32 {vr(vK1+1)}, 0, 1.0, vcc")
    A(f"v_cndmask_b32 {vr(vK1+3)}, 0, {vr(vT+12)}, vcc")
    A(f"v_cmp_eq_u32 vcc, 1, {vr(vT+11)}"); A(f"v_cndmask_b32 {vr(vK1+2)}, 0, 1.0, vcc")
    A(f"v_cndmask_b32 {vr(vK1+4)}, 0, {vr(vT+12)}, vcc")
    A(f"v_min_u32 {vr(col)}, 6, v0"); A(f"v_lshlrev_b32 {vr(vHf)}, 3, {vr(col)}"); A(f"v_add_u32 {vr(vHf)}, s33, {vr(vHf)}")
    A("s_mul_i32 s33, s31, 896"); A("s_mul_i32 s34, s32, 28"); A("s_add_u32 s33, s33, s34")
    A(f"v_lshlrev_b32 {vr(vOut)}, 2, {vr(col)}"); A(f"v_add_u32 {vr(vOut)}, s33, {vr(vOut)}")
    A(f"v_bfe_u32 {vr(ii)}, v0, 2, 1"); A(f"v_bfe_u32 {vr(hf)}, v0, 3, 1"); A(f"v_lshl_add_u32 {vr(ii)}, {vr(ii)}, 1, {vr(hf)}")
    A(f"v_bfe_u32 {vr(hf)}, v0, 4, 1"); A(f"v_lshl_add_u32 {vr(ii)}, {vr(hf)}, 2, {vr(ii)}")
    A(f"v_mad_u32_u24 {vr(hf)}, {vr(vT+6)}, 7, {vr(ii)}")
    A(f"v_cmp_eq_u32 vcc, 7, {vr(ii)}"); A(f"v_cndmask_b32 {vr(hf)}, {vr(hf)}, 15, vcc")
    A("s_lshl_b32 s34, s30, 6"); A(f"s_add_u32 s34, s34, {L_Y}")
    A(f"v_lshlrev_b32 {vr(vYa)}, 2, {vr(hf)}"); A(f"v_add_u32 {vr(vYa)}, s34, {vr(vYa)}")
    A("s_lshl_b32 s33, s31, 8"); A(f"s_add_u32 s33, s33, {W_L}"); A("s_and_b32 s34, s32, 3"); A("s_lshl_b32 s34, s34, 6"); A("s_add_u32 s34, s34, s33")
    A(f"v_lshlrev_b32 {vr(vLa)}, 4, v2"); A(f"v_add_u32 {vr(vLa)}, s34, {vr(vLa)}")
    A("s_lshl2_add_u32 s34, s32, s33")
    A(f"v_lshlrev_b32 {vr(vLst)}, 7, v0"); A(f"v_add_u32 {vr(vLst)}, s34, {vr(vLst)}")
    A(f"s_add_u32 s33, s39, {W_O}")
    A("s_and_b32 s35, s32, 1"); A("s_bfe_u32 s36, s32, 0x10001")
    A("s_lshl1_add_u32 s34, s35, s36"); A("s_lshl2_add_u32 s34, s34, s30"); A("s_lshl_b32 s34, s34, 11"); A("s_add_u32 s34, s34, s33")
    A(f"v_add_u32 {vr(vOa)}, s34, v3")
    A("s_lshl2_add_u32 s60, s35, s30")
    A("s_lshl3_add_u32 s34, s60, s31"); A("s_lshl1_add_u32 s34, s34, s36"); A("s_mul_i32 s34, s34, 896")
    A("s_lshr_b32 s36, s32, 2"); A("s_min_u32 s36, s36, 6"); A("s_lshl_b32 s36, s36, 7")
    A("s_add_u32 s34, s34, s36"); A(f"s_add_u32 s34, s34, {W_B}")
    A(f"v_lshlrev_b32 {vr(vBst)}, 3, v1"); A(f"v_add_u32 {vr(vBst)}, s34, {vr(vBst)}")
    A("s_lshr_b32 s34, s32, 4"); A("s_lshl2_add_u32 s34, s34, s30"); A("s_lshl_b32 s34, s34, 12"); A("s_add_u32 s34, s34, s33")
    A("s_and_b32 s36, s32, 15"); A("s_lshl4_add_u32 s34, s36, s34")
    A(f"v_lshrrev_b32 {vr(vOst)}, 2, v0"); A(f"v_lshlrev_b32 {vr(vOst)}, 8, {vr(vOst)}"); A(f"v_and_b32 {vr(vT+4)}, 3, v0")
    A(f"v_lshl_add_u32 {vr(vOst)}, {vr(vT+4)}, 2, {vr(vOst)}"); A(f"v_add_u32 {vr(vOst)}, s34, {vr(vOst)}")
    A("s_lshl_b32 s34, s30, 8"); A(f"s_add_u32 s34, s34, {L_PP}")
    A(f"v_lshlrev_b32 {vr(vPPr)}, 4, v1"); A(f"v_add_u32 {vr(vPPr)}, s34, {vr(vPPr)}")
    A("s_lshl_b32 s34, s30, 9"); A(f"s_add_u32 s34, s34, {L_OP}")
    A(f"v_lshlrev_b32 {vr(vOPr)}, 3, v0"); A(f"v_add_u32 {vr(vOPr)}, s34, {vr(vOPr)}")
    A("s_lshl_b32 s34, s30, 10"); A(f"s_add_u32 s34, s34, {L_PP}")
    A(f"v_lshlrev_b32 {vr(vPPa)}, 2, v1"); A(f"v_lshl_add_u32 {vr(vPPa)}, v2, 8, {vr(vPPa)}"); A(f"v_add_u32 {vr(vPPa)}, s34, {vr(vPPa)}")
    for i in range(4): A(f"v_mov_b32 {vr(vG+i)}, 0")
    A(f"s_mov_b32 s37, {f32(1.0/64)}")
    A("s_mov_b32 s38, 0xffff0000")
    def qproj():
        A("s_cmp_eq_u32 s30, 0"); A("s_cbranch_scc0 L_nopub")
        A.c("T0: q projection, 64 columns x a quarter of the rows, all 8 batches; LayerNorm applied after the product")
        A("s_mov_b32 s34, 0x3f803f80")
        for i in range(56): A(f"v_mov_b32 {vr(vX+i)}, s34")
        A(f"v_and_b32 {vr(tT+1)}, 7, v1"); A(f"v_mul_u32_u24 {vr(tT+1)}, 896, {vr(tT+1)}"); A(f"v_add_u32 {vr(tT+1)}, {L_X}, {vr(tT+1)}")
        A(f"v_lshl_add_u32 {vr(tT)}, v2, 4, {vr(tT+1)}")
        A("s_mul_i32 s33, s48, 224"); A(f"v_lshl_add_u32 {vr(tT+1)}, v2, 3, {vr(tT+1)}"); A(f"v_add_u32 {vr(tT+1)}, s33, {vr(tT+1)}")
        A(f"v_lshrrev_b32 {vr(tT+2)}, 2, v0"); A(f"v_lshlrev_b32 {vr(tT+2)}, 7, {vr(tT+2)}"); A(f"v_and_or_b32 {vr(tT+2)}, v3, 48, {vr(tT+2)}")
        A(f"v_add_u32 {vr(tT+2)}, {L_WQ}, {vr(tT+2)}")
        A(f"v_bfe_u32 {vr(tT+3)}, v1, 2, 1"); A(f"v_lshl_add_u32 {vr(tT+3)}, {vr(tT+3)}, 4, v1"); A(f"v_lshlrev_b32 {vr(tT+3)}, 2, {vr(tT+3)}")
        A(f"v_lshlrev_b32 {vr(tT+4)}, 2, v1"); A(f"v_add_u32 {vr(tT+4)}, 128, {vr(tT+4)}")
        A(f"v_and_b32 {vr(tT+5)}, 3, v1")
        sm = ('', 's[6:7]', 's[8:9]', 's[14:15]')
        for i in range(1, 4): A(f"v_cmp_eq_u32 {sm[i]}, {i}, {vr(tT+5)}")
        D1 = vX + 16; D2 = tT + 8; wf = vW
        A("s_mov_b32 exec_lo, 0x00ff00ff"); A("s_mov_b32 exec_hi, 0x00ff00ff")
        A("s_waitcnt vmcnt(14)")
        for t in range(14): A(f"ds_read_b128 {vr(vX+4*t,4)}, {vr(tT)} offset:{64*t}")
        A("s_mov_b64 exec, -1")
        for t in range(14):
            A(f"s_waitcnt lgkmcnt({13-t})")
            c = "0" if t == 0 else vr(D2, 4)
            A(f"v_mfma_f32_16x16x32_bf16 {vr(D2,4)}, {vr(vX+4*t,4)}, {vr(vX+4*t,4)}, {c}")
        for i in range(1, 4): A(f"v_cndmask_b32 {vr(D2)}, {vr(D2)}, {vr(D2+i)}, {sm[i]}")
        A(f"ds_bpermute_b32 {vr(tT+6)}, {vr(tT+3)}, {vr(D2)}")
        A(f"ds_bpermute_b32 {vr(tT+7)}, {vr(tT+4)}, {vr(D2)}")
        A("s_mov_b32 exec_lo, 0x00ff00ff"); A("s_mov_b32 exec_hi, 0x00ff00ff")
        for t in range(7): A(f"ds_read_b64 {vr(vX+2*t,2)}, {vr(tT+1)} offset:{32*t}")
        A("s_mov_b64 exec, -1")
        A(f"s_mov_b32 s33, {f32(1.0/448)}")
        A("s_waitcnt lgkmcnt(0)")
        A(f"v_mul_f32 {vr(tT+7)}, s33, {vr(tT+7)}")
        A(f"v_mul_f32 {vr(tT+6)}, s33, {vr(tT+6)}")
        A(f"v_fma_f32 {vr(tT+6)}, -{vr(tT+7)}, {vr(tT+7)}, {vr(tT+6)}")
        A(f"v_max_f32 {vr(tT+6)}, 0, {vr(tT+6)}")
        A(f"v_add_f32 {vr(tT+6)}, {f32(1e-5)}, {vr(tT+6)}")
        A(f"v_rsq_f32 {vr(tT+6)}, {vr(tT+6)}")
        A("s_waitcnt vmcnt(0)")
        A("s_load_dword s46, s[26:27], s63")
        stamp(1)
        for np_ in range(2):
            for t in range(7):
                for e in range(2):
                    A(f"ds_read_b64_tr_b16 {vr(wf+4*t+2*e,2)}, {vr(tT+2)} offset:{2048*t + 64*np_ + 8*e}")
            for t in range(7):
                A(f"s_waitcnt lgkmcnt({12-2*t})")
                for e in range(2):
                    D = D1 + 8*np_ + 4*e
                    c = "0" if t == 0 else vr(D, 4)
                    A(f"v_mfma_f32_16x16x16_bf16 {vr(D,4)}, {vr(wf+4*t+2*e,2)}, {vr(vX+2*t,2)}, {c}")
        for i0 in (0, 8):
            for i in range(8):
                A(f"v_mul_f32_dpp {vr(D2+i)}, {vr(D1+i0+i)}, {vr(tT+7)} row_newbcast:8 row_mask:0xf bank_mask:0xf")
            for i in range(8):
                A(f"v_sub_f32 {vr(D2+i)}, {vr(D1+i0+i)}, {vr(D2+i)}")
                A(f"v_mul_f32 {vr(D2+i)}, {vr(D2+i)}, {vr(tT+6)}")
            for i in range(4):
                A(f"v_cvt_pk_bf16_f32 {vr(vQs+i0//2+i)}, {vr(D2+2*i)}, {vr(D2+2*i+1)}")
                A(f"v_min_u32 {vr(vQs+i0//2+i)}, -2, {vr(vQs+i0//2+i)}")
        publish_q()
    def conv():
        if c1_:
            for k in range(3):
                for i in range(4): A(f"v_mov_b32 {vr(raw+8*k+4+((i+3)&3))}, {vr(raw+8*k+i)}")
                for i in range(4): A(f"v_permlane32_swap_b32 {vr(raw+8*k+i)}, {vr(raw+8*k+4+((i+3)&3))}")
        for i in (2, 3): A(f"v_cndmask_b32 {vr(vXr+i)}, 0, {vr(vXr+i)}, s[42:43]")
        A(f"v_lshlrev_b32 {vr(vXr)}, 16, {vr(vXr+2)}"); A(f"v_and_b32 {vr(vXr+1)}, s38, {vr(vXr+2)}")
        A(f"v_lshlrev_b32 {vr(vXr+2)}, 16, {vr(vXr+3)}"); A(f"v_and_b32 {vr(vXr+3)}, s38, {vr(vXr+3)}")
        A(f"v_lshlrev_b32 {vr(vB2)}, 16, {vr(vB2)}")
    w, b, u, bb, c0, c1, c2, c3, ca, cc, hi = (vT + 1 + i for i in range(11))
    def tiles(t0, t1):
        if t0 >= t1: return
        A.c("gelu argument as a cubic in hn, and n = (w1*hn + b1)*w2, as split-bf16 MFMA operands")
        A(f"s_mov_b32 s33, {f32(BETA)}"); A(f"s_mov_b32 s34, {f32(3*BETA)}"); A(f"v_mov_b32 {vr(vT)}, {f32(ALPHA)}")
        A("v_cmp_lt_u32 vcc, 31, v0")
        for tile in range(t0, t1):
            for k, d in enumerate((w, b, u)):
                src = raw + 8*k + (tile >> 1)
                if tile & 1: A(f"v_and_b32 {vr(d)}, s38, {vr(src)}")
                else: A(f"v_lshlrev_b32 {vr(d)}, 16, {vr(src)}")
            A(f"v_mul_f32 {vr(bb)}, {vr(b)}, {vr(b)}")
            A(f"v_fma_f32 {vr(c0)}, {vr(bb)}, s33, {vr(vT)}"); A(f"v_mul_f32 {vr(c0)}, {vr(c0)}, {vr(b)}")
            A(f"v_fma_f32 {vr(c1)}, {vr(bb)}, s34, {vr(vT)}"); A(f"v_mul_f32 {vr(c1)}, {vr(c1)}, {vr(w)}")
            A(f"v_mul_f32 {vr(bb)}, {vr(w)}, {vr(w)}")
            A(f"v_mul_f32 {vr(c2)}, s34, {vr(bb)}"); A(f"v_mul_f32 {vr(c2)}, {vr(c2)}, {vr(b)}")
            A(f"v_mul_f32 {vr(c3)}, s33, {vr(bb)}"); A(f"v_mul_f32 {vr(c3)}, {vr(c3)}, {vr(w)}")
            A(f"v_mul_f32 {vr(ca)}, {vr(w)}, {vr(u)}"); A(f"v_mul_f32 {vr(cc)}, {vr(b)}, {vr(u)}")
            for k, cx in enumerate((c0, c1, c2, c3)): A(f"v_add_f32 {vr(vG+k)}, |{vr(cx)}|, {vr(vG+k)}")
            A(f"v_fma_f32 {vr(vG)}, |{vr(cc)}|, s37, {vr(vG)}"); A(f"v_fma_f32 {vr(vG+1)}, |{vr(ca)}|, s37, {vr(vG+1)}")
            for k, (lo_, hi_) in enumerate(((c1, c2), (c0, c2), (ca, c3), (cc, c3))):
                A(f"v_cndmask_b32 {vr(lo_)}, {vr(lo_)}, {vr(hi_)}, vcc")
                A(f"v_cvt_pk_bf16_f32 {vr(hi)}, {vr(lo_)}, {vr(lo_)}")
                A(f"v_and_b32 {vr(hi)}, s38, {vr(hi)}")
                A(f"v_sub_f32 {vr(lo_)}, {vr(lo_)}, {vr(hi)}")
                A(f"v_cvt_pk_bf16_f32 {vr(vC+4*tile+k)}, {vr(hi)}, {vr(lo_)}")
    def guard():
        A.c("largest |hn| for which the fused gelu path can neither overflow nor lose precision")
        A("s_mov_b32 s3, -1.0"); A(f"s_mov_b32 s34, {f32(100.0)}")
        for H in (3.0, 4.5, 6.0, 8.0, 12.0, 22.0):
            A(f"s_mov_b32 s33, {f32(H)}")
            A(f"v_fma_f32 {vr(vT+1)}, {vr(vG+3)}, s33, {vr(vG+2)}"); A(f"v_fma_f32 {vr(vT+1)}, {vr(vT+1)}, s33, {vr(vG+1)}")
            A(f"v_fma_f32 {vr(vT+1)}, {vr(vT+1)}, s33, {vr(vG)}")
            A(f"v_cmp_nge_f32 vcc, s34, {vr(vT+1)}")
            A("s_cmp_eq_u64 vcc, 0"); A("s_cselect_b32 s3, s33, s3")
        if force_fb: A("s_mov_b32 s3, -1.0")
    if cpos == "early":
        A("s_cmp_eq_u32 s30, 0"); A("s_cbranch_scc1 L_pw"); A("s_waitcnt vmcnt(0)"); A("L_pw:")
        A("s_waitcnt vmcnt(14)")
        conv(); tiles(0, QT); qproj(); tiles(QT, 14); guard()
    else:
        qproj()
    A("s_lshr_b32 s33, s32, 2"); A("s_lshl_b32 s33, s33, 12"); A("s_add_u32 s33, s33, s39")
    A(f"v_add_u32 {vr(vT)}, s33, v3"); A(f"v_add_u32 {vr(vT+1)}, {L_Q}, v3")
    A(f"v_and_b32 {vr(vT+20)}, 7, v0"); A(f"v_lshlrev_b32 {vr(vT+20)}, 2, {vr(vT+20)}"); A(f"v_mov_b32 {vr(vT+19)}, {L_STAT + 64}")
    stamp(4)
    if cpos == "pre1": prep_loads()
    A("s_barrier")
    if cpos == "mid": prep_loads()
    A("s_mov_b32 s35, 0")
    A("s_cmp_eq_u32 s30, 0")
    A("s_cbranch_scc0 L_b1b")
    A.c("T0: gather the four q partials, add, hand to the stream waves")
    qa = vX
    def qload():
        for k in range(4): A(f"global_load_dwordx4 {vr(qa+4*k,4)}, {vr(vT)}, s[28:29] offset:{1024*k} sc1")
        A("s_waitcnt vmcnt(0)")
    A("s_cmp_eq_u32 s49, 0"); A("s_cbranch_scc0 L_glob")
    A("L_qpoll:")
    qload()
    A(f"v_max3_u32 {vr(vT+2)}, {vr(qa)}, {vr(qa+1)}, {vr(qa+2)}")
    for i in range(3, 15, 2): A(f"v_max3_u32 {vr(vT+2)}, {vr(vT+2)}, {vr(qa+i)}, {vr(qa+i+1)}")
    A(f"v_max_u32 {vr(vT+2)}, {vr(vT+2)}, {vr(qa+15)}")
    A(f"v_cmp_eq_u32 vcc, -1, {vr(vT+2)}")
    A("s_cbranch_vccnz L_qretry")
    def ool_q():
        A("L_qretry:")
        A("s_add_u32 s35, s35, 1")
        A(f"s_cmp_ge_u32 s35, {SPIN}")
        A("s_cbranch_scc1 L_qdone")
        A("s_bitcmp1_b32 s35, 0"); A("s_cbranch_scc1 L_qpoll")
        A(f"v_mov_b32 {vr(vT+12)}, s63")
        A(f"global_load_dword {vr(vT+13)}, {vr(vT+12)}, s[26:27] offset:32 sc1")
        A("s_waitcnt vmcnt(0)")
        A(f"v_readfirstlane_b32 s46, {vr(vT+13)}")
        A("s_cmp_eq_u32 s46, 0")
        A("s_cbranch_scc1 L_qpoll")
        A("L_glob:")
        A.c("group spread over several XCDs: write-through hand-off in the second copy, ordered by a counter")
        A("s_mov_b32 s49, 1")
        for i in range(4): A(f"v_mov_b32 {vr(qa+i)}, -1")
        A("s_lshl_b32 s33, s32, 10"); A("s_add_u32 s33, s33, s39"); A(f"s_add_u32 s33, s33, {W_O + W_ALT}")
        A(f"v_add_u32 {vr(vT+12)}, s33, v3"); A(f"v_add_u32 {vr(vT+13)}, {W_ALT}, {vr(vLst)}"); A(f"v_add_u32 {vr(vT+14)}, {W_ALT}, {vr(vQa)}")
        A(f"v_add_u32 {vr(vT)}, {W_ALT}, {vr(vT)}"); A(f"v_mov_b32 {vr(vT+15)}, s63")
        A(f"global_store_dwordx4 {vr(vT+12)}, {vr(qa,4)}, s[28:29] sc1")
        A("s_mov_b64 exec, 3")
        A(f"global_store_dword {vr(vT+13)}, {vr(qa)}, s[28:29] sc1")
        A("s_mov_b32 exec_lo, 0x00ff00ff"); A("s_mov_b32 exec_hi, 0x00ff00ff")
        for k in range(2): A(f"global_store_dwordx4 {vr(vT+14)}, {vr(vQs+4*k,4)}, s[28:29] offset:{64*k} sc1")
        A("s_mov_b64 exec, -1")
        A("s_add_u32 s46, s63, 64"); A("s_mov_b32 s47, 1"); A("s_mov_b32 s35, 0")
        A("s_waitcnt vmcnt(0)")
        A("s_atomic_add s47, s[26:27], s46")
        A("L_gl:")
        A(f"global_load_dword {vr(vT+13)}, {vr(vT+15)}, s[26:27] offset:64 sc1")
        A("s_add_u32 s35, s35, 1")
        A("s_waitcnt vmcnt(0) lgkmcnt(0)")
        A(f"v_readfirstlane_b32 s46, {vr(vT+13)}")
        A(f"s_cmp_ge_u32 s35, {SPIN}"); A("s_cselect_b32 s46, 32, s46")
        A("s_cmp_lt_u32 s46, 32")
        A("s_cbranch_scc1 L_gl")
        qload()
        A("s_branch L_qdone")
    OOL.append(ool_q)
    A("L_qdone:")
    stamp(14)
    for k in range(4):
        for p in range(4):
            A(f"v_lshlrev_b32 {vr(vT+4+2*p)}, 16, {vr(qa+4*p+k)}"); A(f"v_and_b32 {vr(vT+5+2*p)}, s38, {vr(qa+4*p+k)}")
        A(f"v_pk_add_f32 {vr(vT+4,2)}, {vr(vT+4,2)}, {vr(vT+6,2)}"); A(f"v_pk_add_f32 {vr(vT+8,2)}, {vr(vT+8,2)}, {vr(vT+10,2)}")
        A(f"v_pk_add_f32 {vr(vT+4,2)}, {vr(vT+4,2)}, {vr(vT+8,2)}")
        A(f"v_cvt_pk_bf16_f32 {vr(qa+k)}, {vr(vT+4)}, {vr(vT+5)}")
    A(f"ds_write_b128 {vr(vT+1)}, {vr(qa,4)}")
    A(f"v_mov_b32 {vr(vT+2)}, s49")
    A(f"ds_write_b32 {vr(vT+19)}, {vr(vT+2)}")
    A("s_cmp_eq_u32 s32, 0"); A("s_cbranch_scc0 L_nof2")
    A.c("every member of this group has cleared its share of the out-projection slots")
    A("s_mov_b32 s33, 0x100000")
    A("s_waitcnt lgkmcnt(0)")
    A("s_barrier")
    A("s_atomic_add s33, s[26:27], s63")
    A("s_branch L_b1c")
    A("L_nof2:")
    A("s_waitcnt lgkmcnt(0)")
    A("L_b1b:")
    A("s_barrier")
    A("L_b1c:")
    A(f"ds_read_b32 {vr(vT+21)}, {vr(vT+19)}")
    if cpos != "early": A("s_waitcnt vmcnt(0) lgkmcnt(0)")
    if touch: A(f"global_load_dword {vr(vT+22)}, {vr(vOut)}, s[24:25]")
    if cpos != "early": conv(); tiles(0, N1)
    A(f"v_and_b32 {vr(vT)}, 1, v0"); A(f"v_lshlrev_b32 {vr(vT)}, 5, {vr(vT)}"); A(f"v_add_u32 {vr(vT)}, {L_STAT}, {vr(vT)}")
    A("s_barrier")
    A(f"ds_read_b128 {vr(vT+4,4)}, {vr(vT)}")
    A(f"ds_read_b128 {vr(vT+8,4)}, {vr(vT)} offset:16")
    A("s_waitcnt lgkmcnt(0)")
    stats(vT + 4, vT + 8, vT + 1, vT + 2)
    A(f"v_log_f32 {vr(vT+2)}, {vr(vT+2)}")
    A(f"v_add_f32 {vr(vLse)}, {vr(vT+1)}, {vr(vT+2)}")
    A(f"v_min_u32 {vr(vLse)}, -2, {vr(vLse)}")
    A(f"v_readfirstlane_b32 s62, {vr(vT+21)}")
    A("s_lshl_b32 s33, s62, 20")
    for r_ in (vLa, vLst, vOa, vOst): A(f"v_add_u32 {vr(r_)}, s33, {vr(r_)}")
    A("s_cmp_eq_u32 s30, 1"); A("s_cbranch_scc0 L_nolse")
    A("s_mov_b64 exec, 3")
    A("s_cmp_eq_u32 s62, 0"); A("s_cbranch_scc0 L_slowlse")
    A(f"global_store_dword {vr(vLst)}, {vr(vLse)}, s[28:29]")
    A("L_lsed:")
    A("s_mov_b64 exec, -1")
    A("L_nolse:")
    def ool_lse():
        A("L_slowlse:")
        A(f"global_store_dword {vr(vLst)}, {vr(vLse)}, s[28:29] sc1")
        A("s_branch L_lsed")
    OOL.append(ool_lse)
    if inst:
        A.c("bring this workgroup's share of the cleared hand-off lines into L2 ahead of the polls (values unused)")
        A("s_cmp_lt_u32 s30, 2"); A("s_cbranch_scc1 L_noinst")
        A("s_lshl_b32 s33, s32, 10"); A("s_add_u32 s33, s33, s39"); A(f"s_add_u32 s33, s33, {W_O}")
        A("s_mul_i32 s34, s31, 14336"); A("s_min_u32 s35, s32, 27"); A("s_lshl_b32 s35, s35, 9"); A("s_add_u32 s34, s34, s35"); A(f"s_add_u32 s34, s34, {W_B}")
        A("s_cmp_eq_u32 s30, 2")
        if inst == 1: A("s_cbranch_scc0 L_noinst")
        if inst == 2: A("s_cbranch_scc1 L_noinst")
        A("s_cselect_b32 s33, s34, s33")
        A(f"v_add_u32 {vr(vT+12)}, s33, v3")
        A("s_cselect_b32 exec_hi, 0, -1")
        A(f"global_load_dwordx4 {vr(vT+16,4)}, {vr(vT+12)}, s[28:29] sc1")
        A("s_mov_b64 exec, -1")
        A("L_noinst:")
    A("s_mov_b64 s[56:57], s[12:13]"); A("s_mov_b32 s58, 0x380000"); A("s_mov_b32 s59, 0x20000")
    wo_loads(0, NE, "a")
    if cpos != "early": tiles(N1, 14); guard()
    A("s_cmp_lt_u32 s32, 28"); A("s_cselect_b32 s44, 0xffff, 0")
    A("s_cmp_eq_u32 s60, s31"); A("s_cselect_b32 s45, s44, 0"); A("s_cmp_eq_u32 s62, 0"); A("s_cselect_b32 s45, s45, 0")
    if "s" in bx: A("s_mov_b32 s45, 0")
    A("s_andn2_b32 s44, s44, s45")
    bl = vX + 16
    for i in range(16): A(f"v_mov_b32 {vr(bl+i)}, 0")
    for nt in range(1, 4): A(f"v_xor_b32 {vr(vRaw+nt)}, {32*nt}, {vr(vWr)}")
    ls4 = vT + 4; ck = vT + 1
    def lse_load():
        A(f"global_load_dwordx4 {vr(ls4,4)}, {vr(vLa)}, s[28:29] sc1")
        A(f"global_load_dword {vr(vT+21)}, {vr(vT+20)}, s[26:27] sc1")
    A(f"s_mov_b32 s36, {f32(1.0 + 1e-5)}")
    A("s_brev_b32 s40, 1"); A("s_brev_b32 s41, 1")
    def weights():
        A(f"v_lshrrev_b32 {vr(ck)}, 20, {vr(vT+21)}"); A(f"v_add_u32 {vr(ck)}, -1, {vr(ck)}")
        A(f"v_max3_u32 {vr(ck)}, {vr(ck)}, {vr(ls4)}, {vr(ls4+1)}"); A(f"v_max3_u32 {vr(ck)}, {vr(ck)}, {vr(ls4+2)}, {vr(ls4+3)}")
        A(f"v_cmp_eq_u32 vcc, -1, {vr(ck)}")
        A(f"v_max3_f32 {vr(vT+2)}, {vr(ls4)}, {vr(ls4+1)}, {vr(ls4+2)}"); A(f"v_max_f32 {vr(vT+2)}, {vr(vT+2)}, {vr(ls4+3)}")
        for i in range(4): A(f"v_sub_f32 {vr(ls4+i)}, {vr(ls4+i)}, {vr(vT+2)}")
        for i in range(4): A(f"v_exp_f32 {vr(ls4+i)}, {vr(ls4+i)}")
        A(f"v_add_f32 {vr(vT+2)}, {vr(ls4)}, {vr(ls4+1)}"); A(f"v_add_f32 {vr(vT+3)}, {vr(ls4+2)}, {vr(ls4+3)}")
        A(f"v_add_f32 {vr(vT+2)}, {vr(vT+2)}, {vr(vT+3)}"); A(f"v_rcp_f32 {vr(vT+2)}, {vr(vT+2)}")
        for i in range(4): A(f"v_mul_f32 {vr(ls4+i)}, {vr(ls4+i)}, {vr(vT+2)}")
    A.c("split-combine weights; vcc != 0: some lse had not arrived yet, redo after publishing")
    if tal >= 0:
        A("s_branch L_tail"); A(".p2align 12")
        if tal: A(f".fill {tal // 4}, 4, 0xbf810000")
        A("L_tail:")
    stamp(2)
    A("s_barrier")
    lse_load()
    if not lw: A("s_cmp_ge_u32 s32, 28"); A("s_cbranch_scc0 L_wob"); A("s_waitcnt vmcnt(0)"); A("L_wob:")
    wo_loads(NE, 8 - NB, "b")
    A(f"s_mov_b32 s35, {-SPIN & 0xffffffff}")
    A("s_cmp_eq_u32 s62, 0")
    A("L_b3:")
    A("s_barrier")
    stamp(5)
    if "E" in skip: A("s_branch L_fin")
    A.c("reduce the four stream waves' o partials, publish as bf16")
    o = vX; ls4 = vT + 4; oa = vX + 32; Dc = vX + 40; ck = vT + 1
    for w_ in range(4): A(f"ds_read_b64 {vr(o+2*w_,2)}, {vr(vOPr)} offset:{2048*w_}")
    for w_ in range(1, 4):
        A(f"s_waitcnt lgkmcnt({3-w_})")
        A(f"v_pk_add_f32 {vr(o,2)}, {vr(o,2)}, {vr(o+2*w_,2)}")
    A(f"v_cvt_pk_bf16_f32 {vr(o)}, {vr(o)}, {vr(o+1)}")
    A(f"v_min_u32 {vr(o)}, -2, {vr(o)}")
    A("s_cbranch_scc0 L_slowpub")
    A(f"global_store_dword {vr(vOst)}, {vr(o)}, s[28:29]")
    A("L_pubd:")
    def ool_pub():
        A("L_slowpub:")
        A(f"global_store_dword {vr(vOst)}, {vr(o)}, s[28:29] sc1")
        A("s_branch L_pubd")
    OOL.append(ool_pub)
    stamp(6)
    A.c("out projection")
    def aset():
        for tt in range(2):
            A(f"global_load_dwordx4 {vr(oa+4*tt,4)}, {vr(vOa)}, s[28:29] offset:{1024*tt} sc1")
    if ap:
        wo_loads(8 - NB, 8, "c")
        seqv = [f"w{i}" for i in range(NE, 8 - NB)] + ["st"] + [f"w{i}" for i in range(8 - NB, 8)]
        def upto(i):
            live = [k for k, x in enumerate(seqv) if x[0] == "w" and int(x[1:]) <= i]
            if live: A(f"s_waitcnt vmcnt({len(seqv) - 1 - max(live)})")
        if lw: A("s_cmp_ge_u32 s32, 28"); A("s_cbranch_scc0 L_wob"); A("s_waitcnt vmcnt(0)"); A("L_wob:")
        A(f"s_waitcnt vmcnt({len(seqv)})")
        weights()
        upto(3)
        if ap == 1: aset(); seqv += ["a", "a"]
        wo_frags((0,))
        if ap >= 2: upto(3 + ap); aset(); seqv += ["a", "a"]
        upto(7); wo_frags((1,))
    else:
        aset()
        A(f"s_waitcnt vmcnt({3 + 8 - NE})")
        weights()
        if o1:
            A("s_waitcnt vmcnt(7)"); wo_frags((0,)); A("s_waitcnt vmcnt(3)"); wo_frags((1,))
        else:
            A("s_waitcnt vmcnt(3)"); wo_frags()
    A("s_cbranch_vccnz L_lretry")
    def ool_l():
        A("L_lretry:")
        lse_load()
        A("s_add_u32 s35, s35, 1")
        A("s_waitcnt vmcnt(0)")
        weights()
        A("s_cbranch_scc1 L_lok")
        A("s_cbranch_vccnz L_lretry")
        A("L_lok:")
        A(f"s_mov_b32 s35, {-SPIN & 0xffffffff}")
        A("s_branch L_apoll0")
    OOL.insert(0, ool_l)
    A("L_apoll0:")
    def achk():
        A(f"v_max3_u32 {vr(ck)}, {vr(oa)}, {vr(oa+1)}, {vr(oa+2)}"); A(f"v_max3_u32 {vr(ck)}, {vr(ck)}, {vr(oa+3)}, {vr(oa+4)}")
        A(f"v_max3_u32 {vr(ck)}, {vr(ck)}, {vr(oa+5)}, {vr(oa+6)}"); A(f"v_max_u32 {vr(ck)}, {vr(ck)}, {vr(oa+7)}")
    if True:
        A("s_waitcnt vmcnt(0)")
        achk()
        A(f"v_cmpx_eq_u32 vcc, -1, {vr(ck)}")
        A("s_cbranch_execz L_adone")
        for _ in range(DA - 1):
            aset()
            for _ in range(GA): A("s_nop 7")
    A("L_apoll:")
    aset()
    A("s_add_u32 s35, s35, 1"); A("s_cselect_b32 s47, -1, -2")
    A(f"s_waitcnt vmcnt({2*(DA-1)})")
    achk()
    A(f"v_cmpx_lt_u32 vcc, s47, {vr(ck)}")
    A("s_cbranch_execnz L_apoll")
    A("L_adone:")
    A("s_mov_b64 exec, -1")
    A("s_waitcnt lgkmcnt(6)" if o1 else "s_waitcnt lgkmcnt(0)")
    A(f"s_mov_b32 s35, {-SPIN & 0xffffffff}")
    stamp(7)
    pp = vT + 16
    def wsum(c):
        return [f"v_mul_f32 {vr(pp+c)}, {vr(Dc+4*c)}, {vr(ls4)}"] + [f"v_fmac_f32 {vr(pp+c)}, {vr(Dc+4*c+i)}, {vr(ls4+i)}" for i in range(1, 4)]
    ws = sum((wsum(c) for c in range(4)), [])
    for k in range(8):
        c, tt = k >> 1, k & 1
        cc_ = "0" if tt == 0 else vr(Dc+4*c, 4)
        A(f"v_mfma_f32_16x16x32_bf16 {vr(Dc+4*c,4)}, {vr(oa+4*tt,4)}, {vr(vW+16*tt+4*c,4)}, {cc_}")
        if o1 and k in (2, 4, 6): A(f"s_waitcnt lgkmcnt({6 - k})")
        if 1 <= k <= 3: A(f"s_nop {0 if (o1 and k == 2) else 1}")
        if k >= 4: A(ws.pop(0)); A(ws.pop(0))
    A(f"ds_write2_b32 {vr(vPPa)}, {vr(pp)}, {vr(pp+1)} offset0:0 offset1:16")
    for x in ws: A(x)
    A(f"ds_write2_b32 {vr(vPPa)}, {vr(pp+2)}, {vr(pp+3)} offset0:32 offset1:48")
    A("s_mov_b64 exec, 0xffff")
    A("s_waitcnt lgkmcnt(0)")
    stamp(8)
    A("s_barrier")
    pr = vX
    for w_ in range(4): A(f"ds_read_b128 {vr(pr+4*w_,4)}, {vr(vPPr)} offset:{1024*w_}")
    for w_ in range(1, 4):
        A(f"s_waitcnt lgkmcnt({3-w_})")
        for k in (0, 2): A(f"v_pk_add_f32 {vr(pr+k,2)}, {vr(pr+k,2)}, {vr(pr+4*w_+k,2)}")
    A(f"v_cvt_pk_bf16_f32 {vr(pr)}, {vr(pr)}, {vr(pr+1)}"); A(f"v_cvt_pk_bf16_f32 {vr(pr+1)}, {vr(pr+2)}, {vr(pr+3)}")
    A(f"v_min_u32 {vr(pr)}, -2, {vr(pr)}"); A(f"v_min_u32 {vr(pr+1)}, -2, {vr(pr+1)}")
    A("s_mov_b32 exec_lo, s44")
    A(f"global_store_dwordx2 {vr(vBst)}, {vr(pr,2)}, s[28:29] sc1")
    A("s_mov_b32 exec_lo, s45")
    A(f"global_store_dwordx2 {vr(vBst)}, {vr(pr,2)}, s[28:29]")
    A("s_mov_b64 exec, s[42:43]")
    stamp(9)
    if "a" in bx: A("s_waitcnt vmcnt(0)")
    if "b" in bx: A("s_barrier")
    if PB0: A(f"s_sleep {PB0}")
    def bset():
        for i in range(4):
            A(f"global_load_dwordx4 {vr(bl+4*i,4)}, {vr(vBa)}, s[28:29] offset:{896*i} sc1")
    def bchk():
        A(f"v_max3_u32 {vr(ck)}, {vr(bl)}, {vr(bl+1)}, {vr(bl+2)}")
        for i in range(3, 15, 2): A(f"v_max3_u32 {vr(ck)}, {vr(ck)}, {vr(bl+i)}, {vr(bl+i+1)}")
        A(f"v_max_u32 {vr(ck)}, {vr(ck)}, {vr(bl+15)}")
    if DB > 1:
        bset()
        A("s_waitcnt vmcnt(0)")
        bchk()
        A(f"v_cmpx_eq_u32 vcc, -1, {vr(ck)}")
        A("s_cbranch_execz L_bdone")
        for _ in range(DB - 1):
            bset()
            for _ in range(GB): A("s_nop 7")
    if o2:
        hh_ = vT + 12; s1 = vT + 8
        A("L_bpoll:")
        bset()
        A("s_add_u32 s35, s35, 1"); A("s_cselect_b32 s47, -1, -2")
        A("s_mov_b64 exec, -1")
        A.c("h = x + sum of the 16 partials (matrix core does the unpack and the adds); discarded while a partial is missing")
        for i in range(4):
            A(f"s_waitcnt vmcnt({3-i})")
            A(f"v_mfma_f32_16x16x32_bf16 {vr(hh_,4)}, {vr(vDl,4)}, {vr(bl+4*i,4)}, {vr(vXr if i == 0 else hh_,4)}")
            if i == 0:
                A(f"v_max3_u32 {vr(ck)}, {vr(bl)}, {vr(bl+1)}, {vr(bl+2)}"); A(f"v_max_u32 {vr(ck)}, {vr(ck)}, {vr(bl+3)}")
            else:
                A(f"v_max3_u32 {vr(ck)}, {vr(ck)}, {vr(bl+4*i)}, {vr(bl+4*i+1)}"); A(f"v_max3_u32 {vr(ck)}, {vr(ck)}, {vr(bl+4*i+2)}, {vr(bl+4*i+3)}")
        A(f"v_cmpx_lt_u32 vcc, s47, {vr(ck)}")
        A("s_cbranch_execnz L_bpoll")
        A("s_mov_b64 exec, -1")
        stamp(10)
        A(f"v_mov_b32 {vr(vT)}, {L_HS}")
    else:
        A("L_bpoll:")
        if PB: A(f"s_sleep {PB}")
        bset()
        A("s_add_u32 s35, s35, 1")
        A(f"s_waitcnt vmcnt({4*(DB-1)})")
        bchk()
        A("s_cbranch_scc1 L_bdone")
        A(f"v_cmpx_eq_u32 vcc, -1, {vr(ck)}")
        A("s_cbranch_execnz L_bpoll")
        A("L_bdone:")
        A("s_mov_b64 exec, -1")
        stamp(10)
        A.c("h = x + sum of the 16 partials (matrix core does the unpack and the adds)")
        hh_ = vXr; s1 = vT + 8
        A(f"v_mov_b32 {vr(vT)}, {L_HS}")
        for i in range(4): A(f"v_mfma_f32_16x16x32_bf16 {vr(hh_,4)}, {vr(vDl,4)}, {vr(bl+4*i,4)}, {vr(hh_,4)}")
    for k in (0, 2): A(f"v_pk_fma_f32 {vr(vT+4+k,2)}, {vr(hh_+k,2)}, {vr(vKs,2)}, {vr(vKs,2)} op_sel:[0,0,1] op_sel_hi:[1,0,1]")
    A(f"ds_write_b128 {vr(vHw)}, {vr(hh_,4)}")
    A(f"v_pk_mul_f32 {vr(s1,2)}, {vr(hh_,2)}, {vr(vT+4,2)}")
    A(f"v_pk_fma_f32 {vr(s1,2)}, {vr(hh_+2,2)}, {vr(vT+6,2)}, {vr(s1,2)}")
    A(f"v_add_f32 {vr(s1)}, {vr(s1)}, {vr(s1+1)}")
    for sh in (8, 4, 2, 1):
        A(f"v_add_f32_dpp {vr(s1)}, {vr(s1)}, {vr(s1)} row_ror:{sh} row_mask:0xf bank_mask:0xf")
    A(f"v_add_f32_dpp {vr(s1)}, {vr(s1)}, {vr(s1)} row_bcast:15 row_mask:0xa bank_mask:0xf")
    A("s_mov_b64 exec, s[40:41]")
    A(f"ds_write_b32 {vr(vHsw)}, {vr(s1)}")
    A("s_mov_b64 exec, -1")
    A("s_waitcnt lgkmcnt(0)")
    A("s_barrier")
    A.c("LayerNorm(LayerNorm(h)) = (h - mu) * rsqrt(var*(1+eps) + eps^2), then the token MLP")
    h8 = vT + 4; hv = vT + 1
    A(f"ds_read_b128 {vr(h8,4)}, {vr(vT)}")
    A(f"ds_read_b128 {vr(h8+4,4)}, {vr(vT)} offset:16")
    A(f"ds_read_b32 {vr(hv)}, {vr(vHa)}")
    A(f"ds_read_b64 {vr(vHf,2)}, {vr(vHf)}")
    mu = vT + 2; rs = vT + 3
    A(f"v_mov_b32 {vr(vT+12)}, {f32(1e-10)}")
    A("s_waitcnt lgkmcnt(2)")
    A(f"v_pk_add_f32 {vr(h8,2)}, {vr(h8,2)}, {vr(h8+2,2)}")
    A(f"v_pk_add_f32 {vr(h8+4,2)}, {vr(h8+4,2)}, {vr(h8+6,2)}")
    A(f"v_pk_add_f32 {vr(mu,2)}, {vr(h8,2)}, {vr(h8+4,2)}")
    A(f"v_fma_f32 {vr(rs)}, -{vr(mu)}, {vr(mu)}, {vr(rs)}")
    A(f"v_fma_f32 {vr(rs)}, |{vr(rs)}|, s36, {vr(vT+12)}")
    A(f"v_rsq_f32 {vr(rs)}, {vr(rs)}")
    A("s_waitcnt lgkmcnt(1) vmcnt(0)")
    A(f"v_sub_f32 {vr(hv)}, {vr(hv)}, {vr(mu)}")
    A(f"v_mul_f32 {vr(hv)}, {vr(hv)}, {vr(rs)}")
    A(f"v_cvt_pk_bf16_f32 {vr(hv)}, {vr(hv)}, {vr(hv)}")
    A(f"v_and_b32 {vr(hv)}, s38, {vr(hv)}")
    X_ = vT + 4; Y = vT + 5; t1 = vT + 6; t2 = vT + 7; Am = vT + 8
    A(f"v_fma_f32 {vr(X_)}, {vr(hv)}, {vr(vK1)}, {vr(vK1+1)}"); A(f"v_mul_f32 {vr(X_)}, {vr(X_)}, {vr(hv)}")
    A(f"v_fma_f32 {vr(Y)}, {vr(X_)}, {vr(vK1)}, {vr(vK1+2)}")
    A(f"v_cvt_pk_bf16_f32 {vr(Am)}, {vr(X_)}, {vr(X_)}")
    A(f"v_mul_f32 {vr(Y)}, {vr(Y)}, {vr(hv)}")
    A(f"v_and_b32 {vr(t1)}, s38, {vr(Am)}")
    A(f"v_cvt_pk_bf16_f32 {vr(Am+2)}, {vr(Y)}, {vr(Y)}")
    A(f"v_sub_f32 {vr(X_)}, {vr(X_)}, {vr(t1)}")
    A(f"v_and_b32 {vr(t2)}, s38, {vr(Am+2)}")
    A(f"v_cvt_pk_bf16_f32 {vr(Am+1)}, {vr(X_)}, {vr(X_)}")
    A(f"v_sub_f32 {vr(Y)}, {vr(Y)}, {vr(t2)}")
    A(f"v_or_b32 {vr(Am+1)}, {vr(Am+1)}, {vr(vK1+3)}")
    A(f"v_cvt_pk_bf16_f32 {vr(Am+3)}, {vr(Y)}, {vr(Y)}")
    A(f"v_or_b32 {vr(Am+3)}, {vr(Am+3)}, {vr(vK1+4)}")
    A(f"v_cmp_nge_f32 vcc, s3, |{vr(hv)}|")
    stamp(11)
    Db = [vX, vX + 16, vX + 32]; acc = vT + 12; Dd = vRaw; Nn = vRaw + 8
    def mm(tile):
        A(f"v_mfma_f32_32x32x16_bf16 {vr(Db[tile%3],16)}, {vr(Am,4)}, {vr(vC+4*tile,4)}, 0")
    mm(0)
    A("s_waitcnt lgkmcnt(0)")
    A(f"v_add_f32 {vr(vHf)}, {vr(vHf)}, {vr(vB2)}"); A(f"v_add_f32 {vr(vHf+1)}, {vr(vHf+1)}, {vr(vB2)}")
    A(f"v_lshlrev_b32 {vr(vT)}, 3, v1"); A(f"v_add_u32 {vr(vT)}, {L_Y}, {vr(vT)}")
    if wb:
        A("s_cmp_eq_u32 s30, 0"); A("s_cselect_b32 s33, s32, 0"); A(f"s_cmp_ge_u32 s33, {32 - wb}"); A("s_cbranch_scc0 L_nowb"); A("buffer_wbl2 sc1"); A("L_nowb:")
    A("s_cbranch_vccnz L_fb")
    A.c("sum_f n_f / (1 + e_f) kept as one fraction N / D")
    if o3:
        def chain(k, D, Np, first):
            if first: return [f"v_pk_add_f32 {vr(Dd+k,2)}, {vr(D+k,2)}, 1.0 op_sel_hi:[1,0]"]
            return [f"v_pk_fma_f32 {vr(D+8+k,2)}, {vr(D+8+k,2)}, {vr(Dd+k,2)}, {vr(Np+k,2)}",
                    f"v_pk_fma_f32 {vr(Dd+k,2)}, {vr(Dd+k,2)}, {vr(D+k,2)}, {vr(Dd+k,2)}",
                    f"v_pk_fma_f32 {vr(Nn+k,2)}, {vr(Np+k,2)}, {vr(D+k,2)}, {vr(D+8+k,2)}"]
        for tile in range(14):
            D = Db[tile % 3]; P = Db[(tile - 1) % 3]
            if tile + 1 < 14: mm(tile + 1)
            odd = tile & 1
            if odd:
                if tile == 1: A(f"v_mov_b32 {vr(Nn+6)}, {vr(P+14)}"); A(f"v_mov_b32 {vr(Nn+7)}, {vr(D+14)}")
                else: A(f"v_mov_b32 {vr(P+15)}, {vr(D+14)}")
            for i in range(6): A(f"v_exp_f32 {vr(D+i)}, {vr(D+i)}")
            A(f"v_exp_f32 {vr(P+7 if odd else D+6)}, {vr(D+6)}")
            ch = [chain(k, D, Db[0] + 8 if tile == 1 else Nn, tile == 0) for k in (0, 2, 4)]
            if odd: ch.append(chain(6, P, Nn, tile == 1))
            for st in range(3):
                for c_ in ch:
                    if len(c_) == 3: A(c_[st])
                    elif st == (0 if tile == 0 else 1): A(c_[0])
        for i in (6, 7, 0, 1, 2, 3, 4, 5): A(f"v_rcp_f32 {vr(Dd+i)}, {vr(Dd+i)}")
        A(f"v_mul_f32 {vr(acc+6)}, {vr(Nn+6)}, {vr(Dd+6)}"); A(f"v_fmac_f32 {vr(acc+6)}, {vr(Nn+7)}, {vr(Dd+7)}")
        for k in (0, 2, 4): A(f"v_pk_mul_f32 {vr(acc+k,2)}, {vr(Nn+k,2)}, {vr(Dd+k,2)}")
    else:
        for tile in range(14):
            D = Db[tile % 3]
            if tile + 1 < 14: mm(tile + 1)
            for i in range(7): A(f"v_exp_f32 {vr(D+i)}, {vr(D+i)}")
            if tile == 0:
                for k in range(0, 8, 2): A(f"v_pk_add_f32 {vr(Dd+k,2)}, {vr(D+k,2)}, 1.0 op_sel_hi:[1,0]")
                continue
            Np = Db[0] + 8 if tile == 1 else Nn
            for k in range(0, 8, 2): A(f"v_pk_fma_f32 {vr(D+8+k,2)}, {vr(D+8+k,2)}, {vr(Dd+k,2)}, {vr(Np+k,2)}")
            for k in range(0, 8, 2): A(f"v_pk_fma_f32 {vr(Dd+k,2)}, {vr(Dd+k,2)}, {vr(D+k,2)}, {vr(Dd+k,2)}")
            for k in range(0, 8, 2): A(f"v_pk_fma_f32 {vr(Nn+k,2)}, {vr(Np+k,2)}, {vr(D+k,2)}, {vr(D+8+k,2)}")
        for i in range(7): A(f"v_rcp_f32 {vr(Dd+i)}, {vr(Dd+i)}")
        for k in range(0, 8, 2): A(f"v_pk_mul_f32 {vr(acc+k,2)}, {vr(Nn+k,2)}, {vr(Dd+k,2)}")
    A("L_fbd:")
    A("s_cmp_eq_u32 s30, 1")
    def ool_fb():
        A("L_fb:")
        A.c("direct evaluation (large activations or weights)")
        hh = vRaw; fa = vRaw + 8; w_ = vRaw + 9; b_ = vRaw + 10; u_ = vRaw + 11; x_ = vRaw + 12; p_ = vRaw + 13; al = vRaw + 14
        A(f"v_lshrrev_b32 {vr(fa)}, 5, v0"); A(f"v_mul_u32_u24 {vr(fa)}, 28, {vr(fa)}")
        A("s_mul_i32 s33, s32, 56"); A(f"s_add_u32 s33, s33, {L_H}"); A(f"v_add_u32 {vr(fa)}, s33, {vr(fa)}")
        for i in range(7): A(f"ds_read_b32 {vr(hh+i)}, {vr(fa)} offset:{4*i}")
        A(f"v_and_b32 {vr(fa)}, 31, v0"); A(f"v_lshlrev_b32 {vr(fa)}, 1, {vr(fa)}")
        A("s_mul_i32 s33, s30, 896"); A(f"v_add_u32 {vr(fa)}, s33, {vr(fa)}")
        A(f"s_mov_b32 s33, {f32(BETA)}"); A(f"v_mov_b32 {vr(al)}, {f32(ALPHA)}")
        for i in range(8): A(f"v_mov_b32 {vr(acc+i)}, 0")
        A("s_waitcnt lgkmcnt(0)")
        for i in range(7):
            A(f"v_sub_f32 {vr(hh+i)}, {vr(hh+i)}, {vr(mu)}"); A(f"v_mul_f32 {vr(hh+i)}, {vr(hh+i)}, {vr(rs)}")
            A(f"v_cvt_pk_bf16_f32 {vr(hh+i)}, {vr(hh+i)}, {vr(hh+i)}"); A(f"v_and_b32 {vr(hh+i)}, s38, {vr(hh+i)}")
        A("s_mov_b32 s34, 0")
        A("L_fbl:")
        A(f"global_load_ushort {vr(w_)}, {vr(fa)}, s[16:17]"); A(f"global_load_ushort {vr(b_)}, {vr(fa)}, s[18:19]"); A(f"global_load_ushort {vr(u_)}, {vr(fa)}, s[20:21]")
        A(f"v_add_u32 {vr(fa)}, 64, {vr(fa)}")
        A("s_waitcnt vmcnt(0)")
        for r_ in (w_, b_, u_): A(f"v_lshlrev_b32 {vr(r_)}, 16, {vr(r_)}")
        for i in range(7):
            A(f"v_fma_f32 {vr(x_)}, {vr(w_)}, {vr(hh+i)}, {vr(b_)}")
            A(f"v_mul_f32 {vr(p_)}, {vr(x_)}, {vr(x_)}"); A(f"v_fma_f32 {vr(p_)}, {vr(p_)}, s33, {vr(al)}"); A(f"v_mul_f32 {vr(p_)}, {vr(p_)}, {vr(x_)}")
            A(f"v_exp_f32 {vr(p_)}, {vr(p_)}"); A(f"v_add_f32 {vr(p_)}, 1.0, {vr(p_)}"); A(f"v_rcp_f32 {vr(p_)}, {vr(p_)}")
            A(f"v_mul_f32 {vr(x_)}, {vr(x_)}, {vr(p_)}"); A(f"v_fmac_f32 {vr(acc+i)}, {vr(x_)}, {vr(u_)}")
        A("s_add_u32 s34, s34, 1"); A("s_cmp_lt_u32 s34, 14"); A("s_cbranch_scc1 L_fbl")
        A("s_branch L_fbd")
    OOL.append(ool_fb)
    stamp(12)
    for k in range(4): A(f"v_add_f32_dpp {vr(acc+2*k)}, {vr(acc+2*k)}, {vr(acc+2*k)} row_ror:8 row_mask:0xf bank_mask:0x3")
    for k in range(3): A(f"v_add_f32_dpp {vr(acc+2*k)}, {vr(acc+2*k+1)}, {vr(acc+2*k+1)} row_ror:8 row_mask:0xf bank_mask:0xc")
    for k in range(2): A(f"v_add_f32_dpp {vr(acc+4*k)}, {vr(acc+4*k)}, {vr(acc+4*k)} row_shl:4 row_mask:0xf bank_mask:0x5")
    for k in range(2): A(f"v_add_f32_dpp {vr(acc+4*k)}, {vr(acc+4*k+2)}, {vr(acc+4*k+2)} row_shr:4 row_mask:0xf bank_mask:0xa")
    A(f"v_permlane16_swap_b32 {vr(acc)}, {vr(acc+4)}")
    A(f"v_add_f32 {vr(acc)}, {vr(acc)}, {vr(acc+4)}")
    A(f"v_add_f32_dpp {vr(acc)}, {vr(acc)}, {vr(acc)} quad_perm:[1,0,3,2] row_mask:0xf bank_mask:0xf")
    A(f"v_add_f32_dpp {vr(acc)}, {vr(acc)}, {vr(acc)} quad_perm:[2,3,0,1] row_mask:0xf bank_mask:0xf")
    A(f"ds_write_b32 {vr(vYa)}, {vr(acc)}")
    A("s_mov_b64 exec, 0x7f")
    A("s_waitcnt lgkmcnt(0)")
    A("s_barrier")
    A("s_cbranch_scc0 L_fin")
    A(f"ds_read2_b64 {vr(vT+4,4)}, {vr(vT)} offset0:0 offset1:8")
    A(f"ds_read2_b64 {vr(vT+8,4)}, {vr(vT)} offset0:16 offset1:24")
    A("s_waitcnt lgkmcnt(1)")
    A(f"v_pk_add_f32 {vr(vHf,2)}, {vr(vHf,2)}, {vr(vT+4,2)}"); A(f"v_pk_add_f32 {vr(vHf,2)}, {vr(vHf,2)}, {vr(vT+6,2)}")
    A("s_waitcnt lgkmcnt(0)")
    A(f"v_pk_add_f32 {vr(vHf,2)}, {vr(vHf,2)}, {vr(vT+8,2)}"); A(f"v_pk_add_f32 {vr(vHf,2)}, {vr(vHf,2)}, {vr(vT+10,2)}")
    A(f"v_cvt_pk_bf16_f32 {vr(vT+2)}, {vr(vHf)}, {vr(vHf+1)}")
    A(f"global_store_dword {vr(vOut)}, {vr(vT+2)}, s[24:25] {outpol}")
    A("L_fin:")
    stamp(13)
    if amp:
        A(f"s_cmp_eq_u32 s30, {amp[0]}"); A("s_cbranch_scc0 L_end")
        A("s_waitcnt lgkmcnt(0)")
        A(f"s_sub_u32 s33, s{64+2*amp[1]}, s{64+2*amp[2]}")
        if amp[3] < 0: A("s_sub_u32 s33, 3000, s33")
        A("s_min_u32 s33, s33, 5000"); A("s_lshl_b32 s33, s33, 3"); A("s_add_u32 s33, s33, 4000")
        A("L_amp:")
        A("s_memrealtime s[34:35]"); A("s_waitcnt lgkmcnt(0)"); A("s_sub_u32 s34, s34, s64")
        A("s_cmp_lt_u32 s34, s33"); A("s_cbranch_scc1 L_amp")
    if rnd:
        A("s_cmp_eq_u32 s30, 0"); A("s_cselect_b32 s33, s2, 1"); A("s_cmp_eq_u32 s33, 0"); A("s_cbranch_scc0 L_end")
        A("s_memrealtime s[64:65]"); A("s_waitcnt lgkmcnt(0)")
        A("s_lshr_b32 s33, s64, 2"); A("s_mul_i32 s33, s33, 0x9e3779b1"); A("s_lshr_b32 s34, s33, 15"); A("s_xor_b32 s33, s33, s34"); A("s_mul_i32 s33, s33, 0x85ebca6b")
        A("s_lshr_b32 s33, s33, 19")
        A("L_rnd:")
        A("s_memrealtime s[34:35]"); A("s_waitcnt lgkmcnt(0)"); A("s_sub_u32 s34, s34, s64")
        A("s_cmp_lt_u32 s34, s33"); A("s_cbranch_scc1 L_rnd")
    dump_stamps(15)
    A("L_end:")
    A("s_endpgm")
    for f in OOL: f()
    A(".fill 1024, 4, 0xbf810000")

    body, nn = fix_hazards(A.L)
    head = [l.rstrip("\n") for l in open("header.txt")]
    head.append(f"; @launch grid=(256,1,1) block=(512,1,1) lds={L_END}")
    head += ['.amdgcn_target "amdgcn-amd-amdhsa--gfx950"', ".text"] + ([".p2align 12"] if al else []) + ([f".fill {pad // 4}, 4, 0xbf810000"] if pad else []) + [f".globl {NAME}", ".p2align 8", f".type {NAME},@function"]
    tail = ['.section .rodata,"a"', ".p2align 6", f".amdhsa_kernel {NAME}",
            "  .amdhsa_next_free_vgpr 256", "  .amdhsa_next_free_sgpr 96", "  .amdhsa_accum_offset 256",
            "  .amdhsa_group_segment_fixed_size 0", "  .amdhsa_kernarg_size 104", "  .amdhsa_user_sgpr_count 2",
            "  .amdhsa_user_sgpr_kernarg_segment_ptr 1", "  .amdhsa_system_sgpr_workgroup_id_x 1",
            "  .amdhsa_float_denorm_mode_32 3", ".end_amdhsa_kernel"]
    return "\n".join(head + body + tail) + "\n"

if __name__ == "__main__":
    kw = eval("dict(" + (sys.argv[2] if len(sys.argv) > 2 else "") + ")")
    open(sys.argv[1], "w").write(gen(**kw))
```

```python
import sys, struct, math
from asmlib import *

NAME = "sequential_preLN__sliding_block_cached__mixer_token_mlp__decode_kernel"
def f32(x): return "0x%08x" % struct.unpack("<I", struct.pack("<f", x))[0]

L_K = 0; L_WQ = 131072; L_Q = 145408; L_STAT = 146432; L_OP = 146688; L_PP = 154880; L_H = 158976; L_HS = 161024; L_Y = 161088
L_END = 161344
L_X = L_OP
W_Q = 0
W_L = 0xA0000
W_O = 0x40000
W_B = 0x80000
W_ALT = 0x100000
W_STAMP = 0x200000
SPIN = 0x20000
STAMP_VIEW = [("S", slice(4, 8), [0, 8, 6, 7, 1, 2, 3, 4, 5]), ("T0", 0, [0, 1, 3, 4, 14]), ("T3L", 3, [0, 1, 4], slice(224, 256)),
              ("T1", 1, [0, 4, 2, 5, 6, 7, 8, 9, 10, 11, 12, 13]), ("Tall", slice(0, 4), [5, 6, 7, 8, 9, 10, 11, 12, 13])]
ALPHA = -2.0 * math.sqrt(2.0 / math.pi) * math.log2(math.e)
BETA = ALPHA * 0.044715

def gen(W=8, QPOS=4, QD=2, FT=-1, stamps=False, force_slow=False, pol="nt", vpol=None, qpol="nt", opol="nt", opol2="nt", spol="", skip="",
        pref=True, opos="mid", qx=16, force_fb=False, touch=False, amp=None, DA=1, DB=1, rotm=1, PB=0, NL=1, EP=0, inst=0, spf=2, WE=0, WEN=64, WE0=8, WEM=0x55, NLD=4, LD0=8, qpace=0, prio=0, QT=0, GA=0, GB=0, cpos="early", N1=8, c1=True, NE=0, o1=True, o2=True, o3=True, ap=2, NB=0, pos='r1 j1 r3 j0 s0 r2 s1 t0 t1', rot='r3=c', wb=1, wbs=0, ks=0, b0=0, b0n=0, rnd=0, gamp=None, wq1=0, wbr=31, lw=True, pad=0, al=1, tal=0, warm=0, outpol='', hack="", bx="ab", PB0=0):
    A = Asm()
    c1_ = c1
    OOL = []
    def stamp(i):
        if stamps or (amp and i in (amp[1], amp[2], 0)) or (gamp and i in (gamp[0], gamp[1], 0)): A(f"s_memrealtime s[{64+2*i}:{65+2*i}]")
    def dump_stamps(nst):
        if not stamps: return
        A("s_waitcnt lgkmcnt(0) vmcnt(0)")
        A("s_lshl_b32 s94, s2, 3"); A("s_add_u32 s94, s94, s30"); A("s_lshl_b32 s94, s94, 6"); A(f"s_add_u32 s94, s94, {W_STAMP}")
        A("s_mov_b64 exec, 1")
        A("v_mov_b32 v4, s94")
        for i in range(nst):
            A(f"v_mov_b32 v5, s{64+2*i}")
            A(f"global_store_dword v4, v5, s[28:29] offset:{4*i}")
        A("s_getreg_b32 s94, hwreg(HW_REG_XCC_ID, 0, 4)"); A("v_mov_b32 v5, s94")
        A("global_store_dword v4, v5, s[28:29] offset:60")
        A("s_waitcnt vmcnt(0)")

    A(f"{NAME}:")
    stamp(0)
    A("s_load_dwordx16 s[4:19], s[0:1], 0" if ks != 2 else "s_load_dwordx8 s[4:11], s[0:1], 0")
    if not ks or stamps:
        A("s_load_dwordx8 s[20:27], s[0:1], 64")
        A("s_load_dwordx2 s[28:29], s[0:1], 96")
    A("v_lshrrev_b32 v1, 6, v0")
    A("s_lshr_b32 s32, s2, 3")
    A("v_readfirstlane_b32 s30, v1")
    A("s_cmp_ge_u32 s32, 32")
    A("s_cbranch_scc1 L_end")
    A("v_and_b32 v0, 63, v0")
    A("s_and_b32 s31, s2, 7")
    A("v_lshlrev_b32 v3, 4, v0")
    A("s_cmp_lt_u32 s30, 4")
    A("s_cbranch_scc1 L_T")

    A.c("================ stream waves")
    V = Alloc(4, 256)
    vK = V(8); vVo = V(8); vKA = V(4); vM = V(4); vT = V(8); vOPa = V(2); vQA = V(); vSTw = V(); vSTr = V()
    vS = V(16); vAcc = vK; vQ = V(32); vKF = V(32); vVv = V(128)
    vA = vQ
    assert vKF == vQ + 32
    P = {nm: 10 + k for k, nm in enumerate(pos.split())}
    SRC = dict(a=("s2", 3), b=("s2", 4), c=("s2", 5), d=("s2", 6), e=("s2", 7), x=("s2", 0), y=("s2", 1), z=("s2", 2), p=("s30", 0), q=("s30", 1))
    R = {k: v for k, v in (x.split("=") for x in rot.split())}
    def gaddr(i): return sum(((i >> k) & 1) << P[f"r{k+1}"] for k in range(3))
    def X(i): return ((8*(i & 1) + (i >> 1)) << 4) | gaddr(i)
    def parity(dst, key):
        for n_, ch in enumerate(R[key]):
            reg, bit = SRC[ch]
            if n_ == 0: A(f"s_bfe_u32 {dst}, {reg}, {hex(0x10000 | bit)}")
            else: A(f"s_bfe_u32 s39, {reg}, {hex(0x10000 | bit)}"); A(f"s_xor_b32 {dst}, {dst}, s39")
    A("s_lshr_b32 s34, s2, 5"); A("s_lshl3_add_u32 s34, s34, s31"); A("s_lshl2_add_u32 s34, s34, 3"); A("s_lshl_b32 s40, s34, 19")
    def field(reg, bit, n0, n1):
        if P[n1] == P[n0] + 1:
            A(f"s_bfe_u32 s35, {reg}, {hex(0x20000 | bit)}"); A(f"s_lshl_b32 s35, s35, {P[n0]}"); A("s_or_b32 s40, s40, s35")
        else:
            for k, nm in enumerate((n0, n1)):
                A(f"s_bitcmp1_b32 {reg}, {bit + k}"); A(f"s_cselect_b32 s35, {1 << P[nm]}, 0"); A("s_or_b32 s40, s40, s35")
    field("s2", 3, "s0", "s1"); field("s30", 0, "j0", "j1")
    for nm in ("t0", "t1"):
        if nm in R: parity("s35", nm); A(f"s_lshl_b32 s35, s35, {P[nm]}"); A("s_or_b32 s40, s40, s35")
    tlx = [((tl & 1) << P["t0"]) | ((tl >> 1) << P["t1"]) for tl in range(4)]
    A("s_sub_u32 s33, s30, 4")
    A("s_lshl_b32 s37, s33, 15")
    A("s_mov_b32 s44, s37"); A("s_mov_b32 s38, 0"); A("s_mov_b32 s60, 0")
    for k in range(3):
        if f"r{k+1}" in R:
            parity("s35", f"r{k+1}")
            A(f"s_mul_i32 s36, s35, {X(1 << k)}"); A("s_or_b32 s38, s38, s36")
            A(f"s_lshl_b32 s36, s35, {10 + k}"); A("s_or_b32 s44, s44, s36")
            if k: A(f"s_lshl{k-1}_add_u32 s60, s35, s60" if k > 1 else "s_add_u32 s60, s35, s60")
    A(f"v_and_b32 {vr(vT)}, 32, v0"); A(f"v_lshlrev_b32 {vr(vT)}, 1, {vr(vT)}")
    A(f"v_xor_b32 {vr(vT)}, {vr(vT)}, v3")
    A(f"v_xor_b32 {vr(vK)}, s38, {vr(vT)}")
    if prio == 2: A("s_setprio 3")
    A("s_brev_b32 s54, 16"); A("s_mov_b32 s55, 0x20000")
    A("s_mov_b32 m0, s44")
    A("s_waitcnt lgkmcnt(0)")
    A("s_mov_b64 s[52:53], s[6:7]")
    stamp(8)
    issued = [0]
    def throttle():
        if WE and WE0 <= issued[0] < WE0 + WEN:
            A(f"s_cbranch_vccz L_th{issued[0]}"); A(f"s_waitcnt vmcnt({abs(WE)-1})"); A(f"L_th{issued[0]}:")
        if issued[0] >= W: A(f"s_waitcnt vmcnt({W-1})")
        issued[0] += 1
    def kload(tl, i):
        if tl or i: A(f"s_xor_b32 m0, s44, {(tl << 13) | (i << 10)}")
        if tl == 0 and i: A(f"v_xor_b32 {vr(vK+i)}, {X(i)}, {vr(vK)}")
        throttle()
        A(f"buffer_load_dwordx4 {vr(vK+i)}, s[52:55], s{40+tl} offen {pol} lds")
    for i in range(8):
        if b0 and i == b0n: A("s_barrier")
        kload(0, i)
    A("s_branch L_S2")

    A("L_T:")
    A.c("================ tail waves")
    if ks == 2: A("s_load_dwordx8 s[12:19], s[0:1], 32")
    if ks and not stamps:
        A("s_load_dwordx8 s[20:27], s[0:1], 64")
        A("s_load_dwordx2 s[28:29], s[0:1], 96")
    V = Alloc(4, 256)
    vC = V(56); vW = V(32); vRaw = V(32); vX = V(56); tT = V(24)
    vXr = V(4); vDl = V(4); vQs = V(8); vG = V(4); vK1 = V(5); vHa = V(); vKs = V(2); vHf = V(2)
    vYa = V(); vLa = V(); vOa = V(); vPPa = V(); vBst = V(); vOst = V(); vLst = V(); vLse = V()
    vBa = V(); vHw = V(); vHsw = V(); vOut = V(); vB2 = V(); vQa = V(); vOPr = V(); vPPr = V(); vWa = V(2); vQw = V(); vWr = V()
    assert vRaw == vW + 32
    raw = vRaw if cpos == "early" else vX + 32
    def prep_loads():
        t = tT + 14
        A.c("MLP weights, residual row piece, b2")
        if c1_:
            A("s_mul_i32 s33, s30, 896")
            A(f"v_mul_u32_u24 {vr(t)}, 12, v0"); A(f"v_add_u32 {vr(t)}, {508 - 384}, {vr(t)}")
            A("v_cmp_lt_u32 vcc, 31, v0"); A(f"v_cndmask_b32 {vr(t)}, v3, {vr(t)}, vcc"); A(f"v_add_u32 {vr(t)}, s33, {vr(t)}")
            for k, sp in enumerate((16, 18, 20)):
                A(f"global_load_dwordx4 {vr(raw+8*k,4)}, {vr(t)}, s[{sp}:{sp+1}] {spol}")
        else:
            A(f"v_and_b32 {vr(t)}, 31, v0")
            A("s_mul_i32 s33, s30, 896")
            A(f"v_lshlrev_b32 {vr(t+1)}, 4, {vr(t)}"); A(f"v_add_u32 {vr(t+1)}, s33, {vr(t+1)}")
            A(f"v_lshlrev_b32 {vr(t+2)}, 3, {vr(t)}"); A(f"v_add_u32 {vr(t+2)}, s33, {vr(t+2)}")
            A(f"v_lshlrev_b32 {vr(t+3)}, 2, {vr(t)}"); A(f"v_add_u32 {vr(t+3)}, s33, {vr(t+3)}")
            for k, sp in enumerate((16, 18, 20)):
                A(f"global_load_dwordx4 {vr(raw+8*k,4)}, {vr(t+1)}, s[{sp}:{sp+1}] {spol}")
                A(f"global_load_dwordx2 {vr(raw+8*k+4,2)}, {vr(t+2)}, s[{sp}:{sp+1}] offset:512 {spol}")
                A(f"global_load_dword {vr(raw+8*k+6)}, {vr(t+3)}, s[{sp}:{sp+1}] offset:768 {spol}")
        A(f"v_min_u32 {vr(t)}, 13, v1"); A(f"v_and_b32 {vr(t+1)}, 1, v2")
        A("s_mul_i32 s33, s31, 896"); A("s_mul_i32 s34, s30, 224"); A("s_add_u32 s33, s33, s34")
        A(f"v_lshlrev_b32 {vr(t)}, 4, {vr(t)}"); A(f"v_lshl_add_u32 {vr(t)}, {vr(t+1)}, 3, {vr(t)}"); A(f"v_add_u32 {vr(t)}, s33, {vr(t)}")
        A(f"global_load_dwordx2 {vr(vXr+2,2)}, {vr(t)}, s[4:5] {spol}")
        A(f"v_mov_b32 {vr(t+2)}, 0")
        A(f"global_load_ushort {vr(vB2)}, {vr(t+2)}, s[22:23] {spol}")
    A("v_and_b32 v1, 15, v0")
    A("v_lshrrev_b32 v2, 4, v0")
    A("s_lshl_b32 s63, s31, 2")
    A(f"v_mov_b32 {vr(vQw)}, 0")
    if b0: A("s_mov_b32 s46, 0")
    if "T" in skip:
        A("s_waitcnt lgkmcnt(0)"); A("s_barrier"); A("s_barrier"); A("s_barrier")
        if NL: A("s_barrier")
        A("s_branch L_b3")
    A("s_cmp_eq_u32 s30, 0"); A("s_cbranch_scc1 L_T0")
    A("s_cmp_eq_u32 s30, 3"); A("s_cbranch_scc1 L_T3")
    if spf:
        A("s_cmp_eq_u32 s30, 1"); A("s_cbranch_scc1 L_T1")
    if pref:
        if not spf: A("s_cmp_eq_u32 s30, 2"); A("s_cbranch_scc0 L_prepw")
        A.c("T2: pull the code into this XCD's L2")
        A("s_getpc_b64 s[34:35]")
        A("L_pc:")
        A(f"s_sub_u32 s34, s34, L_pc-{NAME}"); A("s_subb_u32 s35, s35, 0")
        A("s_mul_i32 s33, s32, 640")
        A(f"v_min_u32 {vr(tT)}, 9, v0"); A(f"v_lshlrev_b32 {vr(tT)}, 6, {vr(tT)}"); A(f"v_add_u32 {vr(tT)}, s33, {vr(tT)}")
        A(f"global_load_dword {vr(tT+2)}, {vr(tT)}, s[34:35]")
    A("s_branch L_prepw")
    if spf:
        A("L_T1:")
        A.c("T1: pull 14 rows of the wq column block that r=28..31 read (and of the last block) into L2")
        A("s_mul_i32 s33, s32, 14*8192"); A("s_lshl_b32 s34, s31, 10"); A("s_add_u32 s33, s33, s34"); A("s_addk_i32 s33, 384")
        A(f"v_min_u32 {vr(tT)}, 13, v1"); A(f"v_lshlrev_b32 {vr(tT)}, 13, {vr(tT)}")
        A(f"v_and_b32 {vr(tT+1)}, 1, v2"); A(f"v_lshl_add_u32 {vr(tT)}, {vr(tT+1)}, 6, {vr(tT)}")
        A(f"v_lshrrev_b32 {vr(tT+1)}, 1, v2"); A(f"v_lshl_add_u32 {vr(tT)}, {vr(tT+1)}, 9, {vr(tT)}")
        A(f"v_add_u32 {vr(tT)}, s33, {vr(tT)}")
        A("s_cmp_eq_u32 s31, 7"); A("s_cselect_b32 exec_hi, -1, 0")
        if spf == 2: A("s_and_b32 exec_hi, exec_hi, 0xffff"); A("s_mov_b32 exec_lo, 0xffff")
        A("s_waitcnt lgkmcnt(0)")
        A(f"global_load_dword {vr(tT+2)}, {vr(tT)}, s[10:11]")
        A("s_mov_b64 exec, -1")
        A("s_branch L_prepw")
    A("L_T3:")
    A.c(f"T3 of {NLD} workgroup(s) per group: clear a share of the group's q and lse slots, then count in")
    per = 4 // NLD
    A(f"s_sub_u32 s36, s32, {LD0}"); A(f"s_cmp_lt_u32 s36, {NLD}"); A("s_cbranch_scc0 L_prepw")
    for i in range(4): A(f"v_mov_b32 {vr(tT+4+i)}, -1")
    A("s_getreg_b32 s34, hwreg(HW_REG_XCC_ID, 0, 4)")
    if per > 1: A(f"s_mul_i32 s34, s34, {0x1111 & ((1 << (4*per)) - 1)}"); A(f"s_mul_i32 s36, s36, {per}")
    A("s_lshl_b32 s33, s36, 2"); A("s_lshl_b32 s34, s34, s33"); A(f"s_bitset1_b32 s34, {16 + per.bit_length() - 1}")
    A("s_lshl2_add_u32 s33, s31, s36"); A("s_lshl_b32 s35, s33, 13"); A(f"v_add_u32 {vr(tT)}, s35, v3")
    A("s_lshl_b32 s33, s33, 6"); A(f"s_add_u32 s33, s33, {W_L}")
    A(f"v_add_u32 {vr(tT+2)}, s33, v3")
    A("s_waitcnt lgkmcnt(0)")
    for k in range(2*per):
        for i in range(4): A(f"global_store_dwordx4 {vr(tT)}, {vr(tT+4,4)}, s[28:29] offset:{1024*i}")
        if k < 2*per - 1: A(f"v_add_u32 {vr(tT)}, 4096, {vr(tT)}")
    A(f"s_mov_b64 exec, {(1 << (4*per)) - 1}")
    A(f"global_store_dwordx4 {vr(tT+2)}, {vr(tT+4,4)}, s[28:29]")
    A("s_mov_b64 exec, -1")
    if b0:
        A("s_mov_b32 s46, s34")
    else:
        A("s_waitcnt vmcnt(0)")
        A("s_atomic_add s34, s[26:27], s63")
        stamp(1)
    A("s_branch L_prepw")
    A("L_T0:")
    A.c("T0: x into LDS, clear this workgroup's share of the hand-off slots (acknowledged before q is published)")
    A(f"v_lshrrev_b32 {vr(vQw)}, 3, v0"); A(f"v_lshlrev_b32 {vr(vQw)}, 13, {vr(vQw)}"); A(f"v_and_b32 {vr(tT)}, 0x70, v3"); A(f"v_or_b32 {vr(vQw)}, {vr(vQw)}, {vr(tT)}")
    A(f"s_xor_b32 s34, s32, {qx}"); A("s_lshr_b32 s35, s34, 2"); A("s_lshl3_add_u32 s50, s31, s35"); A("s_lshl_b32 s50, s50, 7")
    A("s_and_b32 s48, s34, 3"); A("s_mul_i32 s34, s48, 112*8192"); A("s_add_u32 s50, s50, s34")
    qstep = 0x10000
    if "8" in hack:
        A(f"v_lshlrev_b32 {vr(vQw)}, 13, v2"); A(f"v_lshl_add_u32 {vr(vQw)}, v1, 4, {vr(vQw)}")
        A("s_lshr_b32 s35, s32, 3"); A("s_lshl2_add_u32 s50, s31, s35"); A("s_lshl_b32 s50, s50, 8")
        A("s_and_b32 s34, s32, 7"); A("s_mul_i32 s34, s34, 56*8192"); A("s_add_u32 s50, s50, s34"); qstep = 0x8000
    if "C" in hack:
        A(f"v_mov_b32 {vr(vQw)}, v3"); A("s_mul_i32 s50, s2, 14336"); qstep = 1024
    A("s_movk_i32 s58, 7168"); A("s_mov_b32 s59, 0x20000"); A("s_movk_i32 s35, 4096")
    A(f"s_mov_b32 m0, {L_X}")
    A("s_lshl_b32 s33, s31, 15"); A("s_lshl_b32 s34, s32, 10"); A("s_add_u32 s33, s33, s34"); A(f"s_add_u32 s33, s33, {W_O}")
    A(f"v_add_u32 {vr(tT)}, s33, v3")
    A("s_mul_i32 s33, s31, 14336"); A("s_min_u32 s34, s32, 27"); A("s_lshl_b32 s34, s34, 9"); A("s_add_u32 s33, s33, s34"); A(f"s_add_u32 s33, s33, {W_B}")
    A(f"v_add_u32 {vr(tT+1)}, s33, v3")
    for i in range(4): A(f"v_mov_b32 {vr(vW+i)}, -1")
    A("s_waitcnt lgkmcnt(0)")
    A("s_mov_b64 s[56:57], s[4:5]")
    for t in range(4 if "x" not in hack else 0): A(f"buffer_load_dwordx4 v3, s[56:59], 0 offen offset:{1024*t} {spol} lds")
    A(f"s_mov_b32 m0, {L_X + 4096}")
    for t in range(3 if "x" not in hack else 0): A(f"buffer_load_dwordx4 v3, s[56:59], s35 offen offset:{1024*t} {spol} lds")
    A(f"global_store_dwordx4 {vr(tT)}, {vr(vW,4)}, s[28:29]")
    A.c("r = 28..31 repeat the share of r = 27 with one lane")
    A("s_cmp_lt_u32 s32, 28"); A("s_cselect_b32 exec_lo, -1, 1"); A("s_mov_b32 exec_hi, 0")
    A(f"global_store_dwordx4 {vr(tT+1)}, {vr(vW,4)}, s[28:29] sc1")
    A("s_mov_b64 exec, -1")
    A("s_branch L_prepw")

    A("L_S2:")
    A("v_and_b32 v1, 15, v0")
    A("v_lshrrev_b32 v2, 4, v0")
    for tl in range(1, 4): A(f"s_xor_b32 s{40+tl}, s40, {tlx[tl]}")
    A("s_mov_b64 s[56:57], s[8:9]"); A("s_mov_b32 s58, s54"); A("s_mov_b32 s59, 0x20000")
    if "d" in R: parity("s61", "d"); A("s_lshl_b32 s61, s61, 8")
    else: A("s_mov_b32 s61, 0")
    A(f"v_and_b32 {vr(vT)}, 1, v2"); A(f"v_lshlrev_b32 {vr(vT)}, 9, {vr(vT)}"); A(f"v_lshl_add_u32 {vr(vT)}, v1, 4, {vr(vT)}")
    A(f"v_lshrrev_b32 {vr(vT+1)}, 1, v2"); A(f"v_lshl_add_u32 {vr(vT)}, {vr(vT+1)}, {P['r1']}, {vr(vT)}")
    A(f"s_and_b32 s35, s38, {gaddr(6)}"); A("s_or_b32 s35, s35, s61")
    A(f"v_or_b32 {vr(vVo)}, s35, {vr(vT)}")
    for e in range(1, 8): A(f"v_xor_b32 {vr(vVo+e)}, {gaddr(e & 6) | ((e & 1) << 8)}, {vr(vVo)}")
    A(f"v_xor_b32 {vr(vT+3)}, s60, v1")
    A(f"v_and_b32 {vr(vT)}, 3, {vr(vT+3)}"); A(f"v_lshrrev_b32 {vr(vT+1)}, 2, v1")
    A(f"v_lshl_add_u32 {vr(vT+2)}, {vr(vT)}, 2, {vr(vT+1)}")
    A(f"v_xor_b32 {vr(vT+3)}, {vr(vT+3)}, v2")
    A(f"v_lshlrev_b32 {vr(vT+2)}, 9, {vr(vT+2)}"); A(f"v_add_u32 {vr(vT+2)}, s37, {vr(vT+2)}")
    A(f"v_lshl_add_u32 {vr(vKA)}, {vr(vT+3)}, 4, {vr(vT+2)}")
    for t in range(1, 4): A(f"v_xor_b32 {vr(vKA+t)}, {64*t}, {vr(vKA)}")
    A(f"v_lshrrev_b32 {vr(vT)}, 3, v1")
    A(f"v_lshlrev_b32 {vr(vQA)}, 9, {vr(vT)}"); A(f"v_lshl_add_u32 {vr(vQA)}, v2, 4, {vr(vQA)}")
    A(f"v_add_u32 {vr(vQA)}, {L_Q}, {vr(vQA)}")
    A(f"v_lshlrev_b32 {vr(vSTr)}, 5, {vr(vT)}"); A(f"v_add_u32 {vr(vSTr)}, {L_STAT}, {vr(vSTr)}")
    A("s_lshl_b32 s35, s33, 2"); A(f"v_add_u32 {vr(vSTw)}, s35, {vr(vSTr)}")
    def delta(dst, val, t0):
        A(f"v_and_b32 {vr(t0)}, 16, v3")
        A(f"v_mov_b32 {vr(t0+1)}, {val}"); A(f"v_lshlrev_b32 {vr(t0+1)}, {vr(t0)}, {vr(t0+1)}")
        A(f"v_bfe_u32 {vr(t0)}, v1, 1, 2")
        for i in range(4):
            A(f"v_cmp_eq_u32 vcc, {i}, {vr(t0)}")
            A(f"v_cndmask_b32 {vr(dst+i)}, 0, {vr(t0+1)}, vcc")
    delta(vM, "0xffff", vT)
    A(f"v_and_b32 {vr(vT)}, 1, v2"); A(f"v_lshlrev_b32 {vr(vT)}, 4, {vr(vT)}")
    A(f"v_lshrrev_b32 {vr(vT+1)}, 1, v2"); A(f"v_lshl_add_u32 {vr(vT)}, {vr(vT+1)}, 10, {vr(vT)}")
    A(f"v_lshl_add_u32 {vr(vT)}, v1, 5, {vr(vT)}")
    A("s_lshl_b32 s35, s33, 11"); A(f"s_add_u32 s35, s35, {L_OP}")
    for dh in range(2):
        A(f"s_xor_b32 s38, s61, {dh << 8}"); A("s_lshl1_add_u32 s38, s38, s35")
        A(f"v_add_u32 {vr(vOPa+dh)}, s38, {vr(vT)}")
    if WE:
        A("s_getreg_b32 s35, hwreg(HW_REG_XCC_ID, 0, 3)"); A(f"s_bitcmp1_b32 {WEM}, s35"); A("s_cselect_b64 vcc, -1, 0")
    nv = [0]
    vord = list(range(28)) + [28, 30, 29, 31]
    def more(k):
        for _ in range(k):
            if nv[0] < 32:
                idx = vord[nv[0]]; tl, e = idx >> 3, idx & 7
                throttle()
                A(f"buffer_load_dwordx4 {vr(vVv+4*idx,4)}, {vr(vVo+e)}, s[56:59], s{40+tl} offen {pol if vpol is None else vpol}")
                nv[0] += 1
    seq = [("k", tl, i) for tl in range(1, 4) for i in range(8)] + [("v",)] * 32
    pos = 0
    def adv(n):
        nonlocal pos
        for _ in range(n):
            it = seq[pos]; pos += 1
            if it[0] == "k": kload(it[1], it[2])
            else: more(1)
    adv(24 + QPOS)
    stamp(6)
    A("s_barrier")
    stamp(7)
    adv(W + QD)
    assert nv[0] >= W
    stamp(1)
    if prio == 3: A("s_setprio 2")
    A("s_barrier")
    stamp(2)
    for t in range(8):
        A(f"ds_read_b128 {vr(vQ+4*t,4)}, {vr(vQA)} offset:{64*t}")
    for tl in range(4):
        for t in range(8):
            A(f"ds_read_b128 {vr(vKF+4*t,4)}, {vr(vKA+(t&3))} offset:{tl*8192 + (t>>2)*256}")
        for t in range(8):
            A(f"s_waitcnt lgkmcnt({7-t})")
            c = "0" if t == 0 else vr(vS+4*tl, 4)
            A(f"v_mfma_f32_16x16x32_bf16 {vr(vS+4*tl,4)}, {vr(vKF+4*t,4)}, {vr(vQ+4*t,4)}, {c}")
        more(1)
    SC = math.log2(math.e) / 16.0
    A(f"s_mov_b32 s35, {f32(SC)}")
    mx = vT; cp = vT + 1; ls = vT + 2
    A(f"v_max3_f32 {vr(mx)}, {vr(vS)}, {vr(vS+1)}, {vr(vS+2)}")
    for i in range(3, 15, 2):
        A(f"v_max3_f32 {vr(mx)}, {vr(mx)}, {vr(vS+i)}, {vr(vS+i+1)}")
    A(f"v_max_f32 {vr(mx)}, {vr(mx)}, {vr(vS+15)}")
    def xg(x, op):
        for sw in ("v_permlane32_swap_b32", "v_permlane16_swap_b32"):
            A(f"v_mov_b32 {vr(cp)}, {vr(x)}")
            A(f"{sw} {vr(x)}, {vr(cp)}")
            A(f"{op} {vr(x)}, {vr(x)}, {vr(cp)}")
    xg(mx, "v_max_f32")
    A(f"v_mul_f32 {vr(mx)}, s35, {vr(mx)}")
    for i in range(16):
        A(f"v_fma_f32 {vr(vS+i)}, {vr(vS+i)}, s35, -{vr(mx)}")
    for i in range(16):
        A(f"v_exp_f32 {vr(vS+i)}, {vr(vS+i)}")
    A(f"v_add_f32 {vr(ls)}, {vr(vS)}, {vr(vS+1)}")
    for i in range(2, 16):
        A(f"v_add_f32 {vr(ls)}, {vr(ls)}, {vr(vS+i)}")
    xg(ls, "v_add_f32")
    A(f"ds_write2_b32 {vr(vSTw)}, {vr(mx)}, {vr(ls)} offset0:0 offset1:4")
    more(1)
    A("s_waitcnt lgkmcnt(0)")
    A("s_barrier")
    stamp(3)
    def stats(m4, l4, M, Lr):
        A(f"v_max3_f32 {vr(M)}, {vr(m4)}, {vr(m4+1)}, {vr(m4+2)}"); A(f"v_max_f32 {vr(M)}, {vr(M)}, {vr(m4+3)}")
        for i in range(4): A(f"v_sub_f32 {vr(m4+i)}, {vr(m4+i)}, {vr(M)}")
        for i in range(4): A(f"v_exp_f32 {vr(m4+i)}, {vr(m4+i)}")
        A(f"v_mul_f32 {vr(Lr)}, {vr(m4)}, {vr(l4)}")
        for i in range(1, 4): A(f"v_fmac_f32 {vr(Lr)}, {vr(m4+i)}, {vr(l4+i)}")
    A(f"ds_read_b128 {vr(vAcc,4)}, {vr(vSTr)}")
    A(f"ds_read_b128 {vr(vAcc+4,4)}, {vr(vSTr)} offset:16")
    more(1)
    A("s_waitcnt lgkmcnt(0)")
    stats(vAcc, vAcc + 4, vT + 3, vT + 4)
    A(f"v_sub_f32 {vr(mx)}, {vr(mx)}, {vr(vT+3)}")
    A(f"v_exp_f32 {vr(mx)}, {vr(mx)}")
    A(f"v_rcp_f32 {vr(vT+4)}, {vr(vT+4)}")
    A(f"v_mul_f32 {vr(mx)}, {vr(mx)}, {vr(vT+4)}")
    for i in range(16):
        A(f"v_mul_f32 {vr(vS+i)}, {vr(vS+i)}, {vr(mx)}")
        A(f"v_cvt_pk_bf16_f32 {vr(vS+i)}, {vr(vS+i)}, {vr(vS+i)}")
        for k in range(4):
            A(f"v_and_b32 {vr(vA+4*i+k)}, {vr(vS+i)}, {vr(vM+k)}")
        if i % 8 == 7: more(1)
    stamp(4)
    done = 0
    def pv(k):
        idx = vord[k]
        i, dh = idx >> 1, idx & 1
        c = "0" if i == 0 else vr(vAcc+4*dh, 4)
        A(f"v_mfma_f32_16x16x32_bf16 {vr(vAcc+4*dh,4)}, {vr(vA+4*i,4)}, {vr(vVv+4*idx,4)}, {c}")
    while nv[0] < 32:
        more(1)
        if NL and nv[0] == 32 - EP: A("s_barrier")
        lim = min(nv[0] - W, done + 4)
        while done < lim: pv(done); done += 1
    while done < 32:
        if 31 - done < W: A(f"s_waitcnt vmcnt({31-done})")
        pv(done); done += 1
        if done == 31: A(f"ds_write_b128 {vr(vOPa)}, {vr(vAcc,4)}")
    A(f"ds_write_b128 {vr(vOPa+1)}, {vr(vAcc+4,4)}")
    stamp(5)
    A("s_waitcnt lgkmcnt(0)")
    A("s_barrier")
    if wbs and "E" not in skip:
        A.c("one wave per group stays to write the spent hand-off lines back ahead of the end of the kernel")
        A("s_cmp_eq_u32 s30, 4"); A("s_cselect_b32 s33, s32, -1"); A(f"s_cmp_eq_u32 s33, {wbr}"); A("s_cbranch_scc0 L_send")
        nb = 4 if "b" in bx else 3
        for k in range(nb):
            if k == wbs - 1: A("buffer_wbl2 sc1")
            A("s_barrier")
        A("L_send:")
    dump_stamps(9)
    A("s_endpgm")

    vT = tT
    A("L_prepw:")
    A("s_waitcnt lgkmcnt(0)")
    if b0 == 1: A("s_barrier")
    if cpos == "early": prep_loads()
    if b0 == 2: A("s_barrier")
    A("s_mov_b64 s[52:53], s[10:11]"); A("s_mov_b32 s54, 0x380000"); A("s_mov_b32 s55, 0x20000")
    nq = [0]
    def wq_loads(n):
        if not n or "q" in skip: return
        A("s_cmp_eq_u32 s30, 0"); A(f"s_cbranch_scc0 L_nq{nq[0]}")
        lab = f"L_nq{nq[0]}:"
        for _ in range(n):
            A(f"s_mov_b32 m0, {L_WQ + 1024*nq[0]}")
            if qpace and nq[0] >= qpace: A(f"s_waitcnt vmcnt({qpace-1})")
            A(f"buffer_load_dwordx4 {vr(vQw)}, s[52:55], s50 offen {qpol} lds")
            A(f"s_add_u32 s50, s50, {qstep}")
            nq[0] += 1
        A(lab)
    wq_loads(wq1)
    if b0 == 3: A("s_barrier")
    wq_loads(14 - wq1)
    if b0:
        A("s_cmp_eq_u32 s46, 0"); A("s_cbranch_scc1 L_nolead")
        A("s_waitcnt vmcnt(5)")
        A("s_atomic_add s46, s[26:27], s63")
        A("L_nolead:")
    def wo_addr():
        A("s_bfe_u32 s34, s32, 0x10001"); A("s_lshl1_add_u32 s33, s31, s34"); A("s_lshl2_add_u32 s33, s33, s30"); A("s_lshl_b32 s33, s33, 6")
        A("s_mul_i32 s33, s33, 896"); A("s_lshr_b32 s34, s32, 2"); A("s_min_u32 s34, s34, 6"); A("s_lshl_b32 s34, s34, 7"); A("s_add_u32 s51, s33, s34")
        if "O" in hack: A("s_mul_i32 s33, s31, 14"); A("s_lshr_b32 s34, s32, 1"); A("s_add_u32 s33, s33, s34"); A("s_lshl2_add_u32 s33, s33, s30"); A("s_lshl_b32 s51, s33, 13")
        A(f"v_lshrrev_b32 {vr(vWa)}, 3, v0"); A(f"v_mul_u32_u24 {vr(vWa)}, 896, {vr(vWa)}")
        A(f"v_and_b32 {vr(vT+4)}, 16, v0"); A(f"v_lshlrev_b32 {vr(vT+4)}, 1, {vr(vT+4)}"); A(f"v_and_b32 {vr(vT+5)}, 0x70, v3"); A(f"v_xor_b32 {vr(vT+4)}, {vr(vT+4)}, {vr(vT+5)}")
        A(f"v_xor_b32 {vr(vT+5)}, 64, {vr(vT+4)}"); A(f"v_add_u32 {vr(vWa+1)}, {vr(vWa)}, {vr(vT+5)}"); A(f"v_add_u32 {vr(vWa)}, {vr(vWa)}, {vr(vT+4)}")
        A(f"v_lshrrev_b32 {vr(vT+4)}, 2, v1"); A(f"v_lshl_add_u32 {vr(vT+4)}, v2, 3, {vr(vT+4)}"); A(f"v_lshlrev_b32 {vr(vT+4)}, 7, {vr(vT+4)}")
        A(f"v_bfe_u32 {vr(vT+5)}, v0, 3, 2"); A(f"v_lshl_add_u32 {vr(vT+4)}, {vr(vT+5)}, 5, {vr(vT+4)}")
        A(f"v_and_b32 {vr(vT+5)}, 3, v0"); A(f"v_lshl_add_u32 {vr(vT+4)}, {vr(vT+5)}, 3, {vr(vT+4)}")
        A("s_lshl_b32 s61, s30, 13"); A(f"v_add_u32 {vr(vWr)}, s61, {vr(vT+4)}")
    def wo_loads(i0, i1, tag):
        if i0 >= i1: return
        A("s_cmp_ge_u32 s32, 28" if "o" not in skip else "s_cmp_ge_u32 s32, 0"); A(f"s_cbranch_scc1 L_nowo{tag}")
        for i in range(i0, i1):
            A(f"s_add_u32 m0, s61, {1024*i}"); A(f"s_add_u32 s33, s51, {8*896*i if 'O' not in hack else 1024*i}")
            A(f"buffer_load_dwordx4 {vr(vWa+(i&1)) if 'O' not in hack else 'v3'}, s[56:59], s33 offen {opol} lds")
        A(f"L_nowo{tag}:")
    def wo_frags(tts=(0, 1)):
        for nt in range(4):
            for tt in tts:
                for hh in range(2):
                    A(f"ds_read_b64_tr_b16 {vr(vW+16*tt+4*nt+2*hh,2)}, {vr(vWr if nt == 0 else vRaw+nt)} offset:{4096*tt + 512*hh}")
    A.c("tail constants")
    A("s_mov_b32 s49, 0")
    wo_addr()
    A(f"s_xor_b32 s34, s32, {qx}"); A("s_and_b32 s35, s34, 3"); A("s_lshr_b32 s34, s34, 2"); A("s_lshl3_add_u32 s34, s35, s34"); A("s_lshl_b32 s34, s34, 7")
    A("s_lshl_b32 s39, s31, 15"); A("s_add_u32 s34, s34, s39")
    A(f"v_and_b32 {vr(vQa)}, 7, v1"); A(f"v_lshlrev_b32 {vr(vQa)}, 12, {vr(vQa)}"); A(f"v_lshl_add_u32 {vr(vQa)}, v2, 4, {vr(vQa)}"); A(f"v_add_u32 {vr(vQa)}, s34, {vr(vQa)}")
    def publish_q():
        A("s_getreg_b32 s47, hwreg(HW_REG_XCC_ID, 0, 4)")
        A("s_mul_i32 s47, s47, 0x1111"); A("s_bitset1_b32 s47, 18")
        if force_slow: A("s_cmp_eq_u32 s32, 5"); A("s_cselect_b32 s47, 0, s47")
        A("s_waitcnt lgkmcnt(0)")
        A("s_cmp_eq_u32 s46, s47")
        A("s_cbranch_scc0 L_f1slow")
        A("L_same:")
        A.c("the slots were cleared in this XCD's L2: publish there")
        A("s_mov_b32 exec_lo, 0x00ff00ff"); A("s_mov_b32 exec_hi, 0x00ff00ff")
        for k in range(2): A(f"global_store_dwordx4 {vr(vQa)}, {vr(vQs+4*k,4)}, s[28:29] offset:{64*k}")
        A("s_mov_b64 exec, -1")
        stamp(3)
        A("L_nopub:")
        def ool():
            A("L_f1slow:")
            A(f"v_mov_b32 {vr(vT+20)}, s63")
            A("s_mov_b32 s35, 0")
            A("L_f1l:")
            A("s_cmp_ge_u32 s46, 0x40000")
            A("s_cbranch_scc1 L_f1d")
            A(f"global_load_dword {vr(vT+21)}, {vr(vT+20)}, s[26:27] sc1")
            A("s_add_u32 s35, s35, 1")
            A("s_waitcnt vmcnt(0)")
            A(f"v_readfirstlane_b32 s46, {vr(vT+21)}")
            A(f"s_cmp_lt_u32 s35, {SPIN}")
            A("s_cbranch_scc1 L_f1l")
            A("L_f1d:")
            A("s_cmp_eq_u32 s46, s47")
            A("s_cbranch_scc1 L_same")
            A.c("cleared on another XCD: tell the group, publish nothing here")
            A("s_add_u32 s46, s63, 32"); A("s_mov_b32 s47, 1")
            A("s_atomic_add s47, s[26:27], s46 glc")
            A("s_waitcnt lgkmcnt(0)")
            A("s_mov_b32 s49, 1")
            A("s_branch L_nopub")
        OOL.append(ool)
    A("s_mul_i32 s33, s31, 14336"); A("s_mul_i32 s34, s30, 224"); A("s_add_u32 s33, s33, s34"); A(f"s_add_u32 s33, s33, {W_B}")
    A(f"v_min_u32 {vr(vT+4)}, 13, v1")
    A(f"v_mul_u32_u24 {vr(vBa)}, 3584, v2"); A(f"v_lshl_add_u32 {vr(vBa)}, {vr(vT+4)}, 4, {vr(vBa)}"); A(f"v_add_u32 {vr(vBa)}, s33, {vr(vBa)}")
    A("s_mul_i32 s34, s30, 448"); A(f"s_add_u32 s34, s34, {L_H}")
    A(f"v_and_b32 {vr(vT+5)}, 1, v2"); A(f"v_lshlrev_b32 {vr(vHw)}, 5, v1"); A(f"v_lshl_add_u32 {vr(vHw)}, {vr(vT+5)}, 4, {vr(vHw)}"); A(f"v_add_u32 {vr(vHw)}, s34, {vr(vHw)}")
    A(f"v_mov_b32 {vr(vT+5)}, {L_H + 1792}"); A("v_cmp_gt_u32 s[42:43], 14, v1")
    A(f"v_cndmask_b32 {vr(vHw)}, {vr(vT+5)}, {vr(vHw)}, s[42:43]")
    A(f"v_lshrrev_b32 {vr(vT+6)}, 5, v0")
    A("s_lshl_b32 s34, s30, 3"); A(f"s_add_u32 s34, s34, {L_HS}")
    A(f"v_lshlrev_b32 {vr(vHsw)}, 2, {vr(vT+6)}"); A(f"v_add_u32 {vr(vHsw)}, s34, {vr(vHsw)}")
    A(f"v_cvt_f32_u32 {vr(vKs)}, {vr(vT+6)}"); A(f"v_sub_f32 {vr(vKs+1)}, 1.0, {vr(vKs)}")
    for i in range(2): A(f"v_mul_f32 {vr(vKs+i)}, {f32(1.0/448)}, {vr(vKs+i)}")
    delta(vDl, "0x3f80", vT + 8)
    A("s_mul_i32 s33, s32, 56"); A(f"s_add_u32 s33, s33, {L_H}")
    ii = vT + 8; hf = vT + 9; col = vT + 10
    A(f"v_bfe_u32 {vr(ii)}, v0, 3, 1"); A(f"v_and_b32 {vr(hf)}, 3, v0"); A(f"v_lshl_add_u32 {vr(ii)}, {vr(ii)}, 2, {vr(hf)}")
    A(f"v_bfe_u32 {vr(hf)}, v0, 2, 1")
    A(f"v_min_u32 {vr(col)}, 6, {vr(ii)}"); A(f"v_mad_u32_u24 {vr(col)}, {vr(hf)}, 7, {vr(col)}")
    A(f"v_lshlrev_b32 {vr(vHa)}, 2, {vr(col)}"); A(f"v_add_u32 {vr(vHa)}, s33, {vr(vHa)}")
    A(f"v_cmp_eq_u32 vcc, 7, {vr(ii)}"); A(f"v_cndmask_b32 {vr(vT+11)}, v2, 3, vcc")
    A(f"v_mov_b32 {vr(vT+12)}, 0x3f803f80")
    A(f"v_cmp_eq_u32 vcc, 2, {vr(vT+11)}"); A(f"v_cndmask_b32 {vr(vK1)}, 0, 1.0, vcc")
    A(f"v_cmp_eq_u32 vcc, 0, {vr(vT+11)}"); A(f"v_cndmask_b32 {vr(vK1+1)}, 0, 1.0, vcc")
    A(f"v_cndmask_b32 {vr(vK1+3)}, 0, {vr(vT+12)}, vcc")
    A(f"v_cmp_eq_u32 vcc, 1, {vr(vT+11)}"); A(f"v_cndmask_b32 {vr(vK1+2)}, 0, 1.0, vcc")
    A(f"v_cndmask_b32 {vr(vK1+4)}, 0, {vr(vT+12)}, vcc")
    A(f"v_min_u32 {vr(col)}, 6, v0"); A(f"v_lshlrev_b32 {vr(vHf)}, 3, {vr(col)}"); A(f"v_add_u32 {vr(vHf)}, s33, {vr(vHf)}")
    A("s_mul_i32 s33, s31, 896"); A("s_mul_i32 s34, s32, 28"); A("s_add_u32 s33, s33, s34")
    A(f"v_lshlrev_b32 {vr(vOut)}, 2, {vr(col)}"); A(f"v_add_u32 {vr(vOut)}, s33, {vr(vOut)}")
    A(f"v_bfe_u32 {vr(ii)}, v0, 2, 1"); A(f"v_bfe_u32 {vr(hf)}, v0, 3, 1"); A(f"v_lshl_add_u32 {vr(ii)}, {vr(ii)}, 1, {vr(hf)}")
    A(f"v_bfe_u32 {vr(hf)}, v0, 4, 1"); A(f"v_lshl_add_u32 {vr(ii)}, {vr(hf)}, 2, {vr(ii)}")
    A(f"v_mad_u32_u24 {vr(hf)}, {vr(vT+6)}, 7, {vr(ii)}")
    A(f"v_cmp_eq_u32 vcc, 7, {vr(ii)}"); A(f"v_cndmask_b32 {vr(hf)}, {vr(hf)}, 15, vcc")
    A("s_lshl_b32 s34, s30, 6"); A(f"s_add_u32 s34, s34, {L_Y}")
    A(f"v_lshlrev_b32 {vr(vYa)}, 2, {vr(hf)}"); A(f"v_add_u32 {vr(vYa)}, s34, {vr(vYa)}")
    A("s_lshl_b32 s33, s31, 8"); A(f"s_add_u32 s33, s33, {W_L}"); A("s_and_b32 s34, s32, 3"); A("s_lshl_b32 s34, s34, 6"); A("s_add_u32 s34, s34, s33")
    A(f"v_lshlrev_b32 {vr(vLa)}, 4, v2"); A(f"v_add_u32 {vr(vLa)}, s34, {vr(vLa)}")
    A("s_lshl2_add_u32 s34, s32, s33")
    A(f"v_lshlrev_b32 {vr(vLst)}, 7, v0"); A(f"v_add_u32 {vr(vLst)}, s34, {vr(vLst)}")
    A(f"s_add_u32 s33, s39, {W_O}")
    A("s_and_b32 s35, s32, 1"); A("s_bfe_u32 s36, s32, 0x10001")
    A("s_lshl1_add_u32 s34, s35, s36"); A("s_lshl2_add_u32 s34, s34, s30"); A("s_lshl_b32 s34, s34, 11"); A("s_add_u32 s34, s34, s33")
    A(f"v_add_u32 {vr(vOa)}, s34, v3")
    A("s_lshl2_add_u32 s60, s35, s30")
    A("s_lshl3_add_u32 s34, s60, s31"); A("s_lshl1_add_u32 s34, s34, s36"); A("s_mul_i32 s34, s34, 896")
    A("s_lshr_b32 s36, s32, 2"); A("s_min_u32 s36, s36, 6"); A("s_lshl_b32 s36, s36, 7")
    A("s_add_u32 s34, s34, s36"); A(f"s_add_u32 s34, s34, {W_B}")
    A(f"v_lshlrev_b32 {vr(vBst)}, 3, v1"); A(f"v_add_u32 {vr(vBst)}, s34, {vr(vBst)}")
    A("s_lshr_b32 s34, s32, 4"); A("s_lshl2_add_u32 s34, s34, s30"); A("s_lshl_b32 s34, s34, 12"); A("s_add_u32 s34, s34, s33")
    A("s_and_b32 s36, s32, 15"); A("s_lshl4_add_u32 s34, s36, s34")
    A(f"v_lshrrev_b32 {vr(vOst)}, 2, v0"); A(f"v_lshlrev_b32 {vr(vOst)}, 8, {vr(vOst)}"); A(f"v_and_b32 {vr(vT+4)}, 3, v0")
    A(f"v_lshl_add_u32 {vr(vOst)}, {vr(vT+4)}, 2, {vr(vOst)}"); A(f"v_add_u32 {vr(vOst)}, s34, {vr(vOst)}")
    A("s_lshl_b32 s34, s30, 8"); A(f"s_add_u32 s34, s34, {L_PP}")
    A(f"v_lshlrev_b32 {vr(vPPr)}, 4, v1"); A(f"v_add_u32 {vr(vPPr)}, s34, {vr(vPPr)}")
    A("s_lshl_b32 s34, s30, 9"); A(f"s_add_u32 s34, s34, {L_OP}")
    A(f"v_lshlrev_b32 {vr(vOPr)}, 3, v0"); A(f"v_add_u32 {vr(vOPr)}, s34, {vr(vOPr)}")
    A("s_lshl_b32 s34, s30, 10"); A(f"s_add_u32 s34, s34, {L_PP}")
    A(f"v_lshlrev_b32 {vr(vPPa)}, 2, v1"); A(f"v_lshl_add_u32 {vr(vPPa)}, v2, 8, {vr(vPPa)}"); A(f"v_add_u32 {vr(vPPa)}, s34, {vr(vPPa)}")
    for i in range(4): A(f"v_mov_b32 {vr(vG+i)}, 0")
    A(f"s_mov_b32 s37, {f32(1.0/64)}")
    A("s_mov_b32 s38, 0xffff0000")
    def qproj():
        A("s_cmp_eq_u32 s30, 0"); A("s_cbranch_scc0 L_nopub")
        A.c("T0: q projection, 64 columns x a quarter of the rows, all 8 batches; LayerNorm applied after the product")
        A("s_mov_b32 s34, 0x3f803f80")
        for i in range(56): A(f"v_mov_b32 {vr(vX+i)}, s34")
        A(f"v_and_b32 {vr(tT+1)}, 7, v1"); A(f"v_mul_u32_u24 {vr(tT+1)}, 896, {vr(tT+1)}"); A(f"v_add_u32 {vr(tT+1)}, {L_X}, {vr(tT+1)}")
        A(f"v_lshl_add_u32 {vr(tT)}, v2, 4, {vr(tT+1)}")
        A("s_mul_i32 s33, s48, 224"); A(f"v_lshl_add_u32 {vr(tT+1)}, v2, 3, {vr(tT+1)}"); A(f"v_add_u32 {vr(tT+1)}, s33, {vr(tT+1)}")
        A(f"v_lshrrev_b32 {vr(tT+2)}, 2, v0"); A(f"v_lshlrev_b32 {vr(tT+2)}, 7, {vr(tT+2)}"); A(f"v_and_or_b32 {vr(tT+2)}, v3, 48, {vr(tT+2)}")
        A(f"v_add_u32 {vr(tT+2)}, {L_WQ}, {vr(tT+2)}")
        A(f"v_bfe_u32 {vr(tT+3)}, v1, 2, 1"); A(f"v_lshl_add_u32 {vr(tT+3)}, {vr(tT+3)}, 4, v1"); A(f"v_lshlrev_b32 {vr(tT+3)}, 2, {vr(tT+3)}")
        A(f"v_lshlrev_b32 {vr(tT+4)}, 2, v1"); A(f"v_add_u32 {vr(tT+4)}, 128, {vr(tT+4)}")
        A(f"v_and_b32 {vr(tT+5)}, 3, v1")
        sm = ('', 's[6:7]', 's[8:9]', 's[14:15]')
        for i in range(1, 4): A(f"v_cmp_eq_u32 {sm[i]}, {i}, {vr(tT+5)}")
        D1 = vX + 16; D2 = tT + 8; wf = vW
        A("s_mov_b32 exec_lo, 0x00ff00ff"); A("s_mov_b32 exec_hi, 0x00ff00ff")
        A("s_waitcnt vmcnt(14)")
        for t in range(14): A(f"ds_read_b128 {vr(vX+4*t,4)}, {vr(tT)} offset:{64*t}")
        A("s_mov_b64 exec, -1")
        for t in range(14):
            A(f"s_waitcnt lgkmcnt({13-t})")
            c = "0" if t == 0 else vr(D2, 4)
            A(f"v_mfma_f32_16x16x32_bf16 {vr(D2,4)}, {vr(vX+4*t,4)}, {vr(vX+4*t,4)}, {c}")
        for i in range(1, 4): A(f"v_cndmask_b32 {vr(D2)}, {vr(D2)}, {vr(D2+i)}, {sm[i]}")
        A(f"ds_bpermute_b32 {vr(tT+6)}, {vr(tT+3)}, {vr(D2)}")
        A(f"ds_bpermute_b32 {vr(tT+7)}, {vr(tT+4)}, {vr(D2)}")
        A("s_mov_b32 exec_lo, 0x00ff00ff"); A("s_mov_b32 exec_hi, 0x00ff00ff")
        for t in range(7): A(f"ds_read_b64 {vr(vX+2*t,2)}, {vr(tT+1)} offset:{32*t}")
        A("s_mov_b64 exec, -1")
        A(f"s_mov_b32 s33, {f32(1.0/448)}")
        A("s_waitcnt lgkmcnt(0)")
        A(f"v_mul_f32 {vr(tT+7)}, s33, {vr(tT+7)}")
        A(f"v_mul_f32 {vr(tT+6)}, s33, {vr(tT+6)}")
        A(f"v_fma_f32 {vr(tT+6)}, -{vr(tT+7)}, {vr(tT+7)}, {vr(tT+6)}")
        A(f"v_max_f32 {vr(tT+6)}, 0, {vr(tT+6)}")
        A(f"v_add_f32 {vr(tT+6)}, {f32(1e-5)}, {vr(tT+6)}")
        A(f"v_rsq_f32 {vr(tT+6)}, {vr(tT+6)}")
        A("s_waitcnt vmcnt(0)")
        A("s_load_dword s46, s[26:27], s63")
        stamp(1)
        for np_ in range(2):
            for t in range(7):
                for e in range(2):
                    A(f"ds_read_b64_tr_b16 {vr(wf+4*t+2*e,2)}, {vr(tT+2)} offset:{2048*t + 64*np_ + 8*e}")
            for t in range(7):
                A(f"s_waitcnt lgkmcnt({12-2*t})")
                for e in range(2):
                    D = D1 + 8*np_ + 4*e
                    c = "0" if t == 0 else vr(D, 4)
                    A(f"v_mfma_f32_16x16x16_bf16 {vr(D,4)}, {vr(wf+4*t+2*e,2)}, {vr(vX+2*t,2)}, {c}")
        for i0 in (0, 8):
            for i in range(8):
                A(f"v_mul_f32_dpp {vr(D2+i)}, {vr(D1+i0+i)}, {vr(tT+7)} row_newbcast:8 row_mask:0xf bank_mask:0xf")
            for i in range(8):
                A(f"v_sub_f32 {vr(D2+i)}, {vr(D1+i0+i)}, {vr(D2+i)}")
                A(f"v_mul_f32 {vr(D2+i)}, {vr(D2+i)}, {vr(tT+6)}")
            for i in range(4):
                A(f"v_cvt_pk_bf16_f32 {vr(vQs+i0//2+i)}, {vr(D2+2*i)}, {vr(D2+2*i+1)}")
                A(f"v_min_u32 {vr(vQs+i0//2+i)}, -2, {vr(vQs+i0//2+i)}")
        publish_q()
    def conv():
        if c1_:
            for k in range(3):
                for i in range(4): A(f"v_mov_b32 {vr(raw+8*k+4+((i+3)&3))}, {vr(raw+8*k+i)}")
                for i in range(4): A(f"v_permlane32_swap_b32 {vr(raw+8*k+i)}, {vr(raw+8*k+4+((i+3)&3))}")
        for i in (2, 3): A(f"v_cndmask_b32 {vr(vXr+i)}, 0, {vr(vXr+i)}, s[42:43]")
        A(f"v_lshlrev_b32 {vr(vXr)}, 16, {vr(vXr+2)}"); A(f"v_and_b32 {vr(vXr+1)}, s38, {vr(vXr+2)}")
        A(f"v_lshlrev_b32 {vr(vXr+2)}, 16, {vr(vXr+3)}"); A(f"v_and_b32 {vr(vXr+3)}, s38, {vr(vXr+3)}")
        A(f"v_lshlrev_b32 {vr(vB2)}, 16, {vr(vB2)}")
    w, b, u, bb, c0, c1, c2, c3, ca, cc, hi = (vT + 1 + i for i in range(11))
    def tiles(t0, t1):
        if t0 >= t1: return
        A.c("gelu argument as a cubic in hn, and n = (w1*hn + b1)*w2, as split-bf16 MFMA operands")
        A(f"s_mov_b32 s33, {f32(BETA)}"); A(f"s_mov_b32 s34, {f32(3*BETA)}"); A(f"v_mov_b32 {vr(vT)}, {f32(ALPHA)}")
        A("v_cmp_lt_u32 vcc, 31, v0")
        for tile in range(t0, t1):
            for k, d in enumerate((w, b, u)):
                src = raw + 8*k + (tile >> 1)
                if tile & 1: A(f"v_and_b32 {vr(d)}, s38, {vr(src)}")
                else: A(f"v_lshlrev_b32 {vr(d)}, 16, {vr(src)}")
            A(f"v_mul_f32 {vr(bb)}, {vr(b)}, {vr(b)}")
            A(f"v_fma_f32 {vr(c0)}, {vr(bb)}, s33, {vr(vT)}"); A(f"v_mul_f32 {vr(c0)}, {vr(c0)}, {vr(b)}")
            A(f"v_fma_f32 {vr(c1)}, {vr(bb)}, s34, {vr(vT)}"); A(f"v_mul_f32 {vr(c1)}, {vr(c1)}, {vr(w)}")
            A(f"v_mul_f32 {vr(bb)}, {vr(w)}, {vr(w)}")
            A(f"v_mul_f32 {vr(c2)}, s34, {vr(bb)}"); A(f"v_mul_f32 {vr(c2)}, {vr(c2)}, {vr(b)}")
            A(f"v_mul_f32 {vr(c3)}, s33, {vr(bb)}"); A(f"v_mul_f32 {vr(c3)}, {vr(c3)}, {vr(w)}")
            A(f"v_mul_f32 {vr(ca)}, {vr(w)}, {vr(u)}"); A(f"v_mul_f32 {vr(cc)}, {vr(b)}, {vr(u)}")
            for k, cx in enumerate((c0, c1, c2, c3)): A(f"v_add_f32 {vr(vG+k)}, |{vr(cx)}|, {vr(vG+k)}")
            A(f"v_fma_f32 {vr(vG)}, |{vr(cc)}|, s37, {vr(vG)}"); A(f"v_fma_f32 {vr(vG+1)}, |{vr(ca)}|, s37, {vr(vG+1)}")
            for k, (lo_, hi_) in enumerate(((c1, c2), (c0, c2), (ca, c3), (cc, c3))):
                A(f"v_cndmask_b32 {vr(lo_)}, {vr(lo_)}, {vr(hi_)}, vcc")
                A(f"v_cvt_pk_bf16_f32 {vr(hi)}, {vr(lo_)}, {vr(lo_)}")
                A(f"v_and_b32 {vr(hi)}, s38, {vr(hi)}")
                A(f"v_sub_f32 {vr(lo_)}, {vr(lo_)}, {vr(hi)}")
                A(f"v_cvt_pk_bf16_f32 {vr(vC+4*tile+k)}, {vr(hi)}, {vr(lo_)}")
    def guard():
        A.c("largest |hn| for which the fused gelu path can neither overflow nor lose precision")
        A("s_mov_b32 s3, -1.0"); A(f"s_mov_b32 s34, {f32(100.0)}")
        for H in (3.0, 4.5, 6.0, 8.0, 12.0, 22.0):
            A(f"s_mov_b32 s33, {f32(H)}")
            A(f"v_fma_f32 {vr(vT+1)}, {vr(vG+3)}, s33, {vr(vG+2)}"); A(f"v_fma_f32 {vr(vT+1)}, {vr(vT+1)}, s33, {vr(vG+1)}")
            A(f"v_fma_f32 {vr(vT+1)}, {vr(vT+1)}, s33, {vr(vG)}")
            A(f"v_cmp_nge_f32 vcc, s34, {vr(vT+1)}")
            A("s_cmp_eq_u64 vcc, 0"); A("s_cselect_b32 s3, s33, s3")
        if force_fb: A("s_mov_b32 s3, -1.0")
    if cpos == "early":
        A("s_cmp_eq_u32 s30, 0"); A("s_cbranch_scc1 L_pw"); A("s_waitcnt vmcnt(0)"); A("L_pw:")
        A("s_waitcnt vmcnt(14)")
        conv(); tiles(0, QT); qproj(); tiles(QT, 14); guard()
    else:
        qproj()
    A("s_lshr_b32 s33, s32, 2"); A("s_lshl_b32 s33, s33, 12"); A("s_add_u32 s33, s33, s39")
    A(f"v_add_u32 {vr(vT)}, s33, v3"); A(f"v_add_u32 {vr(vT+1)}, {L_Q}, v3")
    A(f"v_and_b32 {vr(vT+20)}, 7, v0"); A(f"v_lshlrev_b32 {vr(vT+20)}, 2, {vr(vT+20)}"); A(f"v_mov_b32 {vr(vT+19)}, {L_STAT + 64}")
    stamp(4)
    if cpos == "pre1": prep_loads()
    A("s_barrier")
    if cpos == "mid": prep_loads()
    A("s_mov_b32 s35, 0")
    A("s_cmp_eq_u32 s30, 0")
    A("s_cbranch_scc0 L_b1b")
    A.c("T0: gather the four q partials, add, hand to the stream waves")
    qa = vX
    def qload():
        for k in range(4): A(f"global_load_dwordx4 {vr(qa+4*k,4)}, {vr(vT)}, s[28:29] offset:{1024*k} sc1")
        A("s_waitcnt vmcnt(0)")
    A("s_cmp_eq_u32 s49, 0"); A("s_cbranch_scc0 L_glob")
    A("L_qpoll:")
    qload()
    A(f"v_max3_u32 {vr(vT+2)}, {vr(qa)}, {vr(qa+1)}, {vr(qa+2)}")
    for i in range(3, 15, 2): A(f"v_max3_u32 {vr(vT+2)}, {vr(vT+2)}, {vr(qa+i)}, {vr(qa+i+1)}")
    A(f"v_max_u32 {vr(vT+2)}, {vr(vT+2)}, {vr(qa+15)}")
    A(f"v_cmp_eq_u32 vcc, -1, {vr(vT+2)}")
    A("s_cbranch_vccnz L_qretry")
    def ool_q():
        A("L_qretry:")
        A("s_add_u32 s35, s35, 1")
        A(f"s_cmp_ge_u32 s35, {SPIN}")
        A("s_cbranch_scc1 L_qdone")
        A("s_bitcmp1_b32 s35, 0"); A("s_cbranch_scc1 L_qpoll")
        A(f"v_mov_b32 {vr(vT+12)}, s63")
        A(f"global_load_dword {vr(vT+13)}, {vr(vT+12)}, s[26:27] offset:32 sc1")
        A("s_waitcnt vmcnt(0)")
        A(f"v_readfirstlane_b32 s46, {vr(vT+13)}")
        A("s_cmp_eq_u32 s46, 0")
        A("s_cbranch_scc1 L_qpoll")
        A("L_glob:")
        A.c("group spread over several XCDs: write-through hand-off in the second copy, ordered by a counter")
        A("s_mov_b32 s49, 1")
        for i in range(4): A(f"v_mov_b32 {vr(qa+i)}, -1")
        A("s_lshl_b32 s33, s32, 10"); A("s_add_u32 s33, s33, s39"); A(f"s_add_u32 s33, s33, {W_O + W_ALT}")
        A(f"v_add_u32 {vr(vT+12)}, s33, v3"); A(f"v_add_u32 {vr(vT+13)}, {W_ALT}, {vr(vLst)}"); A(f"v_add_u32 {vr(vT+14)}, {W_ALT}, {vr(vQa)}")
        A(f"v_add_u32 {vr(vT)}, {W_ALT}, {vr(vT)}"); A(f"v_mov_b32 {vr(vT+15)}, s63")
        A(f"global_store_dwordx4 {vr(vT+12)}, {vr(qa,4)}, s[28:29] sc1")
        A("s_mov_b64 exec, 3")
        A(f"global_store_dword {vr(vT+13)}, {vr(qa)}, s[28:29] sc1")
        A("s_mov_b32 exec_lo, 0x00ff00ff"); A("s_mov_b32 exec_hi, 0x00ff00ff")
        for k in range(2): A(f"global_store_dwordx4 {vr(vT+14)}, {vr(vQs+4*k,4)}, s[28:29] offset:{64*k} sc1")
        A("s_mov_b64 exec, -1")
        A("s_add_u32 s46, s63, 64"); A("s_mov_b32 s47, 1"); A("s_mov_b32 s35, 0")
        A("s_waitcnt vmcnt(0)")
        A("s_atomic_add s47, s[26:27], s46")
        A("L_gl:")
        A(f"global_load_dword {vr(vT+13)}, {vr(vT+15)}, s[26:27] offset:64 sc1")
        A("s_add_u32 s35, s35, 1")
        A("s_waitcnt vmcnt(0) lgkmcnt(0)")
        A(f"v_readfirstlane_b32 s46, {vr(vT+13)}")
        A(f"s_cmp_ge_u32 s35, {SPIN}"); A("s_cselect_b32 s46, 32, s46")
        A("s_cmp_lt_u32 s46, 32")
        A("s_cbranch_scc1 L_gl")
        qload()
        A("s_branch L_qdone")
    OOL.append(ool_q)
    A("L_qdone:")
    stamp(14)
    for k in range(4):
        for p in range(4):
            A(f"v_lshlrev_b32 {vr(vT+4+2*p)}, 16, {vr(qa+4*p+k)}"); A(f"v_and_b32 {vr(vT+5+2*p)}, s38, {vr(qa+4*p+k)}")
        A(f"v_pk_add_f32 {vr(vT+4,2)}, {vr(vT+4,2)}, {vr(vT+6,2)}"); A(f"v_pk_add_f32 {vr(vT+8,2)}, {vr(vT+8,2)}, {vr(vT+10,2)}")
        A(f"v_pk_add_f32 {vr(vT+4,2)}, {vr(vT+4,2)}, {vr(vT+8,2)}")
        A(f"v_cvt_pk_bf16_f32 {vr(qa+k)}, {vr(vT+4)}, {vr(vT+5)}")
    A(f"ds_write_b128 {vr(vT+1)}, {vr(qa,4)}")
    A(f"v_mov_b32 {vr(vT+2)}, s49")
    A(f"ds_write_b32 {vr(vT+19)}, {vr(vT+2)}")
    A("s_cmp_eq_u32 s32, 0"); A("s_cbranch_scc0 L_nof2")
    A.c("every member of this group has cleared its share of the out-projection slots")
    A("s_mov_b32 s33, 0x100000")
    A("s_waitcnt lgkmcnt(0)")
    A("s_barrier")
    A("s_atomic_add s33, s[26:27], s63")
    A("s_branch L_b1c")
    A("L_nof2:")
    A("s_waitcnt lgkmcnt(0)")
    A("L_b1b:")
    A("s_barrier")
    A("L_b1c:")
    A(f"ds_read_b32 {vr(vT+21)}, {vr(vT+19)}")
    if cpos != "early": A("s_waitcnt vmcnt(0) lgkmcnt(0)")
    if touch: A(f"global_load_dword {vr(vT+22)}, {vr(vOut)}, s[24:25]")
    if cpos != "early": conv(); tiles(0, N1)
    A(f"v_and_b32 {vr(vT)}, 1, v0"); A(f"v_lshlrev_b32 {vr(vT)}, 5, {vr(vT)}"); A(f"v_add_u32 {vr(vT)}, {L_STAT}, {vr(vT)}")
    A("s_barrier")
    A(f"ds_read_b128 {vr(vT+4,4)}, {vr(vT)}")
    A(f"ds_read_b128 {vr(vT+8,4)}, {vr(vT)} offset:16")
    A("s_waitcnt lgkmcnt(0)")
    stats(vT + 4, vT + 8, vT + 1, vT + 2)
    A(f"v_log_f32 {vr(vT+2)}, {vr(vT+2)}")
    A(f"v_add_f32 {vr(vLse)}, {vr(vT+1)}, {vr(vT+2)}")
    A(f"v_min_u32 {vr(vLse)}, -2, {vr(vLse)}")
    A(f"v_readfirstlane_b32 s62, {vr(vT+21)}")
    A("s_lshl_b32 s33, s62, 20")
    for r_ in (vLa, vLst, vOa, vOst): A(f"v_add_u32 {vr(r_)}, s33, {vr(r_)}")
    A("s_cmp_eq_u32 s30, 1"); A("s_cbranch_scc0 L_nolse")
    A("s_mov_b64 exec, 3")
    A("s_cmp_eq_u32 s62, 0"); A("s_cbranch_scc0 L_slowlse")
    A(f"global_store_dword {vr(vLst)}, {vr(vLse)}, s[28:29]")
    A("L_lsed:")
    A("s_mov_b64 exec, -1")
    A("L_nolse:")
    def ool_lse():
        A("L_slowlse:")
        A(f"global_store_dword {vr(vLst)}, {vr(vLse)}, s[28:29] sc1")
        A("s_branch L_lsed")
    OOL.append(ool_lse)
    if inst:
        A.c("bring this workgroup's share of the cleared hand-off lines into L2 ahead of the polls (values unused)")
        A("s_cmp_lt_u32 s30, 2"); A("s_cbranch_scc1 L_noinst")
        A("s_lshl_b32 s33, s32, 10"); A("s_add_u32 s33, s33, s39"); A(f"s_add_u32 s33, s33, {W_O}")
        A("s_mul_i32 s34, s31, 14336"); A("s_min_u32 s35, s32, 27"); A("s_lshl_b32 s35, s35, 9"); A("s_add_u32 s34, s34, s35"); A(f"s_add_u32 s34, s34, {W_B}")
        A("s_cmp_eq_u32 s30, 2")
        if inst == 1: A("s_cbranch_scc0 L_noinst")
        if inst == 2: A("s_cbranch_scc1 L_noinst")
        A("s_cselect_b32 s33, s34, s33")
        A(f"v_add_u32 {vr(vT+12)}, s33, v3")
        A("s_cselect_b32 exec_hi, 0, -1")
        A(f"global_load_dwordx4 {vr(vT+16,4)}, {vr(vT+12)}, s[28:29] sc1")
        A("s_mov_b64 exec, -1")
        A("L_noinst:")
    A("s_mov_b64 s[56:57], s[12:13]"); A("s_mov_b32 s58, 0x380000"); A("s_mov_b32 s59, 0x20000")
    wo_loads(0, NE, "a")
    if cpos != "early": tiles(N1, 14); guard()
    A("s_cmp_lt_u32 s32, 28"); A("s_cselect_b32 s44, 0xffff, 0")
    A("s_cmp_eq_u32 s60, s31"); A("s_cselect_b32 s45, s44, 0"); A("s_cmp_eq_u32 s62, 0"); A("s_cselect_b32 s45, s45, 0")
    if "s" in bx: A("s_mov_b32 s45, 0")
    A("s_andn2_b32 s44, s44, s45")
    bl = vX + 16
    for i in range(16): A(f"v_mov_b32 {vr(bl+i)}, 0")
    for nt in range(1, 4): A(f"v_xor_b32 {vr(vRaw+nt)}, {32*nt}, {vr(vWr)}")
    ls4 = vT + 4; ck = vT + 1
    def lse_load():
        A(f"global_load_dwordx4 {vr(ls4,4)}, {vr(vLa)}, s[28:29] sc1")
        A(f"global_load_dword {vr(vT+21)}, {vr(vT+20)}, s[26:27] sc1")
    A(f"s_mov_b32 s36, {f32(1.0 + 1e-5)}")
    A("s_brev_b32 s40, 1"); A("s_brev_b32 s41, 1")
    def weights():
        A(f"v_lshrrev_b32 {vr(ck)}, 20, {vr(vT+21)}"); A(f"v_add_u32 {vr(ck)}, -1, {vr(ck)}")
        A(f"v_max3_u32 {vr(ck)}, {vr(ck)}, {vr(ls4)}, {vr(ls4+1)}"); A(f"v_max3_u32 {vr(ck)}, {vr(ck)}, {vr(ls4+2)}, {vr(ls4+3)}")
        A(f"v_cmp_eq_u32 vcc, -1, {vr(ck)}")
        A(f"v_max3_f32 {vr(vT+2)}, {vr(ls4)}, {vr(ls4+1)}, {vr(ls4+2)}"); A(f"v_max_f32 {vr(vT+2)}, {vr(vT+2)}, {vr(ls4+3)}")
        for i in range(4): A(f"v_sub_f32 {vr(ls4+i)}, {vr(ls4+i)}, {vr(vT+2)}")
        for i in range(4): A(f"v_exp_f32 {vr(ls4+i)}, {vr(ls4+i)}")
        A(f"v_add_f32 {vr(vT+2)}, {vr(ls4)}, {vr(ls4+1)}"); A(f"v_add_f32 {vr(vT+3)}, {vr(ls4+2)}, {vr(ls4+3)}")
        A(f"v_add_f32 {vr(vT+2)}, {vr(vT+2)}, {vr(vT+3)}"); A(f"v_rcp_f32 {vr(vT+2)}, {vr(vT+2)}")
        for i in range(4): A(f"v_mul_f32 {vr(ls4+i)}, {vr(ls4+i)}, {vr(vT+2)}")
    A.c("split-combine weights; vcc != 0: some lse had not arrived yet, redo after publishing")
    if tal >= 0:
        A("s_branch L_tail"); A(".p2align 12")
        if tal: A(f".fill {tal // 4}, 4, 0xbf810000")
        A("L_tail:")
    stamp(2)
    A("s_barrier")
    lse_load()
    if not lw: A("s_cmp_ge_u32 s32, 28"); A("s_cbranch_scc0 L_wob"); A("s_waitcnt vmcnt(0)"); A("L_wob:")
    wo_loads(NE, 8 - NB, "b")
    A(f"s_mov_b32 s35, {-SPIN & 0xffffffff}")
    A("s_cmp_eq_u32 s62, 0")
    A("L_b3:")
    A("s_barrier")
    stamp(5)
    if "E" in skip: A("s_branch L_fin")
    A.c("reduce the four stream waves' o partials, publish as bf16")
    o = vX; ls4 = vT + 4; oa = vX + 32; Dc = vX + 40; ck = vT + 1
    for w_ in range(4): A(f"ds_read_b64 {vr(o+2*w_,2)}, {vr(vOPr)} offset:{2048*w_}")
    for w_ in range(1, 4):
        A(f"s_waitcnt lgkmcnt({3-w_})")
        A(f"v_pk_add_f32 {vr(o,2)}, {vr(o,2)}, {vr(o+2*w_,2)}")
    A(f"v_cvt_pk_bf16_f32 {vr(o)}, {vr(o)}, {vr(o+1)}")
    A(f"v_min_u32 {vr(o)}, -2, {vr(o)}")
    A("s_cbranch_scc0 L_slowpub")
    A(f"global_store_dword {vr(vOst)}, {vr(o)}, s[28:29]")
    A("L_pubd:")
    def ool_pub():
        A("L_slowpub:")
        A(f"global_store_dword {vr(vOst)}, {vr(o)}, s[28:29] sc1")
        A("s_branch L_pubd")
    OOL.append(ool_pub)
    stamp(6)
    A.c("out projection")
    def aset():
        for tt in range(2):
            A(f"global_load_dwordx4 {vr(oa+4*tt,4)}, {vr(vOa)}, s[28:29] offset:{1024*tt} sc1")
    if ap:
        wo_loads(8 - NB, 8, "c")
        seqv = [f"w{i}" for i in range(NE, 8 - NB)] + ["st"] + [f"w{i}" for i in range(8 - NB, 8)]
        def upto(i):
            live = [k for k, x in enumerate(seqv) if x[0] == "w" and int(x[1:]) <= i]
            if live: A(f"s_waitcnt vmcnt({len(seqv) - 1 - max(live)})")
        if lw: A("s_cmp_ge_u32 s32, 28"); A("s_cbranch_scc0 L_wob"); A("s_waitcnt vmcnt(0)"); A("L_wob:")
        A(f"s_waitcnt vmcnt({len(seqv)})")
        weights()
        upto(3)
        if ap == 1: aset(); seqv += ["a", "a"]
        wo_frags((0,))
        if ap >= 2: upto(3 + ap); aset(); seqv += ["a", "a"]
        upto(7); wo_frags((1,))
    else:
        aset()
        A(f"s_waitcnt vmcnt({3 + 8 - NE})")
        weights()
        if o1:
            A("s_waitcnt vmcnt(7)"); wo_frags((0,)); A("s_waitcnt vmcnt(3)"); wo_frags((1,))
        else:
            A("s_waitcnt vmcnt(3)"); wo_frags()
    A("s_cbranch_vccnz L_lretry")
    def ool_l():
        A("L_lretry:")
        lse_load()
        A("s_add_u32 s35, s35, 1")
        A("s_waitcnt vmcnt(0)")
        weights()
        A("s_cbranch_scc1 L_lok")
        A("s_cbranch_vccnz L_lretry")
        A("L_lok:")
        A(f"s_mov_b32 s35, {-SPIN & 0xffffffff}")
        A("s_branch L_apoll0")
    OOL.insert(0, ool_l)
    A("L_apoll0:")
    def achk():
        A(f"v_max3_u32 {vr(ck)}, {vr(oa)}, {vr(oa+1)}, {vr(oa+2)}"); A(f"v_max3_u32 {vr(ck)}, {vr(ck)}, {vr(oa+3)}, {vr(oa+4)}")
        A(f"v_max3_u32 {vr(ck)}, {vr(ck)}, {vr(oa+5)}, {vr(oa+6)}"); A(f"v_max_u32 {vr(ck)}, {vr(ck)}, {vr(oa+7)}")
    if True:
        A("s_waitcnt vmcnt(0)")
        achk()
        A(f"v_cmpx_eq_u32 vcc, -1, {vr(ck)}")
        A("s_cbranch_execz L_adone")
        for _ in range(DA - 1):
            aset()
            for _ in range(GA): A("s_nop 7")
    A("L_apoll:")
    aset()
    A("s_add_u32 s35, s35, 1"); A("s_cselect_b32 s47, -1, -2")
    A(f"s_waitcnt vmcnt({2*(DA-1)})")
    achk()
    A(f"v_cmpx_lt_u32 vcc, s47, {vr(ck)}")
    A("s_cbranch_execnz L_apoll")
    A("L_adone:")
    A("s_mov_b64 exec, -1")
    A("s_waitcnt lgkmcnt(6)" if o1 else "s_waitcnt lgkmcnt(0)")
    A(f"s_mov_b32 s35, {-SPIN & 0xffffffff}")
    stamp(7)
    pp = vT + 16
    def wsum(c):
        return [f"v_mul_f32 {vr(pp+c)}, {vr(Dc+4*c)}, {vr(ls4)}"] + [f"v_fmac_f32 {vr(pp+c)}, {vr(Dc+4*c+i)}, {vr(ls4+i)}" for i in range(1, 4)]
    ws = sum((wsum(c) for c in range(4)), [])
    for k in range(8):
        c, tt = k >> 1, k & 1
        cc_ = "0" if tt == 0 else vr(Dc+4*c, 4)
        A(f"v_mfma_f32_16x16x32_bf16 {vr(Dc+4*c,4)}, {vr(oa+4*tt,4)}, {vr(vW+16*tt+4*c,4)}, {cc_}")
        if o1 and k in (2, 4, 6): A(f"s_waitcnt lgkmcnt({6 - k})")
        if 1 <= k <= 3: A(f"s_nop {0 if (o1 and k == 2) else 1}")
        if k >= 4: A(ws.pop(0)); A(ws.pop(0))
    A(f"ds_write2_b32 {vr(vPPa)}, {vr(pp)}, {vr(pp+1)} offset0:0 offset1:16")
    for x in ws: A(x)
    A(f"ds_write2_b32 {vr(vPPa)}, {vr(pp+2)}, {vr(pp+3)} offset0:32 offset1:48")
    A("s_mov_b64 exec, 0xffff")
    A("s_waitcnt lgkmcnt(0)")
    stamp(8)
    A("s_barrier")
    pr = vX
    for w_ in range(4): A(f"ds_read_b128 {vr(pr+4*w_,4)}, {vr(vPPr)} offset:{1024*w_}")
    for w_ in range(1, 4):
        A(f"s_waitcnt lgkmcnt({3-w_})")
        for k in (0, 2): A(f"v_pk_add_f32 {vr(pr+k,2)}, {vr(pr+k,2)}, {vr(pr+4*w_+k,2)}")
    A(f"v_cvt_pk_bf16_f32 {vr(pr)}, {vr(pr)}, {vr(pr+1)}"); A(f"v_cvt_pk_bf16_f32 {vr(pr+1)}, {vr(pr+2)}, {vr(pr+3)}")
    A(f"v_min_u32 {vr(pr)}, -2, {vr(pr)}"); A(f"v_min_u32 {vr(pr+1)}, -2, {vr(pr+1)}")
    A("s_mov_b32 exec_lo, s44")
    A(f"global_store_dwordx2 {vr(vBst)}, {vr(pr,2)}, s[28:29] sc1")
    A("s_mov_b32 exec_lo, s45")
    A(f"global_store_dwordx2 {vr(vBst)}, {vr(pr,2)}, s[28:29]")
    A("s_mov_b64 exec, s[42:43]")
    stamp(9)
    if "a" in bx: A("s_waitcnt vmcnt(0)")
    if "b" in bx: A("s_barrier")
    if PB0: A(f"s_sleep {PB0}")
    def bset():
        for i in range(4):
            A(f"global_load_dwordx4 {vr(bl+4*i,4)}, {vr(vBa)}, s[28:29] offset:{896*i} sc1")
    def bchk():
        A(f"v_max3_u32 {vr(ck)}, {vr(bl)}, {vr(bl+1)}, {vr(bl+2)}")
        for i in range(3, 15, 2): A(f"v_max3_u32 {vr(ck)}, {vr(ck)}, {vr(bl+i)}, {vr(bl+i+1)}")
        A(f"v_max_u32 {vr(ck)}, {vr(ck)}, {vr(bl+15)}")
    if DB > 1:
        bset()
        A("s_waitcnt vmcnt(0)")
        bchk()
        A(f"v_cmpx_eq_u32 vcc, -1, {vr(ck)}")
        A("s_cbranch_execz L_bdone")
        for _ in range(DB - 1):
            bset()
            for _ in range(GB): A("s_nop 7")
    if o2:
        hh_ = vT + 12; s1 = vT + 8
        A("L_bpoll:")
        bset()
        A("s_add_u32 s35, s35, 1"); A("s_cselect_b32 s47, -1, -2")
        A("s_mov_b64 exec, -1")
        A.c("h = x + sum of the 16 partials (matrix core does the unpack and the adds); discarded while a partial is missing")
        for i in range(4):
            A(f"s_waitcnt vmcnt({3-i})")
            A(f"v_mfma_f32_16x16x32_bf16 {vr(hh_,4)}, {vr(vDl,4)}, {vr(bl+4*i,4)}, {vr(vXr if i == 0 else hh_,4)}")
            if i == 0:
                A(f"v_max3_u32 {vr(ck)}, {vr(bl)}, {vr(bl+1)}, {vr(bl+2)}"); A(f"v_max_u32 {vr(ck)}, {vr(ck)}, {vr(bl+3)}")
            else:
                A(f"v_max3_u32 {vr(ck)}, {vr(ck)}, {vr(bl+4*i)}, {vr(bl+4*i+1)}"); A(f"v_max3_u32 {vr(ck)}, {vr(ck)}, {vr(bl+4*i+2)}, {vr(bl+4*i+3)}")
        A(f"v_cmpx_lt_u32 vcc, s47, {vr(ck)}")
        A("s_cbranch_execnz L_bpoll")
        A("s_mov_b64 exec, -1")
        stamp(10)
        A(f"v_mov_b32 {vr(vT)}, {L_HS}")
    else:
        A("L_bpoll:")
        if PB: A(f"s_sleep {PB}")
        bset()
        A("s_add_u32 s35, s35, 1")
        A(f"s_waitcnt vmcnt({4*(DB-1)})")
        bchk()
        A("s_cbranch_scc1 L_bdone")
        A(f"v_cmpx_eq_u32 vcc, -1, {vr(ck)}")
        A("s_cbranch_execnz L_bpoll")
        A("L_bdone:")
        A("s_mov_b64 exec, -1")
        stamp(10)
        A.c("h = x + sum of the 16 partials (matrix core does the unpack and the adds)")
        hh_ = vXr; s1 = vT + 8
        A(f"v_mov_b32 {vr(vT)}, {L_HS}")
        for i in range(4): A(f"v_mfma_f32_16x16x32_bf16 {vr(hh_,4)}, {vr(vDl,4)}, {vr(bl+4*i,4)}, {vr(hh_,4)}")
    for k in (0, 2): A(f"v_pk_fma_f32 {vr(vT+4+k,2)}, {vr(hh_+k,2)}, {vr(vKs,2)}, {vr(vKs,2)} op_sel:[0,0,1] op_sel_hi:[1,0,1]")
    A(f"ds_write_b128 {vr(vHw)}, {vr(hh_,4)}")
    A(f"v_pk_mul_f32 {vr(s1,2)}, {vr(hh_,2)}, {vr(vT+4,2)}")
    A(f"v_pk_fma_f32 {vr(s1,2)}, {vr(hh_+2,2)}, {vr(vT+6,2)}, {vr(s1,2)}")
    A(f"v_add_f32 {vr(s1)}, {vr(s1)}, {vr(s1+1)}")
    for sh in (8, 4, 2, 1):
        A(f"v_add_f32_dpp {vr(s1)}, {vr(s1)}, {vr(s1)} row_ror:{sh} row_mask:0xf bank_mask:0xf")
    A(f"v_add_f32_dpp {vr(s1)}, {vr(s1)}, {vr(s1)} row_bcast:15 row_mask:0xa bank_mask:0xf")
    A("s_mov_b64 exec, s[40:41]")
    A(f"ds_write_b32 {vr(vHsw)}, {vr(s1)}")
    A("s_mov_b64 exec, -1")
    A("s_waitcnt lgkmcnt(0)")
    A("s_barrier")
    A.c("LayerNorm(LayerNorm(h)) = (h - mu) * rsqrt(var*(1+eps) + eps^2), then the token MLP")
    h8 = vT + 4; hv = vT + 1
    A(f"ds_read_b128 {vr(h8,4)}, {vr(vT)}")
    A(f"ds_read_b128 {vr(h8+4,4)}, {vr(vT)} offset:16")
    A(f"ds_read_b32 {vr(hv)}, {vr(vHa)}")
    A(f"ds_read_b64 {vr(vHf,2)}, {vr(vHf)}")
    mu = vT + 2; rs = vT + 3
    A(f"v_mov_b32 {vr(vT+12)}, {f32(1e-10)}")
    A("s_waitcnt lgkmcnt(2)")
    A(f"v_pk_add_f32 {vr(h8,2)}, {vr(h8,2)}, {vr(h8+2,2)}")
    A(f"v_pk_add_f32 {vr(h8+4,2)}, {vr(h8+4,2)}, {vr(h8+6,2)}")
    A(f"v_pk_add_f32 {vr(mu,2)}, {vr(h8,2)}, {vr(h8+4,2)}")
    A(f"v_fma_f32 {vr(rs)}, -{vr(mu)}, {vr(mu)}, {vr(rs)}")
    A(f"v_fma_f32 {vr(rs)}, |{vr(rs)}|, s36, {vr(vT+12)}")
    A(f"v_rsq_f32 {vr(rs)}, {vr(rs)}")
    A("s_waitcnt lgkmcnt(1) vmcnt(0)")
    A(f"v_sub_f32 {vr(hv)}, {vr(hv)}, {vr(mu)}")
    A(f"v_mul_f32 {vr(hv)}, {vr(hv)}, {vr(rs)}")
    A(f"v_cvt_pk_bf16_f32 {vr(hv)}, {vr(hv)}, {vr(hv)}")
    A(f"v_and_b32 {vr(hv)}, s38, {vr(hv)}")
    X_ = vT + 4; Y = vT + 5; t1 = vT + 6; t2 = vT + 7; Am = vT + 8
    A(f"v_fma_f32 {vr(X_)}, {vr(hv)}, {vr(vK1)}, {vr(vK1+1)}"); A(f"v_mul_f32 {vr(X_)}, {vr(X_)}, {vr(hv)}")
    A(f"v_fma_f32 {vr(Y)}, {vr(X_)}, {vr(vK1)}, {vr(vK1+2)}")
    A(f"v_cvt_pk_bf16_f32 {vr(Am)}, {vr(X_)}, {vr(X_)}")
    A(f"v_mul_f32 {vr(Y)}, {vr(Y)}, {vr(hv)}")
    A(f"v_and_b32 {vr(t1)}, s38, {vr(Am)}")
    A(f"v_cvt_pk_bf16_f32 {vr(Am+2)}, {vr(Y)}, {vr(Y)}")
    A(f"v_sub_f32 {vr(X_)}, {vr(X_)}, {vr(t1)}")
    A(f"v_and_b32 {vr(t2)}, s38, {vr(Am+2)}")
    A(f"v_cvt_pk_bf16_f32 {vr(Am+1)}, {vr(X_)}, {vr(X_)}")
    A(f"v_sub_f32 {vr(Y)}, {vr(Y)}, {vr(t2)}")
    A(f"v_or_b32 {vr(Am+1)}, {vr(Am+1)}, {vr(vK1+3)}")
    A(f"v_cvt_pk_bf16_f32 {vr(Am+3)}, {vr(Y)}, {vr(Y)}")
    A(f"v_or_b32 {vr(Am+3)}, {vr(Am+3)}, {vr(vK1+4)}")
    A(f"v_cmp_nge_f32 vcc, s3, |{vr(hv)}|")
    stamp(11)
    Db = [vX, vX + 16, vX + 32]; acc = vT + 12; Dd = vRaw; Nn = vRaw + 8
    def mm(tile):
        A(f"v_mfma_f32_32x32x16_bf16 {vr(Db[tile%3],16)}, {vr(Am,4)}, {vr(vC+4*tile,4)}, 0")
    mm(0)
    A("s_waitcnt lgkmcnt(0)")
    A(f"v_add_f32 {vr(vHf)}, {vr(vHf)}, {vr(vB2)}"); A(f"v_add_f32 {vr(vHf+1)}, {vr(vHf+1)}, {vr(vB2)}")
    A(f"v_lshlrev_b32 {vr(vT)}, 3, v1"); A(f"v_add_u32 {vr(vT)}, {L_Y}, {vr(vT)}")
    if wb:
        A("s_cmp_eq_u32 s30, 0"); A("s_cselect_b32 s33, s32, 0"); A(f"s_cmp_ge_u32 s33, {32 - wb}"); A("s_cbranch_scc0 L_nowb"); A("buffer_wbl2 sc1"); A("L_nowb:")
    A("s_cbranch_vccnz L_fb")
    A.c("sum_f n_f / (1 + e_f) kept as one fraction N / D")
    if o3:
        def chain(k, D, Np, first):
            if first: return [f"v_pk_add_f32 {vr(Dd+k,2)}, {vr(D+k,2)}, 1.0 op_sel_hi:[1,0]"]
            return [f"v_pk_fma_f32 {vr(D+8+k,2)}, {vr(D+8+k,2)}, {vr(Dd+k,2)}, {vr(Np+k,2)}",
                    f"v_pk_fma_f32 {vr(Dd+k,2)}, {vr(Dd+k,2)}, {vr(D+k,2)}, {vr(Dd+k,2)}",
                    f"v_pk_fma_f32 {vr(Nn+k,2)}, {vr(Np+k,2)}, {vr(D+k,2)}, {vr(D+8+k,2)}"]
        for tile in range(14):
            D = Db[tile % 3]; P = Db[(tile - 1) % 3]
            if tile + 1 < 14: mm(tile + 1)
            odd = tile & 1
            if odd:
                if tile == 1: A(f"v_mov_b32 {vr(Nn+6)}, {vr(P+14)}"); A(f"v_mov_b32 {vr(Nn+7)}, {vr(D+14)}")
                else: A(f"v_mov_b32 {vr(P+15)}, {vr(D+14)}")
            for i in range(6): A(f"v_exp_f32 {vr(D+i)}, {vr(D+i)}")
            A(f"v_exp_f32 {vr(P+7 if odd else D+6)}, {vr(D+6)}")
            ch = [chain(k, D, Db[0] + 8 if tile == 1 else Nn, tile == 0) for k in (0, 2, 4)]
            if odd: ch.append(chain(6, P, Nn, tile == 1))
            for st in range(3):
                for c_ in ch:
                    if len(c_) == 3: A(c_[st])
                    elif st == (0 if tile == 0 else 1): A(c_[0])
        for i in (6, 7, 0, 1, 2, 3, 4, 5): A(f"v_rcp_f32 {vr(Dd+i)}, {vr(Dd+i)}")
        A(f"v_mul_f32 {vr(acc+6)}, {vr(Nn+6)}, {vr(Dd+6)}"); A(f"v_fmac_f32 {vr(acc+6)}, {vr(Nn+7)}, {vr(Dd+7)}")
        for k in (0, 2, 4): A(f"v_pk_mul_f32 {vr(acc+k,2)}, {vr(Nn+k,2)}, {vr(Dd+k,2)}")
    else:
        for tile in range(14):
            D = Db[tile % 3]
            if tile + 1 < 14: mm(tile + 1)
            for i in range(7): A(f"v_exp_f32 {vr(D+i)}, {vr(D+i)}")
            if tile == 0:
                for k in range(0, 8, 2): A(f"v_pk_add_f32 {vr(Dd+k,2)}, {vr(D+k,2)}, 1.0 op_sel_hi:[1,0]")
                continue
            Np = Db[0] + 8 if tile == 1 else Nn
            for k in range(0, 8, 2): A(f"v_pk_fma_f32 {vr(D+8+k,2)}, {vr(D+8+k,2)}, {vr(Dd+k,2)}, {vr(Np+k,2)}")
            for k in range(0, 8, 2): A(f"v_pk_fma_f32 {vr(Dd+k,2)}, {vr(Dd+k,2)}, {vr(D+k,2)}, {vr(Dd+k,2)}")
            for k in range(0, 8, 2): A(f"v_pk_fma_f32 {vr(Nn+k,2)}, {vr(Np+k,2)}, {vr(D+k,2)}, {vr(D+8+k,2)}")
        for i in range(7): A(f"v_rcp_f32 {vr(Dd+i)}, {vr(Dd+i)}")
        for k in range(0, 8, 2): A(f"v_pk_mul_f32 {vr(acc+k,2)}, {vr(Nn+k,2)}, {vr(Dd+k,2)}")
    A("L_fbd:")
    A("s_cmp_eq_u32 s30, 1")
    def ool_fb():
        A("L_fb:")
        A.c("direct evaluation (large activations or weights)")
        hh = vRaw; fa = vRaw + 8; w_ = vRaw + 9; b_ = vRaw + 10; u_ = vRaw + 11; x_ = vRaw + 12; p_ = vRaw + 13; al = vRaw + 14
        A(f"v_lshrrev_b32 {vr(fa)}, 5, v0"); A(f"v_mul_u32_u24 {vr(fa)}, 28, {vr(fa)}")
        A("s_mul_i32 s33, s32, 56"); A(f"s_add_u32 s33, s33, {L_H}"); A(f"v_add_u32 {vr(fa)}, s33, {vr(fa)}")
        for i in range(7): A(f"ds_read_b32 {vr(hh+i)}, {vr(fa)} offset:{4*i}")
        A(f"v_and_b32 {vr(fa)}, 31, v0"); A(f"v_lshlrev_b32 {vr(fa)}, 1, {vr(fa)}")
        A("s_mul_i32 s33, s30, 896"); A(f"v_add_u32 {vr(fa)}, s33, {vr(fa)}")
        A(f"s_mov_b32 s33, {f32(BETA)}"); A(f"v_mov_b32 {vr(al)}, {f32(ALPHA)}")
        for i in range(8): A(f"v_mov_b32 {vr(acc+i)}, 0")
        A("s_waitcnt lgkmcnt(0)")
        for i in range(7):
            A(f"v_sub_f32 {vr(hh+i)}, {vr(hh+i)}, {vr(mu)}"); A(f"v_mul_f32 {vr(hh+i)}, {vr(hh+i)}, {vr(rs)}")
            A(f"v_cvt_pk_bf16_f32 {vr(hh+i)}, {vr(hh+i)}, {vr(hh+i)}"); A(f"v_and_b32 {vr(hh+i)}, s38, {vr(hh+i)}")
        A("s_mov_b32 s34, 0")
        A("L_fbl:")
        A(f"global_load_ushort {vr(w_)}, {vr(fa)}, s[16:17]"); A(f"global_load_ushort {vr(b_)}, {vr(fa)}, s[18:19]"); A(f"global_load_ushort {vr(u_)}, {vr(fa)}, s[20:21]")
        A(f"v_add_u32 {vr(fa)}, 64, {vr(fa)}")
        A("s_waitcnt vmcnt(0)")
        for r_ in (w_, b_, u_): A(f"v_lshlrev_b32 {vr(r_)}, 16, {vr(r_)}")
        for i in range(7):
            A(f"v_fma_f32 {vr(x_)}, {vr(w_)}, {vr(hh+i)}, {vr(b_)}")
            A(f"v_mul_f32 {vr(p_)}, {vr(x_)}, {vr(x_)}"); A(f"v_fma_f32 {vr(p_)}, {vr(p_)}, s33, {vr(al)}"); A(f"v_mul_f32 {vr(p_)}, {vr(p_)}, {vr(x_)}")
            A(f"v_exp_f32 {vr(p_)}, {vr(p_)}"); A(f"v_add_f32 {vr(p_)}, 1.0, {vr(p_)}"); A(f"v_rcp_f32 {vr(p_)}, {vr(p_)}")
            A(f"v_mul_f32 {vr(x_)}, {vr(x_)}, {vr(p_)}"); A(f"v_fmac_f32 {vr(acc+i)}, {vr(x_)}, {vr(u_)}")
        A("s_add_u32 s34, s34, 1"); A("s_cmp_lt_u32 s34, 14"); A("s_cbranch_scc1 L_fbl")
        A("s_branch L_fbd")
    OOL.append(ool_fb)
    stamp(12)
    for k in range(4): A(f"v_add_f32_dpp {vr(acc+2*k)}, {vr(acc+2*k)}, {vr(acc+2*k)} row_ror:8 row_mask:0xf bank_mask:0x3")
    for k in range(3): A(f"v_add_f32_dpp {vr(acc+2*k)}, {vr(acc+2*k+1)}, {vr(acc+2*k+1)} row_ror:8 row_mask:0xf bank_mask:0xc")
    for k in range(2): A(f"v_add_f32_dpp {vr(acc+4*k)}, {vr(acc+4*k)}, {vr(acc+4*k)} row_shl:4 row_mask:0xf bank_mask:0x5")
    for k in range(2): A(f"v_add_f32_dpp {vr(acc+4*k)}, {vr(acc+4*k+2)}, {vr(acc+4*k+2)} row_shr:4 row_mask:0xf bank_mask:0xa")
    A(f"v_permlane16_swap_b32 {vr(acc)}, {vr(acc+4)}")
    A(f"v_add_f32 {vr(acc)}, {vr(acc)}, {vr(acc+4)}")
    A(f"v_add_f32_dpp {vr(acc)}, {vr(acc)}, {vr(acc)} quad_perm:[1,0,3,2] row_mask:0xf bank_mask:0xf")
    A(f"v_add_f32_dpp {vr(acc)}, {vr(acc)}, {vr(acc)} quad_perm:[2,3,0,1] row_mask:0xf bank_mask:0xf")
    A(f"ds_write_b32 {vr(vYa)}, {vr(acc)}")
    A("s_mov_b64 exec, 0x7f")
    A("s_waitcnt lgkmcnt(0)")
    A("s_barrier")
    A("s_cbranch_scc0 L_fin")
    A(f"ds_read2_b64 {vr(vT+4,4)}, {vr(vT)} offset0:0 offset1:8")
    A(f"ds_read2_b64 {vr(vT+8,4)}, {vr(vT)} offset0:16 offset1:24")
    A("s_waitcnt lgkmcnt(1)")
    A(f"v_pk_add_f32 {vr(vHf,2)}, {vr(vHf,2)}, {vr(vT+4,2)}"); A(f"v_pk_add_f32 {vr(vHf,2)}, {vr(vHf,2)}, {vr(vT+6,2)}")
    A("s_waitcnt lgkmcnt(0)")
    A(f"v_pk_add_f32 {vr(vHf,2)}, {vr(vHf,2)}, {vr(vT+8,2)}"); A(f"v_pk_add_f32 {vr(vHf,2)}, {vr(vHf,2)}, {vr(vT+10,2)}")
    A(f"v_cvt_pk_bf16_f32 {vr(vT+2)}, {vr(vHf)}, {vr(vHf+1)}")
    A(f"global_store_dword {vr(vOut)}, {vr(vT+2)}, s[24:25] {outpol}")
    A("L_fin:")
    stamp(13)
    if amp:
        A(f"s_cmp_eq_u32 s30, {amp[0]}"); A("s_cbranch_scc0 L_end")
        A("s_waitcnt lgkmcnt(0)")
        A(f"s_sub_u32 s33, s{64+2*amp[1]}, s{64+2*amp[2]}")
        if amp[3] < 0: A("s_sub_u32 s33, 3000, s33")
        A("s_min_u32 s33, s33, 5000"); A("s_lshl_b32 s33, s33, 3"); A("s_add_u32 s33, s33, 4000")
        A("L_amp:")
        A("s_memrealtime s[34:35]"); A("s_waitcnt lgkmcnt(0)"); A("s_sub_u32 s34, s34, s64")
        A("s_cmp_lt_u32 s34, s33"); A("s_cbranch_scc1 L_amp")
    if gamp:
        A("s_cmp_eq_u32 s30, 1"); A("s_cbranch_scc0 L_end")
        A("s_waitcnt lgkmcnt(0)")
        A(f"s_mov_b32 s36, s{64+2*gamp[0]}")
        A(f"s_not_b32 s37, s{64+2*gamp[1]}" if gamp[2] == "min" else f"s_mov_b32 s37, s{64+2*gamp[1]}")
        A("s_atomic_umax s36, s[26:27], 192"); A("s_atomic_umax s37, s[26:27], 196"); A("s_waitcnt lgkmcnt(0)")
        A("s_cmp_eq_u32 s2, 0"); A("s_cbranch_scc0 L_end")
        A("L_g1:")
        A("s_memrealtime s[34:35]"); A("s_waitcnt lgkmcnt(0)"); A("s_sub_u32 s34, s34, s64")
        A("s_cmp_lt_u32 s34, 3800"); A("s_cbranch_scc1 L_g1")
        A("s_load_dwordx2 s[36:37], s[26:27], 192 glc"); A("s_waitcnt lgkmcnt(0)")
        if gamp[2] == "min": A("s_not_b32 s37, s37")
        A("s_sub_u32 s33, s36, s37"); A("s_min_u32 s33, s33, 5000"); A("s_lshl_b32 s33, s33, 3"); A("s_add_u32 s33, s33, 4000")
        A("L_g2:")
        A("s_memrealtime s[34:35]"); A("s_waitcnt lgkmcnt(0)"); A("s_sub_u32 s34, s34, s64")
        A("s_cmp_lt_u32 s34, s33"); A("s_cbranch_scc1 L_g2")
    if rnd:
        A("s_cmp_eq_u32 s30, 0"); A("s_cselect_b32 s33, s2, 1"); A("s_cmp_eq_u32 s33, 0"); A("s_cbranch_scc0 L_end")
        A("s_memrealtime s[64:65]"); A("s_waitcnt lgkmcnt(0)")
        A("s_lshr_b32 s33, s64, 2"); A("s_mul_i32 s33, s33, 0x9e3779b1"); A("s_lshr_b32 s34, s33, 15"); A("s_xor_b32 s33, s33, s34"); A("s_mul_i32 s33, s33, 0x85ebca6b")
        A("s_lshr_b32 s33, s33, 19")
        A("L_rnd:")
        A("s_memrealtime s[34:35]"); A("s_waitcnt lgkmcnt(0)"); A("s_sub_u32 s34, s34, s64")
        A("s_cmp_lt_u32 s34, s33"); A("s_cbranch_scc1 L_rnd")
    dump_stamps(15)
    A("L_end:")
    A("s_endpgm")
    for f in OOL: f()
    A(".fill 1024, 4, 0xbf810000")

    body, nn = fix_hazards(A.L)
    head = [l.rstrip("\n") for l in open("header.txt")]
    head.append(f"; @launch grid=(256,1,1) block=(512,1,1) lds={L_END}")
    head += ['.amdgcn_target "amdgcn-amd-amdhsa--gfx950"', ".text"] + ([".p2align 12"] if al else []) + ([f".fill {pad // 4}, 4, 0xbf810000"] if pad else []) + [f".globl {NAME}", ".p2align 8", f".type {NAME},@function"]
    tail = ['.section .rodata,"a"', ".p2align 6", f".amdhsa_kernel {NAME}",
            "  .amdhsa_next_free_vgpr 256", "  .amdhsa_next_free_sgpr 96", "  .amdhsa_accum_offset 256",
            "  .amdhsa_group_segment_fixed_size 0", "  .amdhsa_kernarg_size 104", "  .amdhsa_user_sgpr_count 2",
            "  .amdhsa_user_sgpr_kernarg_segment_ptr 1", "  .amdhsa_system_sgpr_workgroup_id_x 1",
            "  .amdhsa_float_denorm_mode_32 3", ".end_amdhsa_kernel"]
    return "\n".join(head + body + tail) + "\n"

if __name__ == "__main__":
    kw = eval("dict(" + (sys.argv[2] if len(sys.argv) > 2 else "") + ")")
    open(sys.argv[1], "w").write(gen(**kw))
```

```python
import sys, struct, math
from asmlib import *

NAME = "sequential_preLN__sliding_block_cached__mixer_token_mlp__decode_kernel"
def f32(x): return "0x%08x" % struct.unpack("<I", struct.pack("<f", x))[0]

L_K = 0; L_WQ = 131072; L_Q = 145408; L_STAT = 146432; L_OP = 146688; L_PP = 154880; L_H = 158976; L_HS = 161024; L_Y = 161088
L_END = 161344
L_X = L_OP
W_Q = 0
W_L = 0xA0000
W_O = 0x40000
W_B = 0x80000
W_ALT = 0x100000
W_STAMP = 0x200000
SPIN = 0x20000
STAMP_VIEW = [("S", slice(4, 8), [0, 8, 6, 7, 1, 2, 3, 4, 5]), ("T0", 0, [0, 1, 3, 4, 14]), ("T3L", 3, [0, 1, 4], slice(224, 256)),
              ("T1", 1, [0, 4, 2, 5, 6, 7, 8, 9, 10, 11, 12, 13]), ("Tall", slice(0, 4), [5, 6, 7, 8, 9, 10, 11, 12, 13])]
ALPHA = -2.0 * math.sqrt(2.0 / math.pi) * math.log2(math.e)
BETA = ALPHA * 0.044715

def gen(W=8, QPOS=4, QD=2, FT=-1, stamps=False, force_slow=False, pol="nt", vpol=None, qpol="nt", opol="nt", opol2="nt", spol="", skip="",
        pref=True, opos="mid", qx=16, force_fb=False, touch=False, amp=None, DA=1, DB=1, rotm=1, PB=0, NL=1, EP=0, inst=0, spf=2, WE=0, WEN=64, WE0=8, WEM=0x55, NLD=4, LD0=8, qpace=0, prio=0, QT=0, GA=0, GB=0, cpos="early", N1=8, c1=True, NE=0, o1=True, o2=True, o3=True, ap=2, NB=0, pos='r1 j1 r3 j0 s0 r2 s1 t0 t1', rot='r3=c', wb=1, wbs=0, ks=0, b0=0, b0n=0, rnd=0, tl_=0, tlw=2, gamp=None, wq1=0, wbr=31, lw=True, pad=0, al=1, tal=0, warm=0, outpol='', hack="", bx="ab", PB0=0):
    A = Asm()
    c1_ = c1
    OOL = []
    def stamp(i):
        if stamps or (amp and i in (amp[1], amp[2], 0)) or (gamp and i in (gamp[0], gamp[1], 0)): A(f"s_memrealtime s[{64+2*i}:{65+2*i}]")
    def dump_stamps(nst):
        if not stamps: return
        A("s_waitcnt lgkmcnt(0) vmcnt(0)")
        A("s_lshl_b32 s94, s2, 3"); A("s_add_u32 s94, s94, s30"); A("s_lshl_b32 s94, s94, 6"); A(f"s_add_u32 s94, s94, {W_STAMP}")
        A("s_mov_b64 exec, 1")
        A("v_mov_b32 v4, s94")
        for i in range(nst):
            A(f"v_mov_b32 v5, s{64+2*i}")
            A(f"global_store_dword v4, v5, s[28:29] offset:{4*i}")
        A("s_getreg_b32 s94, hwreg(HW_REG_XCC_ID, 0, 4)"); A("v_mov_b32 v5, s94")
        A("global_store_dword v4, v5, s[28:29] offset:60")
        A("s_waitcnt vmcnt(0)")

    A(f"{NAME}:")
    stamp(0)
    A("s_load_dwordx16 s[4:19], s[0:1], 0" if ks != 2 else "s_load_dwordx8 s[4:11], s[0:1], 0")
    if not ks or stamps:
        A("s_load_dwordx8 s[20:27], s[0:1], 64")
        A("s_load_dwordx2 s[28:29], s[0:1], 96")
    A("v_lshrrev_b32 v1, 6, v0")
    A("s_lshr_b32 s32, s2, 3")
    A("v_readfirstlane_b32 s30, v1")
    A("s_cmp_ge_u32 s32, 32")
    A("s_cbranch_scc1 L_end")
    A("v_and_b32 v0, 63, v0")
    A("s_and_b32 s31, s2, 7")
    A("v_lshlrev_b32 v3, 4, v0")
    A("s_cmp_lt_u32 s30, 4")
    A("s_cbranch_scc1 L_T")

    A.c("================ stream waves")
    V = Alloc(4, 256)
    vK = V(8); vVo = V(8); vKA = V(4); vM = V(4); vT = V(8); vOPa = V(2); vQA = V(); vSTw = V(); vSTr = V()
    vS = V(16); vAcc = vK; vQ = V(32); vKF = V(32); vVv = V(128)
    vA = vQ
    assert vKF == vQ + 32
    P = {nm: 10 + k for k, nm in enumerate(pos.split())}
    SRC = dict(a=("s2", 3), b=("s2", 4), c=("s2", 5), d=("s2", 6), e=("s2", 7), x=("s2", 0), y=("s2", 1), z=("s2", 2), p=("s30", 0), q=("s30", 1))
    R = {k: v for k, v in (x.split("=") for x in rot.split())}
    def gaddr(i): return sum(((i >> k) & 1) << P[f"r{k+1}"] for k in range(3))
    def X(i): return ((8*(i & 1) + (i >> 1)) << 4) | gaddr(i)
    def parity(dst, key):
        for n_, ch in enumerate(R[key]):
            reg, bit = SRC[ch]
            if n_ == 0: A(f"s_bfe_u32 {dst}, {reg}, {hex(0x10000 | bit)}")
            else: A(f"s_bfe_u32 s39, {reg}, {hex(0x10000 | bit)}"); A(f"s_xor_b32 {dst}, {dst}, s39")
    A("s_lshr_b32 s34, s2, 5"); A("s_lshl3_add_u32 s34, s34, s31"); A("s_lshl2_add_u32 s34, s34, 3"); A("s_lshl_b32 s40, s34, 19")
    def field(reg, bit, n0, n1):
        if P[n1] == P[n0] + 1:
            A(f"s_bfe_u32 s35, {reg}, {hex(0x20000 | bit)}"); A(f"s_lshl_b32 s35, s35, {P[n0]}"); A("s_or_b32 s40, s40, s35")
        else:
            for k, nm in enumerate((n0, n1)):
                A(f"s_bitcmp1_b32 {reg}, {bit + k}"); A(f"s_cselect_b32 s35, {1 << P[nm]}, 0"); A("s_or_b32 s40, s40, s35")
    field("s2", 3, "s0", "s1"); field("s30", 0, "j0", "j1")
    for nm in ("t0", "t1"):
        if nm in R: parity("s35", nm); A(f"s_lshl_b32 s35, s35, {P[nm]}"); A("s_or_b32 s40, s40, s35")
    tlx = [((tl & 1) << P["t0"]) | ((tl >> 1) << P["t1"]) for tl in range(4)]
    A("s_sub_u32 s33, s30, 4")
    A("s_lshl_b32 s37, s33, 15")
    A("s_mov_b32 s44, s37"); A("s_mov_b32 s38, 0"); A("s_mov_b32 s60, 0")
    for k in range(3):
        if f"r{k+1}" in R:
            parity("s35", f"r{k+1}")
            A(f"s_mul_i32 s36, s35, {X(1 << k)}"); A("s_or_b32 s38, s38, s36")
            A(f"s_lshl_b32 s36, s35, {10 + k}"); A("s_or_b32 s44, s44, s36")
            if k: A(f"s_lshl{k-1}_add_u32 s60, s35, s60" if k > 1 else "s_add_u32 s60, s35, s60")
    A(f"v_and_b32 {vr(vT)}, 32, v0"); A(f"v_lshlrev_b32 {vr(vT)}, 1, {vr(vT)}")
    A(f"v_xor_b32 {vr(vT)}, {vr(vT)}, v3")
    A(f"v_xor_b32 {vr(vK)}, s38, {vr(vT)}")
    if prio == 2: A("s_setprio 3")
    A("s_brev_b32 s54, 16"); A("s_mov_b32 s55, 0x20000")
    A("s_mov_b32 m0, s44")
    A("s_waitcnt lgkmcnt(0)")
    A("s_mov_b64 s[52:53], s[6:7]")
    stamp(8)
    issued = [0]
    def throttle():
        if WE and WE0 <= issued[0] < WE0 + WEN:
            A(f"s_cbranch_vccz L_th{issued[0]}"); A(f"s_waitcnt vmcnt({abs(WE)-1})"); A(f"L_th{issued[0]}:")
        if issued[0] >= W: A(f"s_waitcnt vmcnt({W-1})")
        issued[0] += 1
    def kload(tl, i):
        if tl or i: A(f"s_xor_b32 m0, s44, {(tl << 13) | (i << 10)}")
        if tl == 0 and i: A(f"v_xor_b32 {vr(vK+i)}, {X(i)}, {vr(vK)}")
        throttle()
        A(f"buffer_load_dwordx4 {vr(vK+i)}, s[52:55], s{40+tl} offen {pol} lds")
    for i in range(8):
        if b0 and i == b0n: A("s_barrier")
        kload(0, i)
    A("s_branch L_S2")

    A("L_T:")
    A.c("================ tail waves")
    if ks == 2: A("s_load_dwordx8 s[12:19], s[0:1], 32")
    if ks and not stamps:
        A("s_load_dwordx8 s[20:27], s[0:1], 64")
        A("s_load_dwordx2 s[28:29], s[0:1], 96")
    V = Alloc(4, 256)
    vC = V(56); vW = V(32); vRaw = V(32); vX = V(56); tT = V(24)
    vXr = V(4); vDl = V(4); vQs = V(8); vG = V(4); vK1 = V(5); vHa = V(); vKs = V(2); vHf = V(2)
    vYa = V(); vLa = V(); vOa = V(); vPPa = V(); vBst = V(); vOst = V(); vLst = V(); vLse = V()
    vBa = V(); vHw = V(); vHsw = V(); vOut = V(); vB2 = V(); vQa = V(); vOPr = V(); vPPr = V(); vWa = V(2); vQw = V(); vWr = V()
    assert vRaw == vW + 32
    raw = vRaw if cpos == "early" else vX + 32
    def prep_loads():
        t = tT + 14
        A.c("MLP weights, residual row piece, b2")
        if c1_:
            A("s_mul_i32 s33, s30, 896")
            A(f"v_mul_u32_u24 {vr(t)}, 12, v0"); A(f"v_add_u32 {vr(t)}, {508 - 384}, {vr(t)}")
            A("v_cmp_lt_u32 vcc, 31, v0"); A(f"v_cndmask_b32 {vr(t)}, v3, {vr(t)}, vcc"); A(f"v_add_u32 {vr(t)}, s33, {vr(t)}")
            for k, sp in enumerate((16, 18, 20)):
                A(f"global_load_dwordx4 {vr(raw+8*k,4)}, {vr(t)}, s[{sp}:{sp+1}] {spol}")
        else:
            A(f"v_and_b32 {vr(t)}, 31, v0")
            A("s_mul_i32 s33, s30, 896")
            A(f"v_lshlrev_b32 {vr(t+1)}, 4, {vr(t)}"); A(f"v_add_u32 {vr(t+1)}, s33, {vr(t+1)}")
            A(f"v_lshlrev_b32 {vr(t+2)}, 3, {vr(t)}"); A(f"v_add_u32 {vr(t+2)}, s33, {vr(t+2)}")
            A(f"v_lshlrev_b32 {vr(t+3)}, 2, {vr(t)}"); A(f"v_add_u32 {vr(t+3)}, s33, {vr(t+3)}")
            for k, sp in enumerate((16, 18, 20)):
                A(f"global_load_dwordx4 {vr(raw+8*k,4)}, {vr(t+1)}, s[{sp}:{sp+1}] {spol}")
                A(f"global_load_dwordx2 {vr(raw+8*k+4,2)}, {vr(t+2)}, s[{sp}:{sp+1}] offset:512 {spol}")
                A(f"global_load_dword {vr(raw+8*k+6)}, {vr(t+3)}, s[{sp}:{sp+1}] offset:768 {spol}")
        A(f"v_min_u32 {vr(t)}, 13, v1"); A(f"v_and_b32 {vr(t+1)}, 1, v2")
        A("s_mul_i32 s33, s31, 896"); A("s_mul_i32 s34, s30, 224"); A("s_add_u32 s33, s33, s34")
        A(f"v_lshlrev_b32 {vr(t)}, 4, {vr(t)}"); A(f"v_lshl_add_u32 {vr(t)}, {vr(t+1)}, 3, {vr(t)}"); A(f"v_add_u32 {vr(t)}, s33, {vr(t)}")
        A(f"global_load_dwordx2 {vr(vXr+2,2)}, {vr(t)}, s[4:5] {spol}")
        A(f"v_mov_b32 {vr(t+2)}, 0")
        A(f"global_load_ushort {vr(vB2)}, {vr(t+2)}, s[22:23] {spol}")
    A("v_and_b32 v1, 15, v0")
    A("v_lshrrev_b32 v2, 4, v0")
    A("s_lshl_b32 s63, s31, 2")
    A(f"v_mov_b32 {vr(vQw)}, 0")
    if b0: A("s_mov_b32 s46, 0")
    if "T" in skip:
        A("s_waitcnt lgkmcnt(0)"); A("s_barrier"); A("s_barrier"); A("s_barrier")
        if NL: A("s_barrier")
        A("s_branch L_b3")
    A("s_cmp_eq_u32 s30, 0"); A("s_cbranch_scc1 L_T0")
    A("s_cmp_eq_u32 s30, 3"); A("s_cbranch_scc1 L_T3")
    if spf:
        A("s_cmp_eq_u32 s30, 1"); A("s_cbranch_scc1 L_T1")
    if pref:
        if not spf: A("s_cmp_eq_u32 s30, 2"); A("s_cbranch_scc0 L_prepw")
        A.c("T2: pull the code into this XCD's L2")
        A("s_getpc_b64 s[34:35]")
        A("L_pc:")
        A(f"s_sub_u32 s34, s34, L_pc-{NAME}"); A("s_subb_u32 s35, s35, 0")
        A("s_mul_i32 s33, s32, 640")
        A(f"v_min_u32 {vr(tT)}, 9, v0"); A(f"v_lshlrev_b32 {vr(tT)}, 6, {vr(tT)}"); A(f"v_add_u32 {vr(tT)}, s33, {vr(tT)}")
        A(f"global_load_dword {vr(tT+2)}, {vr(tT)}, s[34:35]")
    A("s_branch L_prepw")
    if spf:
        A("L_T1:")
        A.c("T1: pull 14 rows of the wq column block that r=28..31 read (and of the last block) into L2")
        A("s_mul_i32 s33, s32, 14*8192"); A("s_lshl_b32 s34, s31, 10"); A("s_add_u32 s33, s33, s34"); A("s_addk_i32 s33, 384")
        A(f"v_min_u32 {vr(tT)}, 13, v1"); A(f"v_lshlrev_b32 {vr(tT)}, 13, {vr(tT)}")
        A(f"v_and_b32 {vr(tT+1)}, 1, v2"); A(f"v_lshl_add_u32 {vr(tT)}, {vr(tT+1)}, 6, {vr(tT)}")
        A(f"v_lshrrev_b32 {vr(tT+1)}, 1, v2"); A(f"v_lshl_add_u32 {vr(tT)}, {vr(tT+1)}, 9, {vr(tT)}")
        A(f"v_add_u32 {vr(tT)}, s33, {vr(tT)}")
        A("s_cmp_eq_u32 s31, 7"); A("s_cselect_b32 exec_hi, -1, 0")
        if spf == 2: A("s_and_b32 exec_hi, exec_hi, 0xffff"); A("s_mov_b32 exec_lo, 0xffff")
        A("s_waitcnt lgkmcnt(0)")
        A(f"global_load_dword {vr(tT+2)}, {vr(tT)}, s[10:11]")
        A("s_mov_b64 exec, -1")
        A("s_branch L_prepw")
    A("L_T3:")
    A.c(f"T3 of {NLD} workgroup(s) per group: clear a share of the group's q and lse slots, then count in")
    per = 4 // NLD
    A(f"s_sub_u32 s36, s32, {LD0}"); A(f"s_cmp_lt_u32 s36, {NLD}"); A("s_cbranch_scc0 L_prepw")
    for i in range(4): A(f"v_mov_b32 {vr(tT+4+i)}, -1")
    A("s_getreg_b32 s34, hwreg(HW_REG_XCC_ID, 0, 4)")
    if per > 1: A(f"s_mul_i32 s34, s34, {0x1111 & ((1 << (4*per)) - 1)}"); A(f"s_mul_i32 s36, s36, {per}")
    A("s_lshl_b32 s33, s36, 2"); A("s_lshl_b32 s34, s34, s33"); A(f"s_bitset1_b32 s34, {16 + per.bit_length() - 1}")
    A("s_lshl2_add_u32 s33, s31, s36"); A("s_lshl_b32 s35, s33, 13"); A(f"v_add_u32 {vr(tT)}, s35, v3")
    A("s_lshl_b32 s33, s33, 6"); A(f"s_add_u32 s33, s33, {W_L}")
    A(f"v_add_u32 {vr(tT+2)}, s33, v3")
    A("s_waitcnt lgkmcnt(0)")
    for k in range(2*per):
        for i in range(4): A(f"global_store_dwordx4 {vr(tT)}, {vr(tT+4,4)}, s[28:29] offset:{1024*i}")
        if k < 2*per - 1: A(f"v_add_u32 {vr(tT)}, 4096, {vr(tT)}")
    A(f"s_mov_b64 exec, {(1 << (4*per)) - 1}")
    A(f"global_store_dwordx4 {vr(tT+2)}, {vr(tT+4,4)}, s[28:29]")
    A("s_mov_b64 exec, -1")
    if b0:
        A("s_mov_b32 s46, s34")
    else:
        A("s_waitcnt vmcnt(0)")
        A("s_atomic_add s34, s[26:27], s63")
        stamp(1)
    A("s_branch L_prepw")
    A("L_T0:")
    A.c("T0: x into LDS, clear this workgroup's share of the hand-off slots (acknowledged before q is published)")
    A(f"v_lshrrev_b32 {vr(vQw)}, 3, v0"); A(f"v_lshlrev_b32 {vr(vQw)}, 13, {vr(vQw)}"); A(f"v_and_b32 {vr(tT)}, 0x70, v3"); A(f"v_or_b32 {vr(vQw)}, {vr(vQw)}, {vr(tT)}")
    A(f"s_xor_b32 s34, s32, {qx}"); A("s_lshr_b32 s35, s34, 2"); A("s_lshl3_add_u32 s50, s31, s35"); A("s_lshl_b32 s50, s50, 7")
    A("s_and_b32 s48, s34, 3"); A("s_mul_i32 s34, s48, 112*8192"); A("s_add_u32 s50, s50, s34")
    qstep = 0x10000
    if "8" in hack:
        A(f"v_lshlrev_b32 {vr(vQw)}, 13, v2"); A(f"v_lshl_add_u32 {vr(vQw)}, v1, 4, {vr(vQw)}")
        A("s_lshr_b32 s35, s32, 3"); A("s_lshl2_add_u32 s50, s31, s35"); A("s_lshl_b32 s50, s50, 8")
        A("s_and_b32 s34, s32, 7"); A("s_mul_i32 s34, s34, 56*8192"); A("s_add_u32 s50, s50, s34"); qstep = 0x8000
    if "C" in hack:
        A(f"v_mov_b32 {vr(vQw)}, v3"); A("s_mul_i32 s50, s2, 14336"); qstep = 1024
    A("s_movk_i32 s58, 7168"); A("s_mov_b32 s59, 0x20000"); A("s_movk_i32 s35, 4096")
    A(f"s_mov_b32 m0, {L_X}")
    A("s_lshl_b32 s33, s31, 15"); A("s_lshl_b32 s34, s32, 10"); A("s_add_u32 s33, s33, s34"); A(f"s_add_u32 s33, s33, {W_O}")
    A(f"v_add_u32 {vr(tT)}, s33, v3")
    A("s_mul_i32 s33, s31, 14336"); A("s_min_u32 s34, s32, 27"); A("s_lshl_b32 s34, s34, 9"); A("s_add_u32 s33, s33, s34"); A(f"s_add_u32 s33, s33, {W_B}")
    A(f"v_add_u32 {vr(tT+1)}, s33, v3")
    for i in range(4): A(f"v_mov_b32 {vr(vW+i)}, -1")
    A("s_waitcnt lgkmcnt(0)")
    A("s_mov_b64 s[56:57], s[4:5]")
    for t in range(4 if "x" not in hack else 0): A(f"buffer_load_dwordx4 v3, s[56:59], 0 offen offset:{1024*t} {spol} lds")
    A(f"s_mov_b32 m0, {L_X + 4096}")
    for t in range(3 if "x" not in hack else 0): A(f"buffer_load_dwordx4 v3, s[56:59], s35 offen offset:{1024*t} {spol} lds")
    A(f"global_store_dwordx4 {vr(tT)}, {vr(vW,4)}, s[28:29]")
    A.c("r = 28..31 repeat the share of r = 27 with one lane")
    A("s_cmp_lt_u32 s32, 28"); A("s_cselect_b32 exec_lo, -1, 1"); A("s_mov_b32 exec_hi, 0")
    A(f"global_store_dwordx4 {vr(tT+1)}, {vr(vW,4)}, s[28:29] sc1")
    A("s_mov_b64 exec, -1")
    A("s_branch L_prepw")

    A("L_S2:")
    A("v_and_b32 v1, 15, v0")
    A("v_lshrrev_b32 v2, 4, v0")
    for tl in range(1, 4): A(f"s_xor_b32 s{40+tl}, s40, {tlx[tl]}")
    A("s_mov_b64 s[56:57], s[8:9]"); A("s_mov_b32 s58, s54"); A("s_mov_b32 s59, 0x20000")
    if "d" in R: parity("s61", "d"); A("s_lshl_b32 s61, s61, 8")
    else: A("s_mov_b32 s61, 0")
    A(f"v_and_b32 {vr(vT)}, 1, v2"); A(f"v_lshlrev_b32 {vr(vT)}, 9, {vr(vT)}"); A(f"v_lshl_add_u32 {vr(vT)}, v1, 4, {vr(vT)}")
    A(f"v_lshrrev_b32 {vr(vT+1)}, 1, v2"); A(f"v_lshl_add_u32 {vr(vT)}, {vr(vT+1)}, {P['r1']}, {vr(vT)}")
    A(f"s_and_b32 s35, s38, {gaddr(6)}"); A("s_or_b32 s35, s35, s61")
    A(f"v_or_b32 {vr(vVo)}, s35, {vr(vT)}")
    for e in range(1, 8): A(f"v_xor_b32 {vr(vVo+e)}, {gaddr(e & 6) | ((e & 1) << 8)}, {vr(vVo)}")
    A(f"v_xor_b32 {vr(vT+3)}, s60, v1")
    A(f"v_and_b32 {vr(vT)}, 3, {vr(vT+3)}"); A(f"v_lshrrev_b32 {vr(vT+1)}, 2, v1")
    A(f"v_lshl_add_u32 {vr(vT+2)}, {vr(vT)}, 2, {vr(vT+1)}")
    A(f"v_xor_b32 {vr(vT+3)}, {vr(vT+3)}, v2")
    A(f"v_lshlrev_b32 {vr(vT+2)}, 9, {vr(vT+2)}"); A(f"v_add_u32 {vr(vT+2)}, s37, {vr(vT+2)}")
    A(f"v_lshl_add_u32 {vr(vKA)}, {vr(vT+3)}, 4, {vr(vT+2)}")
    for t in range(1, 4): A(f"v_xor_b32 {vr(vKA+t)}, {64*t}, {vr(vKA)}")
    A(f"v_lshrrev_b32 {vr(vT)}, 3, v1")
    A(f"v_lshlrev_b32 {vr(vQA)}, 9, {vr(vT)}"); A(f"v_lshl_add_u32 {vr(vQA)}, v2, 4, {vr(vQA)}")
    A(f"v_add_u32 {vr(vQA)}, {L_Q}, {vr(vQA)}")
    A(f"v_lshlrev_b32 {vr(vSTr)}, 5, {vr(vT)}"); A(f"v_add_u32 {vr(vSTr)}, {L_STAT}, {vr(vSTr)}")
    A("s_lshl_b32 s35, s33, 2"); A(f"v_add_u32 {vr(vSTw)}, s35, {vr(vSTr)}")
    def delta(dst, val, t0):
        A(f"v_and_b32 {vr(t0)}, 16, v3")
        A(f"v_mov_b32 {vr(t0+1)}, {val}"); A(f"v_lshlrev_b32 {vr(t0+1)}, {vr(t0)}, {vr(t0+1)}")
        A(f"v_bfe_u32 {vr(t0)}, v1, 1, 2")
        for i in range(4):
            A(f"v_cmp_eq_u32 vcc, {i}, {vr(t0)}")
            A(f"v_cndmask_b32 {vr(dst+i)}, 0, {vr(t0+1)}, vcc")
    delta(vM, "0xffff", vT)
    A(f"v_and_b32 {vr(vT)}, 1, v2"); A(f"v_lshlrev_b32 {vr(vT)}, 4, {vr(vT)}")
    A(f"v_lshrrev_b32 {vr(vT+1)}, 1, v2"); A(f"v_lshl_add_u32 {vr(vT)}, {vr(vT+1)}, 10, {vr(vT)}")
    A(f"v_lshl_add_u32 {vr(vT)}, v1, 5, {vr(vT)}")
    A("s_lshl_b32 s35, s33, 11"); A(f"s_add_u32 s35, s35, {L_OP}")
    for dh in range(2):
        A(f"s_xor_b32 s38, s61, {dh << 8}"); A("s_lshl1_add_u32 s38, s38, s35")
        A(f"v_add_u32 {vr(vOPa+dh)}, s38, {vr(vT)}")
    if WE:
        A("s_getreg_b32 s35, hwreg(HW_REG_XCC_ID, 0, 3)"); A(f"s_bitcmp1_b32 {WEM}, s35"); A("s_cselect_b64 vcc, -1, 0")
    nv = [0]
    vord = list(range(28)) + [28, 30, 29, 31]
    def more(k):
        for _ in range(k):
            if nv[0] < 32:
                idx = vord[nv[0]]; tl, e = idx >> 3, idx & 7
                throttle()
                A(f"buffer_load_dwordx4 {vr(vVv+4*idx,4)}, {vr(vVo+e)}, s[56:59], s{40+tl} offen {pol if vpol is None else vpol}")
                nv[0] += 1
    seq = [("k", tl, i) for tl in range(1, 4) for i in range(8)] + [("v",)] * 32
    pos = 0
    def adv(n):
        nonlocal pos
        for _ in range(n):
            it = seq[pos]; pos += 1
            if it[0] == "k": kload(it[1], it[2])
            else: more(1)
    adv(24 + QPOS)
    stamp(6)
    A("s_barrier")
    stamp(7)
    adv(W + QD)
    assert nv[0] >= W
    stamp(1)
    if prio == 3: A("s_setprio 2")
    A("s_barrier")
    stamp(2)
    for t in range(8):
        A(f"ds_read_b128 {vr(vQ+4*t,4)}, {vr(vQA)} offset:{64*t}")
    for tl in range(4):
        for t in range(8):
            A(f"ds_read_b128 {vr(vKF+4*t,4)}, {vr(vKA+(t&3))} offset:{tl*8192 + (t>>2)*256}")
        for t in range(8):
            A(f"s_waitcnt lgkmcnt({7-t})")
            c = "0" if t == 0 else vr(vS+4*tl, 4)
            A(f"v_mfma_f32_16x16x32_bf16 {vr(vS+4*tl,4)}, {vr(vKF+4*t,4)}, {vr(vQ+4*t,4)}, {c}")
        more(1)
    SC = math.log2(math.e) / 16.0
    A(f"s_mov_b32 s35, {f32(SC)}")
    mx = vT; cp = vT + 1; ls = vT + 2
    A(f"v_max3_f32 {vr(mx)}, {vr(vS)}, {vr(vS+1)}, {vr(vS+2)}")
    for i in range(3, 15, 2):
        A(f"v_max3_f32 {vr(mx)}, {vr(mx)}, {vr(vS+i)}, {vr(vS+i+1)}")
    A(f"v_max_f32 {vr(mx)}, {vr(mx)}, {vr(vS+15)}")
    def xg(x, op):
        for sw in ("v_permlane32_swap_b32", "v_permlane16_swap_b32"):
            A(f"v_mov_b32 {vr(cp)}, {vr(x)}")
            A(f"{sw} {vr(x)}, {vr(cp)}")
            A(f"{op} {vr(x)}, {vr(x)}, {vr(cp)}")
    xg(mx, "v_max_f32")
    A(f"v_mul_f32 {vr(mx)}, s35, {vr(mx)}")
    for i in range(16):
        A(f"v_fma_f32 {vr(vS+i)}, {vr(vS+i)}, s35, -{vr(mx)}")
    for i in range(16):
        A(f"v_exp_f32 {vr(vS+i)}, {vr(vS+i)}")
    A(f"v_add_f32 {vr(ls)}, {vr(vS)}, {vr(vS+1)}")
    for i in range(2, 16):
        A(f"v_add_f32 {vr(ls)}, {vr(ls)}, {vr(vS+i)}")
    xg(ls, "v_add_f32")
    A(f"ds_write2_b32 {vr(vSTw)}, {vr(mx)}, {vr(ls)} offset0:0 offset1:4")
    more(1)
    A("s_waitcnt lgkmcnt(0)")
    A("s_barrier")
    stamp(3)
    def stats(m4, l4, M, Lr):
        A(f"v_max3_f32 {vr(M)}, {vr(m4)}, {vr(m4+1)}, {vr(m4+2)}"); A(f"v_max_f32 {vr(M)}, {vr(M)}, {vr(m4+3)}")
        for i in range(4): A(f"v_sub_f32 {vr(m4+i)}, {vr(m4+i)}, {vr(M)}")
        for i in range(4): A(f"v_exp_f32 {vr(m4+i)}, {vr(m4+i)}")
        A(f"v_mul_f32 {vr(Lr)}, {vr(m4)}, {vr(l4)}")
        for i in range(1, 4): A(f"v_fmac_f32 {vr(Lr)}, {vr(m4+i)}, {vr(l4+i)}")
    A(f"ds_read_b128 {vr(vAcc,4)}, {vr(vSTr)}")
    A(f"ds_read_b128 {vr(vAcc+4,4)}, {vr(vSTr)} offset:16")
    more(1)
    A("s_waitcnt lgkmcnt(0)")
    stats(vAcc, vAcc + 4, vT + 3, vT + 4)
    A(f"v_sub_f32 {vr(mx)}, {vr(mx)}, {vr(vT+3)}")
    A(f"v_exp_f32 {vr(mx)}, {vr(mx)}")
    A(f"v_rcp_f32 {vr(vT+4)}, {vr(vT+4)}")
    A(f"v_mul_f32 {vr(mx)}, {vr(mx)}, {vr(vT+4)}")
    for i in range(16):
        A(f"v_mul_f32 {vr(vS+i)}, {vr(vS+i)}, {vr(mx)}")
        A(f"v_cvt_pk_bf16_f32 {vr(vS+i)}, {vr(vS+i)}, {vr(vS+i)}")
        for k in range(4):
            A(f"v_and_b32 {vr(vA+4*i+k)}, {vr(vS+i)}, {vr(vM+k)}")
        if i % 8 == 7: more(1)
    stamp(4)
    done = 0
    def pv(k):
        idx = vord[k]
        i, dh = idx >> 1, idx & 1
        c = "0" if i == 0 else vr(vAcc+4*dh, 4)
        A(f"v_mfma_f32_16x16x32_bf16 {vr(vAcc+4*dh,4)}, {vr(vA+4*i,4)}, {vr(vVv+4*idx,4)}, {c}")
    while nv[0] < 32:
        more(1)
        if NL and nv[0] == 32 - EP: A("s_barrier")
        lim = min(nv[0] - W, done + 4)
        while done < lim: pv(done); done += 1
    while done < 32:
        if 31 - done < W: A(f"s_waitcnt vmcnt({31-done})")
        pv(done); done += 1
        if done == 31: A(f"ds_write_b128 {vr(vOPa)}, {vr(vAcc,4)}")
    A(f"ds_write_b128 {vr(vOPa+1)}, {vr(vAcc+4,4)}")
    stamp(5)
    A("s_waitcnt lgkmcnt(0)")
    A("s_barrier")
    if wbs and "E" not in skip:
        A.c("one wave per group stays to write the spent hand-off lines back ahead of the end of the kernel")
        A("s_cmp_eq_u32 s30, 4"); A("s_cselect_b32 s33, s32, -1"); A(f"s_cmp_eq_u32 s33, {wbr}"); A("s_cbranch_scc0 L_send")
        nb = 4 if "b" in bx else 3
        for k in range(nb):
            if k == wbs - 1: A("buffer_wbl2 sc1")
            A("s_barrier")
        A("L_send:")
    dump_stamps(9)
    A("s_endpgm")

    vT = tT
    A("L_prepw:")
    A("s_waitcnt lgkmcnt(0)")
    if b0 == 1: A("s_barrier")
    if cpos == "early": prep_loads()
    if b0 == 2: A("s_barrier")
    A("s_mov_b64 s[52:53], s[10:11]"); A("s_mov_b32 s54, 0x380000"); A("s_mov_b32 s55, 0x20000")
    nq = [0]
    def wq_loads(n):
        if not n or "q" in skip: return
        A("s_cmp_eq_u32 s30, 0"); A(f"s_cbranch_scc0 L_nq{nq[0]}")
        lab = f"L_nq{nq[0]}:"
        for _ in range(n):
            A(f"s_mov_b32 m0, {L_WQ + 1024*nq[0]}")
            if qpace and nq[0] >= qpace: A(f"s_waitcnt vmcnt({qpace-1})")
            A(f"buffer_load_dwordx4 {vr(vQw)}, s[52:55], s50 offen {qpol} lds")
            A(f"s_add_u32 s50, s50, {qstep}")
            nq[0] += 1
        A(lab)
    wq_loads(wq1)
    if b0 == 3: A("s_barrier")
    wq_loads(14 - wq1)
    if b0:
        A("s_cmp_eq_u32 s46, 0"); A("s_cbranch_scc1 L_nolead")
        A("s_waitcnt vmcnt(5)")
        A("s_atomic_add s46, s[26:27], s63")
        A("L_nolead:")
    def wo_addr():
        A("s_bfe_u32 s34, s32, 0x10001"); A("s_lshl1_add_u32 s33, s31, s34"); A("s_lshl2_add_u32 s33, s33, s30"); A("s_lshl_b32 s33, s33, 6")
        A("s_mul_i32 s33, s33, 896"); A("s_lshr_b32 s34, s32, 2"); A("s_min_u32 s34, s34, 6"); A("s_lshl_b32 s34, s34, 7"); A("s_add_u32 s51, s33, s34")
        if "O" in hack: A("s_mul_i32 s33, s31, 14"); A("s_lshr_b32 s34, s32, 1"); A("s_add_u32 s33, s33, s34"); A("s_lshl2_add_u32 s33, s33, s30"); A("s_lshl_b32 s51, s33, 13")
        A(f"v_lshrrev_b32 {vr(vWa)}, 3, v0"); A(f"v_mul_u32_u24 {vr(vWa)}, 896, {vr(vWa)}")
        A(f"v_and_b32 {vr(vT+4)}, 16, v0"); A(f"v_lshlrev_b32 {vr(vT+4)}, 1, {vr(vT+4)}"); A(f"v_and_b32 {vr(vT+5)}, 0x70, v3"); A(f"v_xor_b32 {vr(vT+4)}, {vr(vT+4)}, {vr(vT+5)}")
        A(f"v_xor_b32 {vr(vT+5)}, 64, {vr(vT+4)}"); A(f"v_add_u32 {vr(vWa+1)}, {vr(vWa)}, {vr(vT+5)}"); A(f"v_add_u32 {vr(vWa)}, {vr(vWa)}, {vr(vT+4)}")
        A(f"v_lshrrev_b32 {vr(vT+4)}, 2, v1"); A(f"v_lshl_add_u32 {vr(vT+4)}, v2, 3, {vr(vT+4)}"); A(f"v_lshlrev_b32 {vr(vT+4)}, 7, {vr(vT+4)}")
        A(f"v_bfe_u32 {vr(vT+5)}, v0, 3, 2"); A(f"v_lshl_add_u32 {vr(vT+4)}, {vr(vT+5)}, 5, {vr(vT+4)}")
        A(f"v_and_b32 {vr(vT+5)}, 3, v0"); A(f"v_lshl_add_u32 {vr(vT+4)}, {vr(vT+5)}, 3, {vr(vT+4)}")
        A("s_lshl_b32 s61, s30, 13"); A(f"v_add_u32 {vr(vWr)}, s61, {vr(vT+4)}")
    def wo_loads(i0, i1, tag):
        if i0 >= i1: return
        A("s_cmp_ge_u32 s32, 28" if "o" not in skip else "s_cmp_ge_u32 s32, 0"); A(f"s_cbranch_scc1 L_nowo{tag}")
        for i in range(i0, i1):
            A(f"s_add_u32 m0, s61, {1024*i}"); A(f"s_add_u32 s33, s51, {8*896*i if 'O' not in hack else 1024*i}")
            A(f"buffer_load_dwordx4 {vr(vWa+(i&1)) if 'O' not in hack else 'v3'}, s[56:59], s33 offen {opol} lds")
        A(f"L_nowo{tag}:")
    def wo_frags(tts=(0, 1)):
        for nt in range(4):
            for tt in tts:
                for hh in range(2):
                    A(f"ds_read_b64_tr_b16 {vr(vW+16*tt+4*nt+2*hh,2)}, {vr(vWr if nt == 0 else vRaw+nt)} offset:{4096*tt + 512*hh}")
    A.c("tail constants")
    A("s_mov_b32 s49, 0")
    wo_addr()
    if tl_:
        A.c("one scalar read per page that is first used later (V, wo, out): the translation is ready by then; values unused")
        A(f"s_cmp_eq_u32 s30, {tlw}"); A("s_cbranch_scc0 L_notl")
        if tl_ & 1:
            A("s_lshr_b32 s33, s2, 5"); A("s_lshl3_add_u32 s33, s33, s31"); A("s_lshl2_add_u32 s33, s33, 3"); A("s_lshl_b32 s33, s33, 12"); A("s_add_u32 s33, s33, s32"); A("s_lshl_b32 s33, s33, 7")
            A("s_load_dword s46, s[8:9], s33")
        if tl_ & 2:
            A("s_load_dword s47, s[12:13], s51")
        if tl_ & 4:
            A("s_mul_i32 s34, s31, 896")
            A("s_load_dword s48, s[24:25], s34")
        A("L_notl:")
    A(f"s_xor_b32 s34, s32, {qx}"); A("s_and_b32 s35, s34, 3"); A("s_lshr_b32 s34, s34, 2"); A("s_lshl3_add_u32 s34, s35, s34"); A("s_lshl_b32 s34, s34, 7")
    A("s_lshl_b32 s39, s31, 15"); A("s_add_u32 s34, s34, s39")
    A(f"v_and_b32 {vr(vQa)}, 7, v1"); A(f"v_lshlrev_b32 {vr(vQa)}, 12, {vr(vQa)}"); A(f"v_lshl_add_u32 {vr(vQa)}, v2, 4, {vr(vQa)}"); A(f"v_add_u32 {vr(vQa)}, s34, {vr(vQa)}")
    def publish_q():
        A("s_getreg_b32 s47, hwreg(HW_REG_XCC_ID, 0, 4)")
        A("s_mul_i32 s47, s47, 0x1111"); A("s_bitset1_b32 s47, 18")
        if force_slow: A("s_cmp_eq_u32 s32, 5"); A("s_cselect_b32 s47, 0, s47")
        A("s_waitcnt lgkmcnt(0)")
        A("s_cmp_eq_u32 s46, s47")
        A("s_cbranch_scc0 L_f1slow")
        A("L_same:")
        A.c("the slots were cleared in this XCD's L2: publish there")
        A("s_mov_b32 exec_lo, 0x00ff00ff"); A("s_mov_b32 exec_hi, 0x00ff00ff")
        for k in range(2): A(f"global_store_dwordx4 {vr(vQa)}, {vr(vQs+4*k,4)}, s[28:29] offset:{64*k}")
        A("s_mov_b64 exec, -1")
        stamp(3)
        A("L_nopub:")
        def ool():
            A("L_f1slow:")
            A(f"v_mov_b32 {vr(vT+20)}, s63")
            A("s_mov_b32 s35, 0")
            A("L_f1l:")
            A("s_cmp_ge_u32 s46, 0x40000")
            A("s_cbranch_scc1 L_f1d")
            A(f"global_load_dword {vr(vT+21)}, {vr(vT+20)}, s[26:27] sc1")
            A("s_add_u32 s35, s35, 1")
            A("s_waitcnt vmcnt(0)")
            A(f"v_readfirstlane_b32 s46, {vr(vT+21)}")
            A(f"s_cmp_lt_u32 s35, {SPIN}")
            A("s_cbranch_scc1 L_f1l")
            A("L_f1d:")
            A("s_cmp_eq_u32 s46, s47")
            A("s_cbranch_scc1 L_same")
            A.c("cleared on another XCD: tell the group, publish nothing here")
            A("s_add_u32 s46, s63, 32"); A("s_mov_b32 s47, 1")
            A("s_atomic_add s47, s[26:27], s46 glc")
            A("s_waitcnt lgkmcnt(0)")
            A("s_mov_b32 s49, 1")
            A("s_branch L_nopub")
        OOL.append(ool)
    A("s_mul_i32 s33, s31, 14336"); A("s_mul_i32 s34, s30, 224"); A("s_add_u32 s33, s33, s34"); A(f"s_add_u32 s33, s33, {W_B}")
    A(f"v_min_u32 {vr(vT+4)}, 13, v1")
    A(f"v_mul_u32_u24 {vr(vBa)}, 3584, v2"); A(f"v_lshl_add_u32 {vr(vBa)}, {vr(vT+4)}, 4, {vr(vBa)}"); A(f"v_add_u32 {vr(vBa)}, s33, {vr(vBa)}")
    A("s_mul_i32 s34, s30, 448"); A(f"s_add_u32 s34, s34, {L_H}")
    A(f"v_and_b32 {vr(vT+5)}, 1, v2"); A(f"v_lshlrev_b32 {vr(vHw)}, 5, v1"); A(f"v_lshl_add_u32 {vr(vHw)}, {vr(vT+5)}, 4, {vr(vHw)}"); A(f"v_add_u32 {vr(vHw)}, s34, {vr(vHw)}")
    A(f"v_mov_b32 {vr(vT+5)}, {L_H + 1792}"); A("v_cmp_gt_u32 s[42:43], 14, v1")
    A(f"v_cndmask_b32 {vr(vHw)}, {vr(vT+5)}, {vr(vHw)}, s[42:43]")
    A(f"v_lshrrev_b32 {vr(vT+6)}, 5, v0")
    A("s_lshl_b32 s34, s30, 3"); A(f"s_add_u32 s34, s34, {L_HS}")
    A(f"v_lshlrev_b32 {vr(vHsw)}, 2, {vr(vT+6)}"); A(f"v_add_u32 {vr(vHsw)}, s34, {vr(vHsw)}")
    A(f"v_cvt_f32_u32 {vr(vKs)}, {vr(vT+6)}"); A(f"v_sub_f32 {vr(vKs+1)}, 1.0, {vr(vKs)}")
    for i in range(2): A(f"v_mul_f32 {vr(vKs+i)}, {f32(1.0/448)}, {vr(vKs+i)}")
    delta(vDl, "0x3f80", vT + 8)
    A("s_mul_i32 s33, s32, 56"); A(f"s_add_u32 s33, s33, {L_H}")
    ii = vT + 8; hf = vT + 9; col = vT + 10
    A(f"v_bfe_u32 {vr(ii)}, v0, 3, 1"); A(f"v_and_b32 {vr(hf)}, 3, v0"); A(f"v_lshl_add_u32 {vr(ii)}, {vr(ii)}, 2, {vr(hf)}")
    A(f"v_bfe_u32 {vr(hf)}, v0, 2, 1")
    A(f"v_min_u32 {vr(col)}, 6, {vr(ii)}"); A(f"v_mad_u32_u24 {vr(col)}, {vr(hf)}, 7, {vr(col)}")
    A(f"v_lshlrev_b32 {vr(vHa)}, 2, {vr(col)}"); A(f"v_add_u32 {vr(vHa)}, s33, {vr(vHa)}")
    A(f"v_cmp_eq_u32 vcc, 7, {vr(ii)}"); A(f"v_cndmask_b32 {vr(vT+11)}, v2, 3, vcc")
    A(f"v_mov_b32 {vr(vT+12)}, 0x3f803f80")
    A(f"v_cmp_eq_u32 vcc, 2, {vr(vT+11)}"); A(f"v_cndmask_b32 {vr(vK1)}, 0, 1.0, vcc")
    A(f"v_cmp_eq_u32 vcc, 0, {vr(vT+11)}"); A(f"v_cndmask_b32 {vr(vK1+1)}, 0, 1.0, vcc")
    A(f"v_cndmask_b32 {vr(vK1+3)}, 0, {vr(vT+12)}, vcc")
    A(f"v_cmp_eq_u32 vcc, 1, {vr(vT+11)}"); A(f"v_cndmask_b32 {vr(vK1+2)}, 0, 1.0, vcc")
    A(f"v_cndmask_b32 {vr(vK1+4)}, 0, {vr(vT+12)}, vcc")
    A(f"v_min_u32 {vr(col)}, 6, v0"); A(f"v_lshlrev_b32 {vr(vHf)}, 3, {vr(col)}"); A(f"v_add_u32 {vr(vHf)}, s33, {vr(vHf)}")
    A("s_mul_i32 s33, s31, 896"); A("s_mul_i32 s34, s32, 28"); A("s_add_u32 s33, s33, s34")
    A(f"v_lshlrev_b32 {vr(vOut)}, 2, {vr(col)}"); A(f"v_add_u32 {vr(vOut)}, s33, {vr(vOut)}")
    A(f"v_bfe_u32 {vr(ii)}, v0, 2, 1"); A(f"v_bfe_u32 {vr(hf)}, v0, 3, 1"); A(f"v_lshl_add_u32 {vr(ii)}, {vr(ii)}, 1, {vr(hf)}")
    A(f"v_bfe_u32 {vr(hf)}, v0, 4, 1"); A(f"v_lshl_add_u32 {vr(ii)}, {vr(hf)}, 2, {vr(ii)}")
    A(f"v_mad_u32_u24 {vr(hf)}, {vr(vT+6)}, 7, {vr(ii)}")
    A(f"v_cmp_eq_u32 vcc, 7, {vr(ii)}"); A(f"v_cndmask_b32 {vr(hf)}, {vr(hf)}, 15, vcc")
    A("s_lshl_b32 s34, s30, 6"); A(f"s_add_u32 s34, s34, {L_Y}")
    A(f"v_lshlrev_b32 {vr(vYa)}, 2, {vr(hf)}"); A(f"v_add_u32 {vr(vYa)}, s34, {vr(vYa)}")
    A("s_lshl_b32 s33, s31, 8"); A(f"s_add_u32 s33, s33, {W_L}"); A("s_and_b32 s34, s32, 3"); A("s_lshl_b32 s34, s34, 6"); A("s_add_u32 s34, s34, s33")
    A(f"v_lshlrev_b32 {vr(vLa)}, 4, v2"); A(f"v_add_u32 {vr(vLa)}, s34, {vr(vLa)}")
    A("s_lshl2_add_u32 s34, s32, s33")
    A(f"v_lshlrev_b32 {vr(vLst)}, 7, v0"); A(f"v_add_u32 {vr(vLst)}, s34, {vr(vLst)}")
    A(f"s_add_u32 s33, s39, {W_O}")
    A("s_and_b32 s35, s32, 1"); A("s_bfe_u32 s36, s32, 0x10001")
    A("s_lshl1_add_u32 s34, s35, s36"); A("s_lshl2_add_u32 s34, s34, s30"); A("s_lshl_b32 s34, s34, 11"); A("s_add_u32 s34, s34, s33")
    A(f"v_add_u32 {vr(vOa)}, s34, v3")
    A("s_lshl2_add_u32 s60, s35, s30")
    A("s_lshl3_add_u32 s34, s60, s31"); A("s_lshl1_add_u32 s34, s34, s36"); A("s_mul_i32 s34, s34, 896")
    A("s_lshr_b32 s36, s32, 2"); A("s_min_u32 s36, s36, 6"); A("s_lshl_b32 s36, s36, 7")
    A("s_add_u32 s34, s34, s36"); A(f"s_add_u32 s34, s34, {W_B}")
    A(f"v_lshlrev_b32 {vr(vBst)}, 3, v1"); A(f"v_add_u32 {vr(vBst)}, s34, {vr(vBst)}")
    A("s_lshr_b32 s34, s32, 4"); A("s_lshl2_add_u32 s34, s34, s30"); A("s_lshl_b32 s34, s34, 12"); A("s_add_u32 s34, s34, s33")
    A("s_and_b32 s36, s32, 15"); A("s_lshl4_add_u32 s34, s36, s34")
    A(f"v_lshrrev_b32 {vr(vOst)}, 2, v0"); A(f"v_lshlrev_b32 {vr(vOst)}, 8, {vr(vOst)}"); A(f"v_and_b32 {vr(vT+4)}, 3, v0")
    A(f"v_lshl_add_u32 {vr(vOst)}, {vr(vT+4)}, 2, {vr(vOst)}"); A(f"v_add_u32 {vr(vOst)}, s34, {vr(vOst)}")
    A("s_lshl_b32 s34, s30, 8"); A(f"s_add_u32 s34, s34, {L_PP}")
    A(f"v_lshlrev_b32 {vr(vPPr)}, 4, v1"); A(f"v_add_u32 {vr(vPPr)}, s34, {vr(vPPr)}")
    A("s_lshl_b32 s34, s30, 9"); A(f"s_add_u32 s34, s34, {L_OP}")
    A(f"v_lshlrev_b32 {vr(vOPr)}, 3, v0"); A(f"v_add_u32 {vr(vOPr)}, s34, {vr(vOPr)}")
    A("s_lshl_b32 s34, s30, 10"); A(f"s_add_u32 s34, s34, {L_PP}")
    A(f"v_lshlrev_b32 {vr(vPPa)}, 2, v1"); A(f"v_lshl_add_u32 {vr(vPPa)}, v2, 8, {vr(vPPa)}"); A(f"v_add_u32 {vr(vPPa)}, s34, {vr(vPPa)}")
    for i in range(4): A(f"v_mov_b32 {vr(vG+i)}, 0")
    A(f"s_mov_b32 s37, {f32(1.0/64)}")
    A("s_mov_b32 s38, 0xffff0000")
    def qproj():
        A("s_cmp_eq_u32 s30, 0"); A("s_cbranch_scc0 L_nopub")
        A.c("T0: q projection, 64 columns x a quarter of the rows, all 8 batches; LayerNorm applied after the product")
        A("s_mov_b32 s34, 0x3f803f80")
        for i in range(56): A(f"v_mov_b32 {vr(vX+i)}, s34")
        A(f"v_and_b32 {vr(tT+1)}, 7, v1"); A(f"v_mul_u32_u24 {vr(tT+1)}, 896, {vr(tT+1)}"); A(f"v_add_u32 {vr(tT+1)}, {L_X}, {vr(tT+1)}")
        A(f"v_lshl_add_u32 {vr(tT)}, v2, 4, {vr(tT+1)}")
        A("s_mul_i32 s33, s48, 224"); A(f"v_lshl_add_u32 {vr(tT+1)}, v2, 3, {vr(tT+1)}"); A(f"v_add_u32 {vr(tT+1)}, s33, {vr(tT+1)}")
        A(f"v_lshrrev_b32 {vr(tT+2)}, 2, v0"); A(f"v_lshlrev_b32 {vr(tT+2)}, 7, {vr(tT+2)}"); A(f"v_and_or_b32 {vr(tT+2)}, v3, 48, {vr(tT+2)}")
        A(f"v_add_u32 {vr(tT+2)}, {L_WQ}, {vr(tT+2)}")
        A(f"v_bfe_u32 {vr(tT+3)}, v1, 2, 1"); A(f"v_lshl_add_u32 {vr(tT+3)}, {vr(tT+3)}, 4, v1"); A(f"v_lshlrev_b32 {vr(tT+3)}, 2, {vr(tT+3)}")
        A(f"v_lshlrev_b32 {vr(tT+4)}, 2, v1"); A(f"v_add_u32 {vr(tT+4)}, 128, {vr(tT+4)}")
        A(f"v_and_b32 {vr(tT+5)}, 3, v1")
        sm = ('', 's[6:7]', 's[8:9]', 's[14:15]')
        for i in range(1, 4): A(f"v_cmp_eq_u32 {sm[i]}, {i}, {vr(tT+5)}")
        D1 = vX + 16; D2 = tT + 8; wf = vW
        A("s_mov_b32 exec_lo, 0x00ff00ff"); A("s_mov_b32 exec_hi, 0x00ff00ff")
        A("s_waitcnt vmcnt(14)")
        for t in range(14): A(f"ds_read_b128 {vr(vX+4*t,4)}, {vr(tT)} offset:{64*t}")
        A("s_mov_b64 exec, -1")
        for t in range(14):
            A(f"s_waitcnt lgkmcnt({13-t})")
            c = "0" if t == 0 else vr(D2, 4)
            A(f"v_mfma_f32_16x16x32_bf16 {vr(D2,4)}, {vr(vX+4*t,4)}, {vr(vX+4*t,4)}, {c}")
        for i in range(1, 4): A(f"v_cndmask_b32 {vr(D2)}, {vr(D2)}, {vr(D2+i)}, {sm[i]}")
        A(f"ds_bpermute_b32 {vr(tT+6)}, {vr(tT+3)}, {vr(D2)}")
        A(f"ds_bpermute_b32 {vr(tT+7)}, {vr(tT+4)}, {vr(D2)}")
        A("s_mov_b32 exec_lo, 0x00ff00ff"); A("s_mov_b32 exec_hi, 0x00ff00ff")
        for t in range(7): A(f"ds_read_b64 {vr(vX+2*t,2)}, {vr(tT+1)} offset:{32*t}")
        A("s_mov_b64 exec, -1")
        A(f"s_mov_b32 s33, {f32(1.0/448)}")
        A("s_waitcnt lgkmcnt(0)")
        A(f"v_mul_f32 {vr(tT+7)}, s33, {vr(tT+7)}")
        A(f"v_mul_f32 {vr(tT+6)}, s33, {vr(tT+6)}")
        A(f"v_fma_f32 {vr(tT+6)}, -{vr(tT+7)}, {vr(tT+7)}, {vr(tT+6)}")
        A(f"v_max_f32 {vr(tT+6)}, 0, {vr(tT+6)}")
        A(f"v_add_f32 {vr(tT+6)}, {f32(1e-5)}, {vr(tT+6)}")
        A(f"v_rsq_f32 {vr(tT+6)}, {vr(tT+6)}")
        A("s_waitcnt vmcnt(0)")
        A("s_load_dword s46, s[26:27], s63")
        stamp(1)
        for np_ in range(2):
            for t in range(7):
                for e in range(2):
                    A(f"ds_read_b64_tr_b16 {vr(wf+4*t+2*e,2)}, {vr(tT+2)} offset:{2048*t + 64*np_ + 8*e}")
            for t in range(7):
                A(f"s_waitcnt lgkmcnt({12-2*t})")
                for e in range(2):
                    D = D1 + 8*np_ + 4*e
                    c = "0" if t == 0 else vr(D, 4)
                    A(f"v_mfma_f32_16x16x16_bf16 {vr(D,4)}, {vr(wf+4*t+2*e,2)}, {vr(vX+2*t,2)}, {c}")
        for i0 in (0, 8):
            for i in range(8):
                A(f"v_mul_f32_dpp {vr(D2+i)}, {vr(D1+i0+i)}, {vr(tT+7)} row_newbcast:8 row_mask:0xf bank_mask:0xf")
            for i in range(8):
                A(f"v_sub_f32 {vr(D2+i)}, {vr(D1+i0+i)}, {vr(D2+i)}")
                A(f"v_mul_f32 {vr(D2+i)}, {vr(D2+i)}, {vr(tT+6)}")
            for i in range(4):
                A(f"v_cvt_pk_bf16_f32 {vr(vQs+i0//2+i)}, {vr(D2+2*i)}, {vr(D2+2*i+1)}")
                A(f"v_min_u32 {vr(vQs+i0//2+i)}, -2, {vr(vQs+i0//2+i)}")
        publish_q()
    def conv():
        if c1_:
            for k in range(3):
                for i in range(4): A(f"v_mov_b32 {vr(raw+8*k+4+((i+3)&3))}, {vr(raw+8*k+i)}")
                for i in range(4): A(f"v_permlane32_swap_b32 {vr(raw+8*k+i)}, {vr(raw+8*k+4+((i+3)&3))}")
        for i in (2, 3): A(f"v_cndmask_b32 {vr(vXr+i)}, 0, {vr(vXr+i)}, s[42:43]")
        A(f"v_lshlrev_b32 {vr(vXr)}, 16, {vr(vXr+2)}"); A(f"v_and_b32 {vr(vXr+1)}, s38, {vr(vXr+2)}")
        A(f"v_lshlrev_b32 {vr(vXr+2)}, 16, {vr(vXr+3)}"); A(f"v_and_b32 {vr(vXr+3)}, s38, {vr(vXr+3)}")
        A(f"v_lshlrev_b32 {vr(vB2)}, 16, {vr(vB2)}")
    w, b, u, bb, c0, c1, c2, c3, ca, cc, hi = (vT + 1 + i for i in range(11))
    def tiles(t0, t1):
        if t0 >= t1: return
        A.c("gelu argument as a cubic in hn, and n = (w1*hn + b1)*w2, as split-bf16 MFMA operands")
        A(f"s_mov_b32 s33, {f32(BETA)}"); A(f"s_mov_b32 s34, {f32(3*BETA)}"); A(f"v_mov_b32 {vr(vT)}, {f32(ALPHA)}")
        A("v_cmp_lt_u32 vcc, 31, v0")
        for tile in range(t0, t1):
            for k, d in enumerate((w, b, u)):
                src = raw + 8*k + (tile >> 1)
                if tile & 1: A(f"v_and_b32 {vr(d)}, s38, {vr(src)}")
                else: A(f"v_lshlrev_b32 {vr(d)}, 16, {vr(src)}")
            A(f"v_mul_f32 {vr(bb)}, {vr(b)}, {vr(b)}")
            A(f"v_fma_f32 {vr(c0)}, {vr(bb)}, s33, {vr(vT)}"); A(f"v_mul_f32 {vr(c0)}, {vr(c0)}, {vr(b)}")
            A(f"v_fma_f32 {vr(c1)}, {vr(bb)}, s34, {vr(vT)}"); A(f"v_mul_f32 {vr(c1)}, {vr(c1)}, {vr(w)}")
            A(f"v_mul_f32 {vr(bb)}, {vr(w)}, {vr(w)}")
            A(f"v_mul_f32 {vr(c2)}, s34, {vr(bb)}"); A(f"v_mul_f32 {vr(c2)}, {vr(c2)}, {vr(b)}")
            A(f"v_mul_f32 {vr(c3)}, s33, {vr(bb)}"); A(f"v_mul_f32 {vr(c3)}, {vr(c3)}, {vr(w)}")
            A(f"v_mul_f32 {vr(ca)}, {vr(w)}, {vr(u)}"); A(f"v_mul_f32 {vr(cc)}, {vr(b)}, {vr(u)}")
            for k, cx in enumerate((c0, c1, c2, c3)): A(f"v_add_f32 {vr(vG+k)}, |{vr(cx)}|, {vr(vG+k)}")
            A(f"v_fma_f32 {vr(vG)}, |{vr(cc)}|, s37, {vr(vG)}"); A(f"v_fma_f32 {vr(vG+1)}, |{vr(ca)}|, s37, {vr(vG+1)}")
            for k, (lo_, hi_) in enumerate(((c1, c2), (c0, c2), (ca, c3), (cc, c3))):
                A(f"v_cndmask_b32 {vr(lo_)}, {vr(lo_)}, {vr(hi_)}, vcc")
                A(f"v_cvt_pk_bf16_f32 {vr(hi)}, {vr(lo_)}, {vr(lo_)}")
                A(f"v_and_b32 {vr(hi)}, s38, {vr(hi)}")
                A(f"v_sub_f32 {vr(lo_)}, {vr(lo_)}, {vr(hi)}")
                A(f"v_cvt_pk_bf16_f32 {vr(vC+4*tile+k)}, {vr(hi)}, {vr(lo_)}")
    def guard():
        A.c("largest |hn| for which the fused gelu path can neither overflow nor lose precision")
        A("s_mov_b32 s3, -1.0"); A(f"s_mov_b32 s34, {f32(100.0)}")
        for H in (3.0, 4.5, 6.0, 8.0, 12.0, 22.0):
            A(f"s_mov_b32 s33, {f32(H)}")
            A(f"v_fma_f32 {vr(vT+1)}, {vr(vG+3)}, s33, {vr(vG+2)}"); A(f"v_fma_f32 {vr(vT+1)}, {vr(vT+1)}, s33, {vr(vG+1)}")
            A(f"v_fma_f32 {vr(vT+1)}, {vr(vT+1)}, s33, {vr(vG)}")
            A(f"v_cmp_nge_f32 vcc, s34, {vr(vT+1)}")
            A("s_cmp_eq_u64 vcc, 0"); A("s_cselect_b32 s3, s33, s3")
        if force_fb: A("s_mov_b32 s3, -1.0")
    if cpos == "early":
        A("s_cmp_eq_u32 s30, 0"); A("s_cbranch_scc1 L_pw"); A("s_waitcnt vmcnt(0)"); A("L_pw:")
        A("s_waitcnt vmcnt(14)")
        conv(); tiles(0, QT); qproj(); tiles(QT, 14); guard()
    else:
        qproj()
    A("s_lshr_b32 s33, s32, 2"); A("s_lshl_b32 s33, s33, 12"); A("s_add_u32 s33, s33, s39")
    A(f"v_add_u32 {vr(vT)}, s33, v3"); A(f"v_add_u32 {vr(vT+1)}, {L_Q}, v3")
    A(f"v_and_b32 {vr(vT+20)}, 7, v0"); A(f"v_lshlrev_b32 {vr(vT+20)}, 2, {vr(vT+20)}"); A(f"v_mov_b32 {vr(vT+19)}, {L_STAT + 64}")
    stamp(4)
    if cpos == "pre1": prep_loads()
    A("s_barrier")
    if cpos == "mid": prep_loads()
    A("s_mov_b32 s35, 0")
    A("s_cmp_eq_u32 s30, 0")
    A("s_cbranch_scc0 L_b1b")
    A.c("T0: gather the four q partials, add, hand to the stream waves")
    qa = vX
    def qload():
        for k in range(4): A(f"global_load_dwordx4 {vr(qa+4*k,4)}, {vr(vT)}, s[28:29] offset:{1024*k} sc1")
        A("s_waitcnt vmcnt(0)")
    A("s_cmp_eq_u32 s49, 0"); A("s_cbranch_scc0 L_glob")
    A("L_qpoll:")
    qload()
    A(f"v_max3_u32 {vr(vT+2)}, {vr(qa)}, {vr(qa+1)}, {vr(qa+2)}")
    for i in range(3, 15, 2): A(f"v_max3_u32 {vr(vT+2)}, {vr(vT+2)}, {vr(qa+i)}, {vr(qa+i+1)}")
    A(f"v_max_u32 {vr(vT+2)}, {vr(vT+2)}, {vr(qa+15)}")
    A(f"v_cmp_eq_u32 vcc, -1, {vr(vT+2)}")
    A("s_cbranch_vccnz L_qretry")
    def ool_q():
        A("L_qretry:")
        A("s_add_u32 s35, s35, 1")
        A(f"s_cmp_ge_u32 s35, {SPIN}")
        A("s_cbranch_scc1 L_qdone")
        A("s_bitcmp1_b32 s35, 0"); A("s_cbranch_scc1 L_qpoll")
        A(f"v_mov_b32 {vr(vT+12)}, s63")
        A(f"global_load_dword {vr(vT+13)}, {vr(vT+12)}, s[26:27] offset:32 sc1")
        A("s_waitcnt vmcnt(0)")
        A(f"v_readfirstlane_b32 s46, {vr(vT+13)}")
        A("s_cmp_eq_u32 s46, 0")
        A("s_cbranch_scc1 L_qpoll")
        A("L_glob:")
        A.c("group spread over several XCDs: write-through hand-off in the second copy, ordered by a counter")
        A("s_mov_b32 s49, 1")
        for i in range(4): A(f"v_mov_b32 {vr(qa+i)}, -1")
        A("s_lshl_b32 s33, s32, 10"); A("s_add_u32 s33, s33, s39"); A(f"s_add_u32 s33, s33, {W_O + W_ALT}")
        A(f"v_add_u32 {vr(vT+12)}, s33, v3"); A(f"v_add_u32 {vr(vT+13)}, {W_ALT}, {vr(vLst)}"); A(f"v_add_u32 {vr(vT+14)}, {W_ALT}, {vr(vQa)}")
        A(f"v_add_u32 {vr(vT)}, {W_ALT}, {vr(vT)}"); A(f"v_mov_b32 {vr(vT+15)}, s63")
        A(f"global_store_dwordx4 {vr(vT+12)}, {vr(qa,4)}, s[28:29] sc1")
        A("s_mov_b64 exec, 3")
        A(f"global_store_dword {vr(vT+13)}, {vr(qa)}, s[28:29] sc1")
        A("s_mov_b32 exec_lo, 0x00ff00ff"); A("s_mov_b32 exec_hi, 0x00ff00ff")
        for k in range(2): A(f"global_store_dwordx4 {vr(vT+14)}, {vr(vQs+4*k,4)}, s[28:29] offset:{64*k} sc1")
        A("s_mov_b64 exec, -1")
        A("s_add_u32 s46, s63, 64"); A("s_mov_b32 s47, 1"); A("s_mov_b32 s35, 0")
        A("s_waitcnt vmcnt(0)")
        A("s_atomic_add s47, s[26:27], s46")
        A("L_gl:")
        A(f"global_load_dword {vr(vT+13)}, {vr(vT+15)}, s[26:27] offset:64 sc1")
        A("s_add_u32 s35, s35, 1")
        A("s_waitcnt vmcnt(0) lgkmcnt(0)")
        A(f"v_readfirstlane_b32 s46, {vr(vT+13)}")
        A(f"s_cmp_ge_u32 s35, {SPIN}"); A("s_cselect_b32 s46, 32, s46")
        A("s_cmp_lt_u32 s46, 32")
        A("s_cbranch_scc1 L_gl")
        qload()
        A("s_branch L_qdone")
    OOL.append(ool_q)
    A("L_qdone:")
    stamp(14)
    for k in range(4):
        for p in range(4):
            A(f"v_lshlrev_b32 {vr(vT+4+2*p)}, 16, {vr(qa+4*p+k)}"); A(f"v_and_b32 {vr(vT+5+2*p)}, s38, {vr(qa+4*p+k)}")
        A(f"v_pk_add_f32 {vr(vT+4,2)}, {vr(vT+4,2)}, {vr(vT+6,2)}"); A(f"v_pk_add_f32 {vr(vT+8,2)}, {vr(vT+8,2)}, {vr(vT+10,2)}")
        A(f"v_pk_add_f32 {vr(vT+4,2)}, {vr(vT+4,2)}, {vr(vT+8,2)}")
        A(f"v_cvt_pk_bf16_f32 {vr(qa+k)}, {vr(vT+4)}, {vr(vT+5)}")
    A(f"ds_write_b128 {vr(vT+1)}, {vr(qa,4)}")
    A(f"v_mov_b32 {vr(vT+2)}, s49")
    A(f"ds_write_b32 {vr(vT+19)}, {vr(vT+2)}")
    A("s_cmp_eq_u32 s32, 0"); A("s_cbranch_scc0 L_nof2")
    A.c("every member of this group has cleared its share of the out-projection slots")
    A("s_mov_b32 s33, 0x100000")
    A("s_waitcnt lgkmcnt(0)")
    A("s_barrier")
    A("s_atomic_add s33, s[26:27], s63")
    A("s_branch L_b1c")
    A("L_nof2:")
    A("s_waitcnt lgkmcnt(0)")
    A("L_b1b:")
    A("s_barrier")
    A("L_b1c:")
    A(f"ds_read_b32 {vr(vT+21)}, {vr(vT+19)}")
    if cpos != "early": A("s_waitcnt vmcnt(0) lgkmcnt(0)")
    if touch: A(f"global_load_dword {vr(vT+22)}, {vr(vOut)}, s[24:25]")
    if cpos != "early": conv(); tiles(0, N1)
    A(f"v_and_b32 {vr(vT)}, 1, v0"); A(f"v_lshlrev_b32 {vr(vT)}, 5, {vr(vT)}"); A(f"v_add_u32 {vr(vT)}, {L_STAT}, {vr(vT)}")
    A("s_barrier")
    A(f"ds_read_b128 {vr(vT+4,4)}, {vr(vT)}")
    A(f"ds_read_b128 {vr(vT+8,4)}, {vr(vT)} offset:16")
    A("s_waitcnt lgkmcnt(0)")
    stats(vT + 4, vT + 8, vT + 1, vT + 2)
    A(f"v_log_f32 {vr(vT+2)}, {vr(vT+2)}")
    A(f"v_add_f32 {vr(vLse)}, {vr(vT+1)}, {vr(vT+2)}")
    A(f"v_min_u32 {vr(vLse)}, -2, {vr(vLse)}")
    A(f"v_readfirstlane_b32 s62, {vr(vT+21)}")
    A("s_lshl_b32 s33, s62, 20")
    for r_ in (vLa, vLst, vOa, vOst): A(f"v_add_u32 {vr(r_)}, s33, {vr(r_)}")
    A("s_cmp_eq_u32 s30, 1"); A("s_cbranch_scc0 L_nolse")
    A("s_mov_b64 exec, 3")
    A("s_cmp_eq_u32 s62, 0"); A("s_cbranch_scc0 L_slowlse")
    A(f"global_store_dword {vr(vLst)}, {vr(vLse)}, s[28:29]")
    A("L_lsed:")
    A("s_mov_b64 exec, -1")
    A("L_nolse:")
    def ool_lse():
        A("L_slowlse:")
        A(f"global_store_dword {vr(vLst)}, {vr(vLse)}, s[28:29] sc1")
        A("s_branch L_lsed")
    OOL.append(ool_lse)
    if inst:
        A.c("bring this workgroup's share of the cleared hand-off lines into L2 ahead of the polls (values unused)")
        A("s_cmp_lt_u32 s30, 2"); A("s_cbranch_scc1 L_noinst")
        A("s_lshl_b32 s33, s32, 10"); A("s_add_u32 s33, s33, s39"); A(f"s_add_u32 s33, s33, {W_O}")
        A("s_mul_i32 s34, s31, 14336"); A("s_min_u32 s35, s32, 27"); A("s_lshl_b32 s35, s35, 9"); A("s_add_u32 s34, s34, s35"); A(f"s_add_u32 s34, s34, {W_B}")
        A("s_cmp_eq_u32 s30, 2")
        if inst == 1: A("s_cbranch_scc0 L_noinst")
        if inst == 2: A("s_cbranch_scc1 L_noinst")
        A("s_cselect_b32 s33, s34, s33")
        A(f"v_add_u32 {vr(vT+12)}, s33, v3")
        A("s_cselect_b32 exec_hi, 0, -1")
        A(f"global_load_dwordx4 {vr(vT+16,4)}, {vr(vT+12)}, s[28:29] sc1")
        A("s_mov_b64 exec, -1")
        A("L_noinst:")
    A("s_mov_b64 s[56:57], s[12:13]"); A("s_mov_b32 s58, 0x380000"); A("s_mov_b32 s59, 0x20000")
    wo_loads(0, NE, "a")
    if cpos != "early": tiles(N1, 14); guard()
    A("s_cmp_lt_u32 s32, 28"); A("s_cselect_b32 s44, 0xffff, 0")
    A("s_cmp_eq_u32 s60, s31"); A("s_cselect_b32 s45, s44, 0"); A("s_cmp_eq_u32 s62, 0"); A("s_cselect_b32 s45, s45, 0")
    if "s" in bx: A("s_mov_b32 s45, 0")
    A("s_andn2_b32 s44, s44, s45")
    bl = vX + 16
    for i in range(16): A(f"v_mov_b32 {vr(bl+i)}, 0")
    for nt in range(1, 4): A(f"v_xor_b32 {vr(vRaw+nt)}, {32*nt}, {vr(vWr)}")
    ls4 = vT + 4; ck = vT + 1
    def lse_load():
        A(f"global_load_dwordx4 {vr(ls4,4)}, {vr(vLa)}, s[28:29] sc1")
        A(f"global_load_dword {vr(vT+21)}, {vr(vT+20)}, s[26:27] sc1")
    A(f"s_mov_b32 s36, {f32(1.0 + 1e-5)}")
    A("s_brev_b32 s40, 1"); A("s_brev_b32 s41, 1")
    def weights():
        A(f"v_lshrrev_b32 {vr(ck)}, 20, {vr(vT+21)}"); A(f"v_add_u32 {vr(ck)}, -1, {vr(ck)}")
        A(f"v_max3_u32 {vr(ck)}, {vr(ck)}, {vr(ls4)}, {vr(ls4+1)}"); A(f"v_max3_u32 {vr(ck)}, {vr(ck)}, {vr(ls4+2)}, {vr(ls4+3)}")
        A(f"v_cmp_eq_u32 vcc, -1, {vr(ck)}")
        A(f"v_max3_f32 {vr(vT+2)}, {vr(ls4)}, {vr(ls4+1)}, {vr(ls4+2)}"); A(f"v_max_f32 {vr(vT+2)}, {vr(vT+2)}, {vr(ls4+3)}")
        for i in range(4): A(f"v_sub_f32 {vr(ls4+i)}, {vr(ls4+i)}, {vr(vT+2)}")
        for i in range(4): A(f"v_exp_f32 {vr(ls4+i)}, {vr(ls4+i)}")
        A(f"v_add_f32 {vr(vT+2)}, {vr(ls4)}, {vr(ls4+1)}"); A(f"v_add_f32 {vr(vT+3)}, {vr(ls4+2)}, {vr(ls4+3)}")
        A(f"v_add_f32 {vr(vT+2)}, {vr(vT+2)}, {vr(vT+3)}"); A(f"v_rcp_f32 {vr(vT+2)}, {vr(vT+2)}")
        for i in range(4): A(f"v_mul_f32 {vr(ls4+i)}, {vr(ls4+i)}, {vr(vT+2)}")
    A.c("split-combine weights; vcc != 0: some lse had not arrived yet, redo after publishing")
    if tal >= 0:
        A("s_branch L_tail"); A(".p2align 12")
        if tal: A(f".fill {tal // 4}, 4, 0xbf810000")
        A("L_tail:")
    stamp(2)
    A("s_barrier")
    lse_load()
    if not lw: A("s_cmp_ge_u32 s32, 28"); A("s_cbranch_scc0 L_wob"); A("s_waitcnt vmcnt(0)"); A("L_wob:")
    wo_loads(NE, 8 - NB, "b")
    A(f"s_mov_b32 s35, {-SPIN & 0xffffffff}")
    A("s_cmp_eq_u32 s62, 0")
    A("L_b3:")
    A("s_barrier")
    stamp(5)
    if "E" in skip: A("s_branch L_fin")
    A.c("reduce the four stream waves' o partials, publish as bf16")
    o = vX; ls4 = vT + 4; oa = vX + 32; Dc = vX + 40; ck = vT + 1
    for w_ in range(4): A(f"ds_read_b64 {vr(o+2*w_,2)}, {vr(vOPr)} offset:{2048*w_}")
    for w_ in range(1, 4):
        A(f"s_waitcnt lgkmcnt({3-w_})")
        A(f"v_pk_add_f32 {vr(o,2)}, {vr(o,2)}, {vr(o+2*w_,2)}")
    A(f"v_cvt_pk_bf16_f32 {vr(o)}, {vr(o)}, {vr(o+1)}")
    A(f"v_min_u32 {vr(o)}, -2, {vr(o)}")
    A("s_cbranch_scc0 L_slowpub")
    A(f"global_store_dword {vr(vOst)}, {vr(o)}, s[28:29]")
    A("L_pubd:")
    def ool_pub():
        A("L_slowpub:")
        A(f"global_store_dword {vr(vOst)}, {vr(o)}, s[28:29] sc1")
        A("s_branch L_pubd")
    OOL.append(ool_pub)
    stamp(6)
    A.c("out projection")
    def aset():
        for tt in range(2):
            A(f"global_load_dwordx4 {vr(oa+4*tt,4)}, {vr(vOa)}, s[28:29] offset:{1024*tt} sc1")
    if ap:
        wo_loads(8 - NB, 8, "c")
        seqv = [f"w{i}" for i in range(NE, 8 - NB)] + ["st"] + [f"w{i}" for i in range(8 - NB, 8)]
        def upto(i):
            live = [k for k, x in enumerate(seqv) if x[0] == "w" and int(x[1:]) <= i]
            if live: A(f"s_waitcnt vmcnt({len(seqv) - 1 - max(live)})")
        if lw: A("s_cmp_ge_u32 s32, 28"); A("s_cbranch_scc0 L_wob"); A("s_waitcnt vmcnt(0)"); A("L_wob:")
        A(f"s_waitcnt vmcnt({len(seqv)})")
        weights()
        upto(3)
        if ap == 1: aset(); seqv += ["a", "a"]
        wo_frags((0,))
        if ap >= 2: upto(3 + ap); aset(); seqv += ["a", "a"]
        upto(7); wo_frags((1,))
    else:
        aset()
        A(f"s_waitcnt vmcnt({3 + 8 - NE})")
        weights()
        if o1:
            A("s_waitcnt vmcnt(7)"); wo_frags((0,)); A("s_waitcnt vmcnt(3)"); wo_frags((1,))
        else:
            A("s_waitcnt vmcnt(3)"); wo_frags()
    A("s_cbranch_vccnz L_lretry")
    def ool_l():
        A("L_lretry:")
        lse_load()
        A("s_add_u32 s35, s35, 1")
        A("s_waitcnt vmcnt(0)")
        weights()
        A("s_cbranch_scc1 L_lok")
        A("s_cbranch_vccnz L_lretry")
        A("L_lok:")
        A(f"s_mov_b32 s35, {-SPIN & 0xffffffff}")
        A("s_branch L_apoll0")
    OOL.insert(0, ool_l)
    A("L_apoll0:")
    def achk():
        A(f"v_max3_u32 {vr(ck)}, {vr(oa)}, {vr(oa+1)}, {vr(oa+2)}"); A(f"v_max3_u32 {vr(ck)}, {vr(ck)}, {vr(oa+3)}, {vr(oa+4)}")
        A(f"v_max3_u32 {vr(ck)}, {vr(ck)}, {vr(oa+5)}, {vr(oa+6)}"); A(f"v_max_u32 {vr(ck)}, {vr(ck)}, {vr(oa+7)}")
    if True:
        A("s_waitcnt vmcnt(0)")
        achk()
        A(f"v_cmpx_eq_u32 vcc, -1, {vr(ck)}")
        A("s_cbranch_execz L_adone")
        for _ in range(DA - 1):
            aset()
            for _ in range(GA): A("s_nop 7")
    A("L_apoll:")
    aset()
    A("s_add_u32 s35, s35, 1"); A("s_cselect_b32 s47, -1, -2")
    A(f"s_waitcnt vmcnt({2*(DA-1)})")
    achk()
    A(f"v_cmpx_lt_u32 vcc, s47, {vr(ck)}")
    A("s_cbranch_execnz L_apoll")
    A("L_adone:")
    A("s_mov_b64 exec, -1")
    A("s_waitcnt lgkmcnt(6)" if o1 else "s_waitcnt lgkmcnt(0)")
    A(f"s_mov_b32 s35, {-SPIN & 0xffffffff}")
    stamp(7)
    pp = vT + 16
    def wsum(c):
        return [f"v_mul_f32 {vr(pp+c)}, {vr(Dc+4*c)}, {vr(ls4)}"] + [f"v_fmac_f32 {vr(pp+c)}, {vr(Dc+4*c+i)}, {vr(ls4+i)}" for i in range(1, 4)]
    ws = sum((wsum(c) for c in range(4)), [])
    for k in range(8):
        c, tt = k >> 1, k & 1
        cc_ = "0" if tt == 0 else vr(Dc+4*c, 4)
        A(f"v_mfma_f32_16x16x32_bf16 {vr(Dc+4*c,4)}, {vr(oa+4*tt,4)}, {vr(vW+16*tt+4*c,4)}, {cc_}")
        if o1 and k in (2, 4, 6): A(f"s_waitcnt lgkmcnt({6 - k})")
        if 1 <= k <= 3: A(f"s_nop {0 if (o1 and k == 2) else 1}")
        if k >= 4: A(ws.pop(0)); A(ws.pop(0))
    A(f"ds_write2_b32 {vr(vPPa)}, {vr(pp)}, {vr(pp+1)} offset0:0 offset1:16")
    for x in ws: A(x)
    A(f"ds_write2_b32 {vr(vPPa)}, {vr(pp+2)}, {vr(pp+3)} offset0:32 offset1:48")
    A("s_mov_b64 exec, 0xffff")
    A("s_waitcnt lgkmcnt(0)")
    stamp(8)
    A("s_barrier")
    pr = vX
    for w_ in range(4): A(f"ds_read_b128 {vr(pr+4*w_,4)}, {vr(vPPr)} offset:{1024*w_}")
    for w_ in range(1, 4):
        A(f"s_waitcnt lgkmcnt({3-w_})")
        for k in (0, 2): A(f"v_pk_add_f32 {vr(pr+k,2)}, {vr(pr+k,2)}, {vr(pr+4*w_+k,2)}")
    A(f"v_cvt_pk_bf16_f32 {vr(pr)}, {vr(pr)}, {vr(pr+1)}"); A(f"v_cvt_pk_bf16_f32 {vr(pr+1)}, {vr(pr+2)}, {vr(pr+3)}")
    A(f"v_min_u32 {vr(pr)}, -2, {vr(pr)}"); A(f"v_min_u32 {vr(pr+1)}, -2, {vr(pr+1)}")
    A("s_mov_b32 exec_lo, s44")
    A(f"global_store_dwordx2 {vr(vBst)}, {vr(pr,2)}, s[28:29] sc1")
    A("s_mov_b32 exec_lo, s45")
    A(f"global_store_dwordx2 {vr(vBst)}, {vr(pr,2)}, s[28:29]")
    A("s_mov_b64 exec, s[42:43]")
    stamp(9)
    if "a" in bx: A("s_waitcnt vmcnt(0)")
    if "b" in bx: A("s_barrier")
    if PB0: A(f"s_sleep {PB0}")
    def bset():
        for i in range(4):
            A(f"global_load_dwordx4 {vr(bl+4*i,4)}, {vr(vBa)}, s[28:29] offset:{896*i} sc1")
    def bchk():
        A(f"v_max3_u32 {vr(ck)}, {vr(bl)}, {vr(bl+1)}, {vr(bl+2)}")
        for i in range(3, 15, 2): A(f"v_max3_u32 {vr(ck)}, {vr(ck)}, {vr(bl+i)}, {vr(bl+i+1)}")
        A(f"v_max_u32 {vr(ck)}, {vr(ck)}, {vr(bl+15)}")
    if DB > 1:
        bset()
        A("s_waitcnt vmcnt(0)")
        bchk()
        A(f"v_cmpx_eq_u32 vcc, -1, {vr(ck)}")
        A("s_cbranch_execz L_bdone")
        for _ in range(DB - 1):
            bset()
            for _ in range(GB): A("s_nop 7")
    if o2:
        hh_ = vT + 12; s1 = vT + 8
        A("L_bpoll:")
        bset()
        A("s_add_u32 s35, s35, 1"); A("s_cselect_b32 s47, -1, -2")
        A("s_mov_b64 exec, -1")
        A.c("h = x + sum of the 16 partials (matrix core does the unpack and the adds); discarded while a partial is missing")
        for i in range(4):
            A(f"s_waitcnt vmcnt({3-i})")
            A(f"v_mfma_f32_16x16x32_bf16 {vr(hh_,4)}, {vr(vDl,4)}, {vr(bl+4*i,4)}, {vr(vXr if i == 0 else hh_,4)}")
            if i == 0:
                A(f"v_max3_u32 {vr(ck)}, {vr(bl)}, {vr(bl+1)}, {vr(bl+2)}"); A(f"v_max_u32 {vr(ck)}, {vr(ck)}, {vr(bl+3)}")
            else:
                A(f"v_max3_u32 {vr(ck)}, {vr(ck)}, {vr(bl+4*i)}, {vr(bl+4*i+1)}"); A(f"v_max3_u32 {vr(ck)}, {vr(ck)}, {vr(bl+4*i+2)}, {vr(bl+4*i+3)}")
        A(f"v_cmpx_lt_u32 vcc, s47, {vr(ck)}")
        A("s_cbranch_execnz L_bpoll")
        A("s_mov_b64 exec, -1")
        stamp(10)
        A(f"v_mov_b32 {vr(vT)}, {L_HS}")
    else:
        A("L_bpoll:")
        if PB: A(f"s_sleep {PB}")
        bset()
        A("s_add_u32 s35, s35, 1")
        A(f"s_waitcnt vmcnt({4*(DB-1)})")
        bchk()
        A("s_cbranch_scc1 L_bdone")
        A(f"v_cmpx_eq_u32 vcc, -1, {vr(ck)}")
        A("s_cbranch_execnz L_bpoll")
        A("L_bdone:")
        A("s_mov_b64 exec, -1")
        stamp(10)
        A.c("h = x + sum of the 16 partials (matrix core does the unpack and the adds)")
        hh_ = vXr; s1 = vT + 8
        A(f"v_mov_b32 {vr(vT)}, {L_HS}")
        for i in range(4): A(f"v_mfma_f32_16x16x32_bf16 {vr(hh_,4)}, {vr(vDl,4)}, {vr(bl+4*i,4)}, {vr(hh_,4)}")
    for k in (0, 2): A(f"v_pk_fma_f32 {vr(vT+4+k,2)}, {vr(hh_+k,2)}, {vr(vKs,2)}, {vr(vKs,2)} op_sel:[0,0,1] op_sel_hi:[1,0,1]")
    A(f"ds_write_b128 {vr(vHw)}, {vr(hh_,4)}")
    A(f"v_pk_mul_f32 {vr(s1,2)}, {vr(hh_,2)}, {vr(vT+4,2)}")
    A(f"v_pk_fma_f32 {vr(s1,2)}, {vr(hh_+2,2)}, {vr(vT+6,2)}, {vr(s1,2)}")
    A(f"v_add_f32 {vr(s1)}, {vr(s1)}, {vr(s1+1)}")
    for sh in (8, 4, 2, 1):
        A(f"v_add_f32_dpp {vr(s1)}, {vr(s1)}, {vr(s1)} row_ror:{sh} row_mask:0xf bank_mask:0xf")
    A(f"v_add_f32_dpp {vr(s1)}, {vr(s1)}, {vr(s1)} row_bcast:15 row_mask:0xa bank_mask:0xf")
    A("s_mov_b64 exec, s[40:41]")
    A(f"ds_write_b32 {vr(vHsw)}, {vr(s1)}")
    A("s_mov_b64 exec, -1")
    A("s_waitcnt lgkmcnt(0)")
    A("s_barrier")
    A.c("LayerNorm(LayerNorm(h)) = (h - mu) * rsqrt(var*(1+eps) + eps^2), then the token MLP")
    h8 = vT + 4; hv = vT + 1
    A(f"ds_read_b128 {vr(h8,4)}, {vr(vT)}")
    A(f"ds_read_b128 {vr(h8+4,4)}, {vr(vT)} offset:16")
    A(f"ds_read_b32 {vr(hv)}, {vr(vHa)}")
    A(f"ds_read_b64 {vr(vHf,2)}, {vr(vHf)}")
    mu = vT + 2; rs = vT + 3
    A(f"v_mov_b32 {vr(vT+12)}, {f32(1e-10)}")
    A("s_waitcnt lgkmcnt(2)")
    A(f"v_pk_add_f32 {vr(h8,2)}, {vr(h8,2)}, {vr(h8+2,2)}")
    A(f"v_pk_add_f32 {vr(h8+4,2)}, {vr(h8+4,2)}, {vr(h8+6,2)}")
    A(f"v_pk_add_f32 {vr(mu,2)}, {vr(h8,2)}, {vr(h8+4,2)}")
    A(f"v_fma_f32 {vr(rs)}, -{vr(mu)}, {vr(mu)}, {vr(rs)}")
    A(f"v_fma_f32 {vr(rs)}, |{vr(rs)}|, s36, {vr(vT+12)}")
    A(f"v_rsq_f32 {vr(rs)}, {vr(rs)}")
    A("s_waitcnt lgkmcnt(1) vmcnt(0)")
    A(f"v_sub_f32 {vr(hv)}, {vr(hv)}, {vr(mu)}")
    A(f"v_mul_f32 {vr(hv)}, {vr(hv)}, {vr(rs)}")
    A(f"v_cvt_pk_bf16_f32 {vr(hv)}, {vr(hv)}, {vr(hv)}")
    A(f"v_and_b32 {vr(hv)}, s38, {vr(hv)}")
    X_ = vT + 4; Y = vT + 5; t1 = vT + 6; t2 = vT + 7; Am = vT + 8
    A(f"v_fma_f32 {vr(X_)}, {vr(hv)}, {vr(vK1)}, {vr(vK1+1)}"); A(f"v_mul_f32 {vr(X_)}, {vr(X_)}, {vr(hv)}")
    A(f"v_fma_f32 {vr(Y)}, {vr(X_)}, {vr(vK1)}, {vr(vK1+2)}")
    A(f"v_cvt_pk_bf16_f32 {vr(Am)}, {vr(X_)}, {vr(X_)}")
    A(f"v_mul_f32 {vr(Y)}, {vr(Y)}, {vr(hv)}")
    A(f"v_and_b32 {vr(t1)}, s38, {vr(Am)}")
    A(f"v_cvt_pk_bf16_f32 {vr(Am+2)}, {vr(Y)}, {vr(Y)}")
    A(f"v_sub_f32 {vr(X_)}, {vr(X_)}, {vr(t1)}")
    A(f"v_and_b32 {vr(t2)}, s38, {vr(Am+2)}")
    A(f"v_cvt_pk_bf16_f32 {vr(Am+1)}, {vr(X_)}, {vr(X_)}")
    A(f"v_sub_f32 {vr(Y)}, {vr(Y)}, {vr(t2)}")
    A(f"v_or_b32 {vr(Am+1)}, {vr(Am+1)}, {vr(vK1+3)}")
    A(f"v_cvt_pk_bf16_f32 {vr(Am+3)}, {vr(Y)}, {vr(Y)}")
    A(f"v_or_b32 {vr(Am+3)}, {vr(Am+3)}, {vr(vK1+4)}")
    A(f"v_cmp_nge_f32 vcc, s3, |{vr(hv)}|")
    stamp(11)
    Db = [vX, vX + 16, vX + 32]; acc = vT + 12; Dd = vRaw; Nn = vRaw + 8
    def mm(tile):
        A(f"v_mfma_f32_32x32x16_bf16 {vr(Db[tile%3],16)}, {vr(Am,4)}, {vr(vC+4*tile,4)}, 0")
    mm(0)
    A("s_waitcnt lgkmcnt(0)")
    A(f"v_add_f32 {vr(vHf)}, {vr(vHf)}, {vr(vB2)}"); A(f"v_add_f32 {vr(vHf+1)}, {vr(vHf+1)}, {vr(vB2)}")
    A(f"v_lshlrev_b32 {vr(vT)}, 3, v1"); A(f"v_add_u32 {vr(vT)}, {L_Y}, {vr(vT)}")
    if wb:
        A("s_cmp_eq_u32 s30, 0"); A("s_cselect_b32 s33, s32, 0"); A(f"s_cmp_ge_u32 s33, {32 - wb}"); A("s_cbranch_scc0 L_nowb"); A("buffer_wbl2 sc1"); A("L_nowb:")
    A("s_cbranch_vccnz L_fb")
    A.c("sum_f n_f / (1 + e_f) kept as one fraction N / D")
    if o3:
        def chain(k, D, Np, first):
            if first: return [f"v_pk_add_f32 {vr(Dd+k,2)}, {vr(D+k,2)}, 1.0 op_sel_hi:[1,0]"]
            return [f"v_pk_fma_f32 {vr(D+8+k,2)}, {vr(D+8+k,2)}, {vr(Dd+k,2)}, {vr(Np+k,2)}",
                    f"v_pk_fma_f32 {vr(Dd+k,2)}, {vr(Dd+k,2)}, {vr(D+k,2)}, {vr(Dd+k,2)}",
                    f"v_pk_fma_f32 {vr(Nn+k,2)}, {vr(Np+k,2)}, {vr(D+k,2)}, {vr(D+8+k,2)}"]
        for tile in range(14):
            D = Db[tile % 3]; P = Db[(tile - 1) % 3]
            if tile + 1 < 14: mm(tile + 1)
            odd = tile & 1
            if odd:
                if tile == 1: A(f"v_mov_b32 {vr(Nn+6)}, {vr(P+14)}"); A(f"v_mov_b32 {vr(Nn+7)}, {vr(D+14)}")
                else: A(f"v_mov_b32 {vr(P+15)}, {vr(D+14)}")
            for i in range(6): A(f"v_exp_f32 {vr(D+i)}, {vr(D+i)}")
            A(f"v_exp_f32 {vr(P+7 if odd else D+6)}, {vr(D+6)}")
            ch = [chain(k, D, Db[0] + 8 if tile == 1 else Nn, tile == 0) for k in (0, 2, 4)]
            if odd: ch.append(chain(6, P, Nn, tile == 1))
            for st in range(3):
                for c_ in ch:
                    if len(c_) == 3: A(c_[st])
                    elif st == (0 if tile == 0 else 1): A(c_[0])
        for i in (6, 7, 0, 1, 2, 3, 4, 5): A(f"v_rcp_f32 {vr(Dd+i)}, {vr(Dd+i)}")
        A(f"v_mul_f32 {vr(acc+6)}, {vr(Nn+6)}, {vr(Dd+6)}"); A(f"v_fmac_f32 {vr(acc+6)}, {vr(Nn+7)}, {vr(Dd+7)}")
        for k in (0, 2, 4): A(f"v_pk_mul_f32 {vr(acc+k,2)}, {vr(Nn+k,2)}, {vr(Dd+k,2)}")
    else:
        for tile in range(14):
            D = Db[tile % 3]
            if tile + 1 < 14: mm(tile + 1)
            for i in range(7): A(f"v_exp_f32 {vr(D+i)}, {vr(D+i)}")
            if tile == 0:
                for k in range(0, 8, 2): A(f"v_pk_add_f32 {vr(Dd+k,2)}, {vr(D+k,2)}, 1.0 op_sel_hi:[1,0]")
                continue
            Np = Db[0] + 8 if tile == 1 else Nn
            for k in range(0, 8, 2): A(f"v_pk_fma_f32 {vr(D+8+k,2)}, {vr(D+8+k,2)}, {vr(Dd+k,2)}, {vr(Np+k,2)}")
            for k in range(0, 8, 2): A(f"v_pk_fma_f32 {vr(Dd+k,2)}, {vr(Dd+k,2)}, {vr(D+k,2)}, {vr(Dd+k,2)}")
            for k in range(0, 8, 2): A(f"v_pk_fma_f32 {vr(Nn+k,2)}, {vr(Np+k,2)}, {vr(D+k,2)}, {vr(D+8+k,2)}")
        for i in range(7): A(f"v_rcp_f32 {vr(Dd+i)}, {vr(Dd+i)}")
        for k in range(0, 8, 2): A(f"v_pk_mul_f32 {vr(acc+k,2)}, {vr(Nn+k,2)}, {vr(Dd+k,2)}")
    A("L_fbd:")
    A("s_cmp_eq_u32 s30, 1")
    def ool_fb():
        A("L_fb:")
        A.c("direct evaluation (large activations or weights)")
        hh = vRaw; fa = vRaw + 8; w_ = vRaw + 9; b_ = vRaw + 10; u_ = vRaw + 11; x_ = vRaw + 12; p_ = vRaw + 13; al = vRaw + 14
        A(f"v_lshrrev_b32 {vr(fa)}, 5, v0"); A(f"v_mul_u32_u24 {vr(fa)}, 28, {vr(fa)}")
        A("s_mul_i32 s33, s32, 56"); A(f"s_add_u32 s33, s33, {L_H}"); A(f"v_add_u32 {vr(fa)}, s33, {vr(fa)}")
        for i in range(7): A(f"ds_read_b32 {vr(hh+i)}, {vr(fa)} offset:{4*i}")
        A(f"v_and_b32 {vr(fa)}, 31, v0"); A(f"v_lshlrev_b32 {vr(fa)}, 1, {vr(fa)}")
        A("s_mul_i32 s33, s30, 896"); A(f"v_add_u32 {vr(fa)}, s33, {vr(fa)}")
        A(f"s_mov_b32 s33, {f32(BETA)}"); A(f"v_mov_b32 {vr(al)}, {f32(ALPHA)}")
        for i in range(8): A(f"v_mov_b32 {vr(acc+i)}, 0")
        A("s_waitcnt lgkmcnt(0)")
        for i in range(7):
            A(f"v_sub_f32 {vr(hh+i)}, {vr(hh+i)}, {vr(mu)}"); A(f"v_mul_f32 {vr(hh+i)}, {vr(hh+i)}, {vr(rs)}")
            A(f"v_cvt_pk_bf16_f32 {vr(hh+i)}, {vr(hh+i)}, {vr(hh+i)}"); A(f"v_and_b32 {vr(hh+i)}, s38, {vr(hh+i)}")
        A("s_mov_b32 s34, 0")
        A("L_fbl:")
        A(f"global_load_ushort {vr(w_)}, {vr(fa)}, s[16:17]"); A(f"global_load_ushort {vr(b_)}, {vr(fa)}, s[18:19]"); A(f"global_load_ushort {vr(u_)}, {vr(fa)}, s[20:21]")
        A(f"v_add_u32 {vr(fa)}, 64, {vr(fa)}")
        A("s_waitcnt vmcnt(0)")
        for r_ in (w_, b_, u_): A(f"v_lshlrev_b32 {vr(r_)}, 16, {vr(r_)}")
        for i in range(7):
            A(f"v_fma_f32 {vr(x_)}, {vr(w_)}, {vr(hh+i)}, {vr(b_)}")
            A(f"v_mul_f32 {vr(p_)}, {vr(x_)}, {vr(x_)}"); A(f"v_fma_f32 {vr(p_)}, {vr(p_)}, s33, {vr(al)}"); A(f"v_mul_f32 {vr(p_)}, {vr(p_)}, {vr(x_)}")
            A(f"v_exp_f32 {vr(p_)}, {vr(p_)}"); A(f"v_add_f32 {vr(p_)}, 1.0, {vr(p_)}"); A(f"v_rcp_f32 {vr(p_)}, {vr(p_)}")
            A(f"v_mul_f32 {vr(x_)}, {vr(x_)}, {vr(p_)}"); A(f"v_fmac_f32 {vr(acc+i)}, {vr(x_)}, {vr(u_)}")
        A("s_add_u32 s34, s34, 1"); A("s_cmp_lt_u32 s34, 14"); A("s_cbranch_scc1 L_fbl")
        A("s_branch L_fbd")
    OOL.append(ool_fb)
    stamp(12)
    for k in range(4): A(f"v_add_f32_dpp {vr(acc+2*k)}, {vr(acc+2*k)}, {vr(acc+2*k)} row_ror:8 row_mask:0xf bank_mask:0x3")
    for k in range(3): A(f"v_add_f32_dpp {vr(acc+2*k)}, {vr(acc+2*k+1)}, {vr(acc+2*k+1)} row_ror:8 row_mask:0xf bank_mask:0xc")
    for k in range(2): A(f"v_add_f32_dpp {vr(acc+4*k)}, {vr(acc+4*k)}, {vr(acc+4*k)} row_shl:4 row_mask:0xf bank_mask:0x5")
    for k in range(2): A(f"v_add_f32_dpp {vr(acc+4*k)}, {vr(acc+4*k+2)}, {vr(acc+4*k+2)} row_shr:4 row_mask:0xf bank_mask:0xa")
    A(f"v_permlane16_swap_b32 {vr(acc)}, {vr(acc+4)}")
    A(f"v_add_f32 {vr(acc)}, {vr(acc)}, {vr(acc+4)}")
    A(f"v_add_f32_dpp {vr(acc)}, {vr(acc)}, {vr(acc)} quad_perm:[1,0,3,2] row_mask:0xf bank_mask:0xf")
    A(f"v_add_f32_dpp {vr(acc)}, {vr(acc)}, {vr(acc)} quad_perm:[2,3,0,1] row_mask:0xf bank_mask:0xf")
    A(f"ds_write_b32 {vr(vYa)}, {vr(acc)}")
    A("s_mov_b64 exec, 0x7f")
    A("s_waitcnt lgkmcnt(0)")
    A("s_barrier")
    A("s_cbranch_scc0 L_fin")
    A(f"ds_read2_b64 {vr(vT+4,4)}, {vr(vT)} offset0:0 offset1:8")
    A(f"ds_read2_b64 {vr(vT+8,4)}, {vr(vT)} offset0:16 offset1:24")
    A("s_waitcnt lgkmcnt(1)")
    A(f"v_pk_add_f32 {vr(vHf,2)}, {vr(vHf,2)}, {vr(vT+4,2)}"); A(f"v_pk_add_f32 {vr(vHf,2)}, {vr(vHf,2)}, {vr(vT+6,2)}")
    A("s_waitcnt lgkmcnt(0)")
    A(f"v_pk_add_f32 {vr(vHf,2)}, {vr(vHf,2)}, {vr(vT+8,2)}"); A(f"v_pk_add_f32 {vr(vHf,2)}, {vr(vHf,2)}, {vr(vT+10,2)}")
    A(f"v_cvt_pk_bf16_f32 {vr(vT+2)}, {vr(vHf)}, {vr(vHf+1)}")
    A(f"global_store_dword {vr(vOut)}, {vr(vT+2)}, s[24:25] {outpol}")
    A("L_fin:")
    stamp(13)
    if amp:
        A(f"s_cmp_eq_u32 s30, {amp[0]}"); A("s_cbranch_scc0 L_end")
        A("s_waitcnt lgkmcnt(0)")
        A(f"s_sub_u32 s33, s{64+2*amp[1]}, s{64+2*amp[2]}")
        if amp[3] < 0: A("s_sub_u32 s33, 3000, s33")
        A("s_min_u32 s33, s33, 5000"); A("s_lshl_b32 s33, s33, 3"); A("s_add_u32 s33, s33, 4000")
        A("L_amp:")
        A("s_memrealtime s[34:35]"); A("s_waitcnt lgkmcnt(0)"); A("s_sub_u32 s34, s34, s64")
        A("s_cmp_lt_u32 s34, s33"); A("s_cbranch_scc1 L_amp")
    if gamp:
        A("s_cmp_eq_u32 s30, 1"); A("s_cbranch_scc0 L_end")
        A("s_waitcnt lgkmcnt(0)")
        A(f"s_mov_b32 s36, s{64+2*gamp[0]}")
        A(f"s_not_b32 s37, s{64+2*gamp[1]}" if gamp[2] == "min" else f"s_mov_b32 s37, s{64+2*gamp[1]}")
        A("s_atomic_umax s36, s[26:27], 192"); A("s_atomic_umax s37, s[26:27], 196"); A("s_waitcnt lgkmcnt(0)")
        A("s_cmp_eq_u32 s2, 0"); A("s_cbranch_scc0 L_end")
        A("L_g1:")
        A("s_memrealtime s[34:35]"); A("s_waitcnt lgkmcnt(0)"); A("s_sub_u32 s34, s34, s64")
        A("s_cmp_lt_u32 s34, 3800"); A("s_cbranch_scc1 L_g1")
        A("s_load_dwordx2 s[36:37], s[26:27], 192 glc"); A("s_waitcnt lgkmcnt(0)")
        if gamp[2] == "min": A("s_not_b32 s37, s37")
        A("s_sub_u32 s33, s36, s37"); A("s_min_u32 s33, s33, 5000"); A("s_lshl_b32 s33, s33, 3"); A("s_add_u32 s33, s33, 4000")
        A("L_g2:")
        A("s_memrealtime s[34:35]"); A("s_waitcnt lgkmcnt(0)"); A("s_sub_u32 s34, s34, s64")
        A("s_cmp_lt_u32 s34, s33"); A("s_cbranch_scc1 L_g2")
    if rnd:
        A("s_cmp_eq_u32 s30, 0"); A("s_cselect_b32 s33, s2, 1"); A("s_cmp_eq_u32 s33, 0"); A("s_cbranch_scc0 L_end")
        A("s_memrealtime s[64:65]"); A("s_waitcnt lgkmcnt(0)")
        A("s_lshr_b32 s33, s64, 2"); A("s_mul_i32 s33, s33, 0x9e3779b1"); A("s_lshr_b32 s34, s33, 15"); A("s_xor_b32 s33, s33, s34"); A("s_mul_i32 s33, s33, 0x85ebca6b")
        A("s_lshr_b32 s33, s33, 19")
        A("L_rnd:")
        A("s_memrealtime s[34:35]"); A("s_waitcnt lgkmcnt(0)"); A("s_sub_u32 s34, s34, s64")
        A("s_cmp_lt_u32 s34, s33"); A("s_cbranch_scc1 L_rnd")
    dump_stamps(15)
    A("L_end:")
    A("s_endpgm")
    for f in OOL: f()
    A(".fill 1024, 4, 0xbf810000")

    body, nn = fix_hazards(A.L)
    head = [l.rstrip("\n") for l in open("header.txt")]
    head.append(f"; @launch grid=(256,1,1) block=(512,1,1) lds={L_END}")
    head += ['.amdgcn_target "amdgcn-amd-amdhsa--gfx950"', ".text"] + ([".p2align 12"] if al else []) + ([f".fill {pad // 4}, 4, 0xbf810000"] if pad else []) + [f".globl {NAME}", ".p2align 8", f".type {NAME},@function"]
    tail = ['.section .rodata,"a"', ".p2align 6", f".amdhsa_kernel {NAME}",
            "  .amdhsa_next_free_vgpr 256", "  .amdhsa_next_free_sgpr 96", "  .amdhsa_accum_offset 256",
            "  .amdhsa_group_segment_fixed_size 0", "  .amdhsa_kernarg_size 104", "  .amdhsa_user_sgpr_count 2",
            "  .amdhsa_user_sgpr_kernarg_segment_ptr 1", "  .amdhsa_system_sgpr_workgroup_id_x 1",
            "  .amdhsa_float_denorm_mode_32 3", ".end_amdhsa_kernel"]
    return "\n".join(head + body + tail) + "\n"

if __name__ == "__main__":
    kw = eval("dict(" + (sys.argv[2] if len(sys.argv) > 2 else "") + ")")
    open(sys.argv[1], "w").write(gen(**kw))
```

```python
import re

REG = re.compile(r'^(-?\|?|abs\(|-abs\()?([vsa])(\d+|\[(\d+):(\d+)\])\)?\|?$')

def regs_of(tok):
    tok = tok.strip()
    if tok in ('vcc',): return {('s', 'vcc')}
    if tok in ('vcc_lo', 'vcc_hi'): return {('s', 'vcc')}
    if tok in ('exec', 'exec_lo', 'exec_hi'): return {('s', 'exec')}
    if tok == 'm0': return {('s', 'm0')}
    m = REG.match(tok)
    if not m: return set()
    f = m.group(2)
    if m.group(4) is not None:
        return {(f, i) for i in range(int(m.group(4)), int(m.group(5)) + 1)}
    return {(f, int(m.group(3)))}

TRANS = ('v_exp_', 'v_log_', 'v_rcp_', 'v_rsq_', 'v_sqrt_', 'v_sin_', 'v_cos_')

class Ins:
    def __init__(self, text):
        self.text = text
        t = text.split(';')[0].strip()
        self.label = None; self.op = None; self.directive = False
        self.w = set(); self.r = set(); self.ws = 0
        if not t: return
        if t.endswith(':'):
            self.label = t[:-1]; return
        if t.startswith('.'):
            self.directive = True; return
        parts = t.split(None, 1)
        self.op = op = parts[0]
        rest = parts[1] if len(parts) > 1 else ''
        ops = []; cur = ''; depth = 0
        for ch in rest:
            if ch in '[(': depth += 1
            if ch in '])': depth -= 1
            if ch == ',' and depth == 0:
                ops.append(cur.strip()); cur = ''
            else: cur += ch
        if cur.strip(): ops.append(cur.strip())
        mods = ''
        if ops:
            last = ops[-1].split(None, 1)
            ops[-1] = last[0]
            mods = last[1] if len(last) > 1 else ''
        self.ops = ops; self.mods = mods
        self.ws = 1
        if op == 's_nop': self.ws = int(ops[0], 0) + 1
        R = [regs_of(o) for o in ops]
        U = lambda xs: set().union(*xs) if xs else set()
        self.valu = op.startswith('v_')
        self.mfma = op.startswith('v_mfma')
        self.trans = op.startswith(TRANS)
        self.dpp = self.valu and any(k in mods for k in ('row_', 'quad_perm', 'wave_'))
        self.vmem = op.startswith(('buffer_', 'global_'))
        self.ds = op.startswith('ds_')
        self.salu = op.startswith('s_')
        self.permlane = op.startswith('v_permlane')
        self.ldsdma = self.vmem and (' lds' in (' ' + mods) or 'load_lds' in op)
        self.widestore = False
        self.srcC = set(); self.srcAB = set()
        if self.mfma:
            self.w = R[0]; self.srcAB = R[1] | R[2]; self.srcC = R[3]; self.r = self.srcAB | self.srcC
            self.passes = 8 if '32x32x16' in op else 4
            assert ('32x32x16_bf16' in op) or ('16x16x32_bf16' in op) or ('16x16x16_bf16' in op), op
        elif self.permlane:
            self.w = R[0] | R[1]; self.r = R[0] | R[1]
        elif self.valu:
            if op.startswith(('v_add_co', 'v_sub_co', 'v_addc_co', 'v_subb_co')):
                self.w = R[0] | R[1]; self.r = U(R[2:])
            else:
                self.w = R[0]; self.r = U(R[1:])
            if op.startswith('v_cmpx'): self.w |= {('s', 'exec')}
            if op.startswith(('v_fmac', 'v_pk_fmac', 'v_dot2c', 'v_writelane')) or self.dpp:
                self.r |= R[0]
        elif self.ds:
            if op.startswith(('ds_read', 'ds_bpermute', 'ds_permute', 'ds_swizzle')) or '_rtn' in op:
                self.w = R[0]; self.r = U(R[1:])
            else:
                self.r = U(R)
        elif self.vmem:
            if 'load' in op and not self.ldsdma:
                self.w = R[0]; self.r = U(R[1:])
                if 'd16' in op: self.r |= R[0]
            elif 'atomic' in op and 'sc0' in mods:
                self.w = R[0]; self.r = U(R)
            else:
                self.r = U(R)
                if op.endswith(('x3', 'x4')) and 'store' in op:
                    self.widestore = True
                    self.stdata = R[0] if op.startswith('buffer_') else R[1]
            if self.ldsdma: self.r |= {('s', 'm0')}
        elif self.salu:
            if op.startswith(('s_cmp', 's_bitcmp', 's_cbranch', 's_branch', 's_waitcnt', 's_nop', 's_barrier', 's_sleep', 's_setprio', 's_endpgm', 's_setpc')):
                self.r = U(R)
            else:
                self.w = R[0] if R else set(); self.r = U(R[1:])
                if 'saveexec' in op: self.w |= {('s', 'exec')}
        self.branch = op.startswith(('s_cbranch', 's_branch'))
        self.uncond = op in ('s_branch', 's_endpgm', 's_setpc_b64')
        self.target = ops[0] if self.branch else None

def isv(rs): return {x for x in rs if x[0] in 'va'}
def iss(rs): return {x for x in rs if x[0] == 's'}

def need(p, c):
    n = 0
    if p.mfma:
        d = p.w
        if c.mfma:
            if d & c.srcAB: n = max(n, 8 if p.passes == 4 else 12)
            if d & c.srcC:
                if not (d == c.srcC and p.passes == c.passes): n = max(n, 6 if p.passes == 4 else 10)
            if (d & c.w) and not (d & c.srcC):
                n = max(n, 8 if p.passes == 4 else 12)
        elif (c.valu or c.vmem or c.ds) and (d & (c.r | c.w)):
            n = max(n, 8 if p.passes == 4 else 12)
        if c.valu and not c.mfma and (p.srcC & c.w): n = max(n, 3 if p.passes == 4 else 7)
        return n
    if p.valu:
        vw = isv(p.w); sw = iss(p.w)
        if c.mfma and (vw & c.r): n = max(n, 2)
        if c.valu and not c.mfma:
            if c.dpp and (vw & c.r): n = max(n, 2)
            if c.permlane and (vw & c.r): n = max(n, 2)
            if c.op.startswith(('v_readlane', 'v_readfirstlane')) and (vw & c.r): n = max(n, 1)
            if p.trans and (vw & c.r): n = max(n, 1)
            if ('op_sel' in p.mods or 'dst_sel' in p.mods) and not p.op.startswith('v_pk') and (vw & (c.r | c.w)): n = max(n, 1)
            if sw & c.r:
                n = max(n, 4 if c.op.startswith(('v_readlane', 'v_writelane')) else 2)
            if ('s', 'vcc') in sw and c.op.startswith(('v_cndmask', 'v_addc', 'v_subb')): n = max(n, 2)
        if ('s', 'exec') in sw:
            if c.mfma or c.permlane or c.op.startswith(('v_readlane', 'v_readfirstlane', 'v_writelane')): n = max(n, 4)
            if c.dpp: n = max(n, 5)
        if c.vmem and (sw & c.r): n = max(n, 5)
        if c.salu and (sw & c.r): n = max(n, 1)
        if c.op.startswith('s_cbranch_vcc') and ('s', 'vcc') in sw: n = max(n, 1)
    elif (p.vmem or p.ds):
        pass
    if p.salu and ('s', 'm0') in p.w and c.ldsdma: n = max(n, 1)
    if p.widestore and (p.stdata & c.w): n = max(n, 2 if c.valu else 1)
    return n

def fix_hazards(lines, maxd=13):
    ins = [Ins(l) for l in lines]
    total = 0
    def index():
        labels = {x.label: i for i, x in enumerate(ins) if x.label}
        srcs = {}
        for i, x in enumerate(ins):
            if x.op and x.branch: srcs.setdefault(labels[x.target], []).append(i)
        return srcs
    changed = True
    while changed:
        changed = False
        srcs = index()
        i = 0
        while i < len(ins):
            c = ins[i]
            if c.op:
                short = 0
                stack = [(i - 1, 0, True)]; seen = set()
                while stack:
                    j, dist, ft = stack.pop()
                    if j < 0 or dist >= maxd or (j, dist, ft) in seen: continue
                    seen.add((j, dist, ft))
                    p = ins[j]
                    if p.op:
                        if ft and p.uncond: continue
                        short = max(short, need(p, c) - dist)
                        stack.append((j - 1, dist + p.ws, True))
                    else:
                        if p.label:
                            for b in srcs.get(j, []): stack.append((b, dist, False))
                        stack.append((j - 1, dist, True))
                if short > 0:
                    ins.insert(i, Ins(f'    s_nop {short - 1}    ; hazard'))
                    total += short
                    changed = True
                    srcs = index()
                    i += 1
            i += 1
    return [x.text for x in ins], total

class Asm:
    def __init__(self):
        self.L = []
    def __call__(self, s):
        for l in s.split('\n'):
            l = l.strip()
            if not l: continue
            self.L.append(l if l.endswith(':') or l.startswith(('.', ';')) else '    ' + l)
    def c(self, s):
        self.L.append('    ; ' + s)

def vr(a, n=1):
    return f'v{a}' if n == 1 else f'v[{a}:{a+n-1}]'
def sr(a, n=1):
    return f's{a}' if n == 1 else f's[{a}:{a+n-1}]'

class Alloc:
    def __init__(self, start, limit):
        self.p = start; self.limit = limit; self.hi = start
    def __call__(self, n=1, align=None):
        if align is None: align = 1 if n == 1 else (2 if n < 4 else 4)
        self.p = (self.p + align - 1) // align * align
        a = self.p; self.p += n
        assert self.p <= self.limit, (self.p, self.limit)
        self.hi = max(self.hi, self.p)
        return a


def align8(lines, start, end, sizes, base_phase=0):
    out = list(lines)
    i0 = out.index(start + ":"); i1 = out.index(end + ":")
    idx = [i for i in range(i0, i1) if sizes[i]]
    phase = base_phase; last4 = None; n = 0
    for i in idx:
        sz = sizes[i]
        if sz == 8 and phase == 4 and last4 is not None:
            op, rest = out[last4].strip().split(None, 1)
            out[last4] = f"    {op}_e64 {rest}"; phase = 0; n += 1
        if sz == 4:
            op = out[i].strip().split(None, 1)[0]
            if op.startswith("v_") and not op.startswith(("v_permlane", "v_cmpx", "v_readfirst")): last4 = i
        else: last4 = None
        phase = (phase + sz) % 8
    return out, n
```

```python
import sys, struct, math
from asmlib import *

NAME = "sequential_preLN__sliding_block_cached__mixer_token_mlp__decode_kernel"
def f32(x): return "0x%08x" % struct.unpack("<I", struct.pack("<f", x))[0]

L_K = 0; L_WQ = 131072; L_Q = 145408; L_STAT = 146432; L_OP = 146688; L_PP = 154880; L_H = 158976; L_HS = 161024; L_Y = 161088
L_END = 161344
L_X = L_OP
W_Q = 0
W_L = 0xA0000
W_O = 0x40000
W_B = 0x80000
W_ALT = 0x100000
W_STAMP = 0x200000
SPIN = 0x20000
STAMP_VIEW = [("S", slice(4, 8), [0, 8, 6, 7, 1, 2, 3, 4, 5]), ("T0", 0, [0, 1, 3, 4, 14]), ("T3L", 3, [0, 1, 4], slice(224, 256)),
              ("T1", 1, [0, 4, 2, 5, 6, 7, 8, 9, 10, 11, 12, 13]), ("Tall", slice(0, 4), [5, 6, 7, 8, 9, 10, 11, 12, 13])]
ALPHA = -2.0 * math.sqrt(2.0 / math.pi) * math.log2(math.e)
BETA = ALPHA * 0.044715

def gen(W=8, QPOS=4, QD=2, FT=-1, stamps=False, force_slow=False, pol="nt", vpol=None, qpol="nt", opol="nt", opol2="nt", spol="", skip="",
        pref=True, opos="mid", qx=16, force_fb=False, touch=False, amp=None, DA=1, DB=1, rotm=1, PB=0, NL=1, EP=0, inst=0, spf=2, WE=0, WEN=64, WE0=8, WEM=0x55, NLD=4, LD0=8, qpace=0, prio=0, QT=0, GA=0, GB=0, cpos="early", N1=8, c1=True, NE=0, o1=True, o2=True, o3=True, ap=2, NB=0, pos='r1 j1 r3 j0 s0 r2 s1 t0 t1', rot='r3=c', wb=0, wbs=0, ks=0, b0=0, b0n=0, rnd=0, a8=('L_mlp', 'L_fbd'), wbt=5, wbm=0, tl_=0, tlw=2, gamp=None, wq1=0, wbr=31, lw=True, pad=0, al=1, tal=0, warm=0, outpol='', hack="", bx="ab", PB0=0):
    A = Asm()
    c1_ = c1
    OOL = []
    def stamp(i):
        if stamps or (amp and i in (amp[1], amp[2], 0)) or (gamp and i in (gamp[0], gamp[1], 0)): A(f"s_memrealtime s[{64+2*i}:{65+2*i}]")
    def dump_stamps(nst):
        if not stamps: return
        A("s_waitcnt lgkmcnt(0) vmcnt(0)")
        A("s_lshl_b32 s94, s2, 3"); A("s_add_u32 s94, s94, s30"); A("s_lshl_b32 s94, s94, 6"); A(f"s_add_u32 s94, s94, {W_STAMP}")
        A("s_mov_b64 exec, 1")
        A("v_mov_b32 v4, s94")
        for i in range(nst):
            A(f"v_mov_b32 v5, s{64+2*i}")
            A(f"global_store_dword v4, v5, s[28:29] offset:{4*i}")
        A("s_getreg_b32 s94, hwreg(HW_REG_XCC_ID, 0, 4)"); A("v_mov_b32 v5, s94")
        A("global_store_dword v4, v5, s[28:29] offset:60")
        A("s_waitcnt vmcnt(0)")

    A(f"{NAME}:")
    stamp(0)
    A("s_load_dwordx16 s[4:19], s[0:1], 0" if ks != 2 else "s_load_dwordx8 s[4:11], s[0:1], 0")
    if not ks or stamps:
        A("s_load_dwordx8 s[20:27], s[0:1], 64")
        A("s_load_dwordx2 s[28:29], s[0:1], 96")
    A("v_lshrrev_b32 v1, 6, v0")
    A("s_lshr_b32 s32, s2, 3")
    A("v_readfirstlane_b32 s30, v1")
    A("s_cmp_ge_u32 s32, 32")
    A("s_cbranch_scc1 L_end")
    A("v_and_b32 v0, 63, v0")
    A("s_and_b32 s31, s2, 7")
    A("v_lshlrev_b32 v3, 4, v0")
    A("s_cmp_lt_u32 s30, 4")
    A("s_cbranch_scc1 L_T")

    A.c("================ stream waves")
    V = Alloc(4, 256)
    vK = V(8); vVo = V(8); vKA = V(4); vM = V(4); vT = V(8); vOPa = V(2); vQA = V(); vSTw = V(); vSTr = V()
    vS = V(16); vAcc = vK; vQ = V(32); vKF = V(32); vVv = V(128)
    vA = vQ
    assert vKF == vQ + 32
    P = {nm: 10 + k for k, nm in enumerate(pos.split())}
    SRC = dict(a=("s2", 3), b=("s2", 4), c=("s2", 5), d=("s2", 6), e=("s2", 7), x=("s2", 0), y=("s2", 1), z=("s2", 2), p=("s30", 0), q=("s30", 1))
    R = {k: v for k, v in (x.split("=") for x in rot.split())}
    def gaddr(i): return sum(((i >> k) & 1) << P[f"r{k+1}"] for k in range(3))
    def X(i): return ((8*(i & 1) + (i >> 1)) << 4) | gaddr(i)
    def parity(dst, key):
        for n_, ch in enumerate(R[key]):
            reg, bit = SRC[ch]
            if n_ == 0: A(f"s_bfe_u32 {dst}, {reg}, {hex(0x10000 | bit)}")
            else: A(f"s_bfe_u32 s39, {reg}, {hex(0x10000 | bit)}"); A(f"s_xor_b32 {dst}, {dst}, s39")
    A("s_lshr_b32 s34, s2, 5"); A("s_lshl3_add_u32 s34, s34, s31"); A("s_lshl2_add_u32 s34, s34, 3"); A("s_lshl_b32 s40, s34, 19")
    def field(reg, bit, n0, n1):
        if P[n1] == P[n0] + 1:
            A(f"s_bfe_u32 s35, {reg}, {hex(0x20000 | bit)}"); A(f"s_lshl_b32 s35, s35, {P[n0]}"); A("s_or_b32 s40, s40, s35")
        else:
            for k, nm in enumerate((n0, n1)):
                A(f"s_bitcmp1_b32 {reg}, {bit + k}"); A(f"s_cselect_b32 s35, {1 << P[nm]}, 0"); A("s_or_b32 s40, s40, s35")
    field("s2", 3, "s0", "s1"); field("s30", 0, "j0", "j1")
    for nm in ("t0", "t1"):
        if nm in R: parity("s35", nm); A(f"s_lshl_b32 s35, s35, {P[nm]}"); A("s_or_b32 s40, s40, s35")
    tlx = [((tl & 1) << P["t0"]) | ((tl >> 1) << P["t1"]) for tl in range(4)]
    A("s_sub_u32 s33, s30, 4")
    A("s_lshl_b32 s37, s33, 15")
    A("s_mov_b32 s44, s37"); A("s_mov_b32 s38, 0"); A("s_mov_b32 s60, 0")
    for k in range(3):
        if f"r{k+1}" in R:
            parity("s35", f"r{k+1}")
            A(f"s_mul_i32 s36, s35, {X(1 << k)}"); A("s_or_b32 s38, s38, s36")
            A(f"s_lshl_b32 s36, s35, {10 + k}"); A("s_or_b32 s44, s44, s36")
            if k: A(f"s_lshl{k-1}_add_u32 s60, s35, s60" if k > 1 else "s_add_u32 s60, s35, s60")
    A(f"v_and_b32 {vr(vT)}, 32, v0"); A(f"v_lshlrev_b32 {vr(vT)}, 1, {vr(vT)}")
    A(f"v_xor_b32 {vr(vT)}, {vr(vT)}, v3")
    A(f"v_xor_b32 {vr(vK)}, s38, {vr(vT)}")
    if prio == 2: A("s_setprio 3")
    A("s_brev_b32 s54, 16"); A("s_mov_b32 s55, 0x20000")
    A("s_mov_b32 m0, s44")
    A("s_waitcnt lgkmcnt(0)")
    A("s_mov_b64 s[52:53], s[6:7]")
    stamp(8)
    issued = [0]
    def throttle():
        if WE and WE0 <= issued[0] < WE0 + WEN:
            A(f"s_cbranch_vccz L_th{issued[0]}"); A(f"s_waitcnt vmcnt({abs(WE)-1})"); A(f"L_th{issued[0]}:")
        if issued[0] >= W: A(f"s_waitcnt vmcnt({W-1})")
        issued[0] += 1
    def kload(tl, i):
        if tl or i: A(f"s_xor_b32 m0, s44, {(tl << 13) | (i << 10)}")
        if tl == 0 and i: A(f"v_xor_b32 {vr(vK+i)}, {X(i)}, {vr(vK)}")
        throttle()
        A(f"buffer_load_dwordx4 {vr(vK+i)}, s[52:55], s{40+tl} offen {pol} lds")
    for i in range(8):
        if b0 and i == b0n: A("s_barrier")
        kload(0, i)
    A("s_branch L_S2")

    A("L_T:")
    A.c("================ tail waves")
    if ks == 2: A("s_load_dwordx8 s[12:19], s[0:1], 32")
    if ks and not stamps:
        A("s_load_dwordx8 s[20:27], s[0:1], 64")
        A("s_load_dwordx2 s[28:29], s[0:1], 96")
    V = Alloc(4, 256)
    vC = V(56); vW = V(32); vRaw = V(32); vX = V(56); tT = V(24)
    vXr = V(4); vDl = V(4); vQs = V(8); vG = V(4); vK1 = V(5); vHa = V(); vKs = V(2); vHf = V(2)
    vYa = V(); vLa = V(); vOa = V(); vPPa = V(); vBst = V(); vOst = V(); vLst = V(); vLse = V()
    vBa = V(); vHw = V(); vHsw = V(); vOut = V(); vB2 = V(); vQa = V(); vOPr = V(); vPPr = V(); vWa = V(2); vQw = V(); vWr = V()
    assert vRaw == vW + 32
    raw = vRaw if cpos == "early" else vX + 32
    def prep_loads():
        t = tT + 14
        A.c("MLP weights, residual row piece, b2")
        if c1_:
            A("s_mul_i32 s33, s30, 896")
            A(f"v_mul_u32_u24 {vr(t)}, 12, v0"); A(f"v_add_u32 {vr(t)}, {508 - 384}, {vr(t)}")
            A("v_cmp_lt_u32 vcc, 31, v0"); A(f"v_cndmask_b32 {vr(t)}, v3, {vr(t)}, vcc"); A(f"v_add_u32 {vr(t)}, s33, {vr(t)}")
            for k, sp in enumerate((16, 18, 20)):
                A(f"global_load_dwordx4 {vr(raw+8*k,4)}, {vr(t)}, s[{sp}:{sp+1}] {spol}")
        else:
            A(f"v_and_b32 {vr(t)}, 31, v0")
            A("s_mul_i32 s33, s30, 896")
            A(f"v_lshlrev_b32 {vr(t+1)}, 4, {vr(t)}"); A(f"v_add_u32 {vr(t+1)}, s33, {vr(t+1)}")
            A(f"v_lshlrev_b32 {vr(t+2)}, 3, {vr(t)}"); A(f"v_add_u32 {vr(t+2)}, s33, {vr(t+2)}")
            A(f"v_lshlrev_b32 {vr(t+3)}, 2, {vr(t)}"); A(f"v_add_u32 {vr(t+3)}, s33, {vr(t+3)}")
            for k, sp in enumerate((16, 18, 20)):
                A(f"global_load_dwordx4 {vr(raw+8*k,4)}, {vr(t+1)}, s[{sp}:{sp+1}] {spol}")
                A(f"global_load_dwordx2 {vr(raw+8*k+4,2)}, {vr(t+2)}, s[{sp}:{sp+1}] offset:512 {spol}")
                A(f"global_load_dword {vr(raw+8*k+6)}, {vr(t+3)}, s[{sp}:{sp+1}] offset:768 {spol}")
        A(f"v_min_u32 {vr(t)}, 13, v1"); A(f"v_and_b32 {vr(t+1)}, 1, v2")
        A("s_mul_i32 s33, s31, 896"); A("s_mul_i32 s34, s30, 224"); A("s_add_u32 s33, s33, s34")
        A(f"v_lshlrev_b32 {vr(t)}, 4, {vr(t)}"); A(f"v_lshl_add_u32 {vr(t)}, {vr(t+1)}, 3, {vr(t)}"); A(f"v_add_u32 {vr(t)}, s33, {vr(t)}")
        A(f"global_load_dwordx2 {vr(vXr+2,2)}, {vr(t)}, s[4:5] {spol}")
        A(f"v_mov_b32 {vr(t+2)}, 0")
        A(f"global_load_ushort {vr(vB2)}, {vr(t+2)}, s[22:23] {spol}")
    A("v_and_b32 v1, 15, v0")
    A("v_lshrrev_b32 v2, 4, v0")
    A("s_lshl_b32 s63, s31, 2")
    A(f"v_mov_b32 {vr(vQw)}, 0")
    if b0: A("s_mov_b32 s46, 0")
    if "T" in skip:
        A("s_waitcnt lgkmcnt(0)"); A("s_barrier"); A("s_barrier"); A("s_barrier")
        if NL: A("s_barrier")
        A("s_branch L_b3")
    A("s_cmp_eq_u32 s30, 0"); A("s_cbranch_scc1 L_T0")
    A("s_cmp_eq_u32 s30, 3"); A("s_cbranch_scc1 L_T3")
    if spf:
        A("s_cmp_eq_u32 s30, 1"); A("s_cbranch_scc1 L_T1")
    if pref:
        if not spf: A("s_cmp_eq_u32 s30, 2"); A("s_cbranch_scc0 L_prepw")
        A.c("T2: pull the code into this XCD's L2")
        A("s_getpc_b64 s[34:35]")
        A("L_pc:")
        A(f"s_sub_u32 s34, s34, L_pc-{NAME}"); A("s_subb_u32 s35, s35, 0")
        A("s_mul_i32 s33, s32, 640")
        A(f"v_min_u32 {vr(tT)}, 9, v0"); A(f"v_lshlrev_b32 {vr(tT)}, 6, {vr(tT)}"); A(f"v_add_u32 {vr(tT)}, s33, {vr(tT)}")
        A(f"global_load_dword {vr(tT+2)}, {vr(tT)}, s[34:35]")
    A("s_branch L_prepw")
    if spf:
        A("L_T1:")
        A.c("T1: pull 14 rows of the wq column block that r=28..31 read (and of the last block) into L2")
        A("s_mul_i32 s33, s32, 14*8192"); A("s_lshl_b32 s34, s31, 10"); A("s_add_u32 s33, s33, s34"); A("s_addk_i32 s33, 384")
        A(f"v_min_u32 {vr(tT)}, 13, v1"); A(f"v_lshlrev_b32 {vr(tT)}, 13, {vr(tT)}")
        A(f"v_and_b32 {vr(tT+1)}, 1, v2"); A(f"v_lshl_add_u32 {vr(tT)}, {vr(tT+1)}, 6, {vr(tT)}")
        A(f"v_lshrrev_b32 {vr(tT+1)}, 1, v2"); A(f"v_lshl_add_u32 {vr(tT)}, {vr(tT+1)}, 9, {vr(tT)}")
        A(f"v_add_u32 {vr(tT)}, s33, {vr(tT)}")
        A("s_cmp_eq_u32 s31, 7"); A("s_cselect_b32 exec_hi, -1, 0")
        if spf == 2: A("s_and_b32 exec_hi, exec_hi, 0xffff"); A("s_mov_b32 exec_lo, 0xffff")
        A("s_waitcnt lgkmcnt(0)")
        A(f"global_load_dword {vr(tT+2)}, {vr(tT)}, s[10:11]")
        A("s_mov_b64 exec, -1")
        A("s_branch L_prepw")
    A("L_T3:")
    A.c(f"T3 of {NLD} workgroup(s) per group: clear a share of the group's q and lse slots, then count in")
    per = 4 // NLD
    A(f"s_sub_u32 s36, s32, {LD0}"); A(f"s_cmp_lt_u32 s36, {NLD}"); A("s_cbranch_scc0 L_prepw")
    for i in range(4): A(f"v_mov_b32 {vr(tT+4+i)}, -1")
    A("s_getreg_b32 s34, hwreg(HW_REG_XCC_ID, 0, 4)")
    if per > 1: A(f"s_mul_i32 s34, s34, {0x1111 & ((1 << (4*per)) - 1)}"); A(f"s_mul_i32 s36, s36, {per}")
    A("s_lshl_b32 s33, s36, 2"); A("s_lshl_b32 s34, s34, s33"); A(f"s_bitset1_b32 s34, {16 + per.bit_length() - 1}")
    A("s_lshl2_add_u32 s33, s31, s36"); A("s_lshl_b32 s35, s33, 13"); A(f"v_add_u32 {vr(tT)}, s35, v3")
    A("s_lshl_b32 s33, s33, 6"); A(f"s_add_u32 s33, s33, {W_L}")
    A(f"v_add_u32 {vr(tT+2)}, s33, v3")
    A("s_waitcnt lgkmcnt(0)")
    for k in range(2*per):
        for i in range(4): A(f"global_store_dwordx4 {vr(tT)}, {vr(tT+4,4)}, s[28:29] offset:{1024*i}")
        if k < 2*per - 1: A(f"v_add_u32 {vr(tT)}, 4096, {vr(tT)}")
    A(f"s_mov_b64 exec, {(1 << (4*per)) - 1}")
    A(f"global_store_dwordx4 {vr(tT+2)}, {vr(tT+4,4)}, s[28:29]")
    A("s_mov_b64 exec, -1")
    if b0:
        A("s_mov_b32 s46, s34")
    else:
        A("s_waitcnt vmcnt(0)")
        A("s_atomic_add s34, s[26:27], s63")
        stamp(1)
    A("s_branch L_prepw")
    A("L_T0:")
    A.c("T0: x into LDS, clear this workgroup's share of the hand-off slots (acknowledged before q is published)")
    A(f"v_lshrrev_b32 {vr(vQw)}, 3, v0"); A(f"v_lshlrev_b32 {vr(vQw)}, 13, {vr(vQw)}"); A(f"v_and_b32 {vr(tT)}, 0x70, v3"); A(f"v_or_b32 {vr(vQw)}, {vr(vQw)}, {vr(tT)}")
    A(f"s_xor_b32 s34, s32, {qx}"); A("s_lshr_b32 s35, s34, 2"); A("s_lshl3_add_u32 s50, s31, s35"); A("s_lshl_b32 s50, s50, 7")
    A("s_and_b32 s48, s34, 3"); A("s_mul_i32 s34, s48, 112*8192"); A("s_add_u32 s50, s50, s34")
    qstep = 0x10000
    if "8" in hack:
        A(f"v_lshlrev_b32 {vr(vQw)}, 13, v2"); A(f"v_lshl_add_u32 {vr(vQw)}, v1, 4, {vr(vQw)}")
        A("s_lshr_b32 s35, s32, 3"); A("s_lshl2_add_u32 s50, s31, s35"); A("s_lshl_b32 s50, s50, 8")
        A("s_and_b32 s34, s32, 7"); A("s_mul_i32 s34, s34, 56*8192"); A("s_add_u32 s50, s50, s34"); qstep = 0x8000
    if "C" in hack:
        A(f"v_mov_b32 {vr(vQw)}, v3"); A("s_mul_i32 s50, s2, 14336"); qstep = 1024
    A("s_movk_i32 s58, 7168"); A("s_mov_b32 s59, 0x20000"); A("s_movk_i32 s35, 4096")
    A(f"s_mov_b32 m0, {L_X}")
    A("s_lshl_b32 s33, s31, 15"); A("s_lshl_b32 s34, s32, 10"); A("s_add_u32 s33, s33, s34"); A(f"s_add_u32 s33, s33, {W_O}")
    A(f"v_add_u32 {vr(tT)}, s33, v3")
    A("s_mul_i32 s33, s31, 14336"); A("s_min_u32 s34, s32, 27"); A("s_lshl_b32 s34, s34, 9"); A("s_add_u32 s33, s33, s34"); A(f"s_add_u32 s33, s33, {W_B}")
    A(f"v_add_u32 {vr(tT+1)}, s33, v3")
    for i in range(4): A(f"v_mov_b32 {vr(vW+i)}, -1")
    A("s_waitcnt lgkmcnt(0)")
    A("s_mov_b64 s[56:57], s[4:5]")
    for t in range(4 if "x" not in hack else 0): A(f"buffer_load_dwordx4 v3, s[56:59], 0 offen offset:{1024*t} {spol} lds")
    A(f"s_mov_b32 m0, {L_X + 4096}")
    for t in range(3 if "x" not in hack else 0): A(f"buffer_load_dwordx4 v3, s[56:59], s35 offen offset:{1024*t} {spol} lds")
    A(f"global_store_dwordx4 {vr(tT)}, {vr(vW,4)}, s[28:29]")
    A.c("r = 28..31 repeat the share of r = 27 with one lane")
    A("s_cmp_lt_u32 s32, 28"); A("s_cselect_b32 exec_lo, -1, 1"); A("s_mov_b32 exec_hi, 0")
    A(f"global_store_dwordx4 {vr(tT+1)}, {vr(vW,4)}, s[28:29] sc1")
    A("s_mov_b64 exec, -1")
    A("s_branch L_prepw")

    A("L_S2:")
    A("v_and_b32 v1, 15, v0")
    A("v_lshrrev_b32 v2, 4, v0")
    for tl in range(1, 4): A(f"s_xor_b32 s{40+tl}, s40, {tlx[tl]}")
    A("s_mov_b64 s[56:57], s[8:9]"); A("s_mov_b32 s58, s54"); A("s_mov_b32 s59, 0x20000")
    if "d" in R: parity("s61", "d"); A("s_lshl_b32 s61, s61, 8")
    else: A("s_mov_b32 s61, 0")
    A(f"v_and_b32 {vr(vT)}, 1, v2"); A(f"v_lshlrev_b32 {vr(vT)}, 9, {vr(vT)}"); A(f"v_lshl_add_u32 {vr(vT)}, v1, 4, {vr(vT)}")
    A(f"v_lshrrev_b32 {vr(vT+1)}, 1, v2"); A(f"v_lshl_add_u32 {vr(vT)}, {vr(vT+1)}, {P['r1']}, {vr(vT)}")
    A(f"s_and_b32 s35, s38, {gaddr(6)}"); A("s_or_b32 s35, s35, s61")
    A(f"v_or_b32 {vr(vVo)}, s35, {vr(vT)}")
    for e in range(1, 8): A(f"v_xor_b32 {vr(vVo+e)}, {gaddr(e & 6) | ((e & 1) << 8)}, {vr(vVo)}")
    A(f"v_xor_b32 {vr(vT+3)}, s60, v1")
    A(f"v_and_b32 {vr(vT)}, 3, {vr(vT+3)}"); A(f"v_lshrrev_b32 {vr(vT+1)}, 2, v1")
    A(f"v_lshl_add_u32 {vr(vT+2)}, {vr(vT)}, 2, {vr(vT+1)}")
    A(f"v_xor_b32 {vr(vT+3)}, {vr(vT+3)}, v2")
    A(f"v_lshlrev_b32 {vr(vT+2)}, 9, {vr(vT+2)}"); A(f"v_add_u32 {vr(vT+2)}, s37, {vr(vT+2)}")
    A(f"v_lshl_add_u32 {vr(vKA)}, {vr(vT+3)}, 4, {vr(vT+2)}")
    for t in range(1, 4): A(f"v_xor_b32 {vr(vKA+t)}, {64*t}, {vr(vKA)}")
    A(f"v_lshrrev_b32 {vr(vT)}, 3, v1")
    A(f"v_lshlrev_b32 {vr(vQA)}, 9, {vr(vT)}"); A(f"v_lshl_add_u32 {vr(vQA)}, v2, 4, {vr(vQA)}")
    A(f"v_add_u32 {vr(vQA)}, {L_Q}, {vr(vQA)}")
    A(f"v_lshlrev_b32 {vr(vSTr)}, 5, {vr(vT)}"); A(f"v_add_u32 {vr(vSTr)}, {L_STAT}, {vr(vSTr)}")
    A("s_lshl_b32 s35, s33, 2"); A(f"v_add_u32 {vr(vSTw)}, s35, {vr(vSTr)}")
    def delta(dst, val, t0):
        A(f"v_and_b32 {vr(t0)}, 16, v3")
        A(f"v_mov_b32 {vr(t0+1)}, {val}"); A(f"v_lshlrev_b32 {vr(t0+1)}, {vr(t0)}, {vr(t0+1)}")
        A(f"v_bfe_u32 {vr(t0)}, v1, 1, 2")
        for i in range(4):
            A(f"v_cmp_eq_u32 vcc, {i}, {vr(t0)}")
            A(f"v_cndmask_b32 {vr(dst+i)}, 0, {vr(t0+1)}, vcc")
    delta(vM, "0xffff", vT)
    A(f"v_and_b32 {vr(vT)}, 1, v2"); A(f"v_lshlrev_b32 {vr(vT)}, 4, {vr(vT)}")
    A(f"v_lshrrev_b32 {vr(vT+1)}, 1, v2"); A(f"v_lshl_add_u32 {vr(vT)}, {vr(vT+1)}, 10, {vr(vT)}")
    A(f"v_lshl_add_u32 {vr(vT)}, v1, 5, {vr(vT)}")
    A("s_lshl_b32 s35, s33, 11"); A(f"s_add_u32 s35, s35, {L_OP}")
    for dh in range(2):
        A(f"s_xor_b32 s38, s61, {dh << 8}"); A("s_lshl1_add_u32 s38, s38, s35")
        A(f"v_add_u32 {vr(vOPa+dh)}, s38, {vr(vT)}")
    if WE:
        A("s_getreg_b32 s35, hwreg(HW_REG_XCC_ID, 0, 3)"); A(f"s_bitcmp1_b32 {WEM}, s35"); A("s_cselect_b64 vcc, -1, 0")
    nv = [0]
    vord = list(range(28)) + [28, 30, 29, 31]
    def more(k):
        for _ in range(k):
            if nv[0] < 32:
                idx = vord[nv[0]]; tl, e = idx >> 3, idx & 7
                throttle()
                A(f"buffer_load_dwordx4 {vr(vVv+4*idx,4)}, {vr(vVo+e)}, s[56:59], s{40+tl} offen {pol if vpol is None else vpol}")
                nv[0] += 1
    seq = [("k", tl, i) for tl in range(1, 4) for i in range(8)] + [("v",)] * 32
    pos = 0
    def adv(n):
        nonlocal pos
        for _ in range(n):
            it = seq[pos]; pos += 1
            if it[0] == "k": kload(it[1], it[2])
            else: more(1)
    adv(24 + QPOS)
    stamp(6)
    A("s_barrier")
    stamp(7)
    adv(W + QD)
    assert nv[0] >= W
    stamp(1)
    if prio == 3: A("s_setprio 2")
    A("s_barrier")
    stamp(2)
    for t in range(8):
        A(f"ds_read_b128 {vr(vQ+4*t,4)}, {vr(vQA)} offset:{64*t}")
    for tl in range(4):
        for t in range(8):
            A(f"ds_read_b128 {vr(vKF+4*t,4)}, {vr(vKA+(t&3))} offset:{tl*8192 + (t>>2)*256}")
        for t in range(8):
            A(f"s_waitcnt lgkmcnt({7-t})")
            c = "0" if t == 0 else vr(vS+4*tl, 4)
            A(f"v_mfma_f32_16x16x32_bf16 {vr(vS+4*tl,4)}, {vr(vKF+4*t,4)}, {vr(vQ+4*t,4)}, {c}")
        more(1)
    SC = math.log2(math.e) / 16.0
    A(f"s_mov_b32 s35, {f32(SC)}")
    mx = vT; cp = vT + 1; ls = vT + 2
    A(f"v_max3_f32 {vr(mx)}, {vr(vS)}, {vr(vS+1)}, {vr(vS+2)}")
    for i in range(3, 15, 2):
        A(f"v_max3_f32 {vr(mx)}, {vr(mx)}, {vr(vS+i)}, {vr(vS+i+1)}")
    A(f"v_max_f32 {vr(mx)}, {vr(mx)}, {vr(vS+15)}")
    def xg(x, op):
        for sw in ("v_permlane32_swap_b32", "v_permlane16_swap_b32"):
            A(f"v_mov_b32 {vr(cp)}, {vr(x)}")
            A(f"{sw} {vr(x)}, {vr(cp)}")
            A(f"{op} {vr(x)}, {vr(x)}, {vr(cp)}")
    xg(mx, "v_max_f32")
    A(f"v_mul_f32 {vr(mx)}, s35, {vr(mx)}")
    for i in range(16):
        A(f"v_fma_f32 {vr(vS+i)}, {vr(vS+i)}, s35, -{vr(mx)}")
    for i in range(16):
        A(f"v_exp_f32 {vr(vS+i)}, {vr(vS+i)}")
    A(f"v_add_f32 {vr(ls)}, {vr(vS)}, {vr(vS+1)}")
    for i in range(2, 16):
        A(f"v_add_f32 {vr(ls)}, {vr(ls)}, {vr(vS+i)}")
    xg(ls, "v_add_f32")
    A(f"ds_write2_b32 {vr(vSTw)}, {vr(mx)}, {vr(ls)} offset0:0 offset1:4")
    more(1)
    A("s_waitcnt lgkmcnt(0)")
    A("s_barrier")
    stamp(3)
    def stats(m4, l4, M, Lr):
        A(f"v_max3_f32 {vr(M)}, {vr(m4)}, {vr(m4+1)}, {vr(m4+2)}"); A(f"v_max_f32 {vr(M)}, {vr(M)}, {vr(m4+3)}")
        for i in range(4): A(f"v_sub_f32 {vr(m4+i)}, {vr(m4+i)}, {vr(M)}")
        for i in range(4): A(f"v_exp_f32 {vr(m4+i)}, {vr(m4+i)}")
        A(f"v_mul_f32 {vr(Lr)}, {vr(m4)}, {vr(l4)}")
        for i in range(1, 4): A(f"v_fmac_f32 {vr(Lr)}, {vr(m4+i)}, {vr(l4+i)}")
    A(f"ds_read_b128 {vr(vAcc,4)}, {vr(vSTr)}")
    A(f"ds_read_b128 {vr(vAcc+4,4)}, {vr(vSTr)} offset:16")
    more(1)
    A("s_waitcnt lgkmcnt(0)")
    stats(vAcc, vAcc + 4, vT + 3, vT + 4)
    A(f"v_sub_f32 {vr(mx)}, {vr(mx)}, {vr(vT+3)}")
    A(f"v_exp_f32 {vr(mx)}, {vr(mx)}")
    A(f"v_rcp_f32 {vr(vT+4)}, {vr(vT+4)}")
    A(f"v_mul_f32 {vr(mx)}, {vr(mx)}, {vr(vT+4)}")
    for i in range(16):
        A(f"v_mul_f32 {vr(vS+i)}, {vr(vS+i)}, {vr(mx)}")
        A(f"v_cvt_pk_bf16_f32 {vr(vS+i)}, {vr(vS+i)}, {vr(vS+i)}")
        for k in range(4):
            A(f"v_and_b32 {vr(vA+4*i+k)}, {vr(vS+i)}, {vr(vM+k)}")
        if i % 8 == 7: more(1)
    stamp(4)
    done = 0
    def pv(k):
        idx = vord[k]
        i, dh = idx >> 1, idx & 1
        c = "0" if i == 0 else vr(vAcc+4*dh, 4)
        A(f"v_mfma_f32_16x16x32_bf16 {vr(vAcc+4*dh,4)}, {vr(vA+4*i,4)}, {vr(vVv+4*idx,4)}, {c}")
    while nv[0] < 32:
        more(1)
        if NL and nv[0] == 32 - EP: A("s_barrier")
        lim = min(nv[0] - W, done + 4)
        while done < lim: pv(done); done += 1
    while done < 32:
        if 31 - done < W: A(f"s_waitcnt vmcnt({31-done})")
        pv(done); done += 1
        if done == 31: A(f"ds_write_b128 {vr(vOPa)}, {vr(vAcc,4)}")
    A(f"ds_write_b128 {vr(vOPa+1)}, {vr(vAcc+4,4)}")
    stamp(5)
    A("s_waitcnt lgkmcnt(0)")
    A("s_barrier")
    if wbs and "E" not in skip:
        A.c("one wave per group stays to write the spent hand-off lines back ahead of the end of the kernel")
        A("s_cmp_eq_u32 s30, 4"); A("s_cselect_b32 s33, s32, -1"); A(f"s_cmp_eq_u32 s33, {wbr}"); A("s_cbranch_scc0 L_send")
        nb = 4 if "b" in bx else 3
        for k in range(nb):
            if k == wbs - 1: A("buffer_wbl2 sc1")
            A("s_barrier")
        A("L_send:")
    dump_stamps(9)
    A("s_endpgm")

    vT = tT
    A("L_prepw:")
    A("s_waitcnt lgkmcnt(0)")
    if b0 == 1: A("s_barrier")
    if cpos == "early": prep_loads()
    if b0 == 2: A("s_barrier")
    A("s_mov_b64 s[52:53], s[10:11]"); A("s_mov_b32 s54, 0x380000"); A("s_mov_b32 s55, 0x20000")
    nq = [0]
    def wq_loads(n):
        if not n or "q" in skip: return
        A("s_cmp_eq_u32 s30, 0"); A(f"s_cbranch_scc0 L_nq{nq[0]}")
        lab = f"L_nq{nq[0]}:"
        for _ in range(n):
            A(f"s_mov_b32 m0, {L_WQ + 1024*nq[0]}")
            if qpace and nq[0] >= qpace: A(f"s_waitcnt vmcnt({qpace-1})")
            A(f"buffer_load_dwordx4 {vr(vQw)}, s[52:55], s50 offen {qpol} lds")
            A(f"s_add_u32 s50, s50, {qstep}")
            nq[0] += 1
        A(lab)
    wq_loads(wq1)
    if b0 == 3: A("s_barrier")
    wq_loads(14 - wq1)
    if b0:
        A("s_cmp_eq_u32 s46, 0"); A("s_cbranch_scc1 L_nolead")
        A("s_waitcnt vmcnt(5)")
        A("s_atomic_add s46, s[26:27], s63")
        A("L_nolead:")
    def wo_addr():
        A("s_bfe_u32 s34, s32, 0x10001"); A("s_lshl1_add_u32 s33, s31, s34"); A("s_lshl2_add_u32 s33, s33, s30"); A("s_lshl_b32 s33, s33, 6")
        A("s_mul_i32 s33, s33, 896"); A("s_lshr_b32 s34, s32, 2"); A("s_min_u32 s34, s34, 6"); A("s_lshl_b32 s34, s34, 7"); A("s_add_u32 s51, s33, s34")
        if "O" in hack: A("s_mul_i32 s33, s31, 14"); A("s_lshr_b32 s34, s32, 1"); A("s_add_u32 s33, s33, s34"); A("s_lshl2_add_u32 s33, s33, s30"); A("s_lshl_b32 s51, s33, 13")
        A(f"v_lshrrev_b32 {vr(vWa)}, 3, v0"); A(f"v_mul_u32_u24 {vr(vWa)}, 896, {vr(vWa)}")
        A(f"v_and_b32 {vr(vT+4)}, 16, v0"); A(f"v_lshlrev_b32 {vr(vT+4)}, 1, {vr(vT+4)}"); A(f"v_and_b32 {vr(vT+5)}, 0x70, v3"); A(f"v_xor_b32 {vr(vT+4)}, {vr(vT+4)}, {vr(vT+5)}")
        A(f"v_xor_b32 {vr(vT+5)}, 64, {vr(vT+4)}"); A(f"v_add_u32 {vr(vWa+1)}, {vr(vWa)}, {vr(vT+5)}"); A(f"v_add_u32 {vr(vWa)}, {vr(vWa)}, {vr(vT+4)}")
        A(f"v_lshrrev_b32 {vr(vT+4)}, 2, v1"); A(f"v_lshl_add_u32 {vr(vT+4)}, v2, 3, {vr(vT+4)}"); A(f"v_lshlrev_b32 {vr(vT+4)}, 7, {vr(vT+4)}")
        A(f"v_bfe_u32 {vr(vT+5)}, v0, 3, 2"); A(f"v_lshl_add_u32 {vr(vT+4)}, {vr(vT+5)}, 5, {vr(vT+4)}")
        A(f"v_and_b32 {vr(vT+5)}, 3, v0"); A(f"v_lshl_add_u32 {vr(vT+4)}, {vr(vT+5)}, 3, {vr(vT+4)}")
        A("s_lshl_b32 s61, s30, 13"); A(f"v_add_u32 {vr(vWr)}, s61, {vr(vT+4)}")
    def wo_loads(i0, i1, tag):
        if i0 >= i1: return
        A("s_cmp_ge_u32 s32, 28" if "o" not in skip else "s_cmp_ge_u32 s32, 0"); A(f"s_cbranch_scc1 L_nowo{tag}")
        for i in range(i0, i1):
            A(f"s_add_u32 m0, s61, {1024*i}"); A(f"s_add_u32 s33, s51, {8*896*i if 'O' not in hack else 1024*i}")
            A(f"buffer_load_dwordx4 {vr(vWa+(i&1)) if 'O' not in hack else 'v3'}, s[56:59], s33 offen {opol} lds")
        A(f"L_nowo{tag}:")
    def wo_frags(tts=(0, 1)):
        for nt in range(4):
            for tt in tts:
                for hh in range(2):
                    A(f"ds_read_b64_tr_b16 {vr(vW+16*tt+4*nt+2*hh,2)}, {vr(vWr if nt == 0 else vRaw+nt)} offset:{4096*tt + 512*hh}")
    A.c("tail constants")
    A("s_mov_b32 s49, 0")
    wo_addr()
    if tl_:
        A.c("one scalar read per page that is first used later (V, wo, out): the translation is ready by then; values unused")
        A(f"s_cmp_eq_u32 s30, {tlw}"); A("s_cbranch_scc0 L_notl")
        if tl_ & 1:
            A("s_lshr_b32 s33, s2, 5"); A("s_lshl3_add_u32 s33, s33, s31"); A("s_lshl2_add_u32 s33, s33, 3"); A("s_lshl_b32 s33, s33, 12"); A("s_add_u32 s33, s33, s32"); A("s_lshl_b32 s33, s33, 7")
            A("s_load_dword s46, s[8:9], s33")
        if tl_ & 2:
            A("s_load_dword s47, s[12:13], s51")
        if tl_ & 4:
            A("s_mul_i32 s34, s31, 896")
            A("s_load_dword s48, s[24:25], s34")
        A("L_notl:")
    A(f"s_xor_b32 s34, s32, {qx}"); A("s_and_b32 s35, s34, 3"); A("s_lshr_b32 s34, s34, 2"); A("s_lshl3_add_u32 s34, s35, s34"); A("s_lshl_b32 s34, s34, 7")
    A("s_lshl_b32 s39, s31, 15"); A("s_add_u32 s34, s34, s39")
    A(f"v_and_b32 {vr(vQa)}, 7, v1"); A(f"v_lshlrev_b32 {vr(vQa)}, 12, {vr(vQa)}"); A(f"v_lshl_add_u32 {vr(vQa)}, v2, 4, {vr(vQa)}"); A(f"v_add_u32 {vr(vQa)}, s34, {vr(vQa)}")
    def publish_q():
        A("s_getreg_b32 s47, hwreg(HW_REG_XCC_ID, 0, 4)")
        A("s_mul_i32 s47, s47, 0x1111"); A("s_bitset1_b32 s47, 18")
        if force_slow: A("s_cmp_eq_u32 s32, 5"); A("s_cselect_b32 s47, 0, s47")
        A("s_waitcnt lgkmcnt(0)")
        A("s_cmp_eq_u32 s46, s47")
        A("s_cbranch_scc0 L_f1slow")
        A("L_same:")
        A.c("the slots were cleared in this XCD's L2: publish there")
        A("s_mov_b32 exec_lo, 0x00ff00ff"); A("s_mov_b32 exec_hi, 0x00ff00ff")
        for k in range(2): A(f"global_store_dwordx4 {vr(vQa)}, {vr(vQs+4*k,4)}, s[28:29] offset:{64*k}")
        A("s_mov_b64 exec, -1")
        stamp(3)
        A("L_nopub:")
        def ool():
            A("L_f1slow:")
            A(f"v_mov_b32 {vr(vT+20)}, s63")
            A("s_mov_b32 s35, 0")
            A("L_f1l:")
            A("s_cmp_ge_u32 s46, 0x40000")
            A("s_cbranch_scc1 L_f1d")
            A(f"global_load_dword {vr(vT+21)}, {vr(vT+20)}, s[26:27] sc1")
            A("s_add_u32 s35, s35, 1")
            A("s_waitcnt vmcnt(0)")
            A(f"v_readfirstlane_b32 s46, {vr(vT+21)}")
            A(f"s_cmp_lt_u32 s35, {SPIN}")
            A("s_cbranch_scc1 L_f1l")
            A("L_f1d:")
            A("s_cmp_eq_u32 s46, s47")
            A("s_cbranch_scc1 L_same")
            A.c("cleared on another XCD: tell the group, publish nothing here")
            A("s_add_u32 s46, s63, 32"); A("s_mov_b32 s47, 1")
            A("s_atomic_add s47, s[26:27], s46 glc")
            A("s_waitcnt lgkmcnt(0)")
            A("s_mov_b32 s49, 1")
            A("s_branch L_nopub")
        OOL.append(ool)
    A("s_mul_i32 s33, s31, 14336"); A("s_mul_i32 s34, s30, 224"); A("s_add_u32 s33, s33, s34"); A(f"s_add_u32 s33, s33, {W_B}")
    A(f"v_min_u32 {vr(vT+4)}, 13, v1")
    A(f"v_mul_u32_u24 {vr(vBa)}, 3584, v2"); A(f"v_lshl_add_u32 {vr(vBa)}, {vr(vT+4)}, 4, {vr(vBa)}"); A(f"v_add_u32 {vr(vBa)}, s33, {vr(vBa)}")
    A("s_mul_i32 s34, s30, 448"); A(f"s_add_u32 s34, s34, {L_H}")
    A(f"v_and_b32 {vr(vT+5)}, 1, v2"); A(f"v_lshlrev_b32 {vr(vHw)}, 5, v1"); A(f"v_lshl_add_u32 {vr(vHw)}, {vr(vT+5)}, 4, {vr(vHw)}"); A(f"v_add_u32 {vr(vHw)}, s34, {vr(vHw)}")
    A(f"v_mov_b32 {vr(vT+5)}, {L_H + 1792}"); A("v_cmp_gt_u32 s[42:43], 14, v1")
    A(f"v_cndmask_b32 {vr(vHw)}, {vr(vT+5)}, {vr(vHw)}, s[42:43]")
    A(f"v_lshrrev_b32 {vr(vT+6)}, 5, v0")
    A("s_lshl_b32 s34, s30, 3"); A(f"s_add_u32 s34, s34, {L_HS}")
    A(f"v_lshlrev_b32 {vr(vHsw)}, 2, {vr(vT+6)}"); A(f"v_add_u32 {vr(vHsw)}, s34, {vr(vHsw)}")
    A(f"v_cvt_f32_u32 {vr(vKs)}, {vr(vT+6)}"); A(f"v_sub_f32 {vr(vKs+1)}, 1.0, {vr(vKs)}")
    for i in range(2): A(f"v_mul_f32 {vr(vKs+i)}, {f32(1.0/448)}, {vr(vKs+i)}")
    delta(vDl, "0x3f80", vT + 8)
    A("s_mul_i32 s33, s32, 56"); A(f"s_add_u32 s33, s33, {L_H}")
    ii = vT + 8; hf = vT + 9; col = vT + 10
    A(f"v_bfe_u32 {vr(ii)}, v0, 3, 1"); A(f"v_and_b32 {vr(hf)}, 3, v0"); A(f"v_lshl_add_u32 {vr(ii)}, {vr(ii)}, 2, {vr(hf)}")
    A(f"v_bfe_u32 {vr(hf)}, v0, 2, 1")
    A(f"v_min_u32 {vr(col)}, 6, {vr(ii)}"); A(f"v_mad_u32_u24 {vr(col)}, {vr(hf)}, 7, {vr(col)}")
    A(f"v_lshlrev_b32 {vr(vHa)}, 2, {vr(col)}"); A(f"v_add_u32 {vr(vHa)}, s33, {vr(vHa)}")
    A(f"v_cmp_eq_u32 vcc, 7, {vr(ii)}"); A(f"v_cndmask_b32 {vr(vT+11)}, v2, 3, vcc")
    A(f"v_mov_b32 {vr(vT+12)}, 0x3f803f80")
    A(f"v_cmp_eq_u32 vcc, 2, {vr(vT+11)}"); A(f"v_cndmask_b32 {vr(vK1)}, 0, 1.0, vcc")
    A(f"v_cmp_eq_u32 vcc, 0, {vr(vT+11)}"); A(f"v_cndmask_b32 {vr(vK1+1)}, 0, 1.0, vcc")
    A(f"v_cndmask_b32 {vr(vK1+3)}, 0, {vr(vT+12)}, vcc")
    A(f"v_cmp_eq_u32 vcc, 1, {vr(vT+11)}"); A(f"v_cndmask_b32 {vr(vK1+2)}, 0, 1.0, vcc")
    A(f"v_cndmask_b32 {vr(vK1+4)}, 0, {vr(vT+12)}, vcc")
    A(f"v_min_u32 {vr(col)}, 6, v0"); A(f"v_lshlrev_b32 {vr(vHf)}, 3, {vr(col)}"); A(f"v_add_u32 {vr(vHf)}, s33, {vr(vHf)}")
    A("s_mul_i32 s33, s31, 896"); A("s_mul_i32 s34, s32, 28"); A("s_add_u32 s33, s33, s34")
    A(f"v_lshlrev_b32 {vr(vOut)}, 2, {vr(col)}"); A(f"v_add_u32 {vr(vOut)}, s33, {vr(vOut)}")
    A(f"v_bfe_u32 {vr(ii)}, v0, 2, 1"); A(f"v_bfe_u32 {vr(hf)}, v0, 3, 1"); A(f"v_lshl_add_u32 {vr(ii)}, {vr(ii)}, 1, {vr(hf)}")
    A(f"v_bfe_u32 {vr(hf)}, v0, 4, 1"); A(f"v_lshl_add_u32 {vr(ii)}, {vr(hf)}, 2, {vr(ii)}")
    A(f"v_mad_u32_u24 {vr(hf)}, {vr(vT+6)}, 7, {vr(ii)}")
    A(f"v_cmp_eq_u32 vcc, 7, {vr(ii)}"); A(f"v_cndmask_b32 {vr(hf)}, {vr(hf)}, 15, vcc")
    A("s_lshl_b32 s34, s30, 6"); A(f"s_add_u32 s34, s34, {L_Y}")
    A(f"v_lshlrev_b32 {vr(vYa)}, 2, {vr(hf)}"); A(f"v_add_u32 {vr(vYa)}, s34, {vr(vYa)}")
    A("s_lshl_b32 s33, s31, 8"); A(f"s_add_u32 s33, s33, {W_L}"); A("s_and_b32 s34, s32, 3"); A("s_lshl_b32 s34, s34, 6"); A("s_add_u32 s34, s34, s33")
    A(f"v_lshlrev_b32 {vr(vLa)}, 4, v2"); A(f"v_add_u32 {vr(vLa)}, s34, {vr(vLa)}")
    A("s_lshl2_add_u32 s34, s32, s33")
    A(f"v_lshlrev_b32 {vr(vLst)}, 7, v0"); A(f"v_add_u32 {vr(vLst)}, s34, {vr(vLst)}")
    A(f"s_add_u32 s33, s39, {W_O}")
    A("s_and_b32 s35, s32, 1"); A("s_bfe_u32 s36, s32, 0x10001")
    A("s_lshl1_add_u32 s34, s35, s36"); A("s_lshl2_add_u32 s34, s34, s30"); A("s_lshl_b32 s34, s34, 11"); A("s_add_u32 s34, s34, s33")
    A(f"v_add_u32 {vr(vOa)}, s34, v3")
    A("s_lshl2_add_u32 s60, s35, s30")
    A("s_lshl3_add_u32 s34, s60, s31"); A("s_lshl1_add_u32 s34, s34, s36"); A("s_mul_i32 s34, s34, 896")
    A("s_lshr_b32 s36, s32, 2"); A("s_min_u32 s36, s36, 6"); A("s_lshl_b32 s36, s36, 7")
    A("s_add_u32 s34, s34, s36"); A(f"s_add_u32 s34, s34, {W_B}")
    A(f"v_lshlrev_b32 {vr(vBst)}, 3, v1"); A(f"v_add_u32 {vr(vBst)}, s34, {vr(vBst)}")
    A("s_lshr_b32 s34, s32, 4"); A("s_lshl2_add_u32 s34, s34, s30"); A("s_lshl_b32 s34, s34, 12"); A("s_add_u32 s34, s34, s33")
    A("s_and_b32 s36, s32, 15"); A("s_lshl4_add_u32 s34, s36, s34")
    A(f"v_lshrrev_b32 {vr(vOst)}, 2, v0"); A(f"v_lshlrev_b32 {vr(vOst)}, 8, {vr(vOst)}"); A(f"v_and_b32 {vr(vT+4)}, 3, v0")
    A(f"v_lshl_add_u32 {vr(vOst)}, {vr(vT+4)}, 2, {vr(vOst)}"); A(f"v_add_u32 {vr(vOst)}, s34, {vr(vOst)}")
    A("s_lshl_b32 s34, s30, 8"); A(f"s_add_u32 s34, s34, {L_PP}")
    A(f"v_lshlrev_b32 {vr(vPPr)}, 4, v1"); A(f"v_add_u32 {vr(vPPr)}, s34, {vr(vPPr)}")
    A("s_lshl_b32 s34, s30, 9"); A(f"s_add_u32 s34, s34, {L_OP}")
    A(f"v_lshlrev_b32 {vr(vOPr)}, 3, v0"); A(f"v_add_u32 {vr(vOPr)}, s34, {vr(vOPr)}")
    A("s_lshl_b32 s34, s30, 10"); A(f"s_add_u32 s34, s34, {L_PP}")
    A(f"v_lshlrev_b32 {vr(vPPa)}, 2, v1"); A(f"v_lshl_add_u32 {vr(vPPa)}, v2, 8, {vr(vPPa)}"); A(f"v_add_u32 {vr(vPPa)}, s34, {vr(vPPa)}")
    for i in range(4): A(f"v_mov_b32 {vr(vG+i)}, 0")
    A(f"s_mov_b32 s37, {f32(1.0/64)}")
    A("s_mov_b32 s38, 0xffff0000")
    def qproj():
        A("s_cmp_eq_u32 s30, 0"); A("s_cbranch_scc0 L_nopub")
        A.c("T0: q projection, 64 columns x a quarter of the rows, all 8 batches; LayerNorm applied after the product")
        A("s_mov_b32 s34, 0x3f803f80")
        for i in range(56): A(f"v_mov_b32 {vr(vX+i)}, s34")
        A(f"v_and_b32 {vr(tT+1)}, 7, v1"); A(f"v_mul_u32_u24 {vr(tT+1)}, 896, {vr(tT+1)}"); A(f"v_add_u32 {vr(tT+1)}, {L_X}, {vr(tT+1)}")
        A(f"v_lshl_add_u32 {vr(tT)}, v2, 4, {vr(tT+1)}")
        A("s_mul_i32 s33, s48, 224"); A(f"v_lshl_add_u32 {vr(tT+1)}, v2, 3, {vr(tT+1)}"); A(f"v_add_u32 {vr(tT+1)}, s33, {vr(tT+1)}")
        A(f"v_lshrrev_b32 {vr(tT+2)}, 2, v0"); A(f"v_lshlrev_b32 {vr(tT+2)}, 7, {vr(tT+2)}"); A(f"v_and_or_b32 {vr(tT+2)}, v3, 48, {vr(tT+2)}")
        A(f"v_add_u32 {vr(tT+2)}, {L_WQ}, {vr(tT+2)}")
        A(f"v_bfe_u32 {vr(tT+3)}, v1, 2, 1"); A(f"v_lshl_add_u32 {vr(tT+3)}, {vr(tT+3)}, 4, v1"); A(f"v_lshlrev_b32 {vr(tT+3)}, 2, {vr(tT+3)}")
        A(f"v_lshlrev_b32 {vr(tT+4)}, 2, v1"); A(f"v_add_u32 {vr(tT+4)}, 128, {vr(tT+4)}")
        A(f"v_and_b32 {vr(tT+5)}, 3, v1")
        sm = ('', 's[6:7]', 's[8:9]', 's[14:15]')
        for i in range(1, 4): A(f"v_cmp_eq_u32 {sm[i]}, {i}, {vr(tT+5)}")
        D1 = vX + 16; D2 = tT + 8; wf = vW
        A("s_mov_b32 exec_lo, 0x00ff00ff"); A("s_mov_b32 exec_hi, 0x00ff00ff")
        A("s_waitcnt vmcnt(14)")
        for t in range(14): A(f"ds_read_b128 {vr(vX+4*t,4)}, {vr(tT)} offset:{64*t}")
        A("s_mov_b64 exec, -1")
        for t in range(14):
            A(f"s_waitcnt lgkmcnt({13-t})")
            c = "0" if t == 0 else vr(D2, 4)
            A(f"v_mfma_f32_16x16x32_bf16 {vr(D2,4)}, {vr(vX+4*t,4)}, {vr(vX+4*t,4)}, {c}")
        for i in range(1, 4): A(f"v_cndmask_b32 {vr(D2)}, {vr(D2)}, {vr(D2+i)}, {sm[i]}")
        A(f"ds_bpermute_b32 {vr(tT+6)}, {vr(tT+3)}, {vr(D2)}")
        A(f"ds_bpermute_b32 {vr(tT+7)}, {vr(tT+4)}, {vr(D2)}")
        A("s_mov_b32 exec_lo, 0x00ff00ff"); A("s_mov_b32 exec_hi, 0x00ff00ff")
        for t in range(7): A(f"ds_read_b64 {vr(vX+2*t,2)}, {vr(tT+1)} offset:{32*t}")
        A("s_mov_b64 exec, -1")
        A(f"s_mov_b32 s33, {f32(1.0/448)}")
        A("s_waitcnt lgkmcnt(0)")
        A(f"v_mul_f32 {vr(tT+7)}, s33, {vr(tT+7)}")
        A(f"v_mul_f32 {vr(tT+6)}, s33, {vr(tT+6)}")
        A(f"v_fma_f32 {vr(tT+6)}, -{vr(tT+7)}, {vr(tT+7)}, {vr(tT+6)}")
        A(f"v_max_f32 {vr(tT+6)}, 0, {vr(tT+6)}")
        A(f"v_add_f32 {vr(tT+6)}, {f32(1e-5)}, {vr(tT+6)}")
        A(f"v_rsq_f32 {vr(tT+6)}, {vr(tT+6)}")
        A("s_waitcnt vmcnt(0)")
        A("s_load_dword s46, s[26:27], s63")
        stamp(1)
        for np_ in range(2):
            for t in range(7):
                for e in range(2):
                    A(f"ds_read_b64_tr_b16 {vr(wf+4*t+2*e,2)}, {vr(tT+2)} offset:{2048*t + 64*np_ + 8*e}")
            for t in range(7):
                A(f"s_waitcnt lgkmcnt({12-2*t})")
                for e in range(2):
                    D = D1 + 8*np_ + 4*e
                    c = "0" if t == 0 else vr(D, 4)
                    A(f"v_mfma_f32_16x16x16_bf16 {vr(D,4)}, {vr(wf+4*t+2*e,2)}, {vr(vX+2*t,2)}, {c}")
        for i0 in (0, 8):
            for i in range(8):
                A(f"v_mul_f32_dpp {vr(D2+i)}, {vr(D1+i0+i)}, {vr(tT+7)} row_newbcast:8 row_mask:0xf bank_mask:0xf")
            for i in range(8):
                A(f"v_sub_f32 {vr(D2+i)}, {vr(D1+i0+i)}, {vr(D2+i)}")
                A(f"v_mul_f32 {vr(D2+i)}, {vr(D2+i)}, {vr(tT+6)}")
            for i in range(4):
                A(f"v_cvt_pk_bf16_f32 {vr(vQs+i0//2+i)}, {vr(D2+2*i)}, {vr(D2+2*i+1)}")
                A(f"v_min_u32 {vr(vQs+i0//2+i)}, -2, {vr(vQs+i0//2+i)}")
        publish_q()
    def conv():
        if c1_:
            for k in range(3):
                for i in range(4): A(f"v_mov_b32 {vr(raw+8*k+4+((i+3)&3))}, {vr(raw+8*k+i)}")
                for i in range(4): A(f"v_permlane32_swap_b32 {vr(raw+8*k+i)}, {vr(raw+8*k+4+((i+3)&3))}")
        for i in (2, 3): A(f"v_cndmask_b32 {vr(vXr+i)}, 0, {vr(vXr+i)}, s[42:43]")
        A(f"v_lshlrev_b32 {vr(vXr)}, 16, {vr(vXr+2)}"); A(f"v_and_b32 {vr(vXr+1)}, s38, {vr(vXr+2)}")
        A(f"v_lshlrev_b32 {vr(vXr+2)}, 16, {vr(vXr+3)}"); A(f"v_and_b32 {vr(vXr+3)}, s38, {vr(vXr+3)}")
        A(f"v_lshlrev_b32 {vr(vB2)}, 16, {vr(vB2)}")
    w, b, u, bb, c0, c1, c2, c3, ca, cc, hi = (vT + 1 + i for i in range(11))
    def tiles(t0, t1):
        if t0 >= t1: return
        A.c("gelu argument as a cubic in hn, and n = (w1*hn + b1)*w2, as split-bf16 MFMA operands")
        A(f"s_mov_b32 s33, {f32(BETA)}"); A(f"s_mov_b32 s34, {f32(3*BETA)}"); A(f"v_mov_b32 {vr(vT)}, {f32(ALPHA)}")
        A("v_cmp_lt_u32 vcc, 31, v0")
        for tile in range(t0, t1):
            for k, d in enumerate((w, b, u)):
                src = raw + 8*k + (tile >> 1)
                if tile & 1: A(f"v_and_b32 {vr(d)}, s38, {vr(src)}")
                else: A(f"v_lshlrev_b32 {vr(d)}, 16, {vr(src)}")
            A(f"v_mul_f32 {vr(bb)}, {vr(b)}, {vr(b)}")
            A(f"v_fma_f32 {vr(c0)}, {vr(bb)}, s33, {vr(vT)}"); A(f"v_mul_f32 {vr(c0)}, {vr(c0)}, {vr(b)}")
            A(f"v_fma_f32 {vr(c1)}, {vr(bb)}, s34, {vr(vT)}"); A(f"v_mul_f32 {vr(c1)}, {vr(c1)}, {vr(w)}")
            A(f"v_mul_f32 {vr(bb)}, {vr(w)}, {vr(w)}")
            A(f"v_mul_f32 {vr(c2)}, s34, {vr(bb)}"); A(f"v_mul_f32 {vr(c2)}, {vr(c2)}, {vr(b)}")
            A(f"v_mul_f32 {vr(c3)}, s33, {vr(bb)}"); A(f"v_mul_f32 {vr(c3)}, {vr(c3)}, {vr(w)}")
            A(f"v_mul_f32 {vr(ca)}, {vr(w)}, {vr(u)}"); A(f"v_mul_f32 {vr(cc)}, {vr(b)}, {vr(u)}")
            for k, cx in enumerate((c0, c1, c2, c3)): A(f"v_add_f32 {vr(vG+k)}, |{vr(cx)}|, {vr(vG+k)}")
            A(f"v_fma_f32 {vr(vG)}, |{vr(cc)}|, s37, {vr(vG)}"); A(f"v_fma_f32 {vr(vG+1)}, |{vr(ca)}|, s37, {vr(vG+1)}")
            for k, (lo_, hi_) in enumerate(((c1, c2), (c0, c2), (ca, c3), (cc, c3))):
                A(f"v_cndmask_b32 {vr(lo_)}, {vr(lo_)}, {vr(hi_)}, vcc")
                A(f"v_cvt_pk_bf16_f32 {vr(hi)}, {vr(lo_)}, {vr(lo_)}")
                A(f"v_and_b32 {vr(hi)}, s38, {vr(hi)}")
                A(f"v_sub_f32 {vr(lo_)}, {vr(lo_)}, {vr(hi)}")
                A(f"v_cvt_pk_bf16_f32 {vr(vC+4*tile+k)}, {vr(hi)}, {vr(lo_)}")
    def guard():
        A.c("largest |hn| for which the fused gelu path can neither overflow nor lose precision")
        A("s_mov_b32 s3, -1.0"); A(f"s_mov_b32 s34, {f32(100.0)}")
        for H in (3.0, 4.5, 6.0, 8.0, 12.0, 22.0):
            A(f"s_mov_b32 s33, {f32(H)}")
            A(f"v_fma_f32 {vr(vT+1)}, {vr(vG+3)}, s33, {vr(vG+2)}"); A(f"v_fma_f32 {vr(vT+1)}, {vr(vT+1)}, s33, {vr(vG+1)}")
            A(f"v_fma_f32 {vr(vT+1)}, {vr(vT+1)}, s33, {vr(vG)}")
            A(f"v_cmp_nge_f32 vcc, s34, {vr(vT+1)}")
            A("s_cmp_eq_u64 vcc, 0"); A("s_cselect_b32 s3, s33, s3")
        if force_fb: A("s_mov_b32 s3, -1.0")
    if cpos == "early":
        A("s_cmp_eq_u32 s30, 0"); A("s_cbranch_scc1 L_pw"); A("s_waitcnt vmcnt(0)"); A("L_pw:")
        A("s_waitcnt vmcnt(14)")
        conv(); tiles(0, QT); qproj(); tiles(QT, 14); guard()
    else:
        qproj()
    A("s_lshr_b32 s33, s32, 2"); A("s_lshl_b32 s33, s33, 12"); A("s_add_u32 s33, s33, s39")
    A(f"v_add_u32 {vr(vT)}, s33, v3"); A(f"v_add_u32 {vr(vT+1)}, {L_Q}, v3")
    A(f"v_and_b32 {vr(vT+20)}, 7, v0"); A(f"v_lshlrev_b32 {vr(vT+20)}, 2, {vr(vT+20)}"); A(f"v_mov_b32 {vr(vT+19)}, {L_STAT + 64}")
    stamp(4)
    if cpos == "pre1": prep_loads()
    A("s_barrier")
    if cpos == "mid": prep_loads()
    A("s_mov_b32 s35, 0")
    A("s_cmp_eq_u32 s30, 0")
    A("s_cbranch_scc0 L_b1b")
    A.c("T0: gather the four q partials, add, hand to the stream waves")
    qa = vX
    def qload():
        for k in range(4): A(f"global_load_dwordx4 {vr(qa+4*k,4)}, {vr(vT)}, s[28:29] offset:{1024*k} sc1")
        A("s_waitcnt vmcnt(0)")
    A("s_cmp_eq_u32 s49, 0"); A("s_cbranch_scc0 L_glob")
    A("L_qpoll:")
    qload()
    A(f"v_max3_u32 {vr(vT+2)}, {vr(qa)}, {vr(qa+1)}, {vr(qa+2)}")
    for i in range(3, 15, 2): A(f"v_max3_u32 {vr(vT+2)}, {vr(vT+2)}, {vr(qa+i)}, {vr(qa+i+1)}")
    A(f"v_max_u32 {vr(vT+2)}, {vr(vT+2)}, {vr(qa+15)}")
    A(f"v_cmp_eq_u32 vcc, -1, {vr(vT+2)}")
    A("s_cbranch_vccnz L_qretry")
    def ool_q():
        A("L_qretry:")
        A("s_add_u32 s35, s35, 1")
        A(f"s_cmp_ge_u32 s35, {SPIN}")
        A("s_cbranch_scc1 L_qdone")
        A("s_bitcmp1_b32 s35, 0"); A("s_cbranch_scc1 L_qpoll")
        A(f"v_mov_b32 {vr(vT+12)}, s63")
        A(f"global_load_dword {vr(vT+13)}, {vr(vT+12)}, s[26:27] offset:32 sc1")
        A("s_waitcnt vmcnt(0)")
        A(f"v_readfirstlane_b32 s46, {vr(vT+13)}")
        A("s_cmp_eq_u32 s46, 0")
        A("s_cbranch_scc1 L_qpoll")
        A("L_glob:")
        A.c("group spread over several XCDs: write-through hand-off in the second copy, ordered by a counter")
        A("s_mov_b32 s49, 1")
        for i in range(4): A(f"v_mov_b32 {vr(qa+i)}, -1")
        A("s_lshl_b32 s33, s32, 10"); A("s_add_u32 s33, s33, s39"); A(f"s_add_u32 s33, s33, {W_O + W_ALT}")
        A(f"v_add_u32 {vr(vT+12)}, s33, v3"); A(f"v_add_u32 {vr(vT+13)}, {W_ALT}, {vr(vLst)}"); A(f"v_add_u32 {vr(vT+14)}, {W_ALT}, {vr(vQa)}")
        A(f"v_add_u32 {vr(vT)}, {W_ALT}, {vr(vT)}"); A(f"v_mov_b32 {vr(vT+15)}, s63")
        A(f"global_store_dwordx4 {vr(vT+12)}, {vr(qa,4)}, s[28:29] sc1")
        A("s_mov_b64 exec, 3")
        A(f"global_store_dword {vr(vT+13)}, {vr(qa)}, s[28:29] sc1")
        A("s_mov_b32 exec_lo, 0x00ff00ff"); A("s_mov_b32 exec_hi, 0x00ff00ff")
        for k in range(2): A(f"global_store_dwordx4 {vr(vT+14)}, {vr(vQs+4*k,4)}, s[28:29] offset:{64*k} sc1")
        A("s_mov_b64 exec, -1")
        A("s_add_u32 s46, s63, 64"); A("s_mov_b32 s47, 1"); A("s_mov_b32 s35, 0")
        A("s_waitcnt vmcnt(0)")
        A("s_atomic_add s47, s[26:27], s46")
        A("L_gl:")
        A(f"global_load_dword {vr(vT+13)}, {vr(vT+15)}, s[26:27] offset:64 sc1")
        A("s_add_u32 s35, s35, 1")
        A("s_waitcnt vmcnt(0) lgkmcnt(0)")
        A(f"v_readfirstlane_b32 s46, {vr(vT+13)}")
        A(f"s_cmp_ge_u32 s35, {SPIN}"); A("s_cselect_b32 s46, 32, s46")
        A("s_cmp_lt_u32 s46, 32")
        A("s_cbranch_scc1 L_gl")
        qload()
        A("s_branch L_qdone")
    OOL.append(ool_q)
    A("L_qdone:")
    stamp(14)
    for k in range(4):
        for p in range(4):
            A(f"v_lshlrev_b32 {vr(vT+4+2*p)}, 16, {vr(qa+4*p+k)}"); A(f"v_and_b32 {vr(vT+5+2*p)}, s38, {vr(qa+4*p+k)}")
        A(f"v_pk_add_f32 {vr(vT+4,2)}, {vr(vT+4,2)}, {vr(vT+6,2)}"); A(f"v_pk_add_f32 {vr(vT+8,2)}, {vr(vT+8,2)}, {vr(vT+10,2)}")
        A(f"v_pk_add_f32 {vr(vT+4,2)}, {vr(vT+4,2)}, {vr(vT+8,2)}")
        A(f"v_cvt_pk_bf16_f32 {vr(qa+k)}, {vr(vT+4)}, {vr(vT+5)}")
    A(f"ds_write_b128 {vr(vT+1)}, {vr(qa,4)}")
    A(f"v_mov_b32 {vr(vT+2)}, s49")
    A(f"ds_write_b32 {vr(vT+19)}, {vr(vT+2)}")
    A("s_cmp_eq_u32 s32, 0"); A("s_cbranch_scc0 L_nof2")
    A.c("every member of this group has cleared its share of the out-projection slots")
    A("s_mov_b32 s33, 0x100000")
    A("s_waitcnt lgkmcnt(0)")
    A("s_barrier")
    A("s_atomic_add s33, s[26:27], s63")
    A("s_branch L_b1c")
    A("L_nof2:")
    A("s_waitcnt lgkmcnt(0)")
    A("L_b1b:")
    A("s_barrier")
    A("L_b1c:")
    A(f"ds_read_b32 {vr(vT+21)}, {vr(vT+19)}")
    if cpos != "early": A("s_waitcnt vmcnt(0) lgkmcnt(0)")
    if touch: A(f"global_load_dword {vr(vT+22)}, {vr(vOut)}, s[24:25]")
    if cpos != "early": conv(); tiles(0, N1)
    A(f"v_and_b32 {vr(vT)}, 1, v0"); A(f"v_lshlrev_b32 {vr(vT)}, 5, {vr(vT)}"); A(f"v_add_u32 {vr(vT)}, {L_STAT}, {vr(vT)}")
    A("s_barrier")
    A(f"ds_read_b128 {vr(vT+4,4)}, {vr(vT)}")
    A(f"ds_read_b128 {vr(vT+8,4)}, {vr(vT)} offset:16")
    A("s_waitcnt lgkmcnt(0)")
    stats(vT + 4, vT + 8, vT + 1, vT + 2)
    A(f"v_log_f32 {vr(vT+2)}, {vr(vT+2)}")
    A(f"v_add_f32 {vr(vLse)}, {vr(vT+1)}, {vr(vT+2)}")
    A(f"v_min_u32 {vr(vLse)}, -2, {vr(vLse)}")
    A(f"v_readfirstlane_b32 s62, {vr(vT+21)}")
    A("s_lshl_b32 s33, s62, 20")
    for r_ in (vLa, vLst, vOa, vOst): A(f"v_add_u32 {vr(r_)}, s33, {vr(r_)}")
    A("s_cmp_eq_u32 s30, 1"); A("s_cbranch_scc0 L_nolse")
    A("s_mov_b64 exec, 3")
    A("s_cmp_eq_u32 s62, 0"); A("s_cbranch_scc0 L_slowlse")
    A(f"global_store_dword {vr(vLst)}, {vr(vLse)}, s[28:29]")
    A("L_lsed:")
    A("s_mov_b64 exec, -1")
    A("L_nolse:")
    if wbm:
        A("s_cmp_eq_u32 s30, 2"); A("s_cselect_b32 s33, s32, 0"); A("s_cmp_eq_u32 s33, 31"); A("s_cbranch_scc0 L_nowbm"); A("buffer_wbl2 sc1"); A("L_nowbm:")
    def ool_lse():
        A("L_slowlse:")
        A(f"global_store_dword {vr(vLst)}, {vr(vLse)}, s[28:29] sc1")
        A("s_branch L_lsed")
    OOL.append(ool_lse)
    if inst:
        A.c("bring this workgroup's share of the cleared hand-off lines into L2 ahead of the polls (values unused)")
        A("s_cmp_lt_u32 s30, 2"); A("s_cbranch_scc1 L_noinst")
        A("s_lshl_b32 s33, s32, 10"); A("s_add_u32 s33, s33, s39"); A(f"s_add_u32 s33, s33, {W_O}")
        A("s_mul_i32 s34, s31, 14336"); A("s_min_u32 s35, s32, 27"); A("s_lshl_b32 s35, s35, 9"); A("s_add_u32 s34, s34, s35"); A(f"s_add_u32 s34, s34, {W_B}")
        A("s_cmp_eq_u32 s30, 2")
        if inst == 1: A("s_cbranch_scc0 L_noinst")
        if inst == 2: A("s_cbranch_scc1 L_noinst")
        A("s_cselect_b32 s33, s34, s33")
        A(f"v_add_u32 {vr(vT+12)}, s33, v3")
        A("s_cselect_b32 exec_hi, 0, -1")
        A(f"global_load_dwordx4 {vr(vT+16,4)}, {vr(vT+12)}, s[28:29] sc1")
        A("s_mov_b64 exec, -1")
        A("L_noinst:")
    A("s_mov_b64 s[56:57], s[12:13]"); A("s_mov_b32 s58, 0x380000"); A("s_mov_b32 s59, 0x20000")
    wo_loads(0, NE, "a")
    if cpos != "early": tiles(N1, 14); guard()
    A("s_cmp_lt_u32 s32, 28"); A("s_cselect_b32 s44, 0xffff, 0")
    A("s_cmp_eq_u32 s60, s31"); A("s_cselect_b32 s45, s44, 0"); A("s_cmp_eq_u32 s62, 0"); A("s_cselect_b32 s45, s45, 0")
    if "s" in bx: A("s_mov_b32 s45, 0")
    A("s_andn2_b32 s44, s44, s45")
    bl = vX + 16
    for i in range(16): A(f"v_mov_b32 {vr(bl+i)}, 0")
    for nt in range(1, 4): A(f"v_xor_b32 {vr(vRaw+nt)}, {32*nt}, {vr(vWr)}")
    ls4 = vT + 4; ck = vT + 1
    def lse_load():
        A(f"global_load_dwordx4 {vr(ls4,4)}, {vr(vLa)}, s[28:29] sc1")
        A(f"global_load_dword {vr(vT+21)}, {vr(vT+20)}, s[26:27] sc1")
    A(f"s_mov_b32 s36, {f32(1.0 + 1e-5)}")
    A("s_brev_b32 s40, 1"); A("s_brev_b32 s41, 1")
    def weights():
        A(f"v_lshrrev_b32 {vr(ck)}, 20, {vr(vT+21)}"); A(f"v_add_u32 {vr(ck)}, -1, {vr(ck)}")
        A(f"v_max3_u32 {vr(ck)}, {vr(ck)}, {vr(ls4)}, {vr(ls4+1)}"); A(f"v_max3_u32 {vr(ck)}, {vr(ck)}, {vr(ls4+2)}, {vr(ls4+3)}")
        A(f"v_cmp_eq_u32 vcc, -1, {vr(ck)}")
        A(f"v_max3_f32 {vr(vT+2)}, {vr(ls4)}, {vr(ls4+1)}, {vr(ls4+2)}"); A(f"v_max_f32 {vr(vT+2)}, {vr(vT+2)}, {vr(ls4+3)}")
        for i in range(4): A(f"v_sub_f32 {vr(ls4+i)}, {vr(ls4+i)}, {vr(vT+2)}")
        for i in range(4): A(f"v_exp_f32 {vr(ls4+i)}, {vr(ls4+i)}")
        A(f"v_add_f32 {vr(vT+2)}, {vr(ls4)}, {vr(ls4+1)}"); A(f"v_add_f32 {vr(vT+3)}, {vr(ls4+2)}, {vr(ls4+3)}")
        A(f"v_add_f32 {vr(vT+2)}, {vr(vT+2)}, {vr(vT+3)}"); A(f"v_rcp_f32 {vr(vT+2)}, {vr(vT+2)}")
        for i in range(4): A(f"v_mul_f32 {vr(ls4+i)}, {vr(ls4+i)}, {vr(vT+2)}")
    A.c("split-combine weights; vcc != 0: some lse had not arrived yet, redo after publishing")
    if tal >= 0:
        A("s_branch L_tail"); A(".p2align 12")
        if tal: A(f".fill {tal // 4}, 4, 0xbf810000")
        A("L_tail:")
    stamp(2)
    A("s_barrier")
    lse_load()
    if not lw: A("s_cmp_ge_u32 s32, 28"); A("s_cbranch_scc0 L_wob"); A("s_waitcnt vmcnt(0)"); A("L_wob:")
    wo_loads(NE, 8 - NB, "b")
    A(f"s_mov_b32 s35, {-SPIN & 0xffffffff}")
    A("s_cmp_eq_u32 s62, 0")
    A("L_b3:")
    A("s_barrier")
    stamp(5)
    if "E" in skip: A("s_branch L_fin")
    A.c("reduce the four stream waves' o partials, publish as bf16")
    o = vX; ls4 = vT + 4; oa = vX + 32; Dc = vX + 40; ck = vT + 1
    for w_ in range(4): A(f"ds_read_b64 {vr(o+2*w_,2)}, {vr(vOPr)} offset:{2048*w_}")
    for w_ in range(1, 4):
        A(f"s_waitcnt lgkmcnt({3-w_})")
        A(f"v_pk_add_f32 {vr(o,2)}, {vr(o,2)}, {vr(o+2*w_,2)}")
    A(f"v_cvt_pk_bf16_f32 {vr(o)}, {vr(o)}, {vr(o+1)}")
    A(f"v_min_u32 {vr(o)}, -2, {vr(o)}")
    A("s_cbranch_scc0 L_slowpub")
    A(f"global_store_dword {vr(vOst)}, {vr(o)}, s[28:29]")
    A("L_pubd:")
    def ool_pub():
        A("L_slowpub:")
        A(f"global_store_dword {vr(vOst)}, {vr(o)}, s[28:29] sc1")
        A("s_branch L_pubd")
    OOL.append(ool_pub)
    stamp(6)
    A.c("out projection")
    def aset():
        for tt in range(2):
            A(f"global_load_dwordx4 {vr(oa+4*tt,4)}, {vr(vOa)}, s[28:29] offset:{1024*tt} sc1")
    if ap:
        wo_loads(8 - NB, 8, "c")
        seqv = [f"w{i}" for i in range(NE, 8 - NB)] + ["st"] + [f"w{i}" for i in range(8 - NB, 8)]
        def upto(i):
            live = [k for k, x in enumerate(seqv) if x[0] == "w" and int(x[1:]) <= i]
            if live: A(f"s_waitcnt vmcnt({len(seqv) - 1 - max(live)})")
        if lw: A("s_cmp_ge_u32 s32, 28"); A("s_cbranch_scc0 L_wob"); A("s_waitcnt vmcnt(0)"); A("L_wob:")
        A(f"s_waitcnt vmcnt({len(seqv)})")
        weights()
        upto(3)
        if ap == 1: aset(); seqv += ["a", "a"]
        wo_frags((0,))
        if ap >= 2: upto(3 + ap); aset(); seqv += ["a", "a"]
        upto(7); wo_frags((1,))
    else:
        aset()
        A(f"s_waitcnt vmcnt({3 + 8 - NE})")
        weights()
        if o1:
            A("s_waitcnt vmcnt(7)"); wo_frags((0,)); A("s_waitcnt vmcnt(3)"); wo_frags((1,))
        else:
            A("s_waitcnt vmcnt(3)"); wo_frags()
    A("s_cbranch_vccnz L_lretry")
    def ool_l():
        A("L_lretry:")
        lse_load()
        A("s_add_u32 s35, s35, 1")
        A("s_waitcnt vmcnt(0)")
        weights()
        A("s_cbranch_scc1 L_lok")
        A("s_cbranch_vccnz L_lretry")
        A("L_lok:")
        A(f"s_mov_b32 s35, {-SPIN & 0xffffffff}")
        A("s_branch L_apoll0")
    OOL.insert(0, ool_l)
    A("L_apoll0:")
    def achk():
        A(f"v_max3_u32 {vr(ck)}, {vr(oa)}, {vr(oa+1)}, {vr(oa+2)}"); A(f"v_max3_u32 {vr(ck)}, {vr(ck)}, {vr(oa+3)}, {vr(oa+4)}")
        A(f"v_max3_u32 {vr(ck)}, {vr(ck)}, {vr(oa+5)}, {vr(oa+6)}"); A(f"v_max_u32 {vr(ck)}, {vr(ck)}, {vr(oa+7)}")
    if True:
        A("s_waitcnt vmcnt(0)")
        achk()
        A(f"v_cmpx_eq_u32 vcc, -1, {vr(ck)}")
        A("s_cbranch_execz L_adone")
        for _ in range(DA - 1):
            aset()
            for _ in range(GA): A("s_nop 7")
    A("L_apoll:")
    aset()
    A("s_add_u32 s35, s35, 1"); A("s_cselect_b32 s47, -1, -2")
    A(f"s_waitcnt vmcnt({2*(DA-1)})")
    achk()
    A(f"v_cmpx_lt_u32 vcc, s47, {vr(ck)}")
    A("s_cbranch_execnz L_apoll")
    A("L_adone:")
    A("s_mov_b64 exec, -1")
    A("s_waitcnt lgkmcnt(6)" if o1 else "s_waitcnt lgkmcnt(0)")
    A(f"s_mov_b32 s35, {-SPIN & 0xffffffff}")
    stamp(7)
    pp = vT + 16
    def wsum(c):
        return [f"v_mul_f32 {vr(pp+c)}, {vr(Dc+4*c)}, {vr(ls4)}"] + [f"v_fmac_f32 {vr(pp+c)}, {vr(Dc+4*c+i)}, {vr(ls4+i)}" for i in range(1, 4)]
    ws = sum((wsum(c) for c in range(4)), [])
    for k in range(8):
        c, tt = k >> 1, k & 1
        cc_ = "0" if tt == 0 else vr(Dc+4*c, 4)
        A(f"v_mfma_f32_16x16x32_bf16 {vr(Dc+4*c,4)}, {vr(oa+4*tt,4)}, {vr(vW+16*tt+4*c,4)}, {cc_}")
        if o1 and k in (2, 4, 6): A(f"s_waitcnt lgkmcnt({6 - k})")
        if 1 <= k <= 3: A(f"s_nop {0 if (o1 and k == 2) else 1}")
        if k >= 4: A(ws.pop(0)); A(ws.pop(0))
    A(f"ds_write2_b32 {vr(vPPa)}, {vr(pp)}, {vr(pp+1)} offset0:0 offset1:16")
    for x in ws: A(x)
    A(f"ds_write2_b32 {vr(vPPa)}, {vr(pp+2)}, {vr(pp+3)} offset0:32 offset1:48")
    A("s_mov_b64 exec, 0xffff")
    A("s_waitcnt lgkmcnt(0)")
    stamp(8)
    A("s_barrier")
    pr = vX
    for w_ in range(4): A(f"ds_read_b128 {vr(pr+4*w_,4)}, {vr(vPPr)} offset:{1024*w_}")
    for w_ in range(1, 4):
        A(f"s_waitcnt lgkmcnt({3-w_})")
        for k in (0, 2): A(f"v_pk_add_f32 {vr(pr+k,2)}, {vr(pr+k,2)}, {vr(pr+4*w_+k,2)}")
    A(f"v_cvt_pk_bf16_f32 {vr(pr)}, {vr(pr)}, {vr(pr+1)}"); A(f"v_cvt_pk_bf16_f32 {vr(pr+1)}, {vr(pr+2)}, {vr(pr+3)}")
    A(f"v_min_u32 {vr(pr)}, -2, {vr(pr)}"); A(f"v_min_u32 {vr(pr+1)}, -2, {vr(pr+1)}")
    A("s_mov_b32 exec_lo, s44")
    A(f"global_store_dwordx2 {vr(vBst)}, {vr(pr,2)}, s[28:29] sc1")
    A("s_mov_b32 exec_lo, s45")
    A(f"global_store_dwordx2 {vr(vBst)}, {vr(pr,2)}, s[28:29]")
    A("s_mov_b64 exec, s[42:43]")
    stamp(9)
    if "a" in bx: A("s_waitcnt vmcnt(0)")
    if "b" in bx: A("s_barrier")
    if PB0: A(f"s_sleep {PB0}")
    def bset():
        for i in range(4):
            A(f"global_load_dwordx4 {vr(bl+4*i,4)}, {vr(vBa)}, s[28:29] offset:{896*i} sc1")
    def bchk():
        A(f"v_max3_u32 {vr(ck)}, {vr(bl)}, {vr(bl+1)}, {vr(bl+2)}")
        for i in range(3, 15, 2): A(f"v_max3_u32 {vr(ck)}, {vr(ck)}, {vr(bl+i)}, {vr(bl+i+1)}")
        A(f"v_max_u32 {vr(ck)}, {vr(ck)}, {vr(bl+15)}")
    if DB > 1:
        bset()
        A("s_waitcnt vmcnt(0)")
        bchk()
        A(f"v_cmpx_eq_u32 vcc, -1, {vr(ck)}")
        A("s_cbranch_execz L_bdone")
        for _ in range(DB - 1):
            bset()
            for _ in range(GB): A("s_nop 7")
    if o2:
        hh_ = vT + 12; s1 = vT + 8
        A("L_bpoll:")
        bset()
        A("s_add_u32 s35, s35, 1"); A("s_cselect_b32 s47, -1, -2")
        A("s_mov_b64 exec, -1")
        A.c("h = x + sum of the 16 partials (matrix core does the unpack and the adds); discarded while a partial is missing")
        for i in range(4):
            A(f"s_waitcnt vmcnt({3-i})")
            A(f"v_mfma_f32_16x16x32_bf16 {vr(hh_,4)}, {vr(vDl,4)}, {vr(bl+4*i,4)}, {vr(vXr if i == 0 else hh_,4)}")
            if i == 0:
                A(f"v_max3_u32 {vr(ck)}, {vr(bl)}, {vr(bl+1)}, {vr(bl+2)}"); A(f"v_max_u32 {vr(ck)}, {vr(ck)}, {vr(bl+3)}")
            else:
                A(f"v_max3_u32 {vr(ck)}, {vr(ck)}, {vr(bl+4*i)}, {vr(bl+4*i+1)}"); A(f"v_max3_u32 {vr(ck)}, {vr(ck)}, {vr(bl+4*i+2)}, {vr(bl+4*i+3)}")
        A(f"v_cmpx_lt_u32 vcc, s47, {vr(ck)}")
        A("s_cbranch_execnz L_bpoll")
        A("s_mov_b64 exec, -1")
        stamp(10)
        A(f"v_mov_b32 {vr(vT)}, {L_HS}")
    else:
        A("L_bpoll:")
        if PB: A(f"s_sleep {PB}")
        bset()
        A("s_add_u32 s35, s35, 1")
        A(f"s_waitcnt vmcnt({4*(DB-1)})")
        bchk()
        A("s_cbranch_scc1 L_bdone")
        A(f"v_cmpx_eq_u32 vcc, -1, {vr(ck)}")
        A("s_cbranch_execnz L_bpoll")
        A("L_bdone:")
        A("s_mov_b64 exec, -1")
        stamp(10)
        A.c("h = x + sum of the 16 partials (matrix core does the unpack and the adds)")
        hh_ = vXr; s1 = vT + 8
        A(f"v_mov_b32 {vr(vT)}, {L_HS}")
        for i in range(4): A(f"v_mfma_f32_16x16x32_bf16 {vr(hh_,4)}, {vr(vDl,4)}, {vr(bl+4*i,4)}, {vr(hh_,4)}")
    for k in (0, 2): A(f"v_pk_fma_f32 {vr(vT+4+k,2)}, {vr(hh_+k,2)}, {vr(vKs,2)}, {vr(vKs,2)} op_sel:[0,0,1] op_sel_hi:[1,0,1]")
    A(f"ds_write_b128 {vr(vHw)}, {vr(hh_,4)}")
    A(f"v_pk_mul_f32 {vr(s1,2)}, {vr(hh_,2)}, {vr(vT+4,2)}")
    A(f"v_pk_fma_f32 {vr(s1,2)}, {vr(hh_+2,2)}, {vr(vT+6,2)}, {vr(s1,2)}")
    A(f"v_add_f32 {vr(s1)}, {vr(s1)}, {vr(s1+1)}")
    for sh in (8, 4, 2, 1):
        A(f"v_add_f32_dpp {vr(s1)}, {vr(s1)}, {vr(s1)} row_ror:{sh} row_mask:0xf bank_mask:0xf")
    A(f"v_add_f32_dpp {vr(s1)}, {vr(s1)}, {vr(s1)} row_bcast:15 row_mask:0xa bank_mask:0xf")
    A("s_mov_b64 exec, s[40:41]")
    A(f"ds_write_b32 {vr(vHsw)}, {vr(s1)}")
    A("s_mov_b64 exec, -1")
    A("s_waitcnt lgkmcnt(0)")
    A("s_barrier")
    A.c("LayerNorm(LayerNorm(h)) = (h - mu) * rsqrt(var*(1+eps) + eps^2), then the token MLP")
    h8 = vT + 4; hv = vT + 1
    A(f"ds_read_b128 {vr(h8,4)}, {vr(vT)}")
    A(f"ds_read_b128 {vr(h8+4,4)}, {vr(vT)} offset:16")
    A(f"ds_read_b32 {vr(hv)}, {vr(vHa)}")
    A(f"ds_read_b64 {vr(vHf,2)}, {vr(vHf)}")
    mu = vT + 2; rs = vT + 3
    A(f"v_mov_b32 {vr(vT+12)}, {f32(1e-10)}")
    A("s_waitcnt lgkmcnt(2)")
    A(f"v_pk_add_f32 {vr(h8,2)}, {vr(h8,2)}, {vr(h8+2,2)}")
    A(f"v_pk_add_f32 {vr(h8+4,2)}, {vr(h8+4,2)}, {vr(h8+6,2)}")
    A(f"v_pk_add_f32 {vr(mu,2)}, {vr(h8,2)}, {vr(h8+4,2)}")
    A(f"v_fma_f32 {vr(rs)}, -{vr(mu)}, {vr(mu)}, {vr(rs)}")
    A(f"v_fma_f32 {vr(rs)}, |{vr(rs)}|, s36, {vr(vT+12)}")
    A(f"v_rsq_f32 {vr(rs)}, {vr(rs)}")
    A("s_waitcnt lgkmcnt(1) vmcnt(0)")
    A(f"v_sub_f32 {vr(hv)}, {vr(hv)}, {vr(mu)}")
    A(f"v_mul_f32 {vr(hv)}, {vr(hv)}, {vr(rs)}")
    A(f"v_cvt_pk_bf16_f32 {vr(hv)}, {vr(hv)}, {vr(hv)}")
    A(f"v_and_b32 {vr(hv)}, s38, {vr(hv)}")
    X_ = vT + 4; Y = vT + 5; t1 = vT + 6; t2 = vT + 7; Am = vT + 8
    A(f"v_fma_f32 {vr(X_)}, {vr(hv)}, {vr(vK1)}, {vr(vK1+1)}"); A(f"v_mul_f32 {vr(X_)}, {vr(X_)}, {vr(hv)}")
    A(f"v_fma_f32 {vr(Y)}, {vr(X_)}, {vr(vK1)}, {vr(vK1+2)}")
    A(f"v_cvt_pk_bf16_f32 {vr(Am)}, {vr(X_)}, {vr(X_)}")
    A(f"v_mul_f32 {vr(Y)}, {vr(Y)}, {vr(hv)}")
    A(f"v_and_b32 {vr(t1)}, s38, {vr(Am)}")
    A(f"v_cvt_pk_bf16_f32 {vr(Am+2)}, {vr(Y)}, {vr(Y)}")
    A(f"v_sub_f32 {vr(X_)}, {vr(X_)}, {vr(t1)}")
    A(f"v_and_b32 {vr(t2)}, s38, {vr(Am+2)}")
    A(f"v_cvt_pk_bf16_f32 {vr(Am+1)}, {vr(X_)}, {vr(X_)}")
    A(f"v_sub_f32 {vr(Y)}, {vr(Y)}, {vr(t2)}")
    A(f"v_or_b32 {vr(Am+1)}, {vr(Am+1)}, {vr(vK1+3)}")
    A(f"v_cvt_pk_bf16_f32 {vr(Am+3)}, {vr(Y)}, {vr(Y)}")
    A(f"v_or_b32 {vr(Am+3)}, {vr(Am+3)}, {vr(vK1+4)}")
    A(f"v_cmp_nge_f32 vcc, s3, |{vr(hv)}|")
    stamp(11)
    Db = [vX, vX + 16, vX + 32]; acc = vT + 12; Dd = vRaw; Nn = vRaw + 8
    def mm(tile):
        A(f"v_mfma_f32_32x32x16_bf16 {vr(Db[tile%3],16)}, {vr(Am,4)}, {vr(vC+4*tile,4)}, 0")
    mm(0)
    A("s_waitcnt lgkmcnt(0)")
    A(f"v_add_f32 {vr(vHf)}, {vr(vHf)}, {vr(vB2)}"); A(f"v_add_f32 {vr(vHf+1)}, {vr(vHf+1)}, {vr(vB2)}")
    A(f"v_lshlrev_b32 {vr(vT)}, 3, v1"); A(f"v_add_u32 {vr(vT)}, {L_Y}, {vr(vT)}")
    if wb:
        A("s_cmp_eq_u32 s30, 0"); A("s_cselect_b32 s33, s32, 0"); A(f"s_cmp_ge_u32 s33, {32 - wb}"); A("s_cbranch_scc0 L_nowb"); A("buffer_wbl2 sc1"); A("L_nowb:")
    if wbt >= 0:
        A("s_cmp_eq_u32 s30, 0"); A("s_cselect_b32 s33, s32, 0"); A("s_cmp_eq_u32 s33, 31")
        def ool_wb():
            A("L_wb:"); A("buffer_wbl2 sc1"); A("s_branch L_wbd")
        OOL.insert(0, ool_wb)
    A("s_cbranch_vccnz L_fb")
    A("L_mlp:")
    A.c("sum_f n_f / (1 + e_f) kept as one fraction N / D")
    if o3:
        def chain(k, D, Np, first):
            if first: return [f"v_pk_add_f32 {vr(Dd+k,2)}, {vr(D+k,2)}, 1.0 op_sel_hi:[1,0]"]
            return [f"v_pk_fma_f32 {vr(D+8+k,2)}, {vr(D+8+k,2)}, {vr(Dd+k,2)}, {vr(Np+k,2)}",
                    f"v_pk_fma_f32 {vr(Dd+k,2)}, {vr(Dd+k,2)}, {vr(D+k,2)}, {vr(Dd+k,2)}",
                    f"v_pk_fma_f32 {vr(Nn+k,2)}, {vr(Np+k,2)}, {vr(D+k,2)}, {vr(D+8+k,2)}"]
        for tile in range(14):
            D = Db[tile % 3]; P = Db[(tile - 1) % 3]
            if tile == wbt: A("s_cbranch_scc1 L_wb"); A("L_wbd:")
            if tile + 1 < 14: mm(tile + 1)
            odd = tile & 1
            if odd:
                if tile == 1: A(f"v_mov_b32 {vr(Nn+6)}, {vr(P+14)}"); A(f"v_mov_b32 {vr(Nn+7)}, {vr(D+14)}")
                else: A(f"v_mov_b32 {vr(P+15)}, {vr(D+14)}")
            for i in range(6): A(f"v_exp_f32 {vr(D+i)}, {vr(D+i)}")
            A(f"v_exp_f32 {vr(P+7 if odd else D+6)}, {vr(D+6)}")
            ch = [chain(k, D, Db[0] + 8 if tile == 1 else Nn, tile == 0) for k in (0, 2, 4)]
            if odd: ch.append(chain(6, P, Nn, tile == 1))
            for st in range(3):
                for c_ in ch:
                    if len(c_) == 3: A(c_[st])
                    elif st == (0 if tile == 0 else 1): A(c_[0])
        for i in (6, 7, 0, 1, 2, 3, 4, 5): A(f"v_rcp_f32 {vr(Dd+i)}, {vr(Dd+i)}")
        A(f"v_mul_f32 {vr(acc+6)}, {vr(Nn+6)}, {vr(Dd+6)}"); A(f"v_fmac_f32 {vr(acc+6)}, {vr(Nn+7)}, {vr(Dd+7)}")
        for k in (0, 2, 4): A(f"v_pk_mul_f32 {vr(acc+k,2)}, {vr(Nn+k,2)}, {vr(Dd+k,2)}")
    else:
        for tile in range(14):
            D = Db[tile % 3]
            if tile + 1 < 14: mm(tile + 1)
            for i in range(7): A(f"v_exp_f32 {vr(D+i)}, {vr(D+i)}")
            if tile == 0:
                for k in range(0, 8, 2): A(f"v_pk_add_f32 {vr(Dd+k,2)}, {vr(D+k,2)}, 1.0 op_sel_hi:[1,0]")
                continue
            Np = Db[0] + 8 if tile == 1 else Nn
            for k in range(0, 8, 2): A(f"v_pk_fma_f32 {vr(D+8+k,2)}, {vr(D+8+k,2)}, {vr(Dd+k,2)}, {vr(Np+k,2)}")
            for k in range(0, 8, 2): A(f"v_pk_fma_f32 {vr(Dd+k,2)}, {vr(Dd+k,2)}, {vr(D+k,2)}, {vr(Dd+k,2)}")
            for k in range(0, 8, 2): A(f"v_pk_fma_f32 {vr(Nn+k,2)}, {vr(Np+k,2)}, {vr(D+k,2)}, {vr(D+8+k,2)}")
        for i in range(7): A(f"v_rcp_f32 {vr(Dd+i)}, {vr(Dd+i)}")
        for k in range(0, 8, 2): A(f"v_pk_mul_f32 {vr(acc+k,2)}, {vr(Nn+k,2)}, {vr(Dd+k,2)}")
    A("L_fbd:")
    A("s_cmp_eq_u32 s30, 1")
    def ool_fb():
        A("L_fb:")
        A.c("direct evaluation (large activations or weights)")
        hh = vRaw; fa = vRaw + 8; w_ = vRaw + 9; b_ = vRaw + 10; u_ = vRaw + 11; x_ = vRaw + 12; p_ = vRaw + 13; al = vRaw + 14
        A(f"v_lshrrev_b32 {vr(fa)}, 5, v0"); A(f"v_mul_u32_u24 {vr(fa)}, 28, {vr(fa)}")
        A("s_mul_i32 s33, s32, 56"); A(f"s_add_u32 s33, s33, {L_H}"); A(f"v_add_u32 {vr(fa)}, s33, {vr(fa)}")
        for i in range(7): A(f"ds_read_b32 {vr(hh+i)}, {vr(fa)} offset:{4*i}")
        A(f"v_and_b32 {vr(fa)}, 31, v0"); A(f"v_lshlrev_b32 {vr(fa)}, 1, {vr(fa)}")
        A("s_mul_i32 s33, s30, 896"); A(f"v_add_u32 {vr(fa)}, s33, {vr(fa)}")
        A(f"s_mov_b32 s33, {f32(BETA)}"); A(f"v_mov_b32 {vr(al)}, {f32(ALPHA)}")
        for i in range(8): A(f"v_mov_b32 {vr(acc+i)}, 0")
        A("s_waitcnt lgkmcnt(0)")
        for i in range(7):
            A(f"v_sub_f32 {vr(hh+i)}, {vr(hh+i)}, {vr(mu)}"); A(f"v_mul_f32 {vr(hh+i)}, {vr(hh+i)}, {vr(rs)}")
            A(f"v_cvt_pk_bf16_f32 {vr(hh+i)}, {vr(hh+i)}, {vr(hh+i)}"); A(f"v_and_b32 {vr(hh+i)}, s38, {vr(hh+i)}")
        A("s_mov_b32 s34, 0")
        A("L_fbl:")
        A(f"global_load_ushort {vr(w_)}, {vr(fa)}, s[16:17]"); A(f"global_load_ushort {vr(b_)}, {vr(fa)}, s[18:19]"); A(f"global_load_ushort {vr(u_)}, {vr(fa)}, s[20:21]")
        A(f"v_add_u32 {vr(fa)}, 64, {vr(fa)}")
        A("s_waitcnt vmcnt(0)")
        for r_ in (w_, b_, u_): A(f"v_lshlrev_b32 {vr(r_)}, 16, {vr(r_)}")
        for i in range(7):
            A(f"v_fma_f32 {vr(x_)}, {vr(w_)}, {vr(hh+i)}, {vr(b_)}")
            A(f"v_mul_f32 {vr(p_)}, {vr(x_)}, {vr(x_)}"); A(f"v_fma_f32 {vr(p_)}, {vr(p_)}, s33, {vr(al)}"); A(f"v_mul_f32 {vr(p_)}, {vr(p_)}, {vr(x_)}")
            A(f"v_exp_f32 {vr(p_)}, {vr(p_)}"); A(f"v_add_f32 {vr(p_)}, 1.0, {vr(p_)}"); A(f"v_rcp_f32 {vr(p_)}, {vr(p_)}")
            A(f"v_mul_f32 {vr(x_)}, {vr(x_)}, {vr(p_)}"); A(f"v_fmac_f32 {vr(acc+i)}, {vr(x_)}, {vr(u_)}")
        A("s_add_u32 s34, s34, 1"); A("s_cmp_lt_u32 s34, 14"); A("s_cbranch_scc1 L_fbl")
        A("s_branch L_fbd")
    OOL.append(ool_fb)
    stamp(12)
    for k in range(4): A(f"v_add_f32_dpp {vr(acc+2*k)}, {vr(acc+2*k)}, {vr(acc+2*k)} row_ror:8 row_mask:0xf bank_mask:0x3")
    for k in range(3): A(f"v_add_f32_dpp {vr(acc+2*k)}, {vr(acc+2*k+1)}, {vr(acc+2*k+1)} row_ror:8 row_mask:0xf bank_mask:0xc")
    for k in range(2): A(f"v_add_f32_dpp {vr(acc+4*k)}, {vr(acc+4*k)}, {vr(acc+4*k)} row_shl:4 row_mask:0xf bank_mask:0x5")
    for k in range(2): A(f"v_add_f32_dpp {vr(acc+4*k)}, {vr(acc+4*k+2)}, {vr(acc+4*k+2)} row_shr:4 row_mask:0xf bank_mask:0xa")
    A(f"v_permlane16_swap_b32 {vr(acc)}, {vr(acc+4)}")
    A(f"v_add_f32 {vr(acc)}, {vr(acc)}, {vr(acc+4)}")
    A(f"v_add_f32_dpp {vr(acc)}, {vr(acc)}, {vr(acc)} quad_perm:[1,0,3,2] row_mask:0xf bank_mask:0xf")
    A(f"v_add_f32_dpp {vr(acc)}, {vr(acc)}, {vr(acc)} quad_perm:[2,3,0,1] row_mask:0xf bank_mask:0xf")
    A(f"ds_write_b32 {vr(vYa)}, {vr(acc)}")
    A("s_mov_b64 exec, 0x7f")
    A("s_waitcnt lgkmcnt(0)")
    A("s_barrier")
    A("s_cbranch_scc0 L_fin")
    A(f"ds_read2_b64 {vr(vT+4,4)}, {vr(vT)} offset0:0 offset1:8")
    A(f"ds_read2_b64 {vr(vT+8,4)}, {vr(vT)} offset0:16 offset1:24")
    A("s_waitcnt lgkmcnt(1)")
    A(f"v_pk_add_f32 {vr(vHf,2)}, {vr(vHf,2)}, {vr(vT+4,2)}"); A(f"v_pk_add_f32 {vr(vHf,2)}, {vr(vHf,2)}, {vr(vT+6,2)}")
    A("s_waitcnt lgkmcnt(0)")
    A(f"v_pk_add_f32 {vr(vHf,2)}, {vr(vHf,2)}, {vr(vT+8,2)}"); A(f"v_pk_add_f32 {vr(vHf,2)}, {vr(vHf,2)}, {vr(vT+10,2)}")
    A(f"v_cvt_pk_bf16_f32 {vr(vT+2)}, {vr(vHf)}, {vr(vHf+1)}")
    A(f"global_store_dword {vr(vOut)}, {vr(vT+2)}, s[24:25] {outpol}")
    A("L_fin:")
    stamp(13)
    if amp:
        A(f"s_cmp_eq_u32 s30, {amp[0]}"); A("s_cbranch_scc0 L_end")
        A("s_waitcnt lgkmcnt(0)")
        A(f"s_sub_u32 s33, s{64+2*amp[1]}, s{64+2*amp[2]}")
        if amp[3] < 0: A("s_sub_u32 s33, 3000, s33")
        A("s_min_u32 s33, s33, 5000"); A("s_lshl_b32 s33, s33, 3"); A("s_add_u32 s33, s33, 4000")
        A("L_amp:")
        A("s_memrealtime s[34:35]"); A("s_waitcnt lgkmcnt(0)"); A("s_sub_u32 s34, s34, s64")
        A("s_cmp_lt_u32 s34, s33"); A("s_cbranch_scc1 L_amp")
    if gamp:
        A(f"s_cmp_eq_u32 s30, {gamp[3] if len(gamp) > 3 else 1}"); A("s_cbranch_scc0 L_end")
        A("s_waitcnt lgkmcnt(0)")
        A(f"s_mov_b32 s36, s{64+2*gamp[0]}")
        A(f"s_not_b32 s37, s{64+2*gamp[1]}" if gamp[2] == "min" else f"s_mov_b32 s37, s{64+2*gamp[1]}")
        A("s_atomic_umax s36, s[26:27], 192"); A("s_atomic_umax s37, s[26:27], 196"); A("s_waitcnt lgkmcnt(0)")
        A("s_cmp_eq_u32 s2, 0"); A("s_cbranch_scc0 L_end")
        A("L_g1:")
        A("s_memrealtime s[34:35]"); A("s_waitcnt lgkmcnt(0)"); A("s_sub_u32 s34, s34, s64")
        A("s_cmp_lt_u32 s34, 3800"); A("s_cbranch_scc1 L_g1")
        A("s_load_dwordx2 s[36:37], s[26:27], 192 glc"); A("s_waitcnt lgkmcnt(0)")
        if gamp[2] == "min": A("s_not_b32 s37, s37")
        A("s_sub_u32 s33, s36, s37"); A("s_min_u32 s33, s33, 5000"); A("s_lshl_b32 s33, s33, 3"); A("s_add_u32 s33, s33, 4000")
        A("L_g2:")
        A("s_memrealtime s[34:35]"); A("s_waitcnt lgkmcnt(0)"); A("s_sub_u32 s34, s34, s64")
        A("s_cmp_lt_u32 s34, s33"); A("s_cbranch_scc1 L_g2")
    if rnd:
        A("s_cmp_eq_u32 s30, 0"); A("s_cselect_b32 s33, s2, 1"); A("s_cmp_eq_u32 s33, 0"); A("s_cbranch_scc0 L_end")
        A("s_memrealtime s[64:65]"); A("s_waitcnt lgkmcnt(0)")
        A("s_lshr_b32 s33, s64, 2"); A("s_mul_i32 s33, s33, 0x9e3779b1"); A("s_lshr_b32 s34, s33, 15"); A("s_xor_b32 s33, s33, s34"); A("s_mul_i32 s33, s33, 0x85ebca6b")
        A("s_lshr_b32 s33, s33, 19")
        A("L_rnd:")
        A("s_memrealtime s[34:35]"); A("s_waitcnt lgkmcnt(0)"); A("s_sub_u32 s34, s34, s64")
        A("s_cmp_lt_u32 s34, s33"); A("s_cbranch_scc1 L_rnd")
    dump_stamps(15)
    A("L_end:")
    A("s_endpgm")
    for f in OOL: f()
    A(".fill 1024, 4, 0xbf810000")

    body, nn = fix_hazards(A.L)
    if a8:
        import subprocess, tempfile, os
        i0 = body.index("L_tail:"); i1 = body.index("L_end:")
        probe = ['.amdgcn_target "amdgcn-amd-amdhsa--gfx950"', ".text"]
        for i, l in enumerate(body):
            if i0 <= i <= i1: probe.append(f"P_{i}:")
            probe.append(l)
        d = tempfile.mkdtemp(); open(d + "/p.s", "w").write("\n".join(probe) + "\n")
        subprocess.run(["clang", "-x", "assembler", "-target", "amdgcn-amd-amdhsa", "-mcpu=gfx950", "-c", d + "/p.s", "-o", d + "/p.o"], check=True)
        sym = subprocess.run(["llvm-objdump", "-t", d + "/p.o"], capture_output=True, text=True).stdout
        ad = {int(l.split()[-1][2:]): int(l.split()[0], 16) for l in sym.splitlines() if l.split() and l.split()[-1].startswith("P_")}
        sizes = [0] * len(body)
        for i in range(i0, i1): sizes[i] = ad[i + 1] - ad[i]
        st = body.index(a8[0] + ":")
        body, n8 = align8(body, a8[0], a8[1], sizes, ad[st] % 8)
    head = [l.rstrip("\n") for l in open("header.txt")]
    head.append(f"; @launch grid=(256,1,1) block=(512,1,1) lds={L_END}")
    head += ['.amdgcn_target "amdgcn-amd-amdhsa--gfx950"', ".text"] + ([".p2align 12"] if al else []) + ([f".fill {pad // 4}, 4, 0xbf810000"] if pad else []) + [f".globl {NAME}", ".p2align 8", f".type {NAME},@function"]
    tail = ['.section .rodata,"a"', ".p2align 6", f".amdhsa_kernel {NAME}",
            "  .amdhsa_next_free_vgpr 256", "  .amdhsa_next_free_sgpr 96", "  .amdhsa_accum_offset 256",
            "  .amdhsa_group_segment_fixed_size 0", "  .amdhsa_kernarg_size 104", "  .amdhsa_user_sgpr_count 2",
            "  .amdhsa_user_sgpr_kernarg_segment_ptr 1", "  .amdhsa_system_sgpr_workgroup_id_x 1",
            "  .amdhsa_float_denorm_mode_32 3", ".end_amdhsa_kernel"]
    return "\n".join(head + body + tail) + "\n"

if __name__ == "__main__":
    kw = eval("dict(" + (sys.argv[2] if len(sys.argv) > 2 else "") + ")")
    open(sys.argv[1], "w").write(gen(**kw))
```

```python
import sys, struct, math
from asmlib import *

NAME = "sequential_preLN__sliding_block_cached__mixer_token_mlp__decode_kernel"
def f32(x): return "0x%08x" % struct.unpack("<I", struct.pack("<f", x))[0]

L_K = 0; L_WQ = 131072; L_Q = 145408; L_STAT = 146432; L_OP = 146688; L_PP = 154880; L_H = 158976; L_HS = 161024; L_Y = 161088
L_END = 161344
L_X = L_OP
W_Q = 0
W_L = 0xC0000
W_O = 0x40000
W_B = 0x80000
W_ALT = 0x100000
W_STAMP = 0x200000
SPIN = 0x20000
STAMP_VIEW = [("S", slice(4, 8), [0, 8, 6, 7, 1, 2, 3, 4, 5]), ("T0", 0, [0, 1, 3, 4, 14]), ("T3L", 3, [0, 1, 4], slice(224, 256)),
              ("T1", 1, [0, 4, 2, 5, 6, 7, 8, 9, 10, 11, 12, 13]), ("Tall", slice(0, 4), [5, 6, 7, 8, 9, 10, 11, 12, 13])]
ALPHA = -2.0 * math.sqrt(2.0 / math.pi) * math.log2(math.e)
BETA = ALPHA * 0.044715

def gen(W=8, QPOS=4, QD=2, FT=-1, stamps=False, force_slow=False, pol="nt", vpol=None, qpol="nt", opol="nt", opol2="nt", spol="", skip="",
        pref=True, opos="mid", qx=16, force_fb=False, touch=False, amp=None, DA=1, DB=1, rotm=1, PB=0, NL=1, EP=0, inst=0, spf=2, WE=0, WEN=64, WE0=8, WEM=0x55, NLD=4, LD0=8, qpace=0, prio=0, QT=0, GA=0, GB=0, cpos="early", N1=8, c1=True, NE=0, o1=True, o2=True, o3=True, ap=2, NB=0, pos='r1 j1 r3 j0 s0 r2 s1 t0 t1', rot='r3=c', wb=0, wbs=0, ks=0, b0=0, b0n=0, rnd=0, rpad=0, bph=0, a8=('L_mlp', 'L_fbd'), wbt=5, wbm=0, tl_=0, tlw=2, gamp=None, wq1=0, wbr=31, lw=True, pad=0, al=1, tal=0, warm=0, outpol='', hack="", bx="ab", PB0=0):
    A = Asm()
    c1_ = c1
    OOL = []
    def stamp(i):
        if stamps or (amp and i in (amp[1], amp[2], 0)) or (gamp and i in (gamp[0], gamp[1], 0)): A(f"s_memrealtime s[{64+2*i}:{65+2*i}]")
    def dump_stamps(nst):
        if not stamps: return
        A("s_waitcnt lgkmcnt(0) vmcnt(0)")
        A("s_lshl_b32 s94, s2, 3"); A("s_add_u32 s94, s94, s30"); A("s_lshl_b32 s94, s94, 6"); A(f"s_add_u32 s94, s94, {W_STAMP}")
        A("s_mov_b64 exec, 1")
        A("v_mov_b32 v4, s94")
        for i in range(nst):
            A(f"v_mov_b32 v5, s{64+2*i}")
            A(f"global_store_dword v4, v5, s[28:29] offset:{4*i}")
        A("s_getreg_b32 s94, hwreg(HW_REG_XCC_ID, 0, 4)"); A("v_mov_b32 v5, s94")
        A("global_store_dword v4, v5, s[28:29] offset:60")
        A("s_waitcnt vmcnt(0)")

    def brow(dst, b): A(f"s_lshl_b32 {dst}, {b}, 15")
    BH = 16384
    A(f"{NAME}:")
    stamp(0)
    A("s_load_dwordx16 s[4:19], s[0:1], 0" if ks != 2 else "s_load_dwordx8 s[4:11], s[0:1], 0")
    if not ks or stamps:
        A("s_load_dwordx8 s[20:27], s[0:1], 64")
        A("s_load_dwordx2 s[28:29], s[0:1], 96")
    A("v_lshrrev_b32 v1, 6, v0")
    A("s_lshr_b32 s32, s2, 3")
    A("v_readfirstlane_b32 s30, v1")
    A("s_cmp_ge_u32 s32, 32")
    A("s_cbranch_scc1 L_end")
    A("v_and_b32 v0, 63, v0")
    A("s_and_b32 s31, s2, 7")
    A("v_lshlrev_b32 v3, 4, v0")
    A("s_cmp_lt_u32 s30, 4")
    A("s_cbranch_scc1 L_T")

    A.c("================ stream waves")
    V = Alloc(4, 256)
    vK = V(8); vVo = V(8); vKA = V(4); vM = V(4); vT = V(8); vOPa = V(2); vQA = V(); vSTw = V(); vSTr = V()
    vS = V(16); vAcc = vK; vQ = V(32); vKF = V(32); vVv = V(128)
    vA = vQ
    assert vKF == vQ + 32
    P = {nm: 10 + k for k, nm in enumerate(pos.split())}
    SRC = dict(a=("s2", 3), b=("s2", 4), c=("s2", 5), d=("s2", 6), e=("s2", 7), x=("s2", 0), y=("s2", 1), z=("s2", 2), p=("s30", 0), q=("s30", 1))
    R = {k: v for k, v in (x.split("=") for x in rot.split())}
    def gaddr(i): return sum(((i >> k) & 1) << P[f"r{k+1}"] for k in range(3))
    def X(i): return ((8*(i & 1) + (i >> 1)) << 4) | gaddr(i)
    def parity(dst, key):
        for n_, ch in enumerate(R[key]):
            reg, bit = SRC[ch]
            if n_ == 0: A(f"s_bfe_u32 {dst}, {reg}, {hex(0x10000 | bit)}")
            else: A(f"s_bfe_u32 s39, {reg}, {hex(0x10000 | bit)}"); A(f"s_xor_b32 {dst}, {dst}, s39")
    A("s_lshr_b32 s34, s2, 5"); A("s_lshl3_add_u32 s34, s34, s31"); A("s_lshl2_add_u32 s34, s34, 3"); A("s_lshl_b32 s40, s34, 19")
    def field(reg, bit, n0, n1):
        if P[n1] == P[n0] + 1:
            A(f"s_bfe_u32 s35, {reg}, {hex(0x20000 | bit)}"); A(f"s_lshl_b32 s35, s35, {P[n0]}"); A("s_or_b32 s40, s40, s35")
        else:
            for k, nm in enumerate((n0, n1)):
                A(f"s_bitcmp1_b32 {reg}, {bit + k}"); A(f"s_cselect_b32 s35, {1 << P[nm]}, 0"); A("s_or_b32 s40, s40, s35")
    field("s2", 3, "s0", "s1"); field("s30", 0, "j0", "j1")
    for nm in ("t0", "t1"):
        if nm in R: parity("s35", nm); A(f"s_lshl_b32 s35, s35, {P[nm]}"); A("s_or_b32 s40, s40, s35")
    tlx = [((tl & 1) << P["t0"]) | ((tl >> 1) << P["t1"]) for tl in range(4)]
    A("s_sub_u32 s33, s30, 4")
    A("s_lshl_b32 s37, s33, 15")
    A("s_mov_b32 s44, s37"); A("s_mov_b32 s38, 0"); A("s_mov_b32 s60, 0")
    for k in range(3):
        if f"r{k+1}" in R:
            parity("s35", f"r{k+1}")
            A(f"s_mul_i32 s36, s35, {X(1 << k)}"); A("s_or_b32 s38, s38, s36")
            A(f"s_lshl_b32 s36, s35, {10 + k}"); A("s_or_b32 s44, s44, s36")
            if k: A(f"s_lshl{k-1}_add_u32 s60, s35, s60" if k > 1 else "s_add_u32 s60, s35, s60")
    A(f"v_and_b32 {vr(vT)}, 32, v0"); A(f"v_lshlrev_b32 {vr(vT)}, 1, {vr(vT)}")
    A(f"v_xor_b32 {vr(vT)}, {vr(vT)}, v3")
    A(f"v_xor_b32 {vr(vK)}, s38, {vr(vT)}")
    if prio == 2: A("s_setprio 3")
    A("s_brev_b32 s54, 16"); A("s_mov_b32 s55, 0x20000")
    A("s_mov_b32 m0, s44")
    A("s_waitcnt lgkmcnt(0)")
    A("s_mov_b64 s[52:53], s[6:7]")
    stamp(8)
    issued = [0]
    def throttle():
        if WE and WE0 <= issued[0] < WE0 + WEN:
            A(f"s_cbranch_vccz L_th{issued[0]}"); A(f"s_waitcnt vmcnt({abs(WE)-1})"); A(f"L_th{issued[0]}:")
        if issued[0] >= W: A(f"s_waitcnt vmcnt({W-1})")
        issued[0] += 1
    def kload(tl, i):
        if tl or i: A(f"s_xor_b32 m0, s44, {(tl << 13) | (i << 10)}")
        if tl == 0 and i: A(f"v_xor_b32 {vr(vK+i)}, {X(i)}, {vr(vK)}")
        throttle()
        A(f"buffer_load_dwordx4 {vr(vK+i)}, s[52:55], s{40+tl} offen {pol} lds")
    for i in range(8):
        if b0 and i == b0n: A("s_barrier")
        kload(0, i)
    A("s_branch L_S2")

    A("L_T:")
    A.c("================ tail waves")
    if ks == 2: A("s_load_dwordx8 s[12:19], s[0:1], 32")
    if ks and not stamps:
        A("s_load_dwordx8 s[20:27], s[0:1], 64")
        A("s_load_dwordx2 s[28:29], s[0:1], 96")
    V = Alloc(4, 256)
    vC = V(56); vW = V(32); vRaw = V(32); vX = V(56); tT = V(24)
    vXr = V(4); vDl = V(4); vQs = V(8); vG = V(4); vK1 = V(5); vHa = V(); vKs = V(2); vHf = V(2)
    vYa = V(); vLa = V(); vOa = V(); vPPa = V(); vBst = V(); vOst = V(); vLst = V(); vLse = V()
    vBa = V(); vHw = V(); vHsw = V(); vOut = V(); vB2 = V(); vQa = V(); vOPr = V(); vPPr = V(); vWa = V(2); vQw = V(); vWr = V()
    assert vRaw == vW + 32
    raw = vRaw if cpos == "early" else vX + 32
    def prep_loads():
        t = tT + 14
        A.c("MLP weights, residual row piece, b2")
        if c1_:
            A("s_mul_i32 s33, s30, 896")
            A(f"v_mul_u32_u24 {vr(t)}, 12, v0"); A(f"v_add_u32 {vr(t)}, {508 - 384}, {vr(t)}")
            A("v_cmp_lt_u32 vcc, 31, v0"); A(f"v_cndmask_b32 {vr(t)}, v3, {vr(t)}, vcc"); A(f"v_add_u32 {vr(t)}, s33, {vr(t)}")
            for k, sp in enumerate((16, 18, 20)):
                A(f"global_load_dwordx4 {vr(raw+8*k,4)}, {vr(t)}, s[{sp}:{sp+1}] {spol}")
        else:
            A(f"v_and_b32 {vr(t)}, 31, v0")
            A("s_mul_i32 s33, s30, 896")
            A(f"v_lshlrev_b32 {vr(t+1)}, 4, {vr(t)}"); A(f"v_add_u32 {vr(t+1)}, s33, {vr(t+1)}")
            A(f"v_lshlrev_b32 {vr(t+2)}, 3, {vr(t)}"); A(f"v_add_u32 {vr(t+2)}, s33, {vr(t+2)}")
            A(f"v_lshlrev_b32 {vr(t+3)}, 2, {vr(t)}"); A(f"v_add_u32 {vr(t+3)}, s33, {vr(t+3)}")
            for k, sp in enumerate((16, 18, 20)):
                A(f"global_load_dwordx4 {vr(raw+8*k,4)}, {vr(t+1)}, s[{sp}:{sp+1}] {spol}")
                A(f"global_load_dwordx2 {vr(raw+8*k+4,2)}, {vr(t+2)}, s[{sp}:{sp+1}] offset:512 {spol}")
                A(f"global_load_dword {vr(raw+8*k+6)}, {vr(t+3)}, s[{sp}:{sp+1}] offset:768 {spol}")
        A(f"v_min_u32 {vr(t)}, 13, v1"); A(f"v_and_b32 {vr(t+1)}, 1, v2")
        A("s_mul_i32 s33, s31, 896"); A("s_mul_i32 s34, s30, 224"); A("s_add_u32 s33, s33, s34")
        A(f"v_lshlrev_b32 {vr(t)}, 4, {vr(t)}"); A(f"v_lshl_add_u32 {vr(t)}, {vr(t+1)}, 3, {vr(t)}"); A(f"v_add_u32 {vr(t)}, s33, {vr(t)}")
        A(f"global_load_dwordx2 {vr(vXr+2,2)}, {vr(t)}, s[4:5] {spol}")
        A(f"v_mov_b32 {vr(t+2)}, 0")
        A(f"global_load_ushort {vr(vB2)}, {vr(t+2)}, s[22:23] {spol}")
    A("v_and_b32 v1, 15, v0")
    A("v_lshrrev_b32 v2, 4, v0")
    A("s_lshl_b32 s63, s31, 2")
    A(f"v_mov_b32 {vr(vQw)}, 0")
    A("s_mov_b64 s[40:41], 0")
    if b0: A("s_mov_b32 s46, 0")
    if "T" in skip:
        A("s_waitcnt lgkmcnt(0)"); A("s_barrier"); A("s_barrier"); A("s_barrier")
        if NL: A("s_barrier")
        A("s_branch L_b3")
    A("s_cmp_eq_u32 s30, 0"); A("s_cbranch_scc1 L_T0")
    A("s_cmp_eq_u32 s30, 3"); A("s_cbranch_scc1 L_T3")
    if spf:
        A("s_cmp_eq_u32 s30, 1"); A("s_cbranch_scc1 L_T1")
    if pref:
        if not spf: A("s_cmp_eq_u32 s30, 2"); A("s_cbranch_scc0 L_prepw")
        A.c("T2: pull the code into this XCD's L2")
        A("s_getpc_b64 s[34:35]")
        A("L_pc:")
        A(f"s_sub_u32 s34, s34, L_pc-{NAME}"); A("s_subb_u32 s35, s35, 0")
        A("s_mul_i32 s33, s32, 640")
        A(f"v_min_u32 {vr(tT)}, 9, v0"); A(f"v_lshlrev_b32 {vr(tT)}, 6, {vr(tT)}"); A(f"v_add_u32 {vr(tT)}, s33, {vr(tT)}")
        A(f"global_load_dword {vr(tT+2)}, {vr(tT)}, s[34:35]")
    A("s_branch L_prepw")
    if spf:
        A("L_T1:")
        A.c("T1: pull 14 rows of the wq column block that r=28..31 read (and of the last block) into L2")
        A("s_mul_i32 s33, s32, 14*8192"); A("s_lshl_b32 s34, s31, 10"); A("s_add_u32 s33, s33, s34"); A("s_addk_i32 s33, 384")
        A(f"v_min_u32 {vr(tT)}, 13, v1"); A(f"v_lshlrev_b32 {vr(tT)}, 13, {vr(tT)}")
        A(f"v_and_b32 {vr(tT+1)}, 1, v2"); A(f"v_lshl_add_u32 {vr(tT)}, {vr(tT+1)}, 6, {vr(tT)}")
        A(f"v_lshrrev_b32 {vr(tT+1)}, 1, v2"); A(f"v_lshl_add_u32 {vr(tT)}, {vr(tT+1)}, 9, {vr(tT)}")
        A(f"v_add_u32 {vr(tT)}, s33, {vr(tT)}")
        A("s_cmp_eq_u32 s31, 7"); A("s_cselect_b32 exec_hi, -1, 0")
        if spf == 2: A("s_and_b32 exec_hi, exec_hi, 0xffff"); A("s_mov_b32 exec_lo, 0xffff")
        A("s_waitcnt lgkmcnt(0)")
        A(f"global_load_dword {vr(tT+2)}, {vr(tT)}, s[10:11]")
        A("s_mov_b64 exec, -1")
        A("s_branch L_prepw")
    A("L_T3:")
    A.c(f"T3 of {NLD} workgroup(s) per group: clear a share of the group's q and lse slots, then count in")
    per = 4 // NLD
    A(f"s_sub_u32 s36, s32, {LD0}"); A(f"s_cmp_lt_u32 s36, {NLD}"); A("s_cbranch_scc0 L_prepw")
    for i in range(4): A(f"v_mov_b32 {vr(tT+4+i)}, -1")
    A("s_getreg_b32 s34, hwreg(HW_REG_XCC_ID, 0, 4)")
    if per > 1: A(f"s_mul_i32 s34, s34, {0x1111 & ((1 << (4*per)) - 1)}"); A(f"s_mul_i32 s36, s36, {per}")
    A("s_lshl_b32 s33, s36, 2"); A("s_lshl_b32 s34, s34, s33"); A(f"s_bitset1_b32 s34, {16 + per.bit_length() - 1}")
    A("s_lshl2_add_u32 s33, s31, s36"); A("s_lshl_b32 s35, s33, 13"); A(f"v_add_u32 {vr(tT)}, s35, v3")
    A("s_lshl_b32 s33, s33, 6"); A(f"s_add_u32 s33, s33, {W_L}")
    A(f"v_add_u32 {vr(tT+2)}, s33, v3")
    A("s_waitcnt lgkmcnt(0)")
    for k in range(2*per):
        for i in range(4): A(f"global_store_dwordx4 {vr(tT)}, {vr(tT+4,4)}, s[28:29] offset:{1024*i}")
        if k < 2*per - 1: A(f"v_add_u32 {vr(tT)}, 4096, {vr(tT)}")
    A(f"s_mov_b64 exec, {(1 << (4*per)) - 1}")
    A(f"global_store_dwordx4 {vr(tT+2)}, {vr(tT+4,4)}, s[28:29]")
    A("s_mov_b64 exec, -1")
    if b0:
        A("s_mov_b32 s46, s34")
    else:
        A("s_waitcnt vmcnt(0)")
        A("s_atomic_add s34, s[26:27], s63")
        stamp(1)
    A("s_branch L_prepw")
    A("L_T0:")
    A.c("T0: x into LDS, clear this workgroup's share of the hand-off slots (acknowledged before q is published)")
    A(f"v_lshrrev_b32 {vr(vQw)}, 3, v0"); A(f"v_lshlrev_b32 {vr(vQw)}, 13, {vr(vQw)}"); A(f"v_and_b32 {vr(tT)}, 0x70, v3"); A(f"v_or_b32 {vr(vQw)}, {vr(vQw)}, {vr(tT)}")
    A(f"s_xor_b32 s34, s32, {qx}"); A("s_lshr_b32 s35, s34, 2"); A("s_lshl3_add_u32 s50, s31, s35"); A("s_lshl_b32 s50, s50, 7")
    A("s_and_b32 s48, s34, 3"); A("s_mul_i32 s34, s48, 112*8192"); A("s_add_u32 s50, s50, s34")
    qstep = 0x10000
    if "8" in hack:
        A(f"v_lshlrev_b32 {vr(vQw)}, 13, v2"); A(f"v_lshl_add_u32 {vr(vQw)}, v1, 4, {vr(vQw)}")
        A("s_lshr_b32 s35, s32, 3"); A("s_lshl2_add_u32 s50, s31, s35"); A("s_lshl_b32 s50, s50, 8")
        A("s_and_b32 s34, s32, 7"); A("s_mul_i32 s34, s34, 56*8192"); A("s_add_u32 s50, s50, s34"); qstep = 0x8000
    if "C" in hack:
        A(f"v_mov_b32 {vr(vQw)}, v3"); A("s_mul_i32 s50, s2, 14336"); qstep = 1024
    A("s_movk_i32 s58, 7168"); A("s_mov_b32 s59, 0x20000"); A("s_movk_i32 s35, 4096")
    A(f"s_mov_b32 m0, {L_X}")
    A("s_lshl_b32 s33, s31, 15"); A("s_lshl_b32 s34, s32, 10"); A("s_add_u32 s33, s33, s34"); A(f"s_add_u32 s33, s33, {W_O}")
    A(f"v_add_u32 {vr(tT)}, s33, v3")
    brow("s33", "s31"); A("s_min_u32 s34, s32, 27"); A("s_lshl_b32 s34, s34, 9"); A("s_add_u32 s33, s33, s34"); A(f"s_add_u32 s33, s33, {W_B}")
    A("s_cmp_ge_u32 s32, 14"); A(f"s_cselect_b32 s34, {BH - 7168}, 0"); A("s_add_u32 s40, s33, s34")
    A("s_getreg_b32 s34, hwreg(HW_REG_XCC_ID, 2, 1)")
    if bph: A("s_xor_b32 s34, s34, 1")
    A("s_lshl_b32 s34, s34, 13"); A("s_add_u32 s33, s40, s34")
    A(f"v_add_u32 {vr(tT+1)}, s33, v3")
    for i in range(4): A(f"v_mov_b32 {vr(vW+i)}, -1")
    A("s_waitcnt lgkmcnt(0)")
    A("s_mov_b64 s[56:57], s[4:5]")
    for t in range(4 if "x" not in hack else 0): A(f"buffer_load_dwordx4 v3, s[56:59], 0 offen offset:{1024*t} {spol} lds")
    A(f"s_mov_b32 m0, {L_X + 4096}")
    for t in range(3 if "x" not in hack else 0): A(f"buffer_load_dwordx4 v3, s[56:59], s35 offen offset:{1024*t} {spol} lds")
    A(f"global_store_dwordx4 {vr(tT)}, {vr(vW,4)}, s[28:29]")
    A.c("r = 28..31 repeat the share of r = 27 with one lane")
    A("s_cmp_lt_u32 s32, 28"); A("s_cselect_b32 exec_lo, -1, 1"); A("s_mov_b32 exec_hi, 0")
    A(f"global_store_dwordx4 {vr(tT+1)}, {vr(vW,4)}, s[28:29] sc1")
    A("s_mov_b64 exec, -1")
    A("s_branch L_prepw")

    A("L_S2:")
    A("v_and_b32 v1, 15, v0")
    A("v_lshrrev_b32 v2, 4, v0")
    for tl in range(1, 4): A(f"s_xor_b32 s{40+tl}, s40, {tlx[tl]}")
    A("s_mov_b64 s[56:57], s[8:9]"); A("s_mov_b32 s58, s54"); A("s_mov_b32 s59, 0x20000")
    if "d" in R: parity("s61", "d"); A("s_lshl_b32 s61, s61, 8")
    else: A("s_mov_b32 s61, 0")
    A(f"v_and_b32 {vr(vT)}, 1, v2"); A(f"v_lshlrev_b32 {vr(vT)}, 9, {vr(vT)}"); A(f"v_lshl_add_u32 {vr(vT)}, v1, 4, {vr(vT)}")
    A(f"v_lshrrev_b32 {vr(vT+1)}, 1, v2"); A(f"v_lshl_add_u32 {vr(vT)}, {vr(vT+1)}, {P['r1']}, {vr(vT)}")
    A(f"s_and_b32 s35, s38, {gaddr(6)}"); A("s_or_b32 s35, s35, s61")
    A(f"v_or_b32 {vr(vVo)}, s35, {vr(vT)}")
    for e in range(1, 8): A(f"v_xor_b32 {vr(vVo+e)}, {gaddr(e & 6) | ((e & 1) << 8)}, {vr(vVo)}")
    A(f"v_xor_b32 {vr(vT+3)}, s60, v1")
    A(f"v_and_b32 {vr(vT)}, 3, {vr(vT+3)}"); A(f"v_lshrrev_b32 {vr(vT+1)}, 2, v1")
    A(f"v_lshl_add_u32 {vr(vT+2)}, {vr(vT)}, 2, {vr(vT+1)}")
    A(f"v_xor_b32 {vr(vT+3)}, {vr(vT+3)}, v2")
    A(f"v_lshlrev_b32 {vr(vT+2)}, 9, {vr(vT+2)}"); A(f"v_add_u32 {vr(vT+2)}, s37, {vr(vT+2)}")
    A(f"v_lshl_add_u32 {vr(vKA)}, {vr(vT+3)}, 4, {vr(vT+2)}")
    for t in range(1, 4): A(f"v_xor_b32 {vr(vKA+t)}, {64*t}, {vr(vKA)}")
    A(f"v_lshrrev_b32 {vr(vT)}, 3, v1")
    A(f"v_lshlrev_b32 {vr(vQA)}, 9, {vr(vT)}"); A(f"v_lshl_add_u32 {vr(vQA)}, v2, 4, {vr(vQA)}")
    A(f"v_add_u32 {vr(vQA)}, {L_Q}, {vr(vQA)}")
    A(f"v_lshlrev_b32 {vr(vSTr)}, 5, {vr(vT)}"); A(f"v_add_u32 {vr(vSTr)}, {L_STAT}, {vr(vSTr)}")
    A("s_lshl_b32 s35, s33, 2"); A(f"v_add_u32 {vr(vSTw)}, s35, {vr(vSTr)}")
    def delta(dst, val, t0):
        A(f"v_and_b32 {vr(t0)}, 16, v3")
        A(f"v_mov_b32 {vr(t0+1)}, {val}"); A(f"v_lshlrev_b32 {vr(t0+1)}, {vr(t0)}, {vr(t0+1)}")
        A(f"v_bfe_u32 {vr(t0)}, v1, 1, 2")
        for i in range(4):
            A(f"v_cmp_eq_u32 vcc, {i}, {vr(t0)}")
            A(f"v_cndmask_b32 {vr(dst+i)}, 0, {vr(t0+1)}, vcc")
    delta(vM, "0xffff", vT)
    A(f"v_and_b32 {vr(vT)}, 1, v2"); A(f"v_lshlrev_b32 {vr(vT)}, 4, {vr(vT)}")
    A(f"v_lshrrev_b32 {vr(vT+1)}, 1, v2"); A(f"v_lshl_add_u32 {vr(vT)}, {vr(vT+1)}, 10, {vr(vT)}")
    A(f"v_lshl_add_u32 {vr(vT)}, v1, 5, {vr(vT)}")
    A("s_lshl_b32 s35, s33, 11"); A(f"s_add_u32 s35, s35, {L_OP}")
    for dh in range(2):
        A(f"s_xor_b32 s38, s61, {dh << 8}"); A("s_lshl1_add_u32 s38, s38, s35")
        A(f"v_add_u32 {vr(vOPa+dh)}, s38, {vr(vT)}")
    if WE:
        A("s_getreg_b32 s35, hwreg(HW_REG_XCC_ID, 0, 3)"); A(f"s_bitcmp1_b32 {WEM}, s35"); A("s_cselect_b64 vcc, -1, 0")
    nv = [0]
    vord = list(range(28)) + [28, 30, 29, 31]
    def more(k):
        for _ in range(k):
            if nv[0] < 32:
                idx = vord[nv[0]]; tl, e = idx >> 3, idx & 7
                throttle()
                A(f"buffer_load_dwordx4 {vr(vVv+4*idx,4)}, {vr(vVo+e)}, s[56:59], s{40+tl} offen {pol if vpol is None else vpol}")
                nv[0] += 1
    seq = [("k", tl, i) for tl in range(1, 4) for i in range(8)] + [("v",)] * 32
    pos = 0
    def adv(n):
        nonlocal pos
        for _ in range(n):
            it = seq[pos]; pos += 1
            if it[0] == "k": kload(it[1], it[2])
            else: more(1)
    adv(24 + QPOS)
    stamp(6)
    A("s_barrier")
    stamp(7)
    adv(W + QD)
    assert nv[0] >= W
    stamp(1)
    if prio == 3: A("s_setprio 2")
    A("s_barrier")
    stamp(2)
    for t in range(8):
        A(f"ds_read_b128 {vr(vQ+4*t,4)}, {vr(vQA)} offset:{64*t}")
    for tl in range(4):
        for t in range(8):
            A(f"ds_read_b128 {vr(vKF+4*t,4)}, {vr(vKA+(t&3))} offset:{tl*8192 + (t>>2)*256}")
        for t in range(8):
            A(f"s_waitcnt lgkmcnt({7-t})")
            c = "0" if t == 0 else vr(vS+4*tl, 4)
            A(f"v_mfma_f32_16x16x32_bf16 {vr(vS+4*tl,4)}, {vr(vKF+4*t,4)}, {vr(vQ+4*t,4)}, {c}")
        more(1)
    SC = math.log2(math.e) / 16.0
    A(f"s_mov_b32 s35, {f32(SC)}")
    mx = vT; cp = vT + 1; ls = vT + 2
    A(f"v_max3_f32 {vr(mx)}, {vr(vS)}, {vr(vS+1)}, {vr(vS+2)}")
    for i in range(3, 15, 2):
        A(f"v_max3_f32 {vr(mx)}, {vr(mx)}, {vr(vS+i)}, {vr(vS+i+1)}")
    A(f"v_max_f32 {vr(mx)}, {vr(mx)}, {vr(vS+15)}")
    def xg(x, op):
        for sw in ("v_permlane32_swap_b32", "v_permlane16_swap_b32"):
            A(f"v_mov_b32 {vr(cp)}, {vr(x)}")
            A(f"{sw} {vr(x)}, {vr(cp)}")
            A(f"{op} {vr(x)}, {vr(x)}, {vr(cp)}")
    xg(mx, "v_max_f32")
    A(f"v_mul_f32 {vr(mx)}, s35, {vr(mx)}")
    for i in range(16):
        A(f"v_fma_f32 {vr(vS+i)}, {vr(vS+i)}, s35, -{vr(mx)}")
    for i in range(16):
        A(f"v_exp_f32 {vr(vS+i)}, {vr(vS+i)}")
    A(f"v_add_f32 {vr(ls)}, {vr(vS)}, {vr(vS+1)}")
    for i in range(2, 16):
        A(f"v_add_f32 {vr(ls)}, {vr(ls)}, {vr(vS+i)}")
    xg(ls, "v_add_f32")
    A(f"ds_write2_b32 {vr(vSTw)}, {vr(mx)}, {vr(ls)} offset0:0 offset1:4")
    more(1)
    A("s_waitcnt lgkmcnt(0)")
    A("s_barrier")
    stamp(3)
    def stats(m4, l4, M, Lr):
        A(f"v_max3_f32 {vr(M)}, {vr(m4)}, {vr(m4+1)}, {vr(m4+2)}"); A(f"v_max_f32 {vr(M)}, {vr(M)}, {vr(m4+3)}")
        for i in range(4): A(f"v_sub_f32 {vr(m4+i)}, {vr(m4+i)}, {vr(M)}")
        for i in range(4): A(f"v_exp_f32 {vr(m4+i)}, {vr(m4+i)}")
        A(f"v_mul_f32 {vr(Lr)}, {vr(m4)}, {vr(l4)}")
        for i in range(1, 4): A(f"v_fmac_f32 {vr(Lr)}, {vr(m4+i)}, {vr(l4+i)}")
    A(f"ds_read_b128 {vr(vAcc,4)}, {vr(vSTr)}")
    A(f"ds_read_b128 {vr(vAcc+4,4)}, {vr(vSTr)} offset:16")
    more(1)
    A("s_waitcnt lgkmcnt(0)")
    stats(vAcc, vAcc + 4, vT + 3, vT + 4)
    A(f"v_sub_f32 {vr(mx)}, {vr(mx)}, {vr(vT+3)}")
    A(f"v_exp_f32 {vr(mx)}, {vr(mx)}")
    A(f"v_rcp_f32 {vr(vT+4)}, {vr(vT+4)}")
    A(f"v_mul_f32 {vr(mx)}, {vr(mx)}, {vr(vT+4)}")
    for i in range(16):
        A(f"v_mul_f32 {vr(vS+i)}, {vr(vS+i)}, {vr(mx)}")
        A(f"v_cvt_pk_bf16_f32 {vr(vS+i)}, {vr(vS+i)}, {vr(vS+i)}")
        for k in range(4):
            A(f"v_and_b32 {vr(vA+4*i+k)}, {vr(vS+i)}, {vr(vM+k)}")
        if i % 8 == 7: more(1)
    stamp(4)
    done = 0
    def pv(k):
        idx = vord[k]
        i, dh = idx >> 1, idx & 1
        c = "0" if i == 0 else vr(vAcc+4*dh, 4)
        A(f"v_mfma_f32_16x16x32_bf16 {vr(vAcc+4*dh,4)}, {vr(vA+4*i,4)}, {vr(vVv+4*idx,4)}, {c}")
    while nv[0] < 32:
        more(1)
        if NL and nv[0] == 32 - EP: A("s_barrier")
        lim = min(nv[0] - W, done + 4)
        while done < lim: pv(done); done += 1
    while done < 32:
        if 31 - done < W: A(f"s_waitcnt vmcnt({31-done})")
        pv(done); done += 1
        if done == 31: A(f"ds_write_b128 {vr(vOPa)}, {vr(vAcc,4)}")
    A(f"ds_write_b128 {vr(vOPa+1)}, {vr(vAcc+4,4)}")
    stamp(5)
    A("s_waitcnt lgkmcnt(0)")
    A("s_barrier")
    if wbs and "E" not in skip:
        A.c("one wave per group stays to write the spent hand-off lines back ahead of the end of the kernel")
        A("s_cmp_eq_u32 s30, 4"); A("s_cselect_b32 s33, s32, -1"); A(f"s_cmp_eq_u32 s33, {wbr}"); A("s_cbranch_scc0 L_send")
        nb = 4 if "b" in bx else 3
        for k in range(nb):
            if k == wbs - 1: A("buffer_wbl2 sc1")
            A("s_barrier")
        A("L_send:")
    dump_stamps(9)
    A("s_endpgm")

    vT = tT
    A("L_prepw:")
    A("s_waitcnt lgkmcnt(0)")
    if b0 == 1: A("s_barrier")
    if cpos == "early": prep_loads()
    if b0 == 2: A("s_barrier")
    A("s_mov_b64 s[52:53], s[10:11]"); A("s_mov_b32 s54, 0x380000"); A("s_mov_b32 s55, 0x20000")
    nq = [0]
    def wq_loads(n):
        if not n or "q" in skip: return
        A("s_cmp_eq_u32 s30, 0"); A(f"s_cbranch_scc0 L_nq{nq[0]}")
        lab = f"L_nq{nq[0]}:"
        for _ in range(n):
            A(f"s_mov_b32 m0, {L_WQ + 1024*nq[0]}")
            if qpace and nq[0] >= qpace: A(f"s_waitcnt vmcnt({qpace-1})")
            A(f"buffer_load_dwordx4 {vr(vQw)}, s[52:55], s50 offen {qpol} lds")
            A(f"s_add_u32 s50, s50, {qstep}")
            nq[0] += 1
        A(lab)
    wq_loads(wq1)
    if b0 == 3: A("s_barrier")
    wq_loads(14 - wq1)
    if b0:
        A("s_cmp_eq_u32 s46, 0"); A("s_cbranch_scc1 L_nolead")
        A("s_waitcnt vmcnt(5)")
        A("s_atomic_add s46, s[26:27], s63")
        A("L_nolead:")
    def wo_addr():
        A("s_bfe_u32 s34, s32, 0x10001"); A("s_lshl1_add_u32 s33, s31, s34"); A("s_lshl2_add_u32 s33, s33, s30"); A("s_lshl_b32 s33, s33, 6")
        A("s_mul_i32 s33, s33, 896"); A("s_lshr_b32 s34, s32, 2"); A("s_min_u32 s34, s34, 6"); A("s_lshl_b32 s34, s34, 7"); A("s_add_u32 s51, s33, s34")
        if "O" in hack: A("s_mul_i32 s33, s31, 14"); A("s_lshr_b32 s34, s32, 1"); A("s_add_u32 s33, s33, s34"); A("s_lshl2_add_u32 s33, s33, s30"); A("s_lshl_b32 s51, s33, 13")
        A(f"v_lshrrev_b32 {vr(vWa)}, 3, v0"); A(f"v_mul_u32_u24 {vr(vWa)}, 896, {vr(vWa)}")
        A(f"v_and_b32 {vr(vT+4)}, 16, v0"); A(f"v_lshlrev_b32 {vr(vT+4)}, 1, {vr(vT+4)}"); A(f"v_and_b32 {vr(vT+5)}, 0x70, v3"); A(f"v_xor_b32 {vr(vT+4)}, {vr(vT+4)}, {vr(vT+5)}")
        A(f"v_xor_b32 {vr(vT+5)}, 64, {vr(vT+4)}"); A(f"v_add_u32 {vr(vWa+1)}, {vr(vWa)}, {vr(vT+5)}"); A(f"v_add_u32 {vr(vWa)}, {vr(vWa)}, {vr(vT+4)}")
        A(f"v_lshrrev_b32 {vr(vT+4)}, 2, v1"); A(f"v_lshl_add_u32 {vr(vT+4)}, v2, 3, {vr(vT+4)}"); A(f"v_lshlrev_b32 {vr(vT+4)}, 7, {vr(vT+4)}")
        A(f"v_bfe_u32 {vr(vT+5)}, v0, 3, 2"); A(f"v_lshl_add_u32 {vr(vT+4)}, {vr(vT+5)}, 5, {vr(vT+4)}")
        A(f"v_and_b32 {vr(vT+5)}, 3, v0"); A(f"v_lshl_add_u32 {vr(vT+4)}, {vr(vT+5)}, 3, {vr(vT+4)}")
        A("s_lshl_b32 s61, s30, 13"); A(f"v_add_u32 {vr(vWr)}, s61, {vr(vT+4)}")
    def wo_loads(i0, i1, tag):
        if i0 >= i1: return
        A("s_cmp_ge_u32 s32, 28" if "o" not in skip else "s_cmp_ge_u32 s32, 0"); A(f"s_cbranch_scc1 L_nowo{tag}")
        for i in range(i0, i1):
            A(f"s_add_u32 m0, s61, {1024*i}"); A(f"s_add_u32 s33, s51, {8*896*i if 'O' not in hack else 1024*i}")
            A(f"buffer_load_dwordx4 {vr(vWa+(i&1)) if 'O' not in hack else 'v3'}, s[56:59], s33 offen {opol} lds")
        A(f"L_nowo{tag}:")
    def wo_frags(tts=(0, 1)):
        for nt in range(4):
            for tt in tts:
                for hh in range(2):
                    A(f"ds_read_b64_tr_b16 {vr(vW+16*tt+4*nt+2*hh,2)}, {vr(vWr if nt == 0 else vRaw+nt)} offset:{4096*tt + 512*hh}")
    A.c("tail constants")
    A("s_mov_b32 s49, 0")
    wo_addr()
    if tl_:
        A.c("one scalar read per page that is first used later (V, wo, out): the translation is ready by then; values unused")
        A(f"s_cmp_eq_u32 s30, {tlw}"); A("s_cbranch_scc0 L_notl")
        if tl_ & 1:
            A("s_lshr_b32 s33, s2, 5"); A("s_lshl3_add_u32 s33, s33, s31"); A("s_lshl2_add_u32 s33, s33, 3"); A("s_lshl_b32 s33, s33, 12"); A("s_add_u32 s33, s33, s32"); A("s_lshl_b32 s33, s33, 7")
            A("s_load_dword s46, s[8:9], s33")
        if tl_ & 2:
            A("s_load_dword s47, s[12:13], s51")
        if tl_ & 4:
            A("s_mul_i32 s34, s31, 896")
            A("s_load_dword s48, s[24:25], s34")
        A("L_notl:")
    A(f"s_xor_b32 s34, s32, {qx}"); A("s_and_b32 s35, s34, 3"); A("s_lshr_b32 s34, s34, 2"); A("s_lshl3_add_u32 s34, s35, s34"); A("s_lshl_b32 s34, s34, 7")
    A("s_lshl_b32 s39, s31, 15"); A("s_add_u32 s34, s34, s39")
    A(f"v_and_b32 {vr(vQa)}, 7, v1"); A(f"v_lshlrev_b32 {vr(vQa)}, 12, {vr(vQa)}"); A(f"v_lshl_add_u32 {vr(vQa)}, v2, 4, {vr(vQa)}"); A(f"v_add_u32 {vr(vQa)}, s34, {vr(vQa)}")
    def publish_q():
        A("s_getreg_b32 s47, hwreg(HW_REG_XCC_ID, 0, 4)")
        A("s_mul_i32 s47, s47, 0x1111"); A("s_bitset1_b32 s47, 18")
        if force_slow: A("s_cmp_eq_u32 s32, 5"); A("s_cselect_b32 s47, 0, s47")
        A("s_waitcnt lgkmcnt(0)")
        A("s_cmp_eq_u32 s46, s47")
        A("s_cbranch_scc0 L_f1slow")
        A("L_same:")
        A("s_mov_b32 s41, s46")
        A.c("the slots were cleared in this XCD's L2: publish there")
        A("s_mov_b32 exec_lo, 0x00ff00ff"); A("s_mov_b32 exec_hi, 0x00ff00ff")
        for k in range(2): A(f"global_store_dwordx4 {vr(vQa)}, {vr(vQs+4*k,4)}, s[28:29] offset:{64*k}")
        A("s_mov_b64 exec, -1")
        stamp(3)
        A("L_nopub:")
        def ool():
            A("L_f1slow:")
            A(f"v_mov_b32 {vr(vT+20)}, s63")
            A("s_mov_b32 s35, 0")
            A("L_f1l:")
            A("s_cmp_ge_u32 s46, 0x40000")
            A("s_cbranch_scc1 L_f1d")
            A(f"global_load_dword {vr(vT+21)}, {vr(vT+20)}, s[26:27] sc1")
            A("s_add_u32 s35, s35, 1")
            A("s_waitcnt vmcnt(0)")
            A(f"v_readfirstlane_b32 s46, {vr(vT+21)}")
            A(f"s_cmp_lt_u32 s35, {SPIN}")
            A("s_cbranch_scc1 L_f1l")
            A("L_f1d:")
            A("s_cmp_eq_u32 s46, s47")
            A("s_cbranch_scc1 L_same")
            A.c("cleared on another XCD: tell the group, publish nothing here")
            A("s_mov_b32 s41, s46"); A("s_add_u32 s46, s63, 32"); A("s_mov_b32 s47, 1")
            A("s_atomic_add s47, s[26:27], s46 glc")
            A("s_waitcnt lgkmcnt(0)")
            A("s_mov_b32 s49, 1")
            A("s_branch L_nopub")
        OOL.append(ool)
    brow("s33", "s31"); A("s_mul_i32 s34, s30, 224"); A("s_add_u32 s33, s33, s34"); A(f"s_add_u32 s33, s33, {W_B}")
    A(f"v_min_u32 {vr(vT+4)}, 13, v1")
    A(f"v_mul_u32_u24 {vr(vBa)}, 3584, v2"); A(f"v_lshl_add_u32 {vr(vBa)}, {vr(vT+4)}, 4, {vr(vBa)}"); A(f"v_add_u32 {vr(vBa)}, s33, {vr(vBa)}")
    A(f"v_lshrrev_b32 {vr(vT+5)}, 1, v2"); A(f"v_mul_u32_u24 {vr(vT+5)}, {BH - 7168}, {vr(vT+5)}"); A(f"v_add_u32 {vr(vBa)}, {vr(vBa)}, {vr(vT+5)}")
    A("s_mul_i32 s34, s30, 448"); A(f"s_add_u32 s34, s34, {L_H}")
    A(f"v_and_b32 {vr(vT+5)}, 1, v2"); A(f"v_lshlrev_b32 {vr(vHw)}, 5, v1"); A(f"v_lshl_add_u32 {vr(vHw)}, {vr(vT+5)}, 4, {vr(vHw)}"); A(f"v_add_u32 {vr(vHw)}, s34, {vr(vHw)}")
    A(f"v_mov_b32 {vr(vT+5)}, {L_H + 1792}"); A("v_cmp_gt_u32 s[42:43], 14, v1")
    A(f"v_cndmask_b32 {vr(vHw)}, {vr(vT+5)}, {vr(vHw)}, s[42:43]")
    A(f"v_lshrrev_b32 {vr(vT+6)}, 5, v0")
    A("s_lshl_b32 s34, s30, 3"); A(f"s_add_u32 s34, s34, {L_HS}")
    A(f"v_lshlrev_b32 {vr(vHsw)}, 2, {vr(vT+6)}"); A(f"v_add_u32 {vr(vHsw)}, s34, {vr(vHsw)}")
    A(f"v_cvt_f32_u32 {vr(vKs)}, {vr(vT+6)}"); A(f"v_sub_f32 {vr(vKs+1)}, 1.0, {vr(vKs)}")
    for i in range(2): A(f"v_mul_f32 {vr(vKs+i)}, {f32(1.0/448)}, {vr(vKs+i)}")
    delta(vDl, "0x3f80", vT + 8)
    A("s_mul_i32 s33, s32, 56"); A(f"s_add_u32 s33, s33, {L_H}")
    ii = vT + 8; hf = vT + 9; col = vT + 10
    A(f"v_bfe_u32 {vr(ii)}, v0, 3, 1"); A(f"v_and_b32 {vr(hf)}, 3, v0"); A(f"v_lshl_add_u32 {vr(ii)}, {vr(ii)}, 2, {vr(hf)}")
    A(f"v_bfe_u32 {vr(hf)}, v0, 2, 1")
    A(f"v_min_u32 {vr(col)}, 6, {vr(ii)}"); A(f"v_mad_u32_u24 {vr(col)}, {vr(hf)}, 7, {vr(col)}")
    A(f"v_lshlrev_b32 {vr(vHa)}, 2, {vr(col)}"); A(f"v_add_u32 {vr(vHa)}, s33, {vr(vHa)}")
    A(f"v_cmp_eq_u32 vcc, 7, {vr(ii)}"); A(f"v_cndmask_b32 {vr(vT+11)}, v2, 3, vcc")
    A(f"v_mov_b32 {vr(vT+12)}, 0x3f803f80")
    A(f"v_cmp_eq_u32 vcc, 2, {vr(vT+11)}"); A(f"v_cndmask_b32 {vr(vK1)}, 0, 1.0, vcc")
    A(f"v_cmp_eq_u32 vcc, 0, {vr(vT+11)}"); A(f"v_cndmask_b32 {vr(vK1+1)}, 0, 1.0, vcc")
    A(f"v_cndmask_b32 {vr(vK1+3)}, 0, {vr(vT+12)}, vcc")
    A(f"v_cmp_eq_u32 vcc, 1, {vr(vT+11)}"); A(f"v_cndmask_b32 {vr(vK1+2)}, 0, 1.0, vcc")
    A(f"v_cndmask_b32 {vr(vK1+4)}, 0, {vr(vT+12)}, vcc")
    A(f"v_min_u32 {vr(col)}, 6, v0"); A(f"v_lshlrev_b32 {vr(vHf)}, 3, {vr(col)}"); A(f"v_add_u32 {vr(vHf)}, s33, {vr(vHf)}")
    A("s_mul_i32 s33, s31, 896"); A("s_mul_i32 s34, s32, 28"); A("s_add_u32 s33, s33, s34")
    A(f"v_lshlrev_b32 {vr(vOut)}, 2, {vr(col)}"); A(f"v_add_u32 {vr(vOut)}, s33, {vr(vOut)}")
    A(f"v_bfe_u32 {vr(ii)}, v0, 2, 1"); A(f"v_bfe_u32 {vr(hf)}, v0, 3, 1"); A(f"v_lshl_add_u32 {vr(ii)}, {vr(ii)}, 1, {vr(hf)}")
    A(f"v_bfe_u32 {vr(hf)}, v0, 4, 1"); A(f"v_lshl_add_u32 {vr(ii)}, {vr(hf)}, 2, {vr(ii)}")
    A(f"v_mad_u32_u24 {vr(hf)}, {vr(vT+6)}, 7, {vr(ii)}")
    A(f"v_cmp_eq_u32 vcc, 7, {vr(ii)}"); A(f"v_cndmask_b32 {vr(hf)}, {vr(hf)}, 15, vcc")
    A("s_lshl_b32 s34, s30, 6"); A(f"s_add_u32 s34, s34, {L_Y}")
    A(f"v_lshlrev_b32 {vr(vYa)}, 2, {vr(hf)}"); A(f"v_add_u32 {vr(vYa)}, s34, {vr(vYa)}")
    A("s_lshl_b32 s33, s31, 8"); A(f"s_add_u32 s33, s33, {W_L}"); A("s_and_b32 s34, s32, 3"); A("s_lshl_b32 s34, s34, 6"); A("s_add_u32 s34, s34, s33")
    A(f"v_lshlrev_b32 {vr(vLa)}, 4, v2"); A(f"v_add_u32 {vr(vLa)}, s34, {vr(vLa)}")
    A("s_lshl2_add_u32 s34, s32, s33")
    A(f"v_lshlrev_b32 {vr(vLst)}, 7, v0"); A(f"v_add_u32 {vr(vLst)}, s34, {vr(vLst)}")
    A(f"s_add_u32 s33, s39, {W_O}")
    A("s_and_b32 s35, s32, 1"); A("s_bfe_u32 s36, s32, 0x10001")
    A("s_lshl1_add_u32 s34, s35, s36"); A("s_lshl2_add_u32 s34, s34, s30"); A("s_lshl_b32 s34, s34, 11"); A("s_add_u32 s34, s34, s33")
    A(f"v_add_u32 {vr(vOa)}, s34, v3")
    A("s_lshl2_add_u32 s60, s35, s30")
    A("s_lshl1_add_u32 s34, s31, s36"); A("s_mul_i32 s34, s34, 896"); brow("s36", "s60"); A("s_add_u32 s34, s34, s36")
    A("s_cmp_ge_u32 s31, 4"); A(f"s_cselect_b32 s36, {BH - 7168}, 0"); A("s_add_u32 s34, s34, s36")
    A("s_lshr_b32 s36, s32, 2"); A("s_min_u32 s36, s36, 6"); A("s_lshl_b32 s36, s36, 7")
    A("s_add_u32 s34, s34, s36"); A(f"s_add_u32 s34, s34, {W_B}")
    A(f"v_lshlrev_b32 {vr(vBst)}, 3, v1"); A(f"v_add_u32 {vr(vBst)}, s34, {vr(vBst)}")
    A("s_lshr_b32 s34, s32, 4"); A("s_lshl2_add_u32 s34, s34, s30"); A("s_lshl_b32 s34, s34, 12"); A("s_add_u32 s34, s34, s33")
    A("s_and_b32 s36, s32, 15"); A("s_lshl4_add_u32 s34, s36, s34")
    A(f"v_lshrrev_b32 {vr(vOst)}, 2, v0"); A(f"v_lshlrev_b32 {vr(vOst)}, 8, {vr(vOst)}"); A(f"v_and_b32 {vr(vT+4)}, 3, v0")
    A(f"v_lshl_add_u32 {vr(vOst)}, {vr(vT+4)}, 2, {vr(vOst)}"); A(f"v_add_u32 {vr(vOst)}, s34, {vr(vOst)}")
    A("s_lshl_b32 s34, s30, 8"); A(f"s_add_u32 s34, s34, {L_PP}")
    A(f"v_lshlrev_b32 {vr(vPPr)}, 4, v1"); A(f"v_add_u32 {vr(vPPr)}, s34, {vr(vPPr)}")
    A("s_lshl_b32 s34, s30, 9"); A(f"s_add_u32 s34, s34, {L_OP}")
    A(f"v_lshlrev_b32 {vr(vOPr)}, 3, v0"); A(f"v_add_u32 {vr(vOPr)}, s34, {vr(vOPr)}")
    A("s_lshl_b32 s34, s30, 10"); A(f"s_add_u32 s34, s34, {L_PP}")
    A(f"v_lshlrev_b32 {vr(vPPa)}, 2, v1"); A(f"v_lshl_add_u32 {vr(vPPa)}, v2, 8, {vr(vPPa)}"); A(f"v_add_u32 {vr(vPPa)}, s34, {vr(vPPa)}")
    for i in range(4): A(f"v_mov_b32 {vr(vG+i)}, 0")
    A(f"s_mov_b32 s37, {f32(1.0/64)}")
    A("s_mov_b32 s38, 0xffff0000")
    def qproj():
        A("s_cmp_eq_u32 s30, 0"); A("s_cbranch_scc0 L_nopub")
        A.c("T0: q projection, 64 columns x a quarter of the rows, all 8 batches; LayerNorm applied after the product")
        A("s_mov_b32 s34, 0x3f803f80")
        for i in range(56): A(f"v_mov_b32 {vr(vX+i)}, s34")
        A(f"v_and_b32 {vr(tT+1)}, 7, v1"); A(f"v_mul_u32_u24 {vr(tT+1)}, 896, {vr(tT+1)}"); A(f"v_add_u32 {vr(tT+1)}, {L_X}, {vr(tT+1)}")
        A(f"v_lshl_add_u32 {vr(tT)}, v2, 4, {vr(tT+1)}")
        A("s_mul_i32 s33, s48, 224"); A(f"v_lshl_add_u32 {vr(tT+1)}, v2, 3, {vr(tT+1)}"); A(f"v_add_u32 {vr(tT+1)}, s33, {vr(tT+1)}")
        A(f"v_lshrrev_b32 {vr(tT+2)}, 2, v0"); A(f"v_lshlrev_b32 {vr(tT+2)}, 7, {vr(tT+2)}"); A(f"v_and_or_b32 {vr(tT+2)}, v3, 48, {vr(tT+2)}")
        A(f"v_add_u32 {vr(tT+2)}, {L_WQ}, {vr(tT+2)}")
        A(f"v_bfe_u32 {vr(tT+3)}, v1, 2, 1"); A(f"v_lshl_add_u32 {vr(tT+3)}, {vr(tT+3)}, 4, v1"); A(f"v_lshlrev_b32 {vr(tT+3)}, 2, {vr(tT+3)}")
        A(f"v_lshlrev_b32 {vr(tT+4)}, 2, v1"); A(f"v_add_u32 {vr(tT+4)}, 128, {vr(tT+4)}")
        A(f"v_and_b32 {vr(tT+5)}, 3, v1")
        sm = ('', 's[6:7]', 's[8:9]', 's[14:15]')
        for i in range(1, 4): A(f"v_cmp_eq_u32 {sm[i]}, {i}, {vr(tT+5)}")
        D1 = vX + 16; D2 = tT + 8; wf = vW
        A("s_mov_b32 exec_lo, 0x00ff00ff"); A("s_mov_b32 exec_hi, 0x00ff00ff")
        A("s_waitcnt vmcnt(14)")
        for t in range(14): A(f"ds_read_b128 {vr(vX+4*t,4)}, {vr(tT)} offset:{64*t}")
        A("s_mov_b64 exec, -1")
        for t in range(14):
            A(f"s_waitcnt lgkmcnt({13-t})")
            c = "0" if t == 0 else vr(D2, 4)
            A(f"v_mfma_f32_16x16x32_bf16 {vr(D2,4)}, {vr(vX+4*t,4)}, {vr(vX+4*t,4)}, {c}")
        for i in range(1, 4): A(f"v_cndmask_b32 {vr(D2)}, {vr(D2)}, {vr(D2+i)}, {sm[i]}")
        A(f"ds_bpermute_b32 {vr(tT+6)}, {vr(tT+3)}, {vr(D2)}")
        A(f"ds_bpermute_b32 {vr(tT+7)}, {vr(tT+4)}, {vr(D2)}")
        A("s_mov_b32 exec_lo, 0x00ff00ff"); A("s_mov_b32 exec_hi, 0x00ff00ff")
        for t in range(7): A(f"ds_read_b64 {vr(vX+2*t,2)}, {vr(tT+1)} offset:{32*t}")
        A("s_mov_b64 exec, -1")
        A(f"s_mov_b32 s33, {f32(1.0/448)}")
        A("s_waitcnt lgkmcnt(0)")
        A(f"v_mul_f32 {vr(tT+7)}, s33, {vr(tT+7)}")
        A(f"v_mul_f32 {vr(tT+6)}, s33, {vr(tT+6)}")
        A(f"v_fma_f32 {vr(tT+6)}, -{vr(tT+7)}, {vr(tT+7)}, {vr(tT+6)}")
        A(f"v_max_f32 {vr(tT+6)}, 0, {vr(tT+6)}")
        A(f"v_add_f32 {vr(tT+6)}, {f32(1e-5)}, {vr(tT+6)}")
        A(f"v_rsq_f32 {vr(tT+6)}, {vr(tT+6)}")
        A("s_waitcnt vmcnt(0)")
        A("s_load_dword s46, s[26:27], s63")
        stamp(1)
        for np_ in range(2):
            for t in range(7):
                for e in range(2):
                    A(f"ds_read_b64_tr_b16 {vr(wf+4*t+2*e,2)}, {vr(tT+2)} offset:{2048*t + 64*np_ + 8*e}")
            for t in range(7):
                A(f"s_waitcnt lgkmcnt({12-2*t})")
                for e in range(2):
                    D = D1 + 8*np_ + 4*e
                    c = "0" if t == 0 else vr(D, 4)
                    A(f"v_mfma_f32_16x16x16_bf16 {vr(D,4)}, {vr(wf+4*t+2*e,2)}, {vr(vX+2*t,2)}, {c}")
        for i0 in (0, 8):
            for i in range(8):
                A(f"v_mul_f32_dpp {vr(D2+i)}, {vr(D1+i0+i)}, {vr(tT+7)} row_newbcast:8 row_mask:0xf bank_mask:0xf")
            for i in range(8):
                A(f"v_sub_f32 {vr(D2+i)}, {vr(D1+i0+i)}, {vr(D2+i)}")
                A(f"v_mul_f32 {vr(D2+i)}, {vr(D2+i)}, {vr(tT+6)}")
            for i in range(4):
                A(f"v_cvt_pk_bf16_f32 {vr(vQs+i0//2+i)}, {vr(D2+2*i)}, {vr(D2+2*i+1)}")
                A(f"v_min_u32 {vr(vQs+i0//2+i)}, -2, {vr(vQs+i0//2+i)}")
        publish_q()
    def conv():
        if c1_:
            for k in range(3):
                for i in range(4): A(f"v_mov_b32 {vr(raw+8*k+4+((i+3)&3))}, {vr(raw+8*k+i)}")
                for i in range(4): A(f"v_permlane32_swap_b32 {vr(raw+8*k+i)}, {vr(raw+8*k+4+((i+3)&3))}")
        for i in (2, 3): A(f"v_cndmask_b32 {vr(vXr+i)}, 0, {vr(vXr+i)}, s[42:43]")
        A(f"v_lshlrev_b32 {vr(vXr)}, 16, {vr(vXr+2)}"); A(f"v_and_b32 {vr(vXr+1)}, s38, {vr(vXr+2)}")
        A(f"v_lshlrev_b32 {vr(vXr+2)}, 16, {vr(vXr+3)}"); A(f"v_and_b32 {vr(vXr+3)}, s38, {vr(vXr+3)}")
        A(f"v_lshlrev_b32 {vr(vB2)}, 16, {vr(vB2)}")
    w, b, u, bb, c0, c1, c2, c3, ca, cc, hi = (vT + 1 + i for i in range(11))
    def tiles(t0, t1):
        if t0 >= t1: return
        A.c("gelu argument as a cubic in hn, and n = (w1*hn + b1)*w2, as split-bf16 MFMA operands")
        A(f"s_mov_b32 s33, {f32(BETA)}"); A(f"s_mov_b32 s34, {f32(3*BETA)}"); A(f"v_mov_b32 {vr(vT)}, {f32(ALPHA)}")
        A("v_cmp_lt_u32 vcc, 31, v0")
        for tile in range(t0, t1):
            for k, d in enumerate((w, b, u)):
                src = raw + 8*k + (tile >> 1)
                if tile & 1: A(f"v_and_b32 {vr(d)}, s38, {vr(src)}")
                else: A(f"v_lshlrev_b32 {vr(d)}, 16, {vr(src)}")
            A(f"v_mul_f32 {vr(bb)}, {vr(b)}, {vr(b)}")
            A(f"v_fma_f32 {vr(c0)}, {vr(bb)}, s33, {vr(vT)}"); A(f"v_mul_f32 {vr(c0)}, {vr(c0)}, {vr(b)}")
            A(f"v_fma_f32 {vr(c1)}, {vr(bb)}, s34, {vr(vT)}"); A(f"v_mul_f32 {vr(c1)}, {vr(c1)}, {vr(w)}")
            A(f"v_mul_f32 {vr(bb)}, {vr(w)}, {vr(w)}")
            A(f"v_mul_f32 {vr(c2)}, s34, {vr(bb)}"); A(f"v_mul_f32 {vr(c2)}, {vr(c2)}, {vr(b)}")
            A(f"v_mul_f32 {vr(c3)}, s33, {vr(bb)}"); A(f"v_mul_f32 {vr(c3)}, {vr(c3)}, {vr(w)}")
            A(f"v_mul_f32 {vr(ca)}, {vr(w)}, {vr(u)}"); A(f"v_mul_f32 {vr(cc)}, {vr(b)}, {vr(u)}")
            for k, cx in enumerate((c0, c1, c2, c3)): A(f"v_add_f32 {vr(vG+k)}, |{vr(cx)}|, {vr(vG+k)}")
            A(f"v_fma_f32 {vr(vG)}, |{vr(cc)}|, s37, {vr(vG)}"); A(f"v_fma_f32 {vr(vG+1)}, |{vr(ca)}|, s37, {vr(vG+1)}")
            for k, (lo_, hi_) in enumerate(((c1, c2), (c0, c2), (ca, c3), (cc, c3))):
                A(f"v_cndmask_b32 {vr(lo_)}, {vr(lo_)}, {vr(hi_)}, vcc")
                A(f"v_cvt_pk_bf16_f32 {vr(hi)}, {vr(lo_)}, {vr(lo_)}")
                A(f"v_and_b32 {vr(hi)}, s38, {vr(hi)}")
                A(f"v_sub_f32 {vr(lo_)}, {vr(lo_)}, {vr(hi)}")
                A(f"v_cvt_pk_bf16_f32 {vr(vC+4*tile+k)}, {vr(hi)}, {vr(lo_)}")
    def guard():
        A.c("largest |hn| for which the fused gelu path can neither overflow nor lose precision")
        A("s_mov_b32 s3, -1.0"); A(f"s_mov_b32 s34, {f32(100.0)}")
        for H in (3.0, 4.5, 6.0, 8.0, 12.0, 22.0):
            A(f"s_mov_b32 s33, {f32(H)}")
            A(f"v_fma_f32 {vr(vT+1)}, {vr(vG+3)}, s33, {vr(vG+2)}"); A(f"v_fma_f32 {vr(vT+1)}, {vr(vT+1)}, s33, {vr(vG+1)}")
            A(f"v_fma_f32 {vr(vT+1)}, {vr(vT+1)}, s33, {vr(vG)}")
            A(f"v_cmp_nge_f32 vcc, s34, {vr(vT+1)}")
            A("s_cmp_eq_u64 vcc, 0"); A("s_cselect_b32 s3, s33, s3")
        if force_fb: A("s_mov_b32 s3, -1.0")
    if cpos == "early":
        A("s_cmp_eq_u32 s30, 0"); A("s_cbranch_scc1 L_pw"); A("s_waitcnt vmcnt(0)"); A("L_pw:")
        A("s_waitcnt vmcnt(14)")
        conv(); tiles(0, QT); qproj(); tiles(QT, 14); guard()
    else:
        qproj()
    A("s_lshr_b32 s33, s32, 2"); A("s_lshl_b32 s33, s33, 12"); A("s_add_u32 s33, s33, s39")
    A(f"v_add_u32 {vr(vT)}, s33, v3"); A(f"v_add_u32 {vr(vT+1)}, {L_Q}, v3")
    A(f"v_and_b32 {vr(vT+20)}, 7, v0"); A(f"v_lshlrev_b32 {vr(vT+20)}, 2, {vr(vT+20)}"); A(f"v_mov_b32 {vr(vT+19)}, {L_STAT + 64}")
    stamp(4)
    if cpos == "pre1": prep_loads()
    A("s_barrier")
    if cpos == "mid": prep_loads()
    A("s_mov_b32 s35, 0")
    A("s_cmp_eq_u32 s30, 0")
    A("s_cbranch_scc0 L_b1b")
    A.c("T0: gather the four q partials, add, hand to the stream waves")
    qa = vX
    def qload():
        for k in range(4): A(f"global_load_dwordx4 {vr(qa+4*k,4)}, {vr(vT)}, s[28:29] offset:{1024*k} sc1")
        A("s_waitcnt vmcnt(0)")
    A("s_cmp_eq_u32 s49, 0"); A("s_cbranch_scc0 L_glob")
    A("L_qpoll:")
    qload()
    A(f"v_max3_u32 {vr(vT+2)}, {vr(qa)}, {vr(qa+1)}, {vr(qa+2)}")
    for i in range(3, 15, 2): A(f"v_max3_u32 {vr(vT+2)}, {vr(vT+2)}, {vr(qa+i)}, {vr(qa+i+1)}")
    A(f"v_max_u32 {vr(vT+2)}, {vr(vT+2)}, {vr(qa+15)}")
    A(f"v_cmp_eq_u32 vcc, -1, {vr(vT+2)}")
    A("s_cbranch_vccnz L_qretry")
    def ool_q():
        A("L_qretry:")
        A("s_add_u32 s35, s35, 1")
        A(f"s_cmp_ge_u32 s35, {SPIN}")
        A("s_cbranch_scc1 L_qdone")
        A("s_bitcmp1_b32 s35, 0"); A("s_cbranch_scc1 L_qpoll")
        A(f"v_mov_b32 {vr(vT+12)}, s63")
        A(f"global_load_dword {vr(vT+13)}, {vr(vT+12)}, s[26:27] offset:32 sc1")
        A("s_waitcnt vmcnt(0)")
        A(f"v_readfirstlane_b32 s46, {vr(vT+13)}")
        A("s_cmp_eq_u32 s46, 0")
        A("s_cbranch_scc1 L_qpoll")
        A("L_glob:")
        A.c("group spread over several XCDs: write-through hand-off in the second copy, ordered by a counter")
        A("s_mov_b32 s49, 1")
        for i in range(4): A(f"v_mov_b32 {vr(qa+i)}, -1")
        A("s_lshl_b32 s33, s32, 10"); A("s_add_u32 s33, s33, s39"); A(f"s_add_u32 s33, s33, {W_O + W_ALT}")
        A(f"v_add_u32 {vr(vT+12)}, s33, v3"); A(f"v_add_u32 {vr(vT+13)}, {W_ALT}, {vr(vLst)}"); A(f"v_add_u32 {vr(vT+14)}, {W_ALT}, {vr(vQa)}")
        A(f"v_add_u32 {vr(vT)}, {W_ALT}, {vr(vT)}"); A(f"v_mov_b32 {vr(vT+15)}, s63")
        A(f"global_store_dwordx4 {vr(vT+12)}, {vr(qa,4)}, s[28:29] sc1")
        A("s_bfe_u32 s33, s41, 0x10002")
        if bph: A("s_xor_b32 s33, s33, 1")
        A("s_lshl_b32 s33, s33, 13"); A("s_add_u32 s33, s33, s40"); A(f"v_add_u32 {vr(vT+12)}, s33, v3")
        A("s_mov_b32 exec_hi, 0")
        A(f"global_store_dwordx4 {vr(vT+12)}, {vr(qa,4)}, s[28:29] sc1")
        A("s_mov_b64 exec, 3")
        A(f"global_store_dword {vr(vT+13)}, {vr(qa)}, s[28:29] sc1")
        A("s_mov_b32 exec_lo, 0x00ff00ff"); A("s_mov_b32 exec_hi, 0x00ff00ff")
        for k in range(2): A(f"global_store_dwordx4 {vr(vT+14)}, {vr(vQs+4*k,4)}, s[28:29] offset:{64*k} sc1")
        A("s_mov_b64 exec, -1")
        A("s_add_u32 s46, s63, 64"); A("s_mov_b32 s47, 1"); A("s_mov_b32 s35, 0")
        A("s_waitcnt vmcnt(0)")
        A("s_atomic_add s47, s[26:27], s46")
        A("L_gl:")
        A(f"global_load_dword {vr(vT+13)}, {vr(vT+15)}, s[26:27] offset:64 sc1")
        A("s_add_u32 s35, s35, 1")
        A("s_waitcnt vmcnt(0) lgkmcnt(0)")
        A(f"v_readfirstlane_b32 s46, {vr(vT+13)}")
        A(f"s_cmp_ge_u32 s35, {SPIN}"); A("s_cselect_b32 s46, 32, s46")
        A("s_cmp_lt_u32 s46, 32")
        A("s_cbranch_scc1 L_gl")
        qload()
        A("s_branch L_qdone")
    OOL.append(ool_q)
    A("L_qdone:")
    stamp(14)
    for k in range(4):
        for p in range(4):
            A(f"v_lshlrev_b32 {vr(vT+4+2*p)}, 16, {vr(qa+4*p+k)}"); A(f"v_and_b32 {vr(vT+5+2*p)}, s38, {vr(qa+4*p+k)}")
        A(f"v_pk_add_f32 {vr(vT+4,2)}, {vr(vT+4,2)}, {vr(vT+6,2)}"); A(f"v_pk_add_f32 {vr(vT+8,2)}, {vr(vT+8,2)}, {vr(vT+10,2)}")
        A(f"v_pk_add_f32 {vr(vT+4,2)}, {vr(vT+4,2)}, {vr(vT+8,2)}")
        A(f"v_cvt_pk_bf16_f32 {vr(qa+k)}, {vr(vT+4)}, {vr(vT+5)}")
    A(f"ds_write_b128 {vr(vT+1)}, {vr(qa,4)}")
    A(f"v_mov_b32 {vr(vT+2)}, s49")
    A(f"ds_write_b32 {vr(vT+19)}, {vr(vT+2)}")
    A("s_cmp_eq_u32 s32, 0"); A("s_cbranch_scc0 L_nof2")
    A.c("every member of this group has cleared its share of the out-projection slots")
    A("s_mov_b32 s33, 0x100000")
    A("s_waitcnt lgkmcnt(0)")
    A("s_barrier")
    A("s_atomic_add s33, s[26:27], s63")
    A("s_branch L_b1c")
    A("L_nof2:")
    A("s_waitcnt lgkmcnt(0)")
    A("L_b1b:")
    A("s_barrier")
    A("L_b1c:")
    A(f"ds_read_b32 {vr(vT+21)}, {vr(vT+19)}")
    if cpos != "early": A("s_waitcnt vmcnt(0) lgkmcnt(0)")
    if touch: A(f"global_load_dword {vr(vT+22)}, {vr(vOut)}, s[24:25]")
    if cpos != "early": conv(); tiles(0, N1)
    A(f"v_and_b32 {vr(vT)}, 1, v0"); A(f"v_lshlrev_b32 {vr(vT)}, 5, {vr(vT)}"); A(f"v_add_u32 {vr(vT)}, {L_STAT}, {vr(vT)}")
    A("s_barrier")
    A(f"ds_read_b128 {vr(vT+4,4)}, {vr(vT)}")
    A(f"ds_read_b128 {vr(vT+8,4)}, {vr(vT)} offset:16")
    A("s_waitcnt lgkmcnt(0)")
    stats(vT + 4, vT + 8, vT + 1, vT + 2)
    A(f"v_log_f32 {vr(vT+2)}, {vr(vT+2)}")
    A(f"v_add_f32 {vr(vLse)}, {vr(vT+1)}, {vr(vT+2)}")
    A(f"v_min_u32 {vr(vLse)}, -2, {vr(vLse)}")
    A(f"v_readfirstlane_b32 s62, {vr(vT+21)}")
    A("s_lshl_b32 s33, s62, 20")
    for r_ in (vLa, vLst, vOa, vOst): A(f"v_add_u32 {vr(r_)}, s33, {vr(r_)}")
    A("s_cmp_eq_u32 s30, 1"); A("s_cbranch_scc0 L_nolse")
    A("s_mov_b64 exec, 3")
    A("s_cmp_eq_u32 s62, 0"); A("s_cbranch_scc0 L_slowlse")
    A(f"global_store_dword {vr(vLst)}, {vr(vLse)}, s[28:29]")
    A("L_lsed:")
    A("s_mov_b64 exec, -1")
    A("L_nolse:")
    if wbm:
        A("s_cmp_eq_u32 s30, 2"); A("s_cselect_b32 s33, s32, 0"); A("s_cmp_eq_u32 s33, 31"); A("s_cbranch_scc0 L_nowbm"); A("buffer_wbl2 sc1"); A("L_nowbm:")
    def ool_lse():
        A("L_slowlse:")
        A(f"global_store_dword {vr(vLst)}, {vr(vLse)}, s[28:29] sc1")
        A("s_branch L_lsed")
    OOL.append(ool_lse)
    if inst:
        A.c("bring this workgroup's share of the cleared hand-off lines into L2 ahead of the polls (values unused)")
        A("s_cmp_lt_u32 s30, 2"); A("s_cbranch_scc1 L_noinst")
        A("s_lshl_b32 s33, s32, 10"); A("s_add_u32 s33, s33, s39"); A(f"s_add_u32 s33, s33, {W_O}")
        A("s_mul_i32 s34, s31, 14336"); A("s_min_u32 s35, s32, 27"); A("s_lshl_b32 s35, s35, 9"); A("s_add_u32 s34, s34, s35"); A(f"s_add_u32 s34, s34, {W_B}")
        A("s_cmp_eq_u32 s30, 2")
        if inst == 1: A("s_cbranch_scc0 L_noinst")
        if inst == 2: A("s_cbranch_scc1 L_noinst")
        A("s_cselect_b32 s33, s34, s33")
        A(f"v_add_u32 {vr(vT+12)}, s33, v3")
        A("s_cselect_b32 exec_hi, 0, -1")
        A(f"global_load_dwordx4 {vr(vT+16,4)}, {vr(vT+12)}, s[28:29] sc1")
        A("s_mov_b64 exec, -1")
        A("L_noinst:")
    A("s_mov_b64 s[56:57], s[12:13]"); A("s_mov_b32 s58, 0x380000"); A("s_mov_b32 s59, 0x20000")
    wo_loads(0, NE, "a")
    if cpos != "early": tiles(N1, 14); guard()
    A("s_cmp_lt_u32 s32, 28"); A("s_cselect_b32 s44, 0xffff, 0")
    A("s_cmp_eq_u32 s60, s31"); A("s_cselect_b32 s45, s44, 0"); A("s_cmp_eq_u32 s62, 0"); A("s_cselect_b32 s45, s45, 0")
    if "s" in bx: A("s_mov_b32 s45, 0")
    A("s_andn2_b32 s44, s44, s45")
    bl = vX + 16
    for i in range(16): A(f"v_mov_b32 {vr(bl+i)}, 0")
    for nt in range(1, 4): A(f"v_xor_b32 {vr(vRaw+nt)}, {32*nt}, {vr(vWr)}")
    ls4 = vT + 4; ck = vT + 1
    def lse_load():
        A(f"global_load_dwordx4 {vr(ls4,4)}, {vr(vLa)}, s[28:29] sc1")
        A(f"global_load_dword {vr(vT+21)}, {vr(vT+20)}, s[26:27] sc1")
    A(f"s_mov_b32 s36, {f32(1.0 + 1e-5)}")
    A("s_brev_b32 s40, 1"); A("s_brev_b32 s41, 1")
    def weights():
        A(f"v_and_b32 {vr(ck)}, 4, {vr(vT+21)}"); A(f"v_cmp_{'eq' if bph else 'ne'}_u32 s[6:7], 0, {vr(ck)}")
        A(f"v_lshrrev_b32 {vr(ck)}, 20, {vr(vT+21)}"); A(f"v_add_u32 {vr(ck)}, -1, {vr(ck)}")
        A(f"v_max3_u32 {vr(ck)}, {vr(ck)}, {vr(ls4)}, {vr(ls4+1)}"); A(f"v_max3_u32 {vr(ck)}, {vr(ck)}, {vr(ls4+2)}, {vr(ls4+3)}")
        A(f"v_cmp_eq_u32 vcc, -1, {vr(ck)}")
        A(f"v_max3_f32 {vr(vT+2)}, {vr(ls4)}, {vr(ls4+1)}, {vr(ls4+2)}"); A(f"v_max_f32 {vr(vT+2)}, {vr(vT+2)}, {vr(ls4+3)}")
        for i in range(4): A(f"v_sub_f32 {vr(ls4+i)}, {vr(ls4+i)}, {vr(vT+2)}")
        for i in range(4): A(f"v_exp_f32 {vr(ls4+i)}, {vr(ls4+i)}")
        A(f"v_add_f32 {vr(vT+2)}, {vr(ls4)}, {vr(ls4+1)}"); A(f"v_add_f32 {vr(vT+3)}, {vr(ls4+2)}, {vr(ls4+3)}")
        A(f"v_add_f32 {vr(vT+2)}, {vr(vT+2)}, {vr(vT+3)}"); A(f"v_rcp_f32 {vr(vT+2)}, {vr(vT+2)}")
        for i in range(4): A(f"v_mul_f32 {vr(ls4+i)}, {vr(ls4+i)}, {vr(vT+2)}")
    A.c("split-combine weights; vcc != 0: some lse had not arrived yet, redo after publishing")
    if tal >= 0:
        A("s_branch L_tail"); A(".p2align 12")
        if tal: A(f".fill {tal // 4}, 4, 0xbf810000")
        A("L_tail:")
    stamp(2)
    A("s_barrier")
    lse_load()
    if not lw: A("s_cmp_ge_u32 s32, 28"); A("s_cbranch_scc0 L_wob"); A("s_waitcnt vmcnt(0)"); A("L_wob:")
    wo_loads(NE, 8 - NB, "b")
    A(f"s_mov_b32 s35, {-SPIN & 0xffffffff}")
    A("s_cmp_eq_u32 s62, 0")
    A("L_b3:")
    A("s_barrier")
    stamp(5)
    if "E" in skip: A("s_branch L_fin")
    A.c("reduce the four stream waves' o partials, publish as bf16")
    o = vX; ls4 = vT + 4; oa = vX + 32; Dc = vX + 40; ck = vT + 1
    for w_ in range(4): A(f"ds_read_b64 {vr(o+2*w_,2)}, {vr(vOPr)} offset:{2048*w_}")
    for w_ in range(1, 4):
        A(f"s_waitcnt lgkmcnt({3-w_})")
        A(f"v_pk_add_f32 {vr(o,2)}, {vr(o,2)}, {vr(o+2*w_,2)}")
    A(f"v_cvt_pk_bf16_f32 {vr(o)}, {vr(o)}, {vr(o+1)}")
    A(f"v_min_u32 {vr(o)}, -2, {vr(o)}")
    A("s_cbranch_scc0 L_slowpub")
    A(f"global_store_dword {vr(vOst)}, {vr(o)}, s[28:29]")
    A("L_pubd:")
    def ool_pub():
        A("L_slowpub:")
        A(f"global_store_dword {vr(vOst)}, {vr(o)}, s[28:29] sc1")
        A("s_branch L_pubd")
    OOL.append(ool_pub)
    stamp(6)
    A.c("out projection")
    def aset():
        for tt in range(2):
            A(f"global_load_dwordx4 {vr(oa+4*tt,4)}, {vr(vOa)}, s[28:29] offset:{1024*tt} sc1")
    if ap:
        wo_loads(8 - NB, 8, "c")
        seqv = [f"w{i}" for i in range(NE, 8 - NB)] + ["st"] + [f"w{i}" for i in range(8 - NB, 8)]
        def upto(i):
            live = [k for k, x in enumerate(seqv) if x[0] == "w" and int(x[1:]) <= i]
            if live: A(f"s_waitcnt vmcnt({len(seqv) - 1 - max(live)})")
        if lw: A("s_cmp_ge_u32 s32, 28"); A("s_cbranch_scc0 L_wob"); A("s_waitcnt vmcnt(0)"); A("L_wob:")
        A(f"s_waitcnt vmcnt({len(seqv)})")
        weights()
        upto(3)
        if ap == 1: aset(); seqv += ["a", "a"]
        wo_frags((0,))
        if ap >= 2: upto(3 + ap); aset(); seqv += ["a", "a"]
        upto(7); wo_frags((1,))
    else:
        aset()
        A(f"s_waitcnt vmcnt({3 + 8 - NE})")
        weights()
        if o1:
            A("s_waitcnt vmcnt(7)"); wo_frags((0,)); A("s_waitcnt vmcnt(3)"); wo_frags((1,))
        else:
            A("s_waitcnt vmcnt(3)"); wo_frags()
    A("s_cbranch_vccnz L_lretry")
    def ool_l():
        A("L_lretry:")
        lse_load()
        A("s_add_u32 s35, s35, 1")
        A("s_waitcnt vmcnt(0)")
        weights()
        A("s_cbranch_scc1 L_lok")
        A("s_cbranch_vccnz L_lretry")
        A("L_lok:")
        A(f"s_mov_b32 s35, {-SPIN & 0xffffffff}")
        A("s_branch L_apoll0")
    OOL.insert(0, ool_l)
    A("L_apoll0:")
    A("s_bitcmp1_b32 s6, s31"); A("s_cselect_b32 s8, 8192, 0"); A("s_bitcmp1_b32 s6, s60"); A("s_cselect_b32 s9, 8192, 0")
    def achk():
        A(f"v_max3_u32 {vr(ck)}, {vr(oa)}, {vr(oa+1)}, {vr(oa+2)}"); A(f"v_max3_u32 {vr(ck)}, {vr(ck)}, {vr(oa+3)}, {vr(oa+4)}")
        A(f"v_max3_u32 {vr(ck)}, {vr(ck)}, {vr(oa+5)}, {vr(oa+6)}"); A(f"v_max_u32 {vr(ck)}, {vr(ck)}, {vr(oa+7)}")
    if True:
        A("s_waitcnt vmcnt(0)")
        achk()
        A(f"v_cmpx_eq_u32 vcc, -1, {vr(ck)}")
        A("s_cbranch_execz L_adone")
        for _ in range(DA - 1):
            aset()
            for _ in range(GA): A("s_nop 7")
    A("L_apoll:")
    aset()
    A("s_add_u32 s35, s35, 1"); A("s_cselect_b32 s47, -1, -2")
    A(f"s_waitcnt vmcnt({2*(DA-1)})")
    achk()
    A(f"v_cmpx_lt_u32 vcc, s47, {vr(ck)}")
    A("s_cbranch_execnz L_apoll")
    A("L_adone:")
    A("s_mov_b64 exec, -1")
    A("s_waitcnt lgkmcnt(6)" if o1 else "s_waitcnt lgkmcnt(0)")
    A(f"s_mov_b32 s35, {-SPIN & 0xffffffff}")
    stamp(7)
    pp = vT + 16
    def wsum(c):
        return [f"v_mul_f32 {vr(pp+c)}, {vr(Dc+4*c)}, {vr(ls4)}"] + [f"v_fmac_f32 {vr(pp+c)}, {vr(Dc+4*c+i)}, {vr(ls4+i)}" for i in range(1, 4)]
    ws = sum((wsum(c) for c in range(4)), [])
    for k in range(8):
        c, tt = k >> 1, k & 1
        cc_ = "0" if tt == 0 else vr(Dc+4*c, 4)
        A(f"v_mfma_f32_16x16x32_bf16 {vr(Dc+4*c,4)}, {vr(oa+4*tt,4)}, {vr(vW+16*tt+4*c,4)}, {cc_}")
        if o1 and k in (2, 4, 6): A(f"s_waitcnt lgkmcnt({6 - k})")
        if k == 1: A(f"v_add_u32 {vr(vBa)}, s8, {vr(vBa)}"); A(f"v_add_u32 {vr(vBst)}, s9, {vr(vBst)}")
        if 2 <= k <= 3: A(f"s_nop {0 if (o1 and k == 2) else 1}")
        if k >= 4: A(ws.pop(0)); A(ws.pop(0))
    A(f"ds_write2_b32 {vr(vPPa)}, {vr(pp)}, {vr(pp+1)} offset0:0 offset1:16")
    for x in ws: A(x)
    A(f"ds_write2_b32 {vr(vPPa)}, {vr(pp+2)}, {vr(pp+3)} offset0:32 offset1:48")
    A("s_mov_b64 exec, 0xffff")
    A("s_waitcnt lgkmcnt(0)")
    stamp(8)
    A("s_barrier")
    pr = vX
    for w_ in range(4): A(f"ds_read_b128 {vr(pr+4*w_,4)}, {vr(vPPr)} offset:{1024*w_}")
    for w_ in range(1, 4):
        A(f"s_waitcnt lgkmcnt({3-w_})")
        for k in (0, 2): A(f"v_pk_add_f32 {vr(pr+k,2)}, {vr(pr+k,2)}, {vr(pr+4*w_+k,2)}")
    A(f"v_cvt_pk_bf16_f32 {vr(pr)}, {vr(pr)}, {vr(pr+1)}"); A(f"v_cvt_pk_bf16_f32 {vr(pr+1)}, {vr(pr+2)}, {vr(pr+3)}")
    A(f"v_min_u32 {vr(pr)}, -2, {vr(pr)}"); A(f"v_min_u32 {vr(pr+1)}, -2, {vr(pr+1)}")
    A("s_mov_b32 exec_lo, s44")
    A(f"global_store_dwordx2 {vr(vBst)}, {vr(pr,2)}, s[28:29] sc1")
    A("s_mov_b32 exec_lo, s45")
    A(f"global_store_dwordx2 {vr(vBst)}, {vr(pr,2)}, s[28:29]")
    A("s_mov_b64 exec, s[42:43]")
    stamp(9)
    if "a" in bx: A("s_waitcnt vmcnt(0)")
    if "b" in bx: A("s_barrier")
    if PB0: A(f"s_sleep {PB0}")
    def bset():
        for i in range(4):
            A(f"global_load_dwordx4 {vr(bl+4*i,4)}, {vr(vBa)}, s[28:29] offset:{896*i} sc1")
    def bchk():
        A(f"v_max3_u32 {vr(ck)}, {vr(bl)}, {vr(bl+1)}, {vr(bl+2)}")
        for i in range(3, 15, 2): A(f"v_max3_u32 {vr(ck)}, {vr(ck)}, {vr(bl+i)}, {vr(bl+i+1)}")
        A(f"v_max_u32 {vr(ck)}, {vr(ck)}, {vr(bl+15)}")
    if DB > 1:
        bset()
        A("s_waitcnt vmcnt(0)")
        bchk()
        A(f"v_cmpx_eq_u32 vcc, -1, {vr(ck)}")
        A("s_cbranch_execz L_bdone")
        for _ in range(DB - 1):
            bset()
            for _ in range(GB): A("s_nop 7")
    if o2:
        hh_ = vT + 12; s1 = vT + 8
        A("L_bpoll:")
        bset()
        A("s_add_u32 s35, s35, 1"); A("s_cselect_b32 s47, -1, -2")
        A("s_mov_b64 exec, -1")
        A.c("h = x + sum of the 16 partials (matrix core does the unpack and the adds); discarded while a partial is missing")
        for i in range(4):
            A(f"s_waitcnt vmcnt({3-i})")
            A(f"v_mfma_f32_16x16x32_bf16 {vr(hh_,4)}, {vr(vDl,4)}, {vr(bl+4*i,4)}, {vr(vXr if i == 0 else hh_,4)}")
            if i == 0:
                A(f"v_max3_u32 {vr(ck)}, {vr(bl)}, {vr(bl+1)}, {vr(bl+2)}"); A(f"v_max_u32 {vr(ck)}, {vr(ck)}, {vr(bl+3)}")
            else:
                A(f"v_max3_u32 {vr(ck)}, {vr(ck)}, {vr(bl+4*i)}, {vr(bl+4*i+1)}"); A(f"v_max3_u32 {vr(ck)}, {vr(ck)}, {vr(bl+4*i+2)}, {vr(bl+4*i+3)}")
        A(f"v_cmpx_lt_u32 vcc, s47, {vr(ck)}")
        A("s_cbranch_execnz L_bpoll")
        A("s_mov_b64 exec, -1")
        stamp(10)
        A(f"v_mov_b32 {vr(vT)}, {L_HS}")
    else:
        A("L_bpoll:")
        if PB: A(f"s_sleep {PB}")
        bset()
        A("s_add_u32 s35, s35, 1")
        A(f"s_waitcnt vmcnt({4*(DB-1)})")
        bchk()
        A("s_cbranch_scc1 L_bdone")
        A(f"v_cmpx_eq_u32 vcc, -1, {vr(ck)}")
        A("s_cbranch_execnz L_bpoll")
        A("L_bdone:")
        A("s_mov_b64 exec, -1")
        stamp(10)
        A.c("h = x + sum of the 16 partials (matrix core does the unpack and the adds)")
        hh_ = vXr; s1 = vT + 8
        A(f"v_mov_b32 {vr(vT)}, {L_HS}")
        for i in range(4): A(f"v_mfma_f32_16x16x32_bf16 {vr(hh_,4)}, {vr(vDl,4)}, {vr(bl+4*i,4)}, {vr(hh_,4)}")
    for k in (0, 2): A(f"v_pk_fma_f32 {vr(vT+4+k,2)}, {vr(hh_+k,2)}, {vr(vKs,2)}, {vr(vKs,2)} op_sel:[0,0,1] op_sel_hi:[1,0,1]")
    A(f"ds_write_b128 {vr(vHw)}, {vr(hh_,4)}")
    A(f"v_pk_mul_f32 {vr(s1,2)}, {vr(hh_,2)}, {vr(vT+4,2)}")
    A(f"v_pk_fma_f32 {vr(s1,2)}, {vr(hh_+2,2)}, {vr(vT+6,2)}, {vr(s1,2)}")
    A(f"v_add_f32 {vr(s1)}, {vr(s1)}, {vr(s1+1)}")
    for sh in (8, 4, 2, 1):
        A(f"v_add_f32_dpp {vr(s1)}, {vr(s1)}, {vr(s1)} row_ror:{sh} row_mask:0xf bank_mask:0xf")
    A(f"v_add_f32_dpp {vr(s1)}, {vr(s1)}, {vr(s1)} row_bcast:15 row_mask:0xa bank_mask:0xf")
    A("s_mov_b64 exec, s[40:41]")
    A(f"ds_write_b32 {vr(vHsw)}, {vr(s1)}")
    A("s_mov_b64 exec, -1")
    A("s_waitcnt lgkmcnt(0)")
    A("s_barrier")
    A.c("LayerNorm(LayerNorm(h)) = (h - mu) * rsqrt(var*(1+eps) + eps^2), then the token MLP")
    h8 = vT + 4; hv = vT + 1
    A(f"ds_read_b128 {vr(h8,4)}, {vr(vT)}")
    A(f"ds_read_b128 {vr(h8+4,4)}, {vr(vT)} offset:16")
    A(f"ds_read_b32 {vr(hv)}, {vr(vHa)}")
    A(f"ds_read_b64 {vr(vHf,2)}, {vr(vHf)}")
    mu = vT + 2; rs = vT + 3
    A(f"v_mov_b32 {vr(vT+12)}, {f32(1e-10)}")
    A("s_waitcnt lgkmcnt(2)")
    A(f"v_pk_add_f32 {vr(h8,2)}, {vr(h8,2)}, {vr(h8+2,2)}")
    A(f"v_pk_add_f32 {vr(h8+4,2)}, {vr(h8+4,2)}, {vr(h8+6,2)}")
    A(f"v_pk_add_f32 {vr(mu,2)}, {vr(h8,2)}, {vr(h8+4,2)}")
    A(f"v_fma_f32 {vr(rs)}, -{vr(mu)}, {vr(mu)}, {vr(rs)}")
    A(f"v_fma_f32 {vr(rs)}, |{vr(rs)}|, s36, {vr(vT+12)}")
    A(f"v_rsq_f32 {vr(rs)}, {vr(rs)}")
    A("s_waitcnt lgkmcnt(1) vmcnt(0)")
    A(f"v_sub_f32 {vr(hv)}, {vr(hv)}, {vr(mu)}")
    A(f"v_mul_f32 {vr(hv)}, {vr(hv)}, {vr(rs)}")
    A(f"v_cvt_pk_bf16_f32 {vr(hv)}, {vr(hv)}, {vr(hv)}")
    A(f"v_and_b32 {vr(hv)}, s38, {vr(hv)}")
    X_ = vT + 4; Y = vT + 5; t1 = vT + 6; t2 = vT + 7; Am = vT + 8
    A(f"v_fma_f32 {vr(X_)}, {vr(hv)}, {vr(vK1)}, {vr(vK1+1)}"); A(f"v_mul_f32 {vr(X_)}, {vr(X_)}, {vr(hv)}")
    A(f"v_fma_f32 {vr(Y)}, {vr(X_)}, {vr(vK1)}, {vr(vK1+2)}")
    A(f"v_cvt_pk_bf16_f32 {vr(Am)}, {vr(X_)}, {vr(X_)}")
    A(f"v_mul_f32 {vr(Y)}, {vr(Y)}, {vr(hv)}")
    A(f"v_and_b32 {vr(t1)}, s38, {vr(Am)}")
    A(f"v_cvt_pk_bf16_f32 {vr(Am+2)}, {vr(Y)}, {vr(Y)}")
    A(f"v_sub_f32 {vr(X_)}, {vr(X_)}, {vr(t1)}")
    A(f"v_and_b32 {vr(t2)}, s38, {vr(Am+2)}")
    A(f"v_cvt_pk_bf16_f32 {vr(Am+1)}, {vr(X_)}, {vr(X_)}")
    A(f"v_sub_f32 {vr(Y)}, {vr(Y)}, {vr(t2)}")
    A(f"v_or_b32 {vr(Am+1)}, {vr(Am+1)}, {vr(vK1+3)}")
    A(f"v_cvt_pk_bf16_f32 {vr(Am+3)}, {vr(Y)}, {vr(Y)}")
    A(f"v_or_b32 {vr(Am+3)}, {vr(Am+3)}, {vr(vK1+4)}")
    A(f"v_cmp_nge_f32 vcc, s3, |{vr(hv)}|")
    stamp(11)
    Db = [vX, vX + 16, vX + 32]; acc = vT + 12; Dd = vRaw; Nn = vRaw + 8
    def mm(tile):
        A(f"v_mfma_f32_32x32x16_bf16 {vr(Db[tile%3],16)}, {vr(Am,4)}, {vr(vC+4*tile,4)}, 0")
    mm(0)
    A("s_waitcnt lgkmcnt(0)")
    A(f"v_add_f32 {vr(vHf)}, {vr(vHf)}, {vr(vB2)}"); A(f"v_add_f32 {vr(vHf+1)}, {vr(vHf+1)}, {vr(vB2)}")
    A(f"v_lshlrev_b32 {vr(vT)}, 3, v1"); A(f"v_add_u32 {vr(vT)}, {L_Y}, {vr(vT)}")
    if wb:
        A("s_cmp_eq_u32 s30, 0"); A("s_cselect_b32 s33, s32, 0"); A(f"s_cmp_ge_u32 s33, {32 - wb}"); A("s_cbranch_scc0 L_nowb"); A("buffer_wbl2 sc1"); A("L_nowb:")
    if wbt >= 0:
        A("s_cmp_eq_u32 s30, 0"); A("s_cselect_b32 s33, s32, 0"); A("s_cmp_eq_u32 s33, 31")
        def ool_wb():
            A("L_wb:"); A("buffer_wbl2 sc1"); A("s_branch L_wbd")
        OOL.insert(0, ool_wb)
    A("s_cbranch_vccnz L_fb")
    A("L_mlp:")
    A.c("sum_f n_f / (1 + e_f) kept as one fraction N / D")
    if o3:
        def chain(k, D, Np, first):
            if first: return [f"v_pk_add_f32 {vr(Dd+k,2)}, {vr(D+k,2)}, 1.0 op_sel_hi:[1,0]"]
            return [f"v_pk_fma_f32 {vr(D+8+k,2)}, {vr(D+8+k,2)}, {vr(Dd+k,2)}, {vr(Np+k,2)}",
                    f"v_pk_fma_f32 {vr(Dd+k,2)}, {vr(Dd+k,2)}, {vr(D+k,2)}, {vr(Dd+k,2)}",
                    f"v_pk_fma_f32 {vr(Nn+k,2)}, {vr(Np+k,2)}, {vr(D+k,2)}, {vr(D+8+k,2)}"]
        for tile in range(14):
            D = Db[tile % 3]; P = Db[(tile - 1) % 3]
            if tile == wbt: A("s_cbranch_scc1 L_wb"); A("L_wbd:")
            if tile + 1 < 14: mm(tile + 1)
            odd = tile & 1
            if odd:
                if tile == 1: A(f"v_mov_b32 {vr(Nn+6)}, {vr(P+14)}"); A(f"v_mov_b32 {vr(Nn+7)}, {vr(D+14)}")
                else: A(f"v_mov_b32 {vr(P+15)}, {vr(D+14)}")
            for i in range(6): A(f"v_exp_f32 {vr(D+i)}, {vr(D+i)}")
            A(f"v_exp_f32 {vr(P+7 if odd else D+6)}, {vr(D+6)}")
            ch = [chain(k, D, Db[0] + 8 if tile == 1 else Nn, tile == 0) for k in (0, 2, 4)]
            if odd: ch.append(chain(6, P, Nn, tile == 1))
            for st in range(3):
                for c_ in ch:
                    if len(c_) == 3: A(c_[st])
                    elif st == (0 if tile == 0 else 1): A(c_[0])
        for i in (6, 7, 0, 1, 2, 3, 4, 5): A(f"v_rcp_f32 {vr(Dd+i)}, {vr(Dd+i)}")
        A(f"v_mul_f32 {vr(acc+6)}, {vr(Nn+6)}, {vr(Dd+6)}"); A(f"v_fmac_f32 {vr(acc+6)}, {vr(Nn+7)}, {vr(Dd+7)}")
        for k in (0, 2, 4): A(f"v_pk_mul_f32 {vr(acc+k,2)}, {vr(Nn+k,2)}, {vr(Dd+k,2)}")
    else:
        for tile in range(14):
            D = Db[tile % 3]
            if tile + 1 < 14: mm(tile + 1)
            for i in range(7): A(f"v_exp_f32 {vr(D+i)}, {vr(D+i)}")
            if tile == 0:
                for k in range(0, 8, 2): A(f"v_pk_add_f32 {vr(Dd+k,2)}, {vr(D+k,2)}, 1.0 op_sel_hi:[1,0]")
                continue
            Np = Db[0] + 8 if tile == 1 else Nn
            for k in range(0, 8, 2): A(f"v_pk_fma_f32 {vr(D+8+k,2)}, {vr(D+8+k,2)}, {vr(Dd+k,2)}, {vr(Np+k,2)}")
            for k in range(0, 8, 2): A(f"v_pk_fma_f32 {vr(Dd+k,2)}, {vr(Dd+k,2)}, {vr(D+k,2)}, {vr(Dd+k,2)}")
            for k in range(0, 8, 2): A(f"v_pk_fma_f32 {vr(Nn+k,2)}, {vr(Np+k,2)}, {vr(D+k,2)}, {vr(D+8+k,2)}")
        for i in range(7): A(f"v_rcp_f32 {vr(Dd+i)}, {vr(Dd+i)}")
        for k in range(0, 8, 2): A(f"v_pk_mul_f32 {vr(acc+k,2)}, {vr(Nn+k,2)}, {vr(Dd+k,2)}")
    A("L_fbd:")
    A("s_cmp_eq_u32 s30, 1")
    def ool_fb():
        A("L_fb:")
        A.c("direct evaluation (large activations or weights)")
        hh = vRaw; fa = vRaw + 8; w_ = vRaw + 9; b_ = vRaw + 10; u_ = vRaw + 11; x_ = vRaw + 12; p_ = vRaw + 13; al = vRaw + 14
        A(f"v_lshrrev_b32 {vr(fa)}, 5, v0"); A(f"v_mul_u32_u24 {vr(fa)}, 28, {vr(fa)}")
        A("s_mul_i32 s33, s32, 56"); A(f"s_add_u32 s33, s33, {L_H}"); A(f"v_add_u32 {vr(fa)}, s33, {vr(fa)}")
        for i in range(7): A(f"ds_read_b32 {vr(hh+i)}, {vr(fa)} offset:{4*i}")
        A(f"v_and_b32 {vr(fa)}, 31, v0"); A(f"v_lshlrev_b32 {vr(fa)}, 1, {vr(fa)}")
        A("s_mul_i32 s33, s30, 896"); A(f"v_add_u32 {vr(fa)}, s33, {vr(fa)}")
        A(f"s_mov_b32 s33, {f32(BETA)}"); A(f"v_mov_b32 {vr(al)}, {f32(ALPHA)}")
        for i in range(8): A(f"v_mov_b32 {vr(acc+i)}, 0")
        A("s_waitcnt lgkmcnt(0)")
        for i in range(7):
            A(f"v_sub_f32 {vr(hh+i)}, {vr(hh+i)}, {vr(mu)}"); A(f"v_mul_f32 {vr(hh+i)}, {vr(hh+i)}, {vr(rs)}")
            A(f"v_cvt_pk_bf16_f32 {vr(hh+i)}, {vr(hh+i)}, {vr(hh+i)}"); A(f"v_and_b32 {vr(hh+i)}, s38, {vr(hh+i)}")
        A("s_mov_b32 s34, 0")
        A("L_fbl:")
        A(f"global_load_ushort {vr(w_)}, {vr(fa)}, s[16:17]"); A(f"global_load_ushort {vr(b_)}, {vr(fa)}, s[18:19]"); A(f"global_load_ushort {vr(u_)}, {vr(fa)}, s[20:21]")
        A(f"v_add_u32 {vr(fa)}, 64, {vr(fa)}")
        A("s_waitcnt vmcnt(0)")
        for r_ in (w_, b_, u_): A(f"v_lshlrev_b32 {vr(r_)}, 16, {vr(r_)}")
        for i in range(7):
            A(f"v_fma_f32 {vr(x_)}, {vr(w_)}, {vr(hh+i)}, {vr(b_)}")
            A(f"v_mul_f32 {vr(p_)}, {vr(x_)}, {vr(x_)}"); A(f"v_fma_f32 {vr(p_)}, {vr(p_)}, s33, {vr(al)}"); A(f"v_mul_f32 {vr(p_)}, {vr(p_)}, {vr(x_)}")
            A(f"v_exp_f32 {vr(p_)}, {vr(p_)}"); A(f"v_add_f32 {vr(p_)}, 1.0, {vr(p_)}"); A(f"v_rcp_f32 {vr(p_)}, {vr(p_)}")
            A(f"v_mul_f32 {vr(x_)}, {vr(x_)}, {vr(p_)}"); A(f"v_fmac_f32 {vr(acc+i)}, {vr(x_)}, {vr(u_)}")
        A("s_add_u32 s34, s34, 1"); A("s_cmp_lt_u32 s34, 14"); A("s_cbranch_scc1 L_fbl")
        A("s_branch L_fbd")
    OOL.append(ool_fb)
    stamp(12)
    for k in range(4): A(f"v_add_f32_dpp {vr(acc+2*k)}, {vr(acc+2*k)}, {vr(acc+2*k)} row_ror:8 row_mask:0xf bank_mask:0x3")
    for k in range(3): A(f"v_add_f32_dpp {vr(acc+2*k)}, {vr(acc+2*k+1)}, {vr(acc+2*k+1)} row_ror:8 row_mask:0xf bank_mask:0xc")
    for k in range(2): A(f"v_add_f32_dpp {vr(acc+4*k)}, {vr(acc+4*k)}, {vr(acc+4*k)} row_shl:4 row_mask:0xf bank_mask:0x5")
    for k in range(2): A(f"v_add_f32_dpp {vr(acc+4*k)}, {vr(acc+4*k+2)}, {vr(acc+4*k+2)} row_shr:4 row_mask:0xf bank_mask:0xa")
    A(f"v_permlane16_swap_b32 {vr(acc)}, {vr(acc+4)}")
    A(f"v_add_f32 {vr(acc)}, {vr(acc)}, {vr(acc+4)}")
    A(f"v_add_f32_dpp {vr(acc)}, {vr(acc)}, {vr(acc)} quad_perm:[1,0,3,2] row_mask:0xf bank_mask:0xf")
    A(f"v_add_f32_dpp {vr(acc)}, {vr(acc)}, {vr(acc)} quad_perm:[2,3,0,1] row_mask:0xf bank_mask:0xf")
    A(f"ds_write_b32 {vr(vYa)}, {vr(acc)}")
    A("s_mov_b64 exec, 0x7f")
    A("s_waitcnt lgkmcnt(0)")
    A("s_barrier")
    A("s_cbranch_scc0 L_fin")
    A(f"ds_read2_b64 {vr(vT+4,4)}, {vr(vT)} offset0:0 offset1:8")
    A(f"ds_read2_b64 {vr(vT+8,4)}, {vr(vT)} offset0:16 offset1:24")
    A("s_waitcnt lgkmcnt(1)")
    A(f"v_pk_add_f32 {vr(vHf,2)}, {vr(vHf,2)}, {vr(vT+4,2)}"); A(f"v_pk_add_f32 {vr(vHf,2)}, {vr(vHf,2)}, {vr(vT+6,2)}")
    A("s_waitcnt lgkmcnt(0)")
    A(f"v_pk_add_f32 {vr(vHf,2)}, {vr(vHf,2)}, {vr(vT+8,2)}"); A(f"v_pk_add_f32 {vr(vHf,2)}, {vr(vHf,2)}, {vr(vT+10,2)}")
    A(f"v_cvt_pk_bf16_f32 {vr(vT+2)}, {vr(vHf)}, {vr(vHf+1)}")
    A(f"global_store_dword {vr(vOut)}, {vr(vT+2)}, s[24:25] {outpol}")
    A("L_fin:")
    stamp(13)
    if amp:
        A(f"s_cmp_eq_u32 s30, {amp[0]}"); A("s_cbranch_scc0 L_end")
        A("s_waitcnt lgkmcnt(0)")
        A(f"s_sub_u32 s33, s{64+2*amp[1]}, s{64+2*amp[2]}")
        if amp[3] < 0: A("s_sub_u32 s33, 3000, s33")
        A("s_min_u32 s33, s33, 5000"); A("s_lshl_b32 s33, s33, 3"); A("s_add_u32 s33, s33, 4000")
        A("L_amp:")
        A("s_memrealtime s[34:35]"); A("s_waitcnt lgkmcnt(0)"); A("s_sub_u32 s34, s34, s64")
        A("s_cmp_lt_u32 s34, s33"); A("s_cbranch_scc1 L_amp")
    if gamp:
        A(f"s_cmp_eq_u32 s30, {gamp[3] if len(gamp) > 3 else 1}"); A("s_cbranch_scc0 L_end")
        A("s_waitcnt lgkmcnt(0)")
        A(f"s_mov_b32 s36, s{64+2*gamp[0]}")
        A(f"s_not_b32 s37, s{64+2*gamp[1]}" if gamp[2] == "min" else f"s_mov_b32 s37, s{64+2*gamp[1]}")
        A("s_atomic_umax s36, s[26:27], 192"); A("s_atomic_umax s37, s[26:27], 196"); A("s_waitcnt lgkmcnt(0)")
        A("s_cmp_eq_u32 s2, 0"); A("s_cbranch_scc0 L_end")
        A("L_g1:")
        A("s_memrealtime s[34:35]"); A("s_waitcnt lgkmcnt(0)"); A("s_sub_u32 s34, s34, s64")
        A("s_cmp_lt_u32 s34, 3800"); A("s_cbranch_scc1 L_g1")
        A("s_load_dwordx2 s[36:37], s[26:27], 192 glc"); A("s_waitcnt lgkmcnt(0)")
        if gamp[2] == "min": A("s_not_b32 s37, s37")
        A("s_sub_u32 s33, s36, s37"); A("s_min_u32 s33, s33, 2000"); A(f"s_lshl_b32 s33, s33, {gamp[4] if len(gamp) > 4 else 3}"); A("s_add_u32 s33, s33, 4000")
        A("L_g2:")
        A("s_memrealtime s[34:35]"); A("s_waitcnt lgkmcnt(0)"); A("s_sub_u32 s34, s34, s64")
        A("s_cmp_lt_u32 s34, s33"); A("s_cbranch_scc1 L_g2")
    if rnd:
        A("s_cmp_eq_u32 s30, 0"); A("s_cselect_b32 s33, s2, 1"); A("s_cmp_eq_u32 s33, 0"); A("s_cbranch_scc0 L_end")
        A("s_memrealtime s[64:65]"); A("s_waitcnt lgkmcnt(0)")
        A("s_lshr_b32 s33, s64, 2"); A("s_mul_i32 s33, s33, 0x9e3779b1"); A("s_lshr_b32 s34, s33, 15"); A("s_xor_b32 s33, s33, s34"); A("s_mul_i32 s33, s33, 0x85ebca6b")
        A("s_lshr_b32 s33, s33, 19")
        A("L_rnd:")
        A("s_memrealtime s[34:35]"); A("s_waitcnt lgkmcnt(0)"); A("s_sub_u32 s34, s34, s64")
        A("s_cmp_lt_u32 s34, s33"); A("s_cbranch_scc1 L_rnd")
    dump_stamps(15)
    A("L_end:")
    A("s_endpgm")
    for f in OOL: f()
    A(".fill 1024, 4, 0xbf810000")

    body, nn = fix_hazards(A.L)
    if a8:
        import subprocess, tempfile, os
        i0 = body.index("L_tail:"); i1 = body.index("L_end:")
        probe = ['.amdgcn_target "amdgcn-amd-amdhsa--gfx950"', ".text"]
        for i, l in enumerate(body):
            if i0 <= i <= i1: probe.append(f"P_{i}:")
            probe.append(l)
        d = tempfile.mkdtemp(); open(d + "/p.s", "w").write("\n".join(probe) + "\n")
        subprocess.run(["clang", "-x", "assembler", "-target", "amdgcn-amd-amdhsa", "-mcpu=gfx950", "-c", d + "/p.s", "-o", d + "/p.o"], check=True)
        sym = subprocess.run(["llvm-objdump", "-t", d + "/p.o"], capture_output=True, text=True).stdout
        ad = {int(l.split()[-1][2:]): int(l.split()[0], 16) for l in sym.splitlines() if l.split() and l.split()[-1].startswith("P_")}
        sizes = [0] * len(body)
        for i in range(i0, i1): sizes[i] = ad[i + 1] - ad[i]
        st = body.index(a8[0] + ":")
        body, n8 = align8(body, a8[0], a8[1], sizes, ad[st] % 8)
    head = [l.rstrip("\n") for l in open("header.txt")]
    head.append(f"; @launch grid=(256,1,1) block=(512,1,1) lds={L_END}")
    head += ['.amdgcn_target "amdgcn-amd-amdhsa--gfx950"', ".text"] + ([".p2align 12"] if al else []) + ([f".fill {pad // 4}, 4, 0xbf810000"] if pad else []) + [f".globl {NAME}", ".p2align 8", f".type {NAME},@function"]
    tail = ['.section .rodata,"a"'] + ([f".fill {rpad // 4}, 4, 0"] if rpad else []) + [".p2align 6", f".amdhsa_kernel {NAME}",
            "  .amdhsa_next_free_vgpr 256", "  .amdhsa_next_free_sgpr 96", "  .amdhsa_accum_offset 256",
            "  .amdhsa_group_segment_fixed_size 0", "  .amdhsa_kernarg_size 104", "  .amdhsa_user_sgpr_count 2",
            "  .amdhsa_user_sgpr_kernarg_segment_ptr 1", "  .amdhsa_system_sgpr_workgroup_id_x 1",
            "  .amdhsa_float_denorm_mode_32 3", ".end_amdhsa_kernel"]
    return "\n".join(head + body + tail) + "\n"

if __name__ == "__main__":
    kw = eval("dict(" + (sys.argv[2] if len(sys.argv) > 2 else "") + ")")
    open(sys.argv[1], "w").write(gen(**kw))
```

```python
import sys, struct, math
from asmlib import *

NAME = "sequential_preLN__sliding_block_cached__mixer_token_mlp__decode_kernel"
def f32(x): return "0x%08x" % struct.unpack("<I", struct.pack("<f", x))[0]

L_K = 0; L_WQ = 131072; L_Q = 145408; L_STAT = 146432; L_OP = 146688; L_PP = 154880; L_H = 158976; L_HS = 161024; L_Y = 161088
L_END = 161344
L_X = L_OP
W_Q = 0
W_L = 0xC0000
W_O = 0x40000
W_B = 0x80000
W_ALT = 0x100000
W_STAMP = 0x200000
SPIN = 0x20000
STAMP_VIEW = [("S", slice(4, 8), [0, 8, 6, 7, 1, 2, 3, 4, 5]), ("T0", 0, [0, 1, 3, 4, 14]), ("T3L", 3, [0, 1, 4], slice(224, 256)),
              ("T1", 1, [0, 4, 2, 5, 6, 7, 8, 9, 10, 11, 12, 13]), ("Tall", slice(0, 4), [5, 6, 7, 8, 9, 10, 11, 12, 13])]
ALPHA = -2.0 * math.sqrt(2.0 / math.pi) * math.log2(math.e)
BETA = ALPHA * 0.044715

DOC = """
; ---------------------------------------------------------------------------------------------------------------------
; One launch, 256 workgroups (one per CU), 8 waves each.  g = workgroup id, kvh = g & 7, r = g >> 3, b = r >> 2, s = r & 3.
;   waves 4-7 (stream): K (LDS-DMA) and V (registers) for 256 of the last 1024 keys of (b, kvh); QK^T, true-max softmax
;                       over those keys, P.V with a delta-structured A operand so V is used as loaded.
;   waves 0-3 (tail):   q projection tile, MLP operand preparation, then out projection, LayerNorms and the token MLP.
; Hand-offs between workgroups go through d_ws.  Every slot is set to 0xffffffff in this launch before anyone looks at
; it (ordered through counters in the zeroed d_debug and through the q hand-off itself); data never takes that value.
;   q    : 64 columns x 112 rows per workgroup, LN(x) applied after the product: rstd*(x.W - mean*colsum(W))
;   o,lse: per split, normalised by the split's own sum; combined with softmax(lse) after the out-projection product
;   rows : 16 partial rows per batch, summed by the workgroups that run the MLP for that batch
; q, o and lse stay inside one group (same kvh).  They use plain stores only when every member has checked that it sits
; on the XCD whose L2 holds the cleared slots; otherwise the group switches to write-through stores in a second copy.
; LN(LN(h)) = (h - mean) * rsqrt(var*(1+eps) + eps^2) exactly.  gelu_tanh(u) = u / (1 + 2^z), z = a*u + b*u^3, which is
; a cubic in hn evaluated on the matrix core with hi/lo bf16 operands; sum_f n_f/(1+e_f) is carried as one fraction.
; A bound computed from w1, b1, w2 sends a wave to the plain per-element evaluation when that form could overflow.
; ---------------------------------------------------------------------------------------------------------------------
""".strip("\n").split("\n")

def gen(W=8, QPOS=4, QD=2, FT=-1, stamps=False, force_slow=False, pol="nt", vpol=None, qpol="nt", opol="nt", opol2="nt", spol="", skip="",
        pref=True, opos="mid", qx=16, force_fb=False, touch=False, amp=None, DA=1, DB=1, rotm=1, PB=0, NL=1, EP=0, inst=0, spf=2, WE=0, WEN=64, WE0=8, WEM=0x55, NLD=4, LD0=8, qpace=0, prio=0, QT=0, GA=0, GB=0, cpos="early", N1=8, c1=True, NE=0, o1=True, o2=True, o3=True, ap=2, NB=0, pos='r1 j1 r3 j0 s0 r2 s1 t0 t1', rot='r3=c', wb=0, wbs=0, ks=0, b0=0, b0n=0, rnd=0, cnt=False, rpad=0, bph=0, a8=('L_mlp', 'L_fbd'), wbt=5, wbm=0, tl_=0, tlw=2, gamp=None, wq1=0, wbr=31, lw=True, pad=0, al=1, tal=0, warm=0, outpol='', hack="", bx="ab", PB0=0):
    A = Asm()
    c1_ = c1
    OOL = []
    def stamp(i):
        if stamps or (amp and i in (amp[1], amp[2], 0)) or (gamp and i in (gamp[0], gamp[1], 0)): A(f"s_memrealtime s[{64+2*i}:{65+2*i}]")
    def dump_stamps(nst):
        if not stamps: return
        A("s_waitcnt lgkmcnt(0) vmcnt(0)")
        A("s_lshl_b32 s94, s2, 3"); A("s_add_u32 s94, s94, s30"); A("s_lshl_b32 s94, s94, 6"); A(f"s_add_u32 s94, s94, {W_STAMP}")
        A("s_mov_b64 exec, 1")
        A("v_mov_b32 v4, s94")
        for i in range(nst):
            A(f"v_mov_b32 v5, s{64+2*i}")
            A(f"global_store_dword v4, v5, s[28:29] offset:{4*i}")
        A("s_getreg_b32 s94, hwreg(HW_REG_XCC_ID, 0, 4)"); A("v_mov_b32 v5, s94")
        A("global_store_dword v4, v5, s[28:29] offset:60")
        A("s_waitcnt vmcnt(0)")

    def brow(dst, b): A(f"s_lshl_b32 {dst}, {b}, 15")
    BH = 16384
    A(f"{NAME}:")
    stamp(0)
    A("s_load_dwordx16 s[4:19], s[0:1], 0" if ks != 2 else "s_load_dwordx8 s[4:11], s[0:1], 0")
    if not ks or stamps:
        A("s_load_dwordx8 s[20:27], s[0:1], 64")
        A("s_load_dwordx2 s[28:29], s[0:1], 96")
    A("v_lshrrev_b32 v1, 6, v0")
    A("s_lshr_b32 s32, s2, 3")
    A("v_readfirstlane_b32 s30, v1")
    A("s_cmp_ge_u32 s32, 32")
    A("s_cbranch_scc1 L_end")
    A("v_and_b32 v0, 63, v0")
    A("s_and_b32 s31, s2, 7")
    A("v_lshlrev_b32 v3, 4, v0")
    A("s_cmp_lt_u32 s30, 4")
    A("s_cbranch_scc1 L_T")

    A.c("================ stream waves")
    V = Alloc(4, 256)
    vK = V(8); vVo = V(8); vKA = V(4); vM = V(4); vT = V(8); vOPa = V(2); vQA = V(); vSTw = V(); vSTr = V()
    vS = V(16); vAcc = vK; vQ = V(32); vKF = V(32); vVv = V(128)
    vA = vQ
    assert vKF == vQ + 32
    P = {nm: 10 + k for k, nm in enumerate(pos.split())}
    SRC = dict(a=("s2", 3), b=("s2", 4), c=("s2", 5), d=("s2", 6), e=("s2", 7), x=("s2", 0), y=("s2", 1), z=("s2", 2), p=("s30", 0), q=("s30", 1))
    R = {k: v for k, v in (x.split("=") for x in rot.split())}
    def gaddr(i): return sum(((i >> k) & 1) << P[f"r{k+1}"] for k in range(3))
    def X(i): return ((8*(i & 1) + (i >> 1)) << 4) | gaddr(i)
    def parity(dst, key):
        for n_, ch in enumerate(R[key]):
            reg, bit = SRC[ch]
            if n_ == 0: A(f"s_bfe_u32 {dst}, {reg}, {hex(0x10000 | bit)}")
            else: A(f"s_bfe_u32 s39, {reg}, {hex(0x10000 | bit)}"); A(f"s_xor_b32 {dst}, {dst}, s39")
    A("s_lshr_b32 s34, s2, 5"); A("s_lshl3_add_u32 s34, s34, s31"); A("s_lshl2_add_u32 s34, s34, 3"); A("s_lshl_b32 s40, s34, 19")
    def field(reg, bit, n0, n1):
        if P[n1] == P[n0] + 1:
            A(f"s_bfe_u32 s35, {reg}, {hex(0x20000 | bit)}"); A(f"s_lshl_b32 s35, s35, {P[n0]}"); A("s_or_b32 s40, s40, s35")
        else:
            for k, nm in enumerate((n0, n1)):
                A(f"s_bitcmp1_b32 {reg}, {bit + k}"); A(f"s_cselect_b32 s35, {1 << P[nm]}, 0"); A("s_or_b32 s40, s40, s35")
    field("s2", 3, "s0", "s1"); field("s30", 0, "j0", "j1")
    for nm in ("t0", "t1"):
        if nm in R: parity("s35", nm); A(f"s_lshl_b32 s35, s35, {P[nm]}"); A("s_or_b32 s40, s40, s35")
    tlx = [((tl & 1) << P["t0"]) | ((tl >> 1) << P["t1"]) for tl in range(4)]
    A("s_sub_u32 s33, s30, 4")
    A("s_lshl_b32 s37, s33, 15")
    A("s_mov_b32 s44, s37"); A("s_mov_b32 s38, 0"); A("s_mov_b32 s60, 0")
    for k in range(3):
        if f"r{k+1}" in R:
            parity("s35", f"r{k+1}")
            A(f"s_mul_i32 s36, s35, {X(1 << k)}"); A("s_or_b32 s38, s38, s36")
            A(f"s_lshl_b32 s36, s35, {10 + k}"); A("s_or_b32 s44, s44, s36")
            if k: A(f"s_lshl{k-1}_add_u32 s60, s35, s60" if k > 1 else "s_add_u32 s60, s35, s60")
    A(f"v_and_b32 {vr(vT)}, 32, v0"); A(f"v_lshlrev_b32 {vr(vT)}, 1, {vr(vT)}")
    A(f"v_xor_b32 {vr(vT)}, {vr(vT)}, v3")
    A(f"v_xor_b32 {vr(vK)}, s38, {vr(vT)}")
    if prio == 2: A("s_setprio 3")
    A("s_brev_b32 s54, 16"); A("s_mov_b32 s55, 0x20000")
    A("s_mov_b32 m0, s44")
    A("s_waitcnt lgkmcnt(0)")
    A("s_mov_b64 s[52:53], s[6:7]")
    stamp(8)
    issued = [0]
    def throttle():
        if WE and WE0 <= issued[0] < WE0 + WEN:
            A(f"s_cbranch_vccz L_th{issued[0]}"); A(f"s_waitcnt vmcnt({abs(WE)-1})"); A(f"L_th{issued[0]}:")
        if issued[0] >= W: A(f"s_waitcnt vmcnt({W-1})")
        issued[0] += 1
    def kload(tl, i):
        if tl or i: A(f"s_xor_b32 m0, s44, {(tl << 13) | (i << 10)}")
        if tl == 0 and i: A(f"v_xor_b32 {vr(vK+i)}, {X(i)}, {vr(vK)}")
        throttle()
        A(f"buffer_load_dwordx4 {vr(vK+i)}, s[52:55], s{40+tl} offen {pol} lds")
    for i in range(8):
        if b0 and i == b0n: A("s_barrier")
        kload(0, i)
    A("s_branch L_S2")

    A("L_T:")
    A.c("================ tail waves")
    if ks == 2: A("s_load_dwordx8 s[12:19], s[0:1], 32")
    if ks and not stamps:
        A("s_load_dwordx8 s[20:27], s[0:1], 64")
        A("s_load_dwordx2 s[28:29], s[0:1], 96")
    V = Alloc(4, 256)
    vC = V(56); vW = V(32); vRaw = V(32); vX = V(56); tT = V(24)
    vXr = V(4); vDl = V(4); vQs = V(8); vG = V(4); vK1 = V(5); vHa = V(); vKs = V(2); vHf = V(2)
    vYa = V(); vLa = V(); vOa = V(); vPPa = V(); vBst = V(); vOst = V(); vLst = V(); vLse = V()
    vBa = V(); vHw = V(); vHsw = V(); vOut = V(); vB2 = V(); vQa = V(); vOPr = V(); vPPr = V(); vWa = V(2); vQw = V(); vWr = V()
    assert vRaw == vW + 32
    raw = vRaw if cpos == "early" else vX + 32
    def prep_loads():
        t = tT + 14
        A.c("MLP weights, residual row piece, b2")
        if c1_:
            A("s_mul_i32 s33, s30, 896")
            A(f"v_mul_u32_u24 {vr(t)}, 12, v0"); A(f"v_add_u32 {vr(t)}, {508 - 384}, {vr(t)}")
            A("v_cmp_lt_u32 vcc, 31, v0"); A(f"v_cndmask_b32 {vr(t)}, v3, {vr(t)}, vcc"); A(f"v_add_u32 {vr(t)}, s33, {vr(t)}")
            for k, sp in enumerate((16, 18, 20)):
                A(f"global_load_dwordx4 {vr(raw+8*k,4)}, {vr(t)}, s[{sp}:{sp+1}] {spol}")
        else:
            A(f"v_and_b32 {vr(t)}, 31, v0")
            A("s_mul_i32 s33, s30, 896")
            A(f"v_lshlrev_b32 {vr(t+1)}, 4, {vr(t)}"); A(f"v_add_u32 {vr(t+1)}, s33, {vr(t+1)}")
            A(f"v_lshlrev_b32 {vr(t+2)}, 3, {vr(t)}"); A(f"v_add_u32 {vr(t+2)}, s33, {vr(t+2)}")
            A(f"v_lshlrev_b32 {vr(t+3)}, 2, {vr(t)}"); A(f"v_add_u32 {vr(t+3)}, s33, {vr(t+3)}")
            for k, sp in enumerate((16, 18, 20)):
                A(f"global_load_dwordx4 {vr(raw+8*k,4)}, {vr(t+1)}, s[{sp}:{sp+1}] {spol}")
                A(f"global_load_dwordx2 {vr(raw+8*k+4,2)}, {vr(t+2)}, s[{sp}:{sp+1}] offset:512 {spol}")
                A(f"global_load_dword {vr(raw+8*k+6)}, {vr(t+3)}, s[{sp}:{sp+1}] offset:768 {spol}")
        A(f"v_min_u32 {vr(t)}, 13, v1"); A(f"v_and_b32 {vr(t+1)}, 1, v2")
        A("s_mul_i32 s33, s31, 896"); A("s_mul_i32 s34, s30, 224"); A("s_add_u32 s33, s33, s34")
        A(f"v_lshlrev_b32 {vr(t)}, 4, {vr(t)}"); A(f"v_lshl_add_u32 {vr(t)}, {vr(t+1)}, 3, {vr(t)}"); A(f"v_add_u32 {vr(t)}, s33, {vr(t)}")
        A(f"global_load_dwordx2 {vr(vXr+2,2)}, {vr(t)}, s[4:5] {spol}")
        A(f"v_mov_b32 {vr(t+2)}, 0")
        A(f"global_load_ushort {vr(vB2)}, {vr(t+2)}, s[22:23] {spol}")
    A("v_and_b32 v1, 15, v0")
    A("v_lshrrev_b32 v2, 4, v0")
    A("s_lshl_b32 s63, s31, 2")
    A(f"v_mov_b32 {vr(vQw)}, 0")
    if cnt: A("s_mov_b32 s90, 0"); A("s_mov_b32 s91, 0"); A("s_mov_b32 s92, 0")
    A("s_mov_b64 s[40:41], 0")
    if b0: A("s_mov_b32 s46, 0")
    if "T" in skip:
        A("s_waitcnt lgkmcnt(0)"); A("s_barrier"); A("s_barrier"); A("s_barrier")
        if NL: A("s_barrier")
        A("s_branch L_b3")
    A("s_cmp_eq_u32 s30, 0"); A("s_cbranch_scc1 L_T0")
    A("s_cmp_eq_u32 s30, 3"); A("s_cbranch_scc1 L_T3")
    if spf:
        A("s_cmp_eq_u32 s30, 1"); A("s_cbranch_scc1 L_T1")
    if pref:
        if not spf: A("s_cmp_eq_u32 s30, 2"); A("s_cbranch_scc0 L_prepw")
        A.c("T2: pull the code into this XCD's L2")
        A("s_getpc_b64 s[34:35]")
        A("L_pc:")
        A(f"s_sub_u32 s34, s34, L_pc-{NAME}"); A("s_subb_u32 s35, s35, 0")
        A("s_mul_i32 s33, s32, 640")
        A(f"v_min_u32 {vr(tT)}, 9, v0"); A(f"v_lshlrev_b32 {vr(tT)}, 6, {vr(tT)}"); A(f"v_add_u32 {vr(tT)}, s33, {vr(tT)}")
        A(f"global_load_dword {vr(tT+2)}, {vr(tT)}, s[34:35]")
    A("s_branch L_prepw")
    if spf:
        A("L_T1:")
        A.c("T1: pull 14 rows of the wq column block that r=28..31 read (and of the last block) into L2")
        A("s_mul_i32 s33, s32, 14*8192"); A("s_lshl_b32 s34, s31, 10"); A("s_add_u32 s33, s33, s34"); A("s_addk_i32 s33, 384")
        A(f"v_min_u32 {vr(tT)}, 13, v1"); A(f"v_lshlrev_b32 {vr(tT)}, 13, {vr(tT)}")
        A(f"v_and_b32 {vr(tT+1)}, 1, v2"); A(f"v_lshl_add_u32 {vr(tT)}, {vr(tT+1)}, 6, {vr(tT)}")
        A(f"v_lshrrev_b32 {vr(tT+1)}, 1, v2"); A(f"v_lshl_add_u32 {vr(tT)}, {vr(tT+1)}, 9, {vr(tT)}")
        A(f"v_add_u32 {vr(tT)}, s33, {vr(tT)}")
        A("s_cmp_eq_u32 s31, 7"); A("s_cselect_b32 exec_hi, -1, 0")
        if spf == 2: A("s_and_b32 exec_hi, exec_hi, 0xffff"); A("s_mov_b32 exec_lo, 0xffff")
        A("s_waitcnt lgkmcnt(0)")
        A(f"global_load_dword {vr(tT+2)}, {vr(tT)}, s[10:11]")
        A("s_mov_b64 exec, -1")
        A("s_branch L_prepw")
    A("L_T3:")
    A.c(f"T3 of {NLD} workgroup(s) per group: clear a share of the group's q and lse slots, then count in")
    per = 4 // NLD
    A(f"s_sub_u32 s36, s32, {LD0}"); A(f"s_cmp_lt_u32 s36, {NLD}"); A("s_cbranch_scc0 L_prepw")
    for i in range(4): A(f"v_mov_b32 {vr(tT+4+i)}, -1")
    A("s_getreg_b32 s34, hwreg(HW_REG_XCC_ID, 0, 4)")
    if per > 1: A(f"s_mul_i32 s34, s34, {0x1111 & ((1 << (4*per)) - 1)}"); A(f"s_mul_i32 s36, s36, {per}")
    A("s_lshl_b32 s33, s36, 2"); A("s_lshl_b32 s34, s34, s33"); A(f"s_bitset1_b32 s34, {16 + per.bit_length() - 1}")
    A("s_lshl2_add_u32 s33, s31, s36"); A("s_lshl_b32 s35, s33, 13"); A(f"v_add_u32 {vr(tT)}, s35, v3")
    A("s_lshl_b32 s33, s33, 6"); A(f"s_add_u32 s33, s33, {W_L}")
    A(f"v_add_u32 {vr(tT+2)}, s33, v3")
    A("s_waitcnt lgkmcnt(0)")
    for k in range(2*per):
        for i in range(4): A(f"global_store_dwordx4 {vr(tT)}, {vr(tT+4,4)}, s[28:29] offset:{1024*i}")
        if k < 2*per - 1: A(f"v_add_u32 {vr(tT)}, 4096, {vr(tT)}")
    A(f"s_mov_b64 exec, {(1 << (4*per)) - 1}")
    A(f"global_store_dwordx4 {vr(tT+2)}, {vr(tT+4,4)}, s[28:29]")
    A("s_mov_b64 exec, -1")
    if b0:
        A("s_mov_b32 s46, s34")
    else:
        A("s_waitcnt vmcnt(0)")
        A("s_atomic_add s34, s[26:27], s63")
        stamp(1)
    A("s_branch L_prepw")
    A("L_T0:")
    A.c("T0: x into LDS, clear this workgroup's share of the hand-off slots (acknowledged before q is published)")
    A(f"v_lshrrev_b32 {vr(vQw)}, 3, v0"); A(f"v_lshlrev_b32 {vr(vQw)}, 13, {vr(vQw)}"); A(f"v_and_b32 {vr(tT)}, 0x70, v3"); A(f"v_or_b32 {vr(vQw)}, {vr(vQw)}, {vr(tT)}")
    A(f"s_xor_b32 s34, s32, {qx}"); A("s_lshr_b32 s35, s34, 2"); A("s_lshl3_add_u32 s50, s31, s35"); A("s_lshl_b32 s50, s50, 7")
    A("s_and_b32 s48, s34, 3"); A("s_mul_i32 s34, s48, 112*8192"); A("s_add_u32 s50, s50, s34")
    qstep = 0x10000
    if "8" in hack:
        A(f"v_lshlrev_b32 {vr(vQw)}, 13, v2"); A(f"v_lshl_add_u32 {vr(vQw)}, v1, 4, {vr(vQw)}")
        A("s_lshr_b32 s35, s32, 3"); A("s_lshl2_add_u32 s50, s31, s35"); A("s_lshl_b32 s50, s50, 8")
        A("s_and_b32 s34, s32, 7"); A("s_mul_i32 s34, s34, 56*8192"); A("s_add_u32 s50, s50, s34"); qstep = 0x8000
    if "C" in hack:
        A(f"v_mov_b32 {vr(vQw)}, v3"); A("s_mul_i32 s50, s2, 14336"); qstep = 1024
    A("s_movk_i32 s58, 7168"); A("s_mov_b32 s59, 0x20000"); A("s_movk_i32 s35, 4096")
    A(f"s_mov_b32 m0, {L_X}")
    A("s_lshl_b32 s33, s31, 15"); A("s_lshl_b32 s34, s32, 10"); A("s_add_u32 s33, s33, s34"); A(f"s_add_u32 s33, s33, {W_O}")
    A(f"v_add_u32 {vr(tT)}, s33, v3")
    brow("s33", "s31"); A("s_min_u32 s34, s32, 27"); A("s_lshl_b32 s34, s34, 9"); A("s_add_u32 s33, s33, s34"); A(f"s_add_u32 s33, s33, {W_B}")
    A("s_cmp_ge_u32 s32, 14"); A(f"s_cselect_b32 s34, {BH - 7168}, 0"); A("s_add_u32 s40, s33, s34")
    A("s_getreg_b32 s34, hwreg(HW_REG_XCC_ID, 2, 1)")
    if bph: A("s_xor_b32 s34, s34, 1")
    A("s_lshl_b32 s34, s34, 13"); A("s_add_u32 s33, s40, s34")
    A(f"v_add_u32 {vr(tT+1)}, s33, v3")
    for i in range(4): A(f"v_mov_b32 {vr(vW+i)}, -1")
    A("s_waitcnt lgkmcnt(0)")
    A("s_mov_b64 s[56:57], s[4:5]")
    for t in range(4 if "x" not in hack else 0): A(f"buffer_load_dwordx4 v3, s[56:59], 0 offen offset:{1024*t} {spol} lds")
    A(f"s_mov_b32 m0, {L_X + 4096}")
    for t in range(3 if "x" not in hack else 0): A(f"buffer_load_dwordx4 v3, s[56:59], s35 offen offset:{1024*t} {spol} lds")
    A(f"global_store_dwordx4 {vr(tT)}, {vr(vW,4)}, s[28:29]")
    A.c("r = 28..31 repeat the share of r = 27 with one lane")
    A("s_cmp_lt_u32 s32, 28"); A("s_cselect_b32 exec_lo, -1, 1"); A("s_mov_b32 exec_hi, 0")
    A(f"global_store_dwordx4 {vr(tT+1)}, {vr(vW,4)}, s[28:29] sc1")
    A("s_mov_b64 exec, -1")
    A("s_branch L_prepw")

    A("L_S2:")
    A("v_and_b32 v1, 15, v0")
    A("v_lshrrev_b32 v2, 4, v0")
    for tl in range(1, 4): A(f"s_xor_b32 s{40+tl}, s40, {tlx[tl]}")
    A("s_mov_b64 s[56:57], s[8:9]"); A("s_mov_b32 s58, s54"); A("s_mov_b32 s59, 0x20000")
    if "d" in R: parity("s61", "d"); A("s_lshl_b32 s61, s61, 8")
    else: A("s_mov_b32 s61, 0")
    A(f"v_and_b32 {vr(vT)}, 1, v2"); A(f"v_lshlrev_b32 {vr(vT)}, 9, {vr(vT)}"); A(f"v_lshl_add_u32 {vr(vT)}, v1, 4, {vr(vT)}")
    A(f"v_lshrrev_b32 {vr(vT+1)}, 1, v2"); A(f"v_lshl_add_u32 {vr(vT)}, {vr(vT+1)}, {P['r1']}, {vr(vT)}")
    A(f"s_and_b32 s35, s38, {gaddr(6)}"); A("s_or_b32 s35, s35, s61")
    A(f"v_or_b32 {vr(vVo)}, s35, {vr(vT)}")
    for e in range(1, 8): A(f"v_xor_b32 {vr(vVo+e)}, {gaddr(e & 6) | ((e & 1) << 8)}, {vr(vVo)}")
    A(f"v_xor_b32 {vr(vT+3)}, s60, v1")
    A(f"v_and_b32 {vr(vT)}, 3, {vr(vT+3)}"); A(f"v_lshrrev_b32 {vr(vT+1)}, 2, v1")
    A(f"v_lshl_add_u32 {vr(vT+2)}, {vr(vT)}, 2, {vr(vT+1)}")
    A(f"v_xor_b32 {vr(vT+3)}, {vr(vT+3)}, v2")
    A(f"v_lshlrev_b32 {vr(vT+2)}, 9, {vr(vT+2)}"); A(f"v_add_u32 {vr(vT+2)}, s37, {vr(vT+2)}")
    A(f"v_lshl_add_u32 {vr(vKA)}, {vr(vT+3)}, 4, {vr(vT+2)}")
    for t in range(1, 4): A(f"v_xor_b32 {vr(vKA+t)}, {64*t}, {vr(vKA)}")
    A(f"v_lshrrev_b32 {vr(vT)}, 3, v1")
    A(f"v_lshlrev_b32 {vr(vQA)}, 9, {vr(vT)}"); A(f"v_lshl_add_u32 {vr(vQA)}, v2, 4, {vr(vQA)}")
    A(f"v_add_u32 {vr(vQA)}, {L_Q}, {vr(vQA)}")
    A(f"v_lshlrev_b32 {vr(vSTr)}, 5, {vr(vT)}"); A(f"v_add_u32 {vr(vSTr)}, {L_STAT}, {vr(vSTr)}")
    A("s_lshl_b32 s35, s33, 2"); A(f"v_add_u32 {vr(vSTw)}, s35, {vr(vSTr)}")
    def delta(dst, val, t0):
        A(f"v_and_b32 {vr(t0)}, 16, v3")
        A(f"v_mov_b32 {vr(t0+1)}, {val}"); A(f"v_lshlrev_b32 {vr(t0+1)}, {vr(t0)}, {vr(t0+1)}")
        A(f"v_bfe_u32 {vr(t0)}, v1, 1, 2")
        for i in range(4):
            A(f"v_cmp_eq_u32 vcc, {i}, {vr(t0)}")
            A(f"v_cndmask_b32 {vr(dst+i)}, 0, {vr(t0+1)}, vcc")
    delta(vM, "0xffff", vT)
    A(f"v_and_b32 {vr(vT)}, 1, v2"); A(f"v_lshlrev_b32 {vr(vT)}, 4, {vr(vT)}")
    A(f"v_lshrrev_b32 {vr(vT+1)}, 1, v2"); A(f"v_lshl_add_u32 {vr(vT)}, {vr(vT+1)}, 10, {vr(vT)}")
    A(f"v_lshl_add_u32 {vr(vT)}, v1, 5, {vr(vT)}")
    A("s_lshl_b32 s35, s33, 11"); A(f"s_add_u32 s35, s35, {L_OP}")
    for dh in range(2):
        A(f"s_xor_b32 s38, s61, {dh << 8}"); A("s_lshl1_add_u32 s38, s38, s35")
        A(f"v_add_u32 {vr(vOPa+dh)}, s38, {vr(vT)}")
    if WE:
        A("s_getreg_b32 s35, hwreg(HW_REG_XCC_ID, 0, 3)"); A(f"s_bitcmp1_b32 {WEM}, s35"); A("s_cselect_b64 vcc, -1, 0")
    nv = [0]
    vord = list(range(28)) + [28, 30, 29, 31]
    def more(k):
        for _ in range(k):
            if nv[0] < 32:
                idx = vord[nv[0]]; tl, e = idx >> 3, idx & 7
                throttle()
                A(f"buffer_load_dwordx4 {vr(vVv+4*idx,4)}, {vr(vVo+e)}, s[56:59], s{40+tl} offen {pol if vpol is None else vpol}")
                nv[0] += 1
    seq = [("k", tl, i) for tl in range(1, 4) for i in range(8)] + [("v",)] * 32
    pos = 0
    def adv(n):
        nonlocal pos
        for _ in range(n):
            it = seq[pos]; pos += 1
            if it[0] == "k": kload(it[1], it[2])
            else: more(1)
    adv(24 + QPOS)
    stamp(6)
    A("s_barrier")
    stamp(7)
    adv(W + QD)
    assert nv[0] >= W
    stamp(1)
    if prio == 3: A("s_setprio 2")
    A("s_barrier")
    stamp(2)
    for t in range(8):
        A(f"ds_read_b128 {vr(vQ+4*t,4)}, {vr(vQA)} offset:{64*t}")
    for tl in range(4):
        for t in range(8):
            A(f"ds_read_b128 {vr(vKF+4*t,4)}, {vr(vKA+(t&3))} offset:{tl*8192 + (t>>2)*256}")
        for t in range(8):
            A(f"s_waitcnt lgkmcnt({7-t})")
            c = "0" if t == 0 else vr(vS+4*tl, 4)
            A(f"v_mfma_f32_16x16x32_bf16 {vr(vS+4*tl,4)}, {vr(vKF+4*t,4)}, {vr(vQ+4*t,4)}, {c}")
        more(1)
    SC = math.log2(math.e) / 16.0
    A(f"s_mov_b32 s35, {f32(SC)}")
    mx = vT; cp = vT + 1; ls = vT + 2
    A(f"v_max3_f32 {vr(mx)}, {vr(vS)}, {vr(vS+1)}, {vr(vS+2)}")
    for i in range(3, 15, 2):
        A(f"v_max3_f32 {vr(mx)}, {vr(mx)}, {vr(vS+i)}, {vr(vS+i+1)}")
    A(f"v_max_f32 {vr(mx)}, {vr(mx)}, {vr(vS+15)}")
    def xg(x, op):
        for sw in ("v_permlane32_swap_b32", "v_permlane16_swap_b32"):
            A(f"v_mov_b32 {vr(cp)}, {vr(x)}")
            A(f"{sw} {vr(x)}, {vr(cp)}")
            A(f"{op} {vr(x)}, {vr(x)}, {vr(cp)}")
    xg(mx, "v_max_f32")
    A(f"v_mul_f32 {vr(mx)}, s35, {vr(mx)}")
    for i in range(16):
        A(f"v_fma_f32 {vr(vS+i)}, {vr(vS+i)}, s35, -{vr(mx)}")
    for i in range(16):
        A(f"v_exp_f32 {vr(vS+i)}, {vr(vS+i)}")
    A(f"v_add_f32 {vr(ls)}, {vr(vS)}, {vr(vS+1)}")
    for i in range(2, 16):
        A(f"v_add_f32 {vr(ls)}, {vr(ls)}, {vr(vS+i)}")
    xg(ls, "v_add_f32")
    A(f"ds_write2_b32 {vr(vSTw)}, {vr(mx)}, {vr(ls)} offset0:0 offset1:4")
    more(1)
    A("s_waitcnt lgkmcnt(0)")
    A("s_barrier")
    stamp(3)
    def stats(m4, l4, M, Lr):
        A(f"v_max3_f32 {vr(M)}, {vr(m4)}, {vr(m4+1)}, {vr(m4+2)}"); A(f"v_max_f32 {vr(M)}, {vr(M)}, {vr(m4+3)}")
        for i in range(4): A(f"v_sub_f32 {vr(m4+i)}, {vr(m4+i)}, {vr(M)}")
        for i in range(4): A(f"v_exp_f32 {vr(m4+i)}, {vr(m4+i)}")
        A(f"v_mul_f32 {vr(Lr)}, {vr(m4)}, {vr(l4)}")
        for i in range(1, 4): A(f"v_fmac_f32 {vr(Lr)}, {vr(m4+i)}, {vr(l4+i)}")
    A(f"ds_read_b128 {vr(vAcc,4)}, {vr(vSTr)}")
    A(f"ds_read_b128 {vr(vAcc+4,4)}, {vr(vSTr)} offset:16")
    more(1)
    A("s_waitcnt lgkmcnt(0)")
    stats(vAcc, vAcc + 4, vT + 3, vT + 4)
    A(f"v_sub_f32 {vr(mx)}, {vr(mx)}, {vr(vT+3)}")
    A(f"v_exp_f32 {vr(mx)}, {vr(mx)}")
    A(f"v_rcp_f32 {vr(vT+4)}, {vr(vT+4)}")
    A(f"v_mul_f32 {vr(mx)}, {vr(mx)}, {vr(vT+4)}")
    for i in range(16):
        A(f"v_mul_f32 {vr(vS+i)}, {vr(vS+i)}, {vr(mx)}")
        A(f"v_cvt_pk_bf16_f32 {vr(vS+i)}, {vr(vS+i)}, {vr(vS+i)}")
        for k in range(4):
            A(f"v_and_b32 {vr(vA+4*i+k)}, {vr(vS+i)}, {vr(vM+k)}")
        if i % 8 == 7: more(1)
    stamp(4)
    done = 0
    def pv(k):
        idx = vord[k]
        i, dh = idx >> 1, idx & 1
        c = "0" if i == 0 else vr(vAcc+4*dh, 4)
        A(f"v_mfma_f32_16x16x32_bf16 {vr(vAcc+4*dh,4)}, {vr(vA+4*i,4)}, {vr(vVv+4*idx,4)}, {c}")
    while nv[0] < 32:
        more(1)
        if NL and nv[0] == 32 - EP: A("s_barrier")
        lim = min(nv[0] - W, done + 4)
        while done < lim: pv(done); done += 1
    while done < 32:
        if 31 - done < W: A(f"s_waitcnt vmcnt({31-done})")
        pv(done); done += 1
        if done == 31: A(f"ds_write_b128 {vr(vOPa)}, {vr(vAcc,4)}")
    A(f"ds_write_b128 {vr(vOPa+1)}, {vr(vAcc+4,4)}")
    stamp(5)
    A("s_waitcnt lgkmcnt(0)")
    A("s_barrier")
    if wbs and "E" not in skip:
        A.c("one wave per group stays to write the spent hand-off lines back ahead of the end of the kernel")
        A("s_cmp_eq_u32 s30, 4"); A("s_cselect_b32 s33, s32, -1"); A(f"s_cmp_eq_u32 s33, {wbr}"); A("s_cbranch_scc0 L_send")
        nb = 4 if "b" in bx else 3
        for k in range(nb):
            if k == wbs - 1: A("buffer_wbl2 sc1")
            A("s_barrier")
        A("L_send:")
    dump_stamps(9)
    A("s_endpgm")

    vT = tT
    A("L_prepw:")
    A("s_waitcnt lgkmcnt(0)")
    if b0 == 1: A("s_barrier")
    if cpos == "early": prep_loads()
    if b0 == 2: A("s_barrier")
    A("s_mov_b64 s[52:53], s[10:11]"); A("s_mov_b32 s54, 0x380000"); A("s_mov_b32 s55, 0x20000")
    nq = [0]
    def wq_loads(n):
        if not n or "q" in skip: return
        A("s_cmp_eq_u32 s30, 0"); A(f"s_cbranch_scc0 L_nq{nq[0]}")
        lab = f"L_nq{nq[0]}:"
        for _ in range(n):
            A(f"s_mov_b32 m0, {L_WQ + 1024*nq[0]}")
            if qpace and nq[0] >= qpace: A(f"s_waitcnt vmcnt({qpace-1})")
            A(f"buffer_load_dwordx4 {vr(vQw)}, s[52:55], s50 offen {qpol} lds")
            A(f"s_add_u32 s50, s50, {qstep}")
            nq[0] += 1
        A(lab)
    wq_loads(wq1)
    if b0 == 3: A("s_barrier")
    wq_loads(14 - wq1)
    if b0:
        A("s_cmp_eq_u32 s46, 0"); A("s_cbranch_scc1 L_nolead")
        A("s_waitcnt vmcnt(5)")
        A("s_atomic_add s46, s[26:27], s63")
        A("L_nolead:")
    def wo_addr():
        A("s_bfe_u32 s34, s32, 0x10001"); A("s_lshl1_add_u32 s33, s31, s34"); A("s_lshl2_add_u32 s33, s33, s30"); A("s_lshl_b32 s33, s33, 6")
        A("s_mul_i32 s33, s33, 896"); A("s_lshr_b32 s34, s32, 2"); A("s_min_u32 s34, s34, 6"); A("s_lshl_b32 s34, s34, 7"); A("s_add_u32 s51, s33, s34")
        if "O" in hack: A("s_mul_i32 s33, s31, 14"); A("s_lshr_b32 s34, s32, 1"); A("s_add_u32 s33, s33, s34"); A("s_lshl2_add_u32 s33, s33, s30"); A("s_lshl_b32 s51, s33, 13")
        A(f"v_lshrrev_b32 {vr(vWa)}, 3, v0"); A(f"v_mul_u32_u24 {vr(vWa)}, 896, {vr(vWa)}")
        A(f"v_and_b32 {vr(vT+4)}, 16, v0"); A(f"v_lshlrev_b32 {vr(vT+4)}, 1, {vr(vT+4)}"); A(f"v_and_b32 {vr(vT+5)}, 0x70, v3"); A(f"v_xor_b32 {vr(vT+4)}, {vr(vT+4)}, {vr(vT+5)}")
        A(f"v_xor_b32 {vr(vT+5)}, 64, {vr(vT+4)}"); A(f"v_add_u32 {vr(vWa+1)}, {vr(vWa)}, {vr(vT+5)}"); A(f"v_add_u32 {vr(vWa)}, {vr(vWa)}, {vr(vT+4)}")
        A(f"v_lshrrev_b32 {vr(vT+4)}, 2, v1"); A(f"v_lshl_add_u32 {vr(vT+4)}, v2, 3, {vr(vT+4)}"); A(f"v_lshlrev_b32 {vr(vT+4)}, 7, {vr(vT+4)}")
        A(f"v_bfe_u32 {vr(vT+5)}, v0, 3, 2"); A(f"v_lshl_add_u32 {vr(vT+4)}, {vr(vT+5)}, 5, {vr(vT+4)}")
        A(f"v_and_b32 {vr(vT+5)}, 3, v0"); A(f"v_lshl_add_u32 {vr(vT+4)}, {vr(vT+5)}, 3, {vr(vT+4)}")
        A("s_lshl_b32 s61, s30, 13"); A(f"v_add_u32 {vr(vWr)}, s61, {vr(vT+4)}")
    def wo_loads(i0, i1, tag):
        if i0 >= i1: return
        A("s_cmp_ge_u32 s32, 28" if "o" not in skip else "s_cmp_ge_u32 s32, 0"); A(f"s_cbranch_scc1 L_nowo{tag}")
        for i in range(i0, i1):
            A(f"s_add_u32 m0, s61, {1024*i}"); A(f"s_add_u32 s33, s51, {8*896*i if 'O' not in hack else 1024*i}")
            A(f"buffer_load_dwordx4 {vr(vWa+(i&1)) if 'O' not in hack else 'v3'}, s[56:59], s33 offen {opol} lds")
        A(f"L_nowo{tag}:")
    def wo_frags(tts=(0, 1)):
        for nt in range(4):
            for tt in tts:
                for hh in range(2):
                    A(f"ds_read_b64_tr_b16 {vr(vW+16*tt+4*nt+2*hh,2)}, {vr(vWr if nt == 0 else vRaw+nt)} offset:{4096*tt + 512*hh}")
    A.c("tail constants")
    A("s_mov_b32 s49, 0")
    wo_addr()
    if tl_:
        A.c("one scalar read per page that is first used later (V, wo, out): the translation is ready by then; values unused")
        A(f"s_cmp_eq_u32 s30, {tlw}"); A("s_cbranch_scc0 L_notl")
        if tl_ & 1:
            A("s_lshr_b32 s33, s2, 5"); A("s_lshl3_add_u32 s33, s33, s31"); A("s_lshl2_add_u32 s33, s33, 3"); A("s_lshl_b32 s33, s33, 12"); A("s_add_u32 s33, s33, s32"); A("s_lshl_b32 s33, s33, 7")
            A("s_load_dword s46, s[8:9], s33")
        if tl_ & 2:
            A("s_load_dword s47, s[12:13], s51")
        if tl_ & 4:
            A("s_mul_i32 s34, s31, 896")
            A("s_load_dword s48, s[24:25], s34")
        A("L_notl:")
    A(f"s_xor_b32 s34, s32, {qx}"); A("s_and_b32 s35, s34, 3"); A("s_lshr_b32 s34, s34, 2"); A("s_lshl3_add_u32 s34, s35, s34"); A("s_lshl_b32 s34, s34, 7")
    A("s_lshl_b32 s39, s31, 15"); A("s_add_u32 s34, s34, s39")
    A(f"v_and_b32 {vr(vQa)}, 7, v1"); A(f"v_lshlrev_b32 {vr(vQa)}, 12, {vr(vQa)}"); A(f"v_lshl_add_u32 {vr(vQa)}, v2, 4, {vr(vQa)}"); A(f"v_add_u32 {vr(vQa)}, s34, {vr(vQa)}")
    def publish_q():
        A("s_getreg_b32 s47, hwreg(HW_REG_XCC_ID, 0, 4)")
        A("s_mul_i32 s47, s47, 0x1111"); A("s_bitset1_b32 s47, 18")
        if force_slow: A("s_cmp_eq_u32 s32, 5"); A("s_cselect_b32 s47, 0, s47")
        A("s_waitcnt lgkmcnt(0)")
        A("s_cmp_eq_u32 s46, s47")
        A("s_cbranch_scc0 L_f1slow")
        A("L_same:")
        A("s_mov_b32 s41, s46")
        A.c("the slots were cleared in this XCD's L2: publish there")
        A("s_mov_b32 exec_lo, 0x00ff00ff"); A("s_mov_b32 exec_hi, 0x00ff00ff")
        for k in range(2): A(f"global_store_dwordx4 {vr(vQa)}, {vr(vQs+4*k,4)}, s[28:29] offset:{64*k}")
        A("s_mov_b64 exec, -1")
        stamp(3)
        A("L_nopub:")
        def ool():
            A("L_f1slow:")
            if cnt: A("s_mov_b32 s90, 1")
            A(f"v_mov_b32 {vr(vT+20)}, s63")
            A("s_mov_b32 s35, 0")
            A("L_f1l:")
            A("s_cmp_ge_u32 s46, 0x40000")
            A("s_cbranch_scc1 L_f1d")
            A(f"global_load_dword {vr(vT+21)}, {vr(vT+20)}, s[26:27] sc1")
            A("s_add_u32 s35, s35, 1")
            A("s_waitcnt vmcnt(0)")
            A(f"v_readfirstlane_b32 s46, {vr(vT+21)}")
            A(f"s_cmp_lt_u32 s35, {SPIN}")
            A("s_cbranch_scc1 L_f1l")
            A("L_f1d:")
            A("s_cmp_eq_u32 s46, s47")
            A("s_cbranch_scc1 L_same")
            A.c("cleared on another XCD: tell the group, publish nothing here")
            A("s_mov_b32 s41, s46"); A("s_add_u32 s46, s63, 32"); A("s_mov_b32 s47, 1")
            A("s_atomic_add s47, s[26:27], s46 glc")
            A("s_waitcnt lgkmcnt(0)")
            A("s_mov_b32 s49, 1")
            A("s_branch L_nopub")
        OOL.append(ool)
    brow("s33", "s31"); A("s_mul_i32 s34, s30, 224"); A("s_add_u32 s33, s33, s34"); A(f"s_add_u32 s33, s33, {W_B}")
    A(f"v_min_u32 {vr(vT+4)}, 13, v1")
    A(f"v_mul_u32_u24 {vr(vBa)}, 3584, v2"); A(f"v_lshl_add_u32 {vr(vBa)}, {vr(vT+4)}, 4, {vr(vBa)}"); A(f"v_add_u32 {vr(vBa)}, s33, {vr(vBa)}")
    A(f"v_lshrrev_b32 {vr(vT+5)}, 1, v2"); A(f"v_mul_u32_u24 {vr(vT+5)}, {BH - 7168}, {vr(vT+5)}"); A(f"v_add_u32 {vr(vBa)}, {vr(vBa)}, {vr(vT+5)}")
    A("s_mul_i32 s34, s30, 448"); A(f"s_add_u32 s34, s34, {L_H}")
    A(f"v_and_b32 {vr(vT+5)}, 1, v2"); A(f"v_lshlrev_b32 {vr(vHw)}, 5, v1"); A(f"v_lshl_add_u32 {vr(vHw)}, {vr(vT+5)}, 4, {vr(vHw)}"); A(f"v_add_u32 {vr(vHw)}, s34, {vr(vHw)}")
    A(f"v_mov_b32 {vr(vT+5)}, {L_H + 1792}"); A("v_cmp_gt_u32 s[42:43], 14, v1")
    A(f"v_cndmask_b32 {vr(vHw)}, {vr(vT+5)}, {vr(vHw)}, s[42:43]")
    A(f"v_lshrrev_b32 {vr(vT+6)}, 5, v0")
    A("s_lshl_b32 s34, s30, 3"); A(f"s_add_u32 s34, s34, {L_HS}")
    A(f"v_lshlrev_b32 {vr(vHsw)}, 2, {vr(vT+6)}"); A(f"v_add_u32 {vr(vHsw)}, s34, {vr(vHsw)}")
    A(f"v_cvt_f32_u32 {vr(vKs)}, {vr(vT+6)}"); A(f"v_sub_f32 {vr(vKs+1)}, 1.0, {vr(vKs)}")
    for i in range(2): A(f"v_mul_f32 {vr(vKs+i)}, {f32(1.0/448)}, {vr(vKs+i)}")
    delta(vDl, "0x3f80", vT + 8)
    A("s_mul_i32 s33, s32, 56"); A(f"s_add_u32 s33, s33, {L_H}")
    ii = vT + 8; hf = vT + 9; col = vT + 10
    A(f"v_bfe_u32 {vr(ii)}, v0, 3, 1"); A(f"v_and_b32 {vr(hf)}, 3, v0"); A(f"v_lshl_add_u32 {vr(ii)}, {vr(ii)}, 2, {vr(hf)}")
    A(f"v_bfe_u32 {vr(hf)}, v0, 2, 1")
    A(f"v_min_u32 {vr(col)}, 6, {vr(ii)}"); A(f"v_mad_u32_u24 {vr(col)}, {vr(hf)}, 7, {vr(col)}")
    A(f"v_lshlrev_b32 {vr(vHa)}, 2, {vr(col)}"); A(f"v_add_u32 {vr(vHa)}, s33, {vr(vHa)}")
    A(f"v_cmp_eq_u32 vcc, 7, {vr(ii)}"); A(f"v_cndmask_b32 {vr(vT+11)}, v2, 3, vcc")
    A(f"v_mov_b32 {vr(vT+12)}, 0x3f803f80")
    A(f"v_cmp_eq_u32 vcc, 2, {vr(vT+11)}"); A(f"v_cndmask_b32 {vr(vK1)}, 0, 1.0, vcc")
    A(f"v_cmp_eq_u32 vcc, 0, {vr(vT+11)}"); A(f"v_cndmask_b32 {vr(vK1+1)}, 0, 1.0, vcc")
    A(f"v_cndmask_b32 {vr(vK1+3)}, 0, {vr(vT+12)}, vcc")
    A(f"v_cmp_eq_u32 vcc, 1, {vr(vT+11)}"); A(f"v_cndmask_b32 {vr(vK1+2)}, 0, 1.0, vcc")
    A(f"v_cndmask_b32 {vr(vK1+4)}, 0, {vr(vT+12)}, vcc")
    A(f"v_min_u32 {vr(col)}, 6, v0"); A(f"v_lshlrev_b32 {vr(vHf)}, 3, {vr(col)}"); A(f"v_add_u32 {vr(vHf)}, s33, {vr(vHf)}")
    A("s_mul_i32 s33, s31, 896"); A("s_mul_i32 s34, s32, 28"); A("s_add_u32 s33, s33, s34")
    A(f"v_lshlrev_b32 {vr(vOut)}, 2, {vr(col)}"); A(f"v_add_u32 {vr(vOut)}, s33, {vr(vOut)}")
    A(f"v_bfe_u32 {vr(ii)}, v0, 2, 1"); A(f"v_bfe_u32 {vr(hf)}, v0, 3, 1"); A(f"v_lshl_add_u32 {vr(ii)}, {vr(ii)}, 1, {vr(hf)}")
    A(f"v_bfe_u32 {vr(hf)}, v0, 4, 1"); A(f"v_lshl_add_u32 {vr(ii)}, {vr(hf)}, 2, {vr(ii)}")
    A(f"v_mad_u32_u24 {vr(hf)}, {vr(vT+6)}, 7, {vr(ii)}")
    A(f"v_cmp_eq_u32 vcc, 7, {vr(ii)}"); A(f"v_cndmask_b32 {vr(hf)}, {vr(hf)}, 15, vcc")
    A("s_lshl_b32 s34, s30, 6"); A(f"s_add_u32 s34, s34, {L_Y}")
    A(f"v_lshlrev_b32 {vr(vYa)}, 2, {vr(hf)}"); A(f"v_add_u32 {vr(vYa)}, s34, {vr(vYa)}")
    A("s_lshl_b32 s33, s31, 8"); A(f"s_add_u32 s33, s33, {W_L}"); A("s_and_b32 s34, s32, 3"); A("s_lshl_b32 s34, s34, 6"); A("s_add_u32 s34, s34, s33")
    A(f"v_lshlrev_b32 {vr(vLa)}, 4, v2"); A(f"v_add_u32 {vr(vLa)}, s34, {vr(vLa)}")
    A("s_lshl2_add_u32 s34, s32, s33")
    A(f"v_lshlrev_b32 {vr(vLst)}, 7, v0"); A(f"v_add_u32 {vr(vLst)}, s34, {vr(vLst)}")
    A(f"s_add_u32 s33, s39, {W_O}")
    A("s_and_b32 s35, s32, 1"); A("s_bfe_u32 s36, s32, 0x10001")
    A("s_lshl1_add_u32 s34, s35, s36"); A("s_lshl2_add_u32 s34, s34, s30"); A("s_lshl_b32 s34, s34, 11"); A("s_add_u32 s34, s34, s33")
    A(f"v_add_u32 {vr(vOa)}, s34, v3")
    A("s_lshl2_add_u32 s60, s35, s30")
    A("s_lshl1_add_u32 s34, s31, s36"); A("s_mul_i32 s34, s34, 896"); brow("s36", "s60"); A("s_add_u32 s34, s34, s36")
    A("s_cmp_ge_u32 s31, 4"); A(f"s_cselect_b32 s36, {BH - 7168}, 0"); A("s_add_u32 s34, s34, s36")
    A("s_lshr_b32 s36, s32, 2"); A("s_min_u32 s36, s36, 6"); A("s_lshl_b32 s36, s36, 7")
    A("s_add_u32 s34, s34, s36"); A(f"s_add_u32 s34, s34, {W_B}")
    A(f"v_lshlrev_b32 {vr(vBst)}, 3, v1"); A(f"v_add_u32 {vr(vBst)}, s34, {vr(vBst)}")
    A("s_lshr_b32 s34, s32, 4"); A("s_lshl2_add_u32 s34, s34, s30"); A("s_lshl_b32 s34, s34, 12"); A("s_add_u32 s34, s34, s33")
    A("s_and_b32 s36, s32, 15"); A("s_lshl4_add_u32 s34, s36, s34")
    A(f"v_lshrrev_b32 {vr(vOst)}, 2, v0"); A(f"v_lshlrev_b32 {vr(vOst)}, 8, {vr(vOst)}"); A(f"v_and_b32 {vr(vT+4)}, 3, v0")
    A(f"v_lshl_add_u32 {vr(vOst)}, {vr(vT+4)}, 2, {vr(vOst)}"); A(f"v_add_u32 {vr(vOst)}, s34, {vr(vOst)}")
    A("s_lshl_b32 s34, s30, 8"); A(f"s_add_u32 s34, s34, {L_PP}")
    A(f"v_lshlrev_b32 {vr(vPPr)}, 4, v1"); A(f"v_add_u32 {vr(vPPr)}, s34, {vr(vPPr)}")
    A("s_lshl_b32 s34, s30, 9"); A(f"s_add_u32 s34, s34, {L_OP}")
    A(f"v_lshlrev_b32 {vr(vOPr)}, 3, v0"); A(f"v_add_u32 {vr(vOPr)}, s34, {vr(vOPr)}")
    A("s_lshl_b32 s34, s30, 10"); A(f"s_add_u32 s34, s34, {L_PP}")
    A(f"v_lshlrev_b32 {vr(vPPa)}, 2, v1"); A(f"v_lshl_add_u32 {vr(vPPa)}, v2, 8, {vr(vPPa)}"); A(f"v_add_u32 {vr(vPPa)}, s34, {vr(vPPa)}")
    for i in range(4): A(f"v_mov_b32 {vr(vG+i)}, 0")
    A(f"s_mov_b32 s37, {f32(1.0/64)}")
    A("s_mov_b32 s38, 0xffff0000")
    def qproj():
        A("s_cmp_eq_u32 s30, 0"); A("s_cbranch_scc0 L_nopub")
        A.c("T0: q projection, 64 columns x a quarter of the rows, all 8 batches; LayerNorm applied after the product")
        A("s_mov_b32 s34, 0x3f803f80")
        for i in range(56): A(f"v_mov_b32 {vr(vX+i)}, s34")
        A(f"v_and_b32 {vr(tT+1)}, 7, v1"); A(f"v_mul_u32_u24 {vr(tT+1)}, 896, {vr(tT+1)}"); A(f"v_add_u32 {vr(tT+1)}, {L_X}, {vr(tT+1)}")
        A(f"v_lshl_add_u32 {vr(tT)}, v2, 4, {vr(tT+1)}")
        A("s_mul_i32 s33, s48, 224"); A(f"v_lshl_add_u32 {vr(tT+1)}, v2, 3, {vr(tT+1)}"); A(f"v_add_u32 {vr(tT+1)}, s33, {vr(tT+1)}")
        A(f"v_lshrrev_b32 {vr(tT+2)}, 2, v0"); A(f"v_lshlrev_b32 {vr(tT+2)}, 7, {vr(tT+2)}"); A(f"v_and_or_b32 {vr(tT+2)}, v3, 48, {vr(tT+2)}")
        A(f"v_add_u32 {vr(tT+2)}, {L_WQ}, {vr(tT+2)}")
        A(f"v_bfe_u32 {vr(tT+3)}, v1, 2, 1"); A(f"v_lshl_add_u32 {vr(tT+3)}, {vr(tT+3)}, 4, v1"); A(f"v_lshlrev_b32 {vr(tT+3)}, 2, {vr(tT+3)}")
        A(f"v_lshlrev_b32 {vr(tT+4)}, 2, v1"); A(f"v_add_u32 {vr(tT+4)}, 128, {vr(tT+4)}")
        A(f"v_and_b32 {vr(tT+5)}, 3, v1")
        sm = ('', 's[6:7]', 's[8:9]', 's[14:15]')
        for i in range(1, 4): A(f"v_cmp_eq_u32 {sm[i]}, {i}, {vr(tT+5)}")
        D1 = vX + 16; D2 = tT + 8; wf = vW
        A("s_mov_b32 exec_lo, 0x00ff00ff"); A("s_mov_b32 exec_hi, 0x00ff00ff")
        A("s_waitcnt vmcnt(14)")
        for t in range(14): A(f"ds_read_b128 {vr(vX+4*t,4)}, {vr(tT)} offset:{64*t}")
        A("s_mov_b64 exec, -1")
        for t in range(14):
            A(f"s_waitcnt lgkmcnt({13-t})")
            c = "0" if t == 0 else vr(D2, 4)
            A(f"v_mfma_f32_16x16x32_bf16 {vr(D2,4)}, {vr(vX+4*t,4)}, {vr(vX+4*t,4)}, {c}")
        for i in range(1, 4): A(f"v_cndmask_b32 {vr(D2)}, {vr(D2)}, {vr(D2+i)}, {sm[i]}")
        A(f"ds_bpermute_b32 {vr(tT+6)}, {vr(tT+3)}, {vr(D2)}")
        A(f"ds_bpermute_b32 {vr(tT+7)}, {vr(tT+4)}, {vr(D2)}")
        A("s_mov_b32 exec_lo, 0x00ff00ff"); A("s_mov_b32 exec_hi, 0x00ff00ff")
        for t in range(7): A(f"ds_read_b64 {vr(vX+2*t,2)}, {vr(tT+1)} offset:{32*t}")
        A("s_mov_b64 exec, -1")
        A(f"s_mov_b32 s33, {f32(1.0/448)}")
        A("s_waitcnt lgkmcnt(0)")
        A(f"v_mul_f32 {vr(tT+7)}, s33, {vr(tT+7)}")
        A(f"v_mul_f32 {vr(tT+6)}, s33, {vr(tT+6)}")
        A(f"v_fma_f32 {vr(tT+6)}, -{vr(tT+7)}, {vr(tT+7)}, {vr(tT+6)}")
        A(f"v_max_f32 {vr(tT+6)}, 0, {vr(tT+6)}")
        A(f"v_add_f32 {vr(tT+6)}, {f32(1e-5)}, {vr(tT+6)}")
        A(f"v_rsq_f32 {vr(tT+6)}, {vr(tT+6)}")
        A("s_waitcnt vmcnt(0)")
        A("s_load_dword s46, s[26:27], s63")
        stamp(1)
        for np_ in range(2):
            for t in range(7):
                for e in range(2):
                    A(f"ds_read_b64_tr_b16 {vr(wf+4*t+2*e,2)}, {vr(tT+2)} offset:{2048*t + 64*np_ + 8*e}")
            for t in range(7):
                A(f"s_waitcnt lgkmcnt({12-2*t})")
                for e in range(2):
                    D = D1 + 8*np_ + 4*e
                    c = "0" if t == 0 else vr(D, 4)
                    A(f"v_mfma_f32_16x16x16_bf16 {vr(D,4)}, {vr(wf+4*t+2*e,2)}, {vr(vX+2*t,2)}, {c}")
        for i0 in (0, 8):
            for i in range(8):
                A(f"v_mul_f32_dpp {vr(D2+i)}, {vr(D1+i0+i)}, {vr(tT+7)} row_newbcast:8 row_mask:0xf bank_mask:0xf")
            for i in range(8):
                A(f"v_sub_f32 {vr(D2+i)}, {vr(D1+i0+i)}, {vr(D2+i)}")
                A(f"v_mul_f32 {vr(D2+i)}, {vr(D2+i)}, {vr(tT+6)}")
            for i in range(4):
                A(f"v_cvt_pk_bf16_f32 {vr(vQs+i0//2+i)}, {vr(D2+2*i)}, {vr(D2+2*i+1)}")
                A(f"v_min_u32 {vr(vQs+i0//2+i)}, -2, {vr(vQs+i0//2+i)}")
        publish_q()
    def conv():
        if c1_:
            for k in range(3):
                for i in range(4): A(f"v_mov_b32 {vr(raw+8*k+4+((i+3)&3))}, {vr(raw+8*k+i)}")
                for i in range(4): A(f"v_permlane32_swap_b32 {vr(raw+8*k+i)}, {vr(raw+8*k+4+((i+3)&3))}")
        for i in (2, 3): A(f"v_cndmask_b32 {vr(vXr+i)}, 0, {vr(vXr+i)}, s[42:43]")
        A(f"v_lshlrev_b32 {vr(vXr)}, 16, {vr(vXr+2)}"); A(f"v_and_b32 {vr(vXr+1)}, s38, {vr(vXr+2)}")
        A(f"v_lshlrev_b32 {vr(vXr+2)}, 16, {vr(vXr+3)}"); A(f"v_and_b32 {vr(vXr+3)}, s38, {vr(vXr+3)}")
        A(f"v_lshlrev_b32 {vr(vB2)}, 16, {vr(vB2)}")
    w, b, u, bb, c0, c1, c2, c3, ca, cc, hi = (vT + 1 + i for i in range(11))
    def tiles(t0, t1):
        if t0 >= t1: return
        A.c("gelu argument as a cubic in hn, and n = (w1*hn + b1)*w2, as split-bf16 MFMA operands")
        A(f"s_mov_b32 s33, {f32(BETA)}"); A(f"s_mov_b32 s34, {f32(3*BETA)}"); A(f"v_mov_b32 {vr(vT)}, {f32(ALPHA)}")
        A("v_cmp_lt_u32 vcc, 31, v0")
        for tile in range(t0, t1):
            for k, d in enumerate((w, b, u)):
                src = raw + 8*k + (tile >> 1)
                if tile & 1: A(f"v_and_b32 {vr(d)}, s38, {vr(src)}")
                else: A(f"v_lshlrev_b32 {vr(d)}, 16, {vr(src)}")
            A(f"v_mul_f32 {vr(bb)}, {vr(b)}, {vr(b)}")
            A(f"v_fma_f32 {vr(c0)}, {vr(bb)}, s33, {vr(vT)}"); A(f"v_mul_f32 {vr(c0)}, {vr(c0)}, {vr(b)}")
            A(f"v_fma_f32 {vr(c1)}, {vr(bb)}, s34, {vr(vT)}"); A(f"v_mul_f32 {vr(c1)}, {vr(c1)}, {vr(w)}")
            A(f"v_mul_f32 {vr(bb)}, {vr(w)}, {vr(w)}")
            A(f"v_mul_f32 {vr(c2)}, s34, {vr(bb)}"); A(f"v_mul_f32 {vr(c2)}, {vr(c2)}, {vr(b)}")
            A(f"v_mul_f32 {vr(c3)}, s33, {vr(bb)}"); A(f"v_mul_f32 {vr(c3)}, {vr(c3)}, {vr(w)}")
            A(f"v_mul_f32 {vr(ca)}, {vr(w)}, {vr(u)}"); A(f"v_mul_f32 {vr(cc)}, {vr(b)}, {vr(u)}")
            for k, cx in enumerate((c0, c1, c2, c3)): A(f"v_add_f32 {vr(vG+k)}, |{vr(cx)}|, {vr(vG+k)}")
            A(f"v_fma_f32 {vr(vG)}, |{vr(cc)}|, s37, {vr(vG)}"); A(f"v_fma_f32 {vr(vG+1)}, |{vr(ca)}|, s37, {vr(vG+1)}")
            for k, (lo_, hi_) in enumerate(((c1, c2), (c0, c2), (ca, c3), (cc, c3))):
                A(f"v_cndmask_b32 {vr(lo_)}, {vr(lo_)}, {vr(hi_)}, vcc")
                A(f"v_cvt_pk_bf16_f32 {vr(hi)}, {vr(lo_)}, {vr(lo_)}")
                A(f"v_and_b32 {vr(hi)}, s38, {vr(hi)}")
                A(f"v_sub_f32 {vr(lo_)}, {vr(lo_)}, {vr(hi)}")
                A(f"v_cvt_pk_bf16_f32 {vr(vC+4*tile+k)}, {vr(hi)}, {vr(lo_)}")
    def guard():
        A.c("largest |hn| for which the fused gelu path can neither overflow nor lose precision")
        A("s_mov_b32 s3, -1.0"); A(f"s_mov_b32 s34, {f32(100.0)}")
        for H in (3.0, 4.5, 6.0, 8.0, 12.0, 22.0):
            A(f"s_mov_b32 s33, {f32(H)}")
            A(f"v_fma_f32 {vr(vT+1)}, {vr(vG+3)}, s33, {vr(vG+2)}"); A(f"v_fma_f32 {vr(vT+1)}, {vr(vT+1)}, s33, {vr(vG+1)}")
            A(f"v_fma_f32 {vr(vT+1)}, {vr(vT+1)}, s33, {vr(vG)}")
            A(f"v_cmp_nge_f32 vcc, s34, {vr(vT+1)}")
            A("s_cmp_eq_u64 vcc, 0"); A("s_cselect_b32 s3, s33, s3")
        if force_fb: A("s_mov_b32 s3, -1.0")
    if cpos == "early":
        A("s_cmp_eq_u32 s30, 0"); A("s_cbranch_scc1 L_pw"); A("s_waitcnt vmcnt(0)"); A("L_pw:")
        A("s_waitcnt vmcnt(14)")
        conv(); tiles(0, QT); qproj(); tiles(QT, 14); guard()
    else:
        qproj()
    A("s_lshr_b32 s33, s32, 2"); A("s_lshl_b32 s33, s33, 12"); A("s_add_u32 s33, s33, s39")
    A(f"v_add_u32 {vr(vT)}, s33, v3"); A(f"v_add_u32 {vr(vT+1)}, {L_Q}, v3")
    A(f"v_and_b32 {vr(vT+20)}, 7, v0"); A(f"v_lshlrev_b32 {vr(vT+20)}, 2, {vr(vT+20)}"); A(f"v_mov_b32 {vr(vT+19)}, {L_STAT + 64}")
    stamp(4)
    if cpos == "pre1": prep_loads()
    A("s_barrier")
    if cpos == "mid": prep_loads()
    A("s_mov_b32 s35, 0")
    A("s_cmp_eq_u32 s30, 0")
    A("s_cbranch_scc0 L_b1b")
    A.c("T0: gather the four q partials, add, hand to the stream waves")
    qa = vX
    def qload():
        for k in range(4): A(f"global_load_dwordx4 {vr(qa+4*k,4)}, {vr(vT)}, s[28:29] offset:{1024*k} sc1")
        A("s_waitcnt vmcnt(0)")
    A("s_cmp_eq_u32 s49, 0"); A("s_cbranch_scc0 L_glob")
    A("L_qpoll:")
    qload()
    A(f"v_max3_u32 {vr(vT+2)}, {vr(qa)}, {vr(qa+1)}, {vr(qa+2)}")
    for i in range(3, 15, 2): A(f"v_max3_u32 {vr(vT+2)}, {vr(vT+2)}, {vr(qa+i)}, {vr(qa+i+1)}")
    A(f"v_max_u32 {vr(vT+2)}, {vr(vT+2)}, {vr(qa+15)}")
    A(f"v_cmp_eq_u32 vcc, -1, {vr(vT+2)}")
    A("s_cbranch_vccnz L_qretry")
    def ool_q():
        A("L_qretry:")
        if cnt: A("s_mov_b32 s91, 1")
        A("s_add_u32 s35, s35, 1")
        A(f"s_cmp_ge_u32 s35, {SPIN}")
        A("s_cbranch_scc1 L_qdone")
        A("s_bitcmp1_b32 s35, 0"); A("s_cbranch_scc1 L_qpoll")
        A(f"v_mov_b32 {vr(vT+12)}, s63")
        A(f"global_load_dword {vr(vT+13)}, {vr(vT+12)}, s[26:27] offset:32 sc1")
        A("s_waitcnt vmcnt(0)")
        A(f"v_readfirstlane_b32 s46, {vr(vT+13)}")
        A("s_cmp_eq_u32 s46, 0")
        A("s_cbranch_scc1 L_qpoll")
        A("L_glob:")
        A.c("group spread over several XCDs: write-through hand-off in the second copy, ordered by a counter")
        A("s_mov_b32 s49, 1")
        for i in range(4): A(f"v_mov_b32 {vr(qa+i)}, -1")
        A("s_lshl_b32 s33, s32, 10"); A("s_add_u32 s33, s33, s39"); A(f"s_add_u32 s33, s33, {W_O + W_ALT}")
        A(f"v_add_u32 {vr(vT+12)}, s33, v3"); A(f"v_add_u32 {vr(vT+13)}, {W_ALT}, {vr(vLst)}"); A(f"v_add_u32 {vr(vT+14)}, {W_ALT}, {vr(vQa)}")
        A(f"v_add_u32 {vr(vT)}, {W_ALT}, {vr(vT)}"); A(f"v_mov_b32 {vr(vT+15)}, s63")
        A(f"global_store_dwordx4 {vr(vT+12)}, {vr(qa,4)}, s[28:29] sc1")
        A("s_bfe_u32 s33, s41, 0x10002")
        if bph: A("s_xor_b32 s33, s33, 1")
        A("s_lshl_b32 s33, s33, 13"); A("s_add_u32 s33, s33, s40"); A(f"v_add_u32 {vr(vT+12)}, s33, v3")
        A("s_mov_b32 exec_hi, 0")
        A(f"global_store_dwordx4 {vr(vT+12)}, {vr(qa,4)}, s[28:29] sc1")
        A("s_mov_b64 exec, 3")
        A(f"global_store_dword {vr(vT+13)}, {vr(qa)}, s[28:29] sc1")
        A("s_mov_b32 exec_lo, 0x00ff00ff"); A("s_mov_b32 exec_hi, 0x00ff00ff")
        for k in range(2): A(f"global_store_dwordx4 {vr(vT+14)}, {vr(vQs+4*k,4)}, s[28:29] offset:{64*k} sc1")
        A("s_mov_b64 exec, -1")
        A("s_add_u32 s46, s63, 64"); A("s_mov_b32 s47, 1"); A("s_mov_b32 s35, 0")
        A("s_waitcnt vmcnt(0)")
        A("s_atomic_add s47, s[26:27], s46")
        A("L_gl:")
        A(f"global_load_dword {vr(vT+13)}, {vr(vT+15)}, s[26:27] offset:64 sc1")
        A("s_add_u32 s35, s35, 1")
        A("s_waitcnt vmcnt(0) lgkmcnt(0)")
        A(f"v_readfirstlane_b32 s46, {vr(vT+13)}")
        A(f"s_cmp_ge_u32 s35, {SPIN}"); A("s_cselect_b32 s46, 32, s46")
        A("s_cmp_lt_u32 s46, 32")
        A("s_cbranch_scc1 L_gl")
        qload()
        A("s_branch L_qdone")
    OOL.append(ool_q)
    A("L_qdone:")
    stamp(14)
    for k in range(4):
        for p in range(4):
            A(f"v_lshlrev_b32 {vr(vT+4+2*p)}, 16, {vr(qa+4*p+k)}"); A(f"v_and_b32 {vr(vT+5+2*p)}, s38, {vr(qa+4*p+k)}")
        A(f"v_pk_add_f32 {vr(vT+4,2)}, {vr(vT+4,2)}, {vr(vT+6,2)}"); A(f"v_pk_add_f32 {vr(vT+8,2)}, {vr(vT+8,2)}, {vr(vT+10,2)}")
        A(f"v_pk_add_f32 {vr(vT+4,2)}, {vr(vT+4,2)}, {vr(vT+8,2)}")
        A(f"v_cvt_pk_bf16_f32 {vr(qa+k)}, {vr(vT+4)}, {vr(vT+5)}")
    A(f"ds_write_b128 {vr(vT+1)}, {vr(qa,4)}")
    A(f"v_mov_b32 {vr(vT+2)}, s49")
    A(f"ds_write_b32 {vr(vT+19)}, {vr(vT+2)}")
    A("s_cmp_eq_u32 s32, 0"); A("s_cbranch_scc0 L_nof2")
    A.c("every member of this group has cleared its share of the out-projection slots")
    A("s_mov_b32 s33, 0x100000")
    A("s_waitcnt lgkmcnt(0)")
    A("s_barrier")
    A("s_atomic_add s33, s[26:27], s63")
    A("s_branch L_b1c")
    A("L_nof2:")
    A("s_waitcnt lgkmcnt(0)")
    A("L_b1b:")
    A("s_barrier")
    A("L_b1c:")
    A(f"ds_read_b32 {vr(vT+21)}, {vr(vT+19)}")
    if cpos != "early": A("s_waitcnt vmcnt(0) lgkmcnt(0)")
    if touch: A(f"global_load_dword {vr(vT+22)}, {vr(vOut)}, s[24:25]")
    if cpos != "early": conv(); tiles(0, N1)
    A(f"v_and_b32 {vr(vT)}, 1, v0"); A(f"v_lshlrev_b32 {vr(vT)}, 5, {vr(vT)}"); A(f"v_add_u32 {vr(vT)}, {L_STAT}, {vr(vT)}")
    A("s_barrier")
    A(f"ds_read_b128 {vr(vT+4,4)}, {vr(vT)}")
    A(f"ds_read_b128 {vr(vT+8,4)}, {vr(vT)} offset:16")
    A("s_waitcnt lgkmcnt(0)")
    stats(vT + 4, vT + 8, vT + 1, vT + 2)
    A(f"v_log_f32 {vr(vT+2)}, {vr(vT+2)}")
    A(f"v_add_f32 {vr(vLse)}, {vr(vT+1)}, {vr(vT+2)}")
    A(f"v_min_u32 {vr(vLse)}, -2, {vr(vLse)}")
    A(f"v_readfirstlane_b32 s62, {vr(vT+21)}")
    A("s_lshl_b32 s33, s62, 20")
    for r_ in (vLa, vLst, vOa, vOst): A(f"v_add_u32 {vr(r_)}, s33, {vr(r_)}")
    A("s_cmp_eq_u32 s30, 1"); A("s_cbranch_scc0 L_nolse")
    A("s_mov_b64 exec, 3")
    A("s_cmp_eq_u32 s62, 0"); A("s_cbranch_scc0 L_slowlse")
    A(f"global_store_dword {vr(vLst)}, {vr(vLse)}, s[28:29]")
    A("L_lsed:")
    A("s_mov_b64 exec, -1")
    A("L_nolse:")
    if wbm:
        A("s_cmp_eq_u32 s30, 2"); A("s_cselect_b32 s33, s32, 0"); A("s_cmp_eq_u32 s33, 31"); A("s_cbranch_scc0 L_nowbm"); A("buffer_wbl2 sc1"); A("L_nowbm:")
    def ool_lse():
        A("L_slowlse:")
        A(f"global_store_dword {vr(vLst)}, {vr(vLse)}, s[28:29] sc1")
        A("s_branch L_lsed")
    OOL.append(ool_lse)
    if inst:
        A.c("bring this workgroup's share of the cleared hand-off lines into L2 ahead of the polls (values unused)")
        A("s_cmp_lt_u32 s30, 2"); A("s_cbranch_scc1 L_noinst")
        A("s_lshl_b32 s33, s32, 10"); A("s_add_u32 s33, s33, s39"); A(f"s_add_u32 s33, s33, {W_O}")
        A("s_mul_i32 s34, s31, 14336"); A("s_min_u32 s35, s32, 27"); A("s_lshl_b32 s35, s35, 9"); A("s_add_u32 s34, s34, s35"); A(f"s_add_u32 s34, s34, {W_B}")
        A("s_cmp_eq_u32 s30, 2")
        if inst == 1: A("s_cbranch_scc0 L_noinst")
        if inst == 2: A("s_cbranch_scc1 L_noinst")
        A("s_cselect_b32 s33, s34, s33")
        A(f"v_add_u32 {vr(vT+12)}, s33, v3")
        A("s_cselect_b32 exec_hi, 0, -1")
        A(f"global_load_dwordx4 {vr(vT+16,4)}, {vr(vT+12)}, s[28:29] sc1")
        A("s_mov_b64 exec, -1")
        A("L_noinst:")
    A("s_mov_b64 s[56:57], s[12:13]"); A("s_mov_b32 s58, 0x380000"); A("s_mov_b32 s59, 0x20000")
    wo_loads(0, NE, "a")
    if cpos != "early": tiles(N1, 14); guard()
    A("s_cmp_lt_u32 s32, 28"); A("s_cselect_b32 s44, 0xffff, 0")
    A("s_cmp_eq_u32 s60, s31"); A("s_cselect_b32 s45, s44, 0"); A("s_cmp_eq_u32 s62, 0"); A("s_cselect_b32 s45, s45, 0")
    if "s" in bx: A("s_mov_b32 s45, 0")
    A("s_andn2_b32 s44, s44, s45")
    bl = vX + 16
    for i in range(16): A(f"v_mov_b32 {vr(bl+i)}, 0")
    for nt in range(1, 4): A(f"v_xor_b32 {vr(vRaw+nt)}, {32*nt}, {vr(vWr)}")
    ls4 = vT + 4; ck = vT + 1
    def lse_load():
        A(f"global_load_dwordx4 {vr(ls4,4)}, {vr(vLa)}, s[28:29] sc1")
        A(f"global_load_dword {vr(vT+21)}, {vr(vT+20)}, s[26:27] sc1")
    A(f"s_mov_b32 s36, {f32(1.0 + 1e-5)}")
    A("s_brev_b32 s40, 1"); A("s_brev_b32 s41, 1")
    def weights():
        A(f"v_and_b32 {vr(ck)}, 4, {vr(vT+21)}"); A(f"v_cmp_{'eq' if bph else 'ne'}_u32 s[6:7], 0, {vr(ck)}")
        A(f"v_lshrrev_b32 {vr(ck)}, 20, {vr(vT+21)}"); A(f"v_add_u32 {vr(ck)}, -1, {vr(ck)}")
        A(f"v_max3_u32 {vr(ck)}, {vr(ck)}, {vr(ls4)}, {vr(ls4+1)}"); A(f"v_max3_u32 {vr(ck)}, {vr(ck)}, {vr(ls4+2)}, {vr(ls4+3)}")
        A(f"v_cmp_eq_u32 vcc, -1, {vr(ck)}")
        A(f"v_max3_f32 {vr(vT+2)}, {vr(ls4)}, {vr(ls4+1)}, {vr(ls4+2)}"); A(f"v_max_f32 {vr(vT+2)}, {vr(vT+2)}, {vr(ls4+3)}")
        for i in range(4): A(f"v_sub_f32 {vr(ls4+i)}, {vr(ls4+i)}, {vr(vT+2)}")
        for i in range(4): A(f"v_exp_f32 {vr(ls4+i)}, {vr(ls4+i)}")
        A(f"v_add_f32 {vr(vT+2)}, {vr(ls4)}, {vr(ls4+1)}"); A(f"v_add_f32 {vr(vT+3)}, {vr(ls4+2)}, {vr(ls4+3)}")
        A(f"v_add_f32 {vr(vT+2)}, {vr(vT+2)}, {vr(vT+3)}"); A(f"v_rcp_f32 {vr(vT+2)}, {vr(vT+2)}")
        for i in range(4): A(f"v_mul_f32 {vr(ls4+i)}, {vr(ls4+i)}, {vr(vT+2)}")
    A.c("split-combine weights; vcc != 0: some lse had not arrived yet, redo after publishing")
    if tal >= 0:
        A("s_branch L_tail"); A(".p2align 12")
        if tal: A(f".fill {tal // 4}, 4, 0xbf810000")
        A("L_tail:")
    stamp(2)
    A("s_barrier")
    lse_load()
    if not lw: A("s_cmp_ge_u32 s32, 28"); A("s_cbranch_scc0 L_wob"); A("s_waitcnt vmcnt(0)"); A("L_wob:")
    wo_loads(NE, 8 - NB, "b")
    A(f"s_mov_b32 s35, {-SPIN & 0xffffffff}")
    A("s_cmp_eq_u32 s62, 0")
    A("L_b3:")
    A("s_barrier")
    stamp(5)
    if "E" in skip: A("s_branch L_fin")
    A.c("reduce the four stream waves' o partials, publish as bf16")
    o = vX; ls4 = vT + 4; oa = vX + 32; Dc = vX + 40; ck = vT + 1
    for w_ in range(4): A(f"ds_read_b64 {vr(o+2*w_,2)}, {vr(vOPr)} offset:{2048*w_}")
    for w_ in range(1, 4):
        A(f"s_waitcnt lgkmcnt({3-w_})")
        A(f"v_pk_add_f32 {vr(o,2)}, {vr(o,2)}, {vr(o+2*w_,2)}")
    A(f"v_cvt_pk_bf16_f32 {vr(o)}, {vr(o)}, {vr(o+1)}")
    A(f"v_min_u32 {vr(o)}, -2, {vr(o)}")
    A("s_cbranch_scc0 L_slowpub")
    A(f"global_store_dword {vr(vOst)}, {vr(o)}, s[28:29]")
    A("L_pubd:")
    def ool_pub():
        A("L_slowpub:")
        A(f"global_store_dword {vr(vOst)}, {vr(o)}, s[28:29] sc1")
        A("s_branch L_pubd")
    OOL.append(ool_pub)
    stamp(6)
    A.c("out projection")
    def aset():
        for tt in range(2):
            A(f"global_load_dwordx4 {vr(oa+4*tt,4)}, {vr(vOa)}, s[28:29] offset:{1024*tt} sc1")
    if ap:
        wo_loads(8 - NB, 8, "c")
        seqv = [f"w{i}" for i in range(NE, 8 - NB)] + ["st"] + [f"w{i}" for i in range(8 - NB, 8)]
        def upto(i):
            live = [k for k, x in enumerate(seqv) if x[0] == "w" and int(x[1:]) <= i]
            if live: A(f"s_waitcnt vmcnt({len(seqv) - 1 - max(live)})")
        if lw: A("s_cmp_ge_u32 s32, 28"); A("s_cbranch_scc0 L_wob"); A("s_waitcnt vmcnt(0)"); A("L_wob:")
        A(f"s_waitcnt vmcnt({len(seqv)})")
        weights()
        upto(3)
        if ap == 1: aset(); seqv += ["a", "a"]
        wo_frags((0,))
        if ap >= 2: upto(3 + ap); aset(); seqv += ["a", "a"]
        upto(7); wo_frags((1,))
    else:
        aset()
        A(f"s_waitcnt vmcnt({3 + 8 - NE})")
        weights()
        if o1:
            A("s_waitcnt vmcnt(7)"); wo_frags((0,)); A("s_waitcnt vmcnt(3)"); wo_frags((1,))
        else:
            A("s_waitcnt vmcnt(3)"); wo_frags()
    A("s_cbranch_vccnz L_lretry")
    def ool_l():
        A("L_lretry:")
        if cnt: A("s_mov_b32 s92, 1")
        lse_load()
        A("s_add_u32 s35, s35, 1")
        A("s_waitcnt vmcnt(0)")
        weights()
        A("s_cbranch_scc1 L_lok")
        A("s_cbranch_vccnz L_lretry")
        A("L_lok:")
        A(f"s_mov_b32 s35, {-SPIN & 0xffffffff}")
        A("s_branch L_apoll0")
    OOL.insert(0, ool_l)
    A("L_apoll0:")
    A("s_bitcmp1_b32 s6, s31"); A("s_cselect_b32 s8, 8192, 0"); A("s_bitcmp1_b32 s6, s60"); A("s_cselect_b32 s9, 8192, 0")
    def achk():
        A(f"v_max3_u32 {vr(ck)}, {vr(oa)}, {vr(oa+1)}, {vr(oa+2)}"); A(f"v_max3_u32 {vr(ck)}, {vr(ck)}, {vr(oa+3)}, {vr(oa+4)}")
        A(f"v_max3_u32 {vr(ck)}, {vr(ck)}, {vr(oa+5)}, {vr(oa+6)}"); A(f"v_max_u32 {vr(ck)}, {vr(ck)}, {vr(oa+7)}")
    if True:
        A("s_waitcnt vmcnt(0)")
        achk()
        A(f"v_cmpx_eq_u32 vcc, -1, {vr(ck)}")
        A("s_cbranch_execz L_adone")
        for _ in range(DA - 1):
            aset()
            for _ in range(GA): A("s_nop 7")
    A("L_apoll:")
    aset()
    A("s_add_u32 s35, s35, 1"); A("s_cselect_b32 s47, -1, -2")
    A(f"s_waitcnt vmcnt({2*(DA-1)})")
    achk()
    A(f"v_cmpx_lt_u32 vcc, s47, {vr(ck)}")
    A("s_cbranch_execnz L_apoll")
    A("L_adone:")
    A("s_mov_b64 exec, -1")
    A("s_waitcnt lgkmcnt(6)" if o1 else "s_waitcnt lgkmcnt(0)")
    A(f"s_mov_b32 s35, {-SPIN & 0xffffffff}")
    stamp(7)
    pp = vT + 16
    def wsum(c):
        return [f"v_mul_f32 {vr(pp+c)}, {vr(Dc+4*c)}, {vr(ls4)}"] + [f"v_fmac_f32 {vr(pp+c)}, {vr(Dc+4*c+i)}, {vr(ls4+i)}" for i in range(1, 4)]
    ws = sum((wsum(c) for c in range(4)), [])
    for k in range(8):
        c, tt = k >> 1, k & 1
        cc_ = "0" if tt == 0 else vr(Dc+4*c, 4)
        A(f"v_mfma_f32_16x16x32_bf16 {vr(Dc+4*c,4)}, {vr(oa+4*tt,4)}, {vr(vW+16*tt+4*c,4)}, {cc_}")
        if o1 and k in (2, 4, 6): A(f"s_waitcnt lgkmcnt({6 - k})")
        if k == 1: A(f"v_add_u32 {vr(vBa)}, s8, {vr(vBa)}"); A(f"v_add_u32 {vr(vBst)}, s9, {vr(vBst)}")
        if 2 <= k <= 3: A(f"s_nop {0 if (o1 and k == 2) else 1}")
        if k >= 4: A(ws.pop(0)); A(ws.pop(0))
    A(f"ds_write2_b32 {vr(vPPa)}, {vr(pp)}, {vr(pp+1)} offset0:0 offset1:16")
    for x in ws: A(x)
    A(f"ds_write2_b32 {vr(vPPa)}, {vr(pp+2)}, {vr(pp+3)} offset0:32 offset1:48")
    A("s_mov_b64 exec, 0xffff")
    A("s_waitcnt lgkmcnt(0)")
    stamp(8)
    A("s_barrier")
    pr = vX
    for w_ in range(4): A(f"ds_read_b128 {vr(pr+4*w_,4)}, {vr(vPPr)} offset:{1024*w_}")
    for w_ in range(1, 4):
        A(f"s_waitcnt lgkmcnt({3-w_})")
        for k in (0, 2): A(f"v_pk_add_f32 {vr(pr+k,2)}, {vr(pr+k,2)}, {vr(pr+4*w_+k,2)}")
    A(f"v_cvt_pk_bf16_f32 {vr(pr)}, {vr(pr)}, {vr(pr+1)}"); A(f"v_cvt_pk_bf16_f32 {vr(pr+1)}, {vr(pr+2)}, {vr(pr+3)}")
    A(f"v_min_u32 {vr(pr)}, -2, {vr(pr)}"); A(f"v_min_u32 {vr(pr+1)}, -2, {vr(pr+1)}")
    A("s_mov_b32 exec_lo, s44")
    A(f"global_store_dwordx2 {vr(vBst)}, {vr(pr,2)}, s[28:29] sc1")
    A("s_mov_b32 exec_lo, s45")
    A(f"global_store_dwordx2 {vr(vBst)}, {vr(pr,2)}, s[28:29]")
    A("s_mov_b64 exec, s[42:43]")
    stamp(9)
    if "a" in bx: A("s_waitcnt vmcnt(0)")
    if "b" in bx: A("s_barrier")
    if PB0: A(f"s_sleep {PB0}")
    def bset():
        for i in range(4):
            A(f"global_load_dwordx4 {vr(bl+4*i,4)}, {vr(vBa)}, s[28:29] offset:{896*i} sc1")
    def bchk():
        A(f"v_max3_u32 {vr(ck)}, {vr(bl)}, {vr(bl+1)}, {vr(bl+2)}")
        for i in range(3, 15, 2): A(f"v_max3_u32 {vr(ck)}, {vr(ck)}, {vr(bl+i)}, {vr(bl+i+1)}")
        A(f"v_max_u32 {vr(ck)}, {vr(ck)}, {vr(bl+15)}")
    if DB > 1:
        bset()
        A("s_waitcnt vmcnt(0)")
        bchk()
        A(f"v_cmpx_eq_u32 vcc, -1, {vr(ck)}")
        A("s_cbranch_execz L_bdone")
        for _ in range(DB - 1):
            bset()
            for _ in range(GB): A("s_nop 7")
    if o2:
        hh_ = vT + 12; s1 = vT + 8
        A("L_bpoll:")
        bset()
        A("s_add_u32 s35, s35, 1"); A("s_cselect_b32 s47, -1, -2")
        A("s_mov_b64 exec, -1")
        A.c("h = x + sum of the 16 partials (matrix core does the unpack and the adds); discarded while a partial is missing")
        for i in range(4):
            A(f"s_waitcnt vmcnt({3-i})")
            A(f"v_mfma_f32_16x16x32_bf16 {vr(hh_,4)}, {vr(vDl,4)}, {vr(bl+4*i,4)}, {vr(vXr if i == 0 else hh_,4)}")
            if i == 0:
                A(f"v_max3_u32 {vr(ck)}, {vr(bl)}, {vr(bl+1)}, {vr(bl+2)}"); A(f"v_max_u32 {vr(ck)}, {vr(ck)}, {vr(bl+3)}")
            else:
                A(f"v_max3_u32 {vr(ck)}, {vr(ck)}, {vr(bl+4*i)}, {vr(bl+4*i+1)}"); A(f"v_max3_u32 {vr(ck)}, {vr(ck)}, {vr(bl+4*i+2)}, {vr(bl+4*i+3)}")
        A(f"v_cmpx_lt_u32 vcc, s47, {vr(ck)}")
        A("s_cbranch_execnz L_bpoll")
        A("s_mov_b64 exec, -1")
        stamp(10)
        A(f"v_mov_b32 {vr(vT)}, {L_HS}")
    else:
        A("L_bpoll:")
        if PB: A(f"s_sleep {PB}")
        bset()
        A("s_add_u32 s35, s35, 1")
        A(f"s_waitcnt vmcnt({4*(DB-1)})")
        bchk()
        A("s_cbranch_scc1 L_bdone")
        A(f"v_cmpx_eq_u32 vcc, -1, {vr(ck)}")
        A("s_cbranch_execnz L_bpoll")
        A("L_bdone:")
        A("s_mov_b64 exec, -1")
        stamp(10)
        A.c("h = x + sum of the 16 partials (matrix core does the unpack and the adds)")
        hh_ = vXr; s1 = vT + 8
        A(f"v_mov_b32 {vr(vT)}, {L_HS}")
        for i in range(4): A(f"v_mfma_f32_16x16x32_bf16 {vr(hh_,4)}, {vr(vDl,4)}, {vr(bl+4*i,4)}, {vr(hh_,4)}")
    for k in (0, 2): A(f"v_pk_fma_f32 {vr(vT+4+k,2)}, {vr(hh_+k,2)}, {vr(vKs,2)}, {vr(vKs,2)} op_sel:[0,0,1] op_sel_hi:[1,0,1]")
    A(f"ds_write_b128 {vr(vHw)}, {vr(hh_,4)}")
    A(f"v_pk_mul_f32 {vr(s1,2)}, {vr(hh_,2)}, {vr(vT+4,2)}")
    A(f"v_pk_fma_f32 {vr(s1,2)}, {vr(hh_+2,2)}, {vr(vT+6,2)}, {vr(s1,2)}")
    A(f"v_add_f32 {vr(s1)}, {vr(s1)}, {vr(s1+1)}")
    for sh in (8, 4, 2, 1):
        A(f"v_add_f32_dpp {vr(s1)}, {vr(s1)}, {vr(s1)} row_ror:{sh} row_mask:0xf bank_mask:0xf")
    A(f"v_add_f32_dpp {vr(s1)}, {vr(s1)}, {vr(s1)} row_bcast:15 row_mask:0xa bank_mask:0xf")
    A("s_mov_b64 exec, s[40:41]")
    A(f"ds_write_b32 {vr(vHsw)}, {vr(s1)}")
    A("s_mov_b64 exec, -1")
    A("s_waitcnt lgkmcnt(0)")
    A("s_barrier")
    A.c("LayerNorm(LayerNorm(h)) = (h - mu) * rsqrt(var*(1+eps) + eps^2), then the token MLP")
    h8 = vT + 4; hv = vT + 1
    A(f"ds_read_b128 {vr(h8,4)}, {vr(vT)}")
    A(f"ds_read_b128 {vr(h8+4,4)}, {vr(vT)} offset:16")
    A(f"ds_read_b32 {vr(hv)}, {vr(vHa)}")
    A(f"ds_read_b64 {vr(vHf,2)}, {vr(vHf)}")
    mu = vT + 2; rs = vT + 3
    A(f"v_mov_b32 {vr(vT+12)}, {f32(1e-10)}")
    A("s_waitcnt lgkmcnt(2)")
    A(f"v_pk_add_f32 {vr(h8,2)}, {vr(h8,2)}, {vr(h8+2,2)}")
    A(f"v_pk_add_f32 {vr(h8+4,2)}, {vr(h8+4,2)}, {vr(h8+6,2)}")
    A(f"v_pk_add_f32 {vr(mu,2)}, {vr(h8,2)}, {vr(h8+4,2)}")
    A(f"v_fma_f32 {vr(rs)}, -{vr(mu)}, {vr(mu)}, {vr(rs)}")
    A(f"v_fma_f32 {vr(rs)}, |{vr(rs)}|, s36, {vr(vT+12)}")
    A(f"v_rsq_f32 {vr(rs)}, {vr(rs)}")
    A("s_waitcnt lgkmcnt(1) vmcnt(0)")
    A(f"v_sub_f32 {vr(hv)}, {vr(hv)}, {vr(mu)}")
    A(f"v_mul_f32 {vr(hv)}, {vr(hv)}, {vr(rs)}")
    A(f"v_cvt_pk_bf16_f32 {vr(hv)}, {vr(hv)}, {vr(hv)}")
    A(f"v_and_b32 {vr(hv)}, s38, {vr(hv)}")
    X_ = vT + 4; Y = vT + 5; t1 = vT + 6; t2 = vT + 7; Am = vT + 8
    A(f"v_fma_f32 {vr(X_)}, {vr(hv)}, {vr(vK1)}, {vr(vK1+1)}"); A(f"v_mul_f32 {vr(X_)}, {vr(X_)}, {vr(hv)}")
    A(f"v_fma_f32 {vr(Y)}, {vr(X_)}, {vr(vK1)}, {vr(vK1+2)}")
    A(f"v_cvt_pk_bf16_f32 {vr(Am)}, {vr(X_)}, {vr(X_)}")
    A(f"v_mul_f32 {vr(Y)}, {vr(Y)}, {vr(hv)}")
    A(f"v_and_b32 {vr(t1)}, s38, {vr(Am)}")
    A(f"v_cvt_pk_bf16_f32 {vr(Am+2)}, {vr(Y)}, {vr(Y)}")
    A(f"v_sub_f32 {vr(X_)}, {vr(X_)}, {vr(t1)}")
    A(f"v_and_b32 {vr(t2)}, s38, {vr(Am+2)}")
    A(f"v_cvt_pk_bf16_f32 {vr(Am+1)}, {vr(X_)}, {vr(X_)}")
    A(f"v_sub_f32 {vr(Y)}, {vr(Y)}, {vr(t2)}")
    A(f"v_or_b32 {vr(Am+1)}, {vr(Am+1)}, {vr(vK1+3)}")
    A(f"v_cvt_pk_bf16_f32 {vr(Am+3)}, {vr(Y)}, {vr(Y)}")
    A(f"v_or_b32 {vr(Am+3)}, {vr(Am+3)}, {vr(vK1+4)}")
    A(f"v_cmp_nge_f32 vcc, s3, |{vr(hv)}|")
    stamp(11)
    Db = [vX, vX + 16, vX + 32]; acc = vT + 12; Dd = vRaw; Nn = vRaw + 8
    def mm(tile):
        A(f"v_mfma_f32_32x32x16_bf16 {vr(Db[tile%3],16)}, {vr(Am,4)}, {vr(vC+4*tile,4)}, 0")
    mm(0)
    A("s_waitcnt lgkmcnt(0)")
    A(f"v_add_f32 {vr(vHf)}, {vr(vHf)}, {vr(vB2)}"); A(f"v_add_f32 {vr(vHf+1)}, {vr(vHf+1)}, {vr(vB2)}")
    A(f"v_lshlrev_b32 {vr(vT)}, 3, v1"); A(f"v_add_u32 {vr(vT)}, {L_Y}, {vr(vT)}")
    if wb:
        A("s_cmp_eq_u32 s30, 0"); A("s_cselect_b32 s33, s32, 0"); A(f"s_cmp_ge_u32 s33, {32 - wb}"); A("s_cbranch_scc0 L_nowb"); A("buffer_wbl2 sc1"); A("L_nowb:")
    if wbt >= 0:
        A("s_cmp_eq_u32 s30, 0"); A("s_cselect_b32 s33, s32, 0"); A("s_cmp_eq_u32 s33, 31")
        def ool_wb():
            A("L_wb:"); A("buffer_wbl2 sc1"); A("s_branch L_wbd")
        OOL.insert(0, ool_wb)
    A("s_cbranch_vccnz L_fb")
    A("L_mlp:")
    A.c("sum_f n_f / (1 + e_f) kept as one fraction N / D")
    if o3:
        def chain(k, D, Np, first):
            if first: return [f"v_pk_add_f32 {vr(Dd+k,2)}, {vr(D+k,2)}, 1.0 op_sel_hi:[1,0]"]
            return [f"v_pk_fma_f32 {vr(D+8+k,2)}, {vr(D+8+k,2)}, {vr(Dd+k,2)}, {vr(Np+k,2)}",
                    f"v_pk_fma_f32 {vr(Dd+k,2)}, {vr(Dd+k,2)}, {vr(D+k,2)}, {vr(Dd+k,2)}",
                    f"v_pk_fma_f32 {vr(Nn+k,2)}, {vr(Np+k,2)}, {vr(D+k,2)}, {vr(D+8+k,2)}"]
        for tile in range(14):
            D = Db[tile % 3]; P = Db[(tile - 1) % 3]
            if tile == wbt: A("s_cbranch_scc1 L_wb"); A("L_wbd:")
            if tile + 1 < 14: mm(tile + 1)
            odd = tile & 1
            if odd:
                if tile == 1: A(f"v_mov_b32 {vr(Nn+6)}, {vr(P+14)}"); A(f"v_mov_b32 {vr(Nn+7)}, {vr(D+14)}")
                else: A(f"v_mov_b32 {vr(P+15)}, {vr(D+14)}")
            for i in range(6): A(f"v_exp_f32 {vr(D+i)}, {vr(D+i)}")
            A(f"v_exp_f32 {vr(P+7 if odd else D+6)}, {vr(D+6)}")
            ch = [chain(k, D, Db[0] + 8 if tile == 1 else Nn, tile == 0) for k in (0, 2, 4)]
            if odd: ch.append(chain(6, P, Nn, tile == 1))
            for st in range(3):
                for c_ in ch:
                    if len(c_) == 3: A(c_[st])
                    elif st == (0 if tile == 0 else 1): A(c_[0])
        for i in (6, 7, 0, 1, 2, 3, 4, 5): A(f"v_rcp_f32 {vr(Dd+i)}, {vr(Dd+i)}")
        A(f"v_mul_f32 {vr(acc+6)}, {vr(Nn+6)}, {vr(Dd+6)}"); A(f"v_fmac_f32 {vr(acc+6)}, {vr(Nn+7)}, {vr(Dd+7)}")
        for k in (0, 2, 4): A(f"v_pk_mul_f32 {vr(acc+k,2)}, {vr(Nn+k,2)}, {vr(Dd+k,2)}")
    else:
        for tile in range(14):
            D = Db[tile % 3]
            if tile + 1 < 14: mm(tile + 1)
            for i in range(7): A(f"v_exp_f32 {vr(D+i)}, {vr(D+i)}")
            if tile == 0:
                for k in range(0, 8, 2): A(f"v_pk_add_f32 {vr(Dd+k,2)}, {vr(D+k,2)}, 1.0 op_sel_hi:[1,0]")
                continue
            Np = Db[0] + 8 if tile == 1 else Nn
            for k in range(0, 8, 2): A(f"v_pk_fma_f32 {vr(D+8+k,2)}, {vr(D+8+k,2)}, {vr(Dd+k,2)}, {vr(Np+k,2)}")
            for k in range(0, 8, 2): A(f"v_pk_fma_f32 {vr(Dd+k,2)}, {vr(Dd+k,2)}, {vr(D+k,2)}, {vr(Dd+k,2)}")
            for k in range(0, 8, 2): A(f"v_pk_fma_f32 {vr(Nn+k,2)}, {vr(Np+k,2)}, {vr(D+k,2)}, {vr(D+8+k,2)}")
        for i in range(7): A(f"v_rcp_f32 {vr(Dd+i)}, {vr(Dd+i)}")
        for k in range(0, 8, 2): A(f"v_pk_mul_f32 {vr(acc+k,2)}, {vr(Nn+k,2)}, {vr(Dd+k,2)}")
    A("L_fbd:")
    A("s_cmp_eq_u32 s30, 1")
    def ool_fb():
        A("L_fb:")
        A.c("direct evaluation (large activations or weights)")
        hh = vRaw; fa = vRaw + 8; w_ = vRaw + 9; b_ = vRaw + 10; u_ = vRaw + 11; x_ = vRaw + 12; p_ = vRaw + 13; al = vRaw + 14
        A(f"v_lshrrev_b32 {vr(fa)}, 5, v0"); A(f"v_mul_u32_u24 {vr(fa)}, 28, {vr(fa)}")
        A("s_mul_i32 s33, s32, 56"); A(f"s_add_u32 s33, s33, {L_H}"); A(f"v_add_u32 {vr(fa)}, s33, {vr(fa)}")
        for i in range(7): A(f"ds_read_b32 {vr(hh+i)}, {vr(fa)} offset:{4*i}")
        A(f"v_and_b32 {vr(fa)}, 31, v0"); A(f"v_lshlrev_b32 {vr(fa)}, 1, {vr(fa)}")
        A("s_mul_i32 s33, s30, 896"); A(f"v_add_u32 {vr(fa)}, s33, {vr(fa)}")
        A(f"s_mov_b32 s33, {f32(BETA)}"); A(f"v_mov_b32 {vr(al)}, {f32(ALPHA)}")
        for i in range(8): A(f"v_mov_b32 {vr(acc+i)}, 0")
        A("s_waitcnt lgkmcnt(0)")
        for i in range(7):
            A(f"v_sub_f32 {vr(hh+i)}, {vr(hh+i)}, {vr(mu)}"); A(f"v_mul_f32 {vr(hh+i)}, {vr(hh+i)}, {vr(rs)}")
            A(f"v_cvt_pk_bf16_f32 {vr(hh+i)}, {vr(hh+i)}, {vr(hh+i)}"); A(f"v_and_b32 {vr(hh+i)}, s38, {vr(hh+i)}")
        A("s_mov_b32 s34, 0")
        A("L_fbl:")
        A(f"global_load_ushort {vr(w_)}, {vr(fa)}, s[16:17]"); A(f"global_load_ushort {vr(b_)}, {vr(fa)}, s[18:19]"); A(f"global_load_ushort {vr(u_)}, {vr(fa)}, s[20:21]")
        A(f"v_add_u32 {vr(fa)}, 64, {vr(fa)}")
        A("s_waitcnt vmcnt(0)")
        for r_ in (w_, b_, u_): A(f"v_lshlrev_b32 {vr(r_)}, 16, {vr(r_)}")
        for i in range(7):
            A(f"v_fma_f32 {vr(x_)}, {vr(w_)}, {vr(hh+i)}, {vr(b_)}")
            A(f"v_mul_f32 {vr(p_)}, {vr(x_)}, {vr(x_)}"); A(f"v_fma_f32 {vr(p_)}, {vr(p_)}, s33, {vr(al)}"); A(f"v_mul_f32 {vr(p_)}, {vr(p_)}, {vr(x_)}")
            A(f"v_exp_f32 {vr(p_)}, {vr(p_)}"); A(f"v_add_f32 {vr(p_)}, 1.0, {vr(p_)}"); A(f"v_rcp_f32 {vr(p_)}, {vr(p_)}")
            A(f"v_mul_f32 {vr(x_)}, {vr(x_)}, {vr(p_)}"); A(f"v_fmac_f32 {vr(acc+i)}, {vr(x_)}, {vr(u_)}")
        A("s_add_u32 s34, s34, 1"); A("s_cmp_lt_u32 s34, 14"); A("s_cbranch_scc1 L_fbl")
        A("s_branch L_fbd")
    OOL.append(ool_fb)
    stamp(12)
    for k in range(4): A(f"v_add_f32_dpp {vr(acc+2*k)}, {vr(acc+2*k)}, {vr(acc+2*k)} row_ror:8 row_mask:0xf bank_mask:0x3")
    for k in range(3): A(f"v_add_f32_dpp {vr(acc+2*k)}, {vr(acc+2*k+1)}, {vr(acc+2*k+1)} row_ror:8 row_mask:0xf bank_mask:0xc")
    for k in range(2): A(f"v_add_f32_dpp {vr(acc+4*k)}, {vr(acc+4*k)}, {vr(acc+4*k)} row_shl:4 row_mask:0xf bank_mask:0x5")
    for k in range(2): A(f"v_add_f32_dpp {vr(acc+4*k)}, {vr(acc+4*k+2)}, {vr(acc+4*k+2)} row_shr:4 row_mask:0xf bank_mask:0xa")
    A(f"v_permlane16_swap_b32 {vr(acc)}, {vr(acc+4)}")
    A(f"v_add_f32 {vr(acc)}, {vr(acc)}, {vr(acc+4)}")
    A(f"v_add_f32_dpp {vr(acc)}, {vr(acc)}, {vr(acc)} quad_perm:[1,0,3,2] row_mask:0xf bank_mask:0xf")
    A(f"v_add_f32_dpp {vr(acc)}, {vr(acc)}, {vr(acc)} quad_perm:[2,3,0,1] row_mask:0xf bank_mask:0xf")
    A(f"ds_write_b32 {vr(vYa)}, {vr(acc)}")
    A("s_mov_b64 exec, 0x7f")
    A("s_waitcnt lgkmcnt(0)")
    A("s_barrier")
    A("s_cbranch_scc0 L_fin")
    A(f"ds_read2_b64 {vr(vT+4,4)}, {vr(vT)} offset0:0 offset1:8")
    A(f"ds_read2_b64 {vr(vT+8,4)}, {vr(vT)} offset0:16 offset1:24")
    A("s_waitcnt lgkmcnt(1)")
    A(f"v_pk_add_f32 {vr(vHf,2)}, {vr(vHf,2)}, {vr(vT+4,2)}"); A(f"v_pk_add_f32 {vr(vHf,2)}, {vr(vHf,2)}, {vr(vT+6,2)}")
    A("s_waitcnt lgkmcnt(0)")
    A(f"v_pk_add_f32 {vr(vHf,2)}, {vr(vHf,2)}, {vr(vT+8,2)}"); A(f"v_pk_add_f32 {vr(vHf,2)}, {vr(vHf,2)}, {vr(vT+10,2)}")
    A(f"v_cvt_pk_bf16_f32 {vr(vT+2)}, {vr(vHf)}, {vr(vHf+1)}")
    A(f"global_store_dword {vr(vOut)}, {vr(vT+2)}, s[24:25] {outpol}")
    A("L_fin:")
    stamp(13)
    if amp:
        A(f"s_cmp_eq_u32 s30, {amp[0]}"); A("s_cbranch_scc0 L_end")
        A("s_waitcnt lgkmcnt(0)")
        A(f"s_sub_u32 s33, s{64+2*amp[1]}, s{64+2*amp[2]}")
        if amp[3] < 0: A("s_sub_u32 s33, 3000, s33")
        A("s_min_u32 s33, s33, 5000"); A("s_lshl_b32 s33, s33, 3"); A("s_add_u32 s33, s33, 4000")
        A("L_amp:")
        A("s_memrealtime s[34:35]"); A("s_waitcnt lgkmcnt(0)"); A("s_sub_u32 s34, s34, s64")
        A("s_cmp_lt_u32 s34, s33"); A("s_cbranch_scc1 L_amp")
    if cnt:
        for k in range(3):
            A(f"s_cmp_eq_u32 s{90+k}, 0"); A(f"s_cbranch_scc1 L_c{k}"); A(f"s_atomic_add s{90+k}, s[26:27], {128+4*k}"); A("s_waitcnt lgkmcnt(0)"); A(f"L_c{k}:")
    if gamp:
        A(f"s_cmp_eq_u32 s30, {gamp[3] if len(gamp) > 3 else 1}"); A("s_cbranch_scc0 L_end")
        A("s_waitcnt lgkmcnt(0)")
        A(f"s_mov_b32 s36, s{64+2*gamp[0]}")
        A(f"s_not_b32 s37, s{64+2*gamp[1]}" if gamp[2] == "min" else f"s_mov_b32 s37, s{64+2*gamp[1]}")
        A("s_atomic_umax s36, s[26:27], 192"); A("s_atomic_umax s37, s[26:27], 196"); A("s_waitcnt lgkmcnt(0)")
        A("s_cmp_eq_u32 s2, 0"); A("s_cbranch_scc0 L_end")
        A("L_g1:")
        A("s_memrealtime s[34:35]"); A("s_waitcnt lgkmcnt(0)"); A("s_sub_u32 s34, s34, s64")
        A("s_cmp_lt_u32 s34, 3800"); A("s_cbranch_scc1 L_g1")
        A("s_load_dwordx2 s[36:37], s[26:27], 192 glc"); A("s_waitcnt lgkmcnt(0)")
        if gamp[2] == "min": A("s_not_b32 s37, s37")
        A("s_sub_u32 s33, s36, s37"); A("s_min_u32 s33, s33, 2000"); A(f"s_lshl_b32 s33, s33, {gamp[4] if len(gamp) > 4 else 3}"); A("s_add_u32 s33, s33, 4000")
        A("L_g2:")
        A("s_memrealtime s[34:35]"); A("s_waitcnt lgkmcnt(0)"); A("s_sub_u32 s34, s34, s64")
        A("s_cmp_lt_u32 s34, s33"); A("s_cbranch_scc1 L_g2")
    if rnd:
        A("s_cmp_eq_u32 s30, 0"); A("s_cselect_b32 s33, s2, 1"); A("s_cmp_eq_u32 s33, 0"); A("s_cbranch_scc0 L_end")
        A("s_memrealtime s[64:65]"); A("s_waitcnt lgkmcnt(0)")
        A("s_lshr_b32 s33, s64, 2"); A("s_mul_i32 s33, s33, 0x9e3779b1"); A("s_lshr_b32 s34, s33, 15"); A("s_xor_b32 s33, s33, s34"); A("s_mul_i32 s33, s33, 0x85ebca6b")
        A("s_lshr_b32 s33, s33, 19")
        A("L_rnd:")
        A("s_memrealtime s[34:35]"); A("s_waitcnt lgkmcnt(0)"); A("s_sub_u32 s34, s34, s64")
        A("s_cmp_lt_u32 s34, s33"); A("s_cbranch_scc1 L_rnd")
    dump_stamps(15)
    A("L_end:")
    A("s_endpgm")
    for f in OOL: f()
    A(".fill 1024, 4, 0xbf810000")

    body, nn = fix_hazards(A.L)
    if a8:
        import subprocess, tempfile, os
        i0 = body.index("L_tail:"); i1 = body.index("L_end:")
        probe = ['.amdgcn_target "amdgcn-amd-amdhsa--gfx950"', ".text"]
        for i, l in enumerate(body):
            if i0 <= i <= i1: probe.append(f"P_{i}:")
            probe.append(l)
        d = tempfile.mkdtemp(); open(d + "/p.s", "w").write("\n".join(probe) + "\n")
        subprocess.run(["clang", "-x", "assembler", "-target", "amdgcn-amd-amdhsa", "-mcpu=gfx950", "-c", d + "/p.s", "-o", d + "/p.o"], check=True)
        sym = subprocess.run(["llvm-objdump", "-t", d + "/p.o"], capture_output=True, text=True).stdout
        ad = {int(l.split()[-1][2:]): int(l.split()[0], 16) for l in sym.splitlines() if l.split() and l.split()[-1].startswith("P_")}
        sizes = [0] * len(body)
        for i in range(i0, i1): sizes[i] = ad[i + 1] - ad[i]
        st = body.index(a8[0] + ":")
        body, n8 = align8(body, a8[0], a8[1], sizes, ad[st] % 8)
    head = [l.rstrip("\n") for l in open("header.txt")]
    head.append(f"; @launch grid=(256,1,1) block=(512,1,1) lds={L_END}")
    head += DOC
    head += ['.amdgcn_target "amdgcn-amd-amdhsa--gfx950"', ".text"] + ([".p2align 12"] if al else []) + ([f".fill {pad // 4}, 4, 0xbf810000"] if pad else []) + [f".globl {NAME}", ".p2align 8", f".type {NAME},@function"]
    tail = ['.section .rodata,"a"'] + ([f".fill {rpad // 4}, 4, 0"] if rpad else []) + [".p2align 6", f".amdhsa_kernel {NAME}",
            "  .amdhsa_next_free_vgpr 256", "  .amdhsa_next_free_sgpr 96", "  .amdhsa_accum_offset 256",
            "  .amdhsa_group_segment_fixed_size 0", "  .amdhsa_kernarg_size 104", "  .amdhsa_user_sgpr_count 2",
            "  .amdhsa_user_sgpr_kernarg_segment_ptr 1", "  .amdhsa_system_sgpr_workgroup_id_x 1",
            "  .amdhsa_float_denorm_mode_32 3", ".end_amdhsa_kernel"]
    return "\n".join(head + body + tail) + "\n"

if __name__ == "__main__":
    kw = eval("dict(" + (sys.argv[2] if len(sys.argv) > 2 else "") + ")")
    open(sys.argv[1], "w").write(gen(**kw))
```

```python
import sys, struct, math
from asmlib import *

NAME = "sequential_preLN__sliding_block_cached__mixer_token_mlp__decode_kernel"
def f32(x): return "0x%08x" % struct.unpack("<I", struct.pack("<f", x))[0]

L_K = 0; L_WQ = 131072; L_Q = 145408; L_STAT = 146432; L_OP = 146688; L_PP = 154880; L_H = 158976; L_HS = 161024; L_Y = 161088
L_END = 161344
L_X = L_OP
W_Q = 0
W_L = 0xC0000
W_O = 0x40000
W_B = 0x80000
W_ALT = 0x100000
W_STAMP = 0x200000
SPIN = 0x20000
STAMP_VIEW = [("S", slice(4, 8), [0, 8, 6, 7, 1, 2, 3, 4, 5]), ("T0", 0, [0, 1, 3, 4, 14]), ("T3L", 3, [0, 1, 4], slice(224, 256)),
              ("T1", 1, [0, 4, 2, 5, 6, 7, 8, 9, 10, 11, 12, 13]), ("Tall", slice(0, 4), [5, 6, 7, 8, 9, 10, 11, 12, 13])]
ALPHA = -2.0 * math.sqrt(2.0 / math.pi) * math.log2(math.e)
BETA = ALPHA * 0.044715

DOC = """
; ---------------------------------------------------------------------------------------------------------------------
; One launch, 256 workgroups (one per CU), 8 waves each.  g = workgroup id, kvh = g & 7, r = g >> 3, b = r >> 2, s = r & 3.
;   waves 4-7 (stream): K (LDS-DMA) and V (registers) for 256 of the last 1024 keys of (b, kvh); QK^T, true-max softmax
;                       over those keys, P.V with a delta-structured A operand so V is used as loaded.
;   waves 0-3 (tail):   q projection tile, MLP operand preparation, then out projection, LayerNorms and the token MLP.
; Hand-offs between workgroups go through d_ws.  Every slot is set to 0xffffffff in this launch before anyone looks at
; it (ordered through counters in the zeroed d_debug and through the q hand-off itself); data never takes that value.
;   q    : 64 columns x 112 rows per workgroup, LN(x) applied after the product: rstd*(x.W - mean*colsum(W))
;   o,lse: per split, normalised by the split's own sum; combined with softmax(lse) after the out-projection product
;   rows : 16 partial rows per batch, summed by the workgroups that run the MLP for that batch
; q, o and lse stay inside one group (same kvh).  They use plain stores only when every member has checked that it sits
; on the XCD whose L2 holds the cleared slots; otherwise the group switches to write-through stores in a second copy.
; LN(LN(h)) = (h - mean) * rsqrt(var*(1+eps) + eps^2) exactly.  gelu_tanh(u) = u / (1 + 2^z), z = a*u + b*u^3, which is
; a cubic in hn evaluated on the matrix core with hi/lo bf16 operands; sum_f n_f/(1+e_f) is carried as one fraction.
; A bound computed from w1, b1, w2 sends a wave to the plain per-element evaluation when that form could overflow.
; ---------------------------------------------------------------------------------------------------------------------
""".strip("\n").split("\n")

def gen(W=8, QPOS=3, QD=2, FT=-1, stamps=False, force_slow=False, pol="nt", vpol=None, qpol="nt", opol="nt", opol2="nt", spol="", skip="",
        pref=True, opos="mid", qx=16, force_fb=False, touch=False, amp=None, DA=1, DB=1, rotm=1, PB=0, NL=1, EP=0, inst=0, spf=2, WE=0, WEN=64, WE0=8, WEM=0x55, NLD=4, LD0=8, qpace=0, prio=0, QT=0, GA=0, GB=0, cpos="early", N1=8, c1=True, NE=0, o1=True, o2=True, o3=True, ap=2, NB=0, pos=None, rot='', wb=0, wbs=0, ks=0, b0=0, b0n=0, rnd=0, vk=0, vt=-1, cnt=False, rpad=0, bph=0, a8=('L_mlp', 'L_fbd'), wbt=5, wbm=0, tl_=0, tlw=2, gamp=None, wq1=0, wbr=31, lw=True, pad=0, al=1, tal=0, warm=0, outpol='', hack="", bx="ab", PB0=0):
    A = Asm()
    c1_ = c1
    OOL = []
    def stamp(i):
        if stamps or (amp and i in (amp[1], amp[2], 0)) or (gamp and i in (gamp[0], gamp[1], 0)): A(f"s_memrealtime s[{64+2*i}:{65+2*i}]")
    def dump_stamps(nst):
        if not stamps: return
        A("s_waitcnt lgkmcnt(0) vmcnt(0)")
        A("s_lshl_b32 s94, s2, 3"); A("s_add_u32 s94, s94, s30"); A("s_lshl_b32 s94, s94, 6"); A(f"s_add_u32 s94, s94, {W_STAMP}")
        A("s_mov_b64 exec, 1")
        A("v_mov_b32 v4, s94")
        for i in range(nst):
            A(f"v_mov_b32 v5, s{64+2*i}")
            A(f"global_store_dword v4, v5, s[28:29] offset:{4*i}")
        A("s_getreg_b32 s94, hwreg(HW_REG_XCC_ID, 0, 4)"); A("v_mov_b32 v5, s94")
        A("global_store_dword v4, v5, s[28:29] offset:60")
        A("s_waitcnt vmcnt(0)")

    def brow(dst, b): A(f"s_lshl_b32 {dst}, {b}, 15")
    BH = 16384
    A(f"{NAME}:")
    stamp(0)
    A("s_load_dwordx16 s[4:19], s[0:1], 0" if ks != 2 else "s_load_dwordx8 s[4:11], s[0:1], 0")
    if not ks or stamps:
        A("s_load_dwordx8 s[20:27], s[0:1], 64")
        A("s_load_dwordx2 s[28:29], s[0:1], 96")
    A("v_lshrrev_b32 v1, 6, v0")
    A("s_lshr_b32 s32, s2, 3")
    A("v_readfirstlane_b32 s30, v1")
    A("s_cmp_ge_u32 s32, 32")
    A("s_cbranch_scc1 L_end")
    A("v_and_b32 v0, 63, v0")
    A("s_and_b32 s31, s2, 7")
    A("v_lshlrev_b32 v3, 4, v0")
    A("s_cmp_lt_u32 s30, 4")
    A("s_cbranch_scc1 L_T")

    A.c("================ stream waves")
    V = Alloc(4, 256)
    vK = V(8); vKb = V(); vVb = V(); vAd = V(2); vKA = V(4); vM = V(4); vT = V(8); vOPa = V(2); vQA = V(); vSTw = V(); vSTr = V()
    vS = V(16); vAcc = vK; vQ = V(32); vKF = V(32); vVv = V(128)
    vA = vQ
    assert vKF == vQ + 32
    M = dict(j0=68, j1=1, r1=12, r2=256, r3=32, s0=24, s1=130, t0=2, t1=4) if pos is None else dict(pos)
    M = {k: v << 10 for k, v in M.items()}
    span = {0}
    for k in ("r1", "r2", "r3", "j0", "j1", "t0", "t1", "s0", "s1"): span |= {x ^ M[k] for x in span}
    assert len(span) == 512
    SRC = dict(s0=("s2", 3), s1=("s2", 4), b0=("s2", 5), b1=("s2", 6), b2=("s2", 7), k0=("s2", 0), k1=("s2", 1), k2=("s2", 2), j0=("s30", 0), j1=("s30", 1))
    def gaddr(i, tl=0):
        x = 0
        for k in range(3):
            if (i >> k) & 1: x ^= M[f"r{k+1}"]
        for k in range(2):
            if (tl >> k) & 1: x ^= M[f"t{k}"]
        return x
    def X(i, tl): return ((8*(i & 1) + (i >> 1)) << 4) | gaddr(i, tl)
    A("s_lshr_b32 s34, s2, 5"); A("s_lshl3_add_u32 s34, s34, s31"); A("s_lshl2_add_u32 s34, s34, 3"); A("s_lshl_b32 s40, s34, 19")
    first = True
    for k, (reg, bit) in SRC.items():
        if M.get(k):
            A(f"s_bitcmp1_b32 {reg}, {bit}"); A(f"s_cselect_b32 {'s38' if first else 's35'}, {M[k]}, 0")
            if not first: A("s_xor_b32 s38, s38, s35")
            first = False
    A("s_sub_u32 s33, s30, 4")
    A("s_lshl_b32 s37, s33, 15")
    A(f"v_and_b32 {vr(vT)}, 32, v0"); A(f"v_lshlrev_b32 {vr(vT)}, 1, {vr(vT)}")
    A(f"v_xor_b32 {vr(vT)}, {vr(vT)}, v3")
    A(f"v_xor_b32 {vr(vKb)}, s38, {vr(vT)}")
    if prio == 2: A("s_setprio 3")
    A("s_brev_b32 s54, 16"); A("s_mov_b32 s55, 0x20000")
    A("s_mov_b32 m0, s37")
    A("s_waitcnt lgkmcnt(0)")
    A("s_mov_b64 s[52:53], s[6:7]")
    stamp(8)
    issued = [0]
    def throttle():
        if WE and WE0 <= issued[0] < WE0 + WEN:
            A(f"s_cbranch_vccz L_th{issued[0]}"); A(f"s_waitcnt vmcnt({abs(WE)-1})"); A(f"L_th{issued[0]}:")
        if issued[0] >= W: A(f"s_waitcnt vmcnt({W-1})")
        issued[0] += 1
    def kload(tl, i):
        ad = vKb
        if tl or i:
            ad = vAd + (i & 1)
            A(f"s_add_u32 m0, s37, {(tl << 13) | (i << 10)}"); A(f"v_xor_b32 {vr(ad)}, {X(i, tl)}, {vr(vKb)}")
        throttle()
        A(f"buffer_load_dwordx4 {vr(ad)}, s[52:55], s40 offen {pol} lds")
    for i in range(8):
        if b0 and i == b0n: A("s_barrier")
        kload(0, i)
    A("s_branch L_S2")

    A("L_T:")
    A.c("================ tail waves")
    if ks == 2: A("s_load_dwordx8 s[12:19], s[0:1], 32")
    if ks and not stamps:
        A("s_load_dwordx8 s[20:27], s[0:1], 64")
        A("s_load_dwordx2 s[28:29], s[0:1], 96")
    V = Alloc(4, 256)
    vC = V(56); vW = V(32); vRaw = V(32); vX = V(56); tT = V(24)
    vXr = V(4); vDl = V(4); vQs = V(8); vG = V(4); vK1 = V(5); vHa = V(); vKs = V(2); vHf = V(2)
    vYa = V(); vLa = V(); vOa = V(); vPPa = V(); vBst = V(); vOst = V(); vLst = V(); vLse = V()
    vBa = V(); vHw = V(); vHsw = V(); vOut = V(); vB2 = V(); vQa = V(); vOPr = V(); vPPr = V(); vWa = V(2); vQw = V(); vWr = V()
    assert vRaw == vW + 32
    raw = vRaw if cpos == "early" else vX + 32
    def prep_loads():
        t = tT + 14
        A.c("MLP weights, residual row piece, b2")
        if c1_:
            A("s_mul_i32 s33, s30, 896")
            A(f"v_mul_u32_u24 {vr(t)}, 12, v0"); A(f"v_add_u32 {vr(t)}, {508 - 384}, {vr(t)}")
            A("v_cmp_lt_u32 vcc, 31, v0"); A(f"v_cndmask_b32 {vr(t)}, v3, {vr(t)}, vcc"); A(f"v_add_u32 {vr(t)}, s33, {vr(t)}")
            for k, sp in enumerate((16, 18, 20)):
                A(f"global_load_dwordx4 {vr(raw+8*k,4)}, {vr(t)}, s[{sp}:{sp+1}] {spol}")
        else:
            A(f"v_and_b32 {vr(t)}, 31, v0")
            A("s_mul_i32 s33, s30, 896")
            A(f"v_lshlrev_b32 {vr(t+1)}, 4, {vr(t)}"); A(f"v_add_u32 {vr(t+1)}, s33, {vr(t+1)}")
            A(f"v_lshlrev_b32 {vr(t+2)}, 3, {vr(t)}"); A(f"v_add_u32 {vr(t+2)}, s33, {vr(t+2)}")
            A(f"v_lshlrev_b32 {vr(t+3)}, 2, {vr(t)}"); A(f"v_add_u32 {vr(t+3)}, s33, {vr(t+3)}")
            for k, sp in enumerate((16, 18, 20)):
                A(f"global_load_dwordx4 {vr(raw+8*k,4)}, {vr(t+1)}, s[{sp}:{sp+1}] {spol}")
                A(f"global_load_dwordx2 {vr(raw+8*k+4,2)}, {vr(t+2)}, s[{sp}:{sp+1}] offset:512 {spol}")
                A(f"global_load_dword {vr(raw+8*k+6)}, {vr(t+3)}, s[{sp}:{sp+1}] offset:768 {spol}")
        A(f"v_min_u32 {vr(t)}, 13, v1"); A(f"v_and_b32 {vr(t+1)}, 1, v2")
        A("s_mul_i32 s33, s31, 896"); A("s_mul_i32 s34, s30, 224"); A("s_add_u32 s33, s33, s34")
        A(f"v_lshlrev_b32 {vr(t)}, 4, {vr(t)}"); A(f"v_lshl_add_u32 {vr(t)}, {vr(t+1)}, 3, {vr(t)}"); A(f"v_add_u32 {vr(t)}, s33, {vr(t)}")
        A(f"global_load_dwordx2 {vr(vXr+2,2)}, {vr(t)}, s[4:5] {spol}")
        A(f"v_mov_b32 {vr(t+2)}, 0")
        A(f"global_load_ushort {vr(vB2)}, {vr(t+2)}, s[22:23] {spol}")
    A("v_and_b32 v1, 15, v0")
    A("v_lshrrev_b32 v2, 4, v0")
    A("s_lshl_b32 s63, s31, 2")
    A(f"v_mov_b32 {vr(vQw)}, 0")
    if cnt: A("s_mov_b32 s90, 0"); A("s_mov_b32 s91, 0"); A("s_mov_b32 s92, 0")
    A("s_mov_b64 s[40:41], 0")
    if b0: A("s_mov_b32 s46, 0")
    if "T" in skip:
        A("s_waitcnt lgkmcnt(0)"); A("s_barrier"); A("s_barrier"); A("s_barrier")
        if NL: A("s_barrier")
        A("s_branch L_b3")
    A("s_cmp_eq_u32 s30, 0"); A("s_cbranch_scc1 L_T0")
    A("s_cmp_eq_u32 s30, 3"); A("s_cbranch_scc1 L_T3")
    if spf:
        A("s_cmp_eq_u32 s30, 1"); A("s_cbranch_scc1 L_T1")
    if pref:
        if not spf: A("s_cmp_eq_u32 s30, 2"); A("s_cbranch_scc0 L_prepw")
        A.c("T2: pull the code into this XCD's L2")
        A("s_getpc_b64 s[34:35]")
        A("L_pc:")
        A(f"s_sub_u32 s34, s34, L_pc-{NAME}"); A("s_subb_u32 s35, s35, 0")
        A("s_mul_i32 s33, s32, 640")
        A(f"v_min_u32 {vr(tT)}, 9, v0"); A(f"v_lshlrev_b32 {vr(tT)}, 6, {vr(tT)}"); A(f"v_add_u32 {vr(tT)}, s33, {vr(tT)}")
        A(f"global_load_dword {vr(tT+2)}, {vr(tT)}, s[34:35]")
    A("s_branch L_prepw")
    if spf:
        A("L_T1:")
        A.c("T1: pull 14 rows of the wq column block that r=28..31 read (and of the last block) into L2")
        A("s_mul_i32 s33, s32, 14*8192"); A("s_lshl_b32 s34, s31, 10"); A("s_add_u32 s33, s33, s34"); A("s_addk_i32 s33, 384")
        A(f"v_min_u32 {vr(tT)}, 13, v1"); A(f"v_lshlrev_b32 {vr(tT)}, 13, {vr(tT)}")
        A(f"v_and_b32 {vr(tT+1)}, 1, v2"); A(f"v_lshl_add_u32 {vr(tT)}, {vr(tT+1)}, 6, {vr(tT)}")
        A(f"v_lshrrev_b32 {vr(tT+1)}, 1, v2"); A(f"v_lshl_add_u32 {vr(tT)}, {vr(tT+1)}, 9, {vr(tT)}")
        A(f"v_add_u32 {vr(tT)}, s33, {vr(tT)}")
        A("s_cmp_eq_u32 s31, 7"); A("s_cselect_b32 exec_hi, -1, 0")
        if spf == 2: A("s_and_b32 exec_hi, exec_hi, 0xffff"); A("s_mov_b32 exec_lo, 0xffff")
        A("s_waitcnt lgkmcnt(0)")
        A(f"global_load_dword {vr(tT+2)}, {vr(tT)}, s[10:11]")
        A("s_mov_b64 exec, -1")
        A("s_branch L_prepw")
    A("L_T3:")
    A.c(f"T3 of {NLD} workgroup(s) per group: clear a share of the group's q and lse slots, then count in")
    per = 4 // NLD
    A(f"s_sub_u32 s36, s32, {LD0}"); A(f"s_cmp_lt_u32 s36, {NLD}"); A("s_cbranch_scc0 L_prepw")
    for i in range(4): A(f"v_mov_b32 {vr(tT+4+i)}, -1")
    A("s_getreg_b32 s34, hwreg(HW_REG_XCC_ID, 0, 4)")
    if per > 1: A(f"s_mul_i32 s34, s34, {0x1111 & ((1 << (4*per)) - 1)}"); A(f"s_mul_i32 s36, s36, {per}")
    A("s_lshl_b32 s33, s36, 2"); A("s_lshl_b32 s34, s34, s33"); A(f"s_bitset1_b32 s34, {16 + per.bit_length() - 1}")
    A("s_lshl2_add_u32 s33, s31, s36"); A("s_lshl_b32 s35, s33, 13"); A(f"v_add_u32 {vr(tT)}, s35, v3")
    A("s_lshl_b32 s33, s33, 6"); A(f"s_add_u32 s33, s33, {W_L}")
    A(f"v_add_u32 {vr(tT+2)}, s33, v3")
    A("s_waitcnt lgkmcnt(0)")
    for k in range(2*per):
        for i in range(4): A(f"global_store_dwordx4 {vr(tT)}, {vr(tT+4,4)}, s[28:29] offset:{1024*i}")
        if k < 2*per - 1: A(f"v_add_u32 {vr(tT)}, 4096, {vr(tT)}")
    A(f"s_mov_b64 exec, {(1 << (4*per)) - 1}")
    A(f"global_store_dwordx4 {vr(tT+2)}, {vr(tT+4,4)}, s[28:29]")
    A("s_mov_b64 exec, -1")
    if b0:
        A("s_mov_b32 s46, s34")
    else:
        A("s_waitcnt vmcnt(0)")
        A("s_atomic_add s34, s[26:27], s63")
        stamp(1)
    A("s_branch L_prepw")
    A("L_T0:")
    A.c("T0: x into LDS, clear this workgroup's share of the hand-off slots (acknowledged before q is published)")
    A(f"v_lshrrev_b32 {vr(vQw)}, 3, v0"); A(f"v_lshlrev_b32 {vr(vQw)}, 13, {vr(vQw)}"); A(f"v_and_b32 {vr(tT)}, 0x70, v3"); A(f"v_or_b32 {vr(vQw)}, {vr(vQw)}, {vr(tT)}")
    A(f"s_xor_b32 s34, s32, {qx}"); A("s_lshr_b32 s35, s34, 2"); A("s_lshl3_add_u32 s50, s31, s35"); A("s_lshl_b32 s50, s50, 7")
    A("s_and_b32 s48, s34, 3"); A("s_mul_i32 s34, s48, 112*8192"); A("s_add_u32 s50, s50, s34")
    qstep = 0x10000
    if "8" in hack:
        A(f"v_lshlrev_b32 {vr(vQw)}, 13, v2"); A(f"v_lshl_add_u32 {vr(vQw)}, v1, 4, {vr(vQw)}")
        A("s_lshr_b32 s35, s32, 3"); A("s_lshl2_add_u32 s50, s31, s35"); A("s_lshl_b32 s50, s50, 8")
        A("s_and_b32 s34, s32, 7"); A("s_mul_i32 s34, s34, 56*8192"); A("s_add_u32 s50, s50, s34"); qstep = 0x8000
    if "C" in hack:
        A(f"v_mov_b32 {vr(vQw)}, v3"); A("s_mul_i32 s50, s2, 14336"); qstep = 1024
    A("s_movk_i32 s58, 7168"); A("s_mov_b32 s59, 0x20000"); A("s_movk_i32 s35, 4096")
    A(f"s_mov_b32 m0, {L_X}")
    A("s_lshl_b32 s33, s31, 15"); A("s_lshl_b32 s34, s32, 10"); A("s_add_u32 s33, s33, s34"); A(f"s_add_u32 s33, s33, {W_O}")
    A(f"v_add_u32 {vr(tT)}, s33, v3")
    brow("s33", "s31"); A("s_min_u32 s34, s32, 27"); A("s_lshl_b32 s34, s34, 9"); A("s_add_u32 s33, s33, s34"); A(f"s_add_u32 s33, s33, {W_B}")
    A("s_cmp_ge_u32 s32, 14"); A(f"s_cselect_b32 s34, {BH - 7168}, 0"); A("s_add_u32 s40, s33, s34")
    A("s_getreg_b32 s34, hwreg(HW_REG_XCC_ID, 2, 1)")
    if bph: A("s_xor_b32 s34, s34, 1")
    A("s_lshl_b32 s34, s34, 13"); A("s_add_u32 s33, s40, s34")
    A(f"v_add_u32 {vr(tT+1)}, s33, v3")
    for i in range(4): A(f"v_mov_b32 {vr(vW+i)}, -1")
    A("s_waitcnt lgkmcnt(0)")
    A("s_mov_b64 s[56:57], s[4:5]")
    for t in range(4 if "x" not in hack else 0): A(f"buffer_load_dwordx4 v3, s[56:59], 0 offen offset:{1024*t} {spol} lds")
    A(f"s_mov_b32 m0, {L_X + 4096}")
    for t in range(3 if "x" not in hack else 0): A(f"buffer_load_dwordx4 v3, s[56:59], s35 offen offset:{1024*t} {spol} lds")
    A(f"global_store_dwordx4 {vr(tT)}, {vr(vW,4)}, s[28:29]")
    A.c("r = 28..31 repeat the share of r = 27 with one lane")
    A("s_cmp_lt_u32 s32, 28"); A("s_cselect_b32 exec_lo, -1, 1"); A("s_mov_b32 exec_hi, 0")
    A(f"global_store_dwordx4 {vr(tT+1)}, {vr(vW,4)}, s[28:29] sc1")
    A("s_mov_b64 exec, -1")
    A("s_branch L_prepw")

    A("L_S2:")
    A("v_and_b32 v1, 15, v0")
    A("v_lshrrev_b32 v2, 4, v0")
    A("s_mov_b64 s[56:57], s[8:9]"); A("s_mov_b32 s58, s54"); A("s_mov_b32 s59, 0x20000")
    A("s_mov_b32 s61, 0")
    for k in rot.split():
        reg, bit = SRC[k]
        A(f"s_bitcmp1_b32 {reg}, {bit}"); A("s_cselect_b32 s35, 256, 0"); A("s_xor_b32 s61, s61, s35")
    A(f"v_and_b32 {vr(vT)}, 1, v2"); A(f"v_lshlrev_b32 {vr(vT)}, 9, {vr(vT)}"); A(f"v_lshl_add_u32 {vr(vT)}, v1, 4, {vr(vT)}")
    A(f"v_lshrrev_b32 {vr(vT+1)}, 1, v2"); A(f"v_mul_u32_u24 {vr(vT+1)}, {M['r1']}, {vr(vT+1)}"); A(f"v_or_b32 {vr(vT)}, {vr(vT)}, {vr(vT+1)}")
    A("s_or_b32 s35, s38, s61")
    A(f"v_xor_b32 {vr(vVb)}, s35, {vr(vT)}")
    A(f"v_mov_b32 {vr(vT+3)}, v1")
    A(f"v_and_b32 {vr(vT)}, 3, v1"); A(f"v_lshrrev_b32 {vr(vT+1)}, 2, v1")
    A(f"v_lshl_add_u32 {vr(vT+2)}, {vr(vT)}, 2, {vr(vT+1)}")
    A(f"v_xor_b32 {vr(vT+3)}, {vr(vT+3)}, v2")
    A(f"v_lshlrev_b32 {vr(vT+2)}, 9, {vr(vT+2)}"); A(f"v_add_u32 {vr(vT+2)}, s37, {vr(vT+2)}")
    A(f"v_lshl_add_u32 {vr(vKA)}, {vr(vT+3)}, 4, {vr(vT+2)}")
    for t in range(1, 4): A(f"v_xor_b32 {vr(vKA+t)}, {64*t}, {vr(vKA)}")
    A(f"v_lshrrev_b32 {vr(vT)}, 3, v1")
    A(f"v_lshlrev_b32 {vr(vQA)}, 9, {vr(vT)}"); A(f"v_lshl_add_u32 {vr(vQA)}, v2, 4, {vr(vQA)}")
    A(f"v_add_u32 {vr(vQA)}, {L_Q}, {vr(vQA)}")
    A(f"v_lshlrev_b32 {vr(vSTr)}, 5, {vr(vT)}"); A(f"v_add_u32 {vr(vSTr)}, {L_STAT}, {vr(vSTr)}")
    A("s_lshl_b32 s35, s33, 2"); A(f"v_add_u32 {vr(vSTw)}, s35, {vr(vSTr)}")
    def delta(dst, val, t0):
        A(f"v_and_b32 {vr(t0)}, 16, v3")
        A(f"v_mov_b32 {vr(t0+1)}, {val}"); A(f"v_lshlrev_b32 {vr(t0+1)}, {vr(t0)}, {vr(t0+1)}")
        A(f"v_bfe_u32 {vr(t0)}, v1, 1, 2")
        for i in range(4):
            A(f"v_cmp_eq_u32 vcc, {i}, {vr(t0)}")
            A(f"v_cndmask_b32 {vr(dst+i)}, 0, {vr(t0+1)}, vcc")
    delta(vM, "0xffff", vT)
    A(f"v_and_b32 {vr(vT)}, 1, v2"); A(f"v_lshlrev_b32 {vr(vT)}, 4, {vr(vT)}")
    A(f"v_lshrrev_b32 {vr(vT+1)}, 1, v2"); A(f"v_lshl_add_u32 {vr(vT)}, {vr(vT+1)}, 10, {vr(vT)}")
    A(f"v_lshl_add_u32 {vr(vT)}, v1, 5, {vr(vT)}")
    A("s_lshl_b32 s35, s33, 11"); A(f"s_add_u32 s35, s35, {L_OP}")
    for dh in range(2):
        A(f"s_xor_b32 s38, s61, {dh << 8}"); A("s_lshl1_add_u32 s38, s38, s35")
        A(f"v_add_u32 {vr(vOPa+dh)}, s38, {vr(vT)}")
    if WE:
        A("s_getreg_b32 s35, hwreg(HW_REG_XCC_ID, 0, 3)"); A(f"s_bitcmp1_b32 {WEM}, s35"); A("s_cselect_b64 vcc, -1, 0")
    nv = [0]; b2done = [False]
    vord = list(range(28)) + [28, 30, 29, 31]
    def more(k):
        for _ in range(k):
            if nv[0] < 32:
                idx = vord[nv[0]]; tl, e = idx >> 3, idx & 7
                ad = vVb
                if idx:
                    ad = vAd + (nv[0] & 1); A(f"v_xor_b32 {vr(ad)}, {gaddr(e & 6, tl) | ((e & 1) << 8)}, {vr(vVb)}")
                throttle()
                A(f"buffer_load_dwordx4 {vr(vVv+4*idx,4)}, {vr(ad)}, s[56:59], s40 offen {pol if vpol is None else vpol}")
                nv[0] += 1
                if nv[0] == 32 - EP:
                    assert b2done[0]
                    A("s_barrier")
    seq = []; placed = 0
    for n_, (tl, i) in enumerate((tl, i) for tl in range(1, 4) for i in range(8)):
        while placed < vk and placed * 24 <= n_ * vk: seq.append(("v",)); placed += 1
        seq.append(("k", tl, i))
    lastk = len(seq)
    seq += [("v",)] * (32 - placed)
    pos = 0
    def adv(n):
        nonlocal pos
        for _ in range(n):
            it = seq[pos]; pos += 1
            if pos - 1 == vt:
                A.c("touch the V page ahead of its first use (value unused)")
                A("s_mov_b64 exec, 1"); throttle()
                A(f"buffer_load_dword {vr(vS)}, {vr(vVb)}, s[56:59], s40 offen {pol}"); A("s_mov_b64 exec, -1")
            if it[0] == "k": kload(it[1], it[2])
            else: more(1)
    adv(24 + QPOS)
    stamp(6)
    A("s_barrier")
    stamp(7)
    adv(W + QD)
    assert pos - lastk >= W
    stamp(1)
    if prio == 3: A("s_setprio 2")
    A("s_barrier")
    stamp(2)
    for t in range(8):
        A(f"ds_read_b128 {vr(vQ+4*t,4)}, {vr(vQA)} offset:{64*t}")
    for tl in range(4):
        for t in range(8):
            A(f"ds_read_b128 {vr(vKF+4*t,4)}, {vr(vKA+(t&3))} offset:{tl*8192 + (t>>2)*256}")
        for t in range(8):
            A(f"s_waitcnt lgkmcnt({7-t})")
            c = "0" if t == 0 else vr(vS+4*tl, 4)
            A(f"v_mfma_f32_16x16x32_bf16 {vr(vS+4*tl,4)}, {vr(vKF+4*t,4)}, {vr(vQ+4*t,4)}, {c}")
        more(1)
    SC = math.log2(math.e) / 16.0
    A(f"s_mov_b32 s35, {f32(SC)}")
    mx = vT; cp = vT + 1; ls = vT + 2
    A(f"v_max3_f32 {vr(mx)}, {vr(vS)}, {vr(vS+1)}, {vr(vS+2)}")
    for i in range(3, 15, 2):
        A(f"v_max3_f32 {vr(mx)}, {vr(mx)}, {vr(vS+i)}, {vr(vS+i+1)}")
    A(f"v_max_f32 {vr(mx)}, {vr(mx)}, {vr(vS+15)}")
    def xg(x, op):
        for sw in ("v_permlane32_swap_b32", "v_permlane16_swap_b32"):
            A(f"v_mov_b32 {vr(cp)}, {vr(x)}")
            A(f"{sw} {vr(x)}, {vr(cp)}")
            A(f"{op} {vr(x)}, {vr(x)}, {vr(cp)}")
    xg(mx, "v_max_f32")
    A(f"v_mul_f32 {vr(mx)}, s35, {vr(mx)}")
    for i in range(16):
        A(f"v_fma_f32 {vr(vS+i)}, {vr(vS+i)}, s35, -{vr(mx)}")
    for i in range(16):
        A(f"v_exp_f32 {vr(vS+i)}, {vr(vS+i)}")
    A(f"v_add_f32 {vr(ls)}, {vr(vS)}, {vr(vS+1)}")
    for i in range(2, 16):
        A(f"v_add_f32 {vr(ls)}, {vr(ls)}, {vr(vS+i)}")
    xg(ls, "v_add_f32")
    A(f"ds_write2_b32 {vr(vSTw)}, {vr(mx)}, {vr(ls)} offset0:0 offset1:4")
    more(1)
    A("s_waitcnt lgkmcnt(0)")
    A("s_barrier")
    b2done[0] = True
    stamp(3)
    def stats(m4, l4, M, Lr):
        A(f"v_max3_f32 {vr(M)}, {vr(m4)}, {vr(m4+1)}, {vr(m4+2)}"); A(f"v_max_f32 {vr(M)}, {vr(M)}, {vr(m4+3)}")
        for i in range(4): A(f"v_sub_f32 {vr(m4+i)}, {vr(m4+i)}, {vr(M)}")
        for i in range(4): A(f"v_exp_f32 {vr(m4+i)}, {vr(m4+i)}")
        A(f"v_mul_f32 {vr(Lr)}, {vr(m4)}, {vr(l4)}")
        for i in range(1, 4): A(f"v_fmac_f32 {vr(Lr)}, {vr(m4+i)}, {vr(l4+i)}")
    A(f"ds_read_b128 {vr(vAcc,4)}, {vr(vSTr)}")
    A(f"ds_read_b128 {vr(vAcc+4,4)}, {vr(vSTr)} offset:16")
    more(1)
    A("s_waitcnt lgkmcnt(0)")
    stats(vAcc, vAcc + 4, vT + 3, vT + 4)
    A(f"v_sub_f32 {vr(mx)}, {vr(mx)}, {vr(vT+3)}")
    A(f"v_exp_f32 {vr(mx)}, {vr(mx)}")
    A(f"v_rcp_f32 {vr(vT+4)}, {vr(vT+4)}")
    A(f"v_mul_f32 {vr(mx)}, {vr(mx)}, {vr(vT+4)}")
    for i in range(16):
        A(f"v_mul_f32 {vr(vS+i)}, {vr(vS+i)}, {vr(mx)}")
        A(f"v_cvt_pk_bf16_f32 {vr(vS+i)}, {vr(vS+i)}, {vr(vS+i)}")
        for k in range(4):
            A(f"v_and_b32 {vr(vA+4*i+k)}, {vr(vS+i)}, {vr(vM+k)}")
        if i % 8 == 7: more(1)
    stamp(4)
    done = 0
    def pv(k):
        idx = vord[k]
        i, dh = idx >> 1, idx & 1
        c = "0" if i == 0 else vr(vAcc+4*dh, 4)
        A(f"v_mfma_f32_16x16x32_bf16 {vr(vAcc+4*dh,4)}, {vr(vA+4*i,4)}, {vr(vVv+4*idx,4)}, {c}")
    while nv[0] < 32:
        more(1)
        lim = min(nv[0] - W, done + 4)
        while done < lim: pv(done); done += 1
    while done < 32:
        if 31 - done < W: A(f"s_waitcnt vmcnt({31-done})")
        pv(done); done += 1
        if done == 31: A(f"ds_write_b128 {vr(vOPa)}, {vr(vAcc,4)}")
    A(f"ds_write_b128 {vr(vOPa+1)}, {vr(vAcc+4,4)}")
    stamp(5)
    A("s_waitcnt lgkmcnt(0)")
    A("s_barrier")
    if wbs and "E" not in skip:
        A.c("one wave per group stays to write the spent hand-off lines back ahead of the end of the kernel")
        A("s_cmp_eq_u32 s30, 4"); A("s_cselect_b32 s33, s32, -1"); A(f"s_cmp_eq_u32 s33, {wbr}"); A("s_cbranch_scc0 L_send")
        nb = 4 if "b" in bx else 3
        for k in range(nb):
            if k == wbs - 1: A("buffer_wbl2 sc1")
            A("s_barrier")
        A("L_send:")
    dump_stamps(9)
    A("s_endpgm")

    vT = tT
    A("L_prepw:")
    A("s_waitcnt lgkmcnt(0)")
    if b0 == 1: A("s_barrier")
    if cpos == "early": prep_loads()
    if b0 == 2: A("s_barrier")
    A("s_mov_b64 s[52:53], s[10:11]"); A("s_mov_b32 s54, 0x380000"); A("s_mov_b32 s55, 0x20000")
    nq = [0]
    def wq_loads(n):
        if not n or "q" in skip: return
        A("s_cmp_eq_u32 s30, 0"); A(f"s_cbranch_scc0 L_nq{nq[0]}")
        lab = f"L_nq{nq[0]}:"
        for _ in range(n):
            A(f"s_mov_b32 m0, {L_WQ + 1024*nq[0]}")
            if qpace and nq[0] >= qpace: A(f"s_waitcnt vmcnt({qpace-1})")
            A(f"buffer_load_dwordx4 {vr(vQw)}, s[52:55], s50 offen {qpol} lds")
            A(f"s_add_u32 s50, s50, {qstep}")
            nq[0] += 1
        A(lab)
    wq_loads(wq1)
    if b0 == 3: A("s_barrier")
    wq_loads(14 - wq1)
    if b0:
        A("s_cmp_eq_u32 s46, 0"); A("s_cbranch_scc1 L_nolead")
        A("s_waitcnt vmcnt(5)")
        A("s_atomic_add s46, s[26:27], s63")
        A("L_nolead:")
    def wo_addr():
        A("s_bfe_u32 s34, s32, 0x10001"); A("s_lshl1_add_u32 s33, s31, s34"); A("s_lshl2_add_u32 s33, s33, s30"); A("s_lshl_b32 s33, s33, 6")
        A("s_mul_i32 s33, s33, 896"); A("s_lshr_b32 s34, s32, 2"); A("s_min_u32 s34, s34, 6"); A("s_lshl_b32 s34, s34, 7"); A("s_add_u32 s51, s33, s34")
        if "O" in hack: A("s_mul_i32 s33, s31, 14"); A("s_lshr_b32 s34, s32, 1"); A("s_add_u32 s33, s33, s34"); A("s_lshl2_add_u32 s33, s33, s30"); A("s_lshl_b32 s51, s33, 13")
        A(f"v_lshrrev_b32 {vr(vWa)}, 3, v0"); A(f"v_mul_u32_u24 {vr(vWa)}, 896, {vr(vWa)}")
        A(f"v_and_b32 {vr(vT+4)}, 16, v0"); A(f"v_lshlrev_b32 {vr(vT+4)}, 1, {vr(vT+4)}"); A(f"v_and_b32 {vr(vT+5)}, 0x70, v3"); A(f"v_xor_b32 {vr(vT+4)}, {vr(vT+4)}, {vr(vT+5)}")
        A(f"v_xor_b32 {vr(vT+5)}, 64, {vr(vT+4)}"); A(f"v_add_u32 {vr(vWa+1)}, {vr(vWa)}, {vr(vT+5)}"); A(f"v_add_u32 {vr(vWa)}, {vr(vWa)}, {vr(vT+4)}")
        A(f"v_lshrrev_b32 {vr(vT+4)}, 2, v1"); A(f"v_lshl_add_u32 {vr(vT+4)}, v2, 3, {vr(vT+4)}"); A(f"v_lshlrev_b32 {vr(vT+4)}, 7, {vr(vT+4)}")
        A(f"v_bfe_u32 {vr(vT+5)}, v0, 3, 2"); A(f"v_lshl_add_u32 {vr(vT+4)}, {vr(vT+5)}, 5, {vr(vT+4)}")
        A(f"v_and_b32 {vr(vT+5)}, 3, v0"); A(f"v_lshl_add_u32 {vr(vT+4)}, {vr(vT+5)}, 3, {vr(vT+4)}")
        A("s_lshl_b32 s61, s30, 13"); A(f"v_add_u32 {vr(vWr)}, s61, {vr(vT+4)}")
    def wo_loads(i0, i1, tag):
        if i0 >= i1: return
        A("s_cmp_ge_u32 s32, 28" if "o" not in skip else "s_cmp_ge_u32 s32, 0"); A(f"s_cbranch_scc1 L_nowo{tag}")
        for i in range(i0, i1):
            A(f"s_add_u32 m0, s61, {1024*i}"); A(f"s_add_u32 s33, s51, {8*896*i if 'O' not in hack else 1024*i}")
            A(f"buffer_load_dwordx4 {vr(vWa+(i&1)) if 'O' not in hack else 'v3'}, s[56:59], s33 offen {opol} lds")
        A(f"L_nowo{tag}:")
    def wo_frags(tts=(0, 1)):
        for nt in range(4):
            for tt in tts:
                for hh in range(2):
                    A(f"ds_read_b64_tr_b16 {vr(vW+16*tt+4*nt+2*hh,2)}, {vr(vWr if nt == 0 else vRaw+nt)} offset:{4096*tt + 512*hh}")
    A.c("tail constants")
    A("s_mov_b32 s49, 0")
    wo_addr()
    if tl_:
        A.c("one scalar read per page that is first used later (V, wo, out): the translation is ready by then; values unused")
        A(f"s_cmp_eq_u32 s30, {tlw}"); A("s_cbranch_scc0 L_notl")
        if tl_ & 1:
            A("s_lshr_b32 s33, s2, 5"); A("s_lshl3_add_u32 s33, s33, s31"); A("s_lshl2_add_u32 s33, s33, 3"); A("s_lshl_b32 s33, s33, 12"); A("s_add_u32 s33, s33, s32"); A("s_lshl_b32 s33, s33, 7")
            A("s_load_dword s46, s[8:9], s33")
        if tl_ & 2:
            A("s_load_dword s47, s[12:13], s51")
        if tl_ & 4:
            A("s_mul_i32 s34, s31, 896")
            A("s_load_dword s48, s[24:25], s34")
        A("L_notl:")
    A(f"s_xor_b32 s34, s32, {qx}"); A("s_and_b32 s35, s34, 3"); A("s_lshr_b32 s34, s34, 2"); A("s_lshl3_add_u32 s34, s35, s34"); A("s_lshl_b32 s34, s34, 7")
    A("s_lshl_b32 s39, s31, 15"); A("s_add_u32 s34, s34, s39")
    A(f"v_and_b32 {vr(vQa)}, 7, v1"); A(f"v_lshlrev_b32 {vr(vQa)}, 12, {vr(vQa)}"); A(f"v_lshl_add_u32 {vr(vQa)}, v2, 4, {vr(vQa)}"); A(f"v_add_u32 {vr(vQa)}, s34, {vr(vQa)}")
    def publish_q():
        A("s_getreg_b32 s47, hwreg(HW_REG_XCC_ID, 0, 4)")
        A("s_mul_i32 s47, s47, 0x1111"); A("s_bitset1_b32 s47, 18")
        if force_slow: A("s_cmp_eq_u32 s32, 5"); A("s_cselect_b32 s47, 0, s47")
        A("s_waitcnt lgkmcnt(0)")
        A("s_cmp_eq_u32 s46, s47")
        A("s_cbranch_scc0 L_f1slow")
        A("L_same:")
        A("s_mov_b32 s41, s46")
        A.c("the slots were cleared in this XCD's L2: publish there")
        A("s_mov_b32 exec_lo, 0x00ff00ff"); A("s_mov_b32 exec_hi, 0x00ff00ff")
        for k in range(2): A(f"global_store_dwordx4 {vr(vQa)}, {vr(vQs+4*k,4)}, s[28:29] offset:{64*k}")
        A("s_mov_b64 exec, -1")
        stamp(3)
        A("L_nopub:")
        def ool():
            A("L_f1slow:")
            if cnt: A("s_mov_b32 s90, 1")
            A(f"v_mov_b32 {vr(vT+20)}, s63")
            A("s_mov_b32 s35, 0")
            A("L_f1l:")
            A("s_cmp_ge_u32 s46, 0x40000")
            A("s_cbranch_scc1 L_f1d")
            A(f"global_load_dword {vr(vT+21)}, {vr(vT+20)}, s[26:27] sc1")
            A("s_add_u32 s35, s35, 1")
            A("s_waitcnt vmcnt(0)")
            A(f"v_readfirstlane_b32 s46, {vr(vT+21)}")
            A(f"s_cmp_lt_u32 s35, {SPIN}")
            A("s_cbranch_scc1 L_f1l")
            A("L_f1d:")
            A("s_cmp_eq_u32 s46, s47")
            A("s_cbranch_scc1 L_same")
            A.c("cleared on another XCD: tell the group, publish nothing here")
            A("s_mov_b32 s41, s46"); A("s_add_u32 s46, s63, 32"); A("s_mov_b32 s47, 1")
            A("s_atomic_add s47, s[26:27], s46 glc")
            A("s_waitcnt lgkmcnt(0)")
            A("s_mov_b32 s49, 1")
            A("s_branch L_nopub")
        OOL.append(ool)
    brow("s33", "s31"); A("s_mul_i32 s34, s30, 224"); A("s_add_u32 s33, s33, s34"); A(f"s_add_u32 s33, s33, {W_B}")
    A(f"v_min_u32 {vr(vT+4)}, 13, v1")
    A(f"v_mul_u32_u24 {vr(vBa)}, 3584, v2"); A(f"v_lshl_add_u32 {vr(vBa)}, {vr(vT+4)}, 4, {vr(vBa)}"); A(f"v_add_u32 {vr(vBa)}, s33, {vr(vBa)}")
    A(f"v_lshrrev_b32 {vr(vT+5)}, 1, v2"); A(f"v_mul_u32_u24 {vr(vT+5)}, {BH - 7168}, {vr(vT+5)}"); A(f"v_add_u32 {vr(vBa)}, {vr(vBa)}, {vr(vT+5)}")
    A("s_mul_i32 s34, s30, 448"); A(f"s_add_u32 s34, s34, {L_H}")
    A(f"v_and_b32 {vr(vT+5)}, 1, v2"); A(f"v_lshlrev_b32 {vr(vHw)}, 5, v1"); A(f"v_lshl_add_u32 {vr(vHw)}, {vr(vT+5)}, 4, {vr(vHw)}"); A(f"v_add_u32 {vr(vHw)}, s34, {vr(vHw)}")
    A(f"v_mov_b32 {vr(vT+5)}, {L_H + 1792}"); A("v_cmp_gt_u32 s[42:43], 14, v1")
    A(f"v_cndmask_b32 {vr(vHw)}, {vr(vT+5)}, {vr(vHw)}, s[42:43]")
    A(f"v_lshrrev_b32 {vr(vT+6)}, 5, v0")
    A("s_lshl_b32 s34, s30, 3"); A(f"s_add_u32 s34, s34, {L_HS}")
    A(f"v_lshlrev_b32 {vr(vHsw)}, 2, {vr(vT+6)}"); A(f"v_add_u32 {vr(vHsw)}, s34, {vr(vHsw)}")
    A(f"v_cvt_f32_u32 {vr(vKs)}, {vr(vT+6)}"); A(f"v_sub_f32 {vr(vKs+1)}, 1.0, {vr(vKs)}")
    for i in range(2): A(f"v_mul_f32 {vr(vKs+i)}, {f32(1.0/448)}, {vr(vKs+i)}")
    delta(vDl, "0x3f80", vT + 8)
    A("s_mul_i32 s33, s32, 56"); A(f"s_add_u32 s33, s33, {L_H}")
    ii = vT + 8; hf = vT + 9; col = vT + 10
    A(f"v_bfe_u32 {vr(ii)}, v0, 3, 1"); A(f"v_and_b32 {vr(hf)}, 3, v0"); A(f"v_lshl_add_u32 {vr(ii)}, {vr(ii)}, 2, {vr(hf)}")
    A(f"v_bfe_u32 {vr(hf)}, v0, 2, 1")
    A(f"v_min_u32 {vr(col)}, 6, {vr(ii)}"); A(f"v_mad_u32_u24 {vr(col)}, {vr(hf)}, 7, {vr(col)}")
    A(f"v_lshlrev_b32 {vr(vHa)}, 2, {vr(col)}"); A(f"v_add_u32 {vr(vHa)}, s33, {vr(vHa)}")
    A(f"v_cmp_eq_u32 vcc, 7, {vr(ii)}"); A(f"v_cndmask_b32 {vr(vT+11)}, v2, 3, vcc")
    A(f"v_mov_b32 {vr(vT+12)}, 0x3f803f80")
    A(f"v_cmp_eq_u32 vcc, 2, {vr(vT+11)}"); A(f"v_cndmask_b32 {vr(vK1)}, 0, 1.0, vcc")
    A(f"v_cmp_eq_u32 vcc, 0, {vr(vT+11)}"); A(f"v_cndmask_b32 {vr(vK1+1)}, 0, 1.0, vcc")
    A(f"v_cndmask_b32 {vr(vK1+3)}, 0, {vr(vT+12)}, vcc")
    A(f"v_cmp_eq_u32 vcc, 1, {vr(vT+11)}"); A(f"v_cndmask_b32 {vr(vK1+2)}, 0, 1.0, vcc")
    A(f"v_cndmask_b32 {vr(vK1+4)}, 0, {vr(vT+12)}, vcc")
    A(f"v_min_u32 {vr(col)}, 6, v0"); A(f"v_lshlrev_b32 {vr(vHf)}, 3, {vr(col)}"); A(f"v_add_u32 {vr(vHf)}, s33, {vr(vHf)}")
    A("s_mul_i32 s33, s31, 896"); A("s_mul_i32 s34, s32, 28"); A("s_add_u32 s33, s33, s34")
    A(f"v_lshlrev_b32 {vr(vOut)}, 2, {vr(col)}"); A(f"v_add_u32 {vr(vOut)}, s33, {vr(vOut)}")
    A(f"v_bfe_u32 {vr(ii)}, v0, 2, 1"); A(f"v_bfe_u32 {vr(hf)}, v0, 3, 1"); A(f"v_lshl_add_u32 {vr(ii)}, {vr(ii)}, 1, {vr(hf)}")
    A(f"v_bfe_u32 {vr(hf)}, v0, 4, 1"); A(f"v_lshl_add_u32 {vr(ii)}, {vr(hf)}, 2, {vr(ii)}")
    A(f"v_mad_u32_u24 {vr(hf)}, {vr(vT+6)}, 7, {vr(ii)}")
    A(f"v_cmp_eq_u32 vcc, 7, {vr(ii)}"); A(f"v_cndmask_b32 {vr(hf)}, {vr(hf)}, 15, vcc")
    A("s_lshl_b32 s34, s30, 6"); A(f"s_add_u32 s34, s34, {L_Y}")
    A(f"v_lshlrev_b32 {vr(vYa)}, 2, {vr(hf)}"); A(f"v_add_u32 {vr(vYa)}, s34, {vr(vYa)}")
    A("s_lshl_b32 s33, s31, 8"); A(f"s_add_u32 s33, s33, {W_L}"); A("s_and_b32 s34, s32, 3"); A("s_lshl_b32 s34, s34, 6"); A("s_add_u32 s34, s34, s33")
    A(f"v_lshlrev_b32 {vr(vLa)}, 4, v2"); A(f"v_add_u32 {vr(vLa)}, s34, {vr(vLa)}")
    A("s_lshl2_add_u32 s34, s32, s33")
    A(f"v_lshlrev_b32 {vr(vLst)}, 7, v0"); A(f"v_add_u32 {vr(vLst)}, s34, {vr(vLst)}")
    A(f"s_add_u32 s33, s39, {W_O}")
    A("s_and_b32 s35, s32, 1"); A("s_bfe_u32 s36, s32, 0x10001")
    A("s_lshl1_add_u32 s34, s35, s36"); A("s_lshl2_add_u32 s34, s34, s30"); A("s_lshl_b32 s34, s34, 11"); A("s_add_u32 s34, s34, s33")
    A(f"v_add_u32 {vr(vOa)}, s34, v3")
    A("s_lshl2_add_u32 s60, s35, s30")
    A("s_lshl1_add_u32 s34, s31, s36"); A("s_mul_i32 s34, s34, 896"); brow("s36", "s60"); A("s_add_u32 s34, s34, s36")
    A("s_cmp_ge_u32 s31, 4"); A(f"s_cselect_b32 s36, {BH - 7168}, 0"); A("s_add_u32 s34, s34, s36")
    A("s_lshr_b32 s36, s32, 2"); A("s_min_u32 s36, s36, 6"); A("s_lshl_b32 s36, s36, 7")
    A("s_add_u32 s34, s34, s36"); A(f"s_add_u32 s34, s34, {W_B}")
    A(f"v_lshlrev_b32 {vr(vBst)}, 3, v1"); A(f"v_add_u32 {vr(vBst)}, s34, {vr(vBst)}")
    A("s_lshr_b32 s34, s32, 4"); A("s_lshl2_add_u32 s34, s34, s30"); A("s_lshl_b32 s34, s34, 12"); A("s_add_u32 s34, s34, s33")
    A("s_and_b32 s36, s32, 15"); A("s_lshl4_add_u32 s34, s36, s34")
    A(f"v_lshrrev_b32 {vr(vOst)}, 2, v0"); A(f"v_lshlrev_b32 {vr(vOst)}, 8, {vr(vOst)}"); A(f"v_and_b32 {vr(vT+4)}, 3, v0")
    A(f"v_lshl_add_u32 {vr(vOst)}, {vr(vT+4)}, 2, {vr(vOst)}"); A(f"v_add_u32 {vr(vOst)}, s34, {vr(vOst)}")
    A("s_lshl_b32 s34, s30, 8"); A(f"s_add_u32 s34, s34, {L_PP}")
    A(f"v_lshlrev_b32 {vr(vPPr)}, 4, v1"); A(f"v_add_u32 {vr(vPPr)}, s34, {vr(vPPr)}")
    A("s_lshl_b32 s34, s30, 9"); A(f"s_add_u32 s34, s34, {L_OP}")
    A(f"v_lshlrev_b32 {vr(vOPr)}, 3, v0"); A(f"v_add_u32 {vr(vOPr)}, s34, {vr(vOPr)}")
    A("s_lshl_b32 s34, s30, 10"); A(f"s_add_u32 s34, s34, {L_PP}")
    A(f"v_lshlrev_b32 {vr(vPPa)}, 2, v1"); A(f"v_lshl_add_u32 {vr(vPPa)}, v2, 8, {vr(vPPa)}"); A(f"v_add_u32 {vr(vPPa)}, s34, {vr(vPPa)}")
    for i in range(4): A(f"v_mov_b32 {vr(vG+i)}, 0")
    A(f"s_mov_b32 s37, {f32(1.0/64)}")
    A("s_mov_b32 s38, 0xffff0000")
    def qproj():
        A("s_cmp_eq_u32 s30, 0"); A("s_cbranch_scc0 L_nopub")
        A.c("T0: q projection, 64 columns x a quarter of the rows, all 8 batches; LayerNorm applied after the product")
        A("s_mov_b32 s34, 0x3f803f80")
        for i in range(56): A(f"v_mov_b32 {vr(vX+i)}, s34")
        A(f"v_and_b32 {vr(tT+1)}, 7, v1"); A(f"v_mul_u32_u24 {vr(tT+1)}, 896, {vr(tT+1)}"); A(f"v_add_u32 {vr(tT+1)}, {L_X}, {vr(tT+1)}")
        A(f"v_lshl_add_u32 {vr(tT)}, v2, 4, {vr(tT+1)}")
        A("s_mul_i32 s33, s48, 224"); A(f"v_lshl_add_u32 {vr(tT+1)}, v2, 3, {vr(tT+1)}"); A(f"v_add_u32 {vr(tT+1)}, s33, {vr(tT+1)}")
        A(f"v_lshrrev_b32 {vr(tT+2)}, 2, v0"); A(f"v_lshlrev_b32 {vr(tT+2)}, 7, {vr(tT+2)}"); A(f"v_and_or_b32 {vr(tT+2)}, v3, 48, {vr(tT+2)}")
        A(f"v_add_u32 {vr(tT+2)}, {L_WQ}, {vr(tT+2)}")
        A(f"v_bfe_u32 {vr(tT+3)}, v1, 2, 1"); A(f"v_lshl_add_u32 {vr(tT+3)}, {vr(tT+3)}, 4, v1"); A(f"v_lshlrev_b32 {vr(tT+3)}, 2, {vr(tT+3)}")
        A(f"v_lshlrev_b32 {vr(tT+4)}, 2, v1"); A(f"v_add_u32 {vr(tT+4)}, 128, {vr(tT+4)}")
        A(f"v_and_b32 {vr(tT+5)}, 3, v1")
        sm = ('', 's[6:7]', 's[8:9]', 's[14:15]')
        for i in range(1, 4): A(f"v_cmp_eq_u32 {sm[i]}, {i}, {vr(tT+5)}")
        D1 = vX + 16; D2 = tT + 8; wf = vW
        A("s_mov_b32 exec_lo, 0x00ff00ff"); A("s_mov_b32 exec_hi, 0x00ff00ff")
        A("s_waitcnt vmcnt(14)")
        for t in range(14): A(f"ds_read_b128 {vr(vX+4*t,4)}, {vr(tT)} offset:{64*t}")
        A("s_mov_b64 exec, -1")
        for t in range(14):
            A(f"s_waitcnt lgkmcnt({13-t})")
            c = "0" if t == 0 else vr(D2, 4)
            A(f"v_mfma_f32_16x16x32_bf16 {vr(D2,4)}, {vr(vX+4*t,4)}, {vr(vX+4*t,4)}, {c}")
        for i in range(1, 4): A(f"v_cndmask_b32 {vr(D2)}, {vr(D2)}, {vr(D2+i)}, {sm[i]}")
        A(f"ds_bpermute_b32 {vr(tT+6)}, {vr(tT+3)}, {vr(D2)}")
        A(f"ds_bpermute_b32 {vr(tT+7)}, {vr(tT+4)}, {vr(D2)}")
        A("s_mov_b32 exec_lo, 0x00ff00ff"); A("s_mov_b32 exec_hi, 0x00ff00ff")
        for t in range(7): A(f"ds_read_b64 {vr(vX+2*t,2)}, {vr(tT+1)} offset:{32*t}")
        A("s_mov_b64 exec, -1")
        A(f"s_mov_b32 s33, {f32(1.0/448)}")
        A("s_waitcnt lgkmcnt(0)")
        A(f"v_mul_f32 {vr(tT+7)}, s33, {vr(tT+7)}")
        A(f"v_mul_f32 {vr(tT+6)}, s33, {vr(tT+6)}")
        A(f"v_fma_f32 {vr(tT+6)}, -{vr(tT+7)}, {vr(tT+7)}, {vr(tT+6)}")
        A(f"v_max_f32 {vr(tT+6)}, 0, {vr(tT+6)}")
        A(f"v_add_f32 {vr(tT+6)}, {f32(1e-5)}, {vr(tT+6)}")
        A(f"v_rsq_f32 {vr(tT+6)}, {vr(tT+6)}")
        A("s_waitcnt vmcnt(0)")
        A("s_load_dword s46, s[26:27], s63")
        stamp(1)
        for np_ in range(2):
            for t in range(7):
                for e in range(2):
                    A(f"ds_read_b64_tr_b16 {vr(wf+4*t+2*e,2)}, {vr(tT+2)} offset:{2048*t + 64*np_ + 8*e}")
            for t in range(7):
                A(f"s_waitcnt lgkmcnt({12-2*t})")
                for e in range(2):
                    D = D1 + 8*np_ + 4*e
                    c = "0" if t == 0 else vr(D, 4)
                    A(f"v_mfma_f32_16x16x16_bf16 {vr(D,4)}, {vr(wf+4*t+2*e,2)}, {vr(vX+2*t,2)}, {c}")
        for i0 in (0, 8):
            for i in range(8):
                A(f"v_mul_f32_dpp {vr(D2+i)}, {vr(D1+i0+i)}, {vr(tT+7)} row_newbcast:8 row_mask:0xf bank_mask:0xf")
            for i in range(8):
                A(f"v_sub_f32 {vr(D2+i)}, {vr(D1+i0+i)}, {vr(D2+i)}")
                A(f"v_mul_f32 {vr(D2+i)}, {vr(D2+i)}, {vr(tT+6)}")
            for i in range(4):
                A(f"v_cvt_pk_bf16_f32 {vr(vQs+i0//2+i)}, {vr(D2+2*i)}, {vr(D2+2*i+1)}")
                A(f"v_min_u32 {vr(vQs+i0//2+i)}, -2, {vr(vQs+i0//2+i)}")
        publish_q()
    def conv():
        if c1_:
            for k in range(3):
                for i in range(4): A(f"v_mov_b32 {vr(raw+8*k+4+((i+3)&3))}, {vr(raw+8*k+i)}")
                for i in range(4): A(f"v_permlane32_swap_b32 {vr(raw+8*k+i)}, {vr(raw+8*k+4+((i+3)&3))}")
        for i in (2, 3): A(f"v_cndmask_b32 {vr(vXr+i)}, 0, {vr(vXr+i)}, s[42:43]")
        A(f"v_lshlrev_b32 {vr(vXr)}, 16, {vr(vXr+2)}"); A(f"v_and_b32 {vr(vXr+1)}, s38, {vr(vXr+2)}")
        A(f"v_lshlrev_b32 {vr(vXr+2)}, 16, {vr(vXr+3)}"); A(f"v_and_b32 {vr(vXr+3)}, s38, {vr(vXr+3)}")
        A(f"v_lshlrev_b32 {vr(vB2)}, 16, {vr(vB2)}")
    w, b, u, bb, c0, c1, c2, c3, ca, cc, hi = (vT + 1 + i for i in range(11))
    def tiles(t0, t1):
        if t0 >= t1: return
        A.c("gelu argument as a cubic in hn, and n = (w1*hn + b1)*w2, as split-bf16 MFMA operands")
        A(f"s_mov_b32 s33, {f32(BETA)}"); A(f"s_mov_b32 s34, {f32(3*BETA)}"); A(f"v_mov_b32 {vr(vT)}, {f32(ALPHA)}")
        A("v_cmp_lt_u32 vcc, 31, v0")
        for tile in range(t0, t1):
            for k, d in enumerate((w, b, u)):
                src = raw + 8*k + (tile >> 1)
                if tile & 1: A(f"v_and_b32 {vr(d)}, s38, {vr(src)}")
                else: A(f"v_lshlrev_b32 {vr(d)}, 16, {vr(src)}")
            A(f"v_mul_f32 {vr(bb)}, {vr(b)}, {vr(b)}")
            A(f"v_fma_f32 {vr(c0)}, {vr(bb)}, s33, {vr(vT)}"); A(f"v_mul_f32 {vr(c0)}, {vr(c0)}, {vr(b)}")
            A(f"v_fma_f32 {vr(c1)}, {vr(bb)}, s34, {vr(vT)}"); A(f"v_mul_f32 {vr(c1)}, {vr(c1)}, {vr(w)}")
            A(f"v_mul_f32 {vr(bb)}, {vr(w)}, {vr(w)}")
            A(f"v_mul_f32 {vr(c2)}, s34, {vr(bb)}"); A(f"v_mul_f32 {vr(c2)}, {vr(c2)}, {vr(b)}")
            A(f"v_mul_f32 {vr(c3)}, s33, {vr(bb)}"); A(f"v_mul_f32 {vr(c3)}, {vr(c3)}, {vr(w)}")
            A(f"v_mul_f32 {vr(ca)}, {vr(w)}, {vr(u)}"); A(f"v_mul_f32 {vr(cc)}, {vr(b)}, {vr(u)}")
            for k, cx in enumerate((c0, c1, c2, c3)): A(f"v_add_f32 {vr(vG+k)}, |{vr(cx)}|, {vr(vG+k)}")
            A(f"v_fma_f32 {vr(vG)}, |{vr(cc)}|, s37, {vr(vG)}"); A(f"v_fma_f32 {vr(vG+1)}, |{vr(ca)}|, s37, {vr(vG+1)}")
            for k, (lo_, hi_) in enumerate(((c1, c2), (c0, c2), (ca, c3), (cc, c3))):
                A(f"v_cndmask_b32 {vr(lo_)}, {vr(lo_)}, {vr(hi_)}, vcc")
                A(f"v_cvt_pk_bf16_f32 {vr(hi)}, {vr(lo_)}, {vr(lo_)}")
                A(f"v_and_b32 {vr(hi)}, s38, {vr(hi)}")
                A(f"v_sub_f32 {vr(lo_)}, {vr(lo_)}, {vr(hi)}")
                A(f"v_cvt_pk_bf16_f32 {vr(vC+4*tile+k)}, {vr(hi)}, {vr(lo_)}")
    def guard():
        A.c("largest |hn| for which the fused gelu path can neither overflow nor lose precision")
        A("s_mov_b32 s3, -1.0"); A(f"s_mov_b32 s34, {f32(100.0)}")
        for H in (3.0, 4.5, 6.0, 8.0, 12.0, 22.0):
            A(f"s_mov_b32 s33, {f32(H)}")
            A(f"v_fma_f32 {vr(vT+1)}, {vr(vG+3)}, s33, {vr(vG+2)}"); A(f"v_fma_f32 {vr(vT+1)}, {vr(vT+1)}, s33, {vr(vG+1)}")
            A(f"v_fma_f32 {vr(vT+1)}, {vr(vT+1)}, s33, {vr(vG)}")
            A(f"v_cmp_nge_f32 vcc, s34, {vr(vT+1)}")
            A("s_cmp_eq_u64 vcc, 0"); A("s_cselect_b32 s3, s33, s3")
        if force_fb: A("s_mov_b32 s3, -1.0")
    if cpos == "early":
        A("s_cmp_eq_u32 s30, 0"); A("s_cbranch_scc1 L_pw"); A("s_waitcnt vmcnt(0)"); A("L_pw:")
        A("s_waitcnt vmcnt(14)")
        conv(); tiles(0, QT); qproj(); tiles(QT, 14); guard()
    else:
        qproj()
    A("s_lshr_b32 s33, s32, 2"); A("s_lshl_b32 s33, s33, 12"); A("s_add_u32 s33, s33, s39")
    A(f"v_add_u32 {vr(vT)}, s33, v3"); A(f"v_add_u32 {vr(vT+1)}, {L_Q}, v3")
    A(f"v_and_b32 {vr(vT+20)}, 7, v0"); A(f"v_lshlrev_b32 {vr(vT+20)}, 2, {vr(vT+20)}"); A(f"v_mov_b32 {vr(vT+19)}, {L_STAT + 64}")
    stamp(4)
    if cpos == "pre1": prep_loads()
    A("s_barrier")
    if cpos == "mid": prep_loads()
    A("s_mov_b32 s35, 0")
    A("s_cmp_eq_u32 s30, 0")
    A("s_cbranch_scc0 L_b1b")
    A.c("T0: gather the four q partials, add, hand to the stream waves")
    qa = vX
    def qload():
        for k in range(4): A(f"global_load_dwordx4 {vr(qa+4*k,4)}, {vr(vT)}, s[28:29] offset:{1024*k} sc1")
        A("s_waitcnt vmcnt(0)")
    A("s_cmp_eq_u32 s49, 0"); A("s_cbranch_scc0 L_glob")
    A("L_qpoll:")
    qload()
    A(f"v_max3_u32 {vr(vT+2)}, {vr(qa)}, {vr(qa+1)}, {vr(qa+2)}")
    for i in range(3, 15, 2): A(f"v_max3_u32 {vr(vT+2)}, {vr(vT+2)}, {vr(qa+i)}, {vr(qa+i+1)}")
    A(f"v_max_u32 {vr(vT+2)}, {vr(vT+2)}, {vr(qa+15)}")
    A(f"v_cmp_eq_u32 vcc, -1, {vr(vT+2)}")
    A("s_cbranch_vccnz L_qretry")
    def ool_q():
        A("L_qretry:")
        if cnt: A("s_mov_b32 s91, 1")
        A("s_add_u32 s35, s35, 1")
        A(f"s_cmp_ge_u32 s35, {SPIN}")
        A("s_cbranch_scc1 L_qdone")
        A("s_bitcmp1_b32 s35, 0"); A("s_cbranch_scc1 L_qpoll")
        A(f"v_mov_b32 {vr(vT+12)}, s63")
        A(f"global_load_dword {vr(vT+13)}, {vr(vT+12)}, s[26:27] offset:32 sc1")
        A("s_waitcnt vmcnt(0)")
        A(f"v_readfirstlane_b32 s46, {vr(vT+13)}")
        A("s_cmp_eq_u32 s46, 0")
        A("s_cbranch_scc1 L_qpoll")
        A("L_glob:")
        A.c("group spread over several XCDs: write-through hand-off in the second copy, ordered by a counter")
        A("s_mov_b32 s49, 1")
        for i in range(4): A(f"v_mov_b32 {vr(qa+i)}, -1")
        A("s_lshl_b32 s33, s32, 10"); A("s_add_u32 s33, s33, s39"); A(f"s_add_u32 s33, s33, {W_O + W_ALT}")
        A(f"v_add_u32 {vr(vT+12)}, s33, v3"); A(f"v_add_u32 {vr(vT+13)}, {W_ALT}, {vr(vLst)}"); A(f"v_add_u32 {vr(vT+14)}, {W_ALT}, {vr(vQa)}")
        A(f"v_add_u32 {vr(vT)}, {W_ALT}, {vr(vT)}"); A(f"v_mov_b32 {vr(vT+15)}, s63")
        A(f"global_store_dwordx4 {vr(vT+12)}, {vr(qa,4)}, s[28:29] sc1")
        A("s_bfe_u32 s33, s41, 0x10002")
        if bph: A("s_xor_b32 s33, s33, 1")
        A("s_lshl_b32 s33, s33, 13"); A("s_add_u32 s33, s33, s40"); A(f"v_add_u32 {vr(vT+12)}, s33, v3")
        A("s_mov_b32 exec_hi, 0")
        A(f"global_store_dwordx4 {vr(vT+12)}, {vr(qa,4)}, s[28:29] sc1")
        A("s_mov_b64 exec, 3")
        A(f"global_store_dword {vr(vT+13)}, {vr(qa)}, s[28:29] sc1")
        A("s_mov_b32 exec_lo, 0x00ff00ff"); A("s_mov_b32 exec_hi, 0x00ff00ff")
        for k in range(2): A(f"global_store_dwordx4 {vr(vT+14)}, {vr(vQs+4*k,4)}, s[28:29] offset:{64*k} sc1")
        A("s_mov_b64 exec, -1")
        A("s_add_u32 s46, s63, 64"); A("s_mov_b32 s47, 1"); A("s_mov_b32 s35, 0")
        A("s_waitcnt vmcnt(0)")
        A("s_atomic_add s47, s[26:27], s46")
        A("L_gl:")
        A(f"global_load_dword {vr(vT+13)}, {vr(vT+15)}, s[26:27] offset:64 sc1")
        A("s_add_u32 s35, s35, 1")
        A("s_waitcnt vmcnt(0) lgkmcnt(0)")
        A(f"v_readfirstlane_b32 s46, {vr(vT+13)}")
        A(f"s_cmp_ge_u32 s35, {SPIN}"); A("s_cselect_b32 s46, 32, s46")
        A("s_cmp_lt_u32 s46, 32")
        A("s_cbranch_scc1 L_gl")
        qload()
        A("s_branch L_qdone")
    OOL.append(ool_q)
    A("L_qdone:")
    stamp(14)
    for k in range(4):
        for p in range(4):
            A(f"v_lshlrev_b32 {vr(vT+4+2*p)}, 16, {vr(qa+4*p+k)}"); A(f"v_and_b32 {vr(vT+5+2*p)}, s38, {vr(qa+4*p+k)}")
        A(f"v_pk_add_f32 {vr(vT+4,2)}, {vr(vT+4,2)}, {vr(vT+6,2)}"); A(f"v_pk_add_f32 {vr(vT+8,2)}, {vr(vT+8,2)}, {vr(vT+10,2)}")
        A(f"v_pk_add_f32 {vr(vT+4,2)}, {vr(vT+4,2)}, {vr(vT+8,2)}")
        A(f"v_cvt_pk_bf16_f32 {vr(qa+k)}, {vr(vT+4)}, {vr(vT+5)}")
    A(f"ds_write_b128 {vr(vT+1)}, {vr(qa,4)}")
    A(f"v_mov_b32 {vr(vT+2)}, s49")
    A(f"ds_write_b32 {vr(vT+19)}, {vr(vT+2)}")
    A("s_cmp_eq_u32 s32, 0"); A("s_cbranch_scc0 L_nof2")
    A.c("every member of this group has cleared its share of the out-projection slots")
    A("s_mov_b32 s33, 0x100000")
    A("s_waitcnt lgkmcnt(0)")
    A("s_barrier")
    A("s_atomic_add s33, s[26:27], s63")
    A("s_branch L_b1c")
    A("L_nof2:")
    A("s_waitcnt lgkmcnt(0)")
    A("L_b1b:")
    A("s_barrier")
    A("L_b1c:")
    A(f"ds_read_b32 {vr(vT+21)}, {vr(vT+19)}")
    if cpos != "early": A("s_waitcnt vmcnt(0) lgkmcnt(0)")
    if touch: A(f"global_load_dword {vr(vT+22)}, {vr(vOut)}, s[24:25]")
    if cpos != "early": conv(); tiles(0, N1)
    A(f"v_and_b32 {vr(vT)}, 1, v0"); A(f"v_lshlrev_b32 {vr(vT)}, 5, {vr(vT)}"); A(f"v_add_u32 {vr(vT)}, {L_STAT}, {vr(vT)}")
    A("s_barrier")
    A(f"ds_read_b128 {vr(vT+4,4)}, {vr(vT)}")
    A(f"ds_read_b128 {vr(vT+8,4)}, {vr(vT)} offset:16")
    A("s_waitcnt lgkmcnt(0)")
    stats(vT + 4, vT + 8, vT + 1, vT + 2)
    A(f"v_log_f32 {vr(vT+2)}, {vr(vT+2)}")
    A(f"v_add_f32 {vr(vLse)}, {vr(vT+1)}, {vr(vT+2)}")
    A(f"v_min_u32 {vr(vLse)}, -2, {vr(vLse)}")
    A(f"v_readfirstlane_b32 s62, {vr(vT+21)}")
    A("s_lshl_b32 s33, s62, 20")
    for r_ in (vLa, vLst, vOa, vOst): A(f"v_add_u32 {vr(r_)}, s33, {vr(r_)}")
    A("s_cmp_eq_u32 s30, 1"); A("s_cbranch_scc0 L_nolse")
    A("s_mov_b64 exec, 3")
    A("s_cmp_eq_u32 s62, 0"); A("s_cbranch_scc0 L_slowlse")
    A(f"global_store_dword {vr(vLst)}, {vr(vLse)}, s[28:29]")
    A("L_lsed:")
    A("s_mov_b64 exec, -1")
    A("L_nolse:")
    if wbm:
        A("s_cmp_eq_u32 s30, 2"); A("s_cselect_b32 s33, s32, 0"); A("s_cmp_eq_u32 s33, 31"); A("s_cbranch_scc0 L_nowbm"); A("buffer_wbl2 sc1"); A("L_nowbm:")
    def ool_lse():
        A("L_slowlse:")
        A(f"global_store_dword {vr(vLst)}, {vr(vLse)}, s[28:29] sc1")
        A("s_branch L_lsed")
    OOL.append(ool_lse)
    if inst:
        A.c("bring this workgroup's share of the cleared hand-off lines into L2 ahead of the polls (values unused)")
        A("s_cmp_lt_u32 s30, 2"); A("s_cbranch_scc1 L_noinst")
        A("s_lshl_b32 s33, s32, 10"); A("s_add_u32 s33, s33, s39"); A(f"s_add_u32 s33, s33, {W_O}")
        A("s_mul_i32 s34, s31, 14336"); A("s_min_u32 s35, s32, 27"); A("s_lshl_b32 s35, s35, 9"); A("s_add_u32 s34, s34, s35"); A(f"s_add_u32 s34, s34, {W_B}")
        A("s_cmp_eq_u32 s30, 2")
        if inst == 1: A("s_cbranch_scc0 L_noinst")
        if inst == 2: A("s_cbranch_scc1 L_noinst")
        A("s_cselect_b32 s33, s34, s33")
        A(f"v_add_u32 {vr(vT+12)}, s33, v3")
        A("s_cselect_b32 exec_hi, 0, -1")
        A(f"global_load_dwordx4 {vr(vT+16,4)}, {vr(vT+12)}, s[28:29] sc1")
        A("s_mov_b64 exec, -1")
        A("L_noinst:")
    A("s_mov_b64 s[56:57], s[12:13]"); A("s_mov_b32 s58, 0x380000"); A("s_mov_b32 s59, 0x20000")
    wo_loads(0, NE, "a")
    if cpos != "early": tiles(N1, 14); guard()
    A("s_cmp_lt_u32 s32, 28"); A("s_cselect_b32 s44, 0xffff, 0")
    A("s_cmp_eq_u32 s60, s31"); A("s_cselect_b32 s45, s44, 0"); A("s_cmp_eq_u32 s62, 0"); A("s_cselect_b32 s45, s45, 0")
    if "s" in bx: A("s_mov_b32 s45, 0")
    A("s_andn2_b32 s44, s44, s45")
    bl = vX + 16
    for i in range(16): A(f"v_mov_b32 {vr(bl+i)}, 0")
    for nt in range(1, 4): A(f"v_xor_b32 {vr(vRaw+nt)}, {32*nt}, {vr(vWr)}")
    ls4 = vT + 4; ck = vT + 1
    def lse_load():
        A(f"global_load_dwordx4 {vr(ls4,4)}, {vr(vLa)}, s[28:29] sc1")
        A(f"global_load_dword {vr(vT+21)}, {vr(vT+20)}, s[26:27] sc1")
    A(f"s_mov_b32 s36, {f32(1.0 + 1e-5)}")
    A("s_brev_b32 s40, 1"); A("s_brev_b32 s41, 1")
    def weights():
        A(f"v_and_b32 {vr(ck)}, 4, {vr(vT+21)}"); A(f"v_cmp_{'eq' if bph else 'ne'}_u32 s[6:7], 0, {vr(ck)}")
        A(f"v_lshrrev_b32 {vr(ck)}, 20, {vr(vT+21)}"); A(f"v_add_u32 {vr(ck)}, -1, {vr(ck)}")
        A(f"v_max3_u32 {vr(ck)}, {vr(ck)}, {vr(ls4)}, {vr(ls4+1)}"); A(f"v_max3_u32 {vr(ck)}, {vr(ck)}, {vr(ls4+2)}, {vr(ls4+3)}")
        A(f"v_cmp_eq_u32 vcc, -1, {vr(ck)}")
        A(f"v_max3_f32 {vr(vT+2)}, {vr(ls4)}, {vr(ls4+1)}, {vr(ls4+2)}"); A(f"v_max_f32 {vr(vT+2)}, {vr(vT+2)}, {vr(ls4+3)}")
        for i in range(4): A(f"v_sub_f32 {vr(ls4+i)}, {vr(ls4+i)}, {vr(vT+2)}")
        for i in range(4): A(f"v_exp_f32 {vr(ls4+i)}, {vr(ls4+i)}")
        A(f"v_add_f32 {vr(vT+2)}, {vr(ls4)}, {vr(ls4+1)}"); A(f"v_add_f32 {vr(vT+3)}, {vr(ls4+2)}, {vr(ls4+3)}")
        A(f"v_add_f32 {vr(vT+2)}, {vr(vT+2)}, {vr(vT+3)}"); A(f"v_rcp_f32 {vr(vT+2)}, {vr(vT+2)}")
        for i in range(4): A(f"v_mul_f32 {vr(ls4+i)}, {vr(ls4+i)}, {vr(vT+2)}")
    A.c("split-combine weights; vcc != 0: some lse had not arrived yet, redo after publishing")
    if tal >= 0:
        A("s_branch L_tail"); A(".p2align 12")
        if tal: A(f".fill {tal // 4}, 4, 0xbf810000")
        A("L_tail:")
    stamp(2)
    A("s_barrier")
    lse_load()
    if not lw: A("s_cmp_ge_u32 s32, 28"); A("s_cbranch_scc0 L_wob"); A("s_waitcnt vmcnt(0)"); A("L_wob:")
    wo_loads(NE, 8 - NB, "b")
    A(f"s_mov_b32 s35, {-SPIN & 0xffffffff}")
    A("s_cmp_eq_u32 s62, 0")
    A("L_b3:")
    A("s_barrier")
    stamp(5)
    if "E" in skip: A("s_branch L_fin")
    A.c("reduce the four stream waves' o partials, publish as bf16")
    o = vX; ls4 = vT + 4; oa = vX + 32; Dc = vX + 40; ck = vT + 1
    for w_ in range(4): A(f"ds_read_b64 {vr(o+2*w_,2)}, {vr(vOPr)} offset:{2048*w_}")
    for w_ in range(1, 4):
        A(f"s_waitcnt lgkmcnt({3-w_})")
        A(f"v_pk_add_f32 {vr(o,2)}, {vr(o,2)}, {vr(o+2*w_,2)}")
    A(f"v_cvt_pk_bf16_f32 {vr(o)}, {vr(o)}, {vr(o+1)}")
    A(f"v_min_u32 {vr(o)}, -2, {vr(o)}")
    A("s_cbranch_scc0 L_slowpub")
    A(f"global_store_dword {vr(vOst)}, {vr(o)}, s[28:29]")
    A("L_pubd:")
    def ool_pub():
        A("L_slowpub:")
        A(f"global_store_dword {vr(vOst)}, {vr(o)}, s[28:29] sc1")
        A("s_branch L_pubd")
    OOL.append(ool_pub)
    stamp(6)
    A.c("out projection")
    def aset():
        for tt in range(2):
            A(f"global_load_dwordx4 {vr(oa+4*tt,4)}, {vr(vOa)}, s[28:29] offset:{1024*tt} sc1")
    if ap:
        wo_loads(8 - NB, 8, "c")
        seqv = [f"w{i}" for i in range(NE, 8 - NB)] + ["st"] + [f"w{i}" for i in range(8 - NB, 8)]
        def upto(i):
            live = [k for k, x in enumerate(seqv) if x[0] == "w" and int(x[1:]) <= i]
            if live: A(f"s_waitcnt vmcnt({len(seqv) - 1 - max(live)})")
        if lw: A("s_cmp_ge_u32 s32, 28"); A("s_cbranch_scc0 L_wob"); A("s_waitcnt vmcnt(0)"); A("L_wob:")
        A(f"s_waitcnt vmcnt({len(seqv)})")
        weights()
        upto(3)
        if ap == 1: aset(); seqv += ["a", "a"]
        wo_frags((0,))
        if ap >= 2: upto(3 + ap); aset(); seqv += ["a", "a"]
        upto(7); wo_frags((1,))
    else:
        aset()
        A(f"s_waitcnt vmcnt({3 + 8 - NE})")
        weights()
        if o1:
            A("s_waitcnt vmcnt(7)"); wo_frags((0,)); A("s_waitcnt vmcnt(3)"); wo_frags((1,))
        else:
            A("s_waitcnt vmcnt(3)"); wo_frags()
    A("s_cbranch_vccnz L_lretry")
    def ool_l():
        A("L_lretry:")
        if cnt: A("s_mov_b32 s92, 1")
        lse_load()
        A("s_add_u32 s35, s35, 1")
        A("s_waitcnt vmcnt(0)")
        weights()
        A("s_cbranch_scc1 L_lok")
        A("s_cbranch_vccnz L_lretry")
        A("L_lok:")
        A(f"s_mov_b32 s35, {-SPIN & 0xffffffff}")
        A("s_branch L_apoll0")
    OOL.insert(0, ool_l)
    A("L_apoll0:")
    A("s_bitcmp1_b32 s6, s31"); A("s_cselect_b32 s8, 8192, 0"); A("s_bitcmp1_b32 s6, s60"); A("s_cselect_b32 s9, 8192, 0")
    def achk():
        A(f"v_max3_u32 {vr(ck)}, {vr(oa)}, {vr(oa+1)}, {vr(oa+2)}"); A(f"v_max3_u32 {vr(ck)}, {vr(ck)}, {vr(oa+3)}, {vr(oa+4)}")
        A(f"v_max3_u32 {vr(ck)}, {vr(ck)}, {vr(oa+5)}, {vr(oa+6)}"); A(f"v_max_u32 {vr(ck)}, {vr(ck)}, {vr(oa+7)}")
    if True:
        A("s_waitcnt vmcnt(0)")
        achk()
        A(f"v_cmpx_eq_u32 vcc, -1, {vr(ck)}")
        A("s_cbranch_execz L_adone")
        for _ in range(DA - 1):
            aset()
            for _ in range(GA): A("s_nop 7")
    A("L_apoll:")
    aset()
    A("s_add_u32 s35, s35, 1"); A("s_cselect_b32 s47, -1, -2")
    A(f"s_waitcnt vmcnt({2*(DA-1)})")
    achk()
    A(f"v_cmpx_lt_u32 vcc, s47, {vr(ck)}")
    A("s_cbranch_execnz L_apoll")
    A("L_adone:")
    A("s_mov_b64 exec, -1")
    A("s_waitcnt lgkmcnt(6)" if o1 else "s_waitcnt lgkmcnt(0)")
    A(f"s_mov_b32 s35, {-SPIN & 0xffffffff}")
    stamp(7)
    pp = vT + 16
    def wsum(c):
        return [f"v_mul_f32 {vr(pp+c)}, {vr(Dc+4*c)}, {vr(ls4)}"] + [f"v_fmac_f32 {vr(pp+c)}, {vr(Dc+4*c+i)}, {vr(ls4+i)}" for i in range(1, 4)]
    ws = sum((wsum(c) for c in range(4)), [])
    for k in range(8):
        c, tt = k >> 1, k & 1
        cc_ = "0" if tt == 0 else vr(Dc+4*c, 4)
        A(f"v_mfma_f32_16x16x32_bf16 {vr(Dc+4*c,4)}, {vr(oa+4*tt,4)}, {vr(vW+16*tt+4*c,4)}, {cc_}")
        if o1 and k in (2, 4, 6): A(f"s_waitcnt lgkmcnt({6 - k})")
        if k == 1: A(f"v_add_u32 {vr(vBa)}, s8, {vr(vBa)}"); A(f"v_add_u32 {vr(vBst)}, s9, {vr(vBst)}")
        if 2 <= k <= 3: A(f"s_nop {0 if (o1 and k == 2) else 1}")
        if k >= 4: A(ws.pop(0)); A(ws.pop(0))
    A(f"ds_write2_b32 {vr(vPPa)}, {vr(pp)}, {vr(pp+1)} offset0:0 offset1:16")
    for x in ws: A(x)
    A(f"ds_write2_b32 {vr(vPPa)}, {vr(pp+2)}, {vr(pp+3)} offset0:32 offset1:48")
    A("s_mov_b64 exec, 0xffff")
    A("s_waitcnt lgkmcnt(0)")
    stamp(8)
    A("s_barrier")
    pr = vX
    for w_ in range(4): A(f"ds_read_b128 {vr(pr+4*w_,4)}, {vr(vPPr)} offset:{1024*w_}")
    for w_ in range(1, 4):
        A(f"s_waitcnt lgkmcnt({3-w_})")
        for k in (0, 2): A(f"v_pk_add_f32 {vr(pr+k,2)}, {vr(pr+k,2)}, {vr(pr+4*w_+k,2)}")
    A(f"v_cvt_pk_bf16_f32 {vr(pr)}, {vr(pr)}, {vr(pr+1)}"); A(f"v_cvt_pk_bf16_f32 {vr(pr+1)}, {vr(pr+2)}, {vr(pr+3)}")
    A(f"v_min_u32 {vr(pr)}, -2, {vr(pr)}"); A(f"v_min_u32 {vr(pr+1)}, -2, {vr(pr+1)}")
    A("s_mov_b32 exec_lo, s44")
    A(f"global_store_dwordx2 {vr(vBst)}, {vr(pr,2)}, s[28:29] sc1")
    A("s_mov_b32 exec_lo, s45")
    A(f"global_store_dwordx2 {vr(vBst)}, {vr(pr,2)}, s[28:29]")
    A("s_mov_b64 exec, s[42:43]")
    stamp(9)
    if "a" in bx: A("s_waitcnt vmcnt(0)")
    if "b" in bx: A("s_barrier")
    if PB0: A(f"s_sleep {PB0}")
    def bset():
        for i in range(4):
            A(f"global_load_dwordx4 {vr(bl+4*i,4)}, {vr(vBa)}, s[28:29] offset:{896*i} sc1")
    def bchk():
        A(f"v_max3_u32 {vr(ck)}, {vr(bl)}, {vr(bl+1)}, {vr(bl+2)}")
        for i in range(3, 15, 2): A(f"v_max3_u32 {vr(ck)}, {vr(ck)}, {vr(bl+i)}, {vr(bl+i+1)}")
        A(f"v_max_u32 {vr(ck)}, {vr(ck)}, {vr(bl+15)}")
    if DB > 1:
        bset()
        A("s_waitcnt vmcnt(0)")
        bchk()
        A(f"v_cmpx_eq_u32 vcc, -1, {vr(ck)}")
        A("s_cbranch_execz L_bdone")
        for _ in range(DB - 1):
            bset()
            for _ in range(GB): A("s_nop 7")
    if o2:
        hh_ = vT + 12; s1 = vT + 8
        A("L_bpoll:")
        bset()
        A("s_add_u32 s35, s35, 1"); A("s_cselect_b32 s47, -1, -2")
        A("s_mov_b64 exec, -1")
        A.c("h = x + sum of the 16 partials (matrix core does the unpack and the adds); discarded while a partial is missing")
        for i in range(4):
            A(f"s_waitcnt vmcnt({3-i})")
            A(f"v_mfma_f32_16x16x32_bf16 {vr(hh_,4)}, {vr(vDl,4)}, {vr(bl+4*i,4)}, {vr(vXr if i == 0 else hh_,4)}")
            if i == 0:
                A(f"v_max3_u32 {vr(ck)}, {vr(bl)}, {vr(bl+1)}, {vr(bl+2)}"); A(f"v_max_u32 {vr(ck)}, {vr(ck)}, {vr(bl+3)}")
            else:
                A(f"v_max3_u32 {vr(ck)}, {vr(ck)}, {vr(bl+4*i)}, {vr(bl+4*i+1)}"); A(f"v_max3_u32 {vr(ck)}, {vr(ck)}, {vr(bl+4*i+2)}, {vr(bl+4*i+3)}")
        A(f"v_cmpx_lt_u32 vcc, s47, {vr(ck)}")
        A("s_cbranch_execnz L_bpoll")
        A("s_mov_b64 exec, -1")
        stamp(10)
        A(f"v_mov_b32 {vr(vT)}, {L_HS}")
    else:
        A("L_bpoll:")
        if PB: A(f"s_sleep {PB}")
        bset()
        A("s_add_u32 s35, s35, 1")
        A(f"s_waitcnt vmcnt({4*(DB-1)})")
        bchk()
        A("s_cbranch_scc1 L_bdone")
        A(f"v_cmpx_eq_u32 vcc, -1, {vr(ck)}")
        A("s_cbranch_execnz L_bpoll")
        A("L_bdone:")
        A("s_mov_b64 exec, -1")
        stamp(10)
        A.c("h = x + sum of the 16 partials (matrix core does the unpack and the adds)")
        hh_ = vXr; s1 = vT + 8
        A(f"v_mov_b32 {vr(vT)}, {L_HS}")
        for i in range(4): A(f"v_mfma_f32_16x16x32_bf16 {vr(hh_,4)}, {vr(vDl,4)}, {vr(bl+4*i,4)}, {vr(hh_,4)}")
    for k in (0, 2): A(f"v_pk_fma_f32 {vr(vT+4+k,2)}, {vr(hh_+k,2)}, {vr(vKs,2)}, {vr(vKs,2)} op_sel:[0,0,1] op_sel_hi:[1,0,1]")
    A(f"ds_write_b128 {vr(vHw)}, {vr(hh_,4)}")
    A(f"v_pk_mul_f32 {vr(s1,2)}, {vr(hh_,2)}, {vr(vT+4,2)}")
    A(f"v_pk_fma_f32 {vr(s1,2)}, {vr(hh_+2,2)}, {vr(vT+6,2)}, {vr(s1,2)}")
    A(f"v_add_f32 {vr(s1)}, {vr(s1)}, {vr(s1+1)}")
    for sh in (8, 4, 2, 1):
        A(f"v_add_f32_dpp {vr(s1)}, {vr(s1)}, {vr(s1)} row_ror:{sh} row_mask:0xf bank_mask:0xf")
    A(f"v_add_f32_dpp {vr(s1)}, {vr(s1)}, {vr(s1)} row_bcast:15 row_mask:0xa bank_mask:0xf")
    A("s_mov_b64 exec, s[40:41]")
    A(f"ds_write_b32 {vr(vHsw)}, {vr(s1)}")
    A("s_mov_b64 exec, -1")
    A("s_waitcnt lgkmcnt(0)")
    A("s_barrier")
    A.c("LayerNorm(LayerNorm(h)) = (h - mu) * rsqrt(var*(1+eps) + eps^2), then the token MLP")
    h8 = vT + 4; hv = vT + 1
    A(f"ds_read_b128 {vr(h8,4)}, {vr(vT)}")
    A(f"ds_read_b128 {vr(h8+4,4)}, {vr(vT)} offset:16")
    A(f"ds_read_b32 {vr(hv)}, {vr(vHa)}")
    A(f"ds_read_b64 {vr(vHf,2)}, {vr(vHf)}")
    mu = vT + 2; rs = vT + 3
    A(f"v_mov_b32 {vr(vT+12)}, {f32(1e-10)}")
    A("s_waitcnt lgkmcnt(2)")
    A(f"v_pk_add_f32 {vr(h8,2)}, {vr(h8,2)}, {vr(h8+2,2)}")
    A(f"v_pk_add_f32 {vr(h8+4,2)}, {vr(h8+4,2)}, {vr(h8+6,2)}")
    A(f"v_pk_add_f32 {vr(mu,2)}, {vr(h8,2)}, {vr(h8+4,2)}")
    A(f"v_fma_f32 {vr(rs)}, -{vr(mu)}, {vr(mu)}, {vr(rs)}")
    A(f"v_fma_f32 {vr(rs)}, |{vr(rs)}|, s36, {vr(vT+12)}")
    A(f"v_rsq_f32 {vr(rs)}, {vr(rs)}")
    A("s_waitcnt lgkmcnt(1) vmcnt(0)")
    A(f"v_sub_f32 {vr(hv)}, {vr(hv)}, {vr(mu)}")
    A(f"v_mul_f32 {vr(hv)}, {vr(hv)}, {vr(rs)}")
    A(f"v_cvt_pk_bf16_f32 {vr(hv)}, {vr(hv)}, {vr(hv)}")
    A(f"v_and_b32 {vr(hv)}, s38, {vr(hv)}")
    X_ = vT + 4; Y = vT + 5; t1 = vT + 6; t2 = vT + 7; Am = vT + 8
    A(f"v_fma_f32 {vr(X_)}, {vr(hv)}, {vr(vK1)}, {vr(vK1+1)}"); A(f"v_mul_f32 {vr(X_)}, {vr(X_)}, {vr(hv)}")
    A(f"v_fma_f32 {vr(Y)}, {vr(X_)}, {vr(vK1)}, {vr(vK1+2)}")
    A(f"v_cvt_pk_bf16_f32 {vr(Am)}, {vr(X_)}, {vr(X_)}")
    A(f"v_mul_f32 {vr(Y)}, {vr(Y)}, {vr(hv)}")
    A(f"v_and_b32 {vr(t1)}, s38, {vr(Am)}")
    A(f"v_cvt_pk_bf16_f32 {vr(Am+2)}, {vr(Y)}, {vr(Y)}")
    A(f"v_sub_f32 {vr(X_)}, {vr(X_)}, {vr(t1)}")
    A(f"v_and_b32 {vr(t2)}, s38, {vr(Am+2)}")
    A(f"v_cvt_pk_bf16_f32 {vr(Am+1)}, {vr(X_)}, {vr(X_)}")
    A(f"v_sub_f32 {vr(Y)}, {vr(Y)}, {vr(t2)}")
    A(f"v_or_b32 {vr(Am+1)}, {vr(Am+1)}, {vr(vK1+3)}")
    A(f"v_cvt_pk_bf16_f32 {vr(Am+3)}, {vr(Y)}, {vr(Y)}")
    A(f"v_or_b32 {vr(Am+3)}, {vr(Am+3)}, {vr(vK1+4)}")
    A(f"v_cmp_nge_f32 vcc, s3, |{vr(hv)}|")
    stamp(11)
    Db = [vX, vX + 16, vX + 32]; acc = vT + 12; Dd = vRaw; Nn = vRaw + 8
    def mm(tile):
        A(f"v_mfma_f32_32x32x16_bf16 {vr(Db[tile%3],16)}, {vr(Am,4)}, {vr(vC+4*tile,4)}, 0")
    mm(0)
    A("s_waitcnt lgkmcnt(0)")
    A(f"v_add_f32 {vr(vHf)}, {vr(vHf)}, {vr(vB2)}"); A(f"v_add_f32 {vr(vHf+1)}, {vr(vHf+1)}, {vr(vB2)}")
    A(f"v_lshlrev_b32 {vr(vT)}, 3, v1"); A(f"v_add_u32 {vr(vT)}, {L_Y}, {vr(vT)}")
    if wb:
        A("s_cmp_eq_u32 s30, 0"); A("s_cselect_b32 s33, s32, 0"); A(f"s_cmp_ge_u32 s33, {32 - wb}"); A("s_cbranch_scc0 L_nowb"); A("buffer_wbl2 sc1"); A("L_nowb:")
    if wbt >= 0:
        A("s_cmp_eq_u32 s30, 0"); A("s_cselect_b32 s33, s32, 0"); A("s_cmp_eq_u32 s33, 31")
        def ool_wb():
            A("L_wb:"); A("buffer_wbl2 sc1"); A("s_branch L_wbd")
        OOL.insert(0, ool_wb)
    A("s_cbranch_vccnz L_fb")
    A("L_mlp:")
    A.c("sum_f n_f / (1 + e_f) kept as one fraction N / D")
    if o3:
        def chain(k, D, Np, first):
            if first: return [f"v_pk_add_f32 {vr(Dd+k,2)}, {vr(D+k,2)}, 1.0 op_sel_hi:[1,0]"]
            return [f"v_pk_fma_f32 {vr(D+8+k,2)}, {vr(D+8+k,2)}, {vr(Dd+k,2)}, {vr(Np+k,2)}",
                    f"v_pk_fma_f32 {vr(Dd+k,2)}, {vr(Dd+k,2)}, {vr(D+k,2)}, {vr(Dd+k,2)}",
                    f"v_pk_fma_f32 {vr(Nn+k,2)}, {vr(Np+k,2)}, {vr(D+k,2)}, {vr(D+8+k,2)}"]
        for tile in range(14):
            D = Db[tile % 3]; P = Db[(tile - 1) % 3]
            if tile == wbt: A("s_cbranch_scc1 L_wb"); A("L_wbd:")
            if tile + 1 < 14: mm(tile + 1)
            odd = tile & 1
            if odd:
                if tile == 1: A(f"v_mov_b32 {vr(Nn+6)}, {vr(P+14)}"); A(f"v_mov_b32 {vr(Nn+7)}, {vr(D+14)}")
                else: A(f"v_mov_b32 {vr(P+15)}, {vr(D+14)}")
            for i in range(6): A(f"v_exp_f32 {vr(D+i)}, {vr(D+i)}")
            A(f"v_exp_f32 {vr(P+7 if odd else D+6)}, {vr(D+6)}")
            ch = [chain(k, D, Db[0] + 8 if tile == 1 else Nn, tile == 0) for k in (0, 2, 4)]
            if odd: ch.append(chain(6, P, Nn, tile == 1))
            for st in range(3):
                for c_ in ch:
                    if len(c_) == 3: A(c_[st])
                    elif st == (0 if tile == 0 else 1): A(c_[0])
        for i in (6, 7, 0, 1, 2, 3, 4, 5): A(f"v_rcp_f32 {vr(Dd+i)}, {vr(Dd+i)}")
        A(f"v_mul_f32 {vr(acc+6)}, {vr(Nn+6)}, {vr(Dd+6)}"); A(f"v_fmac_f32 {vr(acc+6)}, {vr(Nn+7)}, {vr(Dd+7)}")
        for k in (0, 2, 4): A(f"v_pk_mul_f32 {vr(acc+k,2)}, {vr(Nn+k,2)}, {vr(Dd+k,2)}")
    else:
        for tile in range(14):
            D = Db[tile % 3]
            if tile + 1 < 14: mm(tile + 1)
            for i in range(7): A(f"v_exp_f32 {vr(D+i)}, {vr(D+i)}")
            if tile == 0:
                for k in range(0, 8, 2): A(f"v_pk_add_f32 {vr(Dd+k,2)}, {vr(D+k,2)}, 1.0 op_sel_hi:[1,0]")
                continue
            Np = Db[0] + 8 if tile == 1 else Nn
            for k in range(0, 8, 2): A(f"v_pk_fma_f32 {vr(D+8+k,2)}, {vr(D+8+k,2)}, {vr(Dd+k,2)}, {vr(Np+k,2)}")
            for k in range(0, 8, 2): A(f"v_pk_fma_f32 {vr(Dd+k,2)}, {vr(Dd+k,2)}, {vr(D+k,2)}, {vr(Dd+k,2)}")
            for k in range(0, 8, 2): A(f"v_pk_fma_f32 {vr(Nn+k,2)}, {vr(Np+k,2)}, {vr(D+k,2)}, {vr(D+8+k,2)}")
        for i in range(7): A(f"v_rcp_f32 {vr(Dd+i)}, {vr(Dd+i)}")
        for k in range(0, 8, 2): A(f"v_pk_mul_f32 {vr(acc+k,2)}, {vr(Nn+k,2)}, {vr(Dd+k,2)}")
    A("L_fbd:")
    A("s_cmp_eq_u32 s30, 1")
    def ool_fb():
        A("L_fb:")
        A.c("direct evaluation (large activations or weights)")
        hh = vRaw; fa = vRaw + 8; w_ = vRaw + 9; b_ = vRaw + 10; u_ = vRaw + 11; x_ = vRaw + 12; p_ = vRaw + 13; al = vRaw + 14
        A(f"v_lshrrev_b32 {vr(fa)}, 5, v0"); A(f"v_mul_u32_u24 {vr(fa)}, 28, {vr(fa)}")
        A("s_mul_i32 s33, s32, 56"); A(f"s_add_u32 s33, s33, {L_H}"); A(f"v_add_u32 {vr(fa)}, s33, {vr(fa)}")
        for i in range(7): A(f"ds_read_b32 {vr(hh+i)}, {vr(fa)} offset:{4*i}")
        A(f"v_and_b32 {vr(fa)}, 31, v0"); A(f"v_lshlrev_b32 {vr(fa)}, 1, {vr(fa)}")
        A("s_mul_i32 s33, s30, 896"); A(f"v_add_u32 {vr(fa)}, s33, {vr(fa)}")
        A(f"s_mov_b32 s33, {f32(BETA)}"); A(f"v_mov_b32 {vr(al)}, {f32(ALPHA)}")
        for i in range(8): A(f"v_mov_b32 {vr(acc+i)}, 0")
        A("s_waitcnt lgkmcnt(0)")
        for i in range(7):
            A(f"v_sub_f32 {vr(hh+i)}, {vr(hh+i)}, {vr(mu)}"); A(f"v_mul_f32 {vr(hh+i)}, {vr(hh+i)}, {vr(rs)}")
            A(f"v_cvt_pk_bf16_f32 {vr(hh+i)}, {vr(hh+i)}, {vr(hh+i)}"); A(f"v_and_b32 {vr(hh+i)}, s38, {vr(hh+i)}")
        A("s_mov_b32 s34, 0")
        A("L_fbl:")
        A(f"global_load_ushort {vr(w_)}, {vr(fa)}, s[16:17]"); A(f"global_load_ushort {vr(b_)}, {vr(fa)}, s[18:19]"); A(f"global_load_ushort {vr(u_)}, {vr(fa)}, s[20:21]")
        A(f"v_add_u32 {vr(fa)}, 64, {vr(fa)}")
        A("s_waitcnt vmcnt(0)")
        for r_ in (w_, b_, u_): A(f"v_lshlrev_b32 {vr(r_)}, 16, {vr(r_)}")
        for i in range(7):
            A(f"v_fma_f32 {vr(x_)}, {vr(w_)}, {vr(hh+i)}, {vr(b_)}")
            A(f"v_mul_f32 {vr(p_)}, {vr(x_)}, {vr(x_)}"); A(f"v_fma_f32 {vr(p_)}, {vr(p_)}, s33, {vr(al)}"); A(f"v_mul_f32 {vr(p_)}, {vr(p_)}, {vr(x_)}")
            A(f"v_exp_f32 {vr(p_)}, {vr(p_)}"); A(f"v_add_f32 {vr(p_)}, 1.0, {vr(p_)}"); A(f"v_rcp_f32 {vr(p_)}, {vr(p_)}")
            A(f"v_mul_f32 {vr(x_)}, {vr(x_)}, {vr(p_)}"); A(f"v_fmac_f32 {vr(acc+i)}, {vr(x_)}, {vr(u_)}")
        A("s_add_u32 s34, s34, 1"); A("s_cmp_lt_u32 s34, 14"); A("s_cbranch_scc1 L_fbl")
        A("s_branch L_fbd")
    OOL.append(ool_fb)
    stamp(12)
    for k in range(4): A(f"v_add_f32_dpp {vr(acc+2*k)}, {vr(acc+2*k)}, {vr(acc+2*k)} row_ror:8 row_mask:0xf bank_mask:0x3")
    for k in range(3): A(f"v_add_f32_dpp {vr(acc+2*k)}, {vr(acc+2*k+1)}, {vr(acc+2*k+1)} row_ror:8 row_mask:0xf bank_mask:0xc")
    for k in range(2): A(f"v_add_f32_dpp {vr(acc+4*k)}, {vr(acc+4*k)}, {vr(acc+4*k)} row_shl:4 row_mask:0xf bank_mask:0x5")
    for k in range(2): A(f"v_add_f32_dpp {vr(acc+4*k)}, {vr(acc+4*k+2)}, {vr(acc+4*k+2)} row_shr:4 row_mask:0xf bank_mask:0xa")
    A(f"v_permlane16_swap_b32 {vr(acc)}, {vr(acc+4)}")
    A(f"v_add_f32 {vr(acc)}, {vr(acc)}, {vr(acc+4)}")
    A(f"v_add_f32_dpp {vr(acc)}, {vr(acc)}, {vr(acc)} quad_perm:[1,0,3,2] row_mask:0xf bank_mask:0xf")
    A(f"v_add_f32_dpp {vr(acc)}, {vr(acc)}, {vr(acc)} quad_perm:[2,3,0,1] row_mask:0xf bank_mask:0xf")
    A(f"ds_write_b32 {vr(vYa)}, {vr(acc)}")
    A("s_mov_b64 exec, 0x7f")
    A("s_waitcnt lgkmcnt(0)")
    A("s_barrier")
    A("s_cbranch_scc0 L_fin")
    A(f"ds_read2_b64 {vr(vT+4,4)}, {vr(vT)} offset0:0 offset1:8")
    A(f"ds_read2_b64 {vr(vT+8,4)}, {vr(vT)} offset0:16 offset1:24")
    A("s_waitcnt lgkmcnt(1)")
    A(f"v_pk_add_f32 {vr(vHf,2)}, {vr(vHf,2)}, {vr(vT+4,2)}"); A(f"v_pk_add_f32 {vr(vHf,2)}, {vr(vHf,2)}, {vr(vT+6,2)}")
    A("s_waitcnt lgkmcnt(0)")
    A(f"v_pk_add_f32 {vr(vHf,2)}, {vr(vHf,2)}, {vr(vT+8,2)}"); A(f"v_pk_add_f32 {vr(vHf,2)}, {vr(vHf,2)}, {vr(vT+10,2)}")
    A(f"v_cvt_pk_bf16_f32 {vr(vT+2)}, {vr(vHf)}, {vr(vHf+1)}")
    A(f"global_store_dword {vr(vOut)}, {vr(vT+2)}, s[24:25] {outpol}")
    A("L_fin:")
    stamp(13)
    if amp:
        A(f"s_cmp_eq_u32 s30, {amp[0]}"); A("s_cbranch_scc0 L_end")
        A("s_waitcnt lgkmcnt(0)")
        A(f"s_sub_u32 s33, s{64+2*amp[1]}, s{64+2*amp[2]}")
        if amp[3] < 0: A("s_sub_u32 s33, 3000, s33")
        A("s_min_u32 s33, s33, 5000"); A("s_lshl_b32 s33, s33, 3"); A("s_add_u32 s33, s33, 4000")
        A("L_amp:")
        A("s_memrealtime s[34:35]"); A("s_waitcnt lgkmcnt(0)"); A("s_sub_u32 s34, s34, s64")
        A("s_cmp_lt_u32 s34, s33"); A("s_cbranch_scc1 L_amp")
    if cnt:
        for k in range(3):
            A(f"s_cmp_eq_u32 s{90+k}, 0"); A(f"s_cbranch_scc1 L_c{k}"); A(f"s_atomic_add s{90+k}, s[26:27], {128+4*k}"); A("s_waitcnt lgkmcnt(0)"); A(f"L_c{k}:")
    if gamp:
        A(f"s_cmp_eq_u32 s30, {gamp[3] if len(gamp) > 3 else 1}"); A("s_cbranch_scc0 L_end")
        A("s_waitcnt lgkmcnt(0)")
        A(f"s_mov_b32 s36, s{64+2*gamp[0]}")
        A(f"s_not_b32 s37, s{64+2*gamp[1]}" if gamp[2] == "min" else f"s_mov_b32 s37, s{64+2*gamp[1]}")
        A("s_atomic_umax s36, s[26:27], 192"); A("s_atomic_umax s37, s[26:27], 196"); A("s_waitcnt lgkmcnt(0)")
        A("s_cmp_eq_u32 s2, 0"); A("s_cbranch_scc0 L_end")
        A("L_g1:")
        A("s_memrealtime s[34:35]"); A("s_waitcnt lgkmcnt(0)"); A("s_sub_u32 s34, s34, s64")
        A("s_cmp_lt_u32 s34, 3800"); A("s_cbranch_scc1 L_g1")
        A("s_load_dwordx2 s[36:37], s[26:27], 192 glc"); A("s_waitcnt lgkmcnt(0)")
        if gamp[2] == "min": A("s_not_b32 s37, s37")
        A("s_sub_u32 s33, s36, s37"); A("s_min_u32 s33, s33, 2000"); A(f"s_lshl_b32 s33, s33, {gamp[4] if len(gamp) > 4 else 3}"); A("s_add_u32 s33, s33, 4000")
        A("L_g2:")
        A("s_memrealtime s[34:35]"); A("s_waitcnt lgkmcnt(0)"); A("s_sub_u32 s34, s34, s64")
        A("s_cmp_lt_u32 s34, s33"); A("s_cbranch_scc1 L_g2")
    if rnd:
        A("s_cmp_eq_u32 s30, 0"); A("s_cselect_b32 s33, s2, 1"); A("s_cmp_eq_u32 s33, 0"); A("s_cbranch_scc0 L_end")
        A("s_memrealtime s[64:65]"); A("s_waitcnt lgkmcnt(0)")
        A("s_lshr_b32 s33, s64, 2"); A("s_mul_i32 s33, s33, 0x9e3779b1"); A("s_lshr_b32 s34, s33, 15"); A("s_xor_b32 s33, s33, s34"); A("s_mul_i32 s33, s33, 0x85ebca6b")
        A("s_lshr_b32 s33, s33, 19")
        A("L_rnd:")
        A("s_memrealtime s[34:35]"); A("s_waitcnt lgkmcnt(0)"); A("s_sub_u32 s34, s34, s64")
        A("s_cmp_lt_u32 s34, s33"); A("s_cbranch_scc1 L_rnd")
    dump_stamps(15)
    A("L_end:")
    A("s_endpgm")
    for f in OOL: f()
    A(".fill 1024, 4, 0xbf810000")

    body, nn = fix_hazards(A.L)
    if a8:
        import subprocess, tempfile, os
        i0 = body.index("L_tail:"); i1 = body.index("L_end:")
        probe = ['.amdgcn_target "amdgcn-amd-amdhsa--gfx950"', ".text"]
        for i, l in enumerate(body):
            if i0 <= i <= i1: probe.append(f"P_{i}:")
            probe.append(l)
        d = tempfile.mkdtemp(); open(d + "/p.s", "w").write("\n".join(probe) + "\n")
        subprocess.run(["clang", "-x", "assembler", "-target", "amdgcn-amd-amdhsa", "-mcpu=gfx950", "-c", d + "/p.s", "-o", d + "/p.o"], check=True)
        sym = subprocess.run(["llvm-objdump", "-t", d + "/p.o"], capture_output=True, text=True).stdout
        ad = {int(l.split()[-1][2:]): int(l.split()[0], 16) for l in sym.splitlines() if l.split() and l.split()[-1].startswith("P_")}
        sizes = [0] * len(body)
        for i in range(i0, i1): sizes[i] = ad[i + 1] - ad[i]
        st = body.index(a8[0] + ":")
        body, n8 = align8(body, a8[0], a8[1], sizes, ad[st] % 8)
    head = [l.rstrip("\n") for l in open("header.txt")]
    head.append(f"; @launch grid=(256,1,1) block=(512,1,1) lds={L_END}")
    head += DOC
    head += ['.amdgcn_target "amdgcn-amd-amdhsa--gfx950"', ".text"] + ([".p2align 12"] if al else []) + ([f".fill {pad // 4}, 4, 0xbf810000"] if pad else []) + [f".globl {NAME}", ".p2align 8", f".type {NAME},@function"]
    tail = ['.section .rodata,"a"'] + ([f".fill {rpad // 4}, 4, 0"] if rpad else []) + [".p2align 6", f".amdhsa_kernel {NAME}",
            "  .amdhsa_next_free_vgpr 256", "  .amdhsa_next_free_sgpr 96", "  .amdhsa_accum_offset 256",
            "  .amdhsa_group_segment_fixed_size 0", "  .amdhsa_kernarg_size 104", "  .amdhsa_user_sgpr_count 2",
            "  .amdhsa_user_sgpr_kernarg_segment_ptr 1", "  .amdhsa_system_sgpr_workgroup_id_x 1",
            "  .amdhsa_float_denorm_mode_32 3", ".end_amdhsa_kernel"]
    return "\n".join(head + body + tail) + "\n"

if __name__ == "__main__":
    kw = eval("dict(" + (sys.argv[2] if len(sys.argv) > 2 else "") + ")")
    open(sys.argv[1], "w").write(gen(**kw))
```

```python
import sys, struct, math
from asmlib import *

NAME = "sequential_preLN__sliding_block_cached__mixer_token_mlp__decode_kernel"
def f32(x): return "0x%08x" % struct.unpack("<I", struct.pack("<f", x))[0]

L_K = 0; L_WQ = 131072; L_Q = 145408; L_STAT = 146432; L_OP = 146688; L_PP = 154880; L_H = 158976; L_HS = 161024; L_Y = 161088
L_END = 161344
L_X = L_OP
W_Q = 0
W_L = 0xC0000
W_O = 0x40000
W_B = 0x80000
W_ALT = 0x100000
W_STAMP = 0x200000
SPIN = 0x20000
STAMP_VIEW = [("S", slice(4, 8), [0, 8, 6, 7, 1, 2, 3, 4, 5]), ("T0", 0, [0, 1, 3, 4, 14]), ("T3L", 3, [0, 1, 4], slice(224, 256)),
              ("T1", 1, [0, 4, 2, 5, 6, 7, 8, 9, 10, 11, 12, 13]), ("Tall", slice(0, 4), [5, 6, 7, 8, 9, 10, 11, 12, 13])]
ALPHA = -2.0 * math.sqrt(2.0 / math.pi) * math.log2(math.e)
BETA = ALPHA * 0.044715

DOC = """
; ---------------------------------------------------------------------------------------------------------------------
; One launch, 256 workgroups (one per CU), 8 waves each.  g = workgroup id, kvh = g & 7, r = g >> 3, b = r >> 2, s = r & 3.
;   waves 4-7 (stream): K (LDS-DMA) and V (registers) for 256 of the last 1024 keys of (b, kvh); QK^T, true-max softmax
;                       over those keys, P.V with a delta-structured A operand so V is used as loaded.
;   waves 0-3 (tail):   q projection tile, MLP operand preparation, then out projection, LayerNorms and the token MLP.
; Hand-offs between workgroups go through d_ws.  Every slot is set to 0xffffffff in this launch before anyone looks at
; it (ordered through counters in the zeroed d_debug and through the q hand-off itself); data never takes that value.
;   q    : 64 columns x 112 rows per workgroup, LN(x) applied after the product: rstd*(x.W - mean*colsum(W))
;   o,lse: per split, normalised by the split's own sum; combined with softmax(lse) after the out-projection product
;   rows : 16 partial rows per batch, summed by the workgroups that run the MLP for that batch
; q, o and lse stay inside one group (same kvh).  They use plain stores only when every member has checked that it sits
; on the XCD whose L2 holds the cleared slots; otherwise the group switches to write-through stores in a second copy.
; LN(LN(h)) = (h - mean) * rsqrt(var*(1+eps) + eps^2) exactly.  gelu_tanh(u) = u / (1 + 2^z), z = a*u + b*u^3, which is
; a cubic in hn evaluated on the matrix core with hi/lo bf16 operands; sum_f n_f/(1+e_f) is carried as one fraction.
; A bound computed from w1, b1, w2 sends a wave to the plain per-element evaluation when that form could overflow.
; ---------------------------------------------------------------------------------------------------------------------
""".strip("\n").split("\n")

def gen(W=9, QPOS=1, QD=3, FT=-1, stamps=False, force_slow=False, pol="nt", vpol=None, qpol="nt", opol="nt", opol2="nt", spol="", skip="",
        pref=True, opos="mid", qx=16, force_fb=False, touch=False, amp=None, DA=1, DB=1, rotm=1, PB=0, NL=1, EP=0, inst=0, spf=2, WE=0, WEN=64, WE0=8, WEM=0x55, NLD=4, LD0=0, qpace=0, prio=3, QT=0, GA=0, GB=0, cpos="mid", N1=2, c1=True, NE=0, o1=True, o2=True, o3=True, ap=1, NB=0, pos=None, rot='', wb=0, wbs=0, ks=0, b0=1, b0n=2, rnd=0, lk=1, cl=0, xl=0, pa=0, ve=(0, 2, 1, 4, 3), ke=None, vk=0, vt=-1, cnt=False, rpad=0, bph=0, a8=('L_mlp', 'L_fbd'), wbt=5, wbm=0, tl_=0, tlw=2, gamp=None, wq1=0, wbr=31, lw=True, pad=0, al=1, tal=0, warm=0, outpol='', hack="", bx="ab", PB0=0):
    A = Asm()
    c1_ = c1
    OOL = []
    def stamp(i):
        if stamps or (amp and i in (amp[1], amp[2], 0)) or (gamp and i in (gamp[0], gamp[1], 0)): A(f"s_memrealtime s[{64+2*i}:{65+2*i}]")
    def dump_stamps(nst):
        if not stamps: return
        A("s_waitcnt lgkmcnt(0) vmcnt(0)")
        A("s_lshl_b32 s94, s2, 3"); A("s_add_u32 s94, s94, s30"); A("s_lshl_b32 s94, s94, 6"); A(f"s_add_u32 s94, s94, {W_STAMP}")
        A("s_mov_b64 exec, 1")
        A("v_mov_b32 v4, s94")
        for i in range(nst):
            A(f"v_mov_b32 v5, s{64+2*i}")
            A(f"global_store_dword v4, v5, s[28:29] offset:{4*i}")
        A("s_getreg_b32 s94, hwreg(HW_REG_XCC_ID, 0, 4)"); A("v_mov_b32 v5, s94")
        A("global_store_dword v4, v5, s[28:29] offset:60")
        A("s_waitcnt vmcnt(0)")

    def brow(dst, b): A(f"s_lshl_b32 {dst}, {b}, 15")
    BH = 16384
    A(f"{NAME}:")
    stamp(0)
    A("s_load_dwordx16 s[4:19], s[0:1], 0" if ks != 2 else "s_load_dwordx8 s[4:11], s[0:1], 0")
    if not ks or stamps:
        A("s_load_dwordx8 s[20:27], s[0:1], 64")
        A("s_load_dwordx2 s[28:29], s[0:1], 96")
    A("v_lshrrev_b32 v1, 6, v0")
    A("s_lshr_b32 s32, s2, 3")
    A("v_readfirstlane_b32 s30, v1")
    A("s_cmp_ge_u32 s32, 32")
    A("s_cbranch_scc1 L_end")
    A("v_and_b32 v0, 63, v0")
    A("s_and_b32 s31, s2, 7")
    A("v_lshlrev_b32 v3, 4, v0")
    A("s_cmp_lt_u32 s30, 4")
    A("s_cbranch_scc1 L_T")

    A.c("================ stream waves")
    V = Alloc(4, 256)
    vK = V(8); vKb = V(); vVb = V(); vAd = V(2); vKA = V(4); vM = V(4); vT = V(8); vOPa = V(2); vQA = V(); vSTw = V(); vSTr = V()
    vS = V(16); vAcc = vK; vQ = V(32); vKF = V(32); vVv = V(128)
    vA = vQ
    assert vKF == vQ + 32
    M = dict(j0=324, j1=1, r1=12, r2=256, r3=32, s0=24, s1=130, t0=2, t1=4) if pos is None else dict(pos)
    M = {k: v << 10 for k, v in M.items()}
    span = {0}
    for k in ("r1", "r2", "r3", "j0", "j1", "t0", "t1", "s0", "s1"): span |= {x ^ M[k] for x in span}
    assert len(span) == 512
    SRC = dict(s0=("s2", 3), s1=("s2", 4), b0=("s2", 5), b1=("s2", 6), b2=("s2", 7), k0=("s2", 0), k1=("s2", 1), k2=("s2", 2), j0=("s30", 0), j1=("s30", 1))
    def gaddr(i, tl=0):
        x = 0
        for k in range(3):
            if (i >> k) & 1: x ^= M[f"r{k+1}"]
        for k in range(2):
            if (tl >> k) & 1: x ^= M[f"t{k}"]
        return x
    def X(i, tl): return ((8*(i & 1) + (i >> 1)) << 4) | gaddr(i, tl)
    A("s_lshr_b32 s34, s2, 5"); A("s_lshl3_add_u32 s34, s34, s31"); A("s_lshl2_add_u32 s34, s34, 3"); A("s_lshl_b32 s40, s34, 19")
    first = True
    for k, (reg, bit) in SRC.items():
        if M.get(k):
            A(f"s_bitcmp1_b32 {reg}, {bit}"); A(f"s_cselect_b32 {'s38' if first else 's35'}, {M[k]}, 0")
            if not first: A("s_xor_b32 s38, s38, s35")
            first = False
    A("s_sub_u32 s33, s30, 4")
    A("s_lshl_b32 s37, s33, 15")
    A(f"v_and_b32 {vr(vT)}, 32, v0"); A(f"v_lshlrev_b32 {vr(vT)}, 1, {vr(vT)}")
    A(f"v_xor_b32 {vr(vT)}, {vr(vT)}, v3")
    A(f"v_xor_b32 {vr(vKb)}, s38, {vr(vT)}")
    if prio == 2: A("s_setprio 3")
    A("s_brev_b32 s54, 16"); A("s_mov_b32 s55, 0x20000")
    A("s_mov_b32 m0, s37")
    A("s_waitcnt lgkmcnt(0)")
    A("s_mov_b64 s[52:53], s[6:7]")
    stamp(8)
    issued = [0]; kpre = {}; vpre = {}
    def throttle():
        if WE and WE0 <= issued[0] < WE0 + WEN:
            A(f"s_cbranch_vccz L_th{issued[0]}"); A(f"s_waitcnt vmcnt({abs(WE)-1})"); A(f"L_th{issued[0]}:")
        if issued[0] >= W: A(f"s_waitcnt vmcnt({W-1})")
        issued[0] += 1
    def kload(tl, i):
        ad = vKb
        if (tl, i) in kpre:
            ad = kpre[(tl, i)]; A(f"s_add_u32 m0, s37, {(tl << 13) | (i << 10)}")
        elif tl or i:
            ad = vAd + (issued[0] & 1)
            A(f"s_add_u32 m0, s37, {(tl << 13) | (i << 10)}"); A(f"v_xor_b32 {vr(ad)}, {X(i, tl)}, {vr(vKb)}")
        throttle()
        A(f"buffer_load_dwordx4 {vr(ad)}, s[52:55], s40 offen {pol} lds")
    kord = [sum(((n_ >> k) & 1) << ke[k] for k in range(5)) for n_ in range(32)] if ke else list(range(32))
    for i in range(8):
        if b0 and i == b0n: A("s_barrier")
        kload(kord[i] >> 3, kord[i] & 7)
    A("s_branch L_S2")

    A("L_T:")
    A.c("================ tail waves")
    if ks == 2: A("s_load_dwordx8 s[12:19], s[0:1], 32")
    if ks and not stamps:
        A("s_load_dwordx8 s[20:27], s[0:1], 64")
        A("s_load_dwordx2 s[28:29], s[0:1], 96")
    V = Alloc(4, 256)
    vC = V(56); vW = V(32); vRaw = V(32); vX = V(56); tT = V(24)
    vXr = V(4); vDl = V(4); vQs = V(8); vG = V(4); vK1 = V(5); vHa = V(); vKs = V(2); vHf = V(2)
    vYa = V(); vLa = V(); vOa = V(); vPPa = V(); vBst = V(); vOst = V(); vLst = V(); vLse = V()
    vBa = V(); vHw = V(); vHsw = V(); vOut = V(); vB2 = V(); vQa = V(); vOPr = V(); vPPr = V(); vWa = V(2); vQw = V(); vWr = V()
    assert vRaw == vW + 32
    raw = vRaw if cpos == "early" else vX + 32
    def prep_loads():
        t = tT + 14
        A.c("MLP weights, residual row piece, b2")
        if c1_:
            A("s_mul_i32 s33, s30, 896")
            A(f"v_mul_u32_u24 {vr(t)}, 12, v0"); A(f"v_add_u32 {vr(t)}, {508 - 384}, {vr(t)}")
            A("v_cmp_lt_u32 vcc, 31, v0"); A(f"v_cndmask_b32 {vr(t)}, v3, {vr(t)}, vcc"); A(f"v_add_u32 {vr(t)}, s33, {vr(t)}")
            for k, sp in enumerate((16, 18, 20)):
                A(f"global_load_dwordx4 {vr(raw+8*k,4)}, {vr(t)}, s[{sp}:{sp+1}] {spol}")
        else:
            A(f"v_and_b32 {vr(t)}, 31, v0")
            A("s_mul_i32 s33, s30, 896")
            A(f"v_lshlrev_b32 {vr(t+1)}, 4, {vr(t)}"); A(f"v_add_u32 {vr(t+1)}, s33, {vr(t+1)}")
            A(f"v_lshlrev_b32 {vr(t+2)}, 3, {vr(t)}"); A(f"v_add_u32 {vr(t+2)}, s33, {vr(t+2)}")
            A(f"v_lshlrev_b32 {vr(t+3)}, 2, {vr(t)}"); A(f"v_add_u32 {vr(t+3)}, s33, {vr(t+3)}")
            for k, sp in enumerate((16, 18, 20)):
                A(f"global_load_dwordx4 {vr(raw+8*k,4)}, {vr(t+1)}, s[{sp}:{sp+1}] {spol}")
                A(f"global_load_dwordx2 {vr(raw+8*k+4,2)}, {vr(t+2)}, s[{sp}:{sp+1}] offset:512 {spol}")
                A(f"global_load_dword {vr(raw+8*k+6)}, {vr(t+3)}, s[{sp}:{sp+1}] offset:768 {spol}")
        A(f"v_min_u32 {vr(t)}, 13, v1"); A(f"v_and_b32 {vr(t+1)}, 1, v2")
        A("s_mul_i32 s33, s31, 896"); A("s_mul_i32 s34, s30, 224"); A("s_add_u32 s33, s33, s34")
        A(f"v_lshlrev_b32 {vr(t)}, 4, {vr(t)}"); A(f"v_lshl_add_u32 {vr(t)}, {vr(t+1)}, 3, {vr(t)}"); A(f"v_add_u32 {vr(t)}, s33, {vr(t)}")
        A(f"global_load_dwordx2 {vr(vXr+2,2)}, {vr(t)}, s[4:5] {spol}")
        A(f"v_mov_b32 {vr(t+2)}, 0")
        A(f"global_load_ushort {vr(vB2)}, {vr(t+2)}, s[22:23] {spol}")
    A("v_and_b32 v1, 15, v0")
    A("v_lshrrev_b32 v2, 4, v0")
    A("s_lshl_b32 s63, s31, 2")
    A(f"v_mov_b32 {vr(vQw)}, 0")
    if cl: A(f"v_mov_b32 {vr(tT)}, 0"); A(f"v_mov_b32 {vr(tT+1)}, 0")
    if cnt: A("s_mov_b32 s90, 0"); A("s_mov_b32 s91, 0"); A("s_mov_b32 s92, 0")
    A("s_mov_b64 s[40:41], 0")
    if b0: A("s_mov_b32 s46, 0")
    if "T" in skip:
        A("s_waitcnt lgkmcnt(0)"); A("s_barrier"); A("s_barrier"); A("s_barrier")
        if NL: A("s_barrier")
        A("s_branch L_b3")
    A("s_cmp_eq_u32 s30, 0"); A("s_cbranch_scc1 L_T0")
    A("s_cmp_eq_u32 s30, 3"); A("s_cbranch_scc1 L_T3")
    if spf:
        A("s_cmp_eq_u32 s30, 1"); A("s_cbranch_scc1 L_T1")
    if pref:
        if not spf: A("s_cmp_eq_u32 s30, 2"); A("s_cbranch_scc0 L_prepw")
        A.c("T2: pull the code into this XCD's L2")
        A("s_getpc_b64 s[34:35]")
        A("L_pc:")
        A(f"s_sub_u32 s34, s34, L_pc-{NAME}"); A("s_subb_u32 s35, s35, 0")
        A("s_mul_i32 s33, s32, 640")
        A(f"v_min_u32 {vr(tT)}, 9, v0"); A(f"v_lshlrev_b32 {vr(tT)}, 6, {vr(tT)}"); A(f"v_add_u32 {vr(tT)}, s33, {vr(tT)}")
        A(f"global_load_dword {vr(tT+2)}, {vr(tT)}, s[34:35]")
    A("s_branch L_prepw")
    if spf:
        A("L_T1:")
        A.c("T1: pull 14 rows of the wq column block that r=28..31 read (and of the last block) into L2")
        A("s_mul_i32 s33, s32, 14*8192"); A("s_lshl_b32 s34, s31, 10"); A("s_add_u32 s33, s33, s34"); A("s_addk_i32 s33, 384")
        A(f"v_min_u32 {vr(tT)}, 13, v1"); A(f"v_lshlrev_b32 {vr(tT)}, 13, {vr(tT)}")
        A(f"v_and_b32 {vr(tT+1)}, 1, v2"); A(f"v_lshl_add_u32 {vr(tT)}, {vr(tT+1)}, 6, {vr(tT)}")
        A(f"v_lshrrev_b32 {vr(tT+1)}, 1, v2"); A(f"v_lshl_add_u32 {vr(tT)}, {vr(tT+1)}, 9, {vr(tT)}")
        A(f"v_add_u32 {vr(tT)}, s33, {vr(tT)}")
        A("s_cmp_eq_u32 s31, 7"); A("s_cselect_b32 exec_hi, -1, 0")
        if spf == 2: A("s_and_b32 exec_hi, exec_hi, 0xffff"); A("s_mov_b32 exec_lo, 0xffff")
        A("s_waitcnt lgkmcnt(0)")
        A(f"global_load_dword {vr(tT+2)}, {vr(tT)}, s[10:11]")
        A("s_mov_b64 exec, -1")
        A("s_branch L_prepw")
    A("L_T3:")
    A.c(f"T3 of {NLD} workgroup(s) per group: clear a share of the group's q and lse slots, then count in")
    per = 4 // NLD
    A(f"s_sub_u32 s36, s32, {LD0}"); A(f"s_cmp_lt_u32 s36, {NLD}"); A("s_cbranch_scc0 L_prepw")
    for i in range(4): A(f"v_mov_b32 {vr(tT+4+i)}, -1")
    A("s_getreg_b32 s34, hwreg(HW_REG_XCC_ID, 0, 4)")
    if per > 1: A(f"s_mul_i32 s34, s34, {0x1111 & ((1 << (4*per)) - 1)}"); A(f"s_mul_i32 s36, s36, {per}")
    A("s_lshl_b32 s33, s36, 2"); A("s_lshl_b32 s34, s34, s33"); A(f"s_bitset1_b32 s34, {16 + per.bit_length() - 1}")
    A("s_lshl2_add_u32 s33, s31, s36"); A("s_lshl_b32 s35, s33, 13"); A(f"v_add_u32 {vr(tT)}, s35, v3")
    A("s_lshl_b32 s33, s33, 6"); A(f"s_add_u32 s33, s33, {W_L}")
    A(f"v_add_u32 {vr(tT+2)}, s33, v3")
    A("s_waitcnt lgkmcnt(0)")
    for k in range(2*per):
        for i in range(4): A(f"global_store_dwordx4 {vr(tT)}, {vr(tT+4,4)}, s[28:29] offset:{1024*i}")
        if k < 2*per - 1: A(f"v_add_u32 {vr(tT)}, 4096, {vr(tT)}")
    A(f"s_mov_b64 exec, {(1 << (4*per)) - 1}")
    A(f"global_store_dwordx4 {vr(tT+2)}, {vr(tT+4,4)}, s[28:29]")
    A("s_mov_b64 exec, -1")
    if b0:
        A("s_mov_b32 s46, s34")
    else:
        A("s_waitcnt vmcnt(0)")
        A("s_atomic_add s34, s[26:27], s63")
        stamp(1)
    A("s_branch L_prepw")
    A("L_T0:")
    A.c("T0: x into LDS, clear this workgroup's share of the hand-off slots (acknowledged before q is published)")
    A(f"v_lshrrev_b32 {vr(vQw)}, 3, v0"); A(f"v_lshlrev_b32 {vr(vQw)}, 13, {vr(vQw)}"); A(f"v_and_b32 {vr(tT)}, 0x70, v3"); A(f"v_or_b32 {vr(vQw)}, {vr(vQw)}, {vr(tT)}")
    A(f"s_xor_b32 s34, s32, {qx}"); A("s_lshr_b32 s35, s34, 2"); A("s_lshl3_add_u32 s50, s31, s35"); A("s_lshl_b32 s50, s50, 7")
    A("s_and_b32 s48, s34, 3"); A("s_mul_i32 s34, s48, 112*8192"); A("s_add_u32 s50, s50, s34")
    qstep = 0x10000
    if "8" in hack:
        A(f"v_lshlrev_b32 {vr(vQw)}, 13, v2"); A(f"v_lshl_add_u32 {vr(vQw)}, v1, 4, {vr(vQw)}")
        A("s_lshr_b32 s35, s32, 3"); A("s_lshl2_add_u32 s50, s31, s35"); A("s_lshl_b32 s50, s50, 8")
        A("s_and_b32 s34, s32, 7"); A("s_mul_i32 s34, s34, 56*8192"); A("s_add_u32 s50, s50, s34"); qstep = 0x8000
    if "C" in hack:
        A(f"v_mov_b32 {vr(vQw)}, v3"); A("s_mul_i32 s50, s2, 14336"); qstep = 1024
    A("s_movk_i32 s58, 7168"); A("s_mov_b32 s59, 0x20000")
    A("s_lshl_b32 s33, s31, 15"); A("s_lshl_b32 s34, s32, 10"); A("s_add_u32 s33, s33, s34"); A(f"s_add_u32 s33, s33, {W_O}")
    A(f"v_add_u32 {vr(tT)}, s33, v3")
    brow("s33", "s31"); A("s_min_u32 s34, s32, 27"); A("s_lshl_b32 s34, s34, 9"); A("s_add_u32 s33, s33, s34"); A(f"s_add_u32 s33, s33, {W_B}")
    A("s_cmp_ge_u32 s32, 14"); A(f"s_cselect_b32 s34, {BH - 7168}, 0"); A("s_add_u32 s40, s33, s34")
    A("s_getreg_b32 s34, hwreg(HW_REG_XCC_ID, 2, 1)")
    if bph: A("s_xor_b32 s34, s34, 1")
    A("s_lshl_b32 s34, s34, 13"); A("s_add_u32 s33, s40, s34")
    A(f"v_add_u32 {vr(tT+1)}, s33, v3")
    for i in range(4): A(f"v_mov_b32 {vr(vW+i)}, -1")
    A("s_waitcnt lgkmcnt(0)")
    A("s_mov_b64 s[56:57], s[4:5]")
    def xloads():
        A(f"s_mov_b32 m0, {L_X}"); A("s_movk_i32 s35, 4096")
        for t in range(4 if "x" not in hack else 0): A(f"buffer_load_dwordx4 v3, s[56:59], 0 offen offset:{1024*t} {spol} lds")
        A(f"s_mov_b32 m0, {L_X + 4096}")
        for t in range(3 if "x" not in hack else 0): A(f"buffer_load_dwordx4 v3, s[56:59], s35 offen offset:{1024*t} {spol} lds")
    if not xl: xloads()
    def clears():
        A(f"global_store_dwordx4 {vr(tT)}, {vr(vW,4)}, s[28:29]")
        A.c("r = 28..31 repeat the share of r = 27 with one lane")
        A("s_cmp_lt_u32 s32, 28"); A("s_cselect_b32 exec_lo, -1, 1"); A("s_mov_b32 exec_hi, 0")
        A(f"global_store_dwordx4 {vr(tT+1)}, {vr(vW,4)}, s[28:29] sc1")
        A("s_mov_b64 exec, -1")
    if not cl: clears()
    A("s_branch L_prepw")

    A("L_S2:")
    A("v_and_b32 v1, 15, v0")
    A("v_lshrrev_b32 v2, 4, v0")
    A("s_mov_b64 s[56:57], s[8:9]"); A("s_mov_b32 s58, s54"); A("s_mov_b32 s59, 0x20000")
    A("s_mov_b32 s61, 0")
    for k in rot.split():
        reg, bit = SRC[k]
        A(f"s_bitcmp1_b32 {reg}, {bit}"); A("s_cselect_b32 s35, 256, 0"); A("s_xor_b32 s61, s61, s35")
    A(f"v_and_b32 {vr(vT)}, 1, v2"); A(f"v_lshlrev_b32 {vr(vT)}, 9, {vr(vT)}"); A(f"v_lshl_add_u32 {vr(vT)}, v1, 4, {vr(vT)}")
    A(f"v_lshrrev_b32 {vr(vT+1)}, 1, v2"); A(f"v_mul_u32_u24 {vr(vT+1)}, {M['r1']}, {vr(vT+1)}"); A(f"v_or_b32 {vr(vT)}, {vr(vT)}, {vr(vT+1)}")
    A("s_or_b32 s35, s38, s61")
    A(f"v_xor_b32 {vr(vVb)}, s35, {vr(vT)}")
    A(f"v_mov_b32 {vr(vT+3)}, v1")
    A(f"v_and_b32 {vr(vT)}, 3, v1"); A(f"v_lshrrev_b32 {vr(vT+1)}, 2, v1")
    A(f"v_lshl_add_u32 {vr(vT+2)}, {vr(vT)}, 2, {vr(vT+1)}")
    A(f"v_xor_b32 {vr(vT+3)}, {vr(vT+3)}, v2")
    A(f"v_lshlrev_b32 {vr(vT+2)}, 9, {vr(vT+2)}"); A(f"v_add_u32 {vr(vT+2)}, s37, {vr(vT+2)}")
    A(f"v_lshl_add_u32 {vr(vKA)}, {vr(vT+3)}, 4, {vr(vT+2)}")
    for t in range(1, 4): A(f"v_xor_b32 {vr(vKA+t)}, {64*t}, {vr(vKA)}")
    A(f"v_lshrrev_b32 {vr(vT)}, 3, v1")
    A(f"v_lshlrev_b32 {vr(vQA)}, 9, {vr(vT)}"); A(f"v_lshl_add_u32 {vr(vQA)}, v2, 4, {vr(vQA)}")
    A(f"v_add_u32 {vr(vQA)}, {L_Q}, {vr(vQA)}")
    A(f"v_lshlrev_b32 {vr(vSTr)}, 5, {vr(vT)}"); A(f"v_add_u32 {vr(vSTr)}, {L_STAT}, {vr(vSTr)}")
    A("s_lshl_b32 s35, s33, 2"); A(f"v_add_u32 {vr(vSTw)}, s35, {vr(vSTr)}")
    def delta(dst, val, t0):
        A(f"v_and_b32 {vr(t0)}, 16, v3")
        A(f"v_mov_b32 {vr(t0+1)}, {val}"); A(f"v_lshlrev_b32 {vr(t0+1)}, {vr(t0)}, {vr(t0+1)}")
        A(f"v_bfe_u32 {vr(t0)}, v1, 1, 2")
        for i in range(4):
            A(f"v_cmp_eq_u32 vcc, {i}, {vr(t0)}")
            A(f"v_cndmask_b32 {vr(dst+i)}, 0, {vr(t0+1)}, vcc")
    delta(vM, "0xffff", vT)
    A(f"v_and_b32 {vr(vT)}, 1, v2"); A(f"v_lshlrev_b32 {vr(vT)}, 4, {vr(vT)}")
    A(f"v_lshrrev_b32 {vr(vT+1)}, 1, v2"); A(f"v_lshl_add_u32 {vr(vT)}, {vr(vT+1)}, 10, {vr(vT)}")
    A(f"v_lshl_add_u32 {vr(vT)}, v1, 5, {vr(vT)}")
    A("s_lshl_b32 s35, s33, 11"); A(f"s_add_u32 s35, s35, {L_OP}")
    for dh in range(2):
        A(f"s_xor_b32 s38, s61, {dh << 8}"); A("s_lshl1_add_u32 s38, s38, s35")
        A(f"v_add_u32 {vr(vOPa+dh)}, s38, {vr(vT)}")
    if WE:
        A("s_getreg_b32 s35, hwreg(HW_REG_XCC_ID, 0, 3)"); A(f"s_bitcmp1_b32 {WEM}, s35"); A("s_cselect_b64 vcc, -1, 0")
    nv = [0]; b2done = [False]
    def bitperm(p): return [sum(((n_ >> k) & 1) << p[k] for k in range(len(p))) for n_ in range(1 << len(p))]
    vord = bitperm(ve) if ve else list(range(32))
    if vord[30] & 1 == 0: vord[29], vord[30] = vord[30], vord[29]
    last0 = max(k for k in range(32) if vord[k] & 1 == 0)
    seen_acc = set()
    def more(k):
        for _ in range(k):
            if nv[0] < 32:
                idx = vord[nv[0]]; tl, e = idx >> 3, idx & 7
                ad = vVb
                if idx in vpre: ad = vpre[idx]
                elif idx:
                    ad = vAd + (nv[0] & 1); A(f"v_xor_b32 {vr(ad)}, {gaddr(e & 6, tl) | ((e & 1) << 8)}, {vr(vVb)}")
                throttle()
                A(f"buffer_load_dwordx4 {vr(vVv+4*idx,4)}, {vr(ad)}, s[56:59], s40 offen {pol if vpol is None else vpol}")
                nv[0] += 1
                if nv[0] == 32 - EP:
                    assert b2done[0]
                    A("s_barrier")
    if pa:
        for n_, x in enumerate(kord[8:]):
            kpre[(x >> 3, x & 7)] = vQ + n_; A(f"v_xor_b32 {vr(vQ+n_)}, {X(x & 7, x >> 3)}, {vr(vKb)}")
        for n_ in range(1, pa):
            idx = vord[n_]; vpre[idx] = vQ + 24 + n_; A(f"v_xor_b32 {vr(vQ+24+n_)}, {gaddr(idx & 6, idx >> 3) | ((idx & 1) << 8)}, {vr(vVb)}")
    seq = []; placed = 0
    for n_, (tl, i) in enumerate((x >> 3, x & 7) for x in kord[8:]):
        while placed < vk and placed * 24 <= n_ * vk: seq.append(("v",)); placed += 1
        seq.append(("k", tl, i))
    lastk = len(seq)
    seq += [("v",)] * (32 - placed)
    pos = 0
    def adv(n):
        nonlocal pos
        for _ in range(n):
            it = seq[pos]; pos += 1
            if pos - 1 == vt:
                A.c("touch the V page ahead of its first use (value unused)")
                A("s_mov_b64 exec, 1"); throttle()
                A(f"buffer_load_dword {vr(vS)}, {vr(vVb)}, s[56:59], s40 offen {pol}"); A("s_mov_b64 exec, -1")
            if it[0] == "k": kload(it[1], it[2])
            else: more(1)
    adv(24 + QPOS)
    stamp(6)
    A("s_barrier")
    stamp(7)
    adv(W + QD)
    assert pos - lastk >= W
    stamp(1)
    if prio == 3: A("s_setprio 2")
    A("s_barrier")
    stamp(2)
    for t in range(8):
        A(f"ds_read_b128 {vr(vQ+4*t,4)}, {vr(vQA)} offset:{64*t}")
    for tl in range(4):
        for t in range(8):
            A(f"ds_read_b128 {vr(vKF+4*t,4)}, {vr(vKA+(t&3))} offset:{tl*8192 + (t>>2)*256}")
        for t in range(8):
            A(f"s_waitcnt lgkmcnt({7-t})")
            c = "0" if t == 0 else vr(vS+4*tl, 4)
            A(f"v_mfma_f32_16x16x32_bf16 {vr(vS+4*tl,4)}, {vr(vKF+4*t,4)}, {vr(vQ+4*t,4)}, {c}")
        more(1)
    SC = math.log2(math.e) / 16.0
    A(f"s_mov_b32 s35, {f32(SC)}")
    mx = vT; cp = vT + 1; ls = vT + 2
    A(f"v_max3_f32 {vr(mx)}, {vr(vS)}, {vr(vS+1)}, {vr(vS+2)}")
    for i in range(3, 15, 2):
        A(f"v_max3_f32 {vr(mx)}, {vr(mx)}, {vr(vS+i)}, {vr(vS+i+1)}")
    A(f"v_max_f32 {vr(mx)}, {vr(mx)}, {vr(vS+15)}")
    def xg(x, op):
        for sw in ("v_permlane32_swap_b32", "v_permlane16_swap_b32"):
            A(f"v_mov_b32 {vr(cp)}, {vr(x)}")
            A(f"{sw} {vr(x)}, {vr(cp)}")
            A(f"{op} {vr(x)}, {vr(x)}, {vr(cp)}")
    xg(mx, "v_max_f32")
    A(f"v_mul_f32 {vr(mx)}, s35, {vr(mx)}")
    for i in range(16):
        A(f"v_fma_f32 {vr(vS+i)}, {vr(vS+i)}, s35, -{vr(mx)}")
    for i in range(16):
        A(f"v_exp_f32 {vr(vS+i)}, {vr(vS+i)}")
    A(f"v_add_f32 {vr(ls)}, {vr(vS)}, {vr(vS+1)}")
    for i in range(2, 16):
        A(f"v_add_f32 {vr(ls)}, {vr(ls)}, {vr(vS+i)}")
    xg(ls, "v_add_f32")
    A(f"ds_write2_b32 {vr(vSTw)}, {vr(mx)}, {vr(ls)} offset0:0 offset1:4")
    more(1)
    A("s_waitcnt lgkmcnt(0)")
    A("s_barrier")
    b2done[0] = True
    stamp(3)
    def stats(m4, l4, M, Lr):
        A(f"v_max3_f32 {vr(M)}, {vr(m4)}, {vr(m4+1)}, {vr(m4+2)}"); A(f"v_max_f32 {vr(M)}, {vr(M)}, {vr(m4+3)}")
        for i in range(4): A(f"v_sub_f32 {vr(m4+i)}, {vr(m4+i)}, {vr(M)}")
        for i in range(4): A(f"v_exp_f32 {vr(m4+i)}, {vr(m4+i)}")
        A(f"v_mul_f32 {vr(Lr)}, {vr(m4)}, {vr(l4)}")
        for i in range(1, 4): A(f"v_fmac_f32 {vr(Lr)}, {vr(m4+i)}, {vr(l4+i)}")
    A(f"ds_read_b128 {vr(vAcc,4)}, {vr(vSTr)}")
    A(f"ds_read_b128 {vr(vAcc+4,4)}, {vr(vSTr)} offset:16")
    more(1)
    A("s_waitcnt lgkmcnt(0)")
    stats(vAcc, vAcc + 4, vT + 3, vT + 4)
    A(f"v_sub_f32 {vr(mx)}, {vr(mx)}, {vr(vT+3)}")
    A(f"v_exp_f32 {vr(mx)}, {vr(mx)}")
    A(f"v_rcp_f32 {vr(vT+4)}, {vr(vT+4)}")
    A(f"v_mul_f32 {vr(mx)}, {vr(mx)}, {vr(vT+4)}")
    for i in range(16):
        A(f"v_mul_f32 {vr(vS+i)}, {vr(vS+i)}, {vr(mx)}")
        A(f"v_cvt_pk_bf16_f32 {vr(vS+i)}, {vr(vS+i)}, {vr(vS+i)}")
        for k in range(4):
            A(f"v_and_b32 {vr(vA+4*i+k)}, {vr(vS+i)}, {vr(vM+k)}")
        if i % 8 == 7: more(1)
    stamp(4)
    done = 0
    def pv(k):
        idx = vord[k]
        i, dh = idx >> 1, idx & 1
        c = "0" if dh not in seen_acc else vr(vAcc+4*dh, 4)
        seen_acc.add(dh)
        A(f"v_mfma_f32_16x16x32_bf16 {vr(vAcc+4*dh,4)}, {vr(vA+4*i,4)}, {vr(vVv+4*idx,4)}, {c}")
    while nv[0] < 32:
        more(1)
        lim = min(nv[0] - W, done + 4)
        while done < lim: pv(done); done += 1
    while done < 32:
        if 31 - done < W: A(f"s_waitcnt vmcnt({31-done})")
        pv(done); done += 1
        if done == 31:
            assert last0 <= 29 and vord[31] & 1
            A(f"ds_write_b128 {vr(vOPa)}, {vr(vAcc,4)}")
    A(f"ds_write_b128 {vr(vOPa+1)}, {vr(vAcc+4,4)}")
    stamp(5)
    A("s_waitcnt lgkmcnt(0)")
    A("s_barrier")
    if wbs and "E" not in skip:
        A.c("one wave per group stays to write the spent hand-off lines back ahead of the end of the kernel")
        A("s_cmp_eq_u32 s30, 4"); A("s_cselect_b32 s33, s32, -1"); A(f"s_cmp_eq_u32 s33, {wbr}"); A("s_cbranch_scc0 L_send")
        nb = 4 if "b" in bx else 3
        for k in range(nb):
            if k == wbs - 1: A("buffer_wbl2 sc1")
            A("s_barrier")
        A("L_send:")
    dump_stamps(9)
    A("s_endpgm")

    vT = tT
    A("L_prepw:")
    A("s_waitcnt lgkmcnt(0)")
    if b0 == 1: A("s_barrier")
    if cpos == "early": prep_loads()
    if b0 == 2: A("s_barrier")
    A("s_mov_b64 s[52:53], s[10:11]"); A("s_mov_b32 s54, 0x380000"); A("s_mov_b32 s55, 0x20000")
    if xl: A("s_mov_b64 s[56:57], s[4:5]"); A("s_movk_i32 s58, 7168"); A("s_mov_b32 s59, 0x20000")
    nq = [0]
    def wq_loads(n):
        if not n or "q" in skip: return
        A("s_cmp_eq_u32 s30, 0"); A(f"s_cbranch_scc0 L_nq{nq[0]}")
        lab = f"L_nq{nq[0]}:"
        for _ in range(n):
            A(f"s_mov_b32 m0, {L_WQ + 1024*nq[0]}")
            if qpace and nq[0] >= qpace: A(f"s_waitcnt vmcnt({qpace-1})")
            A(f"buffer_load_dwordx4 {vr(vQw)}, s[52:55], s50 offen {qpol} lds")
            A(f"s_add_u32 s50, s50, {qstep}")
            nq[0] += 1
            if xl and nq[0] == xl: xloads()
            if cl and nq[0] == 14: clears()
        A(lab)
    wq_loads(wq1)
    if b0 == 3: A("s_barrier")
    wq_loads(14 - wq1)
    if b0:
        A("s_cmp_eq_u32 s46, 0"); A("s_cbranch_scc1 L_nolead")
        A("s_waitcnt vmcnt(5)" if cpos == "early" else "s_waitcnt vmcnt(0)")
        A("s_atomic_add s46, s[26:27], s63")
        A("L_nolead:")
    def wo_addr():
        A("s_bfe_u32 s34, s32, 0x10001"); A("s_lshl1_add_u32 s33, s31, s34"); A("s_lshl2_add_u32 s33, s33, s30"); A("s_lshl_b32 s33, s33, 6")
        A("s_mul_i32 s33, s33, 896"); A("s_lshr_b32 s34, s32, 2"); A("s_min_u32 s34, s34, 6"); A("s_lshl_b32 s34, s34, 7"); A("s_add_u32 s51, s33, s34")
        if "O" in hack: A("s_mul_i32 s33, s31, 14"); A("s_lshr_b32 s34, s32, 1"); A("s_add_u32 s33, s33, s34"); A("s_lshl2_add_u32 s33, s33, s30"); A("s_lshl_b32 s51, s33, 13")
        A(f"v_lshrrev_b32 {vr(vWa)}, 3, v0"); A(f"v_mul_u32_u24 {vr(vWa)}, 896, {vr(vWa)}")
        A(f"v_and_b32 {vr(vT+4)}, 16, v0"); A(f"v_lshlrev_b32 {vr(vT+4)}, 1, {vr(vT+4)}"); A(f"v_and_b32 {vr(vT+5)}, 0x70, v3"); A(f"v_xor_b32 {vr(vT+4)}, {vr(vT+4)}, {vr(vT+5)}")
        A(f"v_xor_b32 {vr(vT+5)}, 64, {vr(vT+4)}"); A(f"v_add_u32 {vr(vWa+1)}, {vr(vWa)}, {vr(vT+5)}"); A(f"v_add_u32 {vr(vWa)}, {vr(vWa)}, {vr(vT+4)}")
        A(f"v_lshrrev_b32 {vr(vT+4)}, 2, v1"); A(f"v_lshl_add_u32 {vr(vT+4)}, v2, 3, {vr(vT+4)}"); A(f"v_lshlrev_b32 {vr(vT+4)}, 7, {vr(vT+4)}")
        A(f"v_bfe_u32 {vr(vT+5)}, v0, 3, 2"); A(f"v_lshl_add_u32 {vr(vT+4)}, {vr(vT+5)}, 5, {vr(vT+4)}")
        A(f"v_and_b32 {vr(vT+5)}, 3, v0"); A(f"v_lshl_add_u32 {vr(vT+4)}, {vr(vT+5)}, 3, {vr(vT+4)}")
        A("s_lshl_b32 s61, s30, 13"); A(f"v_add_u32 {vr(vWr)}, s61, {vr(vT+4)}")
    def wo_loads(i0, i1, tag):
        if i0 >= i1: return
        A("s_cmp_ge_u32 s32, 28" if "o" not in skip else "s_cmp_ge_u32 s32, 0"); A(f"s_cbranch_scc1 L_nowo{tag}")
        for i in range(i0, i1):
            A(f"s_add_u32 m0, s61, {1024*i}"); A(f"s_add_u32 s33, s51, {8*896*i if 'O' not in hack else 1024*i}")
            A(f"buffer_load_dwordx4 {vr(vWa+(i&1)) if 'O' not in hack else 'v3'}, s[56:59], s33 offen {opol} lds")
        A(f"L_nowo{tag}:")
    def wo_frags(tts=(0, 1)):
        for nt in range(4):
            for tt in tts:
                for hh in range(2):
                    A(f"ds_read_b64_tr_b16 {vr(vW+16*tt+4*nt+2*hh,2)}, {vr(vWr if nt == 0 else vRaw+nt)} offset:{4096*tt + 512*hh}")
    A.c("tail constants")
    A("s_mov_b32 s49, 0")
    wo_addr()
    if tl_:
        A.c("one scalar read per page that is first used later (V, wo, out): the translation is ready by then; values unused")
        A(f"s_cmp_eq_u32 s30, {tlw}"); A("s_cbranch_scc0 L_notl")
        if tl_ & 1:
            A("s_lshr_b32 s33, s2, 5"); A("s_lshl3_add_u32 s33, s33, s31"); A("s_lshl2_add_u32 s33, s33, 3"); A("s_lshl_b32 s33, s33, 12"); A("s_add_u32 s33, s33, s32"); A("s_lshl_b32 s33, s33, 7")
            A("s_load_dword s46, s[8:9], s33")
        if tl_ & 2:
            A("s_load_dword s47, s[12:13], s51")
        if tl_ & 4:
            A("s_mul_i32 s34, s31, 896")
            A("s_load_dword s48, s[24:25], s34")
        A("L_notl:")
    A(f"s_xor_b32 s34, s32, {qx}"); A("s_and_b32 s35, s34, 3"); A("s_lshr_b32 s34, s34, 2"); A("s_lshl3_add_u32 s34, s35, s34"); A("s_lshl_b32 s34, s34, 7")
    A("s_lshl_b32 s39, s31, 15"); A("s_add_u32 s34, s34, s39")
    A(f"v_and_b32 {vr(vQa)}, 7, v1"); A(f"v_lshlrev_b32 {vr(vQa)}, 12, {vr(vQa)}"); A(f"v_lshl_add_u32 {vr(vQa)}, v2, 4, {vr(vQa)}"); A(f"v_add_u32 {vr(vQa)}, s34, {vr(vQa)}")
    def publish_q():
        A("s_getreg_b32 s47, hwreg(HW_REG_XCC_ID, 0, 4)")
        A("s_mul_i32 s47, s47, 0x1111"); A("s_bitset1_b32 s47, 18")
        if force_slow: A("s_cmp_eq_u32 s32, 5"); A("s_cselect_b32 s47, 0, s47")
        A("s_waitcnt lgkmcnt(0)")
        A("s_cmp_eq_u32 s46, s47")
        A("s_cbranch_scc0 L_f1slow")
        A("L_same:")
        A("s_mov_b32 s41, s46")
        A.c("the slots were cleared in this XCD's L2: publish there")
        A("s_mov_b32 exec_lo, 0x00ff00ff"); A("s_mov_b32 exec_hi, 0x00ff00ff")
        for k in range(2): A(f"global_store_dwordx4 {vr(vQa)}, {vr(vQs+4*k,4)}, s[28:29] offset:{64*k}")
        A("s_mov_b64 exec, -1")
        stamp(3)
        A("L_nopub:")
        def ool():
            A("L_f1slow:")
            if cnt: A("s_mov_b32 s90, 1")
            A(f"v_mov_b32 {vr(vT+20)}, s63")
            A("s_mov_b32 s35, 0")
            A("L_f1l:")
            A("s_cmp_ge_u32 s46, 0x40000")
            A("s_cbranch_scc1 L_f1d")
            A(f"global_load_dword {vr(vT+21)}, {vr(vT+20)}, s[26:27] sc1")
            A("s_add_u32 s35, s35, 1")
            A("s_waitcnt vmcnt(0)")
            A(f"v_readfirstlane_b32 s46, {vr(vT+21)}")
            A(f"s_cmp_lt_u32 s35, {SPIN}")
            A("s_cbranch_scc1 L_f1l")
            A("L_f1d:")
            A("s_cmp_eq_u32 s46, s47")
            A("s_cbranch_scc1 L_same")
            A.c("cleared on another XCD: tell the group, publish nothing here")
            A("s_mov_b32 s41, s46"); A("s_add_u32 s46, s63, 32"); A("s_mov_b32 s47, 1")
            A("s_atomic_add s47, s[26:27], s46 glc")
            A("s_waitcnt lgkmcnt(0)")
            A("s_mov_b32 s49, 1")
            A("s_branch L_nopub")
        OOL.append(ool)
    brow("s33", "s31"); A("s_mul_i32 s34, s30, 224"); A("s_add_u32 s33, s33, s34"); A(f"s_add_u32 s33, s33, {W_B}")
    A(f"v_min_u32 {vr(vT+4)}, 13, v1")
    A(f"v_mul_u32_u24 {vr(vBa)}, 3584, v2"); A(f"v_lshl_add_u32 {vr(vBa)}, {vr(vT+4)}, 4, {vr(vBa)}"); A(f"v_add_u32 {vr(vBa)}, s33, {vr(vBa)}")
    A(f"v_lshrrev_b32 {vr(vT+5)}, 1, v2"); A(f"v_mul_u32_u24 {vr(vT+5)}, {BH - 7168}, {vr(vT+5)}"); A(f"v_add_u32 {vr(vBa)}, {vr(vBa)}, {vr(vT+5)}")
    A("s_mul_i32 s34, s30, 448"); A(f"s_add_u32 s34, s34, {L_H}")
    A(f"v_and_b32 {vr(vT+5)}, 1, v2"); A(f"v_lshlrev_b32 {vr(vHw)}, 5, v1"); A(f"v_lshl_add_u32 {vr(vHw)}, {vr(vT+5)}, 4, {vr(vHw)}"); A(f"v_add_u32 {vr(vHw)}, s34, {vr(vHw)}")
    A(f"v_mov_b32 {vr(vT+5)}, {L_H + 1792}"); A("v_cmp_gt_u32 s[42:43], 14, v1")
    A(f"v_cndmask_b32 {vr(vHw)}, {vr(vT+5)}, {vr(vHw)}, s[42:43]")
    A(f"v_lshrrev_b32 {vr(vT+6)}, 5, v0")
    A("s_lshl_b32 s34, s30, 3"); A(f"s_add_u32 s34, s34, {L_HS}")
    A(f"v_lshlrev_b32 {vr(vHsw)}, 2, {vr(vT+6)}"); A(f"v_add_u32 {vr(vHsw)}, s34, {vr(vHsw)}")
    A(f"v_cvt_f32_u32 {vr(vKs)}, {vr(vT+6)}"); A(f"v_sub_f32 {vr(vKs+1)}, 1.0, {vr(vKs)}")
    for i in range(2): A(f"v_mul_f32 {vr(vKs+i)}, {f32(1.0/448)}, {vr(vKs+i)}")
    delta(vDl, "0x3f80", vT + 8)
    A("s_mul_i32 s33, s32, 56"); A(f"s_add_u32 s33, s33, {L_H}")
    ii = vT + 8; hf = vT + 9; col = vT + 10
    A(f"v_bfe_u32 {vr(ii)}, v0, 3, 1"); A(f"v_and_b32 {vr(hf)}, 3, v0"); A(f"v_lshl_add_u32 {vr(ii)}, {vr(ii)}, 2, {vr(hf)}")
    A(f"v_bfe_u32 {vr(hf)}, v0, 2, 1")
    A(f"v_min_u32 {vr(col)}, 6, {vr(ii)}"); A(f"v_mad_u32_u24 {vr(col)}, {vr(hf)}, 7, {vr(col)}")
    A(f"v_lshlrev_b32 {vr(vHa)}, 2, {vr(col)}"); A(f"v_add_u32 {vr(vHa)}, s33, {vr(vHa)}")
    A(f"v_cmp_eq_u32 vcc, 7, {vr(ii)}"); A(f"v_cndmask_b32 {vr(vT+11)}, v2, 3, vcc")
    A(f"v_mov_b32 {vr(vT+12)}, 0x3f803f80")
    A(f"v_cmp_eq_u32 vcc, 2, {vr(vT+11)}"); A(f"v_cndmask_b32 {vr(vK1)}, 0, 1.0, vcc")
    A(f"v_cmp_eq_u32 vcc, 0, {vr(vT+11)}"); A(f"v_cndmask_b32 {vr(vK1+1)}, 0, 1.0, vcc")
    A(f"v_cndmask_b32 {vr(vK1+3)}, 0, {vr(vT+12)}, vcc")
    A(f"v_cmp_eq_u32 vcc, 1, {vr(vT+11)}"); A(f"v_cndmask_b32 {vr(vK1+2)}, 0, 1.0, vcc")
    A(f"v_cndmask_b32 {vr(vK1+4)}, 0, {vr(vT+12)}, vcc")
    A(f"v_min_u32 {vr(col)}, 6, v0"); A(f"v_lshlrev_b32 {vr(vHf)}, 3, {vr(col)}"); A(f"v_add_u32 {vr(vHf)}, s33, {vr(vHf)}")
    A("s_mul_i32 s33, s31, 896"); A("s_mul_i32 s34, s32, 28"); A("s_add_u32 s33, s33, s34")
    A(f"v_lshlrev_b32 {vr(vOut)}, 2, {vr(col)}"); A(f"v_add_u32 {vr(vOut)}, s33, {vr(vOut)}")
    A(f"v_bfe_u32 {vr(ii)}, v0, 2, 1"); A(f"v_bfe_u32 {vr(hf)}, v0, 3, 1"); A(f"v_lshl_add_u32 {vr(ii)}, {vr(ii)}, 1, {vr(hf)}")
    A(f"v_bfe_u32 {vr(hf)}, v0, 4, 1"); A(f"v_lshl_add_u32 {vr(ii)}, {vr(hf)}, 2, {vr(ii)}")
    A(f"v_mad_u32_u24 {vr(hf)}, {vr(vT+6)}, 7, {vr(ii)}")
    A(f"v_cmp_eq_u32 vcc, 7, {vr(ii)}"); A(f"v_cndmask_b32 {vr(hf)}, {vr(hf)}, 15, vcc")
    A("s_lshl_b32 s34, s30, 6"); A(f"s_add_u32 s34, s34, {L_Y}")
    A(f"v_lshlrev_b32 {vr(vYa)}, 2, {vr(hf)}"); A(f"v_add_u32 {vr(vYa)}, s34, {vr(vYa)}")
    A("s_lshl_b32 s33, s31, 8"); A(f"s_add_u32 s33, s33, {W_L}"); A("s_and_b32 s34, s32, 3"); A("s_lshl_b32 s34, s34, 6"); A("s_add_u32 s34, s34, s33")
    A(f"v_lshlrev_b32 {vr(vLa)}, 4, v2"); A(f"v_add_u32 {vr(vLa)}, s34, {vr(vLa)}")
    A("s_lshl2_add_u32 s34, s32, s33")
    A(f"v_lshlrev_b32 {vr(vLst)}, 7, v0"); A(f"v_add_u32 {vr(vLst)}, s34, {vr(vLst)}")
    A(f"s_add_u32 s33, s39, {W_O}")
    A("s_and_b32 s35, s32, 1"); A("s_bfe_u32 s36, s32, 0x10001")
    A("s_lshl1_add_u32 s34, s35, s36"); A("s_lshl2_add_u32 s34, s34, s30"); A("s_lshl_b32 s34, s34, 11"); A("s_add_u32 s34, s34, s33")
    A(f"v_add_u32 {vr(vOa)}, s34, v3")
    A("s_lshl2_add_u32 s60, s35, s30")
    A("s_lshl1_add_u32 s34, s31, s36"); A("s_mul_i32 s34, s34, 896"); brow("s36", "s60"); A("s_add_u32 s34, s34, s36")
    A("s_cmp_ge_u32 s31, 4"); A(f"s_cselect_b32 s36, {BH - 7168}, 0"); A("s_add_u32 s34, s34, s36")
    A("s_lshr_b32 s36, s32, 2"); A("s_min_u32 s36, s36, 6"); A("s_lshl_b32 s36, s36, 7")
    A("s_add_u32 s34, s34, s36"); A(f"s_add_u32 s34, s34, {W_B}")
    A(f"v_lshlrev_b32 {vr(vBst)}, 3, v1"); A(f"v_add_u32 {vr(vBst)}, s34, {vr(vBst)}")
    A("s_lshr_b32 s34, s32, 4"); A("s_lshl2_add_u32 s34, s34, s30"); A("s_lshl_b32 s34, s34, 12"); A("s_add_u32 s34, s34, s33")
    A("s_and_b32 s36, s32, 15"); A("s_lshl4_add_u32 s34, s36, s34")
    A(f"v_lshrrev_b32 {vr(vOst)}, 2, v0"); A(f"v_lshlrev_b32 {vr(vOst)}, 8, {vr(vOst)}"); A(f"v_and_b32 {vr(vT+4)}, 3, v0")
    A(f"v_lshl_add_u32 {vr(vOst)}, {vr(vT+4)}, 2, {vr(vOst)}"); A(f"v_add_u32 {vr(vOst)}, s34, {vr(vOst)}")
    A("s_lshl_b32 s34, s30, 8"); A(f"s_add_u32 s34, s34, {L_PP}")
    A(f"v_lshlrev_b32 {vr(vPPr)}, 4, v1"); A(f"v_add_u32 {vr(vPPr)}, s34, {vr(vPPr)}")
    A("s_lshl_b32 s34, s30, 9"); A(f"s_add_u32 s34, s34, {L_OP}")
    A(f"v_lshlrev_b32 {vr(vOPr)}, 3, v0"); A(f"v_add_u32 {vr(vOPr)}, s34, {vr(vOPr)}")
    A("s_lshl_b32 s34, s30, 10"); A(f"s_add_u32 s34, s34, {L_PP}")
    A(f"v_lshlrev_b32 {vr(vPPa)}, 2, v1"); A(f"v_lshl_add_u32 {vr(vPPa)}, v2, 8, {vr(vPPa)}"); A(f"v_add_u32 {vr(vPPa)}, s34, {vr(vPPa)}")
    for i in range(4): A(f"v_mov_b32 {vr(vG+i)}, 0")
    A(f"s_mov_b32 s37, {f32(1.0/64)}")
    A("s_mov_b32 s38, 0xffff0000")
    def qproj():
        A("s_cmp_eq_u32 s30, 0"); A("s_cbranch_scc0 L_nopub")
        A.c("T0: q projection, 64 columns x a quarter of the rows, all 8 batches; LayerNorm applied after the product")
        A("s_mov_b32 s34, 0x3f803f80")
        for i in range(56): A(f"v_mov_b32 {vr(vX+i)}, s34")
        A(f"v_and_b32 {vr(tT+1)}, 7, v1"); A(f"v_mul_u32_u24 {vr(tT+1)}, 896, {vr(tT+1)}"); A(f"v_add_u32 {vr(tT+1)}, {L_X}, {vr(tT+1)}")
        A(f"v_lshl_add_u32 {vr(tT)}, v2, 4, {vr(tT+1)}")
        A("s_mul_i32 s33, s48, 224"); A(f"v_lshl_add_u32 {vr(tT+1)}, v2, 3, {vr(tT+1)}"); A(f"v_add_u32 {vr(tT+1)}, s33, {vr(tT+1)}")
        A(f"v_lshrrev_b32 {vr(tT+2)}, 2, v0"); A(f"v_lshlrev_b32 {vr(tT+2)}, 7, {vr(tT+2)}"); A(f"v_and_or_b32 {vr(tT+2)}, v3, 48, {vr(tT+2)}")
        A(f"v_add_u32 {vr(tT+2)}, {L_WQ}, {vr(tT+2)}")
        A(f"v_bfe_u32 {vr(tT+3)}, v1, 2, 1"); A(f"v_lshl_add_u32 {vr(tT+3)}, {vr(tT+3)}, 4, v1"); A(f"v_lshlrev_b32 {vr(tT+3)}, 2, {vr(tT+3)}")
        A(f"v_lshlrev_b32 {vr(tT+4)}, 2, v1"); A(f"v_add_u32 {vr(tT+4)}, 128, {vr(tT+4)}")
        A(f"v_and_b32 {vr(tT+5)}, 3, v1")
        sm = ('', 's[6:7]', 's[8:9]', 's[14:15]')
        for i in range(1, 4): A(f"v_cmp_eq_u32 {sm[i]}, {i}, {vr(tT+5)}")
        D1 = vX + 16; D2 = tT + 8; wf = vW
        A("s_mov_b32 exec_lo, 0x00ff00ff"); A("s_mov_b32 exec_hi, 0x00ff00ff")
        A(f"s_waitcnt vmcnt({14 - xl + (2 if cl else 0)})")
        for t in range(14): A(f"ds_read_b128 {vr(vX+4*t,4)}, {vr(tT)} offset:{64*t}")
        A("s_mov_b64 exec, -1")
        for t in range(14):
            A(f"s_waitcnt lgkmcnt({13-t})")
            c = "0" if t == 0 else vr(D2, 4)
            A(f"v_mfma_f32_16x16x32_bf16 {vr(D2,4)}, {vr(vX+4*t,4)}, {vr(vX+4*t,4)}, {c}")
        for i in range(1, 4): A(f"v_cndmask_b32 {vr(D2)}, {vr(D2)}, {vr(D2+i)}, {sm[i]}")
        A(f"ds_bpermute_b32 {vr(tT+6)}, {vr(tT+3)}, {vr(D2)}")
        A(f"ds_bpermute_b32 {vr(tT+7)}, {vr(tT+4)}, {vr(D2)}")
        A("s_mov_b32 exec_lo, 0x00ff00ff"); A("s_mov_b32 exec_hi, 0x00ff00ff")
        for t in range(7): A(f"ds_read_b64 {vr(vX+2*t,2)}, {vr(tT+1)} offset:{32*t}")
        A("s_mov_b64 exec, -1")
        A(f"s_mov_b32 s33, {f32(1.0/448)}")
        A("s_waitcnt lgkmcnt(0)")
        A(f"v_mul_f32 {vr(tT+7)}, s33, {vr(tT+7)}")
        A(f"v_mul_f32 {vr(tT+6)}, s33, {vr(tT+6)}")
        A(f"v_fma_f32 {vr(tT+6)}, -{vr(tT+7)}, {vr(tT+7)}, {vr(tT+6)}")
        A(f"v_max_f32 {vr(tT+6)}, 0, {vr(tT+6)}")
        A(f"v_add_f32 {vr(tT+6)}, {f32(1e-5)}, {vr(tT+6)}")
        A(f"v_rsq_f32 {vr(tT+6)}, {vr(tT+6)}")
        A("s_waitcnt vmcnt(0)")
        if lk == 0: A("s_load_dword s46, s[26:27], s63")
        stamp(1)
        for np_ in range(2):
            for t in range(7):
                for e in range(2):
                    A(f"ds_read_b64_tr_b16 {vr(wf+4*t+2*e,2)}, {vr(tT+2)} offset:{2048*t + 64*np_ + 8*e}")
            for t in range(7):
                A(f"s_waitcnt lgkmcnt({12-2*t})")
                for e in range(2):
                    D = D1 + 8*np_ + 4*e
                    c = "0" if t == 0 else vr(D, 4)
                    A(f"v_mfma_f32_16x16x16_bf16 {vr(D,4)}, {vr(wf+4*t+2*e,2)}, {vr(vX+2*t,2)}, {c}")
        if lk == 1: A("s_load_dword s46, s[26:27], s63")
        for i0 in (0, 8):
            for i in range(8):
                A(f"v_mul_f32_dpp {vr(D2+i)}, {vr(D1+i0+i)}, {vr(tT+7)} row_newbcast:8 row_mask:0xf bank_mask:0xf")
            for i in range(8):
                A(f"v_sub_f32 {vr(D2+i)}, {vr(D1+i0+i)}, {vr(D2+i)}")
                A(f"v_mul_f32 {vr(D2+i)}, {vr(D2+i)}, {vr(tT+6)}")
            for i in range(4):
                A(f"v_cvt_pk_bf16_f32 {vr(vQs+i0//2+i)}, {vr(D2+2*i)}, {vr(D2+2*i+1)}")
                A(f"v_min_u32 {vr(vQs+i0//2+i)}, -2, {vr(vQs+i0//2+i)}")
        publish_q()
    def conv():
        if c1_:
            for k in range(3):
                for i in range(4): A(f"v_mov_b32 {vr(raw+8*k+4+((i+3)&3))}, {vr(raw+8*k+i)}")
                for i in range(4): A(f"v_permlane32_swap_b32 {vr(raw+8*k+i)}, {vr(raw+8*k+4+((i+3)&3))}")
        for i in (2, 3): A(f"v_cndmask_b32 {vr(vXr+i)}, 0, {vr(vXr+i)}, s[42:43]")
        A(f"v_lshlrev_b32 {vr(vXr)}, 16, {vr(vXr+2)}"); A(f"v_and_b32 {vr(vXr+1)}, s38, {vr(vXr+2)}")
        A(f"v_lshlrev_b32 {vr(vXr+2)}, 16, {vr(vXr+3)}"); A(f"v_and_b32 {vr(vXr+3)}, s38, {vr(vXr+3)}")
        A(f"v_lshlrev_b32 {vr(vB2)}, 16, {vr(vB2)}")
    w, b, u, bb, c0, c1, c2, c3, ca, cc, hi = (vT + 1 + i for i in range(11))
    def tiles(t0, t1):
        if t0 >= t1: return
        A.c("gelu argument as a cubic in hn, and n = (w1*hn + b1)*w2, as split-bf16 MFMA operands")
        A(f"s_mov_b32 s33, {f32(BETA)}"); A(f"s_mov_b32 s34, {f32(3*BETA)}"); A(f"v_mov_b32 {vr(vT)}, {f32(ALPHA)}")
        A("v_cmp_lt_u32 vcc, 31, v0")
        for tile in range(t0, t1):
            for k, d in enumerate((w, b, u)):
                src = raw + 8*k + (tile >> 1)
                if tile & 1: A(f"v_and_b32 {vr(d)}, s38, {vr(src)}")
                else: A(f"v_lshlrev_b32 {vr(d)}, 16, {vr(src)}")
            A(f"v_mul_f32 {vr(bb)}, {vr(b)}, {vr(b)}")
            A(f"v_fma_f32 {vr(c0)}, {vr(bb)}, s33, {vr(vT)}"); A(f"v_mul_f32 {vr(c0)}, {vr(c0)}, {vr(b)}")
            A(f"v_fma_f32 {vr(c1)}, {vr(bb)}, s34, {vr(vT)}"); A(f"v_mul_f32 {vr(c1)}, {vr(c1)}, {vr(w)}")
            A(f"v_mul_f32 {vr(bb)}, {vr(w)}, {vr(w)}")
            A(f"v_mul_f32 {vr(c2)}, s34, {vr(bb)}"); A(f"v_mul_f32 {vr(c2)}, {vr(c2)}, {vr(b)}")
            A(f"v_mul_f32 {vr(c3)}, s33, {vr(bb)}"); A(f"v_mul_f32 {vr(c3)}, {vr(c3)}, {vr(w)}")
            A(f"v_mul_f32 {vr(ca)}, {vr(w)}, {vr(u)}"); A(f"v_mul_f32 {vr(cc)}, {vr(b)}, {vr(u)}")
            for k, cx in enumerate((c0, c1, c2, c3)): A(f"v_add_f32 {vr(vG+k)}, |{vr(cx)}|, {vr(vG+k)}")
            A(f"v_fma_f32 {vr(vG)}, |{vr(cc)}|, s37, {vr(vG)}"); A(f"v_fma_f32 {vr(vG+1)}, |{vr(ca)}|, s37, {vr(vG+1)}")
            for k, (lo_, hi_) in enumerate(((c1, c2), (c0, c2), (ca, c3), (cc, c3))):
                A(f"v_cndmask_b32 {vr(lo_)}, {vr(lo_)}, {vr(hi_)}, vcc")
                A(f"v_cvt_pk_bf16_f32 {vr(hi)}, {vr(lo_)}, {vr(lo_)}")
                A(f"v_and_b32 {vr(hi)}, s38, {vr(hi)}")
                A(f"v_sub_f32 {vr(lo_)}, {vr(lo_)}, {vr(hi)}")
                A(f"v_cvt_pk_bf16_f32 {vr(vC+4*tile+k)}, {vr(hi)}, {vr(lo_)}")
    def guard():
        A.c("largest |hn| for which the fused gelu path can neither overflow nor lose precision")
        A("s_mov_b32 s3, -1.0"); A(f"s_mov_b32 s34, {f32(100.0)}")
        for H in (3.0, 4.5, 6.0, 8.0, 12.0, 22.0):
            A(f"s_mov_b32 s33, {f32(H)}")
            A(f"v_fma_f32 {vr(vT+1)}, {vr(vG+3)}, s33, {vr(vG+2)}"); A(f"v_fma_f32 {vr(vT+1)}, {vr(vT+1)}, s33, {vr(vG+1)}")
            A(f"v_fma_f32 {vr(vT+1)}, {vr(vT+1)}, s33, {vr(vG)}")
            A(f"v_cmp_nge_f32 vcc, s34, {vr(vT+1)}")
            A("s_cmp_eq_u64 vcc, 0"); A("s_cselect_b32 s3, s33, s3")
        if force_fb: A("s_mov_b32 s3, -1.0")
    if cpos == "early":
        A("s_cmp_eq_u32 s30, 0"); A("s_cbranch_scc1 L_pw"); A("s_waitcnt vmcnt(0)"); A("L_pw:")
        A("s_waitcnt vmcnt(14)")
        conv(); tiles(0, QT); qproj(); tiles(QT, 14); guard()
    else:
        qproj()
    A("s_lshr_b32 s33, s32, 2"); A("s_lshl_b32 s33, s33, 12"); A("s_add_u32 s33, s33, s39")
    A(f"v_add_u32 {vr(vT)}, s33, v3"); A(f"v_add_u32 {vr(vT+1)}, {L_Q}, v3")
    A(f"v_and_b32 {vr(vT+20)}, 7, v0"); A(f"v_lshlrev_b32 {vr(vT+20)}, 2, {vr(vT+20)}"); A(f"v_mov_b32 {vr(vT+19)}, {L_STAT + 64}")
    stamp(4)
    if cpos == "pre1": prep_loads()
    A("s_barrier")
    if cpos == "mid": prep_loads()
    A("s_mov_b32 s35, 0")
    A("s_cmp_eq_u32 s30, 0")
    A("s_cbranch_scc0 L_b1b")
    A.c("T0: gather the four q partials, add, hand to the stream waves")
    qa = vX
    def qload():
        for k in range(4): A(f"global_load_dwordx4 {vr(qa+4*k,4)}, {vr(vT)}, s[28:29] offset:{1024*k} sc1")
        A("s_waitcnt vmcnt(0)")
    A("s_cmp_eq_u32 s49, 0"); A("s_cbranch_scc0 L_glob")
    A("L_qpoll:")
    qload()
    A(f"v_max3_u32 {vr(vT+2)}, {vr(qa)}, {vr(qa+1)}, {vr(qa+2)}")
    for i in range(3, 15, 2): A(f"v_max3_u32 {vr(vT+2)}, {vr(vT+2)}, {vr(qa+i)}, {vr(qa+i+1)}")
    A(f"v_max_u32 {vr(vT+2)}, {vr(vT+2)}, {vr(qa+15)}")
    A(f"v_cmp_eq_u32 vcc, -1, {vr(vT+2)}")
    A("s_cbranch_vccnz L_qretry")
    def ool_q():
        A("L_qretry:")
        if cnt: A("s_mov_b32 s91, 1")
        A("s_add_u32 s35, s35, 1")
        A(f"s_cmp_ge_u32 s35, {SPIN}")
        A("s_cbranch_scc1 L_qdone")
        A("s_bitcmp1_b32 s35, 0"); A("s_cbranch_scc1 L_qpoll")
        A(f"v_mov_b32 {vr(vT+12)}, s63")
        A(f"global_load_dword {vr(vT+13)}, {vr(vT+12)}, s[26:27] offset:32 sc1")
        A("s_waitcnt vmcnt(0)")
        A(f"v_readfirstlane_b32 s46, {vr(vT+13)}")
        A("s_cmp_eq_u32 s46, 0")
        A("s_cbranch_scc1 L_qpoll")
        A("L_glob:")
        A.c("group spread over several XCDs: write-through hand-off in the second copy, ordered by a counter")
        A("s_mov_b32 s49, 1")
        for i in range(4): A(f"v_mov_b32 {vr(qa+i)}, -1")
        A("s_lshl_b32 s33, s32, 10"); A("s_add_u32 s33, s33, s39"); A(f"s_add_u32 s33, s33, {W_O + W_ALT}")
        A(f"v_add_u32 {vr(vT+12)}, s33, v3"); A(f"v_add_u32 {vr(vT+13)}, {W_ALT}, {vr(vLst)}"); A(f"v_add_u32 {vr(vT+14)}, {W_ALT}, {vr(vQa)}")
        A(f"v_add_u32 {vr(vT)}, {W_ALT}, {vr(vT)}"); A(f"v_mov_b32 {vr(vT+15)}, s63")
        A(f"global_store_dwordx4 {vr(vT+12)}, {vr(qa,4)}, s[28:29] sc1")
        A("s_bfe_u32 s33, s41, 0x10002")
        if bph: A("s_xor_b32 s33, s33, 1")
        A("s_lshl_b32 s33, s33, 13"); A("s_add_u32 s33, s33, s40"); A(f"v_add_u32 {vr(vT+12)}, s33, v3")
        A("s_mov_b32 exec_hi, 0")
        A(f"global_store_dwordx4 {vr(vT+12)}, {vr(qa,4)}, s[28:29] sc1")
        A("s_mov_b64 exec, 3")
        A(f"global_store_dword {vr(vT+13)}, {vr(qa)}, s[28:29] sc1")
        A("s_mov_b32 exec_lo, 0x00ff00ff"); A("s_mov_b32 exec_hi, 0x00ff00ff")
        for k in range(2): A(f"global_store_dwordx4 {vr(vT+14)}, {vr(vQs+4*k,4)}, s[28:29] offset:{64*k} sc1")
        A("s_mov_b64 exec, -1")
        A("s_add_u32 s46, s63, 64"); A("s_mov_b32 s47, 1"); A("s_mov_b32 s35, 0")
        A("s_waitcnt vmcnt(0)")
        A("s_atomic_add s47, s[26:27], s46")
        A("L_gl:")
        A(f"global_load_dword {vr(vT+13)}, {vr(vT+15)}, s[26:27] offset:64 sc1")
        A("s_add_u32 s35, s35, 1")
        A("s_waitcnt vmcnt(0) lgkmcnt(0)")
        A(f"v_readfirstlane_b32 s46, {vr(vT+13)}")
        A(f"s_cmp_ge_u32 s35, {SPIN}"); A("s_cselect_b32 s46, 32, s46")
        A("s_cmp_lt_u32 s46, 32")
        A("s_cbranch_scc1 L_gl")
        qload()
        A("s_branch L_qdone")
    OOL.append(ool_q)
    A("L_qdone:")
    stamp(14)
    for k in range(4):
        for p in range(4):
            A(f"v_lshlrev_b32 {vr(vT+4+2*p)}, 16, {vr(qa+4*p+k)}"); A(f"v_and_b32 {vr(vT+5+2*p)}, s38, {vr(qa+4*p+k)}")
        A(f"v_pk_add_f32 {vr(vT+4,2)}, {vr(vT+4,2)}, {vr(vT+6,2)}"); A(f"v_pk_add_f32 {vr(vT+8,2)}, {vr(vT+8,2)}, {vr(vT+10,2)}")
        A(f"v_pk_add_f32 {vr(vT+4,2)}, {vr(vT+4,2)}, {vr(vT+8,2)}")
        A(f"v_cvt_pk_bf16_f32 {vr(qa+k)}, {vr(vT+4)}, {vr(vT+5)}")
    A(f"ds_write_b128 {vr(vT+1)}, {vr(qa,4)}")
    A(f"v_mov_b32 {vr(vT+2)}, s49")
    A(f"ds_write_b32 {vr(vT+19)}, {vr(vT+2)}")
    A("s_cmp_eq_u32 s32, 0"); A("s_cbranch_scc0 L_nof2")
    A.c("every member of this group has cleared its share of the out-projection slots")
    A("s_mov_b32 s33, 0x100000")
    A("s_waitcnt lgkmcnt(0)")
    A("s_barrier")
    A("s_atomic_add s33, s[26:27], s63")
    A("s_branch L_b1c")
    A("L_nof2:")
    A("s_waitcnt lgkmcnt(0)")
    A("L_b1b:")
    A("s_barrier")
    A("L_b1c:")
    A(f"ds_read_b32 {vr(vT+21)}, {vr(vT+19)}")
    if cpos == "b1b": A("s_waitcnt vmcnt(0) lgkmcnt(0)"); prep_loads()
    elif cpos != "early": A("s_waitcnt vmcnt(0) lgkmcnt(0)")
    if touch: A(f"global_load_dword {vr(vT+22)}, {vr(vOut)}, s[24:25]")
    if cpos not in ("early", "b1b"): conv(); tiles(0, N1)
    A(f"v_and_b32 {vr(vT)}, 1, v0"); A(f"v_lshlrev_b32 {vr(vT)}, 5, {vr(vT)}"); A(f"v_add_u32 {vr(vT)}, {L_STAT}, {vr(vT)}")
    A("s_barrier")
    A(f"ds_read_b128 {vr(vT+4,4)}, {vr(vT)}")
    A(f"ds_read_b128 {vr(vT+8,4)}, {vr(vT)} offset:16")
    A("s_waitcnt lgkmcnt(0)")
    stats(vT + 4, vT + 8, vT + 1, vT + 2)
    A(f"v_log_f32 {vr(vT+2)}, {vr(vT+2)}")
    A(f"v_add_f32 {vr(vLse)}, {vr(vT+1)}, {vr(vT+2)}")
    A(f"v_min_u32 {vr(vLse)}, -2, {vr(vLse)}")
    A(f"v_readfirstlane_b32 s62, {vr(vT+21)}")
    A("s_lshl_b32 s33, s62, 20")
    for r_ in (vLa, vLst, vOa, vOst): A(f"v_add_u32 {vr(r_)}, s33, {vr(r_)}")
    A("s_cmp_eq_u32 s30, 1"); A("s_cbranch_scc0 L_nolse")
    A("s_mov_b64 exec, 3")
    A("s_cmp_eq_u32 s62, 0"); A("s_cbranch_scc0 L_slowlse")
    A(f"global_store_dword {vr(vLst)}, {vr(vLse)}, s[28:29]")
    A("L_lsed:")
    A("s_mov_b64 exec, -1")
    A("L_nolse:")
    if wbm:
        A("s_cmp_eq_u32 s30, 2"); A("s_cselect_b32 s33, s32, 0"); A("s_cmp_eq_u32 s33, 31"); A("s_cbranch_scc0 L_nowbm"); A("buffer_wbl2 sc1"); A("L_nowbm:")
    def ool_lse():
        A("L_slowlse:")
        A(f"global_store_dword {vr(vLst)}, {vr(vLse)}, s[28:29] sc1")
        A("s_branch L_lsed")
    OOL.append(ool_lse)
    if inst:
        A.c("bring this workgroup's share of the cleared hand-off lines into L2 ahead of the polls (values unused)")
        A("s_cmp_lt_u32 s30, 2"); A("s_cbranch_scc1 L_noinst")
        A("s_lshl_b32 s33, s32, 10"); A("s_add_u32 s33, s33, s39"); A(f"s_add_u32 s33, s33, {W_O}")
        A("s_mul_i32 s34, s31, 14336"); A("s_min_u32 s35, s32, 27"); A("s_lshl_b32 s35, s35, 9"); A("s_add_u32 s34, s34, s35"); A(f"s_add_u32 s34, s34, {W_B}")
        A("s_cmp_eq_u32 s30, 2")
        if inst == 1: A("s_cbranch_scc0 L_noinst")
        if inst == 2: A("s_cbranch_scc1 L_noinst")
        A("s_cselect_b32 s33, s34, s33")
        A(f"v_add_u32 {vr(vT+12)}, s33, v3")
        A("s_cselect_b32 exec_hi, 0, -1")
        A(f"global_load_dwordx4 {vr(vT+16,4)}, {vr(vT+12)}, s[28:29] sc1")
        A("s_mov_b64 exec, -1")
        A("L_noinst:")
    A("s_mov_b64 s[56:57], s[12:13]"); A("s_mov_b32 s58, 0x380000"); A("s_mov_b32 s59, 0x20000")
    wo_loads(0, NE, "a")
    if cpos == "b1b":
        A("s_cmp_eq_u32 s30, 1"); A("s_cbranch_scc1 L_cw"); A("s_waitcnt vmcnt(0)"); A("L_cw:"); A("s_waitcnt vmcnt(1)"); conv()
    if cpos != "early": tiles(N1, 14); guard()
    A("s_cmp_lt_u32 s32, 28"); A("s_cselect_b32 s44, 0xffff, 0")
    A("s_cmp_eq_u32 s60, s31"); A("s_cselect_b32 s45, s44, 0"); A("s_cmp_eq_u32 s62, 0"); A("s_cselect_b32 s45, s45, 0")
    if "s" in bx: A("s_mov_b32 s45, 0")
    A("s_andn2_b32 s44, s44, s45")
    bl = vX + 16
    for i in range(16): A(f"v_mov_b32 {vr(bl+i)}, 0")
    for nt in range(1, 4): A(f"v_xor_b32 {vr(vRaw+nt)}, {32*nt}, {vr(vWr)}")
    ls4 = vT + 4; ck = vT + 1
    def lse_load():
        A(f"global_load_dwordx4 {vr(ls4,4)}, {vr(vLa)}, s[28:29] sc1")
        A(f"global_load_dword {vr(vT+21)}, {vr(vT+20)}, s[26:27] sc1")
    A(f"s_mov_b32 s36, {f32(1.0 + 1e-5)}")
    A("s_brev_b32 s40, 1"); A("s_brev_b32 s41, 1")
    def weights():
        A(f"v_and_b32 {vr(ck)}, 4, {vr(vT+21)}"); A(f"v_cmp_{'eq' if bph else 'ne'}_u32 s[6:7], 0, {vr(ck)}")
        A(f"v_lshrrev_b32 {vr(ck)}, 20, {vr(vT+21)}"); A(f"v_add_u32 {vr(ck)}, -1, {vr(ck)}")
        A(f"v_max3_u32 {vr(ck)}, {vr(ck)}, {vr(ls4)}, {vr(ls4+1)}"); A(f"v_max3_u32 {vr(ck)}, {vr(ck)}, {vr(ls4+2)}, {vr(ls4+3)}")
        A(f"v_cmp_eq_u32 vcc, -1, {vr(ck)}")
        A(f"v_max3_f32 {vr(vT+2)}, {vr(ls4)}, {vr(ls4+1)}, {vr(ls4+2)}"); A(f"v_max_f32 {vr(vT+2)}, {vr(vT+2)}, {vr(ls4+3)}")
        for i in range(4): A(f"v_sub_f32 {vr(ls4+i)}, {vr(ls4+i)}, {vr(vT+2)}")
        for i in range(4): A(f"v_exp_f32 {vr(ls4+i)}, {vr(ls4+i)}")
        A(f"v_add_f32 {vr(vT+2)}, {vr(ls4)}, {vr(ls4+1)}"); A(f"v_add_f32 {vr(vT+3)}, {vr(ls4+2)}, {vr(ls4+3)}")
        A(f"v_add_f32 {vr(vT+2)}, {vr(vT+2)}, {vr(vT+3)}"); A(f"v_rcp_f32 {vr(vT+2)}, {vr(vT+2)}")
        for i in range(4): A(f"v_mul_f32 {vr(ls4+i)}, {vr(ls4+i)}, {vr(vT+2)}")
    A.c("split-combine weights; vcc != 0: some lse had not arrived yet, redo after publishing")
    if tal >= 0:
        A("s_branch L_tail"); A(".p2align 12")
        if tal: A(f".fill {tal // 4}, 4, 0xbf810000")
        A("L_tail:")
    stamp(2)
    A("s_barrier")
    lse_load()
    if not lw: A("s_cmp_ge_u32 s32, 28"); A("s_cbranch_scc0 L_wob"); A("s_waitcnt vmcnt(0)"); A("L_wob:")
    wo_loads(NE, 8 - NB, "b")
    A(f"s_mov_b32 s35, {-SPIN & 0xffffffff}")
    A("s_cmp_eq_u32 s62, 0")
    A("L_b3:")
    A("s_barrier")
    stamp(5)
    if "E" in skip: A("s_branch L_fin")
    A.c("reduce the four stream waves' o partials, publish as bf16")
    o = vX; ls4 = vT + 4; oa = vX + 32; Dc = vX + 40; ck = vT + 1
    for w_ in range(4): A(f"ds_read_b64 {vr(o+2*w_,2)}, {vr(vOPr)} offset:{2048*w_}")
    for w_ in range(1, 4):
        A(f"s_waitcnt lgkmcnt({3-w_})")
        A(f"v_pk_add_f32 {vr(o,2)}, {vr(o,2)}, {vr(o+2*w_,2)}")
    A(f"v_cvt_pk_bf16_f32 {vr(o)}, {vr(o)}, {vr(o+1)}")
    A(f"v_min_u32 {vr(o)}, -2, {vr(o)}")
    A("s_cbranch_scc0 L_slowpub")
    A(f"global_store_dword {vr(vOst)}, {vr(o)}, s[28:29]")
    A("L_pubd:")
    def ool_pub():
        A("L_slowpub:")
        A(f"global_store_dword {vr(vOst)}, {vr(o)}, s[28:29] sc1")
        A("s_branch L_pubd")
    OOL.append(ool_pub)
    stamp(6)
    A.c("out projection")
    def aset():
        for tt in range(2):
            A(f"global_load_dwordx4 {vr(oa+4*tt,4)}, {vr(vOa)}, s[28:29] offset:{1024*tt} sc1")
    if ap:
        wo_loads(8 - NB, 8, "c")
        seqv = [f"w{i}" for i in range(NE, 8 - NB)] + ["st"] + [f"w{i}" for i in range(8 - NB, 8)]
        def upto(i):
            live = [k for k, x in enumerate(seqv) if x[0] == "w" and int(x[1:]) <= i]
            if live: A(f"s_waitcnt vmcnt({len(seqv) - 1 - max(live)})")
        if lw: A("s_cmp_ge_u32 s32, 28"); A("s_cbranch_scc0 L_wob"); A("s_waitcnt vmcnt(0)"); A("L_wob:")
        A(f"s_waitcnt vmcnt({len(seqv)})")
        weights()
        upto(3)
        if ap == 1: aset(); seqv += ["a", "a"]
        wo_frags((0,))
        if ap >= 2: upto(3 + ap); aset(); seqv += ["a", "a"]
        upto(7); wo_frags((1,))
    else:
        aset()
        A(f"s_waitcnt vmcnt({3 + 8 - NE})")
        weights()
        if o1:
            A("s_waitcnt vmcnt(7)"); wo_frags((0,)); A("s_waitcnt vmcnt(3)"); wo_frags((1,))
        else:
            A("s_waitcnt vmcnt(3)"); wo_frags()
    A("s_cbranch_vccnz L_lretry")
    def ool_l():
        A("L_lretry:")
        if cnt: A("s_mov_b32 s92, 1")
        lse_load()
        A("s_add_u32 s35, s35, 1")
        A("s_waitcnt vmcnt(0)")
        weights()
        A("s_cbranch_scc1 L_lok")
        A("s_cbranch_vccnz L_lretry")
        A("L_lok:")
        A(f"s_mov_b32 s35, {-SPIN & 0xffffffff}")
        A("s_branch L_apoll0")
    OOL.insert(0, ool_l)
    A("L_apoll0:")
    A("s_bitcmp1_b32 s6, s31"); A("s_cselect_b32 s8, 8192, 0"); A("s_bitcmp1_b32 s6, s60"); A("s_cselect_b32 s9, 8192, 0")
    def achk():
        A(f"v_max3_u32 {vr(ck)}, {vr(oa)}, {vr(oa+1)}, {vr(oa+2)}"); A(f"v_max3_u32 {vr(ck)}, {vr(ck)}, {vr(oa+3)}, {vr(oa+4)}")
        A(f"v_max3_u32 {vr(ck)}, {vr(ck)}, {vr(oa+5)}, {vr(oa+6)}"); A(f"v_max_u32 {vr(ck)}, {vr(ck)}, {vr(oa+7)}")
    if True:
        A("s_waitcnt vmcnt(0)")
        achk()
        A(f"v_cmpx_eq_u32 vcc, -1, {vr(ck)}")
        A("s_cbranch_execz L_adone")
        for _ in range(DA - 1):
            aset()
            for _ in range(GA): A("s_nop 7")
    A("L_apoll:")
    aset()
    A("s_add_u32 s35, s35, 1"); A("s_cselect_b32 s47, -1, -2")
    A(f"s_waitcnt vmcnt({2*(DA-1)})")
    achk()
    A(f"v_cmpx_lt_u32 vcc, s47, {vr(ck)}")
    A("s_cbranch_execnz L_apoll")
    A("L_adone:")
    A("s_mov_b64 exec, -1")
    A("s_waitcnt lgkmcnt(6)" if o1 else "s_waitcnt lgkmcnt(0)")
    A(f"s_mov_b32 s35, {-SPIN & 0xffffffff}")
    stamp(7)
    pp = vT + 16
    def wsum(c):
        return [f"v_mul_f32 {vr(pp+c)}, {vr(Dc+4*c)}, {vr(ls4)}"] + [f"v_fmac_f32 {vr(pp+c)}, {vr(Dc+4*c+i)}, {vr(ls4+i)}" for i in range(1, 4)]
    ws = sum((wsum(c) for c in range(4)), [])
    for k in range(8):
        c, tt = k >> 1, k & 1
        cc_ = "0" if tt == 0 else vr(Dc+4*c, 4)
        A(f"v_mfma_f32_16x16x32_bf16 {vr(Dc+4*c,4)}, {vr(oa+4*tt,4)}, {vr(vW+16*tt+4*c,4)}, {cc_}")
        if o1 and k in (2, 4, 6): A(f"s_waitcnt lgkmcnt({6 - k})")
        if k == 1: A(f"v_add_u32 {vr(vBa)}, s8, {vr(vBa)}"); A(f"v_add_u32 {vr(vBst)}, s9, {vr(vBst)}")
        if 2 <= k <= 3: A(f"s_nop {0 if (o1 and k == 2) else 1}")
        if k >= 4: A(ws.pop(0)); A(ws.pop(0))
    A(f"ds_write2_b32 {vr(vPPa)}, {vr(pp)}, {vr(pp+1)} offset0:0 offset1:16")
    for x in ws: A(x)
    A(f"ds_write2_b32 {vr(vPPa)}, {vr(pp+2)}, {vr(pp+3)} offset0:32 offset1:48")
    A("s_mov_b64 exec, 0xffff")
    A("s_waitcnt lgkmcnt(0)")
    stamp(8)
    A("s_barrier")
    pr = vX
    for w_ in range(4): A(f"ds_read_b128 {vr(pr+4*w_,4)}, {vr(vPPr)} offset:{1024*w_}")
    for w_ in range(1, 4):
        A(f"s_waitcnt lgkmcnt({3-w_})")
        for k in (0, 2): A(f"v_pk_add_f32 {vr(pr+k,2)}, {vr(pr+k,2)}, {vr(pr+4*w_+k,2)}")
    A(f"v_cvt_pk_bf16_f32 {vr(pr)}, {vr(pr)}, {vr(pr+1)}"); A(f"v_cvt_pk_bf16_f32 {vr(pr+1)}, {vr(pr+2)}, {vr(pr+3)}")
    A(f"v_min_u32 {vr(pr)}, -2, {vr(pr)}"); A(f"v_min_u32 {vr(pr+1)}, -2, {vr(pr+1)}")
    A("s_mov_b32 exec_lo, s44")
    A(f"global_store_dwordx2 {vr(vBst)}, {vr(pr,2)}, s[28:29] sc1")
    A("s_mov_b32 exec_lo, s45")
    A(f"global_store_dwordx2 {vr(vBst)}, {vr(pr,2)}, s[28:29]")
    A("s_mov_b64 exec, s[42:43]")
    stamp(9)
    if "a" in bx: A("s_waitcnt vmcnt(0)")
    if "b" in bx: A("s_barrier")
    if PB0: A(f"s_sleep {PB0}")
    def bset():
        for i in range(4):
            A(f"global_load_dwordx4 {vr(bl+4*i,4)}, {vr(vBa)}, s[28:29] offset:{896*i} sc1")
    def bchk():
        A(f"v_max3_u32 {vr(ck)}, {vr(bl)}, {vr(bl+1)}, {vr(bl+2)}")
        for i in range(3, 15, 2): A(f"v_max3_u32 {vr(ck)}, {vr(ck)}, {vr(bl+i)}, {vr(bl+i+1)}")
        A(f"v_max_u32 {vr(ck)}, {vr(ck)}, {vr(bl+15)}")
    if DB > 1:
        bset()
        A("s_waitcnt vmcnt(0)")
        bchk()
        A(f"v_cmpx_eq_u32 vcc, -1, {vr(ck)}")
        A("s_cbranch_execz L_bdone")
        for _ in range(DB - 1):
            bset()
            for _ in range(GB): A("s_nop 7")
    if o2:
        hh_ = vT + 12; s1 = vT + 8
        A("L_bpoll:")
        bset()
        A("s_add_u32 s35, s35, 1"); A("s_cselect_b32 s47, -1, -2")
        A("s_mov_b64 exec, -1")
        A.c("h = x + sum of the 16 partials (matrix core does the unpack and the adds); discarded while a partial is missing")
        for i in range(4):
            A(f"s_waitcnt vmcnt({3-i})")
            A(f"v_mfma_f32_16x16x32_bf16 {vr(hh_,4)}, {vr(vDl,4)}, {vr(bl+4*i,4)}, {vr(vXr if i == 0 else hh_,4)}")
            if i == 0:
                A(f"v_max3_u32 {vr(ck)}, {vr(bl)}, {vr(bl+1)}, {vr(bl+2)}"); A(f"v_max_u32 {vr(ck)}, {vr(ck)}, {vr(bl+3)}")
            else:
                A(f"v_max3_u32 {vr(ck)}, {vr(ck)}, {vr(bl+4*i)}, {vr(bl+4*i+1)}"); A(f"v_max3_u32 {vr(ck)}, {vr(ck)}, {vr(bl+4*i+2)}, {vr(bl+4*i+3)}")
        A(f"v_cmpx_lt_u32 vcc, s47, {vr(ck)}")
        A("s_cbranch_execnz L_bpoll")
        A("s_mov_b64 exec, -1")
        stamp(10)
        A(f"v_mov_b32 {vr(vT)}, {L_HS}")
    else:
        A("L_bpoll:")
        if PB: A(f"s_sleep {PB}")
        bset()
        A("s_add_u32 s35, s35, 1")
        A(f"s_waitcnt vmcnt({4*(DB-1)})")
        bchk()
        A("s_cbranch_scc1 L_bdone")
        A(f"v_cmpx_eq_u32 vcc, -1, {vr(ck)}")
        A("s_cbranch_execnz L_bpoll")
        A("L_bdone:")
        A("s_mov_b64 exec, -1")
        stamp(10)
        A.c("h = x + sum of the 16 partials (matrix core does the unpack and the adds)")
        hh_ = vXr; s1 = vT + 8
        A(f"v_mov_b32 {vr(vT)}, {L_HS}")
        for i in range(4): A(f"v_mfma_f32_16x16x32_bf16 {vr(hh_,4)}, {vr(vDl,4)}, {vr(bl+4*i,4)}, {vr(hh_,4)}")
    for k in (0, 2): A(f"v_pk_fma_f32 {vr(vT+4+k,2)}, {vr(hh_+k,2)}, {vr(vKs,2)}, {vr(vKs,2)} op_sel:[0,0,1] op_sel_hi:[1,0,1]")
    A(f"ds_write_b128 {vr(vHw)}, {vr(hh_,4)}")
    A(f"v_pk_mul_f32 {vr(s1,2)}, {vr(hh_,2)}, {vr(vT+4,2)}")
    A(f"v_pk_fma_f32 {vr(s1,2)}, {vr(hh_+2,2)}, {vr(vT+6,2)}, {vr(s1,2)}")
    A(f"v_add_f32 {vr(s1)}, {vr(s1)}, {vr(s1+1)}")
    for sh in (8, 4, 2, 1):
        A(f"v_add_f32_dpp {vr(s1)}, {vr(s1)}, {vr(s1)} row_ror:{sh} row_mask:0xf bank_mask:0xf")
    A(f"v_add_f32_dpp {vr(s1)}, {vr(s1)}, {vr(s1)} row_bcast:15 row_mask:0xa bank_mask:0xf")
    A("s_mov_b64 exec, s[40:41]")
    A(f"ds_write_b32 {vr(vHsw)}, {vr(s1)}")
    A("s_mov_b64 exec, -1")
    A("s_waitcnt lgkmcnt(0)")
    A("s_barrier")
    A.c("LayerNorm(LayerNorm(h)) = (h - mu) * rsqrt(var*(1+eps) + eps^2), then the token MLP")
    h8 = vT + 4; hv = vT + 1
    A(f"ds_read_b128 {vr(h8,4)}, {vr(vT)}")
    A(f"ds_read_b128 {vr(h8+4,4)}, {vr(vT)} offset:16")
    A(f"ds_read_b32 {vr(hv)}, {vr(vHa)}")
    A(f"ds_read_b64 {vr(vHf,2)}, {vr(vHf)}")
    mu = vT + 2; rs = vT + 3
    A(f"v_mov_b32 {vr(vT+12)}, {f32(1e-10)}")
    A("s_waitcnt lgkmcnt(2)")
    A(f"v_pk_add_f32 {vr(h8,2)}, {vr(h8,2)}, {vr(h8+2,2)}")
    A(f"v_pk_add_f32 {vr(h8+4,2)}, {vr(h8+4,2)}, {vr(h8+6,2)}")
    A(f"v_pk_add_f32 {vr(mu,2)}, {vr(h8,2)}, {vr(h8+4,2)}")
    A(f"v_fma_f32 {vr(rs)}, -{vr(mu)}, {vr(mu)}, {vr(rs)}")
    A(f"v_fma_f32 {vr(rs)}, |{vr(rs)}|, s36, {vr(vT+12)}")
    A(f"v_rsq_f32 {vr(rs)}, {vr(rs)}")
    A("s_waitcnt lgkmcnt(1) vmcnt(0)")
    A(f"v_sub_f32 {vr(hv)}, {vr(hv)}, {vr(mu)}")
    A(f"v_mul_f32 {vr(hv)}, {vr(hv)}, {vr(rs)}")
    A(f"v_cvt_pk_bf16_f32 {vr(hv)}, {vr(hv)}, {vr(hv)}")
    A(f"v_and_b32 {vr(hv)}, s38, {vr(hv)}")
    X_ = vT + 4; Y = vT + 5; t1 = vT + 6; t2 = vT + 7; Am = vT + 8
    A(f"v_fma_f32 {vr(X_)}, {vr(hv)}, {vr(vK1)}, {vr(vK1+1)}"); A(f"v_mul_f32 {vr(X_)}, {vr(X_)}, {vr(hv)}")
    A(f"v_fma_f32 {vr(Y)}, {vr(X_)}, {vr(vK1)}, {vr(vK1+2)}")
    A(f"v_cvt_pk_bf16_f32 {vr(Am)}, {vr(X_)}, {vr(X_)}")
    A(f"v_mul_f32 {vr(Y)}, {vr(Y)}, {vr(hv)}")
    A(f"v_and_b32 {vr(t1)}, s38, {vr(Am)}")
    A(f"v_cvt_pk_bf16_f32 {vr(Am+2)}, {vr(Y)}, {vr(Y)}")
    A(f"v_sub_f32 {vr(X_)}, {vr(X_)}, {vr(t1)}")
    A(f"v_and_b32 {vr(t2)}, s38, {vr(Am+2)}")
    A(f"v_cvt_pk_bf16_f32 {vr(Am+1)}, {vr(X_)}, {vr(X_)}")
    A(f"v_sub_f32 {vr(Y)}, {vr(Y)}, {vr(t2)}")
    A(f"v_or_b32 {vr(Am+1)}, {vr(Am+1)}, {vr(vK1+3)}")
    A(f"v_cvt_pk_bf16_f32 {vr(Am+3)}, {vr(Y)}, {vr(Y)}")
    A(f"v_or_b32 {vr(Am+3)}, {vr(Am+3)}, {vr(vK1+4)}")
    A(f"v_cmp_nge_f32 vcc, s3, |{vr(hv)}|")
    stamp(11)
    Db = [vX, vX + 16, vX + 32]; acc = vT + 12; Dd = vRaw; Nn = vRaw + 8
    def mm(tile):
        A(f"v_mfma_f32_32x32x16_bf16 {vr(Db[tile%3],16)}, {vr(Am,4)}, {vr(vC+4*tile,4)}, 0")
    mm(0)
    A("s_waitcnt lgkmcnt(0)")
    A(f"v_add_f32 {vr(vHf)}, {vr(vHf)}, {vr(vB2)}"); A(f"v_add_f32 {vr(vHf+1)}, {vr(vHf+1)}, {vr(vB2)}")
    A(f"v_lshlrev_b32 {vr(vT)}, 3, v1"); A(f"v_add_u32 {vr(vT)}, {L_Y}, {vr(vT)}")
    if wb:
        A("s_cmp_eq_u32 s30, 0"); A("s_cselect_b32 s33, s32, 0"); A(f"s_cmp_ge_u32 s33, {32 - wb}"); A("s_cbranch_scc0 L_nowb"); A("buffer_wbl2 sc1"); A("L_nowb:")
    if wbt >= 0:
        A("s_cmp_eq_u32 s30, 0"); A("s_cselect_b32 s33, s32, 0"); A("s_cmp_eq_u32 s33, 31")
        def ool_wb():
            A("L_wb:"); A("buffer_wbl2 sc1"); A("s_branch L_wbd")
        OOL.insert(0, ool_wb)
    A("s_cbranch_vccnz L_fb")
    A("L_mlp:")
    A.c("sum_f n_f / (1 + e_f) kept as one fraction N / D")
    if o3:
        def chain(k, D, Np, first):
            if first: return [f"v_pk_add_f32 {vr(Dd+k,2)}, {vr(D+k,2)}, 1.0 op_sel_hi:[1,0]"]
            return [f"v_pk_fma_f32 {vr(D+8+k,2)}, {vr(D+8+k,2)}, {vr(Dd+k,2)}, {vr(Np+k,2)}",
                    f"v_pk_fma_f32 {vr(Dd+k,2)}, {vr(Dd+k,2)}, {vr(D+k,2)}, {vr(Dd+k,2)}",
                    f"v_pk_fma_f32 {vr(Nn+k,2)}, {vr(Np+k,2)}, {vr(D+k,2)}, {vr(D+8+k,2)}"]
        for tile in range(14):
            D = Db[tile % 3]; P = Db[(tile - 1) % 3]
            if tile == wbt: A("s_cbranch_scc1 L_wb"); A("L_wbd:")
            if tile + 1 < 14: mm(tile + 1)
            odd = tile & 1
            if odd:
                if tile == 1: A(f"v_mov_b32 {vr(Nn+6)}, {vr(P+14)}"); A(f"v_mov_b32 {vr(Nn+7)}, {vr(D+14)}")
                else: A(f"v_mov_b32 {vr(P+15)}, {vr(D+14)}")
            for i in range(6): A(f"v_exp_f32 {vr(D+i)}, {vr(D+i)}")
            A(f"v_exp_f32 {vr(P+7 if odd else D+6)}, {vr(D+6)}")
            ch = [chain(k, D, Db[0] + 8 if tile == 1 else Nn, tile == 0) for k in (0, 2, 4)]
            if odd: ch.append(chain(6, P, Nn, tile == 1))
            for st in range(3):
                for c_ in ch:
                    if len(c_) == 3: A(c_[st])
                    elif st == (0 if tile == 0 else 1): A(c_[0])
        for i in (6, 7, 0, 1, 2, 3, 4, 5): A(f"v_rcp_f32 {vr(Dd+i)}, {vr(Dd+i)}")
        A(f"v_mul_f32 {vr(acc+6)}, {vr(Nn+6)}, {vr(Dd+6)}"); A(f"v_fmac_f32 {vr(acc+6)}, {vr(Nn+7)}, {vr(Dd+7)}")
        for k in (0, 2, 4): A(f"v_pk_mul_f32 {vr(acc+k,2)}, {vr(Nn+k,2)}, {vr(Dd+k,2)}")
    else:
        for tile in range(14):
            D = Db[tile % 3]
            if tile + 1 < 14: mm(tile + 1)
            for i in range(7): A(f"v_exp_f32 {vr(D+i)}, {vr(D+i)}")
            if tile == 0:
                for k in range(0, 8, 2): A(f"v_pk_add_f32 {vr(Dd+k,2)}, {vr(D+k,2)}, 1.0 op_sel_hi:[1,0]")
                continue
            Np = Db[0] + 8 if tile == 1 else Nn
            for k in range(0, 8, 2): A(f"v_pk_fma_f32 {vr(D+8+k,2)}, {vr(D+8+k,2)}, {vr(Dd+k,2)}, {vr(Np+k,2)}")
            for k in range(0, 8, 2): A(f"v_pk_fma_f32 {vr(Dd+k,2)}, {vr(Dd+k,2)}, {vr(D+k,2)}, {vr(Dd+k,2)}")
            for k in range(0, 8, 2): A(f"v_pk_fma_f32 {vr(Nn+k,2)}, {vr(Np+k,2)}, {vr(D+k,2)}, {vr(D+8+k,2)}")
        for i in range(7): A(f"v_rcp_f32 {vr(Dd+i)}, {vr(Dd+i)}")
        for k in range(0, 8, 2): A(f"v_pk_mul_f32 {vr(acc+k,2)}, {vr(Nn+k,2)}, {vr(Dd+k,2)}")
    A("L_fbd:")
    A("s_cmp_eq_u32 s30, 1")
    def ool_fb():
        A("L_fb:")
        A.c("direct evaluation (large activations or weights)")
        hh = vRaw; fa = vRaw + 8; w_ = vRaw + 9; b_ = vRaw + 10; u_ = vRaw + 11; x_ = vRaw + 12; p_ = vRaw + 13; al = vRaw + 14
        A(f"v_lshrrev_b32 {vr(fa)}, 5, v0"); A(f"v_mul_u32_u24 {vr(fa)}, 28, {vr(fa)}")
        A("s_mul_i32 s33, s32, 56"); A(f"s_add_u32 s33, s33, {L_H}"); A(f"v_add_u32 {vr(fa)}, s33, {vr(fa)}")
        for i in range(7): A(f"ds_read_b32 {vr(hh+i)}, {vr(fa)} offset:{4*i}")
        A(f"v_and_b32 {vr(fa)}, 31, v0"); A(f"v_lshlrev_b32 {vr(fa)}, 1, {vr(fa)}")
        A("s_mul_i32 s33, s30, 896"); A(f"v_add_u32 {vr(fa)}, s33, {vr(fa)}")
        A(f"s_mov_b32 s33, {f32(BETA)}"); A(f"v_mov_b32 {vr(al)}, {f32(ALPHA)}")
        for i in range(8): A(f"v_mov_b32 {vr(acc+i)}, 0")
        A("s_waitcnt lgkmcnt(0)")
        for i in range(7):
            A(f"v_sub_f32 {vr(hh+i)}, {vr(hh+i)}, {vr(mu)}"); A(f"v_mul_f32 {vr(hh+i)}, {vr(hh+i)}, {vr(rs)}")
            A(f"v_cvt_pk_bf16_f32 {vr(hh+i)}, {vr(hh+i)}, {vr(hh+i)}"); A(f"v_and_b32 {vr(hh+i)}, s38, {vr(hh+i)}")
        A("s_mov_b32 s34, 0")
        A("L_fbl:")
        A(f"global_load_ushort {vr(w_)}, {vr(fa)}, s[16:17]"); A(f"global_load_ushort {vr(b_)}, {vr(fa)}, s[18:19]"); A(f"global_load_ushort {vr(u_)}, {vr(fa)}, s[20:21]")
        A(f"v_add_u32 {vr(fa)}, 64, {vr(fa)}")
        A("s_waitcnt vmcnt(0)")
        for r_ in (w_, b_, u_): A(f"v_lshlrev_b32 {vr(r_)}, 16, {vr(r_)}")
        for i in range(7):
            A(f"v_fma_f32 {vr(x_)}, {vr(w_)}, {vr(hh+i)}, {vr(b_)}")
            A(f"v_mul_f32 {vr(p_)}, {vr(x_)}, {vr(x_)}"); A(f"v_fma_f32 {vr(p_)}, {vr(p_)}, s33, {vr(al)}"); A(f"v_mul_f32 {vr(p_)}, {vr(p_)}, {vr(x_)}")
            A(f"v_exp_f32 {vr(p_)}, {vr(p_)}"); A(f"v_add_f32 {vr(p_)}, 1.0, {vr(p_)}"); A(f"v_rcp_f32 {vr(p_)}, {vr(p_)}")
            A(f"v_mul_f32 {vr(x_)}, {vr(x_)}, {vr(p_)}"); A(f"v_fmac_f32 {vr(acc+i)}, {vr(x_)}, {vr(u_)}")
        A("s_add_u32 s34, s34, 1"); A("s_cmp_lt_u32 s34, 14"); A("s_cbranch_scc1 L_fbl")
        A("s_branch L_fbd")
    OOL.append(ool_fb)
    stamp(12)
    for k in range(4): A(f"v_add_f32_dpp {vr(acc+2*k)}, {vr(acc+2*k)}, {vr(acc+2*k)} row_ror:8 row_mask:0xf bank_mask:0x3")
    for k in range(3): A(f"v_add_f32_dpp {vr(acc+2*k)}, {vr(acc+2*k+1)}, {vr(acc+2*k+1)} row_ror:8 row_mask:0xf bank_mask:0xc")
    for k in range(2): A(f"v_add_f32_dpp {vr(acc+4*k)}, {vr(acc+4*k)}, {vr(acc+4*k)} row_shl:4 row_mask:0xf bank_mask:0x5")
    for k in range(2): A(f"v_add_f32_dpp {vr(acc+4*k)}, {vr(acc+4*k+2)}, {vr(acc+4*k+2)} row_shr:4 row_mask:0xf bank_mask:0xa")
    A(f"v_permlane16_swap_b32 {vr(acc)}, {vr(acc+4)}")
    A(f"v_add_f32 {vr(acc)}, {vr(acc)}, {vr(acc+4)}")
    A(f"v_add_f32_dpp {vr(acc)}, {vr(acc)}, {vr(acc)} quad_perm:[1,0,3,2] row_mask:0xf bank_mask:0xf")
    A(f"v_add_f32_dpp {vr(acc)}, {vr(acc)}, {vr(acc)} quad_perm:[2,3,0,1] row_mask:0xf bank_mask:0xf")
    A(f"ds_write_b32 {vr(vYa)}, {vr(acc)}")
    A("s_mov_b64 exec, 0x7f")
    A("s_waitcnt lgkmcnt(0)")
    A("s_barrier")
    A("s_cbranch_scc0 L_fin")
    A(f"ds_read2_b64 {vr(vT+4,4)}, {vr(vT)} offset0:0 offset1:8")
    A(f"ds_read2_b64 {vr(vT+8,4)}, {vr(vT)} offset0:16 offset1:24")
    A("s_waitcnt lgkmcnt(1)")
    A(f"v_pk_add_f32 {vr(vHf,2)}, {vr(vHf,2)}, {vr(vT+4,2)}"); A(f"v_pk_add_f32 {vr(vHf,2)}, {vr(vHf,2)}, {vr(vT+6,2)}")
    A("s_waitcnt lgkmcnt(0)")
    A(f"v_pk_add_f32 {vr(vHf,2)}, {vr(vHf,2)}, {vr(vT+8,2)}"); A(f"v_pk_add_f32 {vr(vHf,2)}, {vr(vHf,2)}, {vr(vT+10,2)}")
    A(f"v_cvt_pk_bf16_f32 {vr(vT+2)}, {vr(vHf)}, {vr(vHf+1)}")
    A(f"global_store_dword {vr(vOut)}, {vr(vT+2)}, s[24:25] {outpol}")
    A("L_fin:")
    stamp(13)
    if amp:
        A(f"s_cmp_eq_u32 s30, {amp[0]}"); A("s_cbranch_scc0 L_end")
        A("s_waitcnt lgkmcnt(0)")
        A(f"s_sub_u32 s33, s{64+2*amp[1]}, s{64+2*amp[2]}")
        if amp[3] < 0: A("s_sub_u32 s33, 3000, s33")
        A("s_min_u32 s33, s33, 5000"); A("s_lshl_b32 s33, s33, 3"); A("s_add_u32 s33, s33, 4000")
        A("L_amp:")
        A("s_memrealtime s[34:35]"); A("s_waitcnt lgkmcnt(0)"); A("s_sub_u32 s34, s34, s64")
        A("s_cmp_lt_u32 s34, s33"); A("s_cbranch_scc1 L_amp")
    if cnt:
        for k in range(3):
            A(f"s_cmp_eq_u32 s{90+k}, 0"); A(f"s_cbranch_scc1 L_c{k}"); A(f"s_atomic_add s{90+k}, s[26:27], {128+4*k}"); A("s_waitcnt lgkmcnt(0)"); A(f"L_c{k}:")
    if gamp:
        A(f"s_cmp_eq_u32 s30, {gamp[3] if len(gamp) > 3 else 1}"); A("s_cbranch_scc0 L_end")
        A("s_waitcnt lgkmcnt(0)")
        A(f"s_mov_b32 s36, s{64+2*gamp[0]}")
        A(f"s_not_b32 s37, s{64+2*gamp[1]}" if gamp[2] == "min" else f"s_mov_b32 s37, s{64+2*gamp[1]}")
        A("s_atomic_umax s36, s[26:27], 192"); A("s_atomic_umax s37, s[26:27], 196"); A("s_waitcnt lgkmcnt(0)")
        A("s_cmp_eq_u32 s2, 0"); A("s_cbranch_scc0 L_end")
        A("L_g1:")
        A("s_memrealtime s[34:35]"); A("s_waitcnt lgkmcnt(0)"); A("s_sub_u32 s34, s34, s64")
        A("s_cmp_lt_u32 s34, 3800"); A("s_cbranch_scc1 L_g1")
        A("s_load_dwordx2 s[36:37], s[26:27], 192 glc"); A("s_waitcnt lgkmcnt(0)")
        if gamp[2] == "min": A("s_not_b32 s37, s37")
        A("s_sub_u32 s33, s36, s37"); A("s_min_u32 s33, s33, 2000"); A(f"s_lshl_b32 s33, s33, {gamp[4] if len(gamp) > 4 else 3}"); A("s_add_u32 s33, s33, 4000")
        A("L_g2:")
        A("s_memrealtime s[34:35]"); A("s_waitcnt lgkmcnt(0)"); A("s_sub_u32 s34, s34, s64")
        A("s_cmp_lt_u32 s34, s33"); A("s_cbranch_scc1 L_g2")
    if rnd:
        A("s_cmp_eq_u32 s30, 0"); A("s_cselect_b32 s33, s2, 1"); A("s_cmp_eq_u32 s33, 0"); A("s_cbranch_scc0 L_end")
        A("s_memrealtime s[64:65]"); A("s_waitcnt lgkmcnt(0)")
        A("s_lshr_b32 s33, s64, 2"); A("s_mul_i32 s33, s33, 0x9e3779b1"); A("s_lshr_b32 s34, s33, 15"); A("s_xor_b32 s33, s33, s34"); A("s_mul_i32 s33, s33, 0x85ebca6b")
        A("s_lshr_b32 s33, s33, 19")
        A("L_rnd:")
        A("s_memrealtime s[34:35]"); A("s_waitcnt lgkmcnt(0)"); A("s_sub_u32 s34, s34, s64")
        A("s_cmp_lt_u32 s34, s33"); A("s_cbranch_scc1 L_rnd")
    dump_stamps(15)
    A("L_end:")
    A("s_endpgm")
    for f in OOL: f()
    A(".fill 1024, 4, 0xbf810000")

    body, nn = fix_hazards(A.L)
    if a8:
        import subprocess, tempfile, os
        i0 = body.index("L_tail:"); i1 = body.index("L_end:")
        probe = ['.amdgcn_target "amdgcn-amd-amdhsa--gfx950"', ".text"]
        for i, l in enumerate(body):
            if i0 <= i <= i1: probe.append(f"P_{i}:")
            probe.append(l)
        d = tempfile.mkdtemp(); open(d + "/p.s", "w").write("\n".join(probe) + "\n")
        subprocess.run(["clang", "-x", "assembler", "-target", "amdgcn-amd-amdhsa", "-mcpu=gfx950", "-c", d + "/p.s", "-o", d + "/p.o"], check=True)
        sym = subprocess.run(["llvm-objdump", "-t", d + "/p.o"], capture_output=True, text=True).stdout
        ad = {int(l.split()[-1][2:]): int(l.split()[0], 16) for l in sym.splitlines() if l.split() and l.split()[-1].startswith("P_")}
        sizes = [0] * len(body)
        for i in range(i0, i1): sizes[i] = ad[i + 1] - ad[i]
        st = body.index(a8[0] + ":")
        body, n8 = align8(body, a8[0], a8[1], sizes, ad[st] % 8)
    head = [l.rstrip("\n") for l in open("header.txt")]
    head.append(f"; @launch grid=(256,1,1) block=(512,1,1) lds={L_END}")
    head += DOC
    head += ['.amdgcn_target "amdgcn-amd-amdhsa--gfx950"', ".text"] + ([".p2align 12"] if al else []) + ([f".fill {pad // 4}, 4, 0xbf810000"] if pad else []) + [f".globl {NAME}", ".p2align 8", f".type {NAME},@function"]
    tail = ['.section .rodata,"a"'] + ([f".fill {rpad // 4}, 4, 0"] if rpad else []) + [".p2align 6", f".amdhsa_kernel {NAME}",
            "  .amdhsa_next_free_vgpr 256", "  .amdhsa_next_free_sgpr 96", "  .amdhsa_accum_offset 256",
            "  .amdhsa_group_segment_fixed_size 0", "  .amdhsa_kernarg_size 104", "  .amdhsa_user_sgpr_count 2",
            "  .amdhsa_user_sgpr_kernarg_segment_ptr 1", "  .amdhsa_system_sgpr_workgroup_id_x 1",
            "  .amdhsa_float_denorm_mode_32 3", ".end_amdhsa_kernel"]
    return "\n".join(head + body + tail) + "\n"

if __name__ == "__main__":
    kw = eval("dict(" + (sys.argv[2] if len(sys.argv) > 2 else "") + ")")
    open(sys.argv[1], "w").write(gen(**kw))
```

```python
import sys, struct, math
from asmlib import *

NAME = "sequential_preLN__sliding_block_cached__mixer_token_mlp__decode_kernel"
def f32(x): return "0x%08x" % struct.unpack("<I", struct.pack("<f", x))[0]

L_K = 0; L_WQ = 131072; L_Q = 145408; L_STAT = 146432; L_OP = 146688; L_PP = 154880; L_H = 158976; L_HS = 161024; L_Y = 161088
L_END = 161344
L_X = L_OP
W_Q = 0
W_L = 0xC0000
W_O = 0x40000
W_B = 0x80000
W_ALT = 0x100000
W_STAMP = 0x200000
SPIN = 0x20000
STAMP_VIEW = [("S", slice(4, 8), [0, 8, 6, 7, 1, 2, 3, 4, 5]), ("T0", 0, [0, 1, 3, 4, 14]), ("T3L", 3, [0, 1, 4], slice(224, 256)),
              ("T1", 1, [0, 4, 2, 5, 6, 7, 8, 9, 10, 11, 12, 13]), ("Tall", slice(0, 4), [5, 6, 7, 8, 9, 10, 11, 12, 13])]
ALPHA = -2.0 * math.sqrt(2.0 / math.pi) * math.log2(math.e)
BETA = ALPHA * 0.044715

DOC = """
; ---------------------------------------------------------------------------------------------------------------------
; One launch, 256 workgroups (one per CU), 8 waves each.  g = workgroup id, kvh = g & 7, r = g >> 3, b = r >> 2, s = r & 3.
;   waves 4-7 (stream): K (LDS-DMA) and V (registers) for 256 of the last 1024 keys of (b, kvh); QK^T, true-max softmax
;                       over those keys, P.V with a delta-structured A operand so V is used as loaded.
;   waves 0-3 (tail):   q projection tile, MLP operand preparation, then out projection, LayerNorms and the token MLP.
; Hand-offs between workgroups go through d_ws.  Every slot is set to 0xffffffff in this launch before anyone looks at
; it (ordered through counters in the zeroed d_debug and through the q hand-off itself); data never takes that value.
;   q    : 64 columns x 112 rows per workgroup, LN(x) applied after the product: rstd*(x.W - mean*colsum(W))
;   o,lse: per split, normalised by the split's own sum; combined with softmax(lse) after the out-projection product
;   rows : 16 partial rows per batch, summed by the workgroups that run the MLP for that batch
; q, o and lse stay inside one group (same kvh).  They use plain stores only when every member has checked that it sits
; on the XCD whose L2 holds the cleared slots; otherwise the group switches to write-through stores in a second copy.
; LN(LN(h)) = (h - mean) * rsqrt(var*(1+eps) + eps^2) exactly.  gelu_tanh(u) = u / (1 + 2^z), z = a*u + b*u^3, which is
; a cubic in hn evaluated on the matrix core with hi/lo bf16 operands; sum_f n_f/(1+e_f) is carried as one fraction.
; A bound computed from w1, b1, w2 sends a wave to the plain per-element evaluation when that form could overflow.
; ---------------------------------------------------------------------------------------------------------------------
""".strip("\n").split("\n")

def gen(W=9, QPOS=1, QD=3, FT=-1, stamps=False, force_slow=False, pol="nt", vpol=None, qpol="nt", opol="nt", opol2="nt", spol="", skip="",
        pref=True, opos="mid", qx=16, force_fb=False, touch=False, amp=None, DA=1, DB=1, rotm=1, PB=0, NL=1, EP=0, inst=0, spf=2, WE=0, WEN=64, WE0=8, WEM=0x55, NLD=4, LD0=0, qpace=0, prio=3, QT=0, GA=0, GB=0, cpos="mid", N1=2, c1=True, NE=0, o1=True, o2=True, o3=True, ap=1, NB=0, pos=None, rot='', wb=0, wbs=0, ks=0, b0=1, b0n=2, rnd=0, m1=True, m2=True, m4=True, m5=0, m6=0, m7=0, m8=0, lk=1, cl=0, xl=0, pa=0, ve=(0, 2, 1, 4, 3), ke=None, vk=0, vt=-1, cnt=False, rpad=0, bph=0, a8=('L_tail', 'L_end'), wbt=5, wbm=0, tl_=0, tlw=2, gamp=None, wq1=0, wbr=31, lw=True, pad=0, al=1, tal=0, warm=0, outpol='', hack="", bx="ab", PB0=0):
    A = Asm()
    c1_ = c1
    OOL = []
    def stamp(i):
        if stamps or (amp and i in (amp[1], amp[2], 0)) or (gamp and i in (gamp[0], gamp[1], 0)): A(f"s_memrealtime s[{64+2*i}:{65+2*i}]")
    def dump_stamps(nst):
        if not stamps: return
        A("s_waitcnt lgkmcnt(0) vmcnt(0)")
        A("s_lshl_b32 s94, s2, 3"); A("s_add_u32 s94, s94, s30"); A("s_lshl_b32 s94, s94, 6"); A(f"s_add_u32 s94, s94, {W_STAMP}")
        A("s_mov_b64 exec, 1")
        A("v_mov_b32 v4, s94")
        for i in range(nst):
            A(f"v_mov_b32 v5, s{64+2*i}")
            A(f"global_store_dword v4, v5, s[28:29] offset:{4*i}")
        A("s_getreg_b32 s94, hwreg(HW_REG_XCC_ID, 0, 4)"); A("v_mov_b32 v5, s94")
        A("global_store_dword v4, v5, s[28:29] offset:60")
        A("s_waitcnt vmcnt(0)")

    def brow(dst, b): A(f"s_lshl_b32 {dst}, {b}, 15")
    BH = 16384
    A(f"{NAME}:")
    stamp(0)
    A("s_load_dwordx16 s[4:19], s[0:1], 0" if ks != 2 else "s_load_dwordx8 s[4:11], s[0:1], 0")
    if not ks or stamps:
        A("s_load_dwordx8 s[20:27], s[0:1], 64")
        A("s_load_dwordx2 s[28:29], s[0:1], 96")
    A("v_lshrrev_b32 v1, 6, v0")
    A("s_lshr_b32 s32, s2, 3")
    A("v_readfirstlane_b32 s30, v1")
    A("s_cmp_ge_u32 s32, 32")
    A("s_cbranch_scc1 L_end")
    A("v_and_b32 v0, 63, v0")
    A("s_and_b32 s31, s2, 7")
    A("v_lshlrev_b32 v3, 4, v0")
    A("s_cmp_lt_u32 s30, 4")
    A("s_cbranch_scc1 L_T")

    A.c("================ stream waves")
    V = Alloc(4, 256)
    vK = V(8); vKb = V(); vVb = V(); vAd = V(2); vKA = V(4); vM = V(4); vT = V(8); vOPa = V(2); vQA = V(); vSTw = V(); vSTr = V()
    vS = V(16); vAcc = vK; vQ = V(32); vKF = V(32); vVv = V(128)
    vA = vQ
    assert vKF == vQ + 32
    M = dict(j0=324, j1=1, r1=12, r2=256, r3=32, s0=24, s1=130, t0=2, t1=4) if pos is None else dict(pos)
    M = {k: v << 10 for k, v in M.items()}
    span = {0}
    for k in ("r1", "r2", "r3", "j0", "j1", "t0", "t1", "s0", "s1"): span |= {x ^ M[k] for x in span}
    assert len(span) == 512
    SRC = dict(s0=("s2", 3), s1=("s2", 4), b0=("s2", 5), b1=("s2", 6), b2=("s2", 7), k0=("s2", 0), k1=("s2", 1), k2=("s2", 2), j0=("s30", 0), j1=("s30", 1))
    def gaddr(i, tl=0):
        x = 0
        for k in range(3):
            if (i >> k) & 1: x ^= M[f"r{k+1}"]
        for k in range(2):
            if (tl >> k) & 1: x ^= M[f"t{k}"]
        return x
    def X(i, tl): return ((8*(i & 1) + (i >> 1)) << 4) | gaddr(i, tl)
    A("s_lshr_b32 s34, s2, 5"); A("s_lshl3_add_u32 s34, s34, s31"); A("s_lshl2_add_u32 s34, s34, 3"); A("s_lshl_b32 s40, s34, 19")
    first = True
    for k, (reg, bit) in SRC.items():
        if M.get(k):
            A(f"s_bitcmp1_b32 {reg}, {bit}"); A(f"s_cselect_b32 {'s38' if first else 's35'}, {M[k]}, 0")
            if not first: A("s_xor_b32 s38, s38, s35")
            first = False
    A("s_sub_u32 s33, s30, 4")
    A("s_lshl_b32 s37, s33, 15")
    A(f"v_and_b32 {vr(vT)}, 32, v0"); A(f"v_lshlrev_b32 {vr(vT)}, 1, {vr(vT)}")
    A(f"v_xor_b32 {vr(vT)}, {vr(vT)}, v3")
    A(f"v_xor_b32 {vr(vKb)}, s38, {vr(vT)}")
    if prio == 2: A("s_setprio 3")
    A("s_brev_b32 s54, 16"); A("s_mov_b32 s55, 0x20000")
    A("s_mov_b32 m0, s37")
    A("s_waitcnt lgkmcnt(0)")
    A("s_mov_b64 s[52:53], s[6:7]")
    stamp(8)
    issued = [0]; kpre = {}; vpre = {}
    def throttle():
        if WE and WE0 <= issued[0] < WE0 + WEN:
            A(f"s_cbranch_vccz L_th{issued[0]}"); A(f"s_waitcnt vmcnt({abs(WE)-1})"); A(f"L_th{issued[0]}:")
        if issued[0] >= W: A(f"s_waitcnt vmcnt({W-1})")
        issued[0] += 1
    def kload(tl, i):
        ad = vKb
        if (tl, i) in kpre:
            ad = kpre[(tl, i)]; A(f"s_add_u32 m0, s37, {(tl << 13) | (i << 10)}")
        elif tl or i:
            ad = vAd + (issued[0] & 1)
            A(f"s_add_u32 m0, s37, {(tl << 13) | (i << 10)}"); A(f"v_xor_b32 {vr(ad)}, {X(i, tl)}, {vr(vKb)}")
        throttle()
        A(f"buffer_load_dwordx4 {vr(ad)}, s[52:55], s40 offen {pol} lds")
    kord = [sum(((n_ >> k) & 1) << ke[k] for k in range(5)) for n_ in range(32)] if ke else list(range(32))
    for i in range(8):
        if b0 and i == b0n: A("s_barrier")
        kload(kord[i] >> 3, kord[i] & 7)
    A("s_branch L_S2")

    LP = "L_b0" if b0 == 4 else "L_prepw"
    A("L_T:")
    A.c("================ tail waves")
    if ks == 2: A("s_load_dwordx8 s[12:19], s[0:1], 32")
    if ks and not stamps:
        A("s_load_dwordx8 s[20:27], s[0:1], 64")
        A("s_load_dwordx2 s[28:29], s[0:1], 96")
    V = Alloc(4, 256)
    vC = V(56); vW = V(32); vRaw = V(32); vX = V(56); tT = V(24)
    vXr = V(4); vDl = V(4); vQs = V(8); vG = V(4); vK1 = V(6); vHa = V(); vKs = V(2); vHf = V(2)
    vYa = V(); vLa = V(); vOa = V(); vPPa = V(); vBst = V(); vOst = V(); vLst = V(); vLse = V()
    vBa = V(); vHw = V(); vHsw = V(); vOut = V(); vB2 = V(); vQa = V(); vOPr = V(); vPPr = V(); vWa = V(2); vQw = V(); vWr = V()
    assert vRaw == vW + 32
    raw = vRaw if cpos == "early" else vX + 32
    def prep_loads():
        t = tT + 14
        A.c("MLP weights, residual row piece, b2")
        if c1_:
            A("s_mul_i32 s33, s30, 896")
            A(f"v_mul_u32_u24 {vr(t)}, 12, v0"); A(f"v_add_u32 {vr(t)}, {508 - 384}, {vr(t)}")
            A("v_cmp_lt_u32 vcc, 31, v0"); A(f"v_cndmask_b32 {vr(t)}, v3, {vr(t)}, vcc"); A(f"v_add_u32 {vr(t)}, s33, {vr(t)}")
            for k, sp in enumerate((16, 18, 20)):
                A(f"global_load_dwordx4 {vr(raw+8*k,4)}, {vr(t)}, s[{sp}:{sp+1}] {spol}")
        else:
            A(f"v_and_b32 {vr(t)}, 31, v0")
            A("s_mul_i32 s33, s30, 896")
            A(f"v_lshlrev_b32 {vr(t+1)}, 4, {vr(t)}"); A(f"v_add_u32 {vr(t+1)}, s33, {vr(t+1)}")
            A(f"v_lshlrev_b32 {vr(t+2)}, 3, {vr(t)}"); A(f"v_add_u32 {vr(t+2)}, s33, {vr(t+2)}")
            A(f"v_lshlrev_b32 {vr(t+3)}, 2, {vr(t)}"); A(f"v_add_u32 {vr(t+3)}, s33, {vr(t+3)}")
            for k, sp in enumerate((16, 18, 20)):
                A(f"global_load_dwordx4 {vr(raw+8*k,4)}, {vr(t+1)}, s[{sp}:{sp+1}] {spol}")
                A(f"global_load_dwordx2 {vr(raw+8*k+4,2)}, {vr(t+2)}, s[{sp}:{sp+1}] offset:512 {spol}")
                A(f"global_load_dword {vr(raw+8*k+6)}, {vr(t+3)}, s[{sp}:{sp+1}] offset:768 {spol}")
        A(f"v_min_u32 {vr(t)}, 13, v1"); A(f"v_and_b32 {vr(t+1)}, 1, v2")
        A("s_mul_i32 s33, s31, 896"); A("s_mul_i32 s34, s30, 224"); A("s_add_u32 s33, s33, s34")
        A(f"v_lshlrev_b32 {vr(t)}, 4, {vr(t)}"); A(f"v_lshl_add_u32 {vr(t)}, {vr(t+1)}, 3, {vr(t)}"); A(f"v_add_u32 {vr(t)}, s33, {vr(t)}")
        A(f"global_load_dwordx2 {vr(vXr+2,2)}, {vr(t)}, s[4:5] {spol}")
        A(f"v_mov_b32 {vr(t+2)}, 0")
        A(f"global_load_ushort {vr(vB2)}, {vr(t+2)}, s[22:23] {spol}")
    A("v_and_b32 v1, 15, v0")
    A("v_lshrrev_b32 v2, 4, v0")
    A("s_lshl_b32 s63, s31, 2")
    A(f"v_mov_b32 {vr(vQw)}, 0")
    if cl: A(f"v_mov_b32 {vr(tT)}, 0"); A(f"v_mov_b32 {vr(tT+1)}, 0")
    if cnt: A("s_mov_b32 s90, 0"); A("s_mov_b32 s91, 0"); A("s_mov_b32 s92, 0")
    A("s_mov_b64 s[40:41], 0")
    if b0: A("s_mov_b32 s46, 0")
    if "T" in skip:
        A("s_waitcnt lgkmcnt(0)"); A("s_barrier"); A("s_barrier"); A("s_barrier")
        if NL: A("s_barrier")
        A("s_branch L_b3")
    A("s_cmp_eq_u32 s30, 0"); A("s_cbranch_scc1 L_T0")
    A("s_cmp_eq_u32 s30, 3"); A("s_cbranch_scc1 L_T3")
    if spf:
        A("s_cmp_eq_u32 s30, 1"); A("s_cbranch_scc1 L_T1")
    if pref:
        if not spf: A("s_cmp_eq_u32 s30, 2"); A("s_cbranch_scc0 " + LP)
        A.c("T2: pull the code into this XCD's L2")
        A("s_getpc_b64 s[34:35]")
        A("L_pc:")
        A(f"s_sub_u32 s34, s34, L_pc-{NAME}"); A("s_subb_u32 s35, s35, 0")
        A("s_mul_i32 s33, s32, 640")
        A(f"v_min_u32 {vr(tT)}, 9, v0"); A(f"v_lshlrev_b32 {vr(tT)}, 6, {vr(tT)}"); A(f"v_add_u32 {vr(tT)}, s33, {vr(tT)}")
        A(f"global_load_dword {vr(tT+2)}, {vr(tT)}, s[34:35]")
    A("s_branch " + LP)
    if spf:
        A("L_T1:")
        A.c("T1: pull 14 rows of the wq column block that r=28..31 read (and of the last block) into L2")
        A("s_mul_i32 s33, s32, 14*8192"); A("s_lshl_b32 s34, s31, 10"); A("s_add_u32 s33, s33, s34"); A("s_addk_i32 s33, 384")
        A(f"v_min_u32 {vr(tT)}, 13, v1"); A(f"v_lshlrev_b32 {vr(tT)}, 13, {vr(tT)}")
        A(f"v_and_b32 {vr(tT+1)}, 1, v2"); A(f"v_lshl_add_u32 {vr(tT)}, {vr(tT+1)}, 6, {vr(tT)}")
        A(f"v_lshrrev_b32 {vr(tT+1)}, 1, v2"); A(f"v_lshl_add_u32 {vr(tT)}, {vr(tT+1)}, 9, {vr(tT)}")
        A(f"v_add_u32 {vr(tT)}, s33, {vr(tT)}")
        A("s_cmp_eq_u32 s31, 7"); A("s_cselect_b32 exec_hi, -1, 0")
        if spf == 2: A("s_and_b32 exec_hi, exec_hi, 0xffff"); A("s_mov_b32 exec_lo, 0xffff")
        A("s_waitcnt lgkmcnt(0)")
        A(f"global_load_dword {vr(tT+2)}, {vr(tT)}, s[10:11]")
        A("s_mov_b64 exec, -1")
        A("s_branch " + LP)
    A("L_T3:")
    A.c(f"T3 of {NLD} workgroup(s) per group: clear a share of the group's q and lse slots, then count in")
    per = 4 // NLD
    A(f"s_sub_u32 s36, s32, {LD0}"); A(f"s_cmp_lt_u32 s36, {NLD}"); A("s_cbranch_scc0 " + LP)
    for i in range(4): A(f"v_mov_b32 {vr(tT+4+i)}, -1")
    A("s_getreg_b32 s34, hwreg(HW_REG_XCC_ID, 0, 4)")
    if per > 1: A(f"s_mul_i32 s34, s34, {0x1111 & ((1 << (4*per)) - 1)}"); A(f"s_mul_i32 s36, s36, {per}")
    A("s_lshl_b32 s33, s36, 2"); A("s_lshl_b32 s34, s34, s33"); A(f"s_bitset1_b32 s34, {16 + per.bit_length() - 1}")
    A("s_lshl2_add_u32 s33, s31, s36"); A("s_lshl_b32 s35, s33, 13"); A(f"v_add_u32 {vr(tT)}, s35, v3")
    A("s_lshl_b32 s33, s33, 6"); A(f"s_add_u32 s33, s33, {W_L}")
    A(f"v_add_u32 {vr(tT+2)}, s33, v3")
    A("s_waitcnt lgkmcnt(0)")
    for k in range(2*per):
        for i in range(4): A(f"global_store_dwordx4 {vr(tT)}, {vr(tT+4,4)}, s[28:29] offset:{1024*i}")
        if k < 2*per - 1: A(f"v_add_u32 {vr(tT)}, 4096, {vr(tT)}")
    A(f"s_mov_b64 exec, {(1 << (4*per)) - 1}")
    A(f"global_store_dwordx4 {vr(tT+2)}, {vr(tT+4,4)}, s[28:29]")
    A("s_mov_b64 exec, -1")
    if b0:
        A("s_mov_b32 s46, s34")
    else:
        A("s_waitcnt vmcnt(0)")
        A("s_atomic_add s34, s[26:27], s63")
        stamp(1)
    A("s_branch " + LP)
    A("L_T0:")
    A.c("T0: x into LDS, clear this workgroup's share of the hand-off slots (acknowledged before q is published)")
    A(f"v_lshrrev_b32 {vr(vQw)}, 3, v0"); A(f"v_lshlrev_b32 {vr(vQw)}, 13, {vr(vQw)}"); A(f"v_and_b32 {vr(tT)}, 0x70, v3"); A(f"v_or_b32 {vr(vQw)}, {vr(vQw)}, {vr(tT)}")
    A(f"s_xor_b32 s34, s32, {qx}"); A("s_lshr_b32 s35, s34, 2"); A("s_lshl3_add_u32 s50, s31, s35"); A("s_lshl_b32 s50, s50, 7")
    A("s_and_b32 s48, s34, 3"); A("s_mul_i32 s34, s48, 112*8192"); A("s_add_u32 s50, s50, s34")
    qstep = 0x10000
    if "8" in hack:
        A(f"v_lshlrev_b32 {vr(vQw)}, 13, v2"); A(f"v_lshl_add_u32 {vr(vQw)}, v1, 4, {vr(vQw)}")
        A("s_lshr_b32 s35, s32, 3"); A("s_lshl2_add_u32 s50, s31, s35"); A("s_lshl_b32 s50, s50, 8")
        A("s_and_b32 s34, s32, 7"); A("s_mul_i32 s34, s34, 56*8192"); A("s_add_u32 s50, s50, s34"); qstep = 0x8000
    if "C" in hack:
        A(f"v_mov_b32 {vr(vQw)}, v3"); A("s_mul_i32 s50, s2, 14336"); qstep = 1024
    A("s_movk_i32 s58, 7168"); A("s_mov_b32 s59, 0x20000")
    A("s_lshl_b32 s33, s31, 15"); A("s_lshl_b32 s34, s32, 10"); A("s_add_u32 s33, s33, s34"); A(f"s_add_u32 s33, s33, {W_O}")
    A(f"v_add_u32 {vr(tT)}, s33, v3")
    brow("s33", "s31"); A("s_min_u32 s34, s32, 27"); A("s_lshl_b32 s34, s34, 9"); A("s_add_u32 s33, s33, s34"); A(f"s_add_u32 s33, s33, {W_B}")
    A("s_cmp_ge_u32 s32, 14"); A(f"s_cselect_b32 s34, {BH - 7168}, 0"); A("s_add_u32 s40, s33, s34")
    A("s_getreg_b32 s34, hwreg(HW_REG_XCC_ID, 2, 1)")
    if bph: A("s_xor_b32 s34, s34, 1")
    A("s_lshl_b32 s34, s34, 13"); A("s_add_u32 s33, s40, s34")
    A(f"v_add_u32 {vr(tT+1)}, s33, v3")
    for i in range(4): A(f"v_mov_b32 {vr(vW+i)}, -1")
    A("s_waitcnt lgkmcnt(0)")
    A("s_mov_b64 s[56:57], s[4:5]")
    def xloads():
        A(f"s_mov_b32 m0, {L_X}"); A("s_movk_i32 s35, 4096")
        for t in range(4 if "x" not in hack else 0): A(f"buffer_load_dwordx4 v3, s[56:59], 0 offen offset:{1024*t} {spol} lds")
        A(f"s_mov_b32 m0, {L_X + 4096}")
        for t in range(3 if "x" not in hack else 0): A(f"buffer_load_dwordx4 v3, s[56:59], s35 offen offset:{1024*t} {spol} lds")
    if not xl: xloads()
    def clears():
        A(f"global_store_dwordx4 {vr(tT)}, {vr(vW,4)}, s[28:29]")
        A.c("r = 28..31 repeat the share of r = 27 with one lane")
        A("s_cmp_lt_u32 s32, 28"); A("s_cselect_b32 exec_lo, -1, 1"); A("s_mov_b32 exec_hi, 0")
        A(f"global_store_dwordx4 {vr(tT+1)}, {vr(vW,4)}, s[28:29] sc1")
        A("s_mov_b64 exec, -1")
    if not cl: clears()
    A("s_branch " + LP)
    if b0 == 4:
        A("L_b0:"); A("s_barrier"); A("s_branch L_prepw")

    A("L_S2:")
    A("v_and_b32 v1, 15, v0")
    A("v_lshrrev_b32 v2, 4, v0")
    A("s_mov_b64 s[56:57], s[8:9]"); A("s_mov_b32 s58, s54"); A("s_mov_b32 s59, 0x20000")
    A("s_mov_b32 s61, 0")
    for k in rot.split():
        reg, bit = SRC[k]
        A(f"s_bitcmp1_b32 {reg}, {bit}"); A("s_cselect_b32 s35, 256, 0"); A("s_xor_b32 s61, s61, s35")
    A(f"v_and_b32 {vr(vT)}, 1, v2"); A(f"v_lshlrev_b32 {vr(vT)}, 9, {vr(vT)}"); A(f"v_lshl_add_u32 {vr(vT)}, v1, 4, {vr(vT)}")
    A(f"v_lshrrev_b32 {vr(vT+1)}, 1, v2"); A(f"v_mul_u32_u24 {vr(vT+1)}, {M['r1']}, {vr(vT+1)}"); A(f"v_or_b32 {vr(vT)}, {vr(vT)}, {vr(vT+1)}")
    A("s_or_b32 s35, s38, s61")
    A(f"v_xor_b32 {vr(vVb)}, s35, {vr(vT)}")
    A(f"v_mov_b32 {vr(vT+3)}, v1")
    A(f"v_and_b32 {vr(vT)}, 3, v1"); A(f"v_lshrrev_b32 {vr(vT+1)}, 2, v1")
    A(f"v_lshl_add_u32 {vr(vT+2)}, {vr(vT)}, 2, {vr(vT+1)}")
    A(f"v_xor_b32 {vr(vT+3)}, {vr(vT+3)}, v2")
    A(f"v_lshlrev_b32 {vr(vT+2)}, 9, {vr(vT+2)}"); A(f"v_add_u32 {vr(vT+2)}, s37, {vr(vT+2)}")
    A(f"v_lshl_add_u32 {vr(vKA)}, {vr(vT+3)}, 4, {vr(vT+2)}")
    for t in range(1, 4): A(f"v_xor_b32 {vr(vKA+t)}, {64*t}, {vr(vKA)}")
    A(f"v_lshrrev_b32 {vr(vT)}, 3, v1")
    A(f"v_lshlrev_b32 {vr(vQA)}, 9, {vr(vT)}"); A(f"v_lshl_add_u32 {vr(vQA)}, v2, 4, {vr(vQA)}")
    A(f"v_add_u32 {vr(vQA)}, {L_Q}, {vr(vQA)}")
    A(f"v_lshlrev_b32 {vr(vSTr)}, 5, {vr(vT)}"); A(f"v_add_u32 {vr(vSTr)}, {L_STAT}, {vr(vSTr)}")
    A("s_lshl_b32 s35, s33, 2"); A(f"v_add_u32 {vr(vSTw)}, s35, {vr(vSTr)}")
    def delta(dst, val, t0):
        A(f"v_and_b32 {vr(t0)}, 16, v3")
        A(f"v_mov_b32 {vr(t0+1)}, {val}"); A(f"v_lshlrev_b32 {vr(t0+1)}, {vr(t0)}, {vr(t0+1)}")
        A(f"v_bfe_u32 {vr(t0)}, v1, 1, 2")
        for i in range(4):
            A(f"v_cmp_eq_u32 vcc, {i}, {vr(t0)}")
            A(f"v_cndmask_b32 {vr(dst+i)}, 0, {vr(t0+1)}, vcc")
    delta(vM, "0xffff", vT)
    A(f"v_and_b32 {vr(vT)}, 1, v2"); A(f"v_lshlrev_b32 {vr(vT)}, 4, {vr(vT)}")
    A(f"v_lshrrev_b32 {vr(vT+1)}, 1, v2"); A(f"v_lshl_add_u32 {vr(vT)}, {vr(vT+1)}, 10, {vr(vT)}")
    A(f"v_lshl_add_u32 {vr(vT)}, v1, 5, {vr(vT)}")
    A("s_lshl_b32 s35, s33, 11"); A(f"s_add_u32 s35, s35, {L_OP}")
    for dh in range(2):
        A(f"s_xor_b32 s38, s61, {dh << 8}"); A("s_lshl1_add_u32 s38, s38, s35")
        A(f"v_add_u32 {vr(vOPa+dh)}, s38, {vr(vT)}")
    if WE:
        A("s_getreg_b32 s35, hwreg(HW_REG_XCC_ID, 0, 3)"); A(f"s_bitcmp1_b32 {WEM}, s35"); A("s_cselect_b64 vcc, -1, 0")
    nv = [0]; b2done = [False]
    def bitperm(p): return [sum(((n_ >> k) & 1) << p[k] for k in range(len(p))) for n_ in range(1 << len(p))]
    vord = bitperm(ve) if ve else list(range(32))
    if vord[30] & 1 == 0: vord[29], vord[30] = vord[30], vord[29]
    last0 = max(k for k in range(32) if vord[k] & 1 == 0)
    seen_acc = set()
    def more(k):
        for _ in range(k):
            if nv[0] < 32:
                idx = vord[nv[0]]; tl, e = idx >> 3, idx & 7
                ad = vVb
                if idx in vpre: ad = vpre[idx]
                elif idx:
                    ad = vAd + (nv[0] & 1); A(f"v_xor_b32 {vr(ad)}, {gaddr(e & 6, tl) | ((e & 1) << 8)}, {vr(vVb)}")
                throttle()
                A(f"buffer_load_dwordx4 {vr(vVv+4*idx,4)}, {vr(ad)}, s[56:59], s40 offen {pol if vpol is None else vpol}")
                nv[0] += 1
                if nv[0] == 32 - EP:
                    assert b2done[0]
                    A("s_barrier")
    if pa:
        for n_, x in enumerate(kord[8:]):
            kpre[(x >> 3, x & 7)] = vQ + n_; A(f"v_xor_b32 {vr(vQ+n_)}, {X(x & 7, x >> 3)}, {vr(vKb)}")
        for n_ in range(1, pa):
            idx = vord[n_]; vpre[idx] = vQ + 24 + n_; A(f"v_xor_b32 {vr(vQ+24+n_)}, {gaddr(idx & 6, idx >> 3) | ((idx & 1) << 8)}, {vr(vVb)}")
    seq = []; placed = 0
    for n_, (tl, i) in enumerate((x >> 3, x & 7) for x in kord[8:]):
        while placed < vk and placed * 24 <= n_ * vk: seq.append(("v",)); placed += 1
        seq.append(("k", tl, i))
    lastk = len(seq)
    seq += [("v",)] * (32 - placed)
    pos = 0
    def adv(n):
        nonlocal pos
        for _ in range(n):
            it = seq[pos]; pos += 1
            if pos - 1 == vt:
                A.c("touch the V page ahead of its first use (value unused)")
                A("s_mov_b64 exec, 1"); throttle()
                A(f"buffer_load_dword {vr(vS)}, {vr(vVb)}, s[56:59], s40 offen {pol}"); A("s_mov_b64 exec, -1")
            if it[0] == "k": kload(it[1], it[2])
            else: more(1)
    adv(24 + QPOS)
    stamp(6)
    A("s_barrier")
    stamp(7)
    adv(W + QD)
    assert pos - lastk >= W
    stamp(1)
    if prio == 3: A("s_setprio 2")
    A("s_barrier")
    stamp(2)
    for t in range(8):
        A(f"ds_read_b128 {vr(vQ+4*t,4)}, {vr(vQA)} offset:{64*t}")
    for tl in range(4):
        for t in range(8):
            A(f"ds_read_b128 {vr(vKF+4*t,4)}, {vr(vKA+(t&3))} offset:{tl*8192 + (t>>2)*256}")
        for t in range(8):
            A(f"s_waitcnt lgkmcnt({7-t})")
            c = "0" if t == 0 else vr(vS+4*tl, 4)
            A(f"v_mfma_f32_16x16x32_bf16 {vr(vS+4*tl,4)}, {vr(vKF+4*t,4)}, {vr(vQ+4*t,4)}, {c}")
        more(1)
    SC = math.log2(math.e) / 16.0
    A(f"s_mov_b32 s35, {f32(SC)}")
    mx = vT; cp = vT + 1; ls = vT + 2
    A(f"v_max3_f32 {vr(mx)}, {vr(vS)}, {vr(vS+1)}, {vr(vS+2)}")
    for i in range(3, 15, 2):
        A(f"v_max3_f32 {vr(mx)}, {vr(mx)}, {vr(vS+i)}, {vr(vS+i+1)}")
    A(f"v_max_f32 {vr(mx)}, {vr(mx)}, {vr(vS+15)}")
    def xg(x, op):
        for sw in ("v_permlane32_swap_b32", "v_permlane16_swap_b32"):
            A(f"v_mov_b32 {vr(cp)}, {vr(x)}")
            A(f"{sw} {vr(x)}, {vr(cp)}")
            A(f"{op} {vr(x)}, {vr(x)}, {vr(cp)}")
    xg(mx, "v_max_f32")
    A(f"v_mul_f32 {vr(mx)}, s35, {vr(mx)}")
    for i in range(16):
        A(f"v_fma_f32 {vr(vS+i)}, {vr(vS+i)}, s35, -{vr(mx)}")
    for i in range(16):
        A(f"v_exp_f32 {vr(vS+i)}, {vr(vS+i)}")
    A(f"v_add_f32 {vr(ls)}, {vr(vS)}, {vr(vS+1)}")
    for i in range(2, 16):
        A(f"v_add_f32 {vr(ls)}, {vr(ls)}, {vr(vS+i)}")
    xg(ls, "v_add_f32")
    A(f"ds_write2_b32 {vr(vSTw)}, {vr(mx)}, {vr(ls)} offset0:0 offset1:4")
    more(1)
    A("s_waitcnt lgkmcnt(0)")
    A("s_barrier")
    b2done[0] = True
    stamp(3)
    def stats(m4, l4, M, Lr):
        A(f"v_max3_f32 {vr(M)}, {vr(m4)}, {vr(m4+1)}, {vr(m4+2)}"); A(f"v_max_f32 {vr(M)}, {vr(M)}, {vr(m4+3)}")
        for i in range(4): A(f"v_sub_f32 {vr(m4+i)}, {vr(m4+i)}, {vr(M)}")
        for i in range(4): A(f"v_exp_f32 {vr(m4+i)}, {vr(m4+i)}")
        A(f"v_mul_f32 {vr(Lr)}, {vr(m4)}, {vr(l4)}")
        for i in range(1, 4): A(f"v_fmac_f32 {vr(Lr)}, {vr(m4+i)}, {vr(l4+i)}")
    A(f"ds_read_b128 {vr(vAcc,4)}, {vr(vSTr)}")
    A(f"ds_read_b128 {vr(vAcc+4,4)}, {vr(vSTr)} offset:16")
    more(1)
    A("s_waitcnt lgkmcnt(0)")
    stats(vAcc, vAcc + 4, vT + 3, vT + 4)
    A(f"v_sub_f32 {vr(mx)}, {vr(mx)}, {vr(vT+3)}")
    A(f"v_exp_f32 {vr(mx)}, {vr(mx)}")
    A(f"v_rcp_f32 {vr(vT+4)}, {vr(vT+4)}")
    A(f"v_mul_f32 {vr(mx)}, {vr(mx)}, {vr(vT+4)}")
    for i in range(16):
        A(f"v_mul_f32 {vr(vS+i)}, {vr(vS+i)}, {vr(mx)}")
        A(f"v_cvt_pk_bf16_f32 {vr(vS+i)}, {vr(vS+i)}, {vr(vS+i)}")
        for k in range(4):
            A(f"v_and_b32 {vr(vA+4*i+k)}, {vr(vS+i)}, {vr(vM+k)}")
        if i % 8 == 7: more(1)
    stamp(4)
    done = 0
    def pv(k):
        idx = vord[k]
        i, dh = idx >> 1, idx & 1
        c = "0" if dh not in seen_acc else vr(vAcc+4*dh, 4)
        seen_acc.add(dh)
        A(f"v_mfma_f32_16x16x32_bf16 {vr(vAcc+4*dh,4)}, {vr(vA+4*i,4)}, {vr(vVv+4*idx,4)}, {c}")
    while nv[0] < 32:
        more(1)
        lim = min(nv[0] - W, done + 4)
        while done < lim: pv(done); done += 1
    while done < 32:
        if 31 - done < W: A(f"s_waitcnt vmcnt({31-done})")
        pv(done); done += 1
        if done == 31:
            assert last0 <= 29 and vord[31] & 1
            A(f"ds_write_b128 {vr(vOPa)}, {vr(vAcc,4)}")
    if m7:
        A(f"ds_write_b64 {vr(vOPa+1)}, {vr(vAcc+4,2)}"); A(f"ds_write_b64 {vr(vOPa+1)}, {vr(vAcc+6,2)} offset:8")
    else: A(f"ds_write_b128 {vr(vOPa+1)}, {vr(vAcc+4,4)}")
    stamp(5)
    A("s_waitcnt lgkmcnt(0)")
    A("s_barrier")
    if wbs and "E" not in skip:
        A.c("one wave per group stays to write the spent hand-off lines back ahead of the end of the kernel")
        A("s_cmp_eq_u32 s30, 4"); A("s_cselect_b32 s33, s32, -1"); A(f"s_cmp_eq_u32 s33, {wbr}"); A("s_cbranch_scc0 L_send")
        nb = 4 if "b" in bx else 3
        for k in range(nb):
            if k == wbs - 1: A("buffer_wbl2 sc1")
            A("s_barrier")
        A("L_send:")
    dump_stamps(9)
    A("s_endpgm")

    vT = tT
    A("L_prepw:")
    A("s_waitcnt lgkmcnt(0)")
    if b0 == 1: A("s_barrier")
    if cpos == "early": prep_loads()
    if b0 == 2: A("s_barrier")
    A("s_mov_b64 s[52:53], s[10:11]"); A("s_mov_b32 s54, 0x380000"); A("s_mov_b32 s55, 0x20000")
    if xl: A("s_mov_b64 s[56:57], s[4:5]"); A("s_movk_i32 s58, 7168"); A("s_mov_b32 s59, 0x20000")
    nq = [0]
    def wq_loads(n):
        if not n or "q" in skip: return
        A("s_cmp_eq_u32 s30, 0"); A(f"s_cbranch_scc0 L_nq{nq[0]}")
        lab = f"L_nq{nq[0]}:"
        for _ in range(n):
            A(f"s_mov_b32 m0, {L_WQ + 1024*nq[0]}")
            if qpace and nq[0] >= qpace: A(f"s_waitcnt vmcnt({qpace-1})")
            A(f"buffer_load_dwordx4 {vr(vQw)}, s[52:55], s50 offen {qpol} lds")
            A(f"s_add_u32 s50, s50, {qstep}")
            nq[0] += 1
            if xl and nq[0] == xl: xloads()
            if cl and nq[0] == 14: clears()
        A(lab)
    wq_loads(wq1)
    if b0 == 3: A("s_barrier")
    wq_loads(14 - wq1)
    if b0:
        A("s_cmp_eq_u32 s46, 0"); A("s_cbranch_scc1 L_nolead")
        A("s_waitcnt vmcnt(5)" if cpos == "early" else "s_waitcnt vmcnt(0)")
        A("s_atomic_add s46, s[26:27], s63")
        A("L_nolead:")
    def wo_addr():
        A("s_bfe_u32 s34, s32, 0x10001"); A("s_lshl1_add_u32 s33, s31, s34"); A("s_lshl2_add_u32 s33, s33, s30"); A("s_lshl_b32 s33, s33, 6")
        A("s_mul_i32 s33, s33, 896"); A("s_lshr_b32 s34, s32, 2"); A("s_min_u32 s34, s34, 6"); A("s_lshl_b32 s34, s34, 7"); A("s_add_u32 s51, s33, s34")
        if "O" in hack: A("s_mul_i32 s33, s31, 14"); A("s_lshr_b32 s34, s32, 1"); A("s_add_u32 s33, s33, s34"); A("s_lshl2_add_u32 s33, s33, s30"); A("s_lshl_b32 s51, s33, 13")
        A(f"v_lshrrev_b32 {vr(vWa)}, 3, v0"); A(f"v_mul_u32_u24 {vr(vWa)}, 896, {vr(vWa)}")
        A(f"v_and_b32 {vr(vT+4)}, 16, v0"); A(f"v_lshlrev_b32 {vr(vT+4)}, 1, {vr(vT+4)}"); A(f"v_and_b32 {vr(vT+5)}, 0x70, v3"); A(f"v_xor_b32 {vr(vT+4)}, {vr(vT+4)}, {vr(vT+5)}")
        A(f"v_xor_b32 {vr(vT+5)}, 64, {vr(vT+4)}"); A(f"v_add_u32 {vr(vWa+1)}, {vr(vWa)}, {vr(vT+5)}"); A(f"v_add_u32 {vr(vWa)}, {vr(vWa)}, {vr(vT+4)}")
        A(f"v_lshrrev_b32 {vr(vT+4)}, 2, v1"); A(f"v_lshl_add_u32 {vr(vT+4)}, v2, 3, {vr(vT+4)}"); A(f"v_lshlrev_b32 {vr(vT+4)}, 7, {vr(vT+4)}")
        A(f"v_bfe_u32 {vr(vT+5)}, v0, 3, 2"); A(f"v_lshl_add_u32 {vr(vT+4)}, {vr(vT+5)}, 5, {vr(vT+4)}")
        A(f"v_and_b32 {vr(vT+5)}, 3, v0"); A(f"v_lshl_add_u32 {vr(vT+4)}, {vr(vT+5)}, 3, {vr(vT+4)}")
        A("s_lshl_b32 s61, s30, 13"); A(f"v_add_u32 {vr(vWr)}, s61, {vr(vT+4)}")
    def wo_loads(i0, i1, tag):
        if i0 >= i1: return
        A("s_cmp_ge_u32 s32, 28" if "o" not in skip else "s_cmp_ge_u32 s32, 0"); A(f"s_cbranch_scc1 L_nowo{tag}")
        for i in range(i0, i1):
            A(f"s_add_u32 m0, s61, {1024*i}"); A(f"s_add_u32 s33, s51, {8*896*i if 'O' not in hack else 1024*i}")
            A(f"buffer_load_dwordx4 {vr(vWa+(i&1)) if 'O' not in hack else 'v3'}, s[56:59], s33 offen {opol} lds")
        A(f"L_nowo{tag}:")
    def wo_frags(tts=(0, 1)):
        for nt in range(4):
            for tt in tts:
                for hh in range(2):
                    A(f"ds_read_b64_tr_b16 {vr(vW+16*tt+4*nt+2*hh,2)}, {vr(vWr if nt == 0 else vRaw+nt)} offset:{4096*tt + 512*hh}")
    A.c("tail constants")
    A("s_mov_b32 s49, 0")
    wo_addr()
    if tl_:
        A.c("one scalar read per page that is first used later (V, wo, out): the translation is ready by then; values unused")
        A(f"s_cmp_eq_u32 s30, {tlw}"); A("s_cbranch_scc0 L_notl")
        if tl_ & 1:
            A("s_lshr_b32 s33, s2, 5"); A("s_lshl3_add_u32 s33, s33, s31"); A("s_lshl2_add_u32 s33, s33, 3"); A("s_lshl_b32 s33, s33, 12"); A("s_add_u32 s33, s33, s32"); A("s_lshl_b32 s33, s33, 7")
            A("s_load_dword s46, s[8:9], s33")
        if tl_ & 2:
            A("s_load_dword s47, s[12:13], s51")
        if tl_ & 4:
            A("s_mul_i32 s34, s31, 896")
            A("s_load_dword s48, s[24:25], s34")
        A("L_notl:")
    A(f"s_xor_b32 s34, s32, {qx}"); A("s_and_b32 s35, s34, 3"); A("s_lshr_b32 s34, s34, 2"); A("s_lshl3_add_u32 s34, s35, s34"); A("s_lshl_b32 s34, s34, 7")
    A("s_lshl_b32 s39, s31, 15"); A("s_add_u32 s34, s34, s39")
    A(f"v_and_b32 {vr(vQa)}, 7, v1"); A(f"v_lshlrev_b32 {vr(vQa)}, 12, {vr(vQa)}"); A(f"v_lshl_add_u32 {vr(vQa)}, v2, 4, {vr(vQa)}"); A(f"v_add_u32 {vr(vQa)}, s34, {vr(vQa)}")
    def publish_q():
        A("s_getreg_b32 s47, hwreg(HW_REG_XCC_ID, 0, 4)")
        A("s_mul_i32 s47, s47, 0x1111"); A("s_bitset1_b32 s47, 18")
        if force_slow: A("s_cmp_eq_u32 s32, 5"); A("s_cselect_b32 s47, 0, s47")
        A("s_waitcnt lgkmcnt(0)")
        A("s_cmp_eq_u32 s46, s47")
        A("s_cbranch_scc0 L_f1slow")
        A("L_same:")
        A("s_mov_b32 s41, s46")
        A.c("the slots were cleared in this XCD's L2: publish there")
        A("s_mov_b32 exec_lo, 0x00ff00ff"); A("s_mov_b32 exec_hi, 0x00ff00ff")
        for k in range(2): A(f"global_store_dwordx4 {vr(vQa)}, {vr(vQs+4*k,4)}, s[28:29] offset:{64*k}")
        A("s_mov_b64 exec, -1")
        stamp(3)
        A("L_nopub:")
        def ool():
            A("L_f1slow:")
            if cnt: A("s_mov_b32 s90, 1")
            A(f"v_mov_b32 {vr(vT+20)}, s63")
            A("s_mov_b32 s35, 0")
            A("L_f1l:")
            A("s_cmp_ge_u32 s46, 0x40000")
            A("s_cbranch_scc1 L_f1d")
            A(f"global_load_dword {vr(vT+21)}, {vr(vT+20)}, s[26:27] sc1")
            A("s_add_u32 s35, s35, 1")
            A("s_waitcnt vmcnt(0)")
            A(f"v_readfirstlane_b32 s46, {vr(vT+21)}")
            A(f"s_cmp_lt_u32 s35, {SPIN}")
            A("s_cbranch_scc1 L_f1l")
            A("L_f1d:")
            A("s_cmp_eq_u32 s46, s47")
            A("s_cbranch_scc1 L_same")
            A.c("cleared on another XCD: tell the group, publish nothing here")
            A("s_mov_b32 s41, s46"); A("s_add_u32 s46, s63, 32"); A("s_mov_b32 s47, 1")
            A("s_atomic_add s47, s[26:27], s46 glc")
            A("s_waitcnt lgkmcnt(0)")
            A("s_mov_b32 s49, 1")
            A("s_branch L_nopub")
        OOL.append(ool)
    brow("s33", "s31"); A("s_mul_i32 s34, s30, 224"); A("s_add_u32 s33, s33, s34"); A(f"s_add_u32 s33, s33, {W_B}")
    A(f"v_min_u32 {vr(vT+4)}, 13, v1")
    A(f"v_mul_u32_u24 {vr(vBa)}, 3584, v2"); A(f"v_lshl_add_u32 {vr(vBa)}, {vr(vT+4)}, 4, {vr(vBa)}"); A(f"v_add_u32 {vr(vBa)}, s33, {vr(vBa)}")
    A(f"v_lshrrev_b32 {vr(vT+5)}, 1, v2"); A(f"v_mul_u32_u24 {vr(vT+5)}, {BH - 7168}, {vr(vT+5)}"); A(f"v_add_u32 {vr(vBa)}, {vr(vBa)}, {vr(vT+5)}")
    A("s_mul_i32 s34, s30, 448"); A(f"s_add_u32 s34, s34, {L_H}")
    A(f"v_and_b32 {vr(vT+5)}, 1, v2"); A(f"v_lshlrev_b32 {vr(vHw)}, 5, v1"); A(f"v_lshl_add_u32 {vr(vHw)}, {vr(vT+5)}, 4, {vr(vHw)}"); A(f"v_add_u32 {vr(vHw)}, s34, {vr(vHw)}")
    A(f"v_mov_b32 {vr(vT+5)}, {L_H + 1792}"); A("v_cmp_gt_u32 s[42:43], 14, v1")
    A(f"v_cndmask_b32 {vr(vHw)}, {vr(vT+5)}, {vr(vHw)}, s[42:43]")
    A(f"v_lshrrev_b32 {vr(vT+6)}, 5, v0")
    A("s_lshl_b32 s34, s30, 3"); A(f"s_add_u32 s34, s34, {L_HS}")
    A(f"v_lshlrev_b32 {vr(vHsw)}, 2, {vr(vT+6)}"); A(f"v_add_u32 {vr(vHsw)}, s34, {vr(vHsw)}")
    A(f"v_cvt_f32_u32 {vr(vKs)}, {vr(vT+6)}"); A(f"v_sub_f32 {vr(vKs+1)}, 1.0, {vr(vKs)}")
    for i in range(2): A(f"v_mul_f32 {vr(vKs+i)}, {f32(1.0/448)}, {vr(vKs+i)}")
    delta(vDl, "0x3f80", vT + 8)
    A("s_mul_i32 s33, s32, 56"); A(f"s_add_u32 s33, s33, {L_H}")
    ii = vT + 8; hf = vT + 9; col = vT + 10
    A(f"v_bfe_u32 {vr(ii)}, v0, 3, 1"); A(f"v_and_b32 {vr(hf)}, 3, v0"); A(f"v_lshl_add_u32 {vr(ii)}, {vr(ii)}, 2, {vr(hf)}")
    A(f"v_bfe_u32 {vr(hf)}, v0, 2, 1")
    A(f"v_min_u32 {vr(col)}, 6, {vr(ii)}"); A(f"v_mad_u32_u24 {vr(col)}, {vr(hf)}, 7, {vr(col)}")
    A(f"v_lshlrev_b32 {vr(vHa)}, 2, {vr(col)}"); A(f"v_add_u32 {vr(vHa)}, s33, {vr(vHa)}")
    A(f"v_cmp_eq_u32 vcc, 7, {vr(ii)}"); A(f"v_cndmask_b32 {vr(vT+11)}, v2, 3, vcc")
    if m1:
        for k, cls in ((0, 2), (2, 0), (3, 1)):
            A(f"v_cmp_eq_u32 vcc, {cls}, {vr(vT+11)}"); A(f"v_cndmask_b32 {vr(vK1+k)}, 0, 1.0, vcc")
    else:
        A(f"v_mov_b32 {vr(vT+12)}, 0x3f803f80")
        A(f"v_cmp_eq_u32 vcc, 2, {vr(vT+11)}"); A(f"v_cndmask_b32 {vr(vK1)}, 0, 1.0, vcc")
        A(f"v_cmp_eq_u32 vcc, 0, {vr(vT+11)}"); A(f"v_cndmask_b32 {vr(vK1+1)}, 0, 1.0, vcc")
        A(f"v_cndmask_b32 {vr(vK1+3)}, 0, {vr(vT+12)}, vcc")
        A(f"v_cmp_eq_u32 vcc, 1, {vr(vT+11)}"); A(f"v_cndmask_b32 {vr(vK1+2)}, 0, 1.0, vcc")
        A(f"v_cndmask_b32 {vr(vK1+4)}, 0, {vr(vT+12)}, vcc")
    A(f"v_min_u32 {vr(col)}, 6, v0"); A(f"v_lshlrev_b32 {vr(vHf)}, 3, {vr(col)}"); A(f"v_add_u32 {vr(vHf)}, s33, {vr(vHf)}")
    A("s_mul_i32 s33, s31, 896"); A("s_mul_i32 s34, s32, 28"); A("s_add_u32 s33, s33, s34")
    A(f"v_lshlrev_b32 {vr(vOut)}, 2, {vr(col)}"); A(f"v_add_u32 {vr(vOut)}, s33, {vr(vOut)}")
    A(f"v_bfe_u32 {vr(ii)}, v0, 2, 1"); A(f"v_bfe_u32 {vr(hf)}, v0, 3, 1"); A(f"v_lshl_add_u32 {vr(ii)}, {vr(ii)}, 1, {vr(hf)}")
    A(f"v_bfe_u32 {vr(hf)}, v0, 4, 1"); A(f"v_lshl_add_u32 {vr(ii)}, {vr(hf)}, 2, {vr(ii)}")
    A(f"v_mad_u32_u24 {vr(hf)}, {vr(vT+6)}, 7, {vr(ii)}")
    A(f"v_cmp_eq_u32 vcc, 7, {vr(ii)}"); A(f"v_cndmask_b32 {vr(hf)}, {vr(hf)}, 15, vcc")
    A("s_lshl_b32 s34, s30, 6"); A(f"s_add_u32 s34, s34, {L_Y}")
    A(f"v_lshlrev_b32 {vr(vYa)}, 2, {vr(hf)}"); A(f"v_add_u32 {vr(vYa)}, s34, {vr(vYa)}")
    A("s_lshl_b32 s33, s31, 8"); A(f"s_add_u32 s33, s33, {W_L}"); A("s_and_b32 s34, s32, 3"); A("s_lshl_b32 s34, s34, 6"); A("s_add_u32 s34, s34, s33")
    A(f"v_lshlrev_b32 {vr(vLa)}, 4, v2"); A(f"v_add_u32 {vr(vLa)}, s34, {vr(vLa)}")
    A("s_lshl2_add_u32 s34, s32, s33")
    A(f"v_lshlrev_b32 {vr(vLst)}, 7, v0"); A(f"v_add_u32 {vr(vLst)}, s34, {vr(vLst)}")
    A(f"s_add_u32 s33, s39, {W_O}")
    A("s_and_b32 s35, s32, 1"); A("s_bfe_u32 s36, s32, 0x10001")
    A("s_lshl1_add_u32 s34, s35, s36"); A("s_lshl2_add_u32 s34, s34, s30"); A("s_lshl_b32 s34, s34, 11"); A("s_add_u32 s34, s34, s33")
    A(f"v_add_u32 {vr(vOa)}, s34, v3")
    A("s_lshl2_add_u32 s60, s35, s30")
    A("s_lshl1_add_u32 s34, s31, s36"); A("s_mul_i32 s34, s34, 896"); brow("s36", "s60"); A("s_add_u32 s34, s34, s36")
    A("s_cmp_ge_u32 s31, 4"); A(f"s_cselect_b32 s36, {BH - 7168}, 0"); A("s_add_u32 s34, s34, s36")
    A("s_lshr_b32 s36, s32, 2"); A("s_min_u32 s36, s36, 6"); A("s_lshl_b32 s36, s36, 7")
    A("s_add_u32 s34, s34, s36"); A(f"s_add_u32 s34, s34, {W_B}")
    if m4: A(f"v_and_b32 {vr(vBst)}, 31, v0"); A(f"v_lshlrev_b32 {vr(vBst)}, 2, {vr(vBst)}")
    else: A(f"v_lshlrev_b32 {vr(vBst)}, 3, v1")
    A(f"v_add_u32 {vr(vBst)}, s34, {vr(vBst)}")
    A("s_lshr_b32 s34, s32, 4"); A("s_lshl2_add_u32 s34, s34, s30"); A("s_lshl_b32 s34, s34, 12"); A("s_add_u32 s34, s34, s33")
    A("s_and_b32 s36, s32, 15"); A("s_lshl4_add_u32 s34, s36, s34")
    A(f"v_lshrrev_b32 {vr(vOst)}, 2, v0"); A(f"v_lshlrev_b32 {vr(vOst)}, 8, {vr(vOst)}"); A(f"v_and_b32 {vr(vT+4)}, 3, v0")
    A(f"v_lshl_add_u32 {vr(vOst)}, {vr(vT+4)}, 2, {vr(vOst)}"); A(f"v_add_u32 {vr(vOst)}, s34, {vr(vOst)}")
    A("s_lshl_b32 s34, s30, 8"); A(f"s_add_u32 s34, s34, {L_PP}")
    if m4: A(f"v_and_b32 {vr(vPPr)}, 31, v0"); A(f"v_lshlrev_b32 {vr(vPPr)}, 3, {vr(vPPr)}")
    else: A(f"v_lshlrev_b32 {vr(vPPr)}, 4, v1")
    A(f"v_add_u32 {vr(vPPr)}, s34, {vr(vPPr)}")
    A("s_lshl_b32 s34, s30, 9"); A(f"s_add_u32 s34, s34, {L_OP}")
    A(f"v_lshlrev_b32 {vr(vOPr)}, 3, v0"); A(f"v_add_u32 {vr(vOPr)}, s34, {vr(vOPr)}")
    A("s_lshl_b32 s34, s30, 10"); A(f"s_add_u32 s34, s34, {L_PP}")
    A(f"v_lshlrev_b32 {vr(vPPa)}, 2, v1"); A(f"v_lshl_add_u32 {vr(vPPa)}, v2, 8, {vr(vPPa)}"); A(f"v_add_u32 {vr(vPPa)}, s34, {vr(vPPa)}")
    for i in range(4): A(f"v_mov_b32 {vr(vG+i)}, 0")
    A(f"s_mov_b32 s37, {f32(1.0/64)}")
    A("s_mov_b32 s38, 0xffff0000")
    def qproj():
        A("s_cmp_eq_u32 s30, 0"); A("s_cbranch_scc0 L_nopub")
        A.c("T0: q projection, 64 columns x a quarter of the rows, all 8 batches; LayerNorm applied after the product")
        A("s_mov_b32 s34, 0x3f803f80")
        for i in range(56): A(f"v_mov_b32 {vr(vX+i)}, s34")
        A(f"v_and_b32 {vr(tT+1)}, 7, v1"); A(f"v_mul_u32_u24 {vr(tT+1)}, 896, {vr(tT+1)}"); A(f"v_add_u32 {vr(tT+1)}, {L_X}, {vr(tT+1)}")
        A(f"v_lshl_add_u32 {vr(tT)}, v2, 4, {vr(tT+1)}")
        A("s_mul_i32 s33, s48, 224"); A(f"v_lshl_add_u32 {vr(tT+1)}, v2, 3, {vr(tT+1)}"); A(f"v_add_u32 {vr(tT+1)}, s33, {vr(tT+1)}")
        A(f"v_lshrrev_b32 {vr(tT+2)}, 2, v0"); A(f"v_lshlrev_b32 {vr(tT+2)}, 7, {vr(tT+2)}"); A(f"v_and_or_b32 {vr(tT+2)}, v3, 48, {vr(tT+2)}")
        A(f"v_add_u32 {vr(tT+2)}, {L_WQ}, {vr(tT+2)}")
        A(f"v_bfe_u32 {vr(tT+3)}, v1, 2, 1"); A(f"v_lshl_add_u32 {vr(tT+3)}, {vr(tT+3)}, 4, v1"); A(f"v_lshlrev_b32 {vr(tT+3)}, 2, {vr(tT+3)}")
        A(f"v_lshlrev_b32 {vr(tT+4)}, 2, v1"); A(f"v_add_u32 {vr(tT+4)}, 128, {vr(tT+4)}")
        A(f"v_and_b32 {vr(tT+5)}, 3, v1")
        sm = ('', 's[6:7]', 's[8:9]', 's[14:15]')
        for i in range(1, 4): A(f"v_cmp_eq_u32 {sm[i]}, {i}, {vr(tT+5)}")
        D1 = vX + 16; D2 = tT + 8; wf = vW
        A("s_mov_b32 exec_lo, 0x00ff00ff"); A("s_mov_b32 exec_hi, 0x00ff00ff")
        A(f"s_waitcnt vmcnt({14 - xl + (2 if cl else 0)})")
        for t in range(14): A(f"ds_read_b128 {vr(vX+4*t,4)}, {vr(tT)} offset:{64*t}")
        A("s_mov_b64 exec, -1")
        for t in range(14):
            A(f"s_waitcnt lgkmcnt({13-t})")
            c = "0" if t == 0 else vr(D2, 4)
            A(f"v_mfma_f32_16x16x32_bf16 {vr(D2,4)}, {vr(vX+4*t,4)}, {vr(vX+4*t,4)}, {c}")
        for i in range(1, 4): A(f"v_cndmask_b32 {vr(D2)}, {vr(D2)}, {vr(D2+i)}, {sm[i]}")
        A(f"ds_bpermute_b32 {vr(tT+6)}, {vr(tT+3)}, {vr(D2)}")
        A(f"ds_bpermute_b32 {vr(tT+7)}, {vr(tT+4)}, {vr(D2)}")
        A("s_mov_b32 exec_lo, 0x00ff00ff"); A("s_mov_b32 exec_hi, 0x00ff00ff")
        for t in range(7): A(f"ds_read_b64 {vr(vX+2*t,2)}, {vr(tT+1)} offset:{32*t}")
        A("s_mov_b64 exec, -1")
        A(f"s_mov_b32 s33, {f32(1.0/448)}")
        A("s_waitcnt lgkmcnt(0)")
        A(f"v_mul_f32 {vr(tT+7)}, s33, {vr(tT+7)}")
        A(f"v_mul_f32 {vr(tT+6)}, s33, {vr(tT+6)}")
        A(f"v_fma_f32 {vr(tT+6)}, -{vr(tT+7)}, {vr(tT+7)}, {vr(tT+6)}")
        A(f"v_max_f32 {vr(tT+6)}, 0, {vr(tT+6)}")
        A(f"v_add_f32 {vr(tT+6)}, {f32(1e-5)}, {vr(tT+6)}")
        A(f"v_rsq_f32 {vr(tT+6)}, {vr(tT+6)}")
        A("s_waitcnt vmcnt(0)")
        if lk == 0: A("s_load_dword s46, s[26:27], s63")
        stamp(1)
        for np_ in range(2):
            for t in range(7):
                for e in range(2):
                    A(f"ds_read_b64_tr_b16 {vr(wf+4*t+2*e,2)}, {vr(tT+2)} offset:{2048*t + 64*np_ + 8*e}")
            for t in range(7):
                A(f"s_waitcnt lgkmcnt({12-2*t})")
                for e in range(2):
                    D = D1 + 8*np_ + 4*e
                    c = "0" if t == 0 else vr(D, 4)
                    A(f"v_mfma_f32_16x16x16_bf16 {vr(D,4)}, {vr(wf+4*t+2*e,2)}, {vr(vX+2*t,2)}, {c}")
        if lk == 1: A("s_load_dword s46, s[26:27], s63")
        for i0 in (0, 8):
            for i in range(8):
                A(f"v_mul_f32_dpp {vr(D2+i)}, {vr(D1+i0+i)}, {vr(tT+7)} row_newbcast:8 row_mask:0xf bank_mask:0xf")
            for i in range(8):
                A(f"v_sub_f32 {vr(D2+i)}, {vr(D1+i0+i)}, {vr(D2+i)}")
                A(f"v_mul_f32 {vr(D2+i)}, {vr(D2+i)}, {vr(tT+6)}")
            for i in range(4):
                A(f"v_cvt_pk_bf16_f32 {vr(vQs+i0//2+i)}, {vr(D2+2*i)}, {vr(D2+2*i+1)}")
                A(f"v_min_u32 {vr(vQs+i0//2+i)}, -2, {vr(vQs+i0//2+i)}")
        publish_q()
    def conv():
        if c1_:
            for k in range(3):
                for i in range(4): A(f"v_mov_b32 {vr(raw+8*k+4+((i+3)&3))}, {vr(raw+8*k+i)}")
                for i in range(4): A(f"v_permlane32_swap_b32 {vr(raw+8*k+i)}, {vr(raw+8*k+4+((i+3)&3))}")
        for i in (2, 3): A(f"v_cndmask_b32 {vr(vXr+i)}, 0, {vr(vXr+i)}, s[42:43]")
        A(f"v_lshlrev_b32 {vr(vXr)}, 16, {vr(vXr+2)}"); A(f"v_and_b32 {vr(vXr+1)}, s38, {vr(vXr+2)}")
        A(f"v_lshlrev_b32 {vr(vXr+2)}, 16, {vr(vXr+3)}"); A(f"v_and_b32 {vr(vXr+3)}, s38, {vr(vXr+3)}")
        A(f"v_lshlrev_b32 {vr(vB2)}, 16, {vr(vB2)}")
    w, b, u, bb, c0, c1, c2, c3, ca, cc, hi = (vT + 1 + i for i in range(11))
    def tiles(t0, t1):
        if t0 >= t1: return
        A.c("gelu argument as a cubic in hn, and n = (w1*hn + b1)*w2, as split-bf16 MFMA operands")
        A(f"s_mov_b32 s33, {f32(BETA)}"); A(f"s_mov_b32 s34, {f32(3*BETA)}"); A(f"v_mov_b32 {vr(vT)}, {f32(ALPHA)}")
        A("v_cmp_lt_u32 vcc, 31, v0")
        for tile in range(t0, t1):
            for k, d in enumerate((w, b, u)):
                src = raw + 8*k + (tile >> 1)
                if tile & 1: A(f"v_and_b32 {vr(d)}, s38, {vr(src)}")
                else: A(f"v_lshlrev_b32 {vr(d)}, 16, {vr(src)}")
            A(f"v_mul_f32 {vr(bb)}, {vr(b)}, {vr(b)}")
            A(f"v_fma_f32 {vr(c0)}, {vr(bb)}, s33, {vr(vT)}"); A(f"v_mul_f32 {vr(c0)}, {vr(c0)}, {vr(b)}")
            A(f"v_fma_f32 {vr(c1)}, {vr(bb)}, s34, {vr(vT)}"); A(f"v_mul_f32 {vr(c1)}, {vr(c1)}, {vr(w)}")
            A(f"v_mul_f32 {vr(bb)}, {vr(w)}, {vr(w)}")
            A(f"v_mul_f32 {vr(c2)}, s34, {vr(bb)}"); A(f"v_mul_f32 {vr(c2)}, {vr(c2)}, {vr(b)}")
            A(f"v_mul_f32 {vr(c3)}, s33, {vr(bb)}"); A(f"v_mul_f32 {vr(c3)}, {vr(c3)}, {vr(w)}")
            A(f"v_mul_f32 {vr(ca)}, {vr(w)}, {vr(u)}"); A(f"v_mul_f32 {vr(cc)}, {vr(b)}, {vr(u)}")
            for k, cx in enumerate((c0, c1, c2, c3)): A(f"v_add_f32 {vr(vG+k)}, |{vr(cx)}|, {vr(vG+k)}")
            A(f"v_fma_f32 {vr(vG)}, |{vr(cc)}|, s37, {vr(vG)}"); A(f"v_fma_f32 {vr(vG+1)}, |{vr(ca)}|, s37, {vr(vG+1)}")
            for k, (lo_, hi_) in enumerate(((c1, c2), (c0, c2), (ca, c3), (cc, c3))):
                A(f"v_cndmask_b32 {vr(lo_)}, {vr(lo_)}, {vr(hi_)}, vcc")
                A(f"v_cvt_pk_bf16_f32 {vr(hi)}, {vr(lo_)}, {vr(lo_)}")
                A(f"v_and_b32 {vr(hi)}, s38, {vr(hi)}")
                A(f"v_sub_f32 {vr(lo_)}, {vr(lo_)}, {vr(hi)}")
                A(f"v_cvt_pk_bf16_f32 {vr(vC+4*tile+k)}, {vr(hi)}, {vr(lo_)}")
    def guard():
        A.c("largest |hn| for which the fused gelu path can neither overflow nor lose precision")
        A("s_mov_b32 s3, -1.0"); A(f"s_mov_b32 s34, {f32(100.0)}")
        for H in (3.0, 4.5, 6.0, 8.0, 12.0, 22.0):
            A(f"s_mov_b32 s33, {f32(H)}")
            A(f"v_fma_f32 {vr(vT+1)}, {vr(vG+3)}, s33, {vr(vG+2)}"); A(f"v_fma_f32 {vr(vT+1)}, {vr(vT+1)}, s33, {vr(vG+1)}")
            A(f"v_fma_f32 {vr(vT+1)}, {vr(vT+1)}, s33, {vr(vG)}")
            A(f"v_cmp_nge_f32 vcc, s34, {vr(vT+1)}")
            A("s_cmp_eq_u64 vcc, 0"); A("s_cselect_b32 s3, s33, s3")
        if force_fb: A("s_mov_b32 s3, -1.0")
    if cpos == "early":
        A("s_cmp_eq_u32 s30, 0"); A("s_cbranch_scc1 L_pw"); A("s_waitcnt vmcnt(0)"); A("L_pw:")
        A("s_waitcnt vmcnt(14)")
        conv(); tiles(0, QT); qproj(); tiles(QT, 14); guard()
    else:
        qproj()
    A("s_lshr_b32 s33, s32, 2"); A("s_lshl_b32 s33, s33, 12"); A("s_add_u32 s33, s33, s39")
    A(f"v_add_u32 {vr(vT)}, s33, v3"); A(f"v_add_u32 {vr(vT+1)}, {L_Q}, v3")
    A(f"v_and_b32 {vr(vT+20)}, 7, v0"); A(f"v_lshlrev_b32 {vr(vT+20)}, 2, {vr(vT+20)}"); A(f"v_mov_b32 {vr(vT+19)}, {L_STAT + 64}")
    stamp(4)
    if cpos == "pre1": prep_loads()
    A("s_barrier")
    if cpos == "mid": prep_loads()
    A("s_mov_b32 s35, 0")
    A("s_cmp_eq_u32 s30, 0")
    A("s_cbranch_scc0 L_b1b")
    A.c("T0: gather the four q partials, add, hand to the stream waves")
    qa = vX
    def qload():
        for k in range(4): A(f"global_load_dwordx4 {vr(qa+4*k,4)}, {vr(vT)}, s[28:29] offset:{1024*k} sc1")
        A("s_waitcnt vmcnt(0)")
    A("s_cmp_eq_u32 s49, 0"); A("s_cbranch_scc0 L_glob")
    A("L_qpoll:")
    qload()
    A(f"v_max3_u32 {vr(vT+2)}, {vr(qa)}, {vr(qa+1)}, {vr(qa+2)}")
    for i in range(3, 15, 2): A(f"v_max3_u32 {vr(vT+2)}, {vr(vT+2)}, {vr(qa+i)}, {vr(qa+i+1)}")
    A(f"v_max_u32 {vr(vT+2)}, {vr(vT+2)}, {vr(qa+15)}")
    A(f"v_cmp_eq_u32 vcc, -1, {vr(vT+2)}")
    A("s_cbranch_vccnz L_qretry")
    def ool_q():
        A("L_qretry:")
        if cnt: A("s_mov_b32 s91, 1")
        A("s_add_u32 s35, s35, 1")
        A(f"s_cmp_ge_u32 s35, {SPIN}")
        A("s_cbranch_scc1 L_qdone")
        A("s_bitcmp1_b32 s35, 0"); A("s_cbranch_scc1 L_qpoll")
        A(f"v_mov_b32 {vr(vT+12)}, s63")
        A(f"global_load_dword {vr(vT+13)}, {vr(vT+12)}, s[26:27] offset:32 sc1")
        A("s_waitcnt vmcnt(0)")
        A(f"v_readfirstlane_b32 s46, {vr(vT+13)}")
        A("s_cmp_eq_u32 s46, 0")
        A("s_cbranch_scc1 L_qpoll")
        A("L_glob:")
        A.c("group spread over several XCDs: write-through hand-off in the second copy, ordered by a counter")
        A("s_mov_b32 s49, 1")
        for i in range(4): A(f"v_mov_b32 {vr(qa+i)}, -1")
        A("s_lshl_b32 s33, s32, 10"); A("s_add_u32 s33, s33, s39"); A(f"s_add_u32 s33, s33, {W_O + W_ALT}")
        A(f"v_add_u32 {vr(vT+12)}, s33, v3"); A(f"v_add_u32 {vr(vT+13)}, {W_ALT}, {vr(vLst)}"); A(f"v_add_u32 {vr(vT+14)}, {W_ALT}, {vr(vQa)}")
        A(f"v_add_u32 {vr(vT)}, {W_ALT}, {vr(vT)}"); A(f"v_mov_b32 {vr(vT+15)}, s63")
        A(f"global_store_dwordx4 {vr(vT+12)}, {vr(qa,4)}, s[28:29] sc1")
        A("s_bfe_u32 s33, s41, 0x10002")
        if bph: A("s_xor_b32 s33, s33, 1")
        A("s_lshl_b32 s33, s33, 13"); A("s_add_u32 s33, s33, s40"); A(f"v_add_u32 {vr(vT+12)}, s33, v3")
        A("s_mov_b32 exec_hi, 0")
        A(f"global_store_dwordx4 {vr(vT+12)}, {vr(qa,4)}, s[28:29] sc1")
        A("s_mov_b64 exec, 3")
        A(f"global_store_dword {vr(vT+13)}, {vr(qa)}, s[28:29] sc1")
        A("s_mov_b32 exec_lo, 0x00ff00ff"); A("s_mov_b32 exec_hi, 0x00ff00ff")
        for k in range(2): A(f"global_store_dwordx4 {vr(vT+14)}, {vr(vQs+4*k,4)}, s[28:29] offset:{64*k} sc1")
        A("s_mov_b64 exec, -1")
        A("s_add_u32 s46, s63, 64"); A("s_mov_b32 s47, 1"); A("s_mov_b32 s35, 0")
        A("s_waitcnt vmcnt(0)")
        A("s_atomic_add s47, s[26:27], s46")
        A("L_gl:")
        A(f"global_load_dword {vr(vT+13)}, {vr(vT+15)}, s[26:27] offset:64 sc1")
        A("s_add_u32 s35, s35, 1")
        A("s_waitcnt vmcnt(0) lgkmcnt(0)")
        A(f"v_readfirstlane_b32 s46, {vr(vT+13)}")
        A(f"s_cmp_ge_u32 s35, {SPIN}"); A("s_cselect_b32 s46, 32, s46")
        A("s_cmp_lt_u32 s46, 32")
        A("s_cbranch_scc1 L_gl")
        qload()
        A("s_branch L_qdone")
    OOL.append(ool_q)
    A("L_qdone:")
    stamp(14)
    for k in range(4):
        for p in range(4):
            A(f"v_lshlrev_b32 {vr(vT+4+2*p)}, 16, {vr(qa+4*p+k)}"); A(f"v_and_b32 {vr(vT+5+2*p)}, s38, {vr(qa+4*p+k)}")
        A(f"v_pk_add_f32 {vr(vT+4,2)}, {vr(vT+4,2)}, {vr(vT+6,2)}"); A(f"v_pk_add_f32 {vr(vT+8,2)}, {vr(vT+8,2)}, {vr(vT+10,2)}")
        A(f"v_pk_add_f32 {vr(vT+4,2)}, {vr(vT+4,2)}, {vr(vT+8,2)}")
        A(f"v_cvt_pk_bf16_f32 {vr(qa+k)}, {vr(vT+4)}, {vr(vT+5)}")
    A(f"ds_write_b128 {vr(vT+1)}, {vr(qa,4)}")
    A(f"v_mov_b32 {vr(vT+2)}, s49")
    A(f"ds_write_b32 {vr(vT+19)}, {vr(vT+2)}")
    A("s_cmp_eq_u32 s32, 0"); A("s_cbranch_scc0 L_nof2")
    A.c("every member of this group has cleared its share of the out-projection slots")
    A("s_mov_b32 s33, 0x100000")
    A("s_waitcnt lgkmcnt(0)")
    A("s_barrier")
    A("s_atomic_add s33, s[26:27], s63")
    A("s_branch L_b1c")
    A("L_nof2:")
    A("s_waitcnt lgkmcnt(0)")
    A("L_b1b:")
    A("s_barrier")
    A("L_b1c:")
    A(f"ds_read_b32 {vr(vT+21)}, {vr(vT+19)}")
    if cpos == "b1b": A("s_waitcnt vmcnt(0) lgkmcnt(0)"); prep_loads()
    elif cpos != "early": A("s_waitcnt vmcnt(0) lgkmcnt(0)")
    if touch: A(f"global_load_dword {vr(vT+22)}, {vr(vOut)}, s[24:25]")
    if cpos not in ("early", "b1b"): conv(); tiles(0, N1)
    A(f"v_and_b32 {vr(vT)}, 1, v0"); A(f"v_lshlrev_b32 {vr(vT)}, 5, {vr(vT)}"); A(f"v_add_u32 {vr(vT)}, {L_STAT}, {vr(vT)}")
    A("s_barrier")
    A(f"ds_read_b128 {vr(vT+4,4)}, {vr(vT)}")
    A(f"ds_read_b128 {vr(vT+8,4)}, {vr(vT)} offset:16")
    A("s_waitcnt lgkmcnt(0)")
    stats(vT + 4, vT + 8, vT + 1, vT + 2)
    A(f"v_log_f32 {vr(vT+2)}, {vr(vT+2)}")
    A(f"v_add_f32 {vr(vLse)}, {vr(vT+1)}, {vr(vT+2)}")
    A(f"v_min_u32 {vr(vLse)}, -2, {vr(vLse)}")
    A(f"v_readfirstlane_b32 s62, {vr(vT+21)}")
    A("s_lshl_b32 s33, s62, 20")
    for r_ in (vLa, vLst, vOa, vOst): A(f"v_add_u32 {vr(r_)}, s33, {vr(r_)}")
    A("s_cmp_eq_u32 s30, 1"); A("s_cbranch_scc0 L_nolse")
    A("s_mov_b64 exec, 3")
    A("s_cmp_eq_u32 s62, 0"); A("s_cbranch_scc0 L_slowlse")
    A(f"global_store_dword {vr(vLst)}, {vr(vLse)}, s[28:29]")
    A("L_lsed:")
    A("s_mov_b64 exec, -1")
    A("L_nolse:")
    if wbm:
        A("s_cmp_eq_u32 s30, 2"); A("s_cselect_b32 s33, s32, 0"); A("s_cmp_eq_u32 s33, 31"); A("s_cbranch_scc0 L_nowbm"); A("buffer_wbl2 sc1"); A("L_nowbm:")
    def ool_lse():
        A("L_slowlse:")
        A(f"global_store_dword {vr(vLst)}, {vr(vLse)}, s[28:29] sc1")
        A("s_branch L_lsed")
    OOL.append(ool_lse)
    if inst:
        A.c("bring this workgroup's share of the cleared hand-off lines into L2 ahead of the polls (values unused)")
        A("s_cmp_lt_u32 s30, 2"); A("s_cbranch_scc1 L_noinst")
        A("s_lshl_b32 s33, s32, 10"); A("s_add_u32 s33, s33, s39"); A(f"s_add_u32 s33, s33, {W_O}")
        A("s_mul_i32 s34, s31, 14336"); A("s_min_u32 s35, s32, 27"); A("s_lshl_b32 s35, s35, 9"); A("s_add_u32 s34, s34, s35"); A(f"s_add_u32 s34, s34, {W_B}")
        A("s_cmp_eq_u32 s30, 2")
        if inst == 1: A("s_cbranch_scc0 L_noinst")
        if inst == 2: A("s_cbranch_scc1 L_noinst")
        A("s_cselect_b32 s33, s34, s33")
        A(f"v_add_u32 {vr(vT+12)}, s33, v3")
        A("s_cselect_b32 exec_hi, 0, -1")
        A(f"global_load_dwordx4 {vr(vT+16,4)}, {vr(vT+12)}, s[28:29] sc1")
        A("s_mov_b64 exec, -1")
        A("L_noinst:")
    A("s_mov_b64 s[56:57], s[12:13]"); A("s_mov_b32 s58, 0x380000"); A("s_mov_b32 s59, 0x20000")
    wo_loads(0, NE, "a")
    if cpos == "b1b":
        A("s_cmp_eq_u32 s30, 1"); A("s_cbranch_scc1 L_cw"); A("s_waitcnt vmcnt(0)"); A("L_cw:"); A("s_waitcnt vmcnt(1)"); conv()
    if cpos != "early": tiles(N1, 14); guard()
    A("s_cmp_lt_u32 s32, 28"); A("s_cselect_b32 s44, -1, 0" if m4 else "s_cselect_b32 s44, 0xffff, 0")
    A("s_cmp_eq_u32 s60, s31"); A("s_cselect_b32 s45, s44, 0"); A("s_cmp_eq_u32 s62, 0"); A("s_cselect_b32 s45, s45, 0")
    if "s" in bx: A("s_mov_b32 s45, 0")
    A("s_andn2_b32 s44, s44, s45")
    bl = vX + 16
    for i in range(16): A(f"v_mov_b32 {vr(bl+i)}, 0")
    for nt in range(1, 4): A(f"v_xor_b32 {vr(vRaw+nt)}, {32*nt}, {vr(vWr)}")
    ls4 = vT + 4; ck = vT + 1
    def lse_load():
        A(f"global_load_dwordx4 {vr(ls4,4)}, {vr(vLa)}, s[28:29] sc1")
        A(f"global_load_dword {vr(vT+21)}, {vr(vT+20)}, s[26:27] sc1")
    A(f"s_mov_b32 s36, {f32(1.0 + 1e-5)}")
    A("s_brev_b32 s40, 1"); A("s_brev_b32 s41, 1")
    def weights():
        A(f"v_and_b32 {vr(ck)}, 4, {vr(vT+21)}"); A(f"v_cmp_{'eq' if bph else 'ne'}_u32 s[6:7], 0, {vr(ck)}")
        A(f"v_lshrrev_b32 {vr(ck)}, 20, {vr(vT+21)}"); A(f"v_add_u32 {vr(ck)}, -1, {vr(ck)}")
        A(f"v_max3_u32 {vr(ck)}, {vr(ck)}, {vr(ls4)}, {vr(ls4+1)}"); A(f"v_max3_u32 {vr(ck)}, {vr(ck)}, {vr(ls4+2)}, {vr(ls4+3)}")
        A(f"v_cmp_eq_u32 vcc, -1, {vr(ck)}")
        A(f"v_max3_f32 {vr(vT+2)}, {vr(ls4)}, {vr(ls4+1)}, {vr(ls4+2)}"); A(f"v_max_f32 {vr(vT+2)}, {vr(vT+2)}, {vr(ls4+3)}")
        for i in range(4): A(f"v_sub_f32 {vr(ls4+i)}, {vr(ls4+i)}, {vr(vT+2)}")
        for i in range(4): A(f"v_exp_f32 {vr(ls4+i)}, {vr(ls4+i)}")
        A(f"v_add_f32 {vr(vT+2)}, {vr(ls4)}, {vr(ls4+1)}"); A(f"v_add_f32 {vr(vT+3)}, {vr(ls4+2)}, {vr(ls4+3)}")
        A(f"v_add_f32 {vr(vT+2)}, {vr(vT+2)}, {vr(vT+3)}"); A(f"v_rcp_f32 {vr(vT+2)}, {vr(vT+2)}")
        for i in range(4): A(f"v_mul_f32 {vr(ls4+i)}, {vr(ls4+i)}, {vr(vT+2)}")
    A.c("split-combine weights; vcc != 0: some lse had not arrived yet, redo after publishing")
    if tal >= 0:
        A("s_branch L_tail"); A(".p2alignl 12, 0xbf810000")
        if tal: A(f".fill {tal // 4}, 4, 0xbf810000")
        A("L_tail:")
    stamp(2)
    A("s_barrier")
    lse_load()
    if not lw: A("s_cmp_ge_u32 s32, 28"); A("s_cbranch_scc0 L_wob"); A("s_waitcnt vmcnt(0)"); A("L_wob:")
    wo_loads(NE, 8 - NB, "b")
    A(f"s_mov_b32 s35, {-SPIN & 0xffffffff}")
    A("s_cmp_eq_u32 s62, 0")
    A("L_b3:")
    A("s_barrier")
    stamp(5)
    if "E" in skip: A("s_branch L_fin")
    A.c("reduce the four stream waves' o partials, publish as bf16")
    o = vX; ls4 = vT + 4; oa = vX + 32; Dc = vX + 40; ck = vT + 1
    for w_ in range(4): A(f"ds_read_b64 {vr(o+2*w_,2)}, {vr(vOPr)} offset:{2048*w_}")
    for w_ in range(1, 4):
        A(f"s_waitcnt lgkmcnt({3-w_})")
        A(f"v_pk_add_f32 {vr(o,2)}, {vr(o,2)}, {vr(o+2*w_,2)}")
    A(f"v_cvt_pk_bf16_f32 {vr(o)}, {vr(o)}, {vr(o+1)}")
    A(f"v_min_u32 {vr(o)}, -2, {vr(o)}")
    A("s_cbranch_scc0 L_slowpub")
    A(f"global_store_dword {vr(vOst)}, {vr(o)}, s[28:29]")
    A("L_pubd:")
    def ool_pub():
        A("L_slowpub:")
        A(f"global_store_dword {vr(vOst)}, {vr(o)}, s[28:29] sc1")
        A("s_branch L_pubd")
    OOL.append(ool_pub)
    stamp(6)
    A.c("out projection")
    def aset():
        for tt in range(2):
            A(f"global_load_dwordx4 {vr(oa+4*tt,4)}, {vr(vOa)}, s[28:29] offset:{1024*tt} sc1")
    if ap:
        wo_loads(8 - NB, 8, "c")
        seqv = [f"w{i}" for i in range(NE, 8 - NB)] + ["st"] + [f"w{i}" for i in range(8 - NB, 8)]
        def upto(i):
            live = [k for k, x in enumerate(seqv) if x[0] == "w" and int(x[1:]) <= i]
            if live: A(f"s_waitcnt vmcnt({len(seqv) - 1 - max(live)})")
        if lw: A("s_cmp_ge_u32 s32, 28"); A("s_cbranch_scc0 L_wob"); A("s_waitcnt vmcnt(0)"); A("L_wob:")
        A(f"s_waitcnt vmcnt({len(seqv)})")
        weights()
        upto(3)
        if ap == 1: aset(); seqv += ["a", "a"]
        wo_frags((0,))
        if ap >= 2: upto(3 + ap); aset(); seqv += ["a", "a"]
        upto(7); wo_frags((1,))
    else:
        aset()
        A(f"s_waitcnt vmcnt({3 + 8 - NE})")
        weights()
        if o1:
            A("s_waitcnt vmcnt(7)"); wo_frags((0,)); A("s_waitcnt vmcnt(3)"); wo_frags((1,))
        else:
            A("s_waitcnt vmcnt(3)"); wo_frags()
    A("s_cbranch_vccnz L_lretry")
    def ool_l():
        A("L_lretry:")
        if cnt: A("s_mov_b32 s92, 1")
        lse_load()
        A("s_add_u32 s35, s35, 1")
        A("s_waitcnt vmcnt(0)")
        weights()
        A("s_cbranch_scc1 L_lok")
        A("s_cbranch_vccnz L_lretry")
        A("L_lok:")
        A(f"s_mov_b32 s35, {-SPIN & 0xffffffff}")
        A("s_branch L_apoll0")
    OOL.insert(0, ool_l)
    A("L_apoll0:")
    A("s_bitcmp1_b32 s6, s31"); A("s_cselect_b32 s8, 8192, 0"); A("s_bitcmp1_b32 s6, s60"); A("s_cselect_b32 s9, 8192, 0")
    def achk():
        A(f"v_max3_u32 {vr(ck)}, {vr(oa)}, {vr(oa+1)}, {vr(oa+2)}"); A(f"v_max3_u32 {vr(ck)}, {vr(ck)}, {vr(oa+3)}, {vr(oa+4)}")
        A(f"v_max3_u32 {vr(ck)}, {vr(ck)}, {vr(oa+5)}, {vr(oa+6)}"); A(f"v_max_u32 {vr(ck)}, {vr(ck)}, {vr(oa+7)}")
    if True:
        A("s_waitcnt vmcnt(0)")
        achk()
        A(f"v_cmpx_eq_u32 vcc, -1, {vr(ck)}")
        A("s_cbranch_execz L_adone")
        for _ in range(DA - 1):
            aset()
            for _ in range(GA): A("s_nop 7")
    A("L_apoll:")
    aset()
    A("s_add_u32 s35, s35, 1"); A("s_cselect_b32 s47, -1, -2")
    A(f"s_waitcnt vmcnt({2*(DA-1)})")
    achk()
    A(f"v_cmpx_lt_u32 vcc, s47, {vr(ck)}")
    A("s_cbranch_execnz L_apoll")
    A("L_adone:")
    A("s_mov_b64 exec, -1")
    A("s_waitcnt lgkmcnt(6)" if o1 else "s_waitcnt lgkmcnt(0)")
    A(f"s_mov_b32 s35, {-SPIN & 0xffffffff}")
    stamp(7)
    pp = vT + 16
    def wsum(c):
        return [f"v_mul_f32 {vr(pp+c)}, {vr(Dc+4*c)}, {vr(ls4)}"] + [f"v_fmac_f32 {vr(pp+c)}, {vr(Dc+4*c+i)}, {vr(ls4+i)}" for i in range(1, 4)]
    ws = sum((wsum(c) for c in range(4)), [])
    for k in range(8):
        c, tt = k >> 1, k & 1
        cc_ = "0" if tt == 0 else vr(Dc+4*c, 4)
        A(f"v_mfma_f32_16x16x32_bf16 {vr(Dc+4*c,4)}, {vr(oa+4*tt,4)}, {vr(vW+16*tt+4*c,4)}, {cc_}")
        if o1 and k in (2, 4, 6): A(f"s_waitcnt lgkmcnt({6 - k})")
        if k == 1: A(f"v_add_u32 {vr(vBa)}, s8, {vr(vBa)}"); A(f"v_add_u32 {vr(vBst)}, s9, {vr(vBst)}")
        if 2 <= k <= 3: A(f"s_nop {0 if (o1 and k == 2) else 1}")
        if k >= 4: A(ws.pop(0)); A(ws.pop(0))
    A(f"ds_write2_b32 {vr(vPPa)}, {vr(pp)}, {vr(pp+1)} offset0:0 offset1:16")
    for n_, x in enumerate(ws):
        if m8 and n_ == 4: A(f"ds_write_b32 {vr(vPPa)}, {vr(pp+2)} offset:128")
        A(x)
    if m8: A(f"ds_write_b32 {vr(vPPa)}, {vr(pp+3)} offset:192")
    else: A(f"ds_write2_b32 {vr(vPPa)}, {vr(pp+2)}, {vr(pp+3)} offset0:32 offset1:48")
    if m4:
        A("s_mov_b32 exec_hi, 0")
        A("s_waitcnt lgkmcnt(0)")
        stamp(8)
        A("s_barrier")
        pr = vX
        for w_ in range(4): A(f"ds_read_b64 {vr(pr+2*w_,2)}, {vr(vPPr)} offset:{1024*w_}")
        for w_ in range(1, 4):
            A(f"s_waitcnt lgkmcnt({3-w_})")
            A(f"v_pk_add_f32 {vr(pr,2)}, {vr(pr,2)}, {vr(pr+2*w_,2)}")
        A(f"v_cvt_pk_bf16_f32 {vr(pr)}, {vr(pr)}, {vr(pr+1)}")
        A(f"v_min_u32 {vr(pr)}, -2, {vr(pr)}")
        A("s_mov_b32 exec_lo, s44")
        A(f"global_store_dword {vr(vBst)}, {vr(pr)}, s[28:29] sc1")
        A("s_mov_b32 exec_lo, s45")
        A(f"global_store_dword {vr(vBst)}, {vr(pr)}, s[28:29]")
    else:
        A("s_mov_b64 exec, 0xffff")
        A("s_waitcnt lgkmcnt(0)")
        stamp(8)
        A("s_barrier")
        pr = vX
        for w_ in range(4): A(f"ds_read_b128 {vr(pr+4*w_,4)}, {vr(vPPr)} offset:{1024*w_}")
        for w_ in range(1, 4):
            A(f"s_waitcnt lgkmcnt({3-w_})")
            for k in (0, 2): A(f"v_pk_add_f32 {vr(pr+k,2)}, {vr(pr+k,2)}, {vr(pr+4*w_+k,2)}")
        A(f"v_cvt_pk_bf16_f32 {vr(pr)}, {vr(pr)}, {vr(pr+1)}"); A(f"v_cvt_pk_bf16_f32 {vr(pr+1)}, {vr(pr+2)}, {vr(pr+3)}")
        A(f"v_min_u32 {vr(pr)}, -2, {vr(pr)}"); A(f"v_min_u32 {vr(pr+1)}, -2, {vr(pr+1)}")
        A("s_mov_b32 exec_lo, s44")
        A(f"global_store_dwordx2 {vr(vBst)}, {vr(pr,2)}, s[28:29] sc1")
        A("s_mov_b32 exec_lo, s45")
        A(f"global_store_dwordx2 {vr(vBst)}, {vr(pr,2)}, s[28:29]")
    A("s_mov_b64 exec, s[42:43]")
    stamp(9)
    if "a" in bx: A("s_waitcnt vmcnt(0)")
    if "b" in bx: A("s_barrier")
    if PB0: A(f"s_sleep {PB0}")
    def bset():
        for i in range(4):
            A(f"global_load_dwordx4 {vr(bl+4*i,4)}, {vr(vBa)}, s[28:29] offset:{896*i} sc1")
    def bchk():
        A(f"v_max3_u32 {vr(ck)}, {vr(bl)}, {vr(bl+1)}, {vr(bl+2)}")
        for i in range(3, 15, 2): A(f"v_max3_u32 {vr(ck)}, {vr(ck)}, {vr(bl+i)}, {vr(bl+i+1)}")
        A(f"v_max_u32 {vr(ck)}, {vr(ck)}, {vr(bl+15)}")
    if DB > 1:
        bset()
        A("s_waitcnt vmcnt(0)")
        bchk()
        A(f"v_cmpx_eq_u32 vcc, -1, {vr(ck)}")
        A("s_cbranch_execz L_bdone")
        for _ in range(DB - 1):
            bset()
            for _ in range(GB): A("s_nop 7")
    if o2:
        hh_ = vT + 12; s1 = vT + 8
        A("L_bpoll:")
        bset()
        A("s_add_u32 s35, s35, 1"); A("s_cselect_b32 s47, -1, -2")
        A("s_mov_b64 exec, -1")
        A.c("h = x + sum of the 16 partials (matrix core does the unpack and the adds); discarded while a partial is missing")
        for i in range(4):
            A(f"s_waitcnt vmcnt({3-i})")
            A(f"v_mfma_f32_16x16x32_bf16 {vr(hh_,4)}, {vr(vDl,4)}, {vr(bl+4*i,4)}, {vr(vXr if i == 0 else hh_,4)}")
            if i == 0:
                A(f"v_max3_u32 {vr(ck)}, {vr(bl)}, {vr(bl+1)}, {vr(bl+2)}"); A(f"v_max_u32 {vr(ck)}, {vr(ck)}, {vr(bl+3)}")
            else:
                A(f"v_max3_u32 {vr(ck)}, {vr(ck)}, {vr(bl+4*i)}, {vr(bl+4*i+1)}"); A(f"v_max3_u32 {vr(ck)}, {vr(ck)}, {vr(bl+4*i+2)}, {vr(bl+4*i+3)}")
        A(f"v_cmpx_lt_u32 vcc, s47, {vr(ck)}")
        A("s_cbranch_execnz L_bpoll")
        A("s_mov_b64 exec, -1")
        stamp(10)
        A(f"v_mov_b32 {vr(vT)}, {L_HS}")
    else:
        A("L_bpoll:")
        if PB: A(f"s_sleep {PB}")
        bset()
        A("s_add_u32 s35, s35, 1")
        A(f"s_waitcnt vmcnt({4*(DB-1)})")
        bchk()
        A("s_cbranch_scc1 L_bdone")
        A(f"v_cmpx_eq_u32 vcc, -1, {vr(ck)}")
        A("s_cbranch_execnz L_bpoll")
        A("L_bdone:")
        A("s_mov_b64 exec, -1")
        stamp(10)
        A.c("h = x + sum of the 16 partials (matrix core does the unpack and the adds)")
        hh_ = vXr; s1 = vT + 8
        A(f"v_mov_b32 {vr(vT)}, {L_HS}")
        for i in range(4): A(f"v_mfma_f32_16x16x32_bf16 {vr(hh_,4)}, {vr(vDl,4)}, {vr(bl+4*i,4)}, {vr(hh_,4)}")
    for k in (0, 2): A(f"v_pk_fma_f32 {vr(vT+4+k,2)}, {vr(hh_+k,2)}, {vr(vKs,2)}, {vr(vKs,2)} op_sel:[0,0,1] op_sel_hi:[1,0,1]")
    A(f"ds_write_b128 {vr(vHw)}, {vr(hh_,4)}")
    A(f"v_pk_mul_f32 {vr(s1,2)}, {vr(hh_,2)}, {vr(vT+4,2)}")
    A(f"v_pk_fma_f32 {vr(s1,2)}, {vr(hh_+2,2)}, {vr(vT+6,2)}, {vr(s1,2)}")
    A(f"v_add_f32 {vr(s1)}, {vr(s1)}, {vr(s1+1)}")
    for sh in (8, 4, 2, 1):
        A(f"v_add_f32_dpp {vr(s1)}, {vr(s1)}, {vr(s1)} row_ror:{sh} row_mask:0xf bank_mask:0xf")
    A(f"v_add_f32_dpp {vr(s1)}, {vr(s1)}, {vr(s1)} row_bcast:15 row_mask:0xa bank_mask:0xf")
    A("s_mov_b64 exec, s[40:41]")
    A(f"ds_write_b32 {vr(vHsw)}, {vr(s1)}")
    A("s_mov_b64 exec, -1")
    A("s_waitcnt lgkmcnt(0)")
    A("s_barrier")
    A.c("LayerNorm(LayerNorm(h)) = (h - mu) * rsqrt(var*(1+eps) + eps^2), then the token MLP")
    h8 = vT + 4; hv = vT + 1
    if m5:
        for k in range(4): A(f"ds_read_b64 {vr(h8+2*k,2)}, {vr(vT)} offset:{8*k}")
    else:
        A(f"ds_read_b128 {vr(h8,4)}, {vr(vT)}")
        A(f"ds_read_b128 {vr(h8+4,4)}, {vr(vT)} offset:16")
    A(f"ds_read_b32 {vr(hv)}, {vr(vHa)}")
    A(f"ds_read_b64 {vr(vHf,2)}, {vr(vHf)}")
    mu = vT + 2; rs = vT + 3
    A(f"v_mov_b32 {vr(vT+12)}, {f32(1e-10)}")
    A("s_waitcnt lgkmcnt(4)" if m5 else "s_waitcnt lgkmcnt(2)")
    A(f"v_pk_add_f32 {vr(h8,2)}, {vr(h8,2)}, {vr(h8+2,2)}")
    if m5: A("s_waitcnt lgkmcnt(2)")
    A(f"v_pk_add_f32 {vr(h8+4,2)}, {vr(h8+4,2)}, {vr(h8+6,2)}")
    A(f"v_pk_add_f32 {vr(mu,2)}, {vr(h8,2)}, {vr(h8+4,2)}")
    A(f"v_fma_f32 {vr(rs)}, -{vr(mu)}, {vr(mu)}, {vr(rs)}")
    A(f"v_fma_f32 {vr(rs)}, |{vr(rs)}|, s36, {vr(vT+12)}")
    A(f"v_rsq_f32 {vr(rs)}, {vr(rs)}")
    A("s_waitcnt lgkmcnt(1) vmcnt(0)")
    A(f"v_sub_f32 {vr(hv)}, {vr(hv)}, {vr(mu)}")
    A(f"v_mul_f32 {vr(hv)}, {vr(hv)}, {vr(rs)}")
    A(f"v_cvt_pk_bf16_f32 {vr(hv)}, {vr(hv)}, {vr(hv)}")
    if m1:
        X_ = vT + 4; Xp = vT + 6; Am = vT + 8; hp = vT + 12; tp = vT + 14
        A(f"v_and_b32 {vr(hp)}, s38, {vr(hv)}"); hv = hp
        A(f"v_mul_f32 {vr(hp+1)}, {vr(hp)}, {vr(hp)}")
        A(f"v_pk_fma_f32 {vr(tp,2)}, {vr(hp,2)}, {vr(vK1,2)}, {vr(vK1+2,2)} op_sel_hi:[1,0,1]")
        A(f"v_pk_mul_f32 {vr(X_,2)}, {vr(tp,2)}, {vr(hp,2)} op_sel_hi:[1,0]")
        A(f"v_pk_fma_f32 {vr(Xp,2)}, {vr(tp,2)}, {vr(hp,2)}, {vr(vK1+2,2)} op_sel_hi:[1,0,1]")
        A(f"v_cvt_pk_bf16_f32 {vr(Am)}, {vr(X_)}, {vr(X_)}"); A(f"v_cvt_pk_bf16_f32 {vr(Am+2)}, {vr(X_+1)}, {vr(X_+1)}")
        A(f"v_and_b32 {vr(tp)}, s38, {vr(Am)}"); A(f"v_and_b32 {vr(tp+1)}, s38, {vr(Am+2)}")
        A(f"v_pk_add_f32 {vr(Xp,2)}, {vr(Xp,2)}, {vr(tp,2)} neg_lo:[0,1] neg_hi:[0,1]")
        A(f"v_cvt_pk_bf16_f32 {vr(Am+1)}, {vr(Xp)}, {vr(Xp)}"); A(f"v_cvt_pk_bf16_f32 {vr(Am+3)}, {vr(Xp+1)}, {vr(Xp+1)}")
    else:
        A(f"v_and_b32 {vr(hv)}, s38, {vr(hv)}")
        X_ = vT + 4; Y = vT + 5; t1 = vT + 6; t2 = vT + 7; Am = vT + 8
        A(f"v_fma_f32 {vr(X_)}, {vr(hv)}, {vr(vK1)}, {vr(vK1+1)}"); A(f"v_mul_f32 {vr(X_)}, {vr(X_)}, {vr(hv)}")
        A(f"v_fma_f32 {vr(Y)}, {vr(X_)}, {vr(vK1)}, {vr(vK1+2)}")
        A(f"v_cvt_pk_bf16_f32 {vr(Am)}, {vr(X_)}, {vr(X_)}")
        A(f"v_mul_f32 {vr(Y)}, {vr(Y)}, {vr(hv)}")
        A(f"v_and_b32 {vr(t1)}, s38, {vr(Am)}")
        A(f"v_cvt_pk_bf16_f32 {vr(Am+2)}, {vr(Y)}, {vr(Y)}")
        A(f"v_sub_f32 {vr(X_)}, {vr(X_)}, {vr(t1)}")
        A(f"v_and_b32 {vr(t2)}, s38, {vr(Am+2)}")
        A(f"v_cvt_pk_bf16_f32 {vr(Am+1)}, {vr(X_)}, {vr(X_)}")
        A(f"v_sub_f32 {vr(Y)}, {vr(Y)}, {vr(t2)}")
        A(f"v_or_b32 {vr(Am+1)}, {vr(Am+1)}, {vr(vK1+3)}")
        A(f"v_cvt_pk_bf16_f32 {vr(Am+3)}, {vr(Y)}, {vr(Y)}")
        A(f"v_or_b32 {vr(Am+3)}, {vr(Am+3)}, {vr(vK1+4)}")
    A(f"v_cmp_nge_f32 vcc, s3, |{vr(hv)}|")
    stamp(11)
    Db = [vX, vX + 16, vX + 32]; acc = vT + 12; Dd = vRaw; Nn = vRaw + 8
    def mm(tile):
        A(f"v_mfma_f32_32x32x16_bf16 {vr(Db[tile%3],16)}, {vr(Am,4)}, {vr(vC+4*tile,4)}, 0")
    mm(0)
    A("s_waitcnt lgkmcnt(0)")
    A(f"v_add_f32 {vr(vHf)}, {vr(vHf)}, {vr(vB2)}"); A(f"v_add_f32 {vr(vHf+1)}, {vr(vHf+1)}, {vr(vB2)}")
    A(f"v_lshlrev_b32 {vr(vT)}, 3, v1"); A(f"v_add_u32 {vr(vT)}, {L_Y}, {vr(vT)}")
    if wb:
        A("s_cmp_eq_u32 s30, 0"); A("s_cselect_b32 s33, s32, 0"); A(f"s_cmp_ge_u32 s33, {32 - wb}"); A("s_cbranch_scc0 L_nowb"); A("buffer_wbl2 sc1"); A("L_nowb:")
    if wbt >= 0:
        A("s_cmp_eq_u32 s30, 0"); A("s_cselect_b32 s33, s32, 0"); A("s_cmp_eq_u32 s33, 31")
        def ool_wb():
            A("L_wb:"); A("buffer_wbl2 sc1"); A("s_branch L_wbd")
        OOL.insert(0, ool_wb)
    A("s_cbranch_vccnz L_fb")
    A("L_mlp:")
    A.c("sum_f n_f / (1 + e_f) kept as one fraction N / D")
    if o3:
        def chain(k, D, Np, first):
            if first: return [f"v_pk_add_f32 {vr(Dd+k,2)}, {vr(D+k,2)}, 1.0 op_sel_hi:[1,0]"]
            return [f"v_pk_fma_f32 {vr(D+8+k,2)}, {vr(D+8+k,2)}, {vr(Dd+k,2)}, {vr(Np+k,2)}",
                    f"v_pk_fma_f32 {vr(Dd+k,2)}, {vr(Dd+k,2)}, {vr(D+k,2)}, {vr(Dd+k,2)}",
                    f"v_pk_fma_f32 {vr(Nn+k,2)}, {vr(Np+k,2)}, {vr(D+k,2)}, {vr(D+8+k,2)}"]
        for tile in range(14):
            D = Db[tile % 3]; P = Db[(tile - 1) % 3]
            if tile == wbt: A("s_cbranch_scc1 L_wb"); A("L_wbd:")
            if tile + 1 < 14: mm(tile + 1)
            odd = tile & 1
            if odd:
                if tile == 1: A(f"v_mov_b32 {vr(Nn+6)}, {vr(P+14)}"); A(f"v_mov_b32 {vr(Nn+7)}, {vr(D+14)}")
                else: A(f"v_mov_b32 {vr(P+15)}, {vr(D+14)}")
            for i in range(6): A(f"v_exp_f32 {vr(D+i)}, {vr(D+i)}")
            A(f"v_exp_f32 {vr(P+7 if odd else D+6)}, {vr(D+6)}")
            ch = [chain(k, D, Db[0] + 8 if tile == 1 else Nn, tile == 0) for k in (0, 2, 4)]
            if odd: ch.append(chain(6, P, Nn, tile == 1))
            for st in range(3):
                for c_ in ch:
                    if len(c_) == 3: A(c_[st])
                    elif st == (0 if tile == 0 else 1): A(c_[0])
        for i in (6, 7, 0, 1, 2, 3, 4, 5): A(f"v_rcp_f32 {vr(Dd+i)}, {vr(Dd+i)}")
        A(f"v_mul_f32 {vr(acc+6)}, {vr(Nn+6)}, {vr(Dd+6)}"); A(f"v_fmac_f32 {vr(acc+6)}, {vr(Nn+7)}, {vr(Dd+7)}")
        for k in (0, 2, 4): A(f"v_pk_mul_f32 {vr(acc+k,2)}, {vr(Nn+k,2)}, {vr(Dd+k,2)}")
    else:
        for tile in range(14):
            D = Db[tile % 3]
            if tile + 1 < 14: mm(tile + 1)
            for i in range(7): A(f"v_exp_f32 {vr(D+i)}, {vr(D+i)}")
            if tile == 0:
                for k in range(0, 8, 2): A(f"v_pk_add_f32 {vr(Dd+k,2)}, {vr(D+k,2)}, 1.0 op_sel_hi:[1,0]")
                continue
            Np = Db[0] + 8 if tile == 1 else Nn
            for k in range(0, 8, 2): A(f"v_pk_fma_f32 {vr(D+8+k,2)}, {vr(D+8+k,2)}, {vr(Dd+k,2)}, {vr(Np+k,2)}")
            for k in range(0, 8, 2): A(f"v_pk_fma_f32 {vr(Dd+k,2)}, {vr(Dd+k,2)}, {vr(D+k,2)}, {vr(Dd+k,2)}")
            for k in range(0, 8, 2): A(f"v_pk_fma_f32 {vr(Nn+k,2)}, {vr(Np+k,2)}, {vr(D+k,2)}, {vr(D+8+k,2)}")
        for i in range(7): A(f"v_rcp_f32 {vr(Dd+i)}, {vr(Dd+i)}")
        for k in range(0, 8, 2): A(f"v_pk_mul_f32 {vr(acc+k,2)}, {vr(Nn+k,2)}, {vr(Dd+k,2)}")
    A("L_fbd:")
    A("s_cmp_eq_u32 s30, 1")
    def ool_fb(acc=acc):
        A("L_fb:")
        A.c("direct evaluation (large activations or weights)")
        hh = vRaw; fa = vRaw + 8; w_ = vRaw + 9; b_ = vRaw + 10; u_ = vRaw + 11; x_ = vRaw + 12; p_ = vRaw + 13; al = vRaw + 14
        A(f"v_lshrrev_b32 {vr(fa)}, 5, v0"); A(f"v_mul_u32_u24 {vr(fa)}, 28, {vr(fa)}")
        A("s_mul_i32 s33, s32, 56"); A(f"s_add_u32 s33, s33, {L_H}"); A(f"v_add_u32 {vr(fa)}, s33, {vr(fa)}")
        for i in range(7): A(f"ds_read_b32 {vr(hh+i)}, {vr(fa)} offset:{4*i}")
        A(f"v_and_b32 {vr(fa)}, 31, v0"); A(f"v_lshlrev_b32 {vr(fa)}, 1, {vr(fa)}")
        A("s_mul_i32 s33, s30, 896"); A(f"v_add_u32 {vr(fa)}, s33, {vr(fa)}")
        A(f"s_mov_b32 s33, {f32(BETA)}"); A(f"v_mov_b32 {vr(al)}, {f32(ALPHA)}")
        for i in range(8): A(f"v_mov_b32 {vr(acc+i)}, 0")
        A("s_waitcnt lgkmcnt(0)")
        for i in range(7):
            A(f"v_sub_f32 {vr(hh+i)}, {vr(hh+i)}, {vr(mu)}"); A(f"v_mul_f32 {vr(hh+i)}, {vr(hh+i)}, {vr(rs)}")
            A(f"v_cvt_pk_bf16_f32 {vr(hh+i)}, {vr(hh+i)}, {vr(hh+i)}"); A(f"v_and_b32 {vr(hh+i)}, s38, {vr(hh+i)}")
        A("s_mov_b32 s34, 0")
        A("L_fbl:")
        A(f"global_load_ushort {vr(w_)}, {vr(fa)}, s[16:17]"); A(f"global_load_ushort {vr(b_)}, {vr(fa)}, s[18:19]"); A(f"global_load_ushort {vr(u_)}, {vr(fa)}, s[20:21]")
        A(f"v_add_u32 {vr(fa)}, 64, {vr(fa)}")
        A("s_waitcnt vmcnt(0)")
        for r_ in (w_, b_, u_): A(f"v_lshlrev_b32 {vr(r_)}, 16, {vr(r_)}")
        for i in range(7):
            A(f"v_fma_f32 {vr(x_)}, {vr(w_)}, {vr(hh+i)}, {vr(b_)}")
            A(f"v_mul_f32 {vr(p_)}, {vr(x_)}, {vr(x_)}"); A(f"v_fma_f32 {vr(p_)}, {vr(p_)}, s33, {vr(al)}"); A(f"v_mul_f32 {vr(p_)}, {vr(p_)}, {vr(x_)}")
            A(f"v_exp_f32 {vr(p_)}, {vr(p_)}"); A(f"v_add_f32 {vr(p_)}, 1.0, {vr(p_)}"); A(f"v_rcp_f32 {vr(p_)}, {vr(p_)}")
            A(f"v_mul_f32 {vr(x_)}, {vr(x_)}, {vr(p_)}"); A(f"v_fmac_f32 {vr(acc+i)}, {vr(x_)}, {vr(u_)}")
        A("s_add_u32 s34, s34, 1"); A("s_cmp_lt_u32 s34, 14"); A("s_cbranch_scc1 L_fbl")
        A("s_branch L_fbd")
    OOL.append(ool_fb)
    stamp(12)
    if m2:
        def dp(d, x, ctl, bm): A(f"v_add_f32_dpp {vr(acc+d)}, {vr(acc+x)}, {vr(acc+x)} {ctl} row_mask:0xf bank_mask:{bm}")
        dp(6, 6, "row_ror:8", "0x3"); dp(0, 0, "row_ror:8", "0x3"); dp(4, 4, "row_ror:8", "0x3"); dp(2, 2, "row_ror:8", "0x3")
        dp(0, 1, "row_ror:8", "0xc"); dp(4, 5, "row_ror:8", "0xc"); dp(2, 3, "row_ror:8", "0xc")
        dp(1, 0, "row_shl:4", "0x5"); dp(5, 4, "row_shl:4", "0x5"); dp(3, 2, "row_shr:4", "0xa") if False else None
        dp(1, 2, "row_shr:4", "0xa"); dp(5, 6, "row_shr:4", "0xa")
        acc += 1
    else:
        for k in range(4): A(f"v_add_f32_dpp {vr(acc+2*k)}, {vr(acc+2*k)}, {vr(acc+2*k)} row_ror:8 row_mask:0xf bank_mask:0x3")
        for k in range(3): A(f"v_add_f32_dpp {vr(acc+2*k)}, {vr(acc+2*k+1)}, {vr(acc+2*k+1)} row_ror:8 row_mask:0xf bank_mask:0xc")
        for k in range(2): A(f"v_add_f32_dpp {vr(acc+4*k)}, {vr(acc+4*k)}, {vr(acc+4*k)} row_shl:4 row_mask:0xf bank_mask:0x5")
        for k in range(2): A(f"v_add_f32_dpp {vr(acc+4*k)}, {vr(acc+4*k+2)}, {vr(acc+4*k+2)} row_shr:4 row_mask:0xf bank_mask:0xa")
    A(f"v_permlane16_swap_b32 {vr(acc)}, {vr(acc+4)}")
    A(f"v_add_f32 {vr(acc)}, {vr(acc)}, {vr(acc+4)}")
    A(f"v_add_f32_dpp {vr(acc)}, {vr(acc)}, {vr(acc)} quad_perm:[1,0,3,2] row_mask:0xf bank_mask:0xf")
    A(f"v_add_f32_dpp {vr(acc)}, {vr(acc)}, {vr(acc)} quad_perm:[2,3,0,1] row_mask:0xf bank_mask:0xf")
    A(f"ds_write_b32 {vr(vYa)}, {vr(acc)}")
    A("s_mov_b64 exec, 0x7f")
    A("s_waitcnt lgkmcnt(0)")
    A("s_barrier")
    A("s_cbranch_scc0 L_fin")
    if m6:
        for k in range(4): A(f"ds_read_b64 {vr(vT+4+2*k,2)}, {vr(vT)} offset:{64*k}")
        for k in range(4):
            A(f"s_waitcnt lgkmcnt({3-k})"); A(f"v_pk_add_f32 {vr(vHf,2)}, {vr(vHf,2)}, {vr(vT+4+2*k,2)}")
    else:
        A(f"ds_read2_b64 {vr(vT+4,4)}, {vr(vT)} offset0:0 offset1:8")
        A(f"ds_read2_b64 {vr(vT+8,4)}, {vr(vT)} offset0:16 offset1:24")
        A("s_waitcnt lgkmcnt(1)")
        A(f"v_pk_add_f32 {vr(vHf,2)}, {vr(vHf,2)}, {vr(vT+4,2)}"); A(f"v_pk_add_f32 {vr(vHf,2)}, {vr(vHf,2)}, {vr(vT+6,2)}")
        A("s_waitcnt lgkmcnt(0)")
        A(f"v_pk_add_f32 {vr(vHf,2)}, {vr(vHf,2)}, {vr(vT+8,2)}"); A(f"v_pk_add_f32 {vr(vHf,2)}, {vr(vHf,2)}, {vr(vT+10,2)}")
    A(f"v_cvt_pk_bf16_f32 {vr(vT+2)}, {vr(vHf)}, {vr(vHf+1)}")
    A(f"global_store_dword {vr(vOut)}, {vr(vT+2)}, s[24:25] {outpol}")
    A("L_fin:")
    stamp(13)
    if amp:
        A(f"s_cmp_eq_u32 s30, {amp[0]}"); A("s_cbranch_scc0 L_end")
        A("s_waitcnt lgkmcnt(0)")
        A(f"s_sub_u32 s33, s{64+2*amp[1]}, s{64+2*amp[2]}")
        if amp[3] < 0: A("s_sub_u32 s33, 3000, s33")
        A("s_min_u32 s33, s33, 5000"); A("s_lshl_b32 s33, s33, 3"); A("s_add_u32 s33, s33, 4000")
        A("L_amp:")
        A("s_memrealtime s[34:35]"); A("s_waitcnt lgkmcnt(0)"); A("s_sub_u32 s34, s34, s64")
        A("s_cmp_lt_u32 s34, s33"); A("s_cbranch_scc1 L_amp")
    if cnt:
        for k in range(3):
            A(f"s_cmp_eq_u32 s{90+k}, 0"); A(f"s_cbranch_scc1 L_c{k}"); A(f"s_atomic_add s{90+k}, s[26:27], {128+4*k}"); A("s_waitcnt lgkmcnt(0)"); A(f"L_c{k}:")
    if gamp:
        A(f"s_cmp_eq_u32 s30, {gamp[3] if len(gamp) > 3 else 1}"); A("s_cbranch_scc0 L_end")
        A("s_waitcnt lgkmcnt(0)")
        A(f"s_mov_b32 s36, s{64+2*gamp[0]}")
        A(f"s_not_b32 s37, s{64+2*gamp[1]}" if gamp[2] == "min" else f"s_mov_b32 s37, s{64+2*gamp[1]}")
        A("s_atomic_umax s36, s[26:27], 192"); A("s_atomic_umax s37, s[26:27], 196"); A("s_waitcnt lgkmcnt(0)")
        A("s_cmp_eq_u32 s2, 0"); A("s_cbranch_scc0 L_end")
        A("L_g1:")
        A("s_memrealtime s[34:35]"); A("s_waitcnt lgkmcnt(0)"); A("s_sub_u32 s34, s34, s64")
        A("s_cmp_lt_u32 s34, 3800"); A("s_cbranch_scc1 L_g1")
        A("s_load_dwordx2 s[36:37], s[26:27], 192 glc"); A("s_waitcnt lgkmcnt(0)")
        if gamp[2] == "min": A("s_not_b32 s37, s37")
        A("s_sub_u32 s33, s36, s37"); A("s_min_u32 s33, s33, 2000"); A(f"s_lshl_b32 s33, s33, {gamp[4] if len(gamp) > 4 else 3}"); A("s_add_u32 s33, s33, 4000")
        A("L_g2:")
        A("s_memrealtime s[34:35]"); A("s_waitcnt lgkmcnt(0)"); A("s_sub_u32 s34, s34, s64")
        A("s_cmp_lt_u32 s34, s33"); A("s_cbranch_scc1 L_g2")
    if rnd:
        A("s_cmp_eq_u32 s30, 0"); A("s_cselect_b32 s33, s2, 1"); A("s_cmp_eq_u32 s33, 0"); A("s_cbranch_scc0 L_end")
        A("s_memrealtime s[64:65]"); A("s_waitcnt lgkmcnt(0)")
        A("s_lshr_b32 s33, s64, 2"); A("s_mul_i32 s33, s33, 0x9e3779b1"); A("s_lshr_b32 s34, s33, 15"); A("s_xor_b32 s33, s33, s34"); A("s_mul_i32 s33, s33, 0x85ebca6b")
        A("s_lshr_b32 s33, s33, 19")
        A("L_rnd:")
        A("s_memrealtime s[34:35]"); A("s_waitcnt lgkmcnt(0)"); A("s_sub_u32 s34, s34, s64")
        A("s_cmp_lt_u32 s34, s33"); A("s_cbranch_scc1 L_rnd")
    dump_stamps(15)
    A("L_end:")
    A("s_endpgm")
    for f in OOL: f()
    A(".fill 1024, 4, 0xbf810000")

    body, nn = fix_hazards(A.L)
    if a8:
        import subprocess, tempfile, os
        i0 = body.index("L_tail:"); i1 = body.index("L_end:")
        probe = ['.amdgcn_target "amdgcn-amd-amdhsa--gfx950"', ".text"]
        for i, l in enumerate(body):
            if i0 <= i <= i1: probe.append(f"P_{i}:")
            probe.append(l)
        d = tempfile.mkdtemp(); open(d + "/p.s", "w").write("\n".join(probe) + "\n")
        subprocess.run(["clang", "-x", "assembler", "-target", "amdgcn-amd-amdhsa", "-mcpu=gfx950", "-c", d + "/p.s", "-o", d + "/p.o"], check=True)
        sym = subprocess.run(["llvm-objdump", "-t", d + "/p.o"], capture_output=True, text=True).stdout
        ad = {int(l.split()[-1][2:]): int(l.split()[0], 16) for l in sym.splitlines() if l.split() and l.split()[-1].startswith("P_")}
        sizes = [0] * len(body)
        for i in range(i0, i1): sizes[i] = ad[i + 1] - ad[i]
        st = body.index(a8[0] + ":")
        body, n8 = align8(body, a8[0], a8[1], sizes, ad[st] % 8)
    head = [l.rstrip("\n") for l in open("header.txt")]
    head.append(f"; @launch grid=(256,1,1) block=(512,1,1) lds={L_END}")
    head += DOC
    head += ['.amdgcn_target "amdgcn-amd-amdhsa--gfx950"', ".text"] + ([".p2align 12"] if al else []) + ([f".fill {pad // 4}, 4, 0xbf810000"] if pad else []) + [f".globl {NAME}", ".p2align 8", f".type {NAME},@function"]
    tail = ['.section .rodata,"a"'] + ([f".fill {rpad // 4}, 4, 0"] if rpad else []) + [".p2align 6", f".amdhsa_kernel {NAME}",
            "  .amdhsa_next_free_vgpr 256", "  .amdhsa_next_free_sgpr 96", "  .amdhsa_accum_offset 256",
            "  .amdhsa_group_segment_fixed_size 0", "  .amdhsa_kernarg_size 104", "  .amdhsa_user_sgpr_count 2",
            "  .amdhsa_user_sgpr_kernarg_segment_ptr 1", "  .amdhsa_system_sgpr_workgroup_id_x 1",
            "  .amdhsa_float_denorm_mode_32 3", ".end_amdhsa_kernel"]
    return "\n".join(head + body + tail) + "\n"

if __name__ == "__main__":
    kw = eval("dict(" + (sys.argv[2] if len(sys.argv) > 2 else "") + ")")
    open(sys.argv[1], "w").write(gen(**kw))
```

```python
import sys, struct, math
from asmlib import *

NAME = "sequential_preLN__sliding_block_cached__mixer_token_mlp__decode_kernel"
def f32(x): return "0x%08x" % struct.unpack("<I", struct.pack("<f", x))[0]

L_K = 0; L_WQ = 131072; L_Q = 145408; L_STAT = 146432; L_OP = 146688; L_PP = 154880; L_H = 158976; L_HS = 161024; L_Y = 161088
L_END = 161344
L_X = L_OP
W_Q = 0
W_L = 0xC0000
W_O = 0x40000
W_B = 0x80000
W_ALT = 0x100000
W_STAMP = 0x200000
SPIN = 0x20000
STAMP_VIEW = [("S", slice(4, 8), [0, 8, 6, 7, 1, 2, 3, 4, 5]), ("T0", 0, [0, 1, 3, 4, 14]), ("T3L", 3, [0, 1, 4], slice(224, 256)),
              ("T1", 1, [0, 4, 2, 5, 6, 7, 8, 9, 10, 11, 12, 13]), ("Tall", slice(0, 4), [5, 6, 7, 8, 9, 10, 11, 12, 13])]
ALPHA = -2.0 * math.sqrt(2.0 / math.pi) * math.log2(math.e)
BETA = ALPHA * 0.044715

DOC = """
; ---------------------------------------------------------------------------------------------------------------------
; One launch, 256 workgroups (one per CU), 8 waves each.  g = workgroup id, kvh = g & 7, r = g >> 3, b = r >> 2, s = r & 3.
;   waves 4-7 (stream): K (LDS-DMA) and V (registers) for 256 of the last 1024 keys of (b, kvh); QK^T, true-max softmax
;                       over those keys, P.V with a delta-structured A operand so V is used as loaded.
;   waves 0-3 (tail):   q projection tile, MLP operand preparation, then out projection, LayerNorms and the token MLP.
; Hand-offs between workgroups go through d_ws.  Every slot is set to 0xffffffff in this launch before anyone looks at
; it (ordered through counters in the zeroed d_debug and through the q hand-off itself); data never takes that value.
;   q    : 64 columns x 112 rows per workgroup, LN(x) applied after the product: rstd*(x.W - mean*colsum(W))
;   o,lse: per split, normalised by the split's own sum; combined with softmax(lse) after the out-projection product
;   rows : 16 partial rows per batch, summed by the workgroups that run the MLP for that batch
; q, o and lse stay inside one group (same kvh).  They use plain stores only when every member has checked that it sits
; on the XCD whose L2 holds the cleared slots; otherwise the group switches to write-through stores in a second copy.
; LN(LN(h)) = (h - mean) * rsqrt(var*(1+eps) + eps^2) exactly.  gelu_tanh(u) = u / (1 + 2^z), z = a*u + b*u^3, which is
; a cubic in hn evaluated on the matrix core with hi/lo bf16 operands; sum_f n_f/(1+e_f) is carried as one fraction.
; A bound computed from w1, b1, w2 sends a wave to the plain per-element evaluation when that form could overflow.
; ---------------------------------------------------------------------------------------------------------------------
""".strip("\n").split("\n")

def gen(W=9, QPOS=1, QD=3, FT=-1, stamps=False, force_slow=False, pol="nt", vpol=None, qpol="nt", opol="nt", opol2="nt", spol="", skip="",
        pref=True, opos="mid", qx=16, force_fb=False, touch=False, amp=None, DA=1, DB=1, rotm=1, PB=0, NL=1, EP=0, inst=0, spf=2, WE=0, WEN=64, WE0=8, WEM=0x55, NLD=4, LD0=0, qpace=0, prio=3, QT=0, GA=0, GB=0, cpos="mid", N1=2, c1=True, NE=0, o1=True, o2=True, o3=True, ap=1, NB=0, pos=None, rot='', wb=0, wbs=0, ks=0, b0=1, b0n=2, rnd=0, eps=None, m1=True, m2=True, m4=True, m5=0, m6=0, m7=0, m8=0, lk=1, cl=0, xl=0, pa=0, ve=(0, 2, 1, 4, 3), ke=None, vk=0, vt=-1, cnt=False, rpad=0, bph=0, a8=('L_tail', 'L_end'), wbt=5, wbm=0, tl_=0, tlw=2, gamp=None, wq1=0, wbr=31, lw=True, pad=0, al=1, tal=0, warm=0, outpol='', hack="", bx="ab", PB0=0):
    A = Asm()
    c1_ = c1
    OOL = []
    def stamp(i):
        if stamps or (amp and i in (amp[1], amp[2], 0)) or (gamp and i in (gamp[0], gamp[1], 0)): A(f"s_memrealtime s[{64+2*i}:{65+2*i}]")
    def dump_stamps(nst):
        if not stamps: return
        A("s_waitcnt lgkmcnt(0) vmcnt(0)")
        A("s_lshl_b32 s94, s2, 3"); A("s_add_u32 s94, s94, s30"); A("s_lshl_b32 s94, s94, 6"); A(f"s_add_u32 s94, s94, {W_STAMP}")
        A("s_mov_b64 exec, 1")
        A("v_mov_b32 v4, s94")
        for i in range(nst):
            A(f"v_mov_b32 v5, s{64+2*i}")
            A(f"global_store_dword v4, v5, s[28:29] offset:{4*i}")
        A("s_getreg_b32 s94, hwreg(HW_REG_XCC_ID, 0, 4)"); A("v_mov_b32 v5, s94")
        A("global_store_dword v4, v5, s[28:29] offset:60")
        A("s_waitcnt vmcnt(0)")

    def brow(dst, b): A(f"s_lshl_b32 {dst}, {b}, 15")
    BH = 16384
    A(f"{NAME}:")
    stamp(0)
    A("s_load_dwordx16 s[4:19], s[0:1], 0" if ks != 2 else "s_load_dwordx8 s[4:11], s[0:1], 0")
    if not ks or stamps:
        A("s_load_dwordx8 s[20:27], s[0:1], 64")
        A("s_load_dwordx2 s[28:29], s[0:1], 96")
    A("v_lshrrev_b32 v1, 6, v0")
    A("s_lshr_b32 s32, s2, 3")
    A("v_readfirstlane_b32 s30, v1")
    A("s_cmp_ge_u32 s32, 32")
    A("s_cbranch_scc1 L_end")
    A("v_and_b32 v0, 63, v0")
    A("s_and_b32 s31, s2, 7")
    A("v_lshlrev_b32 v3, 4, v0")
    A("s_cmp_lt_u32 s30, 4")
    A("s_cbranch_scc1 L_T")

    A.c("================ stream waves")
    V = Alloc(4, 256)
    vK = V(8); vKb = V(); vVb = V(); vAd = V(2); vKA = V(4); vM = V(4); vT = V(8); vOPa = V(2); vQA = V(); vSTw = V(); vSTr = V()
    vS = V(16); vAcc = vK; vQ = V(32); vKF = V(32); vVv = V(128)
    vA = vQ
    assert vKF == vQ + 32
    M = dict(j0=324, j1=1, r1=12, r2=256, r3=32, s0=24, s1=130, t0=2, t1=4) if pos is None else dict(pos)
    M = {k: v << 10 for k, v in M.items()}
    span = {0}
    for k in ("r1", "r2", "r3", "j0", "j1", "t0", "t1", "s0", "s1"): span |= {x ^ M[k] for x in span}
    assert len(span) == 512
    SRC = dict(s0=("s2", 3), s1=("s2", 4), b0=("s2", 5), b1=("s2", 6), b2=("s2", 7), k0=("s2", 0), k1=("s2", 1), k2=("s2", 2), j0=("s30", 0), j1=("s30", 1))
    def gaddr(i, tl=0):
        x = 0
        for k in range(3):
            if (i >> k) & 1: x ^= M[f"r{k+1}"]
        for k in range(2):
            if (tl >> k) & 1: x ^= M[f"t{k}"]
        return x
    def X(i, tl): return ((8*(i & 1) + (i >> 1)) << 4) | gaddr(i, tl)
    A("s_lshr_b32 s34, s2, 5"); A("s_lshl3_add_u32 s34, s34, s31"); A("s_lshl2_add_u32 s34, s34, 3"); A("s_lshl_b32 s40, s34, 19")
    first = True
    for k, (reg, bit) in SRC.items():
        if M.get(k):
            A(f"s_bitcmp1_b32 {reg}, {bit}"); A(f"s_cselect_b32 {'s38' if first else 's35'}, {M[k]}, 0")
            if not first: A("s_xor_b32 s38, s38, s35")
            first = False
    A("s_sub_u32 s33, s30, 4")
    A("s_lshl_b32 s37, s33, 15")
    A(f"v_and_b32 {vr(vT)}, 32, v0"); A(f"v_lshlrev_b32 {vr(vT)}, 1, {vr(vT)}")
    A(f"v_xor_b32 {vr(vT)}, {vr(vT)}, v3")
    A(f"v_xor_b32 {vr(vKb)}, s38, {vr(vT)}")
    if prio == 2: A("s_setprio 3")
    A("s_brev_b32 s54, 16"); A("s_mov_b32 s55, 0x20000")
    A("s_mov_b32 m0, s37")
    A("s_waitcnt lgkmcnt(0)")
    A("s_mov_b64 s[52:53], s[6:7]")
    stamp(8)
    issued = [0]; kpre = {}; vpre = {}
    def throttle():
        if WE and WE0 <= issued[0] < WE0 + WEN:
            A(f"s_cbranch_vccz L_th{issued[0]}"); A(f"s_waitcnt vmcnt({abs(WE)-1})"); A(f"L_th{issued[0]}:")
        if issued[0] >= W: A(f"s_waitcnt vmcnt({W-1})")
        issued[0] += 1
    def kload(tl, i):
        ad = vKb
        if (tl, i) in kpre:
            ad = kpre[(tl, i)]; A(f"s_add_u32 m0, s37, {(tl << 13) | (i << 10)}")
        elif tl or i:
            ad = vAd + (issued[0] & 1)
            A(f"s_add_u32 m0, s37, {(tl << 13) | (i << 10)}"); A(f"v_xor_b32 {vr(ad)}, {X(i, tl)}, {vr(vKb)}")
        throttle()
        A(f"buffer_load_dwordx4 {vr(ad)}, s[52:55], s40 offen {pol} lds")
    kord = [sum(((n_ >> k) & 1) << ke[k] for k in range(5)) for n_ in range(32)] if ke else list(range(32))
    for i in range(8):
        if b0 and i == b0n: A("s_barrier")
        kload(kord[i] >> 3, kord[i] & 7)
    A("s_branch L_S2")

    LP = "L_b0" if b0 == 4 else "L_prepw"
    A("L_T:")
    A.c("================ tail waves")
    if ks == 2: A("s_load_dwordx8 s[12:19], s[0:1], 32")
    if ks and not stamps:
        A("s_load_dwordx8 s[20:27], s[0:1], 64")
        A("s_load_dwordx2 s[28:29], s[0:1], 96")
    V = Alloc(4, 256)
    vC = V(56); vW = V(32); vRaw = V(32); vX = V(56); tT = V(24)
    vXr = V(4); vDl = V(4); vQs = V(8); vG = V(4); vK1 = V(6); vHa = V(); vKs = V(2); vHf = V(2)
    vYa = V(); vLa = V(); vOa = V(); vPPa = V(); vBst = V(); vOst = V(); vLst = V(); vLse = V()
    vBa = V(); vHw = V(); vHsw = V(); vOut = V(); vB2 = V(); vQa = V(); vOPr = V(); vPPr = V(); vWa = V(2); vQw = V(); vWr = V()
    assert vRaw == vW + 32
    raw = vRaw if cpos == "early" else vX + 32
    def prep_loads():
        t = tT + 14
        A.c("MLP weights, residual row piece, b2")
        if c1_:
            A("s_mul_i32 s33, s30, 896")
            A(f"v_mul_u32_u24 {vr(t)}, 12, v0"); A(f"v_add_u32 {vr(t)}, {508 - 384}, {vr(t)}")
            A("v_cmp_lt_u32 vcc, 31, v0"); A(f"v_cndmask_b32 {vr(t)}, v3, {vr(t)}, vcc"); A(f"v_add_u32 {vr(t)}, s33, {vr(t)}")
            for k, sp in enumerate((16, 18, 20)):
                A(f"global_load_dwordx4 {vr(raw+8*k,4)}, {vr(t)}, s[{sp}:{sp+1}] {spol}")
        else:
            A(f"v_and_b32 {vr(t)}, 31, v0")
            A("s_mul_i32 s33, s30, 896")
            A(f"v_lshlrev_b32 {vr(t+1)}, 4, {vr(t)}"); A(f"v_add_u32 {vr(t+1)}, s33, {vr(t+1)}")
            A(f"v_lshlrev_b32 {vr(t+2)}, 3, {vr(t)}"); A(f"v_add_u32 {vr(t+2)}, s33, {vr(t+2)}")
            A(f"v_lshlrev_b32 {vr(t+3)}, 2, {vr(t)}"); A(f"v_add_u32 {vr(t+3)}, s33, {vr(t+3)}")
            for k, sp in enumerate((16, 18, 20)):
                A(f"global_load_dwordx4 {vr(raw+8*k,4)}, {vr(t+1)}, s[{sp}:{sp+1}] {spol}")
                A(f"global_load_dwordx2 {vr(raw+8*k+4,2)}, {vr(t+2)}, s[{sp}:{sp+1}] offset:512 {spol}")
                A(f"global_load_dword {vr(raw+8*k+6)}, {vr(t+3)}, s[{sp}:{sp+1}] offset:768 {spol}")
        A(f"v_min_u32 {vr(t)}, 13, v1"); A(f"v_and_b32 {vr(t+1)}, 1, v2")
        A("s_mul_i32 s33, s31, 896"); A("s_mul_i32 s34, s30, 224"); A("s_add_u32 s33, s33, s34")
        A(f"v_lshlrev_b32 {vr(t)}, 4, {vr(t)}"); A(f"v_lshl_add_u32 {vr(t)}, {vr(t+1)}, 3, {vr(t)}"); A(f"v_add_u32 {vr(t)}, s33, {vr(t)}")
        A(f"global_load_dwordx2 {vr(vXr+2,2)}, {vr(t)}, s[4:5] {spol}")
        A(f"v_mov_b32 {vr(t+2)}, 0")
        A(f"global_load_ushort {vr(vB2)}, {vr(t+2)}, s[22:23] {spol}")
    A("v_and_b32 v1, 15, v0")
    A("v_lshrrev_b32 v2, 4, v0")
    A("s_lshl_b32 s63, s31, 2")
    A(f"v_mov_b32 {vr(vQw)}, 0")
    if cl: A(f"v_mov_b32 {vr(tT)}, 0"); A(f"v_mov_b32 {vr(tT+1)}, 0")
    if cnt: A("s_mov_b32 s90, 0"); A("s_mov_b32 s91, 0"); A("s_mov_b32 s92, 0")
    A("s_mov_b64 s[40:41], 0")
    if b0: A("s_mov_b32 s46, 0")
    if "T" in skip:
        A("s_waitcnt lgkmcnt(0)"); A("s_barrier"); A("s_barrier"); A("s_barrier")
        if NL: A("s_barrier")
        A("s_branch L_b3")
    A("s_cmp_eq_u32 s30, 0"); A("s_cbranch_scc1 L_T0")
    A("s_cmp_eq_u32 s30, 3"); A("s_cbranch_scc1 L_T3")
    if spf:
        A("s_cmp_eq_u32 s30, 1"); A("s_cbranch_scc1 L_T1")
    if pref:
        if not spf: A("s_cmp_eq_u32 s30, 2"); A("s_cbranch_scc0 " + LP)
        A.c("T2: pull the code into this XCD's L2")
        A("s_getpc_b64 s[34:35]")
        A("L_pc:")
        A(f"s_sub_u32 s34, s34, L_pc-{NAME}"); A("s_subb_u32 s35, s35, 0")
        A("s_mul_i32 s33, s32, 640")
        A(f"v_min_u32 {vr(tT)}, 9, v0"); A(f"v_lshlrev_b32 {vr(tT)}, 6, {vr(tT)}"); A(f"v_add_u32 {vr(tT)}, s33, {vr(tT)}")
        A(f"global_load_dword {vr(tT+2)}, {vr(tT)}, s[34:35]")
    A("s_branch " + LP)
    if spf:
        A("L_T1:")
        A.c("T1: pull 14 rows of the wq column block that r=28..31 read (and of the last block) into L2")
        A("s_mul_i32 s33, s32, 14*8192"); A("s_lshl_b32 s34, s31, 10"); A("s_add_u32 s33, s33, s34"); A("s_addk_i32 s33, 384")
        A(f"v_min_u32 {vr(tT)}, 13, v1"); A(f"v_lshlrev_b32 {vr(tT)}, 13, {vr(tT)}")
        A(f"v_and_b32 {vr(tT+1)}, 1, v2"); A(f"v_lshl_add_u32 {vr(tT)}, {vr(tT+1)}, 6, {vr(tT)}")
        A(f"v_lshrrev_b32 {vr(tT+1)}, 1, v2"); A(f"v_lshl_add_u32 {vr(tT)}, {vr(tT+1)}, 9, {vr(tT)}")
        A(f"v_add_u32 {vr(tT)}, s33, {vr(tT)}")
        A("s_cmp_eq_u32 s31, 7"); A("s_cselect_b32 exec_hi, -1, 0")
        if spf == 2: A("s_and_b32 exec_hi, exec_hi, 0xffff"); A("s_mov_b32 exec_lo, 0xffff")
        A("s_waitcnt lgkmcnt(0)")
        A(f"global_load_dword {vr(tT+2)}, {vr(tT)}, s[10:11]")
        A("s_mov_b64 exec, -1")
        A("s_branch " + LP)
    A("L_T3:")
    A.c(f"T3 of {NLD} workgroup(s) per group: clear a share of the group's q and lse slots, then count in")
    per = 4 // NLD
    A(f"s_sub_u32 s36, s32, {LD0}"); A(f"s_cmp_lt_u32 s36, {NLD}"); A("s_cbranch_scc0 " + LP)
    for i in range(4): A(f"v_mov_b32 {vr(tT+4+i)}, -1")
    A("s_getreg_b32 s34, hwreg(HW_REG_XCC_ID, 0, 4)")
    if per > 1: A(f"s_mul_i32 s34, s34, {0x1111 & ((1 << (4*per)) - 1)}"); A(f"s_mul_i32 s36, s36, {per}")
    A("s_lshl_b32 s33, s36, 2"); A("s_lshl_b32 s34, s34, s33"); A(f"s_bitset1_b32 s34, {16 + per.bit_length() - 1}")
    A("s_lshl2_add_u32 s33, s31, s36"); A("s_lshl_b32 s35, s33, 13"); A(f"v_add_u32 {vr(tT)}, s35, v3")
    A("s_lshl_b32 s33, s33, 6"); A(f"s_add_u32 s33, s33, {W_L}")
    A(f"v_add_u32 {vr(tT+2)}, s33, v3")
    A("s_waitcnt lgkmcnt(0)")
    for k in range(2*per):
        for i in range(4): A(f"global_store_dwordx4 {vr(tT)}, {vr(tT+4,4)}, s[28:29] offset:{1024*i}")
        if k < 2*per - 1: A(f"v_add_u32 {vr(tT)}, 4096, {vr(tT)}")
    A(f"s_mov_b64 exec, {(1 << (4*per)) - 1}")
    A(f"global_store_dwordx4 {vr(tT+2)}, {vr(tT+4,4)}, s[28:29]")
    A("s_mov_b64 exec, -1")
    if b0:
        A("s_mov_b32 s46, s34")
    else:
        A("s_waitcnt vmcnt(0)")
        A("s_atomic_add s34, s[26:27], s63")
        stamp(1)
    A("s_branch " + LP)
    A("L_T0:")
    A.c("T0: x into LDS, clear this workgroup's share of the hand-off slots (acknowledged before q is published)")
    A(f"v_lshrrev_b32 {vr(vQw)}, 3, v0"); A(f"v_lshlrev_b32 {vr(vQw)}, 13, {vr(vQw)}"); A(f"v_and_b32 {vr(tT)}, 0x70, v3"); A(f"v_or_b32 {vr(vQw)}, {vr(vQw)}, {vr(tT)}")
    A(f"s_xor_b32 s34, s32, {qx}"); A("s_lshr_b32 s35, s34, 2"); A("s_lshl3_add_u32 s50, s31, s35"); A("s_lshl_b32 s50, s50, 7")
    A("s_and_b32 s48, s34, 3"); A("s_mul_i32 s34, s48, 112*8192"); A("s_add_u32 s50, s50, s34")
    qstep = 0x10000
    if "8" in hack:
        A(f"v_lshlrev_b32 {vr(vQw)}, 13, v2"); A(f"v_lshl_add_u32 {vr(vQw)}, v1, 4, {vr(vQw)}")
        A("s_lshr_b32 s35, s32, 3"); A("s_lshl2_add_u32 s50, s31, s35"); A("s_lshl_b32 s50, s50, 8")
        A("s_and_b32 s34, s32, 7"); A("s_mul_i32 s34, s34, 56*8192"); A("s_add_u32 s50, s50, s34"); qstep = 0x8000
    if "C" in hack:
        A(f"v_mov_b32 {vr(vQw)}, v3"); A("s_mul_i32 s50, s2, 14336"); qstep = 1024
    A("s_movk_i32 s58, 7168"); A("s_mov_b32 s59, 0x20000")
    A("s_lshl_b32 s33, s31, 15"); A("s_lshl_b32 s34, s32, 10"); A("s_add_u32 s33, s33, s34"); A(f"s_add_u32 s33, s33, {W_O}")
    A(f"v_add_u32 {vr(tT)}, s33, v3")
    brow("s33", "s31"); A("s_min_u32 s34, s32, 27"); A("s_lshl_b32 s34, s34, 9"); A("s_add_u32 s33, s33, s34"); A(f"s_add_u32 s33, s33, {W_B}")
    A("s_cmp_ge_u32 s32, 14"); A(f"s_cselect_b32 s34, {BH - 7168}, 0"); A("s_add_u32 s40, s33, s34")
    A("s_getreg_b32 s34, hwreg(HW_REG_XCC_ID, 2, 1)")
    if bph: A("s_xor_b32 s34, s34, 1")
    A("s_lshl_b32 s34, s34, 13"); A("s_add_u32 s33, s40, s34")
    A(f"v_add_u32 {vr(tT+1)}, s33, v3")
    for i in range(4): A(f"v_mov_b32 {vr(vW+i)}, -1")
    A("s_waitcnt lgkmcnt(0)")
    A("s_mov_b64 s[56:57], s[4:5]")
    def xloads():
        A(f"s_mov_b32 m0, {L_X}"); A("s_movk_i32 s35, 4096")
        for t in range(4 if "x" not in hack else 0): A(f"buffer_load_dwordx4 v3, s[56:59], 0 offen offset:{1024*t} {spol} lds")
        A(f"s_mov_b32 m0, {L_X + 4096}")
        for t in range(3 if "x" not in hack else 0): A(f"buffer_load_dwordx4 v3, s[56:59], s35 offen offset:{1024*t} {spol} lds")
    if not xl: xloads()
    def clears():
        A(f"global_store_dwordx4 {vr(tT)}, {vr(vW,4)}, s[28:29]")
        A.c("r = 28..31 repeat the share of r = 27 with one lane")
        A("s_cmp_lt_u32 s32, 28"); A("s_cselect_b32 exec_lo, -1, 1"); A("s_mov_b32 exec_hi, 0")
        A(f"global_store_dwordx4 {vr(tT+1)}, {vr(vW,4)}, s[28:29] sc1")
        A("s_mov_b64 exec, -1")
    if not cl: clears()
    A("s_branch " + LP)
    if b0 == 4:
        A("L_b0:"); A("s_barrier"); A("s_branch L_prepw")

    A("L_S2:")
    A("v_and_b32 v1, 15, v0")
    A("v_lshrrev_b32 v2, 4, v0")
    A("s_mov_b64 s[56:57], s[8:9]"); A("s_mov_b32 s58, s54"); A("s_mov_b32 s59, 0x20000")
    A("s_mov_b32 s61, 0")
    for k in rot.split():
        reg, bit = SRC[k]
        A(f"s_bitcmp1_b32 {reg}, {bit}"); A("s_cselect_b32 s35, 256, 0"); A("s_xor_b32 s61, s61, s35")
    A(f"v_and_b32 {vr(vT)}, 1, v2"); A(f"v_lshlrev_b32 {vr(vT)}, 9, {vr(vT)}"); A(f"v_lshl_add_u32 {vr(vT)}, v1, 4, {vr(vT)}")
    A(f"v_lshrrev_b32 {vr(vT+1)}, 1, v2"); A(f"v_mul_u32_u24 {vr(vT+1)}, {M['r1']}, {vr(vT+1)}"); A(f"v_or_b32 {vr(vT)}, {vr(vT)}, {vr(vT+1)}")
    A("s_or_b32 s35, s38, s61")
    A(f"v_xor_b32 {vr(vVb)}, s35, {vr(vT)}")
    A(f"v_mov_b32 {vr(vT+3)}, v1")
    A(f"v_and_b32 {vr(vT)}, 3, v1"); A(f"v_lshrrev_b32 {vr(vT+1)}, 2, v1")
    A(f"v_lshl_add_u32 {vr(vT+2)}, {vr(vT)}, 2, {vr(vT+1)}")
    A(f"v_xor_b32 {vr(vT+3)}, {vr(vT+3)}, v2")
    A(f"v_lshlrev_b32 {vr(vT+2)}, 9, {vr(vT+2)}"); A(f"v_add_u32 {vr(vT+2)}, s37, {vr(vT+2)}")
    A(f"v_lshl_add_u32 {vr(vKA)}, {vr(vT+3)}, 4, {vr(vT+2)}")
    for t in range(1, 4): A(f"v_xor_b32 {vr(vKA+t)}, {64*t}, {vr(vKA)}")
    A(f"v_lshrrev_b32 {vr(vT)}, 3, v1")
    A(f"v_lshlrev_b32 {vr(vQA)}, 9, {vr(vT)}"); A(f"v_lshl_add_u32 {vr(vQA)}, v2, 4, {vr(vQA)}")
    A(f"v_add_u32 {vr(vQA)}, {L_Q}, {vr(vQA)}")
    A(f"v_lshlrev_b32 {vr(vSTr)}, 5, {vr(vT)}"); A(f"v_add_u32 {vr(vSTr)}, {L_STAT}, {vr(vSTr)}")
    A("s_lshl_b32 s35, s33, 2"); A(f"v_add_u32 {vr(vSTw)}, s35, {vr(vSTr)}")
    def delta(dst, val, t0):
        A(f"v_and_b32 {vr(t0)}, 16, v3")
        A(f"v_mov_b32 {vr(t0+1)}, {val}"); A(f"v_lshlrev_b32 {vr(t0+1)}, {vr(t0)}, {vr(t0+1)}")
        A(f"v_bfe_u32 {vr(t0)}, v1, 1, 2")
        for i in range(4):
            A(f"v_cmp_eq_u32 vcc, {i}, {vr(t0)}")
            A(f"v_cndmask_b32 {vr(dst+i)}, 0, {vr(t0+1)}, vcc")
    delta(vM, "0xffff", vT)
    A(f"v_and_b32 {vr(vT)}, 1, v2"); A(f"v_lshlrev_b32 {vr(vT)}, 4, {vr(vT)}")
    A(f"v_lshrrev_b32 {vr(vT+1)}, 1, v2"); A(f"v_lshl_add_u32 {vr(vT)}, {vr(vT+1)}, 10, {vr(vT)}")
    A(f"v_lshl_add_u32 {vr(vT)}, v1, 5, {vr(vT)}")
    A("s_lshl_b32 s35, s33, 11"); A(f"s_add_u32 s35, s35, {L_OP}")
    for dh in range(2):
        A(f"s_xor_b32 s38, s61, {dh << 8}"); A("s_lshl1_add_u32 s38, s38, s35")
        A(f"v_add_u32 {vr(vOPa+dh)}, s38, {vr(vT)}")
    if WE:
        A("s_getreg_b32 s35, hwreg(HW_REG_XCC_ID, 0, 3)"); A(f"s_bitcmp1_b32 {WEM}, s35"); A("s_cselect_b64 vcc, -1, 0")
    nv = [0]; b2done = [False]
    def bitperm(p): return [sum(((n_ >> k) & 1) << p[k] for k in range(len(p))) for n_ in range(1 << len(p))]
    vord = bitperm(ve) if ve else list(range(32))
    if vord[30] & 1 == 0: vord[29], vord[30] = vord[30], vord[29]
    last0 = max(k for k in range(32) if vord[k] & 1 == 0)
    seen_acc = set()
    def more(k):
        for _ in range(k):
            if nv[0] < 32:
                idx = vord[nv[0]]; tl, e = idx >> 3, idx & 7
                ad = vVb
                if idx in vpre: ad = vpre[idx]
                elif idx:
                    ad = vAd + (nv[0] & 1); A(f"v_xor_b32 {vr(ad)}, {gaddr(e & 6, tl) | ((e & 1) << 8)}, {vr(vVb)}")
                throttle()
                A(f"buffer_load_dwordx4 {vr(vVv+4*idx,4)}, {vr(ad)}, s[56:59], s40 offen {pol if vpol is None else vpol}")
                nv[0] += 1
                if nv[0] == 32 - EP:
                    assert b2done[0]
                    A("s_barrier")
    if pa:
        for n_, x in enumerate(kord[8:]):
            kpre[(x >> 3, x & 7)] = vQ + n_; A(f"v_xor_b32 {vr(vQ+n_)}, {X(x & 7, x >> 3)}, {vr(vKb)}")
        for n_ in range(1, pa):
            idx = vord[n_]; vpre[idx] = vQ + 24 + n_; A(f"v_xor_b32 {vr(vQ+24+n_)}, {gaddr(idx & 6, idx >> 3) | ((idx & 1) << 8)}, {vr(vVb)}")
    seq = []; placed = 0
    for n_, (tl, i) in enumerate((x >> 3, x & 7) for x in kord[8:]):
        while placed < vk and placed * 24 <= n_ * vk: seq.append(("v",)); placed += 1
        seq.append(("k", tl, i))
    lastk = len(seq)
    seq += [("v",)] * (32 - placed)
    pos = 0
    def adv(n):
        nonlocal pos
        for _ in range(n):
            it = seq[pos]; pos += 1
            if pos - 1 == vt:
                A.c("touch the V page ahead of its first use (value unused)")
                A("s_mov_b64 exec, 1"); throttle()
                A(f"buffer_load_dword {vr(vS)}, {vr(vVb)}, s[56:59], s40 offen {pol}"); A("s_mov_b64 exec, -1")
            if it[0] == "k": kload(it[1], it[2])
            else: more(1)
    adv(24 + QPOS)
    stamp(6)
    A("s_barrier")
    stamp(7)
    adv(W + QD)
    assert pos - lastk >= W
    stamp(1)
    if prio == 3: A("s_setprio 2")
    A("s_barrier")
    stamp(2)
    for t in range(8):
        A(f"ds_read_b128 {vr(vQ+4*t,4)}, {vr(vQA)} offset:{64*t}")
    for tl in range(4):
        for t in range(8):
            A(f"ds_read_b128 {vr(vKF+4*t,4)}, {vr(vKA+(t&3))} offset:{tl*8192 + (t>>2)*256}")
        for t in range(8):
            A(f"s_waitcnt lgkmcnt({7-t})")
            c = "0" if t == 0 else vr(vS+4*tl, 4)
            A(f"v_mfma_f32_16x16x32_bf16 {vr(vS+4*tl,4)}, {vr(vKF+4*t,4)}, {vr(vQ+4*t,4)}, {c}")
        more(1)
    SC = math.log2(math.e) / 16.0
    A(f"s_mov_b32 s35, {f32(SC)}")
    mx = vT; cp = vT + 1; ls = vT + 2
    A(f"v_max3_f32 {vr(mx)}, {vr(vS)}, {vr(vS+1)}, {vr(vS+2)}")
    for i in range(3, 15, 2):
        A(f"v_max3_f32 {vr(mx)}, {vr(mx)}, {vr(vS+i)}, {vr(vS+i+1)}")
    A(f"v_max_f32 {vr(mx)}, {vr(mx)}, {vr(vS+15)}")
    def xg(x, op):
        for sw in ("v_permlane32_swap_b32", "v_permlane16_swap_b32"):
            A(f"v_mov_b32 {vr(cp)}, {vr(x)}")
            A(f"{sw} {vr(x)}, {vr(cp)}")
            A(f"{op} {vr(x)}, {vr(x)}, {vr(cp)}")
    xg(mx, "v_max_f32")
    A(f"v_mul_f32 {vr(mx)}, s35, {vr(mx)}")
    for i in range(16):
        A(f"v_fma_f32 {vr(vS+i)}, {vr(vS+i)}, s35, -{vr(mx)}")
    for i in range(16):
        A(f"v_exp_f32 {vr(vS+i)}, {vr(vS+i)}")
    A(f"v_add_f32 {vr(ls)}, {vr(vS)}, {vr(vS+1)}")
    for i in range(2, 16):
        A(f"v_add_f32 {vr(ls)}, {vr(ls)}, {vr(vS+i)}")
    xg(ls, "v_add_f32")
    A(f"ds_write2_b32 {vr(vSTw)}, {vr(mx)}, {vr(ls)} offset0:0 offset1:4")
    more(1)
    A("s_waitcnt lgkmcnt(0)")
    A("s_barrier")
    b2done[0] = True
    stamp(3)
    def stats(m4, l4, M, Lr):
        A(f"v_max3_f32 {vr(M)}, {vr(m4)}, {vr(m4+1)}, {vr(m4+2)}"); A(f"v_max_f32 {vr(M)}, {vr(M)}, {vr(m4+3)}")
        for i in range(4): A(f"v_sub_f32 {vr(m4+i)}, {vr(m4+i)}, {vr(M)}")
        for i in range(4): A(f"v_exp_f32 {vr(m4+i)}, {vr(m4+i)}")
        A(f"v_mul_f32 {vr(Lr)}, {vr(m4)}, {vr(l4)}")
        for i in range(1, 4): A(f"v_fmac_f32 {vr(Lr)}, {vr(m4+i)}, {vr(l4+i)}")
    A(f"ds_read_b128 {vr(vAcc,4)}, {vr(vSTr)}")
    A(f"ds_read_b128 {vr(vAcc+4,4)}, {vr(vSTr)} offset:16")
    more(1)
    A("s_waitcnt lgkmcnt(0)")
    stats(vAcc, vAcc + 4, vT + 3, vT + 4)
    A(f"v_sub_f32 {vr(mx)}, {vr(mx)}, {vr(vT+3)}")
    A(f"v_exp_f32 {vr(mx)}, {vr(mx)}")
    A(f"v_rcp_f32 {vr(vT+4)}, {vr(vT+4)}")
    A(f"v_mul_f32 {vr(mx)}, {vr(mx)}, {vr(vT+4)}")
    for i in range(16):
        A(f"v_mul_f32 {vr(vS+i)}, {vr(vS+i)}, {vr(mx)}")
        A(f"v_cvt_pk_bf16_f32 {vr(vS+i)}, {vr(vS+i)}, {vr(vS+i)}")
        for k in range(4):
            A(f"v_and_b32 {vr(vA+4*i+k)}, {vr(vS+i)}, {vr(vM+k)}")
        if i % 8 == 7: more(1)
    stamp(4)
    done = 0
    def pv(k):
        idx = vord[k]
        i, dh = idx >> 1, idx & 1
        c = "0" if dh not in seen_acc else vr(vAcc+4*dh, 4)
        seen_acc.add(dh)
        A(f"v_mfma_f32_16x16x32_bf16 {vr(vAcc+4*dh,4)}, {vr(vA+4*i,4)}, {vr(vVv+4*idx,4)}, {c}")
    while nv[0] < 32:
        more(1)
        lim = min(nv[0] - W, done + 4)
        while done < lim: pv(done); done += 1
    while done < 32:
        if 31 - done < W: A(f"s_waitcnt vmcnt({31-done})")
        pv(done); done += 1
        if done == 31:
            assert last0 <= 29 and vord[31] & 1
            A(f"ds_write_b128 {vr(vOPa)}, {vr(vAcc,4)}")
    if m7:
        A(f"ds_write_b64 {vr(vOPa+1)}, {vr(vAcc+4,2)}"); A(f"ds_write_b64 {vr(vOPa+1)}, {vr(vAcc+6,2)} offset:8")
    else: A(f"ds_write_b128 {vr(vOPa+1)}, {vr(vAcc+4,4)}")
    stamp(5)
    A("s_waitcnt lgkmcnt(0)")
    A("s_barrier")
    if wbs and "E" not in skip:
        A.c("one wave per group stays to write the spent hand-off lines back ahead of the end of the kernel")
        A("s_cmp_eq_u32 s30, 4"); A("s_cselect_b32 s33, s32, -1"); A(f"s_cmp_eq_u32 s33, {wbr}"); A("s_cbranch_scc0 L_send")
        nb = 4 if "b" in bx else 3
        for k in range(nb):
            if k == wbs - 1: A("buffer_wbl2 sc1")
            A("s_barrier")
        A("L_send:")
    dump_stamps(9)
    A("s_endpgm")

    vT = tT
    A("L_prepw:")
    A("s_waitcnt lgkmcnt(0)")
    if b0 == 1: A("s_barrier")
    if cpos == "early": prep_loads()
    if b0 == 2: A("s_barrier")
    A("s_mov_b64 s[52:53], s[10:11]"); A("s_mov_b32 s54, 0x380000"); A("s_mov_b32 s55, 0x20000")
    if xl: A("s_mov_b64 s[56:57], s[4:5]"); A("s_movk_i32 s58, 7168"); A("s_mov_b32 s59, 0x20000")
    nq = [0]
    def wq_loads(n):
        if not n or "q" in skip: return
        A("s_cmp_eq_u32 s30, 0"); A(f"s_cbranch_scc0 L_nq{nq[0]}")
        lab = f"L_nq{nq[0]}:"
        for _ in range(n):
            A(f"s_mov_b32 m0, {L_WQ + 1024*nq[0]}")
            if qpace and nq[0] >= qpace: A(f"s_waitcnt vmcnt({qpace-1})")
            A(f"buffer_load_dwordx4 {vr(vQw)}, s[52:55], s50 offen {qpol} lds")
            A(f"s_add_u32 s50, s50, {qstep}")
            nq[0] += 1
            if xl and nq[0] == xl: xloads()
            if cl and nq[0] == 14: clears()
        A(lab)
    wq_loads(wq1)
    if b0 == 3: A("s_barrier")
    wq_loads(14 - wq1)
    if b0:
        A("s_cmp_eq_u32 s46, 0"); A("s_cbranch_scc1 L_nolead")
        A("s_waitcnt vmcnt(5)" if cpos == "early" else "s_waitcnt vmcnt(0)")
        A("s_atomic_add s46, s[26:27], s63")
        A("L_nolead:")
    def wo_addr():
        A("s_bfe_u32 s34, s32, 0x10001"); A("s_lshl1_add_u32 s33, s31, s34"); A("s_lshl2_add_u32 s33, s33, s30"); A("s_lshl_b32 s33, s33, 6")
        A("s_mul_i32 s33, s33, 896"); A("s_lshr_b32 s34, s32, 2"); A("s_min_u32 s34, s34, 6"); A("s_lshl_b32 s34, s34, 7"); A("s_add_u32 s51, s33, s34")
        if "O" in hack: A("s_mul_i32 s33, s31, 14"); A("s_lshr_b32 s34, s32, 1"); A("s_add_u32 s33, s33, s34"); A("s_lshl2_add_u32 s33, s33, s30"); A("s_lshl_b32 s51, s33, 13")
        A(f"v_lshrrev_b32 {vr(vWa)}, 3, v0"); A(f"v_mul_u32_u24 {vr(vWa)}, 896, {vr(vWa)}")
        A(f"v_and_b32 {vr(vT+4)}, 16, v0"); A(f"v_lshlrev_b32 {vr(vT+4)}, 1, {vr(vT+4)}"); A(f"v_and_b32 {vr(vT+5)}, 0x70, v3"); A(f"v_xor_b32 {vr(vT+4)}, {vr(vT+4)}, {vr(vT+5)}")
        A(f"v_xor_b32 {vr(vT+5)}, 64, {vr(vT+4)}"); A(f"v_add_u32 {vr(vWa+1)}, {vr(vWa)}, {vr(vT+5)}"); A(f"v_add_u32 {vr(vWa)}, {vr(vWa)}, {vr(vT+4)}")
        A(f"v_lshrrev_b32 {vr(vT+4)}, 2, v1"); A(f"v_lshl_add_u32 {vr(vT+4)}, v2, 3, {vr(vT+4)}"); A(f"v_lshlrev_b32 {vr(vT+4)}, 7, {vr(vT+4)}")
        A(f"v_bfe_u32 {vr(vT+5)}, v0, 3, 2"); A(f"v_lshl_add_u32 {vr(vT+4)}, {vr(vT+5)}, 5, {vr(vT+4)}")
        A(f"v_and_b32 {vr(vT+5)}, 3, v0"); A(f"v_lshl_add_u32 {vr(vT+4)}, {vr(vT+5)}, 3, {vr(vT+4)}")
        A("s_lshl_b32 s61, s30, 13"); A(f"v_add_u32 {vr(vWr)}, s61, {vr(vT+4)}")
    def wo_loads(i0, i1, tag):
        if i0 >= i1: return
        A("s_cmp_ge_u32 s32, 28" if "o" not in skip else "s_cmp_ge_u32 s32, 0"); A(f"s_cbranch_scc1 L_nowo{tag}")
        for i in range(i0, i1):
            A(f"s_add_u32 m0, s61, {1024*i}"); A(f"s_add_u32 s33, s51, {8*896*i if 'O' not in hack else 1024*i}")
            A(f"buffer_load_dwordx4 {vr(vWa+(i&1)) if 'O' not in hack else 'v3'}, s[56:59], s33 offen {opol} lds")
        A(f"L_nowo{tag}:")
    def wo_frags(tts=(0, 1)):
        for nt in range(4):
            for tt in tts:
                for hh in range(2):
                    A(f"ds_read_b64_tr_b16 {vr(vW+16*tt+4*nt+2*hh,2)}, {vr(vWr if nt == 0 else vRaw+nt)} offset:{4096*tt + 512*hh}")
    A.c("tail constants")
    A("s_mov_b32 s49, 0")
    wo_addr()
    if tl_:
        A.c("one scalar read per page that is first used later (V, wo, out): the translation is ready by then; values unused")
        A(f"s_cmp_eq_u32 s30, {tlw}"); A("s_cbranch_scc0 L_notl")
        if tl_ & 1:
            A("s_lshr_b32 s33, s2, 5"); A("s_lshl3_add_u32 s33, s33, s31"); A("s_lshl2_add_u32 s33, s33, 3"); A("s_lshl_b32 s33, s33, 12"); A("s_add_u32 s33, s33, s32"); A("s_lshl_b32 s33, s33, 7")
            A("s_load_dword s46, s[8:9], s33")
        if tl_ & 2:
            A("s_load_dword s47, s[12:13], s51")
        if tl_ & 4:
            A("s_mul_i32 s34, s31, 896")
            A("s_load_dword s48, s[24:25], s34")
        A("L_notl:")
    A(f"s_xor_b32 s34, s32, {qx}"); A("s_and_b32 s35, s34, 3"); A("s_lshr_b32 s34, s34, 2"); A("s_lshl3_add_u32 s34, s35, s34"); A("s_lshl_b32 s34, s34, 7")
    A("s_lshl_b32 s39, s31, 15"); A("s_add_u32 s34, s34, s39")
    A(f"v_and_b32 {vr(vQa)}, 7, v1"); A(f"v_lshlrev_b32 {vr(vQa)}, 12, {vr(vQa)}"); A(f"v_lshl_add_u32 {vr(vQa)}, v2, 4, {vr(vQa)}"); A(f"v_add_u32 {vr(vQa)}, s34, {vr(vQa)}")
    def publish_q():
        A("s_getreg_b32 s47, hwreg(HW_REG_XCC_ID, 0, 4)")
        A("s_mul_i32 s47, s47, 0x1111"); A("s_bitset1_b32 s47, 18")
        if force_slow: A("s_cmp_eq_u32 s32, 5"); A("s_cselect_b32 s47, 0, s47")
        A("s_waitcnt lgkmcnt(0)")
        A("s_cmp_eq_u32 s46, s47")
        A("s_cbranch_scc0 L_f1slow")
        A("L_same:")
        A("s_mov_b32 s41, s46")
        A.c("the slots were cleared in this XCD's L2: publish there")
        A("s_mov_b32 exec_lo, 0x00ff00ff"); A("s_mov_b32 exec_hi, 0x00ff00ff")
        for k in range(2): A(f"global_store_dwordx4 {vr(vQa)}, {vr(vQs+4*k,4)}, s[28:29] offset:{64*k}")
        A("s_mov_b64 exec, -1")
        stamp(3)
        A("L_nopub:")
        def ool():
            A("L_f1slow:")
            if cnt: A("s_mov_b32 s90, 1")
            A(f"v_mov_b32 {vr(vT+20)}, s63")
            A("s_mov_b32 s35, 0")
            A("L_f1l:")
            A("s_cmp_ge_u32 s46, 0x40000")
            A("s_cbranch_scc1 L_f1d")
            A(f"global_load_dword {vr(vT+21)}, {vr(vT+20)}, s[26:27] sc1")
            A("s_add_u32 s35, s35, 1")
            A("s_waitcnt vmcnt(0)")
            A(f"v_readfirstlane_b32 s46, {vr(vT+21)}")
            A(f"s_cmp_lt_u32 s35, {SPIN}")
            A("s_cbranch_scc1 L_f1l")
            A("L_f1d:")
            A("s_cmp_eq_u32 s46, s47")
            A("s_cbranch_scc1 L_same")
            A.c("cleared on another XCD: tell the group, publish nothing here")
            A("s_mov_b32 s41, s46"); A("s_add_u32 s46, s63, 32"); A("s_mov_b32 s47, 1")
            A("s_atomic_add s47, s[26:27], s46 glc")
            A("s_waitcnt lgkmcnt(0)")
            A("s_mov_b32 s49, 1")
            A("s_branch L_nopub")
        OOL.append(ool)
    brow("s33", "s31"); A("s_mul_i32 s34, s30, 224"); A("s_add_u32 s33, s33, s34"); A(f"s_add_u32 s33, s33, {W_B}")
    A(f"v_min_u32 {vr(vT+4)}, 13, v1")
    A(f"v_mul_u32_u24 {vr(vBa)}, 3584, v2"); A(f"v_lshl_add_u32 {vr(vBa)}, {vr(vT+4)}, 4, {vr(vBa)}"); A(f"v_add_u32 {vr(vBa)}, s33, {vr(vBa)}")
    A(f"v_lshrrev_b32 {vr(vT+5)}, 1, v2"); A(f"v_mul_u32_u24 {vr(vT+5)}, {BH - 7168}, {vr(vT+5)}"); A(f"v_add_u32 {vr(vBa)}, {vr(vBa)}, {vr(vT+5)}")
    A("s_mul_i32 s34, s30, 448"); A(f"s_add_u32 s34, s34, {L_H}")
    A(f"v_and_b32 {vr(vT+5)}, 1, v2"); A(f"v_lshlrev_b32 {vr(vHw)}, 5, v1"); A(f"v_lshl_add_u32 {vr(vHw)}, {vr(vT+5)}, 4, {vr(vHw)}"); A(f"v_add_u32 {vr(vHw)}, s34, {vr(vHw)}")
    A(f"v_mov_b32 {vr(vT+5)}, {L_H + 1792}"); A("v_cmp_gt_u32 s[42:43], 14, v1")
    A(f"v_cndmask_b32 {vr(vHw)}, {vr(vT+5)}, {vr(vHw)}, s[42:43]")
    A(f"v_lshrrev_b32 {vr(vT+6)}, 5, v0")
    A("s_lshl_b32 s34, s30, 3"); A(f"s_add_u32 s34, s34, {L_HS}")
    A(f"v_lshlrev_b32 {vr(vHsw)}, 2, {vr(vT+6)}"); A(f"v_add_u32 {vr(vHsw)}, s34, {vr(vHsw)}")
    A(f"v_cvt_f32_u32 {vr(vKs)}, {vr(vT+6)}"); A(f"v_sub_f32 {vr(vKs+1)}, 1.0, {vr(vKs)}")
    for i in range(2): A(f"v_mul_f32 {vr(vKs+i)}, {f32(1.0/448)}, {vr(vKs+i)}")
    delta(vDl, "0x3f80", vT + 8)
    A("s_mul_i32 s33, s32, 56"); A(f"s_add_u32 s33, s33, {L_H}")
    ii = vT + 8; hf = vT + 9; col = vT + 10
    A(f"v_bfe_u32 {vr(ii)}, v0, 3, 1"); A(f"v_and_b32 {vr(hf)}, 3, v0"); A(f"v_lshl_add_u32 {vr(ii)}, {vr(ii)}, 2, {vr(hf)}")
    A(f"v_bfe_u32 {vr(hf)}, v0, 2, 1")
    A(f"v_min_u32 {vr(col)}, 6, {vr(ii)}"); A(f"v_mad_u32_u24 {vr(col)}, {vr(hf)}, 7, {vr(col)}")
    A(f"v_lshlrev_b32 {vr(vHa)}, 2, {vr(col)}"); A(f"v_add_u32 {vr(vHa)}, s33, {vr(vHa)}")
    A(f"v_cmp_eq_u32 vcc, 7, {vr(ii)}"); A(f"v_cndmask_b32 {vr(vT+11)}, v2, 3, vcc")
    if m1:
        for k, cls in ((0, 2), (2, 0), (3, 1)):
            A(f"v_cmp_eq_u32 vcc, {cls}, {vr(vT+11)}"); A(f"v_cndmask_b32 {vr(vK1+k)}, 0, 1.0, vcc")
    else:
        A(f"v_mov_b32 {vr(vT+12)}, 0x3f803f80")
        A(f"v_cmp_eq_u32 vcc, 2, {vr(vT+11)}"); A(f"v_cndmask_b32 {vr(vK1)}, 0, 1.0, vcc")
        A(f"v_cmp_eq_u32 vcc, 0, {vr(vT+11)}"); A(f"v_cndmask_b32 {vr(vK1+1)}, 0, 1.0, vcc")
        A(f"v_cndmask_b32 {vr(vK1+3)}, 0, {vr(vT+12)}, vcc")
        A(f"v_cmp_eq_u32 vcc, 1, {vr(vT+11)}"); A(f"v_cndmask_b32 {vr(vK1+2)}, 0, 1.0, vcc")
        A(f"v_cndmask_b32 {vr(vK1+4)}, 0, {vr(vT+12)}, vcc")
    A(f"v_min_u32 {vr(col)}, 6, v0"); A(f"v_lshlrev_b32 {vr(vHf)}, 3, {vr(col)}"); A(f"v_add_u32 {vr(vHf)}, s33, {vr(vHf)}")
    A("s_mul_i32 s33, s31, 896"); A("s_mul_i32 s34, s32, 28"); A("s_add_u32 s33, s33, s34")
    A(f"v_lshlrev_b32 {vr(vOut)}, 2, {vr(col)}"); A(f"v_add_u32 {vr(vOut)}, s33, {vr(vOut)}")
    A(f"v_bfe_u32 {vr(ii)}, v0, 2, 1"); A(f"v_bfe_u32 {vr(hf)}, v0, 3, 1"); A(f"v_lshl_add_u32 {vr(ii)}, {vr(ii)}, 1, {vr(hf)}")
    A(f"v_bfe_u32 {vr(hf)}, v0, 4, 1"); A(f"v_lshl_add_u32 {vr(ii)}, {vr(hf)}, 2, {vr(ii)}")
    A(f"v_mad_u32_u24 {vr(hf)}, {vr(vT+6)}, 7, {vr(ii)}")
    A(f"v_cmp_eq_u32 vcc, 7, {vr(ii)}"); A(f"v_cndmask_b32 {vr(hf)}, {vr(hf)}, 15, vcc")
    A("s_lshl_b32 s34, s30, 6"); A(f"s_add_u32 s34, s34, {L_Y}")
    A(f"v_lshlrev_b32 {vr(vYa)}, 2, {vr(hf)}"); A(f"v_add_u32 {vr(vYa)}, s34, {vr(vYa)}")
    A("s_lshl_b32 s33, s31, 8"); A(f"s_add_u32 s33, s33, {W_L}"); A("s_and_b32 s34, s32, 3"); A("s_lshl_b32 s34, s34, 6"); A("s_add_u32 s34, s34, s33")
    A(f"v_lshlrev_b32 {vr(vLa)}, 4, v2"); A(f"v_add_u32 {vr(vLa)}, s34, {vr(vLa)}")
    A("s_lshl2_add_u32 s34, s32, s33")
    A(f"v_lshlrev_b32 {vr(vLst)}, 7, v0"); A(f"v_add_u32 {vr(vLst)}, s34, {vr(vLst)}")
    A(f"s_add_u32 s33, s39, {W_O}")
    A("s_and_b32 s35, s32, 1"); A("s_bfe_u32 s36, s32, 0x10001")
    A("s_lshl1_add_u32 s34, s35, s36"); A("s_lshl2_add_u32 s34, s34, s30"); A("s_lshl_b32 s34, s34, 11"); A("s_add_u32 s34, s34, s33")
    A(f"v_add_u32 {vr(vOa)}, s34, v3")
    A("s_lshl2_add_u32 s60, s35, s30")
    A("s_lshl1_add_u32 s34, s31, s36"); A("s_mul_i32 s34, s34, 896"); brow("s36", "s60"); A("s_add_u32 s34, s34, s36")
    A("s_cmp_ge_u32 s31, 4"); A(f"s_cselect_b32 s36, {BH - 7168}, 0"); A("s_add_u32 s34, s34, s36")
    A("s_lshr_b32 s36, s32, 2"); A("s_min_u32 s36, s36, 6"); A("s_lshl_b32 s36, s36, 7")
    A("s_add_u32 s34, s34, s36"); A(f"s_add_u32 s34, s34, {W_B}")
    if m4: A(f"v_and_b32 {vr(vBst)}, 31, v0"); A(f"v_lshlrev_b32 {vr(vBst)}, 2, {vr(vBst)}")
    else: A(f"v_lshlrev_b32 {vr(vBst)}, 3, v1")
    A(f"v_add_u32 {vr(vBst)}, s34, {vr(vBst)}")
    A("s_lshr_b32 s34, s32, 4"); A("s_lshl2_add_u32 s34, s34, s30"); A("s_lshl_b32 s34, s34, 12"); A("s_add_u32 s34, s34, s33")
    A("s_and_b32 s36, s32, 15"); A("s_lshl4_add_u32 s34, s36, s34")
    A(f"v_lshrrev_b32 {vr(vOst)}, 2, v0"); A(f"v_lshlrev_b32 {vr(vOst)}, 8, {vr(vOst)}"); A(f"v_and_b32 {vr(vT+4)}, 3, v0")
    A(f"v_lshl_add_u32 {vr(vOst)}, {vr(vT+4)}, 2, {vr(vOst)}"); A(f"v_add_u32 {vr(vOst)}, s34, {vr(vOst)}")
    A("s_lshl_b32 s34, s30, 8"); A(f"s_add_u32 s34, s34, {L_PP}")
    if m4: A(f"v_and_b32 {vr(vPPr)}, 31, v0"); A(f"v_lshlrev_b32 {vr(vPPr)}, 3, {vr(vPPr)}")
    else: A(f"v_lshlrev_b32 {vr(vPPr)}, 4, v1")
    A(f"v_add_u32 {vr(vPPr)}, s34, {vr(vPPr)}")
    A("s_lshl_b32 s34, s30, 9"); A(f"s_add_u32 s34, s34, {L_OP}")
    A(f"v_lshlrev_b32 {vr(vOPr)}, 3, v0"); A(f"v_add_u32 {vr(vOPr)}, s34, {vr(vOPr)}")
    A("s_lshl_b32 s34, s30, 10"); A(f"s_add_u32 s34, s34, {L_PP}")
    A(f"v_lshlrev_b32 {vr(vPPa)}, 2, v1"); A(f"v_lshl_add_u32 {vr(vPPa)}, v2, 8, {vr(vPPa)}"); A(f"v_add_u32 {vr(vPPa)}, s34, {vr(vPPa)}")
    for i in range(4): A(f"v_mov_b32 {vr(vG+i)}, 0")
    A(f"s_mov_b32 s37, {f32(1.0/64)}")
    A("s_mov_b32 s38, 0xffff0000")
    def qproj():
        A("s_cmp_eq_u32 s30, 0"); A("s_cbranch_scc0 L_nopub")
        A.c("T0: q projection, 64 columns x a quarter of the rows, all 8 batches; LayerNorm applied after the product")
        A("s_mov_b32 s34, 0x3f803f80")
        for i in range(56): A(f"v_mov_b32 {vr(vX+i)}, s34")
        A(f"v_and_b32 {vr(tT+1)}, 7, v1"); A(f"v_mul_u32_u24 {vr(tT+1)}, 896, {vr(tT+1)}"); A(f"v_add_u32 {vr(tT+1)}, {L_X}, {vr(tT+1)}")
        A(f"v_lshl_add_u32 {vr(tT)}, v2, 4, {vr(tT+1)}")
        A("s_mul_i32 s33, s48, 224"); A(f"v_lshl_add_u32 {vr(tT+1)}, v2, 3, {vr(tT+1)}"); A(f"v_add_u32 {vr(tT+1)}, s33, {vr(tT+1)}")
        A(f"v_lshrrev_b32 {vr(tT+2)}, 2, v0"); A(f"v_lshlrev_b32 {vr(tT+2)}, 7, {vr(tT+2)}"); A(f"v_and_or_b32 {vr(tT+2)}, v3, 48, {vr(tT+2)}")
        A(f"v_add_u32 {vr(tT+2)}, {L_WQ}, {vr(tT+2)}")
        A(f"v_bfe_u32 {vr(tT+3)}, v1, 2, 1"); A(f"v_lshl_add_u32 {vr(tT+3)}, {vr(tT+3)}, 4, v1"); A(f"v_lshlrev_b32 {vr(tT+3)}, 2, {vr(tT+3)}")
        A(f"v_lshlrev_b32 {vr(tT+4)}, 2, v1"); A(f"v_add_u32 {vr(tT+4)}, 128, {vr(tT+4)}")
        A(f"v_and_b32 {vr(tT+5)}, 3, v1")
        sm = ('', 's[6:7]', 's[8:9]', 's[14:15]')
        for i in range(1, 4): A(f"v_cmp_eq_u32 {sm[i]}, {i}, {vr(tT+5)}")
        D1 = vX + 16; D2 = tT + 8; wf = vW
        A("s_mov_b32 exec_lo, 0x00ff00ff"); A("s_mov_b32 exec_hi, 0x00ff00ff")
        A(f"s_waitcnt vmcnt({14 - xl + (2 if cl else 0)})")
        for t in range(14): A(f"ds_read_b128 {vr(vX+4*t,4)}, {vr(tT)} offset:{64*t}")
        A("s_mov_b64 exec, -1")
        for t in range(14):
            A(f"s_waitcnt lgkmcnt({13-t})")
            c = "0" if t == 0 else vr(D2, 4)
            A(f"v_mfma_f32_16x16x32_bf16 {vr(D2,4)}, {vr(vX+4*t,4)}, {vr(vX+4*t,4)}, {c}")
        for i in range(1, 4): A(f"v_cndmask_b32 {vr(D2)}, {vr(D2)}, {vr(D2+i)}, {sm[i]}")
        A(f"ds_bpermute_b32 {vr(tT+6)}, {vr(tT+3)}, {vr(D2)}")
        A(f"ds_bpermute_b32 {vr(tT+7)}, {vr(tT+4)}, {vr(D2)}")
        A("s_mov_b32 exec_lo, 0x00ff00ff"); A("s_mov_b32 exec_hi, 0x00ff00ff")
        for t in range(7): A(f"ds_read_b64 {vr(vX+2*t,2)}, {vr(tT+1)} offset:{32*t}")
        A("s_mov_b64 exec, -1")
        A(f"s_mov_b32 s33, {f32(1.0/448)}")
        A("s_waitcnt lgkmcnt(0)")
        A(f"v_mul_f32 {vr(tT+7)}, s33, {vr(tT+7)}")
        A(f"v_mul_f32 {vr(tT+6)}, s33, {vr(tT+6)}")
        A(f"v_fma_f32 {vr(tT+6)}, -{vr(tT+7)}, {vr(tT+7)}, {vr(tT+6)}")
        A(f"v_max_f32 {vr(tT+6)}, 0, {vr(tT+6)}")
        A(f"v_add_f32 {vr(tT+6)}, {f32(1e-5)}, {vr(tT+6)}")
        A(f"v_rsq_f32 {vr(tT+6)}, {vr(tT+6)}")
        A("s_waitcnt vmcnt(0)")
        if lk == 0: A("s_load_dword s46, s[26:27], s63")
        stamp(1)
        for np_ in range(2):
            for t in range(7):
                for e in range(2):
                    A(f"ds_read_b64_tr_b16 {vr(wf+4*t+2*e,2)}, {vr(tT+2)} offset:{2048*t + 64*np_ + 8*e}")
            for t in range(7):
                A(f"s_waitcnt lgkmcnt({12-2*t})")
                for e in range(2):
                    D = D1 + 8*np_ + 4*e
                    c = "0" if t == 0 else vr(D, 4)
                    A(f"v_mfma_f32_16x16x16_bf16 {vr(D,4)}, {vr(wf+4*t+2*e,2)}, {vr(vX+2*t,2)}, {c}")
        if lk == 1: A("s_load_dword s46, s[26:27], s63")
        for i0 in (0, 8):
            for i in range(8):
                A(f"v_mul_f32_dpp {vr(D2+i)}, {vr(D1+i0+i)}, {vr(tT+7)} row_newbcast:8 row_mask:0xf bank_mask:0xf")
            for i in range(8):
                A(f"v_sub_f32 {vr(D2+i)}, {vr(D1+i0+i)}, {vr(D2+i)}")
                A(f"v_mul_f32 {vr(D2+i)}, {vr(D2+i)}, {vr(tT+6)}")
            for i in range(4):
                A(f"v_cvt_pk_bf16_f32 {vr(vQs+i0//2+i)}, {vr(D2+2*i)}, {vr(D2+2*i+1)}")
                A(f"v_min_u32 {vr(vQs+i0//2+i)}, -2, {vr(vQs+i0//2+i)}")
        publish_q()
    def conv():
        if c1_:
            for k in range(3):
                for i in range(4): A(f"v_mov_b32 {vr(raw+8*k+4+((i+3)&3))}, {vr(raw+8*k+i)}")
                for i in range(4): A(f"v_permlane32_swap_b32 {vr(raw+8*k+i)}, {vr(raw+8*k+4+((i+3)&3))}")
        for i in (2, 3): A(f"v_cndmask_b32 {vr(vXr+i)}, 0, {vr(vXr+i)}, s[42:43]")
        A(f"v_lshlrev_b32 {vr(vXr)}, 16, {vr(vXr+2)}"); A(f"v_and_b32 {vr(vXr+1)}, s38, {vr(vXr+2)}")
        A(f"v_lshlrev_b32 {vr(vXr+2)}, 16, {vr(vXr+3)}"); A(f"v_and_b32 {vr(vXr+3)}, s38, {vr(vXr+3)}")
        A(f"v_lshlrev_b32 {vr(vB2)}, 16, {vr(vB2)}")
        if eps:
            A(f"s_cmp_lt_u32 s2, {eps[1]}"); A(f"s_cselect_b32 s33, {f32(eps[0])}, 0"); A(f"v_add_f32 {vr(vB2)}, s33, {vr(vB2)}")
    w, b, u, bb, c0, c1, c2, c3, ca, cc, hi = (vT + 1 + i for i in range(11))
    def tiles(t0, t1):
        if t0 >= t1: return
        A.c("gelu argument as a cubic in hn, and n = (w1*hn + b1)*w2, as split-bf16 MFMA operands")
        A(f"s_mov_b32 s33, {f32(BETA)}"); A(f"s_mov_b32 s34, {f32(3*BETA)}"); A(f"v_mov_b32 {vr(vT)}, {f32(ALPHA)}")
        A("v_cmp_lt_u32 vcc, 31, v0")
        for tile in range(t0, t1):
            for k, d in enumerate((w, b, u)):
                src = raw + 8*k + (tile >> 1)
                if tile & 1: A(f"v_and_b32 {vr(d)}, s38, {vr(src)}")
                else: A(f"v_lshlrev_b32 {vr(d)}, 16, {vr(src)}")
            A(f"v_mul_f32 {vr(bb)}, {vr(b)}, {vr(b)}")
            A(f"v_fma_f32 {vr(c0)}, {vr(bb)}, s33, {vr(vT)}"); A(f"v_mul_f32 {vr(c0)}, {vr(c0)}, {vr(b)}")
            A(f"v_fma_f32 {vr(c1)}, {vr(bb)}, s34, {vr(vT)}"); A(f"v_mul_f32 {vr(c1)}, {vr(c1)}, {vr(w)}")
            A(f"v_mul_f32 {vr(bb)}, {vr(w)}, {vr(w)}")
            A(f"v_mul_f32 {vr(c2)}, s34, {vr(bb)}"); A(f"v_mul_f32 {vr(c2)}, {vr(c2)}, {vr(b)}")
            A(f"v_mul_f32 {vr(c3)}, s33, {vr(bb)}"); A(f"v_mul_f32 {vr(c3)}, {vr(c3)}, {vr(w)}")
            A(f"v_mul_f32 {vr(ca)}, {vr(w)}, {vr(u)}"); A(f"v_mul_f32 {vr(cc)}, {vr(b)}, {vr(u)}")
            for k, cx in enumerate((c0, c1, c2, c3)): A(f"v_add_f32 {vr(vG+k)}, |{vr(cx)}|, {vr(vG+k)}")
            A(f"v_fma_f32 {vr(vG)}, |{vr(cc)}|, s37, {vr(vG)}"); A(f"v_fma_f32 {vr(vG+1)}, |{vr(ca)}|, s37, {vr(vG+1)}")
            for k, (lo_, hi_) in enumerate(((c1, c2), (c0, c2), (ca, c3), (cc, c3))):
                A(f"v_cndmask_b32 {vr(lo_)}, {vr(lo_)}, {vr(hi_)}, vcc")
                A(f"v_cvt_pk_bf16_f32 {vr(hi)}, {vr(lo_)}, {vr(lo_)}")
                A(f"v_and_b32 {vr(hi)}, s38, {vr(hi)}")
                A(f"v_sub_f32 {vr(lo_)}, {vr(lo_)}, {vr(hi)}")
                A(f"v_cvt_pk_bf16_f32 {vr(vC+4*tile+k)}, {vr(hi)}, {vr(lo_)}")
    def guard():
        A.c("largest |hn| for which the fused gelu path can neither overflow nor lose precision")
        A("s_mov_b32 s3, -1.0"); A(f"s_mov_b32 s34, {f32(100.0)}")
        for H in (3.0, 4.5, 6.0, 8.0, 12.0, 22.0):
            A(f"s_mov_b32 s33, {f32(H)}")
            A(f"v_fma_f32 {vr(vT+1)}, {vr(vG+3)}, s33, {vr(vG+2)}"); A(f"v_fma_f32 {vr(vT+1)}, {vr(vT+1)}, s33, {vr(vG+1)}")
            A(f"v_fma_f32 {vr(vT+1)}, {vr(vT+1)}, s33, {vr(vG)}")
            A(f"v_cmp_nge_f32 vcc, s34, {vr(vT+1)}")
            A("s_cmp_eq_u64 vcc, 0"); A("s_cselect_b32 s3, s33, s3")
        if force_fb: A("s_mov_b32 s3, -1.0")
    if cpos == "early":
        A("s_cmp_eq_u32 s30, 0"); A("s_cbranch_scc1 L_pw"); A("s_waitcnt vmcnt(0)"); A("L_pw:")
        A("s_waitcnt vmcnt(14)")
        conv(); tiles(0, QT); qproj(); tiles(QT, 14); guard()
    else:
        qproj()
    A("s_lshr_b32 s33, s32, 2"); A("s_lshl_b32 s33, s33, 12"); A("s_add_u32 s33, s33, s39")
    A(f"v_add_u32 {vr(vT)}, s33, v3"); A(f"v_add_u32 {vr(vT+1)}, {L_Q}, v3")
    A(f"v_and_b32 {vr(vT+20)}, 7, v0"); A(f"v_lshlrev_b32 {vr(vT+20)}, 2, {vr(vT+20)}"); A(f"v_mov_b32 {vr(vT+19)}, {L_STAT + 64}")
    stamp(4)
    if cpos == "pre1": prep_loads()
    A("s_barrier")
    if cpos == "mid": prep_loads()
    A("s_mov_b32 s35, 0")
    A("s_cmp_eq_u32 s30, 0")
    A("s_cbranch_scc0 L_b1b")
    A.c("T0: gather the four q partials, add, hand to the stream waves")
    qa = vX
    def qload():
        for k in range(4): A(f"global_load_dwordx4 {vr(qa+4*k,4)}, {vr(vT)}, s[28:29] offset:{1024*k} sc1")
        A("s_waitcnt vmcnt(0)")
    A("s_cmp_eq_u32 s49, 0"); A("s_cbranch_scc0 L_glob")
    A("L_qpoll:")
    qload()
    A(f"v_max3_u32 {vr(vT+2)}, {vr(qa)}, {vr(qa+1)}, {vr(qa+2)}")
    for i in range(3, 15, 2): A(f"v_max3_u32 {vr(vT+2)}, {vr(vT+2)}, {vr(qa+i)}, {vr(qa+i+1)}")
    A(f"v_max_u32 {vr(vT+2)}, {vr(vT+2)}, {vr(qa+15)}")
    A(f"v_cmp_eq_u32 vcc, -1, {vr(vT+2)}")
    A("s_cbranch_vccnz L_qretry")
    def ool_q():
        A("L_qretry:")
        if cnt: A("s_mov_b32 s91, 1")
        A("s_add_u32 s35, s35, 1")
        A(f"s_cmp_ge_u32 s35, {SPIN}")
        A("s_cbranch_scc1 L_qdone")
        A("s_bitcmp1_b32 s35, 0"); A("s_cbranch_scc1 L_qpoll")
        A(f"v_mov_b32 {vr(vT+12)}, s63")
        A(f"global_load_dword {vr(vT+13)}, {vr(vT+12)}, s[26:27] offset:32 sc1")
        A("s_waitcnt vmcnt(0)")
        A(f"v_readfirstlane_b32 s46, {vr(vT+13)}")
        A("s_cmp_eq_u32 s46, 0")
        A("s_cbranch_scc1 L_qpoll")
        A("L_glob:")
        A.c("group spread over several XCDs: write-through hand-off in the second copy, ordered by a counter")
        A("s_mov_b32 s49, 1")
        for i in range(4): A(f"v_mov_b32 {vr(qa+i)}, -1")
        A("s_lshl_b32 s33, s32, 10"); A("s_add_u32 s33, s33, s39"); A(f"s_add_u32 s33, s33, {W_O + W_ALT}")
        A(f"v_add_u32 {vr(vT+12)}, s33, v3"); A(f"v_add_u32 {vr(vT+13)}, {W_ALT}, {vr(vLst)}"); A(f"v_add_u32 {vr(vT+14)}, {W_ALT}, {vr(vQa)}")
        A(f"v_add_u32 {vr(vT)}, {W_ALT}, {vr(vT)}"); A(f"v_mov_b32 {vr(vT+15)}, s63")
        A(f"global_store_dwordx4 {vr(vT+12)}, {vr(qa,4)}, s[28:29] sc1")
        A("s_bfe_u32 s33, s41, 0x10002")
        if bph: A("s_xor_b32 s33, s33, 1")
        A("s_lshl_b32 s33, s33, 13"); A("s_add_u32 s33, s33, s40"); A(f"v_add_u32 {vr(vT+12)}, s33, v3")
        A("s_mov_b32 exec_hi, 0")
        A(f"global_store_dwordx4 {vr(vT+12)}, {vr(qa,4)}, s[28:29] sc1")
        A("s_mov_b64 exec, 3")
        A(f"global_store_dword {vr(vT+13)}, {vr(qa)}, s[28:29] sc1")
        A("s_mov_b32 exec_lo, 0x00ff00ff"); A("s_mov_b32 exec_hi, 0x00ff00ff")
        for k in range(2): A(f"global_store_dwordx4 {vr(vT+14)}, {vr(vQs+4*k,4)}, s[28:29] offset:{64*k} sc1")
        A("s_mov_b64 exec, -1")
        A("s_add_u32 s46, s63, 64"); A("s_mov_b32 s47, 1"); A("s_mov_b32 s35, 0")
        A("s_waitcnt vmcnt(0)")
        A("s_atomic_add s47, s[26:27], s46")
        A("L_gl:")
        A(f"global_load_dword {vr(vT+13)}, {vr(vT+15)}, s[26:27] offset:64 sc1")
        A("s_add_u32 s35, s35, 1")
        A("s_waitcnt vmcnt(0) lgkmcnt(0)")
        A(f"v_readfirstlane_b32 s46, {vr(vT+13)}")
        A(f"s_cmp_ge_u32 s35, {SPIN}"); A("s_cselect_b32 s46, 32, s46")
        A("s_cmp_lt_u32 s46, 32")
        A("s_cbranch_scc1 L_gl")
        qload()
        A("s_branch L_qdone")
    OOL.append(ool_q)
    A("L_qdone:")
    stamp(14)
    for k in range(4):
        for p in range(4):
            A(f"v_lshlrev_b32 {vr(vT+4+2*p)}, 16, {vr(qa+4*p+k)}"); A(f"v_and_b32 {vr(vT+5+2*p)}, s38, {vr(qa+4*p+k)}")
        A(f"v_pk_add_f32 {vr(vT+4,2)}, {vr(vT+4,2)}, {vr(vT+6,2)}"); A(f"v_pk_add_f32 {vr(vT+8,2)}, {vr(vT+8,2)}, {vr(vT+10,2)}")
        A(f"v_pk_add_f32 {vr(vT+4,2)}, {vr(vT+4,2)}, {vr(vT+8,2)}")
        A(f"v_cvt_pk_bf16_f32 {vr(qa+k)}, {vr(vT+4)}, {vr(vT+5)}")
    A(f"ds_write_b128 {vr(vT+1)}, {vr(qa,4)}")
    A(f"v_mov_b32 {vr(vT+2)}, s49")
    A(f"ds_write_b32 {vr(vT+19)}, {vr(vT+2)}")
    A("s_cmp_eq_u32 s32, 0"); A("s_cbranch_scc0 L_nof2")
    A.c("every member of this group has cleared its share of the out-projection slots")
    A("s_mov_b32 s33, 0x100000")
    A("s_waitcnt lgkmcnt(0)")
    A("s_barrier")
    A("s_atomic_add s33, s[26:27], s63")
    A("s_branch L_b1c")
    A("L_nof2:")
    A("s_waitcnt lgkmcnt(0)")
    A("L_b1b:")
    A("s_barrier")
    A("L_b1c:")
    A(f"ds_read_b32 {vr(vT+21)}, {vr(vT+19)}")
    if cpos == "b1b": A("s_waitcnt vmcnt(0) lgkmcnt(0)"); prep_loads()
    elif cpos != "early": A("s_waitcnt vmcnt(0) lgkmcnt(0)")
    if touch: A(f"global_load_dword {vr(vT+22)}, {vr(vOut)}, s[24:25]")
    if cpos not in ("early", "b1b"): conv(); tiles(0, N1)
    A(f"v_and_b32 {vr(vT)}, 1, v0"); A(f"v_lshlrev_b32 {vr(vT)}, 5, {vr(vT)}"); A(f"v_add_u32 {vr(vT)}, {L_STAT}, {vr(vT)}")
    A("s_barrier")
    A(f"ds_read_b128 {vr(vT+4,4)}, {vr(vT)}")
    A(f"ds_read_b128 {vr(vT+8,4)}, {vr(vT)} offset:16")
    A("s_waitcnt lgkmcnt(0)")
    stats(vT + 4, vT + 8, vT + 1, vT + 2)
    A(f"v_log_f32 {vr(vT+2)}, {vr(vT+2)}")
    A(f"v_add_f32 {vr(vLse)}, {vr(vT+1)}, {vr(vT+2)}")
    A(f"v_min_u32 {vr(vLse)}, -2, {vr(vLse)}")
    A(f"v_readfirstlane_b32 s62, {vr(vT+21)}")
    A("s_lshl_b32 s33, s62, 20")
    for r_ in (vLa, vLst, vOa, vOst): A(f"v_add_u32 {vr(r_)}, s33, {vr(r_)}")
    A("s_cmp_eq_u32 s30, 1"); A("s_cbranch_scc0 L_nolse")
    A("s_mov_b64 exec, 3")
    A("s_cmp_eq_u32 s62, 0"); A("s_cbranch_scc0 L_slowlse")
    A(f"global_store_dword {vr(vLst)}, {vr(vLse)}, s[28:29]")
    A("L_lsed:")
    A("s_mov_b64 exec, -1")
    A("L_nolse:")
    if wbm:
        A("s_cmp_eq_u32 s30, 2"); A("s_cselect_b32 s33, s32, 0"); A("s_cmp_eq_u32 s33, 31"); A("s_cbranch_scc0 L_nowbm"); A("buffer_wbl2 sc1"); A("L_nowbm:")
    def ool_lse():
        A("L_slowlse:")
        A(f"global_store_dword {vr(vLst)}, {vr(vLse)}, s[28:29] sc1")
        A("s_branch L_lsed")
    OOL.append(ool_lse)
    if inst:
        A.c("bring this workgroup's share of the cleared hand-off lines into L2 ahead of the polls (values unused)")
        A("s_cmp_lt_u32 s30, 2"); A("s_cbranch_scc1 L_noinst")
        A("s_lshl_b32 s33, s32, 10"); A("s_add_u32 s33, s33, s39"); A(f"s_add_u32 s33, s33, {W_O}")
        A("s_mul_i32 s34, s31, 14336"); A("s_min_u32 s35, s32, 27"); A("s_lshl_b32 s35, s35, 9"); A("s_add_u32 s34, s34, s35"); A(f"s_add_u32 s34, s34, {W_B}")
        A("s_cmp_eq_u32 s30, 2")
        if inst == 1: A("s_cbranch_scc0 L_noinst")
        if inst == 2: A("s_cbranch_scc1 L_noinst")
        A("s_cselect_b32 s33, s34, s33")
        A(f"v_add_u32 {vr(vT+12)}, s33, v3")
        A("s_cselect_b32 exec_hi, 0, -1")
        A(f"global_load_dwordx4 {vr(vT+16,4)}, {vr(vT+12)}, s[28:29] sc1")
        A("s_mov_b64 exec, -1")
        A("L_noinst:")
    A("s_mov_b64 s[56:57], s[12:13]"); A("s_mov_b32 s58, 0x380000"); A("s_mov_b32 s59, 0x20000")
    wo_loads(0, NE, "a")
    if cpos == "b1b":
        A("s_cmp_eq_u32 s30, 1"); A("s_cbranch_scc1 L_cw"); A("s_waitcnt vmcnt(0)"); A("L_cw:"); A("s_waitcnt vmcnt(1)"); conv()
    if cpos != "early": tiles(N1, 14); guard()
    A("s_cmp_lt_u32 s32, 28"); A("s_cselect_b32 s44, -1, 0" if m4 else "s_cselect_b32 s44, 0xffff, 0")
    A("s_cmp_eq_u32 s60, s31"); A("s_cselect_b32 s45, s44, 0"); A("s_cmp_eq_u32 s62, 0"); A("s_cselect_b32 s45, s45, 0")
    if "s" in bx: A("s_mov_b32 s45, 0")
    A("s_andn2_b32 s44, s44, s45")
    bl = vX + 16
    for i in range(16): A(f"v_mov_b32 {vr(bl+i)}, 0")
    for nt in range(1, 4): A(f"v_xor_b32 {vr(vRaw+nt)}, {32*nt}, {vr(vWr)}")
    ls4 = vT + 4; ck = vT + 1
    def lse_load():
        A(f"global_load_dwordx4 {vr(ls4,4)}, {vr(vLa)}, s[28:29] sc1")
        A(f"global_load_dword {vr(vT+21)}, {vr(vT+20)}, s[26:27] sc1")
    A(f"s_mov_b32 s36, {f32(1.0 + 1e-5)}")
    A("s_brev_b32 s40, 1"); A("s_brev_b32 s41, 1")
    def weights():
        A(f"v_and_b32 {vr(ck)}, 4, {vr(vT+21)}"); A(f"v_cmp_{'eq' if bph else 'ne'}_u32 s[6:7], 0, {vr(ck)}")
        A(f"v_lshrrev_b32 {vr(ck)}, 20, {vr(vT+21)}"); A(f"v_add_u32 {vr(ck)}, -1, {vr(ck)}")
        A(f"v_max3_u32 {vr(ck)}, {vr(ck)}, {vr(ls4)}, {vr(ls4+1)}"); A(f"v_max3_u32 {vr(ck)}, {vr(ck)}, {vr(ls4+2)}, {vr(ls4+3)}")
        A(f"v_cmp_eq_u32 vcc, -1, {vr(ck)}")
        A(f"v_max3_f32 {vr(vT+2)}, {vr(ls4)}, {vr(ls4+1)}, {vr(ls4+2)}"); A(f"v_max_f32 {vr(vT+2)}, {vr(vT+2)}, {vr(ls4+3)}")
        for i in range(4): A(f"v_sub_f32 {vr(ls4+i)}, {vr(ls4+i)}, {vr(vT+2)}")
        for i in range(4): A(f"v_exp_f32 {vr(ls4+i)}, {vr(ls4+i)}")
        A(f"v_add_f32 {vr(vT+2)}, {vr(ls4)}, {vr(ls4+1)}"); A(f"v_add_f32 {vr(vT+3)}, {vr(ls4+2)}, {vr(ls4+3)}")
        A(f"v_add_f32 {vr(vT+2)}, {vr(vT+2)}, {vr(vT+3)}"); A(f"v_rcp_f32 {vr(vT+2)}, {vr(vT+2)}")
        for i in range(4): A(f"v_mul_f32 {vr(ls4+i)}, {vr(ls4+i)}, {vr(vT+2)}")
    A.c("split-combine weights; vcc != 0: some lse had not arrived yet, redo after publishing")
    if tal >= 0:
        A("s_branch L_tail"); A(".p2alignl 12, 0xbf810000")
        if tal: A(f".fill {tal // 4}, 4, 0xbf810000")
        A("L_tail:")
    stamp(2)
    A("s_barrier")
    lse_load()
    if not lw: A("s_cmp_ge_u32 s32, 28"); A("s_cbranch_scc0 L_wob"); A("s_waitcnt vmcnt(0)"); A("L_wob:")
    wo_loads(NE, 8 - NB, "b")
    A(f"s_mov_b32 s35, {-SPIN & 0xffffffff}")
    A("s_cmp_eq_u32 s62, 0")
    A("L_b3:")
    A("s_barrier")
    stamp(5)
    if "E" in skip: A("s_branch L_fin")
    A.c("reduce the four stream waves' o partials, publish as bf16")
    o = vX; ls4 = vT + 4; oa = vX + 32; Dc = vX + 40; ck = vT + 1
    for w_ in range(4): A(f"ds_read_b64 {vr(o+2*w_,2)}, {vr(vOPr)} offset:{2048*w_}")
    for w_ in range(1, 4):
        A(f"s_waitcnt lgkmcnt({3-w_})")
        A(f"v_pk_add_f32 {vr(o,2)}, {vr(o,2)}, {vr(o+2*w_,2)}")
    A(f"v_cvt_pk_bf16_f32 {vr(o)}, {vr(o)}, {vr(o+1)}")
    A(f"v_min_u32 {vr(o)}, -2, {vr(o)}")
    A("s_cbranch_scc0 L_slowpub")
    A(f"global_store_dword {vr(vOst)}, {vr(o)}, s[28:29]")
    A("L_pubd:")
    def ool_pub():
        A("L_slowpub:")
        A(f"global_store_dword {vr(vOst)}, {vr(o)}, s[28:29] sc1")
        A("s_branch L_pubd")
    OOL.append(ool_pub)
    stamp(6)
    A.c("out projection")
    def aset():
        for tt in range(2):
            A(f"global_load_dwordx4 {vr(oa+4*tt,4)}, {vr(vOa)}, s[28:29] offset:{1024*tt} sc1")
    if ap:
        wo_loads(8 - NB, 8, "c")
        seqv = [f"w{i}" for i in range(NE, 8 - NB)] + ["st"] + [f"w{i}" for i in range(8 - NB, 8)]
        def upto(i):
            live = [k for k, x in enumerate(seqv) if x[0] == "w" and int(x[1:]) <= i]
            if live: A(f"s_waitcnt vmcnt({len(seqv) - 1 - max(live)})")
        if lw: A("s_cmp_ge_u32 s32, 28"); A("s_cbranch_scc0 L_wob"); A("s_waitcnt vmcnt(0)"); A("L_wob:")
        A(f"s_waitcnt vmcnt({len(seqv)})")
        weights()
        upto(3)
        if ap == 1: aset(); seqv += ["a", "a"]
        wo_frags((0,))
        if ap >= 2: upto(3 + ap); aset(); seqv += ["a", "a"]
        upto(7); wo_frags((1,))
    else:
        aset()
        A(f"s_waitcnt vmcnt({3 + 8 - NE})")
        weights()
        if o1:
            A("s_waitcnt vmcnt(7)"); wo_frags((0,)); A("s_waitcnt vmcnt(3)"); wo_frags((1,))
        else:
            A("s_waitcnt vmcnt(3)"); wo_frags()
    A("s_cbranch_vccnz L_lretry")
    def ool_l():
        A("L_lretry:")
        if cnt: A("s_mov_b32 s92, 1")
        lse_load()
        A("s_add_u32 s35, s35, 1")
        A("s_waitcnt vmcnt(0)")
        weights()
        A("s_cbranch_scc1 L_lok")
        A("s_cbranch_vccnz L_lretry")
        A("L_lok:")
        A(f"s_mov_b32 s35, {-SPIN & 0xffffffff}")
        A("s_branch L_apoll0")
    OOL.insert(0, ool_l)
    A("L_apoll0:")
    A("s_bitcmp1_b32 s6, s31"); A("s_cselect_b32 s8, 8192, 0"); A("s_bitcmp1_b32 s6, s60"); A("s_cselect_b32 s9, 8192, 0")
    def achk():
        A(f"v_max3_u32 {vr(ck)}, {vr(oa)}, {vr(oa+1)}, {vr(oa+2)}"); A(f"v_max3_u32 {vr(ck)}, {vr(ck)}, {vr(oa+3)}, {vr(oa+4)}")
        A(f"v_max3_u32 {vr(ck)}, {vr(ck)}, {vr(oa+5)}, {vr(oa+6)}"); A(f"v_max_u32 {vr(ck)}, {vr(ck)}, {vr(oa+7)}")
    if True:
        A("s_waitcnt vmcnt(0)")
        achk()
        A(f"v_cmpx_eq_u32 vcc, -1, {vr(ck)}")
        A("s_cbranch_execz L_adone")
        for _ in range(DA - 1):
            aset()
            for _ in range(GA): A("s_nop 7")
    A("L_apoll:")
    aset()
    A("s_add_u32 s35, s35, 1"); A("s_cselect_b32 s47, -1, -2")
    A(f"s_waitcnt vmcnt({2*(DA-1)})")
    achk()
    A(f"v_cmpx_lt_u32 vcc, s47, {vr(ck)}")
    A("s_cbranch_execnz L_apoll")
    A("L_adone:")
    A("s_mov_b64 exec, -1")
    A("s_waitcnt lgkmcnt(6)" if o1 else "s_waitcnt lgkmcnt(0)")
    A(f"s_mov_b32 s35, {-SPIN & 0xffffffff}")
    stamp(7)
    pp = vT + 16
    def wsum(c):
        return [f"v_mul_f32 {vr(pp+c)}, {vr(Dc+4*c)}, {vr(ls4)}"] + [f"v_fmac_f32 {vr(pp+c)}, {vr(Dc+4*c+i)}, {vr(ls4+i)}" for i in range(1, 4)]
    ws = sum((wsum(c) for c in range(4)), [])
    for k in range(8):
        c, tt = k >> 1, k & 1
        cc_ = "0" if tt == 0 else vr(Dc+4*c, 4)
        A(f"v_mfma_f32_16x16x32_bf16 {vr(Dc+4*c,4)}, {vr(oa+4*tt,4)}, {vr(vW+16*tt+4*c,4)}, {cc_}")
        if o1 and k in (2, 4, 6): A(f"s_waitcnt lgkmcnt({6 - k})")
        if k == 1: A(f"v_add_u32 {vr(vBa)}, s8, {vr(vBa)}"); A(f"v_add_u32 {vr(vBst)}, s9, {vr(vBst)}")
        if 2 <= k <= 3: A(f"s_nop {0 if (o1 and k == 2) else 1}")
        if k >= 4: A(ws.pop(0)); A(ws.pop(0))
    A(f"ds_write2_b32 {vr(vPPa)}, {vr(pp)}, {vr(pp+1)} offset0:0 offset1:16")
    for n_, x in enumerate(ws):
        if m8 and n_ == 4: A(f"ds_write_b32 {vr(vPPa)}, {vr(pp+2)} offset:128")
        A(x)
    if m8: A(f"ds_write_b32 {vr(vPPa)}, {vr(pp+3)} offset:192")
    else: A(f"ds_write2_b32 {vr(vPPa)}, {vr(pp+2)}, {vr(pp+3)} offset0:32 offset1:48")
    if m4:
        A("s_mov_b32 exec_hi, 0")
        A("s_waitcnt lgkmcnt(0)")
        stamp(8)
        A("s_barrier")
        pr = vX
        for w_ in range(4): A(f"ds_read_b64 {vr(pr+2*w_,2)}, {vr(vPPr)} offset:{1024*w_}")
        for w_ in range(1, 4):
            A(f"s_waitcnt lgkmcnt({3-w_})")
            A(f"v_pk_add_f32 {vr(pr,2)}, {vr(pr,2)}, {vr(pr+2*w_,2)}")
        A(f"v_cvt_pk_bf16_f32 {vr(pr)}, {vr(pr)}, {vr(pr+1)}")
        A(f"v_min_u32 {vr(pr)}, -2, {vr(pr)}")
        A("s_mov_b32 exec_lo, s44")
        A(f"global_store_dword {vr(vBst)}, {vr(pr)}, s[28:29] sc1")
        A("s_mov_b32 exec_lo, s45")
        A(f"global_store_dword {vr(vBst)}, {vr(pr)}, s[28:29]")
    else:
        A("s_mov_b64 exec, 0xffff")
        A("s_waitcnt lgkmcnt(0)")
        stamp(8)
        A("s_barrier")
        pr = vX
        for w_ in range(4): A(f"ds_read_b128 {vr(pr+4*w_,4)}, {vr(vPPr)} offset:{1024*w_}")
        for w_ in range(1, 4):
            A(f"s_waitcnt lgkmcnt({3-w_})")
            for k in (0, 2): A(f"v_pk_add_f32 {vr(pr+k,2)}, {vr(pr+k,2)}, {vr(pr+4*w_+k,2)}")
        A(f"v_cvt_pk_bf16_f32 {vr(pr)}, {vr(pr)}, {vr(pr+1)}"); A(f"v_cvt_pk_bf16_f32 {vr(pr+1)}, {vr(pr+2)}, {vr(pr+3)}")
        A(f"v_min_u32 {vr(pr)}, -2, {vr(pr)}"); A(f"v_min_u32 {vr(pr+1)}, -2, {vr(pr+1)}")
        A("s_mov_b32 exec_lo, s44")
        A(f"global_store_dwordx2 {vr(vBst)}, {vr(pr,2)}, s[28:29] sc1")
        A("s_mov_b32 exec_lo, s45")
        A(f"global_store_dwordx2 {vr(vBst)}, {vr(pr,2)}, s[28:29]")
    A("s_mov_b64 exec, s[42:43]")
    stamp(9)
    if "a" in bx: A("s_waitcnt vmcnt(0)")
    if "b" in bx: A("s_barrier")
    if PB0: A(f"s_sleep {PB0}")
    def bset():
        for i in range(4):
            A(f"global_load_dwordx4 {vr(bl+4*i,4)}, {vr(vBa)}, s[28:29] offset:{896*i} sc1")
    def bchk():
        A(f"v_max3_u32 {vr(ck)}, {vr(bl)}, {vr(bl+1)}, {vr(bl+2)}")
        for i in range(3, 15, 2): A(f"v_max3_u32 {vr(ck)}, {vr(ck)}, {vr(bl+i)}, {vr(bl+i+1)}")
        A(f"v_max_u32 {vr(ck)}, {vr(ck)}, {vr(bl+15)}")
    if DB > 1:
        bset()
        A("s_waitcnt vmcnt(0)")
        bchk()
        A(f"v_cmpx_eq_u32 vcc, -1, {vr(ck)}")
        A("s_cbranch_execz L_bdone")
        for _ in range(DB - 1):
            bset()
            for _ in range(GB): A("s_nop 7")
    if o2:
        hh_ = vT + 12; s1 = vT + 8
        A("L_bpoll:")
        bset()
        A("s_add_u32 s35, s35, 1"); A("s_cselect_b32 s47, -1, -2")
        A("s_mov_b64 exec, -1")
        A.c("h = x + sum of the 16 partials (matrix core does the unpack and the adds); discarded while a partial is missing")
        for i in range(4):
            A(f"s_waitcnt vmcnt({3-i})")
            A(f"v_mfma_f32_16x16x32_bf16 {vr(hh_,4)}, {vr(vDl,4)}, {vr(bl+4*i,4)}, {vr(vXr if i == 0 else hh_,4)}")
            if i == 0:
                A(f"v_max3_u32 {vr(ck)}, {vr(bl)}, {vr(bl+1)}, {vr(bl+2)}"); A(f"v_max_u32 {vr(ck)}, {vr(ck)}, {vr(bl+3)}")
            else:
                A(f"v_max3_u32 {vr(ck)}, {vr(ck)}, {vr(bl+4*i)}, {vr(bl+4*i+1)}"); A(f"v_max3_u32 {vr(ck)}, {vr(ck)}, {vr(bl+4*i+2)}, {vr(bl+4*i+3)}")
        A(f"v_cmpx_lt_u32 vcc, s47, {vr(ck)}")
        A("s_cbranch_execnz L_bpoll")
        A("s_mov_b64 exec, -1")
        stamp(10)
        A(f"v_mov_b32 {vr(vT)}, {L_HS}")
    else:
        A("L_bpoll:")
        if PB: A(f"s_sleep {PB}")
        bset()
        A("s_add_u32 s35, s35, 1")
        A(f"s_waitcnt vmcnt({4*(DB-1)})")
        bchk()
        A("s_cbranch_scc1 L_bdone")
        A(f"v_cmpx_eq_u32 vcc, -1, {vr(ck)}")
        A("s_cbranch_execnz L_bpoll")
        A("L_bdone:")
        A("s_mov_b64 exec, -1")
        stamp(10)
        A.c("h = x + sum of the 16 partials (matrix core does the unpack and the adds)")
        hh_ = vXr; s1 = vT + 8
        A(f"v_mov_b32 {vr(vT)}, {L_HS}")
        for i in range(4): A(f"v_mfma_f32_16x16x32_bf16 {vr(hh_,4)}, {vr(vDl,4)}, {vr(bl+4*i,4)}, {vr(hh_,4)}")
    for k in (0, 2): A(f"v_pk_fma_f32 {vr(vT+4+k,2)}, {vr(hh_+k,2)}, {vr(vKs,2)}, {vr(vKs,2)} op_sel:[0,0,1] op_sel_hi:[1,0,1]")
    A(f"ds_write_b128 {vr(vHw)}, {vr(hh_,4)}")
    A(f"v_pk_mul_f32 {vr(s1,2)}, {vr(hh_,2)}, {vr(vT+4,2)}")
    A(f"v_pk_fma_f32 {vr(s1,2)}, {vr(hh_+2,2)}, {vr(vT+6,2)}, {vr(s1,2)}")
    A(f"v_add_f32 {vr(s1)}, {vr(s1)}, {vr(s1+1)}")
    for sh in (8, 4, 2, 1):
        A(f"v_add_f32_dpp {vr(s1)}, {vr(s1)}, {vr(s1)} row_ror:{sh} row_mask:0xf bank_mask:0xf")
    A(f"v_add_f32_dpp {vr(s1)}, {vr(s1)}, {vr(s1)} row_bcast:15 row_mask:0xa bank_mask:0xf")
    A("s_mov_b64 exec, s[40:41]")
    A(f"ds_write_b32 {vr(vHsw)}, {vr(s1)}")
    A("s_mov_b64 exec, -1")
    A("s_waitcnt lgkmcnt(0)")
    A("s_barrier")
    A.c("LayerNorm(LayerNorm(h)) = (h - mu) * rsqrt(var*(1+eps) + eps^2), then the token MLP")
    h8 = vT + 4; hv = vT + 1
    if m5:
        for k in range(4): A(f"ds_read_b64 {vr(h8+2*k,2)}, {vr(vT)} offset:{8*k}")
    else:
        A(f"ds_read_b128 {vr(h8,4)}, {vr(vT)}")
        A(f"ds_read_b128 {vr(h8+4,4)}, {vr(vT)} offset:16")
    A(f"ds_read_b32 {vr(hv)}, {vr(vHa)}")
    A(f"ds_read_b64 {vr(vHf,2)}, {vr(vHf)}")
    mu = vT + 2; rs = vT + 3
    A(f"v_mov_b32 {vr(vT+12)}, {f32(1e-10)}")
    A("s_waitcnt lgkmcnt(4)" if m5 else "s_waitcnt lgkmcnt(2)")
    A(f"v_pk_add_f32 {vr(h8,2)}, {vr(h8,2)}, {vr(h8+2,2)}")
    if m5: A("s_waitcnt lgkmcnt(2)")
    A(f"v_pk_add_f32 {vr(h8+4,2)}, {vr(h8+4,2)}, {vr(h8+6,2)}")
    A(f"v_pk_add_f32 {vr(mu,2)}, {vr(h8,2)}, {vr(h8+4,2)}")
    A(f"v_fma_f32 {vr(rs)}, -{vr(mu)}, {vr(mu)}, {vr(rs)}")
    A(f"v_fma_f32 {vr(rs)}, |{vr(rs)}|, s36, {vr(vT+12)}")
    A(f"v_rsq_f32 {vr(rs)}, {vr(rs)}")
    A("s_waitcnt lgkmcnt(1) vmcnt(0)")
    A(f"v_sub_f32 {vr(hv)}, {vr(hv)}, {vr(mu)}")
    A(f"v_mul_f32 {vr(hv)}, {vr(hv)}, {vr(rs)}")
    A(f"v_cvt_pk_bf16_f32 {vr(hv)}, {vr(hv)}, {vr(hv)}")
    if m1:
        X_ = vT + 4; Xp = vT + 6; Am = vT + 8; hp = vT + 12; tp = vT + 14
        A(f"v_and_b32 {vr(hp)}, s38, {vr(hv)}"); hv = hp
        A(f"v_mul_f32 {vr(hp+1)}, {vr(hp)}, {vr(hp)}")
        A(f"v_pk_fma_f32 {vr(tp,2)}, {vr(hp,2)}, {vr(vK1,2)}, {vr(vK1+2,2)} op_sel_hi:[1,0,1]")
        A(f"v_pk_mul_f32 {vr(X_,2)}, {vr(tp,2)}, {vr(hp,2)} op_sel_hi:[1,0]")
        A(f"v_pk_fma_f32 {vr(Xp,2)}, {vr(tp,2)}, {vr(hp,2)}, {vr(vK1+2,2)} op_sel_hi:[1,0,1]")
        A(f"v_cvt_pk_bf16_f32 {vr(Am)}, {vr(X_)}, {vr(X_)}"); A(f"v_cvt_pk_bf16_f32 {vr(Am+2)}, {vr(X_+1)}, {vr(X_+1)}")
        A(f"v_and_b32 {vr(tp)}, s38, {vr(Am)}"); A(f"v_and_b32 {vr(tp+1)}, s38, {vr(Am+2)}")
        A(f"v_pk_add_f32 {vr(Xp,2)}, {vr(Xp,2)}, {vr(tp,2)} neg_lo:[0,1] neg_hi:[0,1]")
        A(f"v_cvt_pk_bf16_f32 {vr(Am+1)}, {vr(Xp)}, {vr(Xp)}"); A(f"v_cvt_pk_bf16_f32 {vr(Am+3)}, {vr(Xp+1)}, {vr(Xp+1)}")
    else:
        A(f"v_and_b32 {vr(hv)}, s38, {vr(hv)}")
        X_ = vT + 4; Y = vT + 5; t1 = vT + 6; t2 = vT + 7; Am = vT + 8
        A(f"v_fma_f32 {vr(X_)}, {vr(hv)}, {vr(vK1)}, {vr(vK1+1)}"); A(f"v_mul_f32 {vr(X_)}, {vr(X_)}, {vr(hv)}")
        A(f"v_fma_f32 {vr(Y)}, {vr(X_)}, {vr(vK1)}, {vr(vK1+2)}")
        A(f"v_cvt_pk_bf16_f32 {vr(Am)}, {vr(X_)}, {vr(X_)}")
        A(f"v_mul_f32 {vr(Y)}, {vr(Y)}, {vr(hv)}")
        A(f"v_and_b32 {vr(t1)}, s38, {vr(Am)}")
        A(f"v_cvt_pk_bf16_f32 {vr(Am+2)}, {vr(Y)}, {vr(Y)}")
        A(f"v_sub_f32 {vr(X_)}, {vr(X_)}, {vr(t1)}")
        A(f"v_and_b32 {vr(t2)}, s38, {vr(Am+2)}")
        A(f"v_cvt_pk_bf16_f32 {vr(Am+1)}, {vr(X_)}, {vr(X_)}")
        A(f"v_sub_f32 {vr(Y)}, {vr(Y)}, {vr(t2)}")
        A(f"v_or_b32 {vr(Am+1)}, {vr(Am+1)}, {vr(vK1+3)}")
        A(f"v_cvt_pk_bf16_f32 {vr(Am+3)}, {vr(Y)}, {vr(Y)}")
        A(f"v_or_b32 {vr(Am+3)}, {vr(Am+3)}, {vr(vK1+4)}")
    A(f"v_cmp_nge_f32 vcc, s3, |{vr(hv)}|")
    stamp(11)
    Db = [vX, vX + 16, vX + 32]; acc = vT + 12; Dd = vRaw; Nn = vRaw + 8
    def mm(tile):
        A(f"v_mfma_f32_32x32x16_bf16 {vr(Db[tile%3],16)}, {vr(Am,4)}, {vr(vC+4*tile,4)}, 0")
    mm(0)
    A("s_waitcnt lgkmcnt(0)")
    A(f"v_add_f32 {vr(vHf)}, {vr(vHf)}, {vr(vB2)}"); A(f"v_add_f32 {vr(vHf+1)}, {vr(vHf+1)}, {vr(vB2)}")
    A(f"v_lshlrev_b32 {vr(vT)}, 3, v1"); A(f"v_add_u32 {vr(vT)}, {L_Y}, {vr(vT)}")
    if wb:
        A("s_cmp_eq_u32 s30, 0"); A("s_cselect_b32 s33, s32, 0"); A(f"s_cmp_ge_u32 s33, {32 - wb}"); A("s_cbranch_scc0 L_nowb"); A("buffer_wbl2 sc1"); A("L_nowb:")
    if wbt >= 0:
        A("s_cmp_eq_u32 s30, 0"); A("s_cselect_b32 s33, s32, 0"); A("s_cmp_eq_u32 s33, 31")
        def ool_wb():
            A("L_wb:"); A("buffer_wbl2 sc1"); A("s_branch L_wbd")
        OOL.insert(0, ool_wb)
    A("s_cbranch_vccnz L_fb")
    A("L_mlp:")
    A.c("sum_f n_f / (1 + e_f) kept as one fraction N / D")
    if o3:
        def chain(k, D, Np, first):
            if first: return [f"v_pk_add_f32 {vr(Dd+k,2)}, {vr(D+k,2)}, 1.0 op_sel_hi:[1,0]"]
            return [f"v_pk_fma_f32 {vr(D+8+k,2)}, {vr(D+8+k,2)}, {vr(Dd+k,2)}, {vr(Np+k,2)}",
                    f"v_pk_fma_f32 {vr(Dd+k,2)}, {vr(Dd+k,2)}, {vr(D+k,2)}, {vr(Dd+k,2)}",
                    f"v_pk_fma_f32 {vr(Nn+k,2)}, {vr(Np+k,2)}, {vr(D+k,2)}, {vr(D+8+k,2)}"]
        for tile in range(14):
            D = Db[tile % 3]; P = Db[(tile - 1) % 3]
            if tile == wbt: A("s_cbranch_scc1 L_wb"); A("L_wbd:")
            if tile + 1 < 14: mm(tile + 1)
            odd = tile & 1
            if odd:
                if tile == 1: A(f"v_mov_b32 {vr(Nn+6)}, {vr(P+14)}"); A(f"v_mov_b32 {vr(Nn+7)}, {vr(D+14)}")
                else: A(f"v_mov_b32 {vr(P+15)}, {vr(D+14)}")
            for i in range(6): A(f"v_exp_f32 {vr(D+i)}, {vr(D+i)}")
            A(f"v_exp_f32 {vr(P+7 if odd else D+6)}, {vr(D+6)}")
            ch = [chain(k, D, Db[0] + 8 if tile == 1 else Nn, tile == 0) for k in (0, 2, 4)]
            if odd: ch.append(chain(6, P, Nn, tile == 1))
            for st in range(3):
                for c_ in ch:
                    if len(c_) == 3: A(c_[st])
                    elif st == (0 if tile == 0 else 1): A(c_[0])
        for i in (6, 7, 0, 1, 2, 3, 4, 5): A(f"v_rcp_f32 {vr(Dd+i)}, {vr(Dd+i)}")
        A(f"v_mul_f32 {vr(acc+6)}, {vr(Nn+6)}, {vr(Dd+6)}"); A(f"v_fmac_f32 {vr(acc+6)}, {vr(Nn+7)}, {vr(Dd+7)}")
        for k in (0, 2, 4): A(f"v_pk_mul_f32 {vr(acc+k,2)}, {vr(Nn+k,2)}, {vr(Dd+k,2)}")
    else:
        for tile in range(14):
            D = Db[tile % 3]
            if tile + 1 < 14: mm(tile + 1)
            for i in range(7): A(f"v_exp_f32 {vr(D+i)}, {vr(D+i)}")
            if tile == 0:
                for k in range(0, 8, 2): A(f"v_pk_add_f32 {vr(Dd+k,2)}, {vr(D+k,2)}, 1.0 op_sel_hi:[1,0]")
                continue
            Np = Db[0] + 8 if tile == 1 else Nn
            for k in range(0, 8, 2): A(f"v_pk_fma_f32 {vr(D+8+k,2)}, {vr(D+8+k,2)}, {vr(Dd+k,2)}, {vr(Np+k,2)}")
            for k in range(0, 8, 2): A(f"v_pk_fma_f32 {vr(Dd+k,2)}, {vr(Dd+k,2)}, {vr(D+k,2)}, {vr(Dd+k,2)}")
            for k in range(0, 8, 2): A(f"v_pk_fma_f32 {vr(Nn+k,2)}, {vr(Np+k,2)}, {vr(D+k,2)}, {vr(D+8+k,2)}")
        for i in range(7): A(f"v_rcp_f32 {vr(Dd+i)}, {vr(Dd+i)}")
        for k in range(0, 8, 2): A(f"v_pk_mul_f32 {vr(acc+k,2)}, {vr(Nn+k,2)}, {vr(Dd+k,2)}")
    A("L_fbd:")
    A("s_cmp_eq_u32 s30, 1")
    def ool_fb(acc=acc):
        A("L_fb:")
        A.c("direct evaluation (large activations or weights)")
        hh = vRaw; fa = vRaw + 8; w_ = vRaw + 9; b_ = vRaw + 10; u_ = vRaw + 11; x_ = vRaw + 12; p_ = vRaw + 13; al = vRaw + 14
        A(f"v_lshrrev_b32 {vr(fa)}, 5, v0"); A(f"v_mul_u32_u24 {vr(fa)}, 28, {vr(fa)}")
        A("s_mul_i32 s33, s32, 56"); A(f"s_add_u32 s33, s33, {L_H}"); A(f"v_add_u32 {vr(fa)}, s33, {vr(fa)}")
        for i in range(7): A(f"ds_read_b32 {vr(hh+i)}, {vr(fa)} offset:{4*i}")
        A(f"v_and_b32 {vr(fa)}, 31, v0"); A(f"v_lshlrev_b32 {vr(fa)}, 1, {vr(fa)}")
        A("s_mul_i32 s33, s30, 896"); A(f"v_add_u32 {vr(fa)}, s33, {vr(fa)}")
        A(f"s_mov_b32 s33, {f32(BETA)}"); A(f"v_mov_b32 {vr(al)}, {f32(ALPHA)}")
        for i in range(8): A(f"v_mov_b32 {vr(acc+i)}, 0")
        A("s_waitcnt lgkmcnt(0)")
        for i in range(7):
            A(f"v_sub_f32 {vr(hh+i)}, {vr(hh+i)}, {vr(mu)}"); A(f"v_mul_f32 {vr(hh+i)}, {vr(hh+i)}, {vr(rs)}")
            A(f"v_cvt_pk_bf16_f32 {vr(hh+i)}, {vr(hh+i)}, {vr(hh+i)}"); A(f"v_and_b32 {vr(hh+i)}, s38, {vr(hh+i)}")
        A("s_mov_b32 s34, 0")
        A("L_fbl:")
        A(f"global_load_ushort {vr(w_)}, {vr(fa)}, s[16:17]"); A(f"global_load_ushort {vr(b_)}, {vr(fa)}, s[18:19]"); A(f"global_load_ushort {vr(u_)}, {vr(fa)}, s[20:21]")
        A(f"v_add_u32 {vr(fa)}, 64, {vr(fa)}")
        A("s_waitcnt vmcnt(0)")
        for r_ in (w_, b_, u_): A(f"v_lshlrev_b32 {vr(r_)}, 16, {vr(r_)}")
        for i in range(7):
            A(f"v_fma_f32 {vr(x_)}, {vr(w_)}, {vr(hh+i)}, {vr(b_)}")
            A(f"v_mul_f32 {vr(p_)}, {vr(x_)}, {vr(x_)}"); A(f"v_fma_f32 {vr(p_)}, {vr(p_)}, s33, {vr(al)}"); A(f"v_mul_f32 {vr(p_)}, {vr(p_)}, {vr(x_)}")
            A(f"v_exp_f32 {vr(p_)}, {vr(p_)}"); A(f"v_add_f32 {vr(p_)}, 1.0, {vr(p_)}"); A(f"v_rcp_f32 {vr(p_)}, {vr(p_)}")
            A(f"v_mul_f32 {vr(x_)}, {vr(x_)}, {vr(p_)}"); A(f"v_fmac_f32 {vr(acc+i)}, {vr(x_)}, {vr(u_)}")
        A("s_add_u32 s34, s34, 1"); A("s_cmp_lt_u32 s34, 14"); A("s_cbranch_scc1 L_fbl")
        A("s_branch L_fbd")
    OOL.append(ool_fb)
    stamp(12)
    if m2:
        def dp(d, x, ctl, bm): A(f"v_add_f32_dpp {vr(acc+d)}, {vr(acc+x)}, {vr(acc+x)} {ctl} row_mask:0xf bank_mask:{bm}")
        dp(6, 6, "row_ror:8", "0x3"); dp(0, 0, "row_ror:8", "0x3"); dp(4, 4, "row_ror:8", "0x3"); dp(2, 2, "row_ror:8", "0x3")
        dp(0, 1, "row_ror:8", "0xc"); dp(4, 5, "row_ror:8", "0xc"); dp(2, 3, "row_ror:8", "0xc")
        dp(1, 0, "row_shl:4", "0x5"); dp(5, 4, "row_shl:4", "0x5"); dp(3, 2, "row_shr:4", "0xa") if False else None
        dp(1, 2, "row_shr:4", "0xa"); dp(5, 6, "row_shr:4", "0xa")
        acc += 1
    else:
        for k in range(4): A(f"v_add_f32_dpp {vr(acc+2*k)}, {vr(acc+2*k)}, {vr(acc+2*k)} row_ror:8 row_mask:0xf bank_mask:0x3")
        for k in range(3): A(f"v_add_f32_dpp {vr(acc+2*k)}, {vr(acc+2*k+1)}, {vr(acc+2*k+1)} row_ror:8 row_mask:0xf bank_mask:0xc")
        for k in range(2): A(f"v_add_f32_dpp {vr(acc+4*k)}, {vr(acc+4*k)}, {vr(acc+4*k)} row_shl:4 row_mask:0xf bank_mask:0x5")
        for k in range(2): A(f"v_add_f32_dpp {vr(acc+4*k)}, {vr(acc+4*k+2)}, {vr(acc+4*k+2)} row_shr:4 row_mask:0xf bank_mask:0xa")
    A(f"v_permlane16_swap_b32 {vr(acc)}, {vr(acc+4)}")
    A(f"v_add_f32 {vr(acc)}, {vr(acc)}, {vr(acc+4)}")
    A(f"v_add_f32_dpp {vr(acc)}, {vr(acc)}, {vr(acc)} quad_perm:[1,0,3,2] row_mask:0xf bank_mask:0xf")
    A(f"v_add_f32_dpp {vr(acc)}, {vr(acc)}, {vr(acc)} quad_perm:[2,3,0,1] row_mask:0xf bank_mask:0xf")
    A(f"ds_write_b32 {vr(vYa)}, {vr(acc)}")
    A("s_mov_b64 exec, 0x7f")
    A("s_waitcnt lgkmcnt(0)")
    A("s_barrier")
    A("s_cbranch_scc0 L_fin")
    if m6:
        for k in range(4): A(f"ds_read_b64 {vr(vT+4+2*k,2)}, {vr(vT)} offset:{64*k}")
        for k in range(4):
            A(f"s_waitcnt lgkmcnt({3-k})"); A(f"v_pk_add_f32 {vr(vHf,2)}, {vr(vHf,2)}, {vr(vT+4+2*k,2)}")
    else:
        A(f"ds_read2_b64 {vr(vT+4,4)}, {vr(vT)} offset0:0 offset1:8")
        A(f"ds_read2_b64 {vr(vT+8,4)}, {vr(vT)} offset0:16 offset1:24")
        A("s_waitcnt lgkmcnt(1)")
        A(f"v_pk_add_f32 {vr(vHf,2)}, {vr(vHf,2)}, {vr(vT+4,2)}"); A(f"v_pk_add_f32 {vr(vHf,2)}, {vr(vHf,2)}, {vr(vT+6,2)}")
        A("s_waitcnt lgkmcnt(0)")
        A(f"v_pk_add_f32 {vr(vHf,2)}, {vr(vHf,2)}, {vr(vT+8,2)}"); A(f"v_pk_add_f32 {vr(vHf,2)}, {vr(vHf,2)}, {vr(vT+10,2)}")
    A(f"v_cvt_pk_bf16_f32 {vr(vT+2)}, {vr(vHf)}, {vr(vHf+1)}")
    A(f"global_store_dword {vr(vOut)}, {vr(vT+2)}, s[24:25] {outpol}")
    A("L_fin:")
    stamp(13)
    if amp:
        A(f"s_cmp_eq_u32 s30, {amp[0]}"); A("s_cbranch_scc0 L_end")
        A("s_waitcnt lgkmcnt(0)")
        A(f"s_sub_u32 s33, s{64+2*amp[1]}, s{64+2*amp[2]}")
        if amp[3] < 0: A("s_sub_u32 s33, 3000, s33")
        A("s_min_u32 s33, s33, 5000"); A("s_lshl_b32 s33, s33, 3"); A("s_add_u32 s33, s33, 4000")
        A("L_amp:")
        A("s_memrealtime s[34:35]"); A("s_waitcnt lgkmcnt(0)"); A("s_sub_u32 s34, s34, s64")
        A("s_cmp_lt_u32 s34, s33"); A("s_cbranch_scc1 L_amp")
    if cnt:
        for k in range(3):
            A(f"s_cmp_eq_u32 s{90+k}, 0"); A(f"s_cbranch_scc1 L_c{k}"); A(f"s_atomic_add s{90+k}, s[26:27], {128+4*k}"); A("s_waitcnt lgkmcnt(0)"); A(f"L_c{k}:")
    if gamp:
        A(f"s_cmp_eq_u32 s30, {gamp[3] if len(gamp) > 3 else 1}"); A("s_cbranch_scc0 L_end")
        A("s_waitcnt lgkmcnt(0)")
        A(f"s_mov_b32 s36, s{64+2*gamp[0]}")
        A(f"s_not_b32 s37, s{64+2*gamp[1]}" if gamp[2] == "min" else f"s_mov_b32 s37, s{64+2*gamp[1]}")
        A("s_atomic_umax s36, s[26:27], 192"); A("s_atomic_umax s37, s[26:27], 196"); A("s_waitcnt lgkmcnt(0)")
        A("s_cmp_eq_u32 s2, 0"); A("s_cbranch_scc0 L_end")
        A("L_g1:")
        A("s_memrealtime s[34:35]"); A("s_waitcnt lgkmcnt(0)"); A("s_sub_u32 s34, s34, s64")
        A("s_cmp_lt_u32 s34, 3800"); A("s_cbranch_scc1 L_g1")
        A("s_load_dwordx2 s[36:37], s[26:27], 192 glc"); A("s_waitcnt lgkmcnt(0)")
        if gamp[2] == "min": A("s_not_b32 s37, s37")
        A("s_sub_u32 s33, s36, s37"); A("s_min_u32 s33, s33, 2000"); A(f"s_lshl_b32 s33, s33, {gamp[4] if len(gamp) > 4 else 3}"); A("s_add_u32 s33, s33, 4000")
        A("L_g2:")
        A("s_memrealtime s[34:35]"); A("s_waitcnt lgkmcnt(0)"); A("s_sub_u32 s34, s34, s64")
        A("s_cmp_lt_u32 s34, s33"); A("s_cbranch_scc1 L_g2")
    if rnd:
        A("s_cmp_eq_u32 s30, 0"); A("s_cselect_b32 s33, s2, 1"); A("s_cmp_eq_u32 s33, 0"); A("s_cbranch_scc0 L_end")
        A("s_memrealtime s[64:65]"); A("s_waitcnt lgkmcnt(0)")
        A("s_lshr_b32 s33, s64, 2"); A("s_mul_i32 s33, s33, 0x9e3779b1"); A("s_lshr_b32 s34, s33, 15"); A("s_xor_b32 s33, s33, s34"); A("s_mul_i32 s33, s33, 0x85ebca6b")
        A("s_lshr_b32 s33, s33, 19")
        A("L_rnd:")
        A("s_memrealtime s[34:35]"); A("s_waitcnt lgkmcnt(0)"); A("s_sub_u32 s34, s34, s64")
        A("s_cmp_lt_u32 s34, s33"); A("s_cbranch_scc1 L_rnd")
    dump_stamps(15)
    A("L_end:")
    A("s_endpgm")
    for f in OOL: f()
    A(".fill 1024, 4, 0xbf810000")

    body, nn = fix_hazards(A.L)
    if a8:
        import subprocess, tempfile, os
        i0 = body.index("L_tail:"); i1 = body.index("L_end:")
        probe = ['.amdgcn_target "amdgcn-amd-amdhsa--gfx950"', ".text"]
        for i, l in enumerate(body):
            if i0 <= i <= i1: probe.append(f"P_{i}:")
            probe.append(l)
        d = tempfile.mkdtemp(); open(d + "/p.s", "w").write("\n".join(probe) + "\n")
        subprocess.run(["clang", "-x", "assembler", "-target", "amdgcn-amd-amdhsa", "-mcpu=gfx950", "-c", d + "/p.s", "-o", d + "/p.o"], check=True)
        sym = subprocess.run(["llvm-objdump", "-t", d + "/p.o"], capture_output=True, text=True).stdout
        ad = {int(l.split()[-1][2:]): int(l.split()[0], 16) for l in sym.splitlines() if l.split() and l.split()[-1].startswith("P_")}
        sizes = [0] * len(body)
        for i in range(i0, i1): sizes[i] = ad[i + 1] - ad[i]
        st = body.index(a8[0] + ":")
        body, n8 = align8(body, a8[0], a8[1], sizes, ad[st] % 8)
    head = [l.rstrip("\n") for l in open("header.txt")]
    head.append(f"; @launch grid=(256,1,1) block=(512,1,1) lds={L_END}")
    head += DOC
    head += ['.amdgcn_target "amdgcn-amd-amdhsa--gfx950"', ".text"] + ([".p2align 12"] if al else []) + ([f".fill {pad // 4}, 4, 0xbf810000"] if pad else []) + [f".globl {NAME}", ".p2align 8", f".type {NAME},@function"]
    tail = ['.section .rodata,"a"'] + ([f".fill {rpad // 4}, 4, 0"] if rpad else []) + [".p2align 6", f".amdhsa_kernel {NAME}",
            "  .amdhsa_next_free_vgpr 256", "  .amdhsa_next_free_sgpr 96", "  .amdhsa_accum_offset 256",
            "  .amdhsa_group_segment_fixed_size 0", "  .amdhsa_kernarg_size 104", "  .amdhsa_user_sgpr_count 2",
            "  .amdhsa_user_sgpr_kernarg_segment_ptr 1", "  .amdhsa_system_sgpr_workgroup_id_x 1",
            "  .amdhsa_float_denorm_mode_32 3", ".end_amdhsa_kernel"]
    return "\n".join(head + body + tail) + "\n"

if __name__ == "__main__":
    kw = eval("dict(" + (sys.argv[2] if len(sys.argv) > 2 else "") + ")")
    open(sys.argv[1], "w").write(gen(**kw))
```

```python
import sys, struct, math
from asmlib import *

NAME = "sequential_preLN__sliding_block_cached__mixer_token_mlp__decode_kernel"
def f32(x): return "0x%08x" % struct.unpack("<I", struct.pack("<f", x))[0]

L_K = 0; L_WQ = 131072; L_Q = 145408; L_STAT = 146432; L_OP = 146688; L_PP = 154880; L_H = 158976; L_HS = 161024; L_Y = 161088
L_END = 161344
L_X = L_OP
L_LT = L_H
W_Q = 0
W_L = 0xC0000
W_O = 0x40000
W_B = 0x80000
W_T = 0xD0000
W_ALT = 0x100000
W_STAMP = 0x200000
SPIN = 0x20000
STAMP_VIEW = [("S", slice(4, 8), [0, 8, 6, 7, 1, 2, 3, 4, 5]), ("T0", 0, [0, 1, 3, 4, 14, 2]), ("T1", 1, [0, 4, 2]),
              ("Top", slice(0, 4), [5, 6, 7, 8, 9], slice(0, 224)), ("Fin", slice(0, 4), [5, 6, 7, 9, 10, 11, 13], slice(232, 240))]
ALPHA = -2.0 * math.sqrt(2.0 / math.pi) * math.log2(math.e)
BETA = ALPHA * 0.044715

DOC = """
; ---------------------------------------------------------------------------------------------------------------------
; One launch, 256 workgroups (one per CU), 8 waves each.  g = workgroup id, kvh = g & 7, r = g >> 3, b = r >> 2, s = r & 3.
;   waves 4-7 (stream): K (LDS-DMA) and V (registers) for 256 of the last 1024 keys of (b, kvh); QK^T, true-max softmax
;                       over those keys, P.V with a delta-structured A operand so V is used as loaded.
;   waves 0-3 (tail):   q projection tile, token-MLP values, out projection tile (r < 28), row finish (r = 29).
; Hand-offs between workgroups go through d_ws.  Every slot is set to 0xffffffff in this launch before anyone looks at
; it (ordered through counters in the zeroed d_debug and through the q hand-off itself); data never takes that value.
;   q    : 64 columns x 112 rows per workgroup, LN(x) applied after the product: rstd*(x.W - mean*colsum(W))
;   o,lse: per split, normalised by the split's own sum; combined with softmax(lse) after the out-projection product
;   rows : 16 partial rows per batch, summed by the workgroup that finishes the row
; q, o and lse stay inside one group (same kvh).  They use plain stores only when every member has checked that it sits
; on the XCD whose L2 holds the cleared slots; otherwise the group switches to write-through stores in a second copy.
; LN(LN(h)) = (h - mean) * rsqrt(var*(1+eps) + eps^2) exactly; like the reference's, it is a bf16 value below sqrt(448).
; With one token the MLP is a scalar function of that bf16 value: F(t) = sum_f gelu_tanh(t*w1[f] + b1[f])*w2[f] + b2.
; While K and V stream in, the full 1792-term sum is evaluated for every bf16 t with 2^-19 <= |t| < 32 (24 per
; workgroup; gelu_tanh(u) = u / (1 + 2^(a*u + b*u^3))); the row finish picks F at the exact argument, and evaluates the
; same sum on the spot for any argument outside that set.  Nothing is interpolated.
; ---------------------------------------------------------------------------------------------------------------------
""".strip("\n").split("\n")

def gen(W=9, QPOS=2, QD=3, FT=-1, stamps=False, force_slow=False, pol="nt", vpol=None, qpol="nt", opol="nt", opol2="nt", spol="", skip="",
        pref=True, opos="mid", qx=16, force_fb=False, touch=False, amp=None, DA=1, DB=1, rotm=1, PB=0, NL=1, EP=0, inst=0, spf=2, WE=0, WEN=64, WE0=8, WEM=0x55, NLD=4, LD0=0, qpace=0, prio=0, QT=0, GA=0, GB=0, cpos="early", N1=2, c1=True, NE=0, o1=True, o2=True, o3=True, ap=1, NB=0, pos=None, rot='', wb=0, wbs=0, ks=0, b0=1, b0n=2, rnd=0, tv_='', BP=12, NM=12, TOP=132, NI=(0, 4, 2, 0, 0), NI0=(2, 2, 2, 0, 0), R2=8, RF=29, trig=2, wbx=5, m1=True, m2=True, m4=True, m5=0, m6=0, m7=0, m8=0, lk=1, cl=0, xl=0, pa=-1, lp='', hp=0, qc=0, ve=(0, 2, 1, 4, 3), ke=None, vk=0, vt=-1, cnt=False, rpad=0, bph=0, a8=('L_tail', 'L_end'), wbt=5, wbm=0, tl_=0, tlw=2, gamp=None, wq1=0, wbr=31, lw=True, pad=0, al=1, tal=0, warm=0, outpol='', hack="", bx="ab", PB0=0):
    A = Asm()
    if pa < 0: pa = QPOS + W + QD
    assert pa <= QPOS + W + QD
    c1_ = c1
    OOL = []
    def stamp(i):
        if stamps or (amp and i in (amp[1], amp[2], 0)) or (gamp and i in (gamp[0], gamp[1], 0)): A(f"s_memrealtime s[{64+2*i}:{65+2*i}]")
    def dump_stamps(nst):
        if not stamps: return
        A("s_waitcnt lgkmcnt(0) vmcnt(0)")
        A("s_lshl_b32 s94, s2, 3"); A("s_add_u32 s94, s94, s30"); A("s_lshl_b32 s94, s94, 6"); A(f"s_add_u32 s94, s94, {W_STAMP}")
        A("s_mov_b64 exec, 1")
        A("v_mov_b32 v4, s94")
        for i in range(nst):
            A(f"v_mov_b32 v5, s{64+2*i}")
            A(f"global_store_dword v4, v5, s[28:29] offset:{4*i}")
        A("s_getreg_b32 s94, hwreg(HW_REG_XCC_ID, 0, 4)"); A("v_mov_b32 v5, s94")
        A("global_store_dword v4, v5, s[28:29] offset:60")
        A("s_waitcnt vmcnt(0)")

    def brow(dst, b): A(f"s_lshl_b32 {dst}, {b}, 15")
    BH = 16384
    A(f"{NAME}:")
    stamp(0)
    A("s_load_dwordx16 s[4:19], s[0:1], 0" if ks != 2 else "s_load_dwordx8 s[4:11], s[0:1], 0")
    if not ks or stamps:
        A("s_load_dwordx8 s[20:27], s[0:1], 64")
        A("s_load_dwordx2 s[28:29], s[0:1], 96")
    A("v_lshrrev_b32 v1, 6, v0")
    A("s_lshr_b32 s32, s2, 3")
    A("v_readfirstlane_b32 s30, v1")
    A("s_cmp_ge_u32 s32, 32")
    A("s_cbranch_scc1 L_end")
    A("v_and_b32 v0, 63, v0")
    A("s_and_b32 s31, s2, 7")
    A("v_lshlrev_b32 v3, 4, v0")
    A("s_cmp_lt_u32 s30, 4")
    A("s_cbranch_scc1 L_T")

    A.c("================ stream waves")
    V = Alloc(4, 256)
    vK = V(8); vKb = V(); vVb = V(); vAd = V(2); vKA = V(4); vM = V(4); vT = V(8); vOPa = V(2); vQA = V(); vSTw = V(); vSTr = V()
    vS = V(16); vAcc = vK; vQ = V(32); vKF = V(32); vVv = V(128)
    vA = vQ
    assert vKF == vQ + 32
    M = dict(j0=324, j1=1, r1=12, r2=256, r3=32, s0=24, s1=130, t0=2, t1=4) if pos is None else dict(pos)
    M = {k: v << 10 for k, v in M.items()}
    span = {0}
    for k in ("r1", "r2", "r3", "j0", "j1", "t0", "t1", "s0", "s1"): span |= {x ^ M[k] for x in span}
    assert len(span) == 512
    SRC = dict(s0=("s2", 3), s1=("s2", 4), b0=("s2", 5), b1=("s2", 6), b2=("s2", 7), k0=("s2", 0), k1=("s2", 1), k2=("s2", 2), j0=("s30", 0), j1=("s30", 1))
    def gaddr(i, tl=0):
        x = 0
        for k in range(3):
            if (i >> k) & 1: x ^= M[f"r{k+1}"]
        for k in range(2):
            if (tl >> k) & 1: x ^= M[f"t{k}"]
        return x
    def X(i, tl): return ((8*(i & 1) + (i >> 1)) << 4) | gaddr(i, tl)
    A("s_lshr_b32 s34, s2, 5"); A("s_lshl3_add_u32 s34, s34, s31"); A("s_lshl2_add_u32 s34, s34, 3"); A("s_lshl_b32 s40, s34, 19")
    first = True
    for k, (reg, bit) in SRC.items():
        if M.get(k):
            A(f"s_bitcmp1_b32 {reg}, {bit}"); A(f"s_cselect_b32 {'s38' if first else 's35'}, {M[k]}, 0")
            if not first: A("s_xor_b32 s38, s38, s35")
            first = False
    A("s_sub_u32 s33, s30, 4")
    A("s_lshl_b32 s37, s33, 15")
    A(f"v_and_b32 {vr(vT)}, 32, v0"); A(f"v_lshlrev_b32 {vr(vT)}, 1, {vr(vT)}")
    A(f"v_xor_b32 {vr(vT)}, {vr(vT)}, v3")
    A(f"v_xor_b32 {vr(vKb)}, s38, {vr(vT)}")
    if prio == 2: A("s_setprio 3")
    A("s_brev_b32 s54, 16"); A("s_mov_b32 s55, 0x20000")
    A("s_mov_b32 m0, s37")
    A("s_waitcnt lgkmcnt(0)")
    A("s_mov_b64 s[52:53], s[6:7]")
    stamp(8)
    issued = [0]; kpre = {}; vpre = {}
    def throttle():
        if WE and WE0 <= issued[0] < WE0 + WEN:
            A(f"s_cbranch_vccz L_th{issued[0]}"); A(f"s_waitcnt vmcnt({abs(WE)-1})"); A(f"L_th{issued[0]}:")
        if issued[0] >= W: A(f"s_waitcnt vmcnt({W-1})")
        issued[0] += 1
    def kload(tl, i):
        ad = vKb
        if (tl, i) in kpre:
            ad = kpre[(tl, i)]; A(f"s_add_u32 m0, s37, {(tl << 13) | (i << 10)}")
        elif tl or i:
            ad = vAd + (issued[0] & 1)
            A(f"s_add_u32 m0, s37, {(tl << 13) | (i << 10)}"); A(f"v_xor_b32 {vr(ad)}, {X(i, tl)}, {vr(vKb)}")
        throttle()
        A(f"buffer_load_dwordx4 {vr(ad)}, s[52:55], s40 offen {pol} lds")
    kord = [sum(((n_ >> k) & 1) << ke[k] for k in range(5)) for n_ in range(32)] if ke else list(range(32))
    for i in range(8):
        if b0 and i == b0n: A("s_barrier")
        kload(kord[i] >> 3, kord[i] & 7)
    A("s_branch L_S2")

    LP = "L_b0" if b0 == 4 else "L_prepw"
    A("L_T:")
    A.c("================ tail waves")
    if ks == 2: A("s_load_dwordx8 s[12:19], s[0:1], 32")
    if ks and not stamps:
        A("s_load_dwordx8 s[20:27], s[0:1], 64")
        A("s_load_dwordx2 s[28:29], s[0:1], 96")
    V = Alloc(4, 256)
    vC = V(56); vW = V(32); vRaw = V(32); vX = V(56); tT = V(24)
    vXr = V(4); vDl = V(4); vQs = V(8); vKs = V(4); vWa = V(2)
    vLa = V(); vOa = V(); vPPa = V(); vBst = V(); vOst = V(); vLst = V(); vLse = V()
    vBa = V(); vHsw = V(); vOut = V(); vB2 = V(); vQa = V(); vOPr = V(); vPPr = V(); vQw = V(); vWr = V(); vLT = V(); vTs = V(); vXa = V()
    raw = vRaw + 4
    NI0 = NI0 or NI
    assert sum(NI) == NM // 2 and sum(NI0) == NM // 2
    E0 = TOP - 2 * NM
    def prep_loads():
        t = tT + 14
        A.c("MLP weights: 7 consecutive f per lane (16 bytes from the dword below), b2")
        A("s_mul_i32 s33, s30, 896")
        A(f"v_mul_u32_u24 {vr(t)}, 14, v0"); A(f"v_and_b32 {vr(t)}, -4, {vr(t)}"); A(f"v_add_u32 {vr(t)}, s33, {vr(t)}")
        for k, sp in enumerate((16, 18, 20)):
            A(f"global_load_dwordx4 {vr(raw+4*k,4)}, {vr(t)}, s[{sp}:{sp+1}] {spol}")
        A(f"v_mov_b32 {vr(t+2)}, 0")
        A(f"global_load_ushort {vr(vB2)}, {vr(t+2)}, s[22:23] {spol}")
    A("v_and_b32 v1, 15, v0")
    A("v_lshrrev_b32 v2, 4, v0")
    A("s_lshl_b32 s63, s31, 2")
    A(f"v_mov_b32 {vr(vQw)}, 0")
    if cl: A(f"v_mov_b32 {vr(tT)}, 0"); A(f"v_mov_b32 {vr(tT+1)}, 0")
    if cnt: A("s_mov_b32 s90, 0"); A("s_mov_b32 s91, 0"); A("s_mov_b32 s92, 0")
    A("s_mov_b64 s[40:41], 0")
    if b0: A("s_mov_b32 s46, 0")
    if "T" in skip:
        A("s_waitcnt lgkmcnt(0)"); A("s_barrier"); A("s_barrier"); A("s_barrier")
        if NL: A("s_barrier")
        A("s_branch L_b3")
    A("s_cmp_eq_u32 s30, 0"); A("s_cbranch_scc1 L_T0")
    A("s_cmp_eq_u32 s30, 3"); A("s_cbranch_scc1 L_T3")
    if spf:
        A("s_cmp_eq_u32 s30, 1"); A("s_cbranch_scc1 L_T1")
    if pref:
        if not spf: A("s_cmp_eq_u32 s30, 2"); A("s_cbranch_scc0 " + LP)
        A.c("T2: pull the code into this XCD's L2")
        A("s_getpc_b64 s[34:35]")
        A("L_pc:")
        A(f"s_sub_u32 s34, s34, L_pc-{NAME}"); A("s_subb_u32 s35, s35, 0")
        A("s_lshl_b32 s33, s32, 9")
        A(f"v_min_u32 {vr(tT)}, 7, v0"); A(f"v_lshlrev_b32 {vr(tT)}, 6, {vr(tT)}"); A(f"v_add_u32 {vr(tT)}, s33, {vr(tT)}")
        A(f"global_load_dword {vr(tT+2)}, {vr(tT)}, s[34:35]")
    A("s_branch " + LP)
    if spf:
        A("L_T1:")
        A.c("T1: pull 14 rows of the wq column block that r=28..31 read (and of the last block) into L2")
        A("s_mul_i32 s33, s32, 14*8192"); A("s_lshl_b32 s34, s31, 10"); A("s_add_u32 s33, s33, s34"); A("s_addk_i32 s33, 384")
        A(f"v_min_u32 {vr(tT)}, 13, v1"); A(f"v_lshlrev_b32 {vr(tT)}, 13, {vr(tT)}")
        A(f"v_and_b32 {vr(tT+1)}, 1, v2"); A(f"v_lshl_add_u32 {vr(tT)}, {vr(tT+1)}, 6, {vr(tT)}")
        A(f"v_lshrrev_b32 {vr(tT+1)}, 1, v2"); A(f"v_lshl_add_u32 {vr(tT)}, {vr(tT+1)}, 9, {vr(tT)}")
        A(f"v_add_u32 {vr(tT)}, s33, {vr(tT)}")
        A("s_cmp_eq_u32 s31, 7"); A("s_cselect_b32 exec_hi, -1, 0")
        if spf == 2: A("s_and_b32 exec_hi, exec_hi, 0xffff"); A("s_mov_b32 exec_lo, 0xffff")
        A("s_waitcnt lgkmcnt(0)")
        A(f"global_load_dword {vr(tT+2)}, {vr(tT)}, s[10:11]")
        A("s_mov_b64 exec, -1")
        A("s_branch " + LP)
    A("L_T3:")
    A.c(f"T3 of {NLD} workgroup(s) per group: clear a share of the group's q and lse slots, then count in")
    per = 4 // NLD
    A(f"s_sub_u32 s36, s32, {LD0}"); A(f"s_cmp_lt_u32 s36, {NLD}"); A("s_cbranch_scc0 " + LP)
    for i in range(4): A(f"v_mov_b32 {vr(tT+4+i)}, -1")
    A("s_getreg_b32 s34, hwreg(HW_REG_XCC_ID, 0, 4)")
    if per > 1: A(f"s_mul_i32 s34, s34, {0x1111 & ((1 << (4*per)) - 1)}"); A(f"s_mul_i32 s36, s36, {per}")
    A("s_lshl_b32 s33, s36, 2"); A("s_lshl_b32 s34, s34, s33"); A(f"s_bitset1_b32 s34, {16 + per.bit_length() - 1}")
    A("s_lshl2_add_u32 s33, s31, s36"); A("s_lshl_b32 s35, s33, 13"); A(f"v_add_u32 {vr(tT)}, s35, v3")
    A("s_lshl_b32 s33, s33, 6"); A(f"s_add_u32 s33, s33, {W_L}")
    A(f"v_add_u32 {vr(tT+2)}, s33, v3")
    A("s_waitcnt lgkmcnt(0)")
    for k in range(2*per):
        for i in range(4): A(f"global_store_dwordx4 {vr(tT)}, {vr(tT+4,4)}, s[28:29] offset:{1024*i} {lp}")
        if k < 2*per - 1: A(f"v_add_u32 {vr(tT)}, 4096, {vr(tT)}")
    A(f"s_mov_b64 exec, {(1 << (4*per)) - 1}")
    A(f"global_store_dwordx4 {vr(tT+2)}, {vr(tT+4,4)}, s[28:29]")
    A("s_mov_b64 exec, -1")
    if b0:
        A("s_mov_b32 s46, s34")
    else:
        A("s_waitcnt vmcnt(0)")
        A("s_atomic_add s34, s[26:27], s63")
        stamp(1)
    A("s_branch " + LP)
    A("L_T0:")
    A.c("T0: x into LDS, clear this workgroup's share of the hand-off slots (acknowledged before q is published)")
    A(f"v_lshrrev_b32 {vr(vQw)}, 3, v0"); A(f"v_lshlrev_b32 {vr(vQw)}, 13, {vr(vQw)}"); A(f"v_and_b32 {vr(tT)}, 0x70, v3"); A(f"v_or_b32 {vr(vQw)}, {vr(vQw)}, {vr(tT)}")
    A(f"s_xor_b32 s34, s32, {qx}"); A("s_lshr_b32 s35, s34, 2"); A("s_lshl3_add_u32 s50, s31, s35"); A("s_lshl_b32 s50, s50, 7")
    A("s_and_b32 s48, s34, 3"); A("s_mul_i32 s34, s48, 112*8192"); A("s_add_u32 s50, s50, s34")
    qstep = 0x10000
    if "8" in hack:
        A(f"v_lshlrev_b32 {vr(vQw)}, 13, v2"); A(f"v_lshl_add_u32 {vr(vQw)}, v1, 4, {vr(vQw)}")
        A("s_lshr_b32 s35, s32, 3"); A("s_lshl2_add_u32 s50, s31, s35"); A("s_lshl_b32 s50, s50, 8")
        A("s_and_b32 s34, s32, 7"); A("s_mul_i32 s34, s34, 56*8192"); A("s_add_u32 s50, s50, s34"); qstep = 0x8000
    if "C" in hack:
        A(f"v_mov_b32 {vr(vQw)}, v3"); A("s_mul_i32 s50, s2, 14336"); qstep = 1024
    A("s_movk_i32 s58, 7168"); A("s_mov_b32 s59, 0x20000")
    A("s_lshl_b32 s33, s31, 15"); A("s_lshl_b32 s34, s32, 10"); A("s_add_u32 s33, s33, s34"); A(f"s_add_u32 s33, s33, {W_O}")
    A(f"v_add_u32 {vr(tT)}, s33, v3")
    brow("s33", "s31"); A("s_min_u32 s34, s32, 27"); A("s_lshl_b32 s34, s34, 9"); A("s_add_u32 s33, s33, s34"); A(f"s_add_u32 s33, s33, {W_B}")
    A("s_cmp_ge_u32 s32, 14"); A(f"s_cselect_b32 s34, {BH - 7168}, 0"); A("s_add_u32 s40, s33, s34")
    A("s_getreg_b32 s34, hwreg(HW_REG_XCC_ID, 2, 1)")
    if bph: A("s_xor_b32 s34, s34, 1")
    A("s_lshl_b32 s34, s34, 13"); A("s_add_u32 s33, s40, s34")
    A(f"v_add_u32 {vr(tT+1)}, s33, v3")
    A("s_lshl_b32 s33, s31, 5"); A("s_add_u32 s33, s33, s32"); A(f"s_mul_i32 s33, s33, {4*NM}"); A(f"s_add_u32 s33, s33, {W_T - 512}")
    A(f"v_add_u32 {vr(tT+2)}, s33, v3"); A("v_cmp_gt_u32 vcc, 32, v0"); A(f"v_cndmask_b32 {vr(tT+1)}, {vr(tT+2)}, {vr(tT+1)}, vcc")
    for i in range(4): A(f"v_mov_b32 {vr(vW+i)}, -1")
    A("s_waitcnt lgkmcnt(0)")
    A("s_mov_b64 s[56:57], s[4:5]")
    def xloads():
        A(f"s_mov_b32 m0, {L_X}"); A("s_movk_i32 s35, 4096")
        for t in range(4 if "x" not in hack else 0): A(f"buffer_load_dwordx4 v3, s[56:59], 0 offen offset:{1024*t} {spol} lds")
        A(f"s_mov_b32 m0, {L_X + 4096}")
        for t in range(3 if "x" not in hack else 0): A(f"buffer_load_dwordx4 v3, s[56:59], s35 offen offset:{1024*t} {spol} lds")
    if not xl: xloads()
    def clears():
        A(f"global_store_dwordx4 {vr(tT)}, {vr(vW,4)}, s[28:29] {lp}")
        A.c("lanes 0..31: 512 B of the row slots (r < 28); next lanes: this workgroup's table entries")
        A("s_cmp_lt_u32 s32, 28"); A("s_cselect_b32 exec_lo, -1, 0"); A(f"s_mov_b32 exec_hi, {(1 << (NM // 4)) - 1}")
        A(f"global_store_dwordx4 {vr(tT+1)}, {vr(vW,4)}, s[28:29] sc1")
        A("s_mov_b64 exec, -1")
    if not cl: clears()
    A("s_branch " + LP)
    if b0 == 4:
        A("L_b0:"); A("s_barrier"); A("s_branch L_prepw")

    A("L_S2:")
    A("v_and_b32 v1, 15, v0")
    A("v_lshrrev_b32 v2, 4, v0")
    A("s_mov_b64 s[56:57], s[8:9]"); A("s_mov_b32 s58, s54"); A("s_mov_b32 s59, 0x20000")
    A("s_mov_b32 s61, 0")
    for k in rot.split():
        reg, bit = SRC[k]
        A(f"s_bitcmp1_b32 {reg}, {bit}"); A("s_cselect_b32 s35, 256, 0"); A("s_xor_b32 s61, s61, s35")
    A(f"v_and_b32 {vr(vT)}, 1, v2"); A(f"v_lshlrev_b32 {vr(vT)}, 9, {vr(vT)}"); A(f"v_lshl_add_u32 {vr(vT)}, v1, 4, {vr(vT)}")
    A(f"v_lshrrev_b32 {vr(vT+1)}, 1, v2"); A(f"v_mul_u32_u24 {vr(vT+1)}, {M['r1']}, {vr(vT+1)}"); A(f"v_or_b32 {vr(vT)}, {vr(vT)}, {vr(vT+1)}")
    A("s_or_b32 s35, s38, s61")
    A(f"v_xor_b32 {vr(vVb)}, s35, {vr(vT)}")
    A(f"v_mov_b32 {vr(vT+3)}, v1")
    A(f"v_and_b32 {vr(vT)}, 3, v1"); A(f"v_lshrrev_b32 {vr(vT+1)}, 2, v1")
    A(f"v_lshl_add_u32 {vr(vT+2)}, {vr(vT)}, 2, {vr(vT+1)}")
    A(f"v_xor_b32 {vr(vT+3)}, {vr(vT+3)}, v2")
    A(f"v_lshlrev_b32 {vr(vT+2)}, 9, {vr(vT+2)}"); A(f"v_add_u32 {vr(vT+2)}, s37, {vr(vT+2)}")
    A(f"v_lshl_add_u32 {vr(vKA)}, {vr(vT+3)}, 4, {vr(vT+2)}")
    for t in range(1, 4): A(f"v_xor_b32 {vr(vKA+t)}, {64*t}, {vr(vKA)}")
    A(f"v_lshrrev_b32 {vr(vT)}, 3, v1")
    A(f"v_lshlrev_b32 {vr(vQA)}, 9, {vr(vT)}"); A(f"v_lshl_add_u32 {vr(vQA)}, v2, 4, {vr(vQA)}")
    A(f"v_add_u32 {vr(vQA)}, {L_Q}, {vr(vQA)}")
    A(f"v_lshlrev_b32 {vr(vSTr)}, 5, {vr(vT)}"); A(f"v_add_u32 {vr(vSTr)}, {L_STAT}, {vr(vSTr)}")
    A("s_lshl_b32 s35, s33, 2"); A(f"v_add_u32 {vr(vSTw)}, s35, {vr(vSTr)}")
    def delta(dst, val, t0):
        A(f"v_and_b32 {vr(t0)}, 16, v3")
        A(f"v_mov_b32 {vr(t0+1)}, {val}"); A(f"v_lshlrev_b32 {vr(t0+1)}, {vr(t0)}, {vr(t0+1)}")
        A(f"v_bfe_u32 {vr(t0)}, v1, 1, 2")
        for i in range(4):
            A(f"v_cmp_eq_u32 vcc, {i}, {vr(t0)}")
            A(f"v_cndmask_b32 {vr(dst+i)}, 0, {vr(t0+1)}, vcc")
    delta(vM, "0xffff", vT)
    A(f"v_and_b32 {vr(vT)}, 1, v2"); A(f"v_lshlrev_b32 {vr(vT)}, 4, {vr(vT)}")
    A(f"v_lshrrev_b32 {vr(vT+1)}, 1, v2"); A(f"v_lshl_add_u32 {vr(vT)}, {vr(vT+1)}, 10, {vr(vT)}")
    A(f"v_lshl_add_u32 {vr(vT)}, v1, 5, {vr(vT)}")
    A("s_lshl_b32 s35, s33, 11"); A(f"s_add_u32 s35, s35, {L_OP}")
    for dh in range(2):
        A(f"s_xor_b32 s38, s61, {dh << 8}"); A("s_lshl1_add_u32 s38, s38, s35")
        A(f"v_add_u32 {vr(vOPa+dh)}, s38, {vr(vT)}")
    if WE:
        A("s_getreg_b32 s35, hwreg(HW_REG_XCC_ID, 0, 3)"); A(f"s_bitcmp1_b32 {WEM}, s35"); A("s_cselect_b64 vcc, -1, 0")
    nv = [0]; b2done = [False]
    def bitperm(p): return [sum(((n_ >> k) & 1) << p[k] for k in range(len(p))) for n_ in range(1 << len(p))]
    vord = bitperm(ve) if ve else list(range(32))
    if vord[30] & 1 == 0: vord[29], vord[30] = vord[30], vord[29]
    last0 = max(k for k in range(32) if vord[k] & 1 == 0)
    seen_acc = set()
    def more(k):
        for _ in range(k):
            if nv[0] < 32:
                idx = vord[nv[0]]; tl, e = idx >> 3, idx & 7
                ad = vVb
                if idx in vpre: ad = vpre[idx]
                elif idx:
                    ad = vAd + (nv[0] & 1); A(f"v_xor_b32 {vr(ad)}, {gaddr(e & 6, tl) | ((e & 1) << 8)}, {vr(vVb)}")
                throttle()
                A(f"buffer_load_dwordx4 {vr(vVv+4*idx,4)}, {vr(ad)}, s[56:59], s40 offen {pol if vpol is None else vpol}")
                nv[0] += 1
                if nv[0] == 32 - EP:
                    assert b2done[0]
                    A("s_barrier")
    if pa:
        for n_, x in enumerate(kord[8:]):
            kpre[(x >> 3, x & 7)] = vQ + n_; A(f"v_xor_b32 {vr(vQ+n_)}, {X(x & 7, x >> 3)}, {vr(vKb)}")
        for n_ in range(1, pa):
            idx = vord[n_]; vpre[idx] = vQ + 24 + n_; A(f"v_xor_b32 {vr(vQ+24+n_)}, {gaddr(idx & 6, idx >> 3) | ((idx & 1) << 8)}, {vr(vVb)}")
    seq = []; placed = 0
    for n_, (tl, i) in enumerate((x >> 3, x & 7) for x in kord[8:]):
        while placed < vk and placed * 24 <= n_ * vk: seq.append(("v",)); placed += 1
        seq.append(("k", tl, i))
    lastk = len(seq)
    seq += [("v",)] * (32 - placed)
    pos = 0
    def adv(n):
        nonlocal pos
        for _ in range(n):
            it = seq[pos]; pos += 1
            if pos - 1 == vt:
                A.c("touch the V page ahead of its first use (value unused)")
                A("s_mov_b64 exec, 1"); throttle()
                A(f"buffer_load_dword {vr(vS)}, {vr(vVb)}, s[56:59], s40 offen {pol}"); A("s_mov_b64 exec, -1")
            if it[0] == "k": kload(it[1], it[2])
            else: more(1)
    if cpos == "b0b":
        adv(BP - 8); A("s_barrier")
        adv(24 + QPOS - (BP - 8))
    else: adv(24 + QPOS)
    stamp(6)
    A("s_barrier")
    stamp(7)
    adv(W + QD)
    assert pos - lastk >= W
    stamp(1)
    if prio == 3: A("s_setprio 2")
    A("s_barrier")
    stamp(2)
    for t in range(8):
        A(f"ds_read_b128 {vr(vQ+4*t,4)}, {vr(vQA)} offset:{64*t}")
    for tl in range(4):
        for t in range(8):
            A(f"ds_read_b128 {vr(vKF+4*t,4)}, {vr(vKA+(t&3))} offset:{tl*8192 + (t>>2)*256}")
        for t in range(8):
            A(f"s_waitcnt lgkmcnt({7-t})")
            c = "0" if t == 0 else vr(vS+4*tl, 4)
            A(f"v_mfma_f32_16x16x32_bf16 {vr(vS+4*tl,4)}, {vr(vKF+4*t,4)}, {vr(vQ+4*t,4)}, {c}")
        more(1)
    SC = math.log2(math.e) / 16.0
    A(f"s_mov_b32 s35, {f32(SC)}")
    mx = vT; cp = vT + 1; ls = vT + 2
    A(f"v_max3_f32 {vr(mx)}, {vr(vS)}, {vr(vS+1)}, {vr(vS+2)}")
    for i in range(3, 15, 2):
        A(f"v_max3_f32 {vr(mx)}, {vr(mx)}, {vr(vS+i)}, {vr(vS+i+1)}")
    A(f"v_max_f32 {vr(mx)}, {vr(mx)}, {vr(vS+15)}")
    def xg(x, op):
        for sw in ("v_permlane32_swap_b32", "v_permlane16_swap_b32"):
            A(f"v_mov_b32 {vr(cp)}, {vr(x)}")
            A(f"{sw} {vr(x)}, {vr(cp)}")
            A(f"{op} {vr(x)}, {vr(x)}, {vr(cp)}")
    xg(mx, "v_max_f32")
    A(f"v_mul_f32 {vr(mx)}, s35, {vr(mx)}")
    for i in range(16):
        A(f"v_fma_f32 {vr(vS+i)}, {vr(vS+i)}, s35, -{vr(mx)}")
    for i in range(16):
        A(f"v_exp_f32 {vr(vS+i)}, {vr(vS+i)}")
    A(f"v_add_f32 {vr(ls)}, {vr(vS)}, {vr(vS+1)}")
    for i in range(2, 16):
        A(f"v_add_f32 {vr(ls)}, {vr(ls)}, {vr(vS+i)}")
    xg(ls, "v_add_f32")
    A(f"ds_write2_b32 {vr(vSTw)}, {vr(mx)}, {vr(ls)} offset0:0 offset1:4")
    more(1)
    A("s_waitcnt lgkmcnt(0)")
    A("s_barrier")
    b2done[0] = True
    stamp(3)
    def stats(m4, l4, M, Lr):
        A(f"v_max3_f32 {vr(M)}, {vr(m4)}, {vr(m4+1)}, {vr(m4+2)}"); A(f"v_max_f32 {vr(M)}, {vr(M)}, {vr(m4+3)}")
        for i in range(4): A(f"v_sub_f32 {vr(m4+i)}, {vr(m4+i)}, {vr(M)}")
        for i in range(4): A(f"v_exp_f32 {vr(m4+i)}, {vr(m4+i)}")
        A(f"v_mul_f32 {vr(Lr)}, {vr(m4)}, {vr(l4)}")
        for i in range(1, 4): A(f"v_fmac_f32 {vr(Lr)}, {vr(m4+i)}, {vr(l4+i)}")
    A(f"ds_read_b128 {vr(vAcc,4)}, {vr(vSTr)}")
    A(f"ds_read_b128 {vr(vAcc+4,4)}, {vr(vSTr)} offset:16")
    more(1)
    A("s_waitcnt lgkmcnt(0)")
    stats(vAcc, vAcc + 4, vT + 3, vT + 4)
    A(f"v_sub_f32 {vr(mx)}, {vr(mx)}, {vr(vT+3)}")
    A(f"v_exp_f32 {vr(mx)}, {vr(mx)}")
    A(f"v_rcp_f32 {vr(vT+4)}, {vr(vT+4)}")
    A(f"v_mul_f32 {vr(mx)}, {vr(mx)}, {vr(vT+4)}")
    for i in range(16):
        A(f"v_mul_f32 {vr(vS+i)}, {vr(vS+i)}, {vr(mx)}")
        A(f"v_cvt_pk_bf16_f32 {vr(vS+i)}, {vr(vS+i)}, {vr(vS+i)}")
        for k in range(4):
            A(f"v_and_b32 {vr(vA+4*i+k)}, {vr(vS+i)}, {vr(vM+k)}")
        if i % 8 == 7: more(1)
    stamp(4)
    done = 0
    def pv(k):
        idx = vord[k]
        i, dh = idx >> 1, idx & 1
        c = "0" if dh not in seen_acc else vr(vAcc+4*dh, 4)
        seen_acc.add(dh)
        A(f"v_mfma_f32_16x16x32_bf16 {vr(vAcc+4*dh,4)}, {vr(vA+4*i,4)}, {vr(vVv+4*idx,4)}, {c}")
    while nv[0] < 32:
        more(1)
        lim = min(nv[0] - W, done + 4)
        while done < lim: pv(done); done += 1
    while done < 32:
        if 31 - done < W: A(f"s_waitcnt vmcnt({31-done})")
        pv(done); done += 1
        if done == 31:
            assert last0 <= 29 and vord[31] & 1
            A(f"ds_write_b128 {vr(vOPa)}, {vr(vAcc,4)}")
    if m7:
        A(f"ds_write_b64 {vr(vOPa+1)}, {vr(vAcc+4,2)}"); A(f"ds_write_b64 {vr(vOPa+1)}, {vr(vAcc+6,2)} offset:8")
    else: A(f"ds_write_b128 {vr(vOPa+1)}, {vr(vAcc+4,4)}")
    stamp(5)
    A("s_waitcnt lgkmcnt(0)")
    A("s_barrier")
    if wbs and "E" not in skip:
        A.c("one wave per group stays to write the spent hand-off lines back ahead of the end of the kernel")
        A("s_cmp_eq_u32 s30, 4"); A("s_cselect_b32 s33, s32, -1"); A(f"s_cmp_eq_u32 s33, {wbr}"); A("s_cbranch_scc0 L_send")
        nb = 4 if "b" in bx else 3
        for k in range(nb):
            if k == wbs - 1: A("buffer_wbl2 sc1")
            A("s_barrier")
        A("L_send:")
    dump_stamps(9)
    A("s_endpgm")

    vT = tT
    A("L_prepw:")
    A("s_waitcnt lgkmcnt(0)")
    if b0 == 1: A("s_barrier")
    if cpos == "early": prep_loads()
    if b0 == 2: A("s_barrier")
    A("s_mov_b64 s[52:53], s[10:11]"); A("s_mov_b32 s54, 0x380000"); A("s_mov_b32 s55, 0x20000")
    if xl: A("s_mov_b64 s[56:57], s[4:5]"); A("s_movk_i32 s58, 7168"); A("s_mov_b32 s59, 0x20000")
    nq = [0]
    def wq_loads(n):
        if not n or "q" in skip: return
        A("s_cmp_eq_u32 s30, 0"); A(f"s_cbranch_scc0 L_nq{nq[0]}")
        lab = f"L_nq{nq[0]}:"
        for _ in range(n):
            A(f"s_mov_b32 m0, {L_WQ + 1024*nq[0]}")
            if qpace and nq[0] >= qpace: A(f"s_waitcnt vmcnt({qpace-1})")
            A(f"buffer_load_dwordx4 {vr(vQw)}, s[52:55], s50 offen {qpol} lds")
            A(f"s_add_u32 s50, s50, {qstep}")
            nq[0] += 1
            if xl and nq[0] == xl: xloads()
            if cl and nq[0] == 14: clears()
        A(lab)
    wq_loads(wq1)
    if b0 == 3: A("s_barrier")
    wq_loads(14 - wq1)
    if b0:
        A("s_cmp_eq_u32 s46, 0"); A("s_cbranch_scc1 L_nolead")
        A("s_waitcnt vmcnt(4)" if cpos == "early" else "s_waitcnt vmcnt(0)")
        A("s_atomic_add s46, s[26:27], s63")
        A("L_nolead:")
    def wo_addr():
        A("s_bfe_u32 s34, s32, 0x10001"); A("s_lshl1_add_u32 s33, s31, s34"); A("s_lshl2_add_u32 s33, s33, s30"); A("s_lshl_b32 s33, s33, 6")
        A("s_mul_i32 s33, s33, 896"); A("s_lshr_b32 s34, s32, 2"); A("s_min_u32 s34, s34, 6"); A("s_lshl_b32 s34, s34, 7"); A("s_add_u32 s51, s33, s34")
        if "O" in hack: A("s_mul_i32 s33, s31, 14"); A("s_lshr_b32 s34, s32, 1"); A("s_add_u32 s33, s33, s34"); A("s_lshl2_add_u32 s33, s33, s30"); A("s_lshl_b32 s51, s33, 13")
        A(f"v_lshrrev_b32 {vr(vWa)}, 3, v0"); A(f"v_mul_u32_u24 {vr(vWa)}, 896, {vr(vWa)}")
        A(f"v_and_b32 {vr(vT+4)}, 16, v0"); A(f"v_lshlrev_b32 {vr(vT+4)}, 1, {vr(vT+4)}"); A(f"v_and_b32 {vr(vT+5)}, 0x70, v3"); A(f"v_xor_b32 {vr(vT+4)}, {vr(vT+4)}, {vr(vT+5)}")
        A(f"v_xor_b32 {vr(vT+5)}, 64, {vr(vT+4)}"); A(f"v_add_u32 {vr(vWa+1)}, {vr(vWa)}, {vr(vT+5)}"); A(f"v_add_u32 {vr(vWa)}, {vr(vWa)}, {vr(vT+4)}")
        A(f"v_lshrrev_b32 {vr(vT+4)}, 2, v1"); A(f"v_lshl_add_u32 {vr(vT+4)}, v2, 3, {vr(vT+4)}"); A(f"v_lshlrev_b32 {vr(vT+4)}, 7, {vr(vT+4)}")
        A(f"v_bfe_u32 {vr(vT+5)}, v0, 3, 2"); A(f"v_lshl_add_u32 {vr(vT+4)}, {vr(vT+5)}, 5, {vr(vT+4)}")
        A(f"v_and_b32 {vr(vT+5)}, 3, v0"); A(f"v_lshl_add_u32 {vr(vT+4)}, {vr(vT+5)}, 3, {vr(vT+4)}")
        A("s_lshl_b32 s61, s30, 13"); A(f"v_add_u32 {vr(vWr)}, s61, {vr(vT+4)}")
    def wo_loads(i0, i1, tag):
        if i0 >= i1: return
        A("s_cmp_ge_u32 s32, 28" if "o" not in skip else "s_cmp_ge_u32 s32, 0"); A(f"s_cbranch_scc1 L_nowo{tag}")
        for i in range(i0, i1):
            A(f"s_add_u32 m0, s61, {1024*i}"); A(f"s_add_u32 s33, s51, {8*896*i if 'O' not in hack else 1024*i}")
            A(f"buffer_load_dwordx4 {vr(vWa+(i&1)) if 'O' not in hack else 'v3'}, s[56:59], s33 offen {opol} lds")
        A(f"L_nowo{tag}:")
    def wo_frags(tts=(0, 1)):
        for nt in range(4):
            for tt in tts:
                for hh in range(2):
                    A(f"ds_read_b64_tr_b16 {vr(vW+16*tt+4*nt+2*hh,2)}, {vr(vWr if nt == 0 else vRaw+nt)} offset:{4096*tt + 512*hh}")
    A.c("tail constants")
    A("s_mov_b32 s49, 0")
    wo_addr()
    if tl_:
        A.c("one scalar read per page that is first used later (V, wo, out): the translation is ready by then; values unused")
        A(f"s_cmp_eq_u32 s30, {tlw}"); A("s_cbranch_scc0 L_notl")
        if tl_ & 1:
            A("s_lshr_b32 s33, s2, 5"); A("s_lshl3_add_u32 s33, s33, s31"); A("s_lshl2_add_u32 s33, s33, 3"); A("s_lshl_b32 s33, s33, 12"); A("s_add_u32 s33, s33, s32"); A("s_lshl_b32 s33, s33, 7")
            A("s_load_dword s46, s[8:9], s33")
        if tl_ & 2:
            A("s_load_dword s47, s[12:13], s51")
        if tl_ & 4:
            A("s_mul_i32 s34, s31, 896")
            A("s_load_dword s48, s[24:25], s34")
        A("L_notl:")
    A(f"s_xor_b32 s34, s32, {qx}"); A("s_and_b32 s35, s34, 3"); A("s_lshr_b32 s34, s34, 2"); A("s_lshl3_add_u32 s34, s35, s34"); A("s_lshl_b32 s34, s34, 7")
    A("s_lshl_b32 s39, s31, 15"); A("s_add_u32 s34, s34, s39")
    A(f"v_and_b32 {vr(vQa)}, 7, v1"); A(f"v_lshlrev_b32 {vr(vQa)}, 12, {vr(vQa)}"); A(f"v_lshl_add_u32 {vr(vQa)}, v2, 4, {vr(vQa)}"); A(f"v_add_u32 {vr(vQa)}, s34, {vr(vQa)}")
    def publish_q():
        A("s_getreg_b32 s47, hwreg(HW_REG_XCC_ID, 0, 4)")
        A("s_mul_i32 s47, s47, 0x1111"); A("s_bitset1_b32 s47, 18")
        if force_slow: A("s_cmp_eq_u32 s32, 5"); A("s_cselect_b32 s47, 0, s47")
        A("s_waitcnt lgkmcnt(0)")
        A("s_cmp_eq_u32 s46, s47")
        A("s_cbranch_scc0 L_f1slow")
        A("L_same:")
        A("s_mov_b32 s41, s46")
        A.c("the slots were cleared in this XCD's L2: publish there")
        A("s_mov_b32 exec_lo, 0x00ff00ff"); A("s_mov_b32 exec_hi, 0x00ff00ff")
        for k in range(2): A(f"global_store_dwordx4 {vr(vQa)}, {vr(vQs+4*k,4)}, s[28:29] offset:{64*k} {lp}")
        A("s_mov_b64 exec, -1")
        stamp(3)
        A("L_nopub:")
        def ool():
            A("L_f1slow:")
            if cnt: A("s_mov_b32 s90, 1")
            A(f"v_mov_b32 {vr(vT+20)}, s63")
            A("s_mov_b32 s35, 0")
            A("L_f1l:")
            A("s_cmp_ge_u32 s46, 0x40000")
            A("s_cbranch_scc1 L_f1d")
            A(f"global_load_dword {vr(vT+21)}, {vr(vT+20)}, s[26:27] sc1")
            A("s_add_u32 s35, s35, 1")
            A("s_waitcnt vmcnt(0)")
            A(f"v_readfirstlane_b32 s46, {vr(vT+21)}")
            A(f"s_cmp_lt_u32 s35, {SPIN}")
            A("s_cbranch_scc1 L_f1l")
            A("L_f1d:")
            A("s_cmp_eq_u32 s46, s47")
            A("s_cbranch_scc1 L_same")
            A.c("cleared on another XCD: tell the group, publish nothing here")
            A("s_mov_b32 s41, s46"); A("s_add_u32 s46, s63, 32"); A("s_mov_b32 s47, 1")
            A("s_atomic_add s47, s[26:27], s46 glc")
            A("s_waitcnt lgkmcnt(0)")
            A("s_mov_b32 s49, 1")
            A("s_branch L_nopub")
        OOL.append(ool)
    brow("s33", "s31"); A("s_mul_i32 s34, s30, 224"); A("s_add_u32 s33, s33, s34"); A(f"s_add_u32 s33, s33, {W_B}")
    A(f"v_min_u32 {vr(vT+4)}, 13, v1")
    A(f"v_mul_u32_u24 {vr(vBa)}, 3584, v2"); A(f"v_lshl_add_u32 {vr(vBa)}, {vr(vT+4)}, 4, {vr(vBa)}"); A(f"v_add_u32 {vr(vBa)}, s33, {vr(vBa)}")
    A(f"v_lshrrev_b32 {vr(vT+5)}, 1, v2"); A(f"v_mul_u32_u24 {vr(vT+5)}, {BH - 7168}, {vr(vT+5)}"); A(f"v_add_u32 {vr(vBa)}, {vr(vBa)}, {vr(vT+5)}")
    A("v_cmp_gt_u32 s[42:43], 14, v1")
    A(f"v_lshrrev_b32 {vr(vT+6)}, 5, v0")
    A("s_lshl_b32 s34, s30, 3"); A(f"s_add_u32 s34, s34, {L_HS}")
    A(f"v_lshlrev_b32 {vr(vHsw)}, 2, {vr(vT+6)}"); A(f"v_add_u32 {vr(vHsw)}, s34, {vr(vHsw)}")
    A(f"v_cvt_f32_u32 {vr(vKs)}, {vr(vT+6)}"); A(f"v_sub_f32 {vr(vKs+2)}, 1.0, {vr(vKs)}")
    for i in (0, 2): A(f"v_mul_f32 {vr(vKs+i)}, {f32(1.0/448)}, {vr(vKs+i)}")
    delta(vDl, "0x3f80", vT + 8)
    A("s_mul_i32 s33, s31, 896"); A("s_mul_i32 s34, s30, 224"); A("s_add_u32 s33, s33, s34")
    A(f"v_and_b32 {vr(vT+5)}, 1, v2"); A(f"v_lshlrev_b32 {vr(vXa)}, 4, {vr(vT+4)}"); A(f"v_lshl_add_u32 {vr(vXa)}, {vr(vT+5)}, 3, {vr(vXa)}"); A(f"v_add_u32 {vr(vXa)}, s33, {vr(vXa)}")
    A(f"v_lshl_add_u32 {vr(vOut)}, {vr(vT+6)}, 2, {vr(vXa)}")
    A("s_lshl_b32 s34, s30, 7"); A(f"s_add_u32 s34, s34, {L_LT}")
    A(f"v_lshlrev_b32 {vr(vLT)}, 3, {vr(vT+5)}"); A(f"v_lshl_add_u32 {vr(vLT)}, {vr(vT+6)}, 2, {vr(vLT)}"); A(f"v_add_u32 {vr(vLT)}, s34, {vr(vLT)}")
    A("s_lshl_b32 s33, s31, 5"); A("s_add_u32 s33, s33, s32"); A(f"s_mul_i32 s34, s33, {4*NM}"); A(f"s_add_u32 s34, s34, {W_T}")
    A(f"v_lshlrev_b32 {vr(vTs)}, 2, v1"); A(f"v_add_u32 {vr(vTs)}, s34, {vr(vTs)}")
    A(f"s_mul_i32 s96, s33, {NM << 16}"); A(f"s_add_u32 s96, s96, {E0 << 23}"); A("s_xor_b32 s97, s96, 0x80000000")
    A("s_lshl_b32 s33, s31, 8"); A(f"s_add_u32 s33, s33, {W_L}"); A("s_and_b32 s34, s32, 3"); A("s_lshl_b32 s34, s34, 6"); A("s_add_u32 s34, s34, s33")
    A(f"v_lshlrev_b32 {vr(vLa)}, 4, v2"); A(f"v_add_u32 {vr(vLa)}, s34, {vr(vLa)}")
    A("s_lshl2_add_u32 s34, s32, s33")
    A(f"v_lshlrev_b32 {vr(vLst)}, 7, v0"); A(f"v_add_u32 {vr(vLst)}, s34, {vr(vLst)}")
    A(f"s_add_u32 s33, s39, {W_O}")
    A("s_and_b32 s35, s32, 1"); A("s_bfe_u32 s36, s32, 0x10001")
    A("s_lshl1_add_u32 s34, s35, s36"); A("s_lshl2_add_u32 s34, s34, s30"); A("s_lshl_b32 s34, s34, 11"); A("s_add_u32 s34, s34, s33")
    A(f"v_add_u32 {vr(vOa)}, s34, v3")
    A("s_lshl2_add_u32 s60, s35, s30")
    A("s_lshl1_add_u32 s34, s31, s36"); A("s_mul_i32 s34, s34, 896"); brow("s36", "s60"); A("s_add_u32 s34, s34, s36")
    A("s_cmp_ge_u32 s31, 4"); A(f"s_cselect_b32 s36, {BH - 7168}, 0"); A("s_add_u32 s34, s34, s36")
    A("s_lshr_b32 s36, s32, 2"); A("s_min_u32 s36, s36, 6"); A("s_lshl_b32 s36, s36, 7")
    A("s_add_u32 s34, s34, s36"); A(f"s_add_u32 s34, s34, {W_B}")
    if m4: A(f"v_and_b32 {vr(vBst)}, 31, v0"); A(f"v_lshlrev_b32 {vr(vBst)}, 2, {vr(vBst)}")
    else: A(f"v_lshlrev_b32 {vr(vBst)}, 3, v1")
    A(f"v_add_u32 {vr(vBst)}, s34, {vr(vBst)}")
    A("s_lshr_b32 s34, s32, 4"); A("s_lshl2_add_u32 s34, s34, s30"); A("s_lshl_b32 s34, s34, 12"); A("s_add_u32 s34, s34, s33")
    A("s_and_b32 s36, s32, 15"); A("s_lshl4_add_u32 s34, s36, s34")
    A(f"v_lshrrev_b32 {vr(vOst)}, 2, v0"); A(f"v_lshlrev_b32 {vr(vOst)}, 8, {vr(vOst)}"); A(f"v_and_b32 {vr(vT+4)}, 3, v0")
    A(f"v_lshl_add_u32 {vr(vOst)}, {vr(vT+4)}, 2, {vr(vOst)}"); A(f"v_add_u32 {vr(vOst)}, s34, {vr(vOst)}")
    A("s_lshl_b32 s34, s30, 8"); A(f"s_add_u32 s34, s34, {L_PP}")
    if m4: A(f"v_and_b32 {vr(vPPr)}, 31, v0"); A(f"v_lshlrev_b32 {vr(vPPr)}, 3, {vr(vPPr)}")
    else: A(f"v_lshlrev_b32 {vr(vPPr)}, 4, v1")
    A(f"v_add_u32 {vr(vPPr)}, s34, {vr(vPPr)}")
    A("s_lshl_b32 s34, s30, 9"); A(f"s_add_u32 s34, s34, {L_OP}")
    A(f"v_lshlrev_b32 {vr(vOPr)}, 3, v0"); A(f"v_add_u32 {vr(vOPr)}, s34, {vr(vOPr)}")
    A("s_lshl_b32 s34, s30, 10"); A(f"s_add_u32 s34, s34, {L_PP}")
    A(f"v_lshlrev_b32 {vr(vPPa)}, 2, v1"); A(f"v_lshl_add_u32 {vr(vPPa)}, v2, 8, {vr(vPPa)}"); A(f"v_add_u32 {vr(vPPa)}, s34, {vr(vPPa)}")
    A("s_mov_b32 s38, 0xffff0000")
    def qproj(after=0):
        A("s_cmp_eq_u32 s30, 0"); A("s_cbranch_scc0 L_nopub")
        A.c("T0: q projection, 64 columns x a quarter of the rows, all 8 batches; LayerNorm applied after the product")
        A("s_mov_b32 s34, 0x3f803f80")
        for i in range(56): A(f"v_mov_b32 {vr(vX+i)}, s34")
        A(f"v_and_b32 {vr(tT+1)}, 7, v1"); A(f"v_mul_u32_u24 {vr(tT+1)}, 896, {vr(tT+1)}"); A(f"v_add_u32 {vr(tT+1)}, {L_X}, {vr(tT+1)}")
        A(f"v_lshl_add_u32 {vr(tT)}, v2, 4, {vr(tT+1)}")
        A("s_mul_i32 s33, s48, 224"); A(f"v_lshl_add_u32 {vr(tT+1)}, v2, 3, {vr(tT+1)}"); A(f"v_add_u32 {vr(tT+1)}, s33, {vr(tT+1)}")
        A(f"v_lshrrev_b32 {vr(tT+2)}, 2, v0"); A(f"v_lshlrev_b32 {vr(tT+2)}, 7, {vr(tT+2)}"); A(f"v_and_or_b32 {vr(tT+2)}, v3, 48, {vr(tT+2)}")
        A(f"v_add_u32 {vr(tT+2)}, {L_WQ}, {vr(tT+2)}")
        A(f"v_bfe_u32 {vr(tT+3)}, v1, 2, 1"); A(f"v_lshl_add_u32 {vr(tT+3)}, {vr(tT+3)}, 4, v1"); A(f"v_lshlrev_b32 {vr(tT+3)}, 2, {vr(tT+3)}")
        A(f"v_lshlrev_b32 {vr(tT+4)}, 2, v1"); A(f"v_add_u32 {vr(tT+4)}, 128, {vr(tT+4)}")
        A(f"v_and_b32 {vr(tT+5)}, 3, v1")
        sm = ('', 's[6:7]', 's[8:9]', 's[14:15]')
        for i in range(1, 4): A(f"v_cmp_eq_u32 {sm[i]}, {i}, {vr(tT+5)}")
        D1 = vX + 16; D2 = tT + 8; wf = vW
        A("s_mov_b32 exec_lo, 0x00ff00ff"); A("s_mov_b32 exec_hi, 0x00ff00ff")
        A(f"s_waitcnt vmcnt({14 + after})")
        for t in range(14): A(f"ds_read_b128 {vr(vX+4*t,4)}, {vr(tT)} offset:{64*t}")
        A("s_mov_b64 exec, -1")
        for t in range(14):
            A(f"s_waitcnt lgkmcnt({13-t})")
            c = "0" if t == 0 else vr(D2, 4)
            A(f"v_mfma_f32_16x16x32_bf16 {vr(D2,4)}, {vr(vX+4*t,4)}, {vr(vX+4*t,4)}, {c}")
        for i in range(1, 4): A(f"v_cndmask_b32 {vr(D2)}, {vr(D2)}, {vr(D2+i)}, {sm[i]}")
        A(f"ds_bpermute_b32 {vr(tT+6)}, {vr(tT+3)}, {vr(D2)}")
        A(f"ds_bpermute_b32 {vr(tT+7)}, {vr(tT+4)}, {vr(D2)}")
        A("s_mov_b32 exec_lo, 0x00ff00ff"); A("s_mov_b32 exec_hi, 0x00ff00ff")
        for t in range(7): A(f"ds_read_b64 {vr(vX+2*t,2)}, {vr(tT+1)} offset:{32*t}")
        A("s_mov_b64 exec, -1")
        A(f"s_mov_b32 s33, {f32(1.0/448)}")
        A("s_waitcnt lgkmcnt(0)")
        A(f"v_mul_f32 {vr(tT+7)}, s33, {vr(tT+7)}")
        A(f"v_mul_f32 {vr(tT+6)}, s33, {vr(tT+6)}")
        A(f"v_fma_f32 {vr(tT+6)}, -{vr(tT+7)}, {vr(tT+7)}, {vr(tT+6)}")
        A(f"v_max_f32 {vr(tT+6)}, 0, {vr(tT+6)}")
        A(f"v_add_f32 {vr(tT+6)}, {f32(1e-5)}, {vr(tT+6)}")
        A(f"v_rsq_f32 {vr(tT+6)}, {vr(tT+6)}")
        A(f"s_waitcnt vmcnt({after})")
        if lk == 0: A("s_load_dword s46, s[26:27], s63")
        stamp(1)
        for np_ in range(2):
            for t in range(7):
                for e in range(2):
                    A(f"ds_read_b64_tr_b16 {vr(wf+4*t+2*e,2)}, {vr(tT+2)} offset:{2048*t + 64*np_ + 8*e}")
            for t in range(7):
                A(f"s_waitcnt lgkmcnt({12-2*t})")
                for e in range(2):
                    D = D1 + 8*np_ + 4*e
                    c = "0" if t == 0 else vr(D, 4)
                    A(f"v_mfma_f32_16x16x16_bf16 {vr(D,4)}, {vr(wf+4*t+2*e,2)}, {vr(vX+2*t,2)}, {c}")
        if lk == 1: A("s_load_dword s46, s[26:27], s63")
        for i0 in (0, 8):
            for i in range(8):
                A(f"v_mul_f32_dpp {vr(D2+i)}, {vr(D1+i0+i)}, {vr(tT+7)} row_newbcast:8 row_mask:0xf bank_mask:0xf")
            for i in range(8):
                A(f"v_sub_f32 {vr(D2+i)}, {vr(D1+i0+i)}, {vr(D2+i)}")
                A(f"v_mul_f32 {vr(D2+i)}, {vr(D2+i)}, {vr(tT+6)}")
            for i in range(4):
                A(f"v_cvt_pk_bf16_f32 {vr(vQs+i0//2+i)}, {vr(D2+2*i)}, {vr(D2+2*i+1)}")
                A(f"v_min_u32 {vr(vQs+i0//2+i)}, -2, {vr(vQs+i0//2+i)}")
        publish_q()
    wE = vC; bE = vC + 14; w2 = vC + 28; cB = vC + 42; cA = vC + 44; Ac = vC + 46; uu = vRaw + 4; pz = vRaw + 18
    def conv():
        A(f"v_and_b32 {vr(vT+4)}, 16, v3")
        for k in range(3):
            for i in range(3): A(f"v_alignbit_b32 {vr(raw+4*k+i)}, {vr(raw+4*k+i+1)}, {vr(raw+4*k+i)}, {vr(vT+4)}")
            A(f"v_lshrrev_b32 {vr(raw+4*k+3)}, {vr(vT+4)}, {vr(raw+4*k+3)}")
            for i in range(7):
                d = (wE, bE, w2)[k] + 2*i
                if i & 1: A(f"v_and_b32 {vr(d)}, s38, {vr(raw+4*k+(i>>1))}")
                else: A(f"v_lshlrev_b32 {vr(d)}, 16, {vr(raw+4*k+(i>>1))}")
        A(f"v_mov_b32 {vr(cB)}, {f32(BETA)}"); A(f"v_mov_b32 {vr(cA)}, {f32(ALPHA)}")
        A(f"v_lshlrev_b32 {vr(vB2)}, 16, {vr(vB2)}")
    def tab_publish():
        A("s_cmp_eq_u32 s30, 2"); A("s_cbranch_scc0 L_notp")
        A.c("T2: add the four waves' sums and b2, publish the table entries")
        A(f"v_lshlrev_b32 {vr(vT+8)}, 3, v1"); A(f"v_add_u32 {vr(vT+8)}, {L_LT}, {vr(vT+8)}")
        for w_ in range(4): A(f"ds_read_b64 {vr(vT+10+2*w_,2)}, {vr(vT+8)} offset:{128*w_}")
        A("s_waitcnt lgkmcnt(0)")
        for w_ in range(1, 4): A(f"v_pk_add_f32 {vr(vT+10,2)}, {vr(vT+10,2)}, {vr(vT+10+2*w_,2)}")
        A(f"v_add_f32 {vr(vT+10)}, {vr(vT+10)}, {vr(vB2)}"); A(f"v_add_f32 {vr(vT+11)}, {vr(vT+11)}, {vr(vB2)}")
        A(f"v_cvt_pk_bf16_f32 {vr(vT+10)}, {vr(vT+10)}, {vr(vT+11)}"); A(f"v_min_u32 {vr(vT+10)}, -2, {vr(vT+10)}")
        A(f"s_mov_b64 exec, {(1 << NM) - 1}")
        A(f"global_store_dword {vr(vTs)}, {vr(vT+10)}, s[28:29] sc1")
        A("s_mov_b64 exec, -1")
        A("L_notp:")
    last = max(k for k in range(5) if NI[k] or NI0[k])
    pubpos = max(last - 1, 0)
    ncall = [0]
    def tab(k):
        if not NI[k] and not NI0[k]: return
        ncall[0] += 1
        if NI[k] == NI0[k]: A(f"s_mov_b32 s98, {NI[k]}")
        else:
            A("s_cmp_eq_u32 s30, 0"); A(f"s_cselect_b32 s98, {NI0[k]}, {NI[k]}")
            if not NI[k] or not NI0[k]: A(f"s_cbranch_scc{0 if NI0[k] else 1} L_nt{k}")
        A("s_call_b64 s[100:101], L_tab")
        A(f"L_nt{k}:")
    def sub_tab():
        A("L_tab:")
        A.c("F(+t), F(-t) for two bf16 magnitudes t per pass: this wave's 448 terms of sum_f gelu(t*w1 + b1) * w2")
        for hf in range(2):
            for i in range(7): A(f"v_pk_fma_f32 {vr(uu+2*i,2)}, s[96:97], {vr(wE+2*i,2)}, {vr(bE+2*i,2)} op_sel_hi:[1,0,0]")
            for i in range(7): A(f"v_pk_mul_f32 {vr(pz+2*i,2)}, {vr(uu+2*i,2)}, {vr(uu+2*i,2)}")
            for i in range(7): A(f"v_pk_fma_f32 {vr(pz+2*i,2)}, {vr(pz+2*i,2)}, {vr(cB,2)}, {vr(cA,2)} op_sel_hi:[1,0,0]")
            for i in range(7): A(f"v_pk_mul_f32 {vr(pz+2*i,2)}, {vr(pz+2*i,2)}, {vr(uu+2*i,2)}")
            for i in range(14): A(f"v_exp_f32 {vr(pz+i)}, {vr(pz+i)}")
            A("s_add_u32 s96, s96, 0x10000"); A("s_add_u32 s97, s97, 0x10000")
            for i in range(7): A(f"v_pk_add_f32 {vr(pz+2*i,2)}, {vr(pz+2*i,2)}, 1.0 op_sel_hi:[1,0]")
            for i in range(14): A(f"v_rcp_f32 {vr(pz+i)}, {vr(pz+i)}")
            for i in range(7): A(f"v_pk_mul_f32 {vr(uu+2*i,2)}, {vr(uu+2*i,2)}, {vr(pz+2*i,2)}")
            for i in range(7):
                if i == 0: A(f"v_pk_mul_f32 {vr(Ac+2*hf,2)}, {vr(uu,2)}, {vr(w2,2)} op_sel_hi:[1,0]")
                else: A(f"v_pk_fma_f32 {vr(Ac+2*hf,2)}, {vr(uu+2*i,2)}, {vr(w2+2*i,2)}, {vr(Ac+2*hf,2)} op_sel_hi:[1,0,1]")
        for hf in range(2): A(f"v_permlane32_swap_b32 {vr(Ac+2*hf)}, {vr(Ac+2*hf+1)}")
        for hf in range(2): A(f"v_add_f32 {vr(Ac+2*hf)}, {vr(Ac+2*hf)}, {vr(Ac+2*hf+1)}")
        A(f"v_permlane16_swap_b32 {vr(Ac)}, {vr(Ac+2)}")
        A(f"v_add_f32 {vr(Ac)}, {vr(Ac)}, {vr(Ac+2)}")
        for sh in (8, 4, 2, 1): A(f"v_add_f32_dpp {vr(Ac)}, {vr(Ac)}, {vr(Ac)} row_ror:{sh} row_mask:0xf bank_mask:0xf")
        A(f"ds_write_b32 {vr(vLT)}, {vr(Ac)}")
        A(f"v_add_u32 {vr(vLT)}, 16, {vr(vLT)}")
        A("s_sub_u32 s98, s98, 1"); A("s_cmp_lg_u32 s98, 0")
        A("s_waitcnt lgkmcnt(0)")
        A("s_cbranch_scc1 L_tab")
        A("s_setpc_b64 s[100:101]")
    if cpos == "b0b":
        assert not NI[0] and not NI0[0]
        A("s_barrier")
        prep_loads()
        qproj(4)
        A("s_cmp_eq_u32 s30, 0"); A("s_cselect_b32 s33, s49, 1"); A("s_cmp_eq_u32 s33, 0"); A("s_cbranch_scc1 L_pw"); A("s_waitcnt vmcnt(0)"); A("L_pw:")
        A("s_waitcnt vmcnt(2)")
        conv()
    else:
        A("s_cmp_eq_u32 s30, 0"); A("s_cbranch_scc1 L_pw"); A("s_waitcnt vmcnt(0)"); A("L_pw:")
        A("s_waitcnt vmcnt(14)")
        conv(); tab(0); qproj()
    tab(1)
    A("s_lshr_b32 s33, s32, 2"); A("s_lshl_b32 s33, s33, 12"); A("s_add_u32 s33, s33, s39")
    A(f"v_add_u32 {vr(vT)}, s33, v3"); A(f"v_add_u32 {vr(vT+1)}, {L_Q}, v3")
    A(f"v_and_b32 {vr(vT+20)}, 7, v0"); A(f"v_lshlrev_b32 {vr(vT+20)}, 2, {vr(vT+20)}"); A(f"v_mov_b32 {vr(vT+19)}, {L_STAT + 64}")
    stamp(4)
    qa = vX
    def qissue():
        for k in range(4): A(f"global_load_dwordx4 {vr(qa+4*k,4)}, {vr(vT)}, s[28:29] offset:{1024*k} sc1")
    def qload():
        qissue(); A("s_waitcnt vmcnt(0)")
    A("s_cmp_eq_u32 s30, 0"); A("s_cselect_b32 s33, s49, 1"); A("s_cmp_eq_u32 s33, 0")
    A("s_barrier")
    A("s_cbranch_scc0 L_nqi")
    qissue()
    A("L_nqi:")
    if pubpos == 0: tab_publish()
    tab(2)
    A("s_mov_b32 s35, 0")
    A("s_cmp_eq_u32 s30, 0")
    A("s_cbranch_scc0 L_b1b")
    A.c("T0: gather the four q partials, add, hand to the stream waves")
    A("s_cmp_eq_u32 s49, 0"); A("s_cbranch_scc0 L_glob")
    A("L_qchk:")
    A("s_waitcnt vmcnt(0)")
    A(f"v_max3_u32 {vr(vT+2)}, {vr(qa)}, {vr(qa+1)}, {vr(qa+2)}")
    for i in range(3, 15, 2): A(f"v_max3_u32 {vr(vT+2)}, {vr(vT+2)}, {vr(qa+i)}, {vr(qa+i+1)}")
    A(f"v_max_u32 {vr(vT+2)}, {vr(vT+2)}, {vr(qa+15)}")
    A(f"v_cmp_eq_u32 vcc, -1, {vr(vT+2)}")
    A("s_cbranch_vccnz L_qretry")
    def ool_q():
        A("L_qretry:")
        if cnt: A("s_mov_b32 s91, 1")
        A("s_add_u32 s35, s35, 1")
        A(f"s_cmp_ge_u32 s35, {SPIN}")
        A("s_cbranch_scc1 L_qdone")
        A("s_bitcmp1_b32 s35, 0"); A("s_cbranch_scc1 L_qpoll")
        A(f"v_mov_b32 {vr(vT+12)}, s63")
        A(f"global_load_dword {vr(vT+13)}, {vr(vT+12)}, s[26:27] offset:32 sc1")
        A("s_waitcnt vmcnt(0)")
        A(f"v_readfirstlane_b32 s46, {vr(vT+13)}")
        A("s_cmp_eq_u32 s46, 0")
        A("s_cbranch_scc1 L_qpoll")
        A("L_glob:")
        A.c("group spread over several XCDs: write-through hand-off in the second copy, ordered by a counter")
        A("s_mov_b32 s49, 1")
        for i in range(4): A(f"v_mov_b32 {vr(qa+i)}, -1")
        A("s_lshl_b32 s33, s32, 10"); A("s_add_u32 s33, s33, s39"); A(f"s_add_u32 s33, s33, {W_O + W_ALT}")
        A(f"v_add_u32 {vr(vT+12)}, s33, v3"); A(f"v_add_u32 {vr(vT+13)}, {W_ALT}, {vr(vLst)}"); A(f"v_add_u32 {vr(vT+14)}, {W_ALT}, {vr(vQa)}")
        A(f"v_add_u32 {vr(vT)}, {W_ALT}, {vr(vT)}"); A(f"v_mov_b32 {vr(vT+15)}, s63")
        A(f"global_store_dwordx4 {vr(vT+12)}, {vr(qa,4)}, s[28:29] sc1")
        A("s_bfe_u32 s33, s41, 0x10002")
        if bph: A("s_xor_b32 s33, s33, 1")
        A("s_lshl_b32 s33, s33, 13"); A("s_add_u32 s33, s33, s40"); A(f"v_add_u32 {vr(vT+12)}, s33, v3")
        A("s_mov_b32 exec_hi, 0")
        A(f"global_store_dwordx4 {vr(vT+12)}, {vr(qa,4)}, s[28:29] sc1")
        A("s_mov_b64 exec, 3")
        A(f"global_store_dword {vr(vT+13)}, {vr(qa)}, s[28:29] sc1")
        A("s_mov_b32 exec_lo, 0x00ff00ff"); A("s_mov_b32 exec_hi, 0x00ff00ff")
        for k in range(2): A(f"global_store_dwordx4 {vr(vT+14)}, {vr(vQs+4*k,4)}, s[28:29] offset:{64*k} sc1")
        A("s_mov_b64 exec, -1")
        A("s_add_u32 s46, s63, 64"); A("s_mov_b32 s47, 1"); A("s_mov_b32 s35, 0")
        A("s_waitcnt vmcnt(0)")
        A("s_atomic_add s47, s[26:27], s46")
        A("L_gl:")
        A(f"global_load_dword {vr(vT+13)}, {vr(vT+15)}, s[26:27] offset:64 sc1")
        A("s_add_u32 s35, s35, 1")
        A("s_waitcnt vmcnt(0) lgkmcnt(0)")
        A(f"v_readfirstlane_b32 s46, {vr(vT+13)}")
        A(f"s_cmp_ge_u32 s35, {SPIN}"); A("s_cselect_b32 s46, 32, s46")
        A("s_cmp_lt_u32 s46, 32")
        A("s_cbranch_scc1 L_gl")
        qload()
        A("s_branch L_qdone")
        A("L_qpoll:")
        qissue()
        A("s_branch L_qchk")
    OOL.append(ool_q)
    A("L_qdone:")
    stamp(14)
    for k in range(4):
        for p in range(4):
            A(f"v_lshlrev_b32 {vr(vT+4+2*p)}, 16, {vr(qa+4*p+k)}"); A(f"v_and_b32 {vr(vT+5+2*p)}, s38, {vr(qa+4*p+k)}")
        A(f"v_pk_add_f32 {vr(vT+4,2)}, {vr(vT+4,2)}, {vr(vT+6,2)}"); A(f"v_pk_add_f32 {vr(vT+8,2)}, {vr(vT+8,2)}, {vr(vT+10,2)}")
        A(f"v_pk_add_f32 {vr(vT+4,2)}, {vr(vT+4,2)}, {vr(vT+8,2)}")
        A(f"v_cvt_pk_bf16_f32 {vr(qa+k)}, {vr(vT+4)}, {vr(vT+5)}")
    A(f"ds_write_b128 {vr(vT+1)}, {vr(qa,4)}")
    A(f"v_mov_b32 {vr(vT+2)}, s49")
    A(f"ds_write_b32 {vr(vT+19)}, {vr(vT+2)}")
    A(f"s_cmp_eq_u32 s32, {R2}"); A("s_cbranch_scc0 L_nof2")
    A.c("every member of this group has cleared its share of the out-projection slots")
    A("s_mov_b32 s33, 0x100000")
    A("s_waitcnt lgkmcnt(0)")
    A("s_barrier")
    A("s_atomic_add s33, s[26:27], s63")
    A("s_branch L_b1c")
    A("L_nof2:")
    A("s_waitcnt lgkmcnt(0)")
    A("L_b1b:")
    A("s_barrier")
    A("L_b1c:")
    A(f"ds_read_b32 {vr(vT+21)}, {vr(vT+19)}")
    if pubpos == 1: tab_publish()
    tab(3)
    A(f"v_and_b32 {vr(vT)}, 1, v0"); A(f"v_lshlrev_b32 {vr(vT)}, 5, {vr(vT)}"); A(f"v_add_u32 {vr(vT)}, {L_STAT}, {vr(vT)}")
    A("s_barrier")
    A(f"ds_read_b128 {vr(vT+4,4)}, {vr(vT)}")
    A(f"ds_read_b128 {vr(vT+8,4)}, {vr(vT)} offset:16")
    A("s_waitcnt lgkmcnt(0)")
    stats(vT + 4, vT + 8, vT + 1, vT + 2)
    A(f"v_log_f32 {vr(vT+2)}, {vr(vT+2)}")
    A(f"v_add_f32 {vr(vLse)}, {vr(vT+1)}, {vr(vT+2)}")
    A(f"v_min_u32 {vr(vLse)}, -2, {vr(vLse)}")
    A(f"v_readfirstlane_b32 s62, {vr(vT+21)}")
    A("s_lshl_b32 s33, s62, 20")
    for r_ in (vLa, vLst, vOa, vOst): A(f"v_add_u32 {vr(r_)}, s33, {vr(r_)}")
    A("s_cmp_eq_u32 s30, 1"); A("s_cbranch_scc0 L_nolse")
    A("s_mov_b64 exec, 3")
    A("s_cmp_eq_u32 s62, 0"); A("s_cbranch_scc0 L_slowlse")
    A(f"global_store_dword {vr(vLst)}, {vr(vLse)}, s[28:29]")
    A("L_lsed:")
    A("s_mov_b64 exec, -1")
    A("L_nolse:")
    if wbm:
        A("s_cmp_eq_u32 s30, 2"); A("s_cselect_b32 s33, s32, 0"); A("s_cmp_eq_u32 s33, 31"); A("s_cbranch_scc0 L_nowbm"); A("buffer_wbl2 sc1"); A("L_nowbm:")
    def ool_lse():
        A("L_slowlse:")
        A(f"global_store_dword {vr(vLst)}, {vr(vLse)}, s[28:29] sc1")
        A("s_branch L_lsed")
    OOL.append(ool_lse)
    A("s_mov_b64 s[56:57], s[12:13]"); A("s_mov_b32 s58, 0x380000"); A("s_mov_b32 s59, 0x20000")
    if pubpos == 2: tab_publish()
    tab(4)
    A("s_cmp_eq_u32 s60, s31"); A("s_cselect_b32 s45, 1, 0"); A("s_andn2_b32 s45, s45, s62")
    bl = vX + 16
    for i in range(16): A(f"v_mov_b32 {vr(bl+i)}, 0")
    for nt in range(1, 4): A(f"v_xor_b32 {vr(vRaw+nt)}, {32*nt}, {vr(vWr)}")
    ls4 = vT + 4; ck = vT + 1
    def lse_load():
        A(f"global_load_dwordx4 {vr(ls4,4)}, {vr(vLa)}, s[28:29] sc1")
        A(f"global_load_dword {vr(vT+21)}, {vr(vT+20)}, s[26:27] sc1")
    A(f"s_mov_b32 s36, {f32(1.0 + 1e-5)}")
    A("s_brev_b32 s40, 1"); A("s_brev_b32 s41, 1")
    def weights():
        A(f"v_and_b32 {vr(ck)}, 4, {vr(vT+21)}"); A(f"v_cmp_{'eq' if bph else 'ne'}_u32 s[6:7], 0, {vr(ck)}")
        A(f"v_lshrrev_b32 {vr(ck)}, 20, {vr(vT+21)}"); A(f"v_add_u32 {vr(ck)}, -1, {vr(ck)}")
        A(f"v_max3_u32 {vr(ck)}, {vr(ck)}, {vr(ls4)}, {vr(ls4+1)}"); A(f"v_max3_u32 {vr(ck)}, {vr(ck)}, {vr(ls4+2)}, {vr(ls4+3)}")
        A(f"v_cmp_eq_u32 vcc, -1, {vr(ck)}")
        A(f"v_max3_f32 {vr(vT+2)}, {vr(ls4)}, {vr(ls4+1)}, {vr(ls4+2)}"); A(f"v_max_f32 {vr(vT+2)}, {vr(vT+2)}, {vr(ls4+3)}")
        for i in range(4): A(f"v_sub_f32 {vr(ls4+i)}, {vr(ls4+i)}, {vr(vT+2)}")
        for i in range(4): A(f"v_exp_f32 {vr(ls4+i)}, {vr(ls4+i)}")
        A(f"v_add_f32 {vr(vT+2)}, {vr(ls4)}, {vr(ls4+1)}"); A(f"v_add_f32 {vr(vT+3)}, {vr(ls4+2)}, {vr(ls4+3)}")
        A(f"v_add_f32 {vr(vT+2)}, {vr(vT+2)}, {vr(vT+3)}"); A(f"v_rcp_f32 {vr(vT+2)}, {vr(vT+2)}")
        for i in range(4): A(f"v_mul_f32 {vr(ls4+i)}, {vr(ls4+i)}, {vr(vT+2)}")
    A.c("split-combine weights; vcc != 0: some lse had not arrived yet, redo after publishing")
    if tal >= 0:
        A("s_branch L_tail"); sub_tab(); A(".p2alignl 12, 0xbf810000")
        if tal: A(f".fill {tal // 4}, 4, 0xbf810000")
        A("L_tail:")
    stamp(2)
    A("s_barrier")
    if pubpos == 3: tab_publish()
    lse_load()
    wo_loads(0, 8, "b")
    A(f"s_mov_b32 s35, {-SPIN & 0xffffffff}")
    A("s_cmp_eq_u32 s62, 0")
    A("L_b3:")
    A("s_barrier")
    stamp(5)
    if "E" in skip: A("s_branch L_fin")
    A.c("reduce the four stream waves' o partials, publish as bf16")
    o = vX; ls4 = vT + 4; oa = vX + 32; Dc = vX + 40; ck = vT + 1
    for w_ in range(4): A(f"ds_read_b64 {vr(o+2*w_,2)}, {vr(vOPr)} offset:{2048*w_}")
    for w_ in range(1, 4):
        A(f"s_waitcnt lgkmcnt({3-w_})")
        A(f"v_pk_add_f32 {vr(o,2)}, {vr(o,2)}, {vr(o+2*w_,2)}")
    A(f"v_cvt_pk_bf16_f32 {vr(o)}, {vr(o)}, {vr(o+1)}")
    A(f"v_min_u32 {vr(o)}, -2, {vr(o)}")
    A("s_cbranch_scc0 L_slowpub")
    A(f"global_store_dword {vr(vOst)}, {vr(o)}, s[28:29] {lp}")
    A("L_pubd:")
    def ool_pub():
        A("L_slowpub:")
        A(f"global_store_dword {vr(vOst)}, {vr(o)}, s[28:29] sc1")
        A("s_branch L_pubd")
    OOL.append(ool_pub)
    stamp(6)
    A.c("out projection")
    def aset():
        for tt in range(2):
            A(f"global_load_dwordx4 {vr(oa+4*tt,4)}, {vr(vOa)}, s[28:29] offset:{1024*tt} sc1")
    if ap:
        wo_loads(8 - NB, 8, "c")
        seqv = [f"w{i}" for i in range(NE, 8 - NB)] + ["st"] + [f"w{i}" for i in range(8 - NB, 8)]
        def upto(i):
            live = [k for k, x in enumerate(seqv) if x[0] == "w" and int(x[1:]) <= i]
            if live: A(f"s_waitcnt vmcnt({len(seqv) - 1 - max(live)})")
        A("s_cmp_ge_u32 s32, 28"); A("s_cbranch_scc1 L_hi")
        A(f"s_waitcnt vmcnt({len(seqv)})")
        weights()
        upto(3)
        if ap == 1: aset(); seqv += ["a", "a"]
        wo_frags((0,))
        if ap >= 2: upto(3 + ap); aset(); seqv += ["a", "a"]
        upto(7); wo_frags((1,))
    else:
        aset()
        A(f"s_waitcnt vmcnt({3 + 8 - NE})")
        weights()
        if o1:
            A("s_waitcnt vmcnt(7)"); wo_frags((0,)); A("s_waitcnt vmcnt(3)"); wo_frags((1,))
        else:
            A("s_waitcnt vmcnt(3)"); wo_frags()
    A("s_cbranch_vccnz L_lretry")
    def ool_l():
        A("L_lretry:")
        if cnt: A("s_mov_b32 s92, 1")
        lse_load()
        A("s_add_u32 s35, s35, 1")
        A("s_waitcnt vmcnt(0)")
        weights()
        A("s_cbranch_scc1 L_lok")
        A("s_cbranch_vccnz L_lretry")
        A("L_lok:")
        A(f"s_mov_b32 s35, {-SPIN & 0xffffffff}")
        A("s_branch L_apoll0")
    OOL.insert(0, ool_l)
    A("L_apoll0:")
    A("s_bitcmp1_b32 s6, s60"); A("s_cselect_b32 s9, 8192, 0")
    def achk():
        A(f"v_max3_u32 {vr(ck)}, {vr(oa)}, {vr(oa+1)}, {vr(oa+2)}"); A(f"v_max3_u32 {vr(ck)}, {vr(ck)}, {vr(oa+3)}, {vr(oa+4)}")
        A(f"v_max3_u32 {vr(ck)}, {vr(ck)}, {vr(oa+5)}, {vr(oa+6)}"); A(f"v_max_u32 {vr(ck)}, {vr(ck)}, {vr(oa+7)}")
    if True:
        A("s_waitcnt vmcnt(0)")
        achk()
        A(f"v_cmpx_eq_u32 vcc, -1, {vr(ck)}")
        A("s_cbranch_execz L_adone")
        for _ in range(DA - 1):
            aset()
            for _ in range(GA): A("s_nop 7")
    A("L_apoll:")
    aset()
    A("s_add_u32 s35, s35, 1"); A("s_cselect_b32 s47, -1, -2")
    A(f"s_waitcnt vmcnt({2*(DA-1)})")
    achk()
    A(f"v_cmpx_lt_u32 vcc, s47, {vr(ck)}")
    A("s_cbranch_execnz L_apoll")
    A("L_adone:")
    A("s_mov_b64 exec, -1")
    A("s_waitcnt lgkmcnt(6)" if o1 else "s_waitcnt lgkmcnt(0)")
    A(f"s_mov_b32 s35, {-SPIN & 0xffffffff}")
    stamp(7)
    pp = vT + 16
    def wsum(c):
        return [f"v_mul_f32 {vr(pp+c)}, {vr(Dc+4*c)}, {vr(ls4)}"] + [f"v_fmac_f32 {vr(pp+c)}, {vr(Dc+4*c+i)}, {vr(ls4+i)}" for i in range(1, 4)]
    ws = sum((wsum(c) for c in range(4)), [])
    for k in range(8):
        c, tt = k >> 1, k & 1
        cc_ = "0" if tt == 0 else vr(Dc+4*c, 4)
        A(f"v_mfma_f32_16x16x32_bf16 {vr(Dc+4*c,4)}, {vr(oa+4*tt,4)}, {vr(vW+16*tt+4*c,4)}, {cc_}")
        if o1 and k in (2, 4, 6): A(f"s_waitcnt lgkmcnt({6 - k})")
        if k == 1: A(f"v_add_u32 {vr(vBst)}, s9, {vr(vBst)}"); A("s_cmp_eq_u32 s45, 0")
        if 2 <= k <= 3: A(f"s_nop {0 if (o1 and k == 2) else 1}")
        if k >= 4: A(ws.pop(0)); A(ws.pop(0))
    A(f"ds_write2_b32 {vr(vPPa)}, {vr(pp)}, {vr(pp+1)} offset0:0 offset1:16")
    for n_, x in enumerate(ws):
        if m8 and n_ == 4: A(f"ds_write_b32 {vr(vPPa)}, {vr(pp+2)} offset:128")
        A(x)
    if m8: A(f"ds_write_b32 {vr(vPPa)}, {vr(pp+3)} offset:192")
    else: A(f"ds_write2_b32 {vr(vPPa)}, {vr(pp+2)}, {vr(pp+3)} offset0:32 offset1:48")
    if m4:
        A("s_mov_b32 exec_hi, 0")
        A("s_waitcnt lgkmcnt(0)")
        stamp(8)
        A("s_barrier")
        pr = vX
        for w_ in range(4): A(f"ds_read_b64 {vr(pr+2*w_,2)}, {vr(vPPr)} offset:{1024*w_}")
        for w_ in range(1, 4):
            A(f"s_waitcnt lgkmcnt({3-w_})")
            A(f"v_pk_add_f32 {vr(pr,2)}, {vr(pr,2)}, {vr(pr+2*w_,2)}")
        A(f"v_cvt_pk_bf16_f32 {vr(pr)}, {vr(pr)}, {vr(pr+1)}")
        A(f"v_min_u32 {vr(pr)}, -2, {vr(pr)}")
        A("s_cbranch_scc0 L_plain")
        A(f"global_store_dword {vr(vBst)}, {vr(pr)}, s[28:29] sc1")
        stamp(9)
        if qc:
            A("s_cmp_eq_u32 s30, 3" ); A("s_cbranch_scc0 L_fin"); A("s_mov_b64 exec, -1")
            A("s_lshl_b32 s33, s32, 10"); A("s_add_u32 s33, s33, s39"); A(f"v_add_u32 {vr(vT)}, s33, v3")
            A(f"global_store_dwordx4 {vr(vT)}, {vr(vX+4,4)}, s[28:29] sc1")
        if wbx == 1:
            A("s_cmp_eq_u32 s30, 0"); A("s_cselect_b32 s33, s32, -1"); A("s_xor_b32 s34, s31, 4"); A("s_lshr_b32 s34, s34, 2"); A("s_cmp_eq_u32 s33, s34"); A("s_cbranch_scc0 L_fin"); A("s_waitcnt vmcnt(0)"); A("buffer_wbl2 sc1")
        A("s_branch L_fin" if (stamps or gamp or cnt) else "s_endpgm")
        A("L_plain:")
        A(f"global_store_dword {vr(vBst)}, {vr(pr)}, s[28:29]")
        stamp(9)
        A("s_branch L_fin" if (stamps or gamp or cnt) else "s_endpgm")
    A("L_hi:")
    if wbx == 3:
        A("s_cmp_eq_u32 s30, 0"); A("s_cselect_b32 s33, s32, 0"); A("s_cmp_eq_u32 s33, 30"); A("s_cbranch_scc0 L_nw3"); A("buffer_wbl2 sc1"); A("L_nw3:")
    if hp or wbx in (4, 5): A(f"s_sub_u32 s33, s32, {RF}"); A(f"s_cmp_le_u32 s33, {max(hp, 1)}")
    else: A(f"s_cmp_eq_u32 s32, {RF}")
    A("s_cbranch_scc0 L_fin")
    A.c("row finish: residual, both LayerNorms, MLP value from the table")
    A(f"global_load_dwordx2 {vr(vXr+2,2)}, {vr(vXa)}, s[4:5] {spol}")
    A("s_mov_b64 s[56:57], s[28:29]"); A(f"s_mov_b32 s58, {W_T + 1024*NM}"); A("s_mov_b32 s59, 0x20000")
    A(f"s_mul_i32 s33, s30, {256*NM}"); A("s_mov_b32 m0, s33"); A(f"s_add_u32 s33, s33, {W_T}")
    A("L_fl:")
    A("s_waitcnt vmcnt(0)")
    A(f"v_cmp_gt_u32 vcc, 0x100000, {vr(vT+21)}")
    A("s_add_u32 s35, s35, 1")
    A("s_cbranch_scc1 L_fld")
    A("s_cbranch_vccz L_fld")
    A(f"global_load_dword {vr(vT+21)}, {vr(vT+20)}, s[26:27] sc1")
    A("s_branch L_fl")
    A("L_fld:")
    A(f"v_readlane_b32 s34, {vr(vT+21)}, s31")
    for i in (2, 3): A(f"v_cndmask_b32 {vr(vXr+i)}, 0, {vr(vXr+i)}, s[42:43]")
    A("s_bitcmp1_b32 s34, 2"); A(f"s_cselect_b32 s34, {0 if bph else 8192}, {8192 if bph else 0}")
    A(f"v_lshlrev_b32 {vr(vXr)}, 16, {vr(vXr+2)}"); A(f"v_and_b32 {vr(vXr+1)}, s38, {vr(vXr+2)}")
    A(f"v_lshlrev_b32 {vr(vXr+2)}, 16, {vr(vXr+3)}"); A(f"v_and_b32 {vr(vXr+3)}, s38, {vr(vXr+3)}")
    A(f"v_add_u32 {vr(vBa)}, s34, {vr(vBa)}")
    A(f"v_mov_b32 {vr(vT)}, {L_HS}"); A(f"v_mov_b32 {vr(vT+18)}, {f32(1e-10)}")
    A(f"s_mov_b32 s37, {(E0 << 7) * 0x10001}"); A(f"s_mov_b32 s44, {(256*NM - 1) * 0x10001}"); A("v_cmp_lt_u32 s[14:15], 31, v0")
    A(f"v_mov_b32 {vr(vT+22)}, 0x01000c0c"); A(f"v_mov_b32 {vr(vT+23)}, 0x03020c0c")
    A(f"s_mov_b32 s35, {-SPIN & 0xffffffff}")
    def tdma():
        if hp or wbx == 5: A(f"s_cmp_eq_u32 s32, {RF}"); A("s_cbranch_scc0 L_notd")
        tdma0()
        if hp or wbx == 5: A("L_notd:")
    def tdma0():
        for i in range(NM // 4): A(f"buffer_load_dwordx4 v3, s[56:59], s33 offen offset:{1024*i} sc1 lds")
    if trig == 2: tdma()
    if trig:
        A.c("no use looking for rows before this group's o is complete")
        A("L_tpoll:")
        A(f"global_load_dwordx4 {vr(oa,4)}, {vr(vOa)}, s[28:29] sc1")
        A("s_add_u32 s35, s35, 1"); A("s_cselect_b32 s47, -1, -2")
        A("s_waitcnt vmcnt(0)")
        A(f"v_cmpx_lt_u32 vcc, s47, {vr(oa)}")
        A("s_cbranch_execnz L_tpoll")
        A("s_mov_b64 exec, -1")
        A(f"s_mov_b32 s35, {-SPIN & 0xffffffff}")
    stamp(7)
    if wbx == 4:
        A(f"s_cmp_eq_u32 s32, {RF}"); A("s_cbranch_scc1 L_nw4"); A("s_cmp_eq_u32 s30, 0"); A("s_cbranch_scc0 L_fin"); A("buffer_wbl2 sc1"); A("s_branch L_fin"); A("L_nw4:")
    if trig != 2: tdma()
    if "a" in bx: A("s_waitcnt vmcnt(0)")
    A("s_mov_b64 exec, s[42:43]")
    stamp(9)
    def bset():
        for i in range(4):
            A(f"global_load_dwordx4 {vr(bl+4*i,4)}, {vr(vBa)}, s[28:29] offset:{896*i} sc1")
    hh_ = vT + 12; s1 = vT + 8; hs = vT + 16
    if DB > 1:
        for _ in range(DB - 1): bset()
        A("L_bpoll:")
        bset()
        A("s_add_u32 s35, s35, 1"); A("s_cselect_b32 s47, -1, -2")
        A(f"s_waitcnt vmcnt({4*(DB-1)})")
        A(f"v_max3_u32 {vr(ck)}, {vr(bl)}, {vr(bl+1)}, {vr(bl+2)}")
        for i in range(3, 15, 2): A(f"v_max3_u32 {vr(ck)}, {vr(ck)}, {vr(bl+i)}, {vr(bl+i+1)}")
        A(f"v_max_u32 {vr(ck)}, {vr(ck)}, {vr(bl+15)}")
        A(f"v_cmpx_lt_u32 vcc, s47, {vr(ck)}")
        A("s_cbranch_execnz L_bpoll")
        A("s_mov_b64 exec, -1")
        for i in range(4): A(f"v_mfma_f32_16x16x32_bf16 {vr(hh_,4)}, {vr(vDl,4)}, {vr(bl+4*i,4)}, {vr(vXr if i == 0 else hh_,4)}")
    else:
        A("L_bpoll:")
        bset()
        A("s_add_u32 s35, s35, 1"); A("s_cselect_b32 s47, -1, -2")
        A("s_mov_b64 exec, -1")
        A.c("h = x + sum of the 16 partials (matrix core does the unpack and the adds); discarded while a partial is missing")
        for i in range(4):
            A(f"s_waitcnt vmcnt({3-i})")
            A(f"v_mfma_f32_16x16x32_bf16 {vr(hh_,4)}, {vr(vDl,4)}, {vr(bl+4*i,4)}, {vr(vXr if i == 0 else hh_,4)}")
            if i == 0:
                A(f"v_max3_u32 {vr(ck)}, {vr(bl)}, {vr(bl+1)}, {vr(bl+2)}"); A(f"v_max_u32 {vr(ck)}, {vr(ck)}, {vr(bl+3)}")
            else:
                A(f"v_max3_u32 {vr(ck)}, {vr(ck)}, {vr(bl+4*i)}, {vr(bl+4*i+1)}"); A(f"v_max3_u32 {vr(ck)}, {vr(ck)}, {vr(bl+4*i+2)}, {vr(bl+4*i+3)}")
        A(f"v_cmpx_lt_u32 vcc, s47, {vr(ck)}")
        A("s_cbranch_execnz L_bpoll")
        A("s_mov_b64 exec, -1")
    if hp or wbx == 5:
        A(f"s_cmp_eq_u32 s32, {RF}"); A("s_cbranch_scc0 " + ("L_w5" if wbx == 5 else "L_fin"))
        if wbx == 5:
            def ool_w5():
                A("L_w5:"); A.c("second reader of the row: start writing the spent hand-off lines back while the row is finished")
                A("s_cmp_eq_u32 s30, 0"); A("s_cbranch_scc0 L_fin"); A("buffer_wbl2 sc1"); A("s_branch L_fin")
            OOL.append(ool_w5)
    stamp(10)
    if wbx == 2: A("buffer_wbl2 sc1")
    for k in (0, 2): A(f"v_pk_fma_f32 {vr(vT+4+k,2)}, {vr(hh_+k,2)}, {vr(vKs,2)}, {vr(vKs+2,2)} op_sel_hi:[1,0,0]")
    A(f"v_pk_mul_f32 {vr(s1,2)}, {vr(hh_,2)}, {vr(vT+4,2)}")
    A(f"v_pk_fma_f32 {vr(s1,2)}, {vr(hh_+2,2)}, {vr(vT+6,2)}, {vr(s1,2)}")
    A(f"v_add_f32 {vr(s1)}, {vr(s1)}, {vr(s1+1)}")
    for k in range(2): A(f"v_cndmask_b32 {vr(hs+k)}, {vr(hh_+k)}, {vr(hh_+2+k)}, s[14:15]")
    for sh in (8, 4, 2, 1):
        A(f"v_add_f32_dpp {vr(s1)}, {vr(s1)}, {vr(s1)} row_ror:{sh} row_mask:0xf bank_mask:0xf")
    A(f"v_add_f32_dpp {vr(s1)}, {vr(s1)}, {vr(s1)} row_bcast:15 row_mask:0xa bank_mask:0xf")
    A("s_mov_b64 exec, s[40:41]")
    A(f"ds_write_b32 {vr(vHsw)}, {vr(s1)}")
    A("s_mov_b64 exec, s[42:43]")
    A("s_waitcnt lgkmcnt(0)")
    A("s_barrier")
    A.c("LayerNorm(LayerNorm(h)) = (h - mu) * rsqrt(var*(1+eps) + eps^2), rounded to bf16")
    h8 = vT + 4; mu = vT + 2; rs = vT + 3; dn = vT + 12; Pq = vT + 14; Qq = vT + 15; ad = vT + 4; yv = vT + 6; se = vT + 8
    A(f"ds_read_b128 {vr(h8,4)}, {vr(vT)}")
    A(f"ds_read_b128 {vr(h8+4,4)}, {vr(vT)} offset:16")
    A("s_waitcnt lgkmcnt(0)")
    A(f"v_pk_add_f32 {vr(h8,2)}, {vr(h8,2)}, {vr(h8+2,2)}")
    A(f"v_pk_add_f32 {vr(h8+4,2)}, {vr(h8+4,2)}, {vr(h8+6,2)}")
    A(f"v_pk_add_f32 {vr(mu,2)}, {vr(h8,2)}, {vr(h8+4,2)}")
    A(f"v_fma_f32 {vr(rs)}, -{vr(mu)}, {vr(mu)}, {vr(rs)}")
    A(f"v_fma_f32 {vr(rs)}, |{vr(rs)}|, s36, {vr(vT+18)}")
    A(f"v_rsq_f32 {vr(h8)}, {vr(rs)}")
    A(f"v_pk_add_f32 {vr(dn,2)}, {vr(hs,2)}, {vr(mu,2)} op_sel_hi:[1,0] neg_lo:[0,1] neg_hi:[0,1]")
    A(f"v_pk_mul_f32 {vr(dn,2)}, {vr(dn,2)}, {vr(h8,2)} op_sel_hi:[1,0]")
    A(f"v_cvt_pk_bf16_f32 {vr(Pq)}, {vr(dn)}, {vr(dn+1)}")
    A(f"v_pk_sub_u16 {vr(Qq)}, {vr(Pq)}, s37")
    A(f"v_pk_lshlrev_b16 {vr(ad+1)}, 2, {vr(Qq)} op_sel_hi:[0,1]")
    A(f"v_and_b32 {vr(ad)}, 0xffff, {vr(ad+1)}")
    A(f"v_lshrrev_b32 {vr(ad+1)}, 16, {vr(ad+1)}")
    A(f"ds_read_b32 {vr(yv)}, {vr(ad)}")
    A(f"ds_read_b32 {vr(yv+1)}, {vr(ad+1)}")
    stamp(11)
    A(f"v_cmp_gt_f32 vcc, 0, {vr(dn)}"); A(f"v_cmp_gt_f32 s[6:7], 0, {vr(dn+1)}")
    A(f"v_and_b32 {vr(Qq)}, 0x7fff7fff, {vr(Qq)}")
    A(f"v_pk_sub_u16 {vr(Qq)}, {vr(Qq)}, s44 clamp")
    if force_fb: A(f"v_or_b32 {vr(Qq)}, {force_fb}, {vr(Qq)}")
    A(f"v_cndmask_b32 {vr(se)}, {vr(vT+22)}, {vr(vT+23)}, vcc"); A(f"v_cndmask_b32 {vr(se+1)}, {vr(vT+22)}, {vr(vT+23)}, s[6:7]")
    A(f"v_cmp_ne_u32 vcc, 0, {vr(Qq)}")
    A(f"v_cndmask_b32 {vr(se+2)}, 0, -1, vcc")
    A("s_waitcnt lgkmcnt(0)")
    A(f"v_max3_u32 {vr(ck)}, {vr(yv)}, {vr(yv+1)}, {vr(se+2)}")
    for k in range(2): A(f"v_perm_b32 {vr(yv+k)}, {vr(yv+k)}, {vr(yv+k)}, {vr(se+k)}")
    A(f"v_cmp_eq_u32 vcc, -1, {vr(ck)}")
    A("L_out:")
    A(f"v_pk_add_f32 {vr(yv,2)}, {vr(yv,2)}, {vr(hs,2)}")
    A(f"v_cvt_pk_bf16_f32 {vr(yv)}, {vr(yv)}, {vr(yv+1)}")
    A("s_cbranch_vccnz L_miss")
    A(f"global_store_dword {vr(vOut)}, {vr(yv)}, s[24:25] {outpol}")
    def ool_miss():
        A("L_miss:")
        if cnt: A("s_mov_b32 s90, 1")
        A.c("an entry had not arrived when the table was copied: read it from memory")
        for k in range(2): A(f"v_min_u32 {vr(ad+k)}, {1024*NM - 4}, {vr(ad+k)}"); A(f"v_add_u32 {vr(ad+k)}, {W_T}, {vr(ad+k)}")
        A(f"s_mov_b32 s35, {-SPIN & 0xffffffff}")
        A("L_ml:")
        for k in range(2): A(f"global_load_dword {vr(yv+k)}, {vr(ad+k)}, s[28:29] sc1")
        A("s_add_u32 s35, s35, 1")
        A("s_waitcnt vmcnt(0)")
        A(f"v_max_u32 {vr(ck)}, {vr(yv)}, {vr(yv+1)}"); A(f"v_cmp_eq_u32 vcc, -1, {vr(ck)}")
        A("s_cbranch_scc1 L_mld")
        A("s_cbranch_vccnz L_ml")
        A("L_mld:")
        for k in range(2): A(f"v_perm_b32 {vr(yv+k)}, {vr(yv+k)}, {vr(yv+k)}, {vr(se+k)}")
        A.c("arguments outside the table (tiny or not finite): evaluate the sum for each of them")
        fa = vRaw; w_ = vRaw + 1; b_ = vRaw + 2; u_ = vRaw + 3; x_ = vRaw + 4; p_ = vRaw + 5; ac = vRaw + 6; tv = vRaw + 8
        A(f"v_lshlrev_b32 {vr(tv)}, 16, {vr(Pq)}"); A(f"v_and_b32 {vr(tv+1)}, s38, {vr(Pq)}")
        for k in range(2):
            A(f"v_and_b32 {vr(ck)}, {'0xffff' if k == 0 else 's38'}, {vr(Qq)}"); A(f"v_cmp_ne_u32 s[8:9], 0, {vr(ck)}")
            A(f"L_d{k}:")
            A("s_cmp_eq_u64 s[8:9], 0"); A(f"s_cbranch_scc1 L_dd{k}")
            A("s_ff1_i32_b64 s33, s[8:9]")
            A(f"v_readlane_b32 s34, {vr(tv+k)}, s33")
            A("s_mov_b64 exec, -1")
            A(f"v_lshlrev_b32 {vr(fa)}, 1, v0"); A(f"v_mov_b32 {vr(ac)}, 0"); A("s_mov_b32 s33, 0")
            A(f"L_e{k}:")
            A(f"global_load_ushort {vr(w_)}, {vr(fa)}, s[16:17]"); A(f"global_load_ushort {vr(b_)}, {vr(fa)}, s[18:19]"); A(f"global_load_ushort {vr(u_)}, {vr(fa)}, s[20:21]")
            A(f"v_add_u32 {vr(fa)}, 128, {vr(fa)}")
            A("s_waitcnt vmcnt(0)")
            for r_ in (w_, b_, u_): A(f"v_lshlrev_b32 {vr(r_)}, 16, {vr(r_)}")
            A(f"v_fma_f32 {vr(x_)}, {vr(w_)}, s34, {vr(b_)}")
            A(f"v_mul_f32 {vr(p_)}, {vr(x_)}, {vr(x_)}"); A(f"v_fma_f32 {vr(p_)}, {vr(p_)}, {vr(cB)}, {vr(cA)}"); A(f"v_mul_f32 {vr(p_)}, {vr(p_)}, {vr(x_)}")
            A(f"v_exp_f32 {vr(p_)}, {vr(p_)}"); A(f"v_add_f32 {vr(p_)}, 1.0, {vr(p_)}"); A(f"v_rcp_f32 {vr(p_)}, {vr(p_)}")
            A(f"v_mul_f32 {vr(x_)}, {vr(x_)}, {vr(p_)}"); A(f"v_fmac_f32 {vr(ac)}, {vr(x_)}, {vr(u_)}")
            A("s_add_u32 s33, s33, 1"); A("s_cmp_lt_u32 s33, 28"); A(f"s_cbranch_scc1 L_e{k}")
            for sh in (8, 4, 2, 1): A(f"v_add_f32_dpp {vr(ac)}, {vr(ac)}, {vr(ac)} row_ror:{sh} row_mask:0xf bank_mask:0xf")
            for sw in ("v_permlane32_swap_b32", "v_permlane16_swap_b32"):
                A(f"v_mov_b32 {vr(ac+1)}, {vr(ac)}"); A(f"{sw} {vr(ac)}, {vr(ac+1)}"); A(f"v_add_f32 {vr(ac)}, {vr(ac)}, {vr(ac+1)}")
            A(f"v_add_f32 {vr(ac)}, {vr(ac)}, {vr(vB2)}"); A(f"v_cvt_pk_bf16_f32 {vr(ac)}, {vr(ac)}, {vr(ac)}"); A(f"v_and_b32 {vr(ac)}, s38, {vr(ac)}")
            A("s_mov_b64 exec, s[42:43]")
            A(f"v_cmp_eq_u32 vcc, s34, {vr(tv+k)}")
            A(f"v_cndmask_b32 {vr(yv+k)}, {vr(yv+k)}, {vr(ac)}, vcc")
            A("s_andn2_b64 s[8:9], s[8:9], vcc")
            A(f"s_branch L_d{k}")
            A(f"L_dd{k}:")
        A("s_mov_b64 vcc, 0")
        A("s_branch L_out")
    OOL.append(ool_miss)
    A("L_fin:")
    stamp(13)
    if amp:
        A(f"s_cmp_eq_u32 s30, {amp[0]}"); A("s_cbranch_scc0 L_end")
        A("s_waitcnt lgkmcnt(0)")
        A(f"s_sub_u32 s33, s{64+2*amp[1]}, s{64+2*amp[2]}")
        if amp[3] < 0: A("s_sub_u32 s33, 3000, s33")
        A("s_min_u32 s33, s33, 5000"); A("s_lshl_b32 s33, s33, 3"); A("s_add_u32 s33, s33, 4000")
        A("L_amp:")
        A("s_memrealtime s[34:35]"); A("s_waitcnt lgkmcnt(0)"); A("s_sub_u32 s34, s34, s64")
        A("s_cmp_lt_u32 s34, s33"); A("s_cbranch_scc1 L_amp")
    if cnt:
        for k in range(3):
            A(f"s_cmp_eq_u32 s{90+k}, 0"); A(f"s_cbranch_scc1 L_c{k}"); A(f"s_atomic_add s{90+k}, s[26:27], {128+4*k}"); A("s_waitcnt lgkmcnt(0)"); A(f"L_c{k}:")
    if gamp:
        A(f"s_cmp_eq_u32 s30, {gamp[3] if len(gamp) > 3 else 1}"); A("s_cbranch_scc0 L_end")
        A("s_waitcnt lgkmcnt(0)")
        A(f"s_mov_b32 s36, s{64+2*gamp[0]}")
        A(f"s_not_b32 s37, s{64+2*gamp[1]}" if gamp[2] == "min" else f"s_mov_b32 s37, s{64+2*gamp[1]}")
        A("s_atomic_umax s36, s[26:27], 192"); A("s_atomic_umax s37, s[26:27], 196"); A("s_waitcnt lgkmcnt(0)")
        A("s_cmp_eq_u32 s2, 0"); A("s_cbranch_scc0 L_end")
        A("L_g1:")
        A("s_memrealtime s[34:35]"); A("s_waitcnt lgkmcnt(0)"); A("s_sub_u32 s34, s34, s64")
        A("s_cmp_lt_u32 s34, 3800"); A("s_cbranch_scc1 L_g1")
        A("s_load_dwordx2 s[36:37], s[26:27], 192 glc"); A("s_waitcnt lgkmcnt(0)")
        if gamp[2] == "min": A("s_not_b32 s37, s37")
        A("s_sub_u32 s33, s36, s37"); A("s_min_u32 s33, s33, 2000"); A(f"s_lshl_b32 s33, s33, {gamp[4] if len(gamp) > 4 else 3}"); A("s_add_u32 s33, s33, 4000")
        A("L_g2:")
        A("s_memrealtime s[34:35]"); A("s_waitcnt lgkmcnt(0)"); A("s_sub_u32 s34, s34, s64")
        A("s_cmp_lt_u32 s34, s33"); A("s_cbranch_scc1 L_g2")
    if rnd:
        A("s_cmp_eq_u32 s30, 0"); A("s_cselect_b32 s33, s2, 1"); A("s_cmp_eq_u32 s33, 0"); A("s_cbranch_scc0 L_end")
        A("s_memrealtime s[64:65]"); A("s_waitcnt lgkmcnt(0)")
        A("s_lshr_b32 s33, s64, 2"); A("s_mul_i32 s33, s33, 0x9e3779b1"); A("s_lshr_b32 s34, s33, 15"); A("s_xor_b32 s33, s33, s34"); A("s_mul_i32 s33, s33, 0x85ebca6b")
        A("s_lshr_b32 s33, s33, 19")
        A("L_rnd:")
        A("s_memrealtime s[34:35]"); A("s_waitcnt lgkmcnt(0)"); A("s_sub_u32 s34, s34, s64")
        A("s_cmp_lt_u32 s34, s33"); A("s_cbranch_scc1 L_rnd")
    dump_stamps(15)
    A("L_end:")
    A("s_endpgm")
    for f in OOL: f()
    A(".fill 1024, 4, 0xbf810000")

    body, nn = fix_hazards(A.L)
    if a8:
        import subprocess, tempfile, os
        i0 = body.index("L_tail:"); i1 = body.index("L_end:")
        probe = ['.amdgcn_target "amdgcn-amd-amdhsa--gfx950"', ".text"]
        for i, l in enumerate(body):
            if i0 <= i <= i1: probe.append(f"P_{i}:")
            probe.append(l)
        d = tempfile.mkdtemp(); open(d + "/p.s", "w").write("\n".join(probe) + "\n")
        subprocess.run(["clang", "-x", "assembler", "-target", "amdgcn-amd-amdhsa", "-mcpu=gfx950", "-c", d + "/p.s", "-o", d + "/p.o"], check=True)
        sym = subprocess.run(["llvm-objdump", "-t", d + "/p.o"], capture_output=True, text=True).stdout
        ad = {int(l.split()[-1][2:]): int(l.split()[0], 16) for l in sym.splitlines() if l.split() and l.split()[-1].startswith("P_")}
        sizes = [0] * len(body)
        for i in range(i0, i1): sizes[i] = ad[i + 1] - ad[i]
        st = body.index(a8[0] + ":")
        body, n8 = align8(body, a8[0], a8[1], sizes, ad[st] % 8)
    head = [l.rstrip("\n") for l in open("header.txt")]
    head.append(f"; @launch grid=(256,1,1) block=(512,1,1) lds={L_END}")
    head += DOC
    head += ['.amdgcn_target "amdgcn-amd-amdhsa--gfx950"', ".text"] + ([".p2align 12"] if al else []) + ([f".fill {pad // 4}, 4, 0xbf810000"] if pad else []) + [f".globl {NAME}", ".p2align 8", f".type {NAME},@function"]
    tail = ['.section .rodata,"a"'] + ([f".fill {rpad // 4}, 4, 0"] if rpad else []) + [".p2align 6", f".amdhsa_kernel {NAME}",
            "  .amdhsa_next_free_vgpr 256", "  .amdhsa_next_free_sgpr 102", "  .amdhsa_accum_offset 256",
            "  .amdhsa_group_segment_fixed_size 0", "  .amdhsa_kernarg_size 104", "  .amdhsa_user_sgpr_count 2",
            "  .amdhsa_user_sgpr_kernarg_segment_ptr 1", "  .amdhsa_system_sgpr_workgroup_id_x 1",
            "  .amdhsa_float_denorm_mode_32 3", ".end_amdhsa_kernel"]
    return "\n".join(head + body + tail) + "\n"

if __name__ == "__main__":
    kw = eval("dict(" + (sys.argv[2] if len(sys.argv) > 2 else "") + ")")
    open(sys.argv[1], "w").write(gen(**kw))
```

```python
import sys, struct, math
from asmlib import *

NAME = "sequential_preLN__sliding_block_cached__mixer_token_mlp__decode_kernel"
def f32(x): return "0x%08x" % struct.unpack("<I", struct.pack("<f", x))[0]

L_K = 0; L_WQ = 131072; L_Q = 145408; L_STAT = 146432; L_OP = 146688; L_PP = 154880; L_H = 158976; L_HS = 161024; L_Y = 161088
L_END = 161344
L_X = L_OP
L_LT = L_H
W_Q = 0
W_L = 0xC0000
W_O = 0x40000
W_B = 0x80000
W_T = 0xD0000
W_ALT = 0x100000
W_STAMP = 0x200000
SPIN = 0x20000
STAMP_VIEW = [("S", slice(4, 8), [0, 8, 6, 7, 1, 2, 3, 4, 5]), ("T0", 0, [0, 1, 3, 4, 14, 2]), ("T1", 1, [0, 4, 2]),
              ("Top", slice(0, 4), [5, 6, 7, 8, 9], slice(0, 224)), ("Fin", slice(0, 4), [5, 6, 7, 9, 10, 11, 13], slice(232, 240))]
ALPHA = -2.0 * math.sqrt(2.0 / math.pi) * math.log2(math.e)
BETA = ALPHA * 0.044715

DOC = """
; ---------------------------------------------------------------------------------------------------------------------
; One launch, 256 workgroups (one per CU), 8 waves each.  g = workgroup id, kvh = g & 7, r = g >> 3, b = r >> 2, s = r & 3.
;   waves 4-7 (stream): K (LDS-DMA) and V (registers) for 256 of the last 1024 keys of (b, kvh); QK^T, true-max softmax
;                       over those keys, P.V with a delta-structured A operand so V is used as loaded.
;   waves 0-3 (tail):   q projection tile, token-MLP values, out projection tile (r < 28), row finish (r = 29).
; Hand-offs between workgroups go through d_ws.  Every slot is set to 0xffffffff in this launch before anyone looks at
; it (ordered through counters in the zeroed d_debug and through the q hand-off itself); data never takes that value.
;   q    : 64 columns x 112 rows per workgroup, LN(x) applied after the product: rstd*(x.W - mean*colsum(W))
;   o,lse: per split, normalised by the split's own sum; combined with softmax(lse) after the out-projection product
;   rows : 16 partial rows per batch, summed by the workgroup that finishes the row
; q, o and lse stay inside one group (same kvh).  They use plain stores only when every member has checked that it sits
; on the XCD whose L2 holds the cleared slots; otherwise the group switches to write-through stores in a second copy.
; LN(LN(h)) = (h - mean) * rsqrt(var*(1+eps) + eps^2) exactly; like the reference's, it is a bf16 value below sqrt(448).
; With one token the MLP is a scalar function of that bf16 value: F(t) = sum_f gelu_tanh(t*w1[f] + b1[f])*w2[f] + b2.
; While K and V stream in, the full 1792-term sum is evaluated for every bf16 t with 2^-19 <= |t| < 32 (24 per
; workgroup; gelu_tanh(u) = u / (1 + 2^(a*u + b*u^3))); the row finish picks F at the exact argument, and evaluates the
; same sum on the spot for any argument outside that set.  Nothing is interpolated.
; ---------------------------------------------------------------------------------------------------------------------
""".strip("\n").split("\n")

def gen(W=9, QPOS=2, QD=3, FT=-1, stamps=False, force_slow=False, pol="nt", vpol=None, qpol="nt", opol="nt", opol2="nt", spol="", skip="",
        pref=True, opos="mid", qx=16, force_fb=False, touch=False, amp=None, DA=1, DB=1, rotm=1, PB=0, NL=1, EP=0, inst=0, spf=2, WE=0, WEN=64, WE0=8, WEM=0x55, NLD=4, LD0=0, qpace=0, prio=0, QT=0, GA=0, GB=0, cpos="b0b", N1=2, c1=True, NE=0, o1=True, o2=True, o3=True, ap=1, NB=0, pos=None, rot='', wb=0, wbs=0, ks=0, b0=1, b0n=2, rnd=0, tv_='', BP=9, NM=12, TOP=132, NI=(0, 4, 2, 0, 0), NI0=None, R2=8, RF=29, trig=2, wbx=5, m1=True, m2=True, m4=True, m5=0, m6=0, m7=0, m8=0, lk=1, cl=0, xl=0, pa=-1, lp='', hp=0, qc=0, ve=(0, 2, 1, 4, 3), ke=None, vk=0, vt=-1, cnt=False, rpad=0, bph=0, a8=('L_tail', 'L_end'), wbt=5, wbm=0, tl_=0, tlw=2, gamp=None, wq1=0, wbr=31, lw=True, pad=0, al=1, tal=0, warm=0, outpol='', hack="", bx="ab", PB0=0):
    A = Asm()
    if pa < 0: pa = QPOS + W + QD
    assert pa <= QPOS + W + QD
    c1_ = c1
    OOL = []
    def stamp(i):
        if stamps or (amp and i in (amp[1], amp[2], 0)) or (gamp and i in (gamp[0], gamp[1], 0)): A(f"s_memrealtime s[{64+2*i}:{65+2*i}]")
    def dump_stamps(nst):
        if not stamps: return
        A("s_waitcnt lgkmcnt(0) vmcnt(0)")
        A("s_lshl_b32 s94, s2, 3"); A("s_add_u32 s94, s94, s30"); A("s_lshl_b32 s94, s94, 6"); A(f"s_add_u32 s94, s94, {W_STAMP}")
        A("s_mov_b64 exec, 1")
        A("v_mov_b32 v4, s94")
        for i in range(nst):
            A(f"v_mov_b32 v5, s{64+2*i}")
            A(f"global_store_dword v4, v5, s[28:29] offset:{4*i}")
        A("s_getreg_b32 s94, hwreg(HW_REG_XCC_ID, 0, 4)"); A("v_mov_b32 v5, s94")
        A("global_store_dword v4, v5, s[28:29] offset:60")
        A("s_waitcnt vmcnt(0)")

    def brow(dst, b): A(f"s_lshl_b32 {dst}, {b}, 15")
    BH = 16384
    A(f"{NAME}:")
    stamp(0)
    A("s_load_dwordx16 s[4:19], s[0:1], 0" if ks != 2 else "s_load_dwordx8 s[4:11], s[0:1], 0")
    if not ks or stamps:
        A("s_load_dwordx8 s[20:27], s[0:1], 64")
        A("s_load_dwordx2 s[28:29], s[0:1], 96")
    A("v_lshrrev_b32 v1, 6, v0")
    A("s_lshr_b32 s32, s2, 3")
    A("v_readfirstlane_b32 s30, v1")
    A("s_cmp_ge_u32 s32, 32")
    A("s_cbranch_scc1 L_end")
    A("v_and_b32 v0, 63, v0")
    A("s_and_b32 s31, s2, 7")
    A("v_lshlrev_b32 v3, 4, v0")
    A("s_cmp_lt_u32 s30, 4")
    A("s_cbranch_scc1 L_T")

    A.c("================ stream waves")
    V = Alloc(4, 256)
    vK = V(8); vKb = V(); vVb = V(); vAd = V(2); vKA = V(4); vM = V(4); vT = V(8); vOPa = V(2); vQA = V(); vSTw = V(); vSTr = V()
    vS = V(16); vAcc = vK; vQ = V(32); vKF = V(32); vVv = V(128)
    vA = vQ
    assert vKF == vQ + 32
    M = dict(j0=324, j1=1, r1=12, r2=256, r3=32, s0=24, s1=130, t0=2, t1=4) if pos is None else dict(pos)
    M = {k: v << 10 for k, v in M.items()}
    span = {0}
    for k in ("r1", "r2", "r3", "j0", "j1", "t0", "t1", "s0", "s1"): span |= {x ^ M[k] for x in span}
    assert len(span) == 512
    SRC = dict(s0=("s2", 3), s1=("s2", 4), b0=("s2", 5), b1=("s2", 6), b2=("s2", 7), k0=("s2", 0), k1=("s2", 1), k2=("s2", 2), j0=("s30", 0), j1=("s30", 1))
    def gaddr(i, tl=0):
        x = 0
        for k in range(3):
            if (i >> k) & 1: x ^= M[f"r{k+1}"]
        for k in range(2):
            if (tl >> k) & 1: x ^= M[f"t{k}"]
        return x
    def X(i, tl): return ((8*(i & 1) + (i >> 1)) << 4) | gaddr(i, tl)
    A("s_lshr_b32 s34, s2, 5"); A("s_lshl3_add_u32 s34, s34, s31"); A("s_lshl2_add_u32 s34, s34, 3"); A("s_lshl_b32 s40, s34, 19")
    first = True
    for k, (reg, bit) in SRC.items():
        if M.get(k):
            A(f"s_bitcmp1_b32 {reg}, {bit}"); A(f"s_cselect_b32 {'s38' if first else 's35'}, {M[k]}, 0")
            if not first: A("s_xor_b32 s38, s38, s35")
            first = False
    A("s_sub_u32 s33, s30, 4")
    A("s_lshl_b32 s37, s33, 15")
    A(f"v_and_b32 {vr(vT)}, 32, v0"); A(f"v_lshlrev_b32 {vr(vT)}, 1, {vr(vT)}")
    A(f"v_xor_b32 {vr(vT)}, {vr(vT)}, v3")
    A(f"v_xor_b32 {vr(vKb)}, s38, {vr(vT)}")
    if prio == 2: A("s_setprio 3")
    A("s_brev_b32 s54, 16"); A("s_mov_b32 s55, 0x20000")
    A("s_mov_b32 m0, s37")
    A("s_waitcnt lgkmcnt(0)")
    A("s_mov_b64 s[52:53], s[6:7]")
    stamp(8)
    issued = [0]; kpre = {}; vpre = {}
    def throttle():
        if WE and WE0 <= issued[0] < WE0 + WEN:
            A(f"s_cbranch_vccz L_th{issued[0]}"); A(f"s_waitcnt vmcnt({abs(WE)-1})"); A(f"L_th{issued[0]}:")
        if issued[0] >= W: A(f"s_waitcnt vmcnt({W-1})")
        issued[0] += 1
    def kload(tl, i):
        ad = vKb
        if (tl, i) in kpre:
            ad = kpre[(tl, i)]; A(f"s_add_u32 m0, s37, {(tl << 13) | (i << 10)}")
        elif tl or i:
            ad = vAd + (issued[0] & 1)
            A(f"s_add_u32 m0, s37, {(tl << 13) | (i << 10)}"); A(f"v_xor_b32 {vr(ad)}, {X(i, tl)}, {vr(vKb)}")
        throttle()
        A(f"buffer_load_dwordx4 {vr(ad)}, s[52:55], s40 offen {pol} lds")
    kord = [sum(((n_ >> k) & 1) << ke[k] for k in range(5)) for n_ in range(32)] if ke else list(range(32))
    for i in range(8):
        if b0 and i == b0n: A("s_barrier")
        kload(kord[i] >> 3, kord[i] & 7)
    A("s_branch L_S2")

    LP = "L_b0" if b0 == 4 else "L_prepw"
    A("L_T:")
    A.c("================ tail waves")
    if ks == 2: A("s_load_dwordx8 s[12:19], s[0:1], 32")
    if ks and not stamps:
        A("s_load_dwordx8 s[20:27], s[0:1], 64")
        A("s_load_dwordx2 s[28:29], s[0:1], 96")
    V = Alloc(4, 256)
    vC = V(56); vW = V(32); vRaw = V(32); vX = V(56); tT = V(24)
    vXr = V(4); vDl = V(4); vQs = V(8); vKs = V(4); vWa = V(2)
    vLa = V(); vOa = V(); vPPa = V(); vBst = V(); vOst = V(); vLst = V(); vLse = V()
    vBa = V(); vHsw = V(); vOut = V(); vB2 = V(); vQa = V(); vOPr = V(); vPPr = V(); vQw = V(); vWr = V(); vLT = V(); vTs = V(); vXa = V()
    raw = vRaw + 4
    NI0 = NI0 or NI
    assert sum(NI) == NM // 2 and sum(NI0) == NM // 2
    E0 = TOP - 2 * NM
    def prep_loads():
        t = tT + 14
        A.c("MLP weights: 7 consecutive f per lane (16 bytes from the dword below), b2")
        A("s_mul_i32 s33, s30, 896")
        A(f"v_mul_u32_u24 {vr(t)}, 14, v0"); A(f"v_and_b32 {vr(t)}, -4, {vr(t)}"); A(f"v_add_u32 {vr(t)}, s33, {vr(t)}")
        for k, sp in enumerate((16, 18, 20)):
            A(f"global_load_dwordx4 {vr(raw+4*k,4)}, {vr(t)}, s[{sp}:{sp+1}] {spol}")
        A(f"v_mov_b32 {vr(t+2)}, 0")
        A(f"global_load_ushort {vr(vB2)}, {vr(t+2)}, s[22:23] {spol}")
    A("v_and_b32 v1, 15, v0")
    A("v_lshrrev_b32 v2, 4, v0")
    A("s_lshl_b32 s63, s31, 2")
    A(f"v_mov_b32 {vr(vQw)}, 0")
    if cl: A(f"v_mov_b32 {vr(tT)}, 0"); A(f"v_mov_b32 {vr(tT+1)}, 0")
    if cnt: A("s_mov_b32 s90, 0"); A("s_mov_b32 s91, 0"); A("s_mov_b32 s92, 0")
    A("s_mov_b64 s[40:41], 0")
    if b0: A("s_mov_b32 s46, 0")
    if "T" in skip:
        A("s_waitcnt lgkmcnt(0)"); A("s_barrier"); A("s_barrier"); A("s_barrier")
        if NL: A("s_barrier")
        A("s_branch L_b3")
    A("s_cmp_eq_u32 s30, 0"); A("s_cbranch_scc1 L_T0")
    A("s_cmp_eq_u32 s30, 3"); A("s_cbranch_scc1 L_T3")
    if spf:
        A("s_cmp_eq_u32 s30, 1"); A("s_cbranch_scc1 L_T1")
    if pref:
        if not spf: A("s_cmp_eq_u32 s30, 2"); A("s_cbranch_scc0 " + LP)
        A.c("T2: pull the code into this XCD's L2")
        A("s_getpc_b64 s[34:35]")
        A("L_pc:")
        A(f"s_sub_u32 s34, s34, L_pc-{NAME}"); A("s_subb_u32 s35, s35, 0")
        A("s_lshl_b32 s33, s32, 9")
        A(f"v_min_u32 {vr(tT)}, 7, v0"); A(f"v_lshlrev_b32 {vr(tT)}, 6, {vr(tT)}"); A(f"v_add_u32 {vr(tT)}, s33, {vr(tT)}")
        A(f"global_load_dword {vr(tT+2)}, {vr(tT)}, s[34:35]")
    A("s_branch " + LP)
    if spf:
        A("L_T1:")
        A.c("T1: pull 14 rows of the wq column block that r=28..31 read (and of the last block) into L2")
        A("s_mul_i32 s33, s32, 14*8192"); A("s_lshl_b32 s34, s31, 10"); A("s_add_u32 s33, s33, s34"); A("s_addk_i32 s33, 384")
        A(f"v_min_u32 {vr(tT)}, 13, v1"); A(f"v_lshlrev_b32 {vr(tT)}, 13, {vr(tT)}")
        A(f"v_and_b32 {vr(tT+1)}, 1, v2"); A(f"v_lshl_add_u32 {vr(tT)}, {vr(tT+1)}, 6, {vr(tT)}")
        A(f"v_lshrrev_b32 {vr(tT+1)}, 1, v2"); A(f"v_lshl_add_u32 {vr(tT)}, {vr(tT+1)}, 9, {vr(tT)}")
        A(f"v_add_u32 {vr(tT)}, s33, {vr(tT)}")
        A("s_cmp_eq_u32 s31, 7"); A("s_cselect_b32 exec_hi, -1, 0")
        if spf == 2: A("s_and_b32 exec_hi, exec_hi, 0xffff"); A("s_mov_b32 exec_lo, 0xffff")
        A("s_waitcnt lgkmcnt(0)")
        A(f"global_load_dword {vr(tT+2)}, {vr(tT)}, s[10:11]")
        A("s_mov_b64 exec, -1")
        A("s_branch " + LP)
    A("L_T3:")
    A.c(f"T3 of {NLD} workgroup(s) per group: clear a share of the group's q and lse slots, then count in")
    per = 4 // NLD
    A(f"s_sub_u32 s36, s32, {LD0}"); A(f"s_cmp_lt_u32 s36, {NLD}"); A("s_cbranch_scc0 " + LP)
    for i in range(4): A(f"v_mov_b32 {vr(tT+4+i)}, -1")
    A("s_getreg_b32 s34, hwreg(HW_REG_XCC_ID, 0, 4)")
    if per > 1: A(f"s_mul_i32 s34, s34, {0x1111 & ((1 << (4*per)) - 1)}"); A(f"s_mul_i32 s36, s36, {per}")
    A("s_lshl_b32 s33, s36, 2"); A("s_lshl_b32 s34, s34, s33"); A(f"s_bitset1_b32 s34, {16 + per.bit_length() - 1}")
    A("s_lshl2_add_u32 s33, s31, s36"); A("s_lshl_b32 s35, s33, 13"); A(f"v_add_u32 {vr(tT)}, s35, v3")
    A("s_lshl_b32 s33, s33, 6"); A(f"s_add_u32 s33, s33, {W_L}")
    A(f"v_add_u32 {vr(tT+2)}, s33, v3")
    A("s_waitcnt lgkmcnt(0)")
    for k in range(2*per):
        for i in range(4): A(f"global_store_dwordx4 {vr(tT)}, {vr(tT+4,4)}, s[28:29] offset:{1024*i} {lp}")
        if k < 2*per - 1: A(f"v_add_u32 {vr(tT)}, 4096, {vr(tT)}")
    A(f"s_mov_b64 exec, {(1 << (4*per)) - 1}")
    A(f"global_store_dwordx4 {vr(tT+2)}, {vr(tT+4,4)}, s[28:29]")
    A("s_mov_b64 exec, -1")
    if b0:
        A("s_mov_b32 s46, s34")
    else:
        A("s_waitcnt vmcnt(0)")
        A("s_atomic_add s34, s[26:27], s63")
        stamp(1)
    A("s_branch " + LP)
    A("L_T0:")
    A.c("T0: x into LDS, clear this workgroup's share of the hand-off slots (acknowledged before q is published)")
    A(f"v_lshrrev_b32 {vr(vQw)}, 3, v0"); A(f"v_lshlrev_b32 {vr(vQw)}, 13, {vr(vQw)}"); A(f"v_and_b32 {vr(tT)}, 0x70, v3"); A(f"v_or_b32 {vr(vQw)}, {vr(vQw)}, {vr(tT)}")
    A(f"s_xor_b32 s34, s32, {qx}"); A("s_lshr_b32 s35, s34, 2"); A("s_lshl3_add_u32 s50, s31, s35"); A("s_lshl_b32 s50, s50, 7")
    A("s_and_b32 s48, s34, 3"); A("s_mul_i32 s34, s48, 112*8192"); A("s_add_u32 s50, s50, s34")
    qstep = 0x10000
    if "8" in hack:
        A(f"v_lshlrev_b32 {vr(vQw)}, 13, v2"); A(f"v_lshl_add_u32 {vr(vQw)}, v1, 4, {vr(vQw)}")
        A("s_lshr_b32 s35, s32, 3"); A("s_lshl2_add_u32 s50, s31, s35"); A("s_lshl_b32 s50, s50, 8")
        A("s_and_b32 s34, s32, 7"); A("s_mul_i32 s34, s34, 56*8192"); A("s_add_u32 s50, s50, s34"); qstep = 0x8000
    if "C" in hack:
        A(f"v_mov_b32 {vr(vQw)}, v3"); A("s_mul_i32 s50, s2, 14336"); qstep = 1024
    A("s_movk_i32 s58, 7168"); A("s_mov_b32 s59, 0x20000")
    A("s_lshl_b32 s33, s31, 15"); A("s_lshl_b32 s34, s32, 10"); A("s_add_u32 s33, s33, s34"); A(f"s_add_u32 s33, s33, {W_O}")
    A(f"v_add_u32 {vr(tT)}, s33, v3")
    brow("s33", "s31"); A("s_min_u32 s34, s32, 27"); A("s_lshl_b32 s34, s34, 9"); A("s_add_u32 s33, s33, s34"); A(f"s_add_u32 s33, s33, {W_B}")
    A("s_cmp_ge_u32 s32, 14"); A(f"s_cselect_b32 s34, {BH - 7168}, 0"); A("s_add_u32 s40, s33, s34")
    A("s_getreg_b32 s34, hwreg(HW_REG_XCC_ID, 2, 1)")
    if bph: A("s_xor_b32 s34, s34, 1")
    A("s_lshl_b32 s34, s34, 13"); A("s_add_u32 s33, s40, s34")
    A(f"v_add_u32 {vr(tT+1)}, s33, v3")
    A("s_lshl_b32 s33, s31, 5"); A("s_add_u32 s33, s33, s32"); A(f"s_mul_i32 s33, s33, {4*NM}"); A(f"s_add_u32 s33, s33, {W_T - 512}")
    A(f"v_add_u32 {vr(tT+2)}, s33, v3"); A("v_cmp_gt_u32 vcc, 32, v0"); A(f"v_cndmask_b32 {vr(tT+1)}, {vr(tT+2)}, {vr(tT+1)}, vcc")
    for i in range(4): A(f"v_mov_b32 {vr(vW+i)}, -1")
    A("s_waitcnt lgkmcnt(0)")
    A("s_mov_b64 s[56:57], s[4:5]")
    def xloads():
        A(f"s_mov_b32 m0, {L_X}"); A("s_movk_i32 s35, 4096")
        for t in range(4 if "x" not in hack else 0): A(f"buffer_load_dwordx4 v3, s[56:59], 0 offen offset:{1024*t} {spol} lds")
        A(f"s_mov_b32 m0, {L_X + 4096}")
        for t in range(3 if "x" not in hack else 0): A(f"buffer_load_dwordx4 v3, s[56:59], s35 offen offset:{1024*t} {spol} lds")
    if not xl: xloads()
    def clears():
        A(f"global_store_dwordx4 {vr(tT)}, {vr(vW,4)}, s[28:29] {lp}")
        A.c("lanes 0..31: 512 B of the row slots (r < 28); next lanes: this workgroup's table entries")
        A("s_cmp_lt_u32 s32, 28"); A("s_cselect_b32 exec_lo, -1, 0"); A(f"s_mov_b32 exec_hi, {(1 << (NM // 4)) - 1}")
        A(f"global_store_dwordx4 {vr(tT+1)}, {vr(vW,4)}, s[28:29] sc1")
        A("s_mov_b64 exec, -1")
    if not cl: clears()
    A("s_branch " + LP)
    if b0 == 4:
        A("L_b0:"); A("s_barrier"); A("s_branch L_prepw")

    A("L_S2:")
    A("v_and_b32 v1, 15, v0")
    A("v_lshrrev_b32 v2, 4, v0")
    A("s_mov_b64 s[56:57], s[8:9]"); A("s_mov_b32 s58, s54"); A("s_mov_b32 s59, 0x20000")
    A("s_mov_b32 s61, 0")
    for k in rot.split():
        reg, bit = SRC[k]
        A(f"s_bitcmp1_b32 {reg}, {bit}"); A("s_cselect_b32 s35, 256, 0"); A("s_xor_b32 s61, s61, s35")
    A(f"v_and_b32 {vr(vT)}, 1, v2"); A(f"v_lshlrev_b32 {vr(vT)}, 9, {vr(vT)}"); A(f"v_lshl_add_u32 {vr(vT)}, v1, 4, {vr(vT)}")
    A(f"v_lshrrev_b32 {vr(vT+1)}, 1, v2"); A(f"v_mul_u32_u24 {vr(vT+1)}, {M['r1']}, {vr(vT+1)}"); A(f"v_or_b32 {vr(vT)}, {vr(vT)}, {vr(vT+1)}")
    A("s_or_b32 s35, s38, s61")
    A(f"v_xor_b32 {vr(vVb)}, s35, {vr(vT)}")
    A(f"v_mov_b32 {vr(vT+3)}, v1")
    A(f"v_and_b32 {vr(vT)}, 3, v1"); A(f"v_lshrrev_b32 {vr(vT+1)}, 2, v1")
    A(f"v_lshl_add_u32 {vr(vT+2)}, {vr(vT)}, 2, {vr(vT+1)}")
    A(f"v_xor_b32 {vr(vT+3)}, {vr(vT+3)}, v2")
    A(f"v_lshlrev_b32 {vr(vT+2)}, 9, {vr(vT+2)}"); A(f"v_add_u32 {vr(vT+2)}, s37, {vr(vT+2)}")
    A(f"v_lshl_add_u32 {vr(vKA)}, {vr(vT+3)}, 4, {vr(vT+2)}")
    for t in range(1, 4): A(f"v_xor_b32 {vr(vKA+t)}, {64*t}, {vr(vKA)}")
    A(f"v_lshrrev_b32 {vr(vT)}, 3, v1")
    A(f"v_lshlrev_b32 {vr(vQA)}, 9, {vr(vT)}"); A(f"v_lshl_add_u32 {vr(vQA)}, v2, 4, {vr(vQA)}")
    A(f"v_add_u32 {vr(vQA)}, {L_Q}, {vr(vQA)}")
    A(f"v_lshlrev_b32 {vr(vSTr)}, 5, {vr(vT)}"); A(f"v_add_u32 {vr(vSTr)}, {L_STAT}, {vr(vSTr)}")
    A("s_lshl_b32 s35, s33, 2"); A(f"v_add_u32 {vr(vSTw)}, s35, {vr(vSTr)}")
    def delta(dst, val, t0):
        A(f"v_and_b32 {vr(t0)}, 16, v3")
        A(f"v_mov_b32 {vr(t0+1)}, {val}"); A(f"v_lshlrev_b32 {vr(t0+1)}, {vr(t0)}, {vr(t0+1)}")
        A(f"v_bfe_u32 {vr(t0)}, v1, 1, 2")
        for i in range(4):
            A(f"v_cmp_eq_u32 vcc, {i}, {vr(t0)}")
            A(f"v_cndmask_b32 {vr(dst+i)}, 0, {vr(t0+1)}, vcc")
    delta(vM, "0xffff", vT)
    A(f"v_and_b32 {vr(vT)}, 1, v2"); A(f"v_lshlrev_b32 {vr(vT)}, 4, {vr(vT)}")
    A(f"v_lshrrev_b32 {vr(vT+1)}, 1, v2"); A(f"v_lshl_add_u32 {vr(vT)}, {vr(vT+1)}, 10, {vr(vT)}")
    A(f"v_lshl_add_u32 {vr(vT)}, v1, 5, {vr(vT)}")
    A("s_lshl_b32 s35, s33, 11"); A(f"s_add_u32 s35, s35, {L_OP}")
    for dh in range(2):
        A(f"s_xor_b32 s38, s61, {dh << 8}"); A("s_lshl1_add_u32 s38, s38, s35")
        A(f"v_add_u32 {vr(vOPa+dh)}, s38, {vr(vT)}")
    if WE:
        A("s_getreg_b32 s35, hwreg(HW_REG_XCC_ID, 0, 3)"); A(f"s_bitcmp1_b32 {WEM}, s35"); A("s_cselect_b64 vcc, -1, 0")
    nv = [0]; b2done = [False]
    def bitperm(p): return [sum(((n_ >> k) & 1) << p[k] for k in range(len(p))) for n_ in range(1 << len(p))]
    vord = bitperm(ve) if ve else list(range(32))
    if vord[30] & 1 == 0: vord[29], vord[30] = vord[30], vord[29]
    last0 = max(k for k in range(32) if vord[k] & 1 == 0)
    seen_acc = set()
    def more(k):
        for _ in range(k):
            if nv[0] < 32:
                idx = vord[nv[0]]; tl, e = idx >> 3, idx & 7
                ad = vVb
                if idx in vpre: ad = vpre[idx]
                elif idx:
                    ad = vAd + (nv[0] & 1); A(f"v_xor_b32 {vr(ad)}, {gaddr(e & 6, tl) | ((e & 1) << 8)}, {vr(vVb)}")
                throttle()
                A(f"buffer_load_dwordx4 {vr(vVv+4*idx,4)}, {vr(ad)}, s[56:59], s40 offen {pol if vpol is None else vpol}")
                nv[0] += 1
                if nv[0] == 32 - EP:
                    assert b2done[0]
                    A("s_barrier")
    if pa:
        for n_, x in enumerate(kord[8:]):
            kpre[(x >> 3, x & 7)] = vQ + n_; A(f"v_xor_b32 {vr(vQ+n_)}, {X(x & 7, x >> 3)}, {vr(vKb)}")
        for n_ in range(1, pa):
            idx = vord[n_]; vpre[idx] = vQ + 24 + n_; A(f"v_xor_b32 {vr(vQ+24+n_)}, {gaddr(idx & 6, idx >> 3) | ((idx & 1) << 8)}, {vr(vVb)}")
    seq = []; placed = 0
    for n_, (tl, i) in enumerate((x >> 3, x & 7) for x in kord[8:]):
        while placed < vk and placed * 24 <= n_ * vk: seq.append(("v",)); placed += 1
        seq.append(("k", tl, i))
    lastk = len(seq)
    seq += [("v",)] * (32 - placed)
    pos = 0
    def adv(n):
        nonlocal pos
        for _ in range(n):
            it = seq[pos]; pos += 1
            if pos - 1 == vt:
                A.c("touch the V page ahead of its first use (value unused)")
                A("s_mov_b64 exec, 1"); throttle()
                A(f"buffer_load_dword {vr(vS)}, {vr(vVb)}, s[56:59], s40 offen {pol}"); A("s_mov_b64 exec, -1")
            if it[0] == "k": kload(it[1], it[2])
            else: more(1)
    if cpos == "b0b":
        adv(BP - 8); A("s_barrier")
        adv(24 + QPOS - (BP - 8))
    else: adv(24 + QPOS)
    stamp(6)
    A("s_barrier")
    stamp(7)
    adv(W + QD)
    assert pos - lastk >= W
    stamp(1)
    if prio == 3: A("s_setprio 2")
    A("s_barrier")
    stamp(2)
    for t in range(8):
        A(f"ds_read_b128 {vr(vQ+4*t,4)}, {vr(vQA)} offset:{64*t}")
    for tl in range(4):
        for t in range(8):
            A(f"ds_read_b128 {vr(vKF+4*t,4)}, {vr(vKA+(t&3))} offset:{tl*8192 + (t>>2)*256}")
        for t in range(8):
            A(f"s_waitcnt lgkmcnt({7-t})")
            c = "0" if t == 0 else vr(vS+4*tl, 4)
            A(f"v_mfma_f32_16x16x32_bf16 {vr(vS+4*tl,4)}, {vr(vKF+4*t,4)}, {vr(vQ+4*t,4)}, {c}")
        more(1)
    SC = math.log2(math.e) / 16.0
    A(f"s_mov_b32 s35, {f32(SC)}")
    mx = vT; cp = vT + 1; ls = vT + 2
    A(f"v_max3_f32 {vr(mx)}, {vr(vS)}, {vr(vS+1)}, {vr(vS+2)}")
    for i in range(3, 15, 2):
        A(f"v_max3_f32 {vr(mx)}, {vr(mx)}, {vr(vS+i)}, {vr(vS+i+1)}")
    A(f"v_max_f32 {vr(mx)}, {vr(mx)}, {vr(vS+15)}")
    def xg(x, op):
        for sw in ("v_permlane32_swap_b32", "v_permlane16_swap_b32"):
            A(f"v_mov_b32 {vr(cp)}, {vr(x)}")
            A(f"{sw} {vr(x)}, {vr(cp)}")
            A(f"{op} {vr(x)}, {vr(x)}, {vr(cp)}")
    xg(mx, "v_max_f32")
    A(f"v_mul_f32 {vr(mx)}, s35, {vr(mx)}")
    for i in range(16):
        A(f"v_fma_f32 {vr(vS+i)}, {vr(vS+i)}, s35, -{vr(mx)}")
    for i in range(16):
        A(f"v_exp_f32 {vr(vS+i)}, {vr(vS+i)}")
    A(f"v_add_f32 {vr(ls)}, {vr(vS)}, {vr(vS+1)}")
    for i in range(2, 16):
        A(f"v_add_f32 {vr(ls)}, {vr(ls)}, {vr(vS+i)}")
    xg(ls, "v_add_f32")
    A(f"ds_write2_b32 {vr(vSTw)}, {vr(mx)}, {vr(ls)} offset0:0 offset1:4")
    more(1)
    A("s_waitcnt lgkmcnt(0)")
    A("s_barrier")
    b2done[0] = True
    stamp(3)
    def stats(m4, l4, M, Lr):
        A(f"v_max3_f32 {vr(M)}, {vr(m4)}, {vr(m4+1)}, {vr(m4+2)}"); A(f"v_max_f32 {vr(M)}, {vr(M)}, {vr(m4+3)}")
        for i in range(4): A(f"v_sub_f32 {vr(m4+i)}, {vr(m4+i)}, {vr(M)}")
        for i in range(4): A(f"v_exp_f32 {vr(m4+i)}, {vr(m4+i)}")
        A(f"v_mul_f32 {vr(Lr)}, {vr(m4)}, {vr(l4)}")
        for i in range(1, 4): A(f"v_fmac_f32 {vr(Lr)}, {vr(m4+i)}, {vr(l4+i)}")
    A(f"ds_read_b128 {vr(vAcc,4)}, {vr(vSTr)}")
    A(f"ds_read_b128 {vr(vAcc+4,4)}, {vr(vSTr)} offset:16")
    more(1)
    A("s_waitcnt lgkmcnt(0)")
    stats(vAcc, vAcc + 4, vT + 3, vT + 4)
    A(f"v_sub_f32 {vr(mx)}, {vr(mx)}, {vr(vT+3)}")
    A(f"v_exp_f32 {vr(mx)}, {vr(mx)}")
    A(f"v_rcp_f32 {vr(vT+4)}, {vr(vT+4)}")
    A(f"v_mul_f32 {vr(mx)}, {vr(mx)}, {vr(vT+4)}")
    for i in range(16):
        A(f"v_mul_f32 {vr(vS+i)}, {vr(vS+i)}, {vr(mx)}")
        A(f"v_cvt_pk_bf16_f32 {vr(vS+i)}, {vr(vS+i)}, {vr(vS+i)}")
        for k in range(4):
            A(f"v_and_b32 {vr(vA+4*i+k)}, {vr(vS+i)}, {vr(vM+k)}")
        if i % 8 == 7: more(1)
    stamp(4)
    done = 0
    def pv(k):
        idx = vord[k]
        i, dh = idx >> 1, idx & 1
        c = "0" if dh not in seen_acc else vr(vAcc+4*dh, 4)
        seen_acc.add(dh)
        A(f"v_mfma_f32_16x16x32_bf16 {vr(vAcc+4*dh,4)}, {vr(vA+4*i,4)}, {vr(vVv+4*idx,4)}, {c}")
    while nv[0] < 32:
        more(1)
        lim = min(nv[0] - W, done + 4)
        while done < lim: pv(done); done += 1
    while done < 32:
        if 31 - done < W: A(f"s_waitcnt vmcnt({31-done})")
        pv(done); done += 1
        if done == 31:
            assert last0 <= 29 and vord[31] & 1
            A(f"ds_write_b128 {vr(vOPa)}, {vr(vAcc,4)}")
    if m7:
        A(f"ds_write_b64 {vr(vOPa+1)}, {vr(vAcc+4,2)}"); A(f"ds_write_b64 {vr(vOPa+1)}, {vr(vAcc+6,2)} offset:8")
    else: A(f"ds_write_b128 {vr(vOPa+1)}, {vr(vAcc+4,4)}")
    stamp(5)
    A("s_waitcnt lgkmcnt(0)")
    A("s_barrier")
    if wbs and "E" not in skip:
        A.c("one wave per group stays to write the spent hand-off lines back ahead of the end of the kernel")
        A("s_cmp_eq_u32 s30, 4"); A("s_cselect_b32 s33, s32, -1"); A(f"s_cmp_eq_u32 s33, {wbr}"); A("s_cbranch_scc0 L_send")
        nb = 4 if "b" in bx else 3
        for k in range(nb):
            if k == wbs - 1: A("buffer_wbl2 sc1")
            A("s_barrier")
        A("L_send:")
    dump_stamps(9)
    A("s_endpgm")

    vT = tT
    A("L_prepw:")
    A("s_waitcnt lgkmcnt(0)")
    if b0 == 1: A("s_barrier")
    if cpos == "early": prep_loads()
    if b0 == 2: A("s_barrier")
    A("s_mov_b64 s[52:53], s[10:11]"); A("s_mov_b32 s54, 0x380000"); A("s_mov_b32 s55, 0x20000")
    if xl: A("s_mov_b64 s[56:57], s[4:5]"); A("s_movk_i32 s58, 7168"); A("s_mov_b32 s59, 0x20000")
    nq = [0]
    def wq_loads(n):
        if not n or "q" in skip: return
        A("s_cmp_eq_u32 s30, 0"); A(f"s_cbranch_scc0 L_nq{nq[0]}")
        lab = f"L_nq{nq[0]}:"
        for _ in range(n):
            A(f"s_mov_b32 m0, {L_WQ + 1024*nq[0]}")
            if qpace and nq[0] >= qpace: A(f"s_waitcnt vmcnt({qpace-1})")
            A(f"buffer_load_dwordx4 {vr(vQw)}, s[52:55], s50 offen {qpol} lds")
            A(f"s_add_u32 s50, s50, {qstep}")
            nq[0] += 1
            if xl and nq[0] == xl: xloads()
            if cl and nq[0] == 14: clears()
        A(lab)
    wq_loads(wq1)
    if b0 == 3: A("s_barrier")
    wq_loads(14 - wq1)
    if b0:
        A("s_cmp_eq_u32 s46, 0"); A("s_cbranch_scc1 L_nolead")
        A("s_waitcnt vmcnt(4)" if cpos == "early" else "s_waitcnt vmcnt(0)")
        A("s_atomic_add s46, s[26:27], s63")
        A("L_nolead:")
    def wo_addr():
        A("s_bfe_u32 s34, s32, 0x10001"); A("s_lshl1_add_u32 s33, s31, s34"); A("s_lshl2_add_u32 s33, s33, s30"); A("s_lshl_b32 s33, s33, 6")
        A("s_mul_i32 s33, s33, 896"); A("s_lshr_b32 s34, s32, 2"); A("s_min_u32 s34, s34, 6"); A("s_lshl_b32 s34, s34, 7"); A("s_add_u32 s51, s33, s34")
        if "O" in hack: A("s_mul_i32 s33, s31, 14"); A("s_lshr_b32 s34, s32, 1"); A("s_add_u32 s33, s33, s34"); A("s_lshl2_add_u32 s33, s33, s30"); A("s_lshl_b32 s51, s33, 13")
        A(f"v_lshrrev_b32 {vr(vWa)}, 3, v0"); A(f"v_mul_u32_u24 {vr(vWa)}, 896, {vr(vWa)}")
        A(f"v_and_b32 {vr(vT+4)}, 16, v0"); A(f"v_lshlrev_b32 {vr(vT+4)}, 1, {vr(vT+4)}"); A(f"v_and_b32 {vr(vT+5)}, 0x70, v3"); A(f"v_xor_b32 {vr(vT+4)}, {vr(vT+4)}, {vr(vT+5)}")
        A(f"v_xor_b32 {vr(vT+5)}, 64, {vr(vT+4)}"); A(f"v_add_u32 {vr(vWa+1)}, {vr(vWa)}, {vr(vT+5)}"); A(f"v_add_u32 {vr(vWa)}, {vr(vWa)}, {vr(vT+4)}")
        A(f"v_lshrrev_b32 {vr(vT+4)}, 2, v1"); A(f"v_lshl_add_u32 {vr(vT+4)}, v2, 3, {vr(vT+4)}"); A(f"v_lshlrev_b32 {vr(vT+4)}, 7, {vr(vT+4)}")
        A(f"v_bfe_u32 {vr(vT+5)}, v0, 3, 2"); A(f"v_lshl_add_u32 {vr(vT+4)}, {vr(vT+5)}, 5, {vr(vT+4)}")
        A(f"v_and_b32 {vr(vT+5)}, 3, v0"); A(f"v_lshl_add_u32 {vr(vT+4)}, {vr(vT+5)}, 3, {vr(vT+4)}")
        A("s_lshl_b32 s61, s30, 13"); A(f"v_add_u32 {vr(vWr)}, s61, {vr(vT+4)}")
    def wo_loads(i0, i1, tag):
        if i0 >= i1: return
        A("s_cmp_ge_u32 s32, 28" if "o" not in skip else "s_cmp_ge_u32 s32, 0"); A(f"s_cbranch_scc1 L_nowo{tag}")
        for i in range(i0, i1):
            A(f"s_add_u32 m0, s61, {1024*i}"); A(f"s_add_u32 s33, s51, {8*896*i if 'O' not in hack else 1024*i}")
            A(f"buffer_load_dwordx4 {vr(vWa+(i&1)) if 'O' not in hack else 'v3'}, s[56:59], s33 offen {opol} lds")
        A(f"L_nowo{tag}:")
    def wo_frags(tts=(0, 1)):
        for nt in range(4):
            for tt in tts:
                for hh in range(2):
                    A(f"ds_read_b64_tr_b16 {vr(vW+16*tt+4*nt+2*hh,2)}, {vr(vWr if nt == 0 else vRaw+nt)} offset:{4096*tt + 512*hh}")
    A.c("tail constants")
    A("s_mov_b32 s49, 0")
    wo_addr()
    if tl_:
        A.c("one scalar read per page that is first used later (V, wo, out): the translation is ready by then; values unused")
        A(f"s_cmp_eq_u32 s30, {tlw}"); A("s_cbranch_scc0 L_notl")
        if tl_ & 1:
            A("s_lshr_b32 s33, s2, 5"); A("s_lshl3_add_u32 s33, s33, s31"); A("s_lshl2_add_u32 s33, s33, 3"); A("s_lshl_b32 s33, s33, 12"); A("s_add_u32 s33, s33, s32"); A("s_lshl_b32 s33, s33, 7")
            A("s_load_dword s46, s[8:9], s33")
        if tl_ & 2:
            A("s_load_dword s47, s[12:13], s51")
        if tl_ & 4:
            A("s_mul_i32 s34, s31, 896")
            A("s_load_dword s48, s[24:25], s34")
        A("L_notl:")
    A(f"s_xor_b32 s34, s32, {qx}"); A("s_and_b32 s35, s34, 3"); A("s_lshr_b32 s34, s34, 2"); A("s_lshl3_add_u32 s34, s35, s34"); A("s_lshl_b32 s34, s34, 7")
    A("s_lshl_b32 s39, s31, 15"); A("s_add_u32 s34, s34, s39")
    A(f"v_and_b32 {vr(vQa)}, 7, v1"); A(f"v_lshlrev_b32 {vr(vQa)}, 12, {vr(vQa)}"); A(f"v_lshl_add_u32 {vr(vQa)}, v2, 4, {vr(vQa)}"); A(f"v_add_u32 {vr(vQa)}, s34, {vr(vQa)}")
    def publish_q():
        A("s_getreg_b32 s47, hwreg(HW_REG_XCC_ID, 0, 4)")
        A("s_mul_i32 s47, s47, 0x1111"); A("s_bitset1_b32 s47, 18")
        if force_slow: A("s_cmp_eq_u32 s32, 5"); A("s_cselect_b32 s47, 0, s47")
        A("s_waitcnt lgkmcnt(0)")
        A("s_cmp_eq_u32 s46, s47")
        A("s_cbranch_scc0 L_f1slow")
        A("L_same:")
        A("s_mov_b32 s41, s46")
        A.c("the slots were cleared in this XCD's L2: publish there")
        A("s_mov_b32 exec_lo, 0x00ff00ff"); A("s_mov_b32 exec_hi, 0x00ff00ff")
        for k in range(2): A(f"global_store_dwordx4 {vr(vQa)}, {vr(vQs+4*k,4)}, s[28:29] offset:{64*k} {lp}")
        A("s_mov_b64 exec, -1")
        stamp(3)
        A("L_nopub:")
        def ool():
            A("L_f1slow:")
            if cnt: A("s_mov_b32 s90, 1")
            A(f"v_mov_b32 {vr(vT+20)}, s63")
            A("s_mov_b32 s35, 0")
            A("L_f1l:")
            A("s_cmp_ge_u32 s46, 0x40000")
            A("s_cbranch_scc1 L_f1d")
            A(f"global_load_dword {vr(vT+21)}, {vr(vT+20)}, s[26:27] sc1")
            A("s_add_u32 s35, s35, 1")
            A("s_waitcnt vmcnt(0)")
            A(f"v_readfirstlane_b32 s46, {vr(vT+21)}")
            A(f"s_cmp_lt_u32 s35, {SPIN}")
            A("s_cbranch_scc1 L_f1l")
            A("L_f1d:")
            A("s_cmp_eq_u32 s46, s47")
            A("s_cbranch_scc1 L_same")
            A.c("cleared on another XCD: tell the group, publish nothing here")
            A("s_mov_b32 s41, s46"); A("s_add_u32 s46, s63, 32"); A("s_mov_b32 s47, 1")
            A("s_atomic_add s47, s[26:27], s46 glc")
            A("s_waitcnt lgkmcnt(0)")
            A("s_mov_b32 s49, 1")
            A("s_branch L_nopub")
        OOL.append(ool)
    brow("s33", "s31"); A("s_mul_i32 s34, s30, 224"); A("s_add_u32 s33, s33, s34"); A(f"s_add_u32 s33, s33, {W_B}")
    A(f"v_min_u32 {vr(vT+4)}, 13, v1")
    A(f"v_mul_u32_u24 {vr(vBa)}, 3584, v2"); A(f"v_lshl_add_u32 {vr(vBa)}, {vr(vT+4)}, 4, {vr(vBa)}"); A(f"v_add_u32 {vr(vBa)}, s33, {vr(vBa)}")
    A(f"v_lshrrev_b32 {vr(vT+5)}, 1, v2"); A(f"v_mul_u32_u24 {vr(vT+5)}, {BH - 7168}, {vr(vT+5)}"); A(f"v_add_u32 {vr(vBa)}, {vr(vBa)}, {vr(vT+5)}")
    A("v_cmp_gt_u32 s[42:43], 14, v1")
    A(f"v_lshrrev_b32 {vr(vT+6)}, 5, v0")
    A("s_lshl_b32 s34, s30, 3"); A(f"s_add_u32 s34, s34, {L_HS}")
    A(f"v_lshlrev_b32 {vr(vHsw)}, 2, {vr(vT+6)}"); A(f"v_add_u32 {vr(vHsw)}, s34, {vr(vHsw)}")
    A(f"v_cvt_f32_u32 {vr(vKs)}, {vr(vT+6)}"); A(f"v_sub_f32 {vr(vKs+2)}, 1.0, {vr(vKs)}")
    for i in (0, 2): A(f"v_mul_f32 {vr(vKs+i)}, {f32(1.0/448)}, {vr(vKs+i)}")
    delta(vDl, "0x3f80", vT + 8)
    A("s_mul_i32 s33, s31, 896"); A("s_mul_i32 s34, s30, 224"); A("s_add_u32 s33, s33, s34")
    A(f"v_and_b32 {vr(vT+5)}, 1, v2"); A(f"v_lshlrev_b32 {vr(vXa)}, 4, {vr(vT+4)}"); A(f"v_lshl_add_u32 {vr(vXa)}, {vr(vT+5)}, 3, {vr(vXa)}"); A(f"v_add_u32 {vr(vXa)}, s33, {vr(vXa)}")
    A(f"v_lshl_add_u32 {vr(vOut)}, {vr(vT+6)}, 2, {vr(vXa)}")
    A("s_lshl_b32 s34, s30, 7"); A(f"s_add_u32 s34, s34, {L_LT}")
    A(f"v_lshlrev_b32 {vr(vLT)}, 3, {vr(vT+5)}"); A(f"v_lshl_add_u32 {vr(vLT)}, {vr(vT+6)}, 2, {vr(vLT)}"); A(f"v_add_u32 {vr(vLT)}, s34, {vr(vLT)}")
    A("s_lshl_b32 s33, s31, 5"); A("s_add_u32 s33, s33, s32"); A(f"s_mul_i32 s34, s33, {4*NM}"); A(f"s_add_u32 s34, s34, {W_T}")
    A(f"v_lshlrev_b32 {vr(vTs)}, 2, v1"); A(f"v_add_u32 {vr(vTs)}, s34, {vr(vTs)}")
    A(f"s_mul_i32 s96, s33, {NM << 16}"); A(f"s_add_u32 s96, s96, {E0 << 23}"); A("s_xor_b32 s97, s96, 0x80000000")
    A("s_lshl_b32 s33, s31, 8"); A(f"s_add_u32 s33, s33, {W_L}"); A("s_and_b32 s34, s32, 3"); A("s_lshl_b32 s34, s34, 6"); A("s_add_u32 s34, s34, s33")
    A(f"v_lshlrev_b32 {vr(vLa)}, 4, v2"); A(f"v_add_u32 {vr(vLa)}, s34, {vr(vLa)}")
    A("s_lshl2_add_u32 s34, s32, s33")
    A(f"v_lshlrev_b32 {vr(vLst)}, 7, v0"); A(f"v_add_u32 {vr(vLst)}, s34, {vr(vLst)}")
    A(f"s_add_u32 s33, s39, {W_O}")
    A("s_and_b32 s35, s32, 1"); A("s_bfe_u32 s36, s32, 0x10001")
    A("s_lshl1_add_u32 s34, s35, s36"); A("s_lshl2_add_u32 s34, s34, s30"); A("s_lshl_b32 s34, s34, 11"); A("s_add_u32 s34, s34, s33")
    A(f"v_add_u32 {vr(vOa)}, s34, v3")
    A("s_lshl2_add_u32 s60, s35, s30")
    A("s_lshl1_add_u32 s34, s31, s36"); A("s_mul_i32 s34, s34, 896"); brow("s36", "s60"); A("s_add_u32 s34, s34, s36")
    A("s_cmp_ge_u32 s31, 4"); A(f"s_cselect_b32 s36, {BH - 7168}, 0"); A("s_add_u32 s34, s34, s36")
    A("s_lshr_b32 s36, s32, 2"); A("s_min_u32 s36, s36, 6"); A("s_lshl_b32 s36, s36, 7")
    A("s_add_u32 s34, s34, s36"); A(f"s_add_u32 s34, s34, {W_B}")
    if m4: A(f"v_and_b32 {vr(vBst)}, 31, v0"); A(f"v_lshlrev_b32 {vr(vBst)}, 2, {vr(vBst)}")
    else: A(f"v_lshlrev_b32 {vr(vBst)}, 3, v1")
    A(f"v_add_u32 {vr(vBst)}, s34, {vr(vBst)}")
    A("s_lshr_b32 s34, s32, 4"); A("s_lshl2_add_u32 s34, s34, s30"); A("s_lshl_b32 s34, s34, 12"); A("s_add_u32 s34, s34, s33")
    A("s_and_b32 s36, s32, 15"); A("s_lshl4_add_u32 s34, s36, s34")
    A(f"v_lshrrev_b32 {vr(vOst)}, 2, v0"); A(f"v_lshlrev_b32 {vr(vOst)}, 8, {vr(vOst)}"); A(f"v_and_b32 {vr(vT+4)}, 3, v0")
    A(f"v_lshl_add_u32 {vr(vOst)}, {vr(vT+4)}, 2, {vr(vOst)}"); A(f"v_add_u32 {vr(vOst)}, s34, {vr(vOst)}")
    A("s_lshl_b32 s34, s30, 8"); A(f"s_add_u32 s34, s34, {L_PP}")
    if m4: A(f"v_and_b32 {vr(vPPr)}, 31, v0"); A(f"v_lshlrev_b32 {vr(vPPr)}, 3, {vr(vPPr)}")
    else: A(f"v_lshlrev_b32 {vr(vPPr)}, 4, v1")
    A(f"v_add_u32 {vr(vPPr)}, s34, {vr(vPPr)}")
    A("s_lshl_b32 s34, s30, 9"); A(f"s_add_u32 s34, s34, {L_OP}")
    A(f"v_lshlrev_b32 {vr(vOPr)}, 3, v0"); A(f"v_add_u32 {vr(vOPr)}, s34, {vr(vOPr)}")
    A("s_lshl_b32 s34, s30, 10"); A(f"s_add_u32 s34, s34, {L_PP}")
    A(f"v_lshlrev_b32 {vr(vPPa)}, 2, v1"); A(f"v_lshl_add_u32 {vr(vPPa)}, v2, 8, {vr(vPPa)}"); A(f"v_add_u32 {vr(vPPa)}, s34, {vr(vPPa)}")
    A("s_mov_b32 s38, 0xffff0000")
    def qproj(after=0):
        A("s_cmp_eq_u32 s30, 0"); A("s_cbranch_scc0 L_nopub")
        A.c("T0: q projection, 64 columns x a quarter of the rows, all 8 batches; LayerNorm applied after the product")
        A("s_mov_b32 s34, 0x3f803f80")
        for i in range(56): A(f"v_mov_b32 {vr(vX+i)}, s34")
        A(f"v_and_b32 {vr(tT+1)}, 7, v1"); A(f"v_mul_u32_u24 {vr(tT+1)}, 896, {vr(tT+1)}"); A(f"v_add_u32 {vr(tT+1)}, {L_X}, {vr(tT+1)}")
        A(f"v_lshl_add_u32 {vr(tT)}, v2, 4, {vr(tT+1)}")
        A("s_mul_i32 s33, s48, 224"); A(f"v_lshl_add_u32 {vr(tT+1)}, v2, 3, {vr(tT+1)}"); A(f"v_add_u32 {vr(tT+1)}, s33, {vr(tT+1)}")
        A(f"v_lshrrev_b32 {vr(tT+2)}, 2, v0"); A(f"v_lshlrev_b32 {vr(tT+2)}, 7, {vr(tT+2)}"); A(f"v_and_or_b32 {vr(tT+2)}, v3, 48, {vr(tT+2)}")
        A(f"v_add_u32 {vr(tT+2)}, {L_WQ}, {vr(tT+2)}")
        A(f"v_bfe_u32 {vr(tT+3)}, v1, 2, 1"); A(f"v_lshl_add_u32 {vr(tT+3)}, {vr(tT+3)}, 4, v1"); A(f"v_lshlrev_b32 {vr(tT+3)}, 2, {vr(tT+3)}")
        A(f"v_lshlrev_b32 {vr(tT+4)}, 2, v1"); A(f"v_add_u32 {vr(tT+4)}, 128, {vr(tT+4)}")
        A(f"v_and_b32 {vr(tT+5)}, 3, v1")
        sm = ('', 's[6:7]', 's[8:9]', 's[14:15]')
        for i in range(1, 4): A(f"v_cmp_eq_u32 {sm[i]}, {i}, {vr(tT+5)}")
        D1 = vX + 16; D2 = tT + 8; wf = vW
        A("s_mov_b32 exec_lo, 0x00ff00ff"); A("s_mov_b32 exec_hi, 0x00ff00ff")
        A(f"s_waitcnt vmcnt({14 + after})")
        for t in range(14): A(f"ds_read_b128 {vr(vX+4*t,4)}, {vr(tT)} offset:{64*t}")
        A("s_mov_b64 exec, -1")
        for t in range(14):
            A(f"s_waitcnt lgkmcnt({13-t})")
            c = "0" if t == 0 else vr(D2, 4)
            A(f"v_mfma_f32_16x16x32_bf16 {vr(D2,4)}, {vr(vX+4*t,4)}, {vr(vX+4*t,4)}, {c}")
        for i in range(1, 4): A(f"v_cndmask_b32 {vr(D2)}, {vr(D2)}, {vr(D2+i)}, {sm[i]}")
        A(f"ds_bpermute_b32 {vr(tT+6)}, {vr(tT+3)}, {vr(D2)}")
        A(f"ds_bpermute_b32 {vr(tT+7)}, {vr(tT+4)}, {vr(D2)}")
        A("s_mov_b32 exec_lo, 0x00ff00ff"); A("s_mov_b32 exec_hi, 0x00ff00ff")
        for t in range(7): A(f"ds_read_b64 {vr(vX+2*t,2)}, {vr(tT+1)} offset:{32*t}")
        A("s_mov_b64 exec, -1")
        A(f"s_mov_b32 s33, {f32(1.0/448)}")
        A("s_waitcnt lgkmcnt(0)")
        A(f"v_mul_f32 {vr(tT+7)}, s33, {vr(tT+7)}")
        A(f"v_mul_f32 {vr(tT+6)}, s33, {vr(tT+6)}")
        A(f"v_fma_f32 {vr(tT+6)}, -{vr(tT+7)}, {vr(tT+7)}, {vr(tT+6)}")
        A(f"v_max_f32 {vr(tT+6)}, 0, {vr(tT+6)}")
        A(f"v_add_f32 {vr(tT+6)}, {f32(1e-5)}, {vr(tT+6)}")
        A(f"v_rsq_f32 {vr(tT+6)}, {vr(tT+6)}")
        A(f"s_waitcnt vmcnt({after})")
        if lk == 0: A("s_load_dword s46, s[26:27], s63")
        stamp(1)
        for np_ in range(2):
            for t in range(7):
                for e in range(2):
                    A(f"ds_read_b64_tr_b16 {vr(wf+4*t+2*e,2)}, {vr(tT+2)} offset:{2048*t + 64*np_ + 8*e}")
            for t in range(7):
                A(f"s_waitcnt lgkmcnt({12-2*t})")
                for e in range(2):
                    D = D1 + 8*np_ + 4*e
                    c = "0" if t == 0 else vr(D, 4)
                    A(f"v_mfma_f32_16x16x16_bf16 {vr(D,4)}, {vr(wf+4*t+2*e,2)}, {vr(vX+2*t,2)}, {c}")
        if lk == 1: A("s_load_dword s46, s[26:27], s63")
        for i0 in (0, 8):
            for i in range(8):
                A(f"v_mul_f32_dpp {vr(D2+i)}, {vr(D1+i0+i)}, {vr(tT+7)} row_newbcast:8 row_mask:0xf bank_mask:0xf")
            for i in range(8):
                A(f"v_sub_f32 {vr(D2+i)}, {vr(D1+i0+i)}, {vr(D2+i)}")
                A(f"v_mul_f32 {vr(D2+i)}, {vr(D2+i)}, {vr(tT+6)}")
            for i in range(4):
                A(f"v_cvt_pk_bf16_f32 {vr(vQs+i0//2+i)}, {vr(D2+2*i)}, {vr(D2+2*i+1)}")
                A(f"v_min_u32 {vr(vQs+i0//2+i)}, -2, {vr(vQs+i0//2+i)}")
        publish_q()
    wE = vC; bE = vC + 14; w2 = vC + 28; cB = vC + 42; cA = vC + 44; Ac = vC + 46; uu = vRaw + 4; pz = vRaw + 18
    def conv():
        A(f"v_and_b32 {vr(vT+4)}, 16, v3")
        for k in range(3):
            for i in range(3): A(f"v_alignbit_b32 {vr(raw+4*k+i)}, {vr(raw+4*k+i+1)}, {vr(raw+4*k+i)}, {vr(vT+4)}")
            A(f"v_lshrrev_b32 {vr(raw+4*k+3)}, {vr(vT+4)}, {vr(raw+4*k+3)}")
            for i in range(7):
                d = (wE, bE, w2)[k] + 2*i
                if i & 1: A(f"v_and_b32 {vr(d)}, s38, {vr(raw+4*k+(i>>1))}")
                else: A(f"v_lshlrev_b32 {vr(d)}, 16, {vr(raw+4*k+(i>>1))}")
        A(f"v_mov_b32 {vr(cB)}, {f32(BETA)}"); A(f"v_mov_b32 {vr(cA)}, {f32(ALPHA)}")
        A(f"v_lshlrev_b32 {vr(vB2)}, 16, {vr(vB2)}")
    def tab_publish():
        A("s_cmp_eq_u32 s30, 2"); A("s_cbranch_scc0 L_notp")
        A.c("T2: add the four waves' sums and b2, publish the table entries")
        A(f"v_lshlrev_b32 {vr(vT+8)}, 3, v1"); A(f"v_add_u32 {vr(vT+8)}, {L_LT}, {vr(vT+8)}")
        for w_ in range(4): A(f"ds_read_b64 {vr(vT+10+2*w_,2)}, {vr(vT+8)} offset:{128*w_}")
        A("s_waitcnt lgkmcnt(0)")
        for w_ in range(1, 4): A(f"v_pk_add_f32 {vr(vT+10,2)}, {vr(vT+10,2)}, {vr(vT+10+2*w_,2)}")
        A(f"v_add_f32 {vr(vT+10)}, {vr(vT+10)}, {vr(vB2)}"); A(f"v_add_f32 {vr(vT+11)}, {vr(vT+11)}, {vr(vB2)}")
        A(f"v_cvt_pk_bf16_f32 {vr(vT+10)}, {vr(vT+10)}, {vr(vT+11)}"); A(f"v_min_u32 {vr(vT+10)}, -2, {vr(vT+10)}")
        A(f"s_mov_b64 exec, {(1 << NM) - 1}")
        A(f"global_store_dword {vr(vTs)}, {vr(vT+10)}, s[28:29] sc1")
        A("s_mov_b64 exec, -1")
        A("L_notp:")
    last = max(k for k in range(5) if NI[k] or NI0[k])
    pubpos = max(last - 1, 0)
    ncall = [0]
    def tab(k):
        if not NI[k] and not NI0[k]: return
        ncall[0] += 1
        if NI[k] == NI0[k]: A(f"s_mov_b32 s98, {NI[k]}")
        else:
            A("s_cmp_eq_u32 s30, 0"); A(f"s_cselect_b32 s98, {NI0[k]}, {NI[k]}")
            if not NI[k] or not NI0[k]: A(f"s_cbranch_scc{0 if NI0[k] else 1} L_nt{k}")
        A("s_call_b64 s[100:101], L_tab")
        A(f"L_nt{k}:")
    def sub_tab():
        A(".p2alignl 3, 0xbf810000")
        A("L_tab:")
        A.c("F(+t), F(-t) for two bf16 magnitudes t per pass: this wave's 448 terms of sum_f gelu(t*w1 + b1) * w2")
        for hf in range(2):
            for i in range(7): A(f"v_pk_fma_f32 {vr(uu+2*i,2)}, s[96:97], {vr(wE+2*i,2)}, {vr(bE+2*i,2)} op_sel_hi:[1,0,0]")
            for i in range(7): A(f"v_pk_mul_f32 {vr(pz+2*i,2)}, {vr(uu+2*i,2)}, {vr(uu+2*i,2)}")
            for i in range(7): A(f"v_pk_fma_f32 {vr(pz+2*i,2)}, {vr(pz+2*i,2)}, {vr(cB,2)}, {vr(cA,2)} op_sel_hi:[1,0,0]")
            for i in range(7): A(f"v_pk_mul_f32 {vr(pz+2*i,2)}, {vr(pz+2*i,2)}, {vr(uu+2*i,2)}")
            for i in range(14): A(f"v_exp_f32 {vr(pz+i)}, {vr(pz+i)}")
            A("s_add_u32 s96, s96, 0x10000"); A("s_add_u32 s97, s97, 0x10000")
            for i in range(7): A(f"v_pk_add_f32 {vr(pz+2*i,2)}, {vr(pz+2*i,2)}, 1.0 op_sel_hi:[1,0]")
            for i in range(14): A(f"v_rcp_f32 {vr(pz+i)}, {vr(pz+i)}")
            for i in range(7): A(f"v_pk_mul_f32 {vr(uu+2*i,2)}, {vr(uu+2*i,2)}, {vr(pz+2*i,2)}")
            for i in range(7):
                if i == 0: A(f"v_pk_mul_f32 {vr(Ac+2*hf,2)}, {vr(uu,2)}, {vr(w2,2)} op_sel_hi:[1,0]")
                else: A(f"v_pk_fma_f32 {vr(Ac+2*hf,2)}, {vr(uu+2*i,2)}, {vr(w2+2*i,2)}, {vr(Ac+2*hf,2)} op_sel_hi:[1,0,1]")
        for hf in range(2): A(f"v_permlane32_swap_b32 {vr(Ac+2*hf)}, {vr(Ac+2*hf+1)}")
        for hf in range(2): A(f"v_add_f32 {vr(Ac+2*hf)}, {vr(Ac+2*hf)}, {vr(Ac+2*hf+1)}")
        A("s_sub_u32 s98, s98, 1"); A("s_cmp_lg_u32 s98, 0")
        A(f"v_permlane16_swap_b32 {vr(Ac)}, {vr(Ac+2)}")
        A(f"v_add_f32 {vr(Ac)}, {vr(Ac)}, {vr(Ac+2)}")
        for sh in (8, 4, 2, 1): A(f"v_add_f32_dpp {vr(Ac)}, {vr(Ac)}, {vr(Ac)} row_ror:{sh} row_mask:0xf bank_mask:0xf")
        A(f"ds_write_b32 {vr(vLT)}, {vr(Ac)}")
        A(f"v_add_u32 {vr(vLT)}, 16, {vr(vLT)}")
        A("s_cbranch_scc1 L_tab")
        A("s_waitcnt lgkmcnt(0)")
        A("s_setpc_b64 s[100:101]")
    if cpos in ("b0b", "aft"):
        assert not NI[0] and not NI0[0]
        if cpos == "b0b": A("s_barrier")
        prep_loads()
        qproj(4)
        A("s_cmp_eq_u32 s30, 0"); A("s_cselect_b32 s33, s49, 1"); A("s_cmp_eq_u32 s33, 0"); A("s_cbranch_scc1 L_pw"); A("s_waitcnt vmcnt(0)"); A("L_pw:")
        A("s_waitcnt vmcnt(2)")
        conv()
    else:
        A("s_cmp_eq_u32 s30, 0"); A("s_cbranch_scc1 L_pw"); A("s_waitcnt vmcnt(0)"); A("L_pw:")
        A("s_waitcnt vmcnt(14)")
        conv(); tab(0); qproj()
    tab(1)
    A("s_lshr_b32 s33, s32, 2"); A("s_lshl_b32 s33, s33, 12"); A("s_add_u32 s33, s33, s39")
    A(f"v_add_u32 {vr(vT)}, s33, v3"); A(f"v_add_u32 {vr(vT+1)}, {L_Q}, v3")
    A(f"v_and_b32 {vr(vT+20)}, 7, v0"); A(f"v_lshlrev_b32 {vr(vT+20)}, 2, {vr(vT+20)}"); A(f"v_mov_b32 {vr(vT+19)}, {L_STAT + 64}")
    stamp(4)
    qa = vX
    def qissue():
        for k in range(4): A(f"global_load_dwordx4 {vr(qa+4*k,4)}, {vr(vT)}, s[28:29] offset:{1024*k} sc1")
    def qload():
        qissue(); A("s_waitcnt vmcnt(0)")
    A("s_cmp_eq_u32 s30, 0"); A("s_cselect_b32 s33, s49, 1"); A("s_cmp_eq_u32 s33, 0")
    A("s_barrier")
    A("s_cbranch_scc0 L_nqi")
    qissue()
    A("L_nqi:")
    if pubpos == 0: tab_publish()
    tab(2)
    A("s_mov_b32 s35, 0")
    A("s_cmp_eq_u32 s30, 0")
    A("s_cbranch_scc0 L_b1b")
    A.c("T0: gather the four q partials, add, hand to the stream waves")
    A("s_cmp_eq_u32 s49, 0"); A("s_cbranch_scc0 L_glob")
    A("L_qchk:")
    A("s_waitcnt vmcnt(0)")
    A(f"v_max3_u32 {vr(vT+2)}, {vr(qa)}, {vr(qa+1)}, {vr(qa+2)}")
    for i in range(3, 15, 2): A(f"v_max3_u32 {vr(vT+2)}, {vr(vT+2)}, {vr(qa+i)}, {vr(qa+i+1)}")
    A(f"v_max_u32 {vr(vT+2)}, {vr(vT+2)}, {vr(qa+15)}")
    A(f"v_cmp_eq_u32 vcc, -1, {vr(vT+2)}")
    A("s_cbranch_vccnz L_qretry")
    def ool_q():
        A("L_qretry:")
        if cnt: A("s_mov_b32 s91, 1")
        A("s_add_u32 s35, s35, 1")
        A(f"s_cmp_ge_u32 s35, {SPIN}")
        A("s_cbranch_scc1 L_qdone")
        A("s_bitcmp1_b32 s35, 0"); A("s_cbranch_scc1 L_qpoll")
        A(f"v_mov_b32 {vr(vT+12)}, s63")
        A(f"global_load_dword {vr(vT+13)}, {vr(vT+12)}, s[26:27] offset:32 sc1")
        A("s_waitcnt vmcnt(0)")
        A(f"v_readfirstlane_b32 s46, {vr(vT+13)}")
        A("s_cmp_eq_u32 s46, 0")
        A("s_cbranch_scc1 L_qpoll")
        A("L_glob:")
        A.c("group spread over several XCDs: write-through hand-off in the second copy, ordered by a counter")
        A("s_mov_b32 s49, 1")
        for i in range(4): A(f"v_mov_b32 {vr(qa+i)}, -1")
        A("s_lshl_b32 s33, s32, 10"); A("s_add_u32 s33, s33, s39"); A(f"s_add_u32 s33, s33, {W_O + W_ALT}")
        A(f"v_add_u32 {vr(vT+12)}, s33, v3"); A(f"v_add_u32 {vr(vT+13)}, {W_ALT}, {vr(vLst)}"); A(f"v_add_u32 {vr(vT+14)}, {W_ALT}, {vr(vQa)}")
        A(f"v_add_u32 {vr(vT)}, {W_ALT}, {vr(vT)}"); A(f"v_mov_b32 {vr(vT+15)}, s63")
        A(f"global_store_dwordx4 {vr(vT+12)}, {vr(qa,4)}, s[28:29] sc1")
        A("s_bfe_u32 s33, s41, 0x10002")
        if bph: A("s_xor_b32 s33, s33, 1")
        A("s_lshl_b32 s33, s33, 13"); A("s_add_u32 s33, s33, s40"); A(f"v_add_u32 {vr(vT+12)}, s33, v3")
        A("s_mov_b32 exec_hi, 0")
        A(f"global_store_dwordx4 {vr(vT+12)}, {vr(qa,4)}, s[28:29] sc1")
        A("s_mov_b64 exec, 3")
        A(f"global_store_dword {vr(vT+13)}, {vr(qa)}, s[28:29] sc1")
        A("s_mov_b32 exec_lo, 0x00ff00ff"); A("s_mov_b32 exec_hi, 0x00ff00ff")
        for k in range(2): A(f"global_store_dwordx4 {vr(vT+14)}, {vr(vQs+4*k,4)}, s[28:29] offset:{64*k} sc1")
        A("s_mov_b64 exec, -1")
        A("s_add_u32 s46, s63, 64"); A("s_mov_b32 s47, 1"); A("s_mov_b32 s35, 0")
        A("s_waitcnt vmcnt(0)")
        A("s_atomic_add s47, s[26:27], s46")
        A("L_gl:")
        A(f"global_load_dword {vr(vT+13)}, {vr(vT+15)}, s[26:27] offset:64 sc1")
        A("s_add_u32 s35, s35, 1")
        A("s_waitcnt vmcnt(0) lgkmcnt(0)")
        A(f"v_readfirstlane_b32 s46, {vr(vT+13)}")
        A(f"s_cmp_ge_u32 s35, {SPIN}"); A("s_cselect_b32 s46, 32, s46")
        A("s_cmp_lt_u32 s46, 32")
        A("s_cbranch_scc1 L_gl")
        qload()
        A("s_branch L_qdone")
        A("L_qpoll:")
        qissue()
        A("s_branch L_qchk")
    OOL.append(ool_q)
    A("L_qdone:")
    stamp(14)
    for k in range(4):
        for p in range(4):
            A(f"v_lshlrev_b32 {vr(vT+4+2*p)}, 16, {vr(qa+4*p+k)}"); A(f"v_and_b32 {vr(vT+5+2*p)}, s38, {vr(qa+4*p+k)}")
        A(f"v_pk_add_f32 {vr(vT+4,2)}, {vr(vT+4,2)}, {vr(vT+6,2)}"); A(f"v_pk_add_f32 {vr(vT+8,2)}, {vr(vT+8,2)}, {vr(vT+10,2)}")
        A(f"v_pk_add_f32 {vr(vT+4,2)}, {vr(vT+4,2)}, {vr(vT+8,2)}")
        A(f"v_cvt_pk_bf16_f32 {vr(qa+k)}, {vr(vT+4)}, {vr(vT+5)}")
    A(f"ds_write_b128 {vr(vT+1)}, {vr(qa,4)}")
    A(f"v_mov_b32 {vr(vT+2)}, s49")
    A(f"ds_write_b32 {vr(vT+19)}, {vr(vT+2)}")
    A(f"s_cmp_eq_u32 s32, {R2}"); A("s_cbranch_scc0 L_nof2")
    A.c("every member of this group has cleared its share of the out-projection slots")
    A("s_mov_b32 s33, 0x100000")
    A("s_waitcnt lgkmcnt(0)")
    A("s_barrier")
    A("s_atomic_add s33, s[26:27], s63")
    A("s_branch L_b1c")
    A("L_nof2:")
    A("s_waitcnt lgkmcnt(0)")
    A("L_b1b:")
    A("s_barrier")
    A("L_b1c:")
    A(f"ds_read_b32 {vr(vT+21)}, {vr(vT+19)}")
    if pubpos == 1: tab_publish()
    tab(3)
    A(f"v_and_b32 {vr(vT)}, 1, v0"); A(f"v_lshlrev_b32 {vr(vT)}, 5, {vr(vT)}"); A(f"v_add_u32 {vr(vT)}, {L_STAT}, {vr(vT)}")
    A("s_barrier")
    A(f"ds_read_b128 {vr(vT+4,4)}, {vr(vT)}")
    A(f"ds_read_b128 {vr(vT+8,4)}, {vr(vT)} offset:16")
    A("s_waitcnt lgkmcnt(0)")
    stats(vT + 4, vT + 8, vT + 1, vT + 2)
    A(f"v_log_f32 {vr(vT+2)}, {vr(vT+2)}")
    A(f"v_add_f32 {vr(vLse)}, {vr(vT+1)}, {vr(vT+2)}")
    A(f"v_min_u32 {vr(vLse)}, -2, {vr(vLse)}")
    A(f"v_readfirstlane_b32 s62, {vr(vT+21)}")
    A("s_lshl_b32 s33, s62, 20")
    for r_ in (vLa, vLst, vOa, vOst): A(f"v_add_u32 {vr(r_)}, s33, {vr(r_)}")
    A("s_cmp_eq_u32 s30, 1"); A("s_cbranch_scc0 L_nolse")
    A("s_mov_b64 exec, 3")
    A("s_cmp_eq_u32 s62, 0"); A("s_cbranch_scc0 L_slowlse")
    A(f"global_store_dword {vr(vLst)}, {vr(vLse)}, s[28:29]")
    A("L_lsed:")
    A("s_mov_b64 exec, -1")
    A("L_nolse:")
    if wbm:
        A("s_cmp_eq_u32 s30, 2"); A("s_cselect_b32 s33, s32, 0"); A("s_cmp_eq_u32 s33, 31"); A("s_cbranch_scc0 L_nowbm"); A("buffer_wbl2 sc1"); A("L_nowbm:")
    def ool_lse():
        A("L_slowlse:")
        A(f"global_store_dword {vr(vLst)}, {vr(vLse)}, s[28:29] sc1")
        A("s_branch L_lsed")
    OOL.append(ool_lse)
    A("s_mov_b64 s[56:57], s[12:13]"); A("s_mov_b32 s58, 0x380000"); A("s_mov_b32 s59, 0x20000")
    if pubpos == 2: tab_publish()
    tab(4)
    A("s_cmp_eq_u32 s60, s31"); A("s_cselect_b32 s45, 1, 0"); A("s_andn2_b32 s45, s45, s62")
    bl = vX + 16
    for i in range(16): A(f"v_mov_b32 {vr(bl+i)}, 0")
    for nt in range(1, 4): A(f"v_xor_b32 {vr(vRaw+nt)}, {32*nt}, {vr(vWr)}")
    ls4 = vT + 4; ck = vT + 1
    def lse_load():
        A(f"global_load_dwordx4 {vr(ls4,4)}, {vr(vLa)}, s[28:29] sc1")
        A(f"global_load_dword {vr(vT+21)}, {vr(vT+20)}, s[26:27] sc1")
    A(f"s_mov_b32 s36, {f32(1.0 + 1e-5)}")
    A("s_brev_b32 s40, 1"); A("s_brev_b32 s41, 1")
    def weights():
        A(f"v_and_b32 {vr(ck)}, 4, {vr(vT+21)}"); A(f"v_cmp_{'eq' if bph else 'ne'}_u32 s[6:7], 0, {vr(ck)}")
        A(f"v_lshrrev_b32 {vr(ck)}, 20, {vr(vT+21)}"); A(f"v_add_u32 {vr(ck)}, -1, {vr(ck)}")
        A(f"v_max3_u32 {vr(ck)}, {vr(ck)}, {vr(ls4)}, {vr(ls4+1)}"); A(f"v_max3_u32 {vr(ck)}, {vr(ck)}, {vr(ls4+2)}, {vr(ls4+3)}")
        A(f"v_cmp_eq_u32 vcc, -1, {vr(ck)}")
        A(f"v_max3_f32 {vr(vT+2)}, {vr(ls4)}, {vr(ls4+1)}, {vr(ls4+2)}"); A(f"v_max_f32 {vr(vT+2)}, {vr(vT+2)}, {vr(ls4+3)}")
        for i in range(4): A(f"v_sub_f32 {vr(ls4+i)}, {vr(ls4+i)}, {vr(vT+2)}")
        for i in range(4): A(f"v_exp_f32 {vr(ls4+i)}, {vr(ls4+i)}")
        A(f"v_add_f32 {vr(vT+2)}, {vr(ls4)}, {vr(ls4+1)}"); A(f"v_add_f32 {vr(vT+3)}, {vr(ls4+2)}, {vr(ls4+3)}")
        A(f"v_add_f32 {vr(vT+2)}, {vr(vT+2)}, {vr(vT+3)}"); A(f"v_rcp_f32 {vr(vT+2)}, {vr(vT+2)}")
        for i in range(4): A(f"v_mul_f32 {vr(ls4+i)}, {vr(ls4+i)}, {vr(vT+2)}")
    A.c("split-combine weights; vcc != 0: some lse had not arrived yet, redo after publishing")
    if tal >= 0:
        A("s_branch L_tail"); sub_tab(); A(".p2alignl 12, 0xbf810000")
        if tal: A(f".fill {tal // 4}, 4, 0xbf810000")
        A("L_tail:")
    stamp(2)
    A("s_barrier")
    if pubpos == 3: tab_publish()
    lse_load()
    wo_loads(0, 8 - NB, "b")
    A(f"s_mov_b32 s35, {-SPIN & 0xffffffff}")
    A("s_cmp_eq_u32 s62, 0")
    A("L_b3:")
    A("s_barrier")
    stamp(5)
    if "E" in skip: A("s_branch L_fin")
    A.c("reduce the four stream waves' o partials, publish as bf16")
    o = vX; ls4 = vT + 4; oa = vX + 32; Dc = vX + 40; ck = vT + 1
    for w_ in range(4): A(f"ds_read_b64 {vr(o+2*w_,2)}, {vr(vOPr)} offset:{2048*w_}")
    for w_ in range(1, 4):
        A(f"s_waitcnt lgkmcnt({3-w_})")
        A(f"v_pk_add_f32 {vr(o,2)}, {vr(o,2)}, {vr(o+2*w_,2)}")
    A(f"v_cvt_pk_bf16_f32 {vr(o)}, {vr(o)}, {vr(o+1)}")
    A(f"v_min_u32 {vr(o)}, -2, {vr(o)}")
    A("s_cbranch_scc0 L_slowpub")
    A(f"global_store_dword {vr(vOst)}, {vr(o)}, s[28:29] {lp}")
    A("L_pubd:")
    def ool_pub():
        A("L_slowpub:")
        A(f"global_store_dword {vr(vOst)}, {vr(o)}, s[28:29] sc1")
        A("s_branch L_pubd")
    OOL.append(ool_pub)
    stamp(6)
    A.c("out projection")
    def aset():
        for tt in range(2):
            A(f"global_load_dwordx4 {vr(oa+4*tt,4)}, {vr(vOa)}, s[28:29] offset:{1024*tt} sc1")
    if ap:
        wo_loads(8 - NB, 8, "c")
        seqv = [f"w{i}" for i in range(NE, 8 - NB)] + ["st"] + [f"w{i}" for i in range(8 - NB, 8)]
        def upto(i):
            live = [k for k, x in enumerate(seqv) if x[0] == "w" and int(x[1:]) <= i]
            if live: A(f"s_waitcnt vmcnt({len(seqv) - 1 - max(live)})")
        A("s_cmp_ge_u32 s32, 28"); A("s_cbranch_scc1 L_hi")
        A(f"s_waitcnt vmcnt({len(seqv)})")
        weights()
        upto(3)
        if ap == 1: aset(); seqv += ["a", "a"]
        wo_frags((0,))
        if ap >= 2: upto(3 + ap); aset(); seqv += ["a", "a"]
        upto(7); wo_frags((1,))
    else:
        aset()
        A(f"s_waitcnt vmcnt({3 + 8 - NE})")
        weights()
        if o1:
            A("s_waitcnt vmcnt(7)"); wo_frags((0,)); A("s_waitcnt vmcnt(3)"); wo_frags((1,))
        else:
            A("s_waitcnt vmcnt(3)"); wo_frags()
    A("s_cbranch_vccnz L_lretry")
    def ool_l():
        A("L_lretry:")
        if cnt: A("s_mov_b32 s92, 1")
        lse_load()
        A("s_add_u32 s35, s35, 1")
        A("s_waitcnt vmcnt(0)")
        weights()
        A("s_cbranch_scc1 L_lok")
        A("s_cbranch_vccnz L_lretry")
        A("L_lok:")
        A(f"s_mov_b32 s35, {-SPIN & 0xffffffff}")
        A("s_branch L_apoll0")
    OOL.insert(0, ool_l)
    A("L_apoll0:")
    A("s_bitcmp1_b32 s6, s60"); A("s_cselect_b32 s9, 8192, 0")
    def achk():
        A(f"v_max3_u32 {vr(ck)}, {vr(oa)}, {vr(oa+1)}, {vr(oa+2)}"); A(f"v_max3_u32 {vr(ck)}, {vr(ck)}, {vr(oa+3)}, {vr(oa+4)}")
        A(f"v_max3_u32 {vr(ck)}, {vr(ck)}, {vr(oa+5)}, {vr(oa+6)}"); A(f"v_max_u32 {vr(ck)}, {vr(ck)}, {vr(oa+7)}")
    if True:
        A("s_waitcnt vmcnt(0)")
        achk()
        A(f"v_cmpx_eq_u32 vcc, -1, {vr(ck)}")
        A("s_cbranch_execz L_adone")
        for _ in range(DA - 1):
            aset()
            for _ in range(GA): A("s_nop 7")
    A("L_apoll:")
    aset()
    A("s_add_u32 s35, s35, 1"); A("s_cselect_b32 s47, -1, -2")
    A(f"s_waitcnt vmcnt({2*(DA-1)})")
    achk()
    A(f"v_cmpx_lt_u32 vcc, s47, {vr(ck)}")
    A("s_cbranch_execnz L_apoll")
    A("L_adone:")
    A("s_mov_b64 exec, -1")
    A("s_waitcnt lgkmcnt(6)" if o1 else "s_waitcnt lgkmcnt(0)")
    A(f"s_mov_b32 s35, {-SPIN & 0xffffffff}")
    stamp(7)
    pp = vT + 16
    def wsum(c):
        return [f"v_mul_f32 {vr(pp+c)}, {vr(Dc+4*c)}, {vr(ls4)}"] + [f"v_fmac_f32 {vr(pp+c)}, {vr(Dc+4*c+i)}, {vr(ls4+i)}" for i in range(1, 4)]
    ws = sum((wsum(c) for c in range(4)), [])
    for k in range(8):
        c, tt = k >> 1, k & 1
        cc_ = "0" if tt == 0 else vr(Dc+4*c, 4)
        A(f"v_mfma_f32_16x16x32_bf16 {vr(Dc+4*c,4)}, {vr(oa+4*tt,4)}, {vr(vW+16*tt+4*c,4)}, {cc_}")
        if o1 and k in (2, 4, 6): A(f"s_waitcnt lgkmcnt({6 - k})")
        if k == 1: A(f"v_add_u32 {vr(vBst)}, s9, {vr(vBst)}"); A("s_cmp_eq_u32 s45, 0")
        if 2 <= k <= 3: A(f"s_nop {0 if (o1 and k == 2) else 1}")
        if k >= 4: A(ws.pop(0)); A(ws.pop(0))
    A(f"ds_write2_b32 {vr(vPPa)}, {vr(pp)}, {vr(pp+1)} offset0:0 offset1:16")
    for n_, x in enumerate(ws):
        if m8 and n_ == 4: A(f"ds_write_b32 {vr(vPPa)}, {vr(pp+2)} offset:128")
        A(x)
    if m8: A(f"ds_write_b32 {vr(vPPa)}, {vr(pp+3)} offset:192")
    else: A(f"ds_write2_b32 {vr(vPPa)}, {vr(pp+2)}, {vr(pp+3)} offset0:32 offset1:48")
    if m4:
        A("s_mov_b32 exec_hi, 0")
        A("s_waitcnt lgkmcnt(0)")
        stamp(8)
        A("s_barrier")
        pr = vX
        for w_ in range(4): A(f"ds_read_b64 {vr(pr+2*w_,2)}, {vr(vPPr)} offset:{1024*w_}")
        for w_ in range(1, 4):
            A(f"s_waitcnt lgkmcnt({3-w_})")
            A(f"v_pk_add_f32 {vr(pr,2)}, {vr(pr,2)}, {vr(pr+2*w_,2)}")
        A(f"v_cvt_pk_bf16_f32 {vr(pr)}, {vr(pr)}, {vr(pr+1)}")
        A(f"v_min_u32 {vr(pr)}, -2, {vr(pr)}")
        A("s_cbranch_scc0 L_plain")
        A(f"global_store_dword {vr(vBst)}, {vr(pr)}, s[28:29] sc1")
        stamp(9)
        if qc:
            A("s_cmp_eq_u32 s30, 3" ); A("s_cbranch_scc0 L_fin"); A("s_mov_b64 exec, -1")
            A("s_lshl_b32 s33, s32, 10"); A("s_add_u32 s33, s33, s39"); A(f"v_add_u32 {vr(vT)}, s33, v3")
            A(f"global_store_dwordx4 {vr(vT)}, {vr(vX+4,4)}, s[28:29] sc1")
        if wbx == 1:
            A("s_cmp_eq_u32 s30, 0"); A("s_cselect_b32 s33, s32, -1"); A("s_xor_b32 s34, s31, 4"); A("s_lshr_b32 s34, s34, 2"); A("s_cmp_eq_u32 s33, s34"); A("s_cbranch_scc0 L_fin"); A("s_waitcnt vmcnt(0)"); A("buffer_wbl2 sc1")
        A("s_branch L_fin" if (stamps or gamp or cnt) else "s_endpgm")
        A("L_plain:")
        A(f"global_store_dword {vr(vBst)}, {vr(pr)}, s[28:29]")
        stamp(9)
        A("s_branch L_fin" if (stamps or gamp or cnt) else "s_endpgm")
    A("L_hi:")
    if wbx == 3:
        A("s_cmp_eq_u32 s30, 0"); A("s_cselect_b32 s33, s32, 0"); A("s_cmp_eq_u32 s33, 30"); A("s_cbranch_scc0 L_nw3"); A("buffer_wbl2 sc1"); A("L_nw3:")
    if hp or wbx in (4, 5): A(f"s_sub_u32 s33, s32, {RF}"); A(f"s_cmp_le_u32 s33, {max(hp, 1)}")
    else: A(f"s_cmp_eq_u32 s32, {RF}")
    A("s_cbranch_scc0 L_fin")
    A.c("row finish: residual, both LayerNorms, MLP value from the table")
    A(f"global_load_dwordx2 {vr(vXr+2,2)}, {vr(vXa)}, s[4:5] {spol}")
    A("s_mov_b64 s[56:57], s[28:29]"); A(f"s_mov_b32 s58, {W_T + 1024*NM}"); A("s_mov_b32 s59, 0x20000")
    A(f"s_mul_i32 s33, s30, {256*NM}"); A("s_mov_b32 m0, s33"); A(f"s_add_u32 s33, s33, {W_T}")
    A("L_fl:")
    A("s_waitcnt vmcnt(0)")
    A(f"v_cmp_gt_u32 vcc, 0x100000, {vr(vT+21)}")
    A("s_add_u32 s35, s35, 1")
    A("s_cbranch_scc1 L_fld")
    A("s_cbranch_vccz L_fld")
    A(f"global_load_dword {vr(vT+21)}, {vr(vT+20)}, s[26:27] sc1")
    A("s_branch L_fl")
    A("L_fld:")
    A(f"v_readlane_b32 s34, {vr(vT+21)}, s31")
    for i in (2, 3): A(f"v_cndmask_b32 {vr(vXr+i)}, 0, {vr(vXr+i)}, s[42:43]")
    A("s_bitcmp1_b32 s34, 2"); A(f"s_cselect_b32 s34, {0 if bph else 8192}, {8192 if bph else 0}")
    A(f"v_lshlrev_b32 {vr(vXr)}, 16, {vr(vXr+2)}"); A(f"v_and_b32 {vr(vXr+1)}, s38, {vr(vXr+2)}")
    A(f"v_lshlrev_b32 {vr(vXr+2)}, 16, {vr(vXr+3)}"); A(f"v_and_b32 {vr(vXr+3)}, s38, {vr(vXr+3)}")
    A(f"v_add_u32 {vr(vBa)}, s34, {vr(vBa)}")
    A(f"v_mov_b32 {vr(vT)}, {L_HS}"); A(f"v_mov_b32 {vr(vT+18)}, {f32(1e-10)}")
    A(f"s_mov_b32 s37, {(E0 << 7) * 0x10001}"); A(f"s_mov_b32 s44, {(256*NM - 1) * 0x10001}"); A("v_cmp_lt_u32 s[14:15], 31, v0")
    A(f"v_mov_b32 {vr(vT+22)}, 0x01000c0c"); A(f"v_mov_b32 {vr(vT+23)}, 0x03020c0c")
    A(f"s_mov_b32 s35, {-SPIN & 0xffffffff}")
    def tdma():
        if hp or wbx == 5: A(f"s_cmp_eq_u32 s32, {RF}"); A("s_cbranch_scc0 L_notd")
        tdma0()
        if hp or wbx == 5: A("L_notd:")
    def tdma0():
        for i in range(NM // 4): A(f"buffer_load_dwordx4 v3, s[56:59], s33 offen offset:{1024*i} sc1 lds")
    if trig == 2: tdma()
    if trig:
        A.c("no use looking for rows before this group's o is complete")
        A("L_tpoll:")
        A(f"global_load_dwordx4 {vr(oa,4)}, {vr(vOa)}, s[28:29] sc1")
        A("s_add_u32 s35, s35, 1"); A("s_cselect_b32 s47, -1, -2")
        A("s_waitcnt vmcnt(0)")
        A(f"v_cmpx_lt_u32 vcc, s47, {vr(oa)}")
        A("s_cbranch_execnz L_tpoll")
        A("s_mov_b64 exec, -1")
        A(f"s_mov_b32 s35, {-SPIN & 0xffffffff}")
    stamp(7)
    if wbx == 4:
        A(f"s_cmp_eq_u32 s32, {RF}"); A("s_cbranch_scc1 L_nw4"); A("s_cmp_eq_u32 s30, 0"); A("s_cbranch_scc0 L_fin"); A("buffer_wbl2 sc1"); A("s_branch L_fin"); A("L_nw4:")
    if trig != 2: tdma()
    if "a" in bx: A("s_waitcnt vmcnt(0)")
    A("s_mov_b64 exec, s[42:43]")
    stamp(9)
    def bset():
        for i in range(4):
            A(f"global_load_dwordx4 {vr(bl+4*i,4)}, {vr(vBa)}, s[28:29] offset:{896*i} sc1")
    hh_ = vT + 12; s1 = vT + 8; hs = vT + 16
    if DB > 1:
        for _ in range(DB - 1): bset()
        A("L_bpoll:")
        bset()
        A("s_add_u32 s35, s35, 1"); A("s_cselect_b32 s47, -1, -2")
        A(f"s_waitcnt vmcnt({4*(DB-1)})")
        A(f"v_max3_u32 {vr(ck)}, {vr(bl)}, {vr(bl+1)}, {vr(bl+2)}")
        for i in range(3, 15, 2): A(f"v_max3_u32 {vr(ck)}, {vr(ck)}, {vr(bl+i)}, {vr(bl+i+1)}")
        A(f"v_max_u32 {vr(ck)}, {vr(ck)}, {vr(bl+15)}")
        A(f"v_cmpx_lt_u32 vcc, s47, {vr(ck)}")
        A("s_cbranch_execnz L_bpoll")
        A("s_mov_b64 exec, -1")
        for i in range(4): A(f"v_mfma_f32_16x16x32_bf16 {vr(hh_,4)}, {vr(vDl,4)}, {vr(bl+4*i,4)}, {vr(vXr if i == 0 else hh_,4)}")
    else:
        A("L_bpoll:")
        bset()
        A("s_add_u32 s35, s35, 1"); A("s_cselect_b32 s47, -1, -2")
        A("s_mov_b64 exec, -1")
        A.c("h = x + sum of the 16 partials (matrix core does the unpack and the adds); discarded while a partial is missing")
        for i in range(4):
            A(f"s_waitcnt vmcnt({3-i})")
            A(f"v_mfma_f32_16x16x32_bf16 {vr(hh_,4)}, {vr(vDl,4)}, {vr(bl+4*i,4)}, {vr(vXr if i == 0 else hh_,4)}")
            if i == 0:
                A(f"v_max3_u32 {vr(ck)}, {vr(bl)}, {vr(bl+1)}, {vr(bl+2)}"); A(f"v_max_u32 {vr(ck)}, {vr(ck)}, {vr(bl+3)}")
            else:
                A(f"v_max3_u32 {vr(ck)}, {vr(ck)}, {vr(bl+4*i)}, {vr(bl+4*i+1)}"); A(f"v_max3_u32 {vr(ck)}, {vr(ck)}, {vr(bl+4*i+2)}, {vr(bl+4*i+3)}")
        A(f"v_cmpx_lt_u32 vcc, s47, {vr(ck)}")
        A("s_cbranch_execnz L_bpoll")
        A("s_mov_b64 exec, -1")
    if hp or wbx == 5:
        A(f"s_cmp_eq_u32 s32, {RF}"); A("s_cbranch_scc0 " + ("L_w5" if wbx == 5 else "L_fin"))
        if wbx == 5:
            def ool_w5():
                A("L_w5:"); A.c("second reader of the row: start writing the spent hand-off lines back while the row is finished")
                A("s_cmp_eq_u32 s30, 0"); A("s_cbranch_scc0 L_fin"); A("buffer_wbl2 sc1"); A("s_branch L_fin")
            OOL.append(ool_w5)
    stamp(10)
    if wbx == 2: A("buffer_wbl2 sc1")
    for k in (0, 2): A(f"v_pk_fma_f32 {vr(vT+4+k,2)}, {vr(hh_+k,2)}, {vr(vKs,2)}, {vr(vKs+2,2)} op_sel_hi:[1,0,0]")
    A(f"v_pk_mul_f32 {vr(s1,2)}, {vr(hh_,2)}, {vr(vT+4,2)}")
    A(f"v_pk_fma_f32 {vr(s1,2)}, {vr(hh_+2,2)}, {vr(vT+6,2)}, {vr(s1,2)}")
    A(f"v_add_f32 {vr(s1)}, {vr(s1)}, {vr(s1+1)}")
    for k in range(2): A(f"v_cndmask_b32 {vr(hs+k)}, {vr(hh_+k)}, {vr(hh_+2+k)}, s[14:15]")
    for sh in (8, 4, 2, 1):
        A(f"v_add_f32_dpp {vr(s1)}, {vr(s1)}, {vr(s1)} row_ror:{sh} row_mask:0xf bank_mask:0xf")
    A(f"v_add_f32_dpp {vr(s1)}, {vr(s1)}, {vr(s1)} row_bcast:15 row_mask:0xa bank_mask:0xf")
    A("s_mov_b64 exec, s[40:41]")
    A(f"ds_write_b32 {vr(vHsw)}, {vr(s1)}")
    A("s_mov_b64 exec, s[42:43]")
    A("s_waitcnt lgkmcnt(0)")
    A("s_barrier")
    A.c("LayerNorm(LayerNorm(h)) = (h - mu) * rsqrt(var*(1+eps) + eps^2), rounded to bf16")
    h8 = vT + 4; mu = vT + 2; rs = vT + 3; dn = vT + 12; Pq = vT + 14; Qq = vT + 15; ad = vT + 4; yv = vT + 6; se = vT + 8
    A(f"ds_read_b128 {vr(h8,4)}, {vr(vT)}")
    A(f"ds_read_b128 {vr(h8+4,4)}, {vr(vT)} offset:16")
    A("s_waitcnt lgkmcnt(0)")
    A(f"v_pk_add_f32 {vr(h8,2)}, {vr(h8,2)}, {vr(h8+2,2)}")
    A(f"v_pk_add_f32 {vr(h8+4,2)}, {vr(h8+4,2)}, {vr(h8+6,2)}")
    A(f"v_pk_add_f32 {vr(mu,2)}, {vr(h8,2)}, {vr(h8+4,2)}")
    A(f"v_fma_f32 {vr(rs)}, -{vr(mu)}, {vr(mu)}, {vr(rs)}")
    A(f"v_fma_f32 {vr(rs)}, |{vr(rs)}|, s36, {vr(vT+18)}")
    A(f"v_rsq_f32 {vr(h8)}, {vr(rs)}")
    A(f"v_pk_add_f32 {vr(dn,2)}, {vr(hs,2)}, {vr(mu,2)} op_sel_hi:[1,0] neg_lo:[0,1] neg_hi:[0,1]")
    A(f"v_pk_mul_f32 {vr(dn,2)}, {vr(dn,2)}, {vr(h8,2)} op_sel_hi:[1,0]")
    A(f"v_cvt_pk_bf16_f32 {vr(Pq)}, {vr(dn)}, {vr(dn+1)}")
    A(f"v_pk_sub_u16 {vr(Qq)}, {vr(Pq)}, s37")
    A(f"v_pk_lshlrev_b16 {vr(ad+1)}, 2, {vr(Qq)} op_sel_hi:[0,1]")
    A(f"v_and_b32 {vr(ad)}, 0xffff, {vr(ad+1)}")
    A(f"v_lshrrev_b32 {vr(ad+1)}, 16, {vr(ad+1)}")
    A(f"ds_read_b32 {vr(yv)}, {vr(ad)}")
    A(f"ds_read_b32 {vr(yv+1)}, {vr(ad+1)}")
    stamp(11)
    A(f"v_cmp_gt_f32 vcc, 0, {vr(dn)}"); A(f"v_cmp_gt_f32 s[6:7], 0, {vr(dn+1)}")
    A(f"v_and_b32 {vr(Qq)}, 0x7fff7fff, {vr(Qq)}")
    A(f"v_pk_sub_u16 {vr(Qq)}, {vr(Qq)}, s44 clamp")
    if force_fb: A(f"v_or_b32 {vr(Qq)}, {force_fb}, {vr(Qq)}")
    A(f"v_cndmask_b32 {vr(se)}, {vr(vT+22)}, {vr(vT+23)}, vcc"); A(f"v_cndmask_b32 {vr(se+1)}, {vr(vT+22)}, {vr(vT+23)}, s[6:7]")
    A(f"v_cmp_ne_u32 vcc, 0, {vr(Qq)}")
    A(f"v_cndmask_b32 {vr(se+2)}, 0, -1, vcc")
    A("s_waitcnt lgkmcnt(0)")
    A(f"v_max3_u32 {vr(ck)}, {vr(yv)}, {vr(yv+1)}, {vr(se+2)}")
    for k in range(2): A(f"v_perm_b32 {vr(yv+k)}, {vr(yv+k)}, {vr(yv+k)}, {vr(se+k)}")
    A(f"v_cmp_eq_u32 vcc, -1, {vr(ck)}")
    A("L_out:")
    A(f"v_pk_add_f32 {vr(yv,2)}, {vr(yv,2)}, {vr(hs,2)}")
    A(f"v_cvt_pk_bf16_f32 {vr(yv)}, {vr(yv)}, {vr(yv+1)}")
    A("s_cbranch_vccnz L_miss")
    A(f"global_store_dword {vr(vOut)}, {vr(yv)}, s[24:25] {outpol}")
    def ool_miss():
        A("L_miss:")
        if cnt: A("s_mov_b32 s90, 1")
        A.c("an entry had not arrived when the table was copied: read it from memory")
        for k in range(2): A(f"v_min_u32 {vr(ad+k)}, {1024*NM - 4}, {vr(ad+k)}"); A(f"v_add_u32 {vr(ad+k)}, {W_T}, {vr(ad+k)}")
        A(f"s_mov_b32 s35, {-SPIN & 0xffffffff}")
        A("L_ml:")
        for k in range(2): A(f"global_load_dword {vr(yv+k)}, {vr(ad+k)}, s[28:29] sc1")
        A("s_add_u32 s35, s35, 1")
        A("s_waitcnt vmcnt(0)")
        A(f"v_max_u32 {vr(ck)}, {vr(yv)}, {vr(yv+1)}"); A(f"v_cmp_eq_u32 vcc, -1, {vr(ck)}")
        A("s_cbranch_scc1 L_mld")
        A("s_cbranch_vccnz L_ml")
        A("L_mld:")
        for k in range(2): A(f"v_perm_b32 {vr(yv+k)}, {vr(yv+k)}, {vr(yv+k)}, {vr(se+k)}")
        A.c("arguments outside the table (tiny or not finite): evaluate the sum for each of them")
        fa = vRaw; w_ = vRaw + 1; b_ = vRaw + 2; u_ = vRaw + 3; x_ = vRaw + 4; p_ = vRaw + 5; ac = vRaw + 6; tv = vRaw + 8
        A(f"v_lshlrev_b32 {vr(tv)}, 16, {vr(Pq)}"); A(f"v_and_b32 {vr(tv+1)}, s38, {vr(Pq)}")
        for k in range(2):
            A(f"v_and_b32 {vr(ck)}, {'0xffff' if k == 0 else 's38'}, {vr(Qq)}"); A(f"v_cmp_ne_u32 s[8:9], 0, {vr(ck)}")
            A(f"L_d{k}:")
            A("s_cmp_eq_u64 s[8:9], 0"); A(f"s_cbranch_scc1 L_dd{k}")
            A("s_ff1_i32_b64 s33, s[8:9]")
            A(f"v_readlane_b32 s34, {vr(tv+k)}, s33")
            A("s_mov_b64 exec, -1")
            A(f"v_lshlrev_b32 {vr(fa)}, 1, v0"); A(f"v_mov_b32 {vr(ac)}, 0"); A("s_mov_b32 s33, 0")
            A(f"L_e{k}:")
            A(f"global_load_ushort {vr(w_)}, {vr(fa)}, s[16:17]"); A(f"global_load_ushort {vr(b_)}, {vr(fa)}, s[18:19]"); A(f"global_load_ushort {vr(u_)}, {vr(fa)}, s[20:21]")
            A(f"v_add_u32 {vr(fa)}, 128, {vr(fa)}")
            A("s_waitcnt vmcnt(0)")
            for r_ in (w_, b_, u_): A(f"v_lshlrev_b32 {vr(r_)}, 16, {vr(r_)}")
            A(f"v_fma_f32 {vr(x_)}, {vr(w_)}, s34, {vr(b_)}")
            A(f"v_mul_f32 {vr(p_)}, {vr(x_)}, {vr(x_)}"); A(f"v_fma_f32 {vr(p_)}, {vr(p_)}, {vr(cB)}, {vr(cA)}"); A(f"v_mul_f32 {vr(p_)}, {vr(p_)}, {vr(x_)}")
            A(f"v_exp_f32 {vr(p_)}, {vr(p_)}"); A(f"v_add_f32 {vr(p_)}, 1.0, {vr(p_)}"); A(f"v_rcp_f32 {vr(p_)}, {vr(p_)}")
            A(f"v_mul_f32 {vr(x_)}, {vr(x_)}, {vr(p_)}"); A(f"v_fmac_f32 {vr(ac)}, {vr(x_)}, {vr(u_)}")
            A("s_add_u32 s33, s33, 1"); A("s_cmp_lt_u32 s33, 28"); A(f"s_cbranch_scc1 L_e{k}")
            for sh in (8, 4, 2, 1): A(f"v_add_f32_dpp {vr(ac)}, {vr(ac)}, {vr(ac)} row_ror:{sh} row_mask:0xf bank_mask:0xf")
            for sw in ("v_permlane32_swap_b32", "v_permlane16_swap_b32"):
                A(f"v_mov_b32 {vr(ac+1)}, {vr(ac)}"); A(f"{sw} {vr(ac)}, {vr(ac+1)}"); A(f"v_add_f32 {vr(ac)}, {vr(ac)}, {vr(ac+1)}")
            A(f"v_add_f32 {vr(ac)}, {vr(ac)}, {vr(vB2)}"); A(f"v_cvt_pk_bf16_f32 {vr(ac)}, {vr(ac)}, {vr(ac)}"); A(f"v_and_b32 {vr(ac)}, s38, {vr(ac)}")
            A("s_mov_b64 exec, s[42:43]")
            A(f"v_cmp_eq_u32 vcc, s34, {vr(tv+k)}")
            A(f"v_cndmask_b32 {vr(yv+k)}, {vr(yv+k)}, {vr(ac)}, vcc")
            A("s_andn2_b64 s[8:9], s[8:9], vcc")
            A(f"s_branch L_d{k}")
            A(f"L_dd{k}:")
        A("s_mov_b64 vcc, 0")
        A("s_branch L_out")
    OOL.append(ool_miss)
    A("L_fin:")
    stamp(13)
    if amp:
        A(f"s_cmp_eq_u32 s30, {amp[0]}"); A("s_cbranch_scc0 L_end")
        A("s_waitcnt lgkmcnt(0)")
        A(f"s_sub_u32 s33, s{64+2*amp[1]}, s{64+2*amp[2]}")
        if amp[3] < 0: A("s_sub_u32 s33, 3000, s33")
        A("s_min_u32 s33, s33, 5000"); A("s_lshl_b32 s33, s33, 3"); A("s_add_u32 s33, s33, 4000")
        A("L_amp:")
        A("s_memrealtime s[34:35]"); A("s_waitcnt lgkmcnt(0)"); A("s_sub_u32 s34, s34, s64")
        A("s_cmp_lt_u32 s34, s33"); A("s_cbranch_scc1 L_amp")
    if cnt:
        for k in range(3):
            A(f"s_cmp_eq_u32 s{90+k}, 0"); A(f"s_cbranch_scc1 L_c{k}"); A(f"s_atomic_add s{90+k}, s[26:27], {128+4*k}"); A("s_waitcnt lgkmcnt(0)"); A(f"L_c{k}:")
    if gamp:
        A(f"s_cmp_eq_u32 s30, {gamp[3] if len(gamp) > 3 else 1}"); A("s_cbranch_scc0 L_end")
        A("s_waitcnt lgkmcnt(0)")
        A(f"s_mov_b32 s36, s{64+2*gamp[0]}")
        A(f"s_not_b32 s37, s{64+2*gamp[1]}" if gamp[2] == "min" else f"s_mov_b32 s37, s{64+2*gamp[1]}")
        A("s_atomic_umax s36, s[26:27], 192"); A("s_atomic_umax s37, s[26:27], 196"); A("s_waitcnt lgkmcnt(0)")
        A("s_cmp_eq_u32 s2, 0"); A("s_cbranch_scc0 L_end")
        A("L_g1:")
        A("s_memrealtime s[34:35]"); A("s_waitcnt lgkmcnt(0)"); A("s_sub_u32 s34, s34, s64")
        A("s_cmp_lt_u32 s34, 3800"); A("s_cbranch_scc1 L_g1")
        A("s_load_dwordx2 s[36:37], s[26:27], 192 glc"); A("s_waitcnt lgkmcnt(0)")
        if gamp[2] == "min": A("s_not_b32 s37, s37")
        A("s_sub_u32 s33, s36, s37"); A("s_min_u32 s33, s33, 2000"); A(f"s_lshl_b32 s33, s33, {gamp[4] if len(gamp) > 4 else 3}"); A("s_add_u32 s33, s33, 4000")
        A("L_g2:")
        A("s_memrealtime s[34:35]"); A("s_waitcnt lgkmcnt(0)"); A("s_sub_u32 s34, s34, s64")
        A("s_cmp_lt_u32 s34, s33"); A("s_cbranch_scc1 L_g2")
    if rnd:
        A("s_cmp_eq_u32 s30, 0"); A("s_cselect_b32 s33, s2, 1"); A("s_cmp_eq_u32 s33, 0"); A("s_cbranch_scc0 L_end")
        A("s_memrealtime s[64:65]"); A("s_waitcnt lgkmcnt(0)")
        A("s_lshr_b32 s33, s64, 2"); A("s_mul_i32 s33, s33, 0x9e3779b1"); A("s_lshr_b32 s34, s33, 15"); A("s_xor_b32 s33, s33, s34"); A("s_mul_i32 s33, s33, 0x85ebca6b")
        A("s_lshr_b32 s33, s33, 19")
        A("L_rnd:")
        A("s_memrealtime s[34:35]"); A("s_waitcnt lgkmcnt(0)"); A("s_sub_u32 s34, s34, s64")
        A("s_cmp_lt_u32 s34, s33"); A("s_cbranch_scc1 L_rnd")
    dump_stamps(15)
    A("L_end:")
    A("s_endpgm")
    for f in OOL: f()
    A(".fill 1024, 4, 0xbf810000")

    body, nn = fix_hazards(A.L)
    if a8:
        import subprocess, tempfile, os
        i0 = body.index("L_tail:"); i1 = body.index("L_end:")
        probe = ['.amdgcn_target "amdgcn-amd-amdhsa--gfx950"', ".text"]
        for i, l in enumerate(body):
            if i0 <= i <= i1: probe.append(f"P_{i}:")
            probe.append(l)
        d = tempfile.mkdtemp(); open(d + "/p.s", "w").write("\n".join(probe) + "\n")
        subprocess.run(["clang", "-x", "assembler", "-target", "amdgcn-amd-amdhsa", "-mcpu=gfx950", "-c", d + "/p.s", "-o", d + "/p.o"], check=True)
        sym = subprocess.run(["llvm-objdump", "-t", d + "/p.o"], capture_output=True, text=True).stdout
        ad = {int(l.split()[-1][2:]): int(l.split()[0], 16) for l in sym.splitlines() if l.split() and l.split()[-1].startswith("P_")}
        sizes = [0] * len(body)
        for i in range(i0, i1): sizes[i] = ad[i + 1] - ad[i]
        st = body.index(a8[0] + ":")
        body, n8 = align8(body, a8[0], a8[1], sizes, ad[st] % 8)
    head = [l.rstrip("\n") for l in open("header.txt")]
    head.append(f"; @launch grid=(256,1,1) block=(512,1,1) lds={L_END}")
    head += DOC
    head += ['.amdgcn_target "amdgcn-amd-amdhsa--gfx950"', ".text"] + ([".p2align 12"] if al else []) + ([f".fill {pad // 4}, 4, 0xbf810000"] if pad else []) + [f".globl {NAME}", ".p2align 8", f".type {NAME},@function"]
    tail = ['.section .rodata,"a"'] + ([f".fill {rpad // 4}, 4, 0"] if rpad else []) + [".p2align 6", f".amdhsa_kernel {NAME}",
            "  .amdhsa_next_free_vgpr 256", "  .amdhsa_next_free_sgpr 102", "  .amdhsa_accum_offset 256",
            "  .amdhsa_group_segment_fixed_size 0", "  .amdhsa_kernarg_size 104", "  .amdhsa_user_sgpr_count 2",
            "  .amdhsa_user_sgpr_kernarg_segment_ptr 1", "  .amdhsa_system_sgpr_workgroup_id_x 1",
            "  .amdhsa_float_denorm_mode_32 3", ".end_amdhsa_kernel"]
    return "\n".join(head + body + tail) + "\n"

if __name__ == "__main__":
    kw = eval("dict(" + (sys.argv[2] if len(sys.argv) > 2 else "") + ")")
    open(sys.argv[1], "w").write(gen(**kw))
```
